```python
import torch

def _softmax(x, axis=-1):
    return torch.softmax(x, dim=axis)
def _gelu(x):
    return torch.nn.functional.gelu(x, approximate="tanh")
def _silu(x):
    return torch.nn.functional.silu(x)
def _sigmoid(x):
    return torch.sigmoid(x)
def _layernorm(x, axis=-1, eps=1e-5):
    m = x.mean(dim=axis, keepdim=True)
    v = x.var(dim=axis, keepdim=True, unbiased=False)
    return (x - m) / torch.sqrt(v + eps)
def _scatter_add(tgt, idx, src, axis=0):
    return tgt.clone().index_add_(axis, idx, src)
def _segment_sum(src, seg, n):
    out = torch.zeros((n,) + src.shape[1:], dtype=src.dtype)
    return out.index_add_(0, seg, src)
def _pad(x, pw):
    flat = tuple(v for pair in reversed(pw) for v in pair)
    return torch.nn.functional.pad(x, flat)

kernel_name = 'concat_heads__ssm_conv_s5__grouped_kv_mqa__prompt'

def setup_inputs():

    _w = (lambda a: (lambda t: t.to(torch.bfloat16) if t.is_floating_point() else t)(torch.as_tensor(a)))
    def _A_setup():
        B, S, D = 1, 2048, 512
        P = D
        Lambda_re = -0.5 * (lambda _x: torch.exp(torch.as_tensor(_x)))((lambda *s: torch.randn(*s, dtype=torch.bfloat16) * 0.2)(P))
        Lambda_im = (lambda *s: torch.randn(*s, dtype=torch.bfloat16) * 0.4)(P) * 1.0
        B_re = (lambda *s: torch.randn(*s, dtype=torch.bfloat16) * 0.2)(P, D) * (D ** -0.5)
        B_im = (lambda *s: torch.randn(*s, dtype=torch.bfloat16) * 0.2)(P, D) * (D ** -0.5)
        C_re = (lambda *s: torch.randn(*s, dtype=torch.bfloat16) * 0.2)(D, P) * (P ** -0.5)
        C_im = (lambda *s: torch.randn(*s, dtype=torch.bfloat16) * 0.2)(D, P) * (P ** -0.5)
        log_dt = (lambda *s: torch.randn(*s, dtype=torch.bfloat16) * 0.2)(P) * 0.3 - 2.0
        Dskip = (lambda *s: torch.randn(*s, dtype=torch.bfloat16) * 0.05)(D)
        return {
            "x": _w((lambda *s: torch.randn(*s, dtype=torch.bfloat16) * 0.05)(B, S, D)),
            "Lambda_re": _w(Lambda_re),
            "Lambda_im": _w(Lambda_im),
            "B_re": _w(B_re),
            "B_im": _w(B_im),
            "C_re": _w(C_re),
            "C_im": _w(C_im),
            "log_dt": _w(log_dt),
            "Dskip": _w(Dskip),
        }
    _A_in = _A_setup()

    def _B_setup():
        B, S, D, H = 1, 2048, 512, 32
        Dh = D // H
        return {
            "x": _w((lambda *s: torch.randn(*s, dtype=torch.bfloat16) * 0.05)(B, S, D)),
            "wq": _w((lambda *s: torch.randn(*s, dtype=torch.bfloat16) * 0.8)(D, H * Dh)),
            "wk": _w((lambda *s: torch.randn(*s, dtype=torch.bfloat16) * 0.8)(D, Dh)),
            "wv": _w((lambda *s: torch.randn(*s, dtype=torch.bfloat16) * 0.05)(D, Dh)),
            "wo": _w((lambda *s: torch.randn(*s, dtype=torch.bfloat16) * 0.05)(H * Dh, D)),
        }
    _B_in = _B_setup()

    return {
        "A_x": _A_in["x"],
        "A_Lambda_re": _A_in["Lambda_re"],
        "A_Lambda_im": _A_in["Lambda_im"],
        "A_B_re": _A_in["B_re"],
        "A_B_im": _A_in["B_im"],
        "A_C_re": _A_in["C_re"],
        "A_C_im": _A_in["C_im"],
        "A_log_dt": _A_in["log_dt"],
        "A_Dskip": _A_in["Dskip"],
        "B_x": _B_in["x"],
        "B_wq": _B_in["wq"],
        "B_wk": _B_in["wk"],
        "B_wv": _B_in["wv"],
        "B_wo": _B_in["wo"],
    }

def reference(A_x, A_Lambda_re, A_Lambda_im, A_B_re, A_B_im, A_C_re, A_C_im, A_log_dt, A_Dskip, B_x, B_wq, B_wk, B_wv, B_wo):
    def _A_ref(x, Lambda_re, Lambda_im, B_re, B_im, C_re, C_im, log_dt, Dskip):
        Bsz, L, H = x.shape
        Lam = Lambda_re + 1j * Lambda_im
        Bmat = B_re + 1j * B_im
        Cmat = C_re + 1j * C_im
        dt = torch.exp(log_dt)
        Lam_bar = torch.exp(dt * Lam)
        B_bar = ((Lam_bar - 1.0) / Lam)[:, None] * Bmat
        Bu = torch.einsum("bld,pd->blp", x + 0j, B_bar)
        h = torch.zeros_like(Bu[:, 0, :])
        hs = []
        for t in range(L):
            h = Lam_bar[None, :] * h + Bu[:, t, :]
            hs.append(h)
        hseq = torch.stack(hs, 1)
        y = 2.0 * torch.einsum("blp,dp->bld", hseq, Cmat).real + x * Dskip[None, None, :]
        return y

    def _B_ref(x, wq, wk, wv, wo):
        B, S, D = x.shape
        H = 32
        Dh = D // H
        q = (lambda x, *d: x.permute(*d))((x @ wq).reshape(B, S, H, Dh), 0, 2, 1, 3)
        k = x @ wk
        v = x @ wv
        scores = torch.einsum("bhqd,bkd->bhqk", q, k) * (Dh ** -0.5)
        p = _softmax(scores, axis=-1)
        o = torch.einsum("bhqk,bkd->bhqd", p, v)
        return (lambda x, *d: x.permute(*d))(o, 0, 2, 1, 3).reshape(B, S, H * Dh) @ wo

    a = _A_ref(A_x, A_Lambda_re, A_Lambda_im, A_B_re, A_B_im, A_C_re, A_C_im, A_log_dt, A_Dskip)
    b = _B_ref(B_x, B_wq, B_wk, B_wv, B_wo)
    return torch.concatenate([a, b], axis=-1)
```

```python
import re

class Asm:
    def __init__(self):
        self.lines = []
        self.uid = 0
    def __call__(self, s):
        for ln in s.strip("\n").split("\n"):
            ln = ln.rstrip()
            if ln.strip() == "":
                continue
            self.lines.append(ln if ln.strip().endswith(":") or ln.startswith(".") else "    " + ln.strip())
    def label(self, name):
        self.lines.append(name + ":")
    def newlabel(self, base):
        self.uid += 1
        return f"L_{base}_{self.uid}"
    def nop(self, n):
        while n > 0:
            k = min(n, 16)
            self(f"s_nop {k-1}")
            n -= k
    def comment(self, s):
        self.lines.append("    ; " + s)
    def text(self):
        return "\n".join(self.lines) + "\n"

def vr(a, n=1, p="v"):
    return f"{p}{a}" if n == 1 else f"{p}[{a}:{a+n-1}]"
def ar(a, n=1): return vr(a, n, "a")
def sr(a, n=1): return vr(a, n, "s")

_reg_re = re.compile(r"\b([vas])(?:(\d+)\b|\[(\d+):(\d+)\])")
def regs_of(tok):
    out = set()
    for m in _reg_re.finditer(tok):
        p = m.group(1)
        if m.group(2) is not None:
            out.add((p, int(m.group(2))))
        else:
            for i in range(int(m.group(3)), int(m.group(4)) + 1):
                out.add((p, i))
    if re.search(r"\bvcc\b", tok): out |= {("s", "vcc")}
    if re.search(r"\bexec\b", tok): out |= {("s", "exec")}
    if re.search(r"\bm0\b", tok): out |= {("s", "m0")}
    return out

TRANS = ("v_exp_f32", "v_log_f32", "v_rcp_f32", "v_rsq_f32", "v_sqrt_f32", "v_sin_f32", "v_cos_f32")
def split_ops(s):
    ops, depth, cur = [], 0, ""
    for ch in s:
        if ch == "[": depth += 1
        if ch == "]": depth -= 1
        if ch == "," and depth == 0:
            ops.append(cur.strip()); cur = ""
        else:
            cur += ch
    if cur.strip(): ops.append(cur.strip())
    return ops

class Ins:
    pass

def parse(line):
    t = line.split(";")[0].strip()
    if not t or t.endswith(":") or t.startswith("."):
        return None
    parts = t.split(None, 1)
    op = parts[0]
    ops = split_ops(parts[1]) if len(parts) > 1 else []
    I = Ins(); I.op = op; I.text = t
    I.mfma = op.startswith("v_mfma") or op.startswith("v_smfmac")
    I.valu = op.startswith("v_") and not I.mfma
    I.trans = any(op.startswith(x) for x in TRANS)
    I.vmem = op.startswith(("buffer_", "global_", "flat_"))
    I.ds = op.startswith("ds_")
    I.salu = op.startswith("s_")
    I.dpp = ("row_" in t or "quad_perm" in t or "wave_" in t or "_dpp" in op)
    I.perml = op.startswith("v_permlane")
    I.states = 1
    if op == "s_nop": I.states = int(ops[0], 0) + 1
    I.w, I.r = set(), set()
    I.srcA = I.srcB = I.srcC = set()
    if I.mfma:
        I.w = regs_of(ops[0]); I.srcA = regs_of(ops[1]); I.srcB = regs_of(ops[2])
        if op.startswith("v_smfmac"):
            I.srcC = set(I.w); I.idx = regs_of(ops[3].split()[0]); I.r = I.srcA | I.srcB | I.srcC | I.idx
        else:
            I.srcC = regs_of(ops[3].split()[0]); I.r = I.srcA | I.srcB | I.srcC
        I.passes = 8 if "32x32" in op else 4
    elif I.valu:
        if op.startswith("v_cmp"):
            I.w = regs_of(ops[0]); I.r = set().union(*[regs_of(o) for o in ops[1:]])
            if op.startswith("v_cmpx"): I.w |= {("s", "exec")}
        elif op.startswith(("v_permlane32_swap", "v_permlane16_swap", "v_swap")):
            I.w = regs_of(ops[0]) | regs_of(ops[1]); I.r = set(I.w)
        elif op.startswith(("v_add_co", "v_sub_co", "v_addc_co", "v_subb_co", "v_div_scale")):
            I.w = regs_of(ops[0]) | regs_of(ops[1]); I.r = set().union(*[regs_of(o) for o in ops[2:]])
        else:
            I.w = regs_of(ops[0]); I.r = set().union(*[regs_of(o) for o in ops[1:]]) if len(ops) > 1 else set()
            if op.startswith(("v_fmac", "v_pk_fmac", "v_dot2c")) or I.dpp or "UNUSED_PRESERVE" in t: I.r |= I.w
            if op.startswith("v_cndmask") and len(ops) == 3: I.r |= {("s", "vcc")}
    elif I.vmem:
        lds = re.search(r"\blds\b", t) is not None or "_lds_" in op
        if "store" in op or ("atomic" in op):
            I.r = set().union(*[regs_of(o) for o in ops]); I.store = True
            I.data = regs_of(ops[0]) if op.startswith("buffer") else regs_of(ops[1])
            I.wide = "x3" in op or "x4" in op
        elif lds:
            I.r = set().union(*[regs_of(o) for o in ops]) | {("s", "m0")}; I.lds = True
        elif op.startswith(("buffer_inv", "buffer_wbl2")):
            pass
        else:
            I.w = regs_of(ops[0]); I.r = set().union(*[regs_of(o) for o in ops[1:]])
    elif I.ds:
        if op.startswith(("ds_write", "ds_add_u32", "ds_add_f32", "ds_max", "ds_inc_u32")) and "rtn" not in op:
            I.r = set().union(*[regs_of(o) for o in ops])
        else:
            I.w = regs_of(ops[0]); I.r = set().union(*[regs_of(o) for o in ops[1:]])
    elif I.salu:
        if ops and not op.startswith(("s_cmp", "s_cbranch", "s_branch", "s_waitcnt", "s_nop", "s_sleep", "s_barrier", "s_setprio", "s_endpgm", "s_bitcmp")):
            I.w = regs_of(ops[0]); I.r = set().union(*[regs_of(o) for o in ops[1:]]) if len(ops) > 1 else set()
            if "saveexec" in op: I.w |= {("s", "exec")}
        else:
            I.r = set().union(*[regs_of(o) for o in ops]) if ops else set()
    return I

def isv(s): return {x for x in s if x[0] in "va"}
def iss(s): return {x for x in s if x[0] == "s"}

def check(lines, window=24):
    ins = [(i, parse(l)) for i, l in enumerate(lines)]
    ins = [(i, x) for i, x in ins if x is not None]
    errs = []
    for k, (li, B) in enumerate(ins):
        dist = 0
        for j in range(k - 1, max(-1, k - window - 1), -1):
            lj, A = ins[j]
            need = 0; why = ""
            if A.op in ("s_branch", "s_endpgm", "s_setpc_b64"):
                break
            def req(n, w):
                nonlocal need, why
                if n > need: need, why = n, w
            if A.mfma:
                p = A.passes
                ov = A.w & B.r if not B.mfma else set()
                if B.mfma:
                    if A.w & (B.srcA | B.srcB | getattr(B, "idx", set())): req({4: 8, 8: 12}[p], "mfma D -> mfma A/B")
                    if A.w & B.srcC:
                        if not (A.w == B.srcC and A.passes == B.passes): req({4: 6, 8: 10}[p], "mfma D -> mfma C partial")
                    elif A.w & B.w: req({4: 6, 8: 10}[p], "mfma D -> mfma D WAW (conservative)") if A.w != B.w else None
                else:
                    if (B.valu or B.vmem or B.ds) and (A.w & (B.r | B.w)): req({4: 8, 8: 12}[p], "mfma D -> valu/mem")
                    if B.valu and (A.srcC & B.w): req({4: 3, 8: 7}[p], "mfma C WAR")
            if A.valu:
                if B.mfma and (isv(A.w) & B.r): req(2, "valu -> mfma")
                if A.trans and (B.valu and not B.trans) and (A.w & B.r): req(1, "trans -> valu")
                if B.valu and B.dpp and (isv(A.w) & B.r): req(2, "valu -> dpp")
                if B.perml and (isv(A.w) & B.r): req(2, "valu -> permlane")
                if B.op.startswith(("v_readlane", "v_readfirstlane")) and (isv(A.w) & B.r): req(1, "valu -> readlane")
                if iss(A.w):
                    if B.vmem and (iss(A.w) & B.r): req(5, "valu sgpr -> vmem")
                    if B.valu and (iss(A.w) & B.r): req(2, "valu sgpr -> valu")
                    if B.op.startswith(("v_readlane", "v_writelane")) and (iss(A.w) & B.r): req(4, "valu sgpr -> lane select")
                    if ("s", "exec") in A.w and (B.dpp or B.mfma or B.perml): req(5, "valu exec -> dpp/mfma")
                if ("sdwa" in A.op or "op_sel" in A.text) and not A.op.startswith("v_pk") and B.valu and (A.w & B.r): req(1, "opsel/sdwa -> valu")
            if A.salu and ("s", "m0") in A.w and getattr(B, "lds", False): req(1, "m0 -> lds dma")
            if getattr(A, "store", False) and A.wide and (A.data & B.w) and (B.valu or B.mfma): req(2, "wide store data WAR")
            if need > dist:
                errs.append(f"line {li}: '{B.text}' needs {need} states after line {lj} '{A.text}' ({why}), has {dist}")
            dist += A.states
    return errs
```

```python
import sys, math, struct
from asmlib import *

OPT = dict(dbg=0, force_slow=0, stamps=0)
for a in sys.argv[2:]:
    k, v = a.split("=")
    OPT[k] = int(v)

NAME = "concat_heads__ssm_conv_s5__grouped_kv_mqa__prompt"
def f2u(x): return struct.unpack("<I", struct.pack("<f", x))[0]

XB, WQ, WKV = 0, 66560, 132096
SLOT = [0, 49920, 99840]
XA_O, BRE_O, BIM_O = 0, 16640, 33280
CRE, CIM = 0, 66560
TB = 133120
WO = 0
CB = 65536; CB_T = 2176
RB = 65536
QX = 149760; EB = 157952; HP = 160000; CNT = 162048; QM = 162064; KM = 162080
LDS_BYTES = 163840
FL1, FL2, FL3, FL4 = 0x1000, 0x9000, 0x19000, 0x21000
KT, VT, AGG = 0x30000, 0x40000, 0x50000
OB, HB = 0x100000, 0x400000
DBG = 0x1000000
WS_SIZE = 0x2000000
sWAVE, sC, sG, sTAG = 3, 4, 5, 6
R_XB, R_WQ, R_WKV, R_XA, R_BRE, R_BIM, R_CRE, R_CIM, R_WO, R_OUT, R_WS, R_AGG = 8, 12, 16, 20, 24, 28, 32, 36, 40, 44, 48, 52
P_LRE, P_LIM, P_LDT, P_DSK, P_WV = 56, 58, 60, 62, 64
sEP = 66
sT0, sT1, sT2, sT3, sT4, sT5 = 68, 69, 70, 71, 72, 73
sTGT = 74
sSPIN = 75
sTW, sCW = 76, 77
sLOOP = 78
sKOFF, sVOFF = 79, 80
sMASKV = 82
sM64 = 84
sST = 86
def srd(r): return f"s[{r}:{r+3}]"

A = Asm()
SPIN_MAX = 400000

def stamp(i):
    if OPT["stamps"]:
        A(f"s_memrealtime s[{sST+2*i}:{sST+2*i+1}]")

def grp_sync(vaddr, vone, vtmp):
    lp = A.newlabel("sy"); dn = A.newlabel("syd")
    A(f"""
    s_waitcnt lgkmcnt(0)
    s_mov_b64 exec, 1
    ds_add_u32 v{vaddr}, v{vone}
    s_mov_b64 exec, -1
    s_add_u32 s{sTGT}, s{sTGT}, 4
    s_mov_b32 s{sSPIN}, 0
    {lp}:
    ds_read_b32 v{vtmp}, v{vaddr}
    s_add_u32 s{sSPIN}, s{sSPIN}, 1
    s_waitcnt lgkmcnt(0)
    v_readfirstlane_b32 s{sT0}, v{vtmp}
    s_cmp_gt_u32 s{sSPIN}, {SPIN_MAX}
    s_cbranch_scc1 {dn}
    s_cmp_ge_u32 s{sT0}, s{sTGT}
    s_cbranch_scc1 {dn}
    s_sleep 1
    s_branch {lp}
    {dn}:
    """)

def poll_flags(vaddr, vdst, width, need_pair, sleep=2):
    lp = A.newlabel("pl"); dn = A.newlabel("pld")
    ld = "buffer_load_dword" if width == 1 else f"buffer_load_dwordx{width}"
    A(f"s_mov_b32 s{sSPIN}, 0")
    A.label(lp)
    A(f"""
    {ld} {vr(vdst, width)}, v{vaddr}, {srd(R_WS)}, 0 offen sc1
    s_add_u32 s{sSPIN}, s{sSPIN}, 1
    s_waitcnt vmcnt(0)
    v_cmp_eq_u32 vcc, s{sTAG}, v{vdst}
    s_cmp_gt_u32 s{sSPIN}, {SPIN_MAX}
    s_cbranch_scc1 {dn}
    """)
    if need_pair is None:
        A(f"s_cmp_eq_u64 vcc, -1")
    else:
        A(f"s_and_b64 s[{sT0}:{sT1}], vcc, s[{need_pair}:{need_pair+1}]")
        A(f"s_cmp_eq_u64 s[{sT0}:{sT1}], s[{need_pair}:{need_pair+1}]")
    A(f"""
    s_cbranch_scc1 {dn}
    s_sleep {sleep}
    s_branch {lp}
    {dn}:
    """)

def wave_max(v, tmp):
    A("s_nop 1")
    for sh in (1, 2, 4, 8):
        A(f"v_max_f32_dpp v{v}, v{v}, v{v} row_ror:{sh} row_mask:0xf bank_mask:0xf")
        A("s_nop 1")
    A(f"v_mov_b32 v{tmp}, v{v}")
    A("s_nop 1")
    A(f"v_permlane16_swap_b32 v{tmp}, v{v}")
    A(f"v_max_f32 v{v}, v{v}, v{tmp}")
    A(f"v_mov_b32 v{tmp}, v{v}")
    A("s_nop 1")
    A(f"v_permlane32_swap_b32 v{tmp}, v{v}")
    A(f"v_max_f32 v{v}, v{v}, v{tmp}")

vLANE, vL31, vH, vL16x = 1, 2, 3, 4
A(f"""
s_cmp_ge_u32 s2, 256
s_cbranch_scc1 L_end
""")
stamp(0)
loads = [(R_XB, 72), (R_WKV, 88), (P_WV, 96), (R_WQ, 80), (R_WS, 128), (R_XA, 0), (R_BRE, 24), (R_BIM, 32), (R_CRE, 40), (R_CIM, 48),
         (R_WO, 104), (R_OUT, 112), (R_AGG, 128), (P_LRE, 8), (P_LIM, 16), (P_LDT, 56), (P_DSK, 64)]
for r, off in loads:
    A(f"s_load_dwordx2 s[{r}:{r+1}], s[0:1], {off}")
sizes = {R_XB: 65536, R_WQ: 523392, R_WKV: 16384, R_XA: 65536, R_BRE: 65536, R_BIM: 65536, R_CRE: 65536, R_CIM: 65536,
         R_WO: 523392, R_OUT: 262144, R_WS: WS_SIZE, R_AGG: 131072}
for r, sz in sizes.items():
    A(f"s_mov_b32 s{r+2}, {sz}")
    A(f"s_mov_b32 s{r+3}, 0x20000")
A(f"""
v_lshrrev_b32 v5, 6, v0
v_and_b32 v{vLANE}, 63, v0
v_readfirstlane_b32 s{sWAVE}, v5
v_and_b32 v{vL31}, 31, v0
v_bfe_u32 v{vH}, v0, 5, 1
v_lshlrev_b32 v{vL16x}, 4, v{vLANE}
s_and_b32 s{sC}, s2, 7
s_lshl_b32 s{sC}, s{sC}, 2
s_bfe_u32 s{sT0}, s2, 0x20003
s_add_u32 s{sC}, s{sC}, s{sT0}
s_lshr_b32 s{sG}, s2, 5
s_and_b32 s{sTW}, s{sWAVE}, 1
s_bfe_u32 s{sCW}, s{sWAVE}, 0x10001
s_mov_b32 s{sTGT}, 0
s_lshl_b32 s{sT2}, s{sC}, 16
s_lshl_b32 s{sT3}, s{sG}, 7
s_lshl_b32 s{sT4}, s{sG}, 16
s_waitcnt lgkmcnt(0)
s_load_dword s{sEP}, s[{R_WS}:{R_WS+1}], 0
s_add_u32 s{R_XB}, s{R_XB}, s{sT2}
s_addc_u32 s{R_XB+1}, s{R_XB+1}, 0
s_bitcmp1_b32 s{sG}, 0
s_cselect_b32 s{R_WKV}, s{P_WV}, s{R_WKV}
s_cselect_b32 s{R_WKV+1}, s{P_WV+1}, s{R_WKV+1}
""")
sR10 = sT5
A(f"""
s_lshr_b32 s{sT0}, s{sG}, 1
s_lshl_b32 s{sT0}, s{sT0}, 4
s_add_u32 s{sT0}, s{sT0}, s{sWAVE}
s_lshl_b32 s{sR10}, s{sT0}, 10
""")
def dma_xrow(step):
    A(f"""
    s_lshr_b32 s{sT0}, s{sR10}, 6
    s_add_u32 m0, s{sT0}, s{sR10}
    s_mov_b32 s{sT1}, s{sR10}
    buffer_load_dwordx4 v{vL16x}, {srd(R_XB)}, s{sT1} offen lds
    s_add_u32 s{sR10}, s{sR10}, {step*1024}
    s_and_b32 s{sR10}, s{sR10}, 0xffff
    """)
dma_xrow(8); dma_xrow(8)
A(f"""
s_lshl_b32 s{sT1}, s{sWAVE}, 10
s_add_u32 m0, s{sT1}, {WKV}
s_add_u32 s{sT0}, s{sT1}, 8192
buffer_load_dwordx4 v{vL16x}, {srd(R_WKV)}, s{sT1} offen lds
s_add_u32 m0, s{sT0}, {WKV}
s_add_u32 s{R_WQ}, s{R_WQ}, s{sT3}
buffer_load_dwordx4 v{vL16x}, {srd(R_WKV)}, s{sT0} offen lds
s_addc_u32 s{R_WQ+1}, s{R_WQ+1}, 0
""")
for r, t in ((R_XA, sT2), (R_BRE, sT4), (R_BIM, sT4), (R_CRE, sT4), (R_CIM, sT4), (R_WO, sT3)):
    A(f"s_add_u32 s{r}, s{r}, s{t}")
    A(f"s_addc_u32 s{r+1}, s{r+1}, 0")
A(f"""
s_lshl_b32 s{sT2}, s{sC}, 18
s_add_u32 s{R_OUT}, s{R_OUT}, s{sT2}
s_addc_u32 s{R_OUT+1}, s{R_OUT+1}, 0
s_add_u32 s{R_AGG}, s{R_AGG}, {AGG}
s_addc_u32 s{R_AGG+1}, s{R_AGG+1}, 0
s_cmp_ge_u32 s{sWAVE}, 4
s_cbranch_scc1 L_S
""")

S0, S1 = 16, 32
QF = 48
KV = [80, 92]
vIDX = 104
vM = 105
for j in range(12):
    dma_xrow(4)
vWQo = 5
A(f"""
v_lshrrev_b32 v6, 3, v{vLANE}
v_and_b32 v7, 7, v{vLANE}
v_bfe_u32 v8, v{vLANE}, 4, 1
v_lshlrev_b32 v8, 2, v8
v_xor_b32 v7, v7, v8
v_lshlrev_b32 v7, 4, v7
v_lshl_add_u32 v{vWQo}, v6, 10, v7
s_and_b32 s{sLOOP}, s{sC}, 3
""")
for s in range(4):
    A(f"""
    s_add_u32 s{sT2}, s{sLOOP}, {s}
    s_and_b32 s{sT2}, s{sT2}, 3
    s_lshl_b32 s{sT2}, s{sT2}, 17
    s_lshl_b32 s{sT3}, s{sWAVE}, 13
    s_add_u32 s{sT2}, s{sT2}, s{sT3}
    s_lshl_b32 s{sT3}, s{sWAVE}, 10
    """)
    for i in range(4):
        A(f"""
        s_add_u32 m0, s{sT3}, {WQ + s*16384 + i*4096}
        s_add_u32 s{sT1}, s{sT2}, {i*32768}
        buffer_load_dwordx4 v{vWQo}, {srd(R_WQ)}, s{sT1} offen lds
        """)
vZ = 120
for i in range(4): A(f"v_mov_b32 v{vZ+i}, 0")
A(f"""
v_cmp_eq_u32 vcc, 16, v{vL31}
v_mov_b32 v6, 0x3f803f80
v_mov_b32 v{vIDX}, 0xdddddddd
v_cndmask_b32 v7, 0, v6, vcc
""")
for ct in range(8):
    A(f"v_mfma_f32_32x32x16_bf16 a[{16*ct}:{16*ct+15}], v[{vZ}:{vZ+3}], v[{vZ}:{vZ+3}], 0")
for b in range(2):
    for i in range(8):
        A(f"v_mov_b32 v{KV[b]+4+i}, v7")
vXa, vWa = 8, 9
A(f"""
v_mov_b32 v10, {CNT}
ds_write_b32 v10, v{vZ}
s_lshl_b32 s{sT0}, s{sTW}, 5
v_add_u32 v6, s{sT0}, v{vL31}
v_mul_u32_u24 v{vXa}, 1040, v6
v_lshl_add_u32 v{vXa}, v{vH}, 4, v{vXa}
v_bfe_u32 v6, v{vLANE}, 2, 2
v_lshl_add_u32 v6, v{vH}, 3, v6
v_bfe_u32 v7, v{vLANE}, 4, 1
v_and_b32 v11, 3, v{vLANE}
v_lshlrev_b32 v11, 3, v11
v_lshl_add_u32 v11, v7, 5, v11
s_lshl_b32 s{sT0}, s{sCW}, 6
v_add_u32 v11, s{sT0}, v11
v_bfe_u32 v7, v{vLANE}, 3, 1
v_lshlrev_b32 v7, 6, v7
v_xor_b32 v11, v11, v7
v_lshl_add_u32 v{vWa}, v6, 7, v11
v_add_u32 v{vWa}, {WQ}, v{vWa}
s_waitcnt vmcnt(28) lgkmcnt(0)
s_barrier
""")
stamp(1)
FR = 80
def qproj_quarter(s):
    A(f"""
    s_add_u32 s{sT2}, s{sLOOP}, {s}
    s_and_b32 s{sT2}, s{sT2}, 3
    s_lshl_b32 s{sT2}, s{sT2}, 8
    v_add_u32 v12, s{sT2}, v{vXa}
    s_waitcnt vmcnt({12 - 4*s})
    s_barrier
    """)
    def rd(k):
        f = 32 + 8*(k % 6)
        A(f"ds_read_b64_tr_b16 v[{f}:{f+1}], v{vWa} offset:{s*16384 + k*2048}")
        A(f"ds_read_b64_tr_b16 v[{f+2}:{f+3}], v{vWa} offset:{s*16384 + k*2048 + 512}")
        A(f"ds_read_b128 v[{f+4}:{f+7}], v12 offset:{k*32}")
    for k in range(4): rd(k)
    for k in range(8):
        f = 32 + 8*(k % 6)
        rem = min(8, k + 4 + (1 if k + 4 < 8 else 0))
        if k + 4 < 8:
            rd(k + 4)
        issued = min(8, k + 5)
        A(f"s_waitcnt lgkmcnt({3*(issued - k - 1)})")
        c = "0" if (s == 0 and k == 0) else f"v[{S0}:{S0+15}]"
        A(f"v_mfma_f32_32x32x16_bf16 v[{S0}:{S0+15}], v[{f}:{f+3}], v[{f+4}:{f+7}], {c}")
for s in range(4):
    qproj_quarter(s)
QSC = 0.25 * math.log2(math.e)
A(f"s_mov_b32 s{sT0}, {f2u(QSC)}")
A.nop(12)
for i in range(16):
    A(f"v_mul_f32 v{S0+i}, s{sT0}, v{S0+i}")
for hd in range(2):
    A(f"v_mul_f32 v{12+hd}, v{S0+8*hd}, v{S0+8*hd}")
    for i in range(1, 8):
        A(f"v_fmac_f32 v{12+hd}, v{S0+8*hd+i}, v{S0+8*hd+i}")
for i in range(8):
    A(f"v_cvt_pk_bf16_f32 v{32+i}, v{S0+2*i}, v{S0+2*i+1}")
A(f"""
s_lshl_b32 s{sT0}, s{sCW}, 2
s_add_u32 s{sT0}, s{sT0}, s{sTW}
s_lshl_b32 s{sT0}, s{sT0}, 10
s_add_u32 s{sT0}, s{sT0}, {QX}
v_add_u32 v14, s{sT0}, v{vL16x}
ds_write_b128 v14, v[32:35]
ds_write_b128 v14, v[36:39] offset:2048
v_mov_b32 v14, v12
v_mov_b32 v15, v13
s_nop 1
v_permlane32_swap_b32 v14, v12
v_permlane32_swap_b32 v15, v13
v_add_f32 v12, v12, v14
v_add_f32 v13, v13, v15
v_max_f32 v12, v12, v13
""")
wave_max(12, 13)
A(f"""
s_lshl_b32 s{sT0}, s{sWAVE}, 2
s_add_u32 s{sT0}, s{sT0}, {QM}
v_mov_b32 v13, s{sT0}
ds_write_b32 v13, v12
s_waitcnt lgkmcnt(0)
s_barrier
""")
stamp(2)
A(f"v_add_u32 v14, {QX}, v{vL16x}")
for ct in range(8):
    A(f"ds_read_b128 v[{QF+4*ct}:{QF+4*ct+3}], v14 offset:{ct*1024}")
vKo, vVo = 5, 6
A(f"""
s_mul_i32 s{sTAG}, s{sEP}, 0x9E3779B1
s_add_u32 s{sTAG}, s{sTAG}, 0x7F4A7C15
s_lshl_b32 s{sT0}, s{sWAVE}, 13
s_add_u32 s{sT0}, s{sT0}, {FL1}
v_lshlrev_b32 v12, 7, v{vLANE}
v_add_u32 v12, s{sT0}, v12
s_lshl_b32 s{sT0}, s{sWAVE}, 14
s_add_u32 s{sT1}, s{sT0}, {KT}
v_add_u32 v{vKo}, s{sT1}, v{vL16x}
s_add_u32 s{sT1}, s{sT0}, {VT}
v_and_b32 v13, 15, v{vLANE}
v_lshlrev_b32 v13, 4, v13
v_lshl_add_u32 v13, v{vH}, 8, v13
v_add_u32 v{vVo}, s{sT1}, v13
s_mov_b32 s{sMASKV}, 0x0000ffff
s_mov_b32 s{sMASKV+1}, 0x0000ffff
s_bfe_u32 s{sKOFF}, s2, 0x40003
s_lshl_b32 s{sKOFF}, s{sKOFF}, 10
""")
poll_flags(12, 14, 2, None)
stamp(3)
def ld_k(b):
    A(f"buffer_load_dwordx4 v[{KV[b]}:{KV[b]+3}], v{vKo}, {srd(R_WS)}, s{sKOFF} offen sc1")
def ld_v(b):
    A(f"s_mov_b64 exec, s[{sMASKV}:{sMASKV+1}]")
    A(f"buffer_load_dwordx4 v[{KV[b]+4}:{KV[b]+7}], v{vVo}, {srd(R_WS)}, s{sVOFF} offen sc1")
    A(f"buffer_load_dwordx4 v[{KV[b]+8}:{KV[b]+11}], v{vVo}, {srd(R_WS)}, s{sVOFF} offen offset:512 sc1")
    A(f"s_mov_b64 exec, -1")
def adv(s):
    A(f"s_add_u32 s{s}, s{s}, 1024")
    A(f"s_and_b32 s{s}, s{s}, 0x3fff")
A(f"s_mov_b32 s{sVOFF}, s{sKOFF}")
ld_k(0); adv(sKOFF); ld_v(0); adv(sVOFF); ld_k(1); adv(sKOFF)
wave_max(15, 14)
A(f"""
s_lshl_b32 s{sT0}, s{sWAVE}, 2
s_add_u32 s{sT0}, s{sT0}, {KM}
v_mov_b32 v13, s{sT0}
ds_write_b32 v13, v15
""")
for i in range(8): A(f"v_mov_b32 v{S1+8+i}, 0")
A(f"""
s_mov_b32 s{sLOOP}, 8
s_waitcnt vmcnt(3) lgkmcnt(0)
v_mfma_f32_32x32x16_bf16 v[{S0}:{S0+15}], v[{KV[0]}:{KV[0]+3}], v[{QF}:{QF+3}], 0
""")
A.nop(12)
SB = [S0, S1]
def period(kb, ct):
    cur = SB[ct & 1]; oth = SB[(ct + 1) & 1]
    pct = (ct - 1) % 8
    pkb = kb if ct > 0 else 1 - kb
    nct = (ct + 1) % 8
    nkb = kb if ct < 7 else 1 - kb
    e = lambda i: A(f"v_exp_f32 v{cur+i}, v{cur+i}")
    e(0); e(1)
    A(f"v_smfmac_f32_32x32x32_bf16 a[{16*pct}:{16*pct+15}], v[{KV[pkb]+8}:{KV[pkb]+11}], v[{oth+8}:{oth+15}], v{vIDX}")
    e(2)
    if ct == 0:
        ld_v(1 - kb); adv(sVOFF)
    e(3); e(4)
    if ct == 7:
        A("s_waitcnt vmcnt(2)")
    A(f"v_mfma_f32_32x32x16_bf16 v[{oth}:{oth+15}], v[{KV[nkb]}:{KV[nkb]+3}], v[{QF+4*nct}:{QF+4*nct+3}], 0")
    e(5)
    if ct == 7:
        ld_k(kb); adv(sKOFF)
    e(6); e(7); e(8); e(9)
    if ct == 0:
        A("s_waitcnt vmcnt(3)")
    A(f"v_smfmac_f32_32x32x32_bf16 a[{16*ct}:{16*ct+15}], v[{KV[kb]+4}:{KV[kb]+7}], v[{cur}:{cur+7}], v{vIDX}")
    for i in range(10, 16): e(i)
A(".p2align 6")
A.label("L_attn")
loop_start = len(A.lines)
for kb in range(2):
    for ct in range(8):
        period(kb, ct)
loop_end = len(A.lines)
A(f"""
s_sub_u32 s{sLOOP}, s{sLOOP}, 1
s_cmp_lg_u32 s{sLOOP}, 0
s_cbranch_scc1 L_attn
v_smfmac_f32_32x32x32_bf16 a[112:127], v[{KV[1]+8}:{KV[1]+11}], v[{S1+8}:{S1+15}], v{vIDX}
s_waitcnt vmcnt(0)
""")
stamp(4)
A("s_branch L_tail")

UR, UI, Y0, Y1 = 16, 32, 48, 64
FRS = 80
vLR, vLI, vL16R, vL16I, vL64R, vL64I, vL512R, vL512I, vCR, vCI = 112, 113, 114, 115, 116, 117, 118, 119, 120, 121
vDSK = 122
vCNT, vONE, vTMP = 123, 124, 125
vP2 = 126
A.label("L_S")
A(f"""
s_lshl_b32 s{sT0}, s{sG}, 6
s_lshl_b32 s{sT1}, s{sCW}, 5
s_add_u32 s{sT0}, s{sT0}, s{sT1}
v_add_u32 v{vP2}, s{sT0}, v{vL31}
v_lshlrev_b32 v{vP2}, 1, v{vP2}
global_load_ushort v{FRS}, v{vP2}, s[{P_LRE}:{P_LRE+1}]
global_load_ushort v{FRS+1}, v{vP2}, s[{P_LIM}:{P_LIM+1}]
global_load_ushort v{FRS+2}, v{vP2}, s[{P_LDT}:{P_LDT+1}]
global_load_ushort v{vDSK}, v{vP2}, s[{P_DSK}:{P_DSK+1}]
v_mov_b32 v{vCNT}, {CNT}
v_mov_b32 v{vONE}, 1
s_waitcnt vmcnt(4) lgkmcnt(0)
s_mul_i32 s{sTAG}, s{sEP}, 0x9E3779B1
s_add_u32 s{sTAG}, s{sTAG}, 0x7F4A7C15
s_barrier
s_cmp_lg_u32 s{sWAVE}, 4
s_cbranch_scc1 L_S_nokv
""")
A(f"""
v_and_b32 v5, 15, v{vLANE}
v_lshrrev_b32 v6, 4, v{vLANE}
s_lshr_b32 s{sT0}, s{sG}, 1
s_mul_i32 s{sT0}, s{sT0}, {16*1040}
v_mul_u32_u24 v7, 1040, v5
v_lshl_add_u32 v7, v6, 4, v7
v_add_u32 v7, s{sT0}, v7
v_lshrrev_b32 v8, 2, v5
v_lshl_add_u32 v8, v6, 3, v8
v_lshlrev_b32 v8, 5, v8
v_and_b32 v9, 3, v5
v_lshl_add_u32 v8, v9, 3, v8
v_add_u32 v8, {WKV}, v8
""")
def kv_rd(k):
    f = 16 + 8*(k % 8)
    A(f"ds_read_b64_tr_b16 v[{f}:{f+1}], v8 offset:{k*1024}")
    A(f"ds_read_b64_tr_b16 v[{f+2}:{f+3}], v8 offset:{k*1024+128}")
    A(f"ds_read_b128 v[{f+4}:{f+7}], v7 offset:{k*64}")
for k in range(4): kv_rd(k)
A(f"s_bitcmp1_b32 s{sG}, 0")
A("s_cbranch_scc1 L_kv_v")
def kv_chain(isv_):
    for k in range(16):
        f = 16 + 8*(k % 8)
        if k + 4 < 16: kv_rd(k + 4)
        issued = min(16, k + 5)
        A(f"s_waitcnt lgkmcnt({3*(issued - k - 1)})")
        c = "0" if k == 0 else "v[12:15]"
        a, b = (f"v[{f}:{f+3}]", f"v[{f+4}:{f+7}]") if not isv_ else (f"v[{f+4}:{f+7}]", f"v[{f}:{f+3}]")
        A(f"v_mfma_f32_16x16x32_bf16 v[12:15], {a}, {b}, {c}")
kv_chain(False)
A(f"""
s_lshl_b32 s{sT0}, s{sC}, 1
s_lshr_b32 s{sT1}, s{sG}, 2
s_add_u32 s{sT0}, s{sT0}, s{sT1}
s_lshl_b32 s{sT0}, s{sT0}, 10
s_bfe_u32 s{sT1}, s{sG}, 0x10001
s_lshl_b32 s{sT1}, s{sT1}, 8
s_add_u32 s{sT0}, s{sT0}, s{sT1}
s_add_u32 s{sT0}, s{sT0}, {KT}
v_and_b32 v9, 1, v6
v_lshlrev_b32 v9, 9, v9
v_lshl_add_u32 v9, v5, 4, v9
v_lshrrev_b32 v10, 1, v6
v_lshl_add_u32 v9, v10, 3, v9
v_cvt_pk_bf16_f32 v10, v12, v13
v_cvt_pk_bf16_f32 v11, v14, v15
buffer_store_dwordx2 v[10:11], v9, {srd(R_WS)}, s{sT0} offen sc1
v_mul_f32 v16, v12, v12
v_fmac_f32 v16, v13, v13
v_fmac_f32 v16, v14, v14
v_fmac_f32 v16, v15, v15
v_mov_b32 v17, v16
s_nop 1
v_permlane16_swap_b32 v17, v16
v_add_f32 v16, v16, v17
v_mov_b32 v17, v16
s_nop 1
v_permlane32_swap_b32 v17, v16
v_add_f32 v17, v16, v17
""")
wave_max(17, 18)
A("s_branch L_kv_pub")
A.label("L_kv_v")
kv_chain(True)
A(f"""
s_lshl_b32 s{sT0}, s{sC}, 1
s_lshr_b32 s{sT1}, s{sG}, 2
s_add_u32 s{sT0}, s{sT0}, s{sT1}
s_lshl_b32 s{sT0}, s{sT0}, 10
s_bfe_u32 s{sT1}, s{sG}, 0x10001
s_lshl_b32 s{sT1}, s{sT1}, 9
s_add_u32 s{sT0}, s{sT0}, s{sT1}
s_add_u32 s{sT0}, s{sT0}, {VT}
v_lshrrev_b32 v9, 1, v6
v_lshlrev_b32 v9, 8, v9
v_lshl_add_u32 v9, v5, 4, v9
v_and_b32 v10, 1, v6
v_lshl_add_u32 v9, v10, 3, v9
v_cvt_pk_bf16_f32 v10, v12, v13
v_cvt_pk_bf16_f32 v11, v14, v15
buffer_store_dwordx2 v[10:11], v9, {srd(R_WS)}, s{sT0} offen sc1
v_mov_b32 v17, 0
""")
A.label("L_kv_pub")
A(f"""
s_lshl_b32 s{sT0}, s{sC}, 3
s_add_u32 s{sT0}, s{sT0}, s{sG}
s_lshl_b32 s{sT0}, s{sT0}, 7
s_add_u32 s{sT0}, s{sT0}, {FL1}
v_mov_b32 v16, s{sTAG}
v_mov_b32 v9, 0
s_waitcnt vmcnt(0)
s_mov_b64 exec, 1
buffer_store_dwordx2 v[16:17], v9, {srd(R_WS)}, s{sT0} offen sc1
s_mov_b64 exec, -1
""")
A.label("L_S_nokv")
A("s_barrier")
A("s_waitcnt vmcnt(0)")
A(f"""
v_lshlrev_b32 v5, 7, v{vLANE}
s_and_b32 s{sT2}, s{sC}, 3
s_lshl_b32 s{sT2}, s{sT2}, 14
s_lshl_b32 s{sT3}, s{sTW}, 13
s_add_u32 s{sT2}, s{sT2}, s{sT3}
s_lshl_b32 s{sT3}, s{sG}, 13
s_cmp_eq_u32 s{sCW}, 0
s_cbranch_scc0 L_pf_im
buffer_load_dword v127, v5, {srd(R_BRE)}, s{sT2} offen
buffer_load_dword v127, v5, {srd(R_XA)}, s{sT3} offen
s_branch L_pf_done
L_pf_im:
buffer_load_dword v127, v5, {srd(R_BIM)}, s{sT2} offen
L_pf_done:
""")
LOG2E = math.log2(math.e)
a0, a1, a2, a3, a4, a5 = FRS, FRS+1, FRS+2, FRS+3, FRS+4, FRS+5
A(f"""
s_mov_b32 s{sT0}, {f2u(LOG2E)}
v_lshlrev_b32 v{a0}, 16, v{a0}
v_lshlrev_b32 v{a1}, 16, v{a1}
v_lshlrev_b32 v{a2}, 16, v{a2}
v_mul_f32 v{a2}, s{sT0}, v{a2}
v_exp_f32 v{a2}, v{a2}
s_nop 0
v_cvt_pk_bf16_f32 v{a2}, v{a2}, v{a2}
v_and_b32 v{a2}, 0xffff0000, v{a2}
v_mul_f32 v{a3}, v{a2}, v{a0}
v_mul_f32 v{a4}, v{a2}, v{a1}
v_mul_f32 v{a3}, s{sT0}, v{a3}
v_exp_f32 v{a3}, v{a3}
v_mul_f32 v{a4}, 0.15915494, v{a4}
v_fract_f32 v{a4}, v{a4}
v_cos_f32 v{vLR}, v{a4}
v_sin_f32 v{vLI}, v{a4}
s_nop 0
v_mul_f32 v{vLR}, v{a3}, v{vLR}
v_mul_f32 v{vLI}, v{a3}, v{vLI}
v_mul_f32 v{a2}, v{a0}, v{a0}
v_fmac_f32 v{a2}, v{a1}, v{a1}
v_rcp_f32 v{a2}, v{a2}
v_add_f32 v{a3}, -1.0, v{vLR}
v_mul_f32 v{a4}, v{a3}, v{a0}
v_fmac_f32 v{a4}, v{vLI}, v{a1}
v_mul_f32 v{a5}, v{vLI}, v{a0}
v_fma_f32 v{a5}, -v{a3}, v{a1}, v{a5}
v_add_f32 v{a2}, v{a2}, v{a2}
v_mul_f32 v{vCR}, v{a4}, v{a2}
v_mul_f32 v{vCI}, v{a5}, v{a2}
""")
def csq(dr, di, sr_, si):
    A(f"v_mul_f32 v{a0}, v{si}, v{si}")
    A(f"v_mul_f32 v{a1}, v{sr_}, v{si}")
    A(f"v_fma_f32 v{dr}, v{sr_}, v{sr_}, -v{a0}")
    A(f"v_add_f32 v{di}, v{a1}, v{a1}")
csq(vL16R, vL16I, vLR, vLI)
for _ in range(3): csq(vL16R, vL16I, vL16R, vL16I)
csq(vL64R, vL64I, vL16R, vL16I); csq(vL64R, vL64I, vL64R, vL64I)
csq(vL512R, vL512I, vL64R, vL64I)
for _ in range(2): csq(vL512R, vL512I, vL512R, vL512I)
DG = 104
A(f"""
v_and_b32 v5, 1, v{vL31}
v_lshlrev_b32 v5, 4, v5
v_lshlrev_b32 v{vDSK}, v5, v{vDSK}
v_bfe_u32 v5, v{vL31}, 3, 1
v_cmp_eq_u32 vcc, v5, v{vH}
v_bfe_u32 v8, v{vL31}, 1, 2
v_lshrrev_b32 v9, 4, v{vL31}
v_cndmask_b32 v{vDSK}, 0, v{vDSK}, vcc
v_lshl_add_u32 v8, v9, 2, v8
""")
for i in range(8):
    A(f"v_cmp_eq_u32 vcc, {i}, v8")
    A("s_nop 1")
    A(f"v_cndmask_b32 v{DG+i}, 0, v{vDSK}, vcc")
vXo, vBo, vAa, vBa, vDa = 5, 6, 7, 8, 9
A(f"""
v_lshrrev_b32 v10, 4, v{vLANE}
v_and_b32 v11, 15, v{vLANE}
v_lshlrev_b32 v11, 4, v11
v_lshl_add_u32 v{vBo}, v10, 14, v11
v_lshrrev_b32 v12, 1, v10
v_and_b32 v13, 1, v10
v_lshlrev_b32 v12, 15, v12
v_lshl_add_u32 v12, v13, 13, v12
v_add_u32 v{vXo}, v12, v11
v_and_b32 v10, 15, v{vL31}
v_mul_u32_u24 v10, 1040, v10
v_lshl_add_u32 v10, v{vH}, 4, v10
v_lshrrev_b32 v11, 4, v{vL31}
v_lshl_add_u32 v10, v11, 8, v10
s_lshl_b32 s{sT0}, s{sTW}, 9
v_add_u32 v{vAa}, s{sT0}, v10
s_lshl_b32 s{sT0}, s{sCW}, 9
s_add_u32 s{sT0}, s{sT0}, {BRE_O}
v_add_u32 v{vBa}, s{sT0}, v10
v_bfe_u32 v10, v{vL31}, 2, 1
v_lshlrev_b32 v10, 3, v10
v_bfe_u32 v11, v{vL31}, 4, 1
v_lshl_add_u32 v10, v11, 2, v10
v_and_b32 v11, 3, v{vL31}
v_add_u32 v10, v10, v11
v_mul_u32_u24 v10, 1040, v10
v_bfe_u32 v11, v{vL31}, 3, 1
v_lshl_add_u32 v10, v11, 8, v10
v_lshl_add_u32 v10, v{vH}, 4, v10
s_lshl_b32 s{sT0}, s{sTW}, 9
s_and_b32 s{sT1}, s{sG}, 1
s_lshl_b32 s{sT1}, s{sT1}, 7
s_add_u32 s{sT0}, s{sT0}, s{sT1}
s_lshl_b32 s{sT1}, s{sCW}, 6
s_add_u32 s{sT0}, s{sT0}, s{sT1}
v_add_u32 v{vDa}, s{sT0}, v10
s_barrier
s_barrier
s_barrier
s_barrier
s_setprio 2
""")
sSW = sLOOP
A(f"s_sub_u32 s{sSW}, s{sWAVE}, 4")
def g1_dma(q, slot):
    A(f"""
    s_mul_i32 s{sT2}, s{sSW}, {4*1040}
    s_add_u32 s{sT2}, s{sT2}, {slot}
    s_lshl_b32 s{sT3}, s{sSW}, 12
    s_add_u32 s{sT3}, s{sT3}, {q*256}
    s_and_b32 s{sT4}, s{sSW}, 1
    s_lshl_b32 s{sT4}, s{sT4}, 14
    s_lshr_b32 s{sT5}, s{sSW}, 1
    s_lshl_b32 s{sT5}, s{sT5}, 12
    s_add_u32 s{sT4}, s{sT4}, s{sT5}
    s_add_u32 s{sT4}, s{sT4}, {q*256}
    """)
    for i in range(4):
        A(f"""
        s_add_u32 m0, s{sT2}, {XA_O + i*1040}
        s_add_u32 s{sT1}, s{sT4}, {i*1024}
        buffer_load_dwordx4 v{vXo}, {srd(R_XA)}, s{sT1} offen lds
        s_add_u32 m0, s{sT2}, {BRE_O + i*1040}
        s_add_u32 s{sT1}, s{sT3}, {i*1024}
        buffer_load_dwordx4 v{vBo}, {srd(R_BRE)}, s{sT1} offen lds
        s_add_u32 m0, s{sT2}, {BIM_O + i*1040}
        s_nop 0
        buffer_load_dwordx4 v{vBo}, {srd(R_BIM)}, s{sT1} offen lds
        """)
for q in range(3): g1_dma(q, SLOT[q])
def g1_quarter(q):
    slot = SLOT[q % 3]
    A(f"v_add_u32 v10, {slot}, v{vAa}")
    A(f"v_add_u32 v11, {slot}, v{vBa}")
    def rd(k):
        f = FRS + 12*(k % 2)
        A(f"ds_read_b128 v[{f}:{f+3}], v10 offset:{k*32}")
        A(f"ds_read_b128 v[{f+4}:{f+7}], v11 offset:{k*32}")
        A(f"ds_read_b128 v[{f+8}:{f+11}], v11 offset:{k*32 + (BIM_O-BRE_O)}")
    rd(0)
    for k in range(8):
        f = FRS + 12*(k % 2)
        if k + 1 < 8: rd(k + 1)
        A(f"s_waitcnt lgkmcnt({3 if k + 1 < 8 else 0})")
        cr = "0" if (q == 0 and k == 0) else f"v[{UR}:{UR+15}]"
        ci = "0" if (q == 0 and k == 0) else f"v[{UI}:{UI+15}]"
        A(f"v_mfma_f32_32x32x16_bf16 v[{UR}:{UR+15}], v[{f}:{f+3}], v[{f+4}:{f+7}], {cr}")
        A(f"v_mfma_f32_32x32x16_bf16 v[{UI}:{UI+15}], v[{f}:{f+3}], v[{f+8}:{f+11}], {ci}")
    sk = A.newlabel("nod")
    A(f"""
    s_lshr_b32 s{sT0}, s{sG}, 1
    s_cmp_lg_u32 s{sT0}, {q}
    s_cbranch_scc1 {sk}
    v_add_u32 v10, {slot}, v{vDa}
    ds_read_b128 v[{FRS}:{FRS+3}], v10
    ds_read_b128 v[{FRS+4}:{FRS+7}], v10 offset:32
    s_waitcnt lgkmcnt(0)
    v_mfma_f32_32x32x16_bf16 v[{Y0}:{Y0+15}], v[{FRS}:{FRS+3}], v[{DG}:{DG+3}], 0
    v_mfma_f32_32x32x16_bf16 v[{Y0}:{Y0+15}], v[{FRS+4}:{FRS+7}], v[{DG+4}:{DG+7}], v[{Y0}:{Y0+15}]
    {sk}:
    """)
A("s_waitcnt vmcnt(24)"); grp_sync(vCNT, vONE, vTMP)
g1_quarter(0)
A("s_waitcnt vmcnt(12)"); grp_sync(vCNT, vONE, vTMP)
g1_dma(3, SLOT[0])
g1_quarter(1)
A("s_waitcnt vmcnt(12)"); grp_sync(vCNT, vONE, vTMP)
g1_quarter(2)
A("s_waitcnt vmcnt(0)"); grp_sync(vCNT, vONE, vTMP)
g1_quarter(3)
stamp(1)
A.nop(12)
if OPT["dbg"]:
    A(f"""
    s_lshl_b32 s{sT0}, s{sC}, 3
    s_add_u32 s{sT0}, s{sT0}, s{sG}
    s_lshl_b32 s{sT0}, s{sT0}, 2
    s_add_u32 s{sT0}, s{sT0}, s{sSW}
    s_lshl_b32 s{sT0}, s{sT0}, 13
    s_add_u32 s{sT0}, s{sT0}, {DBG}
    v_lshlrev_b32 v10, 2, v{vLANE}
    """)
    for i in range(32):
        A(f"buffer_store_dword v{UR+i}, v10, {srd(R_WS)}, s{sT0} offen")
        A(f"s_add_u32 s{sT0}, s{sT0}, 256")
    A("s_waitcnt vmcnt(0)")
er, ei, t0, t1 = FRS, FRS+1, FRS+2, FRS+3
def cstep(dr, di, pr, pi, lr, li, ur, ui, tr=t0, ti=t1):
    A(f"v_fma_f32 v{tr}, v{lr}, v{pr}, v{ur}")
    A(f"v_fma_f32 v{ti}, v{lr}, v{pi}, v{ui}")
    A(f"v_fma_f32 v{tr}, -v{li}, v{pi}, v{tr}")
    A(f"v_fma_f32 v{di}, v{li}, v{pr}, v{ti}")
    A(f"v_mov_b32 v{dr}, v{tr}") if dr != tr else None
def cstep4(dr, di, pr, pi, lr, li, ur, ui, tr, ti):
    A(f"v_fma_f32 v{tr}, v{lr}, v{pr}, v{ur}")
    A(f"v_fma_f32 v{ti}, v{lr}, v{pi}, v{ui}")
    A(f"v_fma_f32 v{dr}, -v{li}, v{pi}, v{tr}")
    A(f"v_fma_f32 v{di}, v{li}, v{pr}, v{ti}")
pa = [(FRS, FRS+1), (FRS+2, FRS+3)]
p = (UR, UI)
for i in range(1, 16):
    d = pa[i & 1]
    cstep4(d[0], d[1], p[0], p[1], vLR, vLI, UR+i, UI+i, FRS+4, FRS+5)
    p = d
assert p == pa[1]
A(f"""
s_lshl_b32 s{sT0}, s{sTW}, 10
s_lshl_b32 s{sT1}, s{sCW}, 8
s_add_u32 s{sT1}, s{sT1}, {EB}
s_add_u32 s{sT0}, s{sT0}, s{sT1}
v_lshlrev_b32 v10, 3, v{vL31}
v_add_u32 v11, s{sT1}, v10
v_lshl_add_u32 v10, v{vH}, 9, v10
v_add_u32 v10, s{sT0}, v10
ds_write_b64 v10, v[{FRS+2}:{FRS+3}]
""")
grp_sync(vCNT, vONE, vTMP)
E = FRS
for s in range(4):
    A(f"ds_read_b64 v[{E+2*s}:{E+2*s+1}], v11 offset:{s*512}")
A(f"""
s_mul_i32 s{sT2}, s{sSW}, {16*1040}
s_lshl_b32 s{sT3}, s{sSW}, 14
""")
A("s_waitcnt lgkmcnt(0)")
for s in range(1, 4):
    cstep4(FRS+8, FRS+9, E+2*s-2, E+2*s-1, vL16R, vL16I, E+2*s, E+2*s+1, FRS+10, FRS+11)
    A(f"v_mov_b32 v{E+2*s}, v{FRS+8}")
    A(f"v_mov_b32 v{E+2*s+1}, v{FRS+9}")
nopub = A.newlabel("nopub")
A(f"""
s_cmp_lg_u32 s{sTW}, 0
s_cbranch_scc1 {nopub}
v_lshlrev_b32 v10, 2, v{vP2}
s_lshl_b32 s{sT0}, s{sC}, 12
s_mov_b32 exec_hi, 0
buffer_store_dwordx2 v[{E+6}:{E+7}], v10, {srd(R_AGG)}, s{sT0} offen sc1
s_mov_b32 exec_hi, -1
s_lshl_b32 s{sT0}, s{sG}, 1
s_add_u32 s{sT0}, s{sT0}, s{sCW}
s_lshl_b32 s{sT0}, s{sT0}, 5
s_add_u32 s{sT0}, s{sT0}, s{sC}
s_lshl_b32 s{sT0}, s{sT0}, 7
s_add_u32 s{sT0}, s{sT0}, {FL2}
v_mov_b32 v10, s{sTAG}
v_mov_b32 v11, 0
s_waitcnt vmcnt(0)
s_mov_b64 exec, 1
buffer_store_dword v10, v11, {srd(R_WS)}, s{sT0} offen sc1
s_mov_b64 exec, -1
{nopub}:
""")
for i in range(16):
    A(f"""
    s_add_u32 m0, s{sT2}, {CRE + i*1040}
    s_add_u32 s{sT1}, s{sT3}, {i*1024}
    buffer_load_dwordx4 v{vL16x}, {srd(R_CRE)}, s{sT1} offen lds
    s_add_u32 m0, s{sT2}, {CIM + i*1040}
    s_nop 0
    buffer_load_dwordx4 v{vL16x}, {srd(R_CIM)}, s{sT1} offen lds
    """)
vPR, vPI, vWR, vWI = 12, 13, 14, 15
tw1 = A.newlabel("tw1"); twd = A.newlabel("twd")
A(f"""
v_cmp_eq_u32 vcc, 1, v{vH}
s_cmp_lg_u32 s{sTW}, 0
s_cbranch_scc1 {tw1}
v_cndmask_b32 v{vPR}, 0, v{E}, vcc
v_cndmask_b32 v{vPI}, 0, v{E+1}, vcc
v_cndmask_b32 v{vWR}, 1.0, v{vL16R}, vcc
v_cndmask_b32 v{vWI}, 0, v{vL16I}, vcc
s_branch {twd}
{tw1}:
v_cndmask_b32 v{vPR}, v{E+2}, v{E+4}, vcc
v_cndmask_b32 v{vPI}, v{E+3}, v{E+5}, vcc
v_mul_f32 v{FRS+8}, v{vL16I}, v{vL16I}
v_mul_f32 v{FRS+9}, v{vL16R}, v{vL16I}
v_fma_f32 v{FRS+8}, v{vL16R}, v{vL16R}, -v{FRS+8}
v_add_f32 v{FRS+9}, v{FRS+9}, v{FRS+9}
v_mul_f32 v{FRS+10}, v{FRS+8}, v{vL16R}
v_mul_f32 v{FRS+11}, v{FRS+8}, v{vL16I}
v_fma_f32 v{FRS+10}, -v{FRS+9}, v{vL16I}, v{FRS+10}
v_fma_f32 v{FRS+11}, v{FRS+9}, v{vL16R}, v{FRS+11}
v_cndmask_b32 v{vWR}, v{FRS+8}, v{FRS+10}, vcc
v_cndmask_b32 v{vWI}, v{FRS+9}, v{FRS+11}, vcc
{twd}:
""")
A(f"""
s_lshl_b32 s{sT0}, s{sG}, 1
s_add_u32 s{sT0}, s{sT0}, s{sCW}
s_lshl_b32 s{sT0}, s{sT0}, 12
s_add_u32 s{sT0}, s{sT0}, {FL2}
v_lshlrev_b32 v10, 7, v{vL31}
v_add_u32 v10, s{sT0}, v10
s_bfm_b64 s[{sM64}:{sM64+1}], s{sC}, 0
""")
poll_flags(10, 11, 1, sM64, sleep=8)
stamp(2)
A(f"""
s_lshl_b32 s{sT0}, s{sTW}, 4
s_sub_u32 s{sT0}, s{sC}, s{sT0}
s_sub_u32 s{sT0}, s{sT0}, 1
s_lshl_b32 s{sT0}, s{sT0}, 12
v_lshlrev_b32 v10, 15, v{vH}
v_sub_u32 v10, s{sT0}, v10
v_lshl_add_u32 v10, v{vP2}, 2, v10
""")
for k in range(8):
    A(f"v_min_u32 v11, 0x100000, v10")
    A(f"buffer_load_dwordx2 v[{FRS+2*k}:{FRS+2*k+1}], v11, {srd(R_AGG)}, 0 offen sc1")
    if k < 7: A(f"v_add_u32 v10, {(-4096) & 0xffffffff}, v10")
A("s_waitcnt vmcnt(0)")
p = (FRS+14, FRS+15)
pb = [(FRS+16, FRS+17), (FRS+18, FRS+19)]
for k in range(6, -1, -1):
    d = pb[k & 1]
    cstep4(d[0], d[1], p[0], p[1], vL64R, vL64I, FRS+2*k, FRS+2*k+1, FRS+20, FRS+21)
    p = d
assert p == pb[0]
A(f"""
s_lshl_b32 s{sT0}, s{sTW}, 10
s_lshl_b32 s{sT1}, s{sCW}, 8
s_add_u32 s{sT1}, s{sT1}, {HP}
s_add_u32 s{sT0}, s{sT0}, s{sT1}
v_lshlrev_b32 v10, 3, v{vL31}
v_add_u32 v11, s{sT1}, v10
v_lshl_add_u32 v10, v{vH}, 9, v10
v_add_u32 v10, s{sT0}, v10
ds_write_b64 v10, v[{pb[0][0]}:{pb[0][1]}]
""")
grp_sync(vCNT, vONE, vTMP)
for s in range(4):
    A(f"ds_read_b64 v[{E+2*s}:{E+2*s+1}], v11 offset:{s*512}")
A("s_waitcnt lgkmcnt(0)")
p = (E+6, E+7)
for s in range(2, -1, -1):
    d = pb[s & 1]
    cstep4(d[0], d[1], p[0], p[1], vL512R, vL512I, E+2*s, E+2*s+1, FRS+20, FRS+21)
    p = d
cstep4(FRS, FRS+1, p[0], p[1], vWR, vWI, vPR, vPI, FRS+20, FRS+21)
p = (FRS, FRS+1)
for i in range(16):
    cstep4(UR+i, UI+i, p[0], p[1], vLR, vLI, UR+i, UI+i, FRS+20, FRS+21)
    p = (UR+i, UI+i)
HR, HI = FRS, FRS+8
for i in range(16):
    t = FRS + 16 + 2*(i & 1)
    t2 = FRS + 20 + (i & 1)
    A(f"v_mul_f32 v{t}, v{vCI}, v{UI+i}")
    A(f"v_mul_f32 v{t+1}, v{vCI}, v{UR+i}")
    A(f"v_fma_f32 v{t}, v{vCR}, v{UR+i}, -v{t}")
    A(f"v_fma_f32 v{t+1}, -v{vCR}, v{UI+i}, -v{t+1}")
    if i & 1:
        A(f"v_cvt_pk_bf16_f32 v{HR+i//2}, v{FRS+16}, v{FRS+18}")
        A(f"v_cvt_pk_bf16_f32 v{HI+i//2}, v{FRS+17}, v{FRS+19}")
A(f"""
s_lshl_b32 s{sT0}, s{sSW}, 12
s_add_u32 s{sT0}, s{sT0}, {TB}
v_lshlrev_b32 v10, 6, v{vL31}
v_lshl_add_u32 v10, v{vH}, 5, v10
v_add_u32 v10, s{sT0}, v10
ds_write_b128 v10, v[{HR}:{HR+3}]
ds_write_b128 v10, v[{HR+4}:{HR+7}] offset:16
ds_write_b128 v10, v[{HI}:{HI+3}] offset:2048
ds_write_b128 v10, v[{HI+4}:{HI+7}] offset:2064
v_bfe_u32 v10, v{vLANE}, 2, 2
v_lshl_add_u32 v10, v{vH}, 3, v10
v_lshlrev_b32 v10, 6, v10
v_bfe_u32 v11, v{vLANE}, 4, 1
v_lshl_add_u32 v10, v11, 5, v10
v_and_b32 v11, 3, v{vLANE}
v_lshl_add_u32 v10, v11, 3, v10
v_add_u32 v10, s{sT0}, v10
s_waitcnt lgkmcnt(0)
""")
for part in range(2):
    for hf in range(2):
        f = FRS + 8*part + 4*hf
        A(f"ds_read_b64_tr_b16 v[{f}:{f+1}], v10 offset:{part*2048 + hf*1024}")
        A(f"ds_read_b64_tr_b16 v[{f+2}:{f+3}], v10 offset:{part*2048 + hf*1024 + 256}")
A(f"""
s_lshl_b32 s{sT0}, s{sC}, 1
s_add_u32 s{sT0}, s{sT0}, s{sTW}
s_lshl_b32 s{sT4}, s{sT0}, 16
s_add_u32 s{sT4}, s{sT4}, {HB}
s_lshl_b32 s{sT1}, s{sG}, 12
s_lshl_b32 s{sT2}, s{sCW}, 11
s_add_u32 s{sT1}, s{sT1}, s{sT2}
s_add_u32 s{sT0}, s{sT4}, s{sT1}
s_add_u32 s{sT1}, s{sT0}, 32768
s_waitcnt lgkmcnt(0)
buffer_store_dwordx4 v[{FRS}:{FRS+3}], v{vL16x}, {srd(R_WS)}, s{sT0} offen sc1
buffer_store_dwordx4 v[{FRS+4}:{FRS+7}], v{vL16x}, {srd(R_WS)}, s{sT0} offen offset:1024 sc1
buffer_store_dwordx4 v[{FRS+8}:{FRS+11}], v{vL16x}, {srd(R_WS)}, s{sT1} offen sc1
buffer_store_dwordx4 v[{FRS+12}:{FRS+15}], v{vL16x}, {srd(R_WS)}, s{sT1} offen offset:1024 sc1
s_waitcnt vmcnt(0)
""")
grp_sync(vCNT, vONE, vTMP)
nf = A.newlabel("nf3")
A(f"""
s_lshl_b32 s{sT2}, s{sC}, 10
s_add_u32 s{sT2}, s{sT2}, {FL3}
s_cmp_lg_u32 s{sSW}, 0
s_cbranch_scc1 {nf}
s_lshl_b32 s{sT1}, s{sG}, 7
s_add_u32 s{sT1}, s{sT1}, s{sT2}
v_mov_b32 v10, s{sTAG}
v_mov_b32 v11, 0
s_mov_b64 exec, 1
buffer_store_dword v10, v11, {srd(R_WS)}, s{sT1} offen sc1
s_mov_b64 exec, -1
{nf}:
v_and_b32 v10, 7, v{vLANE}
v_lshlrev_b32 v10, 7, v10
v_add_u32 v10, s{sT2}, v10
""")
stamp(3)
poll_flags(10, 11, 1, None, sleep=8)
A(f"""
s_lshl_b32 s{sT1}, s{sCW}, 15
s_add_u32 s{sT4}, s{sT4}, s{sT1}
""")
for j in range(32):
    if j % 4 == 0 and j > 0:
        A(f"s_add_u32 s{sT4}, s{sT4}, 4096")
    A(f"buffer_load_dwordx4 a[{4*j}:{4*j+3}], v{vL16x}, {srd(R_WS)}, s{sT4} offen offset:{(j%4)*1024} sc1")
A(f"""
v_mul_u32_u24 v10, 1040, v{vL31}
v_lshl_add_u32 v10, v{vH}, 4, v10
s_mul_i32 s{sT0}, s{sCW}, {CIM + 32*1040}
s_mul_i32 s{sT1}, s{sCW}, {CIM - 32*1040}
s_add_u32 s{sT1}, s{sT1}, {32*1040}
v_add_u32 v11, s{sT1}, v10
v_add_u32 v10, s{sT0}, v10
""")
def g2_rd(j):
    f = FRS + 8*(j % 3)
    A(f"ds_read_b128 v[{f}:{f+3}], v10 offset:{j*32}")
    A(f"ds_read_b128 v[{f+4}:{f+7}], v11 offset:{j*32}")
g2_rd(0); g2_rd(1)
for j in range(32):
    f = FRS + 8*(j % 3)
    if j + 2 < 32: g2_rd(j + 2)
    issued = min(32, j + 3)
    A(f"s_waitcnt vmcnt({31 - j}) lgkmcnt({2*(issued - j - 1)})")
    A(f"v_mfma_f32_32x32x16_bf16 v[{Y0}:{Y0+15}], a[{4*j}:{4*j+3}], v[{f}:{f+3}], v[{Y0}:{Y0+15}]")
    c = "0" if j == 0 else f"v[{Y1}:{Y1+15}]"
    A(f"v_mfma_f32_32x32x16_bf16 v[{Y1}:{Y1+15}], a[{4*j}:{4*j+3}], v[{f+4}:{f+7}], {c}")
A(f"""
s_xor_b32 s{sT0}, s{sSW}, 2
s_lshl_b32 s{sT0}, s{sT0}, 12
s_add_u32 s{sT0}, s{sT0}, {TB}
v_add_u32 v10, s{sT0}, v{vL16x}
s_lshl_b32 s{sT0}, s{sSW}, 12
s_add_u32 s{sT0}, s{sT0}, {TB}
v_add_u32 v11, s{sT0}, v{vL16x}
""")
A.nop(8)
for i in range(4):
    A(f"ds_write_b128 v10, v[{Y1+4*i}:{Y1+4*i+3}] offset:{i*1024}")
grp_sync(vCNT, vONE, vTMP)
for i in range(4):
    A(f"ds_read_b128 v[{Y1+4*i}:{Y1+4*i+3}], v11 offset:{i*1024}")
A(f"""
v_lshrrev_b32 v6, 3, v{vLANE}
v_and_b32 v7, 7, v{vLANE}
v_bfe_u32 v8, v{vLANE}, 4, 1
v_lshlrev_b32 v8, 2, v8
v_xor_b32 v7, v7, v8
v_lshlrev_b32 v7, 4, v7
v_lshl_add_u32 v5, v6, 10, v7
s_lshl_b32 s{sT2}, s{sSW}, 14
s_lshl_b32 s{sT3}, s{sSW}, 17
""")
for i in range(16):
    A(f"""
    s_add_u32 m0, s{sT2}, {WO + i*1024}
    s_add_u32 s{sT1}, s{sT3}, {i*8192}
    buffer_load_dwordx4 v5, {srd(R_WO)}, s{sT1} offen lds
    """)
A(f"""
s_lshl_b32 s{sT0}, s{sTW}, 17
s_lshl_b32 s{sT1}, s{sG}, 8
s_add_u32 s{sT0}, s{sT0}, s{sT1}
s_lshl_b32 s{sT1}, s{sCW}, 7
s_add_u32 s{sT0}, s{sT0}, s{sT1}
v_lshlrev_b32 v10, 2, v{vL31}
v_lshl_add_u32 v10, v{vH}, 14, v10
v_add_u32 v10, s{sT0}, v10
s_waitcnt lgkmcnt(0)
""")
for i in range(16):
    A(f"v_add_f32 v{Y0+i}, v{Y0+i}, v{Y1+i}")
for i in range(16):
    A(f"s_mov_b32 s{sT1}, {(8*(i>>2) + (i&3))*4096}")
    A(f"buffer_store_dword v{Y0+i}, v10, {srd(R_OUT)}, s{sT1} offen")
A("s_waitcnt vmcnt(16)")
A("s_setprio 0")
stamp(4)

A.label("L_tail")
A(f"""
s_barrier
v_mov_b32 v10, {QM}
ds_read_b128 v[12:15], v10
ds_read_b128 v[16:19], v10 offset:16
s_cmp_lg_u32 s2, 0
s_cbranch_scc1 L_noep
s_cmp_lg_u32 s{sWAVE}, 0
s_cbranch_scc1 L_noep
s_add_u32 s{sT0}, s{sEP}, 1
v_mov_b32 v10, s{sT0}
v_mov_b32 v11, 0
s_mov_b64 exec, 1
buffer_store_dword v10, v11, {srd(R_WS)}, 0 offen
s_mov_b64 exec, -1
L_noep:
s_waitcnt lgkmcnt(0)
v_max3_f32 v12, v12, v13, v14
v_max3_f32 v16, v16, v17, v18
v_max_f32 v12, v12, v15
v_max_f32 v16, v16, v19
v_mul_f32 v12, v12, v16
v_mov_b32 v13, {f2u(-1.0 if OPT['force_slow'] else 1000.0)}
v_cmp_nle_f32 vcc, v12, v13
s_cbranch_vccz L_fast
s_cmp_ge_u32 s{sWAVE}, 4
s_cbranch_scc1 L_slow_S
""")
for i in range(4): A(f"v_mov_b32 v{vZ+i}, 0")
for ct in range(8): A(f"v_mov_b32 v{vM+ct}, 0xff800000")
A("s_nop 1")
for ct in range(8):
    A(f"v_mfma_f32_32x32x16_bf16 a[{16*ct}:{16*ct+15}], v[{vZ}:{vZ+3}], v[{vZ}:{vZ+3}], 0")
A(f"s_mov_b32 s{sLOOP}, 16")
A.label("L_sl1")
ld_k(0); adv(sKOFF)
A("s_waitcnt vmcnt(0)")
for ct in range(8):
    A(f"v_mfma_f32_32x32x16_bf16 v[{S0}:{S0+15}], v[{KV[0]}:{KV[0]+3}], v[{QF+4*ct}:{QF+4*ct+3}], 0")
    A.nop(12)
    for i in range(8):
        A(f"v_max3_f32 v{vM+ct}, v{S0+2*i}, v{S0+2*i+1}, v{vM+ct}")
A(f"""
s_sub_u32 s{sLOOP}, s{sLOOP}, 1
s_cmp_lg_u32 s{sLOOP}, 0
s_cbranch_scc1 L_sl1
s_lshl_b32 s{sT0}, s{sWAVE}, 11
s_add_u32 s{sT0}, s{sT0}, {QX}
v_lshlrev_b32 v10, 2, v{vLANE}
v_add_u32 v10, s{sT0}, v10
""")
for ct in range(8):
    A(f"ds_write_b32 v10, v{vM+ct} offset:{ct*256}")
A(f"""
s_waitcnt lgkmcnt(0)
s_barrier
v_lshlrev_b32 v10, 2, v{vL31}
v_add_u32 v10, {QX}, v10
""")
for ct in range(8):
    for w in range(4):
        A(f"ds_read_b32 v{S0+2*w}, v10 offset:{w*2048 + ct*256}")
        A(f"ds_read_b32 v{S0+2*w+1}, v10 offset:{w*2048 + ct*256 + 128}")
    A("s_waitcnt lgkmcnt(0)")
    for w in range(4):
        A(f"v_max3_f32 v{vM+ct}, v{S0+2*w}, v{S0+2*w+1}, v{vM+ct}")
A(f"s_mov_b32 s{sVOFF}, s{sKOFF}")
A(f"s_mov_b32 s{sLOOP}, 16")
A.label("L_sl2")
ld_k(0); adv(sKOFF); ld_v(0); adv(sVOFF)
A("s_waitcnt vmcnt(0)")
for ct in range(8):
    A(f"v_mfma_f32_32x32x16_bf16 v[{S0}:{S0+15}], v[{KV[0]}:{KV[0]+3}], v[{QF+4*ct}:{QF+4*ct+3}], 0")
    A.nop(12)
    for i in range(16):
        A(f"v_sub_f32 v{S0+i}, v{S0+i}, v{vM+ct}")
    for i in range(16):
        A(f"v_exp_f32 v{S0+i}, v{S0+i}")
    A.nop(2)
    A(f"v_smfmac_f32_32x32x32_bf16 a[{16*ct}:{16*ct+15}], v[{KV[0]+4}:{KV[0]+7}], v[{S0}:{S0+7}], v{vIDX}")
    A(f"v_smfmac_f32_32x32x32_bf16 a[{16*ct}:{16*ct+15}], v[{KV[0]+8}:{KV[0]+11}], v[{S0+8}:{S0+15}], v{vIDX}")
A(f"""
s_sub_u32 s{sLOOP}, s{sLOOP}, 1
s_cmp_lg_u32 s{sLOOP}, 0
s_cbranch_scc1 L_sl2
s_nop 15
s_branch L_fast
L_slow_S:
s_barrier
L_fast:
s_cmp_ge_u32 s{sWAVE}, 4
s_cbranch_scc1 L_nopart
s_mul_i32 s{sT0}, s{sWAVE}, {8*CB_T}
s_add_u32 s{sT0}, s{sT0}, {CB}
v_add_u32 v10, s{sT0}, v{vL16x}
v_lshlrev_b32 v11, 2, v{vLANE}
v_add_u32 v11, s{sT0}, v11
""")
for ct in range(8):
    A(f"ds_write_b128 v10, a[{16*ct}:{16*ct+3}] offset:{ct*CB_T}")
    A(f"ds_write_b128 v10, a[{16*ct+4}:{16*ct+7}] offset:{ct*CB_T + 1024}")
A("s_mov_b32 exec_hi, 0")
for ct in range(8):
    A(f"ds_write_b32 v11, a{16*ct+8} offset:{ct*CB_T + 2048}")
A(f"""
s_mov_b32 exec_hi, -1
L_nopart:
s_mul_i32 s{sT0}, s{sWAVE}, {CB_T}
s_add_u32 s{sT0}, s{sT0}, {CB}
v_add_u32 v10, s{sT0}, v{vL16x}
v_lshlrev_b32 v11, 2, v{vL31}
v_add_u32 v11, s{sT0}, v11
s_waitcnt lgkmcnt(0)
s_barrier
""")
PA = 16
for w in range(4):
    A(f"ds_read_b128 v[{PA+12*w}:{PA+12*w+3}], v10 offset:{w*8*CB_T}")
    A(f"ds_read_b128 v[{PA+12*w+4}:{PA+12*w+7}], v10 offset:{w*8*CB_T + 1024}")
    A(f"ds_read_b32 v{PA+12*w+8}, v11 offset:{w*8*CB_T + 2048}")
A(f"""
s_lshl_b32 s{sT4}, s{sC}, 1
s_add_u32 s{sT4}, s{sT4}, s{sTW}
s_lshl_b32 s{sT4}, s{sT4}, 15
s_add_u32 s{sT4}, s{sT4}, {OB}
s_lshr_b32 s{sT5}, s{sWAVE}, 1
s_lshl_b32 s{sT1}, s{sG}, 2
s_add_u32 s{sT1}, s{sT1}, s{sT5}
s_lshl_b32 s{sT1}, s{sT1}, 10
s_add_u32 s{sT1}, s{sT1}, s{sT4}
s_waitcnt lgkmcnt(6)
""")
for i in (8, 0, 1, 2, 3, 4, 5, 6, 7):
    A(f"v_add_f32 v{PA+i}, v{PA+i}, v{PA+12+i}")
A("s_waitcnt lgkmcnt(0)")
for i in (8, 0, 1, 2, 3, 4, 5, 6, 7):
    A(f"v_add_f32 v{PA+24+i}, v{PA+24+i}, v{PA+36+i}")
A(f"v_add_f32 v{PA+8}, v{PA+8}, v{PA+32}")
A(f"v_rcp_f32 v{PA+8}, v{PA+8}")
for i in range(8):
    A(f"v_add_f32 v{PA+i}, v{PA+i}, v{PA+24+i}")
for i in range(8):
    A(f"v_mul_f32 v{PA+i}, v{PA+i}, v{PA+8}")
for i in range(4):
    A(f"v_cvt_pk_bf16_f32 v{12+i}, v{PA+2*i}, v{PA+2*i+1}")
A(f"""
buffer_store_dwordx4 v[12:15], v{vL16x}, {srd(R_WS)}, s{sT1} offen sc1
s_lshl_b32 s{sT2}, s{sC}, 10
s_add_u32 s{sT2}, s{sT2}, {FL4}
v_and_b32 v10, 7, v{vLANE}
v_lshlrev_b32 v10, 7, v10
v_add_u32 v10, s{sT2}, v10
v_bfe_u32 v6, v{vLANE}, 2, 2
v_lshl_add_u32 v6, v{vH}, 2, v6
v_bfe_u32 v7, v{vLANE}, 4, 1
v_and_b32 v8, 3, v{vLANE}
v_lshlrev_b32 v8, 3, v8
v_lshl_add_u32 v8, v7, 5, v8
v_bfe_u32 v7, v{vLANE}, 3, 1
v_lshl_add_u32 v8, v7, 6, v8
v_lshl_add_u32 v8, v6, 7, v8
s_lshl_b32 s{sT0}, s{sT5}, 14
v_add_u32 v8, s{sT0}, v8
v_xor_b32 v9, 64, v8
s_waitcnt vmcnt(0)
s_barrier
s_cmp_lg_u32 s{sWAVE}, 0
s_cbranch_scc1 L_nofl4
s_lshl_b32 s{sT1}, s{sG}, 7
s_add_u32 s{sT1}, s{sT1}, s{sT2}
v_mov_b32 v12, s{sTAG}
v_mov_b32 v11, 0
s_mov_b64 exec, 1
buffer_store_dword v12, v11, {srd(R_WS)}, s{sT1} offen sc1
s_mov_b64 exec, -1
""")
stamp(5)
poll_flags(10, 11, 1, None, sleep=1)
A(f"""
L_nofl4:
s_barrier
s_lshl_b32 s{sT0}, s{sT5}, 13
s_add_u32 s{sT4}, s{sT4}, s{sT0}
s_add_u32 s{sT3}, s{sT4}, 4096
""")
stamp(6)
OF = 16
for j in range(8):
    A(f"buffer_load_dwordx4 v[{OF+4*j}:{OF+4*j+3}], v{vL16x}, {srd(R_WS)}, s{sT4 if j < 4 else sT3} offen offset:{(j%4)*1024} sc1")
WF = 48
for j in range(8):
    for nt in range(2):
        f = WF + 8*j + 4*nt
        A(f"ds_read_b64_tr_b16 v[{f}:{f+1}], v{8 + nt} offset:{j*2048}")
        A(f"ds_read_b64_tr_b16 v[{f+2}:{f+3}], v{8 + nt} offset:{j*2048 + 1024}")
    if j == 2: A("s_waitcnt lgkmcnt(3)")
    if j == 5: A("s_waitcnt lgkmcnt(3)")
A("s_waitcnt lgkmcnt(0)")
for j in range(8):
    A(f"s_waitcnt vmcnt({7 - j})")
    for nt in range(2):
        f = WF + 8*j + 4*nt
        c = "0" if j == 0 else f"a[{16*nt}:{16*nt+15}]"
        A(f"v_mfma_f32_32x32x16_bf16 a[{16*nt}:{16*nt+15}], v[{OF+4*j}:{OF+4*j+3}], v[{f}:{f+3}], {c}")
A(f"""
s_lshl_b32 s{sT0}, s{sTW}, 15
s_add_u32 s{sT0}, s{sT0}, {RB}
s_lshl_b32 s{sT1}, s{sT5}, 11
s_add_u32 s{sT1}, s{sT1}, s{sT0}
v_add_u32 v10, s{sT1}, v{vL16x}
s_lshl_b32 s{sT1}, s{sT5}, 13
s_add_u32 s{sT1}, s{sT1}, s{sT0}
v_add_u32 v11, s{sT1}, v{vL16x}
s_lshl_b32 s{sT0}, s{sTW}, 17
s_lshl_b32 s{sT1}, s{sG}, 8
s_add_u32 s{sT0}, s{sT0}, s{sT1}
s_lshr_b32 s{sT1}, s{sT5}, 1
s_lshl_b32 s{sT1}, s{sT1}, 7
s_add_u32 s{sT0}, s{sT0}, s{sT1}
s_and_b32 s{sT1}, s{sT5}, 1
s_lshl_b32 s{sT1}, s{sT1}, 16
s_add_u32 s{sT0}, s{sT0}, s{sT1}
s_add_u32 s{sT0}, s{sT0}, 2048
v_lshlrev_b32 v12, 2, v{vL31}
v_lshl_add_u32 v12, v{vH}, 14, v12
v_add_u32 v12, s{sT0}, v12
""")
for q in range(4):
    A(f"ds_write_b128 v10, a[{8*q}:{8*q+3}] offset:{q*8192}")
    A(f"ds_write_b128 v10, a[{8*q+4}:{8*q+7}] offset:{q*8192 + 1024}")
A(f"""
s_waitcnt lgkmcnt(0)
s_barrier
""")
for q in range(4):
    A(f"ds_read_b128 v[{16+8*q}:{19+8*q}], v11 offset:{q*2048}")
    A(f"ds_read_b128 v[{20+8*q}:{23+8*q}], v11 offset:{q*2048 + 1024}")
A("s_waitcnt lgkmcnt(4)")
for i in range(8): A(f"v_add_f32 v{16+i}, v{16+i}, v{24+i}")
A("s_waitcnt lgkmcnt(0)")
for i in range(8): A(f"v_add_f32 v{32+i}, v{32+i}, v{40+i}")
for i in range(8):
    A(f"v_add_f32 v{16+i}, v{16+i}, v{32+i}")
    A(f"s_mov_b32 s{sT1}, {(8*(i>>2) + (i&3))*4096}")
    A(f"buffer_store_dword v{16+i}, v12, {srd(R_OUT)}, s{sT1} offen")
if OPT["stamps"]:
    A("s_waitcnt vmcnt(0)")
    stamp(7)
    A(f"""
    s_waitcnt lgkmcnt(0)
    s_lshl_b32 s{sT0}, s2, 3
    s_add_u32 s{sT0}, s{sT0}, s{sWAVE}
    s_lshl_b32 s{sT0}, s{sT0}, 5
    s_add_u32 s{sT0}, s{sT0}, {DBG + 0x800000}
    v_mov_b32 v11, 0
    """)
    for i in range(8): A(f"v_mov_b32 v{16+i}, s{sST+2*i}")
    A(f"""
    s_mov_b64 exec, 1
    buffer_store_dwordx4 v[16:19], v11, {srd(R_WS)}, s{sT0} offen
    buffer_store_dwordx4 v[20:23], v11, {srd(R_WS)}, s{sT0} offen offset:16
    """)
A.label("L_end")
A("s_endpgm")

hdr = open("cdna_kernels/" + NAME + ".s.ref").read().split("; Override launch")[0]
out = hdr + f"""; Fused single-launch kernel: 256 workgroups x 8 waves (4 attention waves + 4 SSM waves). Generated by gen/gen.py.
; @launch grid=(256,1,1) block=(512,1,1) lds={LDS_BYTES}
.amdgcn_target "amdgcn-amd-amdhsa--gfx950"
.text
.globl {NAME}_kernel
.p2align 8
.type {NAME}_kernel,@function
{NAME}_kernel:
""" + A.text() + f""".section .rodata,"a"
.p2align 6
.amdhsa_kernel {NAME}_kernel
  .amdhsa_next_free_vgpr 256
  .amdhsa_next_free_sgpr 102
  .amdhsa_accum_offset 128
  .amdhsa_group_segment_fixed_size 0
  .amdhsa_kernarg_size 136
  .amdhsa_user_sgpr_count 2
  .amdhsa_user_sgpr_kernarg_segment_ptr 1
  .amdhsa_system_sgpr_workgroup_id_x 1
.end_amdhsa_kernel
"""
open(sys.argv[1], "w").write(out)
errs = check(A.lines) + check(A.lines[loop_start:loop_end] * 2)
for e in errs: print("HAZARD:", e)
print(f"{len(A.lines)} lines, {len(errs)} hazards")
```

```python
import sys, math, struct
from asmlib import *

OPT = dict(dbg=0, force_slow=0, stamps=0, noS=0, cyc=0, ost=0, gprio=0, vprio=3, hst=0, stgwin=8, pfq=0, pfb=1, stgl=3, qpre=2,
           pfc=1, ssl=2, la=8, early=1, sst=0)
for a in sys.argv[2:]:
    k, v = a.split("=")
    assert k in OPT, k
    OPT[k] = int(v)

NAME = "concat_heads__ssm_conv_s5__grouped_kv_mqa__prompt"
def f2u(x): return struct.unpack("<I", struct.pack("<f", x))[0]

XB, WQ, WKV = 0, 66560, 132096
SLOT = [0, 49920, 99840]
XA_O, BRE_O, BIM_O = 0, 16640, 33280
CRE, CIM = 0, 66560
TB = 139264
WO = 0
CB = 65536; CB_T = 2304
RB = 65536
QX = 149760; EB = 157952; HP = 160000; CNT = 162048; QM = 162064; KM = 162080
LDS_BYTES = 163840
FL1, FL3 = 0x1000, 0x19000
KVT = 0x80000; KVS = 4096
AGG = 0x30000; AGG_DUMMY = 32*8192; AGG_SIZE = AGG_DUMMY + 256*128
OB, HB = 0x100000, 0x400000
DBG = 0x1000000
WS_SIZE = 0x2000000
assert AGG + AGG_SIZE <= KVT
sWAVE, sC, sG, sTAG, sID = 3, 4, 5, 6, 7
R_XB, R_WQ, R_WKV, R_XA, R_BRE, R_BIM, R_CRE, R_CIM, R_WO, R_OUT, R_WS, R_AGG = 8, 12, 16, 20, 24, 28, 32, 36, 40, 44, 48, 52
P_LRE, P_LIM, P_LDT, P_DSK, P_WV = 56, 58, 60, 62, 64
sEP, sDONE = 66, 67
sT0, sT1, sT2, sT3, sT4, sT5 = 68, 69, 70, 71, 72, 73
sT6, sSPIN = 74, 75
sTW, sCW = 76, 77
sLOOP, sKOFF, sROT, sSW = 78, 79, 80, 81
sOB, sT7 = 82, 83
sST = 84
def srd(r): return f"s[{r}:{r+3}]"

A = Asm()
OST = ["", " sc1", " nt", " sc0 sc1"][OPT["ost"]]
SPIN_MAX = 200000
HST = OPT["hst"]

SSEC = [False]
def sstamp(i, mode):
    if OPT["stamps"] and OPT["sst"] == mode:
        A(f"s_memrealtime s[{sST+2*i}:{sST+2*i+1}]")
def stamp(i, cond=True):
    if SSEC[0] and OPT["sst"] and i < 8: return
    if OPT["stamps"] and cond:
        A(f"s_memrealtime s[{sST+2*i}:{sST+2*i+1}]")
def prio(p): A(f"s_setprio {p}")

def cnt_add(vaddr, vone, off=0):
    A(f"""
    s_mov_b64 exec, 1
    ds_add_u32 v{vaddr}, v{vone} offset:{off}
    s_mov_b64 exec, -1
    """)
def cnt_wait(vaddr, vtmp, target, off=0, sleep=0):
    lp = A.newlabel("sy"); dn = A.newlabel("syd")
    A(f"""
    s_mov_b32 s{sSPIN}, 0
    {lp}:
    ds_read_b32 v{vtmp}, v{vaddr} offset:{off}
    s_add_u32 s{sSPIN}, s{sSPIN}, 1
    s_waitcnt lgkmcnt(0)
    v_readfirstlane_b32 s{sT0}, v{vtmp}
    s_cmp_ge_u32 s{sT0}, {target}
    s_cbranch_scc1 {dn}
    {("s_sleep " + str(sleep)) if sleep else ""}
    s_cmp_lt_u32 s{sSPIN}, {SPIN_MAX}
    s_cbranch_scc1 {lp}
    {dn}:
    """)
NSYNC = [0]
def grp_sync():
    NSYNC[0] += 1
    A("s_waitcnt lgkmcnt(0)")
    cnt_add(vCNT, vONE)
    cnt_wait(vCNT, vTMP, 4*NSYNC[0], sleep=(OPT['ssl'] if NSYNC[0] > 1 else 0))

def poll_flags(vaddr, vdst, width, sleep=2):
    lp = A.newlabel("pl"); dn = A.newlabel("pld")
    ld = "buffer_load_dword" if width == 1 else f"buffer_load_dwordx{width}"
    A(f"s_mov_b32 s{sSPIN}, 0")
    A.label(lp)
    A(f"""
    {ld} {vr(vdst, width)}, v{vaddr}, {srd(R_WS)}, 0 offen sc1
    s_add_u32 s{sSPIN}, s{sSPIN}, 1
    s_waitcnt vmcnt(0)
    v_cmp_ne_u32 vcc, s{sTAG}, v{vdst}
    s_cbranch_vccz {dn}
    {("s_sleep " + str(sleep)) if sleep else ""}
    s_cmp_lt_u32 s{sSPIN}, {SPIN_MAX}
    s_cbranch_scc1 {lp}
    {dn}:
    """)

def wave_max(v, tmp):
    A("s_nop 1")
    for sh in (1, 2, 4, 8):
        A(f"v_max_f32_dpp v{v}, v{v}, v{v} row_ror:{sh} row_mask:0xf bank_mask:0xf")
        A("s_nop 1")
    A(f"v_mov_b32 v{tmp}, v{v}")
    A("s_nop 1")
    A(f"v_permlane16_swap_b32 v{tmp}, v{v}")
    A(f"v_max_f32 v{v}, v{v}, v{tmp}")
    A(f"v_mov_b32 v{tmp}, v{v}")
    A("s_nop 1")
    A(f"v_permlane32_swap_b32 v{tmp}, v{v}")
    A(f"v_max_f32 v{v}, v{v}, v{tmp}")

def wq_voffset(dst, t0, t1, t2):
    A(f"""
    v_lshrrev_b32 v{t0}, 3, v{vLANE}
    v_and_b32 v{t1}, 7, v{vLANE}
    v_bfe_u32 v{t2}, v{vLANE}, 4, 1
    v_lshlrev_b32 v{t2}, 2, v{t2}
    v_xor_b32 v{t1}, v{t1}, v{t2}
    v_lshlrev_b32 v{t1}, 4, v{t1}
    v_lshl_add_u32 v{dst}, v{t0}, 10, v{t1}
    """)

vLANE, vL31, vH, vL16x = 1, 2, 3, 4
UR, UI, Y0, Y1 = 16, 32, 48, 64
FRS = 80
DG = 104
vL1, vL8, vL16, vL64, vL512, vCF = 112, 114, 116, 118, 120, 122
vCNT, vONE, vTMP, vP2, vDUM = 0, 124, 125, 126, 127
vXo, vBo, vDa, vSt = 5, 6, 7, 8
vAa, vBa = [9, 10, 11], [12, 13, 14]
vPF = 15
STG = 64
PRM = 100
S0, S1 = 16, 32
QF = 48
KV = [80, 92, 104, 116]
vIDX = 7
vM = 104
vZ = 120
vKt, vVt = [5, 8, 9, 10], [6, 12, 14, 15]

A(f"""
s_cmp_ge_u32 s2, 256
s_cbranch_scc1 L_end
""")
stamp(0)
loads = [(R_XB, 72), (R_WKV, 88), (P_WV, 96), (R_WQ, 80), (R_WS, 128), (R_XA, 0), (R_BRE, 24), (R_BIM, 32), (R_CRE, 40), (R_CIM, 48),
         (R_WO, 104), (R_OUT, 112), (R_AGG, 128), (P_LRE, 8), (P_LIM, 16), (P_LDT, 56), (P_DSK, 64)]
for r, off in loads:
    A(f"s_load_dwordx2 s[{r}:{r+1}], s[0:1], {off}")
sizes = {R_XB: 65536, R_WKV: 16384, R_WQ: 523392, R_WS: WS_SIZE, R_XA: 65536, R_BRE: 65536, R_BIM: 65536, R_CRE: 65536, R_CIM: 65536,
         R_WO: 523392, R_OUT: 262144, R_AGG: AGG_SIZE}
def srd_words(rs):
    for r in rs:
        A(f"s_mov_b32 s{r+2}, {sizes[r]}")
        A(f"s_mov_b32 s{r+3}, 0x20000")
srd_words([R_XB, R_WKV, R_WS, R_OUT])
A(f"""
v_lshrrev_b32 v5, 6, v0
v_and_b32 v{vLANE}, 63, v0
v_readfirstlane_b32 s{sWAVE}, v5
v_and_b32 v{vL31}, 31, v0
v_bfe_u32 v{vH}, v0, 5, 1
v_lshlrev_b32 v{vL16x}, 4, v{vLANE}
v_mov_b32 v0, {CNT}
s_and_b32 s{sC}, s2, 7
s_lshl_b32 s{sC}, s{sC}, 2
s_bfe_u32 s{sT0}, s2, 0x20003
s_add_u32 s{sC}, s{sC}, s{sT0}
s_lshr_b32 s{sG}, s2, 5
s_lshl_b32 s{sT2}, s{sC}, 16
s_lshr_b32 s{sT0}, s{sG}, 1
s_lshl_b32 s{sT5}, s{sT0}, 14
s_and_b32 s{sTW}, s{sWAVE}, 1
s_bfe_u32 s{sCW}, s{sWAVE}, 0x10001
s_cmp_lt_u32 s{sWAVE}, 4
s_cbranch_scc1 L_A0
""")
A(f"""
s_setprio 3
s_sub_u32 s{sSW}, s{sWAVE}, 4
s_lshl_b32 s{sT1}, s{sSW}, 12
s_add_u32 s{sT5}, s{sT5}, s{sT1}
s_lshr_b32 s{sT0}, s{sT5}, 6
s_add_u32 s{sT0}, s{sT0}, s{sT5}
s_add_u32 m0, s{sT1}, {WKV}
v_mov_b32 v20, 0
v_mov_b32 v21, 0
ds_write_b64 v{vCNT}, v[20:21]
s_waitcnt lgkmcnt(0)
s_bitcmp1_b32 s{sG}, 0
s_cselect_b32 s{R_WKV}, s{P_WV}, s{R_WKV}
s_cselect_b32 s{R_WKV+1}, s{P_WV+1}, s{R_WKV+1}
s_add_u32 s{R_XB}, s{R_XB}, s{sT2}
s_addc_u32 s{R_XB+1}, s{R_XB+1}, 0
""")
stamp(5, HST)
for i in range(4):
    A(f"buffer_load_dwordx4 v{vL16x}, {srd(R_WKV)}, s{sT1} offen offset:{i*1024} lds")
for i in range(4):
    A(f"""
    s_add_u32 m0, s{sT0}, {i*1040}
    s_add_u32 s{sT1}, s{sT5}, {i*1024}
    buffer_load_dwordx4 v{vL16x}, {srd(R_XB)}, s{sT1} offen lds
    """)
A(f"""
s_load_dword s{sEP}, s[{R_WS}:{R_WS+1}], 0
s_barrier
s_branch L_S1
""")

def common_scalars():
    A(f"""
    s_lshl_b32 s{sID}, s{sC}, 3
    s_add_u32 s{sID}, s{sID}, s{sG}
    s_mov_b32 s{sDONE}, 0
    s_lshl_b32 s{sOB}, s{sC}, 1
    s_add_u32 s{sOB}, s{sOB}, s{sTW}
    s_lshl_b32 s{sOB}, s{sOB}, 15
    s_add_u32 s{sOB}, s{sOB}, {OB}
    s_lshl_b32 s{sT0}, s{sC}, 18
    s_add_u32 s{R_OUT}, s{R_OUT}, s{sT0}
    s_addc_u32 s{R_OUT+1}, s{R_OUT+1}, 0
    """)
A.label("L_A0")
sR10 = sT5
vWQo = 119
if OPT["pfc"]:
    A(f"""
    s_cmp_lg_u32 s{sWAVE}, 1
    s_cbranch_scc1 L_nopfcode
    s_getpc_b64 s[{sT0}:{sT1}]
    L_pc:
    s_sub_u32 s{sT0}, s{sT0}, L_pc-{NAME}_kernel
    s_subb_u32 s{sT1}, s{sT1}, 0
    s_bfe_u32 s{sLOOP}, s2, 0x20003
    s_lshl_b32 s{sLOOP}, s{sLOOP}, 13
    v_lshlrev_b32 v16, 7, v{vLANE}
    v_add_u32 v16, s{sLOOP}, v16
    v_cmp_gt_u32 vcc, L_hot_end-{NAME}_kernel, v16
    s_and_b64 exec, exec, vcc
    s_cbranch_execz L_pfcode2
    global_load_dword v126, v16, s[{sT0}:{sT1}]
    L_pfcode2:
    s_mov_b64 exec, -1
    L_nopfcode:
    """)
srd_words([R_WQ])
wq_voffset(vWQo, 6, 7, 10)
A(f"""
s_lshl_b32 s{sT3}, s{sG}, 7
s_add_u32 s{sT0}, s{sWAVE}, 16
s_lshl_b32 s{sT0}, s{sT0}, 10
s_add_u32 s{sR10}, s{sR10}, s{sT0}
s_and_b32 s{sR10}, s{sR10}, 0xffff
s_and_b32 s{sROT}, s{sC}, 3
s_waitcnt lgkmcnt(0)
s_add_u32 s{R_XB}, s{R_XB}, s{sT2}
s_addc_u32 s{R_XB+1}, s{R_XB+1}, 0
s_add_u32 s{R_WQ}, s{R_WQ}, s{sT3}
s_addc_u32 s{R_WQ+1}, s{R_WQ+1}, 0
s_load_dword s{sEP}, s[{R_WS}:{R_WS+1}], 0
s_barrier
""")
stamp(1, HST)
for j in range(12):
    A(f"""
    s_lshr_b32 s{sT0}, s{sR10}, 6
    s_add_u32 m0, s{sT0}, s{sR10}
    s_add_u32 s{sT1}, s{sR10}, 4096
    buffer_load_dwordx4 v{vL16x}, {srd(R_XB)}, s{sR10} offen lds
    s_and_b32 s{sR10}, s{sT1}, 0xffff
    """)
def wq_dma(s):
    A(f"""
    s_add_u32 s{sT3}, s{sROT}, {s}
    s_and_b32 s{sT3}, s{sT3}, 3
    s_lshl_b32 s{sT3}, s{sT3}, 4
    s_add_u32 s{sT3}, s{sT3}, s{sWAVE}
    s_lshl_b32 s{sT3}, s{sT3}, 13
    s_lshl_b32 s{sT2}, s{sWAVE}, 10
    """)
    for i in range(4):
        A(f"""
        s_add_u32 m0, s{sT2}, {WQ + s*16384 + i*4096}
        s_add_u32 s{sT1}, s{sT3}, {i*32768}
        buffer_load_dwordx4 v{vWQo}, {srd(R_WQ)}, s{sT1} offen lds
        """)
for s in range(OPT["qpre"]): wq_dma(s)
stamp(2 if HST else 1)
for i in range(4): A(f"v_mov_b32 v{vZ+i}, 0")
vXa, vWa, vFl, vQw, vQr, vAone = 8, 9, 10, 14, 15, 118
A(f"v_mov_b32 v{vAone}, 1")
A("s_nop 0")
for ct in range(8):
    A(f"v_mfma_f32_32x32x16_bf16 a[{16*ct}:{16*ct+15}], v[{vZ}:{vZ+3}], v[{vZ}:{vZ+3}], 0")
common_scalars()
A(f"""
s_lshl_b32 s{sT0}, s{sTW}, 5
v_add_u32 v6, s{sT0}, v{vL31}
v_mul_u32_u24 v{vXa}, 1040, v6
v_lshl_add_u32 v{vXa}, v{vH}, 4, v{vXa}
v_bfe_u32 v6, v{vLANE}, 2, 2
v_lshl_add_u32 v6, v{vH}, 3, v6
v_bfe_u32 v7, v{vLANE}, 4, 1
v_and_b32 v11, 3, v{vLANE}
v_lshlrev_b32 v11, 3, v11
v_lshl_add_u32 v11, v7, 5, v11
s_lshl_b32 s{sT0}, s{sCW}, 6
v_add_u32 v11, s{sT0}, v11
v_bfe_u32 v7, v{vLANE}, 3, 1
v_lshlrev_b32 v7, 6, v7
v_xor_b32 v11, v11, v7
v_lshl_add_u32 v{vWa}, v6, 7, v11
v_add_u32 v{vWa}, {WQ}, v{vWa}
s_lshl_b32 s{sT0}, s{sWAVE}, 13
s_add_u32 s{sT0}, s{sT0}, {FL1}
v_lshlrev_b32 v{vFl}, 7, v{vLANE}
v_add_u32 v{vFl}, s{sT0}, v{vFl}
s_lshl_b32 s{sT0}, s{sWAVE}, 16
s_add_u32 s{sT1}, s{sT0}, {KVT}
v_add_u32 v{vKt[0]}, s{sT1}, v{vL16x}
s_add_u32 s{sT1}, s{sT1}, 1024
v_lshlrev_b32 v13, 4, v{vL31}
v_mul_u32_u24 v14, 272, v{vH}
v_add3_u32 v13, v13, v14, s{sT1}
v_cmp_lt_u32 vcc, 16, v{vL31}
v_mov_b32 v14, 0x7ff00000
v_mov_b32 v{vIDX}, 0xdddddddd
v_cndmask_b32 v{vVt[0]}, v13, v14, vcc
s_bfe_u32 s{sKOFF}, s2, 0x20003
s_lshl_b32 s{sKOFF}, s{sKOFF}, 14
s_lshl_b32 s{sT0}, s{sCW}, 2
s_add_u32 s{sT0}, s{sT0}, s{sTW}
s_lshl_b32 s{sT0}, s{sT0}, 10
s_add_u32 s{sT0}, s{sT0}, {QX}
v_add_u32 v{vQw}, s{sT0}, v{vL16x}
v_add_u32 v{vQr}, {QX}, v{vL16x}
s_mov_b32 s{sT4}, {f2u(0.25 * math.log2(math.e))}
s_lshl_b32 s{sT0}, s{sWAVE}, 2
s_add_u32 s{sT0}, s{sT0}, {QM}
v_mov_b32 v11, s{sT0}
s_waitcnt lgkmcnt(0)
s_mul_i32 s{sTAG}, s{sEP}, 0x9E3779B1
s_add_u32 s{sTAG}, s{sTAG}, 0x7F4A7C15
""")
def qproj_quarter(s):
    A(f"""
    s_add_u32 s{sT2}, s{sROT}, {s}
    s_and_b32 s{sT2}, s{sT2}, 3
    s_lshl_b32 s{sT2}, s{sT2}, 8
    v_add_u32 v12, s{sT2}, v{vXa}
    s_waitcnt vmcnt({4*(min(4, s + OPT["qpre"]) - s - 1)})
    """)
    stamp(3 + s, HST)
    cnt_add(vCNT, vAone, 4)
    if s + OPT["qpre"] < 4: wq_dma(s + OPT["qpre"])
    cnt_wait(vCNT, 13, 4 + 4*(s + 1), 4)
    def rd(k):
        f = 32 + 8*(k % 6)
        A(f"ds_read_b64_tr_b16 v[{f}:{f+1}], v{vWa} offset:{s*16384 + k*2048}")
        A(f"ds_read_b64_tr_b16 v[{f+2}:{f+3}], v{vWa} offset:{s*16384 + k*2048 + 512}")
        A(f"ds_read_b128 v[{f+4}:{f+7}], v12 offset:{k*32}")
    for k in range(4): rd(k)
    for k in range(8):
        f = 32 + 8*(k % 6)
        if k + 4 < 8: rd(k + 4)
        issued = min(8, k + 5)
        A(f"s_waitcnt lgkmcnt({3*(issued - k - 1)})")
        c = "0" if (s == 0 and k == 0) else f"v[{S0}:{S0+15}]"
        A(f"v_mfma_f32_32x32x16_bf16 v[{S0}:{S0+15}], v[{f}:{f+3}], v[{f+4}:{f+7}], {c}")
for s in range(4):
    qproj_quarter(s)
A(f"buffer_load_dwordx2 v[12:13], v{vFl}, {srd(R_WS)}, 0 offen sc1")
A.nop(11)
for i in range(16):
    A(f"v_mul_f32 v{S0+i}, s{sT4}, v{S0+i}")
    if i & 1: A(f"v_cvt_pk_bf16_f32 v{32+i//2}, v{S0+i-1}, v{S0+i}")
    if i == 7: A(f"ds_write_b128 v{vQw}, v[32:35]")
A(f"""
ds_write_b128 v{vQw}, v[36:39] offset:2048
s_waitcnt lgkmcnt(0)
""")
cnt_add(vCNT, vAone, 4)
for hd in range(2):
    A(f"v_mul_f32 v{40+hd}, v{S0+8*hd}, v{S0+8*hd}")
    for i in range(1, 8):
        A(f"v_fmac_f32 v{40+hd}, v{S0+8*hd+i}, v{S0+8*hd+i}")
A(f"""
v_mov_b32 v42, v40
v_mov_b32 v43, v41
s_nop 1
v_permlane32_swap_b32 v42, v40
v_permlane32_swap_b32 v43, v41
v_add_f32 v40, v40, v42
v_add_f32 v41, v41, v43
v_max_f32 v40, v40, v41
""")
cnt_wait(vCNT, 44, 24, 4)
stamp(7 if HST else 2)
for ct in range(8):
    A(f"ds_read_b128 v[{QF+4*ct}:{QF+4*ct+3}], v{vQr} offset:{ct*1024}")
A(f"""
s_waitcnt vmcnt(0)
v_cmp_ne_u32 vcc, s{sTAG}, v12
s_cbranch_vccz L_kvok
""")
poll_flags(vFl, 12, 2, sleep=0)
A.label("L_kvok")
stamp(3, not HST)
A("v_mov_b32 v41, v13")
def ld_k(b, t):
    A(f"buffer_load_dwordx4 v[{KV[b]}:{KV[b]+3}], v{vKt[t]}, {srd(R_WS)}, s{sKOFF} offen sc1")
def ld_v(b, j, t):
    A(f"buffer_load_dwordx4 v[{KV[b]+4+4*j}:{KV[b]+7+4*j}], v{vVt[t]}, {srd(R_WS)}, s{sKOFF} offen offset:{544*j} sc1")
ld_k(0, 0); ld_v(0, 0, 0); ld_v(0, 1, 0)
for t in range(1, 4):
    A(f"v_add_u32 v{vKt[t]}, {t*KVS}, v{vKt[0]}")
    A(f"v_add_u32 v{vVt[t]}, {t*KVS}, v{vVt[0]}")
    if t < 3:
        ld_k(t, t); ld_v(t, 0, t); ld_v(t, 1, t)
A("s_nop 0")
for sh in (1, 2, 4, 8):
    A(f"v_max_f32_dpp v40, v40, v40 row_ror:{sh} row_mask:0xf bank_mask:0xf")
    A(f"v_max_f32_dpp v41, v41, v41 row_ror:{sh} row_mask:0xf bank_mask:0xf")
    A("s_nop 0")
for sw in ("16", "32"):
    A(f"""
    v_mov_b32 v42, v40
    v_mov_b32 v43, v41
    s_nop 1
    v_permlane{sw}_swap_b32 v42, v40
    v_permlane{sw}_swap_b32 v43, v41
    v_max_f32 v40, v40, v42
    v_max_f32 v41, v41, v43
    """)
A("ds_write2_b32 v11, v40, v41 offset0:0 offset1:4")
A(f"""
s_mul_i32 s{sT0}, s{sWAVE}, {8*CB_T}
s_add_u32 s{sT0}, s{sT0}, {CB}
v_lshlrev_b32 v13, 2, v{vLANE}
v_add_u32 v13, s{sT0}, v13
s_waitcnt lgkmcnt(0)
v_add_u32 v11, s{sT0}, v{vL16x}
""")
for i in range(8): A(f"v_mov_b32 v{S1+8+i}, 0")
for i in range(4): A(f"v_mov_b32 v{KV[3]+8+i}, 0")
A(f"""
s_waitcnt vmcnt(6)
v_mfma_f32_32x32x16_bf16 v[{S0}:{S0+15}], v[{KV[0]}:{KV[0]+3}], v[{QF}:{QF+3}], 0
""")
A.nop(12)
SB = [S0, S1]
LASTSYNC = 8
def part_write(ct):
    A(f"ds_write_b128 v11, a[{16*ct}:{16*ct+3}] offset:{ct*CB_T}")
    A(f"ds_write_b128 v11, a[{16*ct+4}:{16*ct+7}] offset:{ct*CB_T + 1024}")
    A(f"ds_write_b32 v13, a{16*ct+8} offset:{ct*CB_T + 2048}")
def period(t, ct):
    kb = t % 4
    cur = SB[ct & 1]; oth = SB[(ct + 1) & 1]
    pct = (ct - 1) % 8
    pkb = kb if ct > 0 else (kb - 1) % 4
    nct = (ct + 1) % 8
    nkb = kb if ct < 7 else (kb + 1) % 4
    ld = ct == 0 and t + 3 < 16
    early = OPT["early"] and t == 15 and ct >= 2
    e = lambda i: A(f"v_exp_f32 v{cur+i}, v{cur+i}")
    e(0); e(1)
    A(f"v_smfmac_f32_32x32x32_bf16 a[{16*pct}:{16*pct+15}], v[{KV[pkb]+8}:{KV[pkb]+11}], v[{oth+8}:{oth+15}], v{vIDX}")
    e(2); e(3)
    if ct == 7 and t < 15: A(f"s_waitcnt vmcnt({3*min(2, 14 - t)})")
    e(4)
    if (t, ct) != (15, 7):
        A(f"v_mfma_f32_32x32x16_bf16 v[{oth}:{oth+15}], v[{KV[nkb]}:{KV[nkb]+3}], v[{QF+4*nct}:{QF+4*nct+3}], 0")
    for i in range(5, 10): e(i)
    A(f"v_smfmac_f32_32x32x32_bf16 a[{16*ct}:{16*ct+15}], v[{KV[kb]+4}:{KV[kb]+7}], v[{cur}:{cur+7}], v{vIDX}")
    e(10); e(11)
    if OPT["early"] and (t, ct) == (15, 0): A(f"ds_read_b32 v{KV[0]}, v{vCNT}")
    e(12)
    if ld: ld_k(pkb, pkb)
    if early: A(f"ds_write_b128 v11, a[{16*(ct-2)}:{16*(ct-2)+3}] offset:{(ct-2)*CB_T}")
    e(13)
    if ld: ld_v(pkb, 0, pkb)
    if kb == 0 and ct == 1 and t < 12: A(f"s_add_u32 s{sKOFF}, s{sKOFF}, {4*KVS}")
    if early: A(f"ds_write_b128 v11, a[{16*(ct-2)+4}:{16*(ct-2)+7}] offset:{(ct-2)*CB_T + 1024}")
    e(14)
    if ld: ld_v(pkb, 1, pkb)
    if kb == 0 and ct == 1 and t < 12: A(f"s_and_b32 s{sKOFF}, s{sKOFF}, 0xffff")
    if early: A(f"ds_write_b32 v13, a{16*(ct-2)+8} offset:{(ct-2)*CB_T + 2048}")
    e(15)
    if OPT["early"] and (t, ct) == (15, 1):
        A(f"""
        s_waitcnt lgkmcnt(0)
        v_readfirstlane_b32 s{sT0}, v{KV[0]}
        s_cmp_ge_u32 s{sT0}, {4*LASTSYNC if not OPT["noS"] else 0}
        s_cbranch_scc1 L_sfree
        """)
        cnt_wait(vCNT, KV[0], 4*LASTSYNC, sleep=2)
        A.label("L_sfree")
if OPT["cyc"]: A(f"s_memtime s[{sST+10}:{sST+11}]")
for t in range(16):
    for ct in range(8):
        period(t, ct)
A(f"""
s_nop 1
v_smfmac_f32_32x32x32_bf16 a[112:127], v[{KV[3]+8}:{KV[3]+11}], v[{S1+8}:{S1+15}], v{vIDX}
""")
stamp(4, not HST)
if OPT["cyc"]: A(f"s_memtime s[{sST+12}:{sST+13}]")
if OPT["early"]:
    part_write(6)
    A.nop(9)
    part_write(7)
else:
    A("s_barrier")
    A.label("L_part")
    for ct in range(8): part_write(ct)

A.label("L_tail")
sKQ = sT5
A(f"""
s_lshr_b32 s{sKQ}, s{sWAVE}, 1
s_mul_i32 s{sT0}, s{sWAVE}, {CB_T}
s_add_u32 s{sT0}, s{sT0}, {CB}
v_add_u32 v46, s{sT0}, v{vL16x}
v_lshlrev_b32 v47, 2, v{vL31}
v_add_u32 v47, s{sT0}, v47
v_mov_b32 v39, {QM}
s_lshl_b32 s{sT1}, s{sG}, 2
s_add_u32 s{sT1}, s{sT1}, s{sKQ}
s_lshl_b32 s{sT1}, s{sT1}, 10
s_add_u32 s{sT1}, s{sT1}, s{sOB}
s_waitcnt lgkmcnt(0)
s_barrier
""")
def astamp(i):
    if OPT["stamps"] and not OPT["cyc"] and not HST:
        l = A.newlabel("st")
        A(f"s_cmp_ge_u32 s{sWAVE}, 4"); A(f"s_cbranch_scc1 {l}"); stamp(i); A.label(l)
astamp(5)
PW = [16, 28, 84, 96]
for w in range(4):
    A(f"ds_read_b128 v[{PW[w]}:{PW[w]+3}], v46 offset:{w*8*CB_T}")
    A(f"ds_read_b128 v[{PW[w]+4}:{PW[w]+7}], v46 offset:{w*8*CB_T + 1024}")
    A(f"ds_read_b32 v{PW[w]+8}, v47 offset:{w*8*CB_T + 2048}")
    if w == 1:
        A(f"ds_read_b128 v[40:43], v39")
A(f"ds_read_b128 v[80:83], v39 offset:16")
A("s_waitcnt lgkmcnt(7)")
for i in (8, 0, 1, 2, 3, 4, 5, 6, 7):
    A(f"v_add_f32 v{PW[0]+i}, v{PW[0]+i}, v{PW[1]+i}")
A(f"v_max3_f32 v40, v40, v41, v42")
A("s_waitcnt lgkmcnt(0)")
A(f"""
v_add_f32 v{PW[2]+8}, v{PW[2]+8}, v{PW[3]+8}
v_max3_f32 v80, v80, v81, v82
v_add_f32 v{PW[0]+8}, v{PW[0]+8}, v{PW[2]+8}
v_max_f32 v40, v40, v43
v_rcp_f32 v{PW[0]+8}, v{PW[0]+8}
v_max_f32 v80, v80, v83
v_mul_f32 v40, v40, v80
v_cmp_nge_f32 vcc, {f2u(-1.0 if OPT['force_slow'] else 1000.0)}, v40
""")
for i in range(8):
    A(f"v_add_f32 v{PW[2]+i}, v{PW[2]+i}, v{PW[3]+i}")
A(f"""
s_cbranch_vccnz L_slow
L_fast:
""")
for i in range(8):
    A(f"v_add_f32 v{PW[0]+i}, v{PW[0]+i}, v{PW[2]+i}")
for i in range(8):
    A(f"v_mul_f32 v{PW[0]+i}, v{PW[0]+i}, v{PW[0]+8}")
    if i & 1: A(f"v_cvt_pk_bf16_f32 v{28+i//2}, v{PW[0]+i-1}, v{PW[0]+i}")
A(f"""
buffer_store_dwordx4 v[28:31], v{vL16x}, {srd(R_WS)}, s{sT1} offen sc1
s_lshl_b32 s{sT0}, s{sKQ}, 13
s_add_u32 s{sT4}, s{sOB}, s{sT0}
s_add_u32 s{sT3}, s{sT4}, 4096
v_bfe_u32 v6, v{vLANE}, 2, 2
v_lshl_add_u32 v6, v{vH}, 2, v6
v_bfe_u32 v7, v{vLANE}, 4, 1
v_and_b32 v8, 3, v{vLANE}
v_lshlrev_b32 v8, 3, v8
v_lshl_add_u32 v8, v7, 5, v8
v_bfe_u32 v7, v{vLANE}, 3, 1
v_lshl_add_u32 v8, v7, 6, v8
v_lshl_add_u32 v8, v6, 7, v8
s_lshl_b32 s{sT0}, s{sKQ}, 14
v_add_u32 v8, s{sT0}, v8
v_xor_b32 v9, 64, v8
""")
astamp(6)
OF = 80
WF = 16
for j in range(8):
    for nt in range(2):
        f = WF + 8*j + 4*nt
        A(f"ds_read_b64_tr_b16 v[{f}:{f+1}], v{8 + nt} offset:{j*2048}")
        A(f"ds_read_b64_tr_b16 v[{f+2}:{f+3}], v{8 + nt} offset:{j*2048 + 1024}")
    if j in (2, 5): A("s_waitcnt lgkmcnt(3)")
A(f"""
s_or_b32 s{sT0}, s2, s{sWAVE}
s_cmp_lg_u32 s{sT0}, 0
s_cbranch_scc1 L_noep
s_add_u32 s{sT0}, s{sEP}, 1
v_mov_b32 v10, s{sT0}
v_mov_b32 v11, 0
s_mov_b64 exec, 1
buffer_store_dword v10, v11, {srd(R_WS)}, 0 offen
s_mov_b64 exec, -1
L_noep:
s_lshl_b32 s{sT0}, s{sTW}, 15
s_add_u32 s{sT0}, s{sT0}, {RB}
s_lshl_b32 s{sT1}, s{sKQ}, 11
s_add_u32 s{sT1}, s{sT1}, s{sT0}
v_add_u32 v10, s{sT1}, v{vL16x}
s_lshl_b32 s{sT1}, s{sKQ}, 13
s_add_u32 s{sT1}, s{sT1}, s{sT0}
v_add_u32 v11, s{sT1}, v{vL16x}
s_lshl_b32 s{sT0}, s{sTW}, 17
s_lshl_b32 s{sT1}, s{sG}, 8
s_add_u32 s{sT0}, s{sT0}, s{sT1}
s_lshr_b32 s{sT1}, s{sKQ}, 1
s_lshl_b32 s{sT1}, s{sT1}, 7
s_add_u32 s{sT0}, s{sT0}, s{sT1}
s_and_b32 s{sT1}, s{sKQ}, 1
s_lshl_b32 s{sT1}, s{sT1}, 16
s_add_u32 s{sT0}, s{sT0}, s{sT1}
s_add_u32 s{sT0}, s{sT0}, 2048
v_lshlrev_b32 v12, 2, v{vL31}
v_lshl_add_u32 v12, v{vH}, 14, v12
v_add_u32 v12, s{sT0}, v12
s_barrier
s_mov_b32 s{sSPIN}, 0
L_opoll:
""")
for j in range(8):
    A(f"buffer_load_dwordx4 v[{OF+4*j}:{OF+4*j+3}], v{vL16x}, {srd(R_WS)}, s{sT4 if j < 4 else sT3} offen offset:{(j%4)*1024} sc1")
A(f"s_add_u32 s{sSPIN}, s{sSPIN}, 1")
for j in range(8):
    A(f"s_waitcnt vmcnt({7 - j})")
    if j == 0: A(f"v_max_u32 v13, v{OF+1}, v{OF+3}")
    else: A(f"v_max3_u32 v13, v13, v{OF+4*j+1}, v{OF+4*j+3}")
A(f"""
v_cmp_eq_u32 vcc, -1, v13
s_cbranch_vccz L_opd
s_cmp_lt_u32 s{sSPIN}, 20000
s_cbranch_scc1 L_opoll
L_opd:
s_waitcnt lgkmcnt(0)
""")
astamp(7)
for j in range(8):
    for nt in range(2):
        f = WF + 8*j + 4*nt
        c = "0" if j == 0 else f"a[{16*nt}:{16*nt+15}]"
        A(f"v_mfma_f32_32x32x16_bf16 a[{16*nt}:{16*nt+15}], v[{OF+4*j}:{OF+4*j+3}], v[{f}:{f+3}], {c}")
A.nop(11)
for q in range(4):
    A(f"ds_write_b128 v10, a[{8*q}:{8*q+3}] offset:{q*8192}")
    A(f"ds_write_b128 v10, a[{8*q+4}:{8*q+7}] offset:{q*8192 + 1024}")
A(f"""
s_waitcnt lgkmcnt(0)
s_barrier
""")
for q in range(4):
    A(f"ds_read_b128 v[{16+8*q}:{19+8*q}], v11 offset:{q*2048}")
    A(f"ds_read_b128 v[{20+8*q}:{23+8*q}], v11 offset:{q*2048 + 1024}")
A("s_waitcnt lgkmcnt(4)")
for i in range(8): A(f"v_add_f32 v{16+i}, v{16+i}, v{24+i}")
A("s_waitcnt lgkmcnt(0)")
for i in range(8):
    A(f"v_add_f32 v{32+i}, v{32+i}, v{40+i}")
    A(f"s_mov_b32 s{sT1}, {(8*(i>>2) + (i&3))*4096}")
    A(f"v_add_f32 v{16+i}, v{16+i}, v{32+i}")
    A(f"buffer_store_dword v{16+i}, v12, {srd(R_OUT)}, s{sT1} offen{OST}")
if OPT["stamps"]:
    A(f"""
    s_waitcnt vmcnt(0)
    s_memrealtime s[100:101]
    s_waitcnt lgkmcnt(0)
    s_lshl_b32 s{sT0}, s2, 3
    s_add_u32 s{sT0}, s{sT0}, s{sWAVE}
    s_lshl_b32 s{sT0}, s{sT0}, 6
    s_add_u32 s{sT0}, s{sT0}, {DBG + 0x800000}
    v_mov_b32 v11, 0
    """)
    for i in range(9): A(f"v_mov_b32 v{16+i}, s{sST+2*i}")
    A(f"""
    s_mov_b64 exec, 1
    buffer_store_dwordx4 v[16:19], v11, {srd(R_WS)}, s{sT0} offen
    buffer_store_dwordx4 v[20:23], v11, {srd(R_WS)}, s{sT0} offen offset:16
    buffer_store_dword v24, v11, {srd(R_WS)}, s{sT0} offen offset:32
    """)
A.label("L_end")
A("s_endpgm")

A.label("L_S1")
SSEC[0] = True
common_scalars()
A(f"""
v_mov_b32 v{vONE}, 1
s_cmp_lg_u32 s{sSW}, 0
s_cbranch_scc1 L_S_noclr
v_mov_b32 v16, -1
v_mov_b32 v17, -1
v_mov_b32 v18, -1
v_mov_b32 v19, -1
s_lshl_b32 s{sT0}, s{sG}, 12
s_add_u32 s{sT0}, s{sT0}, s{sOB}
s_add_u32 s{sT1}, s{sT0}, 32768
""")
for i in range(8):
    A(f"buffer_store_dwordx4 v[16:19], v{vL16x}, {srd(R_WS)}, s{sT0 if i < 4 else sT1} offen offset:{(i%4)*1024} sc1")
A(f"""
L_S_noclr:
s_lshl_b32 s{sT0}, s{sG}, 6
s_lshl_b32 s{sT1}, s{sCW}, 5
s_add_u32 s{sT0}, s{sT0}, s{sT1}
v_add_u32 v{vP2}, s{sT0}, v{vL31}
v_lshlrev_b32 v{vP2}, 1, v{vP2}
global_load_ushort v{PRM}, v{vP2}, s[{P_LRE}:{P_LRE+1}]
global_load_ushort v{PRM+1}, v{vP2}, s[{P_LIM}:{P_LIM+1}]
global_load_ushort v{PRM+2}, v{vP2}, s[{P_LDT}:{P_LDT+1}]
global_load_ushort v{PRM+3}, v{vP2}, s[{P_DSK}:{P_DSK+1}]
v_lshrrev_b32 v20, 4, v{vLANE}
v_and_b32 v21, 15, v{vLANE}
s_lshr_b32 s{sT0}, s{sG}, 1
s_mul_i32 s{sT0}, s{sT0}, {16*1040}
v_mul_u32_u24 v9, 1040, v21
v_lshl_add_u32 v9, v20, 4, v9
v_add_u32 v9, s{sT0}, v9
v_lshrrev_b32 v10, 2, v21
v_lshl_add_u32 v10, v20, 3, v10
v_lshlrev_b32 v10, 5, v10
v_and_b32 v11, 3, v21
v_lshl_add_u32 v10, v11, 3, v10
v_add_u32 v10, {WKV}, v10
s_lshl_b32 s{sT6}, s{sC}, 1
s_lshr_b32 s{sT1}, s{sG}, 2
s_add_u32 s{sT6}, s{sT6}, s{sT1}
s_lshl_b32 s{sT6}, s{sT6}, 12
s_add_u32 s{sT6}, s{sT6}, {KVT}
s_bfe_u32 s{sT7}, s{sG}, 0x10001
s_mov_b64 s[{P_LRE}:{P_LRE+1}], s[{R_BRE}:{R_BRE+1}]
s_mov_b64 s[{P_LIM}:{P_LIM+1}], s[{R_BIM}:{R_BIM+1}]
s_mov_b64 s[{P_LDT}:{P_LDT+1}], s[{R_CRE}:{R_CRE+1}]
s_mov_b64 s[{P_DSK}:{P_DSK+1}], s[{R_CIM}:{R_CIM+1}]
s_mov_b64 s[{P_WV}:{P_WV+1}], s[{R_WO}:{R_WO+1}]
s_lshl_b32 s{sT3}, s{sG}, 7
s_lshl_b32 s{sT4}, s{sG}, 16
""")
srd_words([R_XA, R_BRE, R_BIM, R_CRE, R_CIM, R_WO, R_AGG])
for r, t in ((R_XA, sT2), (R_BRE, sT4), (R_BIM, sT4), (R_CRE, sT4), (R_CIM, sT4), (R_WO, sT3)):
    A(f"s_add_u32 s{r}, s{r}, s{t}")
    A(f"s_addc_u32 s{r+1}, s{r+1}, 0")
A(f"""
s_add_u32 s{R_AGG}, s{R_AGG}, {AGG}
s_addc_u32 s{R_AGG+1}, s{R_AGG+1}, 0
s_waitcnt lgkmcnt(0)
s_mul_i32 s{sTAG}, s{sEP}, 0x9E3779B1
s_add_u32 s{sTAG}, s{sTAG}, 0x7F4A7C15
s_cmp_lg_u32 s{sSW}, 0
s_cbranch_scc1 L_S_w4
s_waitcnt vmcnt(12)
s_branch L_S_w12
L_S_w4:
s_waitcnt vmcnt(4)
L_S_w12:
""")
stamp(6, HST)
cnt_add(vCNT, vONE, 4)
NSYNC[0] += 1
cnt_add(vCNT, vONE)
A(f"""
s_cmp_lg_u32 s{sSW}, 0
s_cbranch_scc1 L_S_nokv
""")
cnt_wait(vCNT, vTMP, 4)
stamp(1)
def kv_rd(k):
    f = 32 + 8*(k % 6)
    A(f"ds_read_b64_tr_b16 v[{f}:{f+1}], v10 offset:{k*1024}")
    A(f"ds_read_b64_tr_b16 v[{f+2}:{f+3}], v10 offset:{k*1024+128}")
    A(f"ds_read_b128 v[{f+4}:{f+7}], v9 offset:{k*64}")
for k in range(4): kv_rd(k)
A(f"s_bitcmp1_b32 s{sG}, 0")
A("s_cbranch_scc1 L_kv_v")
def kv_chain(isv_):
    for k in range(16):
        f = 32 + 8*(k % 6)
        if k + 4 < 16: kv_rd(k + 4)
        issued = min(16, k + 5)
        A(f"s_waitcnt lgkmcnt({3*(issued - k - 1)})")
        c = "0" if k == 0 else "v[28:31]"
        a, b = (f"v[{f}:{f+3}]", f"v[{f+4}:{f+7}]") if not isv_ else (f"v[{f+4}:{f+7}]", f"v[{f}:{f+3}]")
        A(f"v_mfma_f32_16x16x32_bf16 v[28:31], {a}, {b}, {c}")
kv_chain(False)
A(f"""
s_lshl_b32 s{sT7}, s{sT7}, 8
s_add_u32 s{sT6}, s{sT6}, s{sT7}
v_and_b32 v22, 1, v20
v_lshlrev_b32 v22, 9, v22
v_lshl_add_u32 v22, v21, 4, v22
v_lshrrev_b32 v23, 1, v20
v_lshl_add_u32 v22, v23, 3, v22
s_nop 0
v_cvt_pk_bf16_f32 v24, v28, v29
v_cvt_pk_bf16_f32 v25, v30, v31
buffer_store_dwordx2 v[24:25], v22, {srd(R_WS)}, s{sT6} offen sc1
v_mul_f32 v16, v28, v28
v_fmac_f32 v16, v29, v29
v_fmac_f32 v16, v30, v30
v_fmac_f32 v16, v31, v31
v_mov_b32 v17, v16
s_nop 1
v_permlane16_swap_b32 v17, v16
v_add_f32 v16, v16, v17
v_mov_b32 v17, v16
s_nop 1
v_permlane32_swap_b32 v17, v16
v_add_f32 v17, v16, v17
""")
wave_max(17, 18)
A("s_branch L_kv_pub")
A.label("L_kv_v")
kv_chain(True)
A(f"""
s_mul_i32 s{sT7}, s{sT7}, 544
s_add_u32 s{sT6}, s{sT6}, s{sT7}
s_add_u32 s{sT6}, s{sT6}, 1024
v_lshrrev_b32 v22, 1, v20
v_mul_u32_u24 v22, 272, v22
v_and_b32 v23, 1, v20
v_lshl_add_u32 v22, v23, 3, v22
v_lshl_add_u32 v23, v21, 4, v22
v_cvt_pk_bf16_f32 v24, v28, v29
v_cvt_pk_bf16_f32 v25, v30, v31
buffer_store_dwordx2 v[24:25], v23, {srd(R_WS)}, s{sT6} offen sc1
v_mov_b32 v26, 0x3f803f80
v_mov_b32 v27, 0x3f803f80
s_mov_b32 exec_lo, 0x00010001
s_mov_b32 exec_hi, 0x00010001
buffer_store_dwordx2 v[26:27], v22, {srd(R_WS)}, s{sT6} offen offset:256 sc1
s_mov_b64 exec, -1
v_mov_b32 v17, 0
""")
A.label("L_kv_pub")
A(f"""
s_lshl_b32 s{sT0}, s{sID}, 7
s_add_u32 s{sT1}, s{sT0}, {AGG_DUMMY}
s_add_u32 s{sT0}, s{sT0}, {FL1}
v_mov_b32 v16, s{sTAG}
v_mov_b32 v9, 0
v_mov_b32 v24, 0
v_mov_b32 v25, s{sTAG}
v_mov_b32 v26, 0
v_mov_b32 v27, s{sTAG}
s_waitcnt vmcnt(0)
s_mov_b64 exec, 1
buffer_store_dwordx2 v[16:17], v9, {srd(R_WS)}, s{sT0} offen sc1
buffer_store_dwordx4 v[24:27], v9, {srd(R_AGG)}, s{sT1} offen sc1
s_mov_b64 exec, -1
""")
stamp(2)
A("s_branch L_S_par")
A.label("L_S_nokv")
A("s_waitcnt vmcnt(0)")
A.label("L_S_par")
LOG2E = math.log2(math.e)
a0, a1, a2, a3, a4, a5 = PRM, PRM+1, PRM+2, 96, 97, 98
vLR, vLI = vL1, vL1 + 1
A(f"""
s_mov_b32 s{sT0}, {f2u(LOG2E)}
v_lshlrev_b32 v{a0}, 16, v{a0}
v_lshlrev_b32 v{a1}, 16, v{a1}
v_lshlrev_b32 v{a2}, 16, v{a2}
v_mul_f32 v{a2}, s{sT0}, v{a2}
v_exp_f32 v{a2}, v{a2}
s_nop 0
v_cvt_pk_bf16_f32 v{a2}, v{a2}, v{a2}
v_and_b32 v{a2}, 0xffff0000, v{a2}
v_mul_f32 v{a3}, v{a2}, v{a0}
v_mul_f32 v{a4}, v{a2}, v{a1}
v_mul_f32 v{a3}, s{sT0}, v{a3}
v_exp_f32 v{a3}, v{a3}
v_mul_f32 v{a4}, 0.15915494, v{a4}
v_fract_f32 v{a4}, v{a4}
v_cos_f32 v{vLR}, v{a4}
v_sin_f32 v{vLI}, v{a4}
s_nop 0
v_mul_f32 v{vLR}, v{a3}, v{vLR}
v_mul_f32 v{vLI}, v{a3}, v{vLI}
v_mul_f32 v{a2}, v{a0}, v{a0}
v_fmac_f32 v{a2}, v{a1}, v{a1}
v_rcp_f32 v{a2}, v{a2}
v_add_f32 v{a3}, -1.0, v{vLR}
v_mul_f32 v{a4}, v{a3}, v{a0}
v_fmac_f32 v{a4}, v{vLI}, v{a1}
v_mul_f32 v{a5}, v{vLI}, v{a0}
v_fma_f32 v{a5}, -v{a3}, v{a1}, v{a5}
v_add_f32 v{a2}, v{a2}, v{a2}
v_mul_f32 v{vCF}, v{a4}, v{a2}
v_mul_f32 v{vCF+1}, v{a5}, v{a2}
""")
def csq(d, s_):
    A(f"v_mul_f32 v{a0}, v{s_+1}, v{s_+1}")
    A(f"v_mul_f32 v{a1}, v{s_}, v{s_+1}")
    A(f"v_fma_f32 v{d}, v{s_}, v{s_}, -v{a0}")
    A(f"v_add_f32 v{d+1}, v{a1}, v{a1}")
csq(vL8, vL1); csq(vL8, vL8); csq(vL8, vL8)
csq(vL16, vL8)
csq(vL64, vL16); csq(vL64, vL64)
csq(vL512, vL64); csq(vL512, vL512); csq(vL512, vL512)
vD = PRM + 3
A(f"""
v_and_b32 v20, 1, v{vL31}
v_lshlrev_b32 v20, 4, v20
v_lshlrev_b32 v{vD}, v20, v{vD}
v_bfe_u32 v20, v{vL31}, 3, 1
v_cmp_eq_u32 vcc, v20, v{vH}
v_bfe_u32 v21, v{vL31}, 1, 2
v_lshrrev_b32 v22, 4, v{vL31}
v_cndmask_b32 v{vD}, 0, v{vD}, vcc
v_lshl_add_u32 v21, v22, 2, v21
""")
for i in range(8):
    A(f"v_cmp_eq_u32 vcc, {i}, v21")
    A("s_nop 1")
    A(f"v_cndmask_b32 v{DG+i}, 0, v{vD}, vcc")
A(f"""
s_add_u32 s{sROT}, s{sC}, s{sG}
s_and_b32 s{sROT}, s{sROT}, 3
v_lshrrev_b32 v20, 4, v{vLANE}
v_and_b32 v21, 15, v{vLANE}
v_lshlrev_b32 v22, 4, v21
v_lshl_add_u32 v{vBo}, v20, 14, v22
v_lshrrev_b32 v23, 1, v20
v_and_b32 v24, 1, v20
v_lshlrev_b32 v23, 15, v23
v_lshl_add_u32 v23, v24, 12, v23
v_add_u32 v{vXo}, v23, v22
v_lshlrev_b32 v{vPF}, 7, v21
s_lshl_b32 s{sT0}, s2, 11
v_add_u32 v{vPF}, s{sT0}, v{vPF}
v_and_b32 v20, 15, v{vL31}
v_mul_u32_u24 v20, 1040, v20
v_lshl_add_u32 v20, v{vH}, 4, v20
v_lshrrev_b32 v21, 4, v{vL31}
v_lshl_add_u32 v20, v21, 8, v20
s_lshl_b32 s{sT0}, s{sTW}, 9
v_add_u32 v{vAa[0]}, s{sT0}, v20
v_add_u32 v{vAa[1]}, {SLOT[1]}, v{vAa[0]}
s_lshl_b32 s{sT0}, s{sCW}, 9
s_add_u32 s{sT0}, s{sT0}, {BRE_O}
v_add_u32 v{vBa[0]}, s{sT0}, v20
v_add_u32 v{vBa[1]}, {SLOT[1]}, v{vBa[0]}
v_bfe_u32 v20, v{vL31}, 2, 1
v_lshlrev_b32 v20, 3, v20
v_bfe_u32 v21, v{vL31}, 4, 1
v_lshl_add_u32 v20, v21, 2, v20
v_and_b32 v21, 3, v{vL31}
v_add_u32 v20, v20, v21
v_mul_u32_u24 v20, 1040, v20
v_bfe_u32 v21, v{vL31}, 3, 1
v_lshl_add_u32 v20, v21, 8, v20
v_lshl_add_u32 v20, v{vH}, 4, v20
s_lshl_b32 s{sT0}, s{sTW}, 9
s_and_b32 s{sT1}, s{sG}, 1
s_lshl_b32 s{sT1}, s{sT1}, 7
s_add_u32 s{sT0}, s{sT0}, s{sT1}
s_lshl_b32 s{sT1}, s{sCW}, 6
s_add_u32 s{sT0}, s{sT0}, s{sT1}
s_lshr_b32 s{sLOOP}, s{sG}, 1
s_sub_u32 s{sLOOP}, s{sLOOP}, s{sROT}
s_and_b32 s{sLOOP}, s{sLOOP}, 3
s_mul_i32 s{sT1}, s{sLOOP}, {SLOT[1]}
s_cmp_eq_u32 s{sLOOP}, 3
s_cselect_b32 s{sT1}, 0, s{sT1}
s_add_u32 s{sT0}, s{sT0}, s{sT1}
v_add_u32 v{vDa}, s{sT0}, v20
s_mul_i32 s{sT7}, s{sSW}, {4*1040}
v_add_u32 v{vSt}, s{sT7}, v{vL16x}
v_add_u32 v{vAa[2]}, {SLOT[1]}, v{vSt}
v_add_u32 v{vBa[2]}, {SLOT[2]}, v{vSt}
""")
cnt_wait(vCNT, vTMP, 4 + 4*OPT["stgl"], 4, sleep=2)
prio(OPT["gprio"])
sstamp(1, 1)
def pf16(pairs, lbl):
    if not OPT["pfb"]: return
    A(f"""
    s_cmp_lg_u32 s{sSW}, 1
    s_cbranch_scc1 {lbl}
    s_mov_b64 exec, 0xffff
    """)
    for p in pairs: A(f"global_load_dword v{vDUM}, v{vPF}, s[{p}:{p+1}]")
    A(f"s_mov_b64 exec, -1\n{lbl}:")
pf16([P_LRE, P_LIM], "L_nopfb")
def g1_soff(s):
    A(f"""
    s_add_u32 s{sT5}, s{sROT}, {s}
    s_and_b32 s{sT5}, s{sT5}, 3
    s_lshl_b32 s{sT5}, s{sT5}, 8
    s_lshl_b32 s{sT3}, s{sSW}, 12
    s_add_u32 s{sT3}, s{sT3}, s{sT5}
    s_lshl_b32 s{sT4}, s{sTW}, 14
    s_add_u32 s{sT4}, s{sT4}, s{sT5}
    s_lshl_b32 s{sT5}, s{sCW}, 11
    s_add_u32 s{sT4}, s{sT4}, s{sT5}
    s_add_u32 s{sT5}, s{sT4}, 8192
    """)
def stg_reg(n):
    return f"a[{4*n}:{4*n+3}]" if n < 32 else f"v[{STG+4*(n-32)}:{STG+4*(n-32)+3}]"
W = OPT["stgwin"]
for s in range(3):
    g1_soff(s)
    for i in range(4):
        n = 12*s + 3*i
        A(f"buffer_load_dwordx4 {stg_reg(n)}, v{vXo}, {srd(R_XA)}, s{sT5 if i & 1 else sT4} offen offset:{(i>>1)*1024}")
        A(f"buffer_load_dwordx4 {stg_reg(n+1)}, v{vBo}, {srd(R_BRE)}, s{sT3} offen offset:{i*1024}")
        A(f"buffer_load_dwordx4 {stg_reg(n+2)}, v{vBo}, {srd(R_BIM)}, s{sT3} offen offset:{i*1024}")
        if W and n + 3 > W and n + 3 < 36: A(f"s_waitcnt vmcnt({W})")
sstamp(2, 1)
A("s_waitcnt vmcnt(24)")
prio(OPT["vprio"])
cnt_wait(vCNT, vTMP, 24, 4, sleep=1)
if OPT["noS"]: A("s_branch L_tail")
def stg_write(n):
    s, r = divmod(n, 12); i, m = divmod(r, 3)
    base = [vSt, vAa[2], vBa[2]][s]
    A(f"ds_write_b128 v{base}, {stg_reg(n)} offset:{[XA_O, BRE_O, BIM_O][m] + i*1040}")
for n in range(12): stg_write(n)
grp_sync()
sstamp(3, 1)
def g1_stage(s, extra=None):
    slot = s % 3
    prio(OPT["gprio"])
    def rd(k):
        f = FRS + 12*(k % 2)
        A(f"ds_read_b128 v[{f}:{f+3}], v{vAa[slot]} offset:{k*32}")
        A(f"ds_read_b128 v[{f+4}:{f+7}], v{vBa[slot]} offset:{k*32}")
        A(f"ds_read_b128 v[{f+8}:{f+11}], v{vBa[slot]} offset:{k*32 + (BIM_O-BRE_O)}")
    rd(0)
    for k in range(8):
        f = FRS + 12*(k % 2)
        nx = 0
        if k + 1 < 8: rd(k + 1); nx = 3
        A(f"s_waitcnt lgkmcnt({nx})")
        cr = "0" if (s == 0 and k == 0) else f"v[{UR}:{UR+15}]"
        ci = "0" if (s == 0 and k == 0) else f"v[{UI}:{UI+15}]"
        A(f"v_mfma_f32_32x32x16_bf16 v[{UR}:{UR+15}], v[{f}:{f+3}], v[{f+4}:{f+7}], {cr}")
        if extra: extra(k)
        A(f"v_mfma_f32_32x32x16_bf16 v[{UI}:{UI+15}], v[{f}:{f+3}], v[{f+8}:{f+11}], {ci}")
    sk = A.newlabel("nod")
    A(f"""
    s_cmp_lg_u32 s{sLOOP}, {s}
    s_cbranch_scc1 {sk}
    ds_read_b128 v[{FRS}:{FRS+3}], v{vDa}
    ds_read_b128 v[{FRS+4}:{FRS+7}], v{vDa} offset:32
    s_waitcnt lgkmcnt(0)
    v_mfma_f32_32x32x16_bf16 v[{Y0}:{Y0+15}], v[{FRS}:{FRS+3}], v[{DG}:{DG+3}], 0
    v_mfma_f32_32x32x16_bf16 v[{Y0}:{Y0+15}], v[{FRS+4}:{FRS+7}], v[{DG+4}:{DG+7}], v[{Y0}:{Y0+15}]
    {sk}:
    """)
def ex0(k):
    if k == 0: A("s_waitcnt vmcnt(12)")
    if k == 4: A("s_waitcnt vmcnt(0)")
    for n in range(12 + 3*k, 12 + 3*k + 3): stg_write(n)
g1_stage(0, ex0)
sstamp(4, 1)
prio(OPT["vprio"])
grp_sync()
A(f"v_add_u32 v{vAa[2]}, {SLOT[2]}, v{vAa[0]}")
A(f"v_add_u32 v{vBa[2]}, {SLOT[2]}, v{vBa[0]}")
g1_soff(3)
def q3_piece(n):
    i, m = divmod(n, 3)
    if m == 0:
        A(f"s_add_u32 m0, s{sT7}, {XA_O + i*1040 - (i>>1)*1024}")
        A("s_nop 0")
        A(f"buffer_load_dwordx4 v{vXo}, {srd(R_XA)}, s{sT5 if i & 1 else sT4} offen offset:{(i>>1)*1024} lds")
    else:
        A(f"s_add_u32 m0, s{sT7}, {[0, BRE_O, BIM_O][m] + i*16}")
        A("s_nop 0")
        A(f"buffer_load_dwordx4 v{vBo}, {srd([0, R_BRE, R_BIM][m])}, s{sT3} offen offset:{i*1024} lds")
def ex1(k):
    for n in range(2*k, min(12, 2*k + 2)): q3_piece(n)
    if k == 7: pf16([P_LDT, P_DSK, P_WV], "L_nopfc")
g1_stage(1, ex1)
sstamp(5, 1)
g1_stage(2)
sstamp(6, 1)
prio(OPT["vprio"])
A("s_waitcnt vmcnt(0)"); grp_sync()
A(f"""
s_mul_i32 s{sT2}, s{sSW}, {16*1040}
s_lshl_b32 s{sT3}, s{sSW}, 14
""")
def c_piece(R, base, i):
    A(f"s_add_u32 m0, s{sT2}, {base + i*1040 - (i & 3)*1024}")
    if i & 3 == 0: A(f"s_add_u32 s{sT4}, s{sT3}, {i*1024}")
    else: A("s_nop 0")
    A(f"buffer_load_dwordx4 v{vL16x}, {srd(R)}, s{sT4} offen offset:{(i & 3)*1024} lds")
def ex3(k):
    c_piece(R_CIM, CIM, 2*k); c_piece(R_CIM, CIM, 2*k + 1)
g1_stage(3, ex3)
sstamp(7, 1); sstamp(1, 2)
prio(OPT["vprio"])
stamp(3)
A(f"""
s_lshl_b32 s{sT0}, s{sTW}, 10
s_lshl_b32 s{sT1}, s{sCW}, 8
s_add_u32 s{sT1}, s{sT1}, {EB}
s_add_u32 s{sT0}, s{sT0}, s{sT1}
v_lshlrev_b32 v10, 3, v{vL31}
v_add_u32 v11, s{sT1}, v10
v_lshl_add_u32 v10, v{vH}, 9, v10
v_add_u32 v10, s{sT0}, v10
""")
A.nop(4)
if OPT["dbg"]:
    A(f"""
    s_lshl_b32 s{sT0}, s{sID}, 2
    s_add_u32 s{sT0}, s{sT0}, s{sSW}
    s_lshl_b32 s{sT0}, s{sT0}, 13
    s_add_u32 s{sT0}, s{sT0}, {DBG}
    v_lshlrev_b32 v12, 2, v{vLANE}
    """)
    for i in range(32):
        A(f"buffer_store_dword v{UR+i}, v12, {srd(R_WS)}, s{sT0} offen")
        A(f"s_add_u32 s{sT0}, s{sT0}, 256")
    A("s_waitcnt vmcnt(0)")
def cstep4(dr, di, pr, pi, l, ur, ui, tr, ti):
    A(f"v_fma_f32 v{tr}, v{l}, v{pr}, v{ur}")
    A(f"v_fma_f32 v{ti}, v{l}, v{pi}, v{ui}")
    A(f"v_fma_f32 v{dr}, -v{l+1}, v{pi}, v{tr}")
    A(f"v_fma_f32 v{di}, v{l+1}, v{pr}, v{ti}")
def p2(r): return f"v[{r}:{r+1}]"
def pkstep(dr, di, pr, pi, l, ur, ui, tr, ti):
    A(f"v_pk_fma_f32 {p2(tr)}, {p2(l)}, {p2(pr)}, {p2(ur)} op_sel_hi:[0,1,1]")
    A(f"v_pk_fma_f32 {p2(ti)}, {p2(l)}, {p2(pi)}, {p2(ui)} op_sel_hi:[0,1,1]")
    A(f"v_pk_fma_f32 {p2(dr)}, {p2(l)}, {p2(pi)}, {p2(tr)} op_sel:[1,0,0] neg_lo:[1,0,0] neg_hi:[1,0,0]")
    A(f"v_pk_fma_f32 {p2(di)}, {p2(l)}, {p2(pr)}, {p2(ti)} op_sel:[1,0,0]")
pa = [(FRS, FRS+2), (6, 8)]
p = (UR, UI)
for j in range(1, 8):
    d = pa[j & 1]
    pkstep(d[0], d[1], p[0], p[1], vL1, UR+2*j, UI+2*j, FRS+4, FRS+6)
    p = d
EA = (6, 8)
cstep4(FRS, FRS+1, 6, 8, vL8, 7, 9, FRS+4, FRS+5)
A(f"ds_write_b64 v10, v[{FRS}:{FRS+1}]")
grp_sync()
sstamp(2, 2)
E = FRS
for s in range(4):
    A(f"ds_read_b64 v[{E+2*s}:{E+2*s+1}], v11 offset:{s*512}")
LB = 64
A(f"""
s_lshl_b32 s{sT0}, s{sTW}, 4
s_sub_u32 s{sT0}, s{sC}, s{sT0}
s_sub_u32 s{sT0}, s{sT0}, 1
s_lshl_b32 s{sT0}, s{sT0}, 13
v_lshlrev_b32 v5, 16, v{vH}
v_sub_u32 v5, s{sT0}, v5
v_lshl_add_u32 v5, v{vP2}, 3, v5
s_lshl_b32 s{sT1}, s{sID}, 7
s_add_u32 s{sT1}, s{sT1}, {AGG_DUMMY}
s_waitcnt lgkmcnt(0)
""")
A1, A2, G3 = (104, 105), (106, 107), 108
cstep4(A1[0], A1[1], E, E+1, vL16, E+2, E+3, FRS+8, FRS+9)
cstep4(A2[0], A2[1], A1[0], A1[1], vL16, E+4, E+5, FRS+8, FRS+9)
vPR, vPI, vW = 12, 13, 14
tw1 = A.newlabel("tw1"); twd = A.newlabel("twd")
A(f"""
v_cmp_eq_u32 vcc, 1, v{vH}
s_cmp_lg_u32 s{sTW}, 0
s_cbranch_scc1 {tw1}
""")
cstep4(G3, G3+2, A2[0], A2[1], vL16, E+6, E+7, FRS+8, FRS+9)
A(f"""
v_mov_b32 v{G3+1}, s{sTAG}
v_mov_b32 v{G3+3}, s{sTAG}
v_lshlrev_b32 v7, 3, v{vP2}
s_lshl_b32 s{sT0}, s{sC}, 13
s_mov_b32 exec_hi, 0
buffer_store_dwordx4 v[{G3}:{G3+3}], v7, {srd(R_AGG)}, s{sT0} offen sc1
s_mov_b32 exec_hi, -1
v_cndmask_b32 v{vPR}, 0, v{E}, vcc
v_cndmask_b32 v{vPI}, 0, v{E+1}, vcc
v_cndmask_b32 v{vW}, 1.0, v{vL16}, vcc
v_cndmask_b32 v{vW+1}, 0, v{vL16+1}, vcc
s_branch {twd}
{tw1}:
v_cndmask_b32 v{vPR}, v{A1[0]}, v{A2[0]}, vcc
v_cndmask_b32 v{vPI}, v{A1[1]}, v{A2[1]}, vcc
v_mul_f32 v{FRS+8}, v{vL16+1}, v{vL16+1}
v_mul_f32 v{FRS+9}, v{vL16}, v{vL16+1}
v_fma_f32 v{FRS+8}, v{vL16}, v{vL16}, -v{FRS+8}
v_add_f32 v{FRS+9}, v{FRS+9}, v{FRS+9}
v_mul_f32 v{FRS+10}, v{FRS+8}, v{vL16}
v_mul_f32 v{FRS+11}, v{FRS+8}, v{vL16+1}
v_fma_f32 v{FRS+10}, -v{FRS+9}, v{vL16+1}, v{FRS+10}
v_fma_f32 v{FRS+11}, v{FRS+9}, v{vL16}, v{FRS+11}
v_cndmask_b32 v{vW}, v{FRS+8}, v{FRS+10}, vcc
v_cndmask_b32 v{vW+1}, v{FRS+9}, v{FRS+11}, vcc
{twd}:
""")
for k in range(8):
    A(f"v_min_u32 v{96+k}, s{sT1}, v5")
    if k < 7: A(f"v_add_u32 v5, {(-8192) & 0xffffffff}, v5")
A(f"s_mov_b32 s{sSPIN}, 0")
sstamp(3, 2)
A("s_sleep 8")
A.label("L_lb")
for k in range(8):
    A(f"buffer_load_dwordx4 v[{LB+4*k}:{LB+4*k+3}], v{96+k}, {srd(R_AGG)}, 0 offen sc1")
A(f"""
s_add_u32 s{sSPIN}, s{sSPIN}, 1
s_waitcnt vmcnt(0)
v_min_u32 v5, v{LB+1}, v{LB+3}
v_max3_u32 v7, s{sTAG}, v{LB+1}, v{LB+3}
""")
for k in range(1, 8):
    A(f"v_min3_u32 v5, v5, v{LB+4*k+1}, v{LB+4*k+3}")
    A(f"v_max3_u32 v7, v7, v{LB+4*k+1}, v{LB+4*k+3}")
A(f"""
v_min_u32 v5, s{sTAG}, v5
v_cmp_ne_u32 vcc, v5, v7
s_cbranch_vccz L_lbd
s_sleep 8
s_cmp_lt_u32 s{sSPIN}, {SPIN_MAX}
s_cbranch_scc1 L_lb
L_lbd:
""")
stamp(4); sstamp(4, 2)
p = (LB+28, LB+30)
pb = [(96, 97), (98, 99)]
for k in range(6, -1, -1):
    d = pb[k & 1]
    cstep4(d[0], d[1], p[0], p[1], vL64, LB+4*k, LB+4*k+2, 100, 101)
    p = d
A(f"ds_write_b64 v10, v[96:97] offset:{HP-EB}")
grp_sync()
sstamp(5, 2)
for s in range(4):
    A(f"ds_read_b64 v[{E+2*s}:{E+2*s+1}], v11 offset:{HP - EB + s*512}")
A(f"""
s_lshl_b32 s{sT0}, s{sSW}, 12
s_add_u32 s{sT0}, s{sT0}, {TB}
v_lshlrev_b32 v5, 6, v{vL31}
v_lshl_add_u32 v5, v{vH}, 5, v5
v_add_u32 v5, s{sT0}, v5
v_bfe_u32 v7, v{vLANE}, 2, 2
v_lshl_add_u32 v7, v{vH}, 3, v7
v_lshlrev_b32 v7, 6, v7
v_bfe_u32 v9, v{vLANE}, 4, 1
v_lshl_add_u32 v7, v9, 5, v7
v_and_b32 v9, 3, v{vLANE}
v_lshl_add_u32 v7, v9, 3, v7
v_add_u32 v7, s{sT0}, v7
s_waitcnt lgkmcnt(0)
""")
p = (E+6, E+7)
for s in range(2, -1, -1):
    d = pb[s & 1]
    cstep4(d[0], d[1], p[0], p[1], vL512, E+2*s, E+2*s+1, 100, 101)
    p = d
CRp, CIp = 104, 106
cstep4(CRp, CIp, p[0], p[1], vW, vPR, vPI, 100, 101)
cstep4(CRp+1, CIp+1, CRp, CIp, vL8, EA[0], EA[1], 100, 101)
HR, HI = FRS, FRS+8
p = (CRp, CIp)
for j in range(8):
    pkstep(UR+2*j, UI+2*j, p[0], p[1], vL1, UR+2*j, UI+2*j, 100, 102)
    p = (UR+2*j, UI+2*j)
    c_piece(R_CRE, CRE, 2*j)
    A(f"v_pk_mul_f32 {p2(96)}, {p2(vCF)}, {p2(UI+2*j)} op_sel:[1,0]")
    A(f"v_pk_mul_f32 {p2(98)}, {p2(vCF)}, {p2(UR+2*j)} op_sel:[1,0]")
    A(f"v_pk_fma_f32 {p2(96)}, {p2(vCF)}, {p2(UR+2*j)}, {p2(96)} op_sel_hi:[0,1,1] neg_lo:[0,0,1] neg_hi:[0,0,1]")
    A(f"v_pk_fma_f32 {p2(98)}, {p2(vCF)}, {p2(UI+2*j)}, {p2(98)} op_sel_hi:[0,1,1] neg_lo:[1,0,1] neg_hi:[1,0,1]")
    c_piece(R_CRE, CRE, 2*j + 1)
    A(f"v_cvt_pk_bf16_f32 v{HR+j}, v96, v97")
    A(f"v_cvt_pk_bf16_f32 v{HI+j}, v98, v99")
    if j == 3:
        A(f"ds_write_b128 v5, v[{HR}:{HR+3}]")
        A(f"ds_write_b128 v5, v[{HI}:{HI+3}] offset:2048")
A(f"""
ds_write_b128 v5, v[{HR+4}:{HR+7}] offset:16
ds_write_b128 v5, v[{HI+4}:{HI+7}] offset:2064
s_lshl_b32 s{sT4}, s{sC}, 1
s_add_u32 s{sT4}, s{sT4}, s{sTW}
s_lshl_b32 s{sT4}, s{sT4}, 16
s_add_u32 s{sT4}, s{sT4}, {HB}
s_lshl_b32 s{sT1}, s{sG}, 12
s_lshl_b32 s{sT2}, s{sCW}, 11
s_add_u32 s{sT1}, s{sT1}, s{sT2}
s_add_u32 s{sT0}, s{sT4}, s{sT1}
s_add_u32 s{sT1}, s{sT0}, 32768
s_waitcnt lgkmcnt(0)
""")
for part in range(2):
    for hf in range(2):
        f = 64 + 8*part + 4*hf
        A(f"ds_read_b64_tr_b16 v[{f}:{f+1}], v7 offset:{part*2048 + hf*1024}")
        A(f"ds_read_b64_tr_b16 v[{f+2}:{f+3}], v7 offset:{part*2048 + hf*1024 + 256}")
for n in range(4):
    A(f"s_waitcnt lgkmcnt({6 - 2*n})")
    A(f"buffer_store_dwordx4 v[{64+4*n}:{67+4*n}], v{vL16x}, {srd(R_WS)}, s{sT0 if n < 2 else sT1} offen offset:{(n&1)*1024} sc1")
A(f"""
s_lshl_b32 s{sT2}, s{sC}, 10
s_add_u32 s{sT2}, s{sT2}, {FL3}
v_and_b32 v5, 7, v{vLANE}
v_lshlrev_b32 v5, 7, v5
v_add_u32 v5, s{sT2}, v5
v_mul_u32_u24 v10, 1040, v{vL31}
v_lshl_add_u32 v10, v{vH}, 4, v10
s_mul_i32 s{sT0}, s{sCW}, {CIM + 32*1040}
s_mul_i32 s{sT1}, s{sCW}, {CIM - 32*1040}
s_add_u32 s{sT1}, s{sT1}, {32*1040}
v_add_u32 v11, s{sT1}, v10
v_add_u32 v10, s{sT0}, v10
v_mov_b32 v12, s{sTAG}
v_mov_b32 v13, 0
s_lshl_b32 s{sT1}, s{sCW}, 15
s_add_u32 s{sT4}, s{sT4}, s{sT1}
s_xor_b32 s{sT0}, s{sSW}, 2
s_lshl_b32 s{sT0}, s{sT0}, 12
s_add_u32 s{sT0}, s{sT0}, {TB}
v_add_u32 v104, s{sT0}, v{vL16x}
s_lshl_b32 s{sT0}, s{sSW}, 12
s_add_u32 s{sT0}, s{sT0}, {TB}
v_add_u32 v105, s{sT0}, v{vL16x}
s_lshl_b32 s{sT0}, s{sTW}, 17
s_lshl_b32 s{sT1}, s{sG}, 8
s_add_u32 s{sT0}, s{sT0}, s{sT1}
s_lshl_b32 s{sT1}, s{sCW}, 7
s_add_u32 s{sT0}, s{sT0}, s{sT1}
v_lshlrev_b32 v106, 2, v{vL31}
v_lshl_add_u32 v106, v{vH}, 13, v106
v_add_u32 v106, s{sT0}, v106
""")
wq_voffset(9, 6, 7, 8)
sstamp(6, 2)
A("s_waitcnt vmcnt(0)")
sstamp(7, 2); sstamp(1, 3)
grp_sync()
nf = A.newlabel("nf3")
A(f"""
s_cmp_lg_u32 s{sSW}, 0
s_cbranch_scc1 {nf}
s_lshl_b32 s{sT1}, s{sG}, 7
s_add_u32 s{sT1}, s{sT1}, s{sT2}
s_mov_b64 exec, 1
buffer_store_dword v12, v13, {srd(R_WS)}, s{sT1} offen sc1
s_mov_b64 exec, -1
{nf}:
s_sleep 8
""")
stamp(5, not HST); sstamp(2, 3)
poll_flags(5, 14, 1, sleep=4)
sstamp(3, 3)
prio(OPT["gprio"])
LA = OPT["la"]
def h_ld(j):
    if j % 4 == 0 and j > 0:
        A(f"s_add_u32 s{sT4}, s{sT4}, 4096")
    A(f"buffer_load_dwordx4 a[{4*j}:{4*j+3}], v{vL16x}, {srd(R_WS)}, s{sT4} offen offset:{(j%4)*1024} sc1")
for j in range(LA): h_ld(j)
def g2_rd(j):
    f = FRS + 8*(j % 3)
    A(f"ds_read_b128 v[{f}:{f+3}], v10 offset:{j*32}")
    A(f"ds_read_b128 v[{f+4}:{f+7}], v11 offset:{j*32}")
g2_rd(0); g2_rd(1)
for j in range(32):
    f = FRS + 8*(j % 3)
    if j + LA < 32: h_ld(j + LA)
    if j + 2 < 32: g2_rd(j + 2)
    issued = min(32, j + 3)
    A(f"s_waitcnt vmcnt({min(31, j + LA) - j}) lgkmcnt({2*(issued - j - 1)})")
    if j == 0: sstamp(4, 3)
    if j == 16: sstamp(5, 3)
    c = "0" if j == 0 else f"v[{Y1}:{Y1+15}]"
    A(f"v_mfma_f32_32x32x16_bf16 v[{Y1}:{Y1+15}], a[{4*j}:{4*j+3}], v[{f+4}:{f+7}], {c}")
    A(f"v_mfma_f32_32x32x16_bf16 v[{Y0}:{Y0+15}], a[{4*j}:{4*j+3}], v[{f}:{f+3}], v[{Y0}:{Y0+15}]")
sstamp(6, 3)
prio(OPT["vprio"])
A.nop(10)
for i in range(4):
    A(f"ds_write_b128 v104, v[{Y1+4*i}:{Y1+4*i+3}] offset:{i*1024}")
grp_sync()
assert NSYNC[0] == LASTSYNC, NSYNC
stamp(6, not HST)
for i in range(4):
    A(f"ds_read_b128 v[{Y1+4*i}:{Y1+4*i+3}], v105 offset:{i*1024}")
A(f"""
s_lshl_b32 s{sT2}, s{sSW}, 14
s_lshl_b32 s{sT3}, s{sSW}, 17
""")
def wo_piece(i):
    A(f"""
    s_add_u32 m0, s{sT2}, {WO + i*1024}
    s_add_u32 s{sT1}, s{sT3}, {i*8192}
    buffer_load_dwordx4 v9, {srd(R_WO)}, s{sT1} offen lds
    """)
for i in range(8): wo_piece(i)
A("s_waitcnt lgkmcnt(0)")
for i in range(16):
    A(f"v_add_f32 v{Y0+i}, v{Y0+i}, v{Y1+i}")
    A(f"s_mov_b32 s{sT4}, {(16*(i>>3) + 4*((i>>2)&1) + ((i>>1)&1) + 8*(i&1))*4096}")
    A(f"buffer_store_dword v{Y0+i}, v106, {srd(R_OUT)}, s{sT4} offen{OST}")
    if i < 8: wo_piece(8 + i)
A("s_waitcnt vmcnt(8)")
prio(0)
stamp(7); sstamp(7, 3)
if not OPT["early"]: A("s_barrier")
A("s_branch L_tail")

A.label("L_hot_end")
A.label("L_slow")
A(f"""
s_cmp_lg_u32 s{sDONE}, 0
s_cbranch_scc1 L_fast
s_mov_b32 s{sDONE}, 1
s_cmp_ge_u32 s{sWAVE}, 4
s_cbranch_scc1 L_slow_S
""")
for i in range(4): A(f"v_mov_b32 v{vZ+i}, 0")
for ct in range(8): A(f"v_mov_b32 v{vM+ct}, 0xff800000")
A("s_nop 1")
for ct in range(8):
    A(f"v_mfma_f32_32x32x16_bf16 a[{16*ct}:{16*ct+15}], v[{vZ}:{vZ+3}], v[{vZ}:{vZ+3}], 0")
A(f"s_mov_b32 s{sLOOP}, 16")
def adv():
    A(f"s_add_u32 s{sKOFF}, s{sKOFF}, {KVS}"); A(f"s_and_b32 s{sKOFF}, s{sKOFF}, 0xffff")
A.label("L_sl1")
ld_k(0, 0); adv()
A("s_waitcnt vmcnt(0)")
for ct in range(8):
    A(f"v_mfma_f32_32x32x16_bf16 v[{S0}:{S0+15}], v[{KV[0]}:{KV[0]+3}], v[{QF+4*ct}:{QF+4*ct+3}], 0")
    A.nop(12)
    for i in range(8):
        A(f"v_max3_f32 v{vM+ct}, v{S0+2*i}, v{S0+2*i+1}, v{vM+ct}")
A(f"""
s_sub_u32 s{sLOOP}, s{sLOOP}, 1
s_cmp_lg_u32 s{sLOOP}, 0
s_cbranch_scc1 L_sl1
s_lshl_b32 s{sT0}, s{sWAVE}, 11
s_add_u32 s{sT0}, s{sT0}, {QX}
v_lshlrev_b32 v12, 2, v{vLANE}
v_add_u32 v12, s{sT0}, v12
""")
for ct in range(8):
    A(f"ds_write_b32 v12, v{vM+ct} offset:{ct*256}")
A(f"""
s_waitcnt lgkmcnt(0)
s_barrier
v_lshlrev_b32 v12, 2, v{vL31}
v_add_u32 v12, {QX}, v12
""")
for ct in range(8):
    for w in range(4):
        A(f"ds_read_b32 v{S0+2*w}, v12 offset:{w*2048 + ct*256}")
        A(f"ds_read_b32 v{S0+2*w+1}, v12 offset:{w*2048 + ct*256 + 128}")
    A("s_waitcnt lgkmcnt(0)")
    for w in range(4):
        A(f"v_max3_f32 v{vM+ct}, v{S0+2*w}, v{S0+2*w+1}, v{vM+ct}")
A(f"s_mov_b32 s{sLOOP}, 16")
A.label("L_sl2")
ld_k(0, 0); ld_v(0, 0, 0); ld_v(0, 1, 0); adv()
A("s_waitcnt vmcnt(0)")
for ct in range(8):
    A(f"v_mfma_f32_32x32x16_bf16 v[{S0}:{S0+15}], v[{KV[0]}:{KV[0]+3}], v[{QF+4*ct}:{QF+4*ct+3}], 0")
    A.nop(12)
    for i in range(16):
        A(f"v_sub_f32 v{S0+i}, v{S0+i}, v{vM+ct}")
    for i in range(16):
        A(f"v_exp_f32 v{S0+i}, v{S0+i}")
    A.nop(2)
    A(f"v_smfmac_f32_32x32x32_bf16 a[{16*ct}:{16*ct+15}], v[{KV[0]+4}:{KV[0]+7}], v[{S0}:{S0+7}], v{vIDX}")
    A(f"v_smfmac_f32_32x32x32_bf16 a[{16*ct}:{16*ct+15}], v[{KV[0]+8}:{KV[0]+11}], v[{S0+8}:{S0+15}], v{vIDX}")
A(f"""
s_sub_u32 s{sLOOP}, s{sLOOP}, 1
s_cmp_lg_u32 s{sLOOP}, 0
s_cbranch_scc1 L_sl2
s_nop 15
""")
for ct in range(8): part_write(ct)
A(f"""
s_branch L_tail
L_slow_S:
s_barrier
s_branch L_tail
""")

hdr = open("cdna_kernels/" + NAME + ".s.ref").read().split("; Override launch")[0]
out = hdr + f"""; Fused single-launch kernel: 256 workgroups x 8 waves (4 attention waves + 4 SSM waves). Generated by gen/gen3.py.
; @launch grid=(256,1,1) block=(512,1,1) lds={LDS_BYTES}
.amdgcn_target "amdgcn-amd-amdhsa--gfx950"
.text
.globl {NAME}_kernel
.p2align 8
.type {NAME}_kernel,@function
{NAME}_kernel:
""" + A.text() + f""".section .rodata,"a"
.p2align 6
.amdhsa_kernel {NAME}_kernel
  .amdhsa_next_free_vgpr 256
  .amdhsa_next_free_sgpr 102
  .amdhsa_accum_offset 128
  .amdhsa_group_segment_fixed_size 0
  .amdhsa_kernarg_size 136
  .amdhsa_user_sgpr_count 2
  .amdhsa_user_sgpr_kernarg_segment_ptr 1
  .amdhsa_system_sgpr_workgroup_id_x 1
.end_amdhsa_kernel
"""
open(sys.argv[1], "w").write(out)
errs = check(A.lines)
for e in errs: print("HAZARD:", e)
print(f"{len(A.lines)} lines, {len(errs)} hazards")
```

```python
import sys, math, struct
from asmlib import *

OPT = dict(dbg=0, force_slow=0, stamps=0, noS=0, cyc=0, ost=0, gprio=0, vprio=3, hst=0, stgwin=8, pfq=0, pfb=1, stgl=2, qpre=2,
           pfc=1, ssl=2, la=8, sst=0, win0=0, trig=3, odel=4, sgate=2, map84=1, g1p=0, g2p=0, noKV=0, nochk=0, wq1=9, cpos=1, xm=0, xv=0, xl=0, npre=12, lbs=4)
for a in sys.argv[2:]:
    k, v = a.split("=")
    assert k in OPT, k
    OPT[k] = int(v)

NAME = "concat_heads__ssm_conv_s5__grouped_kv_mqa__prompt"
def f2u(x): return struct.unpack("<I", struct.pack("<f", x))[0]

XQ, WQ = 0, 66560
KVX, WKV = 3*16640, 66560 + 3*16384
SLOT = [0, 49920, 99840]
XA_O, BRE_O, BIM_O = 0, 16640, 33280
CIM, CRE = 0, 66560
CB = 66560; CB_T = 2304
TB = CB + 32*CB_T
WO = 66560
TB2 = 0
QX = 149760; EB = 157952; HP = 160000; CNT = 162048; QM = 162064; KM = 162068
assert TB + 16384 <= EB
LDS_BYTES = 163840
FL1, FL3 = 0x1000, 0x9000
KVT = 0x80000; KVS = 4096
AGG = 0x30000; AGG_DUMMY = 32*8192; AGG_SIZE = AGG_DUMMY + 256*128
OB, HB = 0x100000, 0x400000
DBG = 0x1000000
WS_SIZE = 0x2000000
assert AGG + AGG_SIZE <= KVT
sWAVE, sC, sG, sTAG, sID = 3, 4, 5, 6, 7
R_XB, R_WQ, R_WKV, R_XA, R_BRE, R_BIM, R_CRE, R_CIM, R_WO, R_OUT, R_WS, R_AGG = 8, 12, 16, 20, 24, 28, 32, 36, 40, 44, 48, 52
P_LRE, P_LIM, P_LDT, P_DSK, P_WV = 56, 58, 60, 62, 64
sEP, sDONE = 66, 67
sT0, sT1, sT2, sT3, sT4, sT5 = 68, 69, 70, 71, 72, 73
sT6, sSPIN = 74, 75
sTW, sCW = 76, 77
sLOOP, sKOFF, sROT, sSW = 78, 79, 80, 81
sOB, sT7 = 82, 83
sATG = 65
sST = 84
def srd(r): return f"s[{r}:{r+3}]"

A = Asm()
OST = ["", " sc1", " nt", " sc0 sc1"][OPT["ost"]]
SPIN_MAX = 200000
HST = OPT["hst"]

SSEC = [False]
def sstamp(i, mode):
    if OPT["stamps"] and OPT["sst"] == mode:
        A(f"s_memrealtime s[{sST+2*i}:{sST+2*i+1}]")
def stamp(i, cond=True):
    if SSEC[0] and OPT["sst"] and i < 8: return
    if OPT["stamps"] and cond:
        A(f"s_memrealtime s[{sST+2*i}:{sST+2*i+1}]")
def prio(p): A(f"s_setprio {p}")

def cnt_add(vaddr, vone, off=0):
    A(f"""
    s_mov_b64 exec, 1
    {"ds_inc_u32" if vone == vIDX else "ds_add_u32"} v{vaddr}, v{vone} offset:{off}
    s_mov_b64 exec, -1
    """)
def cnt_wait(vaddr, vtmp, target, off=0, sleep=0):
    lp = A.newlabel("sy"); dn = A.newlabel("syd")
    A(f"""
    s_mov_b32 s{sSPIN}, 0
    {lp}:
    ds_read_b32 v{vtmp}, v{vaddr} offset:{off}
    s_add_u32 s{sSPIN}, s{sSPIN}, 1
    s_waitcnt lgkmcnt(0)
    v_readfirstlane_b32 s{sT0}, v{vtmp}
    s_cmp_ge_u32 s{sT0}, {target}
    s_cbranch_scc1 {dn}
    {("s_sleep " + str(sleep)) if sleep else ""}
    s_cmp_lt_u32 s{sSPIN}, {SPIN_MAX}
    s_cbranch_scc1 {lp}
    {dn}:
    """)
NSYNC = [0]
def grp_sync():
    NSYNC[0] += 1
    A("s_waitcnt lgkmcnt(0)")
    cnt_add(vCNT, vONE)
    cnt_wait(vCNT, vTMP, CBASE + 4*NSYNC[0], sleep=OPT['ssl'])

def sync_add(wait_lds=True):
    NSYNC[0] += 1
    if wait_lds: A("s_waitcnt lgkmcnt(0)")
    cnt_add(vCNT, vONE)
def sync_wait(sleep=None):
    cnt_wait(vCNT, vTMP, CBASE + 4*NSYNC[0], sleep=OPT['ssl'] if sleep is None else sleep)

def poll_flags(vaddr, vdst, width, sleep=2):
    lp = A.newlabel("pl"); dn = A.newlabel("pld")
    ld = "buffer_load_dword" if width == 1 else f"buffer_load_dwordx{width}"
    A(f"s_mov_b32 s{sSPIN}, 0")
    A.label(lp)
    A(f"""
    {ld} {vr(vdst, width)}, v{vaddr}, {srd(R_WS)}, 0 offen sc1
    s_add_u32 s{sSPIN}, s{sSPIN}, 1
    s_waitcnt vmcnt(0)
    v_cmp_ne_u32 vcc, s{sTAG}, v{vdst}
    s_cbranch_vccz {dn}
    {("s_sleep " + str(sleep)) if sleep else ""}
    s_cmp_lt_u32 s{sSPIN}, {SPIN_MAX}
    s_cbranch_scc1 {lp}
    {dn}:
    """)

def wave_max(v, tmp):
    A("s_nop 1")
    for sh in (1, 2, 4, 8):
        A(f"v_max_f32_dpp v{v}, v{v}, v{v} row_ror:{sh} row_mask:0xf bank_mask:0xf")
        A("s_nop 1")
    A(f"v_mov_b32 v{tmp}, v{v}")
    A("s_nop 1")
    A(f"v_permlane16_swap_b32 v{tmp}, v{v}")
    A(f"v_max_f32 v{v}, v{v}, v{tmp}")
    A(f"v_mov_b32 v{tmp}, v{v}")
    A("s_nop 1")
    A(f"v_permlane32_swap_b32 v{tmp}, v{v}")
    A(f"v_max_f32 v{v}, v{v}, v{tmp}")

def wq_voffset(dst, t0, t1, t2):
    A(f"""
    v_lshrrev_b32 v{t0}, 3, v{vLANE}
    v_and_b32 v{t1}, 7, v{vLANE}
    v_bfe_u32 v{t2}, v{vLANE}, 4, 1
    v_lshlrev_b32 v{t2}, 2, v{t2}
    v_xor_b32 v{t1}, v{t1}, v{t2}
    v_lshlrev_b32 v{t1}, 4, v{t1}
    v_lshl_add_u32 v{dst}, v{t0}, 10, v{t1}
    """)

vLANE, vL31, vH, vL16x = 1, 2, 3, 4
UR, UI, Y0, Y1 = 16, 32, 48, 64
FRS = 80
DG = 104
vL1, vL8, vL16, vL64, vL512, vCF = 112, 114, 116, 118, 120, 122
vCNT, vONE, vTMP, vP2, vDUM = 0, 124, 125, 126, 127
vXo, vBo, vDa, vSt = 5, 6, 7, 8
vAa, vBa = [9, 10, 11], [12, 13, 14]
vPF = 15
STG = 64
PRM = 100
S0, S1 = 16, 32
QF = 48
KV = [80, 92, 104, 116]
vIDX = 7
vM = 104
vZ = 120
vKt, vVt = [5, 8, 9, 10], [6, 12, 14, 15]

A(f"""
s_cmp_ge_u32 s2, 256
s_cbranch_scc1 L_end
""")
stamp(0)
sizes = {R_XB: 65536, R_WKV: 16384, R_WQ: 523392, R_WS: WS_SIZE, R_XA: 65536, R_BRE: 65536, R_BIM: 65536, R_CRE: 65536, R_CIM: 65536,
         R_WO: 523392, R_OUT: 262144, R_AGG: AGG_SIZE}
def kload(lst):
    for r, off in lst:
        A(f"s_load_dwordx2 s[{r}:{r+1}], s[0:1], {off}")
def srd_words(rs):
    for r in rs:
        A(f"s_mov_b32 s{r+2}, {sizes[r]}")
        A(f"s_mov_b32 s{r+3}, 0x20000")
kload([(R_XB, 72), (R_WKV, 88), (P_WV, 96), (R_WQ, 80), (R_WS, 128)])
A(f"""
v_lshrrev_b32 v5, 6, v0
v_and_b32 v{vLANE}, 63, v0
v_readfirstlane_b32 s{sWAVE}, v5
v_lshlrev_b32 v{vL16x}, 4, v{vLANE}
v_bfe_u32 v{vH}, v0, 5, 1
v_and_b32 v{vL31}, 31, v0
v_mov_b32 v0, {CNT}
""")
srd_words([R_XB])
A(f"""
""")
if OPT["map84"]:
    A(f"""
    s_bfe_u32 s{sC}, s2, 0x20001
    s_lshl_b32 s{sC}, s{sC}, 3
    s_bfe_u32 s{sT0}, s2, 0x30003
    s_add_u32 s{sC}, s{sC}, s{sT0}
    s_and_b32 s{sG}, s2, 1
    s_lshl_b32 s{sG}, s{sG}, 2
    s_lshr_b32 s{sT0}, s2, 6
    s_add_u32 s{sG}, s{sG}, s{sT0}
    s_add_u32 s{sROT}, s{sC}, s{sG}
    s_and_b32 s{sROT}, s{sROT}, 3
    """)
else:
    A(f"""
    s_and_b32 s{sC}, s2, 7
    s_lshl_b32 s{sC}, s{sC}, 2
    s_bfe_u32 s{sROT}, s2, 0x20003
    s_add_u32 s{sC}, s{sC}, s{sROT}
    s_lshr_b32 s{sG}, s2, 5
    """)
A(f"""
s_lshl_b32 s{sT2}, s{sC}, 16
s_sub_u32 s{sSW}, s{sWAVE}, 4
s_cbranch_scc1 L_A0
s_load_dwordx4 s[{P_LRE}:{P_LRE+3}], s[0:1], 8
s_load_dwordx4 s[{P_LDT}:{P_LDT+3}], s[0:1], 56
s_setprio 3
v_mov_b32 v20, 0
v_mov_b32 v21, 0
s_lshl_b32 s{sT0}, s{sG}, 6
s_lshl_b32 s{sT1}, s{sSW}, 4
s_and_b32 s{sT1}, s{sT1}, 32
s_add_u32 s{sT0}, s{sT0}, s{sT1}
v_add_lshl_u32 v{vP2}, s{sT0}, v{vL31}, 1
ds_write2_b64 v0, v[20:21], v[20:21] offset0:0 offset1:1
ds_write_b64 v0, v[20:21] offset:16
s_mov_b32 s{R_WKV+2}, {sizes[R_WKV]}
s_mov_b32 s{R_WKV+3}, 0x20000
s_lshl_b32 s{sT1}, s{sSW}, 12
s_lshl_b32 s{sT5}, s{sG}, 13
s_and_b32 s{sT5}, s{sT5}, 0xc000
s_add_u32 s{sT5}, s{sT5}, s{sT1}
s_mul_i32 s{sT0}, s{sSW}, 4160
s_add_u32 m0, s{sT1}, {WKV}
s_bitcmp1_b32 s{sG}, 0
s_waitcnt lgkmcnt(0)
s_cselect_b32 s{R_WKV}, s{P_WV}, s{R_WKV}
s_cselect_b32 s{R_WKV+1}, s{P_WV+1}, s{R_WKV+1}
s_add_u32 s{R_XB}, s{R_XB}, s{sT2}
s_addc_u32 s{R_XB+1}, s{R_XB+1}, 0
""")
for i in range(4):
    A(f"buffer_load_dwordx4 v{vL16x}, {srd(R_WKV)}, s{sT1} offen offset:{i*1024} lds")
for i in range(4):
    A(f"s_add_u32 m0, s{sT0}, {KVX + 16*i}")
    A(f"s_load_dword s{sEP}, s[{R_WS}:{R_WS+1}], 0" if i == 0 else "s_nop 0")
    A(f"buffer_load_dwordx4 v{vL16x}, {srd(R_XB)}, s{sT5} offen offset:{i*1024} lds")
A(f"""
s_barrier
global_load_ushort v{PRM}, v{vP2}, s[{P_LRE}:{P_LRE+1}]
global_load_ushort v{PRM+1}, v{vP2}, s[{P_LIM}:{P_LIM+1}]
global_load_ushort v{PRM+2}, v{vP2}, s[{P_LDT}:{P_LDT+1}]
global_load_ushort v{PRM+3}, v{vP2}, s[{P_DSK}:{P_DSK+1}]
s_branch L_S1
L_A0:
""")
def common_scalars():
    kload([(R_OUT, 112)])
    srd_words([R_WS, R_OUT])
    A(f"""
    s_and_b32 s{sTW}, s{sWAVE}, 1
    s_bfe_u32 s{sCW}, s{sWAVE}, 0x10001
    s_lshl_b32 s{sID}, s{sC}, 3
    s_add_u32 s{sID}, s{sID}, s{sG}
    s_mov_b32 s{sDONE}, 0
    s_lshl_b32 s{sOB}, s{sC}, 1
    s_add_u32 s{sOB}, s{sOB}, s{sTW}
    s_lshl_b32 s{sOB}, s{sOB}, 15
    s_add_u32 s{sOB}, s{sOB}, {OB}
    """)
def common_after_wait(tag=True):
    A(f"""
    s_lshl_b32 s{sT0}, s{sC}, 18
    s_add_u32 s{R_OUT}, s{R_OUT}, s{sT0}
    s_addc_u32 s{R_OUT+1}, s{R_OUT+1}, 0
    """)
    if tag: A(f"""
    s_mul_i32 s{sTAG}, s{sEP}, 0x9E3779B1
    s_add_u32 s{sTAG}, s{sTAG}, 0x7F4A7C15
    """)
vWQo, vXQo = 119, 117
A(f"""
v_lshrrev_b32 v6, 4, v{vLANE}
v_and_b32 v7, 15, v{vLANE}
v_lshlrev_b32 v7, 4, v7
v_lshl_add_u32 v{vXQo}, v6, 14, v7
s_mul_i32 s{sT6}, s{sWAVE}, 4160
s_lshl_b32 s{sT7}, s{sWAVE}, 12
""")
srd_words([R_WQ])
wq_voffset(vWQo, 6, 7, 10)
A(f"""
s_lshl_b32 s{sT0}, s{sG}, 7
s_waitcnt lgkmcnt(0)
s_add_u32 s{R_XB}, s{R_XB}, s{sT2}
s_addc_u32 s{R_XB+1}, s{R_XB+1}, 0
s_add_u32 s{R_WQ}, s{R_WQ}, s{sT0}
s_addc_u32 s{R_WQ+1}, s{R_WQ+1}, 0
s_load_dword s{sEP}, s[{R_WS}:{R_WS+1}], 0
s_barrier
""")
stamp(1, HST)
def x_dma(s):
    A(f"""
    s_add_u32 s{sT3}, s{sROT}, {s}
    s_and_b32 s{sT3}, s{sT3}, 3
    s_lshl_b32 s{sT4}, s{sT3}, 8
    s_add_u32 s{sT4}, s{sT4}, s{sT7}
    """)
    for i in range(4):
        A(f"""
        s_add_u32 m0, s{sT6}, {XQ + s*16640 + i*16}
        s_nop 0
        buffer_load_dwordx4 v{vXQo}, {srd(R_XB)}, s{sT4} offen offset:{i*1024} lds
        """)
def wq_dma(s):
    A(f"""
    s_lshl_b32 s{sT3}, s{sT3}, 4
    s_add_u32 s{sT3}, s{sT3}, s{sWAVE}
    s_lshl_b32 s{sT3}, s{sT3}, 13
    s_lshl_b32 s{sT2}, s{sWAVE}, 10
    """)
    for i in range(4):
        A(f"""
        s_add_u32 m0, s{sT2}, {WQ + s*16384 + i*4096}
        s_add_u32 s{sT1}, s{sT3}, {i*32768}
        buffer_load_dwordx4 v{vWQo}, {srd(R_WQ)}, s{sT1} offen lds
        """)
for s in range(OPT["qpre"]):
    x_dma(s); wq_dma(s)
stamp(2 if HST else 1)
A("s_branch L_A1")
A.label("L_S1")
SSEC[0] = True
A(f"""
v_mov_b32 v{vONE}, 1
s_lshl_b32 s{sID}, s{sC}, 3
s_add_u32 s{sID}, s{sID}, s{sG}
s_mov_b32 s{R_WS+2}, {WS_SIZE}
s_mov_b32 s{R_WS+3}, 0x20000
v_lshrrev_b32 v20, 4, v{vLANE}
v_and_b32 v21, 15, v{vLANE}
v_mul_u32_u24 v9, 1040, v21
v_lshl_add_u32 v9, v20, 4, v9
v_add_u32 v9, {KVX}, v9
v_lshrrev_b32 v10, 2, v21
v_lshl_add_u32 v10, v20, 3, v10
v_lshlrev_b32 v10, 5, v10
v_and_b32 v11, 3, v21
v_lshl_add_u32 v10, v11, 3, v10
v_add_u32 v10, {WKV}, v10
s_lshl_b32 s{sT6}, s{sC}, 1
s_lshr_b32 s{sT1}, s{sG}, 2
s_add_u32 s{sT6}, s{sT6}, s{sT1}
s_lshl_b32 s{sT6}, s{sT6}, 12
s_add_u32 s{sT6}, s{sT6}, {KVT}
s_bfe_u32 s{sT7}, s{sG}, 0x10001
s_waitcnt lgkmcnt(0)
s_mul_i32 s{sTAG}, s{sEP}, 0x9E3779B1
s_add_u32 s{sTAG}, s{sTAG}, 0x7F4A7C15
s_waitcnt vmcnt(4)
""")
stamp(6, HST)
cnt_add(vCNT, vONE)
A(f"""
s_cmp_lg_u32 s{sSW}, 0
s_cbranch_scc1 L_S2a
""")
cnt_wait(vCNT, vTMP, 4)
stamp(1)
def kv_rd(k):
    f = 32 + 8*(k % 6)
    A(f"ds_read_b64_tr_b16 v[{f}:{f+1}], v10 offset:{k*1024}")
    A(f"ds_read_b64_tr_b16 v[{f+2}:{f+3}], v10 offset:{k*1024+128}")
    A(f"ds_read_b128 v[{f+4}:{f+7}], v9 offset:{k*64}")
for k in range(4): kv_rd(k)
A(f"s_bitcmp1_b32 s{sG}, 0")
A("s_cbranch_scc1 L_kv_v")
def kv_chain(isv_):
    for k in range(16):
        f = 32 + 8*(k % 6)
        if k + 4 < 16: kv_rd(k + 4)
        issued = min(16, k + 5)
        A(f"s_waitcnt lgkmcnt({3*(issued - k - 1)})")
        c = "0" if k == 0 else "v[28:31]"
        a, b = (f"v[{f}:{f+3}]", f"v[{f+4}:{f+7}]") if not isv_ else (f"v[{f+4}:{f+7}]", f"v[{f}:{f+3}]")
        A(f"v_mfma_f32_16x16x32_bf16 v[28:31], {a}, {b}, {c}")
kv_chain(False)
cnt_add(vCNT, vONE)
A(f"s_mov_b32 s{sT0}, {f2u(0.25 * math.log2(math.e))}")
A(f"""
s_lshl_b32 s{sT7}, s{sT7}, 8
s_add_u32 s{sT6}, s{sT6}, s{sT7}
v_and_b32 v22, 1, v20
v_lshlrev_b32 v22, 9, v22
v_lshl_add_u32 v22, v21, 4, v22
v_lshrrev_b32 v23, 1, v20
v_lshl_add_u32 v22, v23, 3, v22
v_mul_f32 v28, s{sT0}, v28
v_mul_f32 v29, s{sT0}, v29
v_mul_f32 v30, s{sT0}, v30
v_mul_f32 v31, s{sT0}, v31
v_cvt_pk_bf16_f32 v24, v28, v29
v_cvt_pk_bf16_f32 v25, v30, v31
buffer_store_dwordx2 v[24:25], v22, {srd(R_WS)}, s{sT6} offen sc1
v_mul_f32 v16, v28, v28
v_fmac_f32 v16, v29, v29
v_fmac_f32 v16, v30, v30
v_fmac_f32 v16, v31, v31
v_mov_b32 v17, v16
s_nop 1
v_permlane16_swap_b32 v17, v16
v_add_f32 v16, v16, v17
v_mov_b32 v17, v16
s_nop 1
v_permlane32_swap_b32 v17, v16
v_add_f32 v17, v16, v17
""")
wave_max(17, 18)
A("s_branch L_kv_pub")
A.label("L_kv_v")
kv_chain(True)
cnt_add(vCNT, vONE)
A(f"""
s_mul_i32 s{sT7}, s{sT7}, 544
s_add_u32 s{sT6}, s{sT6}, s{sT7}
s_add_u32 s{sT6}, s{sT6}, 1024
v_lshrrev_b32 v22, 1, v20
v_mul_u32_u24 v22, 272, v22
v_and_b32 v23, 1, v20
v_lshl_add_u32 v22, v23, 3, v22
v_lshl_add_u32 v23, v21, 4, v22
v_cvt_pk_bf16_f32 v24, v28, v29
v_cvt_pk_bf16_f32 v25, v30, v31
buffer_store_dwordx2 v[24:25], v23, {srd(R_WS)}, s{sT6} offen sc1
v_mov_b32 v26, 0x3f803f80
v_mov_b32 v27, 0x3f803f80
s_mov_b32 exec_lo, 0x00010001
s_mov_b32 exec_hi, 0x00010001
buffer_store_dwordx2 v[26:27], v22, {srd(R_WS)}, s{sT6} offen offset:256 sc1
s_mov_b64 exec, -1
v_mov_b32 v17, 0
""")
A.label("L_kv_pub")
A(f"""
s_lshl_b32 s{sT0}, s{sID}, 7
s_add_u32 s{sT0}, s{sT0}, {FL1}
v_mov_b32 v16, s{sTAG}
v_mov_b32 v9, 0
s_waitcnt vmcnt(0)
s_mov_b64 exec, 1
buffer_store_dwordx2 v[16:17], v9, {srd(R_WS)}, s{sT0} offen sc1
ds_add_u32 v{vCNT}, v{vONE}
s_mov_b64 exec, -1
""")
stamp(2)
A("s_branch L_S2")
SSEC[0] = False
A.label("L_A1")
for i in range(4): A(f"v_mov_b32 v{vZ+i}, 0")
vXa, vWa, vFl, vQw, vQr, vAone = 8, 9, 10, 14, 15, vIDX
common_scalars()
for ct in range(8):
    A(f"v_mfma_f32_32x32x16_bf16 a[{16*ct}:{16*ct+15}], v[{vZ}:{vZ+3}], v[{vZ}:{vZ+3}], 0")
A(f"""
v_and_b32 v6, 15, v{vL31}
v_mul_u32_u24 v{vXa}, 1040, v6
v_lshl_add_u32 v{vXa}, v{vH}, 4, v{vXa}
v_lshrrev_b32 v6, 4, v{vL31}
v_lshl_add_u32 v{vXa}, v6, 8, v{vXa}
s_lshl_b32 s{sT0}, s{sTW}, 9
v_add_u32 v{vXa}, s{sT0}, v{vXa}
v_bfe_u32 v6, v{vLANE}, 2, 2
v_lshl_add_u32 v6, v{vH}, 3, v6
v_bfe_u32 v7, v{vLANE}, 4, 1
v_and_b32 v11, 3, v{vLANE}
v_lshlrev_b32 v11, 3, v11
v_lshl_add_u32 v11, v7, 5, v11
s_lshl_b32 s{sT0}, s{sCW}, 6
v_add_u32 v11, s{sT0}, v11
v_bfe_u32 v7, v{vLANE}, 3, 1
v_lshlrev_b32 v7, 6, v7
v_xor_b32 v11, v11, v7
v_lshl_add_u32 v{vWa}, v6, 7, v11
v_add_u32 v{vWa}, {WQ}, v{vWa}
s_lshl_b32 s{sT0}, s{sWAVE}, 13
s_add_u32 s{sT0}, s{sT0}, {FL1}
v_lshlrev_b32 v{vFl}, 7, v{vLANE}
v_add_u32 v{vFl}, s{sT0}, v{vFl}
s_lshl_b32 s{sT0}, s{sWAVE}, 16
s_add_u32 s{sT1}, s{sT0}, {KVT}
v_add_u32 v{vKt[0]}, s{sT1}, v{vL16x}
s_add_u32 s{sT1}, s{sT1}, 1024
v_lshlrev_b32 v13, 4, v{vL31}
v_mul_u32_u24 v14, 272, v{vH}
v_add3_u32 v13, v13, v14, s{sT1}
v_cmp_lt_u32 vcc, 16, v{vL31}
v_mov_b32 v14, 0x7ff00000
v_mov_b32 v{vIDX}, 0xdddddddd
v_cndmask_b32 v{vVt[0]}, v13, v14, vcc
s_lshl_b32 s{sKOFF}, s{sROT}, 14
s_lshl_b32 s{sT0}, s{sCW}, 2
s_add_u32 s{sT0}, s{sT0}, s{sTW}
s_lshl_b32 s{sT0}, s{sT0}, 10
s_add_u32 s{sT0}, s{sT0}, {QX}
v_add_u32 v{vQw}, s{sT0}, v{vL16x}
v_add_u32 v{vQr}, {QX}, v{vL16x}
s_waitcnt lgkmcnt(0)
""")
common_after_wait()
QP = OPT["qpre"]
sKVOK = sATG
vFG = 12
def ld_k(b, t, so=sKOFF):
    A(f"buffer_load_dwordx4 v[{KV[b]}:{KV[b]+3}], v{vKt[t]}, {srd(R_WS)}, s{so} offen sc1")
def ld_v(b, j, t, so=sKOFF):
    A(f"buffer_load_dwordx4 v[{KV[b]+4+4*j}:{KV[b]+7+4*j}], v{vVt[t]}, {srd(R_WS)}, s{so} offen offset:{544*j} sc1")
def kv_first():
    for b in range(4):
        A(f"s_add_u32 s{sT1}, s{sKOFF}, {b*KVS}")
        ld_k(b, 0, sT1); ld_v(b, 0, 0, sT1); ld_v(b, 1, 0, sT1)
    A(f"ds_max_f32 v{vCNT}, v{vFG+1} offset:{KM - CNT}")
    if OPT["sgate"] == 2: cnt_add(vCNT, vAone, 12)
def kv_try(tag):
    A(f"""
    v_cmp_ne_u32 vcc, s{sTAG}, v{vFG}
    s_cbranch_vccnz L_kvlate{tag}
    s_mov_b32 s{sKVOK}, 1
    """)
    kv_first()
    A(f"s_branch L_kvq{tag}")
    A.label(f"L_kvlate{tag}")
    flag_ld()
    A.label(f"L_kvq{tag}")
def flag_ld(): A(f"buffer_load_dwordx2 v[{vFG}:{vFG+1}], v{vFl}, {srd(R_WS)}, 0 offen sc1")
def qproj_quarter(s):
    A(f"s_waitcnt vmcnt({8*(min(4, s + QP) - s - 1)})")
    stamp(3 + s, HST)
    cnt_add(vCNT, vAone, 4)
    if s + QP < 4:
        if s + QP == 3: cnt_wait(vCNT, 11, 5)
        x_dma(s + QP); wq_dma(s + QP)
        if s + QP == 3 and OPT["sgate"] == 0: cnt_add(vCNT, vAone, 12)
    if s == 2: flag_ld()
    if s == 3:
        A(f"s_mov_b32 s{sKVOK}, 0")
        kv_try("a")
        if OPT["sgate"] == 1: cnt_add(vCNT, vAone, 12)
    cnt_wait(vCNT, 11, 4*(s + 1), 4)
    def rd(k):
        f = 32 + 8*(k % 6)
        A(f"ds_read_b64_tr_b16 v[{f}:{f+1}], v{vWa} offset:{s*16384 + k*2048}")
        A(f"ds_read_b64_tr_b16 v[{f+2}:{f+3}], v{vWa} offset:{s*16384 + k*2048 + 512}")
        A(f"ds_read_b128 v[{f+4}:{f+7}], v{vXa} offset:{XQ + s*16640 + k*32}")
    for k in range(4): rd(k)
    for k in range(8):
        f = 32 + 8*(k % 6)
        if k + 4 < 8: rd(k + 4)
        issued = min(8, k + 5)
        A(f"s_waitcnt lgkmcnt({3*(issued - k - 1)})")
        c = "0" if (s == 0 and k == 0) else f"v[{S0}:{S0+15}]"
        A(f"v_mfma_f32_32x32x16_bf16 v[{S0}:{S0+15}], v[{f}:{f+3}], v[{f+4}:{f+7}], {c}")
for s in range(4):
    qproj_quarter(s)
A(f"""
s_cmp_lg_u32 s{sKVOK}, 0
s_cbranch_scc1 L_kvqb
s_waitcnt vmcnt(0)
""")
kv_try("b")
A(f"""
s_mul_i32 s{sT6}, s{sWAVE}, {8*CB_T}
s_add_u32 s{sT6}, s{sT6}, {CB}
v_add_u32 v11, s{sT6}, v{vL16x}
s_mov_b32 s{sLOOP}, 4
""")
A.nop(8)
for i in range(8):
    A(f"v_cvt_pk_bf16_f32 v{32+i}, v{S0+2*i}, v{S0+2*i+1}")
    if i == 3: A(f"ds_write_b128 v{vQw}, v[32:35]")
A(f"""
ds_write_b128 v{vQw}, v[36:39] offset:2048
s_waitcnt lgkmcnt(0)
""")
cnt_add(vCNT, vAone, 4)
for hd in range(2):
    A(f"v_mul_f32 v{32+hd}, v{S0+8*hd}, v{S0+8*hd}")
    for i in range(1, 8):
        A(f"v_fmac_f32 v{32+hd}, v{S0+8*hd+i}, v{S0+8*hd+i}")
A(f"""
v_mov_b32 v34, v32
v_mov_b32 v35, v33
v_add_u32 v{vKt[1]}, {KVS}, v{vKt[0]}
v_add_u32 v{vKt[2]}, {2*KVS}, v{vKt[0]}
v_permlane32_swap_b32 v34, v32
v_permlane32_swap_b32 v35, v33
v_add_f32 v32, v32, v34
v_add_f32 v33, v33, v35
v_max_f32 v32, v32, v33
v_add_u32 v{vVt[2]}, {2*KVS}, v{vVt[0]}
ds_max_f32 v{vCNT}, v32 offset:{QM - CNT}
""")
cnt_wait(vCNT, 36, 20, 4)
stamp(7 if HST else 2)
for ct in range(8):
    A(f"ds_read_b128 v[{QF+4*ct}:{QF+4*ct+3}], v{vQr} offset:{ct*1024}")
A(f"""
s_cmp_lg_u32 s{sKVOK}, 0
s_cbranch_scc1 L_kvgo
s_waitcnt vmcnt(0)
v_cmp_ne_u32 vcc, s{sTAG}, v{vFG}
s_cbranch_vccz L_kvok
""")
poll_flags(vFl, vFG, 2, sleep=0)
A.label("L_kvok")
kv_first()
A.label("L_kvgo")
stamp(3, not HST)
A(f"""
v_add_u32 v{vKt[3]}, {3*KVS}, v{vKt[0]}
v_add_u32 v{vVt[3]}, {3*KVS}, v{vVt[0]}
s_waitcnt vmcnt(9) lgkmcnt(0)
v_mfma_f32_32x32x16_bf16 v[{S0}:{S0+15}], v[{KV[0]}:{KV[0]+3}], v[{QF}:{QF+3}], 0
v_add_u32 v{vVt[1]}, {KVS}, v{vVt[0]}
v_lshlrev_b32 v13, 2, v{vLANE}
v_add_u32 v13, s{sT6}, v13
""")
A.nop(9)
SB = [S0, S1]
LASTSYNC = 8
CBASE = 6
def part_write(ct):
    A(f"ds_write_b128 v11, a[{16*ct}:{16*ct+3}] offset:{ct*CB_T}")
    A(f"ds_write_b128 v11, a[{16*ct+4}:{16*ct+7}] offset:{ct*CB_T + 1024}")
    A(f"ds_write_b32 v13, a{16*ct+8} offset:{ct*CB_T + 2048}")
def period(kb, ct, mode):
    cur = SB[ct & 1]; oth = SB[(ct + 1) & 1]
    pct = (ct - 1) % 8
    pkb = kb if ct > 0 else (kb - 1) % 4
    nct = (ct + 1) % 8
    nkb = kb if ct < 7 else (kb + 1) % 4
    ld = ct == 0 and mode == "loop" and not OPT["noKV"]
    early = mode == "last" and ct >= 2
    e = lambda i: A(f"v_exp_f32 v{cur+i}, v{cur+i}")
    e(0); e(1)
    if mode != "first":
        A(f"v_smfmac_f32_32x32x32_bf16 a[{16*pct}:{16*pct+15}], v[{KV[pkb]+8}:{KV[pkb]+11}], v[{oth+8}:{oth+15}], v{vIDX}")
    e(2); e(3)
    if ct == 7 and mode == "loop": A(f"s_waitcnt vmcnt(6)")
    e(4)
    if (mode, ct) != ("last", 7):
        A(f"v_mfma_f32_32x32x16_bf16 v[{oth}:{oth+15}], v[{KV[nkb]}:{KV[nkb]+3}], v[{QF+4*nct}:{QF+4*nct+3}], 0")
    for i in range(5, 10): e(i)
    A(f"v_smfmac_f32_32x32x32_bf16 a[{16*ct}:{16*ct+15}], v[{KV[kb]+4}:{KV[kb]+7}], v[{cur}:{cur+7}], v{vIDX}")
    e(10); e(11)
    if (mode, ct) == ("last", 0): A(f"ds_read_b32 v12, v{vCNT} offset:8")
    e(12)
    if ld: ld_k(pkb, pkb)
    if early: A(f"ds_write_b128 v11, a[{16*(ct-2)}:{16*(ct-2)+3}] offset:{(ct-2)*CB_T}")
    e(13)
    if ld: ld_v(pkb, 0, pkb)
    if (kb, ct, mode) == (0, 1, "loop"): A(f"s_add_u32 s{sKOFF}, s{sKOFF}, {4*KVS}")
    if (kb, ct, mode) == (2, 7, "loop"): A(f"s_sub_u32 s{sLOOP}, s{sLOOP}, 1")
    if early: A(f"ds_write_b128 v11, a[{16*(ct-2)+4}:{16*(ct-2)+7}] offset:{(ct-2)*CB_T + 1024}")
    e(14)
    if ld: ld_v(pkb, 1, pkb)
    if (kb, ct, mode) == (0, 1, "loop"): A(f"s_and_b32 s{sKOFF}, s{sKOFF}, 0xffff")
    if (kb, ct, mode) == (2, 7, "loop"): A(f"s_cmp_eq_u32 s{sLOOP}, 0")
    if early: A(f"ds_write_b32 v13, a{16*(ct-2)+8} offset:{(ct-2)*CB_T + 2048}")
    e(15)
    if mode == "last" and ct == 8 - OPT["trig"] - 1: cnt_add(vCNT, vIDX, 12)
    if (mode, ct) == ("last", 1):
        A(f"""
        s_waitcnt lgkmcnt(0)
        v_readfirstlane_b32 s{sT0}, v12
        s_cmp_ge_u32 s{sT0}, {4 if not (OPT["noS"] or OPT["nochk"]) else 0}
        s_cbranch_scc1 L_sfree
        """)
        cnt_wait(vCNT, 12, 4, 8, sleep=2)
        A.label("L_sfree")
if OPT["cyc"]: A(f"s_memtime s[{sST+10}:{sST+11}]")
period(0, 0, "first")
A("s_branch L_attn1")
A(".p2align 6")
A.label("L_attn")
loop_start = len(A.lines)
for kb in range(4):
    for ct in range(8):
        if (kb, ct) == (0, 1): A.label("L_attn1")
        period(kb, ct, "loop")
    if kb == 2: A("s_cbranch_scc1 L_last")
loop_end = len(A.lines)
A("s_branch L_attn")
A.label("L_last")
for ct in range(8):
    period(3, ct, "last")
A(f"""
s_nop 1
v_smfmac_f32_32x32x32_bf16 a[112:127], v[{KV[3]+8}:{KV[3]+11}], v[{S1+8}:{S1+15}], v{vIDX}
""")
stamp(4, not HST)
if OPT["cyc"]: A(f"s_memtime s[{sST+12}:{sST+13}]")
part_write(6)
if OPT["trig"] == 0: cnt_add(vCNT, vIDX, 12)
A(f"""
s_mul_i32 s{sT0}, s{sWAVE}, {2*CB_T}
s_add_u32 s{sT0}, s{sT0}, {CB}
v_add_u32 v12, s{sT0}, v{vL16x}
v_lshlrev_b32 v14, 2, v{vL31}
v_add_u32 v14, s{sT0}, v14
v_mov_b32 v15, 1
s_mov_b32 s{sATG}, 24
s_lshl_b32 s{sT1}, s{sG}, 2
s_add_u32 s{sT1}, s{sT1}, s{sWAVE}
""")
part_write(7)
A.label("L_comb")
A("s_waitcnt vmcnt(0) lgkmcnt(0)")
cnt_add(vCNT, 15, 4)
A(f"""
s_lshl_b32 s{sT1}, s{sG}, 2
s_add_u32 s{sT1}, s{sT1}, s{sWAVE}
s_lshl_b32 s{sT1}, s{sT1}, 10
s_lshl_b32 s{sT2}, s{sC}, 16
s_add_u32 s{sT1}, s{sT1}, s{sT2}
s_add_u32 s{sT1}, s{sT1}, {OB}
s_add_u32 s{sT2}, s{sT1}, 32768
""")
cnt_wait(vCNT, 16, f"s{sATG}", 4)
def astamp(i):
    if OPT["cyc"] or HST or not OPT["stamps"]: return
    if i < 7: return stamp(i)
    l = A.newlabel("st")
    A(f"s_cmp_ge_u32 s{sWAVE}, 4"); A(f"s_cbranch_scc1 {l}"); stamp(i); A.label(l)
astamp(5)
PD = [[16, 24, 32, 40], [80, 88, 96, 104]]
PL = [[112, 113, 114, 115], [116, 117, 118, 119]]
A(f"ds_read_b64 v[120:121], v0 offset:{QM - CNT}")
for u in range(2):
    for w in range(4):
        A(f"ds_read_b32 v{PL[u][w]}, v14 offset:{w*8*CB_T + u*CB_T + 2048}")
    if u == 0: A("s_waitcnt lgkmcnt(4)")
    for w in range(4):
        A(f"ds_read_b128 v[{PD[u][w]}:{PD[u][w]+3}], v12 offset:{w*8*CB_T + u*CB_T}")
        A(f"ds_read_b128 v[{PD[u][w]+4}:{PD[u][w]+7}], v12 offset:{w*8*CB_T + u*CB_T + 1024}")
    if u == 0:
        A(f"""
        v_mul_f32 v120, v120, v121
        s_waitcnt lgkmcnt(8)
        v_add_f32 v112, v112, v113
        v_add_f32 v114, v114, v115
        v_cmp_nge_f32 vcc, {f2u(-1.0 if OPT['force_slow'] else 1000.0)}, v120
        v_add_f32 v112, v112, v114
        v_rcp_f32 v112, v112
        s_waitcnt lgkmcnt(3)
        """)
A("s_cbranch_vccnz L_slow")
A.label("L_fast")
def comb(u, soff):
    d = PD[u]
    if u == 0: A("s_waitcnt lgkmcnt(12)")
    else:
        A(f"""
        s_waitcnt lgkmcnt(4)
        v_add_f32 v116, v116, v117
        v_add_f32 v118, v118, v119
        v_add_f32 v116, v116, v118
        v_rcp_f32 v116, v116
        """)
    for i in range(8): A(f"v_add_f32 v{d[0]+i}, v{d[0]+i}, v{d[1]+i}")
    if u == 1: A("s_waitcnt lgkmcnt(0)")
    for i in range(8): A(f"v_add_f32 v{d[2]+i}, v{d[2]+i}, v{d[3]+i}")
    for i in range(8): A(f"v_add_f32 v{d[0]+i}, v{d[0]+i}, v{d[2]+i}")
    for i in range(8):
        A(f"v_mul_f32 v{d[0]+i}, v{d[0]+i}, v{PL[u][0]}")
        if i & 1: A(f"v_cvt_pk_bf16_f32 v{d[1]+i//2}, v{d[0]+i-1}, v{d[0]+i}")
    A(f"buffer_store_dwordx4 v[{d[1]}:{d[1]+3}], v{vL16x}, {srd(R_WS)}, s{soff} offen sc1")
comb(0, sT1); comb(1, sT2)
cnt_add(vCNT, vIDX, 12)
A(f"""
s_or_b32 s{sT0}, s2, s{sWAVE}
s_cmp_lg_u32 s{sT0}, 0
s_cbranch_scc1 L_noep
s_add_u32 s{sT0}, s{sEP}, 1
v_mov_b32 v10, s{sT0}
v_mov_b32 v11, 0
s_mov_b64 exec, 1
buffer_store_dword v10, v11, {srd(R_WS)}, 0 offen
s_mov_b64 exec, -1
L_noep:
""")
astamp(6)
A.label("L_fin")
if OPT["stamps"]:
    A(f"""
    s_waitcnt vmcnt(0)
    s_memrealtime s[100:101]
    s_waitcnt lgkmcnt(0)
    s_lshl_b32 s{sT0}, s2, 3
    s_add_u32 s{sT0}, s{sT0}, s{sWAVE}
    s_lshl_b32 s{sT0}, s{sT0}, 6
    s_add_u32 s{sT0}, s{sT0}, {DBG + 0x800000}
    v_mov_b32 v11, 0
    """)
    for i in range(9): A(f"v_mov_b32 v{16+i}, s{sST+2*i}")
    A(f"""
    s_mov_b64 exec, 1
    buffer_store_dwordx4 v[16:19], v11, {srd(R_WS)}, s{sT0} offen
    buffer_store_dwordx4 v[20:23], v11, {srd(R_WS)}, s{sT0} offen offset:16
    buffer_store_dword v24, v11, {srd(R_WS)}, s{sT0} offen offset:32
    """)
A.label("L_end")
A("s_endpgm")

A.label("L_S2a")
A("s_waitcnt vmcnt(0)")
A.label("L_S2")
SSEC[0] = True
kload([(R_XA, 0), (R_BRE, 24), (R_BIM, 32), (R_CRE, 40), (R_CIM, 48), (R_WO, 104), (R_AGG, 128)])
if OPT["pfc"]:
    A(f"""
    s_cmp_lg_u32 s{sWAVE}, 7
    s_cbranch_scc1 L_nopfcode
    s_getpc_b64 s[{sT0}:{sT1}]
    L_pc:
    s_sub_u32 s{sT0}, s{sT0}, L_pc-{NAME}_kernel
    s_subb_u32 s{sT1}, s{sT1}, 0
    s_lshl_b32 s{sLOOP}, s{sROT}, 13
    v_lshlrev_b32 v16, 7, v{vLANE}
    v_add_u32 v16, s{sLOOP}, v16
    v_min_u32 v16, L_hot_end-{NAME}_kernel-4, v16
    global_load_dword v{vDUM}, v16, s[{sT0}:{sT1}]
    L_nopfcode:
    """)
common_scalars()
srd_words([R_XA, R_BRE, R_BIM, R_CRE, R_CIM, R_WO, R_AGG])
A(f"""
s_lshl_b32 s{sT3}, s{sG}, 7
s_lshl_b32 s{sT4}, s{sG}, 16
s_waitcnt lgkmcnt(0)
s_mov_b64 s[{P_LRE}:{P_LRE+1}], s[{R_BRE}:{R_BRE+1}]
s_mov_b64 s[{P_LIM}:{P_LIM+1}], s[{R_BIM}:{R_BIM+1}]
s_mov_b64 s[{P_LDT}:{P_LDT+1}], s[{R_CRE}:{R_CRE+1}]
s_mov_b64 s[{P_DSK}:{P_DSK+1}], s[{R_CIM}:{R_CIM+1}]
s_mov_b64 s[{P_WV}:{P_WV+1}], s[{R_WO}:{R_WO+1}]
""")
for r, t in ((R_XA, sT2), (R_BRE, sT4), (R_BIM, sT4), (R_CRE, sT4), (R_CIM, sT4), (R_WO, sT3)):
    A(f"s_add_u32 s{r}, s{r}, s{t}")
    A(f"s_addc_u32 s{r+1}, s{r+1}, 0")
A(f"""
s_add_u32 s{R_AGG}, s{R_AGG}, {AGG}
s_addc_u32 s{R_AGG+1}, s{R_AGG+1}, 0
""")
common_after_wait(False)
A(f"""
s_add_u32 s{sROT}, s{sC}, s{sG}
s_and_b32 s{sROT}, s{sROT}, 3
v_lshrrev_b32 v20, 4, v{vLANE}
v_and_b32 v21, 15, v{vLANE}
v_lshlrev_b32 v22, 4, v21
v_lshl_add_u32 v{vBo}, v20, 14, v22
v_lshrrev_b32 v23, 1, v20
v_and_b32 v24, 1, v20
v_lshlrev_b32 v23, 15, v23
v_lshl_add_u32 v23, v24, 12, v23
v_add_u32 v{vXo}, v23, v22
v_lshlrev_b32 v{vPF}, 7, v21
s_lshl_b32 s{sT0}, s2, 11
v_add_u32 v{vPF}, s{sT0}, v{vPF}
""")
LOG2E = math.log2(math.e)
a0, a1, a2, a3, a4, a5 = PRM, PRM+1, PRM+2, 96, 97, 98
vLR, vLI = vL1, vL1 + 1
A(f"""
s_mov_b32 s{sT0}, {f2u(LOG2E)}
v_lshlrev_b32 v{a0}, 16, v{a0}
v_lshlrev_b32 v{a1}, 16, v{a1}
v_lshlrev_b32 v{a2}, 16, v{a2}
v_mul_f32 v{a2}, s{sT0}, v{a2}
v_exp_f32 v{a2}, v{a2}
s_nop 0
v_cvt_pk_bf16_f32 v{a2}, v{a2}, v{a2}
v_and_b32 v{a2}, 0xffff0000, v{a2}
v_mul_f32 v{a3}, v{a2}, v{a0}
v_mul_f32 v{a4}, v{a2}, v{a1}
v_mul_f32 v{a3}, s{sT0}, v{a3}
v_exp_f32 v{a3}, v{a3}
v_mul_f32 v{a4}, 0.15915494, v{a4}
v_fract_f32 v{a4}, v{a4}
v_cos_f32 v{vLR}, v{a4}
v_sin_f32 v{vLI}, v{a4}
s_nop 0
v_mul_f32 v{vLR}, v{a3}, v{vLR}
v_mul_f32 v{vLI}, v{a3}, v{vLI}
v_mul_f32 v{a2}, v{a0}, v{a0}
v_fmac_f32 v{a2}, v{a1}, v{a1}
v_rcp_f32 v{a2}, v{a2}
v_add_f32 v{a3}, -1.0, v{vLR}
v_mul_f32 v{a4}, v{a3}, v{a0}
v_fmac_f32 v{a4}, v{vLI}, v{a1}
v_mul_f32 v{a5}, v{vLI}, v{a0}
v_fma_f32 v{a5}, -v{a3}, v{a1}, v{a5}
v_add_f32 v{a2}, v{a2}, v{a2}
v_mul_f32 v{vCF}, v{a4}, v{a2}
v_mul_f32 v{vCF+1}, v{a5}, v{a2}
""")
def csq(d, s_):
    A(f"v_mul_f32 v{a0}, v{s_+1}, v{s_+1}")
    A(f"v_mul_f32 v{a1}, v{s_}, v{s_+1}")
    A(f"v_fma_f32 v{d}, v{s_}, v{s_}, -v{a0}")
    A(f"v_add_f32 v{d+1}, v{a1}, v{a1}")
csq(vL8, vL1); csq(vL8, vL8); csq(vL8, vL8)
csq(vL16, vL8)
csq(vL64, vL16); csq(vL64, vL64)
csq(vL512, vL64); csq(vL512, vL512); csq(vL512, vL512)
vD = PRM + 3
A(f"""
v_and_b32 v20, 1, v{vL31}
v_lshlrev_b32 v20, 4, v20
v_lshlrev_b32 v{vD}, v20, v{vD}
v_bfe_u32 v20, v{vL31}, 3, 1
v_cmp_eq_u32 vcc, v20, v{vH}
v_bfe_u32 v21, v{vL31}, 1, 2
v_lshrrev_b32 v22, 4, v{vL31}
v_cndmask_b32 v{vD}, 0, v{vD}, vcc
v_lshl_add_u32 v21, v22, 2, v21
""")
for i in range(8):
    A(f"v_cmp_eq_u32 vcc, {i}, v21")
    A("s_nop 1")
    A(f"v_cndmask_b32 v{DG+i}, 0, v{vD}, vcc")
A(f"""
v_and_b32 v20, 15, v{vL31}
v_mul_u32_u24 v20, 1040, v20
v_lshl_add_u32 v20, v{vH}, 4, v20
v_lshrrev_b32 v21, 4, v{vL31}
v_lshl_add_u32 v20, v21, 8, v20
s_lshl_b32 s{sT0}, s{sTW}, 9
v_add_u32 v{vAa[0]}, s{sT0}, v20
v_add_u32 v{vAa[1]}, {SLOT[1]}, v{vAa[0]}
s_lshl_b32 s{sT0}, s{sCW}, 9
s_add_u32 s{sT0}, s{sT0}, {BRE_O}
v_add_u32 v{vBa[0]}, s{sT0}, v20
v_add_u32 v{vBa[1]}, {SLOT[1]}, v{vBa[0]}
v_bfe_u32 v20, v{vL31}, 2, 1
v_lshlrev_b32 v20, 3, v20
v_bfe_u32 v21, v{vL31}, 4, 1
v_lshl_add_u32 v20, v21, 2, v20
v_and_b32 v21, 3, v{vL31}
v_add_u32 v20, v20, v21
v_mul_u32_u24 v20, 1040, v20
v_bfe_u32 v21, v{vL31}, 3, 1
v_lshl_add_u32 v20, v21, 8, v20
v_lshl_add_u32 v20, v{vH}, 4, v20
s_lshl_b32 s{sT0}, s{sTW}, 9
s_and_b32 s{sT1}, s{sG}, 1
s_lshl_b32 s{sT1}, s{sT1}, 7
s_add_u32 s{sT0}, s{sT0}, s{sT1}
s_lshl_b32 s{sT1}, s{sCW}, 6
s_add_u32 s{sT0}, s{sT0}, s{sT1}
s_lshr_b32 s{sLOOP}, s{sG}, 1
s_sub_u32 s{sLOOP}, s{sLOOP}, s{sROT}
s_and_b32 s{sLOOP}, s{sLOOP}, 3
s_mul_i32 s{sT1}, s{sLOOP}, {SLOT[1]}
s_cmp_eq_u32 s{sLOOP}, 3
s_cselect_b32 s{sT1}, 0, s{sT1}
s_add_u32 s{sT0}, s{sT0}, s{sT1}
v_add_u32 v{vDa}, s{sT0}, v20
s_mul_i32 s{sT7}, s{sSW}, {4*1040}
v_add_u32 v{vSt}, s{sT7}, v{vL16x}
v_add_u32 v{vAa[2]}, {SLOT[1]}, v{vSt}
v_add_u32 v{vBa[2]}, {SLOT[2]}, v{vSt}
""")
cnt_wait(vCNT, vTMP, 6, 0, sleep=1)
cnt_wait(vCNT, vTMP, 4, 12, sleep=1)
if OPT["stgl"] > 2: cnt_wait(vCNT, vTMP, 4*OPT["stgl"], 4, sleep=2)
prio(OPT["gprio"])
sstamp(1, 1)
def pf16(pairs, lbl):
    if not OPT["pfb"]: return
    A(f"""
    s_cmp_lg_u32 s{sSW}, 1
    s_cbranch_scc1 {lbl}
    s_mov_b64 exec, 0xffff
    """)
    for p in pairs: A(f"global_load_dword v{vDUM}, v{vPF}, s[{p}:{p+1}]")
    A(f"s_mov_b64 exec, -1\n{lbl}:")
pf16([P_LRE, P_LIM, P_WV], "L_nopfb")
def g1_soff(s):
    A(f"""
    s_add_u32 s{sT5}, s{sROT}, {s}
    s_and_b32 s{sT5}, s{sT5}, 3
    s_lshl_b32 s{sT5}, s{sT5}, 8
    s_lshl_b32 s{sT3}, s{sSW}, 12
    s_add_u32 s{sT3}, s{sT3}, s{sT5}
    s_lshl_b32 s{sT4}, s{sTW}, 14
    s_add_u32 s{sT4}, s{sT4}, s{sT5}
    s_lshl_b32 s{sT5}, s{sCW}, 11
    s_add_u32 s{sT4}, s{sT4}, s{sT5}
    s_add_u32 s{sT5}, s{sT4}, 8192
    """)
def stg_reg(n):
    assert n < 32
    return f"a[{4*n}:{4*n+3}]"
def stg_load(n):
    s_, r = divmod(n, 12); i, m = divmod(r, 3)
    if r == 0: g1_soff(s_)
    if m == 0: A(f"buffer_load_dwordx4 {stg_reg(n)}, v{vXo}, {srd(R_XA)}, s{sT5 if i & 1 else sT4} offen offset:{(i>>1)*1024}")
    else: A(f"buffer_load_dwordx4 {stg_reg(n)}, v{vBo}, {srd([0, R_BRE, R_BIM][m])}, s{sT3} offen offset:{i*1024}")
W0 = OPT["win0"]
NPRE = OPT["npre"]
for n in range(NPRE):
    stg_load(n)
    if W0 and n >= W0: A(f"s_waitcnt vmcnt({W0})")
prio(OPT["vprio"])
A(f"s_waitcnt vmcnt({NPRE - 12})")
sstamp(2, 1)
prio(OPT["vprio"])
cnt_wait(vCNT, vTMP, 20, 4, sleep=1)
if OPT["noS"]: A("s_branch L_fin")
def stg_write(n):
    s, r = divmod(n, 12); i, m = divmod(r, 3)
    base = [vSt, vAa[2], vBa[2]][s]
    A(f"ds_write_b128 v{base}, {stg_reg(n)} offset:{[XA_O, BRE_O, BIM_O][m] + i*1040}")
ISS = [NPRE]
for n in range(12):
    stg_write(n)
    if ISS[0] < 12 + OPT["wq1"] and n >= 12 - (12 + OPT["wq1"] - NPRE):
        stg_load(ISS[0]); ISS[0] += 1
sync_add(); sync_wait(0)
sstamp(3, 1)
def dma_piece(n, slot):
    i, m = divmod(n % 12, 3)
    if m == 0:
        A(f"s_add_u32 m0, s{sT7}, {slot + XA_O + i*1040 - (i>>1)*1024}")
        A("s_nop 0")
        A(f"buffer_load_dwordx4 v{vXo}, {srd(R_XA)}, s{sT5 if i & 1 else sT4} offen offset:{(i>>1)*1024} lds")
    else:
        A(f"s_add_u32 m0, s{sT7}, {slot + [0, BRE_O, BIM_O][m] + i*16}")
        A("s_nop 0")
        A(f"buffer_load_dwordx4 v{vBo}, {srd([0, R_BRE, R_BIM][m])}, s{sT3} offen offset:{i*1024} lds")
G1B = [FRS, FRS + 12, 64]
def g1_stage(s, extra=None, nwr=None, early_add=None):
    slot = s % 3
    prio(3 if (OPT["g1p"] >> s) & 1 else OPT["gprio"])
    sk = A.newlabel("nod")
    A(f"""
    s_cmp_lg_u32 s{sLOOP}, {s}
    s_cbranch_scc1 {sk}
    ds_read_b128 v[64:67], v{vDa}
    ds_read_b128 v[68:71], v{vDa} offset:32
    s_waitcnt lgkmcnt(0)
    v_mfma_f32_32x32x16_bf16 v[{Y0}:{Y0+15}], v[64:67], v[{DG}:{DG+3}], 0
    v_mfma_f32_32x32x16_bf16 v[{Y0}:{Y0+15}], v[68:71], v[{DG+4}:{DG+7}], v[{Y0}:{Y0+15}]
    {sk}:
    """)
    def rd(k):
        f = G1B[k % 3]
        A(f"ds_read_b128 v[{f}:{f+3}], v{vAa[slot]} offset:{k*32}")
        A(f"ds_read_b128 v[{f+4}:{f+7}], v{vBa[slot]} offset:{k*32}")
        A(f"ds_read_b128 v[{f+8}:{f+11}], v{vBa[slot]} offset:{k*32 + (BIM_O-BRE_O)}")
    rd(0); rd(1)
    for k in range(8):
        f = G1B[k % 3]
        if k + 2 < 8: rd(k + 2)
        nw = nwr(k - 1) if (nwr and k > 0) else 0
        A(f"s_waitcnt lgkmcnt({min(15, 3*(min(8, k + 3) - k - 1) + nw)})")
        if k == 7 and early_add is not None:
            if early_add: A(early_add)
            sync_add(False)
        cr = "0" if (s == 0 and k == 0) else f"v[{UR}:{UR+15}]"
        ci = "0" if (s == 0 and k == 0) else f"v[{UI}:{UI+15}]"
        A(f"v_mfma_f32_32x32x16_bf16 v[{UR}:{UR+15}], v[{f}:{f+3}], v[{f+4}:{f+7}], {cr}")
        if extra: extra(k)
        A(f"v_mfma_f32_32x32x16_bf16 v[{UI}:{UI+15}], v[{f}:{f+3}], v[{f+8}:{f+11}], {ci}")
def issue_more(cnt):
    for n in range(ISS[0], min(36, ISS[0] + cnt)):
        if n < 32: stg_load(n)
        else: dma_piece(n, SLOT[2])
    ISS[0] = min(36, ISS[0] + cnt)
def ex0(k):
    issue_more(-(-(36 - ISS[0]) // (8 - k)))
    if 3 <= k < 7:
        hi = 12 + 3*(k - 3) + 3
        assert ISS[0] >= hi
        A(f"s_waitcnt vmcnt({ISS[0] - hi})")
        for n in range(hi - 3, hi): stg_write(n)
g1_stage(0, ex0, lambda k: 3 if 3 <= k < 6 else 0, early_add="")
assert ISS[0] == 36
sstamp(4, 1)
prio(OPT["vprio"])
g1_soff(3)
sync_wait(0)
def ex1(k):
    if k < 3:
        A(f"s_waitcnt vmcnt({[9, 6, 4][k] + 2*k})")
        for n in range(24 + 3*k, min(32, 27 + 3*k)): stg_write(n)
    for n in range(2*k, min(12, 2*k + 2)): dma_piece(n, SLOT[0])
g1_stage(1, ex1, lambda k: [3, 3, 2][k] if k < 3 else 0, early_add="s_waitcnt vmcnt(12)")
sstamp(5, 1)
prio(OPT["vprio"])
A(f"v_add_u32 v{vAa[2]}, {SLOT[2]}, v{vAa[0]}")
A(f"v_add_u32 v{vBa[2]}, {SLOT[2]}, v{vBa[0]}")
CLR = 64
A(f"""
v_mov_b32 v{CLR}, -1
v_mov_b32 v{CLR+1}, -1
v_mov_b32 v{CLR+2}, -1
v_mov_b32 v{CLR+3}, -1
s_lshl_b32 s{sT0}, s{sG}, 12
s_add_u32 s{sT0}, s{sT0}, s{sOB}
s_lshl_b32 s{sT1}, s{sCW}, 11
s_add_u32 s{sT0}, s{sT0}, s{sT1}
buffer_store_dwordx4 v[{CLR}:{CLR+3}], v{vL16x}, {srd(R_WS)}, s{sT0} offen sc1
buffer_store_dwordx4 v[{CLR}:{CLR+3}], v{vL16x}, {srd(R_WS)}, s{sT0} offen offset:1024 sc1
v_mov_b32 v{CLR+4}, 0
v_mov_b32 v{CLR+5}, s{sTAG}
v_mov_b32 v{CLR+6}, 0
v_mov_b32 v{CLR+7}, s{sTAG}
s_lshl_b32 s{sT1}, s{sID}, 7
s_add_u32 s{sT1}, s{sT1}, {AGG_DUMMY}
s_mov_b64 exec, 1
buffer_store_dwordx4 v[{CLR+4}:{CLR+7}], v{CLR+4}, {srd(R_AGG)}, s{sT1} offen sc1
s_mov_b64 exec, -1
""")
sync_wait(0)
g1_stage(2, early_add="s_waitcnt vmcnt(0)")
sstamp(6, 1)
prio(OPT["vprio"])
pf16([P_LDT, P_DSK], "L_nopfc")
wq_voffset(5, 6, 8, 15)
A(f"""
s_mul_i32 s{sT2}, s{sSW}, {16*1040}
s_lshl_b32 s{sT3}, s{sSW}, 14
s_lshl_b32 s{sT6}, s{sSW}, 17
""")
sync_wait(0)
def wo_piece(i):
    A(f"""
    s_add_u32 m0, s{sT3}, {WO + i*1024}
    s_add_u32 s{sT1}, s{sT6}, {i*8192}
    buffer_load_dwordx4 v5, {srd(R_WO)}, s{sT1} offen lds
    """)
def c_piece(R, base, i):
    A(f"s_add_u32 m0, s{sT2}, {base + i*1040 - (i & 3)*1024}")
    if i & 3 == 0: A(f"s_add_u32 s{sT4}, s{sT3}, {i*1024}")
    else: A("s_nop 0")
    A(f"buffer_load_dwordx4 v{vL16x}, {srd(R)}, s{sT4} offen offset:{(i & 3)*1024} lds")
def ex3(k):
    wo_piece(2*k); wo_piece(2*k + 1)
g1_stage(3, ex3)
sstamp(7, 1); sstamp(1, 2)
prio(OPT["vprio"])
stamp(3)
A(f"""
s_lshl_b32 s{sT0}, s{sTW}, 10
s_lshl_b32 s{sT1}, s{sCW}, 8
s_add_u32 s{sT1}, s{sT1}, {EB}
s_add_u32 s{sT0}, s{sT0}, s{sT1}
v_lshlrev_b32 v10, 3, v{vL31}
v_add_u32 v11, s{sT1}, v10
v_lshl_add_u32 v10, v{vH}, 9, v10
v_add_u32 v10, s{sT0}, v10
""")
A.nop(4)
if OPT["dbg"]:
    A(f"""
    s_lshl_b32 s{sT0}, s{sID}, 2
    s_add_u32 s{sT0}, s{sT0}, s{sSW}
    s_lshl_b32 s{sT0}, s{sT0}, 13
    s_add_u32 s{sT0}, s{sT0}, {DBG}
    v_lshlrev_b32 v12, 2, v{vLANE}
    """)
    for i in range(32):
        A(f"buffer_store_dword v{UR+i}, v12, {srd(R_WS)}, s{sT0} offen")
        A(f"s_add_u32 s{sT0}, s{sT0}, 256")
    A("s_waitcnt vmcnt(0)")
def cstep4(dr, di, pr, pi, l, ur, ui, tr, ti):
    A(f"v_fma_f32 v{tr}, v{l}, v{pr}, v{ur}")
    A(f"v_fma_f32 v{ti}, v{l}, v{pi}, v{ui}")
    A(f"v_fma_f32 v{dr}, -v{l+1}, v{pi}, v{tr}")
    A(f"v_fma_f32 v{di}, v{l+1}, v{pr}, v{ti}")
def p2(r): return f"v[{r}:{r+1}]"
def pkstep(dr, di, pr, pi, l, ur, ui, tr, ti):
    A(f"v_pk_fma_f32 {p2(tr)}, {p2(l)}, {p2(pr)}, {p2(ur)} op_sel_hi:[0,1,1]")
    A(f"v_pk_fma_f32 {p2(ti)}, {p2(l)}, {p2(pi)}, {p2(ui)} op_sel_hi:[0,1,1]")
    A(f"v_pk_fma_f32 {p2(dr)}, {p2(l)}, {p2(pi)}, {p2(tr)} op_sel:[1,0,0] neg_lo:[1,0,0] neg_hi:[1,0,0]")
    A(f"v_pk_fma_f32 {p2(di)}, {p2(l)}, {p2(pr)}, {p2(ti)} op_sel:[1,0,0]")
pa = [(FRS, FRS+2), (6, 8)]
p = (UR, UI)
for j in range(1, 8):
    d = pa[j & 1]
    pkstep(d[0], d[1], p[0], p[1], vL1, UR+2*j, UI+2*j, FRS+4, FRS+6)
    p = d
EA = (6, 8)
cstep4(FRS, FRS+1, 6, 8, vL8, 7, 9, FRS+4, FRS+5)
A(f"ds_write_b64 v10, v[{FRS}:{FRS+1}]")
A("s_waitcnt vmcnt(0)")
sync_add()
LB = 64
A(f"""
s_lshl_b32 s{sT0}, s{sTW}, 4
s_sub_u32 s{sT0}, s{sC}, s{sT0}
s_sub_u32 s{sT0}, s{sT0}, 1
s_lshl_b32 s{sT0}, s{sT0}, 13
v_lshlrev_b32 v5, 16, v{vH}
v_sub_u32 v5, s{sT0}, v5
v_lshl_add_u32 v5, v{vP2}, 3, v5
s_lshl_b32 s{sT1}, s{sID}, 7
s_add_u32 s{sT1}, s{sT1}, {AGG_DUMMY}
""")
for k in range(8):
    A(f"v_min_u32 v{96+k}, s{sT1}, v5")
    if k < 7: A(f"v_add_u32 v5, {(-8192) & 0xffffffff}, v5")
sync_wait(0)
sstamp(2, 2)
E = FRS
for s in range(4):
    A(f"ds_read_b64 v[{E+2*s}:{E+2*s+1}], v11 offset:{s*512}")
A("s_waitcnt lgkmcnt(0)")
A1, A2, G3 = (104, 105), (106, 107), 108
cstep4(A1[0], A1[1], E, E+1, vL16, E+2, E+3, FRS+8, FRS+9)
cstep4(A2[0], A2[1], A1[0], A1[1], vL16, E+4, E+5, FRS+8, FRS+9)
vPR, vPI, vW = 12, 13, 14
tw1 = A.newlabel("tw1"); twd = A.newlabel("twd")
A(f"""
v_cmp_eq_u32 vcc, 1, v{vH}
s_cmp_lg_u32 s{sTW}, 0
s_cbranch_scc1 {tw1}
""")
cstep4(G3, G3+2, A2[0], A2[1], vL16, E+6, E+7, FRS+8, FRS+9)
A(f"""
v_mov_b32 v{G3+1}, s{sTAG}
v_mov_b32 v{G3+3}, s{sTAG}
v_lshlrev_b32 v7, 3, v{vP2}
s_lshl_b32 s{sT0}, s{sC}, 13
s_mov_b32 exec_hi, 0
buffer_store_dwordx4 v[{G3}:{G3+3}], v7, {srd(R_AGG)}, s{sT0} offen sc1
s_mov_b32 exec_hi, -1
v_cndmask_b32 v{vPR}, 0, v{E}, vcc
v_cndmask_b32 v{vPI}, 0, v{E+1}, vcc
v_cndmask_b32 v{vW}, 1.0, v{vL16}, vcc
v_cndmask_b32 v{vW+1}, 0, v{vL16+1}, vcc
s_branch {twd}
{tw1}:
v_cndmask_b32 v{vPR}, v{A1[0]}, v{A2[0]}, vcc
v_cndmask_b32 v{vPI}, v{A1[1]}, v{A2[1]}, vcc
v_mul_f32 v{FRS+8}, v{vL16+1}, v{vL16+1}
v_mul_f32 v{FRS+9}, v{vL16}, v{vL16+1}
v_fma_f32 v{FRS+8}, v{vL16}, v{vL16}, -v{FRS+8}
v_add_f32 v{FRS+9}, v{FRS+9}, v{FRS+9}
v_mul_f32 v{FRS+10}, v{FRS+8}, v{vL16}
v_mul_f32 v{FRS+11}, v{FRS+8}, v{vL16+1}
v_fma_f32 v{FRS+10}, -v{FRS+9}, v{vL16+1}, v{FRS+10}
v_fma_f32 v{FRS+11}, v{FRS+9}, v{vL16}, v{FRS+11}
v_cndmask_b32 v{vW}, v{FRS+8}, v{FRS+10}, vcc
v_cndmask_b32 v{vW+1}, v{FRS+9}, v{FRS+11}, vcc
{twd}:
""")
A(f"s_mov_b32 s{sSPIN}, 0")
A(f"""
s_lshl_b32 s{sT0}, s{sSW}, 12
s_add_u32 s{sT0}, s{sT0}, {TB}
v_lshlrev_b32 v9, 6, v{vL31}
v_lshl_add_u32 v9, v{vH}, 5, v9
v_add_u32 v9, s{sT0}, v9
v_bfe_u32 v108, v{vLANE}, 2, 2
v_lshl_add_u32 v108, v{vH}, 3, v108
v_lshlrev_b32 v108, 6, v108
v_bfe_u32 v109, v{vLANE}, 4, 1
v_lshl_add_u32 v108, v109, 5, v108
v_and_b32 v109, 3, v{vLANE}
v_lshl_add_u32 v108, v109, 3, v108
v_add_u32 v108, s{sT0}, v108
""")
prio(OPT["gprio"])
for i in range(16): c_piece(R_CIM, CIM, i)
prio(OPT["vprio"])
A(f"""
v_bfe_u32 v5, v{vLANE}, 2, 2
v_lshl_add_u32 v5, v{vH}, 2, v5
v_bfe_u32 v7, v{vLANE}, 4, 1
v_and_b32 v110, 3, v{vLANE}
v_lshlrev_b32 v110, 3, v110
v_lshl_add_u32 v110, v7, 5, v110
v_bfe_u32 v7, v{vLANE}, 3, 1
v_lshl_add_u32 v110, v7, 6, v110
v_lshl_add_u32 v110, v5, 7, v110
s_lshl_b32 s{sT0}, s{sCW}, 15
s_add_u32 s{sT0}, s{sT0}, {WO}
s_lshl_b32 s{sT1}, s{sCW}, 6
v_xor_b32 v110, s{sT1}, v110
v_xor_b32 v111, 64, v110
v_add_u32 v110, s{sT0}, v110
v_add_u32 v111, s{sT0}, v111
""")
for j in range(16):
    for nt in range(2):
        f = 8*j + 4*nt
        A(f"ds_read_b64_tr_b16 a[{f}:{f+1}], v{110 + nt} offset:{j*2048}")
        A(f"ds_read_b64_tr_b16 a[{f+2}:{f+3}], v{110 + nt} offset:{j*2048 + 1024}")
    if j % 3 == 2: A("s_waitcnt lgkmcnt(3)")
sstamp(3, 2)

A.label("L_lb")
for k in range(8):
    A(f"buffer_load_dwordx4 v[{LB+4*k}:{LB+4*k+3}], v{96+k}, {srd(R_AGG)}, 0 offen sc1")
A(f"""
s_add_u32 s{sSPIN}, s{sSPIN}, 1
s_waitcnt vmcnt(0)
v_min_u32 v5, v{LB+1}, v{LB+3}
v_max3_u32 v7, s{sTAG}, v{LB+1}, v{LB+3}
""")
for k in range(1, 8):
    A(f"v_min3_u32 v5, v5, v{LB+4*k+1}, v{LB+4*k+3}")
    A(f"v_max3_u32 v7, v7, v{LB+4*k+1}, v{LB+4*k+3}")
A(f"""
v_min_u32 v5, s{sTAG}, v5
v_cmp_ne_u32 vcc, v5, v7
s_cbranch_vccz L_lbd
s_sleep 8
s_cmp_lt_u32 s{sSPIN}, {SPIN_MAX}
s_cbranch_scc1 L_lb
L_lbd:
""")
stamp(4); sstamp(4, 2)
p = (LB+28, LB+30)
pb = [(96, 97), (98, 99)]
for k in range(6, -1, -1):
    d = pb[k & 1]
    cstep4(d[0], d[1], p[0], p[1], vL64, LB+4*k, LB+4*k+2, 100, 101)
    p = d
A(f"ds_write_b64 v10, v[96:97] offset:{HP-EB}")
sync_add(); sync_wait(0)
sstamp(5, 2)
for s in range(4):
    A(f"ds_read_b64 v[{E+2*s}:{E+2*s+1}], v11 offset:{HP - EB + s*512}")
A("s_waitcnt lgkmcnt(0)")
p = (E+6, E+7)
for s in range(2, -1, -1):
    d = pb[s & 1]
    cstep4(d[0], d[1], p[0], p[1], vL512, E+2*s, E+2*s+1, 100, 101)
    p = d
CRp, CIp = 104, 106
cstep4(CRp, CIp, p[0], p[1], vW, vPR, vPI, 100, 101)
cstep4(CRp+1, CIp+1, CRp, CIp, vL8, EA[0], EA[1], 100, 101)
HR, HI = FRS, FRS+8
p = (CRp, CIp)
for j in range(8):
    pkstep(UR+2*j, UI+2*j, p[0], p[1], vL1, UR+2*j, UI+2*j, 100, 102)
    p = (UR+2*j, UI+2*j)
    if OPT['cpos'] == 0: c_piece(R_CRE, CRE, 2*j)
    A(f"v_pk_mul_f32 {p2(96)}, {p2(vCF)}, {p2(UI+2*j)} op_sel:[1,0]")
    A(f"v_pk_mul_f32 {p2(98)}, {p2(vCF)}, {p2(UR+2*j)} op_sel:[1,0]")
    A(f"v_pk_fma_f32 {p2(96)}, {p2(vCF)}, {p2(UR+2*j)}, {p2(96)} op_sel_hi:[0,1,1] neg_lo:[0,0,1] neg_hi:[0,0,1]")
    A(f"v_pk_fma_f32 {p2(98)}, {p2(vCF)}, {p2(UI+2*j)}, {p2(98)} op_sel_hi:[0,1,1] neg_lo:[1,0,1] neg_hi:[1,0,1]")
    if OPT['cpos'] == 0: c_piece(R_CRE, CRE, 2*j + 1)
    A(f"v_cvt_pk_bf16_f32 v{HR+j}, v96, v97")
    A(f"v_cvt_pk_bf16_f32 v{HI+j}, v98, v99")
    if j == 3:
        A(f"ds_write_b128 v9, v[{HR}:{HR+3}]")
        A(f"ds_write_b128 v9, v[{HI}:{HI+3}] offset:2048")
A(f"""
ds_write_b128 v9, v[{HR+4}:{HR+7}] offset:16
ds_write_b128 v9, v[{HI+4}:{HI+7}] offset:2064
s_lshl_b32 s{sKOFF}, s{sC}, 1
s_add_u32 s{sKOFF}, s{sKOFF}, s{sTW}
s_lshl_b32 s{sKOFF}, s{sKOFF}, 16
s_add_u32 s{sKOFF}, s{sKOFF}, {HB}
s_lshl_b32 s{sT1}, s{sG}, 12
s_lshl_b32 s{sT7}, s{sCW}, 11
s_add_u32 s{sT1}, s{sT1}, s{sT7}
s_add_u32 s{sT0}, s{sKOFF}, s{sT1}
s_add_u32 s{sT1}, s{sT0}, 32768
s_waitcnt lgkmcnt(0)
""")
for part in range(2):
    for hf in range(2):
        f = 64 + 8*part + 4*hf
        A(f"ds_read_b64_tr_b16 v[{f}:{f+1}], v108 offset:{part*2048 + hf*1024}")
        A(f"ds_read_b64_tr_b16 v[{f+2}:{f+3}], v108 offset:{part*2048 + hf*1024 + 256}")
for n in range(4):
    A(f"s_waitcnt lgkmcnt({6 - 2*n})")
    A(f"buffer_store_dwordx4 v[{64+4*n}:{67+4*n}], v{vL16x}, {srd(R_WS)}, s{sT0 if n < 2 else sT1} offen offset:{(n&1)*1024} sc1")
A(f"""
s_lshl_b32 s{sT7}, s{sC}, 12
s_add_u32 s{sT7}, s{sT7}, {FL3}
v_and_b32 v5, 15, v{vLANE}
v_lshlrev_b32 v5, 8, v5
s_lshl_b32 s{sT0}, s{sTW}, 7
s_add_u32 s{sT0}, s{sT0}, s{sT7}
v_add_u32 v5, s{sT0}, v5
v_mov_b32 v12, s{sTAG}
v_mov_b32 v13, 0
s_lshl_b32 s{sT1}, s{sG}, 2
s_add_u32 s{sT1}, s{sT1}, s{sSW}
s_lshl_b32 s{sT1}, s{sT1}, 7
s_add_u32 s{sT1}, s{sT1}, s{sT7}
""")
sstamp(6, 2)
A("s_waitcnt vmcnt(0)")
sstamp(7, 2); sstamp(1, 3)
A(f"""
s_mov_b64 exec, 1
buffer_store_dword v12, v13, {srd(R_WS)}, s{sT1} offen sc1
s_mov_b64 exec, -1
""")
if OPT["cpos"] == 0: sync_add(False)
else:
    prio(OPT["gprio"])
    for i in range(16): c_piece(R_CRE, CRE, i)
    prio(OPT["vprio"])
stamp(5, not HST)
A(f"""
v_mul_u32_u24 v10, 1040, v{vL31}
v_lshl_add_u32 v10, v{vH}, 4, v10
s_mul_i32 s{sT0}, s{sCW}, {512 + 32*1040}
s_mul_i32 s{sT1}, s{sCW}, {(512 - 32*1040) & 0xffffffff}
s_add_u32 s{sT1}, s{sT1}, {32*1040}
v_add_u32 v11, s{sT1}, v10
v_add_u32 v10, s{sT0}, v10
v_add_u32 v14, {CRE}, v10
v_add_u32 v15, {CRE}, v11
s_lshl_b32 s{sT1}, s{sCW}, 14
s_add_u32 s{sKOFF}, s{sKOFF}, s{sT1}
s_add_u32 s{sOB}, s{sOB}, s{sT1}
s_xor_b32 s{sT0}, s{sSW}, 2
s_lshl_b32 s{sT0}, s{sT0}, 12
v_add_u32 v114, s{sT0}, v{vL16x}
s_lshl_b32 s{sT0}, s{sSW}, 12
v_add_u32 v115, s{sT0}, v{vL16x}
v_add_u32 v119, {TB}, v114
v_add_u32 v120, {TB}, v115
s_lshl_b32 s{sT0}, s{sTW}, 17
s_lshl_b32 s{sT1}, s{sG}, 8
s_add_u32 s{sT0}, s{sT0}, s{sT1}
s_lshl_b32 s{sT1}, s{sCW}, 7
s_add_u32 s{sT0}, s{sT0}, s{sT1}
v_lshlrev_b32 v113, 2, v{vL31}
v_add_u32 v113, s{sT0}, v113
v_lshl_add_u32 v118, v{vH}, 14, v113
v_add_u32 v118, 2048, v118
v_lshl_add_u32 v113, v{vH}, 13, v113
""")
sstamp(2, 3)
poll_flags(5, 12, 1, sleep=2)
if OPT["cpos"] == 1: sync_add(False)
sstamp(3, 3)
LA = 7
HRING = 16
def hreg(j): return HRING + 4*(j % 8)
def h_ld(j):
    if j == 16: A(f"s_add_u32 s{sKOFF}, s{sKOFF}, {32768 - 3*4096}")
    elif j % 4 == 0 and j > 0: A(f"s_add_u32 s{sKOFF}, s{sKOFF}, 4096")
    A(f"buffer_load_dwordx4 v[{hreg(j)}:{hreg(j)+3}], v{vL16x}, {srd(R_WS)}, s{sKOFF} offen offset:{(j%4)*1024} sc1")
for j in range(LA): h_ld(j)
def g2_rd(j):
    f = FRS + 8*(j % 3)
    A(f"ds_read_b128 v[{f}:{f+3}], v{14 if j < 16 else 10} offset:{(j % 16)*32}")
    A(f"ds_read_b128 v[{f+4}:{f+7}], v{15 if j < 16 else 11} offset:{(j % 16)*32}")
def g2_mfma(j):
    f = FRS + 8*(j % 3)
    c = "0" if j == 0 else f"v[{Y1}:{Y1+15}]"
    A(f"v_mfma_f32_32x32x16_bf16 v[{Y1}:{Y1+15}], v[{hreg(j)}:{hreg(j)+3}], v[{f+4}:{f+7}], {c}")
    A(f"v_mfma_f32_32x32x16_bf16 v[{Y0}:{Y0+15}], v[{hreg(j)}:{hreg(j)+3}], v[{f}:{f+3}], v[{Y0}:{Y0+15}]")
sync_wait(0)
prio(3 if OPT["g2p"] & 1 else OPT["gprio"])
g2_rd(0); g2_rd(1)
VQ = list(range(LA))
for j in range(16):
    h_ld(j + LA); VQ.append(j + LA)
    if j + 2 < 16: g2_rd(j + 2)
    issued = min(16, j + 3)
    A(f"s_waitcnt vmcnt({len(VQ) - 1 - VQ.index(j)}) lgkmcnt({2*(issued - j - 1)})")
    if j == 0: sstamp(4, 3)
    if j == 15: cnt_add(vCNT, vONE, 8)
    g2_mfma(j)
stamp(6, not HST); sstamp(5, 3)
prio(OPT["vprio"])
g2_rd(16); g2_rd(17)
cnt_wait(vCNT, vTMP, 8, 12, sleep=2)
sstamp(6, 3)
prio(3 if OPT["g2p"] & 2 else OPT["gprio"])
for j in range(16, 32):
    if j + LA < 32:
        h_ld(j + LA); VQ.append(j + LA)
    if j + 2 < 32: g2_rd(j + 2)
    issued = min(32, j + 3)
    vm = f"vmcnt({len(VQ) - 1 - VQ.index(j)}) " if j in VQ else ""
    A(f"s_waitcnt {vm}lgkmcnt({2*(issued - j - 1)})")
    g2_mfma(j)
prio(OPT["vprio"])
A.nop(10)
for i in range(4):
    A(f"ds_write_b128 v119, v[{Y1+4*i}:{Y1+4*i+3}] offset:{i*1024}")
sync_add(); sync_wait(0)
for i in range(4):
    A(f"ds_read_b128 v[{Y1+4*i}:{Y1+4*i+3}], v120 offset:{i*1024}")
for i in range(16):
    if i % 4 == 0: A(f"s_waitcnt lgkmcnt({3 - i//4})")
    A(f"v_add_f32 v{Y0+i}, v{Y0+i}, v{Y1+i}")
    A(f"s_mov_b32 s{sT1}, {(16*(i>>3) + 4*((i>>2)&1) + ((i>>1)&1) + 8*(i&1))*4096}")
    A(f"buffer_store_dword v{Y0+i}, v113, {srd(R_OUT)}, s{sT1} offen{OST}")
stamp(7); sstamp(7, 3)
cnt_wait(vCNT, vTMP, 12, 12)
if OPT["odel"]: A(f"s_sleep {OPT['odel']}")
def oreg(j): return (16 + 4*j) if j < 8 else (80 + 4*(j - 8))
for half in range(2):
    lp = A.newlabel("op"); dn = A.newlabel("opd"); ck = A.newlabel("opc")
    def o_loads(hf):
        for j in range(8*hf, 8*hf + 8):
            if j % 4 == 0: A(f"s_add_u32 s{sT1}, s{sOB}, {j*1024}")
            A(f"buffer_load_dwordx4 v[{oreg(j)}:{oreg(j)+3}], v{vL16x}, {srd(R_WS)}, s{sT1} offen offset:{(j%4)*1024} sc1")
    if half == 0:
        o_loads(0); o_loads(1)
        A(f"s_mov_b32 s{sSPIN}, 0")
        A("s_waitcnt vmcnt(8)")
    else:
        A("s_waitcnt vmcnt(0)")
    A(f"s_branch {ck}")
    A.label(lp)
    o_loads(half)
    A("s_waitcnt vmcnt(0)")
    A.label(ck)
    A(f"s_add_u32 s{sSPIN}, s{sSPIN}, 1")
    j0 = 8*half
    A(f"v_max_u32 v13, v{oreg(j0)+1}, v{oreg(j0)+3}")
    for j in range(j0 + 1, j0 + 8):
        A(f"v_max3_u32 v13, v13, v{oreg(j)+1}, v{oreg(j)+3}")
    A(f"""
    v_cmp_eq_u32 vcc, -1, v13
    s_cbranch_vccz {dn}
    s_cmp_lt_u32 s{sSPIN}, 20000
    s_cbranch_scc1 {lp}
    {dn}:
    """)
    for j in range(j0, j0 + 8):
        c0 = "0" if j == 0 else f"v[{Y0}:{Y0+15}]"
        c1 = "0" if j == 0 else f"v[{Y1}:{Y1+15}]"
        A(f"v_mfma_f32_32x32x16_bf16 v[{Y1}:{Y1+15}], v[{oreg(j)}:{oreg(j)+3}], a[{8*j+4}:{8*j+7}], {c1}")
        A(f"v_mfma_f32_32x32x16_bf16 v[{Y0}:{Y0+15}], v[{oreg(j)}:{oreg(j)+3}], a[{8*j}:{8*j+3}], {c0}")
A.nop(11)
for i in range(4):
    A(f"ds_write_b128 v114, v[{Y1+4*i}:{Y1+4*i+3}] offset:{TB2 + i*1024}")
sync_add(); sync_wait(0)
for i in range(4):
    A(f"ds_read_b128 v[{Y1+4*i}:{Y1+4*i+3}], v115 offset:{TB2 + i*1024}")
for i in range(16):
    if i % 4 == 0: A(f"s_waitcnt lgkmcnt({3 - i//4})")
    A(f"v_add_f32 v{Y0+i}, v{Y0+i}, v{Y1+i}")
    A(f"s_mov_b32 s{sT1}, {(8*(i>>2) + (i&3))*4096}")
    A(f"buffer_store_dword v{Y0+i}, v118, {srd(R_OUT)}, s{sT1} offen{OST}")
A("s_branch L_fin")

A.label("L_hot_end")
A.label("L_slow")
A(f"""
s_cmp_lg_u32 s{sDONE}, 0
s_cbranch_scc1 L_fast
s_mov_b32 s{sDONE}, 1
s_waitcnt lgkmcnt(0)
""")
def a_sync():
    A(f"s_add_u32 s{sATG}, s{sATG}, 4")
    A("s_waitcnt lgkmcnt(0)")
    cnt_add(vCNT, 15, 4)
    cnt_wait(vCNT, 16, f"s{sATG}", 4, sleep=2)
for i in range(4): A(f"v_mov_b32 v{vZ+i}, 0")
for ct in range(8): A(f"v_mov_b32 v{vM+ct}, 0xff800000")
A("s_nop 1")
for ct in range(8):
    A(f"v_mfma_f32_32x32x16_bf16 a[{16*ct}:{16*ct+15}], v[{vZ}:{vZ+3}], v[{vZ}:{vZ+3}], 0")
A(f"s_mov_b32 s{sLOOP}, 16")
def adv():
    A(f"s_add_u32 s{sKOFF}, s{sKOFF}, {KVS}"); A(f"s_and_b32 s{sKOFF}, s{sKOFF}, 0xffff")
A.label("L_sl1")
ld_k(0, 0); adv()
A("s_waitcnt vmcnt(0)")
for ct in range(8):
    A(f"v_mfma_f32_32x32x16_bf16 v[{S0}:{S0+15}], v[{KV[0]}:{KV[0]+3}], v[{QF+4*ct}:{QF+4*ct+3}], 0")
    A.nop(12)
    for i in range(8):
        A(f"v_max3_f32 v{vM+ct}, v{S0+2*i}, v{S0+2*i+1}, v{vM+ct}")
A(f"""
s_sub_u32 s{sLOOP}, s{sLOOP}, 1
s_cmp_lg_u32 s{sLOOP}, 0
s_cbranch_scc1 L_sl1
s_lshl_b32 s{sT0}, s{sWAVE}, 11
s_add_u32 s{sT0}, s{sT0}, {CB}
v_lshlrev_b32 v8, 2, v{vLANE}
v_add_u32 v8, s{sT0}, v8
""")
a_sync()
for ct in range(8):
    A(f"ds_write_b32 v8, v{vM+ct} offset:{ct*256}")
a_sync()
A(f"""
v_lshlrev_b32 v8, 2, v{vL31}
v_add_u32 v8, {CB}, v8
""")
for ct in range(8):
    for w in range(4):
        A(f"ds_read_b32 v{S0+2*w}, v8 offset:{w*2048 + ct*256}")
        A(f"ds_read_b32 v{S0+2*w+1}, v8 offset:{w*2048 + ct*256 + 128}")
    A("s_waitcnt lgkmcnt(0)")
    for w in range(4):
        A(f"v_max3_f32 v{vM+ct}, v{S0+2*w}, v{S0+2*w+1}, v{vM+ct}")
a_sync()
A(f"s_mov_b32 s{sLOOP}, 16")
A.label("L_sl2")
ld_k(0, 0); ld_v(0, 0, 0); ld_v(0, 1, 0); adv()
A("s_waitcnt vmcnt(0)")
for ct in range(8):
    A(f"v_mfma_f32_32x32x16_bf16 v[{S0}:{S0+15}], v[{KV[0]}:{KV[0]+3}], v[{QF+4*ct}:{QF+4*ct+3}], 0")
    A.nop(12)
    for i in range(16):
        A(f"v_sub_f32 v{S0+i}, v{S0+i}, v{vM+ct}")
    for i in range(16):
        A(f"v_exp_f32 v{S0+i}, v{S0+i}")
    A.nop(2)
    A(f"v_smfmac_f32_32x32x32_bf16 a[{16*ct}:{16*ct+15}], v[{KV[0]+4}:{KV[0]+7}], v[{S0}:{S0+7}], v{vIDX}")
    A(f"v_smfmac_f32_32x32x32_bf16 a[{16*ct}:{16*ct+15}], v[{KV[0]+8}:{KV[0]+11}], v[{S0+8}:{S0+15}], v{vIDX}")
A(f"""
s_sub_u32 s{sLOOP}, s{sLOOP}, 1
s_cmp_lg_u32 s{sLOOP}, 0
s_cbranch_scc1 L_sl2
s_nop 15
""")
for ct in range(8): part_write(ct)
A(f"""
s_add_u32 s{sATG}, s{sATG}, 4
s_branch L_comb
""")

if OPT["xm"] or OPT["xv"] or OPT["xl"]:
    i0 = A.lines.index("L_S2:"); i1 = A.lines.index("L_hot_end:")
    seen = False
    for i in range(i0, i1):
        t = A.lines[i].strip()
        if t.startswith("ds_write_b128") : seen = True
        if not seen: continue
        if OPT["xm"] and t.startswith("v_mfma"): A.lines[i] = "    s_nop 7"
        if OPT["xv"] and (t.startswith(("v_pk_", "v_fma_f32", "v_cvt_pk", "v_mul_f32", "v_add_f32"))): A.lines[i] = "    s_nop 1"
        if OPT["xl"] and t.startswith(("ds_read_b128", "ds_write_b128")): A.lines[i] = "    s_nop 0"
hdr = open("cdna_kernels/" + NAME + ".s.ref").read().split("; Override launch")[0]
out = hdr + f"""; Fused single-launch kernel: 256 workgroups x 8 waves (4 attention waves + 4 SSM waves). Generated by gen/gen9.py.
; @launch grid=(256,1,1) block=(512,1,1) lds={LDS_BYTES}
.amdgcn_target "amdgcn-amd-amdhsa--gfx950"
.text
.globl {NAME}_kernel
.p2align 8
.type {NAME}_kernel,@function
{NAME}_kernel:
""" + A.text() + f""".section .rodata,"a"
.p2align 6
.amdhsa_kernel {NAME}_kernel
  .amdhsa_next_free_vgpr 256
  .amdhsa_next_free_sgpr 102
  .amdhsa_accum_offset 128
  .amdhsa_group_segment_fixed_size 0
  .amdhsa_kernarg_size 136
  .amdhsa_user_sgpr_count 2
  .amdhsa_user_sgpr_kernarg_segment_ptr 1
  .amdhsa_system_sgpr_workgroup_id_x 1
.end_amdhsa_kernel
"""
open(sys.argv[1], "w").write(out)
errs = check(A.lines) + check(A.lines[loop_end-60:loop_end] + A.lines[loop_start:loop_start+60])
for e in errs: print("HAZARD:", e)
print(f"{len(A.lines)} lines, {len(errs)} hazards")
```

```python
import sys, math, struct
from asmlib import *

OPT = dict(dbg=0, force_slow=0, stamps=0, noS=0, cyc=0, ost=2, gprio=0, vprio=3, hst=0, stgwin=8, pfq=0, pfb=2, stgl=2, qpre=2,
           pfc=1, ssl=2, la=8, sst=0, win0=0, trig=1, odel=0, sgate=2, map84=1, g1p=0, g2p=2, noKV=0, nochk=0, wq1=9, cpos=1, hdbg=0, p2n=8, oack=1, cim1=0, npre0=0, mid=0, sl1=2, sl2=2, sl0=0, ofirst=0, xm=0, xv=0, xl=0, npre=12, lbs=4)
for a in sys.argv[2:]:
    k, v = a.split("=")
    assert k in OPT, k
    OPT[k] = int(v)

NAME = "concat_heads__ssm_conv_s5__grouped_kv_mqa__prompt"
def f2u(x): return struct.unpack("<I", struct.pack("<f", x))[0]

XQ, WQ = 0, 66560
KVX, WKV = 3*16640, 66560 + 3*16384
SLOT = [0, 49920, 99840]
XA_O, BRE_O, BIM_O = 0, 16640, 33280
CIM, CRE = 0, 66560
CB = 66560; CB_T = 2304
TB = CB + 32*CB_T
WO = 66560
TB2 = 0
QX = 149760; EB = 157952; HP = 160000; CNT = 162048; QM = 162064; KM = 162068; CNT4 = 24
assert TB + 16384 <= EB
LDS_BYTES = 163840
FL1, FL3 = 0x1000, 0x9000
KVT = 0x80000; KVS = 4096
AGG = 0x30000; AGG_DUMMY = 32*8192; AGG_SIZE = AGG_DUMMY + 256*128
OB, HB = 0x100000, 0x400000
DBG = 0x1000000
WS_SIZE = 0x2000000
assert AGG + AGG_SIZE <= KVT
sWAVE, sC, sG, sTAG, sID = 3, 4, 5, 6, 7
R_XB, R_WQ, R_WKV, R_XA, R_BRE, R_BIM, R_CRE, R_CIM, R_WO, R_OUT, R_WS, R_AGG = 8, 12, 16, 20, 24, 28, 32, 36, 40, 44, 48, 52
P_LRE, P_LIM, P_LDT, P_DSK, P_WV = 56, 58, 60, 62, 64
sEP, sDONE = 66, 67
sT0, sT1, sT2, sT3, sT4, sT5 = 68, 69, 70, 71, 72, 73
sT6, sSPIN = 74, 75
sTW, sCW = 76, 77
sLOOP, sKOFF, sROT, sSW = 78, 79, 80, 81
sOB, sT7 = 82, 83
sATG = 65
sST = 84
def srd(r): return f"s[{r}:{r+3}]"

A = Asm()
OST = ["", " sc1", " nt", " sc0 sc1"][OPT["ost"]]
SPIN_MAX = 200000
HST = OPT["hst"]

SSEC = [False]
def sstamp(i, mode):
    if OPT["stamps"] and OPT["sst"] == mode:
        A(f"s_memrealtime s[{sST+2*i}:{sST+2*i+1}]")
def stamp(i, cond=True):
    if SSEC[0] and OPT["sst"] and i < 8: return
    if OPT["stamps"] and cond:
        A(f"s_memrealtime s[{sST+2*i}:{sST+2*i+1}]")
def prio(p): A(f"s_setprio {p}")

def cnt_add(vaddr, vone, off=0):
    A(f"""
    s_mov_b64 exec, 1
    {"ds_inc_u32" if vone == vIDX else "ds_add_u32"} v{vaddr}, v{vone} offset:{off}
    s_mov_b64 exec, -1
    """)
def cnt_wait(vaddr, vtmp, target, off=0, sleep=0):
    lp = A.newlabel("sy"); dn = A.newlabel("syd")
    A(f"""
    s_mov_b32 s{sSPIN}, 0
    {lp}:
    ds_read_b32 v{vtmp}, v{vaddr} offset:{off}
    s_add_u32 s{sSPIN}, s{sSPIN}, 1
    s_waitcnt lgkmcnt(0)
    v_readfirstlane_b32 s{sT0}, v{vtmp}
    s_cmp_ge_u32 s{sT0}, {target}
    s_cbranch_scc1 {dn}
    {("s_sleep " + str(sleep)) if sleep else ""}
    s_cmp_lt_u32 s{sSPIN}, {SPIN_MAX}
    s_cbranch_scc1 {lp}
    {dn}:
    """)
NSYNC = [0]
def grp_sync():
    NSYNC[0] += 1
    A("s_waitcnt lgkmcnt(0)")
    cnt_add(vCNT, vONE)
    cnt_wait(vCNT, vTMP, CBASE + 4*NSYNC[0], sleep=OPT['ssl'])

def sync_add(wait_lds=True):
    NSYNC[0] += 1
    if wait_lds: A("s_waitcnt lgkmcnt(0)")
    cnt_add(vCNT, vONE)
def sync_wait(sleep=None):
    cnt_wait(vCNT, vTMP, CBASE + 4*NSYNC[0], sleep=OPT['ssl'] if sleep is None else max(sleep, OPT['sl0']))

def poll_flags(vaddr, vdst, width, sleep=2):
    lp = A.newlabel("pl"); dn = A.newlabel("pld")
    ld = "buffer_load_dword" if width == 1 else f"buffer_load_dwordx{width}"
    A(f"s_mov_b32 s{sSPIN}, 0")
    A.label(lp)
    A(f"""
    {ld} {vr(vdst, width)}, v{vaddr}, {srd(R_WS)}, 0 offen sc1
    s_add_u32 s{sSPIN}, s{sSPIN}, 1
    s_waitcnt vmcnt(0)
    v_cmp_ne_u32 vcc, s{sTAG}, v{vdst}
    s_cbranch_vccz {dn}
    {("s_sleep " + str(sleep)) if sleep else ""}
    s_cmp_lt_u32 s{sSPIN}, {SPIN_MAX}
    s_cbranch_scc1 {lp}
    {dn}:
    """)

def wave_max(v, tmp):
    A("s_nop 1")
    for sh in (1, 2, 4, 8):
        A(f"v_max_f32_dpp v{v}, v{v}, v{v} row_ror:{sh} row_mask:0xf bank_mask:0xf")
        A("s_nop 1")
    A(f"v_mov_b32 v{tmp}, v{v}")
    A("s_nop 1")
    A(f"v_permlane16_swap_b32 v{tmp}, v{v}")
    A(f"v_max_f32 v{v}, v{v}, v{tmp}")
    A(f"v_mov_b32 v{tmp}, v{v}")
    A("s_nop 1")
    A(f"v_permlane32_swap_b32 v{tmp}, v{v}")
    A(f"v_max_f32 v{v}, v{v}, v{tmp}")

def wq_voffset(dst, t0, t1, t2):
    A(f"""
    v_lshrrev_b32 v{t0}, 3, v{vLANE}
    v_and_b32 v{t1}, 7, v{vLANE}
    v_bfe_u32 v{t2}, v{vLANE}, 4, 1
    v_lshlrev_b32 v{t2}, 2, v{t2}
    v_xor_b32 v{t1}, v{t1}, v{t2}
    v_lshlrev_b32 v{t1}, 4, v{t1}
    v_lshl_add_u32 v{dst}, v{t0}, 10, v{t1}
    """)

vLANE, vL31, vH, vL16x = 1, 2, 3, 4
UR, UI, Y0, Y1 = 16, 32, 48, 64
FRS = 80
DG = 104
vL1, vL8, vL16, vL64, vL512, vCF = 112, 114, 116, 118, 120, 122
vCNT, vONE, vTMP, vP2, vDUM = 0, 124, 125, 126, 127
vXo, vBo, vDa, vSt = 5, 6, 7, 8
vAa, vBa = [9, 10, 11], [12, 13, 14]
vPF = 15
STG = 64
PRM = 100
S0, S1 = 16, 32
QF = 48
KV = [80, 92, 104, 116]
vIDX = 7
vM = 104
vZ = 120
vKt, vVt = [5, 8, 9, 10], [6, 12, 14, 15]

A(f"""
s_cmp_ge_u32 s2, 256
s_cbranch_scc1 L_end
""")
stamp(0)
sizes = {R_XB: 65536, R_WKV: 16384, R_WQ: 523392, R_WS: WS_SIZE, R_XA: 65536, R_BRE: 65536, R_BIM: 65536, R_CRE: 65536, R_CIM: 65536,
         R_WO: 523392, R_OUT: 262144, R_AGG: AGG_SIZE}
def kload(lst):
    for r, off in lst:
        A(f"s_load_dwordx2 s[{r}:{r+1}], s[0:1], {off}")
def srd_words(rs):
    for r in rs:
        A(f"s_mov_b32 s{r+2}, {sizes[r]}")
        A(f"s_mov_b32 s{r+3}, 0x20000")
kload([(R_XB, 72), (R_WKV, 88), (P_WV, 96), (R_WQ, 80), (R_WS, 128)])
A(f"""
v_lshrrev_b32 v5, 6, v0
v_and_b32 v{vLANE}, 63, v0
v_readfirstlane_b32 s{sWAVE}, v5
v_lshlrev_b32 v{vL16x}, 4, v{vLANE}
v_bfe_u32 v{vH}, v0, 5, 1
v_and_b32 v{vL31}, 31, v0
v_mov_b32 v0, {CNT}
""")
srd_words([R_XB])
A(f"""
""")
if OPT["map84"]:
    A(f"""
    s_bfe_u32 s{sC}, s2, 0x20001
    s_lshl_b32 s{sC}, s{sC}, 3
    s_bfe_u32 s{sT0}, s2, 0x30003
    s_add_u32 s{sC}, s{sC}, s{sT0}
    s_and_b32 s{sG}, s2, 1
    s_lshl_b32 s{sG}, s{sG}, 2
    s_lshr_b32 s{sT0}, s2, 6
    s_add_u32 s{sG}, s{sG}, s{sT0}
    s_add_u32 s{sROT}, s{sC}, s{sG}
    s_and_b32 s{sROT}, s{sROT}, 3
    """)
else:
    A(f"""
    s_and_b32 s{sC}, s2, 7
    s_lshl_b32 s{sC}, s{sC}, 2
    s_bfe_u32 s{sROT}, s2, 0x20003
    s_add_u32 s{sC}, s{sC}, s{sROT}
    s_lshr_b32 s{sG}, s2, 5
    """)
A(f"""
s_lshl_b32 s{sT2}, s{sC}, 16
s_sub_u32 s{sSW}, s{sWAVE}, 4
s_cbranch_scc1 L_A0
s_load_dwordx4 s[{P_LRE}:{P_LRE+3}], s[0:1], 8
s_load_dwordx4 s[{P_LDT}:{P_LDT+3}], s[0:1], 56
s_setprio 3
v_mov_b32 v20, 0
v_mov_b32 v21, 0
s_lshl_b32 s{sT0}, s{sG}, 6
s_lshl_b32 s{sT1}, s{sSW}, 4
s_and_b32 s{sT1}, s{sT1}, 32
s_add_u32 s{sT0}, s{sT0}, s{sT1}
v_add_lshl_u32 v{vP2}, s{sT0}, v{vL31}, 1
ds_write2_b64 v0, v[20:21], v[20:21] offset0:0 offset1:1
ds_write2_b64 v0, v[20:21], v[20:21] offset0:2 offset1:3
s_mov_b32 s{R_WKV+2}, {sizes[R_WKV]}
s_mov_b32 s{R_WKV+3}, 0x20000
s_lshl_b32 s{sT1}, s{sSW}, 12
s_lshl_b32 s{sT5}, s{sG}, 13
s_and_b32 s{sT5}, s{sT5}, 0xc000
s_add_u32 s{sT5}, s{sT5}, s{sT1}
s_mul_i32 s{sT0}, s{sSW}, 4160
s_add_u32 m0, s{sT1}, {WKV}
s_bitcmp1_b32 s{sG}, 0
s_waitcnt lgkmcnt(0)
s_cselect_b32 s{R_WKV}, s{P_WV}, s{R_WKV}
s_cselect_b32 s{R_WKV+1}, s{P_WV+1}, s{R_WKV+1}
s_add_u32 s{R_XB}, s{R_XB}, s{sT2}
s_addc_u32 s{R_XB+1}, s{R_XB+1}, 0
""")
for i in range(4):
    A(f"buffer_load_dwordx4 v{vL16x}, {srd(R_WKV)}, s{sT1} offen offset:{i*1024} lds")
for i in range(4):
    A(f"s_add_u32 m0, s{sT0}, {KVX + 16*i}")
    A(f"s_load_dword s{sEP}, s[{R_WS}:{R_WS+1}], 0" if i == 0 else "s_nop 0")
    A(f"buffer_load_dwordx4 v{vL16x}, {srd(R_XB)}, s{sT5} offen offset:{i*1024} lds")
A(f"""
s_barrier
global_load_ushort v{PRM}, v{vP2}, s[{P_LRE}:{P_LRE+1}]
global_load_ushort v{PRM+1}, v{vP2}, s[{P_LIM}:{P_LIM+1}]
global_load_ushort v{PRM+2}, v{vP2}, s[{P_LDT}:{P_LDT+1}]
global_load_ushort v{PRM+3}, v{vP2}, s[{P_DSK}:{P_DSK+1}]
s_branch L_S1
L_A0:
""")
def common_scalars():
    kload([(R_OUT, 112)])
    srd_words([R_WS, R_OUT])
    A(f"""
    s_and_b32 s{sTW}, s{sWAVE}, 1
    s_bfe_u32 s{sCW}, s{sWAVE}, 0x10001
    s_lshl_b32 s{sID}, s{sC}, 3
    s_add_u32 s{sID}, s{sID}, s{sG}
    s_mov_b32 s{sDONE}, 0
    s_lshl_b32 s{sOB}, s{sC}, 1
    s_add_u32 s{sOB}, s{sOB}, s{sTW}
    s_lshl_b32 s{sOB}, s{sOB}, 15
    s_add_u32 s{sOB}, s{sOB}, {OB}
    """)
def common_after_wait(tag=True):
    A(f"""
    s_lshl_b32 s{sT0}, s{sC}, 18
    s_add_u32 s{R_OUT}, s{R_OUT}, s{sT0}
    s_addc_u32 s{R_OUT+1}, s{R_OUT+1}, 0
    """)
    if tag: A(f"""
    s_mul_i32 s{sTAG}, s{sEP}, 0x9E3779B1
    s_add_u32 s{sTAG}, s{sTAG}, 0x7F4A7C15
    """)
vWQo, vXQo = 119, 117
A(f"""
v_lshrrev_b32 v6, 4, v{vLANE}
v_and_b32 v7, 15, v{vLANE}
v_lshlrev_b32 v7, 4, v7
v_lshl_add_u32 v{vXQo}, v6, 14, v7
s_mul_i32 s{sT6}, s{sWAVE}, 4160
s_lshl_b32 s{sT7}, s{sWAVE}, 12
""")
srd_words([R_WQ])
wq_voffset(vWQo, 6, 7, 10)
A(f"""
s_lshl_b32 s{sT0}, s{sG}, 7
s_waitcnt lgkmcnt(0)
s_add_u32 s{R_XB}, s{R_XB}, s{sT2}
s_addc_u32 s{R_XB+1}, s{R_XB+1}, 0
s_add_u32 s{R_WQ}, s{R_WQ}, s{sT0}
s_addc_u32 s{R_WQ+1}, s{R_WQ+1}, 0
s_load_dword s{sEP}, s[{R_WS}:{R_WS+1}], 0
s_barrier
""")
stamp(1, HST)
def x_dma(s):
    A(f"""
    s_add_u32 s{sT3}, s{sROT}, {s}
    s_and_b32 s{sT3}, s{sT3}, 3
    s_lshl_b32 s{sT4}, s{sT3}, 8
    s_add_u32 s{sT4}, s{sT4}, s{sT7}
    """)
    for i in range(4):
        A(f"""
        s_add_u32 m0, s{sT6}, {XQ + s*16640 + i*16}
        s_nop 0
        buffer_load_dwordx4 v{vXQo}, {srd(R_XB)}, s{sT4} offen offset:{i*1024} lds
        """)
def wq_dma(s):
    A(f"""
    s_lshl_b32 s{sT3}, s{sT3}, 4
    s_add_u32 s{sT3}, s{sT3}, s{sWAVE}
    s_lshl_b32 s{sT3}, s{sT3}, 13
    s_lshl_b32 s{sT2}, s{sWAVE}, 10
    """)
    for i in range(4):
        A(f"""
        s_add_u32 m0, s{sT2}, {WQ + s*16384 + i*4096}
        s_add_u32 s{sT1}, s{sT3}, {i*32768}
        buffer_load_dwordx4 v{vWQo}, {srd(R_WQ)}, s{sT1} offen lds
        """)
for s in range(OPT["qpre"]):
    x_dma(s); wq_dma(s)
stamp(2 if HST else 1)
A("s_branch L_A1")
A.label("L_S1")
SSEC[0] = True
A(f"""
v_mov_b32 v{vONE}, 1
s_lshl_b32 s{sID}, s{sC}, 3
s_add_u32 s{sID}, s{sID}, s{sG}
s_mov_b32 s{R_WS+2}, {WS_SIZE}
s_mov_b32 s{R_WS+3}, 0x20000
v_lshrrev_b32 v20, 4, v{vLANE}
v_and_b32 v21, 15, v{vLANE}
v_mul_u32_u24 v9, 1040, v21
v_lshl_add_u32 v9, v20, 4, v9
v_add_u32 v9, {KVX}, v9
v_lshrrev_b32 v10, 2, v21
v_lshl_add_u32 v10, v20, 3, v10
v_lshlrev_b32 v10, 5, v10
v_and_b32 v11, 3, v21
v_lshl_add_u32 v10, v11, 3, v10
v_add_u32 v10, {WKV}, v10
s_lshl_b32 s{sT6}, s{sC}, 1
s_lshr_b32 s{sT1}, s{sG}, 2
s_add_u32 s{sT6}, s{sT6}, s{sT1}
s_lshl_b32 s{sT6}, s{sT6}, 12
s_add_u32 s{sT6}, s{sT6}, {KVT}
s_bfe_u32 s{sT7}, s{sG}, 0x10001
s_waitcnt lgkmcnt(0)
s_mul_i32 s{sTAG}, s{sEP}, 0x9E3779B1
s_add_u32 s{sTAG}, s{sTAG}, 0x7F4A7C15
s_waitcnt vmcnt(4)
""")
stamp(6, HST)
cnt_add(vCNT, vONE)
A(f"""
s_cmp_lg_u32 s{sSW}, 0
s_cbranch_scc1 L_S2a
""")
cnt_wait(vCNT, vTMP, 4)
stamp(1)
def kv_rd(k):
    f = 32 + 8*(k % 6)
    A(f"ds_read_b64_tr_b16 v[{f}:{f+1}], v10 offset:{k*1024}")
    A(f"ds_read_b64_tr_b16 v[{f+2}:{f+3}], v10 offset:{k*1024+128}")
    A(f"ds_read_b128 v[{f+4}:{f+7}], v9 offset:{k*64}")
for k in range(4): kv_rd(k)
A(f"s_bitcmp1_b32 s{sG}, 0")
A("s_cbranch_scc1 L_kv_v")
def kv_chain(isv_):
    for k in range(16):
        f = 32 + 8*(k % 6)
        if k + 4 < 16: kv_rd(k + 4)
        issued = min(16, k + 5)
        A(f"s_waitcnt lgkmcnt({3*(issued - k - 1)})")
        c = "0" if k == 0 else "v[28:31]"
        a, b = (f"v[{f}:{f+3}]", f"v[{f+4}:{f+7}]") if not isv_ else (f"v[{f+4}:{f+7}]", f"v[{f}:{f+3}]")
        A(f"v_mfma_f32_16x16x32_bf16 v[28:31], {a}, {b}, {c}")
kv_chain(False)
cnt_add(vCNT, vONE)
A(f"s_mov_b32 s{sT0}, {f2u(0.25 * math.log2(math.e))}")
A(f"""
s_lshl_b32 s{sT7}, s{sT7}, 8
s_add_u32 s{sT6}, s{sT6}, s{sT7}
v_and_b32 v22, 1, v20
v_lshlrev_b32 v22, 9, v22
v_lshl_add_u32 v22, v21, 4, v22
v_lshrrev_b32 v23, 1, v20
v_lshl_add_u32 v22, v23, 3, v22
v_mul_f32 v28, s{sT0}, v28
v_mul_f32 v29, s{sT0}, v29
v_mul_f32 v30, s{sT0}, v30
v_mul_f32 v31, s{sT0}, v31
v_cvt_pk_bf16_f32 v24, v28, v29
v_cvt_pk_bf16_f32 v25, v30, v31
buffer_store_dwordx2 v[24:25], v22, {srd(R_WS)}, s{sT6} offen sc1
v_mul_f32 v16, v28, v28
v_fmac_f32 v16, v29, v29
v_fmac_f32 v16, v30, v30
v_fmac_f32 v16, v31, v31
v_mov_b32 v17, v16
s_nop 1
v_permlane16_swap_b32 v17, v16
v_add_f32 v16, v16, v17
v_mov_b32 v17, v16
s_nop 1
v_permlane32_swap_b32 v17, v16
v_add_f32 v17, v16, v17
""")
wave_max(17, 18)
A("s_branch L_kv_pub")
A.label("L_kv_v")
kv_chain(True)
cnt_add(vCNT, vONE)
A(f"""
s_mul_i32 s{sT7}, s{sT7}, 544
s_add_u32 s{sT6}, s{sT6}, s{sT7}
s_add_u32 s{sT6}, s{sT6}, 1024
v_lshrrev_b32 v22, 1, v20
v_mul_u32_u24 v22, 272, v22
v_and_b32 v23, 1, v20
v_lshl_add_u32 v22, v23, 3, v22
v_lshl_add_u32 v23, v21, 4, v22
v_cvt_pk_bf16_f32 v24, v28, v29
v_cvt_pk_bf16_f32 v25, v30, v31
buffer_store_dwordx2 v[24:25], v23, {srd(R_WS)}, s{sT6} offen sc1
v_mov_b32 v26, 0x3f803f80
v_mov_b32 v27, 0x3f803f80
s_mov_b32 exec_lo, 0x00010001
s_mov_b32 exec_hi, 0x00010001
buffer_store_dwordx2 v[26:27], v22, {srd(R_WS)}, s{sT6} offen offset:256 sc1
s_mov_b64 exec, -1
v_mov_b32 v17, 0
""")
A.label("L_kv_pub")
A(f"""
s_lshl_b32 s{sT0}, s{sID}, 7
s_add_u32 s{sT0}, s{sT0}, {FL1}
v_mov_b32 v16, s{sTAG}
v_mov_b32 v9, 0
s_waitcnt vmcnt(0)
s_mov_b64 exec, 1
buffer_store_dwordx2 v[16:17], v9, {srd(R_WS)}, s{sT0} offen sc1
ds_add_u32 v{vCNT}, v{vONE}
s_mov_b64 exec, -1
""")
stamp(2)
A("s_branch L_S2")
SSEC[0] = False
A.label("L_A1")
for i in range(4): A(f"v_mov_b32 v{vZ+i}, 0")
vXa, vWa, vFl, vQw, vQr, vAone = 8, 9, 10, 14, 15, vIDX
common_scalars()
for ct in range(8):
    A(f"v_mfma_f32_32x32x16_bf16 a[{16*ct}:{16*ct+15}], v[{vZ}:{vZ+3}], v[{vZ}:{vZ+3}], 0")
A(f"""
v_and_b32 v6, 15, v{vL31}
v_mul_u32_u24 v{vXa}, 1040, v6
v_lshl_add_u32 v{vXa}, v{vH}, 4, v{vXa}
v_lshrrev_b32 v6, 4, v{vL31}
v_lshl_add_u32 v{vXa}, v6, 8, v{vXa}
s_lshl_b32 s{sT0}, s{sTW}, 9
v_add_u32 v{vXa}, s{sT0}, v{vXa}
v_bfe_u32 v6, v{vLANE}, 2, 2
v_lshl_add_u32 v6, v{vH}, 3, v6
v_bfe_u32 v7, v{vLANE}, 4, 1
v_and_b32 v11, 3, v{vLANE}
v_lshlrev_b32 v11, 3, v11
v_lshl_add_u32 v11, v7, 5, v11
s_lshl_b32 s{sT0}, s{sCW}, 6
v_add_u32 v11, s{sT0}, v11
v_bfe_u32 v7, v{vLANE}, 3, 1
v_lshlrev_b32 v7, 6, v7
v_xor_b32 v11, v11, v7
v_lshl_add_u32 v{vWa}, v6, 7, v11
v_add_u32 v{vWa}, {WQ}, v{vWa}
s_lshl_b32 s{sT0}, s{sWAVE}, 13
s_add_u32 s{sT0}, s{sT0}, {FL1}
v_lshlrev_b32 v{vFl}, 7, v{vLANE}
v_add_u32 v{vFl}, s{sT0}, v{vFl}
s_lshl_b32 s{sT0}, s{sWAVE}, 16
s_add_u32 s{sT1}, s{sT0}, {KVT}
v_add_u32 v{vKt[0]}, s{sT1}, v{vL16x}
s_add_u32 s{sT1}, s{sT1}, 1024
v_lshlrev_b32 v13, 4, v{vL31}
v_mul_u32_u24 v14, 272, v{vH}
v_add3_u32 v13, v13, v14, s{sT1}
v_cmp_lt_u32 vcc, 16, v{vL31}
v_mov_b32 v14, 0x7ff00000
v_mov_b32 v{vIDX}, 0xdddddddd
v_cndmask_b32 v{vVt[0]}, v13, v14, vcc
s_lshl_b32 s{sKOFF}, s{sROT}, 14
s_lshl_b32 s{sT0}, s{sCW}, 2
s_add_u32 s{sT0}, s{sT0}, s{sTW}
s_lshl_b32 s{sT0}, s{sT0}, 10
s_add_u32 s{sT0}, s{sT0}, {QX}
v_add_u32 v{vQw}, s{sT0}, v{vL16x}
v_add_u32 v{vQr}, {QX}, v{vL16x}
s_waitcnt lgkmcnt(0)
""")
common_after_wait()
QP = OPT["qpre"]
sKVOK = sATG
vFG = 12
def ld_k(b, t, so=sKOFF):
    A(f"buffer_load_dwordx4 v[{KV[b]}:{KV[b]+3}], v{vKt[t]}, {srd(R_WS)}, s{so} offen sc1")
def ld_v(b, j, t, so=sKOFF):
    A(f"buffer_load_dwordx4 v[{KV[b]+4+4*j}:{KV[b]+7+4*j}], v{vVt[t]}, {srd(R_WS)}, s{so} offen offset:{544*j} sc1")
def kv_first():
    for b in range(4):
        A(f"s_add_u32 s{sT1}, s{sKOFF}, {b*KVS}")
        ld_k(b, 0, sT1); ld_v(b, 0, 0, sT1); ld_v(b, 1, 0, sT1)
    A(f"ds_max_f32 v{vCNT}, v{vFG+1} offset:{KM - CNT}")
    if OPT["sgate"] == 2: cnt_add(vCNT, vAone, 12)
def kv_try(tag):
    A(f"""
    v_cmp_ne_u32 vcc, s{sTAG}, v{vFG}
    s_cbranch_vccnz L_kvlate{tag}
    s_mov_b32 s{sKVOK}, 1
    """)
    kv_first()
    A(f"s_branch L_kvq{tag}")
    A.label(f"L_kvlate{tag}")
    flag_ld()
    A.label(f"L_kvq{tag}")
def flag_ld(): A(f"buffer_load_dwordx2 v[{vFG}:{vFG+1}], v{vFl}, {srd(R_WS)}, 0 offen sc1")
def qproj_quarter(s):
    A(f"s_waitcnt vmcnt({8*(min(4, s + QP) - s - 1)})")
    stamp(3 + s, HST)
    cnt_add(vCNT, vAone, 4)
    if s + QP < 4:
        if s + QP == 3: cnt_wait(vCNT, 11, 5)
        x_dma(s + QP); wq_dma(s + QP)
        if s + QP == 3 and OPT["sgate"] == 0: cnt_add(vCNT, vAone, 12)
        if s + QP == 3 and OPT["npre0"]: cnt_add(vCNT, vAone, CNT4)
    if s == 2: flag_ld()
    if s == 3:
        A(f"s_mov_b32 s{sKVOK}, 0")
        kv_try("a")
        if OPT["sgate"] == 1: cnt_add(vCNT, vAone, 12)
    cnt_wait(vCNT, 11, 4*(s + 1), 4)
    def rd(k):
        f = 32 + 8*(k % 6)
        A(f"ds_read_b64_tr_b16 v[{f}:{f+1}], v{vWa} offset:{s*16384 + k*2048}")
        A(f"ds_read_b64_tr_b16 v[{f+2}:{f+3}], v{vWa} offset:{s*16384 + k*2048 + 512}")
        A(f"ds_read_b128 v[{f+4}:{f+7}], v{vXa} offset:{XQ + s*16640 + k*32}")
    for k in range(4): rd(k)
    for k in range(8):
        f = 32 + 8*(k % 6)
        if k + 4 < 8: rd(k + 4)
        issued = min(8, k + 5)
        A(f"s_waitcnt lgkmcnt({3*(issued - k - 1)})")
        c = "0" if (s == 0 and k == 0) else f"v[{S0}:{S0+15}]"
        A(f"v_mfma_f32_32x32x16_bf16 v[{S0}:{S0+15}], v[{f}:{f+3}], v[{f+4}:{f+7}], {c}")
for s in range(4):
    qproj_quarter(s)
A(f"""
s_cmp_lg_u32 s{sKVOK}, 0
s_cbranch_scc1 L_kvqb
s_waitcnt vmcnt(0)
""")
kv_try("b")
A(f"""
s_mul_i32 s{sT6}, s{sWAVE}, {6*CB_T}
s_add_u32 s{sT6}, s{sT6}, {CB}
v_add_u32 v11, s{sT6}, v{vL16x}
s_mov_b32 s{sLOOP}, 4
""")
A.nop(8)
for i in range(8):
    A(f"v_cvt_pk_bf16_f32 v{32+i}, v{S0+2*i}, v{S0+2*i+1}")
    if i == 3: A(f"ds_write_b128 v{vQw}, v[32:35]")
A(f"""
ds_write_b128 v{vQw}, v[36:39] offset:2048
s_waitcnt lgkmcnt(0)
""")
cnt_add(vCNT, vAone, 4)
for hd in range(2):
    A(f"v_mul_f32 v{32+hd}, v{S0+8*hd}, v{S0+8*hd}")
    for i in range(1, 8):
        A(f"v_fmac_f32 v{32+hd}, v{S0+8*hd+i}, v{S0+8*hd+i}")
A(f"""
v_mov_b32 v34, v32
v_mov_b32 v35, v33
v_add_u32 v{vKt[1]}, {KVS}, v{vKt[0]}
v_add_u32 v{vKt[2]}, {2*KVS}, v{vKt[0]}
v_permlane32_swap_b32 v34, v32
v_permlane32_swap_b32 v35, v33
v_add_f32 v32, v32, v34
v_add_f32 v33, v33, v35
v_max_f32 v32, v32, v33
v_add_u32 v{vVt[2]}, {2*KVS}, v{vVt[0]}
ds_max_f32 v{vCNT}, v32 offset:{QM - CNT}
""")
cnt_wait(vCNT, 36, 20, 4)
stamp(7 if HST else 2)
for pr in range(4):
    A(f"s_add_u32 s{sT0}, s{sWAVE}, {pr + 1}")
    A(f"s_and_b32 s{sT0}, s{sT0}, 3")
    A(f"s_lshl_b32 s{sT0}, s{sT0}, 11")
    A(f"v_add_u32 v{37}, s{sT0}, v{vQr}")
    A(f"ds_read_b128 v[{QF+8*pr}:{QF+8*pr+3}], v37")
    A(f"ds_read_b128 v[{QF+8*pr+4}:{QF+8*pr+7}], v37 offset:1024")
A(f"""
s_cmp_lg_u32 s{sKVOK}, 0
s_cbranch_scc1 L_kvgo
s_waitcnt vmcnt(0)
v_cmp_ne_u32 vcc, s{sTAG}, v{vFG}
s_cbranch_vccz L_kvok
""")
poll_flags(vFl, vFG, 2, sleep=0)
A.label("L_kvok")
kv_first()
A.label("L_kvgo")
stamp(3, not HST)
A(f"""
v_add_u32 v{vKt[3]}, {3*KVS}, v{vKt[0]}
v_add_u32 v{vVt[3]}, {3*KVS}, v{vVt[0]}
s_waitcnt vmcnt(9) lgkmcnt(0)
v_mfma_f32_32x32x16_bf16 v[{S0}:{S0+15}], v[{KV[0]}:{KV[0]+3}], v[{QF}:{QF+3}], 0
v_add_u32 v{vVt[1]}, {KVS}, v{vVt[0]}
v_lshlrev_b32 v13, 2, v{vLANE}
v_add_u32 v13, s{sT6}, v13
""")
A.nop(9)
SB = [S0, S1]
LASTSYNC = 8
CBASE = 6
def part_write(ct):
    A(f"ds_write_b128 v11, a[{16*ct}:{16*ct+3}] offset:{ct*CB_T}")
    A(f"ds_write_b128 v11, a[{16*ct+4}:{16*ct+7}] offset:{ct*CB_T + 1024}")
    A(f"ds_write_b32 v13, a{16*ct+8} offset:{ct*CB_T + 2048}")
def period(kb, ct, mode):
    cur = SB[ct & 1]; oth = SB[(ct + 1) & 1]
    pct = (ct - 1) % 8
    pkb = kb if ct > 0 else (kb - 1) % 4
    nct = (ct + 1) % 8
    nkb = kb if ct < 7 else (kb + 1) % 4
    ld = ct == 0 and mode == "loop" and not OPT["noKV"]
    early = mode == "last" and 1 <= ct <= 6
    e = lambda i: A(f"v_exp_f32 v{cur+i}, v{cur+i}")
    e(0); e(1)
    if mode != "first":
        A(f"v_smfmac_f32_32x32x32_bf16 a[{16*pct}:{16*pct+15}], v[{KV[pkb]+8}:{KV[pkb]+11}], v[{oth+8}:{oth+15}], v{vIDX}")
    e(2)
    if (mode, ct) == ("last", 0): A(f"ds_read_b32 v12, v{vCNT} offset:8")
    if (mode, ct) == ("last", 7):
        A("s_waitcnt lgkmcnt(0)")
        cnt_add(vCNT, vIDX, 4)
    e(3)
    if ct == 7 and mode == "loop": A(f"s_waitcnt vmcnt(6)")
    e(4)
    if (mode, ct) != ("last", 7):
        A(f"v_mfma_f32_32x32x16_bf16 v[{oth}:{oth+15}], v[{KV[nkb]}:{KV[nkb]+3}], v[{QF+4*nct}:{QF+4*nct+3}], 0")
    for i in range(5, 10): e(i)
    A(f"v_smfmac_f32_32x32x32_bf16 a[{16*ct}:{16*ct+15}], v[{KV[kb]+4}:{KV[kb]+7}], v[{cur}:{cur+7}], v{vIDX}")
    e(10); e(11)
    e(12)
    if ld: ld_k(pkb, pkb)
    if early: A(f"ds_write_b128 v11, a[{16*(ct-1)}:{16*(ct-1)+3}] offset:{(ct-1)*CB_T}")
    e(13)
    if ld: ld_v(pkb, 0, pkb)
    if (kb, ct, mode) == (0, 1, "loop"): A(f"s_add_u32 s{sKOFF}, s{sKOFF}, {4*KVS}")
    if (kb, ct, mode) == (2, 7, "loop"): A(f"s_sub_u32 s{sLOOP}, s{sLOOP}, 1")
    if early: A(f"ds_write_b128 v11, a[{16*(ct-1)+4}:{16*(ct-1)+7}] offset:{(ct-1)*CB_T + 1024}")
    e(14)
    if ld: ld_v(pkb, 1, pkb)
    if (kb, ct, mode) == (0, 1, "loop"): A(f"s_and_b32 s{sKOFF}, s{sKOFF}, 0xffff")
    if (kb, ct, mode) == (2, 7, "loop"): A(f"s_cmp_eq_u32 s{sLOOP}, 0")
    if early: A(f"ds_write_b32 v13, a{16*(ct-1)+8} offset:{(ct-1)*CB_T + 2048}")
    e(15)
    if mode == "last" and ct == 8 - OPT["trig"] - 1: cnt_add(vCNT, vIDX, 12)
    if (mode, ct) == ("last", 0):
        A(f"""
        s_waitcnt lgkmcnt(0)
        v_readfirstlane_b32 s{sT0}, v12
        s_cmp_ge_u32 s{sT0}, {4 if not (OPT["noS"] or OPT["nochk"]) else 0}
        s_cbranch_scc1 L_sfree
        """)
        cnt_wait(vCNT, 12, 4, 8, sleep=2)
        A.label("L_sfree")
if OPT["cyc"]: A(f"s_memtime s[{sST+10}:{sST+11}]")
period(0, 0, "first")
A("s_branch L_attn1")
A(".p2align 6")
A.label("L_attn")
loop_start = len(A.lines)
for kb in range(4):
    for ct in range(8):
        if (kb, ct) == (0, 1): A.label("L_attn1")
        period(kb, ct, "loop")
    if kb == 2: A("s_cbranch_scc1 L_last")
loop_end = len(A.lines)
A("s_branch L_attn")
A.label("L_last")
for ct in range(8):
    period(3, ct, "last")
A(f"""
s_nop 1
v_smfmac_f32_32x32x32_bf16 a[112:127], v[{KV[3]+8}:{KV[3]+11}], v[{S1+8}:{S1+15}], v{vIDX}
""")
stamp(4, not HST)
if OPT["cyc"]: A(f"s_memtime s[{sST+12}:{sST+13}]")
A(f"s_mov_b32 s{sATG}, 24")
A.label("L_comb")
for k in range(3):
    A(f"""
    s_add_u32 s{sT0}, s{sWAVE}, {k + 1}
    s_and_b32 s{sT0}, s{sT0}, 3
    s_mul_i32 s{sT0}, s{sT0}, {6*CB_T}
    s_add_u32 s{sT0}, s{sT0}, {CB + 2*(2 - k)*CB_T}
    v_add_u32 v{8+k}, s{sT0}, v{vL16x}
    v_lshl_add_u32 v{[12, 14, 15][k]}, v{vL31}, 2, s{sT0}
    """)
A(f"""
s_lshl_b32 s{sT1}, s{sG}, 2
s_add_u32 s{sT1}, s{sT1}, s{sWAVE}
s_lshl_b32 s{sT1}, s{sT1}, 10
s_lshl_b32 s{sT2}, s{sC}, 16
s_add_u32 s{sT1}, s{sT1}, s{sT2}
s_add_u32 s{sT1}, s{sT1}, {OB}
s_add_u32 s{sT2}, s{sT1}, 32768
s_waitcnt vmcnt(0)
""")
cnt_wait(vCNT, 16, f"s{sATG}", 4)
def astamp(i):
    if OPT["cyc"] or HST or not OPT["stamps"]: return
    stamp(i)
astamp(5)
PD = [[16, 24, 32, 40], [80, 88, 96, 104]]
PL = [[112, 113, 114, 115], [116, 117, 118, 119]]
A(f"ds_read_b64 v[120:121], v0 offset:{QM - CNT}")
for u in range(2):
    for k in range(3):
        A(f"ds_read_b32 v{PL[u][k+1]}, v{[12, 14, 15][k]} offset:{u*CB_T + 2048}")
    for k in range(3):
        A(f"ds_read_b128 v[{PD[u][k+1]}:{PD[u][k+1]+3}], v{8+k} offset:{u*CB_T}")
        A(f"ds_read_b128 v[{PD[u][k+1]+4}:{PD[u][k+1]+7}], v{8+k} offset:{u*CB_T + 1024}")
    if u == 0: A("s_waitcnt lgkmcnt(6)")
for u in range(2):
    A(f"v_accvgpr_read_b32 v{PL[u][0]}, a{16*(6+u)+8}")
    A(f"v_accvgpr_read_b32 v{122+u}, a{16*(6+u)+8}")
A(f"""
v_mul_f32 v120, v120, v121
v_add_f32 v113, v113, v114
v_permlane32_swap_b32 v112, v122
v_permlane32_swap_b32 v116, v123
v_cmp_nge_f32 vcc, {f2u(-1.0 if OPT['force_slow'] else 1000.0)}, v120
v_add_f32 v112, v112, v115
v_add_f32 v112, v112, v113
v_rcp_f32 v112, v112
s_cbranch_vccnz L_slow
L_fast:
""")
def comb(u, soff):
    d = PD[u]
    for i in range(8): A(f"v_accvgpr_read_b32 v{d[0]+i}, a{16*(6+u)+i}")
    if u == 0: A("s_waitcnt lgkmcnt(9)")
    else:
        A(f"""
        s_waitcnt lgkmcnt(2)
        v_add_f32 v117, v117, v118
        v_add_f32 v116, v116, v119
        v_add_f32 v116, v116, v117
        v_rcp_f32 v116, v116
        """)
    for i in range(0, 8, 2): A(f"v_pk_add_f32 {p2(d[1]+i)}, {p2(d[1]+i)}, {p2(d[2]+i)}")
    if u == 1: A("s_waitcnt lgkmcnt(0)")
    for i in range(0, 8, 2): A(f"v_pk_add_f32 {p2(d[0]+i)}, {p2(d[0]+i)}, {p2(d[3]+i)}")
    for i in range(0, 8, 2): A(f"v_pk_add_f32 {p2(d[0]+i)}, {p2(d[0]+i)}, {p2(d[1]+i)}")
    for i in range(0, 8, 2):
        A(f"v_pk_mul_f32 {p2(d[0]+i)}, {p2(d[0]+i)}, {p2(PL[u][0])} op_sel_hi:[1,0]")
    for i in range(0, 8, 2):
        A(f"v_cvt_pk_bf16_f32 v{d[1]+i//2}, v{d[0]+i}, v{d[0]+i+1}")
    A(f"buffer_store_dwordx4 v[{d[1]}:{d[1]+3}], v{vL16x}, {srd(R_WS)}, s{soff} offen sc1")
def p2(r): return f"v[{r}:{r+1}]"
comb(0, sT1); comb(1, sT2)
astamp(6)
if OPT["oack"]: A("s_waitcnt vmcnt(0)")
cnt_add(vCNT, vIDX, 12)
A(f"""
s_or_b32 s{sT0}, s2, s{sWAVE}
s_cmp_lg_u32 s{sT0}, 0
s_cbranch_scc1 L_noep
s_add_u32 s{sT0}, s{sEP}, 1
v_mov_b32 v10, s{sT0}
v_mov_b32 v11, 0
s_mov_b64 exec, 1
buffer_store_dword v10, v11, {srd(R_WS)}, 0 offen
s_mov_b64 exec, -1
L_noep:
""")
A.label("L_fin")
if OPT["stamps"]:
    A(f"""
    s_waitcnt vmcnt(0)
    s_memrealtime s[100:101]
    s_waitcnt lgkmcnt(0)
    s_lshl_b32 s{sT0}, s2, 3
    s_add_u32 s{sT0}, s{sT0}, s{sWAVE}
    s_lshl_b32 s{sT0}, s{sT0}, 6
    s_add_u32 s{sT0}, s{sT0}, {DBG + 0x800000}
    v_mov_b32 v11, 0
    """)
    for i in range(9): A(f"v_mov_b32 v{16+i}, s{sST+2*i}")
    A(f"""
    s_mov_b64 exec, 1
    buffer_store_dwordx4 v[16:19], v11, {srd(R_WS)}, s{sT0} offen
    buffer_store_dwordx4 v[20:23], v11, {srd(R_WS)}, s{sT0} offen offset:16
    buffer_store_dword v24, v11, {srd(R_WS)}, s{sT0} offen offset:32
    """)
if OPT["hdbg"]:
    A(f"""
    s_load_dwordx2 s[{sT2}:{sT3}], s[0:1], 120
    s_not_b32 s{sT0}, s{sST}
    v_mov_b32 v30, s{sT0}
    v_mov_b32 v31, 0
    s_waitcnt lgkmcnt(0)
    global_atomic_umax v31, v30, s[{sT2}:{sT3}]
    s_cmp_ge_u32 s{sWAVE}, 4
    s_cbranch_scc1 L_hdS
    """)
    for k, i in enumerate((0, 2, 3, 4, 5, 6, 8)):
        A(f"global_atomic_umax v31, v{16+i}, s[{sT2}:{sT3}] offset:{4*(1+k)}")
    A("s_branch L_end")
    A.label("L_hdS")
    for k, i in enumerate((1, 2, 3, 4, 5, 6, 7, 8)):
        if i in (1, 2):
            A(f"s_cmp_lg_u32 s{sWAVE}, 4")
            A(f"s_cbranch_scc1 L_hd{i}")
        A(f"global_atomic_umax v31, v{16+i}, s[{sT2}:{sT3}] offset:{4*(8+k)}")
        if i in (1, 2): A.label(f"L_hd{i}")
A.label("L_end")
A("s_endpgm")

A.label("L_S2a")
A("s_waitcnt vmcnt(0)")
A.label("L_S2")
SSEC[0] = True
kload([(R_XA, 0), (R_BRE, 24), (R_BIM, 32), (R_CRE, 40), (R_CIM, 48), (R_WO, 104), (R_AGG, 128)])
if OPT["pfc"]:
    A(f"""
    s_cmp_lg_u32 s{sWAVE}, 7
    s_cbranch_scc1 L_nopfcode
    s_getpc_b64 s[{sT0}:{sT1}]
    L_pc:
    s_sub_u32 s{sT0}, s{sT0}, L_pc-{NAME}_kernel
    s_subb_u32 s{sT1}, s{sT1}, 0
    s_lshl_b32 s{sLOOP}, s{sROT}, 13
    v_lshlrev_b32 v16, 7, v{vLANE}
    v_add_u32 v16, s{sLOOP}, v16
    v_min_u32 v16, L_hot_end-{NAME}_kernel-4, v16
    global_load_dword v{vDUM}, v16, s[{sT0}:{sT1}]
    L_nopfcode:
    """)
common_scalars()
srd_words([R_XA, R_BRE, R_BIM, R_CRE, R_CIM, R_WO, R_AGG])
A(f"""
s_lshl_b32 s{sT3}, s{sG}, 7
s_lshl_b32 s{sT4}, s{sG}, 16
s_waitcnt lgkmcnt(0)
s_mov_b64 s[{P_LRE}:{P_LRE+1}], s[{R_BRE}:{R_BRE+1}]
s_mov_b64 s[{P_LIM}:{P_LIM+1}], s[{R_BIM}:{R_BIM+1}]
s_mov_b64 s[{P_LDT}:{P_LDT+1}], s[{R_CRE}:{R_CRE+1}]
s_mov_b64 s[{P_DSK}:{P_DSK+1}], s[{R_CIM}:{R_CIM+1}]
s_mov_b64 s[{P_WV}:{P_WV+1}], s[{R_WO}:{R_WO+1}]
""")
for r, t in ((R_XA, sT2), (R_BRE, sT4), (R_BIM, sT4), (R_CRE, sT4), (R_CIM, sT4), (R_WO, sT3)):
    A(f"s_add_u32 s{r}, s{r}, s{t}")
    A(f"s_addc_u32 s{r+1}, s{r+1}, 0")
A(f"""
s_add_u32 s{R_AGG}, s{R_AGG}, {AGG}
s_addc_u32 s{R_AGG+1}, s{R_AGG+1}, 0
""")
common_after_wait(False)
A(f"""
s_add_u32 s{sROT}, s{sC}, s{sG}
s_and_b32 s{sROT}, s{sROT}, 3
v_lshrrev_b32 v20, 4, v{vLANE}
v_and_b32 v21, 15, v{vLANE}
v_lshlrev_b32 v22, 4, v21
v_lshl_add_u32 v{vBo}, v20, 14, v22
v_lshrrev_b32 v23, 1, v20
v_and_b32 v24, 1, v20
v_lshlrev_b32 v23, 15, v23
v_lshl_add_u32 v23, v24, 12, v23
v_add_u32 v{vXo}, v23, v22
v_lshlrev_b32 v{vPF}, 7, v21
s_lshl_b32 s{sT0}, s2, 11
v_add_u32 v{vPF}, s{sT0}, v{vPF}
""")
LOG2E = math.log2(math.e)
a0, a1, a2, a3, a4, a5 = PRM, PRM+1, PRM+2, 96, 97, 98
vLR, vLI = vL1, vL1 + 1
A(f"""
s_mov_b32 s{sT0}, {f2u(LOG2E)}
v_lshlrev_b32 v{a0}, 16, v{a0}
v_lshlrev_b32 v{a1}, 16, v{a1}
v_lshlrev_b32 v{a2}, 16, v{a2}
v_mul_f32 v{a2}, s{sT0}, v{a2}
v_exp_f32 v{a2}, v{a2}
s_nop 0
v_cvt_pk_bf16_f32 v{a2}, v{a2}, v{a2}
v_and_b32 v{a2}, 0xffff0000, v{a2}
v_mul_f32 v{a3}, v{a2}, v{a0}
v_mul_f32 v{a4}, v{a2}, v{a1}
v_mul_f32 v{a3}, s{sT0}, v{a3}
v_exp_f32 v{a3}, v{a3}
v_mul_f32 v{a4}, 0.15915494, v{a4}
v_fract_f32 v{a4}, v{a4}
v_cos_f32 v{vLR}, v{a4}
v_sin_f32 v{vLI}, v{a4}
s_nop 0
v_mul_f32 v{vLR}, v{a3}, v{vLR}
v_mul_f32 v{vLI}, v{a3}, v{vLI}
v_mul_f32 v{a2}, v{a0}, v{a0}
v_fmac_f32 v{a2}, v{a1}, v{a1}
v_rcp_f32 v{a2}, v{a2}
v_add_f32 v{a3}, -1.0, v{vLR}
v_mul_f32 v{a4}, v{a3}, v{a0}
v_fmac_f32 v{a4}, v{vLI}, v{a1}
v_mul_f32 v{a5}, v{vLI}, v{a0}
v_fma_f32 v{a5}, -v{a3}, v{a1}, v{a5}
v_add_f32 v{a2}, v{a2}, v{a2}
v_mul_f32 v{vCF}, v{a4}, v{a2}
v_mul_f32 v{vCF+1}, v{a5}, v{a2}
""")
def csq(d, s_):
    A(f"v_mul_f32 v{a0}, v{s_+1}, v{s_+1}")
    A(f"v_mul_f32 v{a1}, v{s_}, v{s_+1}")
    A(f"v_fma_f32 v{d}, v{s_}, v{s_}, -v{a0}")
    A(f"v_add_f32 v{d+1}, v{a1}, v{a1}")
csq(vL8, vL1); csq(vL8, vL8); csq(vL8, vL8)
csq(vL16, vL8)
csq(vL64, vL16); csq(vL64, vL64)
csq(vL512, vL64); csq(vL512, vL512); csq(vL512, vL512)
vD = PRM + 3
A(f"""
v_and_b32 v20, 1, v{vL31}
v_lshlrev_b32 v20, 4, v20
v_lshlrev_b32 v{vD}, v20, v{vD}
v_bfe_u32 v20, v{vL31}, 3, 1
v_cmp_eq_u32 vcc, v20, v{vH}
v_bfe_u32 v21, v{vL31}, 1, 2
v_lshrrev_b32 v22, 4, v{vL31}
v_cndmask_b32 v{vD}, 0, v{vD}, vcc
v_lshl_add_u32 v21, v22, 2, v21
""")
for i in range(8):
    A(f"v_cmp_eq_u32 vcc, {i}, v21")
    A("s_nop 1")
    A(f"v_cndmask_b32 v{DG+i}, 0, v{vD}, vcc")
A(f"""
v_and_b32 v20, 15, v{vL31}
v_mul_u32_u24 v20, 1040, v20
v_lshl_add_u32 v20, v{vH}, 4, v20
v_lshrrev_b32 v21, 4, v{vL31}
v_lshl_add_u32 v20, v21, 8, v20
s_lshl_b32 s{sT0}, s{sTW}, 9
v_add_u32 v{vAa[0]}, s{sT0}, v20
v_add_u32 v{vAa[1]}, {SLOT[1]}, v{vAa[0]}
s_lshl_b32 s{sT0}, s{sCW}, 9
s_add_u32 s{sT0}, s{sT0}, {BRE_O}
v_add_u32 v{vBa[0]}, s{sT0}, v20
v_add_u32 v{vBa[1]}, {SLOT[1]}, v{vBa[0]}
v_bfe_u32 v20, v{vL31}, 2, 1
v_lshlrev_b32 v20, 3, v20
v_bfe_u32 v21, v{vL31}, 4, 1
v_lshl_add_u32 v20, v21, 2, v20
v_and_b32 v21, 3, v{vL31}
v_add_u32 v20, v20, v21
v_mul_u32_u24 v20, 1040, v20
v_bfe_u32 v21, v{vL31}, 3, 1
v_lshl_add_u32 v20, v21, 8, v20
v_lshl_add_u32 v20, v{vH}, 4, v20
s_lshl_b32 s{sT0}, s{sTW}, 9
s_and_b32 s{sT1}, s{sG}, 1
s_lshl_b32 s{sT1}, s{sT1}, 7
s_add_u32 s{sT0}, s{sT0}, s{sT1}
s_lshl_b32 s{sT1}, s{sCW}, 6
s_add_u32 s{sT0}, s{sT0}, s{sT1}
s_lshr_b32 s{sLOOP}, s{sG}, 1
s_sub_u32 s{sLOOP}, s{sLOOP}, s{sROT}
s_and_b32 s{sLOOP}, s{sLOOP}, 3
s_mul_i32 s{sT1}, s{sLOOP}, {SLOT[1]}
s_cmp_eq_u32 s{sLOOP}, 3
s_cselect_b32 s{sT1}, 0, s{sT1}
s_add_u32 s{sT0}, s{sT0}, s{sT1}
v_add_u32 v{vDa}, s{sT0}, v20
s_mul_i32 s{sT7}, s{sSW}, {4*1040}
v_add_u32 v{vSt}, s{sT7}, v{vL16x}
v_add_u32 v{vAa[2]}, {SLOT[1]}, v{vSt}
v_add_u32 v{vBa[2]}, {SLOT[2]}, v{vSt}
""")
cnt_wait(vCNT, vTMP, 6, 0, sleep=1)
cnt_wait(vCNT, vTMP, 4, CNT4 if OPT["npre0"] else 12, sleep=1)
if OPT["stgl"] > 2: cnt_wait(vCNT, vTMP, 4*OPT["stgl"], 4, sleep=2)
prio(OPT["gprio"])
sstamp(1, 1)
def pfx(items):
    if OPT["pfb"] != 2: return
    nsh = 8 if OPT["map84"] else 4
    for R, sw, shift in items:
        lbl = A.newlabel("pfx")
        A(f"""
        s_cmp_lg_u32 s{sSW}, {sw}
        s_cbranch_scc1 {lbl}
        s_and_b32 s{sT0}, s{sC}, {nsh - 1}
        s_lshl_b32 s{sT0}, s{sT0}, {shift + 6 + (0 if nsh == 8 else 1)}
        v_lshlrev_b32 v{vPF}, {shift}, v{vLANE}
        buffer_load_dword v{vDUM}, v{vPF}, {srd(R)}, s{sT0} offen
        """)
        if nsh == 4:
            A(f"s_add_u32 s{sT0}, s{sT0}, {64 << shift}")
            A(f"buffer_load_dword v{vDUM}, v{vPF}, {srd(R)}, s{sT0} offen")
        A.label(lbl)
def pf16(pairs, lbl):
    if OPT["pfb"] != 1: return
    A(f"""
    s_cmp_lg_u32 s{sSW}, 1
    s_cbranch_scc1 {lbl}
    s_mov_b64 exec, 0xffff
    """)
    for p in pairs: A(f"global_load_dword v{vDUM}, v{vPF}, s[{p}:{p+1}]")
    A(f"s_mov_b64 exec, -1\n{lbl}:")
pf16([P_LRE, P_LIM, P_WV], "L_nopfb")
def g1_soff(s):
    A(f"""
    s_add_u32 s{sT5}, s{sROT}, {s}
    s_and_b32 s{sT5}, s{sT5}, 3
    s_lshl_b32 s{sT5}, s{sT5}, 8
    s_lshl_b32 s{sT3}, s{sSW}, 12
    s_add_u32 s{sT3}, s{sT3}, s{sT5}
    s_lshl_b32 s{sT4}, s{sTW}, 14
    s_add_u32 s{sT4}, s{sT4}, s{sT5}
    s_lshl_b32 s{sT5}, s{sCW}, 11
    s_add_u32 s{sT4}, s{sT4}, s{sT5}
    s_add_u32 s{sT5}, s{sT4}, 8192
    """)
def stg_reg(n):
    assert n < 32
    return f"a[{4*n}:{4*n+3}]"
def stg_load(n):
    s_, r = divmod(n, 12); i, m = divmod(r, 3)
    if r == 0: g1_soff(s_)
    if m == 0: A(f"buffer_load_dwordx4 {stg_reg(n)}, v{vXo}, {srd(R_XA)}, s{sT5 if i & 1 else sT4} offen offset:{(i>>1)*1024}")
    else: A(f"buffer_load_dwordx4 {stg_reg(n)}, v{vBo}, {srd([0, R_BRE, R_BIM][m])}, s{sT3} offen offset:{i*1024}")
W0 = OPT["win0"]
NPRE = OPT["npre"]
NPRE = max(NPRE, OPT["npre0"])
for n in range(NPRE):
    if OPT["npre0"] and n == OPT["npre0"]: cnt_wait(vCNT, vTMP, 4, 12, sleep=1)
    stg_load(n)
    if W0 and n >= W0: A(f"s_waitcnt vmcnt({W0})")
prio(OPT["vprio"])
A(f"s_waitcnt vmcnt({NPRE - 12})")
sstamp(2, 1)
prio(OPT["vprio"])
if OPT["npre0"] >= NPRE: cnt_wait(vCNT, vTMP, 4, 12, sleep=1)
if OPT["mid"]:
    for n in range(NPRE, NPRE + OPT["mid"]): stg_load(n)
    NPRE += OPT["mid"]
cnt_wait(vCNT, vTMP, 20, 4, sleep=1)
if OPT["noS"]: A("s_branch L_fin")
def stg_write(n):
    s, r = divmod(n, 12); i, m = divmod(r, 3)
    base = [vSt, vAa[2], vBa[2]][s]
    A(f"ds_write_b128 v{base}, {stg_reg(n)} offset:{[XA_O, BRE_O, BIM_O][m] + i*1040}")
ISS = [NPRE]
for n in range(12):
    stg_write(n)
    if ISS[0] < 12 + OPT["wq1"] and n >= 12 - (12 + OPT["wq1"] - NPRE) and ISS[0] < 32:
        stg_load(ISS[0]); ISS[0] += 1
sync_add(); sync_wait(0)
sstamp(3, 1)
def dma_piece(n, slot):
    i, m = divmod(n % 12, 3)
    if m == 0:
        A(f"s_add_u32 m0, s{sT7}, {slot + XA_O + i*1040 - (i>>1)*1024}")
        A("s_nop 0")
        A(f"buffer_load_dwordx4 v{vXo}, {srd(R_XA)}, s{sT5 if i & 1 else sT4} offen offset:{(i>>1)*1024} lds")
    else:
        A(f"s_add_u32 m0, s{sT7}, {slot + [0, BRE_O, BIM_O][m] + i*16}")
        A("s_nop 0")
        A(f"buffer_load_dwordx4 v{vBo}, {srd([0, R_BRE, R_BIM][m])}, s{sT3} offen offset:{i*1024} lds")
G1B = [FRS, FRS + 12, 64]
def g1_stage(s, extra=None, nwr=None, early_add=None):
    slot = s % 3
    prio(3 if (OPT["g1p"] >> s) & 1 else OPT["gprio"])
    sk = A.newlabel("nod")
    A(f"""
    s_cmp_lg_u32 s{sLOOP}, {s}
    s_cbranch_scc1 {sk}
    ds_read_b128 v[64:67], v{vDa}
    ds_read_b128 v[68:71], v{vDa} offset:32
    s_waitcnt lgkmcnt(0)
    v_mfma_f32_32x32x16_bf16 v[{Y0}:{Y0+15}], v[64:67], v[{DG}:{DG+3}], 0
    v_mfma_f32_32x32x16_bf16 v[{Y0}:{Y0+15}], v[68:71], v[{DG+4}:{DG+7}], v[{Y0}:{Y0+15}]
    {sk}:
    """)
    def rd(k):
        f = G1B[k % 3]
        A(f"ds_read_b128 v[{f}:{f+3}], v{vAa[slot]} offset:{k*32}")
        A(f"ds_read_b128 v[{f+4}:{f+7}], v{vBa[slot]} offset:{k*32}")
        A(f"ds_read_b128 v[{f+8}:{f+11}], v{vBa[slot]} offset:{k*32 + (BIM_O-BRE_O)}")
    rd(0); rd(1)
    for k in range(8):
        f = G1B[k % 3]
        if k + 2 < 8: rd(k + 2)
        nw = nwr(k - 1) if (nwr and k > 0) else 0
        A(f"s_waitcnt lgkmcnt({min(15, 3*(min(8, k + 3) - k - 1) + nw)})")
        if k == 7 and early_add is not None:
            if early_add: A(early_add)
            sync_add(False)
        cr = "0" if (s == 0 and k == 0) else f"v[{UR}:{UR+15}]"
        ci = "0" if (s == 0 and k == 0) else f"v[{UI}:{UI+15}]"
        A(f"v_mfma_f32_32x32x16_bf16 v[{UR}:{UR+15}], v[{f}:{f+3}], v[{f+4}:{f+7}], {cr}")
        if extra: extra(k)
        A(f"v_mfma_f32_32x32x16_bf16 v[{UI}:{UI+15}], v[{f}:{f+3}], v[{f+8}:{f+11}], {ci}")
def issue_more(cnt):
    for n in range(ISS[0], min(36, ISS[0] + cnt)):
        if n < 32: stg_load(n)
        else: dma_piece(n, SLOT[2])
    ISS[0] = min(36, ISS[0] + cnt)
def ex0(k):
    issue_more(-(-(36 - ISS[0]) // (8 - k)))
    if 3 <= k < 7:
        hi = 12 + 3*(k - 3) + 3
        assert ISS[0] >= hi
        A(f"s_waitcnt vmcnt({ISS[0] - hi})")
        for n in range(hi - 3, hi): stg_write(n)
g1_stage(0, ex0, lambda k: 3 if 3 <= k < 6 else 0, early_add="")
assert ISS[0] == 36
sstamp(4, 1)
prio(OPT["vprio"])
g1_soff(3)
pfx([(R_WO, 1, 10)])
sync_wait(0)
def ex1(k):
    if k < 3:
        A(f"s_waitcnt vmcnt({[9, 6, 4][k] + 2*k})")
        for n in range(24 + 3*k, min(32, 27 + 3*k)): stg_write(n)
    for n in range(2*k, min(12, 2*k + 2)): dma_piece(n, SLOT[0])
g1_stage(1, ex1, lambda k: [3, 3, 2][k] if k < 3 else 0, early_add="s_waitcnt vmcnt(12)")
sstamp(5, 1)
prio(OPT["vprio"])
A(f"v_add_u32 v{vAa[2]}, {SLOT[2]}, v{vAa[0]}")
A(f"v_add_u32 v{vBa[2]}, {SLOT[2]}, v{vBa[0]}")
CLR = 64
A(f"""
v_mov_b32 v{CLR}, -1
v_mov_b32 v{CLR+1}, -1
v_mov_b32 v{CLR+2}, -1
v_mov_b32 v{CLR+3}, -1
s_lshl_b32 s{sT0}, s{sG}, 12
s_add_u32 s{sT0}, s{sT0}, s{sOB}
s_lshl_b32 s{sT1}, s{sCW}, 11
s_add_u32 s{sT0}, s{sT0}, s{sT1}
buffer_store_dwordx4 v[{CLR}:{CLR+3}], v{vL16x}, {srd(R_WS)}, s{sT0} offen sc1
buffer_store_dwordx4 v[{CLR}:{CLR+3}], v{vL16x}, {srd(R_WS)}, s{sT0} offen offset:1024 sc1
v_mov_b32 v{CLR+4}, 0
v_mov_b32 v{CLR+5}, s{sTAG}
v_mov_b32 v{CLR+6}, 0
v_mov_b32 v{CLR+7}, s{sTAG}
s_lshl_b32 s{sT1}, s{sID}, 7
s_add_u32 s{sT1}, s{sT1}, {AGG_DUMMY}
s_mov_b64 exec, 1
buffer_store_dwordx4 v[{CLR+4}:{CLR+7}], v{CLR+4}, {srd(R_AGG)}, s{sT1} offen sc1
s_mov_b64 exec, -1
""")
sync_wait(0)
g1_stage(2, early_add="s_waitcnt vmcnt(0)")
sstamp(6, 1)
prio(OPT["vprio"])
pf16([P_LDT, P_DSK], "L_nopfc")
pfx([(R_CRE, 2, 7), (R_CIM, 3, 7)])
wq_voffset(5, 6, 8, 15)
A(f"""
s_mul_i32 s{sT2}, s{sSW}, {16*1040}
s_lshl_b32 s{sT3}, s{sSW}, 14
s_lshl_b32 s{sT6}, s{sSW}, 17
""")
sync_wait(0)
def wo_piece(i):
    A(f"""
    s_add_u32 m0, s{sT3}, {WO + i*1024}
    s_add_u32 s{sT1}, s{sT6}, {i*8192}
    buffer_load_dwordx4 v5, {srd(R_WO)}, s{sT1} offen lds
    """)
def c_piece(R, base, i):
    A(f"s_add_u32 m0, s{sT2}, {base + i*1040 - (i & 3)*1024}")
    if i & 3 == 0: A(f"s_add_u32 s{sT4}, s{sT3}, {i*1024}")
    else: A("s_nop 0")
    A(f"buffer_load_dwordx4 v{vL16x}, {srd(R)}, s{sT4} offen offset:{(i & 3)*1024} lds")
def ex3(k):
    wo_piece(2*k); wo_piece(2*k + 1)
g1_stage(3, ex3)
sstamp(7, 1); sstamp(1, 2)
prio(OPT["vprio"])
stamp(3)
A(f"""
s_lshl_b32 s{sT0}, s{sTW}, 10
s_lshl_b32 s{sT1}, s{sCW}, 8
s_add_u32 s{sT1}, s{sT1}, {EB}
s_add_u32 s{sT0}, s{sT0}, s{sT1}
v_lshlrev_b32 v10, 3, v{vL31}
v_add_u32 v11, s{sT1}, v10
v_lshl_add_u32 v10, v{vH}, 9, v10
v_add_u32 v10, s{sT0}, v10
""")
A.nop(4)
if OPT["dbg"]:
    A(f"""
    s_lshl_b32 s{sT0}, s{sID}, 2
    s_add_u32 s{sT0}, s{sT0}, s{sSW}
    s_lshl_b32 s{sT0}, s{sT0}, 13
    s_add_u32 s{sT0}, s{sT0}, {DBG}
    v_lshlrev_b32 v12, 2, v{vLANE}
    """)
    for i in range(32):
        A(f"buffer_store_dword v{UR+i}, v12, {srd(R_WS)}, s{sT0} offen")
        A(f"s_add_u32 s{sT0}, s{sT0}, 256")
    A("s_waitcnt vmcnt(0)")
def cstep4(dr, di, pr, pi, l, ur, ui, tr, ti):
    A(f"v_fma_f32 v{tr}, v{l}, v{pr}, v{ur}")
    A(f"v_fma_f32 v{ti}, v{l}, v{pi}, v{ui}")
    A(f"v_fma_f32 v{dr}, -v{l+1}, v{pi}, v{tr}")
    A(f"v_fma_f32 v{di}, v{l+1}, v{pr}, v{ti}")
def p2(r): return f"v[{r}:{r+1}]"
def pkstep(dr, di, pr, pi, l, ur, ui, tr, ti):
    A(f"v_pk_fma_f32 {p2(tr)}, {p2(l)}, {p2(pr)}, {p2(ur)} op_sel_hi:[0,1,1]")
    A(f"v_pk_fma_f32 {p2(ti)}, {p2(l)}, {p2(pi)}, {p2(ui)} op_sel_hi:[0,1,1]")
    A(f"v_pk_fma_f32 {p2(dr)}, {p2(l)}, {p2(pi)}, {p2(tr)} op_sel:[1,0,0] neg_lo:[1,0,0] neg_hi:[1,0,0]")
    A(f"v_pk_fma_f32 {p2(di)}, {p2(l)}, {p2(pr)}, {p2(ti)} op_sel:[1,0,0]")
pa = [(FRS, FRS+2), (6, 8)]
p = (UR, UI)
for j in range(1, 8):
    d = pa[j & 1]
    pkstep(d[0], d[1], p[0], p[1], vL1, UR+2*j, UI+2*j, FRS+4, FRS+6)
    p = d
EA = (6, 8)
cstep4(FRS, FRS+1, 6, 8, vL8, 7, 9, FRS+4, FRS+5)
A(f"ds_write_b64 v10, v[{FRS}:{FRS+1}]")
A("s_waitcnt vmcnt(0)")
sync_add()
LB = 64
A(f"""
s_lshl_b32 s{sT0}, s{sTW}, 4
s_sub_u32 s{sT0}, s{sC}, s{sT0}
s_sub_u32 s{sT0}, s{sT0}, 1
s_lshl_b32 s{sT0}, s{sT0}, 13
v_lshlrev_b32 v5, 16, v{vH}
v_sub_u32 v5, s{sT0}, v5
v_lshl_add_u32 v5, v{vP2}, 3, v5
s_lshl_b32 s{sT1}, s{sID}, 7
s_add_u32 s{sT1}, s{sT1}, {AGG_DUMMY}
""")
for k in range(8):
    A(f"v_min_u32 v{96+k}, s{sT1}, v5")
    if k < 7: A(f"v_add_u32 v5, {(-8192) & 0xffffffff}, v5")
sync_wait(0)
sstamp(2, 2)
E = FRS
for s in range(4):
    A(f"ds_read_b64 v[{E+2*s}:{E+2*s+1}], v11 offset:{s*512}")
A("s_waitcnt lgkmcnt(0)")
A1, A2, G3 = (104, 105), (106, 107), 108
cstep4(A1[0], A1[1], E, E+1, vL16, E+2, E+3, FRS+8, FRS+9)
cstep4(A2[0], A2[1], A1[0], A1[1], vL16, E+4, E+5, FRS+8, FRS+9)
vPR, vPI, vW = 12, 13, 14
tw1 = A.newlabel("tw1"); twd = A.newlabel("twd")
A(f"""
v_cmp_eq_u32 vcc, 1, v{vH}
s_cmp_lg_u32 s{sTW}, 0
s_cbranch_scc1 {tw1}
""")
cstep4(G3, G3+2, A2[0], A2[1], vL16, E+6, E+7, FRS+8, FRS+9)
A(f"""
v_mov_b32 v{G3+1}, s{sTAG}
v_mov_b32 v{G3+3}, s{sTAG}
v_lshlrev_b32 v7, 3, v{vP2}
s_lshl_b32 s{sT0}, s{sC}, 13
s_mov_b32 exec_hi, 0
buffer_store_dwordx4 v[{G3}:{G3+3}], v7, {srd(R_AGG)}, s{sT0} offen sc1
s_mov_b32 exec_hi, -1
v_cndmask_b32 v{vPR}, 0, v{E}, vcc
v_cndmask_b32 v{vPI}, 0, v{E+1}, vcc
v_cndmask_b32 v{vW}, 1.0, v{vL16}, vcc
v_cndmask_b32 v{vW+1}, 0, v{vL16+1}, vcc
s_branch {twd}
{tw1}:
v_cndmask_b32 v{vPR}, v{A1[0]}, v{A2[0]}, vcc
v_cndmask_b32 v{vPI}, v{A1[1]}, v{A2[1]}, vcc
v_mul_f32 v{FRS+8}, v{vL16+1}, v{vL16+1}
v_mul_f32 v{FRS+9}, v{vL16}, v{vL16+1}
v_fma_f32 v{FRS+8}, v{vL16}, v{vL16}, -v{FRS+8}
v_add_f32 v{FRS+9}, v{FRS+9}, v{FRS+9}
v_mul_f32 v{FRS+10}, v{FRS+8}, v{vL16}
v_mul_f32 v{FRS+11}, v{FRS+8}, v{vL16+1}
v_fma_f32 v{FRS+10}, -v{FRS+9}, v{vL16+1}, v{FRS+10}
v_fma_f32 v{FRS+11}, v{FRS+9}, v{vL16}, v{FRS+11}
v_cndmask_b32 v{vW}, v{FRS+8}, v{FRS+10}, vcc
v_cndmask_b32 v{vW+1}, v{FRS+9}, v{FRS+11}, vcc
{twd}:
""")
A(f"s_mov_b32 s{sSPIN}, 0")
A(f"""
s_lshl_b32 s{sT0}, s{sSW}, 12
s_add_u32 s{sT0}, s{sT0}, {TB}
v_lshlrev_b32 v9, 6, v{vL31}
v_lshl_add_u32 v9, v{vH}, 5, v9
v_add_u32 v9, s{sT0}, v9
v_bfe_u32 v108, v{vLANE}, 2, 2
v_lshl_add_u32 v108, v{vH}, 3, v108
v_lshlrev_b32 v108, 6, v108
v_bfe_u32 v109, v{vLANE}, 4, 1
v_lshl_add_u32 v108, v109, 5, v108
v_and_b32 v109, 3, v{vLANE}
v_lshl_add_u32 v108, v109, 3, v108
v_add_u32 v108, s{sT0}, v108
""")
A(f"""
v_bfe_u32 v5, v{vLANE}, 2, 2
v_lshl_add_u32 v5, v{vH}, 2, v5
v_bfe_u32 v7, v{vLANE}, 4, 1
v_and_b32 v110, 3, v{vLANE}
v_lshlrev_b32 v110, 3, v110
v_lshl_add_u32 v110, v7, 5, v110
v_bfe_u32 v7, v{vLANE}, 3, 1
v_lshl_add_u32 v110, v7, 6, v110
v_lshl_add_u32 v110, v5, 7, v110
s_lshl_b32 s{sT0}, s{sCW}, 15
s_add_u32 s{sT0}, s{sT0}, {WO}
s_lshl_b32 s{sT1}, s{sCW}, 6
v_xor_b32 v110, s{sT1}, v110
v_xor_b32 v111, 64, v110
v_add_u32 v110, s{sT0}, v110
v_add_u32 v111, s{sT0}, v111
""")
for j in range(16):
    for nt in range(2):
        f = 8*j + 4*nt
        A(f"ds_read_b64_tr_b16 a[{f}:{f+1}], v{110 + nt} offset:{j*2048}")
        A(f"ds_read_b64_tr_b16 a[{f+2}:{f+3}], v{110 + nt} offset:{j*2048 + 1024}")
    if j % 3 == 2: A("s_waitcnt lgkmcnt(3)")
prio(OPT["gprio"])
for i in range(OPT["cim1"]): c_piece(R_CIM, CIM, i)
prio(OPT["vprio"])
sstamp(3, 2)
A.label("L_lb")
for k in range(8):
    A(f"buffer_load_dwordx4 v[{LB+4*k}:{LB+4*k+3}], v{96+k}, {srd(R_AGG)}, 0 offen sc1")
A(f"""
s_add_u32 s{sSPIN}, s{sSPIN}, 1
s_waitcnt vmcnt(0)
v_min_u32 v5, v{LB+1}, v{LB+3}
v_max3_u32 v7, s{sTAG}, v{LB+1}, v{LB+3}
""")
for k in range(1, 8):
    A(f"v_min3_u32 v5, v5, v{LB+4*k+1}, v{LB+4*k+3}")
    A(f"v_max3_u32 v7, v7, v{LB+4*k+1}, v{LB+4*k+3}")
A(f"""
v_min_u32 v5, s{sTAG}, v5
v_cmp_ne_u32 vcc, v5, v7
s_cbranch_vccz L_lbd
s_sleep 8
s_cmp_lt_u32 s{sSPIN}, {SPIN_MAX}
s_cbranch_scc1 L_lb
L_lbd:
""")
stamp(4); sstamp(4, 2)
p = (LB+28, LB+30)
pb = [(96, 97), (98, 99)]
for k in range(6, -1, -1):
    d = pb[k & 1]
    cstep4(d[0], d[1], p[0], p[1], vL64, LB+4*k, LB+4*k+2, 100, 101)
    p = d
A(f"ds_write_b64 v10, v[96:97] offset:{HP-EB}")
sync_add(); sync_wait(0)
sstamp(5, 2)
for s in range(4):
    A(f"ds_read_b64 v[{E+2*s}:{E+2*s+1}], v11 offset:{HP - EB + s*512}")
A("s_waitcnt lgkmcnt(0)")
p = (E+6, E+7)
for s in range(2, -1, -1):
    d = pb[s & 1]
    cstep4(d[0], d[1], p[0], p[1], vL512, E+2*s, E+2*s+1, 100, 101)
    p = d
CRp, CIp = 104, 106
cstep4(CRp, CIp, p[0], p[1], vW, vPR, vPI, 100, 101)
cstep4(CRp+1, CIp+1, CRp, CIp, vL8, EA[0], EA[1], 100, 101)
HR, HI = FRS, FRS+8
p = (CRp, CIp)
for j in range(8):
    pkstep(UR+2*j, UI+2*j, p[0], p[1], vL1, UR+2*j, UI+2*j, 100, 102)
    p = (UR+2*j, UI+2*j)
    if OPT['cpos'] == 0: c_piece(R_CRE, CRE, 2*j)
    A(f"v_pk_mul_f32 {p2(96)}, {p2(vCF)}, {p2(UI+2*j)} op_sel:[1,0]")
    A(f"v_pk_mul_f32 {p2(98)}, {p2(vCF)}, {p2(UR+2*j)} op_sel:[1,0]")
    A(f"v_pk_fma_f32 {p2(96)}, {p2(vCF)}, {p2(UR+2*j)}, {p2(96)} op_sel_hi:[0,1,1] neg_lo:[0,0,1] neg_hi:[0,0,1]")
    A(f"v_pk_fma_f32 {p2(98)}, {p2(vCF)}, {p2(UI+2*j)}, {p2(98)} op_sel_hi:[0,1,1] neg_lo:[1,0,1] neg_hi:[1,0,1]")
    if OPT['cpos'] == 0: c_piece(R_CRE, CRE, 2*j + 1)
    A(f"v_cvt_pk_bf16_f32 v{HR+j}, v96, v97")
    A(f"v_cvt_pk_bf16_f32 v{HI+j}, v98, v99")
    if j == 3:
        A(f"ds_write_b128 v9, v[{HR}:{HR+3}]")
        A(f"ds_write_b128 v9, v[{HI}:{HI+3}] offset:2048")
A(f"""
ds_write_b128 v9, v[{HR+4}:{HR+7}] offset:16
ds_write_b128 v9, v[{HI+4}:{HI+7}] offset:2064
s_lshl_b32 s{sKOFF}, s{sC}, 1
s_add_u32 s{sKOFF}, s{sKOFF}, s{sTW}
s_lshl_b32 s{sKOFF}, s{sKOFF}, 16
s_add_u32 s{sKOFF}, s{sKOFF}, {HB}
s_lshl_b32 s{sT1}, s{sG}, 12
s_lshl_b32 s{sT7}, s{sCW}, 11
s_add_u32 s{sT1}, s{sT1}, s{sT7}
s_add_u32 s{sT0}, s{sKOFF}, s{sT1}
s_add_u32 s{sT1}, s{sT0}, 32768
s_waitcnt lgkmcnt(0)
""")
for part in range(2):
    for hf in range(2):
        f = 64 + 8*part + 4*hf
        A(f"ds_read_b64_tr_b16 v[{f}:{f+1}], v108 offset:{part*2048 + hf*1024}")
        A(f"ds_read_b64_tr_b16 v[{f+2}:{f+3}], v108 offset:{part*2048 + hf*1024 + 256}")
for n in range(4):
    A(f"s_waitcnt lgkmcnt({6 - 2*n})")
    A(f"buffer_store_dwordx4 v[{64+4*n}:{67+4*n}], v{vL16x}, {srd(R_WS)}, s{sT0 if n < 2 else sT1} offen offset:{(n&1)*1024} sc1")
A(f"""
s_lshl_b32 s{sT7}, s{sC}, 12
s_add_u32 s{sT7}, s{sT7}, {FL3}
v_and_b32 v5, 15, v{vLANE}
v_lshlrev_b32 v5, 8, v5
s_lshl_b32 s{sT0}, s{sTW}, 7
s_add_u32 s{sT0}, s{sT0}, s{sT7}
v_add_u32 v5, s{sT0}, v5
v_mov_b32 v12, s{sTAG}
v_mov_b32 v13, 0
s_lshl_b32 s{sT1}, s{sG}, 2
s_add_u32 s{sT1}, s{sT1}, s{sSW}
s_lshl_b32 s{sT1}, s{sT1}, 7
s_add_u32 s{sT1}, s{sT1}, s{sT7}
""")
sstamp(6, 2)
A("s_waitcnt vmcnt(0)")
sstamp(7, 2); sstamp(1, 3)
A(f"""
s_mov_b64 exec, 1
buffer_store_dword v12, v13, {srd(R_WS)}, s{sT1} offen sc1
s_mov_b64 exec, -1
""")
if OPT["cpos"] == 0: sync_add(False)
else:
    prio(OPT["gprio"])
    for i in range(16): c_piece(R_CRE, CRE, i)
    prio(OPT["vprio"])
stamp(5, not HST)
A(f"""
v_mul_u32_u24 v10, 1040, v{vL31}
v_lshl_add_u32 v10, v{vH}, 4, v10
s_mul_i32 s{sT0}, s{sCW}, {512 + 32*1040}
s_mul_i32 s{sT1}, s{sCW}, {(512 - 32*1040) & 0xffffffff}
s_add_u32 s{sT1}, s{sT1}, {32*1040}
v_add_u32 v11, s{sT1}, v10
v_add_u32 v10, s{sT0}, v10
v_add_u32 v14, {CRE}, v10
v_add_u32 v15, {CRE}, v11
s_lshl_b32 s{sT1}, s{sCW}, 14
s_add_u32 s{sKOFF}, s{sKOFF}, s{sT1}
s_add_u32 s{sOB}, s{sOB}, s{sT1}
s_xor_b32 s{sT0}, s{sSW}, 2
s_lshl_b32 s{sT0}, s{sT0}, 12
v_add_u32 v114, s{sT0}, v{vL16x}
s_lshl_b32 s{sT0}, s{sSW}, 12
v_add_u32 v115, s{sT0}, v{vL16x}
v_add_u32 v119, {TB}, v114
v_add_u32 v120, {TB}, v115
s_lshl_b32 s{sT0}, s{sTW}, 17
s_lshl_b32 s{sT1}, s{sG}, 8
s_add_u32 s{sT0}, s{sT0}, s{sT1}
s_lshl_b32 s{sT1}, s{sCW}, 7
s_add_u32 s{sT0}, s{sT0}, s{sT1}
v_lshlrev_b32 v113, 2, v{vL31}
v_add_u32 v113, s{sT0}, v113
v_lshl_add_u32 v118, v{vH}, 14, v113
v_add_u32 v118, 2048, v118
v_lshl_add_u32 v113, v{vH}, 13, v113
""")
sstamp(2, 3)
poll_flags(5, 12, 1, sleep=OPT['sl2'])
if OPT["cpos"] == 1: sync_add(False)
sstamp(3, 3)
LA = 7
HRING = 16
def hreg(j): return HRING + 4*(j % 8)
def h_ld(j):
    if j == 16: A(f"s_add_u32 s{sKOFF}, s{sKOFF}, {32768 - 3*4096}")
    elif j % 4 == 0 and j > 0: A(f"s_add_u32 s{sKOFF}, s{sKOFF}, 4096")
    A(f"buffer_load_dwordx4 v[{hreg(j)}:{hreg(j)+3}], v{vL16x}, {srd(R_WS)}, s{sKOFF} offen offset:{(j%4)*1024} sc1")
for j in range(LA): h_ld(j)
def g2_rd(j):
    f = FRS + 8*(j % 3)
    A(f"ds_read_b128 v[{f}:{f+3}], v{14 if j < 16 else 10} offset:{(j % 16)*32}")
    A(f"ds_read_b128 v[{f+4}:{f+7}], v{15 if j < 16 else 11} offset:{(j % 16)*32}")
def g2_mfma(j):
    f = FRS + 8*(j % 3)
    c = "0" if j == 0 else f"v[{Y1}:{Y1+15}]"
    A(f"v_mfma_f32_32x32x16_bf16 v[{Y1}:{Y1+15}], v[{hreg(j)}:{hreg(j)+3}], v[{f+4}:{f+7}], {c}")
    A(f"v_mfma_f32_32x32x16_bf16 v[{Y0}:{Y0+15}], v[{hreg(j)}:{hreg(j)+3}], v[{f}:{f+3}], v[{Y0}:{Y0+15}]")
sync_wait(0)
prio(3 if OPT["g2p"] & 1 else OPT["gprio"])
g2_rd(0); g2_rd(1)
VQ = list(range(LA))
P2 = 32 - OPT["p2n"]
for j in range(32):
    if j == P2:
        if P2 + LA < 32 or True:
            pass
        prio(OPT["vprio"])
        cnt_wait(vCNT, vTMP, 8, 12, sleep=OPT['sl1'])
        sstamp(6, 3); sstamp(1, 4)
        prio(3 if OPT["g2p"] & 2 else OPT["gprio"])
    if j + LA < 32:
        h_ld(j + LA); VQ.append(j + LA)
    rest = list(range(OPT["cim1"], 16))
    per = -(-len(rest) // 10) if rest else 0
    for i in rest[per*j:per*(j + 1)] if j < 10 else []:
        if i == rest[0] and i & 3: A(f"s_add_u32 s{sT4}, s{sT3}, {(i & ~3)*1024}")
        c_piece(R_CIM, CIM, i); VQ.append(-2 if i == 15 else -1)
    if not rest and j == 0: VQ.insert(0, -2)
    if j == 14:
        prio(OPT["vprio"]); sync_wait(0); prio(3 if OPT["g2p"] & 1 else OPT["gprio"])
    if j + 2 < 32: g2_rd(j + 2)
    issued = min(32, j + 3)
    need = max(VQ.index(j), VQ.index(-2)) if j == 12 else VQ.index(j)
    A(f"s_waitcnt vmcnt({len(VQ) - 1 - need}) lgkmcnt({2*(issued - j - 1)})")
    if j == 12: sync_add(False)
    if j == 0: sstamp(4, 3)
    if j == 15:
        cnt_add(vCNT, vONE, 8)
        stamp(6, not HST); sstamp(5, 3)
    g2_mfma(j)
prio(OPT["vprio"])
A.nop(10)
for i in range(4):
    A(f"ds_write_b128 v119, v[{Y1+4*i}:{Y1+4*i+3}] offset:{i*1024}")
sync_add()
sync_wait(0)
for i in range(4):
    A(f"ds_read_b128 v[{Y1+4*i}:{Y1+4*i+3}], v120 offset:{i*1024}")
for i in range(16):
    if i % 4 == 0: A(f"s_waitcnt lgkmcnt({3 - i//4})")
    A(f"v_add_f32 v{Y0+i}, v{Y0+i}, v{Y1+i}")
    A(f"s_mov_b32 s{sT1}, {(16*(i>>3) + 4*((i>>2)&1) + ((i>>1)&1) + 8*(i&1))*4096}")
    A(f"buffer_store_dword v{Y0+i}, v113, {srd(R_OUT)}, s{sT1} offen{OST}")
stamp(7); sstamp(7, 3); sstamp(2, 4)
cnt_wait(vCNT, vTMP, 12, 12)
sstamp(3, 4)
if OPT["odel"]: A(f"s_sleep {OPT['odel']}")
def oreg(j): return (16 + 4*j) if j < 8 else (80 + 4*(j - 8))
def o_loads(g4):
    A(f"s_add_u32 s{sT1}, s{sOB}, {g4*4096}")
    for j in range(4*g4, 4*g4 + 4):
        A(f"buffer_load_dwordx4 v[{oreg(j)}:{oreg(j)+3}], v{vL16x}, {srd(R_WS)}, s{sT1} offen offset:{(j%4)*1024} sc1")
for g4 in range(4): o_loads(g4)
A(f"s_mov_b32 s{sSPIN}, 0")
for g4 in range(4):
    lp = A.newlabel("op"); dn = A.newlabel("opd"); ck = A.newlabel("opc")
    j0 = 4*g4
    A(f"s_waitcnt vmcnt({4*(3 - g4)})")
    A.label(ck)
    A(f"v_max_u32 v13, v{oreg(j0)+1}, v{oreg(j0)+3}")
    for j in range(j0 + 1, j0 + 4):
        A(f"v_max3_u32 v13, v13, v{oreg(j)+1}, v{oreg(j)+3}")
    A(f"""
    v_cmp_eq_u32 vcc, -1, v13
    s_cbranch_vccz {dn}
    s_add_u32 s{sSPIN}, s{sSPIN}, 1
    s_cmp_gt_u32 s{sSPIN}, 20000
    s_cbranch_scc1 {dn}
    """)
    o_loads(g4)
    A(f"""
    s_waitcnt vmcnt(0)
    s_branch {ck}
    {dn}:
    """)
    if g4 in (0, 3): sstamp(4 + g4 // 3, 4)
    for j in range(j0, j0 + 4):
        c0 = "0" if j == 0 else f"v[{Y0}:{Y0+15}]"
        c1 = "0" if j == 0 else f"v[{Y1}:{Y1+15}]"
        A(f"v_mfma_f32_32x32x16_bf16 v[{Y1}:{Y1+15}], v[{oreg(j)}:{oreg(j)+3}], a[{8*j+4}:{8*j+7}], {c1}")
        A(f"v_mfma_f32_32x32x16_bf16 v[{Y0}:{Y0+15}], v[{oreg(j)}:{oreg(j)+3}], a[{8*j}:{8*j+3}], {c0}")
if OPT["sst"] == 4: A(f"s_mov_b32 s{sST+14}, s{sSPIN}")
A.nop(11)
for i in range(4):
    A(f"ds_write_b128 v114, v[{Y1+4*i}:{Y1+4*i+3}] offset:{TB2 + i*1024}")
A("s_waitcnt lgkmcnt(0)")
A("s_barrier")
sstamp(6, 4)
for i in range(4):
    A(f"ds_read_b128 v[{Y1+4*i}:{Y1+4*i+3}], v115 offset:{TB2 + i*1024}")
for i in range(16):
    if i % 4 == 0: A(f"s_waitcnt lgkmcnt({3 - i//4})")
    A(f"v_add_f32 v{Y0+i}, v{Y0+i}, v{Y1+i}")
    A(f"s_mov_b32 s{sT1}, {(8*(i>>2) + (i&3))*4096}")
    A(f"buffer_store_dword v{Y0+i}, v118, {srd(R_OUT)}, s{sT1} offen{OST}")
A("s_branch L_fin")

A.label("L_hot_end")
A.label("L_slow")
A(f"""
s_cmp_lg_u32 s{sDONE}, 0
s_cbranch_scc1 L_fast
s_mov_b32 s{sDONE}, 1
s_waitcnt lgkmcnt(0)
""")
def a_sync():
    A(f"s_add_u32 s{sATG}, s{sATG}, 4")
    A("s_waitcnt lgkmcnt(0)")
    cnt_add(vCNT, vIDX, 4)
    cnt_wait(vCNT, 16, f"s{sATG}", 4, sleep=2)
for i in range(4): A(f"v_mov_b32 v{vZ+i}, 0")
for ct in range(8): A(f"v_mov_b32 v{vM+ct}, 0xff800000")
A("s_nop 1")
for ct in range(8):
    A(f"v_mfma_f32_32x32x16_bf16 a[{16*ct}:{16*ct+15}], v[{vZ}:{vZ+3}], v[{vZ}:{vZ+3}], 0")
A(f"s_mov_b32 s{sLOOP}, 16")
def adv():
    A(f"s_add_u32 s{sKOFF}, s{sKOFF}, {KVS}"); A(f"s_and_b32 s{sKOFF}, s{sKOFF}, 0xffff")
A.label("L_sl1")
ld_k(0, 0); adv()
A("s_waitcnt vmcnt(0)")
for ct in range(8):
    A(f"v_mfma_f32_32x32x16_bf16 v[{S0}:{S0+15}], v[{KV[0]}:{KV[0]+3}], v[{QF+4*ct}:{QF+4*ct+3}], 0")
    A.nop(12)
    for i in range(8):
        A(f"v_max3_f32 v{vM+ct}, v{S0+2*i}, v{S0+2*i+1}, v{vM+ct}")
A(f"""
s_sub_u32 s{sLOOP}, s{sLOOP}, 1
s_cmp_lg_u32 s{sLOOP}, 0
s_cbranch_scc1 L_sl1
s_lshl_b32 s{sT0}, s{sWAVE}, 11
s_add_u32 s{sT0}, s{sT0}, {CB}
v_lshlrev_b32 v8, 2, v{vLANE}
v_add_u32 v8, s{sT0}, v8
v_lshlrev_b32 v10, 2, v{vL31}
v_add_u32 v10, {CB}, v10
""")
a_sync()
def pair_off(pr):
    A(f"s_add_u32 s{sT0}, s{sWAVE}, {pr + 1}")
    A(f"s_and_b32 s{sT0}, s{sT0}, 3")
    A(f"s_lshl_b32 s{sT0}, s{sT0}, 9")
for pr in range(4):
    pair_off(pr)
    A(f"v_add_u32 v9, s{sT0}, v8")
    A(f"ds_write_b32 v9, v{vM+2*pr}")
    A(f"ds_write_b32 v9, v{vM+2*pr+1} offset:256")
a_sync()
for ct in range(8):
    if ct % 2 == 0:
        pair_off(ct // 2)
        A(f"v_add_u32 v9, s{sT0}, v10")
    for w in range(4):
        A(f"ds_read_b32 v{S0+2*w}, v9 offset:{w*2048 + (ct%2)*256}")
        A(f"ds_read_b32 v{S0+2*w+1}, v9 offset:{w*2048 + (ct%2)*256 + 128}")
    A("s_waitcnt lgkmcnt(0)")
    for w in range(4):
        A(f"v_max3_f32 v{vM+ct}, v{S0+2*w}, v{S0+2*w+1}, v{vM+ct}")
a_sync()
A(f"s_mov_b32 s{sLOOP}, 16")
A.label("L_sl2")
ld_k(0, 0); ld_v(0, 0, 0); ld_v(0, 1, 0); adv()
A("s_waitcnt vmcnt(0)")
for ct in range(8):
    A(f"v_mfma_f32_32x32x16_bf16 v[{S0}:{S0+15}], v[{KV[0]}:{KV[0]+3}], v[{QF+4*ct}:{QF+4*ct+3}], 0")
    A.nop(12)
    for i in range(16):
        A(f"v_sub_f32 v{S0+i}, v{S0+i}, v{vM+ct}")
    for i in range(16):
        A(f"v_exp_f32 v{S0+i}, v{S0+i}")
    A.nop(2)
    A(f"v_smfmac_f32_32x32x32_bf16 a[{16*ct}:{16*ct+15}], v[{KV[0]+4}:{KV[0]+7}], v[{S0}:{S0+7}], v{vIDX}")
    A(f"v_smfmac_f32_32x32x32_bf16 a[{16*ct}:{16*ct+15}], v[{KV[0]+8}:{KV[0]+11}], v[{S0+8}:{S0+15}], v{vIDX}")
A(f"""
s_sub_u32 s{sLOOP}, s{sLOOP}, 1
s_cmp_lg_u32 s{sLOOP}, 0
s_cbranch_scc1 L_sl2
s_nop 15
""")
for ct in range(6): part_write(ct)
A("s_waitcnt lgkmcnt(0)")
cnt_add(vCNT, vIDX, 4)
A(f"""
s_add_u32 s{sATG}, s{sATG}, 4
s_branch L_comb
""")

if OPT["xm"] or OPT["xv"] or OPT["xl"]:
    i0 = A.lines.index("L_S2:"); i1 = A.lines.index("L_hot_end:")
    seen = False
    for i in range(i0, i1):
        t = A.lines[i].strip()
        if t.startswith("ds_write_b128") : seen = True
        if not seen: continue
        if OPT["xm"] and t.startswith("v_mfma"): A.lines[i] = "    s_nop 7"
        if OPT["xv"] and (t.startswith(("v_pk_", "v_fma_f32", "v_cvt_pk", "v_mul_f32", "v_add_f32"))): A.lines[i] = "    s_nop 1"
        if OPT["xl"] and t.startswith(("ds_read_b128", "ds_write_b128")): A.lines[i] = "    s_nop 0"
hdr = open("cdna_kernels/" + NAME + ".s.ref").read().split("; Override launch")[0]
out = hdr + f"""; Fused single-launch kernel: 256 workgroups x 8 waves (4 attention waves + 4 SSM waves). Generated by gen/gen10.py.
; @launch grid=(256,1,1) block=(512,1,1) lds={LDS_BYTES}
.amdgcn_target "amdgcn-amd-amdhsa--gfx950"
.text
.globl {NAME}_kernel
.p2align 8
.type {NAME}_kernel,@function
{NAME}_kernel:
""" + A.text() + f""".section .rodata,"a"
.p2align 6
.amdhsa_kernel {NAME}_kernel
  .amdhsa_next_free_vgpr 256
  .amdhsa_next_free_sgpr 102
  .amdhsa_accum_offset 128
  .amdhsa_group_segment_fixed_size 0
  .amdhsa_kernarg_size 136
  .amdhsa_user_sgpr_count 2
  .amdhsa_user_sgpr_kernarg_segment_ptr 1
  .amdhsa_system_sgpr_workgroup_id_x 1
.end_amdhsa_kernel
"""
open(sys.argv[1], "w").write(out)
errs = check(A.lines) + check(A.lines[loop_end-60:loop_end] + A.lines[loop_start:loop_start+60])
for e in errs: print("HAZARD:", e)
print(f"{len(A.lines)} lines, {len(errs)} hazards")
```

```python
import sys, math, struct
from asmlib import *

OPT = dict(dbg=0, force_slow=0, stamps=0, noS=0, cyc=0, ost=2, gprio=0, vprio=3, hst=0, stgwin=8, pfq=0, pfb=2, stgl=2, qpre=2,
           pfc=1, ssl=2, la=8, sst=0, win0=0, trig=1, odel=0, sgate=2, map84=1, g1p=0, g2p=2, noKV=0, nochk=0, wq1=9, cpos=1, hdbg=0, p2n=8, oack=1, cim1=0, npre0=0, mid=0, sl1=2, sl2=2, sl0=0, tlb=0, ofirst=0, xm=0, xv=0, xl=0, npre=12, lbs=4)
for a in sys.argv[2:]:
    k, v = a.split("=")
    assert k in OPT, k
    OPT[k] = int(v)

NAME = "concat_heads__ssm_conv_s5__grouped_kv_mqa__prompt"
def f2u(x): return struct.unpack("<I", struct.pack("<f", x))[0]

XQ, WQ = 0, 66560
KVX, WKV = 3*16640, 66560 + 3*16384
SLOT = [0, 49920, 99840]
XA_O, BRE_O, BIM_O = 0, 16640, 33280
CIM, CRE = 0, 66560
CB = 66560; CB_T = 2304
TB = CB + 32*CB_T
WO = 66560
TB2 = 0
QX = 149760; EB = 157952; HP = 160000; CNT = 162048; QM = 162064; KM = 162068; CNT4 = 24
assert TB + 16384 <= EB
LDS_BYTES = 163840
FL1, FL3 = 0x1000, 0x9000
KVT = 0x80000; KVS = 4096
AGG = 0x30000; AGG_DUMMY = 32*8192; AGG_SIZE = AGG_DUMMY + 256*128
OB, HB = 0x100000, 0x400000
DBG = 0x1000000
WS_SIZE = 0x2000000
assert AGG + AGG_SIZE <= KVT
sWAVE, sC, sG, sTAG, sID = 3, 4, 5, 6, 7
R_XB, R_WQ, R_WKV, R_XA, R_BRE, R_BIM, R_CRE, R_CIM, R_WO, R_OUT, R_WS, R_AGG = 8, 12, 16, 20, 24, 28, 32, 36, 40, 44, 48, 52
P_LRE, P_LIM, P_LDT, P_DSK, P_WV = 56, 58, 60, 62, 64
sEP, sDONE = 66, 67
sT0, sT1, sT2, sT3, sT4, sT5 = 68, 69, 70, 71, 72, 73
sT6, sSPIN = 74, 75
sTW, sCW = 76, 77
sLOOP, sKOFF, sROT, sSW = 78, 79, 80, 81
sOB, sT7 = 82, 83
sATG = 65
sST = 84
def srd(r): return f"s[{r}:{r+3}]"

A = Asm()
OST = ["", " sc1", " nt", " sc0 sc1"][OPT["ost"]]
SPIN_MAX = 200000
HST = OPT["hst"]

SSEC = [False]
def sstamp(i, mode):
    if OPT["stamps"] and OPT["sst"] == mode:
        A(f"s_memrealtime s[{sST+2*i}:{sST+2*i+1}]")
def stamp(i, cond=True):
    if SSEC[0] and OPT["sst"] and i < 8: return
    if OPT["stamps"] and cond:
        A(f"s_memrealtime s[{sST+2*i}:{sST+2*i+1}]")
def prio(p): A(f"s_setprio {p}")

def cnt_add(vaddr, vone, off=0):
    A(f"""
    s_mov_b64 exec, 1
    {"ds_inc_u32" if vone == vIDX else "ds_add_u32"} v{vaddr}, v{vone} offset:{off}
    s_mov_b64 exec, -1
    """)
def cnt_wait(vaddr, vtmp, target, off=0, sleep=0):
    lp = A.newlabel("sy"); dn = A.newlabel("syd")
    A(f"""
    s_mov_b32 s{sSPIN}, 0
    {lp}:
    ds_read_b32 v{vtmp}, v{vaddr} offset:{off}
    s_add_u32 s{sSPIN}, s{sSPIN}, 1
    s_waitcnt lgkmcnt(0)
    v_readfirstlane_b32 s{sT0}, v{vtmp}
    s_cmp_ge_u32 s{sT0}, {target}
    s_cbranch_scc1 {dn}
    {("s_sleep " + str(sleep)) if sleep else ""}
    s_cmp_lt_u32 s{sSPIN}, {SPIN_MAX}
    s_cbranch_scc1 {lp}
    {dn}:
    """)
NSYNC = [0]
def grp_sync():
    NSYNC[0] += 1
    A("s_waitcnt lgkmcnt(0)")
    cnt_add(vCNT, vONE)
    cnt_wait(vCNT, vTMP, CBASE + 4*NSYNC[0], sleep=OPT['ssl'])

def sync_add(wait_lds=True):
    NSYNC[0] += 1
    if wait_lds: A("s_waitcnt lgkmcnt(0)")
    cnt_add(vCNT, vONE)
def sync_wait(sleep=None):
    cnt_wait(vCNT, vTMP, CBASE + 4*NSYNC[0], sleep=OPT['ssl'] if sleep is None else max(sleep, OPT['sl0']))

def poll_flags(vaddr, vdst, width, sleep=2):
    lp = A.newlabel("pl"); dn = A.newlabel("pld")
    ld = "buffer_load_dword" if width == 1 else f"buffer_load_dwordx{width}"
    A(f"s_mov_b32 s{sSPIN}, 0")
    A.label(lp)
    A(f"""
    {ld} {vr(vdst, width)}, v{vaddr}, {srd(R_WS)}, 0 offen sc1
    s_add_u32 s{sSPIN}, s{sSPIN}, 1
    s_waitcnt vmcnt(0)
    v_cmp_ne_u32 vcc, s{sTAG}, v{vdst}
    s_cbranch_vccz {dn}
    {("s_sleep " + str(sleep)) if sleep else ""}
    s_cmp_lt_u32 s{sSPIN}, {SPIN_MAX}
    s_cbranch_scc1 {lp}
    {dn}:
    """)

def wave_max(v, tmp):
    A("s_nop 1")
    for sh in (1, 2, 4, 8):
        A(f"v_max_f32_dpp v{v}, v{v}, v{v} row_ror:{sh} row_mask:0xf bank_mask:0xf")
        A("s_nop 1")
    A(f"v_mov_b32 v{tmp}, v{v}")
    A("s_nop 1")
    A(f"v_permlane16_swap_b32 v{tmp}, v{v}")
    A(f"v_max_f32 v{v}, v{v}, v{tmp}")
    A(f"v_mov_b32 v{tmp}, v{v}")
    A("s_nop 1")
    A(f"v_permlane32_swap_b32 v{tmp}, v{v}")
    A(f"v_max_f32 v{v}, v{v}, v{tmp}")

def wq_voffset(dst, t0, t1, t2):
    A(f"""
    v_lshrrev_b32 v{t0}, 3, v{vLANE}
    v_and_b32 v{t1}, 7, v{vLANE}
    v_bfe_u32 v{t2}, v{vLANE}, 4, 1
    v_lshlrev_b32 v{t2}, 2, v{t2}
    v_xor_b32 v{t1}, v{t1}, v{t2}
    v_lshlrev_b32 v{t1}, 4, v{t1}
    v_lshl_add_u32 v{dst}, v{t0}, 10, v{t1}
    """)

vLANE, vL31, vH, vL16x = 1, 2, 3, 4
UR, UI, Y0, Y1 = 16, 32, 48, 64
FRS = 80
DG = 104
vL1, vL8, vL16, vL64, vL512, vCF = 112, 114, 116, 118, 120, 122
vCNT, vONE, vTMP, vP2, vDUM = 0, 124, 125, 126, 127
vXo, vBo, vDa, vSt = 5, 6, 7, 8
vAa, vBa = [9, 10, 11], [12, 13, 14]
vPF = 15
STG = 64
PRM = 100
S0, S1 = 16, 32
QF = 48
KV = [80, 92, 104, 116]
vIDX = 7
vM = 104
vZ = 120
vKt, vVt = [5, 8, 9, 10], [6, 12, 14, 15]

A(f"""
s_cmp_ge_u32 s2, 256
s_cbranch_scc1 L_end
""")
stamp(0)
sizes = {R_XB: 65536, R_WKV: 16384, R_WQ: 523392, R_WS: WS_SIZE, R_XA: 65536, R_BRE: 65536, R_BIM: 65536, R_CRE: 65536, R_CIM: 65536,
         R_WO: 523392, R_OUT: 262144, R_AGG: AGG_SIZE}
def kload(lst):
    for r, off in lst:
        A(f"s_load_dwordx2 s[{r}:{r+1}], s[0:1], {off}")
def srd_words(rs):
    for r in rs:
        A(f"s_mov_b32 s{r+2}, {sizes[r]}")
        A(f"s_mov_b32 s{r+3}, 0x20000")
kload([(R_XB, 72), (R_WKV, 88), (P_WV, 96), (R_WQ, 80), (R_WS, 128)])
A(f"""
v_lshrrev_b32 v5, 6, v0
v_and_b32 v{vLANE}, 63, v0
v_readfirstlane_b32 s{sWAVE}, v5
v_lshlrev_b32 v{vL16x}, 4, v{vLANE}
v_bfe_u32 v{vH}, v0, 5, 1
v_and_b32 v{vL31}, 31, v0
v_mov_b32 v0, {CNT}
""")
srd_words([R_XB])
A(f"""
""")
if OPT["map84"]:
    A(f"""
    s_bfe_u32 s{sC}, s2, 0x20001
    s_lshl_b32 s{sC}, s{sC}, 3
    s_bfe_u32 s{sT0}, s2, 0x30003
    s_add_u32 s{sC}, s{sC}, s{sT0}
    s_and_b32 s{sG}, s2, 1
    s_lshl_b32 s{sG}, s{sG}, 2
    s_lshr_b32 s{sT0}, s2, 6
    s_add_u32 s{sG}, s{sG}, s{sT0}
    s_add_u32 s{sROT}, s{sC}, s{sG}
    s_and_b32 s{sROT}, s{sROT}, 3
    """)
else:
    A(f"""
    s_and_b32 s{sC}, s2, 7
    s_lshl_b32 s{sC}, s{sC}, 2
    s_bfe_u32 s{sROT}, s2, 0x20003
    s_add_u32 s{sC}, s{sC}, s{sROT}
    s_lshr_b32 s{sG}, s2, 5
    """)
A(f"""
s_lshl_b32 s{sT2}, s{sC}, 16
s_sub_u32 s{sSW}, s{sWAVE}, 4
s_cbranch_scc1 L_A0
s_load_dwordx4 s[{P_LRE}:{P_LRE+3}], s[0:1], 8
s_load_dwordx4 s[{P_LDT}:{P_LDT+3}], s[0:1], 56
s_setprio 3
v_mov_b32 v20, 0
v_mov_b32 v21, 0
s_lshl_b32 s{sT0}, s{sG}, 6
s_lshl_b32 s{sT1}, s{sSW}, 4
s_and_b32 s{sT1}, s{sT1}, 32
s_add_u32 s{sT0}, s{sT0}, s{sT1}
v_add_lshl_u32 v{vP2}, s{sT0}, v{vL31}, 1
ds_write2_b64 v0, v[20:21], v[20:21] offset0:0 offset1:1
ds_write2_b64 v0, v[20:21], v[20:21] offset0:2 offset1:3
s_mov_b32 s{R_WKV+2}, {sizes[R_WKV]}
s_mov_b32 s{R_WKV+3}, 0x20000
s_lshl_b32 s{sT1}, s{sSW}, 12
s_lshl_b32 s{sT5}, s{sG}, 13
s_and_b32 s{sT5}, s{sT5}, 0xc000
s_add_u32 s{sT5}, s{sT5}, s{sT1}
s_mul_i32 s{sT0}, s{sSW}, 4160
s_add_u32 m0, s{sT1}, {WKV}
s_bitcmp1_b32 s{sG}, 0
s_waitcnt lgkmcnt(0)
s_cselect_b32 s{R_WKV}, s{P_WV}, s{R_WKV}
s_cselect_b32 s{R_WKV+1}, s{P_WV+1}, s{R_WKV+1}
s_add_u32 s{R_XB}, s{R_XB}, s{sT2}
s_addc_u32 s{R_XB+1}, s{R_XB+1}, 0
""")
for i in range(4):
    A(f"buffer_load_dwordx4 v{vL16x}, {srd(R_WKV)}, s{sT1} offen offset:{i*1024} lds")
for i in range(4):
    A(f"s_add_u32 m0, s{sT0}, {KVX + 16*i}")
    A(f"s_load_dword s{sEP}, s[{R_WS}:{R_WS+1}], 0" if i == 0 else "s_nop 0")
    A(f"buffer_load_dwordx4 v{vL16x}, {srd(R_XB)}, s{sT5} offen offset:{i*1024} lds")
A(f"""
s_barrier
global_load_ushort v{PRM}, v{vP2}, s[{P_LRE}:{P_LRE+1}]
global_load_ushort v{PRM+1}, v{vP2}, s[{P_LIM}:{P_LIM+1}]
global_load_ushort v{PRM+2}, v{vP2}, s[{P_LDT}:{P_LDT+1}]
global_load_ushort v{PRM+3}, v{vP2}, s[{P_DSK}:{P_DSK+1}]
s_branch L_S1
L_A0:
""")
def common_scalars():
    kload([(R_OUT, 112)])
    srd_words([R_WS, R_OUT])
    A(f"""
    s_and_b32 s{sTW}, s{sWAVE}, 1
    s_bfe_u32 s{sCW}, s{sWAVE}, 0x10001
    s_lshl_b32 s{sID}, s{sC}, 3
    s_add_u32 s{sID}, s{sID}, s{sG}
    s_mov_b32 s{sDONE}, 0
    s_lshl_b32 s{sOB}, s{sC}, 1
    s_add_u32 s{sOB}, s{sOB}, s{sTW}
    s_lshl_b32 s{sOB}, s{sOB}, 15
    s_add_u32 s{sOB}, s{sOB}, {OB}
    """)
def common_after_wait(tag=True):
    A(f"""
    s_lshl_b32 s{sT0}, s{sC}, 18
    s_add_u32 s{R_OUT}, s{R_OUT}, s{sT0}
    s_addc_u32 s{R_OUT+1}, s{R_OUT+1}, 0
    """)
    if tag: A(f"""
    s_mul_i32 s{sTAG}, s{sEP}, 0x9E3779B1
    s_add_u32 s{sTAG}, s{sTAG}, 0x7F4A7C15
    """)
vWQo, vXQo = 119, 117
A(f"""
v_lshrrev_b32 v6, 4, v{vLANE}
v_and_b32 v7, 15, v{vLANE}
v_lshlrev_b32 v7, 4, v7
v_lshl_add_u32 v{vXQo}, v6, 14, v7
s_mul_i32 s{sT6}, s{sWAVE}, 4160
s_lshl_b32 s{sT7}, s{sWAVE}, 12
""")
srd_words([R_WQ])
wq_voffset(vWQo, 6, 7, 10)
A(f"""
s_lshl_b32 s{sT0}, s{sG}, 7
s_waitcnt lgkmcnt(0)
s_add_u32 s{R_XB}, s{R_XB}, s{sT2}
s_addc_u32 s{R_XB+1}, s{R_XB+1}, 0
s_add_u32 s{R_WQ}, s{R_WQ}, s{sT0}
s_addc_u32 s{R_WQ+1}, s{R_WQ+1}, 0
s_load_dword s{sEP}, s[{R_WS}:{R_WS+1}], 0
s_barrier
""")
stamp(1, HST)
def x_dma(s):
    A(f"""
    s_add_u32 s{sT3}, s{sROT}, {s}
    s_and_b32 s{sT3}, s{sT3}, 3
    s_lshl_b32 s{sT4}, s{sT3}, 8
    s_add_u32 s{sT4}, s{sT4}, s{sT7}
    """)
    for i in range(4):
        A(f"""
        s_add_u32 m0, s{sT6}, {XQ + s*16640 + i*16}
        s_nop 0
        buffer_load_dwordx4 v{vXQo}, {srd(R_XB)}, s{sT4} offen offset:{i*1024} lds
        """)
def wq_dma(s):
    A(f"""
    s_lshl_b32 s{sT3}, s{sT3}, 4
    s_add_u32 s{sT3}, s{sT3}, s{sWAVE}
    s_lshl_b32 s{sT3}, s{sT3}, 13
    s_lshl_b32 s{sT2}, s{sWAVE}, 10
    """)
    for i in range(4):
        A(f"""
        s_add_u32 m0, s{sT2}, {WQ + s*16384 + i*4096}
        s_add_u32 s{sT1}, s{sT3}, {i*32768}
        buffer_load_dwordx4 v{vWQo}, {srd(R_WQ)}, s{sT1} offen lds
        """)
for s in range(OPT["qpre"]):
    x_dma(s); wq_dma(s)
stamp(2 if HST else 1)
A("s_branch L_A1")
A.label("L_S1")
SSEC[0] = True
A(f"""
v_mov_b32 v{vONE}, 1
s_lshl_b32 s{sID}, s{sC}, 3
s_add_u32 s{sID}, s{sID}, s{sG}
s_mov_b32 s{R_WS+2}, {WS_SIZE}
s_mov_b32 s{R_WS+3}, 0x20000
v_lshrrev_b32 v20, 4, v{vLANE}
v_and_b32 v21, 15, v{vLANE}
v_mul_u32_u24 v9, 1040, v21
v_lshl_add_u32 v9, v20, 4, v9
v_add_u32 v9, {KVX}, v9
v_lshrrev_b32 v10, 2, v21
v_lshl_add_u32 v10, v20, 3, v10
v_lshlrev_b32 v10, 5, v10
v_and_b32 v11, 3, v21
v_lshl_add_u32 v10, v11, 3, v10
v_add_u32 v10, {WKV}, v10
s_lshl_b32 s{sT6}, s{sC}, 1
s_lshr_b32 s{sT1}, s{sG}, 2
s_add_u32 s{sT6}, s{sT6}, s{sT1}
s_lshl_b32 s{sT6}, s{sT6}, 12
s_add_u32 s{sT6}, s{sT6}, {KVT}
s_bfe_u32 s{sT7}, s{sG}, 0x10001
s_waitcnt lgkmcnt(0)
s_mul_i32 s{sTAG}, s{sEP}, 0x9E3779B1
s_add_u32 s{sTAG}, s{sTAG}, 0x7F4A7C15
s_waitcnt vmcnt(4)
""")
stamp(6, HST)
cnt_add(vCNT, vONE)
A(f"""
s_cmp_lg_u32 s{sSW}, 0
s_cbranch_scc1 L_S2a
""")
cnt_wait(vCNT, vTMP, 4)
stamp(1)
def kv_rd(k):
    f = 32 + 8*(k % 6)
    A(f"ds_read_b64_tr_b16 v[{f}:{f+1}], v10 offset:{k*1024}")
    A(f"ds_read_b64_tr_b16 v[{f+2}:{f+3}], v10 offset:{k*1024+128}")
    A(f"ds_read_b128 v[{f+4}:{f+7}], v9 offset:{k*64}")
for k in range(4): kv_rd(k)
A(f"s_bitcmp1_b32 s{sG}, 0")
A("s_cbranch_scc1 L_kv_v")
def kv_chain(isv_):
    for k in range(16):
        f = 32 + 8*(k % 6)
        if k + 4 < 16: kv_rd(k + 4)
        issued = min(16, k + 5)
        A(f"s_waitcnt lgkmcnt({3*(issued - k - 1)})")
        c = "0" if k == 0 else "v[28:31]"
        a, b = (f"v[{f}:{f+3}]", f"v[{f+4}:{f+7}]") if not isv_ else (f"v[{f+4}:{f+7}]", f"v[{f}:{f+3}]")
        A(f"v_mfma_f32_16x16x32_bf16 v[28:31], {a}, {b}, {c}")
kv_chain(False)
cnt_add(vCNT, vONE)
A(f"s_mov_b32 s{sT0}, {f2u(0.25 * math.log2(math.e))}")
A(f"""
s_lshl_b32 s{sT7}, s{sT7}, 8
s_add_u32 s{sT6}, s{sT6}, s{sT7}
v_and_b32 v22, 1, v20
v_lshlrev_b32 v22, 9, v22
v_lshl_add_u32 v22, v21, 4, v22
v_lshrrev_b32 v23, 1, v20
v_lshl_add_u32 v22, v23, 3, v22
v_mul_f32 v28, s{sT0}, v28
v_mul_f32 v29, s{sT0}, v29
v_mul_f32 v30, s{sT0}, v30
v_mul_f32 v31, s{sT0}, v31
v_cvt_pk_bf16_f32 v24, v28, v29
v_cvt_pk_bf16_f32 v25, v30, v31
buffer_store_dwordx2 v[24:25], v22, {srd(R_WS)}, s{sT6} offen sc1
v_mul_f32 v16, v28, v28
v_fmac_f32 v16, v29, v29
v_fmac_f32 v16, v30, v30
v_fmac_f32 v16, v31, v31
v_mov_b32 v17, v16
s_nop 1
v_permlane16_swap_b32 v17, v16
v_add_f32 v16, v16, v17
v_mov_b32 v17, v16
s_nop 1
v_permlane32_swap_b32 v17, v16
v_add_f32 v17, v16, v17
""")
wave_max(17, 18)
A("s_branch L_kv_pub")
A.label("L_kv_v")
kv_chain(True)
cnt_add(vCNT, vONE)
A(f"""
s_mul_i32 s{sT7}, s{sT7}, 544
s_add_u32 s{sT6}, s{sT6}, s{sT7}
s_add_u32 s{sT6}, s{sT6}, 1024
v_lshrrev_b32 v22, 1, v20
v_mul_u32_u24 v22, 272, v22
v_and_b32 v23, 1, v20
v_lshl_add_u32 v22, v23, 3, v22
v_lshl_add_u32 v23, v21, 4, v22
v_cvt_pk_bf16_f32 v24, v28, v29
v_cvt_pk_bf16_f32 v25, v30, v31
buffer_store_dwordx2 v[24:25], v23, {srd(R_WS)}, s{sT6} offen sc1
v_mov_b32 v26, 0x3f803f80
v_mov_b32 v27, 0x3f803f80
s_mov_b32 exec_lo, 0x00010001
s_mov_b32 exec_hi, 0x00010001
buffer_store_dwordx2 v[26:27], v22, {srd(R_WS)}, s{sT6} offen offset:256 sc1
s_mov_b64 exec, -1
v_mov_b32 v17, 0
""")
A.label("L_kv_pub")
A(f"""
s_lshl_b32 s{sT0}, s{sID}, 7
s_add_u32 s{sT0}, s{sT0}, {FL1}
v_mov_b32 v16, s{sTAG}
v_mov_b32 v9, 0
s_waitcnt vmcnt(0)
s_mov_b64 exec, 1
buffer_store_dwordx2 v[16:17], v9, {srd(R_WS)}, s{sT0} offen sc1
ds_add_u32 v{vCNT}, v{vONE}
s_mov_b64 exec, -1
""")
stamp(2)
A("s_branch L_S2")
SSEC[0] = False
A.label("L_A1")
for i in range(4): A(f"v_mov_b32 v{vZ+i}, 0")
vXa, vWa, vFl, vQw, vQr, vAone = 8, 9, 10, 14, 15, vIDX
common_scalars()
for ct in range(8):
    A(f"v_mfma_f32_32x32x16_bf16 a[{16*ct}:{16*ct+15}], v[{vZ}:{vZ+3}], v[{vZ}:{vZ+3}], 0")
A(f"""
v_and_b32 v6, 15, v{vL31}
v_mul_u32_u24 v{vXa}, 1040, v6
v_lshl_add_u32 v{vXa}, v{vH}, 4, v{vXa}
v_lshrrev_b32 v6, 4, v{vL31}
v_lshl_add_u32 v{vXa}, v6, 8, v{vXa}
s_lshl_b32 s{sT0}, s{sTW}, 9
v_add_u32 v{vXa}, s{sT0}, v{vXa}
v_bfe_u32 v6, v{vLANE}, 2, 2
v_lshl_add_u32 v6, v{vH}, 3, v6
v_bfe_u32 v7, v{vLANE}, 4, 1
v_and_b32 v11, 3, v{vLANE}
v_lshlrev_b32 v11, 3, v11
v_lshl_add_u32 v11, v7, 5, v11
s_lshl_b32 s{sT0}, s{sCW}, 6
v_add_u32 v11, s{sT0}, v11
v_bfe_u32 v7, v{vLANE}, 3, 1
v_lshlrev_b32 v7, 6, v7
v_xor_b32 v11, v11, v7
v_lshl_add_u32 v{vWa}, v6, 7, v11
v_add_u32 v{vWa}, {WQ}, v{vWa}
s_lshl_b32 s{sT0}, s{sWAVE}, 13
s_add_u32 s{sT0}, s{sT0}, {FL1}
v_lshlrev_b32 v{vFl}, 7, v{vLANE}
v_add_u32 v{vFl}, s{sT0}, v{vFl}
s_lshl_b32 s{sT0}, s{sWAVE}, 16
s_add_u32 s{sT1}, s{sT0}, {KVT}
v_add_u32 v{vKt[0]}, s{sT1}, v{vL16x}
s_add_u32 s{sT1}, s{sT1}, 1024
v_lshlrev_b32 v13, 4, v{vL31}
v_mul_u32_u24 v14, 272, v{vH}
v_add3_u32 v13, v13, v14, s{sT1}
v_cmp_lt_u32 vcc, 16, v{vL31}
v_mov_b32 v14, 0x7ff00000
v_mov_b32 v{vIDX}, 0xdddddddd
v_cndmask_b32 v{vVt[0]}, v13, v14, vcc
s_lshl_b32 s{sKOFF}, s{sROT}, 14
s_lshl_b32 s{sT0}, s{sCW}, 2
s_add_u32 s{sT0}, s{sT0}, s{sTW}
s_lshl_b32 s{sT0}, s{sT0}, 10
s_add_u32 s{sT0}, s{sT0}, {QX}
v_add_u32 v{vQw}, s{sT0}, v{vL16x}
v_add_u32 v{vQr}, {QX}, v{vL16x}
s_waitcnt lgkmcnt(0)
""")
common_after_wait()
QP = OPT["qpre"]
sKVOK = sATG
vFG = 12
def ld_k(b, t, so=sKOFF):
    A(f"buffer_load_dwordx4 v[{KV[b]}:{KV[b]+3}], v{vKt[t]}, {srd(R_WS)}, s{so} offen sc1")
def ld_v(b, j, t, so=sKOFF):
    A(f"buffer_load_dwordx4 v[{KV[b]+4+4*j}:{KV[b]+7+4*j}], v{vVt[t]}, {srd(R_WS)}, s{so} offen offset:{544*j} sc1")
def kv_first():
    for b in range(4):
        A(f"s_add_u32 s{sT1}, s{sKOFF}, {b*KVS}")
        ld_k(b, 0, sT1); ld_v(b, 0, 0, sT1); ld_v(b, 1, 0, sT1)
    A(f"ds_max_f32 v{vCNT}, v{vFG+1} offset:{KM - CNT}")
    if OPT["sgate"] == 2: cnt_add(vCNT, vAone, 12)
def kv_try(tag):
    A(f"""
    v_cmp_ne_u32 vcc, s{sTAG}, v{vFG}
    s_cbranch_vccnz L_kvlate{tag}
    s_mov_b32 s{sKVOK}, 1
    """)
    kv_first()
    A(f"s_branch L_kvq{tag}")
    A.label(f"L_kvlate{tag}")
    flag_ld()
    A.label(f"L_kvq{tag}")
def flag_ld(): A(f"buffer_load_dwordx2 v[{vFG}:{vFG+1}], v{vFl}, {srd(R_WS)}, 0 offen sc1")
def qproj_quarter(s):
    A(f"s_waitcnt vmcnt({8*(min(4, s + QP) - s - 1)})")
    stamp(3 + s, HST)
    cnt_add(vCNT, vAone, 4)
    if s + QP < 4:
        if s + QP == 3: cnt_wait(vCNT, 11, 5)
        x_dma(s + QP); wq_dma(s + QP)
        if s + QP == 3 and OPT["sgate"] == 0: cnt_add(vCNT, vAone, 12)
        if s + QP == 3 and OPT["npre0"]: cnt_add(vCNT, vAone, CNT4)
    if s == 2: flag_ld()
    if s == 3:
        A(f"s_mov_b32 s{sKVOK}, 0")
        kv_try("a")
        if OPT["sgate"] == 1: cnt_add(vCNT, vAone, 12)
    cnt_wait(vCNT, 11, 4*(s + 1), 4)
    def rd(k):
        f = 32 + 8*(k % 6)
        A(f"ds_read_b64_tr_b16 v[{f}:{f+1}], v{vWa} offset:{s*16384 + k*2048}")
        A(f"ds_read_b64_tr_b16 v[{f+2}:{f+3}], v{vWa} offset:{s*16384 + k*2048 + 512}")
        A(f"ds_read_b128 v[{f+4}:{f+7}], v{vXa} offset:{XQ + s*16640 + k*32}")
    for k in range(4): rd(k)
    for k in range(8):
        f = 32 + 8*(k % 6)
        if k + 4 < 8: rd(k + 4)
        issued = min(8, k + 5)
        A(f"s_waitcnt lgkmcnt({3*(issued - k - 1)})")
        c = "0" if (s == 0 and k == 0) else f"v[{S0}:{S0+15}]"
        A(f"v_mfma_f32_32x32x16_bf16 v[{S0}:{S0+15}], v[{f}:{f+3}], v[{f+4}:{f+7}], {c}")
for s in range(4):
    qproj_quarter(s)
A(f"""
s_cmp_lg_u32 s{sKVOK}, 0
s_cbranch_scc1 L_kvqb
s_waitcnt vmcnt(0)
""")
kv_try("b")
A(f"""
s_mul_i32 s{sT6}, s{sWAVE}, {6*CB_T}
s_add_u32 s{sT6}, s{sT6}, {CB}
v_add_u32 v11, s{sT6}, v{vL16x}
s_mov_b32 s{sLOOP}, 4
""")
A.nop(8)
for i in range(8):
    A(f"v_cvt_pk_bf16_f32 v{32+i}, v{S0+2*i}, v{S0+2*i+1}")
    if i == 3: A(f"ds_write_b128 v{vQw}, v[32:35]")
A(f"""
ds_write_b128 v{vQw}, v[36:39] offset:2048
s_waitcnt lgkmcnt(0)
""")
cnt_add(vCNT, vAone, 4)
for hd in range(2):
    A(f"v_mul_f32 v{32+hd}, v{S0+8*hd}, v{S0+8*hd}")
    for i in range(1, 8):
        A(f"v_fmac_f32 v{32+hd}, v{S0+8*hd+i}, v{S0+8*hd+i}")
A(f"""
v_mov_b32 v34, v32
v_mov_b32 v35, v33
v_add_u32 v{vKt[1]}, {KVS}, v{vKt[0]}
v_add_u32 v{vKt[2]}, {2*KVS}, v{vKt[0]}
v_permlane32_swap_b32 v34, v32
v_permlane32_swap_b32 v35, v33
v_add_f32 v32, v32, v34
v_add_f32 v33, v33, v35
v_max_f32 v32, v32, v33
v_add_u32 v{vVt[2]}, {2*KVS}, v{vVt[0]}
ds_max_f32 v{vCNT}, v32 offset:{QM - CNT}
""")
cnt_wait(vCNT, 36, 20, 4)
stamp(7 if HST else 2)
for pr in range(4):
    A(f"s_add_u32 s{sT0}, s{sWAVE}, {pr + 1}")
    A(f"s_and_b32 s{sT0}, s{sT0}, 3")
    A(f"s_lshl_b32 s{sT0}, s{sT0}, 11")
    A(f"v_add_u32 v{37}, s{sT0}, v{vQr}")
    A(f"ds_read_b128 v[{QF+8*pr}:{QF+8*pr+3}], v37")
    A(f"ds_read_b128 v[{QF+8*pr+4}:{QF+8*pr+7}], v37 offset:1024")
A(f"""
s_cmp_lg_u32 s{sKVOK}, 0
s_cbranch_scc1 L_kvgo
s_waitcnt vmcnt(0)
v_cmp_ne_u32 vcc, s{sTAG}, v{vFG}
s_cbranch_vccz L_kvok
""")
poll_flags(vFl, vFG, 2, sleep=0)
A.label("L_kvok")
kv_first()
A.label("L_kvgo")
stamp(3, not HST)
A(f"""
v_add_u32 v{vKt[3]}, {3*KVS}, v{vKt[0]}
v_add_u32 v{vVt[3]}, {3*KVS}, v{vVt[0]}
s_waitcnt vmcnt(9) lgkmcnt(0)
v_mfma_f32_32x32x16_bf16 v[{S0}:{S0+15}], v[{KV[0]}:{KV[0]+3}], v[{QF}:{QF+3}], 0
v_add_u32 v{vVt[1]}, {KVS}, v{vVt[0]}
v_lshlrev_b32 v13, 2, v{vLANE}
v_add_u32 v13, s{sT6}, v13
""")
A.nop(9)
SB = [S0, S1]
LASTSYNC = 8
CBASE = 6
def part_write(ct):
    A(f"ds_write_b128 v11, a[{16*ct}:{16*ct+3}] offset:{ct*CB_T}")
    A(f"ds_write_b128 v11, a[{16*ct+4}:{16*ct+7}] offset:{ct*CB_T + 1024}")
    A(f"ds_write_b32 v13, a{16*ct+8} offset:{ct*CB_T + 2048}")
def period(kb, ct, mode):
    cur = SB[ct & 1]; oth = SB[(ct + 1) & 1]
    pct = (ct - 1) % 8
    pkb = kb if ct > 0 else (kb - 1) % 4
    nct = (ct + 1) % 8
    nkb = kb if ct < 7 else (kb + 1) % 4
    ld = ct == 0 and mode == "loop" and not OPT["noKV"]
    early = mode == "last" and 1 <= ct <= 6
    e = lambda i: A(f"v_exp_f32 v{cur+i}, v{cur+i}")
    e(0); e(1)
    if mode != "first":
        A(f"v_smfmac_f32_32x32x32_bf16 a[{16*pct}:{16*pct+15}], v[{KV[pkb]+8}:{KV[pkb]+11}], v[{oth+8}:{oth+15}], v{vIDX}")
    e(2)
    if (mode, ct) == ("last", 0): A(f"ds_read_b32 v12, v{vCNT} offset:8")
    if (mode, ct) == ("last", 7):
        A("s_waitcnt lgkmcnt(0)")
        cnt_add(vCNT, vIDX, 4)
    e(3)
    if ct == 7 and mode == "loop": A(f"s_waitcnt vmcnt(6)")
    e(4)
    if (mode, ct) != ("last", 7):
        A(f"v_mfma_f32_32x32x16_bf16 v[{oth}:{oth+15}], v[{KV[nkb]}:{KV[nkb]+3}], v[{QF+4*nct}:{QF+4*nct+3}], 0")
    for i in range(5, 10): e(i)
    A(f"v_smfmac_f32_32x32x32_bf16 a[{16*ct}:{16*ct+15}], v[{KV[kb]+4}:{KV[kb]+7}], v[{cur}:{cur+7}], v{vIDX}")
    e(10); e(11)
    e(12)
    if ld: ld_k(pkb, pkb)
    if early: A(f"ds_write_b128 v11, a[{16*(ct-1)}:{16*(ct-1)+3}] offset:{(ct-1)*CB_T}")
    e(13)
    if ld: ld_v(pkb, 0, pkb)
    if (kb, ct, mode) == (0, 1, "loop"): A(f"s_add_u32 s{sKOFF}, s{sKOFF}, {4*KVS}")
    if (kb, ct, mode) == (2, 7, "loop"): A(f"s_sub_u32 s{sLOOP}, s{sLOOP}, 1")
    if early: A(f"ds_write_b128 v11, a[{16*(ct-1)+4}:{16*(ct-1)+7}] offset:{(ct-1)*CB_T + 1024}")
    e(14)
    if ld: ld_v(pkb, 1, pkb)
    if (kb, ct, mode) == (0, 1, "loop"): A(f"s_and_b32 s{sKOFF}, s{sKOFF}, 0xffff")
    if (kb, ct, mode) == (2, 7, "loop"): A(f"s_cmp_eq_u32 s{sLOOP}, 0")
    if early: A(f"ds_write_b32 v13, a{16*(ct-1)+8} offset:{(ct-1)*CB_T + 2048}")
    e(15)
    if mode == "last" and ct == 8 - OPT["trig"] - 1: cnt_add(vCNT, vIDX, 12)
    if (mode, ct) == ("last", 0):
        A(f"""
        s_waitcnt lgkmcnt(0)
        v_readfirstlane_b32 s{sT0}, v12
        s_cmp_ge_u32 s{sT0}, {4 if not (OPT["noS"] or OPT["nochk"]) else 0}
        s_cbranch_scc1 L_sfree
        """)
        cnt_wait(vCNT, 12, 4, 8, sleep=2)
        A.label("L_sfree")
if OPT["cyc"]: A(f"s_memtime s[{sST+10}:{sST+11}]")
period(0, 0, "first")
A("s_branch L_attn1")
A(".p2align 6")
A.label("L_attn")
loop_start = len(A.lines)
for kb in range(4):
    for ct in range(8):
        if (kb, ct) == (0, 1): A.label("L_attn1")
        period(kb, ct, "loop")
    if kb == 2: A("s_cbranch_scc1 L_last")
loop_end = len(A.lines)
A("s_branch L_attn")
A.label("L_last")
for ct in range(8):
    period(3, ct, "last")
A(f"""
s_nop 1
v_smfmac_f32_32x32x32_bf16 a[112:127], v[{KV[3]+8}:{KV[3]+11}], v[{S1+8}:{S1+15}], v{vIDX}
""")
stamp(4, not HST)
if OPT["cyc"]: A(f"s_memtime s[{sST+12}:{sST+13}]")
A(f"s_mov_b32 s{sATG}, 24")
A.label("L_comb")
for k in range(3):
    A(f"""
    s_add_u32 s{sT0}, s{sWAVE}, {k + 1}
    s_and_b32 s{sT0}, s{sT0}, 3
    s_mul_i32 s{sT0}, s{sT0}, {6*CB_T}
    s_add_u32 s{sT0}, s{sT0}, {CB + 2*(2 - k)*CB_T}
    v_add_u32 v{8+k}, s{sT0}, v{vL16x}
    v_lshl_add_u32 v{[12, 14, 15][k]}, v{vL31}, 2, s{sT0}
    """)
A(f"""
s_lshl_b32 s{sT1}, s{sG}, 2
s_add_u32 s{sT1}, s{sT1}, s{sWAVE}
s_lshl_b32 s{sT1}, s{sT1}, 10
s_lshl_b32 s{sT2}, s{sC}, 16
s_add_u32 s{sT1}, s{sT1}, s{sT2}
s_add_u32 s{sT1}, s{sT1}, {OB}
s_add_u32 s{sT2}, s{sT1}, 32768
s_waitcnt vmcnt(0)
""")
cnt_wait(vCNT, 16, f"s{sATG}", 4)
def astamp(i):
    if OPT["cyc"] or HST or not OPT["stamps"]: return
    stamp(i)
astamp(5)
PD = [[16, 24, 32, 40], [80, 88, 96, 104]]
PL = [[112, 113, 114, 115], [116, 117, 118, 119]]
A(f"ds_read_b64 v[120:121], v0 offset:{QM - CNT}")
for u in range(2):
    for k in range(3):
        A(f"ds_read_b32 v{PL[u][k+1]}, v{[12, 14, 15][k]} offset:{u*CB_T + 2048}")
    for k in range(3):
        A(f"ds_read_b128 v[{PD[u][k+1]}:{PD[u][k+1]+3}], v{8+k} offset:{u*CB_T}")
        A(f"ds_read_b128 v[{PD[u][k+1]+4}:{PD[u][k+1]+7}], v{8+k} offset:{u*CB_T + 1024}")
    if u == 0: A("s_waitcnt lgkmcnt(6)")
for u in range(2):
    A(f"v_accvgpr_read_b32 v{PL[u][0]}, a{16*(6+u)+8}")
    A(f"v_accvgpr_read_b32 v{122+u}, a{16*(6+u)+8}")
A(f"""
v_mul_f32 v120, v120, v121
v_add_f32 v113, v113, v114
v_permlane32_swap_b32 v112, v122
v_permlane32_swap_b32 v116, v123
v_cmp_nge_f32 vcc, {f2u(-1.0 if OPT['force_slow'] else 1000.0)}, v120
v_add_f32 v112, v112, v115
v_add_f32 v112, v112, v113
v_rcp_f32 v112, v112
s_cbranch_vccnz L_slow
L_fast:
""")
def comb(u, soff):
    d = PD[u]
    for i in range(8): A(f"v_accvgpr_read_b32 v{d[0]+i}, a{16*(6+u)+i}")
    if u == 0: A("s_waitcnt lgkmcnt(9)")
    else:
        A(f"""
        s_waitcnt lgkmcnt(2)
        v_add_f32 v117, v117, v118
        v_add_f32 v116, v116, v119
        v_add_f32 v116, v116, v117
        v_rcp_f32 v116, v116
        """)
    for i in range(0, 8, 2): A(f"v_pk_add_f32 {p2(d[1]+i)}, {p2(d[1]+i)}, {p2(d[2]+i)}")
    if u == 1: A("s_waitcnt lgkmcnt(0)")
    for i in range(0, 8, 2): A(f"v_pk_add_f32 {p2(d[0]+i)}, {p2(d[0]+i)}, {p2(d[3]+i)}")
    for i in range(0, 8, 2): A(f"v_pk_add_f32 {p2(d[0]+i)}, {p2(d[0]+i)}, {p2(d[1]+i)}")
    for i in range(0, 8, 2):
        A(f"v_pk_mul_f32 {p2(d[0]+i)}, {p2(d[0]+i)}, {p2(PL[u][0])} op_sel_hi:[1,0]")
    for i in range(0, 8, 2):
        A(f"v_cvt_pk_bf16_f32 v{d[1]+i//2}, v{d[0]+i}, v{d[0]+i+1}")
    A(f"buffer_store_dwordx4 v[{d[1]}:{d[1]+3}], v{vL16x}, {srd(R_WS)}, s{soff} offen sc1")
def p2(r): return f"v[{r}:{r+1}]"
comb(0, sT1); comb(1, sT2)
astamp(6)
if OPT["oack"]: A("s_waitcnt vmcnt(0)")
cnt_add(vCNT, vIDX, 12)
A(f"""
s_or_b32 s{sT0}, s2, s{sWAVE}
s_cmp_lg_u32 s{sT0}, 0
s_cbranch_scc1 L_noep
s_add_u32 s{sT0}, s{sEP}, 1
v_mov_b32 v10, s{sT0}
v_mov_b32 v11, 0
s_mov_b64 exec, 1
buffer_store_dword v10, v11, {srd(R_WS)}, 0 offen
s_mov_b64 exec, -1
L_noep:
""")
A.label("L_fin")
if OPT["stamps"]:
    A(f"""
    s_waitcnt vmcnt(0)
    s_memrealtime s[100:101]
    s_waitcnt lgkmcnt(0)
    s_lshl_b32 s{sT0}, s2, 3
    s_add_u32 s{sT0}, s{sT0}, s{sWAVE}
    s_lshl_b32 s{sT0}, s{sT0}, 6
    s_add_u32 s{sT0}, s{sT0}, {DBG + 0x800000}
    v_mov_b32 v11, 0
    """)
    for i in range(9): A(f"v_mov_b32 v{16+i}, s{sST+2*i}")
    A(f"""
    s_mov_b64 exec, 1
    buffer_store_dwordx4 v[16:19], v11, {srd(R_WS)}, s{sT0} offen
    buffer_store_dwordx4 v[20:23], v11, {srd(R_WS)}, s{sT0} offen offset:16
    buffer_store_dword v24, v11, {srd(R_WS)}, s{sT0} offen offset:32
    """)
if OPT["hdbg"]:
    A(f"""
    s_load_dwordx2 s[{sT2}:{sT3}], s[0:1], 120
    s_not_b32 s{sT0}, s{sST}
    v_mov_b32 v30, s{sT0}
    v_mov_b32 v31, 0
    s_waitcnt lgkmcnt(0)
    global_atomic_umax v31, v30, s[{sT2}:{sT3}]
    s_cmp_ge_u32 s{sWAVE}, 4
    s_cbranch_scc1 L_hdS
    """)
    for k, i in enumerate((0, 2, 3, 4, 5, 6, 8)):
        A(f"global_atomic_umax v31, v{16+i}, s[{sT2}:{sT3}] offset:{4*(1+k)}")
    A("s_branch L_end")
    A.label("L_hdS")
    for k, i in enumerate((1, 2, 3, 4, 5, 6, 7, 8)):
        if i in (1, 2):
            A(f"s_cmp_lg_u32 s{sWAVE}, 4")
            A(f"s_cbranch_scc1 L_hd{i}")
        A(f"global_atomic_umax v31, v{16+i}, s[{sT2}:{sT3}] offset:{4*(8+k)}")
        if i in (1, 2): A.label(f"L_hd{i}")
A.label("L_end")
A("s_endpgm")

A.label("L_S2a")
A("s_waitcnt vmcnt(0)")
A.label("L_S2")
SSEC[0] = True
kload([(R_XA, 0), (R_BRE, 24), (R_BIM, 32), (R_CRE, 40), (R_CIM, 48), (R_WO, 104), (R_AGG, 128)])
if OPT["pfc"]:
    A(f"""
    s_cmp_lg_u32 s{sWAVE}, 7
    s_cbranch_scc1 L_nopfcode
    s_getpc_b64 s[{sT0}:{sT1}]
    L_pc:
    s_sub_u32 s{sT0}, s{sT0}, L_pc-{NAME}_kernel
    s_subb_u32 s{sT1}, s{sT1}, 0
    s_lshl_b32 s{sLOOP}, s{sROT}, 13
    v_lshlrev_b32 v16, 7, v{vLANE}
    v_add_u32 v16, s{sLOOP}, v16
    v_min_u32 v16, L_hot_end-{NAME}_kernel-4, v16
    global_load_dword v{vDUM}, v16, s[{sT0}:{sT1}]
    L_nopfcode:
    """)
common_scalars()
srd_words([R_XA, R_BRE, R_BIM, R_CRE, R_CIM, R_WO, R_AGG])
A(f"""
s_lshl_b32 s{sT3}, s{sG}, 7
s_lshl_b32 s{sT4}, s{sG}, 16
s_waitcnt lgkmcnt(0)
s_mov_b64 s[{P_LRE}:{P_LRE+1}], s[{R_BRE}:{R_BRE+1}]
s_mov_b64 s[{P_LIM}:{P_LIM+1}], s[{R_BIM}:{R_BIM+1}]
s_mov_b64 s[{P_LDT}:{P_LDT+1}], s[{R_CRE}:{R_CRE+1}]
s_mov_b64 s[{P_DSK}:{P_DSK+1}], s[{R_CIM}:{R_CIM+1}]
s_mov_b64 s[{P_WV}:{P_WV+1}], s[{R_WO}:{R_WO+1}]
""")
for r, t in ((R_XA, sT2), (R_BRE, sT4), (R_BIM, sT4), (R_CRE, sT4), (R_CIM, sT4), (R_WO, sT3)):
    A(f"s_add_u32 s{r}, s{r}, s{t}")
    A(f"s_addc_u32 s{r+1}, s{r+1}, 0")
A(f"""
s_add_u32 s{R_AGG}, s{R_AGG}, {AGG}
s_addc_u32 s{R_AGG+1}, s{R_AGG+1}, 0
""")
common_after_wait(False)
if OPT["tlb"]:
    A(f"""
    s_cmp_lg_u32 s{sSW}, 2
    s_cbranch_scc1 L_notlb
    v_mov_b32 v16, 0
    s_lshl_b32 s{sT0}, s{sC}, 17
    s_add_u32 s{sT0}, s{sT0}, {HB}
    s_mov_b32 s{sT1}, {KVT}
    s_mov_b64 exec, 1
    """)
    for R in (R_XA, R_BRE, R_BIM, R_WO, R_CRE, R_CIM, R_OUT):
        A(f"buffer_load_dword v{vDUM}, v16, {srd(R)}, 0 offen")
    A(f"""
    buffer_load_dword v{vDUM}, v16, {srd(R_WS)}, s{sOB} offen sc1
    buffer_load_dword v{vDUM}, v16, {srd(R_WS)}, s{sT0} offen offset:2048 sc1
    s_mov_b64 exec, -1
    L_notlb:
    """)
A(f"""
s_add_u32 s{sROT}, s{sC}, s{sG}
s_and_b32 s{sROT}, s{sROT}, 3
v_lshrrev_b32 v20, 4, v{vLANE}
v_and_b32 v21, 15, v{vLANE}
v_lshlrev_b32 v22, 4, v21
v_lshl_add_u32 v{vBo}, v20, 14, v22
v_lshrrev_b32 v23, 1, v20
v_and_b32 v24, 1, v20
v_lshlrev_b32 v23, 15, v23
v_lshl_add_u32 v23, v24, 12, v23
v_add_u32 v{vXo}, v23, v22
v_lshlrev_b32 v{vPF}, 7, v21
s_lshl_b32 s{sT0}, s2, 11
v_add_u32 v{vPF}, s{sT0}, v{vPF}
""")
LOG2E = math.log2(math.e)
a0, a1, a2, a3, a4, a5 = PRM, PRM+1, PRM+2, 96, 97, 98
vLR, vLI = vL1, vL1 + 1
A(f"""
s_mov_b32 s{sT0}, {f2u(LOG2E)}
v_lshlrev_b32 v{a0}, 16, v{a0}
v_lshlrev_b32 v{a1}, 16, v{a1}
v_lshlrev_b32 v{a2}, 16, v{a2}
v_mul_f32 v{a2}, s{sT0}, v{a2}
v_exp_f32 v{a2}, v{a2}
s_nop 0
v_cvt_pk_bf16_f32 v{a2}, v{a2}, v{a2}
v_and_b32 v{a2}, 0xffff0000, v{a2}
v_mul_f32 v{a3}, v{a2}, v{a0}
v_mul_f32 v{a4}, v{a2}, v{a1}
v_mul_f32 v{a3}, s{sT0}, v{a3}
v_exp_f32 v{a3}, v{a3}
v_mul_f32 v{a4}, 0.15915494, v{a4}
v_fract_f32 v{a4}, v{a4}
v_cos_f32 v{vLR}, v{a4}
v_sin_f32 v{vLI}, v{a4}
s_nop 0
v_mul_f32 v{vLR}, v{a3}, v{vLR}
v_mul_f32 v{vLI}, v{a3}, v{vLI}
v_mul_f32 v{a2}, v{a0}, v{a0}
v_fmac_f32 v{a2}, v{a1}, v{a1}
v_rcp_f32 v{a2}, v{a2}
v_add_f32 v{a3}, -1.0, v{vLR}
v_mul_f32 v{a4}, v{a3}, v{a0}
v_fmac_f32 v{a4}, v{vLI}, v{a1}
v_mul_f32 v{a5}, v{vLI}, v{a0}
v_fma_f32 v{a5}, -v{a3}, v{a1}, v{a5}
v_add_f32 v{a2}, v{a2}, v{a2}
v_mul_f32 v{vCF}, v{a4}, v{a2}
v_mul_f32 v{vCF+1}, v{a5}, v{a2}
""")
def csq(d, s_):
    A(f"v_mul_f32 v{a0}, v{s_+1}, v{s_+1}")
    A(f"v_mul_f32 v{a1}, v{s_}, v{s_+1}")
    A(f"v_fma_f32 v{d}, v{s_}, v{s_}, -v{a0}")
    A(f"v_add_f32 v{d+1}, v{a1}, v{a1}")
csq(vL8, vL1); csq(vL8, vL8); csq(vL8, vL8)
csq(vL16, vL8)
csq(vL64, vL16); csq(vL64, vL64)
csq(vL512, vL64); csq(vL512, vL512); csq(vL512, vL512)
vD = PRM + 3
A(f"""
v_and_b32 v20, 1, v{vL31}
v_lshlrev_b32 v20, 4, v20
v_lshlrev_b32 v{vD}, v20, v{vD}
v_bfe_u32 v20, v{vL31}, 3, 1
v_cmp_eq_u32 vcc, v20, v{vH}
v_bfe_u32 v21, v{vL31}, 1, 2
v_lshrrev_b32 v22, 4, v{vL31}
v_cndmask_b32 v{vD}, 0, v{vD}, vcc
v_lshl_add_u32 v21, v22, 2, v21
""")
for i in range(8):
    A(f"v_cmp_eq_u32 vcc, {i}, v21")
    A("s_nop 1")
    A(f"v_cndmask_b32 v{DG+i}, 0, v{vD}, vcc")
A(f"""
v_and_b32 v20, 15, v{vL31}
v_mul_u32_u24 v20, 1040, v20
v_lshl_add_u32 v20, v{vH}, 4, v20
v_lshrrev_b32 v21, 4, v{vL31}
v_lshl_add_u32 v20, v21, 8, v20
s_lshl_b32 s{sT0}, s{sTW}, 9
v_add_u32 v{vAa[0]}, s{sT0}, v20
v_add_u32 v{vAa[1]}, {SLOT[1]}, v{vAa[0]}
s_lshl_b32 s{sT0}, s{sCW}, 9
s_add_u32 s{sT0}, s{sT0}, {BRE_O}
v_add_u32 v{vBa[0]}, s{sT0}, v20
v_add_u32 v{vBa[1]}, {SLOT[1]}, v{vBa[0]}
v_bfe_u32 v20, v{vL31}, 2, 1
v_lshlrev_b32 v20, 3, v20
v_bfe_u32 v21, v{vL31}, 4, 1
v_lshl_add_u32 v20, v21, 2, v20
v_and_b32 v21, 3, v{vL31}
v_add_u32 v20, v20, v21
v_mul_u32_u24 v20, 1040, v20
v_bfe_u32 v21, v{vL31}, 3, 1
v_lshl_add_u32 v20, v21, 8, v20
v_lshl_add_u32 v20, v{vH}, 4, v20
s_lshl_b32 s{sT0}, s{sTW}, 9
s_and_b32 s{sT1}, s{sG}, 1
s_lshl_b32 s{sT1}, s{sT1}, 7
s_add_u32 s{sT0}, s{sT0}, s{sT1}
s_lshl_b32 s{sT1}, s{sCW}, 6
s_add_u32 s{sT0}, s{sT0}, s{sT1}
s_lshr_b32 s{sLOOP}, s{sG}, 1
s_sub_u32 s{sLOOP}, s{sLOOP}, s{sROT}
s_and_b32 s{sLOOP}, s{sLOOP}, 3
s_mul_i32 s{sT1}, s{sLOOP}, {SLOT[1]}
s_cmp_eq_u32 s{sLOOP}, 3
s_cselect_b32 s{sT1}, 0, s{sT1}
s_add_u32 s{sT0}, s{sT0}, s{sT1}
v_add_u32 v{vDa}, s{sT0}, v20
s_mul_i32 s{sT7}, s{sSW}, {4*1040}
v_add_u32 v{vSt}, s{sT7}, v{vL16x}
v_add_u32 v{vAa[2]}, {SLOT[1]}, v{vSt}
v_add_u32 v{vBa[2]}, {SLOT[2]}, v{vSt}
""")
cnt_wait(vCNT, vTMP, 6, 0, sleep=1)
cnt_wait(vCNT, vTMP, 4, CNT4 if OPT["npre0"] else 12, sleep=1)
if OPT["stgl"] > 2: cnt_wait(vCNT, vTMP, 4*OPT["stgl"], 4, sleep=2)
prio(OPT["gprio"])
sstamp(1, 1)
def pfx(items):
    if OPT["pfb"] != 2: return
    nsh = 8 if OPT["map84"] else 4
    for R, sw, shift in items:
        lbl = A.newlabel("pfx")
        A(f"""
        s_cmp_lg_u32 s{sSW}, {sw}
        s_cbranch_scc1 {lbl}
        s_and_b32 s{sT0}, s{sC}, {nsh - 1}
        s_lshl_b32 s{sT0}, s{sT0}, {shift + 6 + (0 if nsh == 8 else 1)}
        v_lshlrev_b32 v{vPF}, {shift}, v{vLANE}
        buffer_load_dword v{vDUM}, v{vPF}, {srd(R)}, s{sT0} offen
        """)
        if nsh == 4:
            A(f"s_add_u32 s{sT0}, s{sT0}, {64 << shift}")
            A(f"buffer_load_dword v{vDUM}, v{vPF}, {srd(R)}, s{sT0} offen")
        A.label(lbl)
def pf16(pairs, lbl):
    if OPT["pfb"] != 1: return
    A(f"""
    s_cmp_lg_u32 s{sSW}, 1
    s_cbranch_scc1 {lbl}
    s_mov_b64 exec, 0xffff
    """)
    for p in pairs: A(f"global_load_dword v{vDUM}, v{vPF}, s[{p}:{p+1}]")
    A(f"s_mov_b64 exec, -1\n{lbl}:")
pf16([P_LRE, P_LIM, P_WV], "L_nopfb")
def g1_soff(s):
    A(f"""
    s_add_u32 s{sT5}, s{sROT}, {s}
    s_and_b32 s{sT5}, s{sT5}, 3
    s_lshl_b32 s{sT5}, s{sT5}, 8
    s_lshl_b32 s{sT3}, s{sSW}, 12
    s_add_u32 s{sT3}, s{sT3}, s{sT5}
    s_lshl_b32 s{sT4}, s{sTW}, 14
    s_add_u32 s{sT4}, s{sT4}, s{sT5}
    s_lshl_b32 s{sT5}, s{sCW}, 11
    s_add_u32 s{sT4}, s{sT4}, s{sT5}
    s_add_u32 s{sT5}, s{sT4}, 8192
    """)
def stg_reg(n):
    assert n < 32
    return f"a[{4*n}:{4*n+3}]"
def stg_load(n):
    s_, r = divmod(n, 12); i, m = divmod(r, 3)
    if r == 0: g1_soff(s_)
    if m == 0: A(f"buffer_load_dwordx4 {stg_reg(n)}, v{vXo}, {srd(R_XA)}, s{sT5 if i & 1 else sT4} offen offset:{(i>>1)*1024}")
    else: A(f"buffer_load_dwordx4 {stg_reg(n)}, v{vBo}, {srd([0, R_BRE, R_BIM][m])}, s{sT3} offen offset:{i*1024}")
W0 = OPT["win0"]
NPRE = OPT["npre"]
NPRE = max(NPRE, OPT["npre0"])
for n in range(NPRE):
    if OPT["npre0"] and n == OPT["npre0"]: cnt_wait(vCNT, vTMP, 4, 12, sleep=1)
    stg_load(n)
    if W0 and n >= W0: A(f"s_waitcnt vmcnt({W0})")
prio(OPT["vprio"])
A(f"s_waitcnt vmcnt({NPRE - 12})")
sstamp(2, 1)
prio(OPT["vprio"])
if OPT["npre0"] >= NPRE: cnt_wait(vCNT, vTMP, 4, 12, sleep=1)
if OPT["mid"]:
    for n in range(NPRE, NPRE + OPT["mid"]): stg_load(n)
    NPRE += OPT["mid"]
cnt_wait(vCNT, vTMP, 20, 4, sleep=1)
if OPT["noS"]: A("s_branch L_fin")
def stg_write(n):
    s, r = divmod(n, 12); i, m = divmod(r, 3)
    base = [vSt, vAa[2], vBa[2]][s]
    A(f"ds_write_b128 v{base}, {stg_reg(n)} offset:{[XA_O, BRE_O, BIM_O][m] + i*1040}")
ISS = [NPRE]
for n in range(12):
    stg_write(n)
    if ISS[0] < 12 + OPT["wq1"] and n >= 12 - (12 + OPT["wq1"] - NPRE) and ISS[0] < 32:
        stg_load(ISS[0]); ISS[0] += 1
sync_add(); sync_wait(0)
sstamp(3, 1)
def dma_piece(n, slot):
    i, m = divmod(n % 12, 3)
    if m == 0:
        A(f"s_add_u32 m0, s{sT7}, {slot + XA_O + i*1040 - (i>>1)*1024}")
        A("s_nop 0")
        A(f"buffer_load_dwordx4 v{vXo}, {srd(R_XA)}, s{sT5 if i & 1 else sT4} offen offset:{(i>>1)*1024} lds")
    else:
        A(f"s_add_u32 m0, s{sT7}, {slot + [0, BRE_O, BIM_O][m] + i*16}")
        A("s_nop 0")
        A(f"buffer_load_dwordx4 v{vBo}, {srd([0, R_BRE, R_BIM][m])}, s{sT3} offen offset:{i*1024} lds")
G1B = [FRS, FRS + 12, 64]
def g1_stage(s, extra=None, nwr=None, early_add=None):
    slot = s % 3
    prio(3 if (OPT["g1p"] >> s) & 1 else OPT["gprio"])
    sk = A.newlabel("nod")
    A(f"""
    s_cmp_lg_u32 s{sLOOP}, {s}
    s_cbranch_scc1 {sk}
    ds_read_b128 v[64:67], v{vDa}
    ds_read_b128 v[68:71], v{vDa} offset:32
    s_waitcnt lgkmcnt(0)
    v_mfma_f32_32x32x16_bf16 v[{Y0}:{Y0+15}], v[64:67], v[{DG}:{DG+3}], 0
    v_mfma_f32_32x32x16_bf16 v[{Y0}:{Y0+15}], v[68:71], v[{DG+4}:{DG+7}], v[{Y0}:{Y0+15}]
    {sk}:
    """)
    def rd(k):
        f = G1B[k % 3]
        A(f"ds_read_b128 v[{f}:{f+3}], v{vAa[slot]} offset:{k*32}")
        A(f"ds_read_b128 v[{f+4}:{f+7}], v{vBa[slot]} offset:{k*32}")
        A(f"ds_read_b128 v[{f+8}:{f+11}], v{vBa[slot]} offset:{k*32 + (BIM_O-BRE_O)}")
    rd(0); rd(1)
    for k in range(8):
        f = G1B[k % 3]
        if k + 2 < 8: rd(k + 2)
        nw = nwr(k - 1) if (nwr and k > 0) else 0
        A(f"s_waitcnt lgkmcnt({min(15, 3*(min(8, k + 3) - k - 1) + nw)})")
        if k == 7 and early_add is not None:
            if early_add: A(early_add)
            sync_add(False)
        cr = "0" if (s == 0 and k == 0) else f"v[{UR}:{UR+15}]"
        ci = "0" if (s == 0 and k == 0) else f"v[{UI}:{UI+15}]"
        A(f"v_mfma_f32_32x32x16_bf16 v[{UR}:{UR+15}], v[{f}:{f+3}], v[{f+4}:{f+7}], {cr}")
        if extra: extra(k)
        A(f"v_mfma_f32_32x32x16_bf16 v[{UI}:{UI+15}], v[{f}:{f+3}], v[{f+8}:{f+11}], {ci}")
def issue_more(cnt):
    for n in range(ISS[0], min(36, ISS[0] + cnt)):
        if n < 32: stg_load(n)
        else: dma_piece(n, SLOT[2])
    ISS[0] = min(36, ISS[0] + cnt)
def ex0(k):
    issue_more(-(-(36 - ISS[0]) // (8 - k)))
    if 3 <= k < 7:
        hi = 12 + 3*(k - 3) + 3
        assert ISS[0] >= hi
        A(f"s_waitcnt vmcnt({ISS[0] - hi})")
        for n in range(hi - 3, hi): stg_write(n)
g1_stage(0, ex0, lambda k: 3 if 3 <= k < 6 else 0, early_add="")
assert ISS[0] == 36
sstamp(4, 1)
prio(OPT["vprio"])
g1_soff(3)
pfx([(R_WO, 1, 10)])
sync_wait(0)
def ex1(k):
    if k < 3:
        A(f"s_waitcnt vmcnt({[9, 6, 4][k] + 2*k})")
        for n in range(24 + 3*k, min(32, 27 + 3*k)): stg_write(n)
    for n in range(2*k, min(12, 2*k + 2)): dma_piece(n, SLOT[0])
g1_stage(1, ex1, lambda k: [3, 3, 2][k] if k < 3 else 0, early_add="s_waitcnt vmcnt(12)")
sstamp(5, 1)
prio(OPT["vprio"])
A(f"v_add_u32 v{vAa[2]}, {SLOT[2]}, v{vAa[0]}")
A(f"v_add_u32 v{vBa[2]}, {SLOT[2]}, v{vBa[0]}")
CLR = 64
A(f"""
v_mov_b32 v{CLR}, -1
v_mov_b32 v{CLR+1}, -1
v_mov_b32 v{CLR+2}, -1
v_mov_b32 v{CLR+3}, -1
s_lshl_b32 s{sT0}, s{sG}, 12
s_add_u32 s{sT0}, s{sT0}, s{sOB}
s_lshl_b32 s{sT1}, s{sCW}, 11
s_add_u32 s{sT0}, s{sT0}, s{sT1}
buffer_store_dwordx4 v[{CLR}:{CLR+3}], v{vL16x}, {srd(R_WS)}, s{sT0} offen sc1
buffer_store_dwordx4 v[{CLR}:{CLR+3}], v{vL16x}, {srd(R_WS)}, s{sT0} offen offset:1024 sc1
v_mov_b32 v{CLR+4}, 0
v_mov_b32 v{CLR+5}, s{sTAG}
v_mov_b32 v{CLR+6}, 0
v_mov_b32 v{CLR+7}, s{sTAG}
s_lshl_b32 s{sT1}, s{sID}, 7
s_add_u32 s{sT1}, s{sT1}, {AGG_DUMMY}
s_mov_b64 exec, 1
buffer_store_dwordx4 v[{CLR+4}:{CLR+7}], v{CLR+4}, {srd(R_AGG)}, s{sT1} offen sc1
s_mov_b64 exec, -1
""")
sync_wait(0)
g1_stage(2, early_add="s_waitcnt vmcnt(0)")
sstamp(6, 1)
prio(OPT["vprio"])
pf16([P_LDT, P_DSK], "L_nopfc")
pfx([(R_CRE, 2, 7), (R_CIM, 3, 7)])
wq_voffset(5, 6, 8, 15)
A(f"""
s_mul_i32 s{sT2}, s{sSW}, {16*1040}
s_lshl_b32 s{sT3}, s{sSW}, 14
s_lshl_b32 s{sT6}, s{sSW}, 17
""")
sync_wait(0)
def wo_piece(i):
    A(f"""
    s_add_u32 m0, s{sT3}, {WO + i*1024}
    s_add_u32 s{sT1}, s{sT6}, {i*8192}
    buffer_load_dwordx4 v5, {srd(R_WO)}, s{sT1} offen lds
    """)
def c_piece(R, base, i):
    A(f"s_add_u32 m0, s{sT2}, {base + i*1040 - (i & 3)*1024}")
    if i & 3 == 0: A(f"s_add_u32 s{sT4}, s{sT3}, {i*1024}")
    else: A("s_nop 0")
    A(f"buffer_load_dwordx4 v{vL16x}, {srd(R)}, s{sT4} offen offset:{(i & 3)*1024} lds")
def ex3(k):
    wo_piece(2*k); wo_piece(2*k + 1)
g1_stage(3, ex3)
sstamp(7, 1); sstamp(1, 2)
prio(OPT["vprio"])
stamp(3)
A(f"""
s_lshl_b32 s{sT0}, s{sTW}, 10
s_lshl_b32 s{sT1}, s{sCW}, 8
s_add_u32 s{sT1}, s{sT1}, {EB}
s_add_u32 s{sT0}, s{sT0}, s{sT1}
v_lshlrev_b32 v10, 3, v{vL31}
v_add_u32 v11, s{sT1}, v10
v_lshl_add_u32 v10, v{vH}, 9, v10
v_add_u32 v10, s{sT0}, v10
""")
A.nop(4)
if OPT["dbg"]:
    A(f"""
    s_lshl_b32 s{sT0}, s{sID}, 2
    s_add_u32 s{sT0}, s{sT0}, s{sSW}
    s_lshl_b32 s{sT0}, s{sT0}, 13
    s_add_u32 s{sT0}, s{sT0}, {DBG}
    v_lshlrev_b32 v12, 2, v{vLANE}
    """)
    for i in range(32):
        A(f"buffer_store_dword v{UR+i}, v12, {srd(R_WS)}, s{sT0} offen")
        A(f"s_add_u32 s{sT0}, s{sT0}, 256")
    A("s_waitcnt vmcnt(0)")
def cstep4(dr, di, pr, pi, l, ur, ui, tr, ti):
    A(f"v_fma_f32 v{tr}, v{l}, v{pr}, v{ur}")
    A(f"v_fma_f32 v{ti}, v{l}, v{pi}, v{ui}")
    A(f"v_fma_f32 v{dr}, -v{l+1}, v{pi}, v{tr}")
    A(f"v_fma_f32 v{di}, v{l+1}, v{pr}, v{ti}")
def p2(r): return f"v[{r}:{r+1}]"
def pkstep(dr, di, pr, pi, l, ur, ui, tr, ti):
    A(f"v_pk_fma_f32 {p2(tr)}, {p2(l)}, {p2(pr)}, {p2(ur)} op_sel_hi:[0,1,1]")
    A(f"v_pk_fma_f32 {p2(ti)}, {p2(l)}, {p2(pi)}, {p2(ui)} op_sel_hi:[0,1,1]")
    A(f"v_pk_fma_f32 {p2(dr)}, {p2(l)}, {p2(pi)}, {p2(tr)} op_sel:[1,0,0] neg_lo:[1,0,0] neg_hi:[1,0,0]")
    A(f"v_pk_fma_f32 {p2(di)}, {p2(l)}, {p2(pr)}, {p2(ti)} op_sel:[1,0,0]")
pa = [(FRS, FRS+2), (6, 8)]
p = (UR, UI)
for j in range(1, 8):
    d = pa[j & 1]
    pkstep(d[0], d[1], p[0], p[1], vL1, UR+2*j, UI+2*j, FRS+4, FRS+6)
    p = d
EA = (6, 8)
cstep4(FRS, FRS+1, 6, 8, vL8, 7, 9, FRS+4, FRS+5)
A(f"ds_write_b64 v10, v[{FRS}:{FRS+1}]")
A("s_waitcnt vmcnt(0)")
sync_add()
LB = 64
A(f"""
s_lshl_b32 s{sT0}, s{sTW}, 4
s_sub_u32 s{sT0}, s{sC}, s{sT0}
s_sub_u32 s{sT0}, s{sT0}, 1
s_lshl_b32 s{sT0}, s{sT0}, 13
v_lshlrev_b32 v5, 16, v{vH}
v_sub_u32 v5, s{sT0}, v5
v_lshl_add_u32 v5, v{vP2}, 3, v5
s_lshl_b32 s{sT1}, s{sID}, 7
s_add_u32 s{sT1}, s{sT1}, {AGG_DUMMY}
""")
for k in range(8):
    A(f"v_min_u32 v{96+k}, s{sT1}, v5")
    if k < 7: A(f"v_add_u32 v5, {(-8192) & 0xffffffff}, v5")
sync_wait(0)
sstamp(2, 2)
E = FRS
for s in range(4):
    A(f"ds_read_b64 v[{E+2*s}:{E+2*s+1}], v11 offset:{s*512}")
A("s_waitcnt lgkmcnt(0)")
A1, A2, G3 = (104, 105), (106, 107), 108
cstep4(A1[0], A1[1], E, E+1, vL16, E+2, E+3, FRS+8, FRS+9)
cstep4(A2[0], A2[1], A1[0], A1[1], vL16, E+4, E+5, FRS+8, FRS+9)
vPR, vPI, vW = 12, 13, 14
tw1 = A.newlabel("tw1"); twd = A.newlabel("twd")
A(f"""
v_cmp_eq_u32 vcc, 1, v{vH}
s_cmp_lg_u32 s{sTW}, 0
s_cbranch_scc1 {tw1}
""")
cstep4(G3, G3+2, A2[0], A2[1], vL16, E+6, E+7, FRS+8, FRS+9)
A(f"""
v_mov_b32 v{G3+1}, s{sTAG}
v_mov_b32 v{G3+3}, s{sTAG}
v_lshlrev_b32 v7, 3, v{vP2}
s_lshl_b32 s{sT0}, s{sC}, 13
s_mov_b32 exec_hi, 0
buffer_store_dwordx4 v[{G3}:{G3+3}], v7, {srd(R_AGG)}, s{sT0} offen sc1
s_mov_b32 exec_hi, -1
v_cndmask_b32 v{vPR}, 0, v{E}, vcc
v_cndmask_b32 v{vPI}, 0, v{E+1}, vcc
v_cndmask_b32 v{vW}, 1.0, v{vL16}, vcc
v_cndmask_b32 v{vW+1}, 0, v{vL16+1}, vcc
s_branch {twd}
{tw1}:
v_cndmask_b32 v{vPR}, v{A1[0]}, v{A2[0]}, vcc
v_cndmask_b32 v{vPI}, v{A1[1]}, v{A2[1]}, vcc
v_mul_f32 v{FRS+8}, v{vL16+1}, v{vL16+1}
v_mul_f32 v{FRS+9}, v{vL16}, v{vL16+1}
v_fma_f32 v{FRS+8}, v{vL16}, v{vL16}, -v{FRS+8}
v_add_f32 v{FRS+9}, v{FRS+9}, v{FRS+9}
v_mul_f32 v{FRS+10}, v{FRS+8}, v{vL16}
v_mul_f32 v{FRS+11}, v{FRS+8}, v{vL16+1}
v_fma_f32 v{FRS+10}, -v{FRS+9}, v{vL16+1}, v{FRS+10}
v_fma_f32 v{FRS+11}, v{FRS+9}, v{vL16}, v{FRS+11}
v_cndmask_b32 v{vW}, v{FRS+8}, v{FRS+10}, vcc
v_cndmask_b32 v{vW+1}, v{FRS+9}, v{FRS+11}, vcc
{twd}:
""")
A(f"s_mov_b32 s{sSPIN}, 0")
A(f"""
s_lshl_b32 s{sT0}, s{sSW}, 12
s_add_u32 s{sT0}, s{sT0}, {TB}
v_lshlrev_b32 v9, 6, v{vL31}
v_lshl_add_u32 v9, v{vH}, 5, v9
v_add_u32 v9, s{sT0}, v9
v_bfe_u32 v108, v{vLANE}, 2, 2
v_lshl_add_u32 v108, v{vH}, 3, v108
v_lshlrev_b32 v108, 6, v108
v_bfe_u32 v109, v{vLANE}, 4, 1
v_lshl_add_u32 v108, v109, 5, v108
v_and_b32 v109, 3, v{vLANE}
v_lshl_add_u32 v108, v109, 3, v108
v_add_u32 v108, s{sT0}, v108
""")
A(f"""
v_bfe_u32 v5, v{vLANE}, 2, 2
v_lshl_add_u32 v5, v{vH}, 2, v5
v_bfe_u32 v7, v{vLANE}, 4, 1
v_and_b32 v110, 3, v{vLANE}
v_lshlrev_b32 v110, 3, v110
v_lshl_add_u32 v110, v7, 5, v110
v_bfe_u32 v7, v{vLANE}, 3, 1
v_lshl_add_u32 v110, v7, 6, v110
v_lshl_add_u32 v110, v5, 7, v110
s_lshl_b32 s{sT0}, s{sCW}, 15
s_add_u32 s{sT0}, s{sT0}, {WO}
s_lshl_b32 s{sT1}, s{sCW}, 6
v_xor_b32 v110, s{sT1}, v110
v_xor_b32 v111, 64, v110
v_add_u32 v110, s{sT0}, v110
v_add_u32 v111, s{sT0}, v111
""")
for j in range(16):
    for nt in range(2):
        f = 8*j + 4*nt
        A(f"ds_read_b64_tr_b16 a[{f}:{f+1}], v{110 + nt} offset:{j*2048}")
        A(f"ds_read_b64_tr_b16 a[{f+2}:{f+3}], v{110 + nt} offset:{j*2048 + 1024}")
    if j % 3 == 2: A("s_waitcnt lgkmcnt(3)")
prio(OPT["gprio"])
for i in range(OPT["cim1"]): c_piece(R_CIM, CIM, i)
prio(OPT["vprio"])
sstamp(3, 2)
A.label("L_lb")
for k in range(8):
    A(f"buffer_load_dwordx4 v[{LB+4*k}:{LB+4*k+3}], v{96+k}, {srd(R_AGG)}, 0 offen sc1")
A(f"""
s_add_u32 s{sSPIN}, s{sSPIN}, 1
s_waitcnt vmcnt(0)
v_min_u32 v5, v{LB+1}, v{LB+3}
v_max3_u32 v7, s{sTAG}, v{LB+1}, v{LB+3}
""")
for k in range(1, 8):
    A(f"v_min3_u32 v5, v5, v{LB+4*k+1}, v{LB+4*k+3}")
    A(f"v_max3_u32 v7, v7, v{LB+4*k+1}, v{LB+4*k+3}")
A(f"""
v_min_u32 v5, s{sTAG}, v5
v_cmp_ne_u32 vcc, v5, v7
s_cbranch_vccz L_lbd
s_sleep 8
s_cmp_lt_u32 s{sSPIN}, {SPIN_MAX}
s_cbranch_scc1 L_lb
L_lbd:
""")
stamp(4); sstamp(4, 2)
p = (LB+28, LB+30)
pb = [(96, 97), (98, 99)]
for k in range(6, -1, -1):
    d = pb[k & 1]
    cstep4(d[0], d[1], p[0], p[1], vL64, LB+4*k, LB+4*k+2, 100, 101)
    p = d
A(f"ds_write_b64 v10, v[96:97] offset:{HP-EB}")
sync_add(); sync_wait(0)
sstamp(5, 2)
for s in range(4):
    A(f"ds_read_b64 v[{E+2*s}:{E+2*s+1}], v11 offset:{HP - EB + s*512}")
A("s_waitcnt lgkmcnt(0)")
p = (E+6, E+7)
for s in range(2, -1, -1):
    d = pb[s & 1]
    cstep4(d[0], d[1], p[0], p[1], vL512, E+2*s, E+2*s+1, 100, 101)
    p = d
CRp, CIp = 104, 106
cstep4(CRp, CIp, p[0], p[1], vW, vPR, vPI, 100, 101)
cstep4(CRp+1, CIp+1, CRp, CIp, vL8, EA[0], EA[1], 100, 101)
HR, HI = FRS, FRS+8
p = (CRp, CIp)
for j in range(8):
    pkstep(UR+2*j, UI+2*j, p[0], p[1], vL1, UR+2*j, UI+2*j, 100, 102)
    p = (UR+2*j, UI+2*j)
    if OPT['cpos'] == 0: c_piece(R_CRE, CRE, 2*j)
    A(f"v_pk_mul_f32 {p2(96)}, {p2(vCF)}, {p2(UI+2*j)} op_sel:[1,0]")
    A(f"v_pk_mul_f32 {p2(98)}, {p2(vCF)}, {p2(UR+2*j)} op_sel:[1,0]")
    A(f"v_pk_fma_f32 {p2(96)}, {p2(vCF)}, {p2(UR+2*j)}, {p2(96)} op_sel_hi:[0,1,1] neg_lo:[0,0,1] neg_hi:[0,0,1]")
    A(f"v_pk_fma_f32 {p2(98)}, {p2(vCF)}, {p2(UI+2*j)}, {p2(98)} op_sel_hi:[0,1,1] neg_lo:[1,0,1] neg_hi:[1,0,1]")
    if OPT['cpos'] == 0: c_piece(R_CRE, CRE, 2*j + 1)
    A(f"v_cvt_pk_bf16_f32 v{HR+j}, v96, v97")
    A(f"v_cvt_pk_bf16_f32 v{HI+j}, v98, v99")
    if j == 3:
        A(f"ds_write_b128 v9, v[{HR}:{HR+3}]")
        A(f"ds_write_b128 v9, v[{HI}:{HI+3}] offset:2048")
A(f"""
ds_write_b128 v9, v[{HR+4}:{HR+7}] offset:16
ds_write_b128 v9, v[{HI+4}:{HI+7}] offset:2064
s_lshl_b32 s{sKOFF}, s{sC}, 1
s_add_u32 s{sKOFF}, s{sKOFF}, s{sTW}
s_lshl_b32 s{sKOFF}, s{sKOFF}, 16
s_add_u32 s{sKOFF}, s{sKOFF}, {HB}
s_lshl_b32 s{sT1}, s{sG}, 12
s_lshl_b32 s{sT7}, s{sCW}, 11
s_add_u32 s{sT1}, s{sT1}, s{sT7}
s_add_u32 s{sT0}, s{sKOFF}, s{sT1}
s_add_u32 s{sT1}, s{sT0}, 32768
s_waitcnt lgkmcnt(0)
""")
for part in range(2):
    for hf in range(2):
        f = 64 + 8*part + 4*hf
        A(f"ds_read_b64_tr_b16 v[{f}:{f+1}], v108 offset:{part*2048 + hf*1024}")
        A(f"ds_read_b64_tr_b16 v[{f+2}:{f+3}], v108 offset:{part*2048 + hf*1024 + 256}")
for n in range(4):
    A(f"s_waitcnt lgkmcnt({6 - 2*n})")
    A(f"buffer_store_dwordx4 v[{64+4*n}:{67+4*n}], v{vL16x}, {srd(R_WS)}, s{sT0 if n < 2 else sT1} offen offset:{(n&1)*1024} sc1")
A(f"""
s_lshl_b32 s{sT7}, s{sC}, 12
s_add_u32 s{sT7}, s{sT7}, {FL3}
v_and_b32 v5, 15, v{vLANE}
v_lshlrev_b32 v5, 8, v5
s_lshl_b32 s{sT0}, s{sTW}, 7
s_add_u32 s{sT0}, s{sT0}, s{sT7}
v_add_u32 v5, s{sT0}, v5
v_mov_b32 v12, s{sTAG}
v_mov_b32 v13, 0
s_lshl_b32 s{sT1}, s{sG}, 2
s_add_u32 s{sT1}, s{sT1}, s{sSW}
s_lshl_b32 s{sT1}, s{sT1}, 7
s_add_u32 s{sT1}, s{sT1}, s{sT7}
""")
sstamp(6, 2)
A("s_waitcnt vmcnt(0)")
sstamp(7, 2); sstamp(1, 3)
A(f"""
s_mov_b64 exec, 1
buffer_store_dword v12, v13, {srd(R_WS)}, s{sT1} offen sc1
s_mov_b64 exec, -1
""")
if OPT["cpos"] == 0: sync_add(False)
else:
    prio(OPT["gprio"])
    for i in range(16): c_piece(R_CRE, CRE, i)
    prio(OPT["vprio"])
stamp(5, not HST)
A(f"""
v_mul_u32_u24 v10, 1040, v{vL31}
v_lshl_add_u32 v10, v{vH}, 4, v10
s_mul_i32 s{sT0}, s{sCW}, {512 + 32*1040}
s_mul_i32 s{sT1}, s{sCW}, {(512 - 32*1040) & 0xffffffff}
s_add_u32 s{sT1}, s{sT1}, {32*1040}
v_add_u32 v11, s{sT1}, v10
v_add_u32 v10, s{sT0}, v10
v_add_u32 v14, {CRE}, v10
v_add_u32 v15, {CRE}, v11
s_lshl_b32 s{sT1}, s{sCW}, 14
s_add_u32 s{sKOFF}, s{sKOFF}, s{sT1}
s_add_u32 s{sOB}, s{sOB}, s{sT1}
s_xor_b32 s{sT0}, s{sSW}, 2
s_lshl_b32 s{sT0}, s{sT0}, 12
v_add_u32 v114, s{sT0}, v{vL16x}
s_lshl_b32 s{sT0}, s{sSW}, 12
v_add_u32 v115, s{sT0}, v{vL16x}
v_add_u32 v119, {TB}, v114
v_add_u32 v120, {TB}, v115
s_lshl_b32 s{sT0}, s{sTW}, 17
s_lshl_b32 s{sT1}, s{sG}, 8
s_add_u32 s{sT0}, s{sT0}, s{sT1}
s_lshl_b32 s{sT1}, s{sCW}, 7
s_add_u32 s{sT0}, s{sT0}, s{sT1}
v_lshlrev_b32 v113, 2, v{vL31}
v_add_u32 v113, s{sT0}, v113
v_lshl_add_u32 v118, v{vH}, 14, v113
v_add_u32 v118, 2048, v118
v_lshl_add_u32 v113, v{vH}, 13, v113
""")
sstamp(2, 3)
poll_flags(5, 12, 1, sleep=OPT['sl2'])
if OPT["cpos"] == 1: sync_add(False)
sstamp(3, 3)
LA = 7
HRING = 16
def hreg(j): return HRING + 4*(j % 8)
def h_ld(j):
    if j == 16: A(f"s_add_u32 s{sKOFF}, s{sKOFF}, {32768 - 3*4096}")
    elif j % 4 == 0 and j > 0: A(f"s_add_u32 s{sKOFF}, s{sKOFF}, 4096")
    A(f"buffer_load_dwordx4 v[{hreg(j)}:{hreg(j)+3}], v{vL16x}, {srd(R_WS)}, s{sKOFF} offen offset:{(j%4)*1024} sc1")
for j in range(LA): h_ld(j)
def g2_rd(j):
    f = FRS + 8*(j % 3)
    A(f"ds_read_b128 v[{f}:{f+3}], v{14 if j < 16 else 10} offset:{(j % 16)*32}")
    A(f"ds_read_b128 v[{f+4}:{f+7}], v{15 if j < 16 else 11} offset:{(j % 16)*32}")
def g2_mfma(j):
    f = FRS + 8*(j % 3)
    c = "0" if j == 0 else f"v[{Y1}:{Y1+15}]"
    A(f"v_mfma_f32_32x32x16_bf16 v[{Y1}:{Y1+15}], v[{hreg(j)}:{hreg(j)+3}], v[{f+4}:{f+7}], {c}")
    A(f"v_mfma_f32_32x32x16_bf16 v[{Y0}:{Y0+15}], v[{hreg(j)}:{hreg(j)+3}], v[{f}:{f+3}], v[{Y0}:{Y0+15}]")
sync_wait(0)
prio(3 if OPT["g2p"] & 1 else OPT["gprio"])
g2_rd(0); g2_rd(1)
VQ = list(range(LA))
P2 = 32 - OPT["p2n"]
for j in range(32):
    if j == P2:
        if P2 + LA < 32 or True:
            pass
        prio(OPT["vprio"])
        cnt_wait(vCNT, vTMP, 8, 12, sleep=OPT['sl1'])
        sstamp(6, 3); sstamp(1, 4)
        prio(3 if OPT["g2p"] & 2 else OPT["gprio"])
    if j + LA < 32:
        h_ld(j + LA); VQ.append(j + LA)
    rest = list(range(OPT["cim1"], 16))
    per = -(-len(rest) // 10) if rest else 0
    for i in rest[per*j:per*(j + 1)] if j < 10 else []:
        if i == rest[0] and i & 3: A(f"s_add_u32 s{sT4}, s{sT3}, {(i & ~3)*1024}")
        c_piece(R_CIM, CIM, i); VQ.append(-2 if i == 15 else -1)
    if not rest and j == 0: VQ.insert(0, -2)
    if j == 14:
        prio(OPT["vprio"]); sync_wait(0); prio(3 if OPT["g2p"] & 1 else OPT["gprio"])
    if j + 2 < 32: g2_rd(j + 2)
    issued = min(32, j + 3)
    need = max(VQ.index(j), VQ.index(-2)) if j == 12 else VQ.index(j)
    A(f"s_waitcnt vmcnt({len(VQ) - 1 - need}) lgkmcnt({2*(issued - j - 1)})")
    if j == 12: sync_add(False)
    if j == 0: sstamp(4, 3)
    if j == 15:
        cnt_add(vCNT, vONE, 8)
        stamp(6, not HST); sstamp(5, 3)
    g2_mfma(j)
prio(OPT["vprio"])
A.nop(10)
for i in range(4):
    A(f"ds_write_b128 v119, v[{Y1+4*i}:{Y1+4*i+3}] offset:{i*1024}")
sync_add()
sync_wait(0)
for i in range(4):
    A(f"ds_read_b128 v[{Y1+4*i}:{Y1+4*i+3}], v120 offset:{i*1024}")
for i in range(16):
    if i % 4 == 0: A(f"s_waitcnt lgkmcnt({3 - i//4})")
    A(f"v_add_f32 v{Y0+i}, v{Y0+i}, v{Y1+i}")
    A(f"s_mov_b32 s{sT1}, {(16*(i>>3) + 4*((i>>2)&1) + ((i>>1)&1) + 8*(i&1))*4096}")
    A(f"buffer_store_dword v{Y0+i}, v113, {srd(R_OUT)}, s{sT1} offen{OST}")
stamp(7); sstamp(7, 3); sstamp(2, 4)
cnt_wait(vCNT, vTMP, 12, 12)
sstamp(3, 4)
if OPT["odel"]: A(f"s_sleep {OPT['odel']}")
def oreg(j): return (16 + 4*j) if j < 8 else (80 + 4*(j - 8))
def o_loads(g4):
    A(f"s_add_u32 s{sT1}, s{sOB}, {g4*4096}")
    for j in range(4*g4, 4*g4 + 4):
        A(f"buffer_load_dwordx4 v[{oreg(j)}:{oreg(j)+3}], v{vL16x}, {srd(R_WS)}, s{sT1} offen offset:{(j%4)*1024} sc1")
for g4 in range(4): o_loads(g4)
A(f"s_mov_b32 s{sSPIN}, 0")
for g4 in range(4):
    lp = A.newlabel("op"); dn = A.newlabel("opd"); ck = A.newlabel("opc")
    j0 = 4*g4
    A(f"s_waitcnt vmcnt({4*(3 - g4)})")
    A.label(ck)
    A(f"v_max_u32 v13, v{oreg(j0)+1}, v{oreg(j0)+3}")
    for j in range(j0 + 1, j0 + 4):
        A(f"v_max3_u32 v13, v13, v{oreg(j)+1}, v{oreg(j)+3}")
    A(f"""
    v_cmp_eq_u32 vcc, -1, v13
    s_cbranch_vccz {dn}
    s_add_u32 s{sSPIN}, s{sSPIN}, 1
    s_cmp_gt_u32 s{sSPIN}, 20000
    s_cbranch_scc1 {dn}
    """)
    o_loads(g4)
    A(f"""
    s_waitcnt vmcnt(0)
    s_branch {ck}
    {dn}:
    """)
    if g4 in (0, 3): sstamp(4 + g4 // 3, 4)
    for j in range(j0, j0 + 4):
        c0 = "0" if j == 0 else f"v[{Y0}:{Y0+15}]"
        c1 = "0" if j == 0 else f"v[{Y1}:{Y1+15}]"
        A(f"v_mfma_f32_32x32x16_bf16 v[{Y1}:{Y1+15}], v[{oreg(j)}:{oreg(j)+3}], a[{8*j+4}:{8*j+7}], {c1}")
        A(f"v_mfma_f32_32x32x16_bf16 v[{Y0}:{Y0+15}], v[{oreg(j)}:{oreg(j)+3}], a[{8*j}:{8*j+3}], {c0}")
if OPT["sst"] == 4: A(f"s_mov_b32 s{sST+14}, s{sSPIN}")
A.nop(11)
for i in range(4):
    A(f"ds_write_b128 v114, v[{Y1+4*i}:{Y1+4*i+3}] offset:{TB2 + i*1024}")
A("s_waitcnt lgkmcnt(0)")
A("s_barrier")
sstamp(6, 4)
for i in range(4):
    A(f"ds_read_b128 v[{Y1+4*i}:{Y1+4*i+3}], v115 offset:{TB2 + i*1024}")
for i in range(16):
    if i % 4 == 0: A(f"s_waitcnt lgkmcnt({3 - i//4})")
    A(f"v_add_f32 v{Y0+i}, v{Y0+i}, v{Y1+i}")
    A(f"s_mov_b32 s{sT1}, {(8*(i>>2) + (i&3))*4096}")
    A(f"buffer_store_dword v{Y0+i}, v118, {srd(R_OUT)}, s{sT1} offen{OST}")
A("s_branch L_fin")

A.label("L_hot_end")
A.label("L_slow")
A(f"""
s_cmp_lg_u32 s{sDONE}, 0
s_cbranch_scc1 L_fast
s_mov_b32 s{sDONE}, 1
s_waitcnt lgkmcnt(0)
""")
def a_sync():
    A(f"s_add_u32 s{sATG}, s{sATG}, 4")
    A("s_waitcnt lgkmcnt(0)")
    cnt_add(vCNT, vIDX, 4)
    cnt_wait(vCNT, 16, f"s{sATG}", 4, sleep=2)
for i in range(4): A(f"v_mov_b32 v{vZ+i}, 0")
for ct in range(8): A(f"v_mov_b32 v{vM+ct}, 0xff800000")
A("s_nop 1")
for ct in range(8):
    A(f"v_mfma_f32_32x32x16_bf16 a[{16*ct}:{16*ct+15}], v[{vZ}:{vZ+3}], v[{vZ}:{vZ+3}], 0")
A(f"s_mov_b32 s{sLOOP}, 16")
def adv():
    A(f"s_add_u32 s{sKOFF}, s{sKOFF}, {KVS}"); A(f"s_and_b32 s{sKOFF}, s{sKOFF}, 0xffff")
A.label("L_sl1")
ld_k(0, 0); adv()
A("s_waitcnt vmcnt(0)")
for ct in range(8):
    A(f"v_mfma_f32_32x32x16_bf16 v[{S0}:{S0+15}], v[{KV[0]}:{KV[0]+3}], v[{QF+4*ct}:{QF+4*ct+3}], 0")
    A.nop(12)
    for i in range(8):
        A(f"v_max3_f32 v{vM+ct}, v{S0+2*i}, v{S0+2*i+1}, v{vM+ct}")
A(f"""
s_sub_u32 s{sLOOP}, s{sLOOP}, 1
s_cmp_lg_u32 s{sLOOP}, 0
s_cbranch_scc1 L_sl1
s_lshl_b32 s{sT0}, s{sWAVE}, 11
s_add_u32 s{sT0}, s{sT0}, {CB}
v_lshlrev_b32 v8, 2, v{vLANE}
v_add_u32 v8, s{sT0}, v8
v_lshlrev_b32 v10, 2, v{vL31}
v_add_u32 v10, {CB}, v10
""")
a_sync()
def pair_off(pr):
    A(f"s_add_u32 s{sT0}, s{sWAVE}, {pr + 1}")
    A(f"s_and_b32 s{sT0}, s{sT0}, 3")
    A(f"s_lshl_b32 s{sT0}, s{sT0}, 9")
for pr in range(4):
    pair_off(pr)
    A(f"v_add_u32 v9, s{sT0}, v8")
    A(f"ds_write_b32 v9, v{vM+2*pr}")
    A(f"ds_write_b32 v9, v{vM+2*pr+1} offset:256")
a_sync()
for ct in range(8):
    if ct % 2 == 0:
        pair_off(ct // 2)
        A(f"v_add_u32 v9, s{sT0}, v10")
    for w in range(4):
        A(f"ds_read_b32 v{S0+2*w}, v9 offset:{w*2048 + (ct%2)*256}")
        A(f"ds_read_b32 v{S0+2*w+1}, v9 offset:{w*2048 + (ct%2)*256 + 128}")
    A("s_waitcnt lgkmcnt(0)")
    for w in range(4):
        A(f"v_max3_f32 v{vM+ct}, v{S0+2*w}, v{S0+2*w+1}, v{vM+ct}")
a_sync()
A(f"s_mov_b32 s{sLOOP}, 16")
A.label("L_sl2")
ld_k(0, 0); ld_v(0, 0, 0); ld_v(0, 1, 0); adv()
A("s_waitcnt vmcnt(0)")
for ct in range(8):
    A(f"v_mfma_f32_32x32x16_bf16 v[{S0}:{S0+15}], v[{KV[0]}:{KV[0]+3}], v[{QF+4*ct}:{QF+4*ct+3}], 0")
    A.nop(12)
    for i in range(16):
        A(f"v_sub_f32 v{S0+i}, v{S0+i}, v{vM+ct}")
    for i in range(16):
        A(f"v_exp_f32 v{S0+i}, v{S0+i}")
    A.nop(2)
    A(f"v_smfmac_f32_32x32x32_bf16 a[{16*ct}:{16*ct+15}], v[{KV[0]+4}:{KV[0]+7}], v[{S0}:{S0+7}], v{vIDX}")
    A(f"v_smfmac_f32_32x32x32_bf16 a[{16*ct}:{16*ct+15}], v[{KV[0]+8}:{KV[0]+11}], v[{S0+8}:{S0+15}], v{vIDX}")
A(f"""
s_sub_u32 s{sLOOP}, s{sLOOP}, 1
s_cmp_lg_u32 s{sLOOP}, 0
s_cbranch_scc1 L_sl2
s_nop 15
""")
for ct in range(6): part_write(ct)
A("s_waitcnt lgkmcnt(0)")
cnt_add(vCNT, vIDX, 4)
A(f"""
s_add_u32 s{sATG}, s{sATG}, 4
s_branch L_comb
""")

if OPT["xm"] or OPT["xv"] or OPT["xl"]:
    i0 = A.lines.index("L_S2:"); i1 = A.lines.index("L_hot_end:")
    seen = False
    for i in range(i0, i1):
        t = A.lines[i].strip()
        if t.startswith("ds_write_b128") : seen = True
        if not seen: continue
        if OPT["xm"] and t.startswith("v_mfma"): A.lines[i] = "    s_nop 7"
        if OPT["xv"] and (t.startswith(("v_pk_", "v_fma_f32", "v_cvt_pk", "v_mul_f32", "v_add_f32"))): A.lines[i] = "    s_nop 1"
        if OPT["xl"] and t.startswith(("ds_read_b128", "ds_write_b128")): A.lines[i] = "    s_nop 0"
hdr = open("cdna_kernels/" + NAME + ".s.ref").read().split("; Override launch")[0]
out = hdr + f"""; Fused single-launch kernel: 256 workgroups x 8 waves (4 attention waves + 4 SSM waves). Generated by gen/gen10.py.
; @launch grid=(256,1,1) block=(512,1,1) lds={LDS_BYTES}
.amdgcn_target "amdgcn-amd-amdhsa--gfx950"
.text
.globl {NAME}_kernel
.p2align 8
.type {NAME}_kernel,@function
{NAME}_kernel:
""" + A.text() + f""".section .rodata,"a"
.p2align 6
.amdhsa_kernel {NAME}_kernel
  .amdhsa_next_free_vgpr 256
  .amdhsa_next_free_sgpr 102
  .amdhsa_accum_offset 128
  .amdhsa_group_segment_fixed_size 0
  .amdhsa_kernarg_size 136
  .amdhsa_user_sgpr_count 2
  .amdhsa_user_sgpr_kernarg_segment_ptr 1
  .amdhsa_system_sgpr_workgroup_id_x 1
.end_amdhsa_kernel
"""
open(sys.argv[1], "w").write(out)
errs = check(A.lines) + check(A.lines[loop_end-60:loop_end] + A.lines[loop_start:loop_start+60])
for e in errs: print("HAZARD:", e)
print(f"{len(A.lines)} lines, {len(errs)} hazards")
```

```python
import sys, math, struct
from asmlib import *

OPT = dict(dbg=0, force_slow=0, stamps=0, noS=0, cyc=0, ost=2, gprio=0, vprio=3, hst=0, stgwin=8, pfq=0, pfb=2, stgl=2, qpre=2,
           pfc=1, ssl=2, la=8, sst=0, win0=0, trig=1, odel=0, sgate=2, map84=1, g1p=0, g2p=2, noKV=0, nochk=0, wq1=9, cpos=1, hdbg=0, p2n=16, oack=1, cim1=0, npre0=0, mid=0, sl1=2, sl2=2, sl0=0, tlb=0, pad=0, padat=0, p1at=3, ofirst=0, xm=0, xv=0, xl=0, npre=12, lbs=4)
for a in sys.argv[2:]:
    k, v = a.split("=")
    assert k in OPT, k
    OPT[k] = int(v)

NAME = "concat_heads__ssm_conv_s5__grouped_kv_mqa__prompt"
def f2u(x): return struct.unpack("<I", struct.pack("<f", x))[0]

XQ, WQ = 0, 66560
KVX, WKV = 3*16640, 66560 + 3*16384
SLOT = [0, 49920, 99840]
XA_O, BRE_O, BIM_O = 0, 16640, 33280
CIM, CRE = 0, 66560
CB = 66560; CB_T = 2304
TB = CB + 32*CB_T
WO = 66560
TB2 = 0
QX = 149760; EB = 157952; HP = 160000; CNT = 162048; QM = 162064; KM = 162068; CNT4 = 24
assert TB + 16384 <= EB
LDS_BYTES = 163840
FL1, FL3 = 0x1000, 0x9000
KVT = 0x80000; KVS = 4096
AGG = 0x30000; AGG_DUMMY = 32*8192; AGG_SIZE = AGG_DUMMY + 256*128
OB, HB = 0x100000, 0x400000
DBG = 0x1000000
WS_SIZE = 0x2000000
assert AGG + AGG_SIZE <= KVT
sWAVE, sC, sG, sTAG, sID = 3, 4, 5, 6, 7
R_XB, R_WQ, R_WKV, R_XA, R_BRE, R_BIM, R_CRE, R_CIM, R_WO, R_OUT, R_WS, R_AGG = 8, 12, 16, 20, 24, 28, 32, 36, 40, 44, 48, 52
P_LRE, P_LIM, P_LDT, P_DSK, P_WV = 56, 58, 60, 62, 64
sEP, sDONE = 66, 67
sT0, sT1, sT2, sT3, sT4, sT5 = 68, 69, 70, 71, 72, 73
sT6, sSPIN = 74, 75
sTW, sCW = 76, 77
sLOOP, sKOFF, sROT, sSW = 78, 79, 80, 81
sOB, sT7 = 82, 83
sATG = 65
sST = 84
def srd(r): return f"s[{r}:{r+3}]"

A = Asm()
OST = ["", " sc1", " nt", " sc0 sc1"][OPT["ost"]]
SPIN_MAX = 200000
HST = OPT["hst"]

SSEC = [False]
def sstamp(i, mode):
    if OPT["stamps"] and OPT["sst"] == mode:
        A(f"s_memrealtime s[{sST+2*i}:{sST+2*i+1}]")
def stamp(i, cond=True):
    if SSEC[0] and OPT["sst"] and i < 8: return
    if OPT["stamps"] and cond:
        A(f"s_memrealtime s[{sST+2*i}:{sST+2*i+1}]")

def padto():
    l = A.newlabel("pad")
    A(f"""
    {l}:
    s_memrealtime s[96:97]
    s_waitcnt lgkmcnt(0)
    s_sub_u32 s96, s96, s98
    s_cmp_lt_u32 s96, {OPT["pad"]*100}
    s_cbranch_scc1 {l}
    """)
def prio(p): A(f"s_setprio {p}")

def cnt_add(vaddr, vone, off=0):
    A(f"""
    s_mov_b64 exec, 1
    {"ds_inc_u32" if vone == vIDX else "ds_add_u32"} v{vaddr}, v{vone} offset:{off}
    s_mov_b64 exec, -1
    """)
def cnt_wait(vaddr, vtmp, target, off=0, sleep=0):
    lp = A.newlabel("sy"); dn = A.newlabel("syd")
    A(f"""
    s_mov_b32 s{sSPIN}, 0
    {lp}:
    ds_read_b32 v{vtmp}, v{vaddr} offset:{off}
    s_add_u32 s{sSPIN}, s{sSPIN}, 1
    s_waitcnt lgkmcnt(0)
    v_readfirstlane_b32 s{sT0}, v{vtmp}
    s_cmp_ge_u32 s{sT0}, {target}
    s_cbranch_scc1 {dn}
    {("s_sleep " + str(sleep)) if sleep else ""}
    s_cmp_lt_u32 s{sSPIN}, {SPIN_MAX}
    s_cbranch_scc1 {lp}
    {dn}:
    """)
NSYNC = [0]
def grp_sync():
    NSYNC[0] += 1
    A("s_waitcnt lgkmcnt(0)")
    cnt_add(vCNT, vONE)
    cnt_wait(vCNT, vTMP, CBASE + 4*NSYNC[0], sleep=OPT['ssl'])

def sync_add(wait_lds=True):
    NSYNC[0] += 1
    if wait_lds: A("s_waitcnt lgkmcnt(0)")
    cnt_add(vCNT, vONE)
def sync_wait(sleep=None):
    cnt_wait(vCNT, vTMP, CBASE + 4*NSYNC[0], sleep=OPT['ssl'] if sleep is None else max(sleep, OPT['sl0']))

def poll_flags(vaddr, vdst, width, sleep=2):
    lp = A.newlabel("pl"); dn = A.newlabel("pld")
    ld = "buffer_load_dword" if width == 1 else f"buffer_load_dwordx{width}"
    A(f"s_mov_b32 s{sSPIN}, 0")
    A.label(lp)
    A(f"""
    {ld} {vr(vdst, width)}, v{vaddr}, {srd(R_WS)}, 0 offen sc1
    s_add_u32 s{sSPIN}, s{sSPIN}, 1
    s_waitcnt vmcnt(0)
    v_cmp_ne_u32 vcc, s{sTAG}, v{vdst}
    s_cbranch_vccz {dn}
    {("s_sleep " + str(sleep)) if sleep else ""}
    s_cmp_lt_u32 s{sSPIN}, {SPIN_MAX}
    s_cbranch_scc1 {lp}
    {dn}:
    """)

def wave_max(v, tmp):
    A("s_nop 1")
    for sh in (1, 2, 4, 8):
        A(f"v_max_f32_dpp v{v}, v{v}, v{v} row_ror:{sh} row_mask:0xf bank_mask:0xf")
        A("s_nop 1")
    A(f"v_mov_b32 v{tmp}, v{v}")
    A("s_nop 1")
    A(f"v_permlane16_swap_b32 v{tmp}, v{v}")
    A(f"v_max_f32 v{v}, v{v}, v{tmp}")
    A(f"v_mov_b32 v{tmp}, v{v}")
    A("s_nop 1")
    A(f"v_permlane32_swap_b32 v{tmp}, v{v}")
    A(f"v_max_f32 v{v}, v{v}, v{tmp}")

def wq_voffset(dst, t0, t1, t2):
    A(f"""
    v_lshrrev_b32 v{t0}, 3, v{vLANE}
    v_and_b32 v{t1}, 7, v{vLANE}
    v_bfe_u32 v{t2}, v{vLANE}, 4, 1
    v_lshlrev_b32 v{t2}, 2, v{t2}
    v_xor_b32 v{t1}, v{t1}, v{t2}
    v_lshlrev_b32 v{t1}, 4, v{t1}
    v_lshl_add_u32 v{dst}, v{t0}, 10, v{t1}
    """)

vLANE, vL31, vH, vL16x = 1, 2, 3, 4
UR, UI, Y0, Y1 = 16, 32, 48, 64
FRS = 80
DG = 104
vL1, vL8, vL16, vL64, vL512, vCF = 112, 114, 116, 118, 120, 122
vCNT, vONE, vTMP, vP2, vDUM = 0, 124, 125, 126, 127
vXo, vBo, vDa, vSt = 5, 6, 7, 8
vAa, vBa = [9, 10, 11], [12, 13, 14]
vPF = 15
STG = 64
PRM = 100
S0, S1 = 16, 32
QF = 48
KV = [80, 92, 104, 116]
vIDX = 7
vM = 104
vZ = 120
vKt, vVt = [5, 8, 9, 10], [6, 12, 14, 15]

A(f"""
s_cmp_ge_u32 s2, 256
s_cbranch_scc1 L_end
""")
stamp(0)
if OPT["pad"]: A("s_memrealtime s[98:99]")
sizes = {R_XB: 65536, R_WKV: 16384, R_WQ: 523392, R_WS: WS_SIZE, R_XA: 65536, R_BRE: 65536, R_BIM: 65536, R_CRE: 65536, R_CIM: 65536,
         R_WO: 523392, R_OUT: 262144, R_AGG: AGG_SIZE}
def kload(lst):
    for r, off in lst:
        A(f"s_load_dwordx2 s[{r}:{r+1}], s[0:1], {off}")
def srd_words(rs):
    for r in rs:
        A(f"s_mov_b32 s{r+2}, {sizes[r]}")
        A(f"s_mov_b32 s{r+3}, 0x20000")
kload([(R_XB, 72), (R_WKV, 88), (P_WV, 96), (R_WQ, 80), (R_WS, 128)])
A(f"""
v_lshrrev_b32 v5, 6, v0
v_and_b32 v{vLANE}, 63, v0
v_readfirstlane_b32 s{sWAVE}, v5
v_lshlrev_b32 v{vL16x}, 4, v{vLANE}
v_bfe_u32 v{vH}, v0, 5, 1
v_and_b32 v{vL31}, 31, v0
v_mov_b32 v0, {CNT}
""")
srd_words([R_XB])
A(f"""
""")
if OPT["map84"]:
    A(f"""
    s_bfe_u32 s{sC}, s2, 0x20001
    s_lshl_b32 s{sC}, s{sC}, 3
    s_bfe_u32 s{sT0}, s2, 0x30003
    s_add_u32 s{sC}, s{sC}, s{sT0}
    s_and_b32 s{sG}, s2, 1
    s_lshl_b32 s{sG}, s{sG}, 2
    s_lshr_b32 s{sT0}, s2, 6
    s_add_u32 s{sG}, s{sG}, s{sT0}
    s_add_u32 s{sROT}, s{sC}, s{sG}
    s_and_b32 s{sROT}, s{sROT}, 3
    """)
else:
    A(f"""
    s_and_b32 s{sC}, s2, 7
    s_lshl_b32 s{sC}, s{sC}, 2
    s_bfe_u32 s{sROT}, s2, 0x20003
    s_add_u32 s{sC}, s{sC}, s{sROT}
    s_lshr_b32 s{sG}, s2, 5
    """)
A(f"""
s_lshl_b32 s{sT2}, s{sC}, 16
s_sub_u32 s{sSW}, s{sWAVE}, 4
s_cbranch_scc1 L_A0
s_load_dwordx4 s[{P_LRE}:{P_LRE+3}], s[0:1], 8
s_load_dwordx4 s[{P_LDT}:{P_LDT+3}], s[0:1], 56
s_setprio 3
v_mov_b32 v20, 0
v_mov_b32 v21, 0
s_lshl_b32 s{sT0}, s{sG}, 6
s_lshl_b32 s{sT1}, s{sSW}, 4
s_and_b32 s{sT1}, s{sT1}, 32
s_add_u32 s{sT0}, s{sT0}, s{sT1}
v_add_lshl_u32 v{vP2}, s{sT0}, v{vL31}, 1
ds_write2_b64 v0, v[20:21], v[20:21] offset0:0 offset1:1
ds_write2_b64 v0, v[20:21], v[20:21] offset0:2 offset1:3
s_mov_b32 s{R_WKV+2}, {sizes[R_WKV]}
s_mov_b32 s{R_WKV+3}, 0x20000
s_lshl_b32 s{sT1}, s{sSW}, 12
s_lshl_b32 s{sT5}, s{sG}, 13
s_and_b32 s{sT5}, s{sT5}, 0xc000
s_add_u32 s{sT5}, s{sT5}, s{sT1}
s_mul_i32 s{sT0}, s{sSW}, 4160
s_add_u32 m0, s{sT1}, {WKV}
s_bitcmp1_b32 s{sG}, 0
s_waitcnt lgkmcnt(0)
s_cselect_b32 s{R_WKV}, s{P_WV}, s{R_WKV}
s_cselect_b32 s{R_WKV+1}, s{P_WV+1}, s{R_WKV+1}
s_add_u32 s{R_XB}, s{R_XB}, s{sT2}
s_addc_u32 s{R_XB+1}, s{R_XB+1}, 0
""")
for i in range(4):
    A(f"buffer_load_dwordx4 v{vL16x}, {srd(R_WKV)}, s{sT1} offen offset:{i*1024} lds")
for i in range(4):
    A(f"s_add_u32 m0, s{sT0}, {KVX + 16*i}")
    A(f"s_load_dword s{sEP}, s[{R_WS}:{R_WS+1}], 0" if i == 0 else "s_nop 0")
    A(f"buffer_load_dwordx4 v{vL16x}, {srd(R_XB)}, s{sT5} offen offset:{i*1024} lds")
A(f"""
s_barrier
global_load_ushort v{PRM}, v{vP2}, s[{P_LRE}:{P_LRE+1}]
global_load_ushort v{PRM+1}, v{vP2}, s[{P_LIM}:{P_LIM+1}]
global_load_ushort v{PRM+2}, v{vP2}, s[{P_LDT}:{P_LDT+1}]
global_load_ushort v{PRM+3}, v{vP2}, s[{P_DSK}:{P_DSK+1}]
s_cmp_eq_u32 s{sSW}, 1
s_cbranch_scc1 L_qx
s_cmp_eq_u32 s{sSW}, 2
s_cbranch_scc1 L_qw
s_branch L_S1
L_A0:
""")
def common_scalars():
    kload([(R_OUT, 112)])
    srd_words([R_WS, R_OUT])
    A(f"""
    s_and_b32 s{sTW}, s{sWAVE}, 1
    s_bfe_u32 s{sCW}, s{sWAVE}, 0x10001
    s_lshl_b32 s{sID}, s{sC}, 3
    s_add_u32 s{sID}, s{sID}, s{sG}
    s_mov_b32 s{sDONE}, 0
    s_lshl_b32 s{sOB}, s{sC}, 1
    s_add_u32 s{sOB}, s{sOB}, s{sTW}
    s_lshl_b32 s{sOB}, s{sOB}, 15
    s_add_u32 s{sOB}, s{sOB}, {OB}
    """)
def common_after_wait(tag=True):
    A(f"""
    s_lshl_b32 s{sT0}, s{sC}, 18
    s_add_u32 s{R_OUT}, s{R_OUT}, s{sT0}
    s_addc_u32 s{R_OUT+1}, s{R_OUT+1}, 0
    """)
    if tag: A(f"""
    s_mul_i32 s{sTAG}, s{sEP}, 0x9E3779B1
    s_add_u32 s{sTAG}, s{sTAG}, 0x7F4A7C15
    """)
vWQo, vXQo = 119, 117
A(f"""
v_lshrrev_b32 v6, 4, v{vLANE}
v_and_b32 v7, 15, v{vLANE}
v_lshlrev_b32 v7, 4, v7
v_lshl_add_u32 v{vXQo}, v6, 14, v7
s_mul_i32 s{sT6}, s{sWAVE}, 4160
s_lshl_b32 s{sT7}, s{sWAVE}, 12
""")
srd_words([R_WQ])
wq_voffset(vWQo, 6, 7, 10)
A(f"""
s_lshl_b32 s{sT0}, s{sG}, 7
s_waitcnt lgkmcnt(0)
s_add_u32 s{R_XB}, s{R_XB}, s{sT2}
s_addc_u32 s{R_XB+1}, s{R_XB+1}, 0
s_add_u32 s{R_WQ}, s{R_WQ}, s{sT0}
s_addc_u32 s{R_WQ+1}, s{R_WQ+1}, 0
s_load_dword s{sEP}, s[{R_WS}:{R_WS+1}], 0
s_barrier
""")
stamp(1, HST)
def x_dma(s):
    A(f"""
    s_add_u32 s{sT3}, s{sROT}, {s}
    s_and_b32 s{sT3}, s{sT3}, 3
    s_lshl_b32 s{sT4}, s{sT3}, 8
    s_add_u32 s{sT4}, s{sT4}, s{sT7}
    """)
    for i in range(4):
        A(f"""
        s_add_u32 m0, s{sT6}, {XQ + s*16640 + i*16}
        s_nop 0
        buffer_load_dwordx4 v{vXQo}, {srd(R_XB)}, s{sT4} offen offset:{i*1024} lds
        """)
def wq_dma(s):
    A(f"""
    s_lshl_b32 s{sT3}, s{sT3}, 4
    s_add_u32 s{sT3}, s{sT3}, s{sWAVE}
    s_lshl_b32 s{sT3}, s{sT3}, 13
    s_lshl_b32 s{sT2}, s{sWAVE}, 10
    """)
    for i in range(4):
        A(f"""
        s_add_u32 m0, s{sT2}, {WQ + s*16384 + i*4096}
        s_add_u32 s{sT1}, s{sT3}, {i*32768}
        buffer_load_dwordx4 v{vWQo}, {srd(R_WQ)}, s{sT1} offen lds
        """)
for s in range(OPT["qpre"]):
    x_dma(s); wq_dma(s)
stamp(2 if HST else 1)
A("s_branch L_A1")
A.label("L_S1")
SSEC[0] = True
A(f"""
v_mov_b32 v{vONE}, 1
s_lshl_b32 s{sID}, s{sC}, 3
s_add_u32 s{sID}, s{sID}, s{sG}
s_mov_b32 s{R_WS+2}, {WS_SIZE}
s_mov_b32 s{R_WS+3}, 0x20000
v_lshrrev_b32 v20, 4, v{vLANE}
v_and_b32 v21, 15, v{vLANE}
v_mul_u32_u24 v9, 1040, v21
v_lshl_add_u32 v9, v20, 4, v9
v_add_u32 v9, {KVX}, v9
v_lshrrev_b32 v10, 2, v21
v_lshl_add_u32 v10, v20, 3, v10
v_lshlrev_b32 v10, 5, v10
v_and_b32 v11, 3, v21
v_lshl_add_u32 v10, v11, 3, v10
v_add_u32 v10, {WKV}, v10
s_lshl_b32 s{sT6}, s{sC}, 1
s_lshr_b32 s{sT1}, s{sG}, 2
s_add_u32 s{sT6}, s{sT6}, s{sT1}
s_lshl_b32 s{sT6}, s{sT6}, 12
s_add_u32 s{sT6}, s{sT6}, {KVT}
s_bfe_u32 s{sT7}, s{sG}, 0x10001
s_waitcnt lgkmcnt(0)
s_mul_i32 s{sTAG}, s{sEP}, 0x9E3779B1
s_add_u32 s{sTAG}, s{sTAG}, 0x7F4A7C15
s_waitcnt vmcnt(4)
""")
stamp(6, HST)
cnt_add(vCNT, vONE)
A(f"""
s_cmp_lg_u32 s{sSW}, 0
s_cbranch_scc1 L_S2a
""")
cnt_wait(vCNT, vTMP, 4)
stamp(1)
def kv_rd(k):
    f = 32 + 8*(k % 6)
    A(f"ds_read_b64_tr_b16 v[{f}:{f+1}], v10 offset:{k*1024}")
    A(f"ds_read_b64_tr_b16 v[{f+2}:{f+3}], v10 offset:{k*1024+128}")
    A(f"ds_read_b128 v[{f+4}:{f+7}], v9 offset:{k*64}")
for k in range(4): kv_rd(k)
A(f"s_bitcmp1_b32 s{sG}, 0")
A("s_cbranch_scc1 L_kv_v")
def kv_chain(isv_):
    for k in range(16):
        f = 32 + 8*(k % 6)
        if k + 4 < 16: kv_rd(k + 4)
        issued = min(16, k + 5)
        A(f"s_waitcnt lgkmcnt({3*(issued - k - 1)})")
        c = "0" if k == 0 else "v[28:31]"
        a, b = (f"v[{f}:{f+3}]", f"v[{f+4}:{f+7}]") if not isv_ else (f"v[{f+4}:{f+7}]", f"v[{f}:{f+3}]")
        A(f"v_mfma_f32_16x16x32_bf16 v[28:31], {a}, {b}, {c}")
kv_chain(False)
cnt_add(vCNT, vONE)
A(f"s_mov_b32 s{sT0}, {f2u(0.25 * math.log2(math.e))}")
A(f"""
s_lshl_b32 s{sT7}, s{sT7}, 8
s_add_u32 s{sT6}, s{sT6}, s{sT7}
v_and_b32 v22, 1, v20
v_lshlrev_b32 v22, 9, v22
v_lshl_add_u32 v22, v21, 4, v22
v_lshrrev_b32 v23, 1, v20
v_lshl_add_u32 v22, v23, 3, v22
v_mul_f32 v28, s{sT0}, v28
v_mul_f32 v29, s{sT0}, v29
v_mul_f32 v30, s{sT0}, v30
v_mul_f32 v31, s{sT0}, v31
v_cvt_pk_bf16_f32 v24, v28, v29
v_cvt_pk_bf16_f32 v25, v30, v31
buffer_store_dwordx2 v[24:25], v22, {srd(R_WS)}, s{sT6} offen sc1
v_mul_f32 v16, v28, v28
v_fmac_f32 v16, v29, v29
v_fmac_f32 v16, v30, v30
v_fmac_f32 v16, v31, v31
v_mov_b32 v17, v16
s_nop 1
v_permlane16_swap_b32 v17, v16
v_add_f32 v16, v16, v17
v_mov_b32 v17, v16
s_nop 1
v_permlane32_swap_b32 v17, v16
v_add_f32 v17, v16, v17
""")
wave_max(17, 18)
A("s_branch L_kv_pub")
A.label("L_kv_v")
kv_chain(True)
cnt_add(vCNT, vONE)
A(f"""
s_mul_i32 s{sT7}, s{sT7}, 544
s_add_u32 s{sT6}, s{sT6}, s{sT7}
s_add_u32 s{sT6}, s{sT6}, 1024
v_lshrrev_b32 v22, 1, v20
v_mul_u32_u24 v22, 272, v22
v_and_b32 v23, 1, v20
v_lshl_add_u32 v22, v23, 3, v22
v_lshl_add_u32 v23, v21, 4, v22
v_cvt_pk_bf16_f32 v24, v28, v29
v_cvt_pk_bf16_f32 v25, v30, v31
buffer_store_dwordx2 v[24:25], v23, {srd(R_WS)}, s{sT6} offen sc1
v_mov_b32 v26, 0x3f803f80
v_mov_b32 v27, 0x3f803f80
s_mov_b32 exec_lo, 0x00010001
s_mov_b32 exec_hi, 0x00010001
buffer_store_dwordx2 v[26:27], v22, {srd(R_WS)}, s{sT6} offen offset:256 sc1
s_mov_b64 exec, -1
v_mov_b32 v17, 0
""")
A.label("L_kv_pub")
A(f"""
s_lshl_b32 s{sT0}, s{sID}, 7
s_add_u32 s{sT0}, s{sT0}, {FL1}
v_mov_b32 v16, s{sTAG}
v_mov_b32 v9, 0
s_waitcnt vmcnt(0)
s_mov_b64 exec, 1
buffer_store_dwordx2 v[16:17], v9, {srd(R_WS)}, s{sT0} offen sc1
ds_add_u32 v{vCNT}, v{vONE}
s_mov_b64 exec, -1
""")
stamp(2)
A("s_branch L_S2")
def q_head():
    A(f"""
    v_mov_b32 v{vONE}, 1
    s_lshl_b32 s{sID}, s{sC}, 3
    s_add_u32 s{sID}, s{sID}, s{sG}
    s_waitcnt lgkmcnt(0)
    s_mul_i32 s{sTAG}, s{sEP}, 0x9E3779B1
    s_add_u32 s{sTAG}, s{sTAG}, 0x7F4A7C15
    s_waitcnt vmcnt(4)
    """)
    cnt_add(vCNT, vONE)
    prio(0)
def q_sig():
    A("s_waitcnt vmcnt(16)"); cnt_add(vCNT, vONE, 24)
    A("s_waitcnt vmcnt(0)"); cnt_add(vCNT, vONE, 28)
    prio(3)
    A("s_branch L_S2")
A.label("L_qx")
A(f"""
v_lshrrev_b32 v20, 4, v{vLANE}
v_and_b32 v21, 15, v{vLANE}
v_lshlrev_b32 v22, 4, v21
v_lshl_add_u32 v22, v20, 14, v22
""")
q_head()
for s_ in (2, 3):
    if s_ == 3: cnt_wait(vCNT, vTMP, 5)
    A(f"""
    s_add_u32 s{sT3}, s{sROT}, {s_}
    s_and_b32 s{sT3}, s{sT3}, 3
    s_lshl_b32 s{sT3}, s{sT3}, 8
    """)
    for i in range(16):
        A(f"s_mov_b32 m0, {XQ + s_*16640 + i*1040 - (i & 3)*1024}")
        A(f"s_add_u32 s{sT3}, s{sT3}, 4096" if (i & 3 == 0 and i) else "s_nop 0")
        A(f"buffer_load_dwordx4 v22, {srd(R_XB)}, s{sT3} offen offset:{(i & 3)*1024} lds")
q_sig()
A.label("L_qw")
srd_words([R_WQ])
wq_voffset(22, 23, 24, 25)
A(f"""
s_lshl_b32 s{sT0}, s{sG}, 7
s_add_u32 s{R_WQ}, s{R_WQ}, s{sT0}
s_addc_u32 s{R_WQ+1}, s{R_WQ+1}, 0
""")
q_head()
for s_ in (2, 3):
    if s_ == 3: cnt_wait(vCNT, vTMP, 5)
    A(f"""
    s_add_u32 s{sT3}, s{sROT}, {s_}
    s_and_b32 s{sT3}, s{sT3}, 3
    s_lshl_b32 s{sT3}, s{sT3}, 17
    """)
    for i in range(16):
        A(f"s_mov_b32 m0, {WQ + s_*16384 + i*1024}")
        A(f"s_add_u32 s{sT3}, s{sT3}, 8192" if i else "s_nop 0")
        A(f"buffer_load_dwordx4 v22, {srd(R_WQ)}, s{sT3} offen lds")
q_sig()
SSEC[0] = False
A.label("L_A1")
for i in range(4): A(f"v_mov_b32 v{vZ+i}, 0")
vXa, vWa, vFl, vQw, vQr, vAone = 8, 9, 10, 14, 15, vIDX
common_scalars()
for ct in range(8):
    A(f"v_mfma_f32_32x32x16_bf16 a[{16*ct}:{16*ct+15}], v[{vZ}:{vZ+3}], v[{vZ}:{vZ+3}], 0")
A(f"""
v_and_b32 v6, 15, v{vL31}
v_mul_u32_u24 v{vXa}, 1040, v6
v_lshl_add_u32 v{vXa}, v{vH}, 4, v{vXa}
v_lshrrev_b32 v6, 4, v{vL31}
v_lshl_add_u32 v{vXa}, v6, 8, v{vXa}
s_lshl_b32 s{sT0}, s{sTW}, 9
v_add_u32 v{vXa}, s{sT0}, v{vXa}
v_bfe_u32 v6, v{vLANE}, 2, 2
v_lshl_add_u32 v6, v{vH}, 3, v6
v_bfe_u32 v7, v{vLANE}, 4, 1
v_and_b32 v11, 3, v{vLANE}
v_lshlrev_b32 v11, 3, v11
v_lshl_add_u32 v11, v7, 5, v11
s_lshl_b32 s{sT0}, s{sCW}, 6
v_add_u32 v11, s{sT0}, v11
v_bfe_u32 v7, v{vLANE}, 3, 1
v_lshlrev_b32 v7, 6, v7
v_xor_b32 v11, v11, v7
v_lshl_add_u32 v{vWa}, v6, 7, v11
v_add_u32 v{vWa}, {WQ}, v{vWa}
s_lshl_b32 s{sT0}, s{sWAVE}, 13
s_add_u32 s{sT0}, s{sT0}, {FL1}
v_lshlrev_b32 v{vFl}, 7, v{vLANE}
v_add_u32 v{vFl}, s{sT0}, v{vFl}
s_lshl_b32 s{sT0}, s{sWAVE}, 16
s_add_u32 s{sT1}, s{sT0}, {KVT}
v_add_u32 v{vKt[0]}, s{sT1}, v{vL16x}
s_add_u32 s{sT1}, s{sT1}, 1024
v_lshlrev_b32 v13, 4, v{vL31}
v_mul_u32_u24 v14, 272, v{vH}
v_add3_u32 v13, v13, v14, s{sT1}
v_cmp_lt_u32 vcc, 16, v{vL31}
v_mov_b32 v14, 0x7ff00000
v_mov_b32 v{vIDX}, 0xdddddddd
v_cndmask_b32 v{vVt[0]}, v13, v14, vcc
s_lshl_b32 s{sKOFF}, s{sROT}, 14
s_lshl_b32 s{sT0}, s{sCW}, 2
s_add_u32 s{sT0}, s{sT0}, s{sTW}
s_lshl_b32 s{sT0}, s{sT0}, 10
s_add_u32 s{sT0}, s{sT0}, {QX}
v_add_u32 v{vQw}, s{sT0}, v{vL16x}
v_add_u32 v{vQr}, {QX}, v{vL16x}
s_waitcnt lgkmcnt(0)
""")
common_after_wait()
QP = OPT["qpre"]
sKVOK = sATG
vFG = 12
def ld_k(b, t, so=sKOFF):
    A(f"buffer_load_dwordx4 v[{KV[b]}:{KV[b]+3}], v{vKt[t]}, {srd(R_WS)}, s{so} offen sc1")
def ld_v(b, j, t, so=sKOFF):
    A(f"buffer_load_dwordx4 v[{KV[b]+4+4*j}:{KV[b]+7+4*j}], v{vVt[t]}, {srd(R_WS)}, s{so} offen offset:{544*j} sc1")
def kv_first():
    for b in range(4):
        A(f"s_add_u32 s{sT1}, s{sKOFF}, {b*KVS}")
        ld_k(b, 0, sT1); ld_v(b, 0, 0, sT1); ld_v(b, 1, 0, sT1)
    A(f"ds_max_f32 v{vCNT}, v{vFG+1} offset:{KM - CNT}")
    if OPT["sgate"] == 2: cnt_add(vCNT, vAone, 12)
def kv_try(tag):
    A(f"""
    v_cmp_ne_u32 vcc, s{sTAG}, v{vFG}
    s_cbranch_vccnz L_kvlate{tag}
    s_mov_b32 s{sKVOK}, 1
    """)
    kv_first()
    A(f"s_branch L_kvq{tag}")
    A.label(f"L_kvlate{tag}")
    flag_ld()
    A.label(f"L_kvq{tag}")
def flag_ld(): A(f"buffer_load_dwordx2 v[{vFG}:{vFG+1}], v{vFl}, {srd(R_WS)}, 0 offen sc1")
def qproj_quarter(s):
    if s < 2:
        A(f"s_waitcnt vmcnt({8*(1 - s)})")
        stamp(3 + s, HST)
        cnt_add(vCNT, vAone, 4)
    elif s == 3 and OPT["p1at"] == 2: A("s_waitcnt vmcnt(0)")
    if s == OPT["p1at"]: flag_ld()
    if s == 3:
        A(f"s_mov_b32 s{sKVOK}, 0")
        if OPT["p1at"] == 2: kv_try("a")
    if s < 2: cnt_wait(vCNT, 11, 4*(s + 1), 4)
    else:
        cnt_wait(vCNT, 11, 2, 24 + 4*(s - 2))
        stamp(3 + s, HST)
    def rd(k):
        f = 32 + 8*(k % 6)
        A(f"ds_read_b64_tr_b16 v[{f}:{f+1}], v{vWa} offset:{s*16384 + k*2048}")
        A(f"ds_read_b64_tr_b16 v[{f+2}:{f+3}], v{vWa} offset:{s*16384 + k*2048 + 512}")
        A(f"ds_read_b128 v[{f+4}:{f+7}], v{vXa} offset:{XQ + s*16640 + k*32}")
    for k in range(4): rd(k)
    for k in range(8):
        f = 32 + 8*(k % 6)
        if k + 4 < 8: rd(k + 4)
        issued = min(8, k + 5)
        A(f"s_waitcnt lgkmcnt({3*(issued - k - 1)})")
        c = "0" if (s == 0 and k == 0) else f"v[{S0}:{S0+15}]"
        A(f"v_mfma_f32_32x32x16_bf16 v[{S0}:{S0+15}], v[{f}:{f+3}], v[{f+4}:{f+7}], {c}")
for s in range(4):
    qproj_quarter(s)
A(f"""
s_cmp_lg_u32 s{sKVOK}, 0
s_cbranch_scc1 L_kvqb
s_waitcnt vmcnt(0)
""")
kv_try("b")
A(f"""
s_mul_i32 s{sT6}, s{sWAVE}, {6*CB_T}
s_add_u32 s{sT6}, s{sT6}, {CB}
v_add_u32 v11, s{sT6}, v{vL16x}
s_mov_b32 s{sLOOP}, 4
""")
A.nop(8)
for i in range(8):
    A(f"v_cvt_pk_bf16_f32 v{32+i}, v{S0+2*i}, v{S0+2*i+1}")
    if i == 3: A(f"ds_write_b128 v{vQw}, v[32:35]")
A(f"""
ds_write_b128 v{vQw}, v[36:39] offset:2048
s_waitcnt lgkmcnt(0)
""")
cnt_add(vCNT, vAone, 4)
for hd in range(2):
    A(f"v_mul_f32 v{32+hd}, v{S0+8*hd}, v{S0+8*hd}")
    for i in range(1, 8):
        A(f"v_fmac_f32 v{32+hd}, v{S0+8*hd+i}, v{S0+8*hd+i}")
A(f"""
v_mov_b32 v34, v32
v_mov_b32 v35, v33
v_add_u32 v{vKt[1]}, {KVS}, v{vKt[0]}
v_add_u32 v{vKt[2]}, {2*KVS}, v{vKt[0]}
v_permlane32_swap_b32 v34, v32
v_permlane32_swap_b32 v35, v33
v_add_f32 v32, v32, v34
v_add_f32 v33, v33, v35
v_max_f32 v32, v32, v33
v_add_u32 v{vVt[2]}, {2*KVS}, v{vVt[0]}
ds_max_f32 v{vCNT}, v32 offset:{QM - CNT}
""")
cnt_wait(vCNT, 36, 12, 4)
stamp(7 if HST else 2)
for pr in range(4):
    A(f"s_add_u32 s{sT0}, s{sWAVE}, {pr + 1}")
    A(f"s_and_b32 s{sT0}, s{sT0}, 3")
    A(f"s_lshl_b32 s{sT0}, s{sT0}, 11")
    A(f"v_add_u32 v{37}, s{sT0}, v{vQr}")
    A(f"ds_read_b128 v[{QF+8*pr}:{QF+8*pr+3}], v37")
    A(f"ds_read_b128 v[{QF+8*pr+4}:{QF+8*pr+7}], v37 offset:1024")
A(f"""
s_cmp_lg_u32 s{sKVOK}, 0
s_cbranch_scc1 L_kvgo
s_waitcnt vmcnt(0)
v_cmp_ne_u32 vcc, s{sTAG}, v{vFG}
s_cbranch_vccz L_kvok
""")
poll_flags(vFl, vFG, 2, sleep=0)
A.label("L_kvok")
kv_first()
A.label("L_kvgo")
if OPT["pad"] and OPT["padat"] == 1: padto()
stamp(3, not HST)
A(f"""
v_add_u32 v{vKt[3]}, {3*KVS}, v{vKt[0]}
v_add_u32 v{vVt[3]}, {3*KVS}, v{vVt[0]}
s_waitcnt vmcnt(9) lgkmcnt(0)
v_mfma_f32_32x32x16_bf16 v[{S0}:{S0+15}], v[{KV[0]}:{KV[0]+3}], v[{QF}:{QF+3}], 0
v_add_u32 v{vVt[1]}, {KVS}, v{vVt[0]}
v_lshlrev_b32 v13, 2, v{vLANE}
v_add_u32 v13, s{sT6}, v13
""")
A.nop(9)
SB = [S0, S1]
LASTSYNC = 8
CBASE = 6
def part_write(ct):
    A(f"ds_write_b128 v11, a[{16*ct}:{16*ct+3}] offset:{ct*CB_T}")
    A(f"ds_write_b128 v11, a[{16*ct+4}:{16*ct+7}] offset:{ct*CB_T + 1024}")
    A(f"ds_write_b32 v13, a{16*ct+8} offset:{ct*CB_T + 2048}")
def period(kb, ct, mode):
    cur = SB[ct & 1]; oth = SB[(ct + 1) & 1]
    pct = (ct - 1) % 8
    pkb = kb if ct > 0 else (kb - 1) % 4
    nct = (ct + 1) % 8
    nkb = kb if ct < 7 else (kb + 1) % 4
    ld = ct == 0 and mode == "loop" and not OPT["noKV"]
    early = mode == "last" and 1 <= ct <= 6
    e = lambda i: A(f"v_exp_f32 v{cur+i}, v{cur+i}")
    e(0); e(1)
    if mode != "first":
        A(f"v_smfmac_f32_32x32x32_bf16 a[{16*pct}:{16*pct+15}], v[{KV[pkb]+8}:{KV[pkb]+11}], v[{oth+8}:{oth+15}], v{vIDX}")
    e(2)
    if (mode, ct) == ("last", 0): A(f"ds_read_b32 v12, v{vCNT} offset:8")
    if (mode, ct) == ("last", 7):
        A("s_waitcnt lgkmcnt(0)")
        cnt_add(vCNT, vIDX, 4)
    e(3)
    if ct == 7 and mode == "loop": A(f"s_waitcnt vmcnt(6)")
    e(4)
    if (mode, ct) != ("last", 7):
        A(f"v_mfma_f32_32x32x16_bf16 v[{oth}:{oth+15}], v[{KV[nkb]}:{KV[nkb]+3}], v[{QF+4*nct}:{QF+4*nct+3}], 0")
    for i in range(5, 10): e(i)
    A(f"v_smfmac_f32_32x32x32_bf16 a[{16*ct}:{16*ct+15}], v[{KV[kb]+4}:{KV[kb]+7}], v[{cur}:{cur+7}], v{vIDX}")
    e(10); e(11)
    e(12)
    if ld: ld_k(pkb, pkb)
    if early: A(f"ds_write_b128 v11, a[{16*(ct-1)}:{16*(ct-1)+3}] offset:{(ct-1)*CB_T}")
    e(13)
    if ld: ld_v(pkb, 0, pkb)
    if (kb, ct, mode) == (0, 1, "loop"): A(f"s_add_u32 s{sKOFF}, s{sKOFF}, {4*KVS}")
    if (kb, ct, mode) == (2, 7, "loop"): A(f"s_sub_u32 s{sLOOP}, s{sLOOP}, 1")
    if early: A(f"ds_write_b128 v11, a[{16*(ct-1)+4}:{16*(ct-1)+7}] offset:{(ct-1)*CB_T + 1024}")
    e(14)
    if ld: ld_v(pkb, 1, pkb)
    if (kb, ct, mode) == (0, 1, "loop"): A(f"s_and_b32 s{sKOFF}, s{sKOFF}, 0xffff")
    if (kb, ct, mode) == (2, 7, "loop"): A(f"s_cmp_eq_u32 s{sLOOP}, 0")
    if early: A(f"ds_write_b32 v13, a{16*(ct-1)+8} offset:{(ct-1)*CB_T + 2048}")
    e(15)
    if mode == "last" and ct == 8 - OPT["trig"] - 1: cnt_add(vCNT, vIDX, 12)
    if (mode, ct) == ("last", 0):
        A(f"""
        s_waitcnt lgkmcnt(0)
        v_readfirstlane_b32 s{sT0}, v12
        s_cmp_ge_u32 s{sT0}, {4 if not (OPT["noS"] or OPT["nochk"]) else 0}
        s_cbranch_scc1 L_sfree
        """)
        cnt_wait(vCNT, 12, 4, 8, sleep=2)
        A.label("L_sfree")
if OPT["cyc"]: A(f"s_memtime s[{sST+10}:{sST+11}]")
period(0, 0, "first")
A("s_branch L_attn1")
A(".p2align 6")
A.label("L_attn")
loop_start = len(A.lines)
for kb in range(4):
    for ct in range(8):
        if (kb, ct) == (0, 1): A.label("L_attn1")
        period(kb, ct, "loop")
    if kb == 2: A("s_cbranch_scc1 L_last")
loop_end = len(A.lines)
A("s_branch L_attn")
A.label("L_last")
for ct in range(8):
    period(3, ct, "last")
A(f"""
s_nop 1
v_smfmac_f32_32x32x32_bf16 a[112:127], v[{KV[3]+8}:{KV[3]+11}], v[{S1+8}:{S1+15}], v{vIDX}
""")
stamp(4, not HST)
if OPT["cyc"]: A(f"s_memtime s[{sST+12}:{sST+13}]")
if OPT["pad"] and OPT["padat"] == 2: padto()
A(f"s_mov_b32 s{sATG}, 16")
A.label("L_comb")
for k in range(3):
    A(f"""
    s_add_u32 s{sT0}, s{sWAVE}, {k + 1}
    s_and_b32 s{sT0}, s{sT0}, 3
    s_mul_i32 s{sT0}, s{sT0}, {6*CB_T}
    s_add_u32 s{sT0}, s{sT0}, {CB + 2*(2 - k)*CB_T}
    v_add_u32 v{8+k}, s{sT0}, v{vL16x}
    v_lshl_add_u32 v{[12, 14, 15][k]}, v{vL31}, 2, s{sT0}
    """)
A(f"""
s_lshl_b32 s{sT1}, s{sG}, 2
s_add_u32 s{sT1}, s{sT1}, s{sWAVE}
s_lshl_b32 s{sT1}, s{sT1}, 10
s_lshl_b32 s{sT2}, s{sC}, 16
s_add_u32 s{sT1}, s{sT1}, s{sT2}
s_add_u32 s{sT1}, s{sT1}, {OB}
s_add_u32 s{sT2}, s{sT1}, 32768
s_waitcnt vmcnt(0)
""")
cnt_wait(vCNT, 16, f"s{sATG}", 4)
def astamp(i):
    if OPT["cyc"] or HST or not OPT["stamps"]: return
    stamp(i)
astamp(5)
PD = [[16, 24, 32, 40], [80, 88, 96, 104]]
PL = [[112, 113, 114, 115], [116, 117, 118, 119]]
A(f"ds_read_b64 v[120:121], v0 offset:{QM - CNT}")
for u in range(2):
    for k in range(3):
        A(f"ds_read_b32 v{PL[u][k+1]}, v{[12, 14, 15][k]} offset:{u*CB_T + 2048}")
    for k in range(3):
        A(f"ds_read_b128 v[{PD[u][k+1]}:{PD[u][k+1]+3}], v{8+k} offset:{u*CB_T}")
        A(f"ds_read_b128 v[{PD[u][k+1]+4}:{PD[u][k+1]+7}], v{8+k} offset:{u*CB_T + 1024}")
    if u == 0: A("s_waitcnt lgkmcnt(6)")
for u in range(2):
    A(f"v_accvgpr_read_b32 v{PL[u][0]}, a{16*(6+u)+8}")
    A(f"v_accvgpr_read_b32 v{122+u}, a{16*(6+u)+8}")
A(f"""
v_mul_f32 v120, v120, v121
v_add_f32 v113, v113, v114
v_permlane32_swap_b32 v112, v122
v_permlane32_swap_b32 v116, v123
v_cmp_nge_f32 vcc, {f2u(-1.0 if OPT['force_slow'] else 1000.0)}, v120
v_add_f32 v112, v112, v115
v_add_f32 v112, v112, v113
v_rcp_f32 v112, v112
s_cbranch_vccnz L_slow
L_fast:
""")
def comb(u, soff):
    d = PD[u]
    for i in range(8): A(f"v_accvgpr_read_b32 v{d[0]+i}, a{16*(6+u)+i}")
    if u == 0: A("s_waitcnt lgkmcnt(9)")
    else:
        A(f"""
        s_waitcnt lgkmcnt(2)
        v_add_f32 v117, v117, v118
        v_add_f32 v116, v116, v119
        v_add_f32 v116, v116, v117
        v_rcp_f32 v116, v116
        """)
    for i in range(0, 8, 2): A(f"v_pk_add_f32 {p2(d[1]+i)}, {p2(d[1]+i)}, {p2(d[2]+i)}")
    if u == 1: A("s_waitcnt lgkmcnt(0)")
    for i in range(0, 8, 2): A(f"v_pk_add_f32 {p2(d[0]+i)}, {p2(d[0]+i)}, {p2(d[3]+i)}")
    for i in range(0, 8, 2): A(f"v_pk_add_f32 {p2(d[0]+i)}, {p2(d[0]+i)}, {p2(d[1]+i)}")
    for i in range(0, 8, 2):
        A(f"v_pk_mul_f32 {p2(d[0]+i)}, {p2(d[0]+i)}, {p2(PL[u][0])} op_sel_hi:[1,0]")
    for i in range(0, 8, 2):
        A(f"v_cvt_pk_bf16_f32 v{d[1]+i//2}, v{d[0]+i}, v{d[0]+i+1}")
    A(f"buffer_store_dwordx4 v[{d[1]}:{d[1]+3}], v{vL16x}, {srd(R_WS)}, s{soff} offen sc1")
def p2(r): return f"v[{r}:{r+1}]"
comb(0, sT1); comb(1, sT2)
astamp(6)
if OPT["oack"]: A("s_waitcnt vmcnt(0)")
cnt_add(vCNT, vIDX, 12)
A(f"""
s_or_b32 s{sT0}, s2, s{sWAVE}
s_cmp_lg_u32 s{sT0}, 0
s_cbranch_scc1 L_noep
s_add_u32 s{sT0}, s{sEP}, 1
v_mov_b32 v10, s{sT0}
v_mov_b32 v11, 0
s_mov_b64 exec, 1
buffer_store_dword v10, v11, {srd(R_WS)}, 0 offen
s_mov_b64 exec, -1
L_noep:
""")
A.label("L_fin")
if OPT["pad"] and OPT["padat"] == 0:
    A("s_waitcnt vmcnt(0)"); padto()
if OPT["stamps"]:
    A(f"""
    s_waitcnt vmcnt(0)
    s_memrealtime s[100:101]
    s_waitcnt lgkmcnt(0)
    s_lshl_b32 s{sT0}, s2, 3
    s_add_u32 s{sT0}, s{sT0}, s{sWAVE}
    s_lshl_b32 s{sT0}, s{sT0}, 6
    s_add_u32 s{sT0}, s{sT0}, {DBG + 0x800000}
    v_mov_b32 v11, 0
    """)
    for i in range(9): A(f"v_mov_b32 v{16+i}, s{sST+2*i}")
    A(f"""
    s_mov_b64 exec, 1
    buffer_store_dwordx4 v[16:19], v11, {srd(R_WS)}, s{sT0} offen
    buffer_store_dwordx4 v[20:23], v11, {srd(R_WS)}, s{sT0} offen offset:16
    buffer_store_dword v24, v11, {srd(R_WS)}, s{sT0} offen offset:32
    """)
if OPT["hdbg"]:
    A(f"""
    s_load_dwordx2 s[{sT2}:{sT3}], s[0:1], 120
    s_not_b32 s{sT0}, s{sST}
    v_mov_b32 v30, s{sT0}
    v_mov_b32 v31, 0
    s_waitcnt lgkmcnt(0)
    global_atomic_umax v31, v30, s[{sT2}:{sT3}]
    s_cmp_ge_u32 s{sWAVE}, 4
    s_cbranch_scc1 L_hdS
    """)
    for k, i in enumerate((0, 2, 3, 4, 5, 6, 8)):
        A(f"global_atomic_umax v31, v{16+i}, s[{sT2}:{sT3}] offset:{4*(1+k)}")
    A("s_branch L_end")
    A.label("L_hdS")
    for k, i in enumerate((1, 2, 3, 4, 5, 6, 7, 8)):
        if i in (1, 2):
            A(f"s_cmp_lg_u32 s{sWAVE}, 4")
            A(f"s_cbranch_scc1 L_hd{i}")
        A(f"global_atomic_umax v31, v{16+i}, s[{sT2}:{sT3}] offset:{4*(8+k)}")
        if i in (1, 2): A.label(f"L_hd{i}")
A.label("L_end")
A("s_endpgm")

A.label("L_S2a")
A("s_waitcnt vmcnt(0)")
A.label("L_S2")
SSEC[0] = True
kload([(R_XA, 0), (R_BRE, 24), (R_BIM, 32), (R_CRE, 40), (R_CIM, 48), (R_WO, 104), (R_AGG, 128)])
if OPT["pfc"]:
    A(f"""
    s_cmp_lg_u32 s{sWAVE}, 7
    s_cbranch_scc1 L_nopfcode
    s_getpc_b64 s[{sT0}:{sT1}]
    L_pc:
    s_sub_u32 s{sT0}, s{sT0}, L_pc-{NAME}_kernel
    s_subb_u32 s{sT1}, s{sT1}, 0
    s_lshl_b32 s{sLOOP}, s{sROT}, 13
    v_lshlrev_b32 v16, 7, v{vLANE}
    v_add_u32 v16, s{sLOOP}, v16
    v_min_u32 v16, L_hot_end-{NAME}_kernel-4, v16
    global_load_dword v{vDUM}, v16, s[{sT0}:{sT1}]
    L_nopfcode:
    """)
common_scalars()
srd_words([R_XA, R_BRE, R_BIM, R_CRE, R_CIM, R_WO, R_AGG])
A(f"""
s_lshl_b32 s{sT3}, s{sG}, 7
s_lshl_b32 s{sT4}, s{sG}, 16
s_waitcnt lgkmcnt(0)
s_mov_b64 s[{P_LRE}:{P_LRE+1}], s[{R_BRE}:{R_BRE+1}]
s_mov_b64 s[{P_LIM}:{P_LIM+1}], s[{R_BIM}:{R_BIM+1}]
s_mov_b64 s[{P_LDT}:{P_LDT+1}], s[{R_CRE}:{R_CRE+1}]
s_mov_b64 s[{P_DSK}:{P_DSK+1}], s[{R_CIM}:{R_CIM+1}]
s_mov_b64 s[{P_WV}:{P_WV+1}], s[{R_WO}:{R_WO+1}]
""")
for r, t in ((R_XA, sT2), (R_BRE, sT4), (R_BIM, sT4), (R_CRE, sT4), (R_CIM, sT4), (R_WO, sT3)):
    A(f"s_add_u32 s{r}, s{r}, s{t}")
    A(f"s_addc_u32 s{r+1}, s{r+1}, 0")
A(f"""
s_add_u32 s{R_AGG}, s{R_AGG}, {AGG}
s_addc_u32 s{R_AGG+1}, s{R_AGG+1}, 0
""")
common_after_wait(False)
if OPT["tlb"]:
    A(f"""
    s_cmp_lg_u32 s{sSW}, 2
    s_cbranch_scc1 L_notlb
    v_mov_b32 v16, 0
    s_lshl_b32 s{sT0}, s{sC}, 17
    s_add_u32 s{sT0}, s{sT0}, {HB}
    s_mov_b32 s{sT1}, {KVT}
    s_mov_b64 exec, 1
    """)
    for R in (R_XA, R_BRE, R_BIM, R_WO, R_CRE, R_CIM, R_OUT):
        A(f"buffer_load_dword v{vDUM}, v16, {srd(R)}, 0 offen")
    A(f"""
    buffer_load_dword v{vDUM}, v16, {srd(R_WS)}, s{sOB} offen sc1
    buffer_load_dword v{vDUM}, v16, {srd(R_WS)}, s{sT0} offen offset:2048 sc1
    s_mov_b64 exec, -1
    L_notlb:
    """)
A(f"""
s_add_u32 s{sROT}, s{sC}, s{sG}
s_and_b32 s{sROT}, s{sROT}, 3
v_lshrrev_b32 v20, 4, v{vLANE}
v_and_b32 v21, 15, v{vLANE}
v_lshlrev_b32 v22, 4, v21
v_lshl_add_u32 v{vBo}, v20, 14, v22
v_lshrrev_b32 v23, 1, v20
v_and_b32 v24, 1, v20
v_lshlrev_b32 v23, 15, v23
v_lshl_add_u32 v23, v24, 12, v23
v_add_u32 v{vXo}, v23, v22
v_lshlrev_b32 v{vPF}, 7, v21
s_lshl_b32 s{sT0}, s2, 11
v_add_u32 v{vPF}, s{sT0}, v{vPF}
""")
LOG2E = math.log2(math.e)
a0, a1, a2, a3, a4, a5 = PRM, PRM+1, PRM+2, 96, 97, 98
vLR, vLI = vL1, vL1 + 1
A(f"""
s_mov_b32 s{sT0}, {f2u(LOG2E)}
v_lshlrev_b32 v{a0}, 16, v{a0}
v_lshlrev_b32 v{a1}, 16, v{a1}
v_lshlrev_b32 v{a2}, 16, v{a2}
v_mul_f32 v{a2}, s{sT0}, v{a2}
v_exp_f32 v{a2}, v{a2}
s_nop 0
v_cvt_pk_bf16_f32 v{a2}, v{a2}, v{a2}
v_and_b32 v{a2}, 0xffff0000, v{a2}
v_mul_f32 v{a3}, v{a2}, v{a0}
v_mul_f32 v{a4}, v{a2}, v{a1}
v_mul_f32 v{a3}, s{sT0}, v{a3}
v_exp_f32 v{a3}, v{a3}
v_mul_f32 v{a4}, 0.15915494, v{a4}
v_fract_f32 v{a4}, v{a4}
v_cos_f32 v{vLR}, v{a4}
v_sin_f32 v{vLI}, v{a4}
s_nop 0
v_mul_f32 v{vLR}, v{a3}, v{vLR}
v_mul_f32 v{vLI}, v{a3}, v{vLI}
v_mul_f32 v{a2}, v{a0}, v{a0}
v_fmac_f32 v{a2}, v{a1}, v{a1}
v_rcp_f32 v{a2}, v{a2}
v_add_f32 v{a3}, -1.0, v{vLR}
v_mul_f32 v{a4}, v{a3}, v{a0}
v_fmac_f32 v{a4}, v{vLI}, v{a1}
v_mul_f32 v{a5}, v{vLI}, v{a0}
v_fma_f32 v{a5}, -v{a3}, v{a1}, v{a5}
v_add_f32 v{a2}, v{a2}, v{a2}
v_mul_f32 v{vCF}, v{a4}, v{a2}
v_mul_f32 v{vCF+1}, v{a5}, v{a2}
""")
def csq(d, s_):
    A(f"v_mul_f32 v{a0}, v{s_+1}, v{s_+1}")
    A(f"v_mul_f32 v{a1}, v{s_}, v{s_+1}")
    A(f"v_fma_f32 v{d}, v{s_}, v{s_}, -v{a0}")
    A(f"v_add_f32 v{d+1}, v{a1}, v{a1}")
csq(vL8, vL1); csq(vL8, vL8); csq(vL8, vL8)
csq(vL16, vL8)
csq(vL64, vL16); csq(vL64, vL64)
csq(vL512, vL64); csq(vL512, vL512); csq(vL512, vL512)
vD = PRM + 3
A(f"""
v_and_b32 v20, 1, v{vL31}
v_lshlrev_b32 v20, 4, v20
v_lshlrev_b32 v{vD}, v20, v{vD}
v_bfe_u32 v20, v{vL31}, 3, 1
v_cmp_eq_u32 vcc, v20, v{vH}
v_bfe_u32 v21, v{vL31}, 1, 2
v_lshrrev_b32 v22, 4, v{vL31}
v_cndmask_b32 v{vD}, 0, v{vD}, vcc
v_lshl_add_u32 v21, v22, 2, v21
""")
for i in range(8):
    A(f"v_cmp_eq_u32 vcc, {i}, v21")
    A("s_nop 1")
    A(f"v_cndmask_b32 v{DG+i}, 0, v{vD}, vcc")
A(f"""
v_and_b32 v20, 15, v{vL31}
v_mul_u32_u24 v20, 1040, v20
v_lshl_add_u32 v20, v{vH}, 4, v20
v_lshrrev_b32 v21, 4, v{vL31}
v_lshl_add_u32 v20, v21, 8, v20
s_lshl_b32 s{sT0}, s{sTW}, 9
v_add_u32 v{vAa[0]}, s{sT0}, v20
v_add_u32 v{vAa[1]}, {SLOT[1]}, v{vAa[0]}
s_lshl_b32 s{sT0}, s{sCW}, 9
s_add_u32 s{sT0}, s{sT0}, {BRE_O}
v_add_u32 v{vBa[0]}, s{sT0}, v20
v_add_u32 v{vBa[1]}, {SLOT[1]}, v{vBa[0]}
v_bfe_u32 v20, v{vL31}, 2, 1
v_lshlrev_b32 v20, 3, v20
v_bfe_u32 v21, v{vL31}, 4, 1
v_lshl_add_u32 v20, v21, 2, v20
v_and_b32 v21, 3, v{vL31}
v_add_u32 v20, v20, v21
v_mul_u32_u24 v20, 1040, v20
v_bfe_u32 v21, v{vL31}, 3, 1
v_lshl_add_u32 v20, v21, 8, v20
v_lshl_add_u32 v20, v{vH}, 4, v20
s_lshl_b32 s{sT0}, s{sTW}, 9
s_and_b32 s{sT1}, s{sG}, 1
s_lshl_b32 s{sT1}, s{sT1}, 7
s_add_u32 s{sT0}, s{sT0}, s{sT1}
s_lshl_b32 s{sT1}, s{sCW}, 6
s_add_u32 s{sT0}, s{sT0}, s{sT1}
s_lshr_b32 s{sLOOP}, s{sG}, 1
s_sub_u32 s{sLOOP}, s{sLOOP}, s{sROT}
s_and_b32 s{sLOOP}, s{sLOOP}, 3
s_mul_i32 s{sT1}, s{sLOOP}, {SLOT[1]}
s_cmp_eq_u32 s{sLOOP}, 3
s_cselect_b32 s{sT1}, 0, s{sT1}
s_add_u32 s{sT0}, s{sT0}, s{sT1}
v_add_u32 v{vDa}, s{sT0}, v20
s_mul_i32 s{sT7}, s{sSW}, {4*1040}
v_add_u32 v{vSt}, s{sT7}, v{vL16x}
v_add_u32 v{vAa[2]}, {SLOT[1]}, v{vSt}
v_add_u32 v{vBa[2]}, {SLOT[2]}, v{vSt}
""")
cnt_wait(vCNT, vTMP, 6, 0, sleep=1)
cnt_wait(vCNT, vTMP, 4, 12, sleep=1)
if OPT["stgl"] > 2: cnt_wait(vCNT, vTMP, 4*OPT["stgl"], 4, sleep=2)
prio(OPT["gprio"])
sstamp(1, 1)
def pfx(items):
    if OPT["pfb"] != 2: return
    nsh = 8 if OPT["map84"] else 4
    for R, sw, shift in items:
        lbl = A.newlabel("pfx")
        A(f"""
        s_cmp_lg_u32 s{sSW}, {sw}
        s_cbranch_scc1 {lbl}
        s_and_b32 s{sT0}, s{sC}, {nsh - 1}
        s_lshl_b32 s{sT0}, s{sT0}, {shift + 6 + (0 if nsh == 8 else 1)}
        v_lshlrev_b32 v{vPF}, {shift}, v{vLANE}
        buffer_load_dword v{vDUM}, v{vPF}, {srd(R)}, s{sT0} offen
        """)
        if nsh == 4:
            A(f"s_add_u32 s{sT0}, s{sT0}, {64 << shift}")
            A(f"buffer_load_dword v{vDUM}, v{vPF}, {srd(R)}, s{sT0} offen")
        A.label(lbl)
def pf16(pairs, lbl):
    if OPT["pfb"] != 1: return
    A(f"""
    s_cmp_lg_u32 s{sSW}, 1
    s_cbranch_scc1 {lbl}
    s_mov_b64 exec, 0xffff
    """)
    for p in pairs: A(f"global_load_dword v{vDUM}, v{vPF}, s[{p}:{p+1}]")
    A(f"s_mov_b64 exec, -1\n{lbl}:")
pf16([P_LRE, P_LIM, P_WV], "L_nopfb")
def g1_soff(s):
    A(f"""
    s_add_u32 s{sT5}, s{sROT}, {s}
    s_and_b32 s{sT5}, s{sT5}, 3
    s_lshl_b32 s{sT5}, s{sT5}, 8
    s_lshl_b32 s{sT3}, s{sSW}, 12
    s_add_u32 s{sT3}, s{sT3}, s{sT5}
    s_lshl_b32 s{sT4}, s{sTW}, 14
    s_add_u32 s{sT4}, s{sT4}, s{sT5}
    s_lshl_b32 s{sT5}, s{sCW}, 11
    s_add_u32 s{sT4}, s{sT4}, s{sT5}
    s_add_u32 s{sT5}, s{sT4}, 8192
    """)
def stg_reg(n):
    assert n < 32
    return f"a[{4*n}:{4*n+3}]"
def stg_load(n):
    s_, r = divmod(n, 12); i, m = divmod(r, 3)
    if r == 0: g1_soff(s_)
    if m == 0: A(f"buffer_load_dwordx4 {stg_reg(n)}, v{vXo}, {srd(R_XA)}, s{sT5 if i & 1 else sT4} offen offset:{(i>>1)*1024}")
    else: A(f"buffer_load_dwordx4 {stg_reg(n)}, v{vBo}, {srd([0, R_BRE, R_BIM][m])}, s{sT3} offen offset:{i*1024}")
W0 = OPT["win0"]
NPRE = OPT["npre"]
NPRE = max(NPRE, OPT["npre0"])
for n in range(NPRE):
    if OPT["npre0"] and n == OPT["npre0"]: cnt_wait(vCNT, vTMP, 4, 12, sleep=1)
    stg_load(n)
    if W0 and n >= W0: A(f"s_waitcnt vmcnt({W0})")
prio(OPT["vprio"])
A(f"s_waitcnt vmcnt({NPRE - 12})")
sstamp(2, 1)
prio(OPT["vprio"])
if OPT["npre0"] >= NPRE: cnt_wait(vCNT, vTMP, 4, 12, sleep=1)
if OPT["mid"]:
    for n in range(NPRE, NPRE + OPT["mid"]): stg_load(n)
    NPRE += OPT["mid"]
cnt_wait(vCNT, vTMP, 12, 4, sleep=1)
if OPT["noS"]: A("s_branch L_fin")
def stg_write(n):
    s, r = divmod(n, 12); i, m = divmod(r, 3)
    base = [vSt, vAa[2], vBa[2]][s]
    A(f"ds_write_b128 v{base}, {stg_reg(n)} offset:{[XA_O, BRE_O, BIM_O][m] + i*1040}")
ISS = [NPRE]
for n in range(12):
    stg_write(n)
    if ISS[0] < 12 + OPT["wq1"] and n >= 12 - (12 + OPT["wq1"] - NPRE) and ISS[0] < 32:
        stg_load(ISS[0]); ISS[0] += 1
sync_add(); sync_wait(0)
sstamp(3, 1)
def dma_piece(n, slot):
    i, m = divmod(n % 12, 3)
    if m == 0:
        A(f"s_add_u32 m0, s{sT7}, {slot + XA_O + i*1040 - (i>>1)*1024}")
        A("s_nop 0")
        A(f"buffer_load_dwordx4 v{vXo}, {srd(R_XA)}, s{sT5 if i & 1 else sT4} offen offset:{(i>>1)*1024} lds")
    else:
        A(f"s_add_u32 m0, s{sT7}, {slot + [0, BRE_O, BIM_O][m] + i*16}")
        A("s_nop 0")
        A(f"buffer_load_dwordx4 v{vBo}, {srd([0, R_BRE, R_BIM][m])}, s{sT3} offen offset:{i*1024} lds")
G1B = [FRS, FRS + 12, 64]
def g1_stage(s, extra=None, nwr=None, early_add=None):
    slot = s % 3
    prio(3 if (OPT["g1p"] >> s) & 1 else OPT["gprio"])
    sk = A.newlabel("nod")
    A(f"""
    s_cmp_lg_u32 s{sLOOP}, {s}
    s_cbranch_scc1 {sk}
    ds_read_b128 v[64:67], v{vDa}
    ds_read_b128 v[68:71], v{vDa} offset:32
    s_waitcnt lgkmcnt(0)
    v_mfma_f32_32x32x16_bf16 v[{Y0}:{Y0+15}], v[64:67], v[{DG}:{DG+3}], 0
    v_mfma_f32_32x32x16_bf16 v[{Y0}:{Y0+15}], v[68:71], v[{DG+4}:{DG+7}], v[{Y0}:{Y0+15}]
    {sk}:
    """)
    def rd(k):
        f = G1B[k % 3]
        A(f"ds_read_b128 v[{f}:{f+3}], v{vAa[slot]} offset:{k*32}")
        A(f"ds_read_b128 v[{f+4}:{f+7}], v{vBa[slot]} offset:{k*32}")
        A(f"ds_read_b128 v[{f+8}:{f+11}], v{vBa[slot]} offset:{k*32 + (BIM_O-BRE_O)}")
    rd(0); rd(1)
    for k in range(8):
        f = G1B[k % 3]
        if k + 2 < 8: rd(k + 2)
        nw = nwr(k - 1) if (nwr and k > 0) else 0
        A(f"s_waitcnt lgkmcnt({min(15, 3*(min(8, k + 3) - k - 1) + nw)})")
        if k == 7 and early_add is not None:
            if early_add: A(early_add)
            sync_add(False)
        cr = "0" if (s == 0 and k == 0) else f"v[{UR}:{UR+15}]"
        ci = "0" if (s == 0 and k == 0) else f"v[{UI}:{UI+15}]"
        A(f"v_mfma_f32_32x32x16_bf16 v[{UR}:{UR+15}], v[{f}:{f+3}], v[{f+4}:{f+7}], {cr}")
        if extra: extra(k)
        A(f"v_mfma_f32_32x32x16_bf16 v[{UI}:{UI+15}], v[{f}:{f+3}], v[{f+8}:{f+11}], {ci}")
def issue_more(cnt):
    for n in range(ISS[0], min(36, ISS[0] + cnt)):
        if n < 32: stg_load(n)
        else: dma_piece(n, SLOT[2])
    ISS[0] = min(36, ISS[0] + cnt)
def ex0(k):
    issue_more(-(-(36 - ISS[0]) // (8 - k)))
    if 3 <= k < 7:
        hi = 12 + 3*(k - 3) + 3
        assert ISS[0] >= hi
        A(f"s_waitcnt vmcnt({ISS[0] - hi})")
        for n in range(hi - 3, hi): stg_write(n)
g1_stage(0, ex0, lambda k: 3 if 3 <= k < 6 else 0, early_add="")
assert ISS[0] == 36
sstamp(4, 1)
prio(OPT["vprio"])
g1_soff(3)
pfx([(R_WO, 1, 10)])
sync_wait(0)
def ex1(k):
    if k < 3:
        A(f"s_waitcnt vmcnt({[9, 6, 4][k] + 2*k})")
        for n in range(24 + 3*k, min(32, 27 + 3*k)): stg_write(n)
    for n in range(2*k, min(12, 2*k + 2)): dma_piece(n, SLOT[0])
g1_stage(1, ex1, lambda k: [3, 3, 2][k] if k < 3 else 0, early_add="s_waitcnt vmcnt(12)")
sstamp(5, 1)
prio(OPT["vprio"])
A(f"v_add_u32 v{vAa[2]}, {SLOT[2]}, v{vAa[0]}")
A(f"v_add_u32 v{vBa[2]}, {SLOT[2]}, v{vBa[0]}")
CLR = 64
A(f"""
v_mov_b32 v{CLR}, -1
v_mov_b32 v{CLR+1}, -1
v_mov_b32 v{CLR+2}, -1
v_mov_b32 v{CLR+3}, -1
s_lshl_b32 s{sT0}, s{sG}, 12
s_add_u32 s{sT0}, s{sT0}, s{sOB}
s_lshl_b32 s{sT1}, s{sCW}, 11
s_add_u32 s{sT0}, s{sT0}, s{sT1}
buffer_store_dwordx4 v[{CLR}:{CLR+3}], v{vL16x}, {srd(R_WS)}, s{sT0} offen sc1
buffer_store_dwordx4 v[{CLR}:{CLR+3}], v{vL16x}, {srd(R_WS)}, s{sT0} offen offset:1024 sc1
v_mov_b32 v{CLR+4}, 0
v_mov_b32 v{CLR+5}, s{sTAG}
v_mov_b32 v{CLR+6}, 0
v_mov_b32 v{CLR+7}, s{sTAG}
s_lshl_b32 s{sT1}, s{sID}, 7
s_add_u32 s{sT1}, s{sT1}, {AGG_DUMMY}
s_mov_b64 exec, 1
buffer_store_dwordx4 v[{CLR+4}:{CLR+7}], v{CLR+4}, {srd(R_AGG)}, s{sT1} offen sc1
s_mov_b64 exec, -1
""")
sync_wait(0)
g1_stage(2, early_add="s_waitcnt vmcnt(0)")
sstamp(6, 1)
prio(OPT["vprio"])
pf16([P_LDT, P_DSK], "L_nopfc")
pfx([(R_CRE, 2, 7), (R_CIM, 3, 7)])
wq_voffset(5, 6, 8, 15)
A(f"""
s_mul_i32 s{sT2}, s{sSW}, {16*1040}
s_lshl_b32 s{sT3}, s{sSW}, 14
s_lshl_b32 s{sT6}, s{sSW}, 17
""")
sync_wait(0)
def wo_piece(i):
    A(f"""
    s_add_u32 m0, s{sT3}, {WO + i*1024}
    s_add_u32 s{sT1}, s{sT6}, {i*8192}
    buffer_load_dwordx4 v5, {srd(R_WO)}, s{sT1} offen lds
    """)
def c_piece(R, base, i):
    A(f"s_add_u32 m0, s{sT2}, {base + i*1040 - (i & 3)*1024}")
    if i & 3 == 0: A(f"s_add_u32 s{sT4}, s{sT3}, {i*1024}")
    else: A("s_nop 0")
    A(f"buffer_load_dwordx4 v{vL16x}, {srd(R)}, s{sT4} offen offset:{(i & 3)*1024} lds")
def ex3(k):
    wo_piece(2*k); wo_piece(2*k + 1)
g1_stage(3, ex3)
sstamp(7, 1); sstamp(1, 2)
prio(OPT["vprio"])
stamp(3)
A(f"""
s_lshl_b32 s{sT0}, s{sTW}, 10
s_lshl_b32 s{sT1}, s{sCW}, 8
s_add_u32 s{sT1}, s{sT1}, {EB}
s_add_u32 s{sT0}, s{sT0}, s{sT1}
v_lshlrev_b32 v10, 3, v{vL31}
v_add_u32 v11, s{sT1}, v10
v_lshl_add_u32 v10, v{vH}, 9, v10
v_add_u32 v10, s{sT0}, v10
""")
A.nop(4)
if OPT["dbg"]:
    A(f"""
    s_lshl_b32 s{sT0}, s{sID}, 2
    s_add_u32 s{sT0}, s{sT0}, s{sSW}
    s_lshl_b32 s{sT0}, s{sT0}, 13
    s_add_u32 s{sT0}, s{sT0}, {DBG}
    v_lshlrev_b32 v12, 2, v{vLANE}
    """)
    for i in range(32):
        A(f"buffer_store_dword v{UR+i}, v12, {srd(R_WS)}, s{sT0} offen")
        A(f"s_add_u32 s{sT0}, s{sT0}, 256")
    A("s_waitcnt vmcnt(0)")
def cstep4(dr, di, pr, pi, l, ur, ui, tr, ti):
    A(f"v_fma_f32 v{tr}, v{l}, v{pr}, v{ur}")
    A(f"v_fma_f32 v{ti}, v{l}, v{pi}, v{ui}")
    A(f"v_fma_f32 v{dr}, -v{l+1}, v{pi}, v{tr}")
    A(f"v_fma_f32 v{di}, v{l+1}, v{pr}, v{ti}")
def p2(r): return f"v[{r}:{r+1}]"
def pkstep(dr, di, pr, pi, l, ur, ui, tr, ti):
    A(f"v_pk_fma_f32 {p2(tr)}, {p2(l)}, {p2(pr)}, {p2(ur)} op_sel_hi:[0,1,1]")
    A(f"v_pk_fma_f32 {p2(ti)}, {p2(l)}, {p2(pi)}, {p2(ui)} op_sel_hi:[0,1,1]")
    A(f"v_pk_fma_f32 {p2(dr)}, {p2(l)}, {p2(pi)}, {p2(tr)} op_sel:[1,0,0] neg_lo:[1,0,0] neg_hi:[1,0,0]")
    A(f"v_pk_fma_f32 {p2(di)}, {p2(l)}, {p2(pr)}, {p2(ti)} op_sel:[1,0,0]")
pa = [(FRS, FRS+2), (6, 8)]
p = (UR, UI)
for j in range(1, 8):
    d = pa[j & 1]
    pkstep(d[0], d[1], p[0], p[1], vL1, UR+2*j, UI+2*j, FRS+4, FRS+6)
    p = d
EA = (6, 8)
cstep4(FRS, FRS+1, 6, 8, vL8, 7, 9, FRS+4, FRS+5)
A(f"ds_write_b64 v10, v[{FRS}:{FRS+1}]")
A("s_waitcnt vmcnt(0)")
sync_add()
LB = 64
A(f"""
s_lshl_b32 s{sT0}, s{sTW}, 4
s_sub_u32 s{sT0}, s{sC}, s{sT0}
s_sub_u32 s{sT0}, s{sT0}, 1
s_lshl_b32 s{sT0}, s{sT0}, 13
v_lshlrev_b32 v5, 16, v{vH}
v_sub_u32 v5, s{sT0}, v5
v_lshl_add_u32 v5, v{vP2}, 3, v5
s_lshl_b32 s{sT1}, s{sID}, 7
s_add_u32 s{sT1}, s{sT1}, {AGG_DUMMY}
""")
for k in range(8):
    A(f"v_min_u32 v{96+k}, s{sT1}, v5")
    if k < 7: A(f"v_add_u32 v5, {(-8192) & 0xffffffff}, v5")
sync_wait(0)
sstamp(2, 2)
E = FRS
for s in range(4):
    A(f"ds_read_b64 v[{E+2*s}:{E+2*s+1}], v11 offset:{s*512}")
A("s_waitcnt lgkmcnt(0)")
A1, A2, G3 = (104, 105), (106, 107), 108
cstep4(A1[0], A1[1], E, E+1, vL16, E+2, E+3, FRS+8, FRS+9)
cstep4(A2[0], A2[1], A1[0], A1[1], vL16, E+4, E+5, FRS+8, FRS+9)
vPR, vPI, vW = 12, 13, 14
tw1 = A.newlabel("tw1"); twd = A.newlabel("twd")
A(f"""
v_cmp_eq_u32 vcc, 1, v{vH}
s_cmp_lg_u32 s{sTW}, 0
s_cbranch_scc1 {tw1}
""")
cstep4(G3, G3+2, A2[0], A2[1], vL16, E+6, E+7, FRS+8, FRS+9)
A(f"""
v_mov_b32 v{G3+1}, s{sTAG}
v_mov_b32 v{G3+3}, s{sTAG}
v_lshlrev_b32 v7, 3, v{vP2}
s_lshl_b32 s{sT0}, s{sC}, 13
s_mov_b32 exec_hi, 0
buffer_store_dwordx4 v[{G3}:{G3+3}], v7, {srd(R_AGG)}, s{sT0} offen sc1
s_mov_b32 exec_hi, -1
v_cndmask_b32 v{vPR}, 0, v{E}, vcc
v_cndmask_b32 v{vPI}, 0, v{E+1}, vcc
v_cndmask_b32 v{vW}, 1.0, v{vL16}, vcc
v_cndmask_b32 v{vW+1}, 0, v{vL16+1}, vcc
s_branch {twd}
{tw1}:
v_cndmask_b32 v{vPR}, v{A1[0]}, v{A2[0]}, vcc
v_cndmask_b32 v{vPI}, v{A1[1]}, v{A2[1]}, vcc
v_mul_f32 v{FRS+8}, v{vL16+1}, v{vL16+1}
v_mul_f32 v{FRS+9}, v{vL16}, v{vL16+1}
v_fma_f32 v{FRS+8}, v{vL16}, v{vL16}, -v{FRS+8}
v_add_f32 v{FRS+9}, v{FRS+9}, v{FRS+9}
v_mul_f32 v{FRS+10}, v{FRS+8}, v{vL16}
v_mul_f32 v{FRS+11}, v{FRS+8}, v{vL16+1}
v_fma_f32 v{FRS+10}, -v{FRS+9}, v{vL16+1}, v{FRS+10}
v_fma_f32 v{FRS+11}, v{FRS+9}, v{vL16}, v{FRS+11}
v_cndmask_b32 v{vW}, v{FRS+8}, v{FRS+10}, vcc
v_cndmask_b32 v{vW+1}, v{FRS+9}, v{FRS+11}, vcc
{twd}:
""")
A(f"s_mov_b32 s{sSPIN}, 0")
A(f"""
s_lshl_b32 s{sT0}, s{sSW}, 12
s_add_u32 s{sT0}, s{sT0}, {TB}
v_lshlrev_b32 v9, 6, v{vL31}
v_lshl_add_u32 v9, v{vH}, 5, v9
v_add_u32 v9, s{sT0}, v9
v_bfe_u32 v108, v{vLANE}, 2, 2
v_lshl_add_u32 v108, v{vH}, 3, v108
v_lshlrev_b32 v108, 6, v108
v_bfe_u32 v109, v{vLANE}, 4, 1
v_lshl_add_u32 v108, v109, 5, v108
v_and_b32 v109, 3, v{vLANE}
v_lshl_add_u32 v108, v109, 3, v108
v_add_u32 v108, s{sT0}, v108
""")
A(f"""
v_bfe_u32 v5, v{vLANE}, 2, 2
v_lshl_add_u32 v5, v{vH}, 2, v5
v_bfe_u32 v7, v{vLANE}, 4, 1
v_and_b32 v110, 3, v{vLANE}
v_lshlrev_b32 v110, 3, v110
v_lshl_add_u32 v110, v7, 5, v110
v_bfe_u32 v7, v{vLANE}, 3, 1
v_lshl_add_u32 v110, v7, 6, v110
v_lshl_add_u32 v110, v5, 7, v110
s_lshl_b32 s{sT0}, s{sCW}, 15
s_add_u32 s{sT0}, s{sT0}, {WO}
s_lshl_b32 s{sT1}, s{sCW}, 6
v_xor_b32 v110, s{sT1}, v110
v_xor_b32 v111, 64, v110
v_add_u32 v110, s{sT0}, v110
v_add_u32 v111, s{sT0}, v111
""")
for j in range(16):
    for nt in range(2):
        f = 8*j + 4*nt
        A(f"ds_read_b64_tr_b16 a[{f}:{f+1}], v{110 + nt} offset:{j*2048}")
        A(f"ds_read_b64_tr_b16 a[{f+2}:{f+3}], v{110 + nt} offset:{j*2048 + 1024}")
    if j % 3 == 2: A("s_waitcnt lgkmcnt(3)")
prio(OPT["gprio"])
for i in range(OPT["cim1"]): c_piece(R_CIM, CIM, i)
prio(OPT["vprio"])
sstamp(3, 2)
A.label("L_lb")
for k in range(8):
    A(f"buffer_load_dwordx4 v[{LB+4*k}:{LB+4*k+3}], v{96+k}, {srd(R_AGG)}, 0 offen sc1")
A(f"""
s_add_u32 s{sSPIN}, s{sSPIN}, 1
s_waitcnt vmcnt(0)
v_min_u32 v5, v{LB+1}, v{LB+3}
v_max3_u32 v7, s{sTAG}, v{LB+1}, v{LB+3}
""")
for k in range(1, 8):
    A(f"v_min3_u32 v5, v5, v{LB+4*k+1}, v{LB+4*k+3}")
    A(f"v_max3_u32 v7, v7, v{LB+4*k+1}, v{LB+4*k+3}")
A(f"""
v_min_u32 v5, s{sTAG}, v5
v_cmp_ne_u32 vcc, v5, v7
s_cbranch_vccz L_lbd
s_sleep 8
s_cmp_lt_u32 s{sSPIN}, {SPIN_MAX}
s_cbranch_scc1 L_lb
L_lbd:
""")
stamp(4); sstamp(4, 2)
p = (LB+28, LB+30)
pb = [(96, 97), (98, 99)]
for k in range(6, -1, -1):
    d = pb[k & 1]
    cstep4(d[0], d[1], p[0], p[1], vL64, LB+4*k, LB+4*k+2, 100, 101)
    p = d
A(f"ds_write_b64 v10, v[96:97] offset:{HP-EB}")
sync_add(); sync_wait(0)
sstamp(5, 2)
for s in range(4):
    A(f"ds_read_b64 v[{E+2*s}:{E+2*s+1}], v11 offset:{HP - EB + s*512}")
A("s_waitcnt lgkmcnt(0)")
p = (E+6, E+7)
for s in range(2, -1, -1):
    d = pb[s & 1]
    cstep4(d[0], d[1], p[0], p[1], vL512, E+2*s, E+2*s+1, 100, 101)
    p = d
CRp, CIp = 104, 106
cstep4(CRp, CIp, p[0], p[1], vW, vPR, vPI, 100, 101)
cstep4(CRp+1, CIp+1, CRp, CIp, vL8, EA[0], EA[1], 100, 101)
HR, HI = FRS, FRS+8
p = (CRp, CIp)
for j in range(8):
    pkstep(UR+2*j, UI+2*j, p[0], p[1], vL1, UR+2*j, UI+2*j, 100, 102)
    p = (UR+2*j, UI+2*j)
    if OPT['cpos'] == 0: c_piece(R_CRE, CRE, 2*j)
    A(f"v_pk_mul_f32 {p2(96)}, {p2(vCF)}, {p2(UI+2*j)} op_sel:[1,0]")
    A(f"v_pk_mul_f32 {p2(98)}, {p2(vCF)}, {p2(UR+2*j)} op_sel:[1,0]")
    A(f"v_pk_fma_f32 {p2(96)}, {p2(vCF)}, {p2(UR+2*j)}, {p2(96)} op_sel_hi:[0,1,1] neg_lo:[0,0,1] neg_hi:[0,0,1]")
    A(f"v_pk_fma_f32 {p2(98)}, {p2(vCF)}, {p2(UI+2*j)}, {p2(98)} op_sel_hi:[0,1,1] neg_lo:[1,0,1] neg_hi:[1,0,1]")
    if OPT['cpos'] == 0: c_piece(R_CRE, CRE, 2*j + 1)
    A(f"v_cvt_pk_bf16_f32 v{HR+j}, v96, v97")
    A(f"v_cvt_pk_bf16_f32 v{HI+j}, v98, v99")
    if j == 3:
        A(f"ds_write_b128 v9, v[{HR}:{HR+3}]")
        A(f"ds_write_b128 v9, v[{HI}:{HI+3}] offset:2048")
A(f"""
ds_write_b128 v9, v[{HR+4}:{HR+7}] offset:16
ds_write_b128 v9, v[{HI+4}:{HI+7}] offset:2064
s_lshl_b32 s{sKOFF}, s{sC}, 1
s_add_u32 s{sKOFF}, s{sKOFF}, s{sTW}
s_lshl_b32 s{sKOFF}, s{sKOFF}, 16
s_add_u32 s{sKOFF}, s{sKOFF}, {HB}
s_lshl_b32 s{sT1}, s{sG}, 12
s_lshl_b32 s{sT7}, s{sCW}, 11
s_add_u32 s{sT1}, s{sT1}, s{sT7}
s_add_u32 s{sT0}, s{sKOFF}, s{sT1}
s_add_u32 s{sT1}, s{sT0}, 32768
s_waitcnt lgkmcnt(0)
""")
for part in range(2):
    for hf in range(2):
        f = 64 + 8*part + 4*hf
        A(f"ds_read_b64_tr_b16 v[{f}:{f+1}], v108 offset:{part*2048 + hf*1024}")
        A(f"ds_read_b64_tr_b16 v[{f+2}:{f+3}], v108 offset:{part*2048 + hf*1024 + 256}")
for n in range(4):
    A(f"s_waitcnt lgkmcnt({6 - 2*n})")
    A(f"buffer_store_dwordx4 v[{64+4*n}:{67+4*n}], v{vL16x}, {srd(R_WS)}, s{sT0 if n < 2 else sT1} offen offset:{(n&1)*1024} sc1")
A(f"""
s_lshl_b32 s{sT7}, s{sC}, 12
s_add_u32 s{sT7}, s{sT7}, {FL3}
v_and_b32 v5, 15, v{vLANE}
v_lshlrev_b32 v5, 8, v5
s_lshl_b32 s{sT0}, s{sTW}, 7
s_add_u32 s{sT0}, s{sT0}, s{sT7}
v_add_u32 v5, s{sT0}, v5
v_mov_b32 v12, s{sTAG}
v_mov_b32 v13, 0
s_lshl_b32 s{sT1}, s{sG}, 2
s_add_u32 s{sT1}, s{sT1}, s{sSW}
s_lshl_b32 s{sT1}, s{sT1}, 7
s_add_u32 s{sT1}, s{sT1}, s{sT7}
""")
sstamp(6, 2)
A("s_waitcnt vmcnt(0)")
sstamp(7, 2); sstamp(1, 3)
A(f"""
s_mov_b64 exec, 1
buffer_store_dword v12, v13, {srd(R_WS)}, s{sT1} offen sc1
s_mov_b64 exec, -1
""")
if OPT["cpos"] == 0: sync_add(False)
else:
    prio(OPT["gprio"])
    for i in range(16): c_piece(R_CRE, CRE, i)
    prio(OPT["vprio"])
stamp(5, not HST)
A(f"""
v_mul_u32_u24 v10, 1040, v{vL31}
v_lshl_add_u32 v10, v{vH}, 4, v10
s_mul_i32 s{sT0}, s{sCW}, {512 + 32*1040}
s_mul_i32 s{sT1}, s{sCW}, {(512 - 32*1040) & 0xffffffff}
s_add_u32 s{sT1}, s{sT1}, {32*1040}
v_add_u32 v11, s{sT1}, v10
v_add_u32 v10, s{sT0}, v10
v_add_u32 v14, {CRE}, v10
v_add_u32 v15, {CRE}, v11
s_lshl_b32 s{sT1}, s{sCW}, 14
s_add_u32 s{sKOFF}, s{sKOFF}, s{sT1}
s_add_u32 s{sOB}, s{sOB}, s{sT1}
s_xor_b32 s{sT0}, s{sSW}, 2
s_lshl_b32 s{sT0}, s{sT0}, 12
v_add_u32 v114, s{sT0}, v{vL16x}
s_lshl_b32 s{sT0}, s{sSW}, 12
v_add_u32 v115, s{sT0}, v{vL16x}
v_add_u32 v119, {TB}, v114
v_add_u32 v120, {TB}, v115
s_lshl_b32 s{sT0}, s{sTW}, 17
s_lshl_b32 s{sT1}, s{sG}, 8
s_add_u32 s{sT0}, s{sT0}, s{sT1}
s_lshl_b32 s{sT1}, s{sCW}, 7
s_add_u32 s{sT0}, s{sT0}, s{sT1}
v_lshlrev_b32 v113, 2, v{vL31}
v_add_u32 v113, s{sT0}, v113
v_lshl_add_u32 v118, v{vH}, 14, v113
v_add_u32 v118, 2048, v118
v_lshl_add_u32 v113, v{vH}, 13, v113
""")
sstamp(2, 3)
poll_flags(5, 12, 1, sleep=OPT['sl2'])
if OPT["cpos"] == 1: sync_add(False)
sstamp(3, 3)
LA = 7
HRING = 16
def hreg(j): return HRING + 4*(j % 8)
def h_ld(j):
    if j == 16: A(f"s_add_u32 s{sKOFF}, s{sKOFF}, {32768 - 3*4096}")
    elif j % 4 == 0 and j > 0: A(f"s_add_u32 s{sKOFF}, s{sKOFF}, 4096")
    A(f"buffer_load_dwordx4 v[{hreg(j)}:{hreg(j)+3}], v{vL16x}, {srd(R_WS)}, s{sKOFF} offen offset:{(j%4)*1024} sc1")
for j in range(LA): h_ld(j)
def g2_rd(j):
    f = FRS + 8*(j % 3)
    A(f"ds_read_b128 v[{f}:{f+3}], v{14 if j < 16 else 10} offset:{(j % 16)*32}")
    A(f"ds_read_b128 v[{f+4}:{f+7}], v{15 if j < 16 else 11} offset:{(j % 16)*32}")
def g2_mfma(j):
    f = FRS + 8*(j % 3)
    c = "0" if j == 0 else f"v[{Y1}:{Y1+15}]"
    A(f"v_mfma_f32_32x32x16_bf16 v[{Y1}:{Y1+15}], v[{hreg(j)}:{hreg(j)+3}], v[{f+4}:{f+7}], {c}")
    A(f"v_mfma_f32_32x32x16_bf16 v[{Y0}:{Y0+15}], v[{hreg(j)}:{hreg(j)+3}], v[{f}:{f+3}], v[{Y0}:{Y0+15}]")
sync_wait(0)
prio(3 if OPT["g2p"] & 1 else OPT["gprio"])
g2_rd(0); g2_rd(1)
VQ = list(range(LA))
P2 = 32 - OPT["p2n"]
for j in range(32):
    if j == P2:
        if P2 + LA < 32 or True:
            pass
        prio(OPT["vprio"])
        cnt_wait(vCNT, vTMP, 8, 12, sleep=OPT['sl1'])
        sstamp(6, 3); sstamp(1, 4)
        prio(3 if OPT["g2p"] & 2 else OPT["gprio"])
    if j + LA < 32:
        h_ld(j + LA); VQ.append(j + LA)
    rest = list(range(OPT["cim1"], 16))
    per = -(-len(rest) // 10) if rest else 0
    for i in rest[per*j:per*(j + 1)] if j < 10 else []:
        if i == rest[0] and i & 3: A(f"s_add_u32 s{sT4}, s{sT3}, {(i & ~3)*1024}")
        c_piece(R_CIM, CIM, i); VQ.append(-2 if i == 15 else -1)
    if not rest and j == 0: VQ.insert(0, -2)
    if j == 14:
        prio(OPT["vprio"]); sync_wait(0); prio(3 if OPT["g2p"] & 1 else OPT["gprio"])
    if j + 2 < 32: g2_rd(j + 2)
    issued = min(32, j + 3)
    need = max(VQ.index(j), VQ.index(-2)) if j == 12 else VQ.index(j)
    A(f"s_waitcnt vmcnt({len(VQ) - 1 - need}) lgkmcnt({2*(issued - j - 1)})")
    if j == 12: sync_add(False)
    if j == 0: sstamp(4, 3)
    if j == 15:
        cnt_add(vCNT, vONE, 8)
        stamp(6, not HST); sstamp(5, 3)
    g2_mfma(j)
prio(OPT["vprio"])
A.nop(10)
for i in range(4):
    A(f"ds_write_b128 v119, v[{Y1+4*i}:{Y1+4*i+3}] offset:{i*1024}")
sync_add()
sync_wait(0)
for i in range(4):
    A(f"ds_read_b128 v[{Y1+4*i}:{Y1+4*i+3}], v120 offset:{i*1024}")
for i in range(16):
    if i % 4 == 0: A(f"s_waitcnt lgkmcnt({3 - i//4})")
    A(f"v_add_f32 v{Y0+i}, v{Y0+i}, v{Y1+i}")
    A(f"s_mov_b32 s{sT1}, {(16*(i>>3) + 4*((i>>2)&1) + ((i>>1)&1) + 8*(i&1))*4096}")
    A(f"buffer_store_dword v{Y0+i}, v113, {srd(R_OUT)}, s{sT1} offen{OST}")
stamp(7); sstamp(7, 3); sstamp(2, 4)
cnt_wait(vCNT, vTMP, 12, 12)
sstamp(3, 4)
if OPT["odel"]: A(f"s_sleep {OPT['odel']}")
def oreg(j): return (16 + 4*j) if j < 8 else (80 + 4*(j - 8))
def o_loads(g4):
    A(f"s_add_u32 s{sT1}, s{sOB}, {g4*4096}")
    for j in range(4*g4, 4*g4 + 4):
        A(f"buffer_load_dwordx4 v[{oreg(j)}:{oreg(j)+3}], v{vL16x}, {srd(R_WS)}, s{sT1} offen offset:{(j%4)*1024} sc1")
for g4 in range(4): o_loads(g4)
A(f"s_mov_b32 s{sSPIN}, 0")
for g4 in range(4):
    lp = A.newlabel("op"); dn = A.newlabel("opd"); ck = A.newlabel("opc")
    j0 = 4*g4
    A(f"s_waitcnt vmcnt({4*(3 - g4)})")
    A.label(ck)
    A(f"v_max_u32 v13, v{oreg(j0)+1}, v{oreg(j0)+3}")
    for j in range(j0 + 1, j0 + 4):
        A(f"v_max3_u32 v13, v13, v{oreg(j)+1}, v{oreg(j)+3}")
    A(f"""
    v_cmp_eq_u32 vcc, -1, v13
    s_cbranch_vccz {dn}
    s_add_u32 s{sSPIN}, s{sSPIN}, 1
    s_cmp_gt_u32 s{sSPIN}, 20000
    s_cbranch_scc1 {dn}
    """)
    o_loads(g4)
    A(f"""
    s_waitcnt vmcnt(0)
    s_branch {ck}
    {dn}:
    """)
    if g4 in (0, 3): sstamp(4 + g4 // 3, 4)
    for j in range(j0, j0 + 4):
        c0 = "0" if j == 0 else f"v[{Y0}:{Y0+15}]"
        c1 = "0" if j == 0 else f"v[{Y1}:{Y1+15}]"
        A(f"v_mfma_f32_32x32x16_bf16 v[{Y1}:{Y1+15}], v[{oreg(j)}:{oreg(j)+3}], a[{8*j+4}:{8*j+7}], {c1}")
        A(f"v_mfma_f32_32x32x16_bf16 v[{Y0}:{Y0+15}], v[{oreg(j)}:{oreg(j)+3}], a[{8*j}:{8*j+3}], {c0}")
if OPT["sst"] == 4: A(f"s_mov_b32 s{sST+14}, s{sSPIN}")
A.nop(11)
for i in range(4):
    A(f"ds_write_b128 v114, v[{Y1+4*i}:{Y1+4*i+3}] offset:{TB2 + i*1024}")
A("s_waitcnt lgkmcnt(0)")
A("s_barrier")
sstamp(6, 4)
for i in range(4):
    A(f"ds_read_b128 v[{Y1+4*i}:{Y1+4*i+3}], v115 offset:{TB2 + i*1024}")
for i in range(16):
    if i % 4 == 0: A(f"s_waitcnt lgkmcnt({3 - i//4})")
    A(f"v_add_f32 v{Y0+i}, v{Y0+i}, v{Y1+i}")
    A(f"s_mov_b32 s{sT1}, {(8*(i>>2) + (i&3))*4096}")
    A(f"buffer_store_dword v{Y0+i}, v118, {srd(R_OUT)}, s{sT1} offen{OST}")
A("s_branch L_fin")

A.label("L_hot_end")
A.label("L_slow")
A(f"""
s_cmp_lg_u32 s{sDONE}, 0
s_cbranch_scc1 L_fast
s_mov_b32 s{sDONE}, 1
s_waitcnt lgkmcnt(0)
""")
def a_sync():
    A(f"s_add_u32 s{sATG}, s{sATG}, 4")
    A("s_waitcnt lgkmcnt(0)")
    cnt_add(vCNT, vIDX, 4)
    cnt_wait(vCNT, 16, f"s{sATG}", 4, sleep=2)
for i in range(4): A(f"v_mov_b32 v{vZ+i}, 0")
for ct in range(8): A(f"v_mov_b32 v{vM+ct}, 0xff800000")
A("s_nop 1")
for ct in range(8):
    A(f"v_mfma_f32_32x32x16_bf16 a[{16*ct}:{16*ct+15}], v[{vZ}:{vZ+3}], v[{vZ}:{vZ+3}], 0")
A(f"s_mov_b32 s{sLOOP}, 16")
def adv():
    A(f"s_add_u32 s{sKOFF}, s{sKOFF}, {KVS}"); A(f"s_and_b32 s{sKOFF}, s{sKOFF}, 0xffff")
A.label("L_sl1")
ld_k(0, 0); adv()
A("s_waitcnt vmcnt(0)")
for ct in range(8):
    A(f"v_mfma_f32_32x32x16_bf16 v[{S0}:{S0+15}], v[{KV[0]}:{KV[0]+3}], v[{QF+4*ct}:{QF+4*ct+3}], 0")
    A.nop(12)
    for i in range(8):
        A(f"v_max3_f32 v{vM+ct}, v{S0+2*i}, v{S0+2*i+1}, v{vM+ct}")
A(f"""
s_sub_u32 s{sLOOP}, s{sLOOP}, 1
s_cmp_lg_u32 s{sLOOP}, 0
s_cbranch_scc1 L_sl1
s_lshl_b32 s{sT0}, s{sWAVE}, 11
s_add_u32 s{sT0}, s{sT0}, {CB}
v_lshlrev_b32 v8, 2, v{vLANE}
v_add_u32 v8, s{sT0}, v8
v_lshlrev_b32 v10, 2, v{vL31}
v_add_u32 v10, {CB}, v10
""")
a_sync()
def pair_off(pr):
    A(f"s_add_u32 s{sT0}, s{sWAVE}, {pr + 1}")
    A(f"s_and_b32 s{sT0}, s{sT0}, 3")
    A(f"s_lshl_b32 s{sT0}, s{sT0}, 9")
for pr in range(4):
    pair_off(pr)
    A(f"v_add_u32 v9, s{sT0}, v8")
    A(f"ds_write_b32 v9, v{vM+2*pr}")
    A(f"ds_write_b32 v9, v{vM+2*pr+1} offset:256")
a_sync()
for ct in range(8):
    if ct % 2 == 0:
        pair_off(ct // 2)
        A(f"v_add_u32 v9, s{sT0}, v10")
    for w in range(4):
        A(f"ds_read_b32 v{S0+2*w}, v9 offset:{w*2048 + (ct%2)*256}")
        A(f"ds_read_b32 v{S0+2*w+1}, v9 offset:{w*2048 + (ct%2)*256 + 128}")
    A("s_waitcnt lgkmcnt(0)")
    for w in range(4):
        A(f"v_max3_f32 v{vM+ct}, v{S0+2*w}, v{S0+2*w+1}, v{vM+ct}")
a_sync()
A(f"s_mov_b32 s{sLOOP}, 16")
A.label("L_sl2")
ld_k(0, 0); ld_v(0, 0, 0); ld_v(0, 1, 0); adv()
A("s_waitcnt vmcnt(0)")
for ct in range(8):
    A(f"v_mfma_f32_32x32x16_bf16 v[{S0}:{S0+15}], v[{KV[0]}:{KV[0]+3}], v[{QF+4*ct}:{QF+4*ct+3}], 0")
    A.nop(12)
    for i in range(16):
        A(f"v_sub_f32 v{S0+i}, v{S0+i}, v{vM+ct}")
    for i in range(16):
        A(f"v_exp_f32 v{S0+i}, v{S0+i}")
    A.nop(2)
    A(f"v_smfmac_f32_32x32x32_bf16 a[{16*ct}:{16*ct+15}], v[{KV[0]+4}:{KV[0]+7}], v[{S0}:{S0+7}], v{vIDX}")
    A(f"v_smfmac_f32_32x32x32_bf16 a[{16*ct}:{16*ct+15}], v[{KV[0]+8}:{KV[0]+11}], v[{S0+8}:{S0+15}], v{vIDX}")
A(f"""
s_sub_u32 s{sLOOP}, s{sLOOP}, 1
s_cmp_lg_u32 s{sLOOP}, 0
s_cbranch_scc1 L_sl2
s_nop 15
""")
for ct in range(6): part_write(ct)
A("s_waitcnt lgkmcnt(0)")
cnt_add(vCNT, vIDX, 4)
A(f"""
s_add_u32 s{sATG}, s{sATG}, 4
s_branch L_comb
""")

if OPT["xm"] or OPT["xv"] or OPT["xl"]:
    i0 = A.lines.index("L_S2:"); i1 = A.lines.index("L_hot_end:")
    seen = False
    for i in range(i0, i1):
        t = A.lines[i].strip()
        if t.startswith("ds_write_b128") : seen = True
        if not seen: continue
        if OPT["xm"] and t.startswith("v_mfma"): A.lines[i] = "    s_nop 7"
        if OPT["xv"] and (t.startswith(("v_pk_", "v_fma_f32", "v_cvt_pk", "v_mul_f32", "v_add_f32"))): A.lines[i] = "    s_nop 1"
        if OPT["xl"] and t.startswith(("ds_read_b128", "ds_write_b128")): A.lines[i] = "    s_nop 0"
hdr = open("cdna_kernels/" + NAME + ".s.ref").read().split("; Override launch")[0]
out = hdr + f"""; Fused single-launch kernel: 256 workgroups x 8 waves (4 attention waves + 4 SSM waves). Generated by gen/gen11.py.
; @launch grid=(256,1,1) block=(512,1,1) lds={LDS_BYTES}
.amdgcn_target "amdgcn-amd-amdhsa--gfx950"
.text
.globl {NAME}_kernel
.p2align 8
.type {NAME}_kernel,@function
{NAME}_kernel:
""" + A.text() + f""".section .rodata,"a"
.p2align 6
.amdhsa_kernel {NAME}_kernel
  .amdhsa_next_free_vgpr 256
  .amdhsa_next_free_sgpr 102
  .amdhsa_accum_offset 128
  .amdhsa_group_segment_fixed_size 0
  .amdhsa_kernarg_size 136
  .amdhsa_user_sgpr_count 2
  .amdhsa_user_sgpr_kernarg_segment_ptr 1
  .amdhsa_system_sgpr_workgroup_id_x 1
.end_amdhsa_kernel
"""
open(sys.argv[1], "w").write(out)
errs = check(A.lines) + check(A.lines[loop_end-60:loop_end] + A.lines[loop_start:loop_start+60])
for e in errs: print("HAZARD:", e)
print(f"{len(A.lines)} lines, {len(errs)} hazards")
```

```python
import sys, math, struct
from asmlib import *

OPT = dict(dbg=0, force_slow=0, stamps=0, noS=0, cyc=0, ost=2, gprio=0, vprio=3, hst=0, stgwin=8, pfq=0, pfb=2, stgl=2, qpre=2,
           pfc=1, ssl=2, la=8, sst=0, win0=0, trig=1, odel=0, sgate=2, map84=1, g1p=0, g2p=2, noKV=0, nochk=0, wq1=12, cpos=1, hdbg=0, p2n=16, oack=1, cim1=0, npre0=0, mid=0, sl1=2, sl2=2, sl0=0, tlb=0, pad=0, padat=0, p1at=3, e0c=24, ofirst=0, xm=0, xv=0, xl=0, npre=12, lbs=4)
for a in sys.argv[2:]:
    k, v = a.split("=")
    assert k in OPT, k
    OPT[k] = int(v)

NAME = "concat_heads__ssm_conv_s5__grouped_kv_mqa__prompt"
def f2u(x): return struct.unpack("<I", struct.pack("<f", x))[0]

XQ, WQ = 0, 66560
KVX, WKV = 3*16640, 66560 + 3*16384
SLOT = [0, 49920, 99840]
XA_O, BRE_O, BIM_O = 0, 16640, 33280
CIM, CRE = 0, 66560
CB = 66560; CB_T = 2304
TB = CB + 32*CB_T
WO = 66560
TB2 = 0
QX = 149760; EB = 157952; HP = 160000; CNT = 162048; QM = 162064; KM = 162068; CNT4 = 24
assert TB + 16384 <= EB
LDS_BYTES = 163840
FL1, FL3 = 0x1000, 0x9000
KVT = 0x80000; KVS = 4096
AGG = 0x30000; AGG_DUMMY = 32*8192; AGG_SIZE = AGG_DUMMY + 256*128
OB, HB = 0x100000, 0x400000
DBG = 0x1000000
WS_SIZE = 0x2000000
assert AGG + AGG_SIZE <= KVT
sWAVE, sC, sG, sTAG, sID = 3, 4, 5, 6, 7
R_XB, R_WQ, R_WKV, R_XA, R_BRE, R_BIM, R_CRE, R_CIM, R_WO, R_OUT, R_WS, R_AGG = 8, 12, 16, 20, 24, 28, 32, 36, 40, 44, 48, 52
P_LRE, P_LIM, P_LDT, P_DSK, P_WV = 56, 58, 60, 62, 64
sEP, sDONE = 66, 67
sT0, sT1, sT2, sT3, sT4, sT5 = 68, 69, 70, 71, 72, 73
sT6, sSPIN = 74, 75
sTW, sCW = 76, 77
sLOOP, sKOFF, sROT, sSW = 78, 79, 80, 81
sOB, sT7 = 82, 83
sATG = 65
sST = 84
def srd(r): return f"s[{r}:{r+3}]"

A = Asm()
OST = ["", " sc1", " nt", " sc0 sc1"][OPT["ost"]]
SPIN_MAX = 200000
HST = OPT["hst"]

SSEC = [False]
def sstamp(i, mode):
    if OPT["stamps"] and OPT["sst"] == mode:
        A(f"s_memrealtime s[{sST+2*i}:{sST+2*i+1}]")
def stamp(i, cond=True):
    if SSEC[0] and OPT["sst"] and i < 8: return
    if OPT["stamps"] and cond:
        A(f"s_memrealtime s[{sST+2*i}:{sST+2*i+1}]")

def padto():
    l = A.newlabel("pad")
    A(f"""
    {l}:
    s_memrealtime s[96:97]
    s_waitcnt lgkmcnt(0)
    s_sub_u32 s96, s96, s98
    s_cmp_lt_u32 s96, {OPT["pad"]*100}
    s_cbranch_scc1 {l}
    """)
def prio(p): A(f"s_setprio {p}")

def cnt_add(vaddr, vone, off=0):
    A(f"""
    s_mov_b64 exec, 1
    {"ds_inc_u32" if vone == vIDX else "ds_add_u32"} v{vaddr}, v{vone} offset:{off}
    s_mov_b64 exec, -1
    """)
def cnt_wait(vaddr, vtmp, target, off=0, sleep=0):
    lp = A.newlabel("sy"); dn = A.newlabel("syd")
    A(f"""
    s_mov_b32 s{sSPIN}, 0
    {lp}:
    ds_read_b32 v{vtmp}, v{vaddr} offset:{off}
    s_add_u32 s{sSPIN}, s{sSPIN}, 1
    s_waitcnt lgkmcnt(0)
    v_readfirstlane_b32 s{sT0}, v{vtmp}
    s_cmp_ge_u32 s{sT0}, {target}
    s_cbranch_scc1 {dn}
    {("s_sleep " + str(sleep)) if sleep else ""}
    s_cmp_lt_u32 s{sSPIN}, {SPIN_MAX}
    s_cbranch_scc1 {lp}
    {dn}:
    """)
NSYNC = [0]
def grp_sync():
    NSYNC[0] += 1
    A("s_waitcnt lgkmcnt(0)")
    cnt_add(vCNT, vONE)
    cnt_wait(vCNT, vTMP, CBASE + 4*NSYNC[0], sleep=OPT['ssl'])

def sync_add(wait_lds=True):
    NSYNC[0] += 1
    if wait_lds: A("s_waitcnt lgkmcnt(0)")
    cnt_add(vCNT, vONE)
def sync_wait(sleep=None):
    cnt_wait(vCNT, vTMP, CBASE + 4*NSYNC[0], sleep=OPT['ssl'] if sleep is None else max(sleep, OPT['sl0']))

def poll_flags(vaddr, vdst, width, sleep=2):
    lp = A.newlabel("pl"); dn = A.newlabel("pld")
    ld = "buffer_load_dword" if width == 1 else f"buffer_load_dwordx{width}"
    A(f"s_mov_b32 s{sSPIN}, 0")
    A.label(lp)
    A(f"""
    {ld} {vr(vdst, width)}, v{vaddr}, {srd(R_WS)}, 0 offen sc1
    s_add_u32 s{sSPIN}, s{sSPIN}, 1
    s_waitcnt vmcnt(0)
    v_cmp_ne_u32 vcc, s{sTAG}, v{vdst}
    s_cbranch_vccz {dn}
    {("s_sleep " + str(sleep)) if sleep else ""}
    s_cmp_lt_u32 s{sSPIN}, {SPIN_MAX}
    s_cbranch_scc1 {lp}
    {dn}:
    """)

def wave_max(v, tmp):
    A("s_nop 1")
    for sh in (1, 2, 4, 8):
        A(f"v_max_f32_dpp v{v}, v{v}, v{v} row_ror:{sh} row_mask:0xf bank_mask:0xf")
        A("s_nop 1")
    A(f"v_mov_b32 v{tmp}, v{v}")
    A("s_nop 1")
    A(f"v_permlane16_swap_b32 v{tmp}, v{v}")
    A(f"v_max_f32 v{v}, v{v}, v{tmp}")
    A(f"v_mov_b32 v{tmp}, v{v}")
    A("s_nop 1")
    A(f"v_permlane32_swap_b32 v{tmp}, v{v}")
    A(f"v_max_f32 v{v}, v{v}, v{tmp}")

def wq_voffset(dst, t0, t1, t2):
    A(f"""
    v_lshrrev_b32 v{t0}, 3, v{vLANE}
    v_and_b32 v{t1}, 7, v{vLANE}
    v_bfe_u32 v{t2}, v{vLANE}, 4, 1
    v_lshlrev_b32 v{t2}, 2, v{t2}
    v_xor_b32 v{t1}, v{t1}, v{t2}
    v_lshlrev_b32 v{t1}, 4, v{t1}
    v_lshl_add_u32 v{dst}, v{t0}, 10, v{t1}
    """)

vLANE, vL31, vH, vL16x = 1, 2, 3, 4
UR, UI, Y0, Y1 = 16, 32, 48, 64
FRS = 80
DG = 104
vL1, vL8, vL16, vL64, vL512, vCF = 112, 114, 116, 118, 120, 122
vCNT, vONE, vTMP, vP2, vDUM = 0, 124, 125, 126, 127
vXo, vBo, vDa, vSt = 5, 6, 7, 8
vAa, vBa = [9, 10, 11], [12, 13, 14]
vPF = 15
STG = 64
PRM = 100
S0, S1 = 16, 32
QF = 48
KV = [80, 92, 104, 116]
vIDX = 7
vM = 104
vZ = 120
vKt, vVt = [5, 8, 9, 10], [6, 12, 14, 15]

A(f"""
s_cmp_ge_u32 s2, 256
s_cbranch_scc1 L_end
""")
stamp(0)
if OPT["pad"]: A("s_memrealtime s[98:99]")
sizes = {R_XB: 65536, R_WKV: 16384, R_WQ: 523392, R_WS: WS_SIZE, R_XA: 65536, R_BRE: 65536, R_BIM: 65536, R_CRE: 65536, R_CIM: 65536,
         R_WO: 523392, R_OUT: 262144, R_AGG: AGG_SIZE}
def kload(lst):
    for r, off in lst:
        A(f"s_load_dwordx2 s[{r}:{r+1}], s[0:1], {off}")
def srd_words(rs):
    for r in rs:
        A(f"s_mov_b32 s{r+2}, {sizes[r]}")
        A(f"s_mov_b32 s{r+3}, 0x20000")
kload([(R_XB, 72), (R_WKV, 88), (P_WV, 96), (R_WQ, 80), (R_WS, 128)])
A(f"""
v_lshrrev_b32 v5, 6, v0
v_and_b32 v{vLANE}, 63, v0
v_readfirstlane_b32 s{sWAVE}, v5
v_lshlrev_b32 v{vL16x}, 4, v{vLANE}
v_bfe_u32 v{vH}, v0, 5, 1
v_and_b32 v{vL31}, 31, v0
v_mov_b32 v0, {CNT}
""")
srd_words([R_XB])
A(f"""
""")
if OPT["map84"]:
    A(f"""
    s_bfe_u32 s{sC}, s2, 0x20001
    s_lshl_b32 s{sC}, s{sC}, 3
    s_bfe_u32 s{sT0}, s2, 0x30003
    s_add_u32 s{sC}, s{sC}, s{sT0}
    s_and_b32 s{sG}, s2, 1
    s_lshl_b32 s{sG}, s{sG}, 2
    s_lshr_b32 s{sT0}, s2, 6
    s_add_u32 s{sG}, s{sG}, s{sT0}
    s_add_u32 s{sROT}, s{sC}, s{sG}
    s_and_b32 s{sROT}, s{sROT}, 3
    """)
else:
    A(f"""
    s_and_b32 s{sC}, s2, 7
    s_lshl_b32 s{sC}, s{sC}, 2
    s_bfe_u32 s{sROT}, s2, 0x20003
    s_add_u32 s{sC}, s{sC}, s{sROT}
    s_lshr_b32 s{sG}, s2, 5
    """)
A(f"""
s_lshl_b32 s{sT2}, s{sC}, 16
s_sub_u32 s{sSW}, s{sWAVE}, 4
s_cbranch_scc1 L_A0
s_load_dwordx4 s[{P_LRE}:{P_LRE+3}], s[0:1], 8
s_load_dwordx4 s[{P_LDT}:{P_LDT+3}], s[0:1], 56
s_setprio 3
v_mov_b32 v20, 0
v_mov_b32 v21, 0
s_lshl_b32 s{sT0}, s{sG}, 6
s_lshl_b32 s{sT1}, s{sSW}, 4
s_and_b32 s{sT1}, s{sT1}, 32
s_add_u32 s{sT0}, s{sT0}, s{sT1}
v_add_lshl_u32 v{vP2}, s{sT0}, v{vL31}, 1
ds_write2_b64 v0, v[20:21], v[20:21] offset0:0 offset1:1
ds_write2_b64 v0, v[20:21], v[20:21] offset0:2 offset1:3
s_mov_b32 s{R_WKV+2}, {sizes[R_WKV]}
s_mov_b32 s{R_WKV+3}, 0x20000
s_lshl_b32 s{sT1}, s{sSW}, 12
s_lshl_b32 s{sT5}, s{sG}, 13
s_and_b32 s{sT5}, s{sT5}, 0xc000
s_add_u32 s{sT5}, s{sT5}, s{sT1}
s_mul_i32 s{sT0}, s{sSW}, 4160
s_add_u32 m0, s{sT1}, {WKV}
s_bitcmp1_b32 s{sG}, 0
s_waitcnt lgkmcnt(0)
s_cselect_b32 s{R_WKV}, s{P_WV}, s{R_WKV}
s_cselect_b32 s{R_WKV+1}, s{P_WV+1}, s{R_WKV+1}
s_add_u32 s{R_XB}, s{R_XB}, s{sT2}
s_addc_u32 s{R_XB+1}, s{R_XB+1}, 0
""")
for i in range(4):
    A(f"buffer_load_dwordx4 v{vL16x}, {srd(R_WKV)}, s{sT1} offen offset:{i*1024} lds")
for i in range(4):
    A(f"s_add_u32 m0, s{sT0}, {KVX + 16*i}")
    A(f"s_load_dword s{sEP}, s[{R_WS}:{R_WS+1}], 0" if i == 0 else "s_nop 0")
    A(f"buffer_load_dwordx4 v{vL16x}, {srd(R_XB)}, s{sT5} offen offset:{i*1024} lds")
A(f"""
s_barrier
global_load_ushort v{PRM}, v{vP2}, s[{P_LRE}:{P_LRE+1}]
global_load_ushort v{PRM+1}, v{vP2}, s[{P_LIM}:{P_LIM+1}]
global_load_ushort v{PRM+2}, v{vP2}, s[{P_LDT}:{P_LDT+1}]
global_load_ushort v{PRM+3}, v{vP2}, s[{P_DSK}:{P_DSK+1}]
s_cmp_eq_u32 s{sSW}, 1
s_cbranch_scc1 L_qx
s_cmp_eq_u32 s{sSW}, 2
s_cbranch_scc1 L_qw
s_branch L_S1
L_A0:
""")
def common_scalars():
    kload([(R_OUT, 112)])
    srd_words([R_WS, R_OUT])
    A(f"""
    s_and_b32 s{sTW}, s{sWAVE}, 1
    s_bfe_u32 s{sCW}, s{sWAVE}, 0x10001
    s_lshl_b32 s{sID}, s{sC}, 3
    s_add_u32 s{sID}, s{sID}, s{sG}
    s_mov_b32 s{sDONE}, 0
    s_lshl_b32 s{sOB}, s{sC}, 1
    s_add_u32 s{sOB}, s{sOB}, s{sTW}
    s_lshl_b32 s{sOB}, s{sOB}, 15
    s_add_u32 s{sOB}, s{sOB}, {OB}
    """)
def common_after_wait(tag=True):
    A(f"""
    s_lshl_b32 s{sT0}, s{sC}, 18
    s_add_u32 s{R_OUT}, s{R_OUT}, s{sT0}
    s_addc_u32 s{R_OUT+1}, s{R_OUT+1}, 0
    """)
    if tag: A(f"""
    s_mul_i32 s{sTAG}, s{sEP}, 0x9E3779B1
    s_add_u32 s{sTAG}, s{sTAG}, 0x7F4A7C15
    """)
vWQo, vXQo = 119, 117
A(f"""
v_lshrrev_b32 v6, 4, v{vLANE}
v_and_b32 v7, 15, v{vLANE}
v_lshlrev_b32 v7, 4, v7
v_lshl_add_u32 v{vXQo}, v6, 14, v7
s_mul_i32 s{sT6}, s{sWAVE}, 4160
s_lshl_b32 s{sT7}, s{sWAVE}, 12
""")
srd_words([R_WQ])
wq_voffset(vWQo, 6, 7, 10)
A(f"""
s_lshl_b32 s{sT0}, s{sG}, 7
s_waitcnt lgkmcnt(0)
s_add_u32 s{R_XB}, s{R_XB}, s{sT2}
s_addc_u32 s{R_XB+1}, s{R_XB+1}, 0
s_add_u32 s{R_WQ}, s{R_WQ}, s{sT0}
s_addc_u32 s{R_WQ+1}, s{R_WQ+1}, 0
s_load_dword s{sEP}, s[{R_WS}:{R_WS+1}], 0
s_barrier
""")
stamp(1, HST)
def x_dma(s):
    A(f"""
    s_add_u32 s{sT3}, s{sROT}, {s}
    s_and_b32 s{sT3}, s{sT3}, 3
    s_lshl_b32 s{sT4}, s{sT3}, 8
    s_add_u32 s{sT4}, s{sT4}, s{sT7}
    """)
    for i in range(4):
        A(f"""
        s_add_u32 m0, s{sT6}, {XQ + s*16640 + i*16}
        s_nop 0
        buffer_load_dwordx4 v{vXQo}, {srd(R_XB)}, s{sT4} offen offset:{i*1024} lds
        """)
def wq_dma(s):
    A(f"""
    s_lshl_b32 s{sT3}, s{sT3}, 4
    s_add_u32 s{sT3}, s{sT3}, s{sWAVE}
    s_lshl_b32 s{sT3}, s{sT3}, 13
    s_lshl_b32 s{sT2}, s{sWAVE}, 10
    """)
    for i in range(4):
        A(f"""
        s_add_u32 m0, s{sT2}, {WQ + s*16384 + i*4096}
        s_add_u32 s{sT1}, s{sT3}, {i*32768}
        buffer_load_dwordx4 v{vWQo}, {srd(R_WQ)}, s{sT1} offen lds
        """)
for s in range(OPT["qpre"]):
    x_dma(s); wq_dma(s)
stamp(2 if HST else 1)
A("s_branch L_A1")
A.label("L_S1")
SSEC[0] = True
A(f"""
v_mov_b32 v{vONE}, 1
s_lshl_b32 s{sID}, s{sC}, 3
s_add_u32 s{sID}, s{sID}, s{sG}
s_mov_b32 s{R_WS+2}, {WS_SIZE}
s_mov_b32 s{R_WS+3}, 0x20000
v_lshrrev_b32 v20, 4, v{vLANE}
v_and_b32 v21, 15, v{vLANE}
v_mul_u32_u24 v9, 1040, v21
v_lshl_add_u32 v9, v20, 4, v9
v_add_u32 v9, {KVX}, v9
v_lshrrev_b32 v10, 2, v21
v_lshl_add_u32 v10, v20, 3, v10
v_lshlrev_b32 v10, 5, v10
v_and_b32 v11, 3, v21
v_lshl_add_u32 v10, v11, 3, v10
v_add_u32 v10, {WKV}, v10
s_lshl_b32 s{sT6}, s{sC}, 1
s_lshr_b32 s{sT1}, s{sG}, 2
s_add_u32 s{sT6}, s{sT6}, s{sT1}
s_lshl_b32 s{sT6}, s{sT6}, 12
s_add_u32 s{sT6}, s{sT6}, {KVT}
s_bfe_u32 s{sT7}, s{sG}, 0x10001
s_waitcnt lgkmcnt(0)
s_mul_i32 s{sTAG}, s{sEP}, 0x9E3779B1
s_add_u32 s{sTAG}, s{sTAG}, 0x7F4A7C15
s_waitcnt vmcnt(4)
""")
stamp(6, HST)
cnt_add(vCNT, vONE)
A(f"""
s_cmp_lg_u32 s{sSW}, 0
s_cbranch_scc1 L_S2a
""")
cnt_wait(vCNT, vTMP, 4)
stamp(1)
def kv_rd(k):
    f = 32 + 8*(k % 6)
    A(f"ds_read_b64_tr_b16 v[{f}:{f+1}], v10 offset:{k*1024}")
    A(f"ds_read_b64_tr_b16 v[{f+2}:{f+3}], v10 offset:{k*1024+128}")
    A(f"ds_read_b128 v[{f+4}:{f+7}], v9 offset:{k*64}")
for k in range(4): kv_rd(k)
A(f"s_bitcmp1_b32 s{sG}, 0")
A("s_cbranch_scc1 L_kv_v")
def kv_chain(isv_):
    for k in range(16):
        f = 32 + 8*(k % 6)
        if k + 4 < 16: kv_rd(k + 4)
        issued = min(16, k + 5)
        A(f"s_waitcnt lgkmcnt({3*(issued - k - 1)})")
        c = "0" if k == 0 else "v[28:31]"
        a, b = (f"v[{f}:{f+3}]", f"v[{f+4}:{f+7}]") if not isv_ else (f"v[{f+4}:{f+7}]", f"v[{f}:{f+3}]")
        A(f"v_mfma_f32_16x16x32_bf16 v[28:31], {a}, {b}, {c}")
kv_chain(False)
cnt_add(vCNT, vONE)
A(f"s_mov_b32 s{sT0}, {f2u(0.25 * math.log2(math.e))}")
A(f"""
s_lshl_b32 s{sT7}, s{sT7}, 8
s_add_u32 s{sT6}, s{sT6}, s{sT7}
v_and_b32 v22, 1, v20
v_lshlrev_b32 v22, 9, v22
v_lshl_add_u32 v22, v21, 4, v22
v_lshrrev_b32 v23, 1, v20
v_lshl_add_u32 v22, v23, 3, v22
v_mul_f32 v28, s{sT0}, v28
v_mul_f32 v29, s{sT0}, v29
v_mul_f32 v30, s{sT0}, v30
v_mul_f32 v31, s{sT0}, v31
v_cvt_pk_bf16_f32 v24, v28, v29
v_cvt_pk_bf16_f32 v25, v30, v31
buffer_store_dwordx2 v[24:25], v22, {srd(R_WS)}, s{sT6} offen sc1
v_mul_f32 v16, v28, v28
v_fmac_f32 v16, v29, v29
v_fmac_f32 v16, v30, v30
v_fmac_f32 v16, v31, v31
v_mov_b32 v17, v16
s_nop 1
v_permlane16_swap_b32 v17, v16
v_add_f32 v16, v16, v17
v_mov_b32 v17, v16
s_nop 1
v_permlane32_swap_b32 v17, v16
v_add_f32 v17, v16, v17
""")
wave_max(17, 18)
A("s_branch L_kv_pub")
A.label("L_kv_v")
kv_chain(True)
cnt_add(vCNT, vONE)
A(f"""
s_mul_i32 s{sT7}, s{sT7}, 544
s_add_u32 s{sT6}, s{sT6}, s{sT7}
s_add_u32 s{sT6}, s{sT6}, 1024
v_lshrrev_b32 v22, 1, v20
v_mul_u32_u24 v22, 272, v22
v_and_b32 v23, 1, v20
v_lshl_add_u32 v22, v23, 3, v22
v_lshl_add_u32 v23, v21, 4, v22
v_cvt_pk_bf16_f32 v24, v28, v29
v_cvt_pk_bf16_f32 v25, v30, v31
buffer_store_dwordx2 v[24:25], v23, {srd(R_WS)}, s{sT6} offen sc1
v_mov_b32 v26, 0x3f803f80
v_mov_b32 v27, 0x3f803f80
s_mov_b32 exec_lo, 0x00010001
s_mov_b32 exec_hi, 0x00010001
buffer_store_dwordx2 v[26:27], v22, {srd(R_WS)}, s{sT6} offen offset:256 sc1
s_mov_b64 exec, -1
v_mov_b32 v17, 0
""")
A.label("L_kv_pub")
A(f"""
s_lshl_b32 s{sT0}, s{sID}, 7
s_add_u32 s{sT0}, s{sT0}, {FL1}
v_mov_b32 v16, s{sTAG}
v_mov_b32 v9, 0
s_waitcnt vmcnt(0)
s_mov_b64 exec, 1
buffer_store_dwordx2 v[16:17], v9, {srd(R_WS)}, s{sT0} offen sc1
ds_add_u32 v{vCNT}, v{vONE}
s_mov_b64 exec, -1
""")
stamp(2)
A("s_branch L_S2")
def q_head():
    A(f"""
    v_mov_b32 v{vONE}, 1
    s_lshl_b32 s{sID}, s{sC}, 3
    s_add_u32 s{sID}, s{sID}, s{sG}
    s_waitcnt lgkmcnt(0)
    s_mul_i32 s{sTAG}, s{sEP}, 0x9E3779B1
    s_add_u32 s{sTAG}, s{sTAG}, 0x7F4A7C15
    s_waitcnt vmcnt(4)
    """)
    cnt_add(vCNT, vONE)
    prio(0)
def q_sig():
    A("s_waitcnt vmcnt(16)"); cnt_add(vCNT, vONE, 24)
    A("s_waitcnt vmcnt(0)"); cnt_add(vCNT, vONE, 28)
    prio(3)
    A("s_branch L_S2")
A.label("L_qx")
A(f"""
v_lshrrev_b32 v20, 4, v{vLANE}
v_and_b32 v21, 15, v{vLANE}
v_lshlrev_b32 v22, 4, v21
v_lshl_add_u32 v22, v20, 14, v22
""")
q_head()
for s_ in (2, 3):
    if s_ == 3: cnt_wait(vCNT, vTMP, 5)
    A(f"""
    s_add_u32 s{sT3}, s{sROT}, {s_}
    s_and_b32 s{sT3}, s{sT3}, 3
    s_lshl_b32 s{sT3}, s{sT3}, 8
    """)
    for i in range(16):
        A(f"s_mov_b32 m0, {XQ + s_*16640 + i*1040 - (i & 3)*1024}")
        A(f"s_add_u32 s{sT3}, s{sT3}, 4096" if (i & 3 == 0 and i) else "s_nop 0")
        A(f"buffer_load_dwordx4 v22, {srd(R_XB)}, s{sT3} offen offset:{(i & 3)*1024} lds")
q_sig()
A.label("L_qw")
srd_words([R_WQ])
wq_voffset(22, 23, 24, 25)
A(f"""
s_lshl_b32 s{sT0}, s{sG}, 7
s_add_u32 s{R_WQ}, s{R_WQ}, s{sT0}
s_addc_u32 s{R_WQ+1}, s{R_WQ+1}, 0
""")
q_head()
for s_ in (2, 3):
    if s_ == 3: cnt_wait(vCNT, vTMP, 5)
    A(f"""
    s_add_u32 s{sT3}, s{sROT}, {s_}
    s_and_b32 s{sT3}, s{sT3}, 3
    s_lshl_b32 s{sT3}, s{sT3}, 17
    """)
    for i in range(16):
        A(f"s_mov_b32 m0, {WQ + s_*16384 + i*1024}")
        A(f"s_add_u32 s{sT3}, s{sT3}, 8192" if i else "s_nop 0")
        A(f"buffer_load_dwordx4 v22, {srd(R_WQ)}, s{sT3} offen lds")
q_sig()
SSEC[0] = False
A.label("L_A1")
for i in range(4): A(f"v_mov_b32 v{vZ+i}, 0")
vXa, vWa, vFl, vQw, vQr, vAone = 8, 9, 10, 14, 15, vIDX
common_scalars()
for ct in range(8):
    A(f"v_mfma_f32_32x32x16_bf16 a[{16*ct}:{16*ct+15}], v[{vZ}:{vZ+3}], v[{vZ}:{vZ+3}], 0")
A(f"""
v_and_b32 v6, 15, v{vL31}
v_mul_u32_u24 v{vXa}, 1040, v6
v_lshl_add_u32 v{vXa}, v{vH}, 4, v{vXa}
v_lshrrev_b32 v6, 4, v{vL31}
v_lshl_add_u32 v{vXa}, v6, 8, v{vXa}
s_lshl_b32 s{sT0}, s{sTW}, 9
v_add_u32 v{vXa}, s{sT0}, v{vXa}
v_bfe_u32 v6, v{vLANE}, 2, 2
v_lshl_add_u32 v6, v{vH}, 3, v6
v_bfe_u32 v7, v{vLANE}, 4, 1
v_and_b32 v11, 3, v{vLANE}
v_lshlrev_b32 v11, 3, v11
v_lshl_add_u32 v11, v7, 5, v11
s_lshl_b32 s{sT0}, s{sCW}, 6
v_add_u32 v11, s{sT0}, v11
v_bfe_u32 v7, v{vLANE}, 3, 1
v_lshlrev_b32 v7, 6, v7
v_xor_b32 v11, v11, v7
v_lshl_add_u32 v{vWa}, v6, 7, v11
v_add_u32 v{vWa}, {WQ}, v{vWa}
s_lshl_b32 s{sT0}, s{sWAVE}, 13
s_add_u32 s{sT0}, s{sT0}, {FL1}
v_lshlrev_b32 v{vFl}, 7, v{vLANE}
v_add_u32 v{vFl}, s{sT0}, v{vFl}
s_lshl_b32 s{sT0}, s{sWAVE}, 16
s_add_u32 s{sT1}, s{sT0}, {KVT}
v_add_u32 v{vKt[0]}, s{sT1}, v{vL16x}
s_add_u32 s{sT1}, s{sT1}, 1024
v_lshlrev_b32 v13, 4, v{vL31}
v_mul_u32_u24 v14, 272, v{vH}
v_add3_u32 v13, v13, v14, s{sT1}
v_cmp_lt_u32 vcc, 16, v{vL31}
v_mov_b32 v14, 0x7ff00000
v_mov_b32 v{vIDX}, 0xdddddddd
v_cndmask_b32 v{vVt[0]}, v13, v14, vcc
s_lshl_b32 s{sKOFF}, s{sROT}, 14
s_lshl_b32 s{sT0}, s{sCW}, 2
s_add_u32 s{sT0}, s{sT0}, s{sTW}
s_lshl_b32 s{sT0}, s{sT0}, 10
s_add_u32 s{sT0}, s{sT0}, {QX}
v_add_u32 v{vQw}, s{sT0}, v{vL16x}
v_add_u32 v{vQr}, {QX}, v{vL16x}
s_waitcnt lgkmcnt(0)
""")
common_after_wait()
QP = OPT["qpre"]
sKVOK = sATG
vFG = 12
def ld_k(b, t, so=sKOFF):
    A(f"buffer_load_dwordx4 v[{KV[b]}:{KV[b]+3}], v{vKt[t]}, {srd(R_WS)}, s{so} offen sc1")
def ld_v(b, j, t, so=sKOFF):
    A(f"buffer_load_dwordx4 v[{KV[b]+4+4*j}:{KV[b]+7+4*j}], v{vVt[t]}, {srd(R_WS)}, s{so} offen offset:{544*j} sc1")
def kv_first():
    for b in range(4):
        A(f"s_add_u32 s{sT1}, s{sKOFF}, {b*KVS}")
        ld_k(b, 0, sT1); ld_v(b, 0, 0, sT1); ld_v(b, 1, 0, sT1)
    A(f"ds_max_f32 v{vCNT}, v{vFG+1} offset:{KM - CNT}")
    if OPT["sgate"] == 2: cnt_add(vCNT, vAone, 12)
def kv_try(tag):
    A(f"""
    v_cmp_ne_u32 vcc, s{sTAG}, v{vFG}
    s_cbranch_vccnz L_kvlate{tag}
    s_mov_b32 s{sKVOK}, 1
    """)
    kv_first()
    A(f"s_branch L_kvq{tag}")
    A.label(f"L_kvlate{tag}")
    flag_ld()
    A.label(f"L_kvq{tag}")
def flag_ld(): A(f"buffer_load_dwordx2 v[{vFG}:{vFG+1}], v{vFl}, {srd(R_WS)}, 0 offen sc1")
def qproj_quarter(s):
    if s < 2:
        A(f"s_waitcnt vmcnt({8*(1 - s)})")
        stamp(3 + s, HST)
        cnt_add(vCNT, vAone, 4)
    elif s == 3 and OPT["p1at"] == 2: A("s_waitcnt vmcnt(0)")
    if s == OPT["p1at"]: flag_ld()
    if s == 3:
        A(f"s_mov_b32 s{sKVOK}, 0")
        if OPT["p1at"] == 2: kv_try("a")
    if s < 2: cnt_wait(vCNT, 11, 4*(s + 1), 4)
    else:
        cnt_wait(vCNT, 11, 2, 24 + 4*(s - 2))
        stamp(3 + s, HST)
    def rd(k):
        f = 32 + 8*(k % 6)
        A(f"ds_read_b64_tr_b16 v[{f}:{f+1}], v{vWa} offset:{s*16384 + k*2048}")
        A(f"ds_read_b64_tr_b16 v[{f+2}:{f+3}], v{vWa} offset:{s*16384 + k*2048 + 512}")
        A(f"ds_read_b128 v[{f+4}:{f+7}], v{vXa} offset:{XQ + s*16640 + k*32}")
    for k in range(4): rd(k)
    for k in range(8):
        f = 32 + 8*(k % 6)
        if k + 4 < 8: rd(k + 4)
        issued = min(8, k + 5)
        A(f"s_waitcnt lgkmcnt({3*(issued - k - 1)})")
        c = "0" if (s == 0 and k == 0) else f"v[{S0}:{S0+15}]"
        A(f"v_mfma_f32_32x32x16_bf16 v[{S0}:{S0+15}], v[{f}:{f+3}], v[{f+4}:{f+7}], {c}")
for s in range(4):
    qproj_quarter(s)
A(f"""
s_cmp_lg_u32 s{sKVOK}, 0
s_cbranch_scc1 L_kvqb
s_waitcnt vmcnt(0)
""")
kv_try("b")
A(f"""
s_mul_i32 s{sT6}, s{sWAVE}, {6*CB_T}
s_add_u32 s{sT6}, s{sT6}, {CB}
v_add_u32 v11, s{sT6}, v{vL16x}
s_mov_b32 s{sLOOP}, 4
""")
A.nop(8)
for i in range(8):
    A(f"v_cvt_pk_bf16_f32 v{32+i}, v{S0+2*i}, v{S0+2*i+1}")
    if i == 3: A(f"ds_write_b128 v{vQw}, v[32:35]")
A(f"""
ds_write_b128 v{vQw}, v[36:39] offset:2048
s_waitcnt lgkmcnt(0)
""")
cnt_add(vCNT, vAone, 4)
for hd in range(2):
    A(f"v_mul_f32 v{32+hd}, v{S0+8*hd}, v{S0+8*hd}")
    for i in range(1, 8):
        A(f"v_fmac_f32 v{32+hd}, v{S0+8*hd+i}, v{S0+8*hd+i}")
A(f"""
v_mov_b32 v34, v32
v_mov_b32 v35, v33
v_add_u32 v{vKt[1]}, {KVS}, v{vKt[0]}
v_add_u32 v{vKt[2]}, {2*KVS}, v{vKt[0]}
v_permlane32_swap_b32 v34, v32
v_permlane32_swap_b32 v35, v33
v_add_f32 v32, v32, v34
v_add_f32 v33, v33, v35
v_max_f32 v32, v32, v33
v_add_u32 v{vVt[2]}, {2*KVS}, v{vVt[0]}
ds_max_f32 v{vCNT}, v32 offset:{QM - CNT}
""")
cnt_wait(vCNT, 36, 12, 4)
stamp(7 if HST else 2)
for pr in range(4):
    A(f"s_add_u32 s{sT0}, s{sWAVE}, {pr + 1}")
    A(f"s_and_b32 s{sT0}, s{sT0}, 3")
    A(f"s_lshl_b32 s{sT0}, s{sT0}, 11")
    A(f"v_add_u32 v{37}, s{sT0}, v{vQr}")
    A(f"ds_read_b128 v[{QF+8*pr}:{QF+8*pr+3}], v37")
    A(f"ds_read_b128 v[{QF+8*pr+4}:{QF+8*pr+7}], v37 offset:1024")
A(f"""
s_cmp_lg_u32 s{sKVOK}, 0
s_cbranch_scc1 L_kvgo
s_waitcnt vmcnt(0)
v_cmp_ne_u32 vcc, s{sTAG}, v{vFG}
s_cbranch_vccz L_kvok
""")
poll_flags(vFl, vFG, 2, sleep=0)
A.label("L_kvok")
kv_first()
A.label("L_kvgo")
if OPT["pad"] and OPT["padat"] == 1: padto()
stamp(3, not HST)
A(f"""
v_add_u32 v{vKt[3]}, {3*KVS}, v{vKt[0]}
v_add_u32 v{vVt[3]}, {3*KVS}, v{vVt[0]}
s_waitcnt vmcnt(9) lgkmcnt(0)
v_mfma_f32_32x32x16_bf16 v[{S0}:{S0+15}], v[{KV[0]}:{KV[0]+3}], v[{QF}:{QF+3}], 0
v_add_u32 v{vVt[1]}, {KVS}, v{vVt[0]}
v_lshlrev_b32 v13, 2, v{vLANE}
v_add_u32 v13, s{sT6}, v13
""")
A.nop(9)
SB = [S0, S1]
LASTSYNC = 8
CBASE = 6
def part_write(ct):
    A(f"ds_write_b128 v11, a[{16*ct}:{16*ct+3}] offset:{ct*CB_T}")
    A(f"ds_write_b128 v11, a[{16*ct+4}:{16*ct+7}] offset:{ct*CB_T + 1024}")
    A(f"ds_write_b32 v13, a{16*ct+8} offset:{ct*CB_T + 2048}")
def period(kb, ct, mode):
    cur = SB[ct & 1]; oth = SB[(ct + 1) & 1]
    pct = (ct - 1) % 8
    pkb = kb if ct > 0 else (kb - 1) % 4
    nct = (ct + 1) % 8
    nkb = kb if ct < 7 else (kb + 1) % 4
    ld = ct == 0 and mode == "loop" and not OPT["noKV"]
    early = mode == "last" and 1 <= ct <= 6
    e = lambda i: A(f"v_exp_f32 v{cur+i}, v{cur+i}")
    e(0); e(1)
    if mode != "first":
        A(f"v_smfmac_f32_32x32x32_bf16 a[{16*pct}:{16*pct+15}], v[{KV[pkb]+8}:{KV[pkb]+11}], v[{oth+8}:{oth+15}], v{vIDX}")
    e(2)
    if (mode, ct) == ("last", 0): A(f"ds_read_b32 v12, v{vCNT} offset:8")
    if (mode, ct) == ("last", 7):
        A("s_waitcnt lgkmcnt(0)")
        cnt_add(vCNT, vIDX, 4)
    e(3)
    if ct == 7 and mode == "loop": A(f"s_waitcnt vmcnt(6)")
    e(4)
    if (mode, ct) != ("last", 7):
        A(f"v_mfma_f32_32x32x16_bf16 v[{oth}:{oth+15}], v[{KV[nkb]}:{KV[nkb]+3}], v[{QF+4*nct}:{QF+4*nct+3}], 0")
    for i in range(5, 10): e(i)
    A(f"v_smfmac_f32_32x32x32_bf16 a[{16*ct}:{16*ct+15}], v[{KV[kb]+4}:{KV[kb]+7}], v[{cur}:{cur+7}], v{vIDX}")
    e(10); e(11)
    e(12)
    if ld: ld_k(pkb, pkb)
    if early: A(f"ds_write_b128 v11, a[{16*(ct-1)}:{16*(ct-1)+3}] offset:{(ct-1)*CB_T}")
    e(13)
    if ld: ld_v(pkb, 0, pkb)
    if (kb, ct, mode) == (0, 1, "loop"): A(f"s_add_u32 s{sKOFF}, s{sKOFF}, {4*KVS}")
    if (kb, ct, mode) == (2, 7, "loop"): A(f"s_sub_u32 s{sLOOP}, s{sLOOP}, 1")
    if early: A(f"ds_write_b128 v11, a[{16*(ct-1)+4}:{16*(ct-1)+7}] offset:{(ct-1)*CB_T + 1024}")
    e(14)
    if ld: ld_v(pkb, 1, pkb)
    if (kb, ct, mode) == (0, 1, "loop"): A(f"s_and_b32 s{sKOFF}, s{sKOFF}, 0xffff")
    if (kb, ct, mode) == (2, 7, "loop"): A(f"s_cmp_eq_u32 s{sLOOP}, 0")
    if early: A(f"ds_write_b32 v13, a{16*(ct-1)+8} offset:{(ct-1)*CB_T + 2048}")
    e(15)
    if mode == "last" and ct == 8 - OPT["trig"] - 1: cnt_add(vCNT, vIDX, 12)
    if (mode, ct) == ("last", 0):
        A(f"""
        s_waitcnt lgkmcnt(0)
        v_readfirstlane_b32 s{sT0}, v12
        s_cmp_ge_u32 s{sT0}, {4 if not (OPT["noS"] or OPT["nochk"]) else 0}
        s_cbranch_scc1 L_sfree
        """)
        cnt_wait(vCNT, 12, 4, 8, sleep=2)
        A.label("L_sfree")
if OPT["cyc"]: A(f"s_memtime s[{sST+10}:{sST+11}]")
period(0, 0, "first")
A("s_branch L_attn1")
A(".p2align 6")
A.label("L_attn")
loop_start = len(A.lines)
for kb in range(4):
    for ct in range(8):
        if (kb, ct) == (0, 1): A.label("L_attn1")
        period(kb, ct, "loop")
    if kb == 2: A("s_cbranch_scc1 L_last")
loop_end = len(A.lines)
A("s_branch L_attn")
A.label("L_last")
for ct in range(8):
    period(3, ct, "last")
A(f"""
s_nop 1
v_smfmac_f32_32x32x32_bf16 a[112:127], v[{KV[3]+8}:{KV[3]+11}], v[{S1+8}:{S1+15}], v{vIDX}
""")
stamp(4, not HST)
if OPT["cyc"]: A(f"s_memtime s[{sST+12}:{sST+13}]")
if OPT["pad"] and OPT["padat"] == 2: padto()
A(f"s_mov_b32 s{sATG}, 16")
A.label("L_comb")
for k in range(3):
    A(f"""
    s_add_u32 s{sT0}, s{sWAVE}, {k + 1}
    s_and_b32 s{sT0}, s{sT0}, 3
    s_mul_i32 s{sT0}, s{sT0}, {6*CB_T}
    s_add_u32 s{sT0}, s{sT0}, {CB + 2*(2 - k)*CB_T}
    v_add_u32 v{8+k}, s{sT0}, v{vL16x}
    v_lshl_add_u32 v{[12, 14, 15][k]}, v{vL31}, 2, s{sT0}
    """)
A(f"""
s_lshl_b32 s{sT1}, s{sG}, 2
s_add_u32 s{sT1}, s{sT1}, s{sWAVE}
s_lshl_b32 s{sT1}, s{sT1}, 10
s_lshl_b32 s{sT2}, s{sC}, 16
s_add_u32 s{sT1}, s{sT1}, s{sT2}
s_add_u32 s{sT1}, s{sT1}, {OB}
s_add_u32 s{sT2}, s{sT1}, 32768
s_waitcnt vmcnt(0)
""")
cnt_wait(vCNT, 16, f"s{sATG}", 4)
def astamp(i):
    if OPT["cyc"] or HST or not OPT["stamps"]: return
    stamp(i)
astamp(5)
PD = [[16, 24, 32, 40], [80, 88, 96, 104]]
PL = [[112, 113, 114, 115], [116, 117, 118, 119]]
A(f"ds_read_b64 v[120:121], v0 offset:{QM - CNT}")
for u in range(2):
    for k in range(3):
        A(f"ds_read_b32 v{PL[u][k+1]}, v{[12, 14, 15][k]} offset:{u*CB_T + 2048}")
    for k in range(3):
        A(f"ds_read_b128 v[{PD[u][k+1]}:{PD[u][k+1]+3}], v{8+k} offset:{u*CB_T}")
        A(f"ds_read_b128 v[{PD[u][k+1]+4}:{PD[u][k+1]+7}], v{8+k} offset:{u*CB_T + 1024}")
    if u == 0: A("s_waitcnt lgkmcnt(6)")
for u in range(2):
    A(f"v_accvgpr_read_b32 v{PL[u][0]}, a{16*(6+u)+8}")
    A(f"v_accvgpr_read_b32 v{122+u}, a{16*(6+u)+8}")
A(f"""
v_mul_f32 v120, v120, v121
v_add_f32 v113, v113, v114
v_permlane32_swap_b32 v112, v122
v_permlane32_swap_b32 v116, v123
v_cmp_nge_f32 vcc, {f2u(-1.0 if OPT['force_slow'] else 1000.0)}, v120
v_add_f32 v112, v112, v115
v_add_f32 v112, v112, v113
v_rcp_f32 v112, v112
s_cbranch_vccnz L_slow
L_fast:
""")
def comb(u, soff):
    d = PD[u]
    for i in range(8): A(f"v_accvgpr_read_b32 v{d[0]+i}, a{16*(6+u)+i}")
    if u == 0: A("s_waitcnt lgkmcnt(9)")
    else:
        A(f"""
        s_waitcnt lgkmcnt(2)
        v_add_f32 v117, v117, v118
        v_add_f32 v116, v116, v119
        v_add_f32 v116, v116, v117
        v_rcp_f32 v116, v116
        """)
    for i in range(0, 8, 2): A(f"v_pk_add_f32 {p2(d[1]+i)}, {p2(d[1]+i)}, {p2(d[2]+i)}")
    if u == 1: A("s_waitcnt lgkmcnt(0)")
    for i in range(0, 8, 2): A(f"v_pk_add_f32 {p2(d[0]+i)}, {p2(d[0]+i)}, {p2(d[3]+i)}")
    for i in range(0, 8, 2): A(f"v_pk_add_f32 {p2(d[0]+i)}, {p2(d[0]+i)}, {p2(d[1]+i)}")
    for i in range(0, 8, 2):
        A(f"v_pk_mul_f32 {p2(d[0]+i)}, {p2(d[0]+i)}, {p2(PL[u][0])} op_sel_hi:[1,0]")
    for i in range(0, 8, 2):
        A(f"v_cvt_pk_bf16_f32 v{d[1]+i//2}, v{d[0]+i}, v{d[0]+i+1}")
    A(f"buffer_store_dwordx4 v[{d[1]}:{d[1]+3}], v{vL16x}, {srd(R_WS)}, s{soff} offen sc1")
def p2(r): return f"v[{r}:{r+1}]"
comb(0, sT1); comb(1, sT2)
astamp(6)
if OPT["oack"]: A("s_waitcnt vmcnt(0)")
cnt_add(vCNT, vIDX, 12)
A(f"""
s_or_b32 s{sT0}, s2, s{sWAVE}
s_cmp_lg_u32 s{sT0}, 0
s_cbranch_scc1 L_noep
s_add_u32 s{sT0}, s{sEP}, 1
v_mov_b32 v10, s{sT0}
v_mov_b32 v11, 0
s_mov_b64 exec, 1
buffer_store_dword v10, v11, {srd(R_WS)}, 0 offen
s_mov_b64 exec, -1
L_noep:
""")
A.label("L_fin")
if OPT["pad"] and OPT["padat"] == 0:
    A("s_waitcnt vmcnt(0)"); padto()
if OPT["stamps"]:
    A(f"""
    s_waitcnt vmcnt(0)
    s_memrealtime s[100:101]
    s_waitcnt lgkmcnt(0)
    s_lshl_b32 s{sT0}, s2, 3
    s_add_u32 s{sT0}, s{sT0}, s{sWAVE}
    s_lshl_b32 s{sT0}, s{sT0}, 6
    s_add_u32 s{sT0}, s{sT0}, {DBG + 0x800000}
    v_mov_b32 v11, 0
    """)
    for i in range(9): A(f"v_mov_b32 v{16+i}, s{sST+2*i}")
    A(f"""
    s_mov_b64 exec, 1
    buffer_store_dwordx4 v[16:19], v11, {srd(R_WS)}, s{sT0} offen
    buffer_store_dwordx4 v[20:23], v11, {srd(R_WS)}, s{sT0} offen offset:16
    buffer_store_dword v24, v11, {srd(R_WS)}, s{sT0} offen offset:32
    """)
if OPT["hdbg"]:
    A(f"""
    s_load_dwordx2 s[{sT2}:{sT3}], s[0:1], 120
    s_not_b32 s{sT0}, s{sST}
    v_mov_b32 v30, s{sT0}
    v_mov_b32 v31, 0
    s_waitcnt lgkmcnt(0)
    global_atomic_umax v31, v30, s[{sT2}:{sT3}]
    s_cmp_ge_u32 s{sWAVE}, 4
    s_cbranch_scc1 L_hdS
    """)
    for k, i in enumerate((0, 2, 3, 4, 5, 6, 8)):
        A(f"global_atomic_umax v31, v{16+i}, s[{sT2}:{sT3}] offset:{4*(1+k)}")
    A("s_branch L_end")
    A.label("L_hdS")
    for k, i in enumerate((1, 2, 3, 4, 5, 6, 7, 8)):
        if i in (1, 2):
            A(f"s_cmp_lg_u32 s{sWAVE}, 4")
            A(f"s_cbranch_scc1 L_hd{i}")
        A(f"global_atomic_umax v31, v{16+i}, s[{sT2}:{sT3}] offset:{4*(8+k)}")
        if i in (1, 2): A.label(f"L_hd{i}")
A.label("L_end")
A("s_endpgm")

A.label("L_S2a")
A("s_waitcnt vmcnt(0)")
A.label("L_S2")
SSEC[0] = True
kload([(R_XA, 0), (R_BRE, 24), (R_BIM, 32), (R_CRE, 40), (R_CIM, 48), (R_WO, 104), (R_AGG, 128)])
if OPT["pfc"]:
    A(f"""
    s_cmp_lg_u32 s{sWAVE}, 7
    s_cbranch_scc1 L_nopfcode
    s_getpc_b64 s[{sT0}:{sT1}]
    L_pc:
    s_sub_u32 s{sT0}, s{sT0}, L_pc-{NAME}_kernel
    s_subb_u32 s{sT1}, s{sT1}, 0
    s_lshl_b32 s{sLOOP}, s{sROT}, 13
    v_lshlrev_b32 v16, 7, v{vLANE}
    v_add_u32 v16, s{sLOOP}, v16
    v_min_u32 v16, L_hot_end-{NAME}_kernel-4, v16
    global_load_dword v{vDUM}, v16, s[{sT0}:{sT1}]
    L_nopfcode:
    """)
common_scalars()
srd_words([R_XA, R_BRE, R_BIM, R_CRE, R_CIM, R_WO, R_AGG])
A(f"""
s_lshl_b32 s{sT3}, s{sG}, 7
s_lshl_b32 s{sT4}, s{sG}, 16
s_waitcnt lgkmcnt(0)
s_mov_b64 s[{P_LRE}:{P_LRE+1}], s[{R_BRE}:{R_BRE+1}]
s_mov_b64 s[{P_LIM}:{P_LIM+1}], s[{R_BIM}:{R_BIM+1}]
s_mov_b64 s[{P_LDT}:{P_LDT+1}], s[{R_CRE}:{R_CRE+1}]
s_mov_b64 s[{P_DSK}:{P_DSK+1}], s[{R_CIM}:{R_CIM+1}]
s_mov_b64 s[{P_WV}:{P_WV+1}], s[{R_WO}:{R_WO+1}]
""")
for r, t in ((R_XA, sT2), (R_BRE, sT4), (R_BIM, sT4), (R_CRE, sT4), (R_CIM, sT4), (R_WO, sT3)):
    A(f"s_add_u32 s{r}, s{r}, s{t}")
    A(f"s_addc_u32 s{r+1}, s{r+1}, 0")
A(f"""
s_add_u32 s{R_AGG}, s{R_AGG}, {AGG}
s_addc_u32 s{R_AGG+1}, s{R_AGG+1}, 0
""")
common_after_wait(False)
if OPT["tlb"]:
    A(f"""
    s_cmp_lg_u32 s{sSW}, 2
    s_cbranch_scc1 L_notlb
    v_mov_b32 v16, 0
    s_lshl_b32 s{sT0}, s{sC}, 17
    s_add_u32 s{sT0}, s{sT0}, {HB}
    s_mov_b32 s{sT1}, {KVT}
    s_mov_b64 exec, 1
    """)
    for R in (R_XA, R_BRE, R_BIM, R_WO, R_CRE, R_CIM, R_OUT):
        A(f"buffer_load_dword v{vDUM}, v16, {srd(R)}, 0 offen")
    A(f"""
    buffer_load_dword v{vDUM}, v16, {srd(R_WS)}, s{sOB} offen sc1
    buffer_load_dword v{vDUM}, v16, {srd(R_WS)}, s{sT0} offen offset:2048 sc1
    s_mov_b64 exec, -1
    L_notlb:
    """)
A(f"""
s_add_u32 s{sROT}, s{sC}, s{sG}
s_and_b32 s{sROT}, s{sROT}, 3
v_lshrrev_b32 v20, 4, v{vLANE}
v_and_b32 v21, 15, v{vLANE}
v_lshlrev_b32 v22, 4, v21
v_lshl_add_u32 v{vBo}, v20, 14, v22
v_lshrrev_b32 v23, 1, v20
v_and_b32 v24, 1, v20
v_lshlrev_b32 v23, 15, v23
v_lshl_add_u32 v23, v24, 12, v23
v_add_u32 v{vXo}, v23, v22
v_lshlrev_b32 v{vPF}, 7, v21
s_lshl_b32 s{sT0}, s2, 11
v_add_u32 v{vPF}, s{sT0}, v{vPF}
""")
def g1_soff(s):
    A(f"""
    s_add_u32 s{sT5}, s{sROT}, {s}
    s_and_b32 s{sT5}, s{sT5}, 3
    s_lshl_b32 s{sT5}, s{sT5}, 8
    s_lshl_b32 s{sT3}, s{sSW}, 12
    s_add_u32 s{sT3}, s{sT3}, s{sT5}
    s_lshl_b32 s{sT4}, s{sTW}, 14
    s_add_u32 s{sT4}, s{sT4}, s{sT5}
    s_lshl_b32 s{sT5}, s{sCW}, 11
    s_add_u32 s{sT4}, s{sT4}, s{sT5}
    s_add_u32 s{sT5}, s{sT4}, 8192
    """)
def stg_reg(n):
    assert n < 32
    return f"a[{4*n}:{4*n+3}]"
def stg_load(n):
    s_, r = divmod(n, 12); i, m = divmod(r, 3)
    if r == 0: g1_soff(s_)
    if m == 0: A(f"buffer_load_dwordx4 {stg_reg(n)}, v{vXo}, {srd(R_XA)}, s{sT5 if i & 1 else sT4} offen offset:{(i>>1)*1024}")
    else: A(f"buffer_load_dwordx4 {stg_reg(n)}, v{vBo}, {srd([0, R_BRE, R_BIM][m])}, s{sT3} offen offset:{i*1024}")
if OPT["npre0"]:
    cnt_wait(vCNT, vTMP, 6, 0, sleep=1)
    cnt_wait(vCNT, vTMP, 2, OPT["e0c"], sleep=1)
    for n in range(OPT["npre0"]): stg_load(n)
LOG2E = math.log2(math.e)
a0, a1, a2, a3, a4, a5 = PRM, PRM+1, PRM+2, 96, 97, 98
vLR, vLI = vL1, vL1 + 1
A(f"""
s_mov_b32 s{sT0}, {f2u(LOG2E)}
v_lshlrev_b32 v{a0}, 16, v{a0}
v_lshlrev_b32 v{a1}, 16, v{a1}
v_lshlrev_b32 v{a2}, 16, v{a2}
v_mul_f32 v{a2}, s{sT0}, v{a2}
v_exp_f32 v{a2}, v{a2}
s_nop 0
v_cvt_pk_bf16_f32 v{a2}, v{a2}, v{a2}
v_and_b32 v{a2}, 0xffff0000, v{a2}
v_mul_f32 v{a3}, v{a2}, v{a0}
v_mul_f32 v{a4}, v{a2}, v{a1}
v_mul_f32 v{a3}, s{sT0}, v{a3}
v_exp_f32 v{a3}, v{a3}
v_mul_f32 v{a4}, 0.15915494, v{a4}
v_fract_f32 v{a4}, v{a4}
v_cos_f32 v{vLR}, v{a4}
v_sin_f32 v{vLI}, v{a4}
s_nop 0
v_mul_f32 v{vLR}, v{a3}, v{vLR}
v_mul_f32 v{vLI}, v{a3}, v{vLI}
v_mul_f32 v{a2}, v{a0}, v{a0}
v_fmac_f32 v{a2}, v{a1}, v{a1}
v_rcp_f32 v{a2}, v{a2}
v_add_f32 v{a3}, -1.0, v{vLR}
v_mul_f32 v{a4}, v{a3}, v{a0}
v_fmac_f32 v{a4}, v{vLI}, v{a1}
v_mul_f32 v{a5}, v{vLI}, v{a0}
v_fma_f32 v{a5}, -v{a3}, v{a1}, v{a5}
v_add_f32 v{a2}, v{a2}, v{a2}
v_mul_f32 v{vCF}, v{a4}, v{a2}
v_mul_f32 v{vCF+1}, v{a5}, v{a2}
""")
def csq(d, s_):
    A(f"v_mul_f32 v{a0}, v{s_+1}, v{s_+1}")
    A(f"v_mul_f32 v{a1}, v{s_}, v{s_+1}")
    A(f"v_fma_f32 v{d}, v{s_}, v{s_}, -v{a0}")
    A(f"v_add_f32 v{d+1}, v{a1}, v{a1}")
csq(vL8, vL1); csq(vL8, vL8); csq(vL8, vL8)
csq(vL16, vL8)
csq(vL64, vL16); csq(vL64, vL64)
csq(vL512, vL64); csq(vL512, vL512); csq(vL512, vL512)
vD = PRM + 3
A(f"""
v_and_b32 v20, 1, v{vL31}
v_lshlrev_b32 v20, 4, v20
v_lshlrev_b32 v{vD}, v20, v{vD}
v_bfe_u32 v20, v{vL31}, 3, 1
v_cmp_eq_u32 vcc, v20, v{vH}
v_bfe_u32 v21, v{vL31}, 1, 2
v_lshrrev_b32 v22, 4, v{vL31}
v_cndmask_b32 v{vD}, 0, v{vD}, vcc
v_lshl_add_u32 v21, v22, 2, v21
""")
for i in range(8):
    A(f"v_cmp_eq_u32 vcc, {i}, v21")
    A("s_nop 1")
    A(f"v_cndmask_b32 v{DG+i}, 0, v{vD}, vcc")
A(f"""
v_and_b32 v20, 15, v{vL31}
v_mul_u32_u24 v20, 1040, v20
v_lshl_add_u32 v20, v{vH}, 4, v20
v_lshrrev_b32 v21, 4, v{vL31}
v_lshl_add_u32 v20, v21, 8, v20
s_lshl_b32 s{sT0}, s{sTW}, 9
v_add_u32 v{vAa[0]}, s{sT0}, v20
v_add_u32 v{vAa[1]}, {SLOT[1]}, v{vAa[0]}
s_lshl_b32 s{sT0}, s{sCW}, 9
s_add_u32 s{sT0}, s{sT0}, {BRE_O}
v_add_u32 v{vBa[0]}, s{sT0}, v20
v_add_u32 v{vBa[1]}, {SLOT[1]}, v{vBa[0]}
v_bfe_u32 v20, v{vL31}, 2, 1
v_lshlrev_b32 v20, 3, v20
v_bfe_u32 v21, v{vL31}, 4, 1
v_lshl_add_u32 v20, v21, 2, v20
v_and_b32 v21, 3, v{vL31}
v_add_u32 v20, v20, v21
v_mul_u32_u24 v20, 1040, v20
v_bfe_u32 v21, v{vL31}, 3, 1
v_lshl_add_u32 v20, v21, 8, v20
v_lshl_add_u32 v20, v{vH}, 4, v20
s_lshl_b32 s{sT0}, s{sTW}, 9
s_and_b32 s{sT1}, s{sG}, 1
s_lshl_b32 s{sT1}, s{sT1}, 7
s_add_u32 s{sT0}, s{sT0}, s{sT1}
s_lshl_b32 s{sT1}, s{sCW}, 6
s_add_u32 s{sT0}, s{sT0}, s{sT1}
s_lshr_b32 s{sLOOP}, s{sG}, 1
s_sub_u32 s{sLOOP}, s{sLOOP}, s{sROT}
s_and_b32 s{sLOOP}, s{sLOOP}, 3
s_mul_i32 s{sT1}, s{sLOOP}, {SLOT[1]}
s_cmp_eq_u32 s{sLOOP}, 3
s_cselect_b32 s{sT1}, 0, s{sT1}
s_add_u32 s{sT0}, s{sT0}, s{sT1}
v_add_u32 v{vDa}, s{sT0}, v20
s_mul_i32 s{sT7}, s{sSW}, {4*1040}
v_add_u32 v{vSt}, s{sT7}, v{vL16x}
v_add_u32 v{vAa[2]}, {SLOT[1]}, v{vSt}
v_add_u32 v{vBa[2]}, {SLOT[2]}, v{vSt}
""")
cnt_wait(vCNT, vTMP, 6, 0, sleep=1)
cnt_wait(vCNT, vTMP, 4, 12, sleep=1)
if OPT["stgl"] > 2: cnt_wait(vCNT, vTMP, 4*OPT["stgl"], 4, sleep=2)
prio(OPT["gprio"])
sstamp(1, 1)
def pfx(items):
    if OPT["pfb"] != 2: return
    nsh = 8 if OPT["map84"] else 4
    for R, sw, shift in items:
        lbl = A.newlabel("pfx")
        A(f"""
        s_cmp_lg_u32 s{sSW}, {sw}
        s_cbranch_scc1 {lbl}
        s_and_b32 s{sT0}, s{sC}, {nsh - 1}
        s_lshl_b32 s{sT0}, s{sT0}, {shift + 6 + (0 if nsh == 8 else 1)}
        v_lshlrev_b32 v{vPF}, {shift}, v{vLANE}
        buffer_load_dword v{vDUM}, v{vPF}, {srd(R)}, s{sT0} offen
        """)
        if nsh == 4:
            A(f"s_add_u32 s{sT0}, s{sT0}, {64 << shift}")
            A(f"buffer_load_dword v{vDUM}, v{vPF}, {srd(R)}, s{sT0} offen")
        A.label(lbl)
def pf16(pairs, lbl):
    if OPT["pfb"] != 1: return
    A(f"""
    s_cmp_lg_u32 s{sSW}, 1
    s_cbranch_scc1 {lbl}
    s_mov_b64 exec, 0xffff
    """)
    for p in pairs: A(f"global_load_dword v{vDUM}, v{vPF}, s[{p}:{p+1}]")
    A(f"s_mov_b64 exec, -1\n{lbl}:")
pf16([P_LRE, P_LIM, P_WV], "L_nopfb")
W0 = OPT["win0"]
NPRE = OPT["npre"]
NPRE = max(NPRE, OPT["npre0"])
for n in range(OPT["npre0"], NPRE):
    stg_load(n)
    if W0 and n >= W0: A(f"s_waitcnt vmcnt({W0})")
prio(OPT["vprio"])
A(f"s_waitcnt vmcnt({NPRE - 12})")
sstamp(2, 1)
prio(OPT["vprio"])
if OPT["mid"]:
    for n in range(NPRE, NPRE + OPT["mid"]): stg_load(n)
    NPRE += OPT["mid"]
cnt_wait(vCNT, vTMP, 12, 4, sleep=1)
if OPT["noS"]: A("s_branch L_fin")
def stg_write(n):
    s, r = divmod(n, 12); i, m = divmod(r, 3)
    base = [vSt, vAa[2], vBa[2]][s]
    A(f"ds_write_b128 v{base}, {stg_reg(n)} offset:{[XA_O, BRE_O, BIM_O][m] + i*1040}")
ISS = [NPRE]
for n in range(12):
    stg_write(n)
    if ISS[0] < 12 + OPT["wq1"] and n >= 12 - (12 + OPT["wq1"] - NPRE) and ISS[0] < 32:
        stg_load(ISS[0]); ISS[0] += 1
sync_add(); sync_wait(0)
sstamp(3, 1)
def dma_piece(n, slot):
    i, m = divmod(n % 12, 3)
    if m == 0:
        A(f"s_add_u32 m0, s{sT7}, {slot + XA_O + i*1040 - (i>>1)*1024}")
        A("s_nop 0")
        A(f"buffer_load_dwordx4 v{vXo}, {srd(R_XA)}, s{sT5 if i & 1 else sT4} offen offset:{(i>>1)*1024} lds")
    else:
        A(f"s_add_u32 m0, s{sT7}, {slot + [0, BRE_O, BIM_O][m] + i*16}")
        A("s_nop 0")
        A(f"buffer_load_dwordx4 v{vBo}, {srd([0, R_BRE, R_BIM][m])}, s{sT3} offen offset:{i*1024} lds")
G1B = [FRS, FRS + 12, 64]
def g1_stage(s, extra=None, nwr=None, early_add=None):
    slot = s % 3
    prio(3 if (OPT["g1p"] >> s) & 1 else OPT["gprio"])
    sk = A.newlabel("nod")
    A(f"""
    s_cmp_lg_u32 s{sLOOP}, {s}
    s_cbranch_scc1 {sk}
    ds_read_b128 v[64:67], v{vDa}
    ds_read_b128 v[68:71], v{vDa} offset:32
    s_waitcnt lgkmcnt(0)
    v_mfma_f32_32x32x16_bf16 v[{Y0}:{Y0+15}], v[64:67], v[{DG}:{DG+3}], 0
    v_mfma_f32_32x32x16_bf16 v[{Y0}:{Y0+15}], v[68:71], v[{DG+4}:{DG+7}], v[{Y0}:{Y0+15}]
    {sk}:
    """)
    def rd(k):
        f = G1B[k % 3]
        A(f"ds_read_b128 v[{f}:{f+3}], v{vAa[slot]} offset:{k*32}")
        A(f"ds_read_b128 v[{f+4}:{f+7}], v{vBa[slot]} offset:{k*32}")
        A(f"ds_read_b128 v[{f+8}:{f+11}], v{vBa[slot]} offset:{k*32 + (BIM_O-BRE_O)}")
    rd(0); rd(1)
    for k in range(8):
        f = G1B[k % 3]
        if k + 2 < 8: rd(k + 2)
        nw = nwr(k - 1) if (nwr and k > 0) else 0
        A(f"s_waitcnt lgkmcnt({min(15, 3*(min(8, k + 3) - k - 1) + nw)})")
        if k == 7 and early_add is not None:
            if early_add: A(early_add)
            sync_add(False)
        cr = "0" if (s == 0 and k == 0) else f"v[{UR}:{UR+15}]"
        ci = "0" if (s == 0 and k == 0) else f"v[{UI}:{UI+15}]"
        A(f"v_mfma_f32_32x32x16_bf16 v[{UR}:{UR+15}], v[{f}:{f+3}], v[{f+4}:{f+7}], {cr}")
        if extra: extra(k)
        A(f"v_mfma_f32_32x32x16_bf16 v[{UI}:{UI+15}], v[{f}:{f+3}], v[{f+8}:{f+11}], {ci}")
def issue_more(cnt):
    for n in range(ISS[0], min(36, ISS[0] + cnt)):
        if n < 32: stg_load(n)
        else: dma_piece(n, SLOT[2])
    ISS[0] = min(36, ISS[0] + cnt)
def ex0(k):
    issue_more(-(-(36 - ISS[0]) // (8 - k)))
    if 3 <= k < 7:
        hi = 12 + 3*(k - 3) + 3
        assert ISS[0] >= hi
        A(f"s_waitcnt vmcnt({ISS[0] - hi})")
        for n in range(hi - 3, hi): stg_write(n)
g1_stage(0, ex0, lambda k: 3 if 3 <= k < 6 else 0, early_add="")
assert ISS[0] == 36
sstamp(4, 1)
prio(OPT["vprio"])
g1_soff(3)
pfx([(R_WO, 1, 10)])
sync_wait(0)
def ex1(k):
    if k < 3:
        A(f"s_waitcnt vmcnt({[9, 6, 4][k] + 2*k})")
        for n in range(24 + 3*k, min(32, 27 + 3*k)): stg_write(n)
    for n in range(2*k, min(12, 2*k + 2)): dma_piece(n, SLOT[0])
g1_stage(1, ex1, lambda k: [3, 3, 2][k] if k < 3 else 0, early_add="s_waitcnt vmcnt(12)")
sstamp(5, 1)
prio(OPT["vprio"])
A(f"v_add_u32 v{vAa[2]}, {SLOT[2]}, v{vAa[0]}")
A(f"v_add_u32 v{vBa[2]}, {SLOT[2]}, v{vBa[0]}")
CLR = 64
A(f"""
v_mov_b32 v{CLR}, -1
v_mov_b32 v{CLR+1}, -1
v_mov_b32 v{CLR+2}, -1
v_mov_b32 v{CLR+3}, -1
s_lshl_b32 s{sT0}, s{sG}, 12
s_add_u32 s{sT0}, s{sT0}, s{sOB}
s_lshl_b32 s{sT1}, s{sCW}, 11
s_add_u32 s{sT0}, s{sT0}, s{sT1}
buffer_store_dwordx4 v[{CLR}:{CLR+3}], v{vL16x}, {srd(R_WS)}, s{sT0} offen sc1
buffer_store_dwordx4 v[{CLR}:{CLR+3}], v{vL16x}, {srd(R_WS)}, s{sT0} offen offset:1024 sc1
v_mov_b32 v{CLR+4}, 0
v_mov_b32 v{CLR+5}, s{sTAG}
v_mov_b32 v{CLR+6}, 0
v_mov_b32 v{CLR+7}, s{sTAG}
s_lshl_b32 s{sT1}, s{sID}, 7
s_add_u32 s{sT1}, s{sT1}, {AGG_DUMMY}
s_mov_b64 exec, 1
buffer_store_dwordx4 v[{CLR+4}:{CLR+7}], v{CLR+4}, {srd(R_AGG)}, s{sT1} offen sc1
s_mov_b64 exec, -1
""")
sync_wait(0)
g1_stage(2, early_add="s_waitcnt vmcnt(0)")
sstamp(6, 1)
prio(OPT["vprio"])
pf16([P_LDT, P_DSK], "L_nopfc")
pfx([(R_CRE, 2, 7), (R_CIM, 3, 7)])
wq_voffset(5, 6, 8, 15)
A(f"""
s_mul_i32 s{sT2}, s{sSW}, {16*1040}
s_lshl_b32 s{sT3}, s{sSW}, 14
s_lshl_b32 s{sT6}, s{sSW}, 17
""")
sync_wait(0)
def wo_piece(i):
    A(f"""
    s_add_u32 m0, s{sT3}, {WO + i*1024}
    s_add_u32 s{sT1}, s{sT6}, {i*8192}
    buffer_load_dwordx4 v5, {srd(R_WO)}, s{sT1} offen lds
    """)
def c_piece(R, base, i):
    A(f"s_add_u32 m0, s{sT2}, {base + i*1040 - (i & 3)*1024}")
    if i & 3 == 0: A(f"s_add_u32 s{sT4}, s{sT3}, {i*1024}")
    else: A("s_nop 0")
    A(f"buffer_load_dwordx4 v{vL16x}, {srd(R)}, s{sT4} offen offset:{(i & 3)*1024} lds")
def ex3(k):
    wo_piece(2*k); wo_piece(2*k + 1)
g1_stage(3, ex3)
sstamp(7, 1); sstamp(1, 2)
prio(OPT["vprio"])
stamp(3)
A(f"""
s_lshl_b32 s{sT0}, s{sTW}, 10
s_lshl_b32 s{sT1}, s{sCW}, 8
s_add_u32 s{sT1}, s{sT1}, {EB}
s_add_u32 s{sT0}, s{sT0}, s{sT1}
v_lshlrev_b32 v10, 3, v{vL31}
v_add_u32 v11, s{sT1}, v10
v_lshl_add_u32 v10, v{vH}, 9, v10
v_add_u32 v10, s{sT0}, v10
""")
A.nop(4)
if OPT["dbg"]:
    A(f"""
    s_lshl_b32 s{sT0}, s{sID}, 2
    s_add_u32 s{sT0}, s{sT0}, s{sSW}
    s_lshl_b32 s{sT0}, s{sT0}, 13
    s_add_u32 s{sT0}, s{sT0}, {DBG}
    v_lshlrev_b32 v12, 2, v{vLANE}
    """)
    for i in range(32):
        A(f"buffer_store_dword v{UR+i}, v12, {srd(R_WS)}, s{sT0} offen")
        A(f"s_add_u32 s{sT0}, s{sT0}, 256")
    A("s_waitcnt vmcnt(0)")
def cstep4(dr, di, pr, pi, l, ur, ui, tr, ti):
    A(f"v_fma_f32 v{tr}, v{l}, v{pr}, v{ur}")
    A(f"v_fma_f32 v{ti}, v{l}, v{pi}, v{ui}")
    A(f"v_fma_f32 v{dr}, -v{l+1}, v{pi}, v{tr}")
    A(f"v_fma_f32 v{di}, v{l+1}, v{pr}, v{ti}")
def p2(r): return f"v[{r}:{r+1}]"
def pkstep(dr, di, pr, pi, l, ur, ui, tr, ti):
    A(f"v_pk_fma_f32 {p2(tr)}, {p2(l)}, {p2(pr)}, {p2(ur)} op_sel_hi:[0,1,1]")
    A(f"v_pk_fma_f32 {p2(ti)}, {p2(l)}, {p2(pi)}, {p2(ui)} op_sel_hi:[0,1,1]")
    A(f"v_pk_fma_f32 {p2(dr)}, {p2(l)}, {p2(pi)}, {p2(tr)} op_sel:[1,0,0] neg_lo:[1,0,0] neg_hi:[1,0,0]")
    A(f"v_pk_fma_f32 {p2(di)}, {p2(l)}, {p2(pr)}, {p2(ti)} op_sel:[1,0,0]")
pa = [(FRS, FRS+2), (6, 8)]
p = (UR, UI)
for j in range(1, 8):
    d = pa[j & 1]
    pkstep(d[0], d[1], p[0], p[1], vL1, UR+2*j, UI+2*j, FRS+4, FRS+6)
    p = d
EA = (6, 8)
cstep4(FRS, FRS+1, 6, 8, vL8, 7, 9, FRS+4, FRS+5)
A(f"ds_write_b64 v10, v[{FRS}:{FRS+1}]")
A("s_waitcnt vmcnt(0)")
sync_add()
LB = 64
A(f"""
s_lshl_b32 s{sT0}, s{sTW}, 4
s_sub_u32 s{sT0}, s{sC}, s{sT0}
s_sub_u32 s{sT0}, s{sT0}, 1
s_lshl_b32 s{sT0}, s{sT0}, 13
v_lshlrev_b32 v5, 16, v{vH}
v_sub_u32 v5, s{sT0}, v5
v_lshl_add_u32 v5, v{vP2}, 3, v5
s_lshl_b32 s{sT1}, s{sID}, 7
s_add_u32 s{sT1}, s{sT1}, {AGG_DUMMY}
""")
for k in range(8):
    A(f"v_min_u32 v{96+k}, s{sT1}, v5")
    if k < 7: A(f"v_add_u32 v5, {(-8192) & 0xffffffff}, v5")
sync_wait(0)
sstamp(2, 2)
E = FRS
for s in range(4):
    A(f"ds_read_b64 v[{E+2*s}:{E+2*s+1}], v11 offset:{s*512}")
A("s_waitcnt lgkmcnt(0)")
A1, A2, G3 = (104, 105), (106, 107), 108
cstep4(A1[0], A1[1], E, E+1, vL16, E+2, E+3, FRS+8, FRS+9)
cstep4(A2[0], A2[1], A1[0], A1[1], vL16, E+4, E+5, FRS+8, FRS+9)
vPR, vPI, vW = 12, 13, 14
tw1 = A.newlabel("tw1"); twd = A.newlabel("twd")
A(f"""
v_cmp_eq_u32 vcc, 1, v{vH}
s_cmp_lg_u32 s{sTW}, 0
s_cbranch_scc1 {tw1}
""")
cstep4(G3, G3+2, A2[0], A2[1], vL16, E+6, E+7, FRS+8, FRS+9)
A(f"""
v_mov_b32 v{G3+1}, s{sTAG}
v_mov_b32 v{G3+3}, s{sTAG}
v_lshlrev_b32 v7, 3, v{vP2}
s_lshl_b32 s{sT0}, s{sC}, 13
s_mov_b32 exec_hi, 0
buffer_store_dwordx4 v[{G3}:{G3+3}], v7, {srd(R_AGG)}, s{sT0} offen sc1
s_mov_b32 exec_hi, -1
v_cndmask_b32 v{vPR}, 0, v{E}, vcc
v_cndmask_b32 v{vPI}, 0, v{E+1}, vcc
v_cndmask_b32 v{vW}, 1.0, v{vL16}, vcc
v_cndmask_b32 v{vW+1}, 0, v{vL16+1}, vcc
s_branch {twd}
{tw1}:
v_cndmask_b32 v{vPR}, v{A1[0]}, v{A2[0]}, vcc
v_cndmask_b32 v{vPI}, v{A1[1]}, v{A2[1]}, vcc
v_mul_f32 v{FRS+8}, v{vL16+1}, v{vL16+1}
v_mul_f32 v{FRS+9}, v{vL16}, v{vL16+1}
v_fma_f32 v{FRS+8}, v{vL16}, v{vL16}, -v{FRS+8}
v_add_f32 v{FRS+9}, v{FRS+9}, v{FRS+9}
v_mul_f32 v{FRS+10}, v{FRS+8}, v{vL16}
v_mul_f32 v{FRS+11}, v{FRS+8}, v{vL16+1}
v_fma_f32 v{FRS+10}, -v{FRS+9}, v{vL16+1}, v{FRS+10}
v_fma_f32 v{FRS+11}, v{FRS+9}, v{vL16}, v{FRS+11}
v_cndmask_b32 v{vW}, v{FRS+8}, v{FRS+10}, vcc
v_cndmask_b32 v{vW+1}, v{FRS+9}, v{FRS+11}, vcc
{twd}:
""")
A(f"s_mov_b32 s{sSPIN}, 0")
A(f"""
s_lshl_b32 s{sT0}, s{sSW}, 12
s_add_u32 s{sT0}, s{sT0}, {TB}
v_lshlrev_b32 v9, 6, v{vL31}
v_lshl_add_u32 v9, v{vH}, 5, v9
v_add_u32 v9, s{sT0}, v9
v_bfe_u32 v108, v{vLANE}, 2, 2
v_lshl_add_u32 v108, v{vH}, 3, v108
v_lshlrev_b32 v108, 6, v108
v_bfe_u32 v109, v{vLANE}, 4, 1
v_lshl_add_u32 v108, v109, 5, v108
v_and_b32 v109, 3, v{vLANE}
v_lshl_add_u32 v108, v109, 3, v108
v_add_u32 v108, s{sT0}, v108
""")
A(f"""
v_bfe_u32 v5, v{vLANE}, 2, 2
v_lshl_add_u32 v5, v{vH}, 2, v5
v_bfe_u32 v7, v{vLANE}, 4, 1
v_and_b32 v110, 3, v{vLANE}
v_lshlrev_b32 v110, 3, v110
v_lshl_add_u32 v110, v7, 5, v110
v_bfe_u32 v7, v{vLANE}, 3, 1
v_lshl_add_u32 v110, v7, 6, v110
v_lshl_add_u32 v110, v5, 7, v110
s_lshl_b32 s{sT0}, s{sCW}, 15
s_add_u32 s{sT0}, s{sT0}, {WO}
s_lshl_b32 s{sT1}, s{sCW}, 6
v_xor_b32 v110, s{sT1}, v110
v_xor_b32 v111, 64, v110
v_add_u32 v110, s{sT0}, v110
v_add_u32 v111, s{sT0}, v111
""")
for j in range(16):
    for nt in range(2):
        f = 8*j + 4*nt
        A(f"ds_read_b64_tr_b16 a[{f}:{f+1}], v{110 + nt} offset:{j*2048}")
        A(f"ds_read_b64_tr_b16 a[{f+2}:{f+3}], v{110 + nt} offset:{j*2048 + 1024}")
    if j % 3 == 2: A("s_waitcnt lgkmcnt(3)")
prio(OPT["gprio"])
for i in range(OPT["cim1"]): c_piece(R_CIM, CIM, i)
prio(OPT["vprio"])
sstamp(3, 2)
A.label("L_lb")
for k in range(8):
    A(f"buffer_load_dwordx4 v[{LB+4*k}:{LB+4*k+3}], v{96+k}, {srd(R_AGG)}, 0 offen sc1")
A(f"""
s_add_u32 s{sSPIN}, s{sSPIN}, 1
s_waitcnt vmcnt(0)
v_min_u32 v5, v{LB+1}, v{LB+3}
v_max3_u32 v7, s{sTAG}, v{LB+1}, v{LB+3}
""")
for k in range(1, 8):
    A(f"v_min3_u32 v5, v5, v{LB+4*k+1}, v{LB+4*k+3}")
    A(f"v_max3_u32 v7, v7, v{LB+4*k+1}, v{LB+4*k+3}")
A(f"""
v_min_u32 v5, s{sTAG}, v5
v_cmp_ne_u32 vcc, v5, v7
s_cbranch_vccz L_lbd
s_sleep 8
s_cmp_lt_u32 s{sSPIN}, {SPIN_MAX}
s_cbranch_scc1 L_lb
L_lbd:
""")
stamp(4); sstamp(4, 2)
p = (LB+28, LB+30)
pb = [(96, 97), (98, 99)]
for k in range(6, -1, -1):
    d = pb[k & 1]
    cstep4(d[0], d[1], p[0], p[1], vL64, LB+4*k, LB+4*k+2, 100, 101)
    p = d
A(f"ds_write_b64 v10, v[96:97] offset:{HP-EB}")
sync_add(); sync_wait(0)
sstamp(5, 2)
for s in range(4):
    A(f"ds_read_b64 v[{E+2*s}:{E+2*s+1}], v11 offset:{HP - EB + s*512}")
A("s_waitcnt lgkmcnt(0)")
p = (E+6, E+7)
for s in range(2, -1, -1):
    d = pb[s & 1]
    cstep4(d[0], d[1], p[0], p[1], vL512, E+2*s, E+2*s+1, 100, 101)
    p = d
CRp, CIp = 104, 106
cstep4(CRp, CIp, p[0], p[1], vW, vPR, vPI, 100, 101)
cstep4(CRp+1, CIp+1, CRp, CIp, vL8, EA[0], EA[1], 100, 101)
HR, HI = FRS, FRS+8
p = (CRp, CIp)
for j in range(8):
    pkstep(UR+2*j, UI+2*j, p[0], p[1], vL1, UR+2*j, UI+2*j, 100, 102)
    p = (UR+2*j, UI+2*j)
    if OPT['cpos'] == 0: c_piece(R_CRE, CRE, 2*j)
    A(f"v_pk_mul_f32 {p2(96)}, {p2(vCF)}, {p2(UI+2*j)} op_sel:[1,0]")
    A(f"v_pk_mul_f32 {p2(98)}, {p2(vCF)}, {p2(UR+2*j)} op_sel:[1,0]")
    A(f"v_pk_fma_f32 {p2(96)}, {p2(vCF)}, {p2(UR+2*j)}, {p2(96)} op_sel_hi:[0,1,1] neg_lo:[0,0,1] neg_hi:[0,0,1]")
    A(f"v_pk_fma_f32 {p2(98)}, {p2(vCF)}, {p2(UI+2*j)}, {p2(98)} op_sel_hi:[0,1,1] neg_lo:[1,0,1] neg_hi:[1,0,1]")
    if OPT['cpos'] == 0: c_piece(R_CRE, CRE, 2*j + 1)
    A(f"v_cvt_pk_bf16_f32 v{HR+j}, v96, v97")
    A(f"v_cvt_pk_bf16_f32 v{HI+j}, v98, v99")
    if j == 3:
        A(f"ds_write_b128 v9, v[{HR}:{HR+3}]")
        A(f"ds_write_b128 v9, v[{HI}:{HI+3}] offset:2048")
A(f"""
ds_write_b128 v9, v[{HR+4}:{HR+7}] offset:16
ds_write_b128 v9, v[{HI+4}:{HI+7}] offset:2064
s_lshl_b32 s{sKOFF}, s{sC}, 1
s_add_u32 s{sKOFF}, s{sKOFF}, s{sTW}
s_lshl_b32 s{sKOFF}, s{sKOFF}, 16
s_add_u32 s{sKOFF}, s{sKOFF}, {HB}
s_lshl_b32 s{sT1}, s{sG}, 12
s_lshl_b32 s{sT7}, s{sCW}, 11
s_add_u32 s{sT1}, s{sT1}, s{sT7}
s_add_u32 s{sT0}, s{sKOFF}, s{sT1}
s_add_u32 s{sT1}, s{sT0}, 32768
s_waitcnt lgkmcnt(0)
""")
for part in range(2):
    for hf in range(2):
        f = 64 + 8*part + 4*hf
        A(f"ds_read_b64_tr_b16 v[{f}:{f+1}], v108 offset:{part*2048 + hf*1024}")
        A(f"ds_read_b64_tr_b16 v[{f+2}:{f+3}], v108 offset:{part*2048 + hf*1024 + 256}")
for n in range(4):
    A(f"s_waitcnt lgkmcnt({6 - 2*n})")
    A(f"buffer_store_dwordx4 v[{64+4*n}:{67+4*n}], v{vL16x}, {srd(R_WS)}, s{sT0 if n < 2 else sT1} offen offset:{(n&1)*1024} sc1")
A(f"""
s_lshl_b32 s{sT7}, s{sC}, 12
s_add_u32 s{sT7}, s{sT7}, {FL3}
v_and_b32 v5, 15, v{vLANE}
v_lshlrev_b32 v5, 8, v5
s_lshl_b32 s{sT0}, s{sTW}, 7
s_add_u32 s{sT0}, s{sT0}, s{sT7}
v_add_u32 v5, s{sT0}, v5
v_mov_b32 v12, s{sTAG}
v_mov_b32 v13, 0
s_lshl_b32 s{sT1}, s{sG}, 2
s_add_u32 s{sT1}, s{sT1}, s{sSW}
s_lshl_b32 s{sT1}, s{sT1}, 7
s_add_u32 s{sT1}, s{sT1}, s{sT7}
""")
sstamp(6, 2)
A("s_waitcnt vmcnt(0)")
sstamp(7, 2); sstamp(1, 3)
A(f"""
s_mov_b64 exec, 1
buffer_store_dword v12, v13, {srd(R_WS)}, s{sT1} offen sc1
s_mov_b64 exec, -1
""")
if OPT["cpos"] == 0: sync_add(False)
else:
    prio(OPT["gprio"])
    for i in range(16): c_piece(R_CRE, CRE, i)
    prio(OPT["vprio"])
stamp(5, not HST)
A(f"""
v_mul_u32_u24 v10, 1040, v{vL31}
v_lshl_add_u32 v10, v{vH}, 4, v10
s_mul_i32 s{sT0}, s{sCW}, {512 + 32*1040}
s_mul_i32 s{sT1}, s{sCW}, {(512 - 32*1040) & 0xffffffff}
s_add_u32 s{sT1}, s{sT1}, {32*1040}
v_add_u32 v11, s{sT1}, v10
v_add_u32 v10, s{sT0}, v10
v_add_u32 v14, {CRE}, v10
v_add_u32 v15, {CRE}, v11
s_lshl_b32 s{sT1}, s{sCW}, 14
s_add_u32 s{sKOFF}, s{sKOFF}, s{sT1}
s_add_u32 s{sOB}, s{sOB}, s{sT1}
s_xor_b32 s{sT0}, s{sSW}, 2
s_lshl_b32 s{sT0}, s{sT0}, 12
v_add_u32 v114, s{sT0}, v{vL16x}
s_lshl_b32 s{sT0}, s{sSW}, 12
v_add_u32 v115, s{sT0}, v{vL16x}
v_add_u32 v119, {TB}, v114
v_add_u32 v120, {TB}, v115
s_lshl_b32 s{sT0}, s{sTW}, 17
s_lshl_b32 s{sT1}, s{sG}, 8
s_add_u32 s{sT0}, s{sT0}, s{sT1}
s_lshl_b32 s{sT1}, s{sCW}, 7
s_add_u32 s{sT0}, s{sT0}, s{sT1}
v_lshlrev_b32 v113, 2, v{vL31}
v_add_u32 v113, s{sT0}, v113
v_lshl_add_u32 v118, v{vH}, 14, v113
v_add_u32 v118, 2048, v118
v_lshl_add_u32 v113, v{vH}, 13, v113
""")
sstamp(2, 3)
poll_flags(5, 12, 1, sleep=OPT['sl2'])
if OPT["cpos"] == 1: sync_add(False)
sstamp(3, 3)
LA = 7
HRING = 16
def hreg(j): return HRING + 4*(j % 8)
def h_ld(j):
    if j == 16: A(f"s_add_u32 s{sKOFF}, s{sKOFF}, {32768 - 3*4096}")
    elif j % 4 == 0 and j > 0: A(f"s_add_u32 s{sKOFF}, s{sKOFF}, 4096")
    A(f"buffer_load_dwordx4 v[{hreg(j)}:{hreg(j)+3}], v{vL16x}, {srd(R_WS)}, s{sKOFF} offen offset:{(j%4)*1024} sc1")
for j in range(LA): h_ld(j)
def g2_rd(j):
    f = FRS + 8*(j % 3)
    A(f"ds_read_b128 v[{f}:{f+3}], v{14 if j < 16 else 10} offset:{(j % 16)*32}")
    A(f"ds_read_b128 v[{f+4}:{f+7}], v{15 if j < 16 else 11} offset:{(j % 16)*32}")
def g2_mfma(j):
    f = FRS + 8*(j % 3)
    c = "0" if j == 0 else f"v[{Y1}:{Y1+15}]"
    A(f"v_mfma_f32_32x32x16_bf16 v[{Y1}:{Y1+15}], v[{hreg(j)}:{hreg(j)+3}], v[{f+4}:{f+7}], {c}")
    A(f"v_mfma_f32_32x32x16_bf16 v[{Y0}:{Y0+15}], v[{hreg(j)}:{hreg(j)+3}], v[{f}:{f+3}], v[{Y0}:{Y0+15}]")
sync_wait(0)
prio(3 if OPT["g2p"] & 1 else OPT["gprio"])
g2_rd(0); g2_rd(1)
VQ = list(range(LA))
P2 = 32 - OPT["p2n"]
for j in range(32):
    if j == P2:
        if P2 + LA < 32 or True:
            pass
        prio(OPT["vprio"])
        cnt_wait(vCNT, vTMP, 8, 12, sleep=OPT['sl1'])
        sstamp(6, 3); sstamp(1, 4)
        prio(3 if OPT["g2p"] & 2 else OPT["gprio"])
    if j + LA < 32:
        h_ld(j + LA); VQ.append(j + LA)
    rest = list(range(OPT["cim1"], 16))
    per = -(-len(rest) // 10) if rest else 0
    for i in rest[per*j:per*(j + 1)] if j < 10 else []:
        if i == rest[0] and i & 3: A(f"s_add_u32 s{sT4}, s{sT3}, {(i & ~3)*1024}")
        c_piece(R_CIM, CIM, i); VQ.append(-2 if i == 15 else -1)
    if not rest and j == 0: VQ.insert(0, -2)
    if j == 14:
        prio(OPT["vprio"]); sync_wait(0); prio(3 if OPT["g2p"] & 1 else OPT["gprio"])
    if j + 2 < 32: g2_rd(j + 2)
    issued = min(32, j + 3)
    need = max(VQ.index(j), VQ.index(-2)) if j == 12 else VQ.index(j)
    A(f"s_waitcnt vmcnt({len(VQ) - 1 - need}) lgkmcnt({2*(issued - j - 1)})")
    if j == 12: sync_add(False)
    if j == 0: sstamp(4, 3)
    if j == 15:
        cnt_add(vCNT, vONE, 8)
        stamp(6, not HST); sstamp(5, 3)
    g2_mfma(j)
prio(OPT["vprio"])
A.nop(10)
for i in range(4):
    A(f"ds_write_b128 v119, v[{Y1+4*i}:{Y1+4*i+3}] offset:{i*1024}")
sync_add()
sync_wait(0)
for i in range(4):
    A(f"ds_read_b128 v[{Y1+4*i}:{Y1+4*i+3}], v120 offset:{i*1024}")
for i in range(16):
    if i % 4 == 0: A(f"s_waitcnt lgkmcnt({3 - i//4})")
    A(f"v_add_f32 v{Y0+i}, v{Y0+i}, v{Y1+i}")
    A(f"s_mov_b32 s{sT1}, {(16*(i>>3) + 4*((i>>2)&1) + ((i>>1)&1) + 8*(i&1))*4096}")
    A(f"buffer_store_dword v{Y0+i}, v113, {srd(R_OUT)}, s{sT1} offen{OST}")
stamp(7); sstamp(7, 3); sstamp(2, 4)
cnt_wait(vCNT, vTMP, 12, 12)
sstamp(3, 4)
if OPT["odel"]: A(f"s_sleep {OPT['odel']}")
def oreg(j): return (16 + 4*j) if j < 8 else (80 + 4*(j - 8))
def o_loads(g4):
    A(f"s_add_u32 s{sT1}, s{sOB}, {g4*4096}")
    for j in range(4*g4, 4*g4 + 4):
        A(f"buffer_load_dwordx4 v[{oreg(j)}:{oreg(j)+3}], v{vL16x}, {srd(R_WS)}, s{sT1} offen offset:{(j%4)*1024} sc1")
for g4 in range(4): o_loads(g4)
A(f"s_mov_b32 s{sSPIN}, 0")
for g4 in range(4):
    lp = A.newlabel("op"); dn = A.newlabel("opd"); ck = A.newlabel("opc")
    j0 = 4*g4
    A(f"s_waitcnt vmcnt({4*(3 - g4)})")
    A.label(ck)
    A(f"v_max_u32 v13, v{oreg(j0)+1}, v{oreg(j0)+3}")
    for j in range(j0 + 1, j0 + 4):
        A(f"v_max3_u32 v13, v13, v{oreg(j)+1}, v{oreg(j)+3}")
    A(f"""
    v_cmp_eq_u32 vcc, -1, v13
    s_cbranch_vccz {dn}
    s_add_u32 s{sSPIN}, s{sSPIN}, 1
    s_cmp_gt_u32 s{sSPIN}, 20000
    s_cbranch_scc1 {dn}
    """)
    o_loads(g4)
    A(f"""
    s_waitcnt vmcnt(0)
    s_branch {ck}
    {dn}:
    """)
    if g4 in (0, 3): sstamp(4 + g4 // 3, 4)
    for j in range(j0, j0 + 4):
        c0 = "0" if j == 0 else f"v[{Y0}:{Y0+15}]"
        c1 = "0" if j == 0 else f"v[{Y1}:{Y1+15}]"
        A(f"v_mfma_f32_32x32x16_bf16 v[{Y1}:{Y1+15}], v[{oreg(j)}:{oreg(j)+3}], a[{8*j+4}:{8*j+7}], {c1}")
        A(f"v_mfma_f32_32x32x16_bf16 v[{Y0}:{Y0+15}], v[{oreg(j)}:{oreg(j)+3}], a[{8*j}:{8*j+3}], {c0}")
if OPT["sst"] == 4: A(f"s_mov_b32 s{sST+14}, s{sSPIN}")
A.nop(11)
for i in range(4):
    A(f"ds_write_b128 v114, v[{Y1+4*i}:{Y1+4*i+3}] offset:{TB2 + i*1024}")
A("s_waitcnt lgkmcnt(0)")
A("s_barrier")
sstamp(6, 4)
for i in range(4):
    A(f"ds_read_b128 v[{Y1+4*i}:{Y1+4*i+3}], v115 offset:{TB2 + i*1024}")
for i in range(16):
    if i % 4 == 0: A(f"s_waitcnt lgkmcnt({3 - i//4})")
    A(f"v_add_f32 v{Y0+i}, v{Y0+i}, v{Y1+i}")
    A(f"s_mov_b32 s{sT1}, {(8*(i>>2) + (i&3))*4096}")
    A(f"buffer_store_dword v{Y0+i}, v118, {srd(R_OUT)}, s{sT1} offen{OST}")
A("s_branch L_fin")

A.label("L_hot_end")
A.label("L_slow")
A(f"""
s_cmp_lg_u32 s{sDONE}, 0
s_cbranch_scc1 L_fast
s_mov_b32 s{sDONE}, 1
s_waitcnt lgkmcnt(0)
""")
def a_sync():
    A(f"s_add_u32 s{sATG}, s{sATG}, 4")
    A("s_waitcnt lgkmcnt(0)")
    cnt_add(vCNT, vIDX, 4)
    cnt_wait(vCNT, 16, f"s{sATG}", 4, sleep=2)
for i in range(4): A(f"v_mov_b32 v{vZ+i}, 0")
for ct in range(8): A(f"v_mov_b32 v{vM+ct}, 0xff800000")
A("s_nop 1")
for ct in range(8):
    A(f"v_mfma_f32_32x32x16_bf16 a[{16*ct}:{16*ct+15}], v[{vZ}:{vZ+3}], v[{vZ}:{vZ+3}], 0")
A(f"s_mov_b32 s{sLOOP}, 16")
def adv():
    A(f"s_add_u32 s{sKOFF}, s{sKOFF}, {KVS}"); A(f"s_and_b32 s{sKOFF}, s{sKOFF}, 0xffff")
A.label("L_sl1")
ld_k(0, 0); adv()
A("s_waitcnt vmcnt(0)")
for ct in range(8):
    A(f"v_mfma_f32_32x32x16_bf16 v[{S0}:{S0+15}], v[{KV[0]}:{KV[0]+3}], v[{QF+4*ct}:{QF+4*ct+3}], 0")
    A.nop(12)
    for i in range(8):
        A(f"v_max3_f32 v{vM+ct}, v{S0+2*i}, v{S0+2*i+1}, v{vM+ct}")
A(f"""
s_sub_u32 s{sLOOP}, s{sLOOP}, 1
s_cmp_lg_u32 s{sLOOP}, 0
s_cbranch_scc1 L_sl1
s_lshl_b32 s{sT0}, s{sWAVE}, 11
s_add_u32 s{sT0}, s{sT0}, {CB}
v_lshlrev_b32 v8, 2, v{vLANE}
v_add_u32 v8, s{sT0}, v8
v_lshlrev_b32 v10, 2, v{vL31}
v_add_u32 v10, {CB}, v10
""")
a_sync()
def pair_off(pr):
    A(f"s_add_u32 s{sT0}, s{sWAVE}, {pr + 1}")
    A(f"s_and_b32 s{sT0}, s{sT0}, 3")
    A(f"s_lshl_b32 s{sT0}, s{sT0}, 9")
for pr in range(4):
    pair_off(pr)
    A(f"v_add_u32 v9, s{sT0}, v8")
    A(f"ds_write_b32 v9, v{vM+2*pr}")
    A(f"ds_write_b32 v9, v{vM+2*pr+1} offset:256")
a_sync()
for ct in range(8):
    if ct % 2 == 0:
        pair_off(ct // 2)
        A(f"v_add_u32 v9, s{sT0}, v10")
    for w in range(4):
        A(f"ds_read_b32 v{S0+2*w}, v9 offset:{w*2048 + (ct%2)*256}")
        A(f"ds_read_b32 v{S0+2*w+1}, v9 offset:{w*2048 + (ct%2)*256 + 128}")
    A("s_waitcnt lgkmcnt(0)")
    for w in range(4):
        A(f"v_max3_f32 v{vM+ct}, v{S0+2*w}, v{S0+2*w+1}, v{vM+ct}")
a_sync()
A(f"s_mov_b32 s{sLOOP}, 16")
A.label("L_sl2")
ld_k(0, 0); ld_v(0, 0, 0); ld_v(0, 1, 0); adv()
A("s_waitcnt vmcnt(0)")
for ct in range(8):
    A(f"v_mfma_f32_32x32x16_bf16 v[{S0}:{S0+15}], v[{KV[0]}:{KV[0]+3}], v[{QF+4*ct}:{QF+4*ct+3}], 0")
    A.nop(12)
    for i in range(16):
        A(f"v_sub_f32 v{S0+i}, v{S0+i}, v{vM+ct}")
    for i in range(16):
        A(f"v_exp_f32 v{S0+i}, v{S0+i}")
    A.nop(2)
    A(f"v_smfmac_f32_32x32x32_bf16 a[{16*ct}:{16*ct+15}], v[{KV[0]+4}:{KV[0]+7}], v[{S0}:{S0+7}], v{vIDX}")
    A(f"v_smfmac_f32_32x32x32_bf16 a[{16*ct}:{16*ct+15}], v[{KV[0]+8}:{KV[0]+11}], v[{S0+8}:{S0+15}], v{vIDX}")
A(f"""
s_sub_u32 s{sLOOP}, s{sLOOP}, 1
s_cmp_lg_u32 s{sLOOP}, 0
s_cbranch_scc1 L_sl2
s_nop 15
""")
for ct in range(6): part_write(ct)
A("s_waitcnt lgkmcnt(0)")
cnt_add(vCNT, vIDX, 4)
A(f"""
s_add_u32 s{sATG}, s{sATG}, 4
s_branch L_comb
""")

if OPT["xm"] or OPT["xv"] or OPT["xl"]:
    i0 = A.lines.index("L_S2:"); i1 = A.lines.index("L_hot_end:")
    seen = False
    for i in range(i0, i1):
        t = A.lines[i].strip()
        if t.startswith("ds_write_b128") : seen = True
        if not seen: continue
        if OPT["xm"] and t.startswith("v_mfma"): A.lines[i] = "    s_nop 7"
        if OPT["xv"] and (t.startswith(("v_pk_", "v_fma_f32", "v_cvt_pk", "v_mul_f32", "v_add_f32"))): A.lines[i] = "    s_nop 1"
        if OPT["xl"] and t.startswith(("ds_read_b128", "ds_write_b128")): A.lines[i] = "    s_nop 0"
hdr = open("cdna_kernels/" + NAME + ".s.ref").read().split("; Override launch")[0]
out = hdr + f"""; Fused single-launch kernel: 256 workgroups x 8 waves (4 attention waves + 4 SSM waves). Generated by gen/gen11.py.
; @launch grid=(256,1,1) block=(512,1,1) lds={LDS_BYTES}
.amdgcn_target "amdgcn-amd-amdhsa--gfx950"
.text
.globl {NAME}_kernel
.p2align 8
.type {NAME}_kernel,@function
{NAME}_kernel:
""" + A.text() + f""".section .rodata,"a"
.p2align 6
.amdhsa_kernel {NAME}_kernel
  .amdhsa_next_free_vgpr 256
  .amdhsa_next_free_sgpr 102
  .amdhsa_accum_offset 128
  .amdhsa_group_segment_fixed_size 0
  .amdhsa_kernarg_size 136
  .amdhsa_user_sgpr_count 2
  .amdhsa_user_sgpr_kernarg_segment_ptr 1
  .amdhsa_system_sgpr_workgroup_id_x 1
.end_amdhsa_kernel
"""
open(sys.argv[1], "w").write(out)
errs = check(A.lines) + check(A.lines[loop_end-60:loop_end] + A.lines[loop_start:loop_start+60])
for e in errs: print("HAZARD:", e)
print(f"{len(A.lines)} lines, {len(errs)} hazards")
```

```python
import sys, math, struct
from asmlib import *

OPT = dict(dbg=0, force_slow=0, stamps=0, noS=0, cyc=0, ost=2, gprio=0, vprio=3, hst=0, stgwin=8, pfq=0, pfb=2, stgl=2, qpre=2,
           pfc=1, ssl=2, la=8, sst=0, win0=0, trig=1, odel=0, sgate=2, map84=1, g1p=0, g2p=2, noKV=0, nochk=0, wq1=12, cpos=1, hdbg=0, p2n=16, oack=1, cim1=0, npre0=0, mid=0, sl1=2, sl2=2, sl0=0, tlb=0, pad=0, padat=0, p1at=3, e0c=24, q1a=2, p1k=28, kv0=4, g0=0, ofirst=0, xm=0, xv=0, xl=0, npre=15, l0=30, ostb=1, cap=7, cap0=9, enc=0, encS=0, lbs=4)
for a in sys.argv[2:]:
    k, v = a.split("=")
    assert k in OPT, k
    OPT[k] = int(v)

NAME = "concat_heads__ssm_conv_s5__grouped_kv_mqa__prompt"
def f2u(x): return struct.unpack("<I", struct.pack("<f", x))[0]

XQ, WQ = 0, 66560
KVX, WKV = 3*16640, 66560 + 3*16384
SLOT = [0, 49920, 99840]
XA_O, BRE_O, BIM_O = 0, 16640, 33280
CIM, CRE = 0, 66560
CB = 66560; CB_T = 2304
TB = CB + 32*CB_T
WO = 66560
TB2 = 0
QX = 149760; EB = 157952; HP = 160000; CNT = 162048; QM = 162064; KM = 162068; CNT4 = 24
assert TB + 16384 <= EB
LDS_BYTES = 163840
FL1, FL3 = 0x1000, 0x9000
KVT = 0x80000; KVS = 4096
AGG = 0x30000; AGG_DUMMY = 32*8192; AGG_SIZE = AGG_DUMMY + 256*128
OB, HB = 0x100000, 0x400000
DBG = 0x1000000
WS_SIZE = 0x2000000
assert AGG + AGG_SIZE <= KVT
sWAVE, sC, sG, sTAG, sID = 3, 4, 5, 6, 7
R_XB, R_WQ, R_WKV, R_XA, R_BRE, R_BIM, R_CRE, R_CIM, R_WO, R_OUT, R_WS, R_AGG = 8, 12, 16, 20, 24, 28, 32, 36, 40, 44, 48, 52
P_LRE, P_LIM, P_LDT, P_DSK, P_WV = 56, 58, 60, 62, 64
sEP, sDONE = 66, 67
sT0, sT1, sT2, sT3, sT4, sT5 = 68, 69, 70, 71, 72, 73
sT6, sSPIN = 74, 75
sTW, sCW = 76, 77
sLOOP, sKOFF, sROT, sSW = 78, 79, 80, 81
sOB, sT7 = 82, 83
sATG = 65
sST = 84
def srd(r): return f"s[{r}:{r+3}]"

A = Asm()
OST = ["", " sc1", " nt", " sc0 sc1", " sc1 nt"][OPT["ost"]]
OSTB = OST if OPT["ostb"] < 0 else ["", " sc1", " nt", " sc0 sc1", " sc1 nt"][OPT["ostb"]]
SPIN_MAX = 200000
HST = OPT["hst"]

SSEC = [False]
def sstamp(i, mode):
    if OPT["stamps"] and OPT["sst"] == mode:
        A(f"s_memrealtime s[{sST+2*i}:{sST+2*i+1}]")
def stamp(i, cond=True):
    if (OPT["enc"] or OPT["encS"]) and cond and (i == 0 or (SSEC[0] and i == OPT["encS"]) or (not SSEC[0] and i == OPT["enc"])):
        A(f"s_memrealtime s[{98 if i == 0 else 94}:{99 if i == 0 else 95}]")
        if i == 0: A("s_waitcnt lgkmcnt(0)\ns_sub_u32 s94, s98, 3000")
        return
    if SSEC[0] and OPT["sst"] and i < 8: return
    if OPT["stamps"] and cond:
        A(f"s_memrealtime s[{sST+2*i}:{sST+2*i+1}]")

def padto():
    l = A.newlabel("pad")
    A(f"""
    {l}:
    s_memrealtime s[96:97]
    s_waitcnt lgkmcnt(0)
    s_sub_u32 s96, s96, s98
    s_cmp_lt_u32 s96, {OPT["pad"]*100}
    s_cbranch_scc1 {l}
    """)
def prio(p): A(f"s_setprio {p}")

def cnt_add(vaddr, vone, off=0):
    A(f"""
    s_mov_b64 exec, 1
    {"ds_inc_u32" if vone == vIDX else "ds_add_u32"} v{vaddr}, v{vone} offset:{off}
    s_mov_b64 exec, -1
    """)
def cnt_wait(vaddr, vtmp, target, off=0, sleep=0):
    lp = A.newlabel("sy"); dn = A.newlabel("syd")
    A(f"""
    s_mov_b32 s{sSPIN}, 0
    {lp}:
    ds_read_b32 v{vtmp}, v{vaddr} offset:{off}
    s_add_u32 s{sSPIN}, s{sSPIN}, 1
    s_waitcnt lgkmcnt(0)
    v_readfirstlane_b32 s{sT0}, v{vtmp}
    s_cmp_ge_u32 s{sT0}, {target}
    s_cbranch_scc1 {dn}
    {("s_sleep " + str(sleep)) if sleep else ""}
    s_cmp_lt_u32 s{sSPIN}, {SPIN_MAX}
    s_cbranch_scc1 {lp}
    {dn}:
    """)
NSYNC = [0]
def grp_sync():
    NSYNC[0] += 1
    A("s_waitcnt lgkmcnt(0)")
    cnt_add(vCNT, vONE)
    cnt_wait(vCNT, vTMP, CBASE + 4*NSYNC[0], sleep=OPT['ssl'])

def sync_add(wait_lds=True):
    NSYNC[0] += 1
    if wait_lds: A("s_waitcnt lgkmcnt(0)")
    cnt_add(vCNT, vONE)
def sync_wait(sleep=None):
    cnt_wait(vCNT, vTMP, CBASE + 4*NSYNC[0], sleep=OPT['ssl'] if sleep is None else max(sleep, OPT['sl0']))

def poll_flags(vaddr, vdst, width, sleep=2):
    lp = A.newlabel("pl"); dn = A.newlabel("pld")
    ld = "buffer_load_dword" if width == 1 else f"buffer_load_dwordx{width}"
    A(f"s_mov_b32 s{sSPIN}, 0")
    A.label(lp)
    A(f"""
    {ld} {vr(vdst, width)}, v{vaddr}, {srd(R_WS)}, 0 offen sc1
    s_add_u32 s{sSPIN}, s{sSPIN}, 1
    s_waitcnt vmcnt(0)
    v_cmp_ne_u32 vcc, s{sTAG}, v{vdst}
    s_cbranch_vccz {dn}
    {("s_sleep " + str(sleep)) if sleep else ""}
    s_cmp_lt_u32 s{sSPIN}, {SPIN_MAX}
    s_cbranch_scc1 {lp}
    {dn}:
    """)

def wave_max(v, tmp):
    A("s_nop 1")
    for sh in (1, 2, 4, 8):
        A(f"v_max_f32_dpp v{v}, v{v}, v{v} row_ror:{sh} row_mask:0xf bank_mask:0xf")
        A("s_nop 1")
    A(f"v_mov_b32 v{tmp}, v{v}")
    A("s_nop 1")
    A(f"v_permlane16_swap_b32 v{tmp}, v{v}")
    A(f"v_max_f32 v{v}, v{v}, v{tmp}")
    A(f"v_mov_b32 v{tmp}, v{v}")
    A("s_nop 1")
    A(f"v_permlane32_swap_b32 v{tmp}, v{v}")
    A(f"v_max_f32 v{v}, v{v}, v{tmp}")

def wq_voffset(dst, t0, t1, t2):
    A(f"""
    v_lshrrev_b32 v{t0}, 3, v{vLANE}
    v_and_b32 v{t1}, 7, v{vLANE}
    v_bfe_u32 v{t2}, v{vLANE}, 4, 1
    v_lshlrev_b32 v{t2}, 2, v{t2}
    v_xor_b32 v{t1}, v{t1}, v{t2}
    v_lshlrev_b32 v{t1}, 4, v{t1}
    v_lshl_add_u32 v{dst}, v{t0}, 10, v{t1}
    """)

vLANE, vL31, vH, vL16x = 1, 2, 3, 4
UR, UI, Y0, Y1 = 16, 32, 48, 64
FRS = 80
DG = 104
vL1, vL8, vL16, vL64, vL512, vCF = 112, 114, 116, 118, 120, 122
vCNT, vONE, vTMP, vP2, vDUM = 0, 124, 125, 126, 127
vXo, vBo, vDa, vSt = 5, 6, 7, 8
vAa, vBa = [9, 10, 11], [12, 13, 14]
vPF = 15
STG = 64
PRM = 100
S0, S1 = 16, 32
QF = 48
KV = [80, 92, 104, 116]
vIDX = 7
vM = 104
vZ = 120
vKt, vVt = [5, 8, 9, 10], [6, 12, 14, 15]

A(f"""
s_cmp_ge_u32 s2, 256
s_cbranch_scc1 L_end
""")
stamp(0)
if OPT["pad"]: A("s_memrealtime s[98:99]")
sizes = {R_XB: 65536, R_WKV: 16384, R_WQ: 523392, R_WS: WS_SIZE, R_XA: 65536, R_BRE: 65536, R_BIM: 65536, R_CRE: 65536, R_CIM: 65536,
         R_WO: 523392, R_OUT: 262144, R_AGG: AGG_SIZE}
def kload(lst):
    for r, off in lst:
        A(f"s_load_dwordx2 s[{r}:{r+1}], s[0:1], {off}")
def srd_words(rs):
    for r in rs:
        A(f"s_mov_b32 s{r+2}, {sizes[r]}")
        A(f"s_mov_b32 s{r+3}, 0x20000")
kload([(R_XB, 72), (R_WKV, 88), (P_WV, 96), (R_WQ, 80), (R_WS, 128)])
A(f"""
v_lshrrev_b32 v5, 6, v0
v_and_b32 v{vLANE}, 63, v0
v_readfirstlane_b32 s{sWAVE}, v5
v_lshlrev_b32 v{vL16x}, 4, v{vLANE}
v_bfe_u32 v{vH}, v0, 5, 1
v_and_b32 v{vL31}, 31, v0
v_mov_b32 v0, {CNT}
""")
srd_words([R_XB])
A(f"""
""")
if OPT["map84"]:
    A(f"""
    s_bfe_u32 s{sC}, s2, 0x20001
    s_lshl_b32 s{sC}, s{sC}, 3
    s_bfe_u32 s{sT0}, s2, 0x30003
    s_add_u32 s{sC}, s{sC}, s{sT0}
    s_and_b32 s{sG}, s2, 1
    s_lshl_b32 s{sG}, s{sG}, 2
    s_lshr_b32 s{sT0}, s2, 6
    s_add_u32 s{sG}, s{sG}, s{sT0}
    s_add_u32 s{sROT}, s{sC}, s{sG}
    s_and_b32 s{sROT}, s{sROT}, 3
    """)
else:
    A(f"""
    s_and_b32 s{sC}, s2, 7
    s_lshl_b32 s{sC}, s{sC}, 2
    s_bfe_u32 s{sROT}, s2, 0x20003
    s_add_u32 s{sC}, s{sC}, s{sROT}
    s_lshr_b32 s{sG}, s2, 5
    """)
A(f"""
s_lshl_b32 s{sT2}, s{sC}, 16
s_sub_u32 s{sSW}, s{sWAVE}, 4
s_cbranch_scc1 L_A0
s_load_dwordx4 s[{P_LRE}:{P_LRE+3}], s[0:1], 8
s_load_dwordx4 s[{P_LDT}:{P_LDT+3}], s[0:1], 56
s_setprio 3
v_mov_b32 v20, 0
v_mov_b32 v21, 0
s_lshl_b32 s{sT0}, s{sG}, 6
s_lshl_b32 s{sT1}, s{sSW}, 4
s_and_b32 s{sT1}, s{sT1}, 32
s_add_u32 s{sT0}, s{sT0}, s{sT1}
v_add_lshl_u32 v{vP2}, s{sT0}, v{vL31}, 1
ds_write2_b64 v0, v[20:21], v[20:21] offset0:0 offset1:1
ds_write2_b64 v0, v[20:21], v[20:21] offset0:2 offset1:3
s_mov_b32 s{R_WKV+2}, {sizes[R_WKV]}
s_mov_b32 s{R_WKV+3}, 0x20000
s_lshl_b32 s{sT1}, s{sSW}, 12
s_lshl_b32 s{sT5}, s{sG}, 13
s_and_b32 s{sT5}, s{sT5}, 0xc000
s_add_u32 s{sT5}, s{sT5}, s{sT1}
s_mul_i32 s{sT0}, s{sSW}, 4160
s_add_u32 m0, s{sT1}, {WKV}
s_bitcmp1_b32 s{sG}, 0
s_waitcnt lgkmcnt(0)
s_cselect_b32 s{R_WKV}, s{P_WV}, s{R_WKV}
s_cselect_b32 s{R_WKV+1}, s{P_WV+1}, s{R_WKV+1}
s_add_u32 s{R_XB}, s{R_XB}, s{sT2}
s_addc_u32 s{R_XB+1}, s{R_XB+1}, 0
""")
for i in range(4):
    A(f"buffer_load_dwordx4 v{vL16x}, {srd(R_WKV)}, s{sT1} offen offset:{i*1024} lds")
for i in range(4):
    A(f"s_add_u32 m0, s{sT0}, {KVX + 16*i}")
    A(f"s_load_dword s{sEP}, s[{R_WS}:{R_WS+1}], 0" if i == 0 else "s_nop 0")
    A(f"buffer_load_dwordx4 v{vL16x}, {srd(R_XB)}, s{sT5} offen offset:{i*1024} lds")
A(f"""
s_barrier
global_load_ushort v{PRM}, v{vP2}, s[{P_LRE}:{P_LRE+1}]
global_load_ushort v{PRM+1}, v{vP2}, s[{P_LIM}:{P_LIM+1}]
global_load_ushort v{PRM+2}, v{vP2}, s[{P_LDT}:{P_LDT+1}]
global_load_ushort v{PRM+3}, v{vP2}, s[{P_DSK}:{P_DSK+1}]
s_cmp_eq_u32 s{sSW}, 1
s_cbranch_scc1 L_qx
s_cmp_eq_u32 s{sSW}, 2
s_cbranch_scc1 L_qw
s_branch L_S1
L_A0:
""")
def common_scalars():
    kload([(R_OUT, 112)])
    srd_words([R_WS, R_OUT])
    A(f"""
    s_and_b32 s{sTW}, s{sWAVE}, 1
    s_bfe_u32 s{sCW}, s{sWAVE}, 0x10001
    s_lshl_b32 s{sID}, s{sC}, 3
    s_add_u32 s{sID}, s{sID}, s{sG}
    s_mov_b32 s{sDONE}, 0
    s_lshl_b32 s{sOB}, s{sC}, 1
    s_add_u32 s{sOB}, s{sOB}, s{sTW}
    s_lshl_b32 s{sOB}, s{sOB}, 15
    s_add_u32 s{sOB}, s{sOB}, {OB}
    """)
def common_after_wait(tag=True):
    A(f"""
    s_lshl_b32 s{sT0}, s{sC}, 18
    s_add_u32 s{R_OUT}, s{R_OUT}, s{sT0}
    s_addc_u32 s{R_OUT+1}, s{R_OUT+1}, 0
    """)
    if tag: A(f"""
    s_mul_i32 s{sTAG}, s{sEP}, 0x9E3779B1
    s_add_u32 s{sTAG}, s{sTAG}, 0x7F4A7C15
    """)
vWQo, vXQo = 119, 117
A(f"""
v_lshrrev_b32 v6, 4, v{vLANE}
v_and_b32 v7, 15, v{vLANE}
v_lshlrev_b32 v7, 4, v7
v_lshl_add_u32 v{vXQo}, v6, 14, v7
s_mul_i32 s{sT6}, s{sWAVE}, 4160
s_lshl_b32 s{sT7}, s{sWAVE}, 12
""")
srd_words([R_WQ])
wq_voffset(vWQo, 6, 7, 10)
A(f"""
s_lshl_b32 s{sT0}, s{sG}, 7
s_waitcnt lgkmcnt(0)
s_add_u32 s{R_XB}, s{R_XB}, s{sT2}
s_addc_u32 s{R_XB+1}, s{R_XB+1}, 0
s_add_u32 s{R_WQ}, s{R_WQ}, s{sT0}
s_addc_u32 s{R_WQ+1}, s{R_WQ+1}, 0
s_load_dword s{sEP}, s[{R_WS}:{R_WS+1}], 0
s_barrier
""")
stamp(1, HST)
def x_dma(s):
    A(f"""
    s_add_u32 s{sT3}, s{sROT}, {s}
    s_and_b32 s{sT3}, s{sT3}, 3
    s_lshl_b32 s{sT4}, s{sT3}, 8
    s_add_u32 s{sT4}, s{sT4}, s{sT7}
    """)
    for i in range(4):
        A(f"""
        s_add_u32 m0, s{sT6}, {XQ + s*16640 + i*16}
        s_nop 0
        buffer_load_dwordx4 v{vXQo}, {srd(R_XB)}, s{sT4} offen offset:{i*1024} lds
        """)
def wq_dma(s):
    A(f"""
    s_lshl_b32 s{sT3}, s{sT3}, 4
    s_add_u32 s{sT3}, s{sT3}, s{sWAVE}
    s_lshl_b32 s{sT3}, s{sT3}, 13
    s_lshl_b32 s{sT2}, s{sWAVE}, 10
    """)
    for i in range(4):
        A(f"""
        s_add_u32 m0, s{sT2}, {WQ + s*16384 + i*4096}
        s_add_u32 s{sT1}, s{sT3}, {i*32768}
        buffer_load_dwordx4 v{vWQo}, {srd(R_WQ)}, s{sT1} offen lds
        """)
for s in range(OPT["qpre"]):
    x_dma(s); wq_dma(s)
stamp(2 if HST else 1)
A("s_branch L_A1")
A.label("L_S1")
SSEC[0] = True
A(f"""
v_mov_b32 v{vONE}, 1
s_lshl_b32 s{sID}, s{sC}, 3
s_add_u32 s{sID}, s{sID}, s{sG}
s_mov_b32 s{R_WS+2}, {WS_SIZE}
s_mov_b32 s{R_WS+3}, 0x20000
v_lshrrev_b32 v20, 4, v{vLANE}
v_and_b32 v21, 15, v{vLANE}
v_mul_u32_u24 v9, 1040, v21
v_lshl_add_u32 v9, v20, 4, v9
v_add_u32 v9, {KVX}, v9
v_lshrrev_b32 v10, 2, v21
v_lshl_add_u32 v10, v20, 3, v10
v_lshlrev_b32 v10, 5, v10
v_and_b32 v11, 3, v21
v_lshl_add_u32 v10, v11, 3, v10
v_add_u32 v10, {WKV}, v10
s_lshl_b32 s{sT6}, s{sC}, 1
s_lshr_b32 s{sT1}, s{sG}, 2
s_add_u32 s{sT6}, s{sT6}, s{sT1}
s_lshl_b32 s{sT6}, s{sT6}, 12
s_add_u32 s{sT6}, s{sT6}, {KVT}
s_bfe_u32 s{sT7}, s{sG}, 0x10001
s_waitcnt lgkmcnt(0)
s_mul_i32 s{sTAG}, s{sEP}, 0x9E3779B1
s_add_u32 s{sTAG}, s{sTAG}, 0x7F4A7C15
s_waitcnt vmcnt(4)
""")
stamp(6, HST)
cnt_add(vCNT, vONE)
A(f"""
s_cmp_lg_u32 s{sSW}, 0
s_cbranch_scc1 L_S2a
""")
cnt_wait(vCNT, vTMP, 4)
stamp(1)
def kv_rd(k):
    f = 32 + 8*(k % 6)
    A(f"ds_read_b64_tr_b16 v[{f}:{f+1}], v10 offset:{k*1024}")
    A(f"ds_read_b64_tr_b16 v[{f+2}:{f+3}], v10 offset:{k*1024+128}")
    A(f"ds_read_b128 v[{f+4}:{f+7}], v9 offset:{k*64}")
for k in range(4): kv_rd(k)
A(f"s_bitcmp1_b32 s{sG}, 0")
A("s_cbranch_scc1 L_kv_v")
def kv_chain(isv_):
    for k in range(16):
        f = 32 + 8*(k % 6)
        if k + 4 < 16: kv_rd(k + 4)
        issued = min(16, k + 5)
        A(f"s_waitcnt lgkmcnt({3*(issued - k - 1)})")
        c = "0" if k == 0 else "v[28:31]"
        a, b = (f"v[{f}:{f+3}]", f"v[{f+4}:{f+7}]") if not isv_ else (f"v[{f+4}:{f+7}]", f"v[{f}:{f+3}]")
        A(f"v_mfma_f32_16x16x32_bf16 v[28:31], {a}, {b}, {c}")
kv_chain(False)
cnt_add(vCNT, vONE)
A(f"s_mov_b32 s{sT0}, {f2u(0.25 * math.log2(math.e))}")
A(f"""
s_lshl_b32 s{sT7}, s{sT7}, 8
s_add_u32 s{sT6}, s{sT6}, s{sT7}
v_and_b32 v22, 1, v20
v_lshlrev_b32 v22, 9, v22
v_lshl_add_u32 v22, v21, 4, v22
v_lshrrev_b32 v23, 1, v20
v_lshl_add_u32 v22, v23, 3, v22
v_mul_f32 v28, s{sT0}, v28
v_mul_f32 v29, s{sT0}, v29
v_mul_f32 v30, s{sT0}, v30
v_mul_f32 v31, s{sT0}, v31
v_cvt_pk_bf16_f32 v24, v28, v29
v_cvt_pk_bf16_f32 v25, v30, v31
buffer_store_dwordx2 v[24:25], v22, {srd(R_WS)}, s{sT6} offen sc1
v_mul_f32 v16, v28, v28
v_fmac_f32 v16, v29, v29
v_fmac_f32 v16, v30, v30
v_fmac_f32 v16, v31, v31
v_mov_b32 v17, v16
s_nop 1
v_permlane16_swap_b32 v17, v16
v_add_f32 v16, v16, v17
v_mov_b32 v17, v16
s_nop 1
v_permlane32_swap_b32 v17, v16
v_add_f32 v17, v16, v17
""")
wave_max(17, 18)
A("s_branch L_kv_pub")
A.label("L_kv_v")
kv_chain(True)
cnt_add(vCNT, vONE)
A(f"""
s_mul_i32 s{sT7}, s{sT7}, 544
s_add_u32 s{sT6}, s{sT6}, s{sT7}
s_add_u32 s{sT6}, s{sT6}, 1024
v_lshrrev_b32 v22, 1, v20
v_mul_u32_u24 v22, 272, v22
v_and_b32 v23, 1, v20
v_lshl_add_u32 v22, v23, 3, v22
v_lshl_add_u32 v23, v21, 4, v22
v_cvt_pk_bf16_f32 v24, v28, v29
v_cvt_pk_bf16_f32 v25, v30, v31
buffer_store_dwordx2 v[24:25], v23, {srd(R_WS)}, s{sT6} offen sc1
v_mov_b32 v26, 0x3f803f80
v_mov_b32 v27, 0x3f803f80
s_mov_b32 exec_lo, 0x00010001
s_mov_b32 exec_hi, 0x00010001
buffer_store_dwordx2 v[26:27], v22, {srd(R_WS)}, s{sT6} offen offset:256 sc1
s_mov_b64 exec, -1
v_mov_b32 v17, 0
""")
A.label("L_kv_pub")
A(f"""
s_lshl_b32 s{sT0}, s{sID}, 7
s_add_u32 s{sT0}, s{sT0}, {FL1}
v_mov_b32 v16, s{sTAG}
v_mov_b32 v9, 0
s_waitcnt vmcnt(0)
s_mov_b64 exec, 1
buffer_store_dwordx2 v[16:17], v9, {srd(R_WS)}, s{sT0} offen sc1
ds_add_u32 v{vCNT}, v{vONE}
s_mov_b64 exec, -1
""")
stamp(2)
A("s_branch L_S2")
def q_head():
    A(f"""
    v_mov_b32 v{vONE}, 1
    s_lshl_b32 s{sID}, s{sC}, 3
    s_add_u32 s{sID}, s{sID}, s{sG}
    s_waitcnt lgkmcnt(0)
    s_mul_i32 s{sTAG}, s{sEP}, 0x9E3779B1
    s_add_u32 s{sTAG}, s{sTAG}, 0x7F4A7C15
    s_waitcnt vmcnt(4)
    """)
    cnt_add(vCNT, vONE)
    prio(0)
def q_sig():
    A("s_waitcnt vmcnt(16)"); cnt_add(vCNT, vONE, 24)
    A("s_waitcnt vmcnt(0)"); cnt_add(vCNT, vONE, 28)
    prio(3)
    A("s_branch L_S2")
A.label("L_qx")
A(f"""
v_lshrrev_b32 v20, 4, v{vLANE}
v_and_b32 v21, 15, v{vLANE}
v_lshlrev_b32 v22, 4, v21
v_lshl_add_u32 v22, v20, 14, v22
""")
q_head()
for s_ in (2, 3):
    if s_ == 3: cnt_wait(vCNT, vTMP, 5)
    A(f"""
    s_add_u32 s{sT3}, s{sROT}, {s_}
    s_and_b32 s{sT3}, s{sT3}, 3
    s_lshl_b32 s{sT3}, s{sT3}, 8
    """)
    for i in range(16):
        A(f"s_mov_b32 m0, {XQ + s_*16640 + i*1040 - (i & 3)*1024}")
        A(f"s_add_u32 s{sT3}, s{sT3}, 4096" if (i & 3 == 0 and i) else "s_nop 0")
        A(f"buffer_load_dwordx4 v22, {srd(R_XB)}, s{sT3} offen offset:{(i & 3)*1024} lds")
q_sig()
A.label("L_qw")
srd_words([R_WQ])
wq_voffset(22, 23, 24, 25)
A(f"""
s_lshl_b32 s{sT0}, s{sG}, 7
s_add_u32 s{R_WQ}, s{R_WQ}, s{sT0}
s_addc_u32 s{R_WQ+1}, s{R_WQ+1}, 0
""")
q_head()
for s_ in (2, 3):
    if s_ == 3: cnt_wait(vCNT, vTMP, 5)
    A(f"""
    s_add_u32 s{sT3}, s{sROT}, {s_}
    s_and_b32 s{sT3}, s{sT3}, 3
    s_lshl_b32 s{sT3}, s{sT3}, 17
    """)
    for i in range(16):
        A(f"s_mov_b32 m0, {WQ + s_*16384 + i*1024}")
        A(f"s_add_u32 s{sT3}, s{sT3}, 8192" if i else "s_nop 0")
        A(f"buffer_load_dwordx4 v22, {srd(R_WQ)}, s{sT3} offen lds")
q_sig()
SSEC[0] = False
A.label("L_A1")
for i in range(4): A(f"v_mov_b32 v{vZ+i}, 0")
vXa, vWa, vFl, vQw, vQr, vAone = 8, 9, 10, 14, 15, vIDX
common_scalars()
for ct in range(8):
    A(f"v_mfma_f32_32x32x16_bf16 a[{16*ct}:{16*ct+15}], v[{vZ}:{vZ+3}], v[{vZ}:{vZ+3}], 0")
A(f"""
v_and_b32 v6, 15, v{vL31}
v_mul_u32_u24 v{vXa}, 1040, v6
v_lshl_add_u32 v{vXa}, v{vH}, 4, v{vXa}
v_lshrrev_b32 v6, 4, v{vL31}
v_lshl_add_u32 v{vXa}, v6, 8, v{vXa}
s_lshl_b32 s{sT0}, s{sTW}, 9
v_add_u32 v{vXa}, s{sT0}, v{vXa}
v_bfe_u32 v6, v{vLANE}, 2, 2
v_lshl_add_u32 v6, v{vH}, 3, v6
v_bfe_u32 v7, v{vLANE}, 4, 1
v_and_b32 v11, 3, v{vLANE}
v_lshlrev_b32 v11, 3, v11
v_lshl_add_u32 v11, v7, 5, v11
s_lshl_b32 s{sT0}, s{sCW}, 6
v_add_u32 v11, s{sT0}, v11
v_bfe_u32 v7, v{vLANE}, 3, 1
v_lshlrev_b32 v7, 6, v7
v_xor_b32 v11, v11, v7
v_lshl_add_u32 v{vWa}, v6, 7, v11
v_add_u32 v{vWa}, {WQ}, v{vWa}
s_lshl_b32 s{sT0}, s{sWAVE}, 13
s_add_u32 s{sT0}, s{sT0}, {FL1}
v_lshlrev_b32 v{vFl}, 7, v{vLANE}
v_add_u32 v{vFl}, s{sT0}, v{vFl}
s_lshl_b32 s{sT0}, s{sWAVE}, 16
s_add_u32 s{sT1}, s{sT0}, {KVT}
v_add_u32 v{vKt[0]}, s{sT1}, v{vL16x}
s_add_u32 s{sT1}, s{sT1}, 1024
v_lshlrev_b32 v13, 4, v{vL31}
v_mul_u32_u24 v14, 272, v{vH}
v_add3_u32 v13, v13, v14, s{sT1}
v_cmp_lt_u32 vcc, 16, v{vL31}
v_mov_b32 v14, 0x7ff00000
v_mov_b32 v{vIDX}, 0xdddddddd
v_cndmask_b32 v{vVt[0]}, v13, v14, vcc
s_lshl_b32 s{sKOFF}, s{sROT}, 14
s_lshl_b32 s{sT0}, s{sCW}, 2
s_add_u32 s{sT0}, s{sT0}, s{sTW}
s_lshl_b32 s{sT0}, s{sT0}, 10
s_add_u32 s{sT0}, s{sT0}, {QX}
v_add_u32 v{vQw}, s{sT0}, v{vL16x}
v_add_u32 v{vQr}, {QX}, v{vL16x}
s_waitcnt lgkmcnt(0)
""")
common_after_wait()
QP = OPT["qpre"]
sKVOK = sATG
vFG = 12
def ld_k(b, t, so=sKOFF):
    A(f"buffer_load_dwordx4 v[{KV[b]}:{KV[b]+3}], v{vKt[t]}, {srd(R_WS)}, s{so} offen sc1")
def ld_v(b, j, t, so=sKOFF):
    A(f"buffer_load_dwordx4 v[{KV[b]+4+4*j}:{KV[b]+7+4*j}], v{vVt[t]}, {srd(R_WS)}, s{so} offen offset:{544*j} sc1")
def kv_first():
    for b in range(OPT["kv0"]):
        A(f"s_add_u32 s{sT1}, s{sKOFF}, {b*KVS}")
        ld_k(b, 0, sT1); ld_v(b, 0, 0, sT1); ld_v(b, 1, 0, sT1)
    A(f"ds_max_f32 v{vCNT}, v{vFG+1} offset:{KM - CNT}")
    if OPT["kv0"] == 4 or OPT["g0"]: cnt_add(vCNT, vAone, 12)
def kv_try(tag):
    A(f"""
    v_cmp_ne_u32 vcc, s{sTAG}, v{vFG}
    s_cbranch_vccnz L_kvlate{tag}
    s_mov_b32 s{sKVOK}, 1
    """)
    kv_first()
    A(f"s_branch L_kvq{tag}")
    A.label(f"L_kvlate{tag}")
    flag_ld()
    A.label(f"L_kvq{tag}")
def flag_ld(): A(f"buffer_load_dwordx2 v[{vFG}:{vFG+1}], v{vFl}, {srd(R_WS)}, 0 offen sc1")
def q_rd(k):
    s_, kk = divmod(k, 8)
    f = 32 + 8*(k % 6)
    A(f"ds_read_b64_tr_b16 v[{f}:{f+1}], v{vWa} offset:{s_*16384 + kk*2048}")
    A(f"ds_read_b64_tr_b16 v[{f+2}:{f+3}], v{vWa} offset:{s_*16384 + kk*2048 + 512}")
    A(f"ds_read_b128 v[{f+4}:{f+7}], v{vXa} offset:{XQ + s_*16640 + kk*32}")
A(f"s_mov_b32 s{sKVOK}, 0")
A("s_waitcnt vmcnt(8)")
stamp(3, HST)
cnt_add(vCNT, vAone, 4)
cnt_wait(vCNT, 11, 4, 4)
for k in range(4): q_rd(k)
done = 0
for k in range(32):
    if k == OPT["q1a"]:
        A("s_waitcnt vmcnt(0)")
        cnt_add(vCNT, vAone, 4)
    if k == OPT["p1k"]: flag_ld()
    if k + 4 < 32:
        if (k + 4) % 8 == 0:
            s_ = (k + 4) // 8
            if s_ == 1: cnt_wait(vCNT, 11, 8, 4)
            else: cnt_wait(vCNT, 11, 2, 24 + 4*(s_ - 2))
            stamp(3 + s_, HST)
            done = k + 4
        q_rd(k + 4)
    if k >= done:
        A(f"s_waitcnt lgkmcnt({3*(min(32, k + 5) - k - 1)})")
    c = "0" if k == 0 else f"v[{S0}:{S0+15}]"
    f = 32 + 8*(k % 6)
    A(f"v_mfma_f32_32x32x16_bf16 v[{S0}:{S0+15}], v[{f}:{f+3}], v[{f+4}:{f+7}], {c}")
A(f"""
s_mul_i32 s{sT6}, s{sWAVE}, {6*CB_T}
s_add_u32 s{sT6}, s{sT6}, {CB}
v_add_u32 v11, s{sT6}, v{vL16x}
s_mov_b32 s{sLOOP}, 4
""")
A.nop(8)
for i in range(8):
    A(f"v_cvt_pk_bf16_f32 v{32+i}, v{S0+2*i}, v{S0+2*i+1}")
    if i == 3: A(f"ds_write_b128 v{vQw}, v[32:35]")
A(f"""
ds_write_b128 v{vQw}, v[36:39] offset:2048
s_waitcnt lgkmcnt(0)
""")
cnt_add(vCNT, vAone, 4)
A("s_waitcnt vmcnt(0)")
kv_try("b")
for hd in range(2):
    A(f"v_mul_f32 v{32+hd}, v{S0+8*hd}, v{S0+8*hd}")
    for i in range(1, 8):
        A(f"v_fmac_f32 v{32+hd}, v{S0+8*hd+i}, v{S0+8*hd+i}")
A(f"""
v_mov_b32 v34, v32
v_mov_b32 v35, v33
v_add_u32 v{vKt[1]}, {KVS}, v{vKt[0]}
v_add_u32 v{vKt[2]}, {2*KVS}, v{vKt[0]}
v_permlane32_swap_b32 v34, v32
v_permlane32_swap_b32 v35, v33
v_add_f32 v32, v32, v34
v_add_f32 v33, v33, v35
v_max_f32 v32, v32, v33
v_add_u32 v{vVt[2]}, {2*KVS}, v{vVt[0]}
ds_max_f32 v{vCNT}, v32 offset:{QM - CNT}
""")
cnt_wait(vCNT, 36, 12, 4)
stamp(7 if HST else 2)
for pr in range(4):
    A(f"s_add_u32 s{sT0}, s{sWAVE}, {pr + 1}")
    A(f"s_and_b32 s{sT0}, s{sT0}, 3")
    A(f"s_lshl_b32 s{sT0}, s{sT0}, 11")
    A(f"v_add_u32 v{37}, s{sT0}, v{vQr}")
    A(f"ds_read_b128 v[{QF+8*pr}:{QF+8*pr+3}], v37")
    A(f"ds_read_b128 v[{QF+8*pr+4}:{QF+8*pr+7}], v37 offset:1024")
A(f"""
s_cmp_lg_u32 s{sKVOK}, 0
s_cbranch_scc1 L_kvgo
s_waitcnt vmcnt(0)
v_cmp_ne_u32 vcc, s{sTAG}, v{vFG}
s_cbranch_vccz L_kvok
""")
poll_flags(vFl, vFG, 2, sleep=0)
A.label("L_kvok")
kv_first()
A.label("L_kvgo")
if OPT["pad"] and OPT["padat"] == 1: padto()
stamp(3, not HST)
A(f"""
v_add_u32 v{vKt[3]}, {3*KVS}, v{vKt[0]}
v_add_u32 v{vVt[3]}, {3*KVS}, v{vVt[0]}
s_waitcnt vmcnt({3*OPT['kv0'] - 3}) lgkmcnt(0)
v_mfma_f32_32x32x16_bf16 v[{S0}:{S0+15}], v[{KV[0]}:{KV[0]+3}], v[{QF}:{QF+3}], 0
v_add_u32 v{vVt[1]}, {KVS}, v{vVt[0]}
v_lshlrev_b32 v13, 2, v{vLANE}
v_add_u32 v13, s{sT6}, v13
""")
A.nop(9)
SB = [S0, S1]
LASTSYNC = 8
CBASE = 6
def part_write(ct):
    A(f"ds_write_b128 v11, a[{16*ct}:{16*ct+3}] offset:{ct*CB_T}")
    A(f"ds_write_b128 v11, a[{16*ct+4}:{16*ct+7}] offset:{ct*CB_T + 1024}")
    A(f"ds_write_b32 v13, a{16*ct+8} offset:{ct*CB_T + 2048}")
def period(kb, ct, mode):
    cur = SB[ct & 1]; oth = SB[(ct + 1) & 1]
    pct = (ct - 1) % 8
    pkb = kb if ct > 0 else (kb - 1) % 4
    nct = (ct + 1) % 8
    nkb = kb if ct < 7 else (kb + 1) % 4
    ld = ct == 0 and mode == "loop" and not OPT["noKV"]
    early = mode == "last" and 1 <= ct <= 6
    extra = {}
    if mode == "first" and OPT["kv0"] < 4:
        lds_ = []
        for b in range(OPT["kv0"], 4):
            lds_ += [lambda b=b: ld_k(b, b), lambda b=b: ld_v(b, 0, b), lambda b=b: ld_v(b, 1, b)]
        for n, f_ in enumerate(lds_): extra[[1, 2, 3, 6, 7, 11, 12, 13, 14][n]] = f_
    def e(i):
        A(f"v_exp_f32 v{cur+i}, v{cur+i}")
        if i in extra: extra[i]()
        if i == 15 and extra and not OPT["g0"]: cnt_add(vCNT, vAone, 12)
    e(0); e(1)
    if mode != "first":
        A(f"v_smfmac_f32_32x32x32_bf16 a[{16*pct}:{16*pct+15}], v[{KV[pkb]+8}:{KV[pkb]+11}], v[{oth+8}:{oth+15}], v{vIDX}")
    e(2)
    if (mode, ct) == ("last", 0): A(f"ds_read_b32 v12, v{vCNT} offset:8")
    if (mode, ct) == ("last", 7):
        A("s_waitcnt lgkmcnt(0)")
        cnt_add(vCNT, vIDX, 4)
    e(3)
    if ct == 7 and mode == "loop": A(f"s_waitcnt vmcnt(6)")
    e(4)
    if (mode, ct) != ("last", 7):
        A(f"v_mfma_f32_32x32x16_bf16 v[{oth}:{oth+15}], v[{KV[nkb]}:{KV[nkb]+3}], v[{QF+4*nct}:{QF+4*nct+3}], 0")
    for i in range(5, 10): e(i)
    A(f"v_smfmac_f32_32x32x32_bf16 a[{16*ct}:{16*ct+15}], v[{KV[kb]+4}:{KV[kb]+7}], v[{cur}:{cur+7}], v{vIDX}")
    e(10); e(11)
    e(12)
    if ld: ld_k(pkb, pkb)
    if early: A(f"ds_write_b128 v11, a[{16*(ct-1)}:{16*(ct-1)+3}] offset:{(ct-1)*CB_T}")
    e(13)
    if ld: ld_v(pkb, 0, pkb)
    if (kb, ct, mode) == (0, 1, "loop"): A(f"s_add_u32 s{sKOFF}, s{sKOFF}, {4*KVS}")
    if (kb, ct, mode) == (2, 7, "loop"): A(f"s_sub_u32 s{sLOOP}, s{sLOOP}, 1")
    if early: A(f"ds_write_b128 v11, a[{16*(ct-1)+4}:{16*(ct-1)+7}] offset:{(ct-1)*CB_T + 1024}")
    e(14)
    if ld: ld_v(pkb, 1, pkb)
    if (kb, ct, mode) == (0, 1, "loop"): A(f"s_and_b32 s{sKOFF}, s{sKOFF}, 0xffff")
    if (kb, ct, mode) == (2, 7, "loop"): A(f"s_cmp_eq_u32 s{sLOOP}, 0")
    if early: A(f"ds_write_b32 v13, a{16*(ct-1)+8} offset:{(ct-1)*CB_T + 2048}")
    e(15)
    if mode == "last" and ct == 8 - OPT["trig"] - 1: cnt_add(vCNT, vIDX, 12)
    if (mode, ct) == ("last", 0):
        A(f"""
        s_waitcnt lgkmcnt(0)
        v_readfirstlane_b32 s{sT0}, v12
        s_cmp_ge_u32 s{sT0}, {4 if not (OPT["noS"] or OPT["nochk"]) else 0}
        s_cbranch_scc1 L_sfree
        """)
        cnt_wait(vCNT, 12, 4, 8, sleep=2)
        A.label("L_sfree")
if OPT["cyc"]: A(f"s_memtime s[{sST+10}:{sST+11}]")
period(0, 0, "first")
A("s_branch L_attn1")
A(".p2align 6")
A.label("L_attn")
loop_start = len(A.lines)
for kb in range(4):
    for ct in range(8):
        if (kb, ct) == (0, 1): A.label("L_attn1")
        period(kb, ct, "loop")
    if kb == 2: A("s_cbranch_scc1 L_last")
loop_end = len(A.lines)
A("s_branch L_attn")
A.label("L_last")
for ct in range(8):
    period(3, ct, "last")
A(f"""
s_nop 1
v_smfmac_f32_32x32x32_bf16 a[112:127], v[{KV[3]+8}:{KV[3]+11}], v[{S1+8}:{S1+15}], v{vIDX}
""")
stamp(4, not HST)
if OPT["cyc"]: A(f"s_memtime s[{sST+12}:{sST+13}]")
if OPT["pad"] and OPT["padat"] == 2: padto()
A(f"s_mov_b32 s{sATG}, 16")
A.label("L_comb")
for k in range(3):
    A(f"""
    s_add_u32 s{sT0}, s{sWAVE}, {k + 1}
    s_and_b32 s{sT0}, s{sT0}, 3
    s_mul_i32 s{sT0}, s{sT0}, {6*CB_T}
    s_add_u32 s{sT0}, s{sT0}, {CB + 2*(2 - k)*CB_T}
    v_add_u32 v{8+k}, s{sT0}, v{vL16x}
    v_lshl_add_u32 v{[12, 14, 15][k]}, v{vL31}, 2, s{sT0}
    """)
A(f"""
s_lshl_b32 s{sT1}, s{sG}, 2
s_add_u32 s{sT1}, s{sT1}, s{sWAVE}
s_lshl_b32 s{sT1}, s{sT1}, 10
s_lshl_b32 s{sT2}, s{sC}, 16
s_add_u32 s{sT1}, s{sT1}, s{sT2}
s_add_u32 s{sT1}, s{sT1}, {OB}
s_add_u32 s{sT2}, s{sT1}, 32768
s_waitcnt vmcnt(0)
""")
cnt_wait(vCNT, 16, f"s{sATG}", 4)
def astamp(i):
    if OPT["cyc"] or HST or not (OPT["stamps"] or OPT["enc"]): return
    stamp(i)
astamp(5)
PD = [[16, 24, 32, 40], [80, 88, 96, 104]]
PL = [[112, 113, 114, 115], [116, 117, 118, 119]]
A(f"ds_read_b64 v[120:121], v0 offset:{QM - CNT}")
for u in range(2):
    for k in range(3):
        A(f"ds_read_b32 v{PL[u][k+1]}, v{[12, 14, 15][k]} offset:{u*CB_T + 2048}")
    for k in range(3):
        A(f"ds_read_b128 v[{PD[u][k+1]}:{PD[u][k+1]+3}], v{8+k} offset:{u*CB_T}")
        A(f"ds_read_b128 v[{PD[u][k+1]+4}:{PD[u][k+1]+7}], v{8+k} offset:{u*CB_T + 1024}")
    if u == 0: A("s_waitcnt lgkmcnt(6)")
for u in range(2):
    A(f"v_accvgpr_read_b32 v{PL[u][0]}, a{16*(6+u)+8}")
    A(f"v_accvgpr_read_b32 v{122+u}, a{16*(6+u)+8}")
A(f"""
v_mul_f32 v120, v120, v121
v_add_f32 v113, v113, v114
v_permlane32_swap_b32 v112, v122
v_permlane32_swap_b32 v116, v123
v_cmp_nge_f32 vcc, {f2u(-1.0 if OPT['force_slow'] else 1000.0)}, v120
v_add_f32 v112, v112, v115
v_add_f32 v112, v112, v113
v_rcp_f32 v112, v112
s_cbranch_vccnz L_slow
L_fast:
""")
def comb(u, soff):
    d = PD[u]
    for i in range(8): A(f"v_accvgpr_read_b32 v{d[0]+i}, a{16*(6+u)+i}")
    if u == 0: A("s_waitcnt lgkmcnt(9)")
    else:
        A(f"""
        s_waitcnt lgkmcnt(2)
        v_add_f32 v117, v117, v118
        v_add_f32 v116, v116, v119
        v_add_f32 v116, v116, v117
        v_rcp_f32 v116, v116
        """)
    for i in range(0, 8, 2): A(f"v_pk_add_f32 {p2(d[1]+i)}, {p2(d[1]+i)}, {p2(d[2]+i)}")
    if u == 1: A("s_waitcnt lgkmcnt(0)")
    for i in range(0, 8, 2): A(f"v_pk_add_f32 {p2(d[0]+i)}, {p2(d[0]+i)}, {p2(d[3]+i)}")
    for i in range(0, 8, 2): A(f"v_pk_add_f32 {p2(d[0]+i)}, {p2(d[0]+i)}, {p2(d[1]+i)}")
    for i in range(0, 8, 2):
        A(f"v_pk_mul_f32 {p2(d[0]+i)}, {p2(d[0]+i)}, {p2(PL[u][0])} op_sel_hi:[1,0]")
    for i in range(0, 8, 2):
        A(f"v_cvt_pk_bf16_f32 v{d[1]+i//2}, v{d[0]+i}, v{d[0]+i+1}")
    A(f"buffer_store_dwordx4 v[{d[1]}:{d[1]+3}], v{vL16x}, {srd(R_WS)}, s{soff} offen sc1")
def p2(r): return f"v[{r}:{r+1}]"
comb(0, sT1); comb(1, sT2)
astamp(6)
if OPT["oack"]: A("s_waitcnt vmcnt(0)")
cnt_add(vCNT, vIDX, 12)
A(f"""
s_or_b32 s{sT0}, s2, s{sWAVE}
s_cmp_lg_u32 s{sT0}, 0
s_cbranch_scc1 L_noep
s_add_u32 s{sT0}, s{sEP}, 1
v_mov_b32 v10, s{sT0}
v_mov_b32 v11, 0
s_mov_b64 exec, 1
buffer_store_dword v10, v11, {srd(R_WS)}, 0 offen
s_mov_b64 exec, -1
L_noep:
""")
A.label("L_fin")
if OPT["enc"] or OPT["encS"]:
    A("""
    s_waitcnt vmcnt(0) lgkmcnt(0)
    s_add_u32 s94, s94, 3000
    L_enc:
    s_memrealtime s[96:97]
    s_waitcnt lgkmcnt(0)
    s_sub_u32 s96, s96, s94
    s_cmp_lt_i32 s96, 0
    s_cbranch_scc1 L_enc
    """)
if OPT["pad"] and OPT["padat"] == 0:
    A("s_waitcnt vmcnt(0)"); padto()
if OPT["stamps"]:
    A(f"""
    s_waitcnt vmcnt(0)
    s_memrealtime s[100:101]
    s_waitcnt lgkmcnt(0)
    s_lshl_b32 s{sT0}, s2, 3
    s_add_u32 s{sT0}, s{sT0}, s{sWAVE}
    s_lshl_b32 s{sT0}, s{sT0}, 6
    s_add_u32 s{sT0}, s{sT0}, {DBG + 0x800000}
    v_mov_b32 v11, 0
    """)
    for i in range(9): A(f"v_mov_b32 v{16+i}, s{sST+2*i}")
    A(f"""
    s_mov_b64 exec, 1
    buffer_store_dwordx4 v[16:19], v11, {srd(R_WS)}, s{sT0} offen
    buffer_store_dwordx4 v[20:23], v11, {srd(R_WS)}, s{sT0} offen offset:16
    buffer_store_dword v24, v11, {srd(R_WS)}, s{sT0} offen offset:32
    """)
if OPT["hdbg"]:
    A(f"""
    s_load_dwordx2 s[{sT2}:{sT3}], s[0:1], 120
    s_not_b32 s{sT0}, s{sST}
    v_mov_b32 v30, s{sT0}
    v_mov_b32 v31, 0
    s_waitcnt lgkmcnt(0)
    global_atomic_umax v31, v30, s[{sT2}:{sT3}]
    s_cmp_ge_u32 s{sWAVE}, 4
    s_cbranch_scc1 L_hdS
    """)
    for k, i in enumerate((0, 2, 3, 4, 5, 6, 8)):
        A(f"global_atomic_umax v31, v{16+i}, s[{sT2}:{sT3}] offset:{4*(1+k)}")
    A("s_branch L_end")
    A.label("L_hdS")
    for k, i in enumerate((1, 2, 3, 4, 5, 6, 7, 8)):
        if i in (1, 2):
            A(f"s_cmp_lg_u32 s{sWAVE}, 4")
            A(f"s_cbranch_scc1 L_hd{i}")
        A(f"global_atomic_umax v31, v{16+i}, s[{sT2}:{sT3}] offset:{4*(8+k)}")
        if i in (1, 2): A.label(f"L_hd{i}")
A.label("L_end")
A("s_endpgm")

A.label("L_S2a")
A("s_waitcnt vmcnt(0)")
A.label("L_S2")
SSEC[0] = True
kload([(R_XA, 0), (R_BRE, 24), (R_BIM, 32), (R_CRE, 40), (R_CIM, 48), (R_WO, 104), (R_AGG, 128)])
if OPT["pfc"]:
    A(f"""
    s_cmp_lg_u32 s{sWAVE}, 7
    s_cbranch_scc1 L_nopfcode
    s_getpc_b64 s[{sT0}:{sT1}]
    L_pc:
    s_sub_u32 s{sT0}, s{sT0}, L_pc-{NAME}_kernel
    s_subb_u32 s{sT1}, s{sT1}, 0
    s_lshl_b32 s{sLOOP}, s{sROT}, 13
    v_lshlrev_b32 v16, 7, v{vLANE}
    v_add_u32 v16, s{sLOOP}, v16
    v_min_u32 v16, L_hot_end-{NAME}_kernel-4, v16
    global_load_dword v{vDUM}, v16, s[{sT0}:{sT1}]
    L_nopfcode:
    """)
common_scalars()
srd_words([R_XA, R_BRE, R_BIM, R_CRE, R_CIM, R_WO, R_AGG])
A(f"""
s_lshl_b32 s{sT3}, s{sG}, 7
s_lshl_b32 s{sT4}, s{sG}, 16
s_waitcnt lgkmcnt(0)
s_mov_b64 s[{P_LRE}:{P_LRE+1}], s[{R_BRE}:{R_BRE+1}]
s_mov_b64 s[{P_LIM}:{P_LIM+1}], s[{R_BIM}:{R_BIM+1}]
s_mov_b64 s[{P_LDT}:{P_LDT+1}], s[{R_CRE}:{R_CRE+1}]
s_mov_b64 s[{P_DSK}:{P_DSK+1}], s[{R_CIM}:{R_CIM+1}]
s_mov_b64 s[{P_WV}:{P_WV+1}], s[{R_WO}:{R_WO+1}]
""")
for r, t in ((R_XA, sT2), (R_BRE, sT4), (R_BIM, sT4), (R_CRE, sT4), (R_CIM, sT4), (R_WO, sT3)):
    A(f"s_add_u32 s{r}, s{r}, s{t}")
    A(f"s_addc_u32 s{r+1}, s{r+1}, 0")
A(f"""
s_add_u32 s{R_AGG}, s{R_AGG}, {AGG}
s_addc_u32 s{R_AGG+1}, s{R_AGG+1}, 0
""")
common_after_wait(False)
if OPT["tlb"]:
    A(f"""
    s_cmp_lg_u32 s{sSW}, 2
    s_cbranch_scc1 L_notlb
    v_mov_b32 v16, 0
    s_lshl_b32 s{sT0}, s{sC}, 17
    s_add_u32 s{sT0}, s{sT0}, {HB}
    s_mov_b32 s{sT1}, {KVT}
    s_mov_b64 exec, 1
    """)
    for R in (R_XA, R_BRE, R_BIM, R_WO, R_CRE, R_CIM, R_OUT):
        A(f"buffer_load_dword v{vDUM}, v16, {srd(R)}, 0 offen")
    A(f"""
    buffer_load_dword v{vDUM}, v16, {srd(R_WS)}, s{sOB} offen sc1
    buffer_load_dword v{vDUM}, v16, {srd(R_WS)}, s{sT0} offen offset:2048 sc1
    s_mov_b64 exec, -1
    L_notlb:
    """)
A(f"""
s_add_u32 s{sROT}, s{sC}, s{sG}
s_and_b32 s{sROT}, s{sROT}, 3
v_lshrrev_b32 v20, 4, v{vLANE}
v_and_b32 v21, 15, v{vLANE}
v_lshlrev_b32 v22, 4, v21
v_lshl_add_u32 v{vBo}, v20, 14, v22
v_lshrrev_b32 v23, 1, v20
v_and_b32 v24, 1, v20
v_lshlrev_b32 v23, 15, v23
v_lshl_add_u32 v23, v24, 12, v23
v_add_u32 v{vXo}, v23, v22
v_lshlrev_b32 v{vPF}, 7, v21
s_lshl_b32 s{sT0}, s2, 11
v_add_u32 v{vPF}, s{sT0}, v{vPF}
""")
def g1_soff(s):
    A(f"""
    s_add_u32 s{sT5}, s{sROT}, {s}
    s_and_b32 s{sT5}, s{sT5}, 3
    s_lshl_b32 s{sT5}, s{sT5}, 8
    s_lshl_b32 s{sT3}, s{sSW}, 12
    s_add_u32 s{sT3}, s{sT3}, s{sT5}
    s_lshl_b32 s{sT4}, s{sTW}, 14
    s_add_u32 s{sT4}, s{sT4}, s{sT5}
    s_lshl_b32 s{sT5}, s{sCW}, 11
    s_add_u32 s{sT4}, s{sT4}, s{sT5}
    s_add_u32 s{sT5}, s{sT4}, 8192
    """)
def capw(c=None):
    c = OPT["cap"] if c is None else c
    if c: A(f"s_waitcnt vmcnt({c})")
def dma_piece(n):
    dma_piece_(n)
    capw(OPT["cap0"] if n < OPT["npre"] else None)
def dma_piece_(n):
    st, r = divmod(n, 12); i, m = divmod(r, 3)
    slot = SLOT[st % 3]
    if r == 0: g1_soff(st)
    if m == 0:
        A(f"s_add_u32 m0, s{sT7}, {slot + XA_O + i*1040 - (i>>1)*1024}")
        A("s_nop 0")
        A(f"buffer_load_dwordx4 v{vXo}, {srd(R_XA)}, s{sT5 if i & 1 else sT4} offen offset:{(i>>1)*1024} lds")
    else:
        A(f"s_add_u32 m0, s{sT7}, {slot + [0, BRE_O, BIM_O][m] + i*16}")
        A("s_nop 0")
        A(f"buffer_load_dwordx4 v{vBo}, {srd([0, R_BRE, R_BIM][m])}, s{sT3} offen offset:{i*1024} lds")
LOG2E = math.log2(math.e)
a0, a1, a2, a3, a4, a5 = PRM, PRM+1, PRM+2, 96, 97, 98
vLR, vLI = vL1, vL1 + 1
A(f"""
s_mov_b32 s{sT0}, {f2u(LOG2E)}
v_lshlrev_b32 v{a0}, 16, v{a0}
v_lshlrev_b32 v{a1}, 16, v{a1}
v_lshlrev_b32 v{a2}, 16, v{a2}
v_mul_f32 v{a2}, s{sT0}, v{a2}
v_exp_f32 v{a2}, v{a2}
s_nop 0
v_cvt_pk_bf16_f32 v{a2}, v{a2}, v{a2}
v_and_b32 v{a2}, 0xffff0000, v{a2}
v_mul_f32 v{a3}, v{a2}, v{a0}
v_mul_f32 v{a4}, v{a2}, v{a1}
v_mul_f32 v{a3}, s{sT0}, v{a3}
v_exp_f32 v{a3}, v{a3}
v_mul_f32 v{a4}, 0.15915494, v{a4}
v_fract_f32 v{a4}, v{a4}
v_cos_f32 v{vLR}, v{a4}
v_sin_f32 v{vLI}, v{a4}
s_nop 0
v_mul_f32 v{vLR}, v{a3}, v{vLR}
v_mul_f32 v{vLI}, v{a3}, v{vLI}
v_mul_f32 v{a2}, v{a0}, v{a0}
v_fmac_f32 v{a2}, v{a1}, v{a1}
v_rcp_f32 v{a2}, v{a2}
v_add_f32 v{a3}, -1.0, v{vLR}
v_mul_f32 v{a4}, v{a3}, v{a0}
v_fmac_f32 v{a4}, v{vLI}, v{a1}
v_mul_f32 v{a5}, v{vLI}, v{a0}
v_fma_f32 v{a5}, -v{a3}, v{a1}, v{a5}
v_add_f32 v{a2}, v{a2}, v{a2}
v_mul_f32 v{vCF}, v{a4}, v{a2}
v_mul_f32 v{vCF+1}, v{a5}, v{a2}
""")
def csq(d, s_):
    A(f"v_mul_f32 v{a0}, v{s_+1}, v{s_+1}")
    A(f"v_mul_f32 v{a1}, v{s_}, v{s_+1}")
    A(f"v_fma_f32 v{d}, v{s_}, v{s_}, -v{a0}")
    A(f"v_add_f32 v{d+1}, v{a1}, v{a1}")
csq(vL8, vL1); csq(vL8, vL8); csq(vL8, vL8)
csq(vL16, vL8)
csq(vL64, vL16); csq(vL64, vL64)
csq(vL512, vL64); csq(vL512, vL512); csq(vL512, vL512)
vD = PRM + 3
A(f"""
v_and_b32 v20, 1, v{vL31}
v_lshlrev_b32 v20, 4, v20
v_lshlrev_b32 v{vD}, v20, v{vD}
v_bfe_u32 v20, v{vL31}, 3, 1
v_cmp_eq_u32 vcc, v20, v{vH}
v_bfe_u32 v21, v{vL31}, 1, 2
v_lshrrev_b32 v22, 4, v{vL31}
v_cndmask_b32 v{vD}, 0, v{vD}, vcc
v_lshl_add_u32 v21, v22, 2, v21
""")
for i in range(8):
    A(f"v_cmp_eq_u32 vcc, {i}, v21")
    A("s_nop 1")
    A(f"v_cndmask_b32 v{DG+i}, 0, v{vD}, vcc")
A(f"""
v_and_b32 v20, 15, v{vL31}
v_mul_u32_u24 v20, 1040, v20
v_lshl_add_u32 v20, v{vH}, 4, v20
v_lshrrev_b32 v21, 4, v{vL31}
v_lshl_add_u32 v20, v21, 8, v20
s_lshl_b32 s{sT0}, s{sTW}, 9
v_add_u32 v{vAa[0]}, s{sT0}, v20
v_add_u32 v{vAa[1]}, {SLOT[1]}, v{vAa[0]}
s_lshl_b32 s{sT0}, s{sCW}, 9
s_add_u32 s{sT0}, s{sT0}, {BRE_O}
v_add_u32 v{vBa[0]}, s{sT0}, v20
v_add_u32 v{vBa[1]}, {SLOT[1]}, v{vBa[0]}
v_bfe_u32 v20, v{vL31}, 2, 1
v_lshlrev_b32 v20, 3, v20
v_bfe_u32 v21, v{vL31}, 4, 1
v_lshl_add_u32 v20, v21, 2, v20
v_and_b32 v21, 3, v{vL31}
v_add_u32 v20, v20, v21
v_mul_u32_u24 v20, 1040, v20
v_bfe_u32 v21, v{vL31}, 3, 1
v_lshl_add_u32 v20, v21, 8, v20
v_lshl_add_u32 v20, v{vH}, 4, v20
s_lshl_b32 s{sT0}, s{sTW}, 9
s_and_b32 s{sT1}, s{sG}, 1
s_lshl_b32 s{sT1}, s{sT1}, 7
s_add_u32 s{sT0}, s{sT0}, s{sT1}
s_lshl_b32 s{sT1}, s{sCW}, 6
s_add_u32 s{sT0}, s{sT0}, s{sT1}
s_lshr_b32 s{sLOOP}, s{sG}, 1
s_sub_u32 s{sLOOP}, s{sLOOP}, s{sROT}
s_and_b32 s{sLOOP}, s{sLOOP}, 3
s_mul_i32 s{sT1}, s{sLOOP}, {SLOT[1]}
s_cmp_eq_u32 s{sLOOP}, 3
s_cselect_b32 s{sT1}, 0, s{sT1}
s_add_u32 s{sT0}, s{sT0}, s{sT1}
v_add_u32 v{vDa}, s{sT0}, v20
s_mul_i32 s{sT7}, s{sSW}, {4*1040}
v_add_u32 v{vAa[2]}, {SLOT[2]}, v{vAa[0]}
v_add_u32 v{vBa[2]}, {SLOT[2]}, v{vBa[0]}
""")
cnt_wait(vCNT, vTMP, 6, 0, sleep=1)
cnt_wait(vCNT, vTMP, 4, 12, sleep=1)
if OPT["stgl"] > 2: cnt_wait(vCNT, vTMP, 4*OPT["stgl"], 4, sleep=2)
def pfx(items):
    if OPT["pfb"] != 2: return
    nsh = 8 if OPT["map84"] else 4
    for R, sw, shift in items:
        lbl = A.newlabel("pfx")
        A(f"""
        s_cmp_lg_u32 s{sSW}, {sw}
        s_cbranch_scc1 {lbl}
        s_and_b32 s{sT0}, s{sC}, {nsh - 1}
        s_lshl_b32 s{sT0}, s{sT0}, {shift + 6 + (0 if nsh == 8 else 1)}
        v_lshlrev_b32 v{vPF}, {shift}, v{vLANE}
        buffer_load_dword v{vDUM}, v{vPF}, {srd(R)}, s{sT0} offen
        """)
        if nsh == 4:
            A(f"s_add_u32 s{sT0}, s{sT0}, {64 << shift}")
            A(f"buffer_load_dword v{vDUM}, v{vPF}, {srd(R)}, s{sT0} offen")
        A.label(lbl)
def pf16(pairs, lbl):
    if OPT["pfb"] != 1: return
    A(f"""
    s_cmp_lg_u32 s{sSW}, 1
    s_cbranch_scc1 {lbl}
    s_mov_b64 exec, 0xffff
    """)
    for p in pairs: A(f"global_load_dword v{vDUM}, v{vPF}, s[{p}:{p+1}]")
    A(f"s_mov_b64 exec, -1\n{lbl}:")
pf16([P_LRE, P_LIM, P_WV], "L_nopfb")
cnt_wait(vCNT, vTMP, 12, 4, sleep=0)
if OPT["noS"]: A("s_branch L_fin")
prio(OPT["gprio"])
sstamp(1, 1)
NPRE = OPT["npre"]
for n in range(NPRE): dma_piece(n)
ISS = [NPRE]
A(f"s_waitcnt vmcnt({NPRE - 12})")
sstamp(2, 1)
prio(OPT["vprio"])
sync_add(False); sync_wait(0)
sstamp(3, 1)
G1B = [FRS, FRS + 12, 64]
def g1_stage(s, extra=None, nwr=None, early_add=None):
    slot = s % 3
    prio(3 if (OPT["g1p"] >> s) & 1 else OPT["gprio"])
    sk = A.newlabel("nod")
    A(f"""
    s_cmp_lg_u32 s{sLOOP}, {s}
    s_cbranch_scc1 {sk}
    ds_read_b128 v[64:67], v{vDa}
    ds_read_b128 v[68:71], v{vDa} offset:32
    s_waitcnt lgkmcnt(0)
    v_mfma_f32_32x32x16_bf16 v[{Y0}:{Y0+15}], v[64:67], v[{DG}:{DG+3}], 0
    v_mfma_f32_32x32x16_bf16 v[{Y0}:{Y0+15}], v[68:71], v[{DG+4}:{DG+7}], v[{Y0}:{Y0+15}]
    {sk}:
    """)
    def rd(k):
        f = G1B[k % 3]
        A(f"ds_read_b128 v[{f}:{f+3}], v{vAa[slot]} offset:{k*32}")
        A(f"ds_read_b128 v[{f+4}:{f+7}], v{vBa[slot]} offset:{k*32}")
        A(f"ds_read_b128 v[{f+8}:{f+11}], v{vBa[slot]} offset:{k*32 + (BIM_O-BRE_O)}")
    rd(0); rd(1)
    for k in range(8):
        f = G1B[k % 3]
        if k + 2 < 8: rd(k + 2)
        nw = nwr(k - 1) if (nwr and k > 0) else 0
        A(f"s_waitcnt lgkmcnt({min(15, 3*(min(8, k + 3) - k - 1) + nw)})")
        if k == 7 and early_add is not None:
            if early_add: A(early_add)
            sync_add(False)
        cr = "0" if (s == 0 and k == 0) else f"v[{UR}:{UR+15}]"
        ci = "0" if (s == 0 and k == 0) else f"v[{UI}:{UI+15}]"
        A(f"v_mfma_f32_32x32x16_bf16 v[{UR}:{UR+15}], v[{f}:{f+3}], v[{f+4}:{f+7}], {cr}")
        if extra: extra(k)
        A(f"v_mfma_f32_32x32x16_bf16 v[{UI}:{UI+15}], v[{f}:{f+3}], v[{f+8}:{f+11}], {ci}")
def issue_upto(lim, k, last):
    cnt = -(-(lim - ISS[0]) // max(1, last - k)) if k < last else 0
    for n in range(ISS[0], min(lim, ISS[0] + cnt)): dma_piece(n)
    ISS[0] = min(lim, ISS[0] + cnt)
L0 = OPT["l0"]
g1_stage(0, lambda k: issue_upto(L0, k, 7), early_add=f"s_waitcnt vmcnt({L0 - 24})")
assert ISS[0] == L0
sstamp(4, 1)
prio(OPT["vprio"])
pfx([(R_WO, 1, 10)])
sync_wait(0)
g1_stage(1, lambda k: issue_upto(48, k, 7), early_add="s_waitcnt vmcnt(12)")
assert ISS[0] == 48
sstamp(5, 1)
prio(OPT["vprio"])
CLR = 64
A(f"""
v_mov_b32 v{CLR}, -1
v_mov_b32 v{CLR+1}, -1
v_mov_b32 v{CLR+2}, -1
v_mov_b32 v{CLR+3}, -1
s_lshl_b32 s{sT0}, s{sG}, 12
s_add_u32 s{sT0}, s{sT0}, s{sOB}
s_lshl_b32 s{sT1}, s{sCW}, 11
s_add_u32 s{sT0}, s{sT0}, s{sT1}
buffer_store_dwordx4 v[{CLR}:{CLR+3}], v{vL16x}, {srd(R_WS)}, s{sT0} offen sc1
buffer_store_dwordx4 v[{CLR}:{CLR+3}], v{vL16x}, {srd(R_WS)}, s{sT0} offen offset:1024 sc1
v_mov_b32 v{CLR+4}, 0
v_mov_b32 v{CLR+5}, s{sTAG}
v_mov_b32 v{CLR+6}, 0
v_mov_b32 v{CLR+7}, s{sTAG}
s_lshl_b32 s{sT1}, s{sID}, 7
s_add_u32 s{sT1}, s{sT1}, {AGG_DUMMY}
s_mov_b64 exec, 1
buffer_store_dwordx4 v[{CLR+4}:{CLR+7}], v{CLR+4}, {srd(R_AGG)}, s{sT1} offen sc1
s_mov_b64 exec, -1
""")
sync_wait(0)
g1_stage(2, early_add="s_waitcnt vmcnt(0)")
sstamp(6, 1)
prio(OPT["vprio"])
pf16([P_LDT, P_DSK], "L_nopfc")
pfx([(R_CRE, 2, 7), (R_CIM, 3, 7)])
wq_voffset(5, 6, 8, 15)
A(f"""
s_mul_i32 s{sT2}, s{sSW}, {16*1040}
s_lshl_b32 s{sT3}, s{sSW}, 14
s_lshl_b32 s{sT6}, s{sSW}, 17
""")
sync_wait(0)
def wo_piece(i):
    A(f"""
    s_add_u32 m0, s{sT3}, {WO + i*1024}
    s_add_u32 s{sT1}, s{sT6}, {i*8192}
    buffer_load_dwordx4 v5, {srd(R_WO)}, s{sT1} offen lds
    """)
    capw()
def c_piece(R, base, i):
    A(f"s_add_u32 m0, s{sT2}, {base + i*1040 - (i & 3)*1024}")
    if i & 3 == 0: A(f"s_add_u32 s{sT4}, s{sT3}, {i*1024}")
    else: A("s_nop 0")
    A(f"buffer_load_dwordx4 v{vL16x}, {srd(R)}, s{sT4} offen offset:{(i & 3)*1024} lds")
    capw()
def ex3(k):
    wo_piece(2*k); wo_piece(2*k + 1)
g1_stage(3, ex3)
sstamp(7, 1); sstamp(1, 2)
prio(OPT["vprio"])
stamp(3)
A(f"""
s_lshl_b32 s{sT0}, s{sTW}, 10
s_lshl_b32 s{sT1}, s{sCW}, 8
s_add_u32 s{sT1}, s{sT1}, {EB}
s_add_u32 s{sT0}, s{sT0}, s{sT1}
v_lshlrev_b32 v10, 3, v{vL31}
v_add_u32 v11, s{sT1}, v10
v_lshl_add_u32 v10, v{vH}, 9, v10
v_add_u32 v10, s{sT0}, v10
""")
A.nop(4)
if OPT["dbg"]:
    A(f"""
    s_lshl_b32 s{sT0}, s{sID}, 2
    s_add_u32 s{sT0}, s{sT0}, s{sSW}
    s_lshl_b32 s{sT0}, s{sT0}, 13
    s_add_u32 s{sT0}, s{sT0}, {DBG}
    v_lshlrev_b32 v12, 2, v{vLANE}
    """)
    for i in range(32):
        A(f"buffer_store_dword v{UR+i}, v12, {srd(R_WS)}, s{sT0} offen")
        A(f"s_add_u32 s{sT0}, s{sT0}, 256")
    A("s_waitcnt vmcnt(0)")
def cstep4(dr, di, pr, pi, l, ur, ui, tr, ti):
    A(f"v_fma_f32 v{tr}, v{l}, v{pr}, v{ur}")
    A(f"v_fma_f32 v{ti}, v{l}, v{pi}, v{ui}")
    A(f"v_fma_f32 v{dr}, -v{l+1}, v{pi}, v{tr}")
    A(f"v_fma_f32 v{di}, v{l+1}, v{pr}, v{ti}")
def p2(r): return f"v[{r}:{r+1}]"
def pkstep(dr, di, pr, pi, l, ur, ui, tr, ti):
    A(f"v_pk_fma_f32 {p2(tr)}, {p2(l)}, {p2(pr)}, {p2(ur)} op_sel_hi:[0,1,1]")
    A(f"v_pk_fma_f32 {p2(ti)}, {p2(l)}, {p2(pi)}, {p2(ui)} op_sel_hi:[0,1,1]")
    A(f"v_pk_fma_f32 {p2(dr)}, {p2(l)}, {p2(pi)}, {p2(tr)} op_sel:[1,0,0] neg_lo:[1,0,0] neg_hi:[1,0,0]")
    A(f"v_pk_fma_f32 {p2(di)}, {p2(l)}, {p2(pr)}, {p2(ti)} op_sel:[1,0,0]")
pa = [(FRS, FRS+2), (6, 8)]
p = (UR, UI)
for j in range(1, 8):
    d = pa[j & 1]
    pkstep(d[0], d[1], p[0], p[1], vL1, UR+2*j, UI+2*j, FRS+4, FRS+6)
    p = d
EA = (6, 8)
cstep4(FRS, FRS+1, 6, 8, vL8, 7, 9, FRS+4, FRS+5)
A(f"ds_write_b64 v10, v[{FRS}:{FRS+1}]")
A("s_waitcnt vmcnt(0)")
sync_add()
LB = 64
A(f"""
s_lshl_b32 s{sT0}, s{sTW}, 4
s_sub_u32 s{sT0}, s{sC}, s{sT0}
s_sub_u32 s{sT0}, s{sT0}, 1
s_lshl_b32 s{sT0}, s{sT0}, 13
v_lshlrev_b32 v5, 16, v{vH}
v_sub_u32 v5, s{sT0}, v5
v_lshl_add_u32 v5, v{vP2}, 3, v5
s_lshl_b32 s{sT1}, s{sID}, 7
s_add_u32 s{sT1}, s{sT1}, {AGG_DUMMY}
""")
for k in range(8):
    A(f"v_min_u32 v{96+k}, s{sT1}, v5")
    if k < 7: A(f"v_add_u32 v5, {(-8192) & 0xffffffff}, v5")
sync_wait(0)
sstamp(2, 2)
E = FRS
for s in range(4):
    A(f"ds_read_b64 v[{E+2*s}:{E+2*s+1}], v11 offset:{s*512}")
A("s_waitcnt lgkmcnt(0)")
A1, A2, G3 = (104, 105), (106, 107), 108
cstep4(A1[0], A1[1], E, E+1, vL16, E+2, E+3, FRS+8, FRS+9)
cstep4(A2[0], A2[1], A1[0], A1[1], vL16, E+4, E+5, FRS+8, FRS+9)
vPR, vPI, vW = 12, 13, 14
tw1 = A.newlabel("tw1"); twd = A.newlabel("twd")
A(f"""
v_cmp_eq_u32 vcc, 1, v{vH}
s_cmp_lg_u32 s{sTW}, 0
s_cbranch_scc1 {tw1}
""")
cstep4(G3, G3+2, A2[0], A2[1], vL16, E+6, E+7, FRS+8, FRS+9)
A(f"""
v_mov_b32 v{G3+1}, s{sTAG}
v_mov_b32 v{G3+3}, s{sTAG}
v_lshlrev_b32 v7, 3, v{vP2}
s_lshl_b32 s{sT0}, s{sC}, 13
s_mov_b32 exec_hi, 0
buffer_store_dwordx4 v[{G3}:{G3+3}], v7, {srd(R_AGG)}, s{sT0} offen sc1
s_mov_b32 exec_hi, -1
v_cndmask_b32 v{vPR}, 0, v{E}, vcc
v_cndmask_b32 v{vPI}, 0, v{E+1}, vcc
v_cndmask_b32 v{vW}, 1.0, v{vL16}, vcc
v_cndmask_b32 v{vW+1}, 0, v{vL16+1}, vcc
s_branch {twd}
{tw1}:
v_cndmask_b32 v{vPR}, v{A1[0]}, v{A2[0]}, vcc
v_cndmask_b32 v{vPI}, v{A1[1]}, v{A2[1]}, vcc
v_mul_f32 v{FRS+8}, v{vL16+1}, v{vL16+1}
v_mul_f32 v{FRS+9}, v{vL16}, v{vL16+1}
v_fma_f32 v{FRS+8}, v{vL16}, v{vL16}, -v{FRS+8}
v_add_f32 v{FRS+9}, v{FRS+9}, v{FRS+9}
v_mul_f32 v{FRS+10}, v{FRS+8}, v{vL16}
v_mul_f32 v{FRS+11}, v{FRS+8}, v{vL16+1}
v_fma_f32 v{FRS+10}, -v{FRS+9}, v{vL16+1}, v{FRS+10}
v_fma_f32 v{FRS+11}, v{FRS+9}, v{vL16}, v{FRS+11}
v_cndmask_b32 v{vW}, v{FRS+8}, v{FRS+10}, vcc
v_cndmask_b32 v{vW+1}, v{FRS+9}, v{FRS+11}, vcc
{twd}:
""")
A(f"s_mov_b32 s{sSPIN}, 0")
A(f"""
s_lshl_b32 s{sT0}, s{sSW}, 12
s_add_u32 s{sT0}, s{sT0}, {TB}
v_lshlrev_b32 v9, 6, v{vL31}
v_lshl_add_u32 v9, v{vH}, 5, v9
v_add_u32 v9, s{sT0}, v9
v_bfe_u32 v108, v{vLANE}, 2, 2
v_lshl_add_u32 v108, v{vH}, 3, v108
v_lshlrev_b32 v108, 6, v108
v_bfe_u32 v109, v{vLANE}, 4, 1
v_lshl_add_u32 v108, v109, 5, v108
v_and_b32 v109, 3, v{vLANE}
v_lshl_add_u32 v108, v109, 3, v108
v_add_u32 v108, s{sT0}, v108
""")
A(f"""
v_bfe_u32 v5, v{vLANE}, 2, 2
v_lshl_add_u32 v5, v{vH}, 2, v5
v_bfe_u32 v7, v{vLANE}, 4, 1
v_and_b32 v110, 3, v{vLANE}
v_lshlrev_b32 v110, 3, v110
v_lshl_add_u32 v110, v7, 5, v110
v_bfe_u32 v7, v{vLANE}, 3, 1
v_lshl_add_u32 v110, v7, 6, v110
v_lshl_add_u32 v110, v5, 7, v110
s_lshl_b32 s{sT0}, s{sCW}, 15
s_add_u32 s{sT0}, s{sT0}, {WO}
s_lshl_b32 s{sT1}, s{sCW}, 6
v_xor_b32 v110, s{sT1}, v110
v_xor_b32 v111, 64, v110
v_add_u32 v110, s{sT0}, v110
v_add_u32 v111, s{sT0}, v111
""")
for j in range(16):
    for nt in range(2):
        f = 8*j + 4*nt
        A(f"ds_read_b64_tr_b16 a[{f}:{f+1}], v{110 + nt} offset:{j*2048}")
        A(f"ds_read_b64_tr_b16 a[{f+2}:{f+3}], v{110 + nt} offset:{j*2048 + 1024}")
    if j % 3 == 2: A("s_waitcnt lgkmcnt(3)")
prio(OPT["gprio"])
for i in range(OPT["cim1"]): c_piece(R_CIM, CIM, i)
prio(OPT["vprio"])
sstamp(3, 2)
A.label("L_lb")
for k in range(8):
    A(f"buffer_load_dwordx4 v[{LB+4*k}:{LB+4*k+3}], v{96+k}, {srd(R_AGG)}, 0 offen sc1")
A(f"""
s_add_u32 s{sSPIN}, s{sSPIN}, 1
s_waitcnt vmcnt(0)
v_min_u32 v5, v{LB+1}, v{LB+3}
v_max3_u32 v7, s{sTAG}, v{LB+1}, v{LB+3}
""")
for k in range(1, 8):
    A(f"v_min3_u32 v5, v5, v{LB+4*k+1}, v{LB+4*k+3}")
    A(f"v_max3_u32 v7, v7, v{LB+4*k+1}, v{LB+4*k+3}")
A(f"""
v_min_u32 v5, s{sTAG}, v5
v_cmp_ne_u32 vcc, v5, v7
s_cbranch_vccz L_lbd
s_sleep 8
s_cmp_lt_u32 s{sSPIN}, {SPIN_MAX}
s_cbranch_scc1 L_lb
L_lbd:
""")
stamp(4); sstamp(4, 2)
p = (LB+28, LB+30)
pb = [(96, 97), (98, 99)]
for k in range(6, -1, -1):
    d = pb[k & 1]
    cstep4(d[0], d[1], p[0], p[1], vL64, LB+4*k, LB+4*k+2, 100, 101)
    p = d
A(f"ds_write_b64 v10, v[96:97] offset:{HP-EB}")
sync_add(); sync_wait(0)
sstamp(5, 2)
for s in range(4):
    A(f"ds_read_b64 v[{E+2*s}:{E+2*s+1}], v11 offset:{HP - EB + s*512}")
A("s_waitcnt lgkmcnt(0)")
p = (E+6, E+7)
for s in range(2, -1, -1):
    d = pb[s & 1]
    cstep4(d[0], d[1], p[0], p[1], vL512, E+2*s, E+2*s+1, 100, 101)
    p = d
CRp, CIp = 104, 106
cstep4(CRp, CIp, p[0], p[1], vW, vPR, vPI, 100, 101)
cstep4(CRp+1, CIp+1, CRp, CIp, vL8, EA[0], EA[1], 100, 101)
HR, HI = FRS, FRS+8
p = (CRp, CIp)
for j in range(8):
    pkstep(UR+2*j, UI+2*j, p[0], p[1], vL1, UR+2*j, UI+2*j, 100, 102)
    p = (UR+2*j, UI+2*j)
    if OPT['cpos'] == 0: c_piece(R_CRE, CRE, 2*j)
    A(f"v_pk_mul_f32 {p2(96)}, {p2(vCF)}, {p2(UI+2*j)} op_sel:[1,0]")
    A(f"v_pk_mul_f32 {p2(98)}, {p2(vCF)}, {p2(UR+2*j)} op_sel:[1,0]")
    A(f"v_pk_fma_f32 {p2(96)}, {p2(vCF)}, {p2(UR+2*j)}, {p2(96)} op_sel_hi:[0,1,1] neg_lo:[0,0,1] neg_hi:[0,0,1]")
    A(f"v_pk_fma_f32 {p2(98)}, {p2(vCF)}, {p2(UI+2*j)}, {p2(98)} op_sel_hi:[0,1,1] neg_lo:[1,0,1] neg_hi:[1,0,1]")
    if OPT['cpos'] == 0: c_piece(R_CRE, CRE, 2*j + 1)
    A(f"v_cvt_pk_bf16_f32 v{HR+j}, v96, v97")
    A(f"v_cvt_pk_bf16_f32 v{HI+j}, v98, v99")
    if j == 3:
        A(f"ds_write_b128 v9, v[{HR}:{HR+3}]")
        A(f"ds_write_b128 v9, v[{HI}:{HI+3}] offset:2048")
A(f"""
ds_write_b128 v9, v[{HR+4}:{HR+7}] offset:16
ds_write_b128 v9, v[{HI+4}:{HI+7}] offset:2064
s_lshl_b32 s{sKOFF}, s{sC}, 1
s_add_u32 s{sKOFF}, s{sKOFF}, s{sTW}
s_lshl_b32 s{sKOFF}, s{sKOFF}, 16
s_add_u32 s{sKOFF}, s{sKOFF}, {HB}
s_lshl_b32 s{sT1}, s{sG}, 12
s_lshl_b32 s{sT7}, s{sCW}, 11
s_add_u32 s{sT1}, s{sT1}, s{sT7}
s_add_u32 s{sT0}, s{sKOFF}, s{sT1}
s_add_u32 s{sT1}, s{sT0}, 32768
s_waitcnt lgkmcnt(0)
""")
for part in range(2):
    for hf in range(2):
        f = 64 + 8*part + 4*hf
        A(f"ds_read_b64_tr_b16 v[{f}:{f+1}], v108 offset:{part*2048 + hf*1024}")
        A(f"ds_read_b64_tr_b16 v[{f+2}:{f+3}], v108 offset:{part*2048 + hf*1024 + 256}")
for n in range(4):
    A(f"s_waitcnt lgkmcnt({6 - 2*n})")
    A(f"buffer_store_dwordx4 v[{64+4*n}:{67+4*n}], v{vL16x}, {srd(R_WS)}, s{sT0 if n < 2 else sT1} offen offset:{(n&1)*1024} sc1")
A(f"""
s_lshl_b32 s{sT7}, s{sC}, 12
s_add_u32 s{sT7}, s{sT7}, {FL3}
v_and_b32 v5, 15, v{vLANE}
v_lshlrev_b32 v5, 8, v5
s_lshl_b32 s{sT0}, s{sTW}, 7
s_add_u32 s{sT0}, s{sT0}, s{sT7}
v_add_u32 v5, s{sT0}, v5
v_mov_b32 v12, s{sTAG}
v_mov_b32 v13, 0
s_lshl_b32 s{sT1}, s{sG}, 2
s_add_u32 s{sT1}, s{sT1}, s{sSW}
s_lshl_b32 s{sT1}, s{sT1}, 7
s_add_u32 s{sT1}, s{sT1}, s{sT7}
""")
sstamp(6, 2)
A("s_waitcnt vmcnt(0)")
sstamp(7, 2); sstamp(1, 3)
A(f"""
s_mov_b64 exec, 1
buffer_store_dword v12, v13, {srd(R_WS)}, s{sT1} offen sc1
s_mov_b64 exec, -1
""")
if OPT["cpos"] == 0: sync_add(False)
else:
    prio(OPT["gprio"])
    for i in range(16): c_piece(R_CRE, CRE, i)
    prio(OPT["vprio"])
stamp(5, not HST)
A(f"""
v_mul_u32_u24 v10, 1040, v{vL31}
v_lshl_add_u32 v10, v{vH}, 4, v10
s_mul_i32 s{sT0}, s{sCW}, {512 + 32*1040}
s_mul_i32 s{sT1}, s{sCW}, {(512 - 32*1040) & 0xffffffff}
s_add_u32 s{sT1}, s{sT1}, {32*1040}
v_add_u32 v11, s{sT1}, v10
v_add_u32 v10, s{sT0}, v10
v_add_u32 v14, {CRE}, v10
v_add_u32 v15, {CRE}, v11
s_lshl_b32 s{sT1}, s{sCW}, 14
s_add_u32 s{sKOFF}, s{sKOFF}, s{sT1}
s_add_u32 s{sOB}, s{sOB}, s{sT1}
s_xor_b32 s{sT0}, s{sSW}, 2
s_lshl_b32 s{sT0}, s{sT0}, 12
v_add_u32 v114, s{sT0}, v{vL16x}
s_lshl_b32 s{sT0}, s{sSW}, 12
v_add_u32 v115, s{sT0}, v{vL16x}
v_add_u32 v119, {TB}, v114
v_add_u32 v120, {TB}, v115
s_lshl_b32 s{sT0}, s{sTW}, 17
s_lshl_b32 s{sT1}, s{sG}, 8
s_add_u32 s{sT0}, s{sT0}, s{sT1}
s_lshl_b32 s{sT1}, s{sCW}, 7
s_add_u32 s{sT0}, s{sT0}, s{sT1}
v_lshlrev_b32 v113, 2, v{vL31}
v_add_u32 v113, s{sT0}, v113
v_lshl_add_u32 v118, v{vH}, 14, v113
v_add_u32 v118, 2048, v118
v_lshl_add_u32 v113, v{vH}, 13, v113
""")
sstamp(2, 3)
poll_flags(5, 12, 1, sleep=OPT['sl2'])
if OPT["cpos"] == 1: sync_add(False)
sstamp(3, 3)
LA = 7
HRING = 16
def hreg(j): return HRING + 4*(j % 8)
def h_ld(j):
    if j == 16: A(f"s_add_u32 s{sKOFF}, s{sKOFF}, {32768 - 3*4096}")
    elif j % 4 == 0 and j > 0: A(f"s_add_u32 s{sKOFF}, s{sKOFF}, 4096")
    A(f"buffer_load_dwordx4 v[{hreg(j)}:{hreg(j)+3}], v{vL16x}, {srd(R_WS)}, s{sKOFF} offen offset:{(j%4)*1024} sc1")
for j in range(LA): h_ld(j)
def g2_rd(j):
    f = FRS + 8*(j % 3)
    A(f"ds_read_b128 v[{f}:{f+3}], v{14 if j < 16 else 10} offset:{(j % 16)*32}")
    A(f"ds_read_b128 v[{f+4}:{f+7}], v{15 if j < 16 else 11} offset:{(j % 16)*32}")
def g2_mfma(j):
    f = FRS + 8*(j % 3)
    c = "0" if j == 0 else f"v[{Y1}:{Y1+15}]"
    A(f"v_mfma_f32_32x32x16_bf16 v[{Y1}:{Y1+15}], v[{hreg(j)}:{hreg(j)+3}], v[{f+4}:{f+7}], {c}")
    A(f"v_mfma_f32_32x32x16_bf16 v[{Y0}:{Y0+15}], v[{hreg(j)}:{hreg(j)+3}], v[{f}:{f+3}], v[{Y0}:{Y0+15}]")
sync_wait(0)
prio(3 if OPT["g2p"] & 1 else OPT["gprio"])
g2_rd(0); g2_rd(1)
VQ = list(range(LA))
P2 = 32 - OPT["p2n"]
for j in range(32):
    if j == P2:
        if P2 + LA < 32 or True:
            pass
        prio(OPT["vprio"])
        cnt_wait(vCNT, vTMP, 8, 12, sleep=OPT['sl1'])
        sstamp(6, 3); sstamp(1, 4)
        prio(3 if OPT["g2p"] & 2 else OPT["gprio"])
    if j + LA < 32:
        h_ld(j + LA); VQ.append(j + LA)
    rest = list(range(OPT["cim1"], 16))
    per = -(-len(rest) // 10) if rest else 0
    for i in rest[per*j:per*(j + 1)] if j < 10 else []:
        if i == rest[0] and i & 3: A(f"s_add_u32 s{sT4}, s{sT3}, {(i & ~3)*1024}")
        c_piece(R_CIM, CIM, i); VQ.append(-2 if i == 15 else -1)
    if not rest and j == 0: VQ.insert(0, -2)
    if j == 14:
        prio(OPT["vprio"]); sync_wait(0); prio(3 if OPT["g2p"] & 1 else OPT["gprio"])
    if j + 2 < 32: g2_rd(j + 2)
    issued = min(32, j + 3)
    need = max(VQ.index(j), VQ.index(-2)) if j == 12 else VQ.index(j)
    A(f"s_waitcnt vmcnt({len(VQ) - 1 - need}) lgkmcnt({2*(issued - j - 1)})")
    if j == 12: sync_add(False)
    if j == 0: sstamp(4, 3)
    if j == 15:
        cnt_add(vCNT, vONE, 8)
        stamp(6, not HST); sstamp(5, 3)
    g2_mfma(j)
prio(OPT["vprio"])
A.nop(10)
for i in range(4):
    A(f"ds_write_b128 v119, v[{Y1+4*i}:{Y1+4*i+3}] offset:{i*1024}")
sync_add()
sync_wait(0)
for i in range(4):
    A(f"ds_read_b128 v[{Y1+4*i}:{Y1+4*i+3}], v120 offset:{i*1024}")
for i in range(16):
    if i % 4 == 0: A(f"s_waitcnt lgkmcnt({3 - i//4})")
    A(f"v_add_f32 v{Y0+i}, v{Y0+i}, v{Y1+i}")
    A(f"s_mov_b32 s{sT1}, {(16*(i>>3) + 4*((i>>2)&1) + ((i>>1)&1) + 8*(i&1))*4096}")
    A(f"buffer_store_dword v{Y0+i}, v113, {srd(R_OUT)}, s{sT1} offen{OST}")
stamp(7); sstamp(7, 3); sstamp(2, 4)
cnt_wait(vCNT, vTMP, 12, 12)
sstamp(3, 4)
if OPT["odel"]: A(f"s_sleep {OPT['odel']}")
def oreg(j): return (16 + 4*j) if j < 8 else (80 + 4*(j - 8))
def o_loads(g4):
    A(f"s_add_u32 s{sT1}, s{sOB}, {g4*4096}")
    for j in range(4*g4, 4*g4 + 4):
        A(f"buffer_load_dwordx4 v[{oreg(j)}:{oreg(j)+3}], v{vL16x}, {srd(R_WS)}, s{sT1} offen offset:{(j%4)*1024} sc1")
for g4 in range(4): o_loads(g4)
A(f"s_mov_b32 s{sSPIN}, 0")
for g4 in range(4):
    lp = A.newlabel("op"); dn = A.newlabel("opd"); ck = A.newlabel("opc")
    j0 = 4*g4
    A(f"s_waitcnt vmcnt({4*(3 - g4)})")
    A.label(ck)
    A(f"v_max_u32 v13, v{oreg(j0)+1}, v{oreg(j0)+3}")
    for j in range(j0 + 1, j0 + 4):
        A(f"v_max3_u32 v13, v13, v{oreg(j)+1}, v{oreg(j)+3}")
    A(f"""
    v_cmp_eq_u32 vcc, -1, v13
    s_cbranch_vccz {dn}
    s_add_u32 s{sSPIN}, s{sSPIN}, 1
    s_cmp_gt_u32 s{sSPIN}, 20000
    s_cbranch_scc1 {dn}
    """)
    o_loads(g4)
    A(f"""
    s_waitcnt vmcnt(0)
    s_branch {ck}
    {dn}:
    """)
    if g4 in (0, 3): sstamp(4 + g4 // 3, 4)
    for j in range(j0, j0 + 4):
        c0 = "0" if j == 0 else f"v[{Y0}:{Y0+15}]"
        c1 = "0" if j == 0 else f"v[{Y1}:{Y1+15}]"
        A(f"v_mfma_f32_32x32x16_bf16 v[{Y1}:{Y1+15}], v[{oreg(j)}:{oreg(j)+3}], a[{8*j+4}:{8*j+7}], {c1}")
        A(f"v_mfma_f32_32x32x16_bf16 v[{Y0}:{Y0+15}], v[{oreg(j)}:{oreg(j)+3}], a[{8*j}:{8*j+3}], {c0}")
if OPT["sst"] == 4: A(f"s_mov_b32 s{sST+14}, s{sSPIN}")
A.nop(11)
for i in range(4):
    A(f"ds_write_b128 v114, v[{Y1+4*i}:{Y1+4*i+3}] offset:{TB2 + i*1024}")
A("s_waitcnt lgkmcnt(0)")
A("s_barrier")
sstamp(6, 4)
for i in range(4):
    A(f"ds_read_b128 v[{Y1+4*i}:{Y1+4*i+3}], v115 offset:{TB2 + i*1024}")
for i in range(16):
    if i % 4 == 0: A(f"s_waitcnt lgkmcnt({3 - i//4})")
    A(f"v_add_f32 v{Y0+i}, v{Y0+i}, v{Y1+i}")
    A(f"s_mov_b32 s{sT1}, {(8*(i>>2) + (i&3))*4096}")
    A(f"buffer_store_dword v{Y0+i}, v118, {srd(R_OUT)}, s{sT1} offen{OSTB}")
A("s_branch L_fin")

A.label("L_hot_end")
A.label("L_slow")
A(f"""
s_cmp_lg_u32 s{sDONE}, 0
s_cbranch_scc1 L_fast
s_mov_b32 s{sDONE}, 1
s_waitcnt lgkmcnt(0)
""")
def a_sync():
    A(f"s_add_u32 s{sATG}, s{sATG}, 4")
    A("s_waitcnt lgkmcnt(0)")
    cnt_add(vCNT, vIDX, 4)
    cnt_wait(vCNT, 16, f"s{sATG}", 4, sleep=2)
for i in range(4): A(f"v_mov_b32 v{vZ+i}, 0")
for ct in range(8): A(f"v_mov_b32 v{vM+ct}, 0xff800000")
A("s_nop 1")
for ct in range(8):
    A(f"v_mfma_f32_32x32x16_bf16 a[{16*ct}:{16*ct+15}], v[{vZ}:{vZ+3}], v[{vZ}:{vZ+3}], 0")
A(f"s_mov_b32 s{sLOOP}, 16")
def adv():
    A(f"s_add_u32 s{sKOFF}, s{sKOFF}, {KVS}"); A(f"s_and_b32 s{sKOFF}, s{sKOFF}, 0xffff")
A.label("L_sl1")
ld_k(0, 0); adv()
A("s_waitcnt vmcnt(0)")
for ct in range(8):
    A(f"v_mfma_f32_32x32x16_bf16 v[{S0}:{S0+15}], v[{KV[0]}:{KV[0]+3}], v[{QF+4*ct}:{QF+4*ct+3}], 0")
    A.nop(12)
    for i in range(8):
        A(f"v_max3_f32 v{vM+ct}, v{S0+2*i}, v{S0+2*i+1}, v{vM+ct}")
A(f"""
s_sub_u32 s{sLOOP}, s{sLOOP}, 1
s_cmp_lg_u32 s{sLOOP}, 0
s_cbranch_scc1 L_sl1
s_lshl_b32 s{sT0}, s{sWAVE}, 11
s_add_u32 s{sT0}, s{sT0}, {CB}
v_lshlrev_b32 v8, 2, v{vLANE}
v_add_u32 v8, s{sT0}, v8
v_lshlrev_b32 v10, 2, v{vL31}
v_add_u32 v10, {CB}, v10
""")
a_sync()
def pair_off(pr):
    A(f"s_add_u32 s{sT0}, s{sWAVE}, {pr + 1}")
    A(f"s_and_b32 s{sT0}, s{sT0}, 3")
    A(f"s_lshl_b32 s{sT0}, s{sT0}, 9")
for pr in range(4):
    pair_off(pr)
    A(f"v_add_u32 v9, s{sT0}, v8")
    A(f"ds_write_b32 v9, v{vM+2*pr}")
    A(f"ds_write_b32 v9, v{vM+2*pr+1} offset:256")
a_sync()
for ct in range(8):
    if ct % 2 == 0:
        pair_off(ct // 2)
        A(f"v_add_u32 v9, s{sT0}, v10")
    for w in range(4):
        A(f"ds_read_b32 v{S0+2*w}, v9 offset:{w*2048 + (ct%2)*256}")
        A(f"ds_read_b32 v{S0+2*w+1}, v9 offset:{w*2048 + (ct%2)*256 + 128}")
    A("s_waitcnt lgkmcnt(0)")
    for w in range(4):
        A(f"v_max3_f32 v{vM+ct}, v{S0+2*w}, v{S0+2*w+1}, v{vM+ct}")
a_sync()
A(f"s_mov_b32 s{sLOOP}, 16")
A.label("L_sl2")
ld_k(0, 0); ld_v(0, 0, 0); ld_v(0, 1, 0); adv()
A("s_waitcnt vmcnt(0)")
for ct in range(8):
    A(f"v_mfma_f32_32x32x16_bf16 v[{S0}:{S0+15}], v[{KV[0]}:{KV[0]+3}], v[{QF+4*ct}:{QF+4*ct+3}], 0")
    A.nop(12)
    for i in range(16):
        A(f"v_sub_f32 v{S0+i}, v{S0+i}, v{vM+ct}")
    for i in range(16):
        A(f"v_exp_f32 v{S0+i}, v{S0+i}")
    A.nop(2)
    A(f"v_smfmac_f32_32x32x32_bf16 a[{16*ct}:{16*ct+15}], v[{KV[0]+4}:{KV[0]+7}], v[{S0}:{S0+7}], v{vIDX}")
    A(f"v_smfmac_f32_32x32x32_bf16 a[{16*ct}:{16*ct+15}], v[{KV[0]+8}:{KV[0]+11}], v[{S0+8}:{S0+15}], v{vIDX}")
A(f"""
s_sub_u32 s{sLOOP}, s{sLOOP}, 1
s_cmp_lg_u32 s{sLOOP}, 0
s_cbranch_scc1 L_sl2
s_nop 15
""")
for ct in range(6): part_write(ct)
A("s_waitcnt lgkmcnt(0)")
cnt_add(vCNT, vIDX, 4)
A(f"""
s_add_u32 s{sATG}, s{sATG}, 4
s_branch L_comb
""")

if OPT["xm"] or OPT["xv"] or OPT["xl"]:
    i0 = A.lines.index("L_S2:"); i1 = A.lines.index("L_hot_end:")
    seen = False
    for i in range(i0, i1):
        t = A.lines[i].strip()
        if t.startswith("ds_write_b128") : seen = True
        if not seen: continue
        if OPT["xm"] and t.startswith("v_mfma"): A.lines[i] = "    s_nop 7"
        if OPT["xv"] and (t.startswith(("v_pk_", "v_fma_f32", "v_cvt_pk", "v_mul_f32", "v_add_f32"))): A.lines[i] = "    s_nop 1"
        if OPT["xl"] and t.startswith(("ds_read_b128", "ds_write_b128")): A.lines[i] = "    s_nop 0"
hdr = open("cdna_kernels/" + NAME + ".s.ref").read().split("; Override launch")[0]
out = hdr + f"""; Fused single-launch kernel: 256 workgroups x 8 waves (4 attention waves + 4 SSM waves). Generated by gen/gen13.py.
; @launch grid=(256,1,1) block=(512,1,1) lds={LDS_BYTES}
.amdgcn_target "amdgcn-amd-amdhsa--gfx950"
.text
.globl {NAME}_kernel
.p2align 8
.type {NAME}_kernel,@function
{NAME}_kernel:
""" + A.text() + f""".section .rodata,"a"
.p2align 6
.amdhsa_kernel {NAME}_kernel
  .amdhsa_next_free_vgpr 256
  .amdhsa_next_free_sgpr 102
  .amdhsa_accum_offset 128
  .amdhsa_group_segment_fixed_size 0
  .amdhsa_kernarg_size 136
  .amdhsa_user_sgpr_count 2
  .amdhsa_user_sgpr_kernarg_segment_ptr 1
  .amdhsa_system_sgpr_workgroup_id_x 1
.end_amdhsa_kernel
"""
open(sys.argv[1], "w").write(out)
errs = check(A.lines) + check(A.lines[loop_end-60:loop_end] + A.lines[loop_start:loop_start+60])
for e in errs: print("HAZARD:", e)
print(f"{len(A.lines)} lines, {len(errs)} hazards")
```

```python
import sys, math, struct
from asmlib import *

OPT = dict(dbg=0, force_slow=0, stamps=0, noS=0, cyc=0, ost=2, gprio=0, vprio=3, hst=0, stgwin=8, pfq=0, pfb=2, stgl=2, qpre=2,
           pfc=1, ssl=2, la=8, sst=0, win0=0, trig=1, odel=0, sgate=2, map84=1, g1p=0, g2p=2, noKV=0, nochk=0, wq1=12, cpos=1, hdbg=0, p2n=16, oack=1, cim1=0, npre0=0, mid=0, sl1=2, sl2=2, sl0=0, tlb=0, pad=0, padat=0, p1at=3, e0c=24, q1a=2, p1k=28, kv0=4, g0=0, ofirst=0, xm=0, xv=0, xl=0, npre=15, l0=30, ostb=1, cap=7, cap0=9, lbs=4)
for a in sys.argv[2:]:
    k, v = a.split("=")
    assert k in OPT, k
    OPT[k] = int(v)

NAME = "concat_heads__ssm_conv_s5__grouped_kv_mqa__prompt"
def f2u(x): return struct.unpack("<I", struct.pack("<f", x))[0]

XQ, WQ = 0, 66560
KVX, WKV = 3*16640, 66560 + 3*16384
SLOT = [0, 49920, 99840]
XA_O, BRE_O, BIM_O = 0, 16640, 33280
CIM, CRE = 0, 66560
CB = 66560; CB_T = 2304
TB = CB + 32*CB_T
WO = 66560
TB2 = 0
QX = 149760; EB = 157952; HP = 160000; CNT = 162048; QM = 162064; KM = 162068; CNT4 = 24
assert TB + 16384 <= EB
LDS_BYTES = 163840
FL1, FL3 = 0x1000, 0x9000
KVT = 0x80000; KVS = 4096
AGG = 0x30000; AGG_DUMMY = 32*8192; AGG_SIZE = AGG_DUMMY + 256*128
OB, HB = 0x100000, 0x400000
DBG = 0x1000000
WS_SIZE = 0x2000000
assert AGG + AGG_SIZE <= KVT
sWAVE, sC, sG, sTAG, sID = 3, 4, 5, 6, 7
R_XB, R_WQ, R_WKV, R_XA, R_BRE, R_BIM, R_CRE, R_CIM, R_WO, R_OUT, R_WS, R_AGG = 8, 12, 16, 20, 24, 28, 32, 36, 40, 44, 48, 52
P_LRE, P_LIM, P_LDT, P_DSK, P_WV = 56, 58, 60, 62, 64
sEP, sDONE = 66, 67
sT0, sT1, sT2, sT3, sT4, sT5 = 68, 69, 70, 71, 72, 73
sT6, sSPIN = 74, 75
sTW, sCW = 76, 77
sLOOP, sKOFF, sROT, sSW = 78, 79, 80, 81
sOB, sT7 = 82, 83
sATG = 65
sST = 84
def srd(r): return f"s[{r}:{r+3}]"

A = Asm()
OST = ["", " sc1", " nt", " sc0 sc1", " sc1 nt"][OPT["ost"]]
OSTB = OST if OPT["ostb"] < 0 else ["", " sc1", " nt", " sc0 sc1", " sc1 nt"][OPT["ostb"]]
SPIN_MAX = 200000
HST = OPT["hst"]

SSEC = [False]
def sstamp(i, mode):
    if OPT["stamps"] and OPT["sst"] == mode:
        A(f"s_memrealtime s[{sST+2*i}:{sST+2*i+1}]")
def stamp(i, cond=True):
    if SSEC[0] and OPT["sst"] and i < 8: return
    if OPT["stamps"] and cond:
        A(f"s_memrealtime s[{sST+2*i}:{sST+2*i+1}]")

def padto():
    l = A.newlabel("pad")
    A(f"""
    {l}:
    s_memrealtime s[96:97]
    s_waitcnt lgkmcnt(0)
    s_sub_u32 s96, s96, s98
    s_cmp_lt_u32 s96, {OPT["pad"]*100}
    s_cbranch_scc1 {l}
    """)
def prio(p): A(f"s_setprio {p}")

def cnt_add(vaddr, vone, off=0):
    A(f"""
    s_mov_b64 exec, 1
    {"ds_inc_u32" if vone == vIDX else "ds_add_u32"} v{vaddr}, v{vone} offset:{off}
    s_mov_b64 exec, -1
    """)
def cnt_wait(vaddr, vtmp, target, off=0, sleep=0):
    lp = A.newlabel("sy"); dn = A.newlabel("syd")
    A(f"""
    s_mov_b32 s{sSPIN}, 0
    {lp}:
    ds_read_b32 v{vtmp}, v{vaddr} offset:{off}
    s_add_u32 s{sSPIN}, s{sSPIN}, 1
    s_waitcnt lgkmcnt(0)
    v_readfirstlane_b32 s{sT0}, v{vtmp}
    s_cmp_ge_u32 s{sT0}, {target}
    s_cbranch_scc1 {dn}
    {("s_sleep " + str(sleep)) if sleep else ""}
    s_cmp_lt_u32 s{sSPIN}, {SPIN_MAX}
    s_cbranch_scc1 {lp}
    {dn}:
    """)
NSYNC = [0]
def grp_sync():
    NSYNC[0] += 1
    A("s_waitcnt lgkmcnt(0)")
    cnt_add(vCNT, vONE)
    cnt_wait(vCNT, vTMP, CBASE + 4*NSYNC[0], sleep=OPT['ssl'])

def sync_add(wait_lds=True):
    NSYNC[0] += 1
    if wait_lds: A("s_waitcnt lgkmcnt(0)")
    cnt_add(vCNT, vONE)
def sync_wait(sleep=None):
    cnt_wait(vCNT, vTMP, CBASE + 4*NSYNC[0], sleep=OPT['ssl'] if sleep is None else max(sleep, OPT['sl0']))

def poll_flags(vaddr, vdst, width, sleep=2):
    lp = A.newlabel("pl"); dn = A.newlabel("pld")
    ld = "buffer_load_dword" if width == 1 else f"buffer_load_dwordx{width}"
    A(f"s_mov_b32 s{sSPIN}, 0")
    A.label(lp)
    A(f"""
    {ld} {vr(vdst, width)}, v{vaddr}, {srd(R_WS)}, 0 offen sc1
    s_add_u32 s{sSPIN}, s{sSPIN}, 1
    s_waitcnt vmcnt(0)
    v_cmp_ne_u32 vcc, s{sTAG}, v{vdst}
    s_cbranch_vccz {dn}
    {("s_sleep " + str(sleep)) if sleep else ""}
    s_cmp_lt_u32 s{sSPIN}, {SPIN_MAX}
    s_cbranch_scc1 {lp}
    {dn}:
    """)

def wave_max(v, tmp):
    A("s_nop 1")
    for sh in (1, 2, 4, 8):
        A(f"v_max_f32_dpp v{v}, v{v}, v{v} row_ror:{sh} row_mask:0xf bank_mask:0xf")
        A("s_nop 1")
    A(f"v_mov_b32 v{tmp}, v{v}")
    A("s_nop 1")
    A(f"v_permlane16_swap_b32 v{tmp}, v{v}")
    A(f"v_max_f32 v{v}, v{v}, v{tmp}")
    A(f"v_mov_b32 v{tmp}, v{v}")
    A("s_nop 1")
    A(f"v_permlane32_swap_b32 v{tmp}, v{v}")
    A(f"v_max_f32 v{v}, v{v}, v{tmp}")

def wq_voffset(dst, t0, t1, t2):
    A(f"""
    v_lshrrev_b32 v{t0}, 3, v{vLANE}
    v_and_b32 v{t1}, 7, v{vLANE}
    v_bfe_u32 v{t2}, v{vLANE}, 4, 1
    v_lshlrev_b32 v{t2}, 2, v{t2}
    v_xor_b32 v{t1}, v{t1}, v{t2}
    v_lshlrev_b32 v{t1}, 4, v{t1}
    v_lshl_add_u32 v{dst}, v{t0}, 10, v{t1}
    """)

vLANE, vL31, vH, vL16x = 1, 2, 3, 4
UR, UI, Y0, Y1 = 16, 32, 48, 64
FRS = 80
DG = 104
vL1, vL8, vL16, vL64, vL512, vCF = 112, 114, 116, 118, 120, 122
vCNT, vONE, vTMP, vP2, vDUM = 0, 124, 125, 126, 127
vXo, vBo, vDa, vSt = 5, 6, 7, 8
vAa, vBa = [9, 10, 11], [12, 13, 14]
vPF = 15
STG = 64
PRM = 100
S0, S1 = 16, 32
QF = 48
KV = [80, 92, 104, 116]
vIDX = 7
vM = 104
vZ = 120
vKt, vVt = [5, 8, 9, 10], [6, 12, 14, 15]

A(f"""
s_cmp_ge_u32 s2, 256
s_cbranch_scc1 L_end
""")
stamp(0)
if OPT["pad"]: A("s_memrealtime s[98:99]")
sizes = {R_XB: 65536, R_WKV: 16384, R_WQ: 523392, R_WS: WS_SIZE, R_XA: 65536, R_BRE: 65536, R_BIM: 65536, R_CRE: 65536, R_CIM: 65536,
         R_WO: 523392, R_OUT: 262144, R_AGG: AGG_SIZE}
def kload(lst):
    for r, off in lst:
        A(f"s_load_dwordx2 s[{r}:{r+1}], s[0:1], {off}")
def srd_words(rs):
    for r in rs:
        A(f"s_mov_b32 s{r+2}, {sizes[r]}")
        A(f"s_mov_b32 s{r+3}, 0x20000")
kload([(R_XB, 72), (R_WKV, 88), (P_WV, 96), (R_WQ, 80), (R_WS, 128)])
A(f"""
v_lshrrev_b32 v5, 6, v0
v_and_b32 v{vLANE}, 63, v0
v_readfirstlane_b32 s{sWAVE}, v5
v_lshlrev_b32 v{vL16x}, 4, v{vLANE}
v_bfe_u32 v{vH}, v0, 5, 1
v_and_b32 v{vL31}, 31, v0
v_mov_b32 v0, {CNT}
""")
srd_words([R_XB])
A(f"""
""")
if OPT["map84"]:
    A(f"""
    s_bfe_u32 s{sC}, s2, 0x20001
    s_lshl_b32 s{sC}, s{sC}, 3
    s_bfe_u32 s{sT0}, s2, 0x30003
    s_add_u32 s{sC}, s{sC}, s{sT0}
    s_and_b32 s{sG}, s2, 1
    s_lshl_b32 s{sG}, s{sG}, 2
    s_lshr_b32 s{sT0}, s2, 6
    s_add_u32 s{sG}, s{sG}, s{sT0}
    s_add_u32 s{sROT}, s{sC}, s{sG}
    s_and_b32 s{sROT}, s{sROT}, 3
    """)
else:
    A(f"""
    s_and_b32 s{sC}, s2, 7
    s_lshl_b32 s{sC}, s{sC}, 2
    s_bfe_u32 s{sROT}, s2, 0x20003
    s_add_u32 s{sC}, s{sC}, s{sROT}
    s_lshr_b32 s{sG}, s2, 5
    """)
A(f"""
s_lshl_b32 s{sT2}, s{sC}, 16
s_sub_u32 s{sSW}, s{sWAVE}, 4
s_cbranch_scc1 L_A0
s_load_dwordx4 s[{P_LRE}:{P_LRE+3}], s[0:1], 8
s_load_dwordx4 s[{P_LDT}:{P_LDT+3}], s[0:1], 56
s_setprio 3
v_mov_b32 v20, 0
v_mov_b32 v21, 0
s_lshl_b32 s{sT0}, s{sG}, 6
s_lshl_b32 s{sT1}, s{sSW}, 4
s_and_b32 s{sT1}, s{sT1}, 32
s_add_u32 s{sT0}, s{sT0}, s{sT1}
v_add_lshl_u32 v{vP2}, s{sT0}, v{vL31}, 1
ds_write2_b64 v0, v[20:21], v[20:21] offset0:0 offset1:1
ds_write2_b64 v0, v[20:21], v[20:21] offset0:2 offset1:3
s_mov_b32 s{R_WKV+2}, {sizes[R_WKV]}
s_mov_b32 s{R_WKV+3}, 0x20000
s_lshl_b32 s{sT1}, s{sSW}, 12
s_lshl_b32 s{sT5}, s{sG}, 13
s_and_b32 s{sT5}, s{sT5}, 0xc000
s_add_u32 s{sT5}, s{sT5}, s{sT1}
s_mul_i32 s{sT0}, s{sSW}, 4160
s_add_u32 m0, s{sT1}, {WKV}
s_bitcmp1_b32 s{sG}, 0
s_waitcnt lgkmcnt(0)
s_cselect_b32 s{R_WKV}, s{P_WV}, s{R_WKV}
s_cselect_b32 s{R_WKV+1}, s{P_WV+1}, s{R_WKV+1}
s_add_u32 s{R_XB}, s{R_XB}, s{sT2}
s_addc_u32 s{R_XB+1}, s{R_XB+1}, 0
""")
for i in range(4):
    A(f"buffer_load_dwordx4 v{vL16x}, {srd(R_WKV)}, s{sT1} offen offset:{i*1024} lds")
for i in range(4):
    A(f"s_add_u32 m0, s{sT0}, {KVX + 16*i}")
    A(f"s_load_dword s{sEP}, s[{R_WS}:{R_WS+1}], 0" if i == 0 else "s_nop 0")
    A(f"buffer_load_dwordx4 v{vL16x}, {srd(R_XB)}, s{sT5} offen offset:{i*1024} lds")
A(f"""
s_barrier
global_load_ushort v{PRM}, v{vP2}, s[{P_LRE}:{P_LRE+1}]
global_load_ushort v{PRM+1}, v{vP2}, s[{P_LIM}:{P_LIM+1}]
global_load_ushort v{PRM+2}, v{vP2}, s[{P_LDT}:{P_LDT+1}]
global_load_ushort v{PRM+3}, v{vP2}, s[{P_DSK}:{P_DSK+1}]
s_cmp_eq_u32 s{sSW}, 1
s_cbranch_scc1 L_qx
s_cmp_eq_u32 s{sSW}, 2
s_cbranch_scc1 L_qw
s_branch L_S1
L_A0:
""")
def common_scalars():
    kload([(R_OUT, 112)])
    srd_words([R_WS, R_OUT])
    A(f"""
    s_and_b32 s{sTW}, s{sWAVE}, 1
    s_bfe_u32 s{sCW}, s{sWAVE}, 0x10001
    s_lshl_b32 s{sID}, s{sC}, 3
    s_add_u32 s{sID}, s{sID}, s{sG}
    s_mov_b32 s{sDONE}, 0
    s_lshl_b32 s{sOB}, s{sC}, 1
    s_add_u32 s{sOB}, s{sOB}, s{sTW}
    s_lshl_b32 s{sOB}, s{sOB}, 15
    s_add_u32 s{sOB}, s{sOB}, {OB}
    """)
def common_after_wait(tag=True):
    A(f"""
    s_lshl_b32 s{sT0}, s{sC}, 18
    s_add_u32 s{R_OUT}, s{R_OUT}, s{sT0}
    s_addc_u32 s{R_OUT+1}, s{R_OUT+1}, 0
    """)
    if tag: A(f"""
    s_mul_i32 s{sTAG}, s{sEP}, 0x9E3779B1
    s_add_u32 s{sTAG}, s{sTAG}, 0x7F4A7C15
    """)
vWQo, vXQo = 119, 117
A(f"""
v_lshrrev_b32 v6, 4, v{vLANE}
v_and_b32 v7, 15, v{vLANE}
v_lshlrev_b32 v7, 4, v7
v_lshl_add_u32 v{vXQo}, v6, 14, v7
s_mul_i32 s{sT6}, s{sWAVE}, 4160
s_lshl_b32 s{sT7}, s{sWAVE}, 12
""")
srd_words([R_WQ])
wq_voffset(vWQo, 6, 7, 10)
A(f"""
s_lshl_b32 s{sT0}, s{sG}, 7
s_waitcnt lgkmcnt(0)
s_add_u32 s{R_XB}, s{R_XB}, s{sT2}
s_addc_u32 s{R_XB+1}, s{R_XB+1}, 0
s_add_u32 s{R_WQ}, s{R_WQ}, s{sT0}
s_addc_u32 s{R_WQ+1}, s{R_WQ+1}, 0
s_load_dword s{sEP}, s[{R_WS}:{R_WS+1}], 0
s_barrier
""")
stamp(1, HST)
def x_dma(s):
    A(f"""
    s_add_u32 s{sT3}, s{sROT}, {s}
    s_and_b32 s{sT3}, s{sT3}, 3
    s_lshl_b32 s{sT4}, s{sT3}, 8
    s_add_u32 s{sT4}, s{sT4}, s{sT7}
    """)
    for i in range(4):
        A(f"""
        s_add_u32 m0, s{sT6}, {XQ + s*16640 + i*16}
        s_nop 0
        buffer_load_dwordx4 v{vXQo}, {srd(R_XB)}, s{sT4} offen offset:{i*1024} lds
        """)
def wq_dma(s):
    A(f"""
    s_lshl_b32 s{sT3}, s{sT3}, 4
    s_add_u32 s{sT3}, s{sT3}, s{sWAVE}
    s_lshl_b32 s{sT3}, s{sT3}, 13
    s_lshl_b32 s{sT2}, s{sWAVE}, 10
    """)
    for i in range(4):
        A(f"""
        s_add_u32 m0, s{sT2}, {WQ + s*16384 + i*4096}
        s_add_u32 s{sT1}, s{sT3}, {i*32768}
        buffer_load_dwordx4 v{vWQo}, {srd(R_WQ)}, s{sT1} offen lds
        """)
for s in range(OPT["qpre"]):
    x_dma(s); wq_dma(s)
stamp(2 if HST else 1)
A("s_branch L_A1")
A.label("L_S1")
SSEC[0] = True
A(f"""
v_mov_b32 v{vONE}, 1
s_lshl_b32 s{sID}, s{sC}, 3
s_add_u32 s{sID}, s{sID}, s{sG}
s_mov_b32 s{R_WS+2}, {WS_SIZE}
s_mov_b32 s{R_WS+3}, 0x20000
v_lshrrev_b32 v20, 4, v{vLANE}
v_and_b32 v21, 15, v{vLANE}
v_mul_u32_u24 v9, 1040, v21
v_lshl_add_u32 v9, v20, 4, v9
v_add_u32 v9, {KVX}, v9
v_lshrrev_b32 v10, 2, v21
v_lshl_add_u32 v10, v20, 3, v10
v_lshlrev_b32 v10, 5, v10
v_and_b32 v11, 3, v21
v_lshl_add_u32 v10, v11, 3, v10
v_add_u32 v10, {WKV}, v10
s_lshl_b32 s{sT6}, s{sC}, 1
s_lshr_b32 s{sT1}, s{sG}, 2
s_add_u32 s{sT6}, s{sT6}, s{sT1}
s_lshl_b32 s{sT6}, s{sT6}, 12
s_add_u32 s{sT6}, s{sT6}, {KVT}
s_bfe_u32 s{sT7}, s{sG}, 0x10001
s_waitcnt lgkmcnt(0)
s_mul_i32 s{sTAG}, s{sEP}, 0x9E3779B1
s_add_u32 s{sTAG}, s{sTAG}, 0x7F4A7C15
s_waitcnt vmcnt(4)
""")
stamp(6, HST)
cnt_add(vCNT, vONE)
A(f"""
s_cmp_lg_u32 s{sSW}, 0
s_cbranch_scc1 L_S2a
""")
cnt_wait(vCNT, vTMP, 4)
stamp(1)
def kv_rd(k):
    f = 32 + 8*(k % 6)
    A(f"ds_read_b64_tr_b16 v[{f}:{f+1}], v10 offset:{k*1024}")
    A(f"ds_read_b64_tr_b16 v[{f+2}:{f+3}], v10 offset:{k*1024+128}")
    A(f"ds_read_b128 v[{f+4}:{f+7}], v9 offset:{k*64}")
for k in range(4): kv_rd(k)
A(f"s_bitcmp1_b32 s{sG}, 0")
A("s_cbranch_scc1 L_kv_v")
def kv_chain(isv_):
    for k in range(16):
        f = 32 + 8*(k % 6)
        if k + 4 < 16: kv_rd(k + 4)
        issued = min(16, k + 5)
        A(f"s_waitcnt lgkmcnt({3*(issued - k - 1)})")
        c = "0" if k == 0 else "v[28:31]"
        a, b = (f"v[{f}:{f+3}]", f"v[{f+4}:{f+7}]") if not isv_ else (f"v[{f+4}:{f+7}]", f"v[{f}:{f+3}]")
        A(f"v_mfma_f32_16x16x32_bf16 v[28:31], {a}, {b}, {c}")
kv_chain(False)
cnt_add(vCNT, vONE)
A(f"s_mov_b32 s{sT0}, {f2u(0.25 * math.log2(math.e))}")
A(f"""
s_lshl_b32 s{sT7}, s{sT7}, 8
s_add_u32 s{sT6}, s{sT6}, s{sT7}
v_and_b32 v22, 1, v20
v_lshlrev_b32 v22, 9, v22
v_lshl_add_u32 v22, v21, 4, v22
v_lshrrev_b32 v23, 1, v20
v_lshl_add_u32 v22, v23, 3, v22
v_mul_f32 v28, s{sT0}, v28
v_mul_f32 v29, s{sT0}, v29
v_mul_f32 v30, s{sT0}, v30
v_mul_f32 v31, s{sT0}, v31
v_cvt_pk_bf16_f32 v24, v28, v29
v_cvt_pk_bf16_f32 v25, v30, v31
buffer_store_dwordx2 v[24:25], v22, {srd(R_WS)}, s{sT6} offen sc1
v_mul_f32 v16, v28, v28
v_fmac_f32 v16, v29, v29
v_fmac_f32 v16, v30, v30
v_fmac_f32 v16, v31, v31
v_mov_b32 v17, v16
s_nop 1
v_permlane16_swap_b32 v17, v16
v_add_f32 v16, v16, v17
v_mov_b32 v17, v16
s_nop 1
v_permlane32_swap_b32 v17, v16
v_add_f32 v17, v16, v17
""")
wave_max(17, 18)
A("s_branch L_kv_pub")
A.label("L_kv_v")
kv_chain(True)
cnt_add(vCNT, vONE)
A(f"""
s_mul_i32 s{sT7}, s{sT7}, 544
s_add_u32 s{sT6}, s{sT6}, s{sT7}
s_add_u32 s{sT6}, s{sT6}, 1024
v_lshrrev_b32 v22, 1, v20
v_mul_u32_u24 v22, 272, v22
v_and_b32 v23, 1, v20
v_lshl_add_u32 v22, v23, 3, v22
v_lshl_add_u32 v23, v21, 4, v22
v_cvt_pk_bf16_f32 v24, v28, v29
v_cvt_pk_bf16_f32 v25, v30, v31
buffer_store_dwordx2 v[24:25], v23, {srd(R_WS)}, s{sT6} offen sc1
v_mov_b32 v26, 0x3f803f80
v_mov_b32 v27, 0x3f803f80
s_mov_b32 exec_lo, 0x00010001
s_mov_b32 exec_hi, 0x00010001
buffer_store_dwordx2 v[26:27], v22, {srd(R_WS)}, s{sT6} offen offset:256 sc1
s_mov_b64 exec, -1
v_mov_b32 v17, 0
""")
A.label("L_kv_pub")
A(f"""
s_lshl_b32 s{sT0}, s{sID}, 7
s_add_u32 s{sT0}, s{sT0}, {FL1}
v_mov_b32 v16, s{sTAG}
v_mov_b32 v9, 0
s_waitcnt vmcnt(0)
s_mov_b64 exec, 1
buffer_store_dwordx2 v[16:17], v9, {srd(R_WS)}, s{sT0} offen sc1
ds_add_u32 v{vCNT}, v{vONE}
s_mov_b64 exec, -1
""")
stamp(2)
A("s_branch L_S2")
def q_head():
    A(f"""
    v_mov_b32 v{vONE}, 1
    s_lshl_b32 s{sID}, s{sC}, 3
    s_add_u32 s{sID}, s{sID}, s{sG}
    s_waitcnt lgkmcnt(0)
    s_mul_i32 s{sTAG}, s{sEP}, 0x9E3779B1
    s_add_u32 s{sTAG}, s{sTAG}, 0x7F4A7C15
    s_waitcnt vmcnt(4)
    """)
    cnt_add(vCNT, vONE)
    prio(0)
def q_sig():
    A("s_waitcnt vmcnt(16)"); cnt_add(vCNT, vONE, 24)
    A("s_waitcnt vmcnt(0)"); cnt_add(vCNT, vONE, 28)
    prio(3)
    A("s_branch L_S2")
A.label("L_qx")
A(f"""
v_lshrrev_b32 v20, 4, v{vLANE}
v_and_b32 v21, 15, v{vLANE}
v_lshlrev_b32 v22, 4, v21
v_lshl_add_u32 v22, v20, 14, v22
""")
q_head()
for s_ in (2, 3):
    if s_ == 3: cnt_wait(vCNT, vTMP, 5)
    A(f"""
    s_add_u32 s{sT3}, s{sROT}, {s_}
    s_and_b32 s{sT3}, s{sT3}, 3
    s_lshl_b32 s{sT3}, s{sT3}, 8
    """)
    for i in range(16):
        A(f"s_mov_b32 m0, {XQ + s_*16640 + i*1040 - (i & 3)*1024}")
        A(f"s_add_u32 s{sT3}, s{sT3}, 4096" if (i & 3 == 0 and i) else "s_nop 0")
        A(f"buffer_load_dwordx4 v22, {srd(R_XB)}, s{sT3} offen offset:{(i & 3)*1024} lds")
q_sig()
A.label("L_qw")
srd_words([R_WQ])
wq_voffset(22, 23, 24, 25)
A(f"""
s_lshl_b32 s{sT0}, s{sG}, 7
s_add_u32 s{R_WQ}, s{R_WQ}, s{sT0}
s_addc_u32 s{R_WQ+1}, s{R_WQ+1}, 0
""")
q_head()
for s_ in (2, 3):
    if s_ == 3: cnt_wait(vCNT, vTMP, 5)
    A(f"""
    s_add_u32 s{sT3}, s{sROT}, {s_}
    s_and_b32 s{sT3}, s{sT3}, 3
    s_lshl_b32 s{sT3}, s{sT3}, 17
    """)
    for i in range(16):
        A(f"s_mov_b32 m0, {WQ + s_*16384 + i*1024}")
        A(f"s_add_u32 s{sT3}, s{sT3}, 8192" if i else "s_nop 0")
        A(f"buffer_load_dwordx4 v22, {srd(R_WQ)}, s{sT3} offen lds")
q_sig()
SSEC[0] = False
A.label("L_A1")
for i in range(4): A(f"v_mov_b32 v{vZ+i}, 0")
vXa, vWa, vFl, vQw, vQr, vAone = 8, 9, 10, 14, 15, vIDX
common_scalars()
for ct in range(8):
    A(f"v_mfma_f32_32x32x16_bf16 a[{16*ct}:{16*ct+15}], v[{vZ}:{vZ+3}], v[{vZ}:{vZ+3}], 0")
A(f"""
v_and_b32 v6, 15, v{vL31}
v_mul_u32_u24 v{vXa}, 1040, v6
v_lshl_add_u32 v{vXa}, v{vH}, 4, v{vXa}
v_lshrrev_b32 v6, 4, v{vL31}
v_lshl_add_u32 v{vXa}, v6, 8, v{vXa}
s_lshl_b32 s{sT0}, s{sTW}, 9
v_add_u32 v{vXa}, s{sT0}, v{vXa}
v_bfe_u32 v6, v{vLANE}, 2, 2
v_lshl_add_u32 v6, v{vH}, 3, v6
v_bfe_u32 v7, v{vLANE}, 4, 1
v_and_b32 v11, 3, v{vLANE}
v_lshlrev_b32 v11, 3, v11
v_lshl_add_u32 v11, v7, 5, v11
s_lshl_b32 s{sT0}, s{sCW}, 6
v_add_u32 v11, s{sT0}, v11
v_bfe_u32 v7, v{vLANE}, 3, 1
v_lshlrev_b32 v7, 6, v7
v_xor_b32 v11, v11, v7
v_lshl_add_u32 v{vWa}, v6, 7, v11
v_add_u32 v{vWa}, {WQ}, v{vWa}
s_lshl_b32 s{sT0}, s{sWAVE}, 13
s_add_u32 s{sT0}, s{sT0}, {FL1}
v_lshlrev_b32 v{vFl}, 7, v{vLANE}
v_add_u32 v{vFl}, s{sT0}, v{vFl}
s_lshl_b32 s{sT0}, s{sWAVE}, 16
s_add_u32 s{sT1}, s{sT0}, {KVT}
v_add_u32 v{vKt[0]}, s{sT1}, v{vL16x}
s_add_u32 s{sT1}, s{sT1}, 1024
v_lshlrev_b32 v13, 4, v{vL31}
v_mul_u32_u24 v14, 272, v{vH}
v_add3_u32 v13, v13, v14, s{sT1}
v_cmp_lt_u32 vcc, 16, v{vL31}
v_mov_b32 v14, 0x7ff00000
v_mov_b32 v{vIDX}, 0xdddddddd
v_cndmask_b32 v{vVt[0]}, v13, v14, vcc
s_lshl_b32 s{sKOFF}, s{sROT}, 14
s_lshl_b32 s{sT0}, s{sCW}, 2
s_add_u32 s{sT0}, s{sT0}, s{sTW}
s_lshl_b32 s{sT0}, s{sT0}, 10
s_add_u32 s{sT0}, s{sT0}, {QX}
v_add_u32 v{vQw}, s{sT0}, v{vL16x}
v_add_u32 v{vQr}, {QX}, v{vL16x}
s_waitcnt lgkmcnt(0)
""")
common_after_wait()
QP = OPT["qpre"]
sKVOK = sATG
vFG = 12
def ld_k(b, t, so=sKOFF):
    A(f"buffer_load_dwordx4 v[{KV[b]}:{KV[b]+3}], v{vKt[t]}, {srd(R_WS)}, s{so} offen sc1")
def ld_v(b, j, t, so=sKOFF):
    A(f"buffer_load_dwordx4 v[{KV[b]+4+4*j}:{KV[b]+7+4*j}], v{vVt[t]}, {srd(R_WS)}, s{so} offen offset:{544*j} sc1")
def kv_first():
    for b in range(OPT["kv0"]):
        A(f"s_add_u32 s{sT1}, s{sKOFF}, {b*KVS}")
        ld_k(b, 0, sT1); ld_v(b, 0, 0, sT1); ld_v(b, 1, 0, sT1)
    A(f"ds_max_f32 v{vCNT}, v{vFG+1} offset:{KM - CNT}")
    if OPT["kv0"] == 4 or OPT["g0"]: cnt_add(vCNT, vAone, 12)
def kv_try(tag):
    A(f"""
    v_cmp_ne_u32 vcc, s{sTAG}, v{vFG}
    s_cbranch_vccnz L_kvlate{tag}
    s_mov_b32 s{sKVOK}, 1
    """)
    kv_first()
    A(f"s_branch L_kvq{tag}")
    A.label(f"L_kvlate{tag}")
    flag_ld()
    A.label(f"L_kvq{tag}")
def flag_ld(): A(f"buffer_load_dwordx2 v[{vFG}:{vFG+1}], v{vFl}, {srd(R_WS)}, 0 offen sc1")
def q_rd(k):
    s_, kk = divmod(k, 8)
    f = 32 + 8*(k % 6)
    A(f"ds_read_b64_tr_b16 v[{f}:{f+1}], v{vWa} offset:{s_*16384 + kk*2048}")
    A(f"ds_read_b64_tr_b16 v[{f+2}:{f+3}], v{vWa} offset:{s_*16384 + kk*2048 + 512}")
    A(f"ds_read_b128 v[{f+4}:{f+7}], v{vXa} offset:{XQ + s_*16640 + kk*32}")
A(f"s_mov_b32 s{sKVOK}, 0")
A("s_waitcnt vmcnt(8)")
stamp(3, HST)
cnt_add(vCNT, vAone, 4)
cnt_wait(vCNT, 11, 4, 4)
for k in range(4): q_rd(k)
done = 0
for k in range(32):
    if k == OPT["q1a"]:
        A("s_waitcnt vmcnt(0)")
        cnt_add(vCNT, vAone, 4)
    if k == OPT["p1k"]: flag_ld()
    if k + 4 < 32:
        if (k + 4) % 8 == 0:
            s_ = (k + 4) // 8
            if s_ == 1: cnt_wait(vCNT, 11, 8, 4)
            else: cnt_wait(vCNT, 11, 2, 24 + 4*(s_ - 2))
            stamp(3 + s_, HST)
            done = k + 4
        q_rd(k + 4)
    if k >= done:
        A(f"s_waitcnt lgkmcnt({3*(min(32, k + 5) - k - 1)})")
    c = "0" if k == 0 else f"v[{S0}:{S0+15}]"
    f = 32 + 8*(k % 6)
    A(f"v_mfma_f32_32x32x16_bf16 v[{S0}:{S0+15}], v[{f}:{f+3}], v[{f+4}:{f+7}], {c}")
A(f"""
s_mul_i32 s{sT6}, s{sWAVE}, {6*CB_T}
s_add_u32 s{sT6}, s{sT6}, {CB}
v_add_u32 v11, s{sT6}, v{vL16x}
s_mov_b32 s{sLOOP}, 4
""")
A.nop(8)
for i in range(8):
    A(f"v_cvt_pk_bf16_f32 v{32+i}, v{S0+2*i}, v{S0+2*i+1}")
    if i == 3: A(f"ds_write_b128 v{vQw}, v[32:35]")
A(f"""
ds_write_b128 v{vQw}, v[36:39] offset:2048
s_waitcnt lgkmcnt(0)
""")
cnt_add(vCNT, vAone, 4)
A("s_waitcnt vmcnt(0)")
kv_try("b")
for hd in range(2):
    A(f"v_mul_f32 v{32+hd}, v{S0+8*hd}, v{S0+8*hd}")
    for i in range(1, 8):
        A(f"v_fmac_f32 v{32+hd}, v{S0+8*hd+i}, v{S0+8*hd+i}")
A(f"""
v_mov_b32 v34, v32
v_mov_b32 v35, v33
v_add_u32 v{vKt[1]}, {KVS}, v{vKt[0]}
v_add_u32 v{vKt[2]}, {2*KVS}, v{vKt[0]}
v_permlane32_swap_b32 v34, v32
v_permlane32_swap_b32 v35, v33
v_add_f32 v32, v32, v34
v_add_f32 v33, v33, v35
v_max_f32 v32, v32, v33
v_add_u32 v{vVt[2]}, {2*KVS}, v{vVt[0]}
ds_max_f32 v{vCNT}, v32 offset:{QM - CNT}
""")
cnt_wait(vCNT, 36, 12, 4)
stamp(7 if HST else 2)
for pr in range(4):
    A(f"s_add_u32 s{sT0}, s{sWAVE}, {pr + 1}")
    A(f"s_and_b32 s{sT0}, s{sT0}, 3")
    A(f"s_lshl_b32 s{sT0}, s{sT0}, 11")
    A(f"v_add_u32 v{37}, s{sT0}, v{vQr}")
    A(f"ds_read_b128 v[{QF+8*pr}:{QF+8*pr+3}], v37")
    A(f"ds_read_b128 v[{QF+8*pr+4}:{QF+8*pr+7}], v37 offset:1024")
A(f"""
s_cmp_lg_u32 s{sKVOK}, 0
s_cbranch_scc1 L_kvgo
s_waitcnt vmcnt(0)
v_cmp_ne_u32 vcc, s{sTAG}, v{vFG}
s_cbranch_vccz L_kvok
""")
poll_flags(vFl, vFG, 2, sleep=0)
A.label("L_kvok")
kv_first()
A.label("L_kvgo")
if OPT["pad"] and OPT["padat"] == 1: padto()
stamp(3, not HST)
A(f"""
v_add_u32 v{vKt[3]}, {3*KVS}, v{vKt[0]}
v_add_u32 v{vVt[3]}, {3*KVS}, v{vVt[0]}
s_waitcnt vmcnt({3*OPT['kv0'] - 3}) lgkmcnt(0)
v_mfma_f32_32x32x16_bf16 v[{S0}:{S0+15}], v[{KV[0]}:{KV[0]+3}], v[{QF}:{QF+3}], 0
v_add_u32 v{vVt[1]}, {KVS}, v{vVt[0]}
v_lshlrev_b32 v13, 2, v{vLANE}
v_add_u32 v13, s{sT6}, v13
""")
A.nop(9)
SB = [S0, S1]
LASTSYNC = 8
CBASE = 6
def part_write(ct):
    A(f"ds_write_b128 v11, a[{16*ct}:{16*ct+3}] offset:{ct*CB_T}")
    A(f"ds_write_b128 v11, a[{16*ct+4}:{16*ct+7}] offset:{ct*CB_T + 1024}")
    A(f"ds_write_b32 v13, a{16*ct+8} offset:{ct*CB_T + 2048}")
def period(kb, ct, mode):
    cur = SB[ct & 1]; oth = SB[(ct + 1) & 1]
    pct = (ct - 1) % 8
    pkb = kb if ct > 0 else (kb - 1) % 4
    nct = (ct + 1) % 8
    nkb = kb if ct < 7 else (kb + 1) % 4
    ld = ct == 0 and mode == "loop" and not OPT["noKV"]
    early = mode == "last" and 1 <= ct <= 6
    extra = {}
    if mode == "first" and OPT["kv0"] < 4:
        lds_ = []
        for b in range(OPT["kv0"], 4):
            lds_ += [lambda b=b: ld_k(b, b), lambda b=b: ld_v(b, 0, b), lambda b=b: ld_v(b, 1, b)]
        for n, f_ in enumerate(lds_): extra[[1, 2, 3, 6, 7, 11, 12, 13, 14][n]] = f_
    def e(i):
        A(f"v_exp_f32 v{cur+i}, v{cur+i}")
        if i in extra: extra[i]()
        if i == 15 and extra and not OPT["g0"]: cnt_add(vCNT, vAone, 12)
    e(0); e(1)
    if mode != "first":
        A(f"v_smfmac_f32_32x32x32_bf16 a[{16*pct}:{16*pct+15}], v[{KV[pkb]+8}:{KV[pkb]+11}], v[{oth+8}:{oth+15}], v{vIDX}")
    e(2)
    if (mode, ct) == ("last", 0): A(f"ds_read_b32 v12, v{vCNT} offset:8")
    if (mode, ct) == ("last", 7):
        A("s_waitcnt lgkmcnt(0)")
        cnt_add(vCNT, vIDX, 4)
    e(3)
    if ct == 7 and mode == "loop": A(f"s_waitcnt vmcnt(6)")
    e(4)
    if (mode, ct) != ("last", 7):
        A(f"v_mfma_f32_32x32x16_bf16 v[{oth}:{oth+15}], v[{KV[nkb]}:{KV[nkb]+3}], v[{QF+4*nct}:{QF+4*nct+3}], 0")
    for i in range(5, 10): e(i)
    A(f"v_smfmac_f32_32x32x32_bf16 a[{16*ct}:{16*ct+15}], v[{KV[kb]+4}:{KV[kb]+7}], v[{cur}:{cur+7}], v{vIDX}")
    e(10); e(11)
    e(12)
    if ld: ld_k(pkb, pkb)
    if early: A(f"ds_write_b128 v11, a[{16*(ct-1)}:{16*(ct-1)+3}] offset:{(ct-1)*CB_T}")
    e(13)
    if ld: ld_v(pkb, 0, pkb)
    if (kb, ct, mode) == (0, 1, "loop"): A(f"s_add_u32 s{sKOFF}, s{sKOFF}, {4*KVS}")
    if (kb, ct, mode) == (2, 7, "loop"): A(f"s_sub_u32 s{sLOOP}, s{sLOOP}, 1")
    if early: A(f"ds_write_b128 v11, a[{16*(ct-1)+4}:{16*(ct-1)+7}] offset:{(ct-1)*CB_T + 1024}")
    e(14)
    if ld: ld_v(pkb, 1, pkb)
    if (kb, ct, mode) == (0, 1, "loop"): A(f"s_and_b32 s{sKOFF}, s{sKOFF}, 0xffff")
    if (kb, ct, mode) == (2, 7, "loop"): A(f"s_cmp_eq_u32 s{sLOOP}, 0")
    if early: A(f"ds_write_b32 v13, a{16*(ct-1)+8} offset:{(ct-1)*CB_T + 2048}")
    e(15)
    if mode == "last" and ct == 8 - OPT["trig"] - 1: cnt_add(vCNT, vIDX, 12)
    if (mode, ct) == ("last", 0):
        A(f"""
        s_waitcnt lgkmcnt(0)
        v_readfirstlane_b32 s{sT0}, v12
        s_cmp_ge_u32 s{sT0}, {4 if not (OPT["noS"] or OPT["nochk"]) else 0}
        s_cbranch_scc1 L_sfree
        """)
        cnt_wait(vCNT, 12, 4, 8, sleep=2)
        A.label("L_sfree")
if OPT["cyc"]: A(f"s_memtime s[{sST+10}:{sST+11}]")
period(0, 0, "first")
A("s_branch L_attn1")
A(".p2align 6")
A.label("L_attn")
loop_start = len(A.lines)
for kb in range(4):
    for ct in range(8):
        if (kb, ct) == (0, 1): A.label("L_attn1")
        period(kb, ct, "loop")
    if kb == 2: A("s_cbranch_scc1 L_last")
loop_end = len(A.lines)
A("s_branch L_attn")
A.label("L_last")
for ct in range(8):
    period(3, ct, "last")
A(f"""
s_nop 1
v_smfmac_f32_32x32x32_bf16 a[112:127], v[{KV[3]+8}:{KV[3]+11}], v[{S1+8}:{S1+15}], v{vIDX}
""")
stamp(4, not HST)
if OPT["cyc"]: A(f"s_memtime s[{sST+12}:{sST+13}]")
if OPT["pad"] and OPT["padat"] == 2: padto()
A(f"s_mov_b32 s{sATG}, 16")
A.label("L_comb")
for k in range(3):
    A(f"""
    s_add_u32 s{sT0}, s{sWAVE}, {k + 1}
    s_and_b32 s{sT0}, s{sT0}, 3
    s_mul_i32 s{sT0}, s{sT0}, {6*CB_T}
    s_add_u32 s{sT0}, s{sT0}, {CB + 2*(2 - k)*CB_T}
    v_add_u32 v{8+k}, s{sT0}, v{vL16x}
    v_lshl_add_u32 v{[12, 14, 15][k]}, v{vL31}, 2, s{sT0}
    """)
A(f"""
s_lshl_b32 s{sT1}, s{sG}, 2
s_add_u32 s{sT1}, s{sT1}, s{sWAVE}
s_lshl_b32 s{sT1}, s{sT1}, 10
s_lshl_b32 s{sT2}, s{sC}, 16
s_add_u32 s{sT1}, s{sT1}, s{sT2}
s_add_u32 s{sT1}, s{sT1}, {OB}
s_add_u32 s{sT2}, s{sT1}, 32768
s_waitcnt vmcnt(0)
""")
cnt_wait(vCNT, 16, f"s{sATG}", 4)
def astamp(i):
    if OPT["cyc"] or HST or not OPT["stamps"]: return
    stamp(i)
astamp(5)
PD = [[16, 24, 32, 40], [80, 88, 96, 104]]
PL = [[112, 113, 114, 115], [116, 117, 118, 119]]
A(f"ds_read_b64 v[120:121], v0 offset:{QM - CNT}")
for u in range(2):
    for k in range(3):
        A(f"ds_read_b32 v{PL[u][k+1]}, v{[12, 14, 15][k]} offset:{u*CB_T + 2048}")
    for k in range(3):
        A(f"ds_read_b128 v[{PD[u][k+1]}:{PD[u][k+1]+3}], v{8+k} offset:{u*CB_T}")
        A(f"ds_read_b128 v[{PD[u][k+1]+4}:{PD[u][k+1]+7}], v{8+k} offset:{u*CB_T + 1024}")
    if u == 0: A("s_waitcnt lgkmcnt(6)")
for u in range(2):
    A(f"v_accvgpr_read_b32 v{PL[u][0]}, a{16*(6+u)+8}")
    A(f"v_accvgpr_read_b32 v{122+u}, a{16*(6+u)+8}")
A(f"""
v_mul_f32 v120, v120, v121
v_add_f32 v113, v113, v114
v_permlane32_swap_b32 v112, v122
v_permlane32_swap_b32 v116, v123
v_cmp_nge_f32 vcc, {f2u(-1.0 if OPT['force_slow'] else 1000.0)}, v120
v_add_f32 v112, v112, v115
v_add_f32 v112, v112, v113
v_rcp_f32 v112, v112
s_cbranch_vccnz L_slow
L_fast:
""")
def comb(u, soff):
    d = PD[u]
    for i in range(8): A(f"v_accvgpr_read_b32 v{d[0]+i}, a{16*(6+u)+i}")
    if u == 0: A("s_waitcnt lgkmcnt(9)")
    else:
        A(f"""
        s_waitcnt lgkmcnt(2)
        v_add_f32 v117, v117, v118
        v_add_f32 v116, v116, v119
        v_add_f32 v116, v116, v117
        v_rcp_f32 v116, v116
        """)
    for i in range(0, 8, 2): A(f"v_pk_add_f32 {p2(d[1]+i)}, {p2(d[1]+i)}, {p2(d[2]+i)}")
    if u == 1: A("s_waitcnt lgkmcnt(0)")
    for i in range(0, 8, 2): A(f"v_pk_add_f32 {p2(d[0]+i)}, {p2(d[0]+i)}, {p2(d[3]+i)}")
    for i in range(0, 8, 2): A(f"v_pk_add_f32 {p2(d[0]+i)}, {p2(d[0]+i)}, {p2(d[1]+i)}")
    for i in range(0, 8, 2):
        A(f"v_pk_mul_f32 {p2(d[0]+i)}, {p2(d[0]+i)}, {p2(PL[u][0])} op_sel_hi:[1,0]")
    for i in range(0, 8, 2):
        A(f"v_cvt_pk_bf16_f32 v{d[1]+i//2}, v{d[0]+i}, v{d[0]+i+1}")
    A(f"buffer_store_dwordx4 v[{d[1]}:{d[1]+3}], v{vL16x}, {srd(R_WS)}, s{soff} offen sc1")
def p2(r): return f"v[{r}:{r+1}]"
comb(0, sT1); comb(1, sT2)
astamp(6)
if OPT["oack"]: A("s_waitcnt vmcnt(0)")
cnt_add(vCNT, vIDX, 12)
A(f"""
s_or_b32 s{sT0}, s2, s{sWAVE}
s_cmp_lg_u32 s{sT0}, 0
s_cbranch_scc1 L_noep
s_add_u32 s{sT0}, s{sEP}, 1
v_mov_b32 v10, s{sT0}
v_mov_b32 v11, 0
s_mov_b64 exec, 1
buffer_store_dword v10, v11, {srd(R_WS)}, 0 offen
s_mov_b64 exec, -1
L_noep:
""")
A.label("L_fin")
if OPT["pad"] and OPT["padat"] == 0:
    A("s_waitcnt vmcnt(0)"); padto()
if OPT["stamps"]:
    A(f"""
    s_waitcnt vmcnt(0)
    s_memrealtime s[100:101]
    s_waitcnt lgkmcnt(0)
    s_lshl_b32 s{sT0}, s2, 3
    s_add_u32 s{sT0}, s{sT0}, s{sWAVE}
    s_lshl_b32 s{sT0}, s{sT0}, 6
    s_add_u32 s{sT0}, s{sT0}, {DBG + 0x800000}
    v_mov_b32 v11, 0
    """)
    for i in range(9): A(f"v_mov_b32 v{16+i}, s{sST+2*i}")
    A(f"""
    s_mov_b64 exec, 1
    buffer_store_dwordx4 v[16:19], v11, {srd(R_WS)}, s{sT0} offen
    buffer_store_dwordx4 v[20:23], v11, {srd(R_WS)}, s{sT0} offen offset:16
    buffer_store_dword v24, v11, {srd(R_WS)}, s{sT0} offen offset:32
    """)
if OPT["hdbg"]:
    A(f"""
    s_load_dwordx2 s[{sT2}:{sT3}], s[0:1], 120
    s_not_b32 s{sT0}, s{sST}
    v_mov_b32 v30, s{sT0}
    v_mov_b32 v31, 0
    s_waitcnt lgkmcnt(0)
    global_atomic_umax v31, v30, s[{sT2}:{sT3}]
    s_cmp_ge_u32 s{sWAVE}, 4
    s_cbranch_scc1 L_hdS
    """)
    for k, i in enumerate((0, 2, 3, 4, 5, 6, 8)):
        A(f"global_atomic_umax v31, v{16+i}, s[{sT2}:{sT3}] offset:{4*(1+k)}")
    A("s_branch L_end")
    A.label("L_hdS")
    for k, i in enumerate((1, 2, 3, 4, 5, 6, 7, 8)):
        if i in (1, 2):
            A(f"s_cmp_lg_u32 s{sWAVE}, 4")
            A(f"s_cbranch_scc1 L_hd{i}")
        A(f"global_atomic_umax v31, v{16+i}, s[{sT2}:{sT3}] offset:{4*(8+k)}")
        if i in (1, 2): A.label(f"L_hd{i}")
A.label("L_end")
A("s_endpgm")

A.label("L_S2a")
A("s_waitcnt vmcnt(0)")
A.label("L_S2")
SSEC[0] = True
kload([(R_XA, 0), (R_BRE, 24), (R_BIM, 32), (R_CRE, 40), (R_CIM, 48), (R_WO, 104), (R_AGG, 128)])
if OPT["pfc"]:
    A(f"""
    s_cmp_lg_u32 s{sWAVE}, 7
    s_cbranch_scc1 L_nopfcode
    s_getpc_b64 s[{sT0}:{sT1}]
    L_pc:
    s_sub_u32 s{sT0}, s{sT0}, L_pc-{NAME}_kernel
    s_subb_u32 s{sT1}, s{sT1}, 0
    s_lshl_b32 s{sLOOP}, s{sROT}, 13
    v_lshlrev_b32 v16, 7, v{vLANE}
    v_add_u32 v16, s{sLOOP}, v16
    v_min_u32 v16, L_hot_end-{NAME}_kernel-4, v16
    global_load_dword v{vDUM}, v16, s[{sT0}:{sT1}]
    L_nopfcode:
    """)
common_scalars()
srd_words([R_XA, R_BRE, R_BIM, R_CRE, R_CIM, R_WO, R_AGG])
A(f"""
s_lshl_b32 s{sT3}, s{sG}, 7
s_lshl_b32 s{sT4}, s{sG}, 16
s_waitcnt lgkmcnt(0)
s_mov_b64 s[{P_LRE}:{P_LRE+1}], s[{R_BRE}:{R_BRE+1}]
s_mov_b64 s[{P_LIM}:{P_LIM+1}], s[{R_BIM}:{R_BIM+1}]
s_mov_b64 s[{P_LDT}:{P_LDT+1}], s[{R_CRE}:{R_CRE+1}]
s_mov_b64 s[{P_DSK}:{P_DSK+1}], s[{R_CIM}:{R_CIM+1}]
s_mov_b64 s[{P_WV}:{P_WV+1}], s[{R_WO}:{R_WO+1}]
""")
for r, t in ((R_XA, sT2), (R_BRE, sT4), (R_BIM, sT4), (R_CRE, sT4), (R_CIM, sT4), (R_WO, sT3)):
    A(f"s_add_u32 s{r}, s{r}, s{t}")
    A(f"s_addc_u32 s{r+1}, s{r+1}, 0")
A(f"""
s_add_u32 s{R_AGG}, s{R_AGG}, {AGG}
s_addc_u32 s{R_AGG+1}, s{R_AGG+1}, 0
""")
common_after_wait(False)
if OPT["tlb"]:
    A(f"""
    s_cmp_lg_u32 s{sSW}, 2
    s_cbranch_scc1 L_notlb
    v_mov_b32 v16, 0
    s_lshl_b32 s{sT0}, s{sC}, 17
    s_add_u32 s{sT0}, s{sT0}, {HB}
    s_mov_b32 s{sT1}, {KVT}
    s_mov_b64 exec, 1
    """)
    for R in (R_XA, R_BRE, R_BIM, R_WO, R_CRE, R_CIM, R_OUT):
        A(f"buffer_load_dword v{vDUM}, v16, {srd(R)}, 0 offen")
    A(f"""
    buffer_load_dword v{vDUM}, v16, {srd(R_WS)}, s{sOB} offen sc1
    buffer_load_dword v{vDUM}, v16, {srd(R_WS)}, s{sT0} offen offset:2048 sc1
    s_mov_b64 exec, -1
    L_notlb:
    """)
A(f"""
s_add_u32 s{sROT}, s{sC}, s{sG}
s_and_b32 s{sROT}, s{sROT}, 3
v_lshrrev_b32 v20, 4, v{vLANE}
v_and_b32 v21, 15, v{vLANE}
v_lshlrev_b32 v22, 4, v21
v_lshl_add_u32 v{vBo}, v20, 14, v22
v_lshrrev_b32 v23, 1, v20
v_and_b32 v24, 1, v20
v_lshlrev_b32 v23, 15, v23
v_lshl_add_u32 v23, v24, 12, v23
v_add_u32 v{vXo}, v23, v22
v_lshlrev_b32 v{vPF}, 7, v21
s_lshl_b32 s{sT0}, s2, 11
v_add_u32 v{vPF}, s{sT0}, v{vPF}
""")
def g1_soff(s):
    A(f"""
    s_add_u32 s{sT5}, s{sROT}, {s}
    s_and_b32 s{sT5}, s{sT5}, 3
    s_lshl_b32 s{sT5}, s{sT5}, 8
    s_lshl_b32 s{sT3}, s{sSW}, 12
    s_add_u32 s{sT3}, s{sT3}, s{sT5}
    s_lshl_b32 s{sT4}, s{sTW}, 14
    s_add_u32 s{sT4}, s{sT4}, s{sT5}
    s_lshl_b32 s{sT5}, s{sCW}, 11
    s_add_u32 s{sT4}, s{sT4}, s{sT5}
    s_add_u32 s{sT5}, s{sT4}, 8192
    """)
def capw(c=None):
    c = OPT["cap"] if c is None else c
    if c: A(f"s_waitcnt vmcnt({c})")
def dma_piece(n):
    dma_piece_(n)
    capw(OPT["cap0"] if n < OPT["npre"] else None)
def dma_piece_(n):
    st, r = divmod(n, 12); i, m = divmod(r, 3)
    slot = SLOT[st % 3]
    if r == 0: g1_soff(st)
    if m == 0:
        A(f"s_add_u32 m0, s{sT7}, {slot + XA_O + i*1040 - (i>>1)*1024}")
        A("s_nop 0")
        A(f"buffer_load_dwordx4 v{vXo}, {srd(R_XA)}, s{sT5 if i & 1 else sT4} offen offset:{(i>>1)*1024} lds")
    else:
        A(f"s_add_u32 m0, s{sT7}, {slot + [0, BRE_O, BIM_O][m] + i*16}")
        A("s_nop 0")
        A(f"buffer_load_dwordx4 v{vBo}, {srd([0, R_BRE, R_BIM][m])}, s{sT3} offen offset:{i*1024} lds")
LOG2E = math.log2(math.e)
a0, a1, a2, a3, a4, a5 = PRM, PRM+1, PRM+2, 96, 97, 98
vLR, vLI = vL1, vL1 + 1
A(f"""
s_mov_b32 s{sT0}, {f2u(LOG2E)}
v_lshlrev_b32 v{a0}, 16, v{a0}
v_lshlrev_b32 v{a1}, 16, v{a1}
v_lshlrev_b32 v{a2}, 16, v{a2}
v_mul_f32 v{a2}, s{sT0}, v{a2}
v_exp_f32 v{a2}, v{a2}
s_nop 0
v_cvt_pk_bf16_f32 v{a2}, v{a2}, v{a2}
v_and_b32 v{a2}, 0xffff0000, v{a2}
v_mul_f32 v{a3}, v{a2}, v{a0}
v_mul_f32 v{a4}, v{a2}, v{a1}
v_mul_f32 v{a3}, s{sT0}, v{a3}
v_exp_f32 v{a3}, v{a3}
v_mul_f32 v{a4}, 0.15915494, v{a4}
v_fract_f32 v{a4}, v{a4}
v_cos_f32 v{vLR}, v{a4}
v_sin_f32 v{vLI}, v{a4}
s_nop 0
v_mul_f32 v{vLR}, v{a3}, v{vLR}
v_mul_f32 v{vLI}, v{a3}, v{vLI}
v_mul_f32 v{a2}, v{a0}, v{a0}
v_fmac_f32 v{a2}, v{a1}, v{a1}
v_rcp_f32 v{a2}, v{a2}
v_add_f32 v{a3}, -1.0, v{vLR}
v_mul_f32 v{a4}, v{a3}, v{a0}
v_fmac_f32 v{a4}, v{vLI}, v{a1}
v_mul_f32 v{a5}, v{vLI}, v{a0}
v_fma_f32 v{a5}, -v{a3}, v{a1}, v{a5}
v_add_f32 v{a2}, v{a2}, v{a2}
v_mul_f32 v{vCF}, v{a4}, v{a2}
v_mul_f32 v{vCF+1}, v{a5}, v{a2}
""")
def csq(d, s_):
    A(f"v_mul_f32 v{a0}, v{s_+1}, v{s_+1}")
    A(f"v_mul_f32 v{a1}, v{s_}, v{s_+1}")
    A(f"v_fma_f32 v{d}, v{s_}, v{s_}, -v{a0}")
    A(f"v_add_f32 v{d+1}, v{a1}, v{a1}")
csq(vL8, vL1); csq(vL8, vL8); csq(vL8, vL8)
csq(vL16, vL8)
csq(vL64, vL16); csq(vL64, vL64)
csq(vL512, vL64); csq(vL512, vL512); csq(vL512, vL512)
vD = PRM + 3
A(f"""
v_and_b32 v20, 1, v{vL31}
v_lshlrev_b32 v20, 4, v20
v_lshlrev_b32 v{vD}, v20, v{vD}
v_bfe_u32 v20, v{vL31}, 3, 1
v_cmp_eq_u32 vcc, v20, v{vH}
v_bfe_u32 v21, v{vL31}, 1, 2
v_lshrrev_b32 v22, 4, v{vL31}
v_cndmask_b32 v{vD}, 0, v{vD}, vcc
v_lshl_add_u32 v21, v22, 2, v21
""")
for i in range(8):
    A(f"v_cmp_eq_u32 vcc, {i}, v21")
    A("s_nop 1")
    A(f"v_cndmask_b32 v{DG+i}, 0, v{vD}, vcc")
A(f"""
v_and_b32 v20, 15, v{vL31}
v_mul_u32_u24 v20, 1040, v20
v_lshl_add_u32 v20, v{vH}, 4, v20
v_lshrrev_b32 v21, 4, v{vL31}
v_lshl_add_u32 v20, v21, 8, v20
s_lshl_b32 s{sT0}, s{sTW}, 9
v_add_u32 v{vAa[0]}, s{sT0}, v20
v_add_u32 v{vAa[1]}, {SLOT[1]}, v{vAa[0]}
s_lshl_b32 s{sT0}, s{sCW}, 9
s_add_u32 s{sT0}, s{sT0}, {BRE_O}
v_add_u32 v{vBa[0]}, s{sT0}, v20
v_add_u32 v{vBa[1]}, {SLOT[1]}, v{vBa[0]}
v_bfe_u32 v20, v{vL31}, 2, 1
v_lshlrev_b32 v20, 3, v20
v_bfe_u32 v21, v{vL31}, 4, 1
v_lshl_add_u32 v20, v21, 2, v20
v_and_b32 v21, 3, v{vL31}
v_add_u32 v20, v20, v21
v_mul_u32_u24 v20, 1040, v20
v_bfe_u32 v21, v{vL31}, 3, 1
v_lshl_add_u32 v20, v21, 8, v20
v_lshl_add_u32 v20, v{vH}, 4, v20
s_lshl_b32 s{sT0}, s{sTW}, 9
s_and_b32 s{sT1}, s{sG}, 1
s_lshl_b32 s{sT1}, s{sT1}, 7
s_add_u32 s{sT0}, s{sT0}, s{sT1}
s_lshl_b32 s{sT1}, s{sCW}, 6
s_add_u32 s{sT0}, s{sT0}, s{sT1}
s_lshr_b32 s{sLOOP}, s{sG}, 1
s_sub_u32 s{sLOOP}, s{sLOOP}, s{sROT}
s_and_b32 s{sLOOP}, s{sLOOP}, 3
s_mul_i32 s{sT1}, s{sLOOP}, {SLOT[1]}
s_cmp_eq_u32 s{sLOOP}, 3
s_cselect_b32 s{sT1}, 0, s{sT1}
s_add_u32 s{sT0}, s{sT0}, s{sT1}
v_add_u32 v{vDa}, s{sT0}, v20
s_mul_i32 s{sT7}, s{sSW}, {4*1040}
v_add_u32 v{vAa[2]}, {SLOT[2]}, v{vAa[0]}
v_add_u32 v{vBa[2]}, {SLOT[2]}, v{vBa[0]}
""")
cnt_wait(vCNT, vTMP, 6, 0, sleep=1)
cnt_wait(vCNT, vTMP, 4, 12, sleep=1)
if OPT["stgl"] > 2: cnt_wait(vCNT, vTMP, 4*OPT["stgl"], 4, sleep=2)
def pfx(items):
    if OPT["pfb"] != 2: return
    nsh = 8 if OPT["map84"] else 4
    for R, sw, shift in items:
        lbl = A.newlabel("pfx")
        A(f"""
        s_cmp_lg_u32 s{sSW}, {sw}
        s_cbranch_scc1 {lbl}
        s_and_b32 s{sT0}, s{sC}, {nsh - 1}
        s_lshl_b32 s{sT0}, s{sT0}, {shift + 6 + (0 if nsh == 8 else 1)}
        v_lshlrev_b32 v{vPF}, {shift}, v{vLANE}
        buffer_load_dword v{vDUM}, v{vPF}, {srd(R)}, s{sT0} offen
        """)
        if nsh == 4:
            A(f"s_add_u32 s{sT0}, s{sT0}, {64 << shift}")
            A(f"buffer_load_dword v{vDUM}, v{vPF}, {srd(R)}, s{sT0} offen")
        A.label(lbl)
def pf16(pairs, lbl):
    if OPT["pfb"] != 1: return
    A(f"""
    s_cmp_lg_u32 s{sSW}, 1
    s_cbranch_scc1 {lbl}
    s_mov_b64 exec, 0xffff
    """)
    for p in pairs: A(f"global_load_dword v{vDUM}, v{vPF}, s[{p}:{p+1}]")
    A(f"s_mov_b64 exec, -1\n{lbl}:")
pf16([P_LRE, P_LIM, P_WV], "L_nopfb")
cnt_wait(vCNT, vTMP, 12, 4, sleep=0)
if OPT["noS"]: A("s_branch L_fin")
prio(OPT["gprio"])
sstamp(1, 1)
NPRE = OPT["npre"]
for n in range(NPRE): dma_piece(n)
ISS = [NPRE]
A(f"s_waitcnt vmcnt({NPRE - 12})")
sstamp(2, 1)
prio(OPT["vprio"])
sync_add(False); sync_wait(0)
sstamp(3, 1)
G1B = [FRS, FRS + 12, 64]
def g1_stage(s, extra=None, nwr=None, early_add=None):
    slot = s % 3
    prio(3 if (OPT["g1p"] >> s) & 1 else OPT["gprio"])
    sk = A.newlabel("nod")
    A(f"""
    s_cmp_lg_u32 s{sLOOP}, {s}
    s_cbranch_scc1 {sk}
    ds_read_b128 v[64:67], v{vDa}
    ds_read_b128 v[68:71], v{vDa} offset:32
    s_waitcnt lgkmcnt(0)
    v_mfma_f32_32x32x16_bf16 v[{Y0}:{Y0+15}], v[64:67], v[{DG}:{DG+3}], 0
    v_mfma_f32_32x32x16_bf16 v[{Y0}:{Y0+15}], v[68:71], v[{DG+4}:{DG+7}], v[{Y0}:{Y0+15}]
    {sk}:
    """)
    def rd(k):
        f = G1B[k % 3]
        A(f"ds_read_b128 v[{f}:{f+3}], v{vAa[slot]} offset:{k*32}")
        A(f"ds_read_b128 v[{f+4}:{f+7}], v{vBa[slot]} offset:{k*32}")
        A(f"ds_read_b128 v[{f+8}:{f+11}], v{vBa[slot]} offset:{k*32 + (BIM_O-BRE_O)}")
    rd(0); rd(1)
    for k in range(8):
        f = G1B[k % 3]
        if k + 2 < 8: rd(k + 2)
        nw = nwr(k - 1) if (nwr and k > 0) else 0
        A(f"s_waitcnt lgkmcnt({min(15, 3*(min(8, k + 3) - k - 1) + nw)})")
        if k == 7 and early_add is not None:
            if early_add: A(early_add)
            sync_add(False)
        cr = "0" if (s == 0 and k == 0) else f"v[{UR}:{UR+15}]"
        ci = "0" if (s == 0 and k == 0) else f"v[{UI}:{UI+15}]"
        A(f"v_mfma_f32_32x32x16_bf16 v[{UR}:{UR+15}], v[{f}:{f+3}], v[{f+4}:{f+7}], {cr}")
        if extra: extra(k)
        A(f"v_mfma_f32_32x32x16_bf16 v[{UI}:{UI+15}], v[{f}:{f+3}], v[{f+8}:{f+11}], {ci}")
def issue_upto(lim, k, last):
    cnt = -(-(lim - ISS[0]) // max(1, last - k)) if k < last else 0
    for n in range(ISS[0], min(lim, ISS[0] + cnt)): dma_piece(n)
    ISS[0] = min(lim, ISS[0] + cnt)
L0 = OPT["l0"]
g1_stage(0, lambda k: issue_upto(L0, k, 7), early_add=f"s_waitcnt vmcnt({L0 - 24})")
assert ISS[0] == L0
sstamp(4, 1)
prio(OPT["vprio"])
pfx([(R_WO, 1, 10)])
sync_wait(0)
g1_stage(1, lambda k: issue_upto(48, k, 7), early_add="s_waitcnt vmcnt(12)")
assert ISS[0] == 48
sstamp(5, 1)
prio(OPT["vprio"])
CLR = 64
A(f"""
v_mov_b32 v{CLR}, -1
v_mov_b32 v{CLR+1}, -1
v_mov_b32 v{CLR+2}, -1
v_mov_b32 v{CLR+3}, -1
s_lshl_b32 s{sT0}, s{sG}, 12
s_add_u32 s{sT0}, s{sT0}, s{sOB}
s_lshl_b32 s{sT1}, s{sCW}, 11
s_add_u32 s{sT0}, s{sT0}, s{sT1}
buffer_store_dwordx4 v[{CLR}:{CLR+3}], v{vL16x}, {srd(R_WS)}, s{sT0} offen sc1
buffer_store_dwordx4 v[{CLR}:{CLR+3}], v{vL16x}, {srd(R_WS)}, s{sT0} offen offset:1024 sc1
v_mov_b32 v{CLR+4}, 0
v_mov_b32 v{CLR+5}, s{sTAG}
v_mov_b32 v{CLR+6}, 0
v_mov_b32 v{CLR+7}, s{sTAG}
s_lshl_b32 s{sT1}, s{sID}, 7
s_add_u32 s{sT1}, s{sT1}, {AGG_DUMMY}
s_mov_b64 exec, 1
buffer_store_dwordx4 v[{CLR+4}:{CLR+7}], v{CLR+4}, {srd(R_AGG)}, s{sT1} offen sc1
s_mov_b64 exec, -1
""")
sync_wait(0)
g1_stage(2, early_add="s_waitcnt vmcnt(0)")
sstamp(6, 1)
prio(OPT["vprio"])
pf16([P_LDT, P_DSK], "L_nopfc")
pfx([(R_CRE, 2, 7), (R_CIM, 3, 7)])
wq_voffset(5, 6, 8, 15)
A(f"""
s_mul_i32 s{sT2}, s{sSW}, {16*1040}
s_lshl_b32 s{sT3}, s{sSW}, 14
s_lshl_b32 s{sT6}, s{sSW}, 17
""")
sync_wait(0)
def wo_piece(i):
    A(f"""
    s_add_u32 m0, s{sT3}, {WO + i*1024}
    s_add_u32 s{sT1}, s{sT6}, {i*8192}
    buffer_load_dwordx4 v5, {srd(R_WO)}, s{sT1} offen lds
    """)
    capw()
def c_piece(R, base, i):
    A(f"s_add_u32 m0, s{sT2}, {base + i*1040 - (i & 3)*1024}")
    if i & 3 == 0: A(f"s_add_u32 s{sT4}, s{sT3}, {i*1024}")
    else: A("s_nop 0")
    A(f"buffer_load_dwordx4 v{vL16x}, {srd(R)}, s{sT4} offen offset:{(i & 3)*1024} lds")
    capw()
def ex3(k):
    wo_piece(2*k); wo_piece(2*k + 1)
g1_stage(3, ex3)
sstamp(7, 1); sstamp(1, 2)
prio(OPT["vprio"])
stamp(3)
A(f"""
s_lshl_b32 s{sT0}, s{sTW}, 10
s_lshl_b32 s{sT1}, s{sCW}, 8
s_add_u32 s{sT1}, s{sT1}, {EB}
s_add_u32 s{sT0}, s{sT0}, s{sT1}
v_lshlrev_b32 v10, 3, v{vL31}
v_add_u32 v11, s{sT1}, v10
v_lshl_add_u32 v10, v{vH}, 9, v10
v_add_u32 v10, s{sT0}, v10
""")
A.nop(4)
if OPT["dbg"]:
    A(f"""
    s_lshl_b32 s{sT0}, s{sID}, 2
    s_add_u32 s{sT0}, s{sT0}, s{sSW}
    s_lshl_b32 s{sT0}, s{sT0}, 13
    s_add_u32 s{sT0}, s{sT0}, {DBG}
    v_lshlrev_b32 v12, 2, v{vLANE}
    """)
    for i in range(32):
        A(f"buffer_store_dword v{UR+i}, v12, {srd(R_WS)}, s{sT0} offen")
        A(f"s_add_u32 s{sT0}, s{sT0}, 256")
    A("s_waitcnt vmcnt(0)")
def cstep4(dr, di, pr, pi, l, ur, ui, tr, ti):
    A(f"v_fma_f32 v{tr}, v{l}, v{pr}, v{ur}")
    A(f"v_fma_f32 v{ti}, v{l}, v{pi}, v{ui}")
    A(f"v_fma_f32 v{dr}, -v{l+1}, v{pi}, v{tr}")
    A(f"v_fma_f32 v{di}, v{l+1}, v{pr}, v{ti}")
def p2(r): return f"v[{r}:{r+1}]"
def pkstep(dr, di, pr, pi, l, ur, ui, tr, ti):
    A(f"v_pk_fma_f32 {p2(tr)}, {p2(l)}, {p2(pr)}, {p2(ur)} op_sel_hi:[0,1,1]")
    A(f"v_pk_fma_f32 {p2(ti)}, {p2(l)}, {p2(pi)}, {p2(ui)} op_sel_hi:[0,1,1]")
    A(f"v_pk_fma_f32 {p2(dr)}, {p2(l)}, {p2(pi)}, {p2(tr)} op_sel:[1,0,0] neg_lo:[1,0,0] neg_hi:[1,0,0]")
    A(f"v_pk_fma_f32 {p2(di)}, {p2(l)}, {p2(pr)}, {p2(ti)} op_sel:[1,0,0]")
pa = [(FRS, FRS+2), (6, 8)]
p = (UR, UI)
for j in range(1, 8):
    d = pa[j & 1]
    pkstep(d[0], d[1], p[0], p[1], vL1, UR+2*j, UI+2*j, FRS+4, FRS+6)
    p = d
EA = (6, 8)
cstep4(FRS, FRS+1, 6, 8, vL8, 7, 9, FRS+4, FRS+5)
A(f"ds_write_b64 v10, v[{FRS}:{FRS+1}]")
A("s_waitcnt vmcnt(0)")
sync_add()
LB = 64
A(f"""
s_lshl_b32 s{sT0}, s{sTW}, 4
s_sub_u32 s{sT0}, s{sC}, s{sT0}
s_sub_u32 s{sT0}, s{sT0}, 1
s_lshl_b32 s{sT0}, s{sT0}, 13
v_lshlrev_b32 v5, 16, v{vH}
v_sub_u32 v5, s{sT0}, v5
v_lshl_add_u32 v5, v{vP2}, 3, v5
s_lshl_b32 s{sT1}, s{sID}, 7
s_add_u32 s{sT1}, s{sT1}, {AGG_DUMMY}
""")
for k in range(8):
    A(f"v_min_u32 v{96+k}, s{sT1}, v5")
    if k < 7: A(f"v_add_u32 v5, {(-8192) & 0xffffffff}, v5")
sync_wait(0)
sstamp(2, 2)
E = FRS
for s in range(4):
    A(f"ds_read_b64 v[{E+2*s}:{E+2*s+1}], v11 offset:{s*512}")
A("s_waitcnt lgkmcnt(0)")
A1, A2, G3 = (104, 105), (106, 107), 108
cstep4(A1[0], A1[1], E, E+1, vL16, E+2, E+3, FRS+8, FRS+9)
cstep4(A2[0], A2[1], A1[0], A1[1], vL16, E+4, E+5, FRS+8, FRS+9)
vPR, vPI, vW = 12, 13, 14
tw1 = A.newlabel("tw1"); twd = A.newlabel("twd")
A(f"""
v_cmp_eq_u32 vcc, 1, v{vH}
s_cmp_lg_u32 s{sTW}, 0
s_cbranch_scc1 {tw1}
""")
cstep4(G3, G3+2, A2[0], A2[1], vL16, E+6, E+7, FRS+8, FRS+9)
A(f"""
v_mov_b32 v{G3+1}, s{sTAG}
v_mov_b32 v{G3+3}, s{sTAG}
v_lshlrev_b32 v7, 3, v{vP2}
s_lshl_b32 s{sT0}, s{sC}, 13
s_mov_b32 exec_hi, 0
buffer_store_dwordx4 v[{G3}:{G3+3}], v7, {srd(R_AGG)}, s{sT0} offen sc1
s_mov_b32 exec_hi, -1
v_cndmask_b32 v{vPR}, 0, v{E}, vcc
v_cndmask_b32 v{vPI}, 0, v{E+1}, vcc
v_cndmask_b32 v{vW}, 1.0, v{vL16}, vcc
v_cndmask_b32 v{vW+1}, 0, v{vL16+1}, vcc
s_branch {twd}
{tw1}:
v_cndmask_b32 v{vPR}, v{A1[0]}, v{A2[0]}, vcc
v_cndmask_b32 v{vPI}, v{A1[1]}, v{A2[1]}, vcc
v_mul_f32 v{FRS+8}, v{vL16+1}, v{vL16+1}
v_mul_f32 v{FRS+9}, v{vL16}, v{vL16+1}
v_fma_f32 v{FRS+8}, v{vL16}, v{vL16}, -v{FRS+8}
v_add_f32 v{FRS+9}, v{FRS+9}, v{FRS+9}
v_mul_f32 v{FRS+10}, v{FRS+8}, v{vL16}
v_mul_f32 v{FRS+11}, v{FRS+8}, v{vL16+1}
v_fma_f32 v{FRS+10}, -v{FRS+9}, v{vL16+1}, v{FRS+10}
v_fma_f32 v{FRS+11}, v{FRS+9}, v{vL16}, v{FRS+11}
v_cndmask_b32 v{vW}, v{FRS+8}, v{FRS+10}, vcc
v_cndmask_b32 v{vW+1}, v{FRS+9}, v{FRS+11}, vcc
{twd}:
""")
A(f"s_mov_b32 s{sSPIN}, 0")
A(f"""
s_lshl_b32 s{sT0}, s{sSW}, 12
s_add_u32 s{sT0}, s{sT0}, {TB}
v_lshlrev_b32 v9, 6, v{vL31}
v_lshl_add_u32 v9, v{vH}, 5, v9
v_add_u32 v9, s{sT0}, v9
v_bfe_u32 v108, v{vLANE}, 2, 2
v_lshl_add_u32 v108, v{vH}, 3, v108
v_lshlrev_b32 v108, 6, v108
v_bfe_u32 v109, v{vLANE}, 4, 1
v_lshl_add_u32 v108, v109, 5, v108
v_and_b32 v109, 3, v{vLANE}
v_lshl_add_u32 v108, v109, 3, v108
v_add_u32 v108, s{sT0}, v108
""")
A(f"""
v_bfe_u32 v5, v{vLANE}, 2, 2
v_lshl_add_u32 v5, v{vH}, 2, v5
v_bfe_u32 v7, v{vLANE}, 4, 1
v_and_b32 v110, 3, v{vLANE}
v_lshlrev_b32 v110, 3, v110
v_lshl_add_u32 v110, v7, 5, v110
v_bfe_u32 v7, v{vLANE}, 3, 1
v_lshl_add_u32 v110, v7, 6, v110
v_lshl_add_u32 v110, v5, 7, v110
s_lshl_b32 s{sT0}, s{sCW}, 15
s_add_u32 s{sT0}, s{sT0}, {WO}
s_lshl_b32 s{sT1}, s{sCW}, 6
v_xor_b32 v110, s{sT1}, v110
v_xor_b32 v111, 64, v110
v_add_u32 v110, s{sT0}, v110
v_add_u32 v111, s{sT0}, v111
""")
for j in range(16):
    for nt in range(2):
        f = 8*j + 4*nt
        A(f"ds_read_b64_tr_b16 a[{f}:{f+1}], v{110 + nt} offset:{j*2048}")
        A(f"ds_read_b64_tr_b16 a[{f+2}:{f+3}], v{110 + nt} offset:{j*2048 + 1024}")
    if j % 3 == 2: A("s_waitcnt lgkmcnt(3)")
prio(OPT["gprio"])
for i in range(OPT["cim1"]): c_piece(R_CIM, CIM, i)
prio(OPT["vprio"])
sstamp(3, 2)
A.label("L_lb")
for k in range(8):
    A(f"buffer_load_dwordx4 v[{LB+4*k}:{LB+4*k+3}], v{96+k}, {srd(R_AGG)}, 0 offen sc1")
A(f"""
s_add_u32 s{sSPIN}, s{sSPIN}, 1
s_waitcnt vmcnt(0)
v_min_u32 v5, v{LB+1}, v{LB+3}
v_max3_u32 v7, s{sTAG}, v{LB+1}, v{LB+3}
""")
for k in range(1, 8):
    A(f"v_min3_u32 v5, v5, v{LB+4*k+1}, v{LB+4*k+3}")
    A(f"v_max3_u32 v7, v7, v{LB+4*k+1}, v{LB+4*k+3}")
A(f"""
v_min_u32 v5, s{sTAG}, v5
v_cmp_ne_u32 vcc, v5, v7
s_cbranch_vccz L_lbd
s_sleep 8
s_cmp_lt_u32 s{sSPIN}, {SPIN_MAX}
s_cbranch_scc1 L_lb
L_lbd:
""")
stamp(4); sstamp(4, 2)
p = (LB+28, LB+30)
pb = [(96, 97), (98, 99)]
for k in range(6, -1, -1):
    d = pb[k & 1]
    cstep4(d[0], d[1], p[0], p[1], vL64, LB+4*k, LB+4*k+2, 100, 101)
    p = d
A(f"ds_write_b64 v10, v[96:97] offset:{HP-EB}")
sync_add(); sync_wait(0)
sstamp(5, 2)
for s in range(4):
    A(f"ds_read_b64 v[{E+2*s}:{E+2*s+1}], v11 offset:{HP - EB + s*512}")
A("s_waitcnt lgkmcnt(0)")
p = (E+6, E+7)
for s in range(2, -1, -1):
    d = pb[s & 1]
    cstep4(d[0], d[1], p[0], p[1], vL512, E+2*s, E+2*s+1, 100, 101)
    p = d
CRp, CIp = 104, 106
cstep4(CRp, CIp, p[0], p[1], vW, vPR, vPI, 100, 101)
cstep4(CRp+1, CIp+1, CRp, CIp, vL8, EA[0], EA[1], 100, 101)
HR, HI = FRS, FRS+8
p = (CRp, CIp)
for j in range(8):
    pkstep(UR+2*j, UI+2*j, p[0], p[1], vL1, UR+2*j, UI+2*j, 100, 102)
    p = (UR+2*j, UI+2*j)
    if OPT['cpos'] == 0: c_piece(R_CRE, CRE, 2*j)
    A(f"v_pk_mul_f32 {p2(96)}, {p2(vCF)}, {p2(UI+2*j)} op_sel:[1,0]")
    A(f"v_pk_mul_f32 {p2(98)}, {p2(vCF)}, {p2(UR+2*j)} op_sel:[1,0]")
    A(f"v_pk_fma_f32 {p2(96)}, {p2(vCF)}, {p2(UR+2*j)}, {p2(96)} op_sel_hi:[0,1,1] neg_lo:[0,0,1] neg_hi:[0,0,1]")
    A(f"v_pk_fma_f32 {p2(98)}, {p2(vCF)}, {p2(UI+2*j)}, {p2(98)} op_sel_hi:[0,1,1] neg_lo:[1,0,1] neg_hi:[1,0,1]")
    if OPT['cpos'] == 0: c_piece(R_CRE, CRE, 2*j + 1)
    A(f"v_cvt_pk_bf16_f32 v{HR+j}, v96, v97")
    A(f"v_cvt_pk_bf16_f32 v{HI+j}, v98, v99")
    if j == 3:
        A(f"ds_write_b128 v9, v[{HR}:{HR+3}]")
        A(f"ds_write_b128 v9, v[{HI}:{HI+3}] offset:2048")
A(f"""
ds_write_b128 v9, v[{HR+4}:{HR+7}] offset:16
ds_write_b128 v9, v[{HI+4}:{HI+7}] offset:2064
s_lshl_b32 s{sKOFF}, s{sC}, 1
s_add_u32 s{sKOFF}, s{sKOFF}, s{sTW}
s_lshl_b32 s{sKOFF}, s{sKOFF}, 16
s_add_u32 s{sKOFF}, s{sKOFF}, {HB}
s_lshl_b32 s{sT1}, s{sG}, 12
s_lshl_b32 s{sT7}, s{sCW}, 11
s_add_u32 s{sT1}, s{sT1}, s{sT7}
s_add_u32 s{sT0}, s{sKOFF}, s{sT1}
s_add_u32 s{sT1}, s{sT0}, 32768
s_waitcnt lgkmcnt(0)
""")
for part in range(2):
    for hf in range(2):
        f = 64 + 8*part + 4*hf
        A(f"ds_read_b64_tr_b16 v[{f}:{f+1}], v108 offset:{part*2048 + hf*1024}")
        A(f"ds_read_b64_tr_b16 v[{f+2}:{f+3}], v108 offset:{part*2048 + hf*1024 + 256}")
for n in range(4):
    A(f"s_waitcnt lgkmcnt({6 - 2*n})")
    A(f"buffer_store_dwordx4 v[{64+4*n}:{67+4*n}], v{vL16x}, {srd(R_WS)}, s{sT0 if n < 2 else sT1} offen offset:{(n&1)*1024} sc1")
A(f"""
s_lshl_b32 s{sT7}, s{sC}, 12
s_add_u32 s{sT7}, s{sT7}, {FL3}
v_and_b32 v5, 15, v{vLANE}
v_lshlrev_b32 v5, 8, v5
s_lshl_b32 s{sT0}, s{sTW}, 7
s_add_u32 s{sT0}, s{sT0}, s{sT7}
v_add_u32 v5, s{sT0}, v5
v_mov_b32 v12, s{sTAG}
v_mov_b32 v13, 0
s_lshl_b32 s{sT1}, s{sG}, 2
s_add_u32 s{sT1}, s{sT1}, s{sSW}
s_lshl_b32 s{sT1}, s{sT1}, 7
s_add_u32 s{sT1}, s{sT1}, s{sT7}
""")
sstamp(6, 2)
A("s_waitcnt vmcnt(0)")
sstamp(7, 2); sstamp(1, 3)
A(f"""
s_mov_b64 exec, 1
buffer_store_dword v12, v13, {srd(R_WS)}, s{sT1} offen sc1
s_mov_b64 exec, -1
""")
if OPT["cpos"] == 0: sync_add(False)
else:
    prio(OPT["gprio"])
    for i in range(16): c_piece(R_CRE, CRE, i)
    prio(OPT["vprio"])
stamp(5, not HST)
A(f"""
v_mul_u32_u24 v10, 1040, v{vL31}
v_lshl_add_u32 v10, v{vH}, 4, v10
s_mul_i32 s{sT0}, s{sCW}, {512 + 32*1040}
s_mul_i32 s{sT1}, s{sCW}, {(512 - 32*1040) & 0xffffffff}
s_add_u32 s{sT1}, s{sT1}, {32*1040}
v_add_u32 v11, s{sT1}, v10
v_add_u32 v10, s{sT0}, v10
v_add_u32 v14, {CRE}, v10
v_add_u32 v15, {CRE}, v11
s_lshl_b32 s{sT1}, s{sCW}, 14
s_add_u32 s{sKOFF}, s{sKOFF}, s{sT1}
s_add_u32 s{sOB}, s{sOB}, s{sT1}
s_xor_b32 s{sT0}, s{sSW}, 2
s_lshl_b32 s{sT0}, s{sT0}, 12
v_add_u32 v114, s{sT0}, v{vL16x}
s_lshl_b32 s{sT0}, s{sSW}, 12
v_add_u32 v115, s{sT0}, v{vL16x}
v_add_u32 v119, {TB}, v114
v_add_u32 v120, {TB}, v115
s_lshl_b32 s{sT0}, s{sTW}, 17
s_lshl_b32 s{sT1}, s{sG}, 8
s_add_u32 s{sT0}, s{sT0}, s{sT1}
s_lshl_b32 s{sT1}, s{sCW}, 7
s_add_u32 s{sT0}, s{sT0}, s{sT1}
v_lshlrev_b32 v113, 2, v{vL31}
v_add_u32 v113, s{sT0}, v113
v_lshl_add_u32 v118, v{vH}, 14, v113
v_add_u32 v118, 2048, v118
v_lshl_add_u32 v113, v{vH}, 13, v113
""")
sstamp(2, 3)
poll_flags(5, 12, 1, sleep=OPT['sl2'])
if OPT["cpos"] == 1: sync_add(False)
sstamp(3, 3)
LA = 7
HRING = 16
def hreg(j): return HRING + 4*(j % 8)
def h_ld(j):
    if j == 16: A(f"s_add_u32 s{sKOFF}, s{sKOFF}, {32768 - 3*4096}")
    elif j % 4 == 0 and j > 0: A(f"s_add_u32 s{sKOFF}, s{sKOFF}, 4096")
    A(f"buffer_load_dwordx4 v[{hreg(j)}:{hreg(j)+3}], v{vL16x}, {srd(R_WS)}, s{sKOFF} offen offset:{(j%4)*1024} sc1")
for j in range(LA): h_ld(j)
def g2_rd(j):
    f = FRS + 8*(j % 3)
    A(f"ds_read_b128 v[{f}:{f+3}], v{14 if j < 16 else 10} offset:{(j % 16)*32}")
    A(f"ds_read_b128 v[{f+4}:{f+7}], v{15 if j < 16 else 11} offset:{(j % 16)*32}")
def g2_mfma(j):
    f = FRS + 8*(j % 3)
    c = "0" if j == 0 else f"v[{Y1}:{Y1+15}]"
    A(f"v_mfma_f32_32x32x16_bf16 v[{Y1}:{Y1+15}], v[{hreg(j)}:{hreg(j)+3}], v[{f+4}:{f+7}], {c}")
    A(f"v_mfma_f32_32x32x16_bf16 v[{Y0}:{Y0+15}], v[{hreg(j)}:{hreg(j)+3}], v[{f}:{f+3}], v[{Y0}:{Y0+15}]")
sync_wait(0)
prio(3 if OPT["g2p"] & 1 else OPT["gprio"])
g2_rd(0); g2_rd(1)
VQ = list(range(LA))
P2 = 32 - OPT["p2n"]
for j in range(32):
    if j == P2:
        if P2 + LA < 32 or True:
            pass
        prio(OPT["vprio"])
        cnt_wait(vCNT, vTMP, 8, 12, sleep=OPT['sl1'])
        sstamp(6, 3); sstamp(1, 4)
        prio(3 if OPT["g2p"] & 2 else OPT["gprio"])
    if j + LA < 32:
        h_ld(j + LA); VQ.append(j + LA)
    rest = list(range(OPT["cim1"], 16))
    per = -(-len(rest) // 10) if rest else 0
    for i in rest[per*j:per*(j + 1)] if j < 10 else []:
        if i == rest[0] and i & 3: A(f"s_add_u32 s{sT4}, s{sT3}, {(i & ~3)*1024}")
        c_piece(R_CIM, CIM, i); VQ.append(-2 if i == 15 else -1)
    if not rest and j == 0: VQ.insert(0, -2)
    if j == 14:
        prio(OPT["vprio"]); sync_wait(0); prio(3 if OPT["g2p"] & 1 else OPT["gprio"])
    if j + 2 < 32: g2_rd(j + 2)
    issued = min(32, j + 3)
    need = max(VQ.index(j), VQ.index(-2)) if j == 12 else VQ.index(j)
    A(f"s_waitcnt vmcnt({len(VQ) - 1 - need}) lgkmcnt({2*(issued - j - 1)})")
    if j == 12: sync_add(False)
    if j == 0: sstamp(4, 3)
    if j == 15:
        cnt_add(vCNT, vONE, 8)
        stamp(6, not HST); sstamp(5, 3)
    g2_mfma(j)
prio(OPT["vprio"])
A.nop(10)
for i in range(4):
    A(f"ds_write_b128 v119, v[{Y1+4*i}:{Y1+4*i+3}] offset:{i*1024}")
sync_add()
sync_wait(0)
for i in range(4):
    A(f"ds_read_b128 v[{Y1+4*i}:{Y1+4*i+3}], v120 offset:{i*1024}")
for i in range(16):
    if i % 4 == 0: A(f"s_waitcnt lgkmcnt({3 - i//4})")
    A(f"v_add_f32 v{Y0+i}, v{Y0+i}, v{Y1+i}")
    A(f"s_mov_b32 s{sT1}, {(16*(i>>3) + 4*((i>>2)&1) + ((i>>1)&1) + 8*(i&1))*4096}")
    A(f"buffer_store_dword v{Y0+i}, v113, {srd(R_OUT)}, s{sT1} offen{OST}")
stamp(7); sstamp(7, 3); sstamp(2, 4)
cnt_wait(vCNT, vTMP, 12, 12)
sstamp(3, 4)
if OPT["odel"]: A(f"s_sleep {OPT['odel']}")
def oreg(j): return (16 + 4*j) if j < 8 else (80 + 4*(j - 8))
def o_loads(g4):
    A(f"s_add_u32 s{sT1}, s{sOB}, {g4*4096}")
    for j in range(4*g4, 4*g4 + 4):
        A(f"buffer_load_dwordx4 v[{oreg(j)}:{oreg(j)+3}], v{vL16x}, {srd(R_WS)}, s{sT1} offen offset:{(j%4)*1024} sc1")
for g4 in range(4): o_loads(g4)
A(f"s_mov_b32 s{sSPIN}, 0")
for g4 in range(4):
    lp = A.newlabel("op"); dn = A.newlabel("opd"); ck = A.newlabel("opc")
    j0 = 4*g4
    A(f"s_waitcnt vmcnt({4*(3 - g4)})")
    A.label(ck)
    A(f"v_max_u32 v13, v{oreg(j0)+1}, v{oreg(j0)+3}")
    for j in range(j0 + 1, j0 + 4):
        A(f"v_max3_u32 v13, v13, v{oreg(j)+1}, v{oreg(j)+3}")
    A(f"""
    v_cmp_eq_u32 vcc, -1, v13
    s_cbranch_vccz {dn}
    s_add_u32 s{sSPIN}, s{sSPIN}, 1
    s_cmp_gt_u32 s{sSPIN}, 20000
    s_cbranch_scc1 {dn}
    """)
    o_loads(g4)
    A(f"""
    s_waitcnt vmcnt(0)
    s_branch {ck}
    {dn}:
    """)
    if g4 in (0, 3): sstamp(4 + g4 // 3, 4)
    for j in range(j0, j0 + 4):
        c0 = "0" if j == 0 else f"v[{Y0}:{Y0+15}]"
        c1 = "0" if j == 0 else f"v[{Y1}:{Y1+15}]"
        A(f"v_mfma_f32_32x32x16_bf16 v[{Y1}:{Y1+15}], v[{oreg(j)}:{oreg(j)+3}], a[{8*j+4}:{8*j+7}], {c1}")
        A(f"v_mfma_f32_32x32x16_bf16 v[{Y0}:{Y0+15}], v[{oreg(j)}:{oreg(j)+3}], a[{8*j}:{8*j+3}], {c0}")
if OPT["sst"] == 4: A(f"s_mov_b32 s{sST+14}, s{sSPIN}")
A.nop(11)
for i in range(4):
    A(f"ds_write_b128 v114, v[{Y1+4*i}:{Y1+4*i+3}] offset:{TB2 + i*1024}")
A("s_waitcnt lgkmcnt(0)")
A("s_barrier")
sstamp(6, 4)
for i in range(4):
    A(f"ds_read_b128 v[{Y1+4*i}:{Y1+4*i+3}], v115 offset:{TB2 + i*1024}")
for i in range(16):
    if i % 4 == 0: A(f"s_waitcnt lgkmcnt({3 - i//4})")
    A(f"v_add_f32 v{Y0+i}, v{Y0+i}, v{Y1+i}")
    A(f"s_mov_b32 s{sT1}, {(8*(i>>2) + (i&3))*4096}")
    A(f"buffer_store_dword v{Y0+i}, v118, {srd(R_OUT)}, s{sT1} offen{OSTB}")
A("s_branch L_fin")

A.label("L_hot_end")
A.label("L_slow")
A(f"""
s_cmp_lg_u32 s{sDONE}, 0
s_cbranch_scc1 L_fast
s_mov_b32 s{sDONE}, 1
s_waitcnt lgkmcnt(0)
""")
def a_sync():
    A(f"s_add_u32 s{sATG}, s{sATG}, 4")
    A("s_waitcnt lgkmcnt(0)")
    cnt_add(vCNT, vIDX, 4)
    cnt_wait(vCNT, 16, f"s{sATG}", 4, sleep=2)
for i in range(4): A(f"v_mov_b32 v{vZ+i}, 0")
for ct in range(8): A(f"v_mov_b32 v{vM+ct}, 0xff800000")
A("s_nop 1")
for ct in range(8):
    A(f"v_mfma_f32_32x32x16_bf16 a[{16*ct}:{16*ct+15}], v[{vZ}:{vZ+3}], v[{vZ}:{vZ+3}], 0")
A(f"s_mov_b32 s{sLOOP}, 16")
def adv():
    A(f"s_add_u32 s{sKOFF}, s{sKOFF}, {KVS}"); A(f"s_and_b32 s{sKOFF}, s{sKOFF}, 0xffff")
A.label("L_sl1")
ld_k(0, 0); adv()
A("s_waitcnt vmcnt(0)")
for ct in range(8):
    A(f"v_mfma_f32_32x32x16_bf16 v[{S0}:{S0+15}], v[{KV[0]}:{KV[0]+3}], v[{QF+4*ct}:{QF+4*ct+3}], 0")
    A.nop(12)
    for i in range(8):
        A(f"v_max3_f32 v{vM+ct}, v{S0+2*i}, v{S0+2*i+1}, v{vM+ct}")
A(f"""
s_sub_u32 s{sLOOP}, s{sLOOP}, 1
s_cmp_lg_u32 s{sLOOP}, 0
s_cbranch_scc1 L_sl1
s_lshl_b32 s{sT0}, s{sWAVE}, 11
s_add_u32 s{sT0}, s{sT0}, {CB}
v_lshlrev_b32 v8, 2, v{vLANE}
v_add_u32 v8, s{sT0}, v8
v_lshlrev_b32 v10, 2, v{vL31}
v_add_u32 v10, {CB}, v10
""")
a_sync()
def pair_off(pr):
    A(f"s_add_u32 s{sT0}, s{sWAVE}, {pr + 1}")
    A(f"s_and_b32 s{sT0}, s{sT0}, 3")
    A(f"s_lshl_b32 s{sT0}, s{sT0}, 9")
for pr in range(4):
    pair_off(pr)
    A(f"v_add_u32 v9, s{sT0}, v8")
    A(f"ds_write_b32 v9, v{vM+2*pr}")
    A(f"ds_write_b32 v9, v{vM+2*pr+1} offset:256")
a_sync()
for ct in range(8):
    if ct % 2 == 0:
        pair_off(ct // 2)
        A(f"v_add_u32 v9, s{sT0}, v10")
    for w in range(4):
        A(f"ds_read_b32 v{S0+2*w}, v9 offset:{w*2048 + (ct%2)*256}")
        A(f"ds_read_b32 v{S0+2*w+1}, v9 offset:{w*2048 + (ct%2)*256 + 128}")
    A("s_waitcnt lgkmcnt(0)")
    for w in range(4):
        A(f"v_max3_f32 v{vM+ct}, v{S0+2*w}, v{S0+2*w+1}, v{vM+ct}")
a_sync()
A(f"s_mov_b32 s{sLOOP}, 16")
A.label("L_sl2")
ld_k(0, 0); ld_v(0, 0, 0); ld_v(0, 1, 0); adv()
A("s_waitcnt vmcnt(0)")
for ct in range(8):
    A(f"v_mfma_f32_32x32x16_bf16 v[{S0}:{S0+15}], v[{KV[0]}:{KV[0]+3}], v[{QF+4*ct}:{QF+4*ct+3}], 0")
    A.nop(12)
    for i in range(16):
        A(f"v_sub_f32 v{S0+i}, v{S0+i}, v{vM+ct}")
    for i in range(16):
        A(f"v_exp_f32 v{S0+i}, v{S0+i}")
    A.nop(2)
    A(f"v_smfmac_f32_32x32x32_bf16 a[{16*ct}:{16*ct+15}], v[{KV[0]+4}:{KV[0]+7}], v[{S0}:{S0+7}], v{vIDX}")
    A(f"v_smfmac_f32_32x32x32_bf16 a[{16*ct}:{16*ct+15}], v[{KV[0]+8}:{KV[0]+11}], v[{S0+8}:{S0+15}], v{vIDX}")
A(f"""
s_sub_u32 s{sLOOP}, s{sLOOP}, 1
s_cmp_lg_u32 s{sLOOP}, 0
s_cbranch_scc1 L_sl2
s_nop 15
""")
for ct in range(6): part_write(ct)
A("s_waitcnt lgkmcnt(0)")
cnt_add(vCNT, vIDX, 4)
A(f"""
s_add_u32 s{sATG}, s{sATG}, 4
s_branch L_comb
""")

if OPT["xm"] or OPT["xv"] or OPT["xl"]:
    i0 = A.lines.index("L_S2:"); i1 = A.lines.index("L_hot_end:")
    seen = False
    for i in range(i0, i1):
        t = A.lines[i].strip()
        if t.startswith("ds_write_b128") : seen = True
        if not seen: continue
        if OPT["xm"] and t.startswith("v_mfma"): A.lines[i] = "    s_nop 7"
        if OPT["xv"] and (t.startswith(("v_pk_", "v_fma_f32", "v_cvt_pk", "v_mul_f32", "v_add_f32"))): A.lines[i] = "    s_nop 1"
        if OPT["xl"] and t.startswith(("ds_read_b128", "ds_write_b128")): A.lines[i] = "    s_nop 0"
hdr = open("cdna_kernels/" + NAME + ".s.ref").read().split("; Override launch")[0]
out = hdr + f"""; Fused single-launch kernel: 256 workgroups x 8 waves (4 attention waves + 4 SSM waves). Generated by gen/gen13.py.
; @launch grid=(256,1,1) block=(512,1,1) lds={LDS_BYTES}
.amdgcn_target "amdgcn-amd-amdhsa--gfx950"
.text
.globl {NAME}_kernel
.p2align 8
.type {NAME}_kernel,@function
{NAME}_kernel:
""" + A.text() + f""".section .rodata,"a"
.p2align 6
.amdhsa_kernel {NAME}_kernel
  .amdhsa_next_free_vgpr 256
  .amdhsa_next_free_sgpr 102
  .amdhsa_accum_offset 128
  .amdhsa_group_segment_fixed_size 0
  .amdhsa_kernarg_size 136
  .amdhsa_user_sgpr_count 2
  .amdhsa_user_sgpr_kernarg_segment_ptr 1
  .amdhsa_system_sgpr_workgroup_id_x 1
.end_amdhsa_kernel
"""
open(sys.argv[1], "w").write(out)
errs = check(A.lines) + check(A.lines[loop_end-60:loop_end] + A.lines[loop_start:loop_start+60])
for e in errs: print("HAZARD:", e)
print(f"{len(A.lines)} lines, {len(errs)} hazards")
```

```python
import sys, math, struct
from asmlib import *

OPT = dict(dbg=0, force_slow=0, stamps=0, noS=0, cyc=0, ost=2, gprio=0, vprio=3, hst=0, stgwin=8, pfq=0, pfb=2, stgl=2, qpre=2,
           pfc=1, ssl=2, la=8, sst=0, win0=0, trig=3, odel=0, sgate=2, map84=1, g1p=0, g2p=0, noKV=0, nochk=0, wq1=12, cpos=1, hdbg=0, p2n=16, oack=1, cim1=0, npre0=0, mid=0, sl1=2, sl2=2, sl0=0, tlb=0, pad=0, padat=0, p1at=3, e0c=24, q1a=2, p1k=28, kv0=4, g0=0, ofirst=0, xm=0, xv=0, xl=0, npre=15, l0=30, ostb=1, cap=8, cap0=10, enc=0, encS=0, aprio=3, lbs=4)
for a in sys.argv[2:]:
    k, v = a.split("=")
    assert k in OPT, k
    OPT[k] = int(v)

NAME = "concat_heads__ssm_conv_s5__grouped_kv_mqa__prompt"
def f2u(x): return struct.unpack("<I", struct.pack("<f", x))[0]

XQ, WQ = 0, 66560
KVX, WKV = 3*16640, 66560 + 3*16384
SLOT = [0, 49920, 99840]
XA_O, BRE_O, BIM_O = 0, 16640, 33280
CIM, CRE = 0, 66560
CB_T = 2304
CB = 133120 - 12*CB_T
def cb_off(slot): return (12 + slot)*CB_T if slot < 3 else (slot - 3)*CB_T
TB = 140288
TBY = 66560
WO = 66560
TB2 = 0
QX = 149760; EB = 157952; HP = 160000; CNT = 162048; QM = 162064; KM = 162068; CNT4 = 24
assert CB + 24*CB_T <= CNT
assert TB + 16384 <= EB
LDS_BYTES = 163840
FL1, FL3 = 0x1000, 0x9000
KVT = 0x80000; KVS = 4096
AGG = 0x30000; AGG_DUMMY = 32*8192; AGG_SIZE = AGG_DUMMY + 256*128
OB, HB = 0x100000, 0x400000
DBG = 0x1000000
WS_SIZE = 0x2000000
assert AGG + AGG_SIZE <= KVT
sWAVE, sC, sG, sTAG, sID = 3, 4, 5, 6, 7
R_XB, R_WQ, R_WKV, R_XA, R_BRE, R_BIM, R_CRE, R_CIM, R_WO, R_OUT, R_WS, R_AGG = 8, 12, 16, 20, 24, 28, 32, 36, 40, 44, 48, 52
P_LRE, P_LIM, P_LDT, P_DSK, P_WV = 56, 58, 60, 62, 64
sEP, sDONE = 66, 67
sT0, sT1, sT2, sT3, sT4, sT5 = 68, 69, 70, 71, 72, 73
sT6, sSPIN = 74, 75
sTW, sCW = 76, 77
sLOOP, sKOFF, sROT, sSW = 78, 79, 80, 81
sOB, sT7 = 82, 83
sATG = 65
sST = 84
def srd(r): return f"s[{r}:{r+3}]"

A = Asm()
OST = ["", " sc1", " nt", " sc0 sc1", " sc1 nt"][OPT["ost"]]
OSTB = OST if OPT["ostb"] < 0 else ["", " sc1", " nt", " sc0 sc1", " sc1 nt"][OPT["ostb"]]
SPIN_MAX = 200000
HST = OPT["hst"]

SSEC = [False]
def sstamp(i, mode):
    if OPT["stamps"] and OPT["sst"] == mode:
        A(f"s_memrealtime s[{sST+2*i}:{sST+2*i+1}]")
def stamp(i, cond=True):
    if (OPT["enc"] or OPT["encS"]) and cond and (i == 0 or (SSEC[0] and i == OPT["encS"]) or (not SSEC[0] and i == OPT["enc"])):
        A(f"s_memrealtime s[{98 if i == 0 else 94}:{99 if i == 0 else 95}]")
        if i == 0: A("s_waitcnt lgkmcnt(0)\ns_sub_u32 s94, s98, 3000")
        return
    if SSEC[0] and OPT["sst"] and i < 8: return
    if OPT["stamps"] and cond:
        A(f"s_memrealtime s[{sST+2*i}:{sST+2*i+1}]")

def padto():
    l = A.newlabel("pad")
    A(f"""
    {l}:
    s_memrealtime s[96:97]
    s_waitcnt lgkmcnt(0)
    s_sub_u32 s96, s96, s98
    s_cmp_lt_u32 s96, {OPT["pad"]*100}
    s_cbranch_scc1 {l}
    """)
def prio(p): A(f"s_setprio {p}")

def cnt_add(vaddr, vone, off=0):
    A(f"""
    s_mov_b64 exec, 1
    {"ds_inc_u32" if vone == vIDX else "ds_add_u32"} v{vaddr}, v{vone} offset:{off}
    s_mov_b64 exec, -1
    """)
def cnt_wait(vaddr, vtmp, target, off=0, sleep=0):
    lp = A.newlabel("sy"); dn = A.newlabel("syd")
    A(f"""
    s_mov_b32 s{sSPIN}, 0
    {lp}:
    ds_read_b32 v{vtmp}, v{vaddr} offset:{off}
    s_add_u32 s{sSPIN}, s{sSPIN}, 1
    s_waitcnt lgkmcnt(0)
    v_readfirstlane_b32 s{sT0}, v{vtmp}
    s_cmp_ge_u32 s{sT0}, {target}
    s_cbranch_scc1 {dn}
    {("s_sleep " + str(sleep)) if sleep else ""}
    s_cmp_lt_u32 s{sSPIN}, {SPIN_MAX}
    s_cbranch_scc1 {lp}
    {dn}:
    """)
NSYNC = [0]
def grp_sync():
    NSYNC[0] += 1
    A("s_waitcnt lgkmcnt(0)")
    cnt_add(vCNT, vONE)
    cnt_wait(vCNT, vTMP, CBASE + 4*NSYNC[0], sleep=OPT['ssl'])

def sync_add(wait_lds=True):
    NSYNC[0] += 1
    if wait_lds: A("s_waitcnt lgkmcnt(0)")
    cnt_add(vCNT, vONE)
def sync_wait(sleep=None):
    cnt_wait(vCNT, vTMP, CBASE + 4*NSYNC[0], sleep=OPT['ssl'] if sleep is None else max(sleep, OPT['sl0']))

def poll_flags(vaddr, vdst, width, sleep=2):
    lp = A.newlabel("pl"); dn = A.newlabel("pld")
    ld = "buffer_load_dword" if width == 1 else f"buffer_load_dwordx{width}"
    A(f"s_mov_b32 s{sSPIN}, 0")
    A.label(lp)
    A(f"""
    {ld} {vr(vdst, width)}, v{vaddr}, {srd(R_WS)}, 0 offen sc1
    s_add_u32 s{sSPIN}, s{sSPIN}, 1
    s_waitcnt vmcnt(0)
    v_cmp_ne_u32 vcc, s{sTAG}, v{vdst}
    s_cbranch_vccz {dn}
    {("s_sleep " + str(sleep)) if sleep else ""}
    s_cmp_lt_u32 s{sSPIN}, {SPIN_MAX}
    s_cbranch_scc1 {lp}
    {dn}:
    """)

def wave_max(v, tmp):
    A("s_nop 1")
    for sh in (1, 2, 4, 8):
        A(f"v_max_f32_dpp v{v}, v{v}, v{v} row_ror:{sh} row_mask:0xf bank_mask:0xf")
        A("s_nop 1")
    A(f"v_mov_b32 v{tmp}, v{v}")
    A("s_nop 1")
    A(f"v_permlane16_swap_b32 v{tmp}, v{v}")
    A(f"v_max_f32 v{v}, v{v}, v{tmp}")
    A(f"v_mov_b32 v{tmp}, v{v}")
    A("s_nop 1")
    A(f"v_permlane32_swap_b32 v{tmp}, v{v}")
    A(f"v_max_f32 v{v}, v{v}, v{tmp}")

def wq_voffset(dst, t0, t1, t2):
    A(f"""
    v_lshrrev_b32 v{t0}, 3, v{vLANE}
    v_and_b32 v{t1}, 7, v{vLANE}
    v_bfe_u32 v{t2}, v{vLANE}, 4, 1
    v_lshlrev_b32 v{t2}, 2, v{t2}
    v_xor_b32 v{t1}, v{t1}, v{t2}
    v_lshlrev_b32 v{t1}, 4, v{t1}
    v_lshl_add_u32 v{dst}, v{t0}, 10, v{t1}
    """)

vLANE, vL31, vH, vL16x = 1, 2, 3, 4
UR, UI, Y0, Y1 = 16, 32, 48, 64
FRS = 80
DG = 104
vL1, vL8, vL16, vL64, vL512, vCF = 112, 114, 116, 118, 120, 122
vCNT, vONE, vTMP, vP2, vDUM = 0, 124, 125, 126, 127
vXo, vBo, vDa, vSt = 5, 6, 7, 8
vAa, vBa = [9, 10, 11], [12, 13, 14]
vPF = 15
STG = 64
PRM = 100
S0, S1 = 16, 32
QF = 48
KV = [80, 92, 104, 116]
vIDX = 7
vM = 104
vZ = 120
vKt, vVt = [5, 8, 9, 10], [6, 12, 14, 15]

A(f"""
s_cmp_ge_u32 s2, 256
s_cbranch_scc1 L_end
""")
stamp(0)
if OPT["pad"]: A("s_memrealtime s[98:99]")
sizes = {R_XB: 65536, R_WKV: 16384, R_WQ: 523392, R_WS: WS_SIZE, R_XA: 65536, R_BRE: 65536, R_BIM: 65536, R_CRE: 65536, R_CIM: 65536,
         R_WO: 523392, R_OUT: 262144, R_AGG: AGG_SIZE}
def kload(lst):
    for r, off in lst:
        A(f"s_load_dwordx2 s[{r}:{r+1}], s[0:1], {off}")
def srd_words(rs):
    for r in rs:
        A(f"s_mov_b32 s{r+2}, {sizes[r]}")
        A(f"s_mov_b32 s{r+3}, 0x20000")
kload([(R_XB, 72), (R_WKV, 88), (P_WV, 96), (R_WQ, 80), (R_WS, 128)])
A(f"""
v_lshrrev_b32 v5, 6, v0
v_and_b32 v{vLANE}, 63, v0
v_readfirstlane_b32 s{sWAVE}, v5
v_lshlrev_b32 v{vL16x}, 4, v{vLANE}
v_bfe_u32 v{vH}, v0, 5, 1
v_and_b32 v{vL31}, 31, v0
v_mov_b32 v0, {CNT}
""")
srd_words([R_XB])
A(f"""
""")
if OPT["map84"]:
    A(f"""
    s_bfe_u32 s{sC}, s2, 0x20001
    s_lshl_b32 s{sC}, s{sC}, 3
    s_bfe_u32 s{sT0}, s2, 0x30003
    s_add_u32 s{sC}, s{sC}, s{sT0}
    s_and_b32 s{sG}, s2, 1
    s_lshl_b32 s{sG}, s{sG}, 2
    s_lshr_b32 s{sT0}, s2, 6
    s_add_u32 s{sG}, s{sG}, s{sT0}
    s_add_u32 s{sROT}, s{sC}, s{sG}
    s_and_b32 s{sROT}, s{sROT}, 3
    """)
else:
    A(f"""
    s_and_b32 s{sC}, s2, 7
    s_lshl_b32 s{sC}, s{sC}, 2
    s_bfe_u32 s{sROT}, s2, 0x20003
    s_add_u32 s{sC}, s{sC}, s{sROT}
    s_lshr_b32 s{sG}, s2, 5
    """)
A(f"""
s_lshl_b32 s{sT2}, s{sC}, 16
s_sub_u32 s{sSW}, s{sWAVE}, 4
s_cbranch_scc1 L_A0
s_load_dwordx4 s[{P_LRE}:{P_LRE+3}], s[0:1], 8
s_load_dwordx4 s[{P_LDT}:{P_LDT+3}], s[0:1], 56
s_setprio 3
v_mov_b32 v20, 0
v_mov_b32 v21, 0
s_lshl_b32 s{sT0}, s{sG}, 6
s_lshl_b32 s{sT1}, s{sSW}, 4
s_and_b32 s{sT1}, s{sT1}, 32
s_add_u32 s{sT0}, s{sT0}, s{sT1}
v_add_lshl_u32 v{vP2}, s{sT0}, v{vL31}, 1
ds_write2_b64 v0, v[20:21], v[20:21] offset0:0 offset1:1
ds_write2_b64 v0, v[20:21], v[20:21] offset0:2 offset1:3
s_mov_b32 s{R_WKV+2}, {sizes[R_WKV]}
s_mov_b32 s{R_WKV+3}, 0x20000
s_lshl_b32 s{sT1}, s{sSW}, 12
s_lshl_b32 s{sT5}, s{sG}, 13
s_and_b32 s{sT5}, s{sT5}, 0xc000
s_add_u32 s{sT5}, s{sT5}, s{sT1}
s_mul_i32 s{sT0}, s{sSW}, 4160
s_add_u32 m0, s{sT1}, {WKV}
s_bitcmp1_b32 s{sG}, 0
s_waitcnt lgkmcnt(0)
s_cselect_b32 s{R_WKV}, s{P_WV}, s{R_WKV}
s_cselect_b32 s{R_WKV+1}, s{P_WV+1}, s{R_WKV+1}
s_add_u32 s{R_XB}, s{R_XB}, s{sT2}
s_addc_u32 s{R_XB+1}, s{R_XB+1}, 0
""")
for i in range(4):
    A(f"buffer_load_dwordx4 v{vL16x}, {srd(R_WKV)}, s{sT1} offen offset:{i*1024} lds")
for i in range(4):
    A(f"s_add_u32 m0, s{sT0}, {KVX + 16*i}")
    A(f"s_load_dword s{sEP}, s[{R_WS}:{R_WS+1}], 0" if i == 0 else "s_nop 0")
    A(f"buffer_load_dwordx4 v{vL16x}, {srd(R_XB)}, s{sT5} offen offset:{i*1024} lds")
A(f"""
s_barrier
global_load_ushort v{PRM}, v{vP2}, s[{P_LRE}:{P_LRE+1}]
global_load_ushort v{PRM+1}, v{vP2}, s[{P_LIM}:{P_LIM+1}]
global_load_ushort v{PRM+2}, v{vP2}, s[{P_LDT}:{P_LDT+1}]
global_load_ushort v{PRM+3}, v{vP2}, s[{P_DSK}:{P_DSK+1}]
s_cmp_eq_u32 s{sSW}, 1
s_cbranch_scc1 L_qx
s_cmp_eq_u32 s{sSW}, 2
s_cbranch_scc1 L_qw
s_branch L_S1
L_A0:
""")
def common_scalars():
    kload([(R_OUT, 112)])
    srd_words([R_WS, R_OUT])
    A(f"""
    s_and_b32 s{sTW}, s{sWAVE}, 1
    s_bfe_u32 s{sCW}, s{sWAVE}, 0x10001
    s_lshl_b32 s{sID}, s{sC}, 3
    s_add_u32 s{sID}, s{sID}, s{sG}
    s_mov_b32 s{sDONE}, 0
    s_lshl_b32 s{sOB}, s{sC}, 1
    s_add_u32 s{sOB}, s{sOB}, s{sTW}
    s_lshl_b32 s{sOB}, s{sOB}, 15
    s_add_u32 s{sOB}, s{sOB}, {OB}
    """)
def common_after_wait(tag=True):
    A(f"""
    s_lshl_b32 s{sT0}, s{sC}, 18
    s_add_u32 s{R_OUT}, s{R_OUT}, s{sT0}
    s_addc_u32 s{R_OUT+1}, s{R_OUT+1}, 0
    """)
    if tag: A(f"""
    s_mul_i32 s{sTAG}, s{sEP}, 0x9E3779B1
    s_add_u32 s{sTAG}, s{sTAG}, 0x7F4A7C15
    """)
vWQo, vXQo = 119, 117
A(f"""
v_lshrrev_b32 v6, 4, v{vLANE}
v_and_b32 v7, 15, v{vLANE}
v_lshlrev_b32 v7, 4, v7
v_lshl_add_u32 v{vXQo}, v6, 14, v7
s_mul_i32 s{sT6}, s{sWAVE}, 4160
s_lshl_b32 s{sT7}, s{sWAVE}, 12
""")
srd_words([R_WQ])
wq_voffset(vWQo, 6, 7, 10)
A(f"""
s_lshl_b32 s{sT0}, s{sG}, 7
s_waitcnt lgkmcnt(0)
s_add_u32 s{R_XB}, s{R_XB}, s{sT2}
s_addc_u32 s{R_XB+1}, s{R_XB+1}, 0
s_add_u32 s{R_WQ}, s{R_WQ}, s{sT0}
s_addc_u32 s{R_WQ+1}, s{R_WQ+1}, 0
s_load_dword s{sEP}, s[{R_WS}:{R_WS+1}], 0
s_barrier
""")
stamp(1, HST)
def x_dma(s):
    A(f"""
    s_add_u32 s{sT3}, s{sROT}, {s}
    s_and_b32 s{sT3}, s{sT3}, 3
    s_lshl_b32 s{sT4}, s{sT3}, 8
    s_add_u32 s{sT4}, s{sT4}, s{sT7}
    """)
    for i in range(4):
        A(f"""
        s_add_u32 m0, s{sT6}, {XQ + s*16640 + i*16}
        s_nop 0
        buffer_load_dwordx4 v{vXQo}, {srd(R_XB)}, s{sT4} offen offset:{i*1024} lds
        """)
def wq_dma(s):
    A(f"""
    s_lshl_b32 s{sT3}, s{sT3}, 4
    s_add_u32 s{sT3}, s{sT3}, s{sWAVE}
    s_lshl_b32 s{sT3}, s{sT3}, 13
    s_lshl_b32 s{sT2}, s{sWAVE}, 10
    """)
    for i in range(4):
        A(f"""
        s_add_u32 m0, s{sT2}, {WQ + s*16384 + i*4096}
        s_add_u32 s{sT1}, s{sT3}, {i*32768}
        buffer_load_dwordx4 v{vWQo}, {srd(R_WQ)}, s{sT1} offen lds
        """)
for s in range(OPT["qpre"]):
    x_dma(s); wq_dma(s)
stamp(2 if HST else 1)
A("s_branch L_A1")
A.label("L_S1")
SSEC[0] = True
A(f"""
v_mov_b32 v{vONE}, 1
s_lshl_b32 s{sID}, s{sC}, 3
s_add_u32 s{sID}, s{sID}, s{sG}
s_mov_b32 s{R_WS+2}, {WS_SIZE}
s_mov_b32 s{R_WS+3}, 0x20000
v_lshrrev_b32 v20, 4, v{vLANE}
v_and_b32 v21, 15, v{vLANE}
v_mul_u32_u24 v9, 1040, v21
v_lshl_add_u32 v9, v20, 4, v9
v_add_u32 v9, {KVX}, v9
v_lshrrev_b32 v10, 2, v21
v_lshl_add_u32 v10, v20, 3, v10
v_lshlrev_b32 v10, 5, v10
v_and_b32 v11, 3, v21
v_lshl_add_u32 v10, v11, 3, v10
v_add_u32 v10, {WKV}, v10
s_lshl_b32 s{sT6}, s{sC}, 1
s_lshr_b32 s{sT1}, s{sG}, 2
s_add_u32 s{sT6}, s{sT6}, s{sT1}
s_lshl_b32 s{sT6}, s{sT6}, 12
s_add_u32 s{sT6}, s{sT6}, {KVT}
s_bfe_u32 s{sT7}, s{sG}, 0x10001
s_waitcnt lgkmcnt(0)
s_mul_i32 s{sTAG}, s{sEP}, 0x9E3779B1
s_add_u32 s{sTAG}, s{sTAG}, 0x7F4A7C15
s_waitcnt vmcnt(4)
""")
stamp(6, HST)
cnt_add(vCNT, vONE)
A(f"""
s_cmp_lg_u32 s{sSW}, 0
s_cbranch_scc1 L_S2a
""")
cnt_wait(vCNT, vTMP, 4)
stamp(1)
def kv_rd(k):
    f = 32 + 8*(k % 6)
    A(f"ds_read_b64_tr_b16 v[{f}:{f+1}], v10 offset:{k*1024}")
    A(f"ds_read_b64_tr_b16 v[{f+2}:{f+3}], v10 offset:{k*1024+128}")
    A(f"ds_read_b128 v[{f+4}:{f+7}], v9 offset:{k*64}")
for k in range(4): kv_rd(k)
A(f"s_bitcmp1_b32 s{sG}, 0")
A("s_cbranch_scc1 L_kv_v")
def kv_chain(isv_):
    for k in range(16):
        f = 32 + 8*(k % 6)
        if k + 4 < 16: kv_rd(k + 4)
        issued = min(16, k + 5)
        A(f"s_waitcnt lgkmcnt({3*(issued - k - 1)})")
        c = "0" if k == 0 else "v[28:31]"
        a, b = (f"v[{f}:{f+3}]", f"v[{f+4}:{f+7}]") if not isv_ else (f"v[{f+4}:{f+7}]", f"v[{f}:{f+3}]")
        A(f"v_mfma_f32_16x16x32_bf16 v[28:31], {a}, {b}, {c}")
kv_chain(False)
cnt_add(vCNT, vONE)
A(f"s_mov_b32 s{sT0}, {f2u(0.25 * math.log2(math.e))}")
A(f"""
s_lshl_b32 s{sT7}, s{sT7}, 8
s_add_u32 s{sT6}, s{sT6}, s{sT7}
v_and_b32 v22, 1, v20
v_lshlrev_b32 v22, 9, v22
v_lshl_add_u32 v22, v21, 4, v22
v_lshrrev_b32 v23, 1, v20
v_lshl_add_u32 v22, v23, 3, v22
v_mul_f32 v28, s{sT0}, v28
v_mul_f32 v29, s{sT0}, v29
v_mul_f32 v30, s{sT0}, v30
v_mul_f32 v31, s{sT0}, v31
v_cvt_pk_bf16_f32 v24, v28, v29
v_cvt_pk_bf16_f32 v25, v30, v31
buffer_store_dwordx2 v[24:25], v22, {srd(R_WS)}, s{sT6} offen sc1
v_mul_f32 v16, v28, v28
v_fmac_f32 v16, v29, v29
v_fmac_f32 v16, v30, v30
v_fmac_f32 v16, v31, v31
v_mov_b32 v17, v16
s_nop 1
v_permlane16_swap_b32 v17, v16
v_add_f32 v16, v16, v17
v_mov_b32 v17, v16
s_nop 1
v_permlane32_swap_b32 v17, v16
v_add_f32 v17, v16, v17
""")
wave_max(17, 18)
A("s_branch L_kv_pub")
A.label("L_kv_v")
kv_chain(True)
cnt_add(vCNT, vONE)
A(f"""
s_mul_i32 s{sT7}, s{sT7}, 544
s_add_u32 s{sT6}, s{sT6}, s{sT7}
s_add_u32 s{sT6}, s{sT6}, 1024
v_lshrrev_b32 v22, 1, v20
v_mul_u32_u24 v22, 272, v22
v_and_b32 v23, 1, v20
v_lshl_add_u32 v22, v23, 3, v22
v_lshl_add_u32 v23, v21, 4, v22
v_cvt_pk_bf16_f32 v24, v28, v29
v_cvt_pk_bf16_f32 v25, v30, v31
buffer_store_dwordx2 v[24:25], v23, {srd(R_WS)}, s{sT6} offen sc1
v_mov_b32 v26, 0x3f803f80
v_mov_b32 v27, 0x3f803f80
s_mov_b32 exec_lo, 0x00010001
s_mov_b32 exec_hi, 0x00010001
buffer_store_dwordx2 v[26:27], v22, {srd(R_WS)}, s{sT6} offen offset:256 sc1
s_mov_b64 exec, -1
v_mov_b32 v17, 0
""")
A.label("L_kv_pub")
A(f"""
s_lshl_b32 s{sT0}, s{sID}, 7
s_add_u32 s{sT0}, s{sT0}, {FL1}
v_mov_b32 v16, s{sTAG}
v_mov_b32 v9, 0
s_waitcnt vmcnt(0)
s_mov_b64 exec, 1
buffer_store_dwordx2 v[16:17], v9, {srd(R_WS)}, s{sT0} offen sc1
ds_add_u32 v{vCNT}, v{vONE}
s_mov_b64 exec, -1
""")
stamp(2)
A("s_branch L_S2")
def q_head():
    A(f"""
    v_mov_b32 v{vONE}, 1
    s_lshl_b32 s{sID}, s{sC}, 3
    s_add_u32 s{sID}, s{sID}, s{sG}
    s_waitcnt lgkmcnt(0)
    s_mul_i32 s{sTAG}, s{sEP}, 0x9E3779B1
    s_add_u32 s{sTAG}, s{sTAG}, 0x7F4A7C15
    s_waitcnt vmcnt(4)
    """)
    cnt_add(vCNT, vONE)
    prio(0)
def q_sig():
    A("s_waitcnt vmcnt(16)"); cnt_add(vCNT, vONE, 24)
    A("s_waitcnt vmcnt(0)"); cnt_add(vCNT, vONE, 28)
    prio(3)
    A("s_branch L_S2")
A.label("L_qx")
A(f"""
v_lshrrev_b32 v20, 4, v{vLANE}
v_and_b32 v21, 15, v{vLANE}
v_lshlrev_b32 v22, 4, v21
v_lshl_add_u32 v22, v20, 14, v22
""")
q_head()
for s_ in (2, 3):
    if s_ == 3: cnt_wait(vCNT, vTMP, 5)
    A(f"""
    s_add_u32 s{sT3}, s{sROT}, {s_}
    s_and_b32 s{sT3}, s{sT3}, 3
    s_lshl_b32 s{sT3}, s{sT3}, 8
    """)
    for i in range(16):
        A(f"s_mov_b32 m0, {XQ + s_*16640 + i*1040 - (i & 3)*1024}")
        A(f"s_add_u32 s{sT3}, s{sT3}, 4096" if (i & 3 == 0 and i) else "s_nop 0")
        A(f"buffer_load_dwordx4 v22, {srd(R_XB)}, s{sT3} offen offset:{(i & 3)*1024} lds")
q_sig()
A.label("L_qw")
srd_words([R_WQ])
wq_voffset(22, 23, 24, 25)
A(f"""
s_lshl_b32 s{sT0}, s{sG}, 7
s_add_u32 s{R_WQ}, s{R_WQ}, s{sT0}
s_addc_u32 s{R_WQ+1}, s{R_WQ+1}, 0
""")
q_head()
for s_ in (2, 3):
    if s_ == 3: cnt_wait(vCNT, vTMP, 5)
    A(f"""
    s_add_u32 s{sT3}, s{sROT}, {s_}
    s_and_b32 s{sT3}, s{sT3}, 3
    s_lshl_b32 s{sT3}, s{sT3}, 17
    """)
    for i in range(16):
        A(f"s_mov_b32 m0, {WQ + s_*16384 + i*1024}")
        A(f"s_add_u32 s{sT3}, s{sT3}, 8192" if i else "s_nop 0")
        A(f"buffer_load_dwordx4 v22, {srd(R_WQ)}, s{sT3} offen lds")
q_sig()
SSEC[0] = False
A.label("L_A1")
for i in range(4): A(f"v_mov_b32 v{vZ+i}, 0")
vXa, vWa, vFl, vQw, vQr, vAone = 8, 9, 10, 14, 15, vIDX
common_scalars()
for ct in range(8):
    A(f"v_mfma_f32_32x32x16_bf16 a[{16*ct}:{16*ct+15}], v[{vZ}:{vZ+3}], v[{vZ}:{vZ+3}], 0")
A(f"""
v_and_b32 v6, 15, v{vL31}
v_mul_u32_u24 v{vXa}, 1040, v6
v_lshl_add_u32 v{vXa}, v{vH}, 4, v{vXa}
v_lshrrev_b32 v6, 4, v{vL31}
v_lshl_add_u32 v{vXa}, v6, 8, v{vXa}
s_lshl_b32 s{sT0}, s{sTW}, 9
v_add_u32 v{vXa}, s{sT0}, v{vXa}
v_bfe_u32 v6, v{vLANE}, 2, 2
v_lshl_add_u32 v6, v{vH}, 3, v6
v_bfe_u32 v7, v{vLANE}, 4, 1
v_and_b32 v11, 3, v{vLANE}
v_lshlrev_b32 v11, 3, v11
v_lshl_add_u32 v11, v7, 5, v11
s_lshl_b32 s{sT0}, s{sCW}, 6
v_add_u32 v11, s{sT0}, v11
v_bfe_u32 v7, v{vLANE}, 3, 1
v_lshlrev_b32 v7, 6, v7
v_xor_b32 v11, v11, v7
v_lshl_add_u32 v{vWa}, v6, 7, v11
v_add_u32 v{vWa}, {WQ}, v{vWa}
s_lshl_b32 s{sT0}, s{sWAVE}, 13
s_add_u32 s{sT0}, s{sT0}, {FL1}
v_lshlrev_b32 v{vFl}, 7, v{vLANE}
v_add_u32 v{vFl}, s{sT0}, v{vFl}
s_lshl_b32 s{sT0}, s{sWAVE}, 16
s_add_u32 s{sT1}, s{sT0}, {KVT}
v_add_u32 v{vKt[0]}, s{sT1}, v{vL16x}
s_add_u32 s{sT1}, s{sT1}, 1024
v_lshlrev_b32 v13, 4, v{vL31}
v_mul_u32_u24 v14, 272, v{vH}
v_add3_u32 v13, v13, v14, s{sT1}
v_cmp_lt_u32 vcc, 16, v{vL31}
v_mov_b32 v14, 0x7ff00000
v_mov_b32 v{vIDX}, 0xdddddddd
v_cndmask_b32 v{vVt[0]}, v13, v14, vcc
s_lshl_b32 s{sKOFF}, s{sROT}, 14
s_lshl_b32 s{sT0}, s{sCW}, 2
s_add_u32 s{sT0}, s{sT0}, s{sTW}
s_lshl_b32 s{sT0}, s{sT0}, 10
s_add_u32 s{sT0}, s{sT0}, {QX}
v_add_u32 v{vQw}, s{sT0}, v{vL16x}
v_add_u32 v{vQr}, {QX}, v{vL16x}
s_waitcnt lgkmcnt(0)
""")
common_after_wait()
QP = OPT["qpre"]
sKVOK = sATG
vFG = 12
def ld_k(b, t, so=sKOFF):
    A(f"buffer_load_dwordx4 v[{KV[b]}:{KV[b]+3}], v{vKt[t]}, {srd(R_WS)}, s{so} offen sc1")
def ld_v(b, j, t, so=sKOFF):
    A(f"buffer_load_dwordx4 v[{KV[b]+4+4*j}:{KV[b]+7+4*j}], v{vVt[t]}, {srd(R_WS)}, s{so} offen offset:{544*j} sc1")
def kv_first():
    for b in range(OPT["kv0"]):
        A(f"s_add_u32 s{sT1}, s{sKOFF}, {b*KVS}")
        ld_k(b, 0, sT1); ld_v(b, 0, 0, sT1); ld_v(b, 1, 0, sT1)
    A(f"ds_max_f32 v{vCNT}, v{vFG+1} offset:{KM - CNT}")
    if OPT["kv0"] == 4 or OPT["g0"]: cnt_add(vCNT, vAone, 12)
def kv_try(tag):
    A(f"""
    v_cmp_ne_u32 vcc, s{sTAG}, v{vFG}
    s_cbranch_vccnz L_kvlate{tag}
    s_mov_b32 s{sKVOK}, 1
    """)
    kv_first()
    A(f"s_branch L_kvq{tag}")
    A.label(f"L_kvlate{tag}")
    flag_ld()
    A.label(f"L_kvq{tag}")
def flag_ld(): A(f"buffer_load_dwordx2 v[{vFG}:{vFG+1}], v{vFl}, {srd(R_WS)}, 0 offen sc1")
def q_rd(k):
    s_, kk = divmod(k, 8)
    f = 32 + 8*(k % 6)
    A(f"ds_read_b64_tr_b16 v[{f}:{f+1}], v{vWa} offset:{s_*16384 + kk*2048}")
    A(f"ds_read_b64_tr_b16 v[{f+2}:{f+3}], v{vWa} offset:{s_*16384 + kk*2048 + 512}")
    A(f"ds_read_b128 v[{f+4}:{f+7}], v{vXa} offset:{XQ + s_*16640 + kk*32}")
A(f"s_mov_b32 s{sKVOK}, 0")
A("s_waitcnt vmcnt(8)")
stamp(3, HST)
cnt_add(vCNT, vAone, 4)
cnt_wait(vCNT, 11, 4, 4)
for k in range(4): q_rd(k)
done = 0
for k in range(32):
    if k == OPT["q1a"]:
        A("s_waitcnt vmcnt(0)")
        cnt_add(vCNT, vAone, 4)
    if k == OPT["p1k"]: flag_ld()
    if k + 4 < 32:
        if (k + 4) % 8 == 0:
            s_ = (k + 4) // 8
            if s_ == 1: cnt_wait(vCNT, 11, 8, 4)
            else: cnt_wait(vCNT, 11, 2, 24 + 4*(s_ - 2))
            stamp(3 + s_, HST)
            done = k + 4
        q_rd(k + 4)
    if k >= done:
        A(f"s_waitcnt lgkmcnt({3*(min(32, k + 5) - k - 1)})")
    c = "0" if k == 0 else f"v[{S0}:{S0+15}]"
    f = 32 + 8*(k % 6)
    A(f"v_mfma_f32_32x32x16_bf16 v[{S0}:{S0+15}], v[{f}:{f+3}], v[{f+4}:{f+7}], {c}")
A(f"""
s_mul_i32 s{sT6}, s{sWAVE}, {3*CB_T}
s_add_u32 s{sT6}, s{sT6}, {CB}
v_add_u32 v11, s{sT6}, v{vL16x}
s_mov_b32 s{sLOOP}, 4
""")
A.nop(8)
for i in range(8):
    A(f"v_cvt_pk_bf16_f32 v{32+i}, v{S0+2*i}, v{S0+2*i+1}")
    if i == 3: A(f"ds_write_b128 v{vQw}, v[32:35]")
A(f"""
ds_write_b128 v{vQw}, v[36:39] offset:2048
s_waitcnt lgkmcnt(0)
""")
cnt_add(vCNT, vAone, 4)
A("s_waitcnt vmcnt(0)")
kv_try("b")
for hd in range(2):
    A(f"v_mul_f32 v{32+hd}, v{S0+8*hd}, v{S0+8*hd}")
    for i in range(1, 8):
        A(f"v_fmac_f32 v{32+hd}, v{S0+8*hd+i}, v{S0+8*hd+i}")
A(f"""
v_mov_b32 v34, v32
v_mov_b32 v35, v33
v_add_u32 v{vKt[1]}, {KVS}, v{vKt[0]}
v_add_u32 v{vKt[2]}, {2*KVS}, v{vKt[0]}
v_permlane32_swap_b32 v34, v32
v_permlane32_swap_b32 v35, v33
v_add_f32 v32, v32, v34
v_add_f32 v33, v33, v35
v_max_f32 v32, v32, v33
v_add_u32 v{vVt[2]}, {2*KVS}, v{vVt[0]}
ds_max_f32 v{vCNT}, v32 offset:{QM - CNT}
""")
cnt_wait(vCNT, 36, 12, 4)
stamp(7 if HST else 2)
for pr in range(4):
    A(f"s_add_u32 s{sT0}, s{sWAVE}, {pr + 1}")
    A(f"s_and_b32 s{sT0}, s{sT0}, 3")
    A(f"s_lshl_b32 s{sT0}, s{sT0}, 11")
    A(f"v_add_u32 v{37}, s{sT0}, v{vQr}")
    A(f"ds_read_b128 v[{QF+8*pr}:{QF+8*pr+3}], v37")
    A(f"ds_read_b128 v[{QF+8*pr+4}:{QF+8*pr+7}], v37 offset:1024")
A(f"""
s_cmp_lg_u32 s{sKVOK}, 0
s_cbranch_scc1 L_kvgo
s_waitcnt vmcnt(0)
v_cmp_ne_u32 vcc, s{sTAG}, v{vFG}
s_cbranch_vccz L_kvok
""")
poll_flags(vFl, vFG, 2, sleep=0)
A.label("L_kvok")
kv_first()
A.label("L_kvgo")
if OPT["pad"] and OPT["padat"] == 1: padto()
stamp(3, not HST)
A(f"""
v_add_u32 v{vKt[3]}, {3*KVS}, v{vKt[0]}
v_add_u32 v{vVt[3]}, {3*KVS}, v{vVt[0]}
s_waitcnt vmcnt({3*OPT['kv0'] - 3}) lgkmcnt(0)
v_mfma_f32_32x32x16_bf16 v[{S0}:{S0+15}], v[{KV[0]}:{KV[0]+3}], v[{QF}:{QF+3}], 0
v_add_u32 v{vVt[1]}, {KVS}, v{vVt[0]}
v_lshlrev_b32 v13, 2, v{vLANE}
v_add_u32 v13, s{sT6}, v13
""")
A.nop(9)
SB = [S0, S1]
LASTSYNC = 8
CBASE = 6
def part_write(ct):
    A(f"ds_write_b128 v11, a[{16*ct}:{16*ct+3}] offset:{cb_off(ct)}")
    A(f"ds_write_b128 v11, a[{16*ct+4}:{16*ct+7}] offset:{cb_off(ct) + 1024}")
    A(f"ds_write_b32 v13, a{16*ct+8} offset:{cb_off(ct) + 2048}")
def period(kb, ct, mode):
    cur = SB[ct & 1]; oth = SB[(ct + 1) & 1]
    pct = (ct - 1) % 8
    pkb = kb if ct > 0 else (kb - 1) % 4
    nct = (ct + 1) % 8
    nkb = kb if ct < 7 else (kb + 1) % 4
    ld = ct == 0 and mode == "loop" and not OPT["noKV"]
    early = mode == "last" and 1 <= ct <= 6
    extra = {}
    if mode == "first" and OPT["kv0"] < 4:
        lds_ = []
        for b in range(OPT["kv0"], 4):
            lds_ += [lambda b=b: ld_k(b, b), lambda b=b: ld_v(b, 0, b), lambda b=b: ld_v(b, 1, b)]
        for n, f_ in enumerate(lds_): extra[[1, 2, 3, 6, 7, 11, 12, 13, 14][n]] = f_
    def e(i):
        A(f"v_exp_f32 v{cur+i}, v{cur+i}")
        if i in extra: extra[i]()
        if i == 15 and extra and not OPT["g0"]: cnt_add(vCNT, vAone, 12)
    e(0); e(1)
    if mode != "first":
        A(f"v_smfmac_f32_32x32x32_bf16 a[{16*pct}:{16*pct+15}], v[{KV[pkb]+8}:{KV[pkb]+11}], v[{oth+8}:{oth+15}], v{vIDX}")
    e(2)
    if mode == "last" and ct in (0, 3): A(f"ds_read_b32 v12, v{vCNT} offset:{28 if ct == 0 else 8}")
    if (mode, ct) == ("last", 7):
        A("s_waitcnt lgkmcnt(0)")
        cnt_add(vCNT, vIDX, 4)
    e(3)
    if ct == 7 and mode == "loop": A(f"s_waitcnt vmcnt(6)")
    e(4)
    if (mode, ct) != ("last", 7):
        A(f"v_mfma_f32_32x32x16_bf16 v[{oth}:{oth+15}], v[{KV[nkb]}:{KV[nkb]+3}], v[{QF+4*nct}:{QF+4*nct+3}], 0")
    for i in range(5, 10): e(i)
    A(f"v_smfmac_f32_32x32x32_bf16 a[{16*ct}:{16*ct+15}], v[{KV[kb]+4}:{KV[kb]+7}], v[{cur}:{cur+7}], v{vIDX}")
    e(10); e(11)
    e(12)
    if ld: ld_k(pkb, pkb)
    if early: A(f"ds_write_b128 v11, a[{16*(ct-1)}:{16*(ct-1)+3}] offset:{cb_off(ct-1)}")
    e(13)
    if ld: ld_v(pkb, 0, pkb)
    if (kb, ct, mode) == (0, 1, "loop"): A(f"s_add_u32 s{sKOFF}, s{sKOFF}, {4*KVS}")
    if (kb, ct, mode) == (2, 7, "loop"): A(f"s_sub_u32 s{sLOOP}, s{sLOOP}, 1")
    if early: A(f"ds_write_b128 v11, a[{16*(ct-1)+4}:{16*(ct-1)+7}] offset:{cb_off(ct-1) + 1024}")
    e(14)
    if ld: ld_v(pkb, 1, pkb)
    if (kb, ct, mode) == (0, 1, "loop"): A(f"s_and_b32 s{sKOFF}, s{sKOFF}, 0xffff")
    if (kb, ct, mode) == (2, 7, "loop"): A(f"s_cmp_eq_u32 s{sLOOP}, 0")
    if early: A(f"ds_write_b32 v13, a{16*(ct-1)+8} offset:{cb_off(ct-1) + 2048}")
    e(15)
    if mode == "last" and ct == 8 - OPT["trig"] - 1: cnt_add(vCNT, vIDX, 12)
    if mode == "last" and ct in (0, 3):
        tgt = 6 if ct == 0 else 4
        A(f"""
        s_waitcnt lgkmcnt(0)
        v_readfirstlane_b32 s{sT0}, v12
        s_cmp_ge_u32 s{sT0}, {tgt if not (OPT["noS"] or OPT["nochk"]) else 0}
        s_cbranch_scc1 L_sfree{ct}
        """)
        cnt_wait(vCNT, 12, tgt, 28 if ct == 0 else 8, sleep=2)
        A.label(f"L_sfree{ct}")
if OPT["cyc"]: A(f"s_memtime s[{sST+10}:{sST+11}]")
period(0, 0, "first")
A("s_branch L_attn1")
A(".p2align 6")
A.label("L_attn")
loop_start = len(A.lines)
for kb in (3, 0, 1, 2):
    for ct in range(8):
        if (kb, ct) == (0, 1): A.label("L_attn1")
        period(kb, ct, "loop")
loop_end = len(A.lines)
A("s_cbranch_scc0 L_attn")
for ct in range(8):
    period(3, ct, "last")
A(f"""
s_nop 1
v_smfmac_f32_32x32x32_bf16 a[112:127], v[{KV[3]+8}:{KV[3]+11}], v[{S1+8}:{S1+15}], v{vIDX}
""")
stamp(4, not HST)
if OPT["cyc"]: A(f"s_memtime s[{sST+12}:{sST+13}]")
if OPT["pad"] and OPT["padat"] == 2: padto()
A(f"s_mov_b32 s{sATG}, 16")
A.label("L_comb")
if OPT["aprio"]: prio(OPT["aprio"])
for k in range(3):
    A(f"""
    s_add_u32 s{sT0}, s{sWAVE}, {k + 1}
    s_and_b32 s{sT0}, s{sT0}, 3
    s_mul_i32 s{sT0}, s{sT0}, {3*CB_T}
    s_add_u32 s{sT0}, s{sT0}, {CB}
    v_add_u32 v{8+k}, s{sT0}, v{vL16x}
    v_lshl_add_u32 v{[12, 14, 15][k]}, v{vL31}, 2, s{sT0}
    """)
A(f"""
s_lshl_b32 s{sT1}, s{sG}, 2
s_add_u32 s{sT1}, s{sT1}, s{sWAVE}
s_lshl_b32 s{sT1}, s{sT1}, 10
s_lshl_b32 s{sT2}, s{sC}, 16
s_add_u32 s{sT1}, s{sT1}, s{sT2}
s_add_u32 s{sT1}, s{sT1}, {OB}
s_add_u32 s{sT2}, s{sT1}, 32768
s_waitcnt vmcnt(0)
""")
cnt_wait(vCNT, 16, f"s{sATG}", 4)
def astamp(i):
    if OPT["cyc"] or HST or not (OPT["stamps"] or OPT["enc"]): return
    stamp(i)
astamp(5)
PD = [[16, 24, 32, 40], [80, 88, 96, 104]]
PL = [[112, 113, 114, 115], [116, 117, 118, 119]]
A(f"ds_read_b64 v[120:121], v0 offset:{QM - CNT}")
for u in range(2):
    for k in range(3):
        A(f"ds_read_b32 v{PL[u][k+1]}, v{[12, 14, 15][k]} offset:{cb_off(2*(2-k) + u) + 2048}")
    for k in range(3):
        A(f"ds_read_b128 v[{PD[u][k+1]}:{PD[u][k+1]+3}], v{8+k} offset:{cb_off(2*(2-k) + u)}")
        A(f"ds_read_b128 v[{PD[u][k+1]+4}:{PD[u][k+1]+7}], v{8+k} offset:{cb_off(2*(2-k) + u) + 1024}")
    if u == 0: A("s_waitcnt lgkmcnt(6)")
for u in range(2):
    A(f"v_accvgpr_read_b32 v{PL[u][0]}, a{16*(6+u)+8}")
    A(f"v_accvgpr_read_b32 v{122+u}, a{16*(6+u)+8}")
A(f"""
v_mul_f32 v120, v120, v121
v_add_f32 v113, v113, v114
v_permlane32_swap_b32 v112, v122
v_permlane32_swap_b32 v116, v123
v_cmp_nge_f32 vcc, {f2u(-1.0 if OPT['force_slow'] else 1000.0)}, v120
v_add_f32 v112, v112, v115
v_add_f32 v112, v112, v113
v_rcp_f32 v112, v112
s_cbranch_vccnz L_slow
L_fast:
""")
def comb(u, soff):
    d = PD[u]
    for i in range(8): A(f"v_accvgpr_read_b32 v{d[0]+i}, a{16*(6+u)+i}")
    if u == 0: A("s_waitcnt lgkmcnt(9)")
    else:
        A(f"""
        s_waitcnt lgkmcnt(2)
        v_add_f32 v117, v117, v118
        v_add_f32 v116, v116, v119
        v_add_f32 v116, v116, v117
        v_rcp_f32 v116, v116
        """)
    for i in range(0, 8, 2): A(f"v_pk_add_f32 {p2(d[1]+i)}, {p2(d[1]+i)}, {p2(d[2]+i)}")
    if u == 1: A("s_waitcnt lgkmcnt(0)")
    for i in range(0, 8, 2): A(f"v_pk_add_f32 {p2(d[0]+i)}, {p2(d[0]+i)}, {p2(d[3]+i)}")
    for i in range(0, 8, 2): A(f"v_pk_add_f32 {p2(d[0]+i)}, {p2(d[0]+i)}, {p2(d[1]+i)}")
    for i in range(0, 8, 2):
        A(f"v_pk_mul_f32 {p2(d[0]+i)}, {p2(d[0]+i)}, {p2(PL[u][0])} op_sel_hi:[1,0]")
    for i in range(0, 8, 2):
        A(f"v_cvt_pk_bf16_f32 v{d[1]+i//2}, v{d[0]+i}, v{d[0]+i+1}")
    A(f"buffer_store_dwordx4 v[{d[1]}:{d[1]+3}], v{vL16x}, {srd(R_WS)}, s{soff} offen sc1")
def p2(r): return f"v[{r}:{r+1}]"
comb(0, sT1); comb(1, sT2)
astamp(6)
if OPT["oack"]: A("s_waitcnt vmcnt(0)")
cnt_add(vCNT, vIDX, 12)
A(f"""
s_or_b32 s{sT0}, s2, s{sWAVE}
s_cmp_lg_u32 s{sT0}, 0
s_cbranch_scc1 L_noep
s_add_u32 s{sT0}, s{sEP}, 1
v_mov_b32 v10, s{sT0}
v_mov_b32 v11, 0
s_mov_b64 exec, 1
buffer_store_dword v10, v11, {srd(R_WS)}, 0 offen
s_mov_b64 exec, -1
L_noep:
""")
A.label("L_fin")
if OPT["enc"] or OPT["encS"]:
    A("""
    s_waitcnt vmcnt(0) lgkmcnt(0)
    s_add_u32 s94, s94, 3000
    L_enc:
    s_memrealtime s[96:97]
    s_waitcnt lgkmcnt(0)
    s_sub_u32 s96, s96, s94
    s_cmp_lt_i32 s96, 0
    s_cbranch_scc1 L_enc
    """)
if OPT["pad"] and OPT["padat"] == 0:
    A("s_waitcnt vmcnt(0)"); padto()
if OPT["stamps"]:
    A(f"""
    s_waitcnt vmcnt(0)
    s_memrealtime s[100:101]
    s_waitcnt lgkmcnt(0)
    s_lshl_b32 s{sT0}, s2, 3
    s_add_u32 s{sT0}, s{sT0}, s{sWAVE}
    s_lshl_b32 s{sT0}, s{sT0}, 6
    s_add_u32 s{sT0}, s{sT0}, {DBG + 0x800000}
    v_mov_b32 v11, 0
    """)
    for i in range(9): A(f"v_mov_b32 v{16+i}, s{sST+2*i}")
    A(f"""
    s_mov_b64 exec, 1
    buffer_store_dwordx4 v[16:19], v11, {srd(R_WS)}, s{sT0} offen
    buffer_store_dwordx4 v[20:23], v11, {srd(R_WS)}, s{sT0} offen offset:16
    buffer_store_dword v24, v11, {srd(R_WS)}, s{sT0} offen offset:32
    """)
if OPT["hdbg"]:
    A(f"""
    s_load_dwordx2 s[{sT2}:{sT3}], s[0:1], 120
    s_not_b32 s{sT0}, s{sST}
    v_mov_b32 v30, s{sT0}
    v_mov_b32 v31, 0
    s_waitcnt lgkmcnt(0)
    global_atomic_umax v31, v30, s[{sT2}:{sT3}]
    s_cmp_ge_u32 s{sWAVE}, 4
    s_cbranch_scc1 L_hdS
    """)
    for k, i in enumerate((0, 2, 3, 4, 5, 6, 8)):
        A(f"global_atomic_umax v31, v{16+i}, s[{sT2}:{sT3}] offset:{4*(1+k)}")
    A("s_branch L_end")
    A.label("L_hdS")
    for k, i in enumerate((1, 2, 3, 4, 5, 6, 7, 8)):
        if i in (1, 2):
            A(f"s_cmp_lg_u32 s{sWAVE}, 4")
            A(f"s_cbranch_scc1 L_hd{i}")
        A(f"global_atomic_umax v31, v{16+i}, s[{sT2}:{sT3}] offset:{4*(8+k)}")
        if i in (1, 2): A.label(f"L_hd{i}")
A.label("L_end")
A("s_endpgm")

A.label("L_S2a")
A("s_waitcnt vmcnt(0)")
A.label("L_S2")
SSEC[0] = True
kload([(R_XA, 0), (R_BRE, 24), (R_BIM, 32), (R_CRE, 40), (R_CIM, 48), (R_WO, 104), (R_AGG, 128)])
if OPT["pfc"]:
    A(f"""
    s_cmp_lg_u32 s{sWAVE}, 7
    s_cbranch_scc1 L_nopfcode
    s_getpc_b64 s[{sT0}:{sT1}]
    L_pc:
    s_sub_u32 s{sT0}, s{sT0}, L_pc-{NAME}_kernel
    s_subb_u32 s{sT1}, s{sT1}, 0
    s_lshl_b32 s{sLOOP}, s{sROT}, 13
    v_lshlrev_b32 v16, 7, v{vLANE}
    v_add_u32 v16, s{sLOOP}, v16
    v_min_u32 v16, L_hot_end-{NAME}_kernel-4, v16
    global_load_dword v{vDUM}, v16, s[{sT0}:{sT1}]
    L_nopfcode:
    """)
common_scalars()
srd_words([R_XA, R_BRE, R_BIM, R_CRE, R_CIM, R_WO, R_AGG])
A(f"""
s_lshl_b32 s{sT3}, s{sG}, 7
s_lshl_b32 s{sT4}, s{sG}, 16
s_waitcnt lgkmcnt(0)
s_mov_b64 s[{P_LRE}:{P_LRE+1}], s[{R_BRE}:{R_BRE+1}]
s_mov_b64 s[{P_LIM}:{P_LIM+1}], s[{R_BIM}:{R_BIM+1}]
s_mov_b64 s[{P_LDT}:{P_LDT+1}], s[{R_CRE}:{R_CRE+1}]
s_mov_b64 s[{P_DSK}:{P_DSK+1}], s[{R_CIM}:{R_CIM+1}]
s_mov_b64 s[{P_WV}:{P_WV+1}], s[{R_WO}:{R_WO+1}]
""")
for r, t in ((R_XA, sT2), (R_BRE, sT4), (R_BIM, sT4), (R_CRE, sT4), (R_CIM, sT4), (R_WO, sT3)):
    A(f"s_add_u32 s{r}, s{r}, s{t}")
    A(f"s_addc_u32 s{r+1}, s{r+1}, 0")
A(f"""
s_add_u32 s{R_AGG}, s{R_AGG}, {AGG}
s_addc_u32 s{R_AGG+1}, s{R_AGG+1}, 0
""")
common_after_wait(False)
if OPT["tlb"]:
    A(f"""
    s_cmp_lg_u32 s{sSW}, 2
    s_cbranch_scc1 L_notlb
    v_mov_b32 v16, 0
    s_lshl_b32 s{sT0}, s{sC}, 17
    s_add_u32 s{sT0}, s{sT0}, {HB}
    s_mov_b32 s{sT1}, {KVT}
    s_mov_b64 exec, 1
    """)
    for R in (R_XA, R_BRE, R_BIM, R_WO, R_CRE, R_CIM, R_OUT):
        A(f"buffer_load_dword v{vDUM}, v16, {srd(R)}, 0 offen")
    A(f"""
    buffer_load_dword v{vDUM}, v16, {srd(R_WS)}, s{sOB} offen sc1
    buffer_load_dword v{vDUM}, v16, {srd(R_WS)}, s{sT0} offen offset:2048 sc1
    s_mov_b64 exec, -1
    L_notlb:
    """)
A(f"""
s_add_u32 s{sROT}, s{sC}, s{sG}
s_and_b32 s{sROT}, s{sROT}, 3
v_lshrrev_b32 v20, 4, v{vLANE}
v_and_b32 v21, 15, v{vLANE}
v_lshlrev_b32 v22, 4, v21
v_lshl_add_u32 v{vBo}, v20, 14, v22
v_lshrrev_b32 v23, 1, v20
v_and_b32 v24, 1, v20
v_lshlrev_b32 v23, 15, v23
v_lshl_add_u32 v23, v24, 12, v23
v_add_u32 v{vXo}, v23, v22
v_lshlrev_b32 v{vPF}, 7, v21
s_lshl_b32 s{sT0}, s2, 11
v_add_u32 v{vPF}, s{sT0}, v{vPF}
""")
def g1_soff(s):
    A(f"""
    s_add_u32 s{sT5}, s{sROT}, {s}
    s_and_b32 s{sT5}, s{sT5}, 3
    s_lshl_b32 s{sT5}, s{sT5}, 8
    s_lshl_b32 s{sT3}, s{sSW}, 12
    s_add_u32 s{sT3}, s{sT3}, s{sT5}
    s_lshl_b32 s{sT4}, s{sTW}, 14
    s_add_u32 s{sT4}, s{sT4}, s{sT5}
    s_lshl_b32 s{sT5}, s{sCW}, 11
    s_add_u32 s{sT4}, s{sT4}, s{sT5}
    s_add_u32 s{sT5}, s{sT4}, 8192
    """)
def capw(c=None):
    c = OPT["cap"] if c is None else c
    if c: A(f"s_waitcnt vmcnt({c})")
def dma_piece(n):
    dma_piece_(n)
    capw(OPT["cap0"] if n < OPT["npre"] else None)
def dma_piece_(n):
    st, r = divmod(n, 12); i, m = divmod(r, 3)
    slot = SLOT[st % 3]
    if r == 0: g1_soff(st)
    if m == 0:
        A(f"s_add_u32 m0, s{sT7}, {slot + XA_O + i*1040 - (i>>1)*1024}")
        A("s_nop 0")
        A(f"buffer_load_dwordx4 v{vXo}, {srd(R_XA)}, s{sT5 if i & 1 else sT4} offen offset:{(i>>1)*1024} lds")
    else:
        A(f"s_add_u32 m0, s{sT7}, {slot + [0, BRE_O, BIM_O][m] + i*16}")
        A("s_nop 0")
        A(f"buffer_load_dwordx4 v{vBo}, {srd([0, R_BRE, R_BIM][m])}, s{sT3} offen offset:{i*1024} lds")
LOG2E = math.log2(math.e)
a0, a1, a2, a3, a4, a5 = PRM, PRM+1, PRM+2, 96, 97, 98
vLR, vLI = vL1, vL1 + 1
A(f"""
s_mov_b32 s{sT0}, {f2u(LOG2E)}
v_lshlrev_b32 v{a0}, 16, v{a0}
v_lshlrev_b32 v{a1}, 16, v{a1}
v_lshlrev_b32 v{a2}, 16, v{a2}
v_mul_f32 v{a2}, s{sT0}, v{a2}
v_exp_f32 v{a2}, v{a2}
s_nop 0
v_cvt_pk_bf16_f32 v{a2}, v{a2}, v{a2}
v_and_b32 v{a2}, 0xffff0000, v{a2}
v_mul_f32 v{a3}, v{a2}, v{a0}
v_mul_f32 v{a4}, v{a2}, v{a1}
v_mul_f32 v{a3}, s{sT0}, v{a3}
v_exp_f32 v{a3}, v{a3}
v_mul_f32 v{a4}, 0.15915494, v{a4}
v_fract_f32 v{a4}, v{a4}
v_cos_f32 v{vLR}, v{a4}
v_sin_f32 v{vLI}, v{a4}
s_nop 0
v_mul_f32 v{vLR}, v{a3}, v{vLR}
v_mul_f32 v{vLI}, v{a3}, v{vLI}
v_mul_f32 v{a2}, v{a0}, v{a0}
v_fmac_f32 v{a2}, v{a1}, v{a1}
v_rcp_f32 v{a2}, v{a2}
v_add_f32 v{a3}, -1.0, v{vLR}
v_mul_f32 v{a4}, v{a3}, v{a0}
v_fmac_f32 v{a4}, v{vLI}, v{a1}
v_mul_f32 v{a5}, v{vLI}, v{a0}
v_fma_f32 v{a5}, -v{a3}, v{a1}, v{a5}
v_add_f32 v{a2}, v{a2}, v{a2}
v_mul_f32 v{vCF}, v{a4}, v{a2}
v_mul_f32 v{vCF+1}, v{a5}, v{a2}
""")
def csq(d, s_):
    A(f"v_mul_f32 v{a0}, v{s_+1}, v{s_+1}")
    A(f"v_mul_f32 v{a1}, v{s_}, v{s_+1}")
    A(f"v_fma_f32 v{d}, v{s_}, v{s_}, -v{a0}")
    A(f"v_add_f32 v{d+1}, v{a1}, v{a1}")
csq(vL8, vL1); csq(vL8, vL8); csq(vL8, vL8)
csq(vL16, vL8)
csq(vL64, vL16); csq(vL64, vL64)
csq(vL512, vL64); csq(vL512, vL512); csq(vL512, vL512)
vD = PRM + 3
A(f"""
v_and_b32 v20, 1, v{vL31}
v_lshlrev_b32 v20, 4, v20
v_lshlrev_b32 v{vD}, v20, v{vD}
v_bfe_u32 v20, v{vL31}, 3, 1
v_cmp_eq_u32 vcc, v20, v{vH}
v_bfe_u32 v21, v{vL31}, 1, 2
v_lshrrev_b32 v22, 4, v{vL31}
v_cndmask_b32 v{vD}, 0, v{vD}, vcc
v_lshl_add_u32 v21, v22, 2, v21
""")
for i in range(8):
    A(f"v_cmp_eq_u32 vcc, {i}, v21")
    A("s_nop 1")
    A(f"v_cndmask_b32 v{DG+i}, 0, v{vD}, vcc")
A(f"""
v_and_b32 v20, 15, v{vL31}
v_mul_u32_u24 v20, 1040, v20
v_lshl_add_u32 v20, v{vH}, 4, v20
v_lshrrev_b32 v21, 4, v{vL31}
v_lshl_add_u32 v20, v21, 8, v20
s_lshl_b32 s{sT0}, s{sTW}, 9
v_add_u32 v{vAa[0]}, s{sT0}, v20
v_add_u32 v{vAa[1]}, {SLOT[1]}, v{vAa[0]}
s_lshl_b32 s{sT0}, s{sCW}, 9
s_add_u32 s{sT0}, s{sT0}, {BRE_O}
v_add_u32 v{vBa[0]}, s{sT0}, v20
v_add_u32 v{vBa[1]}, {SLOT[1]}, v{vBa[0]}
v_bfe_u32 v20, v{vL31}, 2, 1
v_lshlrev_b32 v20, 3, v20
v_bfe_u32 v21, v{vL31}, 4, 1
v_lshl_add_u32 v20, v21, 2, v20
v_and_b32 v21, 3, v{vL31}
v_add_u32 v20, v20, v21
v_mul_u32_u24 v20, 1040, v20
v_bfe_u32 v21, v{vL31}, 3, 1
v_lshl_add_u32 v20, v21, 8, v20
v_lshl_add_u32 v20, v{vH}, 4, v20
s_lshl_b32 s{sT0}, s{sTW}, 9
s_and_b32 s{sT1}, s{sG}, 1
s_lshl_b32 s{sT1}, s{sT1}, 7
s_add_u32 s{sT0}, s{sT0}, s{sT1}
s_lshl_b32 s{sT1}, s{sCW}, 6
s_add_u32 s{sT0}, s{sT0}, s{sT1}
s_lshr_b32 s{sLOOP}, s{sG}, 1
s_sub_u32 s{sLOOP}, s{sLOOP}, s{sROT}
s_and_b32 s{sLOOP}, s{sLOOP}, 3
s_mul_i32 s{sT1}, s{sLOOP}, {SLOT[1]}
s_cmp_eq_u32 s{sLOOP}, 3
s_cselect_b32 s{sT1}, 0, s{sT1}
s_add_u32 s{sT0}, s{sT0}, s{sT1}
v_add_u32 v{vDa}, s{sT0}, v20
s_mul_i32 s{sT7}, s{sSW}, {4*1040}
v_add_u32 v{vAa[2]}, {SLOT[2]}, v{vAa[0]}
v_add_u32 v{vBa[2]}, {SLOT[2]}, v{vBa[0]}
""")
cnt_wait(vCNT, vTMP, 6, 0, sleep=1)
cnt_wait(vCNT, vTMP, 4, 12, sleep=1)
if OPT["stgl"] > 2: cnt_wait(vCNT, vTMP, 4*OPT["stgl"], 4, sleep=2)
def pfx(items):
    if OPT["pfb"] != 2: return
    nsh = 8 if OPT["map84"] else 4
    for R, sw, shift in items:
        lbl = A.newlabel("pfx")
        A(f"""
        s_cmp_lg_u32 s{sSW}, {sw}
        s_cbranch_scc1 {lbl}
        s_and_b32 s{sT0}, s{sC}, {nsh - 1}
        s_lshl_b32 s{sT0}, s{sT0}, {shift + 6 + (0 if nsh == 8 else 1)}
        v_lshlrev_b32 v{vPF}, {shift}, v{vLANE}
        buffer_load_dword v{vDUM}, v{vPF}, {srd(R)}, s{sT0} offen
        """)
        if nsh == 4:
            A(f"s_add_u32 s{sT0}, s{sT0}, {64 << shift}")
            A(f"buffer_load_dword v{vDUM}, v{vPF}, {srd(R)}, s{sT0} offen")
        A.label(lbl)
def pf16(pairs, lbl):
    if OPT["pfb"] != 1: return
    A(f"""
    s_cmp_lg_u32 s{sSW}, 1
    s_cbranch_scc1 {lbl}
    s_mov_b64 exec, 0xffff
    """)
    for p in pairs: A(f"global_load_dword v{vDUM}, v{vPF}, s[{p}:{p+1}]")
    A(f"s_mov_b64 exec, -1\n{lbl}:")
pf16([P_LRE, P_LIM, P_WV], "L_nopfb")
cnt_wait(vCNT, vTMP, 12, 4, sleep=0)
if OPT["noS"]: A("s_branch L_fin")
prio(OPT["gprio"])
sstamp(1, 1)
NPRE = OPT["npre"]
for n in range(NPRE): dma_piece(n)
ISS = [NPRE]
A(f"s_waitcnt vmcnt({NPRE - 12})")
sstamp(2, 1)
prio(OPT["vprio"])
sync_add(False); sync_wait(0)
sstamp(3, 1)
G1B = [FRS, FRS + 12, 64]
def g1_stage(s, extra=None, nwr=None, early_add=None):
    slot = s % 3
    prio(3 if (OPT["g1p"] >> s) & 1 else OPT["gprio"])
    sk = A.newlabel("nod")
    A(f"""
    s_cmp_lg_u32 s{sLOOP}, {s}
    s_cbranch_scc1 {sk}
    ds_read_b128 v[64:67], v{vDa}
    ds_read_b128 v[68:71], v{vDa} offset:32
    s_waitcnt lgkmcnt(0)
    v_mfma_f32_32x32x16_bf16 v[{Y0}:{Y0+15}], v[64:67], v[{DG}:{DG+3}], 0
    v_mfma_f32_32x32x16_bf16 v[{Y0}:{Y0+15}], v[68:71], v[{DG+4}:{DG+7}], v[{Y0}:{Y0+15}]
    {sk}:
    """)
    def rd(k):
        f = G1B[k % 3]
        A(f"ds_read_b128 v[{f}:{f+3}], v{vAa[slot]} offset:{k*32}")
        A(f"ds_read_b128 v[{f+4}:{f+7}], v{vBa[slot]} offset:{k*32}")
        A(f"ds_read_b128 v[{f+8}:{f+11}], v{vBa[slot]} offset:{k*32 + (BIM_O-BRE_O)}")
    rd(0); rd(1)
    for k in range(8):
        f = G1B[k % 3]
        if k + 2 < 8: rd(k + 2)
        nw = nwr(k - 1) if (nwr and k > 0) else 0
        A(f"s_waitcnt lgkmcnt({min(15, 3*(min(8, k + 3) - k - 1) + nw)})")
        if k == 7 and early_add is not None:
            if early_add: A(early_add)
            sync_add(False)
        cr = "0" if (s == 0 and k == 0) else f"v[{UR}:{UR+15}]"
        ci = "0" if (s == 0 and k == 0) else f"v[{UI}:{UI+15}]"
        A(f"v_mfma_f32_32x32x16_bf16 v[{UR}:{UR+15}], v[{f}:{f+3}], v[{f+4}:{f+7}], {cr}")
        if extra: extra(k)
        A(f"v_mfma_f32_32x32x16_bf16 v[{UI}:{UI+15}], v[{f}:{f+3}], v[{f+8}:{f+11}], {ci}")
def issue_upto(lim, k, last):
    cnt = -(-(lim - ISS[0]) // max(1, last - k)) if k < last else 0
    for n in range(ISS[0], min(lim, ISS[0] + cnt)): dma_piece(n)
    ISS[0] = min(lim, ISS[0] + cnt)
L0 = OPT["l0"]
g1_stage(0, lambda k: issue_upto(L0, k, 7), early_add=f"s_waitcnt vmcnt({L0 - 24})")
assert ISS[0] == L0
sstamp(4, 1)
prio(OPT["vprio"])
pfx([(R_WO, 1, 10)])
sync_wait(0)
g1_stage(1, lambda k: issue_upto(48, k, 7), early_add="s_waitcnt vmcnt(12)")
assert ISS[0] == 48
sstamp(5, 1)
prio(OPT["vprio"])
CLR = 64
A(f"""
v_mov_b32 v{CLR}, -1
v_mov_b32 v{CLR+1}, -1
v_mov_b32 v{CLR+2}, -1
v_mov_b32 v{CLR+3}, -1
s_lshl_b32 s{sT0}, s{sG}, 12
s_add_u32 s{sT0}, s{sT0}, s{sOB}
s_lshl_b32 s{sT1}, s{sCW}, 11
s_add_u32 s{sT0}, s{sT0}, s{sT1}
buffer_store_dwordx4 v[{CLR}:{CLR+3}], v{vL16x}, {srd(R_WS)}, s{sT0} offen sc1
buffer_store_dwordx4 v[{CLR}:{CLR+3}], v{vL16x}, {srd(R_WS)}, s{sT0} offen offset:1024 sc1
v_mov_b32 v{CLR+4}, 0
v_mov_b32 v{CLR+5}, s{sTAG}
v_mov_b32 v{CLR+6}, 0
v_mov_b32 v{CLR+7}, s{sTAG}
s_lshl_b32 s{sT1}, s{sID}, 7
s_add_u32 s{sT1}, s{sT1}, {AGG_DUMMY}
s_mov_b64 exec, 1
buffer_store_dwordx4 v[{CLR+4}:{CLR+7}], v{CLR+4}, {srd(R_AGG)}, s{sT1} offen sc1
s_mov_b64 exec, -1
""")
sync_wait(0)
g1_stage(2, early_add="s_waitcnt vmcnt(0)")
sstamp(6, 1)
prio(OPT["vprio"])
pf16([P_LDT, P_DSK], "L_nopfc")
pfx([(R_CRE, 2, 7), (R_CIM, 3, 7)])
wq_voffset(5, 6, 8, 15)
A(f"""
s_mul_i32 s{sT2}, s{sSW}, {16*1040}
s_lshl_b32 s{sT3}, s{sSW}, 14
s_lshl_b32 s{sT6}, s{sSW}, 17
""")
sync_wait(0)
def wo_piece(i):
    A(f"""
    s_add_u32 m0, s{sT3}, {WO + i*1024}
    s_add_u32 s{sT1}, s{sT6}, {i*8192}
    buffer_load_dwordx4 v5, {srd(R_WO)}, s{sT1} offen lds
    """)
    capw()
def c_piece(R, base, i):
    A(f"s_add_u32 m0, s{sT2}, {base + i*1040 - (i & 3)*1024}")
    if i & 3 == 0: A(f"s_add_u32 s{sT4}, s{sT3}, {i*1024}")
    else: A("s_nop 0")
    A(f"buffer_load_dwordx4 v{vL16x}, {srd(R)}, s{sT4} offen offset:{(i & 3)*1024} lds")
    capw()
def ex3(k):
    wo_piece(2*k); wo_piece(2*k + 1)
g1_stage(3, ex3)
sstamp(7, 1); sstamp(1, 2)
prio(OPT["vprio"])
stamp(3)
A(f"""
s_lshl_b32 s{sT0}, s{sTW}, 10
s_lshl_b32 s{sT1}, s{sCW}, 8
s_add_u32 s{sT1}, s{sT1}, {EB}
s_add_u32 s{sT0}, s{sT0}, s{sT1}
v_lshlrev_b32 v10, 3, v{vL31}
v_add_u32 v11, s{sT1}, v10
v_lshl_add_u32 v10, v{vH}, 9, v10
v_add_u32 v10, s{sT0}, v10
""")
A.nop(4)
if OPT["dbg"]:
    A(f"""
    s_lshl_b32 s{sT0}, s{sID}, 2
    s_add_u32 s{sT0}, s{sT0}, s{sSW}
    s_lshl_b32 s{sT0}, s{sT0}, 13
    s_add_u32 s{sT0}, s{sT0}, {DBG}
    v_lshlrev_b32 v12, 2, v{vLANE}
    """)
    for i in range(32):
        A(f"buffer_store_dword v{UR+i}, v12, {srd(R_WS)}, s{sT0} offen")
        A(f"s_add_u32 s{sT0}, s{sT0}, 256")
    A("s_waitcnt vmcnt(0)")
def cstep4(dr, di, pr, pi, l, ur, ui, tr, ti):
    A(f"v_fma_f32 v{tr}, v{l}, v{pr}, v{ur}")
    A(f"v_fma_f32 v{ti}, v{l}, v{pi}, v{ui}")
    A(f"v_fma_f32 v{dr}, -v{l+1}, v{pi}, v{tr}")
    A(f"v_fma_f32 v{di}, v{l+1}, v{pr}, v{ti}")
def p2(r): return f"v[{r}:{r+1}]"
def pkstep(dr, di, pr, pi, l, ur, ui, tr, ti):
    A(f"v_pk_fma_f32 {p2(tr)}, {p2(l)}, {p2(pr)}, {p2(ur)} op_sel_hi:[0,1,1]")
    A(f"v_pk_fma_f32 {p2(ti)}, {p2(l)}, {p2(pi)}, {p2(ui)} op_sel_hi:[0,1,1]")
    A(f"v_pk_fma_f32 {p2(dr)}, {p2(l)}, {p2(pi)}, {p2(tr)} op_sel:[1,0,0] neg_lo:[1,0,0] neg_hi:[1,0,0]")
    A(f"v_pk_fma_f32 {p2(di)}, {p2(l)}, {p2(pr)}, {p2(ti)} op_sel:[1,0,0]")
pa = [(FRS, FRS+2), (6, 8)]
p = (UR, UI)
for j in range(1, 8):
    d = pa[j & 1]
    pkstep(d[0], d[1], p[0], p[1], vL1, UR+2*j, UI+2*j, FRS+4, FRS+6)
    p = d
EA = (6, 8)
cstep4(FRS, FRS+1, 6, 8, vL8, 7, 9, FRS+4, FRS+5)
A(f"ds_write_b64 v10, v[{FRS}:{FRS+1}]")
A("s_waitcnt vmcnt(0)")
sync_add()
LB = 64
A(f"""
s_lshl_b32 s{sT0}, s{sTW}, 4
s_sub_u32 s{sT0}, s{sC}, s{sT0}
s_sub_u32 s{sT0}, s{sT0}, 1
s_lshl_b32 s{sT0}, s{sT0}, 13
v_lshlrev_b32 v5, 16, v{vH}
v_sub_u32 v5, s{sT0}, v5
v_lshl_add_u32 v5, v{vP2}, 3, v5
s_lshl_b32 s{sT1}, s{sID}, 7
s_add_u32 s{sT1}, s{sT1}, {AGG_DUMMY}
""")
for k in range(8):
    A(f"v_min_u32 v{96+k}, s{sT1}, v5")
    if k < 7: A(f"v_add_u32 v5, {(-8192) & 0xffffffff}, v5")
sync_wait(0)
sstamp(2, 2)
E = FRS
for s in range(4):
    A(f"ds_read_b64 v[{E+2*s}:{E+2*s+1}], v11 offset:{s*512}")
A("s_waitcnt lgkmcnt(0)")
A1, A2, G3 = (104, 105), (106, 107), 108
cstep4(A1[0], A1[1], E, E+1, vL16, E+2, E+3, FRS+8, FRS+9)
cstep4(A2[0], A2[1], A1[0], A1[1], vL16, E+4, E+5, FRS+8, FRS+9)
vPR, vPI, vW = 12, 13, 14
tw1 = A.newlabel("tw1"); twd = A.newlabel("twd")
A(f"""
v_cmp_eq_u32 vcc, 1, v{vH}
s_cmp_lg_u32 s{sTW}, 0
s_cbranch_scc1 {tw1}
""")
cstep4(G3, G3+2, A2[0], A2[1], vL16, E+6, E+7, FRS+8, FRS+9)
A(f"""
v_mov_b32 v{G3+1}, s{sTAG}
v_mov_b32 v{G3+3}, s{sTAG}
v_lshlrev_b32 v7, 3, v{vP2}
s_lshl_b32 s{sT0}, s{sC}, 13
s_mov_b32 exec_hi, 0
buffer_store_dwordx4 v[{G3}:{G3+3}], v7, {srd(R_AGG)}, s{sT0} offen sc1
s_mov_b32 exec_hi, -1
v_cndmask_b32 v{vPR}, 0, v{E}, vcc
v_cndmask_b32 v{vPI}, 0, v{E+1}, vcc
v_cndmask_b32 v{vW}, 1.0, v{vL16}, vcc
v_cndmask_b32 v{vW+1}, 0, v{vL16+1}, vcc
s_branch {twd}
{tw1}:
v_cndmask_b32 v{vPR}, v{A1[0]}, v{A2[0]}, vcc
v_cndmask_b32 v{vPI}, v{A1[1]}, v{A2[1]}, vcc
v_mul_f32 v{FRS+8}, v{vL16+1}, v{vL16+1}
v_mul_f32 v{FRS+9}, v{vL16}, v{vL16+1}
v_fma_f32 v{FRS+8}, v{vL16}, v{vL16}, -v{FRS+8}
v_add_f32 v{FRS+9}, v{FRS+9}, v{FRS+9}
v_mul_f32 v{FRS+10}, v{FRS+8}, v{vL16}
v_mul_f32 v{FRS+11}, v{FRS+8}, v{vL16+1}
v_fma_f32 v{FRS+10}, -v{FRS+9}, v{vL16+1}, v{FRS+10}
v_fma_f32 v{FRS+11}, v{FRS+9}, v{vL16}, v{FRS+11}
v_cndmask_b32 v{vW}, v{FRS+8}, v{FRS+10}, vcc
v_cndmask_b32 v{vW+1}, v{FRS+9}, v{FRS+11}, vcc
{twd}:
""")
A(f"s_mov_b32 s{sSPIN}, 0")
A(f"""
s_lshl_b32 s{sT0}, s{sSW}, 12
s_add_u32 s{sT0}, s{sT0}, {TB}
v_lshlrev_b32 v9, 6, v{vL31}
v_lshl_add_u32 v9, v{vH}, 5, v9
v_add_u32 v9, s{sT0}, v9
v_bfe_u32 v108, v{vLANE}, 2, 2
v_lshl_add_u32 v108, v{vH}, 3, v108
v_lshlrev_b32 v108, 6, v108
v_bfe_u32 v109, v{vLANE}, 4, 1
v_lshl_add_u32 v108, v109, 5, v108
v_and_b32 v109, 3, v{vLANE}
v_lshl_add_u32 v108, v109, 3, v108
v_add_u32 v108, s{sT0}, v108
""")
A(f"""
v_bfe_u32 v5, v{vLANE}, 2, 2
v_lshl_add_u32 v5, v{vH}, 2, v5
v_bfe_u32 v7, v{vLANE}, 4, 1
v_and_b32 v110, 3, v{vLANE}
v_lshlrev_b32 v110, 3, v110
v_lshl_add_u32 v110, v7, 5, v110
v_bfe_u32 v7, v{vLANE}, 3, 1
v_lshl_add_u32 v110, v7, 6, v110
v_lshl_add_u32 v110, v5, 7, v110
s_lshl_b32 s{sT0}, s{sCW}, 15
s_add_u32 s{sT0}, s{sT0}, {WO}
s_lshl_b32 s{sT1}, s{sCW}, 6
v_xor_b32 v110, s{sT1}, v110
v_xor_b32 v111, 64, v110
v_add_u32 v110, s{sT0}, v110
v_add_u32 v111, s{sT0}, v111
""")
for j in range(16):
    for nt in range(2):
        f = 8*j + 4*nt
        A(f"ds_read_b64_tr_b16 a[{f}:{f+1}], v{110 + nt} offset:{j*2048}")
        A(f"ds_read_b64_tr_b16 a[{f+2}:{f+3}], v{110 + nt} offset:{j*2048 + 1024}")
    if j % 3 == 2: A("s_waitcnt lgkmcnt(3)")
prio(OPT["gprio"])
for i in range(OPT["cim1"]): c_piece(R_CIM, CIM, i)
prio(OPT["vprio"])
sstamp(3, 2)
A.label("L_lb")
for k in range(8):
    A(f"buffer_load_dwordx4 v[{LB+4*k}:{LB+4*k+3}], v{96+k}, {srd(R_AGG)}, 0 offen sc1")
A(f"""
s_add_u32 s{sSPIN}, s{sSPIN}, 1
s_waitcnt vmcnt(0)
v_min_u32 v5, v{LB+1}, v{LB+3}
v_max3_u32 v7, s{sTAG}, v{LB+1}, v{LB+3}
""")
for k in range(1, 8):
    A(f"v_min3_u32 v5, v5, v{LB+4*k+1}, v{LB+4*k+3}")
    A(f"v_max3_u32 v7, v7, v{LB+4*k+1}, v{LB+4*k+3}")
A(f"""
v_min_u32 v5, s{sTAG}, v5
v_cmp_ne_u32 vcc, v5, v7
s_cbranch_vccz L_lbd
s_sleep 8
s_cmp_lt_u32 s{sSPIN}, {SPIN_MAX}
s_cbranch_scc1 L_lb
L_lbd:
""")
stamp(4); sstamp(4, 2)
p = (LB+28, LB+30)
pb = [(96, 97), (98, 99)]
for k in range(6, -1, -1):
    d = pb[k & 1]
    cstep4(d[0], d[1], p[0], p[1], vL64, LB+4*k, LB+4*k+2, 100, 101)
    p = d
A(f"ds_write_b64 v10, v[96:97] offset:{HP-EB}")
sync_add(); sync_wait(0)
sstamp(5, 2)
for s in range(4):
    A(f"ds_read_b64 v[{E+2*s}:{E+2*s+1}], v11 offset:{HP - EB + s*512}")
A("s_waitcnt lgkmcnt(0)")
p = (E+6, E+7)
for s in range(2, -1, -1):
    d = pb[s & 1]
    cstep4(d[0], d[1], p[0], p[1], vL512, E+2*s, E+2*s+1, 100, 101)
    p = d
CRp, CIp = 104, 106
cstep4(CRp, CIp, p[0], p[1], vW, vPR, vPI, 100, 101)
cstep4(CRp+1, CIp+1, CRp, CIp, vL8, EA[0], EA[1], 100, 101)
HR, HI = FRS, FRS+8
p = (CRp, CIp)
for j in range(8):
    pkstep(UR+2*j, UI+2*j, p[0], p[1], vL1, UR+2*j, UI+2*j, 100, 102)
    p = (UR+2*j, UI+2*j)
    if OPT['cpos'] == 0: c_piece(R_CRE, CRE, 2*j)
    A(f"v_pk_mul_f32 {p2(96)}, {p2(vCF)}, {p2(UI+2*j)} op_sel:[1,0]")
    A(f"v_pk_mul_f32 {p2(98)}, {p2(vCF)}, {p2(UR+2*j)} op_sel:[1,0]")
    A(f"v_pk_fma_f32 {p2(96)}, {p2(vCF)}, {p2(UR+2*j)}, {p2(96)} op_sel_hi:[0,1,1] neg_lo:[0,0,1] neg_hi:[0,0,1]")
    A(f"v_pk_fma_f32 {p2(98)}, {p2(vCF)}, {p2(UI+2*j)}, {p2(98)} op_sel_hi:[0,1,1] neg_lo:[1,0,1] neg_hi:[1,0,1]")
    if OPT['cpos'] == 0: c_piece(R_CRE, CRE, 2*j + 1)
    A(f"v_cvt_pk_bf16_f32 v{HR+j}, v96, v97")
    A(f"v_cvt_pk_bf16_f32 v{HI+j}, v98, v99")
    if j == 3:
        A(f"ds_write_b128 v9, v[{HR}:{HR+3}]")
        A(f"ds_write_b128 v9, v[{HI}:{HI+3}] offset:2048")
A(f"""
ds_write_b128 v9, v[{HR+4}:{HR+7}] offset:16
ds_write_b128 v9, v[{HI+4}:{HI+7}] offset:2064
s_lshl_b32 s{sKOFF}, s{sC}, 1
s_add_u32 s{sKOFF}, s{sKOFF}, s{sTW}
s_lshl_b32 s{sKOFF}, s{sKOFF}, 16
s_add_u32 s{sKOFF}, s{sKOFF}, {HB}
s_lshl_b32 s{sT1}, s{sG}, 12
s_lshl_b32 s{sT7}, s{sCW}, 11
s_add_u32 s{sT1}, s{sT1}, s{sT7}
s_add_u32 s{sT0}, s{sKOFF}, s{sT1}
s_add_u32 s{sT1}, s{sT0}, 32768
s_waitcnt lgkmcnt(0)
""")
for part in range(2):
    for hf in range(2):
        f = 64 + 8*part + 4*hf
        A(f"ds_read_b64_tr_b16 v[{f}:{f+1}], v108 offset:{part*2048 + hf*1024}")
        A(f"ds_read_b64_tr_b16 v[{f+2}:{f+3}], v108 offset:{part*2048 + hf*1024 + 256}")
for n in range(4):
    A(f"s_waitcnt lgkmcnt({6 - 2*n})")
    A(f"buffer_store_dwordx4 v[{64+4*n}:{67+4*n}], v{vL16x}, {srd(R_WS)}, s{sT0 if n < 2 else sT1} offen offset:{(n&1)*1024} sc1")
A(f"""
s_lshl_b32 s{sT7}, s{sC}, 12
s_add_u32 s{sT7}, s{sT7}, {FL3}
v_and_b32 v5, 15, v{vLANE}
v_lshlrev_b32 v5, 8, v5
s_lshl_b32 s{sT0}, s{sTW}, 7
s_add_u32 s{sT0}, s{sT0}, s{sT7}
v_add_u32 v5, s{sT0}, v5
v_mov_b32 v12, s{sTAG}
v_mov_b32 v13, 0
s_lshl_b32 s{sT1}, s{sG}, 2
s_add_u32 s{sT1}, s{sT1}, s{sSW}
s_lshl_b32 s{sT1}, s{sT1}, 7
s_add_u32 s{sT1}, s{sT1}, s{sT7}
""")
sstamp(6, 2)
A("s_waitcnt vmcnt(0)")
sstamp(7, 2); sstamp(1, 3)
A(f"""
s_mov_b64 exec, 1
buffer_store_dword v12, v13, {srd(R_WS)}, s{sT1} offen sc1
ds_add_u32 v{vCNT}, v{vONE} offset:28
s_mov_b64 exec, -1
""")
if OPT["cpos"] == 0: sync_add(False)
else:
    prio(OPT["gprio"])
    for i in range(16): c_piece(R_CRE, CRE, i)
    prio(OPT["vprio"])
stamp(5, not HST)
A(f"""
v_mul_u32_u24 v10, 1040, v{vL31}
v_lshl_add_u32 v10, v{vH}, 4, v10
s_mul_i32 s{sT0}, s{sCW}, {512 + 32*1040}
s_mul_i32 s{sT1}, s{sCW}, {(512 - 32*1040) & 0xffffffff}
s_add_u32 s{sT1}, s{sT1}, {32*1040}
v_add_u32 v11, s{sT1}, v10
v_add_u32 v10, s{sT0}, v10
v_add_u32 v14, {CRE}, v10
v_add_u32 v15, {CRE}, v11
s_lshl_b32 s{sT1}, s{sCW}, 14
s_add_u32 s{sKOFF}, s{sKOFF}, s{sT1}
s_add_u32 s{sOB}, s{sOB}, s{sT1}
s_xor_b32 s{sT0}, s{sSW}, 2
s_lshl_b32 s{sT0}, s{sT0}, 12
v_add_u32 v114, s{sT0}, v{vL16x}
s_lshl_b32 s{sT0}, s{sSW}, 12
v_add_u32 v115, s{sT0}, v{vL16x}
v_add_u32 v119, {TBY}, v114
v_add_u32 v120, {TBY}, v115
s_lshl_b32 s{sT0}, s{sTW}, 17
s_lshl_b32 s{sT1}, s{sG}, 8
s_add_u32 s{sT0}, s{sT0}, s{sT1}
s_lshl_b32 s{sT1}, s{sCW}, 7
s_add_u32 s{sT0}, s{sT0}, s{sT1}
v_lshlrev_b32 v113, 2, v{vL31}
v_add_u32 v113, s{sT0}, v113
v_lshl_add_u32 v118, v{vH}, 14, v113
v_add_u32 v118, 2048, v118
v_lshl_add_u32 v113, v{vH}, 13, v113
""")
sstamp(2, 3)
poll_flags(5, 12, 1, sleep=OPT['sl2'])
if OPT["cpos"] == 1: sync_add(False)
sstamp(3, 3)
LA = 7
HRING = 16
def hreg(j): return HRING + 4*(j % 8)
def h_ld(j):
    if j == 16: A(f"s_add_u32 s{sKOFF}, s{sKOFF}, {32768 - 3*4096}")
    elif j % 4 == 0 and j > 0: A(f"s_add_u32 s{sKOFF}, s{sKOFF}, 4096")
    A(f"buffer_load_dwordx4 v[{hreg(j)}:{hreg(j)+3}], v{vL16x}, {srd(R_WS)}, s{sKOFF} offen offset:{(j%4)*1024} sc1")
for j in range(LA): h_ld(j)
def g2_rd(j):
    f = FRS + 8*(j % 3)
    A(f"ds_read_b128 v[{f}:{f+3}], v{14 if j < 16 else 10} offset:{(j % 16)*32}")
    A(f"ds_read_b128 v[{f+4}:{f+7}], v{15 if j < 16 else 11} offset:{(j % 16)*32}")
def g2_mfma(j):
    f = FRS + 8*(j % 3)
    c = "0" if j == 0 else f"v[{Y1}:{Y1+15}]"
    A(f"v_mfma_f32_32x32x16_bf16 v[{Y1}:{Y1+15}], v[{hreg(j)}:{hreg(j)+3}], v[{f+4}:{f+7}], {c}")
    A(f"v_mfma_f32_32x32x16_bf16 v[{Y0}:{Y0+15}], v[{hreg(j)}:{hreg(j)+3}], v[{f}:{f+3}], v[{Y0}:{Y0+15}]")
sync_wait(0)
prio(3 if OPT["g2p"] & 1 else OPT["gprio"])
g2_rd(0); g2_rd(1)
VQ = list(range(LA))
P2 = 32 - OPT["p2n"]
for j in range(32):
    if j == P2:
        if P2 + LA < 32 or True:
            pass
        prio(OPT["vprio"])
        cnt_wait(vCNT, vTMP, 8, 12, sleep=OPT['sl1'])
        sstamp(6, 3); sstamp(1, 4)
        prio(3 if OPT["g2p"] & 2 else OPT["gprio"])
    if j + LA < 32:
        h_ld(j + LA); VQ.append(j + LA)
    rest = list(range(OPT["cim1"], 16))
    per = -(-len(rest) // 10) if rest else 0
    for i in rest[per*j:per*(j + 1)] if j < 10 else []:
        if i == rest[0] and i & 3: A(f"s_add_u32 s{sT4}, s{sT3}, {(i & ~3)*1024}")
        c_piece(R_CIM, CIM, i); VQ.append(-2 if i == 15 else -1)
    if not rest and j == 0: VQ.insert(0, -2)
    if j == 14:
        prio(OPT["vprio"]); sync_wait(0); prio(3 if OPT["g2p"] & 1 else OPT["gprio"])
    if j + 2 < 32: g2_rd(j + 2)
    issued = min(32, j + 3)
    need = max(VQ.index(j), VQ.index(-2)) if j == 12 else VQ.index(j)
    A(f"s_waitcnt vmcnt({len(VQ) - 1 - need}) lgkmcnt({2*(issued - j - 1)})")
    if j == 12: sync_add(False)
    if j == 0: sstamp(4, 3)
    if j == 15:
        cnt_add(vCNT, vONE, 8)
        stamp(6, not HST); sstamp(5, 3)
    g2_mfma(j)
prio(OPT["vprio"])
A.nop(10)
for i in range(4):
    A(f"ds_write_b128 v119, v[{Y1+4*i}:{Y1+4*i+3}] offset:{i*1024}")
sync_add()
sync_wait(0)
for i in range(4):
    A(f"ds_read_b128 v[{Y1+4*i}:{Y1+4*i+3}], v120 offset:{i*1024}")
for i in range(16):
    if i % 4 == 0: A(f"s_waitcnt lgkmcnt({3 - i//4})")
    A(f"v_add_f32 v{Y0+i}, v{Y0+i}, v{Y1+i}")
    A(f"s_mov_b32 s{sT1}, {(16*(i>>3) + 4*((i>>2)&1) + ((i>>1)&1) + 8*(i&1))*4096}")
    A(f"buffer_store_dword v{Y0+i}, v113, {srd(R_OUT)}, s{sT1} offen{OST}")
stamp(7); sstamp(7, 3); sstamp(2, 4)
cnt_wait(vCNT, vTMP, 12, 12)
sstamp(3, 4)
if OPT["odel"]: A(f"s_sleep {OPT['odel']}")
def oreg(j): return (16 + 4*j) if j < 8 else (80 + 4*(j - 8))
def o_loads(g4):
    A(f"s_add_u32 s{sT1}, s{sOB}, {g4*4096}")
    for j in range(4*g4, 4*g4 + 4):
        A(f"buffer_load_dwordx4 v[{oreg(j)}:{oreg(j)+3}], v{vL16x}, {srd(R_WS)}, s{sT1} offen offset:{(j%4)*1024} sc1")
for g4 in range(4): o_loads(g4)
A(f"s_mov_b32 s{sSPIN}, 0")
for g4 in range(4):
    lp = A.newlabel("op"); dn = A.newlabel("opd"); ck = A.newlabel("opc")
    j0 = 4*g4
    A(f"s_waitcnt vmcnt({4*(3 - g4)})")
    A.label(ck)
    A(f"v_max_u32 v13, v{oreg(j0)+1}, v{oreg(j0)+3}")
    for j in range(j0 + 1, j0 + 4):
        A(f"v_max3_u32 v13, v13, v{oreg(j)+1}, v{oreg(j)+3}")
    A(f"""
    v_cmp_eq_u32 vcc, -1, v13
    s_cbranch_vccz {dn}
    s_add_u32 s{sSPIN}, s{sSPIN}, 1
    s_cmp_gt_u32 s{sSPIN}, 20000
    s_cbranch_scc1 {dn}
    """)
    o_loads(g4)
    A(f"""
    s_waitcnt vmcnt(0)
    s_branch {ck}
    {dn}:
    """)
    if g4 in (0, 3): sstamp(4 + g4 // 3, 4)
    for j in range(j0, j0 + 4):
        c0 = "0" if j == 0 else f"v[{Y0}:{Y0+15}]"
        c1 = "0" if j == 0 else f"v[{Y1}:{Y1+15}]"
        A(f"v_mfma_f32_32x32x16_bf16 v[{Y1}:{Y1+15}], v[{oreg(j)}:{oreg(j)+3}], a[{8*j+4}:{8*j+7}], {c1}")
        A(f"v_mfma_f32_32x32x16_bf16 v[{Y0}:{Y0+15}], v[{oreg(j)}:{oreg(j)+3}], a[{8*j}:{8*j+3}], {c0}")
if OPT["sst"] == 4: A(f"s_mov_b32 s{sST+14}, s{sSPIN}")
A.nop(11)
for i in range(4):
    A(f"ds_write_b128 v114, v[{Y1+4*i}:{Y1+4*i+3}] offset:{TB2 + i*1024}")
A("s_waitcnt lgkmcnt(0)")
A("s_barrier")
sstamp(6, 4)
for i in range(4):
    A(f"ds_read_b128 v[{Y1+4*i}:{Y1+4*i+3}], v115 offset:{TB2 + i*1024}")
for i in range(16):
    if i % 4 == 0: A(f"s_waitcnt lgkmcnt({3 - i//4})")
    A(f"v_add_f32 v{Y0+i}, v{Y0+i}, v{Y1+i}")
    A(f"s_mov_b32 s{sT1}, {(8*(i>>2) + (i&3))*4096}")
    A(f"buffer_store_dword v{Y0+i}, v118, {srd(R_OUT)}, s{sT1} offen{OSTB}")
A("s_branch L_fin")

A.label("L_hot_end")
A.label("L_slow")
A(f"""
s_cmp_lg_u32 s{sDONE}, 0
s_cbranch_scc1 L_fast
s_mov_b32 s{sDONE}, 1
s_waitcnt lgkmcnt(0)
""")
def a_sync():
    A(f"s_add_u32 s{sATG}, s{sATG}, 4")
    A("s_waitcnt lgkmcnt(0)")
    cnt_add(vCNT, vIDX, 4)
    cnt_wait(vCNT, 16, f"s{sATG}", 4, sleep=2)
for i in range(4): A(f"v_mov_b32 v{vZ+i}, 0")
for ct in range(8): A(f"v_mov_b32 v{vM+ct}, 0xff800000")
A("s_nop 1")
for ct in range(8):
    A(f"v_mfma_f32_32x32x16_bf16 a[{16*ct}:{16*ct+15}], v[{vZ}:{vZ+3}], v[{vZ}:{vZ+3}], 0")
A(f"s_mov_b32 s{sLOOP}, 16")
def adv():
    A(f"s_add_u32 s{sKOFF}, s{sKOFF}, {KVS}"); A(f"s_and_b32 s{sKOFF}, s{sKOFF}, 0xffff")
A.label("L_sl1")
ld_k(0, 0); adv()
A("s_waitcnt vmcnt(0)")
for ct in range(8):
    A(f"v_mfma_f32_32x32x16_bf16 v[{S0}:{S0+15}], v[{KV[0]}:{KV[0]+3}], v[{QF+4*ct}:{QF+4*ct+3}], 0")
    A.nop(12)
    for i in range(8):
        A(f"v_max3_f32 v{vM+ct}, v{S0+2*i}, v{S0+2*i+1}, v{vM+ct}")
A(f"""
s_sub_u32 s{sLOOP}, s{sLOOP}, 1
s_cmp_lg_u32 s{sLOOP}, 0
s_cbranch_scc1 L_sl1
s_lshl_b32 s{sT0}, s{sWAVE}, 11
s_add_u32 s{sT0}, s{sT0}, {CB}
v_lshlrev_b32 v8, 2, v{vLANE}
v_add_u32 v8, s{sT0}, v8
v_lshlrev_b32 v10, 2, v{vL31}
v_add_u32 v10, {CB}, v10
""")
a_sync()
def pair_off(pr):
    A(f"s_add_u32 s{sT0}, s{sWAVE}, {pr + 1}")
    A(f"s_and_b32 s{sT0}, s{sT0}, 3")
    A(f"s_lshl_b32 s{sT0}, s{sT0}, 9")
for pr in range(4):
    pair_off(pr)
    A(f"v_add_u32 v9, s{sT0}, v8")
    A(f"ds_write_b32 v9, v{vM+2*pr}")
    A(f"ds_write_b32 v9, v{vM+2*pr+1} offset:256")
a_sync()
for ct in range(8):
    if ct % 2 == 0:
        pair_off(ct // 2)
        A(f"v_add_u32 v9, s{sT0}, v10")
    for w in range(4):
        A(f"ds_read_b32 v{S0+2*w}, v9 offset:{w*2048 + (ct%2)*256}")
        A(f"ds_read_b32 v{S0+2*w+1}, v9 offset:{w*2048 + (ct%2)*256 + 128}")
    A("s_waitcnt lgkmcnt(0)")
    for w in range(4):
        A(f"v_max3_f32 v{vM+ct}, v{S0+2*w}, v{S0+2*w+1}, v{vM+ct}")
a_sync()
A(f"s_mov_b32 s{sLOOP}, 16")
A.label("L_sl2")
ld_k(0, 0); ld_v(0, 0, 0); ld_v(0, 1, 0); adv()
A("s_waitcnt vmcnt(0)")
for ct in range(8):
    A(f"v_mfma_f32_32x32x16_bf16 v[{S0}:{S0+15}], v[{KV[0]}:{KV[0]+3}], v[{QF+4*ct}:{QF+4*ct+3}], 0")
    A.nop(12)
    for i in range(16):
        A(f"v_sub_f32 v{S0+i}, v{S0+i}, v{vM+ct}")
    for i in range(16):
        A(f"v_exp_f32 v{S0+i}, v{S0+i}")
    A.nop(2)
    A(f"v_smfmac_f32_32x32x32_bf16 a[{16*ct}:{16*ct+15}], v[{KV[0]+4}:{KV[0]+7}], v[{S0}:{S0+7}], v{vIDX}")
    A(f"v_smfmac_f32_32x32x32_bf16 a[{16*ct}:{16*ct+15}], v[{KV[0]+8}:{KV[0]+11}], v[{S0+8}:{S0+15}], v{vIDX}")
A(f"""
s_sub_u32 s{sLOOP}, s{sLOOP}, 1
s_cmp_lg_u32 s{sLOOP}, 0
s_cbranch_scc1 L_sl2
s_nop 15
""")
for ct in range(6): part_write(ct)
A("s_waitcnt lgkmcnt(0)")
cnt_add(vCNT, vIDX, 4)
A(f"""
s_add_u32 s{sATG}, s{sATG}, 4
s_branch L_comb
""")

if OPT["xm"] or OPT["xv"] or OPT["xl"]:
    i0 = A.lines.index("L_S2:"); i1 = A.lines.index("L_hot_end:")
    seen = False
    for i in range(i0, i1):
        t = A.lines[i].strip()
        if t.startswith("ds_write_b128") : seen = True
        if not seen: continue
        if OPT["xm"] and t.startswith("v_mfma"): A.lines[i] = "    s_nop 7"
        if OPT["xv"] and (t.startswith(("v_pk_", "v_fma_f32", "v_cvt_pk", "v_mul_f32", "v_add_f32"))): A.lines[i] = "    s_nop 1"
        if OPT["xl"] and t.startswith(("ds_read_b128", "ds_write_b128")): A.lines[i] = "    s_nop 0"
hdr = open("cdna_kernels/" + NAME + ".s.ref").read().split("; Override launch")[0]
out = hdr + f"""; Fused single-launch kernel: 256 workgroups x 8 waves (4 attention waves + 4 SSM waves). Generated by gen/gen14.py.
; @launch grid=(256,1,1) block=(512,1,1) lds={LDS_BYTES}
.amdgcn_target "amdgcn-amd-amdhsa--gfx950"
.text
.globl {NAME}_kernel
.p2align 8
.type {NAME}_kernel,@function
{NAME}_kernel:
""" + A.text() + f""".section .rodata,"a"
.p2align 6
.amdhsa_kernel {NAME}_kernel
  .amdhsa_next_free_vgpr 256
  .amdhsa_next_free_sgpr 102
  .amdhsa_accum_offset 128
  .amdhsa_group_segment_fixed_size 0
  .amdhsa_kernarg_size 136
  .amdhsa_user_sgpr_count 2
  .amdhsa_user_sgpr_kernarg_segment_ptr 1
  .amdhsa_system_sgpr_workgroup_id_x 1
.end_amdhsa_kernel
"""
open(sys.argv[1], "w").write(out)
errs = check(A.lines) + check(A.lines[loop_end-60:loop_end] + A.lines[loop_start:loop_start+60])
for e in errs: print("HAZARD:", e)
print(f"{len(A.lines)} lines, {len(errs)} hazards")
```

```python
import sys, math, struct
from asmlib import *

OPT = dict(dbg=0, force_slow=0, stamps=0, noS=0, cyc=0, ost=2, gprio=0, vprio=3, hst=0, stgwin=8, pfq=0, pfb=2, stgl=2, qpre=2,
           pfc=1, ssl=2, la=8, sst=0, win0=0, trig=5, odel=0, sgate=2, map84=1, g1p=0, g2p=0, noKV=0, nochk=0, wq1=12, cpos=1, hdbg=0, p2n=24, oack=2, cim1=0, npre0=0, mid=0, sl1=2, sl2=2, sl0=0, tlb=0, pad=0, padat=0, p1at=3, e0c=24, q1a=2, p1k=28, kv0=4, g0=0, ofirst=0, xm=0, xv=0, xl=0, npre=15, l0=30, ostb=1, cap=7, cap0=9, enc=0, encS=0, aprio=3, lbs=4)
for a in sys.argv[2:]:
    k, v = a.split("=")
    assert k in OPT, k
    OPT[k] = int(v)

NAME = "concat_heads__ssm_conv_s5__grouped_kv_mqa__prompt"
def f2u(x): return struct.unpack("<I", struct.pack("<f", x))[0]

XQ, WQ = 0, 66560
KVX, WKV = 3*16640, 66560 + 3*16384
SLOT = [0, 49920, 99840]
XA_O, BRE_O, BIM_O = 0, 16640, 33280
CIM, CRE = 0, 66560
CB_T = 2304
CB = 133120 - 12*CB_T
def cb_off(slot): return (12 + slot)*CB_T if slot < 3 else (slot - 3)*CB_T
TB = 140288
TBY = CB
CREA, CREB = 99840, 66560
WO = 66560
TB2 = 0
QX = 149760; EB = 157952; HP = 160000; CNT = 162048; QM = 162064; KM = 162068; CNT4 = 24
assert CB + 24*CB_T <= CNT
assert TB + 16384 <= EB
LDS_BYTES = 163840
FL1, FL3 = 0x1000, 0x9000
KVT = 0x80000; KVS = 4096
AGG = 0x30000; AGG_DUMMY = 32*8192; AGG_SIZE = AGG_DUMMY + 256*128
OB, HB = 0x100000, 0x400000
DBG = 0x1000000
WS_SIZE = 0x2000000
assert AGG + AGG_SIZE <= KVT
sWAVE, sC, sG, sTAG, sID = 3, 4, 5, 6, 7
R_XB, R_WQ, R_WKV, R_XA, R_BRE, R_BIM, R_CRE, R_CIM, R_WO, R_OUT, R_WS, R_AGG = 8, 12, 16, 20, 24, 28, 32, 36, 40, 44, 48, 52
P_LRE, P_LIM, P_LDT, P_DSK, P_WV = 56, 58, 60, 62, 64
sEP, sDONE = 66, 67
sT0, sT1, sT2, sT3, sT4, sT5 = 68, 69, 70, 71, 72, 73
sT6, sSPIN = 74, 75
sTW, sCW = 76, 77
sLOOP, sKOFF, sROT, sSW = 78, 79, 80, 81
sOB, sT7 = 82, 83
sATG = 65
sST = 84
def srd(r): return f"s[{r}:{r+3}]"

A = Asm()
OST = ["", " sc1", " nt", " sc0 sc1", " sc1 nt"][OPT["ost"]]
OSTB = OST if OPT["ostb"] < 0 else ["", " sc1", " nt", " sc0 sc1", " sc1 nt"][OPT["ostb"]]
SPIN_MAX = 200000
HST = OPT["hst"]

SSEC = [False]
def sstamp(i, mode):
    if OPT["stamps"] and OPT["sst"] == mode:
        A(f"s_memrealtime s[{sST+2*i}:{sST+2*i+1}]")
def stamp(i, cond=True):
    if (OPT["enc"] or OPT["encS"]) and cond and (i == 0 or (SSEC[0] and i == OPT["encS"]) or (not SSEC[0] and i == OPT["enc"])):
        A(f"s_memrealtime s[{98 if i == 0 else 94}:{99 if i == 0 else 95}]")
        if i == 0: A("s_waitcnt lgkmcnt(0)\ns_sub_u32 s94, s98, 3000")
        return
    if SSEC[0] and OPT["sst"] and i < 8: return
    if OPT["stamps"] and cond:
        A(f"s_memrealtime s[{sST+2*i}:{sST+2*i+1}]")

def padto():
    l = A.newlabel("pad")
    A(f"""
    {l}:
    s_memrealtime s[96:97]
    s_waitcnt lgkmcnt(0)
    s_sub_u32 s96, s96, s98
    s_cmp_lt_u32 s96, {OPT["pad"]*100}
    s_cbranch_scc1 {l}
    """)
def prio(p): A(f"s_setprio {p}")

def cnt_add(vaddr, vone, off=0):
    A(f"""
    s_mov_b64 exec, 1
    {"ds_inc_u32" if vone == vIDX else "ds_add_u32"} v{vaddr}, v{vone} offset:{off}
    s_mov_b64 exec, -1
    """)
def cnt_wait(vaddr, vtmp, target, off=0, sleep=0):
    lp = A.newlabel("sy"); dn = A.newlabel("syd")
    A(f"""
    s_mov_b32 s{sSPIN}, 0
    {lp}:
    ds_read_b32 v{vtmp}, v{vaddr} offset:{off}
    s_add_u32 s{sSPIN}, s{sSPIN}, 1
    s_waitcnt lgkmcnt(0)
    v_readfirstlane_b32 s{sT0}, v{vtmp}
    s_cmp_ge_u32 s{sT0}, {target}
    s_cbranch_scc1 {dn}
    {("s_sleep " + str(sleep)) if sleep else ""}
    s_cmp_lt_u32 s{sSPIN}, {SPIN_MAX}
    s_cbranch_scc1 {lp}
    {dn}:
    """)
NSYNC = [0]
def grp_sync():
    NSYNC[0] += 1
    A("s_waitcnt lgkmcnt(0)")
    cnt_add(vCNT, vONE)
    cnt_wait(vCNT, vTMP, CBASE + 4*NSYNC[0], sleep=OPT['ssl'])

def sync_add(wait_lds=True):
    NSYNC[0] += 1
    if wait_lds: A("s_waitcnt lgkmcnt(0)")
    cnt_add(vCNT, vONE)
def sync_wait(sleep=None):
    cnt_wait(vCNT, vTMP, CBASE + 4*NSYNC[0], sleep=OPT['ssl'] if sleep is None else max(sleep, OPT['sl0']))

def poll_flags(vaddr, vdst, width, sleep=2):
    lp = A.newlabel("pl"); dn = A.newlabel("pld")
    ld = "buffer_load_dword" if width == 1 else f"buffer_load_dwordx{width}"
    A(f"s_mov_b32 s{sSPIN}, 0")
    A.label(lp)
    A(f"""
    {ld} {vr(vdst, width)}, v{vaddr}, {srd(R_WS)}, 0 offen sc1
    s_add_u32 s{sSPIN}, s{sSPIN}, 1
    s_waitcnt vmcnt(0)
    v_cmp_ne_u32 vcc, s{sTAG}, v{vdst}
    s_cbranch_vccz {dn}
    {("s_sleep " + str(sleep)) if sleep else ""}
    s_cmp_lt_u32 s{sSPIN}, {SPIN_MAX}
    s_cbranch_scc1 {lp}
    {dn}:
    """)

def wave_max(v, tmp):
    A("s_nop 1")
    for sh in (1, 2, 4, 8):
        A(f"v_max_f32_dpp v{v}, v{v}, v{v} row_ror:{sh} row_mask:0xf bank_mask:0xf")
        A("s_nop 1")
    A(f"v_mov_b32 v{tmp}, v{v}")
    A("s_nop 1")
    A(f"v_permlane16_swap_b32 v{tmp}, v{v}")
    A(f"v_max_f32 v{v}, v{v}, v{tmp}")
    A(f"v_mov_b32 v{tmp}, v{v}")
    A("s_nop 1")
    A(f"v_permlane32_swap_b32 v{tmp}, v{v}")
    A(f"v_max_f32 v{v}, v{v}, v{tmp}")

def wq_voffset(dst, t0, t1, t2):
    A(f"""
    v_lshrrev_b32 v{t0}, 3, v{vLANE}
    v_and_b32 v{t1}, 7, v{vLANE}
    v_bfe_u32 v{t2}, v{vLANE}, 4, 1
    v_lshlrev_b32 v{t2}, 2, v{t2}
    v_xor_b32 v{t1}, v{t1}, v{t2}
    v_lshlrev_b32 v{t1}, 4, v{t1}
    v_lshl_add_u32 v{dst}, v{t0}, 10, v{t1}
    """)

vLANE, vL31, vH, vL16x = 1, 2, 3, 4
UR, UI, Y0, Y1 = 16, 32, 48, 64
FRS = 80
DG = 104
vL1, vL8, vL16, vL64, vL512, vCF = 112, 114, 116, 118, 120, 122
vCNT, vONE, vTMP, vP2, vDUM = 0, 124, 125, 126, 127
vXo, vBo, vDa, vSt = 5, 6, 7, 8
vAa, vBa = [9, 10, 11], [12, 13, 14]
vPF = 15
STG = 64
PRM = 100
S0, S1 = 16, 32
QF = 48
KV = [80, 92, 104, 116]
vIDX = 7
vM = 104
vZ = 120
vKt, vVt = [5, 8, 9, 10], [6, 12, 14, 15]

A(f"""
s_cmp_ge_u32 s2, 256
s_cbranch_scc1 L_end
""")
stamp(0)
if OPT["pad"]: A("s_memrealtime s[98:99]")
sizes = {R_XB: 65536, R_WKV: 16384, R_WQ: 523392, R_WS: WS_SIZE, R_XA: 65536, R_BRE: 65536, R_BIM: 65536, R_CRE: 65536, R_CIM: 65536,
         R_WO: 523392, R_OUT: 262144, R_AGG: AGG_SIZE}
def kload(lst):
    for r, off in lst:
        A(f"s_load_dwordx2 s[{r}:{r+1}], s[0:1], {off}")
def srd_words(rs):
    for r in rs:
        A(f"s_mov_b32 s{r+2}, {sizes[r]}")
        A(f"s_mov_b32 s{r+3}, 0x20000")
kload([(R_XB, 72), (R_WKV, 88), (P_WV, 96), (R_WQ, 80), (R_WS, 128)])
A(f"""
v_lshrrev_b32 v5, 6, v0
v_and_b32 v{vLANE}, 63, v0
v_readfirstlane_b32 s{sWAVE}, v5
v_lshlrev_b32 v{vL16x}, 4, v{vLANE}
v_bfe_u32 v{vH}, v0, 5, 1
v_and_b32 v{vL31}, 31, v0
v_mov_b32 v0, {CNT}
""")
srd_words([R_XB])
A(f"""
""")
if OPT["map84"]:
    A(f"""
    s_bfe_u32 s{sC}, s2, 0x20001
    s_lshl_b32 s{sC}, s{sC}, 3
    s_bfe_u32 s{sT0}, s2, 0x30003
    s_add_u32 s{sC}, s{sC}, s{sT0}
    s_and_b32 s{sG}, s2, 1
    s_lshl_b32 s{sG}, s{sG}, 2
    s_lshr_b32 s{sT0}, s2, 6
    s_add_u32 s{sG}, s{sG}, s{sT0}
    s_add_u32 s{sROT}, s{sC}, s{sG}
    s_and_b32 s{sROT}, s{sROT}, 3
    """)
else:
    A(f"""
    s_and_b32 s{sC}, s2, 7
    s_lshl_b32 s{sC}, s{sC}, 2
    s_bfe_u32 s{sROT}, s2, 0x20003
    s_add_u32 s{sC}, s{sC}, s{sROT}
    s_lshr_b32 s{sG}, s2, 5
    """)
A(f"""
s_lshl_b32 s{sT2}, s{sC}, 16
s_sub_u32 s{sSW}, s{sWAVE}, 4
s_cbranch_scc1 L_A0
s_load_dwordx4 s[{P_LRE}:{P_LRE+3}], s[0:1], 8
s_load_dwordx4 s[{P_LDT}:{P_LDT+3}], s[0:1], 56
s_setprio 3
v_mov_b32 v20, 0
v_mov_b32 v21, 0
s_lshl_b32 s{sT0}, s{sG}, 6
s_lshl_b32 s{sT1}, s{sSW}, 4
s_and_b32 s{sT1}, s{sT1}, 32
s_add_u32 s{sT0}, s{sT0}, s{sT1}
v_add_lshl_u32 v{vP2}, s{sT0}, v{vL31}, 1
ds_write2_b64 v0, v[20:21], v[20:21] offset0:0 offset1:1
ds_write2_b64 v0, v[20:21], v[20:21] offset0:2 offset1:3
s_mov_b32 s{R_WKV+2}, {sizes[R_WKV]}
s_mov_b32 s{R_WKV+3}, 0x20000
s_lshl_b32 s{sT1}, s{sSW}, 12
s_lshl_b32 s{sT5}, s{sG}, 13
s_and_b32 s{sT5}, s{sT5}, 0xc000
s_add_u32 s{sT5}, s{sT5}, s{sT1}
s_mul_i32 s{sT0}, s{sSW}, 4160
s_add_u32 m0, s{sT1}, {WKV}
s_bitcmp1_b32 s{sG}, 0
s_waitcnt lgkmcnt(0)
s_cselect_b32 s{R_WKV}, s{P_WV}, s{R_WKV}
s_cselect_b32 s{R_WKV+1}, s{P_WV+1}, s{R_WKV+1}
s_add_u32 s{R_XB}, s{R_XB}, s{sT2}
s_addc_u32 s{R_XB+1}, s{R_XB+1}, 0
""")
for i in range(4):
    A(f"buffer_load_dwordx4 v{vL16x}, {srd(R_WKV)}, s{sT1} offen offset:{i*1024} lds")
for i in range(4):
    A(f"s_add_u32 m0, s{sT0}, {KVX + 16*i}")
    A(f"s_load_dword s{sEP}, s[{R_WS}:{R_WS+1}], 0" if i == 0 else "s_nop 0")
    A(f"buffer_load_dwordx4 v{vL16x}, {srd(R_XB)}, s{sT5} offen offset:{i*1024} lds")
A(f"""
s_barrier
global_load_ushort v{PRM}, v{vP2}, s[{P_LRE}:{P_LRE+1}]
global_load_ushort v{PRM+1}, v{vP2}, s[{P_LIM}:{P_LIM+1}]
global_load_ushort v{PRM+2}, v{vP2}, s[{P_LDT}:{P_LDT+1}]
global_load_ushort v{PRM+3}, v{vP2}, s[{P_DSK}:{P_DSK+1}]
s_cmp_eq_u32 s{sSW}, 1
s_cbranch_scc1 L_qx
s_cmp_eq_u32 s{sSW}, 2
s_cbranch_scc1 L_qw
s_branch L_S1
L_A0:
""")
def common_scalars():
    kload([(R_OUT, 112)])
    srd_words([R_WS, R_OUT])
    A(f"""
    s_and_b32 s{sTW}, s{sWAVE}, 1
    s_bfe_u32 s{sCW}, s{sWAVE}, 0x10001
    s_lshl_b32 s{sID}, s{sC}, 3
    s_add_u32 s{sID}, s{sID}, s{sG}
    s_mov_b32 s{sDONE}, 0
    s_lshl_b32 s{sOB}, s{sC}, 1
    s_add_u32 s{sOB}, s{sOB}, s{sTW}
    s_lshl_b32 s{sOB}, s{sOB}, 15
    s_add_u32 s{sOB}, s{sOB}, {OB}
    """)
def common_after_wait(tag=True):
    A(f"""
    s_lshl_b32 s{sT0}, s{sC}, 18
    s_add_u32 s{R_OUT}, s{R_OUT}, s{sT0}
    s_addc_u32 s{R_OUT+1}, s{R_OUT+1}, 0
    """)
    if tag: A(f"""
    s_mul_i32 s{sTAG}, s{sEP}, 0x9E3779B1
    s_add_u32 s{sTAG}, s{sTAG}, 0x7F4A7C15
    """)
vWQo, vXQo = 119, 117
A(f"""
v_lshrrev_b32 v6, 4, v{vLANE}
v_and_b32 v7, 15, v{vLANE}
v_lshlrev_b32 v7, 4, v7
v_lshl_add_u32 v{vXQo}, v6, 14, v7
s_mul_i32 s{sT6}, s{sWAVE}, 4160
s_lshl_b32 s{sT7}, s{sWAVE}, 12
""")
srd_words([R_WQ])
wq_voffset(vWQo, 6, 7, 10)
A(f"""
s_lshl_b32 s{sT0}, s{sG}, 7
s_waitcnt lgkmcnt(0)
s_add_u32 s{R_XB}, s{R_XB}, s{sT2}
s_addc_u32 s{R_XB+1}, s{R_XB+1}, 0
s_add_u32 s{R_WQ}, s{R_WQ}, s{sT0}
s_addc_u32 s{R_WQ+1}, s{R_WQ+1}, 0
s_load_dword s{sEP}, s[{R_WS}:{R_WS+1}], 0
s_barrier
""")
stamp(1, HST)
def x_dma(s):
    A(f"""
    s_add_u32 s{sT3}, s{sROT}, {s}
    s_and_b32 s{sT3}, s{sT3}, 3
    s_lshl_b32 s{sT4}, s{sT3}, 8
    s_add_u32 s{sT4}, s{sT4}, s{sT7}
    """)
    for i in range(4):
        A(f"""
        s_add_u32 m0, s{sT6}, {XQ + s*16640 + i*16}
        s_nop 0
        buffer_load_dwordx4 v{vXQo}, {srd(R_XB)}, s{sT4} offen offset:{i*1024} lds
        """)
def wq_dma(s):
    A(f"""
    s_lshl_b32 s{sT3}, s{sT3}, 4
    s_add_u32 s{sT3}, s{sT3}, s{sWAVE}
    s_lshl_b32 s{sT3}, s{sT3}, 13
    s_lshl_b32 s{sT2}, s{sWAVE}, 10
    """)
    for i in range(4):
        A(f"""
        s_add_u32 m0, s{sT2}, {WQ + s*16384 + i*4096}
        s_add_u32 s{sT1}, s{sT3}, {i*32768}
        buffer_load_dwordx4 v{vWQo}, {srd(R_WQ)}, s{sT1} offen lds
        """)
for s in range(OPT["qpre"]):
    x_dma(s); wq_dma(s)
stamp(2 if HST else 1)
A("s_branch L_A1")
A.label("L_S1")
SSEC[0] = True
A(f"""
v_mov_b32 v{vONE}, 1
s_lshl_b32 s{sID}, s{sC}, 3
s_add_u32 s{sID}, s{sID}, s{sG}
s_mov_b32 s{R_WS+2}, {WS_SIZE}
s_mov_b32 s{R_WS+3}, 0x20000
v_lshrrev_b32 v20, 4, v{vLANE}
v_and_b32 v21, 15, v{vLANE}
v_mul_u32_u24 v9, 1040, v21
v_lshl_add_u32 v9, v20, 4, v9
v_add_u32 v9, {KVX}, v9
v_lshrrev_b32 v10, 2, v21
v_lshl_add_u32 v10, v20, 3, v10
v_lshlrev_b32 v10, 5, v10
v_and_b32 v11, 3, v21
v_lshl_add_u32 v10, v11, 3, v10
v_add_u32 v10, {WKV}, v10
s_lshl_b32 s{sT6}, s{sC}, 1
s_lshr_b32 s{sT1}, s{sG}, 2
s_add_u32 s{sT6}, s{sT6}, s{sT1}
s_lshl_b32 s{sT6}, s{sT6}, 12
s_add_u32 s{sT6}, s{sT6}, {KVT}
s_bfe_u32 s{sT7}, s{sG}, 0x10001
s_waitcnt lgkmcnt(0)
s_mul_i32 s{sTAG}, s{sEP}, 0x9E3779B1
s_add_u32 s{sTAG}, s{sTAG}, 0x7F4A7C15
s_waitcnt vmcnt(4)
""")
stamp(6, HST)
cnt_add(vCNT, vONE)
A(f"""
s_cmp_lg_u32 s{sSW}, 0
s_cbranch_scc1 L_S2a
""")
cnt_wait(vCNT, vTMP, 4)
stamp(1)
def kv_rd(k):
    f = 32 + 8*(k % 6)
    A(f"ds_read_b64_tr_b16 v[{f}:{f+1}], v10 offset:{k*1024}")
    A(f"ds_read_b64_tr_b16 v[{f+2}:{f+3}], v10 offset:{k*1024+128}")
    A(f"ds_read_b128 v[{f+4}:{f+7}], v9 offset:{k*64}")
for k in range(4): kv_rd(k)
A(f"s_bitcmp1_b32 s{sG}, 0")
A("s_cbranch_scc1 L_kv_v")
def kv_chain(isv_):
    for k in range(16):
        f = 32 + 8*(k % 6)
        if k + 4 < 16: kv_rd(k + 4)
        issued = min(16, k + 5)
        A(f"s_waitcnt lgkmcnt({3*(issued - k - 1)})")
        c = "0" if k == 0 else "v[28:31]"
        a, b = (f"v[{f}:{f+3}]", f"v[{f+4}:{f+7}]") if not isv_ else (f"v[{f+4}:{f+7}]", f"v[{f}:{f+3}]")
        A(f"v_mfma_f32_16x16x32_bf16 v[28:31], {a}, {b}, {c}")
kv_chain(False)
cnt_add(vCNT, vONE)
A(f"s_mov_b32 s{sT0}, {f2u(0.25 * math.log2(math.e))}")
A(f"""
s_lshl_b32 s{sT7}, s{sT7}, 8
s_add_u32 s{sT6}, s{sT6}, s{sT7}
v_and_b32 v22, 1, v20
v_lshlrev_b32 v22, 9, v22
v_lshl_add_u32 v22, v21, 4, v22
v_lshrrev_b32 v23, 1, v20
v_lshl_add_u32 v22, v23, 3, v22
v_mul_f32 v28, s{sT0}, v28
v_mul_f32 v29, s{sT0}, v29
v_mul_f32 v30, s{sT0}, v30
v_mul_f32 v31, s{sT0}, v31
v_cvt_pk_bf16_f32 v24, v28, v29
v_cvt_pk_bf16_f32 v25, v30, v31
buffer_store_dwordx2 v[24:25], v22, {srd(R_WS)}, s{sT6} offen sc1
v_mul_f32 v16, v28, v28
v_fmac_f32 v16, v29, v29
v_fmac_f32 v16, v30, v30
v_fmac_f32 v16, v31, v31
v_mov_b32 v17, v16
s_nop 1
v_permlane16_swap_b32 v17, v16
v_add_f32 v16, v16, v17
v_mov_b32 v17, v16
s_nop 1
v_permlane32_swap_b32 v17, v16
v_add_f32 v17, v16, v17
""")
wave_max(17, 18)
A("s_branch L_kv_pub")
A.label("L_kv_v")
kv_chain(True)
cnt_add(vCNT, vONE)
A(f"""
s_mul_i32 s{sT7}, s{sT7}, 544
s_add_u32 s{sT6}, s{sT6}, s{sT7}
s_add_u32 s{sT6}, s{sT6}, 1024
v_lshrrev_b32 v22, 1, v20
v_mul_u32_u24 v22, 272, v22
v_and_b32 v23, 1, v20
v_lshl_add_u32 v22, v23, 3, v22
v_lshl_add_u32 v23, v21, 4, v22
v_cvt_pk_bf16_f32 v24, v28, v29
v_cvt_pk_bf16_f32 v25, v30, v31
buffer_store_dwordx2 v[24:25], v23, {srd(R_WS)}, s{sT6} offen sc1
v_mov_b32 v26, 0x3f803f80
v_mov_b32 v27, 0x3f803f80
s_mov_b32 exec_lo, 0x00010001
s_mov_b32 exec_hi, 0x00010001
buffer_store_dwordx2 v[26:27], v22, {srd(R_WS)}, s{sT6} offen offset:256 sc1
s_mov_b64 exec, -1
v_mov_b32 v17, 0
""")
A.label("L_kv_pub")
A(f"""
s_lshl_b32 s{sT0}, s{sID}, 7
s_add_u32 s{sT0}, s{sT0}, {FL1}
v_mov_b32 v16, s{sTAG}
v_mov_b32 v9, 0
s_waitcnt vmcnt(0)
s_mov_b64 exec, 1
buffer_store_dwordx2 v[16:17], v9, {srd(R_WS)}, s{sT0} offen sc1
ds_add_u32 v{vCNT}, v{vONE}
s_mov_b64 exec, -1
""")
stamp(2)
A("s_branch L_S2")
def q_head():
    A(f"""
    v_mov_b32 v{vONE}, 1
    s_lshl_b32 s{sID}, s{sC}, 3
    s_add_u32 s{sID}, s{sID}, s{sG}
    s_waitcnt lgkmcnt(0)
    s_mul_i32 s{sTAG}, s{sEP}, 0x9E3779B1
    s_add_u32 s{sTAG}, s{sTAG}, 0x7F4A7C15
    s_waitcnt vmcnt(4)
    """)
    cnt_add(vCNT, vONE)
    prio(0)
def q_sig():
    A("s_waitcnt vmcnt(16)"); cnt_add(vCNT, vONE, 24)
    A("s_waitcnt vmcnt(0)"); cnt_add(vCNT, vONE, 28)
    prio(3)
    A("s_branch L_S2")
A.label("L_qx")
A(f"""
v_lshrrev_b32 v20, 4, v{vLANE}
v_and_b32 v21, 15, v{vLANE}
v_lshlrev_b32 v22, 4, v21
v_lshl_add_u32 v22, v20, 14, v22
""")
q_head()
for s_ in (2, 3):
    if s_ == 3: cnt_wait(vCNT, vTMP, 5)
    A(f"""
    s_add_u32 s{sT3}, s{sROT}, {s_}
    s_and_b32 s{sT3}, s{sT3}, 3
    s_lshl_b32 s{sT3}, s{sT3}, 8
    """)
    for i in range(16):
        A(f"s_mov_b32 m0, {XQ + s_*16640 + i*1040 - (i & 3)*1024}")
        A(f"s_add_u32 s{sT3}, s{sT3}, 4096" if (i & 3 == 0 and i) else "s_nop 0")
        A(f"buffer_load_dwordx4 v22, {srd(R_XB)}, s{sT3} offen offset:{(i & 3)*1024} lds")
q_sig()
A.label("L_qw")
srd_words([R_WQ])
wq_voffset(22, 23, 24, 25)
A(f"""
s_lshl_b32 s{sT0}, s{sG}, 7
s_add_u32 s{R_WQ}, s{R_WQ}, s{sT0}
s_addc_u32 s{R_WQ+1}, s{R_WQ+1}, 0
""")
q_head()
for s_ in (2, 3):
    if s_ == 3: cnt_wait(vCNT, vTMP, 5)
    A(f"""
    s_add_u32 s{sT3}, s{sROT}, {s_}
    s_and_b32 s{sT3}, s{sT3}, 3
    s_lshl_b32 s{sT3}, s{sT3}, 17
    """)
    for i in range(16):
        A(f"s_mov_b32 m0, {WQ + s_*16384 + i*1024}")
        A(f"s_add_u32 s{sT3}, s{sT3}, 8192" if i else "s_nop 0")
        A(f"buffer_load_dwordx4 v22, {srd(R_WQ)}, s{sT3} offen lds")
q_sig()
SSEC[0] = False
A.label("L_A1")
for i in range(4): A(f"v_mov_b32 v{vZ+i}, 0")
vXa, vWa, vFl, vQw, vQr, vAone = 8, 9, 10, 14, 15, vIDX
common_scalars()
for ct in range(8):
    A(f"v_mfma_f32_32x32x16_bf16 a[{16*ct}:{16*ct+15}], v[{vZ}:{vZ+3}], v[{vZ}:{vZ+3}], 0")
A(f"""
v_and_b32 v6, 15, v{vL31}
v_mul_u32_u24 v{vXa}, 1040, v6
v_lshl_add_u32 v{vXa}, v{vH}, 4, v{vXa}
v_lshrrev_b32 v6, 4, v{vL31}
v_lshl_add_u32 v{vXa}, v6, 8, v{vXa}
s_lshl_b32 s{sT0}, s{sTW}, 9
v_add_u32 v{vXa}, s{sT0}, v{vXa}
v_bfe_u32 v6, v{vLANE}, 2, 2
v_lshl_add_u32 v6, v{vH}, 3, v6
v_bfe_u32 v7, v{vLANE}, 4, 1
v_and_b32 v11, 3, v{vLANE}
v_lshlrev_b32 v11, 3, v11
v_lshl_add_u32 v11, v7, 5, v11
s_lshl_b32 s{sT0}, s{sCW}, 6
v_add_u32 v11, s{sT0}, v11
v_bfe_u32 v7, v{vLANE}, 3, 1
v_lshlrev_b32 v7, 6, v7
v_xor_b32 v11, v11, v7
v_lshl_add_u32 v{vWa}, v6, 7, v11
v_add_u32 v{vWa}, {WQ}, v{vWa}
s_lshl_b32 s{sT0}, s{sWAVE}, 13
s_add_u32 s{sT0}, s{sT0}, {FL1}
v_lshlrev_b32 v{vFl}, 7, v{vLANE}
v_add_u32 v{vFl}, s{sT0}, v{vFl}
s_lshl_b32 s{sT0}, s{sWAVE}, 16
s_add_u32 s{sT1}, s{sT0}, {KVT}
v_add_u32 v{vKt[0]}, s{sT1}, v{vL16x}
s_add_u32 s{sT1}, s{sT1}, 1024
v_lshlrev_b32 v13, 4, v{vL31}
v_mul_u32_u24 v14, 272, v{vH}
v_add3_u32 v13, v13, v14, s{sT1}
v_cmp_lt_u32 vcc, 16, v{vL31}
v_mov_b32 v14, 0x7ff00000
v_mov_b32 v{vIDX}, 0xdddddddd
v_cndmask_b32 v{vVt[0]}, v13, v14, vcc
s_lshl_b32 s{sKOFF}, s{sROT}, 14
s_lshl_b32 s{sT0}, s{sCW}, 2
s_add_u32 s{sT0}, s{sT0}, s{sTW}
s_lshl_b32 s{sT0}, s{sT0}, 10
s_add_u32 s{sT0}, s{sT0}, {QX}
v_add_u32 v{vQw}, s{sT0}, v{vL16x}
v_add_u32 v{vQr}, {QX}, v{vL16x}
s_waitcnt lgkmcnt(0)
""")
common_after_wait()
QP = OPT["qpre"]
sKVOK = sATG
vFG = 12
def ld_k(b, t, so=sKOFF):
    A(f"buffer_load_dwordx4 v[{KV[b]}:{KV[b]+3}], v{vKt[t]}, {srd(R_WS)}, s{so} offen sc1")
def ld_v(b, j, t, so=sKOFF):
    A(f"buffer_load_dwordx4 v[{KV[b]+4+4*j}:{KV[b]+7+4*j}], v{vVt[t]}, {srd(R_WS)}, s{so} offen offset:{544*j} sc1")
def kv_first():
    for b in range(OPT["kv0"]):
        A(f"s_add_u32 s{sT1}, s{sKOFF}, {b*KVS}")
        ld_k(b, 0, sT1); ld_v(b, 0, 0, sT1); ld_v(b, 1, 0, sT1)
    A(f"ds_max_f32 v{vCNT}, v{vFG+1} offset:{KM - CNT}")
    if OPT["kv0"] == 4 or OPT["g0"]: cnt_add(vCNT, vAone, 12)
def kv_try(tag):
    A(f"""
    v_cmp_ne_u32 vcc, s{sTAG}, v{vFG}
    s_cbranch_vccnz L_kvlate{tag}
    s_mov_b32 s{sKVOK}, 1
    """)
    kv_first()
    A(f"s_branch L_kvq{tag}")
    A.label(f"L_kvlate{tag}")
    flag_ld()
    A.label(f"L_kvq{tag}")
def flag_ld(): A(f"buffer_load_dwordx2 v[{vFG}:{vFG+1}], v{vFl}, {srd(R_WS)}, 0 offen sc1")
def q_rd(k):
    s_, kk = divmod(k, 8)
    f = 32 + 8*(k % 6)
    A(f"ds_read_b64_tr_b16 v[{f}:{f+1}], v{vWa} offset:{s_*16384 + kk*2048}")
    A(f"ds_read_b64_tr_b16 v[{f+2}:{f+3}], v{vWa} offset:{s_*16384 + kk*2048 + 512}")
    A(f"ds_read_b128 v[{f+4}:{f+7}], v{vXa} offset:{XQ + s_*16640 + kk*32}")
A(f"s_mov_b32 s{sKVOK}, 0")
A("s_waitcnt vmcnt(8)")
stamp(3, HST)
cnt_add(vCNT, vAone, 4)
cnt_wait(vCNT, 11, 4, 4)
for k in range(4): q_rd(k)
done = 0
for k in range(32):
    if k == OPT["q1a"]:
        A("s_waitcnt vmcnt(0)")
        cnt_add(vCNT, vAone, 4)
    if k == OPT["p1k"]: flag_ld()
    if k + 4 < 32:
        if (k + 4) % 8 == 0:
            s_ = (k + 4) // 8
            if s_ == 1: cnt_wait(vCNT, 11, 8, 4)
            else: cnt_wait(vCNT, 11, 2, 24 + 4*(s_ - 2))
            stamp(3 + s_, HST)
            done = k + 4
        q_rd(k + 4)
    if k >= done:
        A(f"s_waitcnt lgkmcnt({3*(min(32, k + 5) - k - 1)})")
    c = "0" if k == 0 else f"v[{S0}:{S0+15}]"
    f = 32 + 8*(k % 6)
    A(f"v_mfma_f32_32x32x16_bf16 v[{S0}:{S0+15}], v[{f}:{f+3}], v[{f+4}:{f+7}], {c}")
A(f"""
s_mul_i32 s{sT6}, s{sWAVE}, {3*CB_T}
s_add_u32 s{sT6}, s{sT6}, {CB}
v_add_u32 v11, s{sT6}, v{vL16x}
s_mov_b32 s{sLOOP}, 4
""")
A.nop(8)
for i in range(8):
    A(f"v_cvt_pk_bf16_f32 v{32+i}, v{S0+2*i}, v{S0+2*i+1}")
    if i == 3: A(f"ds_write_b128 v{vQw}, v[32:35]")
A(f"""
ds_write_b128 v{vQw}, v[36:39] offset:2048
s_waitcnt lgkmcnt(0)
""")
cnt_add(vCNT, vAone, 4)
A("s_waitcnt vmcnt(0)")
kv_try("b")
for hd in range(2):
    A(f"v_mul_f32 v{32+hd}, v{S0+8*hd}, v{S0+8*hd}")
    for i in range(1, 8):
        A(f"v_fmac_f32 v{32+hd}, v{S0+8*hd+i}, v{S0+8*hd+i}")
A(f"""
v_mov_b32 v34, v32
v_mov_b32 v35, v33
v_add_u32 v{vKt[1]}, {KVS}, v{vKt[0]}
v_add_u32 v{vKt[2]}, {2*KVS}, v{vKt[0]}
v_permlane32_swap_b32 v34, v32
v_permlane32_swap_b32 v35, v33
v_add_f32 v32, v32, v34
v_add_f32 v33, v33, v35
v_max_f32 v32, v32, v33
v_add_u32 v{vVt[2]}, {2*KVS}, v{vVt[0]}
ds_max_f32 v{vCNT}, v32 offset:{QM - CNT}
""")
for pr in range(4):
    A(f"s_add_u32 s{sT0}, s{sWAVE}, {pr + 1}")
    A(f"s_and_b32 s{sT0}, s{sT0}, 3")
    A(f"s_lshl_b32 s{sT0}, s{sT0}, 11")
    A(f"v_add_u32 v{36+pr}, s{sT0}, v{vQr}")
A(f"v_add_u32 v{vVt[3]}, {3*KVS}, v{vVt[0]}")
cnt_wait(vCNT, 35, 12, 4)
stamp(7 if HST else 2)
for pr in range(4):
    A(f"ds_read_b128 v[{QF+8*pr}:{QF+8*pr+3}], v{36+pr}")
    A(f"ds_read_b128 v[{QF+8*pr+4}:{QF+8*pr+7}], v{36+pr} offset:1024")
A(f"""
s_cmp_lg_u32 s{sKVOK}, 0
s_cbranch_scc1 L_kvgo
s_waitcnt vmcnt(0)
v_cmp_ne_u32 vcc, s{sTAG}, v{vFG}
s_cbranch_vccz L_kvok
""")
poll_flags(vFl, vFG, 2, sleep=0)
A.label("L_kvok")
kv_first()
A.label("L_kvgo")
if OPT["pad"] and OPT["padat"] == 1: padto()
stamp(3, not HST)
A(f"""
s_waitcnt vmcnt({3*OPT['kv0'] - 1}) lgkmcnt(7)
v_mfma_f32_32x32x16_bf16 v[{S0}:{S0+15}], v[{KV[0]}:{KV[0]+3}], v[{QF}:{QF+3}], 0
v_add_u32 v{vKt[3]}, {3*KVS}, v{vKt[0]}
s_waitcnt vmcnt({3*OPT['kv0'] - 3}) lgkmcnt(0)
v_add_u32 v{vVt[1]}, {KVS}, v{vVt[0]}
v_lshlrev_b32 v13, 2, v{vLANE}
v_add_u32 v13, s{sT6}, v13
""")
A.nop(7)
SB = [S0, S1]
LASTSYNC = 8
CBASE = 6
def part_write(ct):
    A(f"ds_write_b128 v11, a[{16*ct}:{16*ct+3}] offset:{cb_off(ct)}")
    A(f"ds_write_b128 v11, a[{16*ct+4}:{16*ct+7}] offset:{cb_off(ct) + 1024}")
    A(f"ds_write_b32 v13, a{16*ct+8} offset:{cb_off(ct) + 2048}")
def period(kb, ct, mode):
    cur = SB[ct & 1]; oth = SB[(ct + 1) & 1]
    pct = (ct - 1) % 8
    pkb = kb if ct > 0 else (kb - 1) % 4
    nct = (ct + 1) % 8
    nkb = kb if ct < 7 else (kb + 1) % 4
    ld = ct == 0 and mode == "loop" and not OPT["noKV"]
    early = mode == "last" and 1 <= ct <= 6
    extra = {}
    if mode == "first" and OPT["kv0"] < 4:
        lds_ = []
        for b in range(OPT["kv0"], 4):
            lds_ += [lambda b=b: ld_k(b, b), lambda b=b: ld_v(b, 0, b), lambda b=b: ld_v(b, 1, b)]
        for n, f_ in enumerate(lds_): extra[[1, 2, 3, 6, 7, 11, 12, 13, 14][n]] = f_
    def e(i):
        A(f"v_exp_f32 v{cur+i}, v{cur+i}")
        if i in extra: extra[i]()
        if i == 15 and extra and not OPT["g0"]: cnt_add(vCNT, vAone, 12)
    e(0); e(1)
    if mode != "first":
        A(f"v_smfmac_f32_32x32x32_bf16 a[{16*pct}:{16*pct+15}], v[{KV[pkb]+8}:{KV[pkb]+11}], v[{oth+8}:{oth+15}], v{vIDX}")
    e(2)
    if mode == "last" and ct in (0, 3): A(f"ds_read_b32 v12, v{vCNT} offset:{28 if ct == 0 else 8}")
    if (mode, ct) == ("last", 7):
        A("s_waitcnt lgkmcnt(0)")
        cnt_add(vCNT, vIDX, 4)
    e(3)
    if ct == 7 and mode == "loop": A(f"s_waitcnt vmcnt(6)")
    e(4)
    if (mode, ct) != ("last", 7):
        A(f"v_mfma_f32_32x32x16_bf16 v[{oth}:{oth+15}], v[{KV[nkb]}:{KV[nkb]+3}], v[{QF+4*nct}:{QF+4*nct+3}], 0")
    for i in range(5, 10): e(i)
    A(f"v_smfmac_f32_32x32x32_bf16 a[{16*ct}:{16*ct+15}], v[{KV[kb]+4}:{KV[kb]+7}], v[{cur}:{cur+7}], v{vIDX}")
    e(10); e(11)
    e(12)
    if ld: ld_k(pkb, pkb)
    if early: A(f"ds_write_b128 v11, a[{16*(ct-1)}:{16*(ct-1)+3}] offset:{cb_off(ct-1)}")
    e(13)
    if ld: ld_v(pkb, 0, pkb)
    if (kb, ct, mode) == (0, 1, "loop"): A(f"s_add_u32 s{sKOFF}, s{sKOFF}, {4*KVS}")
    if (kb, ct, mode) == (2, 7, "loop"): A(f"s_sub_u32 s{sLOOP}, s{sLOOP}, 1")
    if early: A(f"ds_write_b128 v11, a[{16*(ct-1)+4}:{16*(ct-1)+7}] offset:{cb_off(ct-1) + 1024}")
    e(14)
    if ld: ld_v(pkb, 1, pkb)
    if (kb, ct, mode) == (0, 1, "loop"): A(f"s_and_b32 s{sKOFF}, s{sKOFF}, 0xffff")
    if (kb, ct, mode) == (2, 7, "loop"): A(f"s_cmp_eq_u32 s{sLOOP}, 0")
    if early: A(f"ds_write_b32 v13, a{16*(ct-1)+8} offset:{cb_off(ct-1) + 2048}")
    e(15)
    if mode == "last" and ct == 8 - OPT["trig"] - 1: cnt_add(vCNT, vIDX, 12)
    if mode == "last" and ct in (0, 3):
        tgt = 6 if ct == 0 else 4
        A(f"""
        s_waitcnt lgkmcnt(0)
        v_readfirstlane_b32 s{sT0}, v12
        s_cmp_ge_u32 s{sT0}, {tgt if not (OPT["noS"] or OPT["nochk"]) else 0}
        s_cbranch_scc1 L_sfree{ct}
        """)
        cnt_wait(vCNT, 12, tgt, 28 if ct == 0 else 8, sleep=2)
        A.label(f"L_sfree{ct}")
if OPT["cyc"]: A(f"s_memtime s[{sST+10}:{sST+11}]")
period(0, 0, "first")
A("s_branch L_attn1")
A(".p2align 6")
A.label("L_attn")
loop_start = len(A.lines)
for kb in (3, 0, 1, 2):
    for ct in range(8):
        if (kb, ct) == (0, 1): A.label("L_attn1")
        period(kb, ct, "loop")
loop_end = len(A.lines)
A("s_cbranch_scc0 L_attn")
for ct in range(8):
    period(3, ct, "last")
A(f"""
s_nop 1
v_smfmac_f32_32x32x32_bf16 a[112:127], v[{KV[3]+8}:{KV[3]+11}], v[{S1+8}:{S1+15}], v{vIDX}
""")
stamp(4, not HST)
if OPT["cyc"]: A(f"s_memtime s[{sST+12}:{sST+13}]")
if OPT["pad"] and OPT["padat"] == 2: padto()
A(f"s_mov_b32 s{sATG}, 16")
A.label("L_comb")
if OPT["aprio"]: prio(OPT["aprio"])
for k in range(3):
    A(f"""
    s_add_u32 s{sT0}, s{sWAVE}, {k + 1}
    s_and_b32 s{sT0}, s{sT0}, 3
    s_mul_i32 s{sT0}, s{sT0}, {3*CB_T}
    s_add_u32 s{sT0}, s{sT0}, {CB}
    v_add_u32 v{8+k}, s{sT0}, v{vL16x}
    v_lshl_add_u32 v{[12, 14, 15][k]}, v{vL31}, 2, s{sT0}
    """)
A(f"""
s_lshl_b32 s{sT1}, s{sG}, 2
s_add_u32 s{sT1}, s{sT1}, s{sWAVE}
s_lshl_b32 s{sT1}, s{sT1}, 10
s_lshl_b32 s{sT2}, s{sC}, 16
s_add_u32 s{sT1}, s{sT1}, s{sT2}
s_add_u32 s{sT1}, s{sT1}, {OB}
s_add_u32 s{sT2}, s{sT1}, 32768
s_waitcnt vmcnt(0)
""")
cnt_wait(vCNT, 16, f"s{sATG}", 4)
def astamp(i):
    if OPT["cyc"] or HST or not (OPT["stamps"] or OPT["enc"]): return
    stamp(i)
astamp(5)
PD = [[16, 24, 32, 40], [80, 88, 96, 104]]
PL = [[112, 113, 114, 115], [116, 117, 118, 119]]
A(f"ds_read_b64 v[120:121], v0 offset:{QM - CNT}")
for u in range(2):
    for k in range(3):
        A(f"ds_read_b32 v{PL[u][k+1]}, v{[12, 14, 15][k]} offset:{cb_off(2*(2-k) + u) + 2048}")
    for k in range(3):
        A(f"ds_read_b128 v[{PD[u][k+1]}:{PD[u][k+1]+3}], v{8+k} offset:{cb_off(2*(2-k) + u)}")
        A(f"ds_read_b128 v[{PD[u][k+1]+4}:{PD[u][k+1]+7}], v{8+k} offset:{cb_off(2*(2-k) + u) + 1024}")
    if u == 0: A("s_waitcnt lgkmcnt(6)")
for u in range(2):
    A(f"v_accvgpr_read_b32 v{PL[u][0]}, a{16*(6+u)+8}")
    A(f"v_accvgpr_read_b32 v{122+u}, a{16*(6+u)+8}")
A(f"""
v_mul_f32 v120, v120, v121
v_add_f32 v113, v113, v114
v_permlane32_swap_b32 v112, v122
v_permlane32_swap_b32 v116, v123
v_cmp_nge_f32 vcc, {f2u(-1.0 if OPT['force_slow'] else 1000.0)}, v120
v_add_f32 v112, v112, v115
v_add_f32 v112, v112, v113
v_rcp_f32 v112, v112
s_cbranch_vccnz L_slow
L_fast:
""")
def comb(u, soff):
    d = PD[u]
    for i in range(8): A(f"v_accvgpr_read_b32 v{d[0]+i}, a{16*(6+u)+i}")
    if u == 0: A("s_waitcnt lgkmcnt(9)")
    else:
        A(f"""
        s_waitcnt lgkmcnt(2)
        v_add_f32 v117, v117, v118
        v_add_f32 v116, v116, v119
        v_add_f32 v116, v116, v117
        v_rcp_f32 v116, v116
        """)
    for i in range(0, 8, 2): A(f"v_pk_add_f32 {p2(d[1]+i)}, {p2(d[1]+i)}, {p2(d[2]+i)}")
    if u == 1:
        A("s_waitcnt lgkmcnt(0)")
        if OPT["oack"] == 2: cnt_add(vCNT, vIDX, 12)
    for i in range(0, 8, 2): A(f"v_pk_add_f32 {p2(d[0]+i)}, {p2(d[0]+i)}, {p2(d[3]+i)}")
    for i in range(0, 8, 2): A(f"v_pk_add_f32 {p2(d[0]+i)}, {p2(d[0]+i)}, {p2(d[1]+i)}")
    for i in range(0, 8, 2):
        A(f"v_pk_mul_f32 {p2(d[0]+i)}, {p2(d[0]+i)}, {p2(PL[u][0])} op_sel_hi:[1,0]")
    for i in range(0, 8, 2):
        A(f"v_cvt_pk_bf16_f32 v{d[1]+i//2}, v{d[0]+i}, v{d[0]+i+1}")
    A(f"buffer_store_dwordx4 v[{d[1]}:{d[1]+3}], v{vL16x}, {srd(R_WS)}, s{soff} offen sc1")
def p2(r): return f"v[{r}:{r+1}]"
comb(0, sT1); comb(1, sT2)
astamp(6)
if OPT["oack"]: A("s_waitcnt vmcnt(0)")
cnt_add(vCNT, vIDX, 12)
A(f"""
s_or_b32 s{sT0}, s2, s{sWAVE}
s_cmp_lg_u32 s{sT0}, 0
s_cbranch_scc1 L_noep
s_add_u32 s{sT0}, s{sEP}, 1
v_mov_b32 v10, s{sT0}
v_mov_b32 v11, 0
s_mov_b64 exec, 1
buffer_store_dword v10, v11, {srd(R_WS)}, 0 offen
s_mov_b64 exec, -1
L_noep:
""")
A.label("L_fin")
if OPT["enc"] or OPT["encS"]:
    A("""
    s_waitcnt vmcnt(0) lgkmcnt(0)
    s_add_u32 s94, s94, 3000
    L_enc:
    s_memrealtime s[96:97]
    s_waitcnt lgkmcnt(0)
    s_sub_u32 s96, s96, s94
    s_cmp_lt_i32 s96, 0
    s_cbranch_scc1 L_enc
    """)
if OPT["pad"] and OPT["padat"] == 0:
    A("s_waitcnt vmcnt(0)"); padto()
if OPT["stamps"]:
    A(f"""
    s_waitcnt vmcnt(0)
    s_memrealtime s[100:101]
    s_waitcnt lgkmcnt(0)
    s_lshl_b32 s{sT0}, s2, 3
    s_add_u32 s{sT0}, s{sT0}, s{sWAVE}
    s_lshl_b32 s{sT0}, s{sT0}, 6
    s_add_u32 s{sT0}, s{sT0}, {DBG + 0x800000}
    v_mov_b32 v11, 0
    """)
    for i in range(9): A(f"v_mov_b32 v{16+i}, s{sST+2*i}")
    A(f"""
    s_mov_b64 exec, 1
    buffer_store_dwordx4 v[16:19], v11, {srd(R_WS)}, s{sT0} offen
    buffer_store_dwordx4 v[20:23], v11, {srd(R_WS)}, s{sT0} offen offset:16
    buffer_store_dword v24, v11, {srd(R_WS)}, s{sT0} offen offset:32
    """)
if OPT["hdbg"]:
    A(f"""
    s_load_dwordx2 s[{sT2}:{sT3}], s[0:1], 120
    s_not_b32 s{sT0}, s{sST}
    v_mov_b32 v30, s{sT0}
    v_mov_b32 v31, 0
    s_waitcnt lgkmcnt(0)
    global_atomic_umax v31, v30, s[{sT2}:{sT3}]
    s_cmp_ge_u32 s{sWAVE}, 4
    s_cbranch_scc1 L_hdS
    """)
    for k, i in enumerate((0, 2, 3, 4, 5, 6, 8)):
        A(f"global_atomic_umax v31, v{16+i}, s[{sT2}:{sT3}] offset:{4*(1+k)}")
    A("s_branch L_end")
    A.label("L_hdS")
    for k, i in enumerate((1, 2, 3, 4, 5, 6, 7, 8)):
        if i in (1, 2):
            A(f"s_cmp_lg_u32 s{sWAVE}, 4")
            A(f"s_cbranch_scc1 L_hd{i}")
        A(f"global_atomic_umax v31, v{16+i}, s[{sT2}:{sT3}] offset:{4*(8+k)}")
        if i in (1, 2): A.label(f"L_hd{i}")
A.label("L_end")
A("s_endpgm")

A.label("L_S2a")
A("s_waitcnt vmcnt(0)")
A.label("L_S2")
SSEC[0] = True
kload([(R_XA, 0), (R_BRE, 24), (R_BIM, 32), (R_CRE, 40), (R_CIM, 48), (R_WO, 104), (R_AGG, 128)])
if OPT["pfc"]:
    A(f"""
    s_cmp_lg_u32 s{sWAVE}, 7
    s_cbranch_scc1 L_nopfcode
    s_getpc_b64 s[{sT0}:{sT1}]
    L_pc:
    s_sub_u32 s{sT0}, s{sT0}, L_pc-{NAME}_kernel
    s_subb_u32 s{sT1}, s{sT1}, 0
    s_lshl_b32 s{sLOOP}, s{sROT}, 13
    v_lshlrev_b32 v16, 7, v{vLANE}
    v_add_u32 v16, s{sLOOP}, v16
    v_min_u32 v16, L_hot_end-{NAME}_kernel-4, v16
    global_load_dword v{vDUM}, v16, s[{sT0}:{sT1}]
    L_nopfcode:
    """)
common_scalars()
srd_words([R_XA, R_BRE, R_BIM, R_CRE, R_CIM, R_WO, R_AGG])
A(f"""
s_lshl_b32 s{sT3}, s{sG}, 7
s_lshl_b32 s{sT4}, s{sG}, 16
s_waitcnt lgkmcnt(0)
s_mov_b64 s[{P_LRE}:{P_LRE+1}], s[{R_BRE}:{R_BRE+1}]
s_mov_b64 s[{P_LIM}:{P_LIM+1}], s[{R_BIM}:{R_BIM+1}]
s_mov_b64 s[{P_LDT}:{P_LDT+1}], s[{R_CRE}:{R_CRE+1}]
s_mov_b64 s[{P_DSK}:{P_DSK+1}], s[{R_CIM}:{R_CIM+1}]
s_mov_b64 s[{P_WV}:{P_WV+1}], s[{R_WO}:{R_WO+1}]
""")
for r, t in ((R_XA, sT2), (R_BRE, sT4), (R_BIM, sT4), (R_CRE, sT4), (R_CIM, sT4), (R_WO, sT3)):
    A(f"s_add_u32 s{r}, s{r}, s{t}")
    A(f"s_addc_u32 s{r+1}, s{r+1}, 0")
A(f"""
s_add_u32 s{R_AGG}, s{R_AGG}, {AGG}
s_addc_u32 s{R_AGG+1}, s{R_AGG+1}, 0
""")
common_after_wait(False)
if OPT["tlb"]:
    A(f"""
    s_cmp_lg_u32 s{sSW}, 2
    s_cbranch_scc1 L_notlb
    v_mov_b32 v16, 0
    s_lshl_b32 s{sT0}, s{sC}, 17
    s_add_u32 s{sT0}, s{sT0}, {HB}
    s_mov_b32 s{sT1}, {KVT}
    s_mov_b64 exec, 1
    """)
    for R in (R_XA, R_BRE, R_BIM, R_WO, R_CRE, R_CIM, R_OUT):
        A(f"buffer_load_dword v{vDUM}, v16, {srd(R)}, 0 offen")
    A(f"""
    buffer_load_dword v{vDUM}, v16, {srd(R_WS)}, s{sOB} offen sc1
    buffer_load_dword v{vDUM}, v16, {srd(R_WS)}, s{sT0} offen offset:2048 sc1
    s_mov_b64 exec, -1
    L_notlb:
    """)
A(f"""
s_add_u32 s{sROT}, s{sC}, s{sG}
s_and_b32 s{sROT}, s{sROT}, 3
v_lshrrev_b32 v20, 4, v{vLANE}
v_and_b32 v21, 15, v{vLANE}
v_lshlrev_b32 v22, 4, v21
v_lshl_add_u32 v{vBo}, v20, 14, v22
v_lshrrev_b32 v23, 1, v20
v_and_b32 v24, 1, v20
v_lshlrev_b32 v23, 15, v23
v_lshl_add_u32 v23, v24, 12, v23
v_add_u32 v{vXo}, v23, v22
v_lshlrev_b32 v{vPF}, 7, v21
s_lshl_b32 s{sT0}, s2, 11
v_add_u32 v{vPF}, s{sT0}, v{vPF}
""")
def g1_soff(s):
    A(f"""
    s_add_u32 s{sT5}, s{sROT}, {s}
    s_and_b32 s{sT5}, s{sT5}, 3
    s_lshl_b32 s{sT5}, s{sT5}, 8
    s_lshl_b32 s{sT3}, s{sSW}, 12
    s_add_u32 s{sT3}, s{sT3}, s{sT5}
    s_lshl_b32 s{sT4}, s{sTW}, 14
    s_add_u32 s{sT4}, s{sT4}, s{sT5}
    s_lshl_b32 s{sT5}, s{sCW}, 11
    s_add_u32 s{sT4}, s{sT4}, s{sT5}
    s_add_u32 s{sT5}, s{sT4}, 8192
    """)
def capw(c=None):
    c = OPT["cap"] if c is None else c
    if c: A(f"s_waitcnt vmcnt({c})")
def dma_piece(n):
    dma_piece_(n)
    capw(OPT["cap0"] if n < OPT["npre"] else None)
def dma_piece_(n):
    st, r = divmod(n, 12); i, m = divmod(r, 3)
    slot = SLOT[st % 3]
    if r == 0: g1_soff(st)
    if m == 0:
        A(f"s_add_u32 m0, s{sT7}, {slot + XA_O + i*1040 - (i>>1)*1024}")
        A("s_nop 0")
        A(f"buffer_load_dwordx4 v{vXo}, {srd(R_XA)}, s{sT5 if i & 1 else sT4} offen offset:{(i>>1)*1024} lds")
    else:
        A(f"s_add_u32 m0, s{sT7}, {slot + [0, BRE_O, BIM_O][m] + i*16}")
        A("s_nop 0")
        A(f"buffer_load_dwordx4 v{vBo}, {srd([0, R_BRE, R_BIM][m])}, s{sT3} offen offset:{i*1024} lds")
LOG2E = math.log2(math.e)
a0, a1, a2, a3, a4, a5 = PRM, PRM+1, PRM+2, 96, 97, 98
vLR, vLI = vL1, vL1 + 1
A(f"""
s_mov_b32 s{sT0}, {f2u(LOG2E)}
v_lshlrev_b32 v{a0}, 16, v{a0}
v_lshlrev_b32 v{a1}, 16, v{a1}
v_lshlrev_b32 v{a2}, 16, v{a2}
v_mul_f32 v{a2}, s{sT0}, v{a2}
v_exp_f32 v{a2}, v{a2}
s_nop 0
v_cvt_pk_bf16_f32 v{a2}, v{a2}, v{a2}
v_and_b32 v{a2}, 0xffff0000, v{a2}
v_mul_f32 v{a3}, v{a2}, v{a0}
v_mul_f32 v{a4}, v{a2}, v{a1}
v_mul_f32 v{a3}, s{sT0}, v{a3}
v_exp_f32 v{a3}, v{a3}
v_mul_f32 v{a4}, 0.15915494, v{a4}
v_fract_f32 v{a4}, v{a4}
v_cos_f32 v{vLR}, v{a4}
v_sin_f32 v{vLI}, v{a4}
s_nop 0
v_mul_f32 v{vLR}, v{a3}, v{vLR}
v_mul_f32 v{vLI}, v{a3}, v{vLI}
v_mul_f32 v{a2}, v{a0}, v{a0}
v_fmac_f32 v{a2}, v{a1}, v{a1}
v_rcp_f32 v{a2}, v{a2}
v_add_f32 v{a3}, -1.0, v{vLR}
v_mul_f32 v{a4}, v{a3}, v{a0}
v_fmac_f32 v{a4}, v{vLI}, v{a1}
v_mul_f32 v{a5}, v{vLI}, v{a0}
v_fma_f32 v{a5}, -v{a3}, v{a1}, v{a5}
v_add_f32 v{a2}, v{a2}, v{a2}
v_mul_f32 v{vCF}, v{a4}, v{a2}
v_mul_f32 v{vCF+1}, v{a5}, v{a2}
""")
def csq(d, s_):
    A(f"v_mul_f32 v{a0}, v{s_+1}, v{s_+1}")
    A(f"v_mul_f32 v{a1}, v{s_}, v{s_+1}")
    A(f"v_fma_f32 v{d}, v{s_}, v{s_}, -v{a0}")
    A(f"v_add_f32 v{d+1}, v{a1}, v{a1}")
csq(vL8, vL1); csq(vL8, vL8); csq(vL8, vL8)
csq(vL16, vL8)
csq(vL64, vL16); csq(vL64, vL64)
csq(vL512, vL64); csq(vL512, vL512); csq(vL512, vL512)
vD = PRM + 3
A(f"""
v_and_b32 v20, 1, v{vL31}
v_lshlrev_b32 v20, 4, v20
v_lshlrev_b32 v{vD}, v20, v{vD}
v_bfe_u32 v20, v{vL31}, 3, 1
v_cmp_eq_u32 vcc, v20, v{vH}
v_bfe_u32 v21, v{vL31}, 1, 2
v_lshrrev_b32 v22, 4, v{vL31}
v_cndmask_b32 v{vD}, 0, v{vD}, vcc
v_lshl_add_u32 v21, v22, 2, v21
""")
for i in range(8):
    A(f"v_cmp_eq_u32 vcc, {i}, v21")
    A("s_nop 1")
    A(f"v_cndmask_b32 v{DG+i}, 0, v{vD}, vcc")
A(f"""
v_and_b32 v20, 15, v{vL31}
v_mul_u32_u24 v20, 1040, v20
v_lshl_add_u32 v20, v{vH}, 4, v20
v_lshrrev_b32 v21, 4, v{vL31}
v_lshl_add_u32 v20, v21, 8, v20
s_lshl_b32 s{sT0}, s{sTW}, 9
v_add_u32 v{vAa[0]}, s{sT0}, v20
v_add_u32 v{vAa[1]}, {SLOT[1]}, v{vAa[0]}
s_lshl_b32 s{sT0}, s{sCW}, 9
s_add_u32 s{sT0}, s{sT0}, {BRE_O}
v_add_u32 v{vBa[0]}, s{sT0}, v20
v_add_u32 v{vBa[1]}, {SLOT[1]}, v{vBa[0]}
v_bfe_u32 v20, v{vL31}, 2, 1
v_lshlrev_b32 v20, 3, v20
v_bfe_u32 v21, v{vL31}, 4, 1
v_lshl_add_u32 v20, v21, 2, v20
v_and_b32 v21, 3, v{vL31}
v_add_u32 v20, v20, v21
v_mul_u32_u24 v20, 1040, v20
v_bfe_u32 v21, v{vL31}, 3, 1
v_lshl_add_u32 v20, v21, 8, v20
v_lshl_add_u32 v20, v{vH}, 4, v20
s_lshl_b32 s{sT0}, s{sTW}, 9
s_and_b32 s{sT1}, s{sG}, 1
s_lshl_b32 s{sT1}, s{sT1}, 7
s_add_u32 s{sT0}, s{sT0}, s{sT1}
s_lshl_b32 s{sT1}, s{sCW}, 6
s_add_u32 s{sT0}, s{sT0}, s{sT1}
s_lshr_b32 s{sLOOP}, s{sG}, 1
s_sub_u32 s{sLOOP}, s{sLOOP}, s{sROT}
s_and_b32 s{sLOOP}, s{sLOOP}, 3
s_mul_i32 s{sT1}, s{sLOOP}, {SLOT[1]}
s_cmp_eq_u32 s{sLOOP}, 3
s_cselect_b32 s{sT1}, 0, s{sT1}
s_add_u32 s{sT0}, s{sT0}, s{sT1}
v_add_u32 v{vDa}, s{sT0}, v20
s_mul_i32 s{sT7}, s{sSW}, {4*1040}
v_add_u32 v{vAa[2]}, {SLOT[2]}, v{vAa[0]}
v_add_u32 v{vBa[2]}, {SLOT[2]}, v{vBa[0]}
""")
cnt_wait(vCNT, vTMP, 6, 0, sleep=1)
cnt_wait(vCNT, vTMP, 4, 12, sleep=1)
if OPT["stgl"] > 2: cnt_wait(vCNT, vTMP, 4*OPT["stgl"], 4, sleep=2)
def pfx(items):
    if OPT["pfb"] != 2: return
    nsh = 8 if OPT["map84"] else 4
    for R, sw, shift in items:
        lbl = A.newlabel("pfx")
        A(f"""
        s_cmp_lg_u32 s{sSW}, {sw}
        s_cbranch_scc1 {lbl}
        s_and_b32 s{sT0}, s{sC}, {nsh - 1}
        s_lshl_b32 s{sT0}, s{sT0}, {shift + 6 + (0 if nsh == 8 else 1)}
        v_lshlrev_b32 v{vPF}, {shift}, v{vLANE}
        buffer_load_dword v{vDUM}, v{vPF}, {srd(R)}, s{sT0} offen
        """)
        if nsh == 4:
            A(f"s_add_u32 s{sT0}, s{sT0}, {64 << shift}")
            A(f"buffer_load_dword v{vDUM}, v{vPF}, {srd(R)}, s{sT0} offen")
        A.label(lbl)
def pf16(pairs, lbl):
    if OPT["pfb"] != 1: return
    A(f"""
    s_cmp_lg_u32 s{sSW}, 1
    s_cbranch_scc1 {lbl}
    s_mov_b64 exec, 0xffff
    """)
    for p in pairs: A(f"global_load_dword v{vDUM}, v{vPF}, s[{p}:{p+1}]")
    A(f"s_mov_b64 exec, -1\n{lbl}:")
pf16([P_LRE, P_LIM, P_WV], "L_nopfb")
cnt_wait(vCNT, vTMP, 12, 4, sleep=0)
if OPT["noS"]: A("s_branch L_fin")
prio(OPT["gprio"])
sstamp(1, 1)
NPRE = OPT["npre"]
for n in range(NPRE): dma_piece(n)
ISS = [NPRE]
A(f"s_waitcnt vmcnt({NPRE - 12})")
sstamp(2, 1)
prio(OPT["vprio"])
sync_add(False); sync_wait(0)
sstamp(3, 1)
G1B = [FRS, FRS + 12, 64]
def g1_stage(s, extra=None, nwr=None, early_add=None):
    slot = s % 3
    prio(3 if (OPT["g1p"] >> s) & 1 else OPT["gprio"])
    sk = A.newlabel("nod")
    A(f"""
    s_cmp_lg_u32 s{sLOOP}, {s}
    s_cbranch_scc1 {sk}
    ds_read_b128 v[64:67], v{vDa}
    ds_read_b128 v[68:71], v{vDa} offset:32
    s_waitcnt lgkmcnt(0)
    v_mfma_f32_32x32x16_bf16 v[{Y0}:{Y0+15}], v[64:67], v[{DG}:{DG+3}], 0
    v_mfma_f32_32x32x16_bf16 v[{Y0}:{Y0+15}], v[68:71], v[{DG+4}:{DG+7}], v[{Y0}:{Y0+15}]
    {sk}:
    """)
    def rd(k):
        f = G1B[k % 3]
        A(f"ds_read_b128 v[{f}:{f+3}], v{vAa[slot]} offset:{k*32}")
        A(f"ds_read_b128 v[{f+4}:{f+7}], v{vBa[slot]} offset:{k*32}")
        A(f"ds_read_b128 v[{f+8}:{f+11}], v{vBa[slot]} offset:{k*32 + (BIM_O-BRE_O)}")
    rd(0); rd(1)
    for k in range(8):
        f = G1B[k % 3]
        if k + 2 < 8: rd(k + 2)
        nw = nwr(k - 1) if (nwr and k > 0) else 0
        A(f"s_waitcnt lgkmcnt({min(15, 3*(min(8, k + 3) - k - 1) + nw)})")
        if k == 7 and early_add is not None:
            if early_add: A(early_add)
            sync_add(False)
        cr = "0" if (s == 0 and k == 0) else f"v[{UR}:{UR+15}]"
        ci = "0" if (s == 0 and k == 0) else f"v[{UI}:{UI+15}]"
        A(f"v_mfma_f32_32x32x16_bf16 v[{UR}:{UR+15}], v[{f}:{f+3}], v[{f+4}:{f+7}], {cr}")
        if extra: extra(k)
        A(f"v_mfma_f32_32x32x16_bf16 v[{UI}:{UI+15}], v[{f}:{f+3}], v[{f+8}:{f+11}], {ci}")
def issue_upto(lim, k, last):
    cnt = -(-(lim - ISS[0]) // max(1, last - k)) if k < last else 0
    for n in range(ISS[0], min(lim, ISS[0] + cnt)): dma_piece(n)
    ISS[0] = min(lim, ISS[0] + cnt)
L0 = OPT["l0"]
g1_stage(0, lambda k: issue_upto(L0, k, 7), early_add=f"s_waitcnt vmcnt({L0 - 24})")
assert ISS[0] == L0
sstamp(4, 1)
prio(OPT["vprio"])
pfx([(R_WO, 1, 10)])
sync_wait(0)
g1_stage(1, lambda k: issue_upto(48, k, 7), early_add="s_waitcnt vmcnt(12)")
assert ISS[0] == 48
sstamp(5, 1)
prio(OPT["vprio"])
CLR = 64
A(f"""
v_mov_b32 v{CLR}, -1
v_mov_b32 v{CLR+1}, -1
v_mov_b32 v{CLR+2}, -1
v_mov_b32 v{CLR+3}, -1
s_lshl_b32 s{sT0}, s{sG}, 12
s_add_u32 s{sT0}, s{sT0}, s{sOB}
s_lshl_b32 s{sT1}, s{sCW}, 11
s_add_u32 s{sT0}, s{sT0}, s{sT1}
buffer_store_dwordx4 v[{CLR}:{CLR+3}], v{vL16x}, {srd(R_WS)}, s{sT0} offen sc1
buffer_store_dwordx4 v[{CLR}:{CLR+3}], v{vL16x}, {srd(R_WS)}, s{sT0} offen offset:1024 sc1
v_mov_b32 v{CLR+4}, 0
v_mov_b32 v{CLR+5}, s{sTAG}
v_mov_b32 v{CLR+6}, 0
v_mov_b32 v{CLR+7}, s{sTAG}
s_lshl_b32 s{sT1}, s{sID}, 7
s_add_u32 s{sT1}, s{sT1}, {AGG_DUMMY}
s_mov_b64 exec, 1
buffer_store_dwordx4 v[{CLR+4}:{CLR+7}], v{CLR+4}, {srd(R_AGG)}, s{sT1} offen sc1
s_mov_b64 exec, -1
""")
sync_wait(0)
g1_stage(2, early_add="s_waitcnt vmcnt(0)")
sstamp(6, 1)
prio(OPT["vprio"])
pf16([P_LDT, P_DSK], "L_nopfc")
pfx([(R_CRE, 2, 7), (R_CIM, 3, 7)])
wq_voffset(5, 6, 8, 15)
A(f"""
s_mul_i32 s{sT2}, s{sSW}, {16*1040}
s_lshl_b32 s{sT3}, s{sSW}, 14
s_lshl_b32 s{sT6}, s{sSW}, 17
""")
sync_wait(0)
def wo_piece(i):
    A(f"""
    s_add_u32 m0, s{sT3}, {WO + i*1024}
    s_add_u32 s{sT1}, s{sT6}, {i*8192}
    buffer_load_dwordx4 v5, {srd(R_WO)}, s{sT1} offen lds
    """)
    capw()
def c_piece(R, base, i):
    A(f"s_add_u32 m0, s{sT2}, {base + i*1040 - (i & 3)*1024}")
    if i & 3 == 0: A(f"s_add_u32 s{sT4}, s{sT3}, {i*1024}")
    else: A("s_nop 0")
    A(f"buffer_load_dwordx4 v{vL16x}, {srd(R)}, s{sT4} offen offset:{(i & 3)*1024} lds")
    capw()
def ex3(k):
    wo_piece(2*k); wo_piece(2*k + 1)
g1_stage(3, ex3)
sstamp(7, 1); sstamp(1, 2)
prio(OPT["vprio"])
stamp(3)
A(f"""
s_lshl_b32 s{sT0}, s{sTW}, 10
s_lshl_b32 s{sT1}, s{sCW}, 8
s_add_u32 s{sT1}, s{sT1}, {EB}
s_add_u32 s{sT0}, s{sT0}, s{sT1}
v_lshlrev_b32 v10, 3, v{vL31}
v_add_u32 v11, s{sT1}, v10
v_lshl_add_u32 v10, v{vH}, 9, v10
v_add_u32 v10, s{sT0}, v10
""")
A.nop(4)
if OPT["dbg"]:
    A(f"""
    s_lshl_b32 s{sT0}, s{sID}, 2
    s_add_u32 s{sT0}, s{sT0}, s{sSW}
    s_lshl_b32 s{sT0}, s{sT0}, 13
    s_add_u32 s{sT0}, s{sT0}, {DBG}
    v_lshlrev_b32 v12, 2, v{vLANE}
    """)
    for i in range(32):
        A(f"buffer_store_dword v{UR+i}, v12, {srd(R_WS)}, s{sT0} offen")
        A(f"s_add_u32 s{sT0}, s{sT0}, 256")
    A("s_waitcnt vmcnt(0)")
def cstep4(dr, di, pr, pi, l, ur, ui, tr, ti):
    A(f"v_fma_f32 v{tr}, v{l}, v{pr}, v{ur}")
    A(f"v_fma_f32 v{ti}, v{l}, v{pi}, v{ui}")
    A(f"v_fma_f32 v{dr}, -v{l+1}, v{pi}, v{tr}")
    A(f"v_fma_f32 v{di}, v{l+1}, v{pr}, v{ti}")
def p2(r): return f"v[{r}:{r+1}]"
def pkstep(dr, di, pr, pi, l, ur, ui, tr, ti):
    A(f"v_pk_fma_f32 {p2(tr)}, {p2(l)}, {p2(pr)}, {p2(ur)} op_sel_hi:[0,1,1]")
    A(f"v_pk_fma_f32 {p2(ti)}, {p2(l)}, {p2(pi)}, {p2(ui)} op_sel_hi:[0,1,1]")
    A(f"v_pk_fma_f32 {p2(dr)}, {p2(l)}, {p2(pi)}, {p2(tr)} op_sel:[1,0,0] neg_lo:[1,0,0] neg_hi:[1,0,0]")
    A(f"v_pk_fma_f32 {p2(di)}, {p2(l)}, {p2(pr)}, {p2(ti)} op_sel:[1,0,0]")
pa = [(FRS, FRS+2), (6, 8)]
p = (UR, UI)
for j in range(1, 8):
    d = pa[j & 1]
    pkstep(d[0], d[1], p[0], p[1], vL1, UR+2*j, UI+2*j, FRS+4, FRS+6)
    p = d
EA = (6, 8)
cstep4(FRS, FRS+1, 6, 8, vL8, 7, 9, FRS+4, FRS+5)
A(f"ds_write_b64 v10, v[{FRS}:{FRS+1}]")
A("s_waitcnt vmcnt(0)")
sync_add()
LB = 64
A(f"""
s_lshl_b32 s{sT0}, s{sTW}, 4
s_sub_u32 s{sT0}, s{sC}, s{sT0}
s_sub_u32 s{sT0}, s{sT0}, 1
s_lshl_b32 s{sT0}, s{sT0}, 13
v_lshlrev_b32 v5, 16, v{vH}
v_sub_u32 v5, s{sT0}, v5
v_lshl_add_u32 v5, v{vP2}, 3, v5
s_lshl_b32 s{sT1}, s{sID}, 7
s_add_u32 s{sT1}, s{sT1}, {AGG_DUMMY}
""")
for k in range(8):
    A(f"v_min_u32 v{96+k}, s{sT1}, v5")
    if k < 7: A(f"v_add_u32 v5, {(-8192) & 0xffffffff}, v5")
sync_wait(0)
sstamp(2, 2)
E = FRS
for s in range(4):
    A(f"ds_read_b64 v[{E+2*s}:{E+2*s+1}], v11 offset:{s*512}")
A("s_waitcnt lgkmcnt(0)")
A1, A2, G3 = (104, 105), (106, 107), 108
cstep4(A1[0], A1[1], E, E+1, vL16, E+2, E+3, FRS+8, FRS+9)
cstep4(A2[0], A2[1], A1[0], A1[1], vL16, E+4, E+5, FRS+8, FRS+9)
vPR, vPI, vW = 12, 13, 14
tw1 = A.newlabel("tw1"); twd = A.newlabel("twd")
A(f"""
v_cmp_eq_u32 vcc, 1, v{vH}
s_cmp_lg_u32 s{sTW}, 0
s_cbranch_scc1 {tw1}
""")
cstep4(G3, G3+2, A2[0], A2[1], vL16, E+6, E+7, FRS+8, FRS+9)
A(f"""
v_mov_b32 v{G3+1}, s{sTAG}
v_mov_b32 v{G3+3}, s{sTAG}
v_lshlrev_b32 v7, 3, v{vP2}
s_lshl_b32 s{sT0}, s{sC}, 13
s_mov_b32 exec_hi, 0
buffer_store_dwordx4 v[{G3}:{G3+3}], v7, {srd(R_AGG)}, s{sT0} offen sc1
s_mov_b32 exec_hi, -1
v_cndmask_b32 v{vPR}, 0, v{E}, vcc
v_cndmask_b32 v{vPI}, 0, v{E+1}, vcc
v_cndmask_b32 v{vW}, 1.0, v{vL16}, vcc
v_cndmask_b32 v{vW+1}, 0, v{vL16+1}, vcc
s_branch {twd}
{tw1}:
v_cndmask_b32 v{vPR}, v{A1[0]}, v{A2[0]}, vcc
v_cndmask_b32 v{vPI}, v{A1[1]}, v{A2[1]}, vcc
v_mul_f32 v{FRS+8}, v{vL16+1}, v{vL16+1}
v_mul_f32 v{FRS+9}, v{vL16}, v{vL16+1}
v_fma_f32 v{FRS+8}, v{vL16}, v{vL16}, -v{FRS+8}
v_add_f32 v{FRS+9}, v{FRS+9}, v{FRS+9}
v_mul_f32 v{FRS+10}, v{FRS+8}, v{vL16}
v_mul_f32 v{FRS+11}, v{FRS+8}, v{vL16+1}
v_fma_f32 v{FRS+10}, -v{FRS+9}, v{vL16+1}, v{FRS+10}
v_fma_f32 v{FRS+11}, v{FRS+9}, v{vL16}, v{FRS+11}
v_cndmask_b32 v{vW}, v{FRS+8}, v{FRS+10}, vcc
v_cndmask_b32 v{vW+1}, v{FRS+9}, v{FRS+11}, vcc
{twd}:
""")
A(f"s_mov_b32 s{sSPIN}, 0")
A(f"""
s_lshl_b32 s{sT0}, s{sSW}, 12
s_add_u32 s{sT0}, s{sT0}, {TB}
v_lshlrev_b32 v9, 6, v{vL31}
v_lshl_add_u32 v9, v{vH}, 5, v9
v_add_u32 v9, s{sT0}, v9
v_bfe_u32 v108, v{vLANE}, 2, 2
v_lshl_add_u32 v108, v{vH}, 3, v108
v_lshlrev_b32 v108, 6, v108
v_bfe_u32 v109, v{vLANE}, 4, 1
v_lshl_add_u32 v108, v109, 5, v108
v_and_b32 v109, 3, v{vLANE}
v_lshl_add_u32 v108, v109, 3, v108
v_add_u32 v108, s{sT0}, v108
""")
A(f"""
v_bfe_u32 v5, v{vLANE}, 2, 2
v_lshl_add_u32 v5, v{vH}, 2, v5
v_bfe_u32 v7, v{vLANE}, 4, 1
v_and_b32 v110, 3, v{vLANE}
v_lshlrev_b32 v110, 3, v110
v_lshl_add_u32 v110, v7, 5, v110
v_bfe_u32 v7, v{vLANE}, 3, 1
v_lshl_add_u32 v110, v7, 6, v110
v_lshl_add_u32 v110, v5, 7, v110
s_lshl_b32 s{sT0}, s{sCW}, 15
s_add_u32 s{sT0}, s{sT0}, {WO}
s_lshl_b32 s{sT1}, s{sCW}, 6
v_xor_b32 v110, s{sT1}, v110
v_xor_b32 v111, 64, v110
v_add_u32 v110, s{sT0}, v110
v_add_u32 v111, s{sT0}, v111
""")
for j in range(16):
    for nt in range(2):
        f = 8*j + 4*nt
        A(f"ds_read_b64_tr_b16 a[{f}:{f+1}], v{110 + nt} offset:{j*2048}")
        A(f"ds_read_b64_tr_b16 a[{f+2}:{f+3}], v{110 + nt} offset:{j*2048 + 1024}")
    if j % 3 == 2: A("s_waitcnt lgkmcnt(3)")
prio(OPT["gprio"])
for i in range(OPT["cim1"]): c_piece(R_CIM, CIM, i)
prio(OPT["vprio"])
sstamp(3, 2)
A.label("L_lb")
for k in range(8):
    A(f"buffer_load_dwordx4 v[{LB+4*k}:{LB+4*k+3}], v{96+k}, {srd(R_AGG)}, 0 offen sc1")
A(f"""
s_add_u32 s{sSPIN}, s{sSPIN}, 1
s_waitcnt vmcnt(0)
v_min_u32 v5, v{LB+1}, v{LB+3}
v_max3_u32 v7, s{sTAG}, v{LB+1}, v{LB+3}
""")
for k in range(1, 8):
    A(f"v_min3_u32 v5, v5, v{LB+4*k+1}, v{LB+4*k+3}")
    A(f"v_max3_u32 v7, v7, v{LB+4*k+1}, v{LB+4*k+3}")
A(f"""
v_min_u32 v5, s{sTAG}, v5
v_cmp_ne_u32 vcc, v5, v7
s_cbranch_vccz L_lbd
s_sleep 8
s_cmp_lt_u32 s{sSPIN}, {SPIN_MAX}
s_cbranch_scc1 L_lb
L_lbd:
""")
stamp(4); sstamp(4, 2)
p = (LB+28, LB+30)
pb = [(96, 97), (98, 99)]
for k in range(6, -1, -1):
    d = pb[k & 1]
    cstep4(d[0], d[1], p[0], p[1], vL64, LB+4*k, LB+4*k+2, 100, 101)
    p = d
A(f"ds_write_b64 v10, v[96:97] offset:{HP-EB}")
sync_add(); sync_wait(0)
sstamp(5, 2)
for s in range(4):
    A(f"ds_read_b64 v[{E+2*s}:{E+2*s+1}], v11 offset:{HP - EB + s*512}")
A("s_waitcnt lgkmcnt(0)")
p = (E+6, E+7)
for s in range(2, -1, -1):
    d = pb[s & 1]
    cstep4(d[0], d[1], p[0], p[1], vL512, E+2*s, E+2*s+1, 100, 101)
    p = d
CRp, CIp = 104, 106
cstep4(CRp, CIp, p[0], p[1], vW, vPR, vPI, 100, 101)
cstep4(CRp+1, CIp+1, CRp, CIp, vL8, EA[0], EA[1], 100, 101)
HR, HI = FRS, FRS+8
p = (CRp, CIp)
for j in range(8):
    pkstep(UR+2*j, UI+2*j, p[0], p[1], vL1, UR+2*j, UI+2*j, 100, 102)
    p = (UR+2*j, UI+2*j)
    if OPT['cpos'] == 0: c_piece(R_CRE, CRE, 2*j)
    A(f"v_pk_mul_f32 {p2(96)}, {p2(vCF)}, {p2(UI+2*j)} op_sel:[1,0]")
    A(f"v_pk_mul_f32 {p2(98)}, {p2(vCF)}, {p2(UR+2*j)} op_sel:[1,0]")
    A(f"v_pk_fma_f32 {p2(96)}, {p2(vCF)}, {p2(UR+2*j)}, {p2(96)} op_sel_hi:[0,1,1] neg_lo:[0,0,1] neg_hi:[0,0,1]")
    A(f"v_pk_fma_f32 {p2(98)}, {p2(vCF)}, {p2(UI+2*j)}, {p2(98)} op_sel_hi:[0,1,1] neg_lo:[1,0,1] neg_hi:[1,0,1]")
    if OPT['cpos'] == 0: c_piece(R_CRE, CRE, 2*j + 1)
    A(f"v_cvt_pk_bf16_f32 v{HR+j}, v96, v97")
    A(f"v_cvt_pk_bf16_f32 v{HI+j}, v98, v99")
    if j == 3:
        A(f"ds_write_b128 v9, v[{HR}:{HR+3}]")
        A(f"ds_write_b128 v9, v[{HI}:{HI+3}] offset:2048")
A(f"""
ds_write_b128 v9, v[{HR+4}:{HR+7}] offset:16
ds_write_b128 v9, v[{HI+4}:{HI+7}] offset:2064
s_lshl_b32 s{sKOFF}, s{sC}, 1
s_add_u32 s{sKOFF}, s{sKOFF}, s{sTW}
s_lshl_b32 s{sKOFF}, s{sKOFF}, 16
s_add_u32 s{sKOFF}, s{sKOFF}, {HB}
s_lshl_b32 s{sT1}, s{sG}, 12
s_lshl_b32 s{sT7}, s{sCW}, 11
s_add_u32 s{sT1}, s{sT1}, s{sT7}
s_add_u32 s{sT0}, s{sKOFF}, s{sT1}
s_add_u32 s{sT1}, s{sT0}, 32768
s_waitcnt lgkmcnt(0)
""")
for part in range(2):
    for hf in range(2):
        f = 64 + 8*part + 4*hf
        A(f"ds_read_b64_tr_b16 v[{f}:{f+1}], v108 offset:{part*2048 + hf*1024}")
        A(f"ds_read_b64_tr_b16 v[{f+2}:{f+3}], v108 offset:{part*2048 + hf*1024 + 256}")
for n in range(4):
    A(f"s_waitcnt lgkmcnt({6 - 2*n})")
    A(f"buffer_store_dwordx4 v[{64+4*n}:{67+4*n}], v{vL16x}, {srd(R_WS)}, s{sT0 if n < 2 else sT1} offen offset:{(n&1)*1024} sc1")
A(f"""
s_lshl_b32 s{sT7}, s{sC}, 12
s_add_u32 s{sT7}, s{sT7}, {FL3}
v_and_b32 v5, 15, v{vLANE}
v_lshlrev_b32 v5, 8, v5
s_lshl_b32 s{sT0}, s{sTW}, 7
s_add_u32 s{sT0}, s{sT0}, s{sT7}
v_add_u32 v5, s{sT0}, v5
v_mov_b32 v12, s{sTAG}
v_mov_b32 v13, 0
s_lshl_b32 s{sT1}, s{sG}, 2
s_add_u32 s{sT1}, s{sT1}, s{sSW}
s_lshl_b32 s{sT1}, s{sT1}, 7
s_add_u32 s{sT1}, s{sT1}, s{sT7}
""")
sstamp(6, 2)
A("s_waitcnt vmcnt(0)")
sstamp(7, 2); sstamp(1, 3)
A(f"""
s_mov_b64 exec, 1
buffer_store_dword v12, v13, {srd(R_WS)}, s{sT1} offen sc1
ds_add_u32 v{vCNT}, v{vONE} offset:28
s_mov_b64 exec, -1
""")
A(f"""
v_bfe_u32 v6, v{vLANE}, 4, 1
v_and_b32 v7, 15, v{vLANE}
v_lshlrev_b32 v7, 4, v7
v_lshl_add_u32 v7, v6, 9, v7
v_lshl_add_u32 v7, v{vH}, 15, v7
s_lshr_b32 s{sT5}, s{sT2}, 1
s_lshr_b32 s{sT6}, s{sT3}, 1
""")
prio(OPT["gprio"])
for half, base in ((0, CREA), (1, CREB)):
    for i in range(8):
        A(f"s_add_u32 m0, s{sT5}, {base + i*1040 - (i & 3)*1024}")
        if i & 3 == 0: A(f"s_add_u32 s{sT4}, s{sT6}, {i*1024 + half*256}")
        else: A("s_nop 0")
        A(f"buffer_load_dwordx4 v7, {srd(R_CRE)}, s{sT4} offen offset:{(i & 3)*1024} lds")
        capw()
prio(OPT["vprio"])
stamp(5, not HST)
A(f"""
v_mul_u32_u24 v10, 1040, v{vL31}
v_lshl_add_u32 v10, v{vH}, 4, v10
s_mul_i32 s{sT0}, s{sCW}, {512 + 32*1040}
s_mul_i32 s{sT1}, s{sCW}, {(512 - 32*1040) & 0xffffffff}
s_add_u32 s{sT1}, s{sT1}, {32*1040}
s_mul_i32 s{sT5}, s{sCW}, 768
s_mul_i32 s{sT6}, s{sCW}, {(-256) & 0xffffffff}
s_add_u32 s{sT5}, s{sT5}, {CREB}
s_add_u32 s{sT6}, s{sT6}, {CREB + 512}
v_add_u32 v14, s{sT5}, v10
v_add_u32 v15, s{sT6}, v10
v_add_u32 v11, s{sT1}, v10
v_add_u32 v10, s{sT0}, v10
s_lshl_b32 s{sT1}, s{sCW}, 14
s_add_u32 s{sKOFF}, s{sKOFF}, s{sT1}
s_add_u32 s{sOB}, s{sOB}, s{sT1}
s_xor_b32 s{sT0}, s{sSW}, 2
s_lshl_b32 s{sT0}, s{sT0}, 12
v_add_u32 v114, s{sT0}, v{vL16x}
s_lshl_b32 s{sT0}, s{sSW}, 12
v_add_u32 v115, s{sT0}, v{vL16x}
v_add_u32 v119, {TBY}, v114
v_add_u32 v120, {TBY}, v115
s_lshl_b32 s{sT0}, s{sTW}, 17
s_lshl_b32 s{sT1}, s{sG}, 8
s_add_u32 s{sT0}, s{sT0}, s{sT1}
s_lshl_b32 s{sT1}, s{sCW}, 7
s_add_u32 s{sT0}, s{sT0}, s{sT1}
v_lshlrev_b32 v113, 2, v{vL31}
v_add_u32 v113, s{sT0}, v113
v_lshl_add_u32 v118, v{vH}, 14, v113
v_add_u32 v118, 2048, v118
v_lshl_add_u32 v113, v{vH}, 13, v113
""")
sstamp(2, 3)
poll_flags(5, 12, 1, sleep=OPT['sl2'])
if OPT["cpos"] == 1: sync_add(False)
sstamp(3, 3)
LA = 7
HRING = 16
def hreg(j): return HRING + 4*(j % 8)
def h_ld(j):
    if j == 16: A(f"s_add_u32 s{sKOFF}, s{sKOFF}, {32768 - 3*4096}")
    elif j % 4 == 0 and j > 0: A(f"s_add_u32 s{sKOFF}, s{sKOFF}, 4096")
    A(f"buffer_load_dwordx4 v[{hreg(j)}:{hreg(j)+3}], v{vL16x}, {srd(R_WS)}, s{sKOFF} offen offset:{(j%4)*1024} sc1")
for j in range(LA): h_ld(j)
def g2_rd(j):
    f = FRS + 8*(j % 3)
    off = (CREA - CREB + j*32) if j < 8 else ((j - 8)*32 if j < 16 else (j - 16)*32)
    A(f"ds_read_b128 v[{f}:{f+3}], v{14 if j < 16 else 10} offset:{off}")
    A(f"ds_read_b128 v[{f+4}:{f+7}], v{15 if j < 16 else 11} offset:{off}")
def g2_mfma(j):
    f = FRS + 8*(j % 3)
    c = "0" if j == 0 else f"v[{Y1}:{Y1+15}]"
    A(f"v_mfma_f32_32x32x16_bf16 v[{Y1}:{Y1+15}], v[{hreg(j)}:{hreg(j)+3}], v[{f+4}:{f+7}], {c}")
    A(f"v_mfma_f32_32x32x16_bf16 v[{Y0}:{Y0+15}], v[{hreg(j)}:{hreg(j)+3}], v[{f}:{f+3}], v[{Y0}:{Y0+15}]")
sync_wait(0)
prio(3 if OPT["g2p"] & 1 else OPT["gprio"])
g2_rd(0); g2_rd(1)
VQ = list(range(LA))
P2 = 32 - OPT["p2n"]
assert 8 <= P2 <= 14
for j in range(32):
    if j == P2:
        prio(OPT["vprio"])
        A("s_waitcnt vmcnt(0)")
        sync_add(False); sync_wait()
        cnt_wait(vCNT, vTMP, 8, 12, sleep=OPT['sl1'])
        sstamp(6, 3); sstamp(1, 4)
        prio(3 if OPT["g2p"] & 2 else OPT["gprio"])
    if j + LA < 32:
        h_ld(j + LA); VQ.append(j + LA)
    if j < 8:
        for i in range(OPT["cim1"], 16)[2*j:2*j + 2]:
            if i == OPT["cim1"] and i & 3: A(f"s_add_u32 s{sT4}, s{sT3}, {(i & ~3)*1024}")
            c_piece(R_CIM, CIM, i); VQ.append(-1)
    if j + 2 < 32: g2_rd(j + 2)
    issued = min(32, j + 3)
    A(f"s_waitcnt vmcnt({len(VQ) - 1 - VQ.index(j)}) lgkmcnt({2*(issued - j - 1)})")
    if j == 0: sstamp(4, 3)
    if j == 7:
        cnt_add(vCNT, vONE, 8)
        stamp(6, not HST); sstamp(5, 3)
    g2_mfma(j)
prio(OPT["vprio"])
stamp(7); sstamp(7, 3); sstamp(2, 4)
cnt_wait(vCNT, vTMP, 12, 12)
sstamp(3, 4)
def oreg(j): return (16 + 4*j) if j < 8 else (80 + 4*(j - 8))
def o_loads(g4):
    A(f"s_add_u32 s{sT1}, s{sOB}, {g4*4096}")
    for j in range(4*g4, 4*g4 + 4):
        A(f"buffer_load_dwordx4 v[{oreg(j)}:{oreg(j)+3}], v{vL16x}, {srd(R_WS)}, s{sT1} offen offset:{(j%4)*1024} sc1")
if OPT["ofirst"]: o_loads(0)
else: A.nop(4)
for i in range(4):
    A(f"ds_write_b128 v119, v[{Y1+4*i}:{Y1+4*i+3}] offset:{i*1024}")
if OPT["ofirst"]:
    for g4 in range(1, 4): o_loads(g4)
sync_add(); sync_wait(0)
for i in range(4):
    A(f"ds_read_b128 v[{Y1+4*i}:{Y1+4*i+3}], v120 offset:{i*1024}")
for i in range(16):
    if i % 4 == 0: A(f"s_waitcnt lgkmcnt({3 - i//4})")
    A(f"v_add_f32 v{Y0+i}, v{Y0+i}, v{Y1+i}")
    A(f"s_mov_b32 s{sT1}, {(16*(i>>3) + 4*((i>>2)&1) + ((i>>1)&1) + 8*(i&1))*4096}")
    A(f"buffer_store_dword v{Y0+i}, v113, {srd(R_OUT)}, s{sT1} offen{OST}")
if not OPT["ofirst"]:
    if OPT["oack"] == 2: cnt_wait(vCNT, vTMP, 16, 12)
    for g4 in range(4): o_loads(g4)
A(f"s_mov_b32 s{sSPIN}, 0")
for g4 in range(4):
    lp = A.newlabel("op"); dn = A.newlabel("opd"); ck = A.newlabel("opc")
    j0 = 4*g4
    A(f"s_waitcnt vmcnt({(16 if OPT['ofirst'] else 0) + 4*(3 - g4)})")
    A.label(ck)
    A(f"v_max_u32 v13, v{oreg(j0)+1}, v{oreg(j0)+3}")
    for j in range(j0 + 1, j0 + 4):
        A(f"v_max3_u32 v13, v13, v{oreg(j)+1}, v{oreg(j)+3}")
    A(f"""
    v_cmp_eq_u32 vcc, -1, v13
    s_cbranch_vccz {dn}
    s_add_u32 s{sSPIN}, s{sSPIN}, 1
    s_cmp_gt_u32 s{sSPIN}, 20000
    s_cbranch_scc1 {dn}
    """)
    o_loads(g4)
    A(f"""
    s_waitcnt vmcnt(0)
    s_branch {ck}
    {dn}:
    """)
    if g4 in (0, 3): sstamp(4 + g4 // 3, 4)
    for j in range(j0, j0 + 4):
        c0 = "0" if j == 0 else f"v[{Y0}:{Y0+15}]"
        c1 = "0" if j == 0 else f"v[{Y1}:{Y1+15}]"
        A(f"v_mfma_f32_32x32x16_bf16 v[{Y1}:{Y1+15}], v[{oreg(j)}:{oreg(j)+3}], a[{8*j+4}:{8*j+7}], {c1}")
        A(f"v_mfma_f32_32x32x16_bf16 v[{Y0}:{Y0+15}], v[{oreg(j)}:{oreg(j)+3}], a[{8*j}:{8*j+3}], {c0}")
if OPT["sst"] == 4: A(f"s_mov_b32 s{sST+14}, s{sSPIN}")
A.nop(11)
for i in range(4):
    A(f"ds_write_b128 v114, v[{Y1+4*i}:{Y1+4*i+3}] offset:{TB2 + i*1024}")
A("s_waitcnt lgkmcnt(0)")
A("s_barrier")
sstamp(6, 4)
for i in range(4):
    A(f"ds_read_b128 v[{Y1+4*i}:{Y1+4*i+3}], v115 offset:{TB2 + i*1024}")
for i in range(16):
    if i % 4 == 0: A(f"s_waitcnt lgkmcnt({3 - i//4})")
    A(f"v_add_f32 v{Y0+i}, v{Y0+i}, v{Y1+i}")
    A(f"s_mov_b32 s{sT1}, {(8*(i>>2) + (i&3))*4096}")
    A(f"buffer_store_dword v{Y0+i}, v118, {srd(R_OUT)}, s{sT1} offen{OSTB}")
A("s_branch L_fin")

A.label("L_hot_end")
A.label("L_slow")
A(f"""
s_cmp_lg_u32 s{sDONE}, 0
s_cbranch_scc1 L_fast
s_mov_b32 s{sDONE}, 1
s_waitcnt lgkmcnt(0)
""")
def a_sync():
    A(f"s_add_u32 s{sATG}, s{sATG}, 4")
    A("s_waitcnt lgkmcnt(0)")
    cnt_add(vCNT, vIDX, 4)
    cnt_wait(vCNT, 16, f"s{sATG}", 4, sleep=2)
for i in range(4): A(f"v_mov_b32 v{vZ+i}, 0")
for ct in range(8): A(f"v_mov_b32 v{vM+ct}, 0xff800000")
A("s_nop 1")
for ct in range(8):
    A(f"v_mfma_f32_32x32x16_bf16 a[{16*ct}:{16*ct+15}], v[{vZ}:{vZ+3}], v[{vZ}:{vZ+3}], 0")
A(f"s_mov_b32 s{sLOOP}, 16")
def adv():
    A(f"s_add_u32 s{sKOFF}, s{sKOFF}, {KVS}"); A(f"s_and_b32 s{sKOFF}, s{sKOFF}, 0xffff")
A.label("L_sl1")
ld_k(0, 0); adv()
A("s_waitcnt vmcnt(0)")
for ct in range(8):
    A(f"v_mfma_f32_32x32x16_bf16 v[{S0}:{S0+15}], v[{KV[0]}:{KV[0]+3}], v[{QF+4*ct}:{QF+4*ct+3}], 0")
    A.nop(12)
    for i in range(8):
        A(f"v_max3_f32 v{vM+ct}, v{S0+2*i}, v{S0+2*i+1}, v{vM+ct}")
A(f"""
s_sub_u32 s{sLOOP}, s{sLOOP}, 1
s_cmp_lg_u32 s{sLOOP}, 0
s_cbranch_scc1 L_sl1
s_lshl_b32 s{sT0}, s{sWAVE}, 11
s_add_u32 s{sT0}, s{sT0}, {CB}
v_lshlrev_b32 v8, 2, v{vLANE}
v_add_u32 v8, s{sT0}, v8
v_lshlrev_b32 v10, 2, v{vL31}
v_add_u32 v10, {CB}, v10
""")
a_sync()
def pair_off(pr):
    A(f"s_add_u32 s{sT0}, s{sWAVE}, {pr + 1}")
    A(f"s_and_b32 s{sT0}, s{sT0}, 3")
    A(f"s_lshl_b32 s{sT0}, s{sT0}, 9")
for pr in range(4):
    pair_off(pr)
    A(f"v_add_u32 v9, s{sT0}, v8")
    A(f"ds_write_b32 v9, v{vM+2*pr}")
    A(f"ds_write_b32 v9, v{vM+2*pr+1} offset:256")
a_sync()
for ct in range(8):
    if ct % 2 == 0:
        pair_off(ct // 2)
        A(f"v_add_u32 v9, s{sT0}, v10")
    for w in range(4):
        A(f"ds_read_b32 v{S0+2*w}, v9 offset:{w*2048 + (ct%2)*256}")
        A(f"ds_read_b32 v{S0+2*w+1}, v9 offset:{w*2048 + (ct%2)*256 + 128}")
    A("s_waitcnt lgkmcnt(0)")
    for w in range(4):
        A(f"v_max3_f32 v{vM+ct}, v{S0+2*w}, v{S0+2*w+1}, v{vM+ct}")
a_sync()
A(f"s_mov_b32 s{sLOOP}, 16")
A.label("L_sl2")
ld_k(0, 0); ld_v(0, 0, 0); ld_v(0, 1, 0); adv()
A("s_waitcnt vmcnt(0)")
for ct in range(8):
    A(f"v_mfma_f32_32x32x16_bf16 v[{S0}:{S0+15}], v[{KV[0]}:{KV[0]+3}], v[{QF+4*ct}:{QF+4*ct+3}], 0")
    A.nop(12)
    for i in range(16):
        A(f"v_sub_f32 v{S0+i}, v{S0+i}, v{vM+ct}")
    for i in range(16):
        A(f"v_exp_f32 v{S0+i}, v{S0+i}")
    A.nop(2)
    A(f"v_smfmac_f32_32x32x32_bf16 a[{16*ct}:{16*ct+15}], v[{KV[0]+4}:{KV[0]+7}], v[{S0}:{S0+7}], v{vIDX}")
    A(f"v_smfmac_f32_32x32x32_bf16 a[{16*ct}:{16*ct+15}], v[{KV[0]+8}:{KV[0]+11}], v[{S0+8}:{S0+15}], v{vIDX}")
A(f"""
s_sub_u32 s{sLOOP}, s{sLOOP}, 1
s_cmp_lg_u32 s{sLOOP}, 0
s_cbranch_scc1 L_sl2
s_nop 15
""")
for ct in range(6): part_write(ct)
A("s_waitcnt lgkmcnt(0)")
cnt_add(vCNT, vIDX, 4)
A(f"""
s_add_u32 s{sATG}, s{sATG}, 4
s_branch L_comb
""")

if OPT["xm"] or OPT["xv"] or OPT["xl"]:
    i0 = A.lines.index("L_S2:"); i1 = A.lines.index("L_hot_end:")
    seen = False
    for i in range(i0, i1):
        t = A.lines[i].strip()
        if t.startswith("ds_write_b128") : seen = True
        if not seen: continue
        if OPT["xm"] and t.startswith("v_mfma"): A.lines[i] = "    s_nop 7"
        if OPT["xv"] and (t.startswith(("v_pk_", "v_fma_f32", "v_cvt_pk", "v_mul_f32", "v_add_f32"))): A.lines[i] = "    s_nop 1"
        if OPT["xl"] and t.startswith(("ds_read_b128", "ds_write_b128")): A.lines[i] = "    s_nop 0"
hdr = open("cdna_kernels/" + NAME + ".s.ref").read().split("; Override launch")[0]
out = hdr + f"""; Fused single-launch kernel: 256 workgroups x 8 waves (4 attention waves + 4 SSM waves). Generated by gen/gen15.py.
; @launch grid=(256,1,1) block=(512,1,1) lds={LDS_BYTES}
.amdgcn_target "amdgcn-amd-amdhsa--gfx950"
.text
.globl {NAME}_kernel
.p2align 8
.type {NAME}_kernel,@function
{NAME}_kernel:
""" + A.text() + f""".section .rodata,"a"
.p2align 6
.amdhsa_kernel {NAME}_kernel
  .amdhsa_next_free_vgpr 256
  .amdhsa_next_free_sgpr 102
  .amdhsa_accum_offset 128
  .amdhsa_group_segment_fixed_size 0
  .amdhsa_kernarg_size 136
  .amdhsa_user_sgpr_count 2
  .amdhsa_user_sgpr_kernarg_segment_ptr 1
  .amdhsa_system_sgpr_workgroup_id_x 1
.end_amdhsa_kernel
"""
open(sys.argv[1], "w").write(out)
errs = check(A.lines) + check(A.lines[loop_end-60:loop_end] + A.lines[loop_start:loop_start+60])
for e in errs: print("HAZARD:", e)
print(f"{len(A.lines)} lines, {len(errs)} hazards")
```

```python
import sys, math, struct
from asmlib import *

OPT = dict(dbg=0, force_slow=0, stamps=0, noS=0, cyc=0, ost=2, gprio=0, vprio=3, hst=0, stgwin=8, pfq=0, pfb=2, stgl=2, qpre=2,
           pfc=1, ssl=2, la=8, sst=0, win0=0, trig=6, odel=0, sgate=2, map84=1, g1p=0, g2p=0, noKV=0, nochk=0, wq1=12, cpos=1, hdbg=0, p2n=20, oack=2, cim1=0, npre0=0, mid=0, sl1=2, sl2=2, sl0=0, tlb=0, pad=0, padat=0, p1at=3, e0c=24, q1a=2, p1k=26, kv0=4, g0=0, ofirst=0, xm=0, xv=0, xl=0, npre=15, l0=30, ostb=2, cap=7, cap0=9, enc=0, encS=0, aprio=3, y1f=7, osl=0, q2w=1, lbs=4)
for a in sys.argv[2:]:
    k, v = a.split("=")
    assert k in OPT, k
    OPT[k] = int(v)

NAME = "concat_heads__ssm_conv_s5__grouped_kv_mqa__prompt"
def f2u(x): return struct.unpack("<I", struct.pack("<f", x))[0]

XQ, WQ = 0, 66560
KVX, WKV = 3*16640, 66560 + 3*16384
SLOT = [0, 49920, 99840]
XA_O, BRE_O, BIM_O = 0, 16640, 33280
CIM, CRE = 0, 66560
CB_T = 2304
CB = 133120 - 12*CB_T
def cb_off(slot): return (12 + slot)*CB_T if slot < 3 else (slot - 3)*CB_T
TB = 140288
TBY = CB
CREA, CREB = 99840, 66560
WO = 66560
TB2 = 0
QX = 149760; EB = 157952; HP = 160000; CNT = 162048; QM = 162064; KM = 162068; CNT4 = 24
assert CB + 24*CB_T <= CNT
assert TB + 16384 <= EB
LDS_BYTES = 163840
FL1, FL3 = 0x1000, 0x9000
KVT = 0x80000; KVS = 4096
AGG = 0x30000; AGG_DUMMY = 32*8192; AGG_SIZE = AGG_DUMMY + 256*128
OB, HB = 0x100000, 0x400000
DBG = 0x1000000
WS_SIZE = 0x2000000
assert AGG + AGG_SIZE <= KVT
sWAVE, sC, sG, sTAG, sID = 3, 4, 5, 6, 7
R_XB, R_WQ, R_WKV, R_XA, R_BRE, R_BIM, R_CRE, R_CIM, R_WO, R_OUT, R_WS, R_AGG = 8, 12, 16, 20, 24, 28, 32, 36, 40, 44, 48, 52
P_LRE, P_LIM, P_LDT, P_DSK, P_WV = 56, 58, 60, 62, 64
sEP, sDONE = 66, 67
sT0, sT1, sT2, sT3, sT4, sT5 = 68, 69, 70, 71, 72, 73
sT6, sSPIN = 74, 75
sTW, sCW = 76, 77
sLOOP, sKOFF, sROT, sSW = 78, 79, 80, 81
sOB, sT7 = 82, 83
sATG = 65
sST = 84
def srd(r): return f"s[{r}:{r+3}]"

A = Asm()
OST = ["", " sc1", " nt", " sc0 sc1", " sc1 nt"][OPT["ost"]]
OSTB = OST if OPT["ostb"] < 0 else ["", " sc1", " nt", " sc0 sc1", " sc1 nt"][OPT["ostb"]]
SPIN_MAX = 200000
HST = OPT["hst"]

SSEC = [False]
def sstamp(i, mode):
    if OPT["stamps"] and OPT["sst"] == mode:
        A(f"s_memrealtime s[{sST+2*i}:{sST+2*i+1}]")
def stamp(i, cond=True):
    if (OPT["enc"] or OPT["encS"]) and cond and (i == 0 or (SSEC[0] and i == OPT["encS"]) or (not SSEC[0] and i == OPT["enc"])):
        A(f"s_memrealtime s[{98 if i == 0 else 94}:{99 if i == 0 else 95}]")
        if i == 0: A("s_waitcnt lgkmcnt(0)\ns_sub_u32 s94, s98, 3000")
        return
    if SSEC[0] and OPT["sst"] and i < 8: return
    if OPT["stamps"] and cond:
        A(f"s_memrealtime s[{sST+2*i}:{sST+2*i+1}]")

def padto():
    l = A.newlabel("pad")
    A(f"""
    {l}:
    s_memrealtime s[96:97]
    s_waitcnt lgkmcnt(0)
    s_sub_u32 s96, s96, s98
    s_cmp_lt_u32 s96, {OPT["pad"]*100}
    s_cbranch_scc1 {l}
    """)
def prio(p): A(f"s_setprio {p}")

def cnt_add(vaddr, vone, off=0):
    A(f"""
    s_mov_b64 exec, 1
    {"ds_inc_u32" if vone == vIDX else "ds_add_u32"} v{vaddr}, v{vone} offset:{off}
    s_mov_b64 exec, -1
    """)
def cnt_wait(vaddr, vtmp, target, off=0, sleep=0):
    lp = A.newlabel("sy"); dn = A.newlabel("syd")
    A(f"""
    s_mov_b32 s{sSPIN}, 0
    {lp}:
    ds_read_b32 v{vtmp}, v{vaddr} offset:{off}
    s_add_u32 s{sSPIN}, s{sSPIN}, 1
    s_waitcnt lgkmcnt(0)
    v_readfirstlane_b32 s{sT0}, v{vtmp}
    s_cmp_ge_u32 s{sT0}, {target}
    s_cbranch_scc1 {dn}
    {("s_sleep " + str(sleep)) if sleep else ""}
    s_cmp_lt_u32 s{sSPIN}, {SPIN_MAX}
    s_cbranch_scc1 {lp}
    {dn}:
    """)
NSYNC = [0]
def grp_sync():
    NSYNC[0] += 1
    A("s_waitcnt lgkmcnt(0)")
    cnt_add(vCNT, vONE)
    cnt_wait(vCNT, vTMP, CBASE + 4*NSYNC[0], sleep=OPT['ssl'])

def sync_add(wait_lds=True):
    NSYNC[0] += 1
    if wait_lds: A("s_waitcnt lgkmcnt(0)")
    cnt_add(vCNT, vONE)
def sync_wait(sleep=None):
    cnt_wait(vCNT, vTMP, CBASE + 4*NSYNC[0], sleep=OPT['ssl'] if sleep is None else max(sleep, OPT['sl0']))

def poll_flags(vaddr, vdst, width, sleep=2):
    lp = A.newlabel("pl"); dn = A.newlabel("pld")
    ld = "buffer_load_dword" if width == 1 else f"buffer_load_dwordx{width}"
    A(f"s_mov_b32 s{sSPIN}, 0")
    A.label(lp)
    A(f"""
    {ld} {vr(vdst, width)}, v{vaddr}, {srd(R_WS)}, 0 offen sc1
    s_add_u32 s{sSPIN}, s{sSPIN}, 1
    s_waitcnt vmcnt(0)
    v_cmp_ne_u32 vcc, s{sTAG}, v{vdst}
    s_cbranch_vccz {dn}
    {("s_sleep " + str(sleep)) if sleep else ""}
    s_cmp_lt_u32 s{sSPIN}, {SPIN_MAX}
    s_cbranch_scc1 {lp}
    {dn}:
    """)

def wave_max(v, tmp):
    A("s_nop 1")
    for sh in (1, 2, 4, 8):
        A(f"v_max_f32_dpp v{v}, v{v}, v{v} row_ror:{sh} row_mask:0xf bank_mask:0xf")
        A("s_nop 1")
    A(f"v_mov_b32 v{tmp}, v{v}")
    A("s_nop 1")
    A(f"v_permlane16_swap_b32 v{tmp}, v{v}")
    A(f"v_max_f32 v{v}, v{v}, v{tmp}")
    A(f"v_mov_b32 v{tmp}, v{v}")
    A("s_nop 1")
    A(f"v_permlane32_swap_b32 v{tmp}, v{v}")
    A(f"v_max_f32 v{v}, v{v}, v{tmp}")

def wq_voffset(dst, t0, t1, t2):
    A(f"""
    v_lshrrev_b32 v{t0}, 3, v{vLANE}
    v_and_b32 v{t1}, 7, v{vLANE}
    v_bfe_u32 v{t2}, v{vLANE}, 4, 1
    v_lshlrev_b32 v{t2}, 2, v{t2}
    v_xor_b32 v{t1}, v{t1}, v{t2}
    v_lshlrev_b32 v{t1}, 4, v{t1}
    v_lshl_add_u32 v{dst}, v{t0}, 10, v{t1}
    """)

vLANE, vL31, vH, vL16x = 1, 2, 3, 4
UR, UI, Y0, Y1 = 16, 32, 48, 64
FRS = 80
DG = 104
vL1, vL8, vL16, vL64, vL512, vCF = 112, 114, 116, 118, 120, 122
vCNT, vONE, vTMP, vP2, vDUM = 0, 124, 125, 126, 127
vXo, vBo, vDa, vSt = 5, 6, 7, 8
vAa, vBa = [9, 10, 11], [12, 13, 14]
vPF = 15
STG = 64
PRM = 100
S0, S1 = 16, 32
QF = 48
KV = [80, 92, 104, 116]
vIDX = 7
vM = 104
vZ = 120
vKt, vVt = [5, 8, 9, 10], [6, 12, 14, 15]

A(f"""
s_cmp_ge_u32 s2, 256
s_cbranch_scc1 L_end
""")
stamp(0)
if OPT["pad"]: A("s_memrealtime s[98:99]")
sizes = {R_XB: 65536, R_WKV: 16384, R_WQ: 523392, R_WS: WS_SIZE, R_XA: 65536, R_BRE: 65536, R_BIM: 65536, R_CRE: 65536, R_CIM: 65536,
         R_WO: 523392, R_OUT: 262144, R_AGG: AGG_SIZE}
def kload(lst):
    for r, off in lst:
        A(f"s_load_dwordx2 s[{r}:{r+1}], s[0:1], {off}")
def srd_words(rs):
    for r in rs:
        A(f"s_mov_b32 s{r+2}, {sizes[r]}")
        A(f"s_mov_b32 s{r+3}, 0x20000")
kload([(R_XB, 72), (R_WKV, 88), (P_WV, 96), (R_WQ, 80), (R_WS, 128)])
A(f"""
v_lshrrev_b32 v5, 6, v0
v_and_b32 v{vLANE}, 63, v0
v_readfirstlane_b32 s{sWAVE}, v5
v_lshlrev_b32 v{vL16x}, 4, v{vLANE}
v_bfe_u32 v{vH}, v0, 5, 1
v_and_b32 v{vL31}, 31, v0
v_mov_b32 v0, {CNT}
""")
srd_words([R_XB])
A(f"""
""")
if OPT["map84"]:
    A(f"""
    s_bfe_u32 s{sC}, s2, 0x20001
    s_lshl_b32 s{sC}, s{sC}, 3
    s_bfe_u32 s{sT0}, s2, 0x30003
    s_add_u32 s{sC}, s{sC}, s{sT0}
    s_and_b32 s{sG}, s2, 1
    s_lshl_b32 s{sG}, s{sG}, 2
    s_lshr_b32 s{sT0}, s2, 6
    s_add_u32 s{sG}, s{sG}, s{sT0}
    s_add_u32 s{sROT}, s{sC}, s{sG}
    s_and_b32 s{sROT}, s{sROT}, 3
    """)
else:
    A(f"""
    s_and_b32 s{sC}, s2, 7
    s_lshl_b32 s{sC}, s{sC}, 2
    s_bfe_u32 s{sROT}, s2, 0x20003
    s_add_u32 s{sC}, s{sC}, s{sROT}
    s_lshr_b32 s{sG}, s2, 5
    """)
A(f"""
s_lshl_b32 s{sT2}, s{sC}, 16
s_sub_u32 s{sSW}, s{sWAVE}, 4
s_cbranch_scc1 L_A0
s_load_dwordx4 s[{P_LRE}:{P_LRE+3}], s[0:1], 8
s_load_dwordx4 s[{P_LDT}:{P_LDT+3}], s[0:1], 56
s_setprio 3
v_mov_b32 v20, 0
v_mov_b32 v21, 0
s_lshl_b32 s{sT0}, s{sG}, 6
s_lshl_b32 s{sT1}, s{sSW}, 4
s_and_b32 s{sT1}, s{sT1}, 32
s_add_u32 s{sT0}, s{sT0}, s{sT1}
v_add_lshl_u32 v{vP2}, s{sT0}, v{vL31}, 1
ds_write2_b64 v0, v[20:21], v[20:21] offset0:0 offset1:1
ds_write2_b64 v0, v[20:21], v[20:21] offset0:2 offset1:3
s_mov_b32 s{R_WKV+2}, {sizes[R_WKV]}
s_mov_b32 s{R_WKV+3}, 0x20000
s_lshl_b32 s{sT1}, s{sSW}, 12
s_lshl_b32 s{sT5}, s{sG}, 13
s_and_b32 s{sT5}, s{sT5}, 0xc000
s_add_u32 s{sT5}, s{sT5}, s{sT1}
s_mul_i32 s{sT0}, s{sSW}, 4160
s_add_u32 m0, s{sT1}, {WKV}
s_bitcmp1_b32 s{sG}, 0
s_waitcnt lgkmcnt(0)
s_cselect_b32 s{R_WKV}, s{P_WV}, s{R_WKV}
s_cselect_b32 s{R_WKV+1}, s{P_WV+1}, s{R_WKV+1}
s_add_u32 s{R_XB}, s{R_XB}, s{sT2}
s_addc_u32 s{R_XB+1}, s{R_XB+1}, 0
""")
for i in range(4):
    A(f"buffer_load_dwordx4 v{vL16x}, {srd(R_WKV)}, s{sT1} offen offset:{i*1024} lds")
for i in range(4):
    A(f"s_add_u32 m0, s{sT0}, {KVX + 16*i}")
    A(f"s_load_dword s{sEP}, s[{R_WS}:{R_WS+1}], 0" if i == 0 else "s_nop 0")
    A(f"buffer_load_dwordx4 v{vL16x}, {srd(R_XB)}, s{sT5} offen offset:{i*1024} lds")
A(f"""
s_barrier
global_load_ushort v{PRM}, v{vP2}, s[{P_LRE}:{P_LRE+1}]
global_load_ushort v{PRM+1}, v{vP2}, s[{P_LIM}:{P_LIM+1}]
global_load_ushort v{PRM+2}, v{vP2}, s[{P_LDT}:{P_LDT+1}]
global_load_ushort v{PRM+3}, v{vP2}, s[{P_DSK}:{P_DSK+1}]
s_cmp_eq_u32 s{sSW}, 1
s_cbranch_scc1 L_qx
s_cmp_eq_u32 s{sSW}, 2
s_cbranch_scc1 L_qw
s_branch L_S1
L_A0:
""")
def common_scalars():
    kload([(R_OUT, 112)])
    srd_words([R_WS, R_OUT])
    A(f"""
    s_and_b32 s{sTW}, s{sWAVE}, 1
    s_bfe_u32 s{sCW}, s{sWAVE}, 0x10001
    s_lshl_b32 s{sID}, s{sC}, 3
    s_add_u32 s{sID}, s{sID}, s{sG}
    s_mov_b32 s{sDONE}, 0
    s_lshl_b32 s{sOB}, s{sC}, 1
    s_add_u32 s{sOB}, s{sOB}, s{sTW}
    s_lshl_b32 s{sOB}, s{sOB}, 15
    s_add_u32 s{sOB}, s{sOB}, {OB}
    """)
def common_after_wait(tag=True):
    A(f"""
    s_lshl_b32 s{sT0}, s{sC}, 18
    s_add_u32 s{R_OUT}, s{R_OUT}, s{sT0}
    s_addc_u32 s{R_OUT+1}, s{R_OUT+1}, 0
    """)
    if tag: A(f"""
    s_mul_i32 s{sTAG}, s{sEP}, 0x9E3779B1
    s_add_u32 s{sTAG}, s{sTAG}, 0x7F4A7C15
    """)
vWQo, vXQo = 119, 117
A(f"""
v_lshrrev_b32 v6, 4, v{vLANE}
v_and_b32 v7, 15, v{vLANE}
v_lshlrev_b32 v7, 4, v7
v_lshl_add_u32 v{vXQo}, v6, 14, v7
s_mul_i32 s{sT6}, s{sWAVE}, 4160
s_lshl_b32 s{sT7}, s{sWAVE}, 12
""")
srd_words([R_WQ])
wq_voffset(vWQo, 6, 7, 10)
A(f"""
s_lshl_b32 s{sT0}, s{sG}, 7
s_waitcnt lgkmcnt(0)
s_add_u32 s{R_XB}, s{R_XB}, s{sT2}
s_addc_u32 s{R_XB+1}, s{R_XB+1}, 0
s_add_u32 s{R_WQ}, s{R_WQ}, s{sT0}
s_addc_u32 s{R_WQ+1}, s{R_WQ+1}, 0
s_load_dword s{sEP}, s[{R_WS}:{R_WS+1}], 0
s_barrier
""")
stamp(1, HST)
def x_dma(s):
    A(f"""
    s_add_u32 s{sT3}, s{sROT}, {s}
    s_and_b32 s{sT3}, s{sT3}, 3
    s_lshl_b32 s{sT4}, s{sT3}, 8
    s_add_u32 s{sT4}, s{sT4}, s{sT7}
    """)
    for i in range(4):
        A(f"""
        s_add_u32 m0, s{sT6}, {XQ + s*16640 + i*16}
        s_nop 0
        buffer_load_dwordx4 v{vXQo}, {srd(R_XB)}, s{sT4} offen offset:{i*1024} lds
        """)
def wq_dma(s):
    A(f"""
    s_lshl_b32 s{sT3}, s{sT3}, 4
    s_add_u32 s{sT3}, s{sT3}, s{sWAVE}
    s_lshl_b32 s{sT3}, s{sT3}, 13
    s_lshl_b32 s{sT2}, s{sWAVE}, 10
    """)
    for i in range(4):
        A(f"""
        s_add_u32 m0, s{sT2}, {WQ + s*16384 + i*4096}
        s_add_u32 s{sT1}, s{sT3}, {i*32768}
        buffer_load_dwordx4 v{vWQo}, {srd(R_WQ)}, s{sT1} offen lds
        """)
for s in range(OPT["qpre"]):
    x_dma(s); wq_dma(s)
stamp(2 if HST else 1)
A("s_branch L_A1")
A.label("L_S1")
SSEC[0] = True
A(f"""
v_mov_b32 v{vONE}, 1
s_lshl_b32 s{sID}, s{sC}, 3
s_add_u32 s{sID}, s{sID}, s{sG}
s_mov_b32 s{R_WS+2}, {WS_SIZE}
s_mov_b32 s{R_WS+3}, 0x20000
v_lshrrev_b32 v20, 4, v{vLANE}
v_and_b32 v21, 15, v{vLANE}
v_mul_u32_u24 v9, 1040, v21
v_lshl_add_u32 v9, v20, 4, v9
v_add_u32 v9, {KVX}, v9
v_lshrrev_b32 v10, 2, v21
v_lshl_add_u32 v10, v20, 3, v10
v_lshlrev_b32 v10, 5, v10
v_and_b32 v11, 3, v21
v_lshl_add_u32 v10, v11, 3, v10
v_add_u32 v10, {WKV}, v10
s_lshl_b32 s{sT6}, s{sC}, 1
s_lshr_b32 s{sT1}, s{sG}, 2
s_add_u32 s{sT6}, s{sT6}, s{sT1}
s_lshl_b32 s{sT6}, s{sT6}, 12
s_add_u32 s{sT6}, s{sT6}, {KVT}
s_bfe_u32 s{sT7}, s{sG}, 0x10001
s_waitcnt lgkmcnt(0)
s_mul_i32 s{sTAG}, s{sEP}, 0x9E3779B1
s_add_u32 s{sTAG}, s{sTAG}, 0x7F4A7C15
s_waitcnt vmcnt(4)
""")
stamp(6, HST)
cnt_add(vCNT, vONE)
A(f"""
s_cmp_lg_u32 s{sSW}, 0
s_cbranch_scc1 L_S2a
""")
cnt_wait(vCNT, vTMP, 4)
stamp(1)
def kv_rd(k):
    f = 32 + 8*(k % 6)
    A(f"ds_read_b64_tr_b16 v[{f}:{f+1}], v10 offset:{k*1024}")
    A(f"ds_read_b64_tr_b16 v[{f+2}:{f+3}], v10 offset:{k*1024+128}")
    A(f"ds_read_b128 v[{f+4}:{f+7}], v9 offset:{k*64}")
for k in range(4): kv_rd(k)
A(f"s_bitcmp1_b32 s{sG}, 0")
A("s_cbranch_scc1 L_kv_v")
def kv_chain(isv_):
    for k in range(16):
        f = 32 + 8*(k % 6)
        if k + 4 < 16: kv_rd(k + 4)
        issued = min(16, k + 5)
        A(f"s_waitcnt lgkmcnt({3*(issued - k - 1)})")
        c = "0" if k == 0 else "v[28:31]"
        a, b = (f"v[{f}:{f+3}]", f"v[{f+4}:{f+7}]") if not isv_ else (f"v[{f+4}:{f+7}]", f"v[{f}:{f+3}]")
        A(f"v_mfma_f32_16x16x32_bf16 v[28:31], {a}, {b}, {c}")
kv_chain(False)
if not OPT["q2w"]: cnt_add(vCNT, vONE)
else: A.nop(3)
A(f"s_mov_b32 s{sT0}, {f2u(0.25 * math.log2(math.e))}")
A(f"""
s_lshl_b32 s{sT7}, s{sT7}, 8
s_add_u32 s{sT6}, s{sT6}, s{sT7}
v_and_b32 v22, 1, v20
v_lshlrev_b32 v22, 9, v22
v_lshl_add_u32 v22, v21, 4, v22
v_lshrrev_b32 v23, 1, v20
v_lshl_add_u32 v22, v23, 3, v22
v_mul_f32 v28, s{sT0}, v28
v_mul_f32 v29, s{sT0}, v29
v_mul_f32 v30, s{sT0}, v30
v_mul_f32 v31, s{sT0}, v31
v_cvt_pk_bf16_f32 v24, v28, v29
v_cvt_pk_bf16_f32 v25, v30, v31
buffer_store_dwordx2 v[24:25], v22, {srd(R_WS)}, s{sT6} offen sc1
""")
if OPT["q2w"]: cnt_add(vCNT, vONE)
A(f"""
v_mul_f32 v16, v28, v28
v_fmac_f32 v16, v29, v29
v_fmac_f32 v16, v30, v30
v_fmac_f32 v16, v31, v31
v_mov_b32 v17, v16
s_nop 1
v_permlane16_swap_b32 v17, v16
v_add_f32 v16, v16, v17
v_mov_b32 v17, v16
s_nop 1
v_permlane32_swap_b32 v17, v16
v_add_f32 v17, v16, v17
""")
wave_max(17, 18)
A("s_branch L_kv_pub")
A.label("L_kv_v")
kv_chain(True)
if not OPT["q2w"]: cnt_add(vCNT, vONE)
A(f"""
s_mul_i32 s{sT7}, s{sT7}, 544
s_add_u32 s{sT6}, s{sT6}, s{sT7}
s_add_u32 s{sT6}, s{sT6}, 1024
v_lshrrev_b32 v22, 1, v20
v_mul_u32_u24 v22, 272, v22
v_and_b32 v23, 1, v20
v_lshl_add_u32 v22, v23, 3, v22
v_lshl_add_u32 v23, v21, 4, v22
v_cvt_pk_bf16_f32 v24, v28, v29
v_cvt_pk_bf16_f32 v25, v30, v31
buffer_store_dwordx2 v[24:25], v23, {srd(R_WS)}, s{sT6} offen sc1
v_mov_b32 v26, 0x3f803f80
v_mov_b32 v27, 0x3f803f80
s_mov_b32 exec_lo, 0x00010001
s_mov_b32 exec_hi, 0x00010001
buffer_store_dwordx2 v[26:27], v22, {srd(R_WS)}, s{sT6} offen offset:256 sc1
s_mov_b64 exec, -1
v_mov_b32 v17, 0
""")
if OPT["q2w"]: cnt_add(vCNT, vONE)
A.label("L_kv_pub")
A(f"""
s_lshl_b32 s{sT0}, s{sID}, 7
s_add_u32 s{sT0}, s{sT0}, {FL1}
v_mov_b32 v16, s{sTAG}
v_mov_b32 v9, 0
s_waitcnt vmcnt(0)
s_mov_b64 exec, 1
buffer_store_dwordx2 v[16:17], v9, {srd(R_WS)}, s{sT0} offen sc1
ds_add_u32 v{vCNT}, v{vONE}
s_mov_b64 exec, -1
""")
stamp(2)
A("s_branch L_S2")
def q_head():
    A(f"""
    v_mov_b32 v{vONE}, 1
    s_lshl_b32 s{sID}, s{sC}, 3
    s_add_u32 s{sID}, s{sID}, s{sG}
    s_waitcnt lgkmcnt(0)
    s_mul_i32 s{sTAG}, s{sEP}, 0x9E3779B1
    s_add_u32 s{sTAG}, s{sTAG}, 0x7F4A7C15
    s_waitcnt vmcnt(4)
    """)
    cnt_add(vCNT, vONE)
    prio(0)
def q_sig():
    A("s_waitcnt vmcnt(16)"); cnt_add(vCNT, vONE, 24)
    A("s_waitcnt vmcnt(0)"); cnt_add(vCNT, vONE, 28)
    prio(3)
    A("s_branch L_S2")
A.label("L_qx")
A(f"""
v_lshrrev_b32 v20, 4, v{vLANE}
v_and_b32 v21, 15, v{vLANE}
v_lshlrev_b32 v22, 4, v21
v_lshl_add_u32 v22, v20, 14, v22
""")
q_head()
for s_ in (2, 3):
    if s_ == 3 - OPT['q2w']: cnt_wait(vCNT, vTMP, 5)
    A(f"""
    s_add_u32 s{sT3}, s{sROT}, {s_}
    s_and_b32 s{sT3}, s{sT3}, 3
    s_lshl_b32 s{sT3}, s{sT3}, 8
    """)
    for i in range(16):
        A(f"s_mov_b32 m0, {XQ + s_*16640 + i*1040 - (i & 3)*1024}")
        A(f"s_add_u32 s{sT3}, s{sT3}, 4096" if (i & 3 == 0 and i) else "s_nop 0")
        A(f"buffer_load_dwordx4 v22, {srd(R_XB)}, s{sT3} offen offset:{(i & 3)*1024} lds")
q_sig()
A.label("L_qw")
srd_words([R_WQ])
wq_voffset(22, 23, 24, 25)
A(f"""
s_lshl_b32 s{sT0}, s{sG}, 7
s_add_u32 s{R_WQ}, s{R_WQ}, s{sT0}
s_addc_u32 s{R_WQ+1}, s{R_WQ+1}, 0
""")
q_head()
for s_ in (2, 3):
    if s_ == 3 - OPT['q2w']: cnt_wait(vCNT, vTMP, 5)
    A(f"""
    s_add_u32 s{sT3}, s{sROT}, {s_}
    s_and_b32 s{sT3}, s{sT3}, 3
    s_lshl_b32 s{sT3}, s{sT3}, 17
    """)
    for i in range(16):
        A(f"s_mov_b32 m0, {WQ + s_*16384 + i*1024}")
        A(f"s_add_u32 s{sT3}, s{sT3}, 8192" if i else "s_nop 0")
        A(f"buffer_load_dwordx4 v22, {srd(R_WQ)}, s{sT3} offen lds")
q_sig()
SSEC[0] = False
A.label("L_A1")
for i in range(4): A(f"v_mov_b32 v{vZ+i}, 0")
vXa, vWa, vFl, vQw, vQr, vAone = 8, 9, 10, 14, 15, vIDX
common_scalars()
for ct in range(8):
    A(f"v_mfma_f32_32x32x16_bf16 a[{16*ct}:{16*ct+15}], v[{vZ}:{vZ+3}], v[{vZ}:{vZ+3}], 0")
A(f"""
v_and_b32 v6, 15, v{vL31}
v_mul_u32_u24 v{vXa}, 1040, v6
v_lshl_add_u32 v{vXa}, v{vH}, 4, v{vXa}
v_lshrrev_b32 v6, 4, v{vL31}
v_lshl_add_u32 v{vXa}, v6, 8, v{vXa}
s_lshl_b32 s{sT0}, s{sTW}, 9
v_add_u32 v{vXa}, s{sT0}, v{vXa}
v_bfe_u32 v6, v{vLANE}, 2, 2
v_lshl_add_u32 v6, v{vH}, 3, v6
v_bfe_u32 v7, v{vLANE}, 4, 1
v_and_b32 v11, 3, v{vLANE}
v_lshlrev_b32 v11, 3, v11
v_lshl_add_u32 v11, v7, 5, v11
s_lshl_b32 s{sT0}, s{sCW}, 6
v_add_u32 v11, s{sT0}, v11
v_bfe_u32 v7, v{vLANE}, 3, 1
v_lshlrev_b32 v7, 6, v7
v_xor_b32 v11, v11, v7
v_lshl_add_u32 v{vWa}, v6, 7, v11
v_add_u32 v{vWa}, {WQ}, v{vWa}
s_lshl_b32 s{sT0}, s{sWAVE}, 13
s_add_u32 s{sT0}, s{sT0}, {FL1}
v_lshlrev_b32 v{vFl}, 7, v{vLANE}
v_add_u32 v{vFl}, s{sT0}, v{vFl}
s_lshl_b32 s{sT0}, s{sWAVE}, 16
s_add_u32 s{sT1}, s{sT0}, {KVT}
v_add_u32 v{vKt[0]}, s{sT1}, v{vL16x}
s_add_u32 s{sT1}, s{sT1}, 1024
v_lshlrev_b32 v13, 4, v{vL31}
v_mul_u32_u24 v14, 272, v{vH}
v_add3_u32 v13, v13, v14, s{sT1}
v_cmp_lt_u32 vcc, 16, v{vL31}
v_mov_b32 v14, 0x7ff00000
v_mov_b32 v{vIDX}, 0xdddddddd
v_cndmask_b32 v{vVt[0]}, v13, v14, vcc
s_lshl_b32 s{sKOFF}, s{sROT}, 14
s_lshl_b32 s{sT0}, s{sCW}, 2
s_add_u32 s{sT0}, s{sT0}, s{sTW}
s_lshl_b32 s{sT0}, s{sT0}, 10
s_add_u32 s{sT0}, s{sT0}, {QX}
v_add_u32 v{vQw}, s{sT0}, v{vL16x}
v_add_u32 v{vQr}, {QX}, v{vL16x}
s_waitcnt lgkmcnt(0)
""")
common_after_wait()
QP = OPT["qpre"]
sKVOK = sATG
vFG = 12
def ld_k(b, t, so=sKOFF):
    A(f"buffer_load_dwordx4 v[{KV[b]}:{KV[b]+3}], v{vKt[t]}, {srd(R_WS)}, s{so} offen sc1")
def ld_v(b, j, t, so=sKOFF):
    A(f"buffer_load_dwordx4 v[{KV[b]+4+4*j}:{KV[b]+7+4*j}], v{vVt[t]}, {srd(R_WS)}, s{so} offen offset:{544*j} sc1")
def kv_first():
    for b in range(OPT["kv0"]):
        A(f"s_add_u32 s{sT1}, s{sKOFF}, {b*KVS}")
        ld_k(b, 0, sT1); ld_v(b, 0, 0, sT1); ld_v(b, 1, 0, sT1)
    A(f"ds_max_f32 v{vCNT}, v{vFG+1} offset:{KM - CNT}")
    if OPT["kv0"] == 4 or OPT["g0"]: cnt_add(vCNT, vAone, 12)
def kv_try(tag):
    A(f"""
    v_cmp_ne_u32 vcc, s{sTAG}, v{vFG}
    s_cbranch_vccnz L_kvlate{tag}
    s_mov_b32 s{sKVOK}, 1
    """)
    kv_first()
    A(f"s_branch L_kvq{tag}")
    A.label(f"L_kvlate{tag}")
    flag_ld()
    A.label(f"L_kvq{tag}")
def flag_ld(): A(f"buffer_load_dwordx2 v[{vFG}:{vFG+1}], v{vFl}, {srd(R_WS)}, 0 offen sc1")
def q_rd(k):
    s_, kk = divmod(k, 8)
    f = 32 + 8*(k % 6)
    A(f"ds_read_b64_tr_b16 v[{f}:{f+1}], v{vWa} offset:{s_*16384 + kk*2048}")
    A(f"ds_read_b64_tr_b16 v[{f+2}:{f+3}], v{vWa} offset:{s_*16384 + kk*2048 + 512}")
    A(f"ds_read_b128 v[{f+4}:{f+7}], v{vXa} offset:{XQ + s_*16640 + kk*32}")
A(f"s_mov_b32 s{sKVOK}, 0")
A("s_waitcnt vmcnt(8)")
stamp(3, HST)
cnt_add(vCNT, vAone, 4)
cnt_wait(vCNT, 11, 4, 4)
for k in range(4): q_rd(k)
done = 0
for k in range(32):
    if k == OPT["q1a"]:
        A("s_waitcnt vmcnt(0)")
        cnt_add(vCNT, vAone, 4)
    if k == OPT["p1k"]: flag_ld()
    if k + 4 < 32:
        if (k + 4) % 8 == 0:
            s_ = (k + 4) // 8
            if s_ == 1: cnt_wait(vCNT, 11, 8, 4)
            else: cnt_wait(vCNT, 11, 2, 24 + 4*(s_ - 2))
            stamp(3 + s_, HST)
            done = k + 4
        q_rd(k + 4)
    if k >= done:
        A(f"s_waitcnt lgkmcnt({3*(min(32, k + 5) - k - 1)})")
    c = "0" if k == 0 else f"v[{S0}:{S0+15}]"
    f = 32 + 8*(k % 6)
    A(f"v_mfma_f32_32x32x16_bf16 v[{S0}:{S0+15}], v[{f}:{f+3}], v[{f+4}:{f+7}], {c}")
A(f"""
s_mul_i32 s{sT6}, s{sWAVE}, {3*CB_T}
s_add_u32 s{sT6}, s{sT6}, {CB}
v_add_u32 v11, s{sT6}, v{vL16x}
s_mov_b32 s{sLOOP}, 4
""")
A.nop(8)
for i in range(8):
    A(f"v_cvt_pk_bf16_f32 v{32+i}, v{S0+2*i}, v{S0+2*i+1}")
    if i == 3: A(f"ds_write_b128 v{vQw}, v[32:35]")
A(f"""
ds_write_b128 v{vQw}, v[36:39] offset:2048
s_waitcnt lgkmcnt(0)
""")
cnt_add(vCNT, vAone, 4)
A("s_waitcnt vmcnt(0)")
kv_try("b")
for hd in range(2):
    A(f"v_mul_f32 v{32+hd}, v{S0+8*hd}, v{S0+8*hd}")
    for i in range(1, 8):
        A(f"v_fmac_f32 v{32+hd}, v{S0+8*hd+i}, v{S0+8*hd+i}")
A(f"""
v_mov_b32 v34, v32
v_mov_b32 v35, v33
v_add_u32 v{vKt[1]}, {KVS}, v{vKt[0]}
v_add_u32 v{vKt[2]}, {2*KVS}, v{vKt[0]}
v_permlane32_swap_b32 v34, v32
v_permlane32_swap_b32 v35, v33
v_add_f32 v32, v32, v34
v_add_f32 v33, v33, v35
v_max_f32 v32, v32, v33
v_add_u32 v{vVt[2]}, {2*KVS}, v{vVt[0]}
ds_max_f32 v{vCNT}, v32 offset:{QM - CNT}
""")
for pr in range(4):
    A(f"s_add_u32 s{sT0}, s{sWAVE}, {pr + 1}")
    A(f"s_and_b32 s{sT0}, s{sT0}, 3")
    A(f"s_lshl_b32 s{sT0}, s{sT0}, 11")
    A(f"v_add_u32 v{36+pr}, s{sT0}, v{vQr}")
A(f"v_add_u32 v{vVt[3]}, {3*KVS}, v{vVt[0]}")
cnt_wait(vCNT, 35, 12, 4)
stamp(7 if HST else 2)
for pr in range(4):
    A(f"ds_read_b128 v[{QF+8*pr}:{QF+8*pr+3}], v{36+pr}")
    A(f"ds_read_b128 v[{QF+8*pr+4}:{QF+8*pr+7}], v{36+pr} offset:1024")
A(f"""
s_cmp_lg_u32 s{sKVOK}, 0
s_cbranch_scc1 L_kvgo
s_waitcnt vmcnt(0)
v_cmp_ne_u32 vcc, s{sTAG}, v{vFG}
s_cbranch_vccz L_kvok
""")
poll_flags(vFl, vFG, 2, sleep=0)
A.label("L_kvok")
kv_first()
A.label("L_kvgo")
if OPT["pad"] and OPT["padat"] == 1: padto()
stamp(3, not HST)
A(f"""
s_waitcnt vmcnt({3*OPT['kv0'] - 1}) lgkmcnt(7)
v_mfma_f32_32x32x16_bf16 v[{S0}:{S0+15}], v[{KV[0]}:{KV[0]+3}], v[{QF}:{QF+3}], 0
v_add_u32 v{vKt[3]}, {3*KVS}, v{vKt[0]}
s_waitcnt vmcnt({3*OPT['kv0'] - 3}) lgkmcnt(0)
v_add_u32 v{vVt[1]}, {KVS}, v{vVt[0]}
v_lshlrev_b32 v13, 2, v{vLANE}
v_add_u32 v13, s{sT6}, v13
""")
A.nop(7)
SB = [S0, S1]
LASTSYNC = 8
CBASE = 6
def part_write(ct):
    A(f"ds_write_b128 v11, a[{16*ct}:{16*ct+3}] offset:{cb_off(ct)}")
    A(f"ds_write_b128 v11, a[{16*ct+4}:{16*ct+7}] offset:{cb_off(ct) + 1024}")
    A(f"ds_write_b32 v13, a{16*ct+8} offset:{cb_off(ct) + 2048}")
def period(kb, ct, mode):
    cur = SB[ct & 1]; oth = SB[(ct + 1) & 1]
    pct = (ct - 1) % 8
    pkb = kb if ct > 0 else (kb - 1) % 4
    nct = (ct + 1) % 8
    nkb = kb if ct < 7 else (kb + 1) % 4
    ld = ct == 0 and mode == "loop" and not OPT["noKV"]
    early = mode == "last" and 1 <= ct <= 6
    extra = {}
    if mode == "first" and OPT["kv0"] < 4:
        lds_ = []
        for b in range(OPT["kv0"], 4):
            lds_ += [lambda b=b: ld_k(b, b), lambda b=b: ld_v(b, 0, b), lambda b=b: ld_v(b, 1, b)]
        for n, f_ in enumerate(lds_): extra[[1, 2, 3, 6, 7, 11, 12, 13, 14][n]] = f_
    def e(i):
        A(f"v_exp_f32 v{cur+i}, v{cur+i}")
        if i in extra: extra[i]()
        if i == 15 and extra and not OPT["g0"]: cnt_add(vCNT, vAone, 12)
    e(0); e(1)
    if mode != "first":
        A(f"v_smfmac_f32_32x32x32_bf16 a[{16*pct}:{16*pct+15}], v[{KV[pkb]+8}:{KV[pkb]+11}], v[{oth+8}:{oth+15}], v{vIDX}")
    e(2)
    if mode == "last" and ct in (0, 3): A(f"ds_read_b32 v12, v{vCNT} offset:{28 if ct == 0 else 8}")
    if (mode, ct) == ("last", 7):
        A("s_waitcnt lgkmcnt(0)")
        cnt_add(vCNT, vIDX, 4)
    e(3)
    if ct == 7 and mode == "loop": A(f"s_waitcnt vmcnt(6)")
    e(4)
    if (mode, ct) != ("last", 7):
        A(f"v_mfma_f32_32x32x16_bf16 v[{oth}:{oth+15}], v[{KV[nkb]}:{KV[nkb]+3}], v[{QF+4*nct}:{QF+4*nct+3}], 0")
    for i in range(5, 10): e(i)
    A(f"v_smfmac_f32_32x32x32_bf16 a[{16*ct}:{16*ct+15}], v[{KV[kb]+4}:{KV[kb]+7}], v[{cur}:{cur+7}], v{vIDX}")
    e(10); e(11)
    e(12)
    if ld: ld_k(pkb, pkb)
    if early: A(f"ds_write_b128 v11, a[{16*(ct-1)}:{16*(ct-1)+3}] offset:{cb_off(ct-1)}")
    e(13)
    if ld: ld_v(pkb, 0, pkb)
    if (kb, ct, mode) == (0, 1, "loop"): A(f"s_add_u32 s{sKOFF}, s{sKOFF}, {4*KVS}")
    if (kb, ct, mode) == (2, 7, "loop"): A(f"s_sub_u32 s{sLOOP}, s{sLOOP}, 1")
    if early: A(f"ds_write_b128 v11, a[{16*(ct-1)+4}:{16*(ct-1)+7}] offset:{cb_off(ct-1) + 1024}")
    e(14)
    if ld: ld_v(pkb, 1, pkb)
    if (kb, ct, mode) == (0, 1, "loop"): A(f"s_and_b32 s{sKOFF}, s{sKOFF}, 0xffff")
    if (kb, ct, mode) == (2, 7, "loop"): A(f"s_cmp_eq_u32 s{sLOOP}, 0")
    if early: A(f"ds_write_b32 v13, a{16*(ct-1)+8} offset:{cb_off(ct-1) + 2048}")
    e(15)
    if mode == "last" and ct == 8 - OPT["trig"] - 1: cnt_add(vCNT, vIDX, 12)
    if mode == "last" and ct in (0, 3):
        tgt = 6 if ct == 0 else 4
        A(f"""
        s_waitcnt lgkmcnt(0)
        v_readfirstlane_b32 s{sT0}, v12
        s_cmp_ge_u32 s{sT0}, {tgt if not (OPT["noS"] or OPT["nochk"]) else 0}
        s_cbranch_scc1 L_sfree{ct}
        """)
        cnt_wait(vCNT, 12, tgt, 28 if ct == 0 else 8, sleep=2)
        A.label(f"L_sfree{ct}")
if OPT["cyc"]: A(f"s_memtime s[{sST+10}:{sST+11}]")
period(0, 0, "first")
A("s_branch L_attn1")
A(".p2align 6")
A.label("L_attn")
loop_start = len(A.lines)
for kb in (3, 0, 1, 2):
    for ct in range(8):
        if (kb, ct) == (0, 1): A.label("L_attn1")
        period(kb, ct, "loop")
loop_end = len(A.lines)
A("s_cbranch_scc0 L_attn")
for ct in range(8):
    period(3, ct, "last")
A(f"""
s_nop 1
v_smfmac_f32_32x32x32_bf16 a[112:127], v[{KV[3]+8}:{KV[3]+11}], v[{S1+8}:{S1+15}], v{vIDX}
""")
stamp(4, not HST)
if OPT["cyc"]: A(f"s_memtime s[{sST+12}:{sST+13}]")
if OPT["pad"] and OPT["padat"] == 2: padto()
A(f"s_mov_b32 s{sATG}, 16")
A.label("L_comb")
if OPT["aprio"]: prio(OPT["aprio"])
for k in range(3):
    A(f"""
    s_add_u32 s{sT0}, s{sWAVE}, {k + 1}
    s_and_b32 s{sT0}, s{sT0}, 3
    s_mul_i32 s{sT0}, s{sT0}, {3*CB_T}
    s_add_u32 s{sT0}, s{sT0}, {CB}
    v_add_u32 v{8+k}, s{sT0}, v{vL16x}
    v_lshl_add_u32 v{[12, 14, 15][k]}, v{vL31}, 2, s{sT0}
    """)
A(f"""
s_lshl_b32 s{sT1}, s{sG}, 2
s_add_u32 s{sT1}, s{sT1}, s{sWAVE}
s_lshl_b32 s{sT1}, s{sT1}, 10
s_lshl_b32 s{sT2}, s{sC}, 16
s_add_u32 s{sT1}, s{sT1}, s{sT2}
s_add_u32 s{sT1}, s{sT1}, {OB}
s_add_u32 s{sT2}, s{sT1}, 32768
s_waitcnt vmcnt(0)
""")
cnt_wait(vCNT, 16, f"s{sATG}", 4)
def astamp(i):
    if OPT["cyc"] or HST or not (OPT["stamps"] or OPT["enc"]): return
    stamp(i)
astamp(5)
PD = [[16, 24, 32, 40], [80, 88, 96, 104]]
PL = [[112, 113, 114, 115], [116, 117, 118, 119]]
A(f"ds_read_b64 v[120:121], v0 offset:{QM - CNT}")
for u in range(2):
    for k in range(3):
        A(f"ds_read_b32 v{PL[u][k+1]}, v{[12, 14, 15][k]} offset:{cb_off(2*(2-k) + u) + 2048}")
    for k in range(3):
        A(f"ds_read_b128 v[{PD[u][k+1]}:{PD[u][k+1]+3}], v{8+k} offset:{cb_off(2*(2-k) + u)}")
        A(f"ds_read_b128 v[{PD[u][k+1]+4}:{PD[u][k+1]+7}], v{8+k} offset:{cb_off(2*(2-k) + u) + 1024}")
    if u == 0: A("s_waitcnt lgkmcnt(6)")
for u in range(2):
    A(f"v_accvgpr_read_b32 v{PL[u][0]}, a{16*(6+u)+8}")
    A(f"v_accvgpr_read_b32 v{122+u}, a{16*(6+u)+8}")
A(f"""
v_mul_f32 v120, v120, v121
v_add_f32 v113, v113, v114
v_permlane32_swap_b32 v112, v122
v_permlane32_swap_b32 v116, v123
v_cmp_nge_f32 vcc, {f2u(-1.0 if OPT['force_slow'] else 1000.0)}, v120
v_add_f32 v112, v112, v115
v_add_f32 v112, v112, v113
v_rcp_f32 v112, v112
s_cbranch_vccnz L_slow
L_fast:
""")
def comb(u, soff):
    d = PD[u]
    for i in range(8): A(f"v_accvgpr_read_b32 v{d[0]+i}, a{16*(6+u)+i}")
    if u == 0: A("s_waitcnt lgkmcnt(9)")
    else:
        A(f"""
        s_waitcnt lgkmcnt(2)
        v_add_f32 v117, v117, v118
        v_add_f32 v116, v116, v119
        v_add_f32 v116, v116, v117
        v_rcp_f32 v116, v116
        """)
    for i in range(0, 8, 2): A(f"v_pk_add_f32 {p2(d[1]+i)}, {p2(d[1]+i)}, {p2(d[2]+i)}")
    if u == 1:
        A("s_waitcnt lgkmcnt(0)")
        if OPT["oack"] == 2: cnt_add(vCNT, vIDX, 12)
    for i in range(0, 8, 2): A(f"v_pk_add_f32 {p2(d[0]+i)}, {p2(d[0]+i)}, {p2(d[3]+i)}")
    for i in range(0, 8, 2): A(f"v_pk_add_f32 {p2(d[0]+i)}, {p2(d[0]+i)}, {p2(d[1]+i)}")
    for i in range(0, 8, 2):
        A(f"v_pk_mul_f32 {p2(d[0]+i)}, {p2(d[0]+i)}, {p2(PL[u][0])} op_sel_hi:[1,0]")
    for i in range(0, 8, 2):
        A(f"v_cvt_pk_bf16_f32 v{d[1]+i//2}, v{d[0]+i}, v{d[0]+i+1}")
    A(f"buffer_store_dwordx4 v[{d[1]}:{d[1]+3}], v{vL16x}, {srd(R_WS)}, s{soff} offen sc1")
def p2(r): return f"v[{r}:{r+1}]"
comb(0, sT1); comb(1, sT2)
astamp(6)
if OPT["oack"]: A("s_waitcnt vmcnt(0)")
cnt_add(vCNT, vIDX, 12)
A(f"""
s_or_b32 s{sT0}, s2, s{sWAVE}
s_cmp_lg_u32 s{sT0}, 0
s_cbranch_scc1 L_noep
s_add_u32 s{sT0}, s{sEP}, 1
v_mov_b32 v10, s{sT0}
v_mov_b32 v11, 0
s_mov_b64 exec, 1
buffer_store_dword v10, v11, {srd(R_WS)}, 0 offen
s_mov_b64 exec, -1
L_noep:
""")
A.label("L_fin")
if OPT["enc"] or OPT["encS"]:
    A("""
    s_waitcnt vmcnt(0) lgkmcnt(0)
    s_add_u32 s94, s94, 3000
    L_enc:
    s_memrealtime s[96:97]
    s_waitcnt lgkmcnt(0)
    s_sub_u32 s96, s96, s94
    s_cmp_lt_i32 s96, 0
    s_cbranch_scc1 L_enc
    """)
if OPT["pad"] and OPT["padat"] == 0:
    A("s_waitcnt vmcnt(0)"); padto()
if OPT["stamps"]:
    A(f"""
    s_waitcnt vmcnt(0)
    s_memrealtime s[100:101]
    s_waitcnt lgkmcnt(0)
    s_lshl_b32 s{sT0}, s2, 3
    s_add_u32 s{sT0}, s{sT0}, s{sWAVE}
    s_lshl_b32 s{sT0}, s{sT0}, 6
    s_add_u32 s{sT0}, s{sT0}, {DBG + 0x800000}
    v_mov_b32 v11, 0
    """)
    for i in range(9): A(f"v_mov_b32 v{16+i}, s{sST+2*i}")
    A(f"""
    s_mov_b64 exec, 1
    buffer_store_dwordx4 v[16:19], v11, {srd(R_WS)}, s{sT0} offen
    buffer_store_dwordx4 v[20:23], v11, {srd(R_WS)}, s{sT0} offen offset:16
    buffer_store_dword v24, v11, {srd(R_WS)}, s{sT0} offen offset:32
    """)
if OPT["hdbg"]:
    A(f"""
    s_load_dwordx2 s[{sT2}:{sT3}], s[0:1], 120
    s_not_b32 s{sT0}, s{sST}
    v_mov_b32 v30, s{sT0}
    v_mov_b32 v31, 0
    s_waitcnt lgkmcnt(0)
    global_atomic_umax v31, v30, s[{sT2}:{sT3}]
    s_cmp_ge_u32 s{sWAVE}, 4
    s_cbranch_scc1 L_hdS
    """)
    for k, i in enumerate((0, 2, 3, 4, 5, 6, 8)):
        A(f"global_atomic_umax v31, v{16+i}, s[{sT2}:{sT3}] offset:{4*(1+k)}")
    A("s_branch L_end")
    A.label("L_hdS")
    for k, i in enumerate((1, 2, 3, 4, 5, 6, 7, 8)):
        if i in (1, 2):
            A(f"s_cmp_lg_u32 s{sWAVE}, 4")
            A(f"s_cbranch_scc1 L_hd{i}")
        A(f"global_atomic_umax v31, v{16+i}, s[{sT2}:{sT3}] offset:{4*(8+k)}")
        if i in (1, 2): A.label(f"L_hd{i}")
A.label("L_end")
A("s_endpgm")

A.label("L_S2a")
A("s_waitcnt vmcnt(0)")
A.label("L_S2")
SSEC[0] = True
kload([(R_XA, 0), (R_BRE, 24), (R_BIM, 32), (R_CRE, 40), (R_CIM, 48), (R_WO, 104), (R_AGG, 128)])
if OPT["pfc"]:
    A(f"""
    s_cmp_lg_u32 s{sWAVE}, 7
    s_cbranch_scc1 L_nopfcode
    s_getpc_b64 s[{sT0}:{sT1}]
    L_pc:
    s_sub_u32 s{sT0}, s{sT0}, L_pc-{NAME}_kernel
    s_subb_u32 s{sT1}, s{sT1}, 0
    s_lshl_b32 s{sLOOP}, s{sROT}, 13
    v_lshlrev_b32 v16, 7, v{vLANE}
    v_add_u32 v16, s{sLOOP}, v16
    v_min_u32 v16, L_hot_end-{NAME}_kernel-4, v16
    global_load_dword v{vDUM}, v16, s[{sT0}:{sT1}]
    L_nopfcode:
    """)
common_scalars()
srd_words([R_XA, R_BRE, R_BIM, R_CRE, R_CIM, R_WO, R_AGG])
A(f"""
s_lshl_b32 s{sT3}, s{sG}, 7
s_lshl_b32 s{sT4}, s{sG}, 16
s_waitcnt lgkmcnt(0)
s_mov_b64 s[{P_LRE}:{P_LRE+1}], s[{R_BRE}:{R_BRE+1}]
s_mov_b64 s[{P_LIM}:{P_LIM+1}], s[{R_BIM}:{R_BIM+1}]
s_mov_b64 s[{P_LDT}:{P_LDT+1}], s[{R_CRE}:{R_CRE+1}]
s_mov_b64 s[{P_DSK}:{P_DSK+1}], s[{R_CIM}:{R_CIM+1}]
s_mov_b64 s[{P_WV}:{P_WV+1}], s[{R_WO}:{R_WO+1}]
""")
for r, t in ((R_XA, sT2), (R_BRE, sT4), (R_BIM, sT4), (R_CRE, sT4), (R_CIM, sT4), (R_WO, sT3)):
    A(f"s_add_u32 s{r}, s{r}, s{t}")
    A(f"s_addc_u32 s{r+1}, s{r+1}, 0")
A(f"""
s_add_u32 s{R_AGG}, s{R_AGG}, {AGG}
s_addc_u32 s{R_AGG+1}, s{R_AGG+1}, 0
""")
common_after_wait(False)
if OPT["tlb"]:
    A(f"""
    s_cmp_lg_u32 s{sSW}, 2
    s_cbranch_scc1 L_notlb
    v_mov_b32 v16, 0
    s_lshl_b32 s{sT0}, s{sC}, 17
    s_add_u32 s{sT0}, s{sT0}, {HB}
    s_mov_b32 s{sT1}, {KVT}
    s_mov_b64 exec, 1
    """)
    for R in (R_XA, R_BRE, R_BIM, R_WO, R_CRE, R_CIM, R_OUT):
        A(f"buffer_load_dword v{vDUM}, v16, {srd(R)}, 0 offen")
    A(f"""
    buffer_load_dword v{vDUM}, v16, {srd(R_WS)}, s{sOB} offen sc1
    buffer_load_dword v{vDUM}, v16, {srd(R_WS)}, s{sT0} offen offset:2048 sc1
    s_mov_b64 exec, -1
    L_notlb:
    """)
A(f"""
s_add_u32 s{sROT}, s{sC}, s{sG}
s_and_b32 s{sROT}, s{sROT}, 3
v_lshrrev_b32 v20, 4, v{vLANE}
v_and_b32 v21, 15, v{vLANE}
v_lshlrev_b32 v22, 4, v21
v_lshl_add_u32 v{vBo}, v20, 14, v22
v_lshrrev_b32 v23, 1, v20
v_and_b32 v24, 1, v20
v_lshlrev_b32 v23, 15, v23
v_lshl_add_u32 v23, v24, 12, v23
v_add_u32 v{vXo}, v23, v22
v_lshlrev_b32 v{vPF}, 7, v21
s_lshl_b32 s{sT0}, s2, 11
v_add_u32 v{vPF}, s{sT0}, v{vPF}
""")
def g1_soff(s):
    A(f"""
    s_add_u32 s{sT5}, s{sROT}, {s}
    s_and_b32 s{sT5}, s{sT5}, 3
    s_lshl_b32 s{sT5}, s{sT5}, 8
    s_lshl_b32 s{sT3}, s{sSW}, 12
    s_add_u32 s{sT3}, s{sT3}, s{sT5}
    s_lshl_b32 s{sT4}, s{sTW}, 14
    s_add_u32 s{sT4}, s{sT4}, s{sT5}
    s_lshl_b32 s{sT5}, s{sCW}, 11
    s_add_u32 s{sT4}, s{sT4}, s{sT5}
    s_add_u32 s{sT5}, s{sT4}, 8192
    """)
def capw(c=None):
    c = OPT["cap"] if c is None else c
    if c: A(f"s_waitcnt vmcnt({c})")
def dma_piece(n):
    dma_piece_(n)
    capw(OPT["cap0"] if n < OPT["npre"] else None)
def dma_piece_(n):
    st, r = divmod(n, 12); i, m = divmod(r, 3)
    slot = SLOT[st % 3]
    if r == 0: g1_soff(st)
    if m == 0:
        A(f"s_add_u32 m0, s{sT7}, {slot + XA_O + i*1040 - (i>>1)*1024}")
        A("s_nop 0")
        A(f"buffer_load_dwordx4 v{vXo}, {srd(R_XA)}, s{sT5 if i & 1 else sT4} offen offset:{(i>>1)*1024} lds")
    else:
        A(f"s_add_u32 m0, s{sT7}, {slot + [0, BRE_O, BIM_O][m] + i*16}")
        A("s_nop 0")
        A(f"buffer_load_dwordx4 v{vBo}, {srd([0, R_BRE, R_BIM][m])}, s{sT3} offen offset:{i*1024} lds")
LOG2E = math.log2(math.e)
a0, a1, a2, a3, a4, a5 = PRM, PRM+1, PRM+2, 96, 97, 98
vLR, vLI = vL1, vL1 + 1
A(f"""
s_mov_b32 s{sT0}, {f2u(LOG2E)}
v_lshlrev_b32 v{a0}, 16, v{a0}
v_lshlrev_b32 v{a1}, 16, v{a1}
v_lshlrev_b32 v{a2}, 16, v{a2}
v_mul_f32 v{a2}, s{sT0}, v{a2}
v_exp_f32 v{a2}, v{a2}
s_nop 0
v_cvt_pk_bf16_f32 v{a2}, v{a2}, v{a2}
v_and_b32 v{a2}, 0xffff0000, v{a2}
v_mul_f32 v{a3}, v{a2}, v{a0}
v_mul_f32 v{a4}, v{a2}, v{a1}
v_mul_f32 v{a3}, s{sT0}, v{a3}
v_exp_f32 v{a3}, v{a3}
v_mul_f32 v{a4}, 0.15915494, v{a4}
v_fract_f32 v{a4}, v{a4}
v_cos_f32 v{vLR}, v{a4}
v_sin_f32 v{vLI}, v{a4}
s_nop 0
v_mul_f32 v{vLR}, v{a3}, v{vLR}
v_mul_f32 v{vLI}, v{a3}, v{vLI}
v_mul_f32 v{a2}, v{a0}, v{a0}
v_fmac_f32 v{a2}, v{a1}, v{a1}
v_rcp_f32 v{a2}, v{a2}
v_add_f32 v{a3}, -1.0, v{vLR}
v_mul_f32 v{a4}, v{a3}, v{a0}
v_fmac_f32 v{a4}, v{vLI}, v{a1}
v_mul_f32 v{a5}, v{vLI}, v{a0}
v_fma_f32 v{a5}, -v{a3}, v{a1}, v{a5}
v_add_f32 v{a2}, v{a2}, v{a2}
v_mul_f32 v{vCF}, v{a4}, v{a2}
v_mul_f32 v{vCF+1}, v{a5}, v{a2}
""")
def csq(d, s_):
    A(f"v_mul_f32 v{a0}, v{s_+1}, v{s_+1}")
    A(f"v_mul_f32 v{a1}, v{s_}, v{s_+1}")
    A(f"v_fma_f32 v{d}, v{s_}, v{s_}, -v{a0}")
    A(f"v_add_f32 v{d+1}, v{a1}, v{a1}")
csq(vL8, vL1); csq(vL8, vL8); csq(vL8, vL8)
csq(vL16, vL8)
csq(vL64, vL16); csq(vL64, vL64)
csq(vL512, vL64); csq(vL512, vL512); csq(vL512, vL512)
vD = PRM + 3
A(f"""
v_and_b32 v20, 1, v{vL31}
v_lshlrev_b32 v20, 4, v20
v_lshlrev_b32 v{vD}, v20, v{vD}
v_bfe_u32 v20, v{vL31}, 3, 1
v_cmp_eq_u32 vcc, v20, v{vH}
v_bfe_u32 v21, v{vL31}, 1, 2
v_lshrrev_b32 v22, 4, v{vL31}
v_cndmask_b32 v{vD}, 0, v{vD}, vcc
v_lshl_add_u32 v21, v22, 2, v21
""")
for i in range(8):
    A(f"v_cmp_eq_u32 vcc, {i}, v21")
    A("s_nop 1")
    A(f"v_cndmask_b32 v{DG+i}, 0, v{vD}, vcc")
A(f"""
v_and_b32 v20, 15, v{vL31}
v_mul_u32_u24 v20, 1040, v20
v_lshl_add_u32 v20, v{vH}, 4, v20
v_lshrrev_b32 v21, 4, v{vL31}
v_lshl_add_u32 v20, v21, 8, v20
s_lshl_b32 s{sT0}, s{sTW}, 9
v_add_u32 v{vAa[0]}, s{sT0}, v20
v_add_u32 v{vAa[1]}, {SLOT[1]}, v{vAa[0]}
s_lshl_b32 s{sT0}, s{sCW}, 9
s_add_u32 s{sT0}, s{sT0}, {BRE_O}
v_add_u32 v{vBa[0]}, s{sT0}, v20
v_add_u32 v{vBa[1]}, {SLOT[1]}, v{vBa[0]}
v_bfe_u32 v20, v{vL31}, 2, 1
v_lshlrev_b32 v20, 3, v20
v_bfe_u32 v21, v{vL31}, 4, 1
v_lshl_add_u32 v20, v21, 2, v20
v_and_b32 v21, 3, v{vL31}
v_add_u32 v20, v20, v21
v_mul_u32_u24 v20, 1040, v20
v_bfe_u32 v21, v{vL31}, 3, 1
v_lshl_add_u32 v20, v21, 8, v20
v_lshl_add_u32 v20, v{vH}, 4, v20
s_lshl_b32 s{sT0}, s{sTW}, 9
s_and_b32 s{sT1}, s{sG}, 1
s_lshl_b32 s{sT1}, s{sT1}, 7
s_add_u32 s{sT0}, s{sT0}, s{sT1}
s_lshl_b32 s{sT1}, s{sCW}, 6
s_add_u32 s{sT0}, s{sT0}, s{sT1}
s_lshr_b32 s{sLOOP}, s{sG}, 1
s_sub_u32 s{sLOOP}, s{sLOOP}, s{sROT}
s_and_b32 s{sLOOP}, s{sLOOP}, 3
s_mul_i32 s{sT1}, s{sLOOP}, {SLOT[1]}
s_cmp_eq_u32 s{sLOOP}, 3
s_cselect_b32 s{sT1}, 0, s{sT1}
s_add_u32 s{sT0}, s{sT0}, s{sT1}
v_add_u32 v{vDa}, s{sT0}, v20
s_mul_i32 s{sT7}, s{sSW}, {4*1040}
v_add_u32 v{vAa[2]}, {SLOT[2]}, v{vAa[0]}
v_add_u32 v{vBa[2]}, {SLOT[2]}, v{vBa[0]}
""")
cnt_wait(vCNT, vTMP, 6, 0, sleep=1)
cnt_wait(vCNT, vTMP, 4, 12, sleep=1)
if OPT["stgl"] > 2: cnt_wait(vCNT, vTMP, 4*OPT["stgl"], 4, sleep=2)
def pfx(items):
    if OPT["pfb"] != 2: return
    nsh = 8 if OPT["map84"] else 4
    for R, sw, shift in items:
        lbl = A.newlabel("pfx")
        A(f"""
        s_cmp_lg_u32 s{sSW}, {sw}
        s_cbranch_scc1 {lbl}
        s_and_b32 s{sT0}, s{sC}, {nsh - 1}
        s_lshl_b32 s{sT0}, s{sT0}, {shift + 6 + (0 if nsh == 8 else 1)}
        v_lshlrev_b32 v{vPF}, {shift}, v{vLANE}
        buffer_load_dword v{vDUM}, v{vPF}, {srd(R)}, s{sT0} offen
        """)
        if nsh == 4:
            A(f"s_add_u32 s{sT0}, s{sT0}, {64 << shift}")
            A(f"buffer_load_dword v{vDUM}, v{vPF}, {srd(R)}, s{sT0} offen")
        A.label(lbl)
def pf16(pairs, lbl):
    if OPT["pfb"] != 1: return
    A(f"""
    s_cmp_lg_u32 s{sSW}, 1
    s_cbranch_scc1 {lbl}
    s_mov_b64 exec, 0xffff
    """)
    for p in pairs: A(f"global_load_dword v{vDUM}, v{vPF}, s[{p}:{p+1}]")
    A(f"s_mov_b64 exec, -1\n{lbl}:")
pf16([P_LRE, P_LIM, P_WV], "L_nopfb")
cnt_wait(vCNT, vTMP, 12, 4, sleep=0)
if OPT["noS"]: A("s_branch L_fin")
prio(OPT["gprio"])
sstamp(1, 1)
NPRE = OPT["npre"]
for n in range(NPRE): dma_piece(n)
ISS = [NPRE]
A(f"s_waitcnt vmcnt({NPRE - 12})")
sstamp(2, 1)
prio(OPT["vprio"])
sync_add(False); sync_wait(0)
sstamp(3, 1)
G1B = [FRS, FRS + 12, 64]
def g1_stage(s, extra=None, nwr=None, early_add=None):
    slot = s % 3
    prio(3 if (OPT["g1p"] >> s) & 1 else OPT["gprio"])
    sk = A.newlabel("nod")
    A(f"""
    s_cmp_lg_u32 s{sLOOP}, {s}
    s_cbranch_scc1 {sk}
    ds_read_b128 v[64:67], v{vDa}
    ds_read_b128 v[68:71], v{vDa} offset:32
    s_waitcnt lgkmcnt(0)
    v_mfma_f32_32x32x16_bf16 v[{Y0}:{Y0+15}], v[64:67], v[{DG}:{DG+3}], 0
    v_mfma_f32_32x32x16_bf16 v[{Y0}:{Y0+15}], v[68:71], v[{DG+4}:{DG+7}], v[{Y0}:{Y0+15}]
    {sk}:
    """)
    def rd(k):
        f = G1B[k % 3]
        A(f"ds_read_b128 v[{f}:{f+3}], v{vAa[slot]} offset:{k*32}")
        A(f"ds_read_b128 v[{f+4}:{f+7}], v{vBa[slot]} offset:{k*32}")
        A(f"ds_read_b128 v[{f+8}:{f+11}], v{vBa[slot]} offset:{k*32 + (BIM_O-BRE_O)}")
    rd(0); rd(1)
    for k in range(8):
        f = G1B[k % 3]
        if k + 2 < 8: rd(k + 2)
        nw = nwr(k - 1) if (nwr and k > 0) else 0
        A(f"s_waitcnt lgkmcnt({min(15, 3*(min(8, k + 3) - k - 1) + nw)})")
        if k == 7 and early_add is not None:
            if early_add: A(early_add)
            sync_add(False)
        cr = "0" if (s == 0 and k == 0) else f"v[{UR}:{UR+15}]"
        ci = "0" if (s == 0 and k == 0) else f"v[{UI}:{UI+15}]"
        A(f"v_mfma_f32_32x32x16_bf16 v[{UR}:{UR+15}], v[{f}:{f+3}], v[{f+4}:{f+7}], {cr}")
        if extra: extra(k)
        A(f"v_mfma_f32_32x32x16_bf16 v[{UI}:{UI+15}], v[{f}:{f+3}], v[{f+8}:{f+11}], {ci}")
def issue_upto(lim, k, last):
    cnt = -(-(lim - ISS[0]) // max(1, last - k)) if k < last else 0
    for n in range(ISS[0], min(lim, ISS[0] + cnt)): dma_piece(n)
    ISS[0] = min(lim, ISS[0] + cnt)
L0 = OPT["l0"]
g1_stage(0, lambda k: issue_upto(L0, k, 7), early_add=f"s_waitcnt vmcnt({L0 - 24})")
assert ISS[0] == L0
sstamp(4, 1)
prio(OPT["vprio"])
pfx([(R_WO, 1, 10)])
sync_wait(0)
g1_stage(1, lambda k: issue_upto(48, k, 7), early_add="s_waitcnt vmcnt(12)")
assert ISS[0] == 48
sstamp(5, 1)
prio(OPT["vprio"])
CLR = 64
A(f"""
v_mov_b32 v{CLR}, -1
v_mov_b32 v{CLR+1}, -1
v_mov_b32 v{CLR+2}, -1
v_mov_b32 v{CLR+3}, -1
s_lshl_b32 s{sT0}, s{sG}, 12
s_add_u32 s{sT0}, s{sT0}, s{sOB}
s_lshl_b32 s{sT1}, s{sCW}, 11
s_add_u32 s{sT0}, s{sT0}, s{sT1}
buffer_store_dwordx4 v[{CLR}:{CLR+3}], v{vL16x}, {srd(R_WS)}, s{sT0} offen sc1
buffer_store_dwordx4 v[{CLR}:{CLR+3}], v{vL16x}, {srd(R_WS)}, s{sT0} offen offset:1024 sc1
v_mov_b32 v{CLR+4}, 0
v_mov_b32 v{CLR+5}, s{sTAG}
v_mov_b32 v{CLR+6}, 0
v_mov_b32 v{CLR+7}, s{sTAG}
s_lshl_b32 s{sT1}, s{sID}, 7
s_add_u32 s{sT1}, s{sT1}, {AGG_DUMMY}
s_mov_b64 exec, 1
buffer_store_dwordx4 v[{CLR+4}:{CLR+7}], v{CLR+4}, {srd(R_AGG)}, s{sT1} offen sc1
s_mov_b64 exec, -1
""")
sync_wait(0)
g1_stage(2, early_add="s_waitcnt vmcnt(0)")
sstamp(6, 1)
prio(OPT["vprio"])
pf16([P_LDT, P_DSK], "L_nopfc")
pfx([(R_CRE, 2, 7), (R_CIM, 3, 7)])
wq_voffset(5, 6, 8, 15)
A(f"""
s_mul_i32 s{sT2}, s{sSW}, {16*1040}
s_lshl_b32 s{sT3}, s{sSW}, 14
s_lshl_b32 s{sT6}, s{sSW}, 17
""")
sync_wait(0)
def wo_piece(i):
    A(f"""
    s_add_u32 m0, s{sT3}, {WO + i*1024}
    s_add_u32 s{sT1}, s{sT6}, {i*8192}
    buffer_load_dwordx4 v5, {srd(R_WO)}, s{sT1} offen lds
    """)
    capw()
def c_piece(R, base, i):
    A(f"s_add_u32 m0, s{sT2}, {base + i*1040 - (i & 3)*1024}")
    if i & 3 == 0: A(f"s_add_u32 s{sT4}, s{sT3}, {i*1024}")
    else: A("s_nop 0")
    A(f"buffer_load_dwordx4 v{vL16x}, {srd(R)}, s{sT4} offen offset:{(i & 3)*1024} lds")
    capw()
def ex3(k):
    wo_piece(2*k); wo_piece(2*k + 1)
g1_stage(3, ex3)
sstamp(7, 1); sstamp(1, 2)
prio(OPT["vprio"])
stamp(3)
A(f"""
s_lshl_b32 s{sT0}, s{sTW}, 10
s_lshl_b32 s{sT1}, s{sCW}, 8
s_add_u32 s{sT1}, s{sT1}, {EB}
s_add_u32 s{sT0}, s{sT0}, s{sT1}
v_lshlrev_b32 v10, 3, v{vL31}
v_add_u32 v11, s{sT1}, v10
v_lshl_add_u32 v10, v{vH}, 9, v10
v_add_u32 v10, s{sT0}, v10
""")
A.nop(4)
if OPT["dbg"]:
    A(f"""
    s_lshl_b32 s{sT0}, s{sID}, 2
    s_add_u32 s{sT0}, s{sT0}, s{sSW}
    s_lshl_b32 s{sT0}, s{sT0}, 13
    s_add_u32 s{sT0}, s{sT0}, {DBG}
    v_lshlrev_b32 v12, 2, v{vLANE}
    """)
    for i in range(32):
        A(f"buffer_store_dword v{UR+i}, v12, {srd(R_WS)}, s{sT0} offen")
        A(f"s_add_u32 s{sT0}, s{sT0}, 256")
    A("s_waitcnt vmcnt(0)")
def cstep4(dr, di, pr, pi, l, ur, ui, tr, ti):
    A(f"v_fma_f32 v{tr}, v{l}, v{pr}, v{ur}")
    A(f"v_fma_f32 v{ti}, v{l}, v{pi}, v{ui}")
    A(f"v_fma_f32 v{dr}, -v{l+1}, v{pi}, v{tr}")
    A(f"v_fma_f32 v{di}, v{l+1}, v{pr}, v{ti}")
def p2(r): return f"v[{r}:{r+1}]"
def pkstep(dr, di, pr, pi, l, ur, ui, tr, ti):
    A(f"v_pk_fma_f32 {p2(tr)}, {p2(l)}, {p2(pr)}, {p2(ur)} op_sel_hi:[0,1,1]")
    A(f"v_pk_fma_f32 {p2(ti)}, {p2(l)}, {p2(pi)}, {p2(ui)} op_sel_hi:[0,1,1]")
    A(f"v_pk_fma_f32 {p2(dr)}, {p2(l)}, {p2(pi)}, {p2(tr)} op_sel:[1,0,0] neg_lo:[1,0,0] neg_hi:[1,0,0]")
    A(f"v_pk_fma_f32 {p2(di)}, {p2(l)}, {p2(pr)}, {p2(ti)} op_sel:[1,0,0]")
pa = [(FRS, FRS+2), (6, 8)]
p = (UR, UI)
for j in range(1, 8):
    d = pa[j & 1]
    pkstep(d[0], d[1], p[0], p[1], vL1, UR+2*j, UI+2*j, FRS+4, FRS+6)
    p = d
EA = (6, 8)
cstep4(FRS, FRS+1, 6, 8, vL8, 7, 9, FRS+4, FRS+5)
A(f"ds_write_b64 v10, v[{FRS}:{FRS+1}]")
A("s_waitcnt vmcnt(0)")
sync_add()
LB = 64
A(f"""
s_lshl_b32 s{sT0}, s{sTW}, 4
s_sub_u32 s{sT0}, s{sC}, s{sT0}
s_sub_u32 s{sT0}, s{sT0}, 1
s_lshl_b32 s{sT0}, s{sT0}, 13
v_lshlrev_b32 v5, 16, v{vH}
v_sub_u32 v5, s{sT0}, v5
v_lshl_add_u32 v5, v{vP2}, 3, v5
s_lshl_b32 s{sT1}, s{sID}, 7
s_add_u32 s{sT1}, s{sT1}, {AGG_DUMMY}
""")
for k in range(8):
    A(f"v_min_u32 v{96+k}, s{sT1}, v5")
    if k < 7: A(f"v_add_u32 v5, {(-8192) & 0xffffffff}, v5")
sync_wait(0)
sstamp(2, 2)
E = FRS
for s in range(4):
    A(f"ds_read_b64 v[{E+2*s}:{E+2*s+1}], v11 offset:{s*512}")
A("s_waitcnt lgkmcnt(0)")
A1, A2, G3 = (104, 105), (106, 107), 108
cstep4(A1[0], A1[1], E, E+1, vL16, E+2, E+3, FRS+8, FRS+9)
cstep4(A2[0], A2[1], A1[0], A1[1], vL16, E+4, E+5, FRS+8, FRS+9)
vPR, vPI, vW = 12, 13, 14
tw1 = A.newlabel("tw1"); twd = A.newlabel("twd")
A(f"""
v_cmp_eq_u32 vcc, 1, v{vH}
s_cmp_lg_u32 s{sTW}, 0
s_cbranch_scc1 {tw1}
""")
cstep4(G3, G3+2, A2[0], A2[1], vL16, E+6, E+7, FRS+8, FRS+9)
A(f"""
v_mov_b32 v{G3+1}, s{sTAG}
v_mov_b32 v{G3+3}, s{sTAG}
v_lshlrev_b32 v7, 3, v{vP2}
s_lshl_b32 s{sT0}, s{sC}, 13
s_mov_b32 exec_hi, 0
buffer_store_dwordx4 v[{G3}:{G3+3}], v7, {srd(R_AGG)}, s{sT0} offen sc1
s_mov_b32 exec_hi, -1
v_cndmask_b32 v{vPR}, 0, v{E}, vcc
v_cndmask_b32 v{vPI}, 0, v{E+1}, vcc
v_cndmask_b32 v{vW}, 1.0, v{vL16}, vcc
v_cndmask_b32 v{vW+1}, 0, v{vL16+1}, vcc
s_branch {twd}
{tw1}:
v_cndmask_b32 v{vPR}, v{A1[0]}, v{A2[0]}, vcc
v_cndmask_b32 v{vPI}, v{A1[1]}, v{A2[1]}, vcc
v_mul_f32 v{FRS+8}, v{vL16+1}, v{vL16+1}
v_mul_f32 v{FRS+9}, v{vL16}, v{vL16+1}
v_fma_f32 v{FRS+8}, v{vL16}, v{vL16}, -v{FRS+8}
v_add_f32 v{FRS+9}, v{FRS+9}, v{FRS+9}
v_mul_f32 v{FRS+10}, v{FRS+8}, v{vL16}
v_mul_f32 v{FRS+11}, v{FRS+8}, v{vL16+1}
v_fma_f32 v{FRS+10}, -v{FRS+9}, v{vL16+1}, v{FRS+10}
v_fma_f32 v{FRS+11}, v{FRS+9}, v{vL16}, v{FRS+11}
v_cndmask_b32 v{vW}, v{FRS+8}, v{FRS+10}, vcc
v_cndmask_b32 v{vW+1}, v{FRS+9}, v{FRS+11}, vcc
{twd}:
""")
A(f"s_mov_b32 s{sSPIN}, 0")
A(f"""
s_lshl_b32 s{sT0}, s{sSW}, 12
s_add_u32 s{sT0}, s{sT0}, {TB}
v_lshlrev_b32 v9, 6, v{vL31}
v_lshl_add_u32 v9, v{vH}, 5, v9
v_add_u32 v9, s{sT0}, v9
v_bfe_u32 v108, v{vLANE}, 2, 2
v_lshl_add_u32 v108, v{vH}, 3, v108
v_lshlrev_b32 v108, 6, v108
v_bfe_u32 v109, v{vLANE}, 4, 1
v_lshl_add_u32 v108, v109, 5, v108
v_and_b32 v109, 3, v{vLANE}
v_lshl_add_u32 v108, v109, 3, v108
v_add_u32 v108, s{sT0}, v108
""")
A(f"""
v_bfe_u32 v5, v{vLANE}, 2, 2
v_lshl_add_u32 v5, v{vH}, 2, v5
v_bfe_u32 v7, v{vLANE}, 4, 1
v_and_b32 v110, 3, v{vLANE}
v_lshlrev_b32 v110, 3, v110
v_lshl_add_u32 v110, v7, 5, v110
v_bfe_u32 v7, v{vLANE}, 3, 1
v_lshl_add_u32 v110, v7, 6, v110
v_lshl_add_u32 v110, v5, 7, v110
s_lshl_b32 s{sT0}, s{sCW}, 13
s_add_u32 s{sT0}, s{sT0}, {WO}
s_lshl_b32 s{sT1}, s{sCW}, 6
v_xor_b32 v110, s{sT1}, v110
v_xor_b32 v111, 64, v110
v_add_u32 v110, s{sT0}, v110
v_add_u32 v111, s{sT0}, v111
""")
for j in range(16):
    for nt in range(2):
        f = 8*j + 4*nt
        A(f"ds_read_b64_tr_b16 a[{f}:{f+1}], v{110 + nt} offset:{(j>>2)*16384 + (j&3)*2048}")
        A(f"ds_read_b64_tr_b16 a[{f+2}:{f+3}], v{110 + nt} offset:{(j>>2)*16384 + (j&3)*2048 + 1024}")
    if j % 3 == 2: A("s_waitcnt lgkmcnt(3)")
prio(OPT["gprio"])
for i in range(OPT["cim1"]): c_piece(R_CIM, CIM, i)
prio(OPT["vprio"])
sstamp(3, 2)
A.label("L_lb")
for k in range(8):
    A(f"buffer_load_dwordx4 v[{LB+4*k}:{LB+4*k+3}], v{96+k}, {srd(R_AGG)}, 0 offen sc1")
A(f"""
s_add_u32 s{sSPIN}, s{sSPIN}, 1
s_waitcnt vmcnt(0)
v_min_u32 v5, v{LB+1}, v{LB+3}
v_max3_u32 v7, s{sTAG}, v{LB+1}, v{LB+3}
""")
for k in range(1, 8):
    A(f"v_min3_u32 v5, v5, v{LB+4*k+1}, v{LB+4*k+3}")
    A(f"v_max3_u32 v7, v7, v{LB+4*k+1}, v{LB+4*k+3}")
A(f"""
v_min_u32 v5, s{sTAG}, v5
v_cmp_ne_u32 vcc, v5, v7
s_cbranch_vccz L_lbd
s_sleep 8
s_cmp_lt_u32 s{sSPIN}, {SPIN_MAX}
s_cbranch_scc1 L_lb
L_lbd:
""")
stamp(4); sstamp(4, 2)
p = (LB+28, LB+30)
pb = [(96, 97), (98, 99)]
for k in range(6, -1, -1):
    d = pb[k & 1]
    cstep4(d[0], d[1], p[0], p[1], vL64, LB+4*k, LB+4*k+2, 100, 101)
    p = d
A(f"ds_write_b64 v10, v[96:97] offset:{HP-EB}")
sync_add(); sync_wait(0)
sstamp(5, 2)
for s in range(4):
    A(f"ds_read_b64 v[{E+2*s}:{E+2*s+1}], v11 offset:{HP - EB + s*512}")
A("s_waitcnt lgkmcnt(0)")
p = (E+6, E+7)
for s in range(2, -1, -1):
    d = pb[s & 1]
    cstep4(d[0], d[1], p[0], p[1], vL512, E+2*s, E+2*s+1, 100, 101)
    p = d
CRp, CIp = 104, 106
cstep4(CRp, CIp, p[0], p[1], vW, vPR, vPI, 100, 101)
cstep4(CRp+1, CIp+1, CRp, CIp, vL8, EA[0], EA[1], 100, 101)
HR, HI = FRS, FRS+8
p = (CRp, CIp)
for j in range(8):
    pkstep(UR+2*j, UI+2*j, p[0], p[1], vL1, UR+2*j, UI+2*j, 100, 102)
    p = (UR+2*j, UI+2*j)
    if OPT['cpos'] == 0: c_piece(R_CRE, CRE, 2*j)
    A(f"v_pk_mul_f32 {p2(96)}, {p2(vCF)}, {p2(UI+2*j)} op_sel:[1,0]")
    A(f"v_pk_mul_f32 {p2(98)}, {p2(vCF)}, {p2(UR+2*j)} op_sel:[1,0]")
    A(f"v_pk_fma_f32 {p2(96)}, {p2(vCF)}, {p2(UR+2*j)}, {p2(96)} op_sel_hi:[0,1,1] neg_lo:[0,0,1] neg_hi:[0,0,1]")
    A(f"v_pk_fma_f32 {p2(98)}, {p2(vCF)}, {p2(UI+2*j)}, {p2(98)} op_sel_hi:[0,1,1] neg_lo:[1,0,1] neg_hi:[1,0,1]")
    if OPT['cpos'] == 0: c_piece(R_CRE, CRE, 2*j + 1)
    A(f"v_cvt_pk_bf16_f32 v{HR+j}, v96, v97")
    A(f"v_cvt_pk_bf16_f32 v{HI+j}, v98, v99")
    if j == 3:
        A(f"ds_write_b128 v9, v[{HR}:{HR+3}]")
        A(f"ds_write_b128 v9, v[{HI}:{HI+3}] offset:2048")
A(f"""
ds_write_b128 v9, v[{HR+4}:{HR+7}] offset:16
ds_write_b128 v9, v[{HI+4}:{HI+7}] offset:2064
s_lshl_b32 s{sKOFF}, s{sC}, 1
s_add_u32 s{sKOFF}, s{sKOFF}, s{sTW}
s_lshl_b32 s{sKOFF}, s{sKOFF}, 16
s_add_u32 s{sKOFF}, s{sKOFF}, {HB}
s_lshl_b32 s{sT1}, s{sG}, 12
s_lshl_b32 s{sT7}, s{sCW}, 11
s_add_u32 s{sT1}, s{sT1}, s{sT7}
s_add_u32 s{sT0}, s{sKOFF}, s{sT1}
s_add_u32 s{sT1}, s{sT0}, 32768
s_waitcnt lgkmcnt(0)
""")
for part in range(2):
    for hf in range(2):
        f = 64 + 8*part + 4*hf
        A(f"ds_read_b64_tr_b16 v[{f}:{f+1}], v108 offset:{part*2048 + hf*1024}")
        A(f"ds_read_b64_tr_b16 v[{f+2}:{f+3}], v108 offset:{part*2048 + hf*1024 + 256}")
for n in range(4):
    A(f"s_waitcnt lgkmcnt({6 - 2*n})")
    A(f"buffer_store_dwordx4 v[{64+4*n}:{67+4*n}], v{vL16x}, {srd(R_WS)}, s{sT0 if n < 2 else sT1} offen offset:{(n&1)*1024} sc1")
A(f"""
s_lshl_b32 s{sT7}, s{sC}, 12
s_add_u32 s{sT7}, s{sT7}, {FL3}
v_and_b32 v5, 15, v{vLANE}
v_lshlrev_b32 v5, 8, v5
s_lshl_b32 s{sT0}, s{sTW}, 7
s_add_u32 s{sT0}, s{sT0}, s{sT7}
v_add_u32 v5, s{sT0}, v5
v_mov_b32 v12, s{sTAG}
v_mov_b32 v13, 0
s_lshl_b32 s{sT1}, s{sG}, 2
s_add_u32 s{sT1}, s{sT1}, s{sSW}
s_lshl_b32 s{sT1}, s{sT1}, 7
s_add_u32 s{sT1}, s{sT1}, s{sT7}
""")
sstamp(6, 2)
A("s_waitcnt vmcnt(0)")
sstamp(7, 2); sstamp(1, 3)
A(f"""
s_mov_b64 exec, 1
buffer_store_dword v12, v13, {srd(R_WS)}, s{sT1} offen sc1
ds_add_u32 v{vCNT}, v{vONE} offset:28
s_mov_b64 exec, -1
""")
A(f"""
v_bfe_u32 v6, v{vLANE}, 4, 1
v_and_b32 v7, 15, v{vLANE}
v_lshlrev_b32 v7, 4, v7
v_lshl_add_u32 v7, v6, 9, v7
v_lshl_add_u32 v7, v{vH}, 15, v7
s_lshr_b32 s{sT5}, s{sT2}, 1
s_lshr_b32 s{sT6}, s{sT3}, 1
""")
prio(OPT["gprio"])
for half, base in ((0, CREA), (1, CREB)):
    for i in range(8):
        A(f"s_add_u32 m0, s{sT5}, {base + i*1040 - (i & 3)*1024}")
        if i & 3 == 0: A(f"s_add_u32 s{sT4}, s{sT6}, {i*1024 + half*256}")
        else: A("s_nop 0")
        A(f"buffer_load_dwordx4 v7, {srd(R_CRE)}, s{sT4} offen offset:{(i & 3)*1024} lds")
        capw()
prio(OPT["vprio"])
stamp(5, not HST)
A(f"""
v_mul_u32_u24 v10, 1040, v{vL31}
v_lshl_add_u32 v10, v{vH}, 4, v10
s_mul_i32 s{sT0}, s{sCW}, {512 + 32*1040}
s_mul_i32 s{sT1}, s{sCW}, {(512 - 32*1040) & 0xffffffff}
s_add_u32 s{sT1}, s{sT1}, {32*1040}
s_mul_i32 s{sT5}, s{sCW}, 768
s_mul_i32 s{sT6}, s{sCW}, {(-256) & 0xffffffff}
s_add_u32 s{sT5}, s{sT5}, {CREB}
s_add_u32 s{sT6}, s{sT6}, {CREB + 512}
v_add_u32 v14, s{sT5}, v10
v_add_u32 v15, s{sT6}, v10
v_add_u32 v11, s{sT1}, v10
v_add_u32 v10, s{sT0}, v10
s_lshl_b32 s{sT1}, s{sCW}, 14
s_add_u32 s{sKOFF}, s{sKOFF}, s{sT1}
s_lshl_b32 s{sT1}, s{sCW}, 12
s_add_u32 s{sOB}, s{sOB}, s{sT1}
s_xor_b32 s{sT0}, s{sSW}, 2
s_lshl_b32 s{sT0}, s{sT0}, 12
v_add_u32 v114, s{sT0}, v{vL16x}
s_lshl_b32 s{sT0}, s{sSW}, 12
v_add_u32 v115, s{sT0}, v{vL16x}
v_add_u32 v119, {TBY}, v114
v_add_u32 v120, {TBY}, v115
s_lshl_b32 s{sT0}, s{sTW}, 17
s_lshl_b32 s{sT1}, s{sG}, 8
s_add_u32 s{sT0}, s{sT0}, s{sT1}
s_lshl_b32 s{sT1}, s{sCW}, 7
s_add_u32 s{sT0}, s{sT0}, s{sT1}
v_lshlrev_b32 v113, 2, v{vL31}
v_add_u32 v113, s{sT0}, v113
v_lshl_add_u32 v118, v{vH}, 14, v113
v_add_u32 v118, 2048, v118
v_lshl_add_u32 v113, v{vH}, 13, v113
""")
sstamp(2, 3)
poll_flags(5, 12, 1, sleep=OPT['sl2'])
if OPT["cpos"] == 1: sync_add(False)
sstamp(3, 3)
LA = 7
HRING = 16
def hreg(j): return HRING + 4*(j % 8)
def h_ld(j):
    if j == 16: A(f"s_add_u32 s{sKOFF}, s{sKOFF}, {32768 - 3*4096}")
    elif j % 4 == 0 and j > 0: A(f"s_add_u32 s{sKOFF}, s{sKOFF}, 4096")
    A(f"buffer_load_dwordx4 v[{hreg(j)}:{hreg(j)+3}], v{vL16x}, {srd(R_WS)}, s{sKOFF} offen offset:{(j%4)*1024} sc1")
for j in range(LA): h_ld(j)
def g2_rd(j):
    f = FRS + 8*(j % 3)
    off = (CREA - CREB + j*32) if j < 8 else ((j - 8)*32 if j < 16 else (j - 16)*32)
    A(f"ds_read_b128 v[{f}:{f+3}], v{14 if j < 16 else 10} offset:{off}")
    A(f"ds_read_b128 v[{f+4}:{f+7}], v{15 if j < 16 else 11} offset:{off}")
def g2_mfma(j):
    f = FRS + 8*(j % 3)
    c = "0" if j == 0 else f"v[{Y1}:{Y1+15}]"
    A(f"v_mfma_f32_32x32x16_bf16 v[{Y1}:{Y1+15}], v[{hreg(j)}:{hreg(j)+3}], v[{f+4}:{f+7}], {c}")
    A(f"v_mfma_f32_32x32x16_bf16 v[{Y0}:{Y0+15}], v[{hreg(j)}:{hreg(j)+3}], v[{f}:{f+3}], v[{Y0}:{Y0+15}]")
sync_wait(0)
prio(3 if OPT["g2p"] & 1 else OPT["gprio"])
g2_rd(0); g2_rd(1)
VQ = list(range(LA))
P2 = 32 - OPT["p2n"]
assert 8 <= P2 <= 14
for j in range(32):
    if j == P2:
        prio(OPT["vprio"])
        A("s_waitcnt vmcnt(0)")
        sync_add(False); sync_wait()
        cnt_wait(vCNT, vTMP, 8, 12, sleep=OPT['sl1'])
        sstamp(6, 3); sstamp(1, 4)
        prio(3 if OPT["g2p"] & 2 else OPT["gprio"])
    if j + LA < 32:
        h_ld(j + LA); VQ.append(j + LA)
    if j < 8:
        for i in range(OPT["cim1"], 16)[2*j:2*j + 2]:
            if i == OPT["cim1"] and i & 3: A(f"s_add_u32 s{sT4}, s{sT3}, {(i & ~3)*1024}")
            c_piece(R_CIM, CIM, i); VQ.append(-1)
    if j + 2 < 32: g2_rd(j + 2)
    issued = min(32, j + 3)
    A(f"s_waitcnt vmcnt({len(VQ) - 1 - VQ.index(j)}) lgkmcnt({2*(issued - j - 1)})")
    if j == 0: sstamp(4, 3)
    if j == 7:
        cnt_add(vCNT, vONE, 8)
        stamp(6, not HST); sstamp(5, 3)
    g2_mfma(j)
prio(OPT["vprio"])
stamp(7); sstamp(7, 3); sstamp(2, 4)
cnt_wait(vCNT, vTMP, 12, 12)
sstamp(3, 4)
def oreg(j): return (16 + 4*j) if j < 8 else (80 + 4*(j - 8))
def o_loads(g4):
    A(f"s_add_u32 s{sT1}, s{sOB}, {g4*8192}")
    for j in range(4*g4, 4*g4 + 4):
        A(f"buffer_load_dwordx4 v[{oreg(j)}:{oreg(j)+3}], v{vL16x}, {srd(R_WS)}, s{sT1} offen offset:{(j%4)*1024} sc1")
if OPT["ofirst"]: o_loads(0)
else: A.nop(4)
for i in range(4):
    A(f"ds_write_b128 v119, v[{Y1+4*i}:{Y1+4*i+3}] offset:{i*1024}")
if OPT["ofirst"]:
    for g4 in range(1, 4): o_loads(g4)
sync_add(); sync_wait(0)
for i in range(4):
    A(f"ds_read_b128 v[{Y1+4*i}:{Y1+4*i+3}], v120 offset:{i*1024}")
for i in range(16):
    if i % 4 == 0: A(f"s_waitcnt lgkmcnt({3 - i//4})")
    A(f"v_add_f32 v{Y0+i}, v{Y0+i}, v{Y1+i}")
    A(f"s_mov_b32 s{sT1}, {(16*(i>>3) + 4*((i>>2)&1) + ((i>>1)&1) + 8*(i&1))*4096}")
    A(f"buffer_store_dword v{Y0+i}, v113, {srd(R_OUT)}, s{sT1} offen{OST}")
if not OPT["ofirst"]:
    if OPT["oack"] == 2: cnt_wait(vCNT, vTMP, 16, 12)
    for g4 in range(4): o_loads(g4)
A(f"s_mov_b32 s{sSPIN}, 0")
NY0 = 16 - OPT["y1f"]
def y0_mfma(j):
    c0 = "0" if j == 0 else f"v[{Y0}:{Y0+15}]"
    A(f"v_mfma_f32_32x32x16_bf16 v[{Y0}:{Y0+15}], v[{oreg(j)}:{oreg(j)+3}], a[{8*j}:{8*j+3}], {c0}")
for g4 in range(4):
    lp = A.newlabel("op"); dn = A.newlabel("opd"); ck = A.newlabel("opc")
    j0 = 4*g4
    A(f"s_waitcnt vmcnt({(16 if OPT['ofirst'] else 0) + 4*(3 - g4)})")
    A.label(ck)
    A(f"v_max_u32 v13, v{oreg(j0)+1}, v{oreg(j0)+3}")
    for j in range(j0 + 1, j0 + 4):
        A(f"v_max3_u32 v13, v13, v{oreg(j)+1}, v{oreg(j)+3}")
    A(f"""
    v_cmp_eq_u32 vcc, -1, v13
    s_cbranch_vccz {dn}
    s_add_u32 s{sSPIN}, s{sSPIN}, 1
    s_cmp_gt_u32 s{sSPIN}, 20000
    s_cbranch_scc1 {dn}
    """)
    if OPT["osl"]: A(f"s_sleep {OPT['osl']}")
    o_loads(g4)
    A(f"""
    s_waitcnt vmcnt(0)
    s_branch {ck}
    {dn}:
    """)
    if g4 in (0, 3): sstamp(4 + g4 // 3, 4)
    for j in range(j0, j0 + 4):
        c0 = "0" if j == 0 else f"v[{Y0}:{Y0+15}]"
        c1 = "0" if j == 0 else f"v[{Y1}:{Y1+15}]"
        A(f"v_mfma_f32_32x32x16_bf16 v[{Y1}:{Y1+15}], v[{oreg(j)}:{oreg(j)+3}], a[{8*j+4}:{8*j+7}], {c1}")
        if j < NY0: y0_mfma(j)
if OPT["sst"] == 4: A(f"s_mov_b32 s{sST+14}, s{sSPIN}")
rest = list(range(NY0, 16))
n1 = min(len(rest), 3); n2 = min(len(rest) - n1, 4)
for j in rest[:n1]: y0_mfma(j)
A.nop(12 - n1 - (1 if NY0 == 16 else 0))
for i in range(4):
    A(f"ds_write_b128 v114, v[{Y1+4*i}:{Y1+4*i+3}] offset:{TB2 + i*1024}")
for j in rest[n1:n1 + n2]: y0_mfma(j)
A("s_waitcnt lgkmcnt(0)")
A("s_barrier")
sstamp(6, 4)
for i in range(4):
    A(f"ds_read_b128 v[{Y1+4*i}:{Y1+4*i+3}], v115 offset:{TB2 + i*1024}")
for j in rest[n1 + n2:]: y0_mfma(j)
if rest: A.nop(12 if rest[n1 + n2:] else 6)
for i in range(16):
    if i % 4 == 0: A(f"s_waitcnt lgkmcnt({3 - i//4})")
    A(f"v_add_f32 v{Y0+i}, v{Y0+i}, v{Y1+i}")
    A(f"s_mov_b32 s{sT1}, {(8*(i>>2) + (i&3))*4096}")
    A(f"buffer_store_dword v{Y0+i}, v118, {srd(R_OUT)}, s{sT1} offen{OSTB}")
A("s_branch L_fin")

A.label("L_hot_end")
A.label("L_slow")
A(f"""
s_cmp_lg_u32 s{sDONE}, 0
s_cbranch_scc1 L_fast
s_mov_b32 s{sDONE}, 1
s_waitcnt lgkmcnt(0)
""")
def a_sync():
    A(f"s_add_u32 s{sATG}, s{sATG}, 4")
    A("s_waitcnt lgkmcnt(0)")
    cnt_add(vCNT, vIDX, 4)
    cnt_wait(vCNT, 16, f"s{sATG}", 4, sleep=2)
for i in range(4): A(f"v_mov_b32 v{vZ+i}, 0")
for ct in range(8): A(f"v_mov_b32 v{vM+ct}, 0xff800000")
A("s_nop 1")
for ct in range(8):
    A(f"v_mfma_f32_32x32x16_bf16 a[{16*ct}:{16*ct+15}], v[{vZ}:{vZ+3}], v[{vZ}:{vZ+3}], 0")
A(f"s_mov_b32 s{sLOOP}, 16")
def adv():
    A(f"s_add_u32 s{sKOFF}, s{sKOFF}, {KVS}"); A(f"s_and_b32 s{sKOFF}, s{sKOFF}, 0xffff")
A.label("L_sl1")
ld_k(0, 0); adv()
A("s_waitcnt vmcnt(0)")
for ct in range(8):
    A(f"v_mfma_f32_32x32x16_bf16 v[{S0}:{S0+15}], v[{KV[0]}:{KV[0]+3}], v[{QF+4*ct}:{QF+4*ct+3}], 0")
    A.nop(12)
    for i in range(8):
        A(f"v_max3_f32 v{vM+ct}, v{S0+2*i}, v{S0+2*i+1}, v{vM+ct}")
A(f"""
s_sub_u32 s{sLOOP}, s{sLOOP}, 1
s_cmp_lg_u32 s{sLOOP}, 0
s_cbranch_scc1 L_sl1
s_lshl_b32 s{sT0}, s{sWAVE}, 11
s_add_u32 s{sT0}, s{sT0}, {CB}
v_lshlrev_b32 v8, 2, v{vLANE}
v_add_u32 v8, s{sT0}, v8
v_lshlrev_b32 v10, 2, v{vL31}
v_add_u32 v10, {CB}, v10
""")
a_sync()
def pair_off(pr):
    A(f"s_add_u32 s{sT0}, s{sWAVE}, {pr + 1}")
    A(f"s_and_b32 s{sT0}, s{sT0}, 3")
    A(f"s_lshl_b32 s{sT0}, s{sT0}, 9")
for pr in range(4):
    pair_off(pr)
    A(f"v_add_u32 v9, s{sT0}, v8")
    A(f"ds_write_b32 v9, v{vM+2*pr}")
    A(f"ds_write_b32 v9, v{vM+2*pr+1} offset:256")
a_sync()
for ct in range(8):
    if ct % 2 == 0:
        pair_off(ct // 2)
        A(f"v_add_u32 v9, s{sT0}, v10")
    for w in range(4):
        A(f"ds_read_b32 v{S0+2*w}, v9 offset:{w*2048 + (ct%2)*256}")
        A(f"ds_read_b32 v{S0+2*w+1}, v9 offset:{w*2048 + (ct%2)*256 + 128}")
    A("s_waitcnt lgkmcnt(0)")
    for w in range(4):
        A(f"v_max3_f32 v{vM+ct}, v{S0+2*w}, v{S0+2*w+1}, v{vM+ct}")
a_sync()
A(f"s_mov_b32 s{sLOOP}, 16")
A.label("L_sl2")
ld_k(0, 0); ld_v(0, 0, 0); ld_v(0, 1, 0); adv()
A("s_waitcnt vmcnt(0)")
for ct in range(8):
    A(f"v_mfma_f32_32x32x16_bf16 v[{S0}:{S0+15}], v[{KV[0]}:{KV[0]+3}], v[{QF+4*ct}:{QF+4*ct+3}], 0")
    A.nop(12)
    for i in range(16):
        A(f"v_sub_f32 v{S0+i}, v{S0+i}, v{vM+ct}")
    for i in range(16):
        A(f"v_exp_f32 v{S0+i}, v{S0+i}")
    A.nop(2)
    A(f"v_smfmac_f32_32x32x32_bf16 a[{16*ct}:{16*ct+15}], v[{KV[0]+4}:{KV[0]+7}], v[{S0}:{S0+7}], v{vIDX}")
    A(f"v_smfmac_f32_32x32x32_bf16 a[{16*ct}:{16*ct+15}], v[{KV[0]+8}:{KV[0]+11}], v[{S0+8}:{S0+15}], v{vIDX}")
A(f"""
s_sub_u32 s{sLOOP}, s{sLOOP}, 1
s_cmp_lg_u32 s{sLOOP}, 0
s_cbranch_scc1 L_sl2
s_nop 15
""")
for ct in range(6): part_write(ct)
A("s_waitcnt lgkmcnt(0)")
cnt_add(vCNT, vIDX, 4)
A(f"""
s_add_u32 s{sATG}, s{sATG}, 4
s_branch L_comb
""")

if OPT["xm"] or OPT["xv"] or OPT["xl"]:
    i0 = A.lines.index("L_S2:"); i1 = A.lines.index("L_hot_end:")
    seen = False
    for i in range(i0, i1):
        t = A.lines[i].strip()
        if t.startswith("ds_write_b128") : seen = True
        if not seen: continue
        if OPT["xm"] and t.startswith("v_mfma"): A.lines[i] = "    s_nop 7"
        if OPT["xv"] and (t.startswith(("v_pk_", "v_fma_f32", "v_cvt_pk", "v_mul_f32", "v_add_f32"))): A.lines[i] = "    s_nop 1"
        if OPT["xl"] and t.startswith(("ds_read_b128", "ds_write_b128")): A.lines[i] = "    s_nop 0"
hdr = open("cdna_kernels/" + NAME + ".s.ref").read().split("; Override launch")[0]
out = hdr + f"""; Fused single-launch kernel: 256 workgroups x 8 waves (4 attention waves + 4 SSM waves). Generated by gen/gen16.py.
; @launch grid=(256,1,1) block=(512,1,1) lds={LDS_BYTES}
.amdgcn_target "amdgcn-amd-amdhsa--gfx950"
.text
.globl {NAME}_kernel
.p2align 8
.type {NAME}_kernel,@function
{NAME}_kernel:
""" + A.text() + f""".section .rodata,"a"
.p2align 6
.amdhsa_kernel {NAME}_kernel
  .amdhsa_next_free_vgpr 256
  .amdhsa_next_free_sgpr 102
  .amdhsa_accum_offset 128
  .amdhsa_group_segment_fixed_size 0
  .amdhsa_kernarg_size 136
  .amdhsa_user_sgpr_count 2
  .amdhsa_user_sgpr_kernarg_segment_ptr 1
  .amdhsa_system_sgpr_workgroup_id_x 1
.end_amdhsa_kernel
"""
open(sys.argv[1], "w").write(out)
errs = check(A.lines) + check(A.lines[loop_end-60:loop_end] + A.lines[loop_start:loop_start+60])
for e in errs: print("HAZARD:", e)
print(f"{len(A.lines)} lines, {len(errs)} hazards")
```

```python
import sys, math, struct
from asmlib import *

OPT = dict(dbg=0, force_slow=0, stamps=0, noS=0, cyc=0, ost=2, gprio=0, vprio=3, hst=0, stgwin=8, pfq=0, pfb=2, stgl=2, qpre=2,
           pfc=1, ssl=2, la=8, sst=0, win0=0, trig=6, odel=0, sgate=2, map84=1, g1p=0, g2p=0, noKV=0, nochk=0, wq1=12, cpos=1, hdbg=0, p2n=20, oack=2, cim1=0, npre0=0, mid=0, sl1=2, sl2=2, sl0=0, tlb=0, pad=0, padat=0, p1at=3, e0c=24, q1a=2, p1k=26, kv0=4, g0=0, ofirst=0, xm=0, xv=0, xl=0, npre=15, l0=30, ostb=2, cap=6, cap0=8, enc=0, encS=0, aprio=3, y1f=7, osl=0, q2w=1, osplit=0, lbs=4)
for a in sys.argv[2:]:
    k, v = a.split("=")
    assert k in OPT, k
    OPT[k] = int(v)

NAME = "concat_heads__ssm_conv_s5__grouped_kv_mqa__prompt"
def f2u(x): return struct.unpack("<I", struct.pack("<f", x))[0]

XQ, WQ = 0, 66560
KVX, WKV = 3*16640, 66560 + 3*16384
SLOT = [0, 49920, 99840]
XA_O, BRE_O, BIM_O = 0, 16640, 33280
CIM, CRE = 0, 66560
CB_T = 2304
CB = 133120 - 12*CB_T
def cb_off(slot): return (12 + slot)*CB_T if slot < 3 else (slot - 3)*CB_T
TB = 140288
TBY = CB
CREA, CREB = 99840, 66560
WO = 66560
TB2 = 0
QX = 149760; EB = 157952; HP = 160000; CNT = 162048; QM = 162064; KM = 162068; CNT4 = 24
assert CB + 24*CB_T <= CNT
assert TB + 16384 <= EB
LDS_BYTES = 163840
FL1, FL3 = 0x1000, 0x9000
KVT = 0x80000; KVS = 4096
AGG = 0x30000; AGG_DUMMY = 32*8192; AGG_SIZE = AGG_DUMMY + 256*128
OB, HB = 0x100000, 0x400000
DBG = 0x1000000
WS_SIZE = 0x2000000
assert AGG + AGG_SIZE <= KVT
sWAVE, sC, sG, sTAG, sID = 3, 4, 5, 6, 7
R_XB, R_WQ, R_WKV, R_XA, R_BRE, R_BIM, R_CRE, R_CIM, R_WO, R_OUT, R_WS, R_AGG = 8, 12, 16, 20, 24, 28, 32, 36, 40, 44, 48, 52
P_LRE, P_LIM, P_LDT, P_DSK, P_WV = 56, 58, 60, 62, 64
sEP, sDONE = 66, 67
sT0, sT1, sT2, sT3, sT4, sT5 = 68, 69, 70, 71, 72, 73
sT6, sSPIN = 74, 75
sTW, sCW = 76, 77
sLOOP, sKOFF, sROT, sSW = 78, 79, 80, 81
sOB, sT7 = 82, 83
sATG = 65
sST = 84
def srd(r): return f"s[{r}:{r+3}]"

A = Asm()
OST = ["", " sc1", " nt", " sc0 sc1", " sc1 nt"][OPT["ost"]]
OSTB = OST if OPT["ostb"] < 0 else ["", " sc1", " nt", " sc0 sc1", " sc1 nt"][OPT["ostb"]]
SPIN_MAX = 200000
HST = OPT["hst"]

SSEC = [False]
def sstamp(i, mode):
    if OPT["stamps"] and OPT["sst"] == mode:
        A(f"s_memrealtime s[{sST+2*i}:{sST+2*i+1}]")
def stamp(i, cond=True):
    if (OPT["enc"] or OPT["encS"]) and cond and (i == 0 or (SSEC[0] and i == OPT["encS"]) or (not SSEC[0] and i == OPT["enc"])):
        A(f"s_memrealtime s[{98 if i == 0 else 94}:{99 if i == 0 else 95}]")
        if i == 0: A("s_waitcnt lgkmcnt(0)\ns_sub_u32 s94, s98, 3000")
        return
    if SSEC[0] and OPT["sst"] and i < 8: return
    if OPT["stamps"] and cond:
        A(f"s_memrealtime s[{sST+2*i}:{sST+2*i+1}]")

def padto():
    l = A.newlabel("pad")
    A(f"""
    {l}:
    s_memrealtime s[96:97]
    s_waitcnt lgkmcnt(0)
    s_sub_u32 s96, s96, s98
    s_cmp_lt_u32 s96, {OPT["pad"]*100}
    s_cbranch_scc1 {l}
    """)
def prio(p): A(f"s_setprio {p}")

def cnt_add(vaddr, vone, off=0):
    A(f"""
    s_mov_b64 exec, 1
    {"ds_inc_u32" if vone == vIDX else "ds_add_u32"} v{vaddr}, v{vone} offset:{off}
    s_mov_b64 exec, -1
    """)
def cnt_wait(vaddr, vtmp, target, off=0, sleep=0):
    lp = A.newlabel("sy"); dn = A.newlabel("syd")
    A(f"""
    s_mov_b32 s{sSPIN}, 0
    {lp}:
    ds_read_b32 v{vtmp}, v{vaddr} offset:{off}
    s_add_u32 s{sSPIN}, s{sSPIN}, 1
    s_waitcnt lgkmcnt(0)
    v_readfirstlane_b32 s{sT0}, v{vtmp}
    s_cmp_ge_u32 s{sT0}, {target}
    s_cbranch_scc1 {dn}
    {("s_sleep " + str(sleep)) if sleep else ""}
    s_cmp_lt_u32 s{sSPIN}, {SPIN_MAX}
    s_cbranch_scc1 {lp}
    {dn}:
    """)
NSYNC = [0]
def grp_sync():
    NSYNC[0] += 1
    A("s_waitcnt lgkmcnt(0)")
    cnt_add(vCNT, vONE)
    cnt_wait(vCNT, vTMP, CBASE + 4*NSYNC[0], sleep=OPT['ssl'])

def sync_add(wait_lds=True):
    NSYNC[0] += 1
    if wait_lds: A("s_waitcnt lgkmcnt(0)")
    cnt_add(vCNT, vONE)
def sync_wait(sleep=None):
    cnt_wait(vCNT, vTMP, CBASE + 4*NSYNC[0], sleep=OPT['ssl'] if sleep is None else max(sleep, OPT['sl0']))

def poll_flags(vaddr, vdst, width, sleep=2):
    lp = A.newlabel("pl"); dn = A.newlabel("pld")
    ld = "buffer_load_dword" if width == 1 else f"buffer_load_dwordx{width}"
    A(f"s_mov_b32 s{sSPIN}, 0")
    A.label(lp)
    A(f"""
    {ld} {vr(vdst, width)}, v{vaddr}, {srd(R_WS)}, 0 offen sc1
    s_add_u32 s{sSPIN}, s{sSPIN}, 1
    s_waitcnt vmcnt(0)
    v_cmp_ne_u32 vcc, s{sTAG}, v{vdst}
    s_cbranch_vccz {dn}
    {("s_sleep " + str(sleep)) if sleep else ""}
    s_cmp_lt_u32 s{sSPIN}, {SPIN_MAX}
    s_cbranch_scc1 {lp}
    {dn}:
    """)

def wave_max(v, tmp):
    A("s_nop 1")
    for sh in (1, 2, 4, 8):
        A(f"v_max_f32_dpp v{v}, v{v}, v{v} row_ror:{sh} row_mask:0xf bank_mask:0xf")
        A("s_nop 1")
    A(f"v_mov_b32 v{tmp}, v{v}")
    A("s_nop 1")
    A(f"v_permlane16_swap_b32 v{tmp}, v{v}")
    A(f"v_max_f32 v{v}, v{v}, v{tmp}")
    A(f"v_mov_b32 v{tmp}, v{v}")
    A("s_nop 1")
    A(f"v_permlane32_swap_b32 v{tmp}, v{v}")
    A(f"v_max_f32 v{v}, v{v}, v{tmp}")

def wq_voffset(dst, t0, t1, t2):
    A(f"""
    v_lshrrev_b32 v{t0}, 3, v{vLANE}
    v_and_b32 v{t1}, 7, v{vLANE}
    v_bfe_u32 v{t2}, v{vLANE}, 4, 1
    v_lshlrev_b32 v{t2}, 2, v{t2}
    v_xor_b32 v{t1}, v{t1}, v{t2}
    v_lshlrev_b32 v{t1}, 4, v{t1}
    v_lshl_add_u32 v{dst}, v{t0}, 10, v{t1}
    """)

vLANE, vL31, vH, vL16x = 1, 2, 3, 4
UR, UI, Y0, Y1 = 16, 32, 48, 64
FRS = 80
DG = 104
vL1, vL8, vL16, vL64, vL512, vCF = 112, 114, 116, 118, 120, 122
vCNT, vONE, vTMP, vP2, vDUM = 0, 124, 125, 126, 127
vXo, vBo, vDa, vSt = 5, 6, 7, 8
vAa, vBa = [9, 10, 11], [12, 13, 14]
vPF = 15
STG = 64
PRM = 100
S0, S1 = 16, 32
QF = 48
KV = [80, 92, 104, 116]
vIDX = 7
vM = 104
vZ = 120
vKt, vVt = [5, 8, 9, 10], [6, 12, 14, 15]

A(f"""
s_cmp_ge_u32 s2, 256
s_cbranch_scc1 L_end
""")
stamp(0)
if OPT["pad"]: A("s_memrealtime s[98:99]")
sizes = {R_XB: 65536, R_WKV: 16384, R_WQ: 523392, R_WS: WS_SIZE, R_XA: 65536, R_BRE: 65536, R_BIM: 65536, R_CRE: 65536, R_CIM: 65536,
         R_WO: 523392, R_OUT: 262144, R_AGG: AGG_SIZE}
def kload(lst):
    for r, off in lst:
        A(f"s_load_dwordx2 s[{r}:{r+1}], s[0:1], {off}")
def srd_words(rs):
    for r in rs:
        A(f"s_mov_b32 s{r+2}, {sizes[r]}")
        A(f"s_mov_b32 s{r+3}, 0x20000")
kload([(R_XB, 72), (R_WKV, 88), (P_WV, 96), (R_WQ, 80), (R_WS, 128)])
A(f"""
v_lshrrev_b32 v5, 6, v0
v_and_b32 v{vLANE}, 63, v0
v_readfirstlane_b32 s{sWAVE}, v5
v_lshlrev_b32 v{vL16x}, 4, v{vLANE}
v_bfe_u32 v{vH}, v0, 5, 1
v_and_b32 v{vL31}, 31, v0
v_mov_b32 v0, {CNT}
""")
srd_words([R_XB])
A(f"""
""")
if OPT["map84"]:
    A(f"""
    s_bfe_u32 s{sC}, s2, 0x20001
    s_lshl_b32 s{sC}, s{sC}, 3
    s_bfe_u32 s{sT0}, s2, 0x30003
    s_add_u32 s{sC}, s{sC}, s{sT0}
    s_and_b32 s{sG}, s2, 1
    s_lshl_b32 s{sG}, s{sG}, 2
    s_lshr_b32 s{sT0}, s2, 6
    s_add_u32 s{sG}, s{sG}, s{sT0}
    s_add_u32 s{sROT}, s{sC}, s{sG}
    s_and_b32 s{sROT}, s{sROT}, 3
    """)
else:
    A(f"""
    s_and_b32 s{sC}, s2, 7
    s_lshl_b32 s{sC}, s{sC}, 2
    s_bfe_u32 s{sROT}, s2, 0x20003
    s_add_u32 s{sC}, s{sC}, s{sROT}
    s_lshr_b32 s{sG}, s2, 5
    """)
A(f"""
s_lshl_b32 s{sT2}, s{sC}, 16
s_sub_u32 s{sSW}, s{sWAVE}, 4
s_cbranch_scc1 L_A0
s_load_dwordx4 s[{P_LRE}:{P_LRE+3}], s[0:1], 8
s_load_dwordx4 s[{P_LDT}:{P_LDT+3}], s[0:1], 56
s_setprio 3
v_mov_b32 v20, 0
v_mov_b32 v21, 0
s_lshl_b32 s{sT0}, s{sG}, 6
s_lshl_b32 s{sT1}, s{sSW}, 4
s_and_b32 s{sT1}, s{sT1}, 32
s_add_u32 s{sT0}, s{sT0}, s{sT1}
v_add_lshl_u32 v{vP2}, s{sT0}, v{vL31}, 1
ds_write2_b64 v0, v[20:21], v[20:21] offset0:0 offset1:1
ds_write2_b64 v0, v[20:21], v[20:21] offset0:2 offset1:3
s_mov_b32 s{R_WKV+2}, {sizes[R_WKV]}
s_mov_b32 s{R_WKV+3}, 0x20000
s_lshl_b32 s{sT1}, s{sSW}, 12
s_lshl_b32 s{sT5}, s{sG}, 13
s_and_b32 s{sT5}, s{sT5}, 0xc000
s_add_u32 s{sT5}, s{sT5}, s{sT1}
s_mul_i32 s{sT0}, s{sSW}, 4160
s_add_u32 m0, s{sT1}, {WKV}
s_bitcmp1_b32 s{sG}, 0
s_waitcnt lgkmcnt(0)
s_cselect_b32 s{R_WKV}, s{P_WV}, s{R_WKV}
s_cselect_b32 s{R_WKV+1}, s{P_WV+1}, s{R_WKV+1}
s_add_u32 s{R_XB}, s{R_XB}, s{sT2}
s_addc_u32 s{R_XB+1}, s{R_XB+1}, 0
""")
for i in range(4):
    A(f"buffer_load_dwordx4 v{vL16x}, {srd(R_WKV)}, s{sT1} offen offset:{i*1024} lds")
for i in range(4):
    A(f"s_add_u32 m0, s{sT0}, {KVX + 16*i}")
    A(f"s_load_dword s{sEP}, s[{R_WS}:{R_WS+1}], 0" if i == 0 else "s_nop 0")
    A(f"buffer_load_dwordx4 v{vL16x}, {srd(R_XB)}, s{sT5} offen offset:{i*1024} lds")
A(f"""
s_barrier
global_load_ushort v{PRM}, v{vP2}, s[{P_LRE}:{P_LRE+1}]
global_load_ushort v{PRM+1}, v{vP2}, s[{P_LIM}:{P_LIM+1}]
global_load_ushort v{PRM+2}, v{vP2}, s[{P_LDT}:{P_LDT+1}]
global_load_ushort v{PRM+3}, v{vP2}, s[{P_DSK}:{P_DSK+1}]
s_cmp_eq_u32 s{sSW}, 1
s_cbranch_scc1 L_qx
s_cmp_eq_u32 s{sSW}, 2
s_cbranch_scc1 L_qw
s_branch L_S1
L_A0:
""")
def common_scalars():
    kload([(R_OUT, 112)])
    srd_words([R_WS, R_OUT])
    A(f"""
    s_and_b32 s{sTW}, s{sWAVE}, 1
    s_bfe_u32 s{sCW}, s{sWAVE}, 0x10001
    s_lshl_b32 s{sID}, s{sC}, 3
    s_add_u32 s{sID}, s{sID}, s{sG}
    s_mov_b32 s{sDONE}, 0
    s_lshl_b32 s{sOB}, s{sC}, 1
    s_add_u32 s{sOB}, s{sOB}, s{sTW}
    s_lshl_b32 s{sOB}, s{sOB}, 15
    s_add_u32 s{sOB}, s{sOB}, {OB}
    """)
def common_after_wait(tag=True):
    A(f"""
    s_lshl_b32 s{sT0}, s{sC}, 18
    s_add_u32 s{R_OUT}, s{R_OUT}, s{sT0}
    s_addc_u32 s{R_OUT+1}, s{R_OUT+1}, 0
    """)
    if tag: A(f"""
    s_mul_i32 s{sTAG}, s{sEP}, 0x9E3779B1
    s_add_u32 s{sTAG}, s{sTAG}, 0x7F4A7C15
    """)
vWQo, vXQo = 119, 117
A(f"""
v_lshrrev_b32 v6, 4, v{vLANE}
v_and_b32 v7, 15, v{vLANE}
v_lshlrev_b32 v7, 4, v7
v_lshl_add_u32 v{vXQo}, v6, 14, v7
s_mul_i32 s{sT6}, s{sWAVE}, 4160
s_lshl_b32 s{sT7}, s{sWAVE}, 12
""")
srd_words([R_WQ])
wq_voffset(vWQo, 6, 7, 10)
A(f"""
s_lshl_b32 s{sT0}, s{sG}, 7
s_waitcnt lgkmcnt(0)
s_add_u32 s{R_XB}, s{R_XB}, s{sT2}
s_addc_u32 s{R_XB+1}, s{R_XB+1}, 0
s_add_u32 s{R_WQ}, s{R_WQ}, s{sT0}
s_addc_u32 s{R_WQ+1}, s{R_WQ+1}, 0
s_load_dword s{sEP}, s[{R_WS}:{R_WS+1}], 0
s_barrier
""")
stamp(1, HST)
def x_dma(s):
    A(f"""
    s_add_u32 s{sT3}, s{sROT}, {s}
    s_and_b32 s{sT3}, s{sT3}, 3
    s_lshl_b32 s{sT4}, s{sT3}, 8
    s_add_u32 s{sT4}, s{sT4}, s{sT7}
    """)
    for i in range(4):
        A(f"""
        s_add_u32 m0, s{sT6}, {XQ + s*16640 + i*16}
        s_nop 0
        buffer_load_dwordx4 v{vXQo}, {srd(R_XB)}, s{sT4} offen offset:{i*1024} lds
        """)
def wq_dma(s):
    A(f"""
    s_lshl_b32 s{sT3}, s{sT3}, 4
    s_add_u32 s{sT3}, s{sT3}, s{sWAVE}
    s_lshl_b32 s{sT3}, s{sT3}, 13
    s_lshl_b32 s{sT2}, s{sWAVE}, 10
    """)
    for i in range(4):
        A(f"""
        s_add_u32 m0, s{sT2}, {WQ + s*16384 + i*4096}
        s_add_u32 s{sT1}, s{sT3}, {i*32768}
        buffer_load_dwordx4 v{vWQo}, {srd(R_WQ)}, s{sT1} offen lds
        """)
for s in range(OPT["qpre"]):
    x_dma(s); wq_dma(s)
stamp(2 if HST else 1)
A("s_branch L_A1")
A.label("L_S1")
SSEC[0] = True
A(f"""
v_mov_b32 v{vONE}, 1
s_lshl_b32 s{sID}, s{sC}, 3
s_add_u32 s{sID}, s{sID}, s{sG}
s_mov_b32 s{R_WS+2}, {WS_SIZE}
s_mov_b32 s{R_WS+3}, 0x20000
v_lshrrev_b32 v20, 4, v{vLANE}
v_and_b32 v21, 15, v{vLANE}
v_mul_u32_u24 v9, 1040, v21
v_lshl_add_u32 v9, v20, 4, v9
v_add_u32 v9, {KVX}, v9
v_lshrrev_b32 v10, 2, v21
v_lshl_add_u32 v10, v20, 3, v10
v_lshlrev_b32 v10, 5, v10
v_and_b32 v11, 3, v21
v_lshl_add_u32 v10, v11, 3, v10
v_add_u32 v10, {WKV}, v10
s_lshl_b32 s{sT6}, s{sC}, 1
s_lshr_b32 s{sT1}, s{sG}, 2
s_add_u32 s{sT6}, s{sT6}, s{sT1}
s_lshl_b32 s{sT6}, s{sT6}, 12
s_add_u32 s{sT6}, s{sT6}, {KVT}
s_bfe_u32 s{sT7}, s{sG}, 0x10001
s_waitcnt lgkmcnt(0)
s_mul_i32 s{sTAG}, s{sEP}, 0x9E3779B1
s_add_u32 s{sTAG}, s{sTAG}, 0x7F4A7C15
s_waitcnt vmcnt(4)
""")
stamp(6, HST)
cnt_add(vCNT, vONE)
A(f"""
s_cmp_lg_u32 s{sSW}, 0
s_cbranch_scc1 L_S2a
""")
cnt_wait(vCNT, vTMP, 4)
stamp(1)
def kv_rd(k):
    f = 32 + 8*(k % 6)
    A(f"ds_read_b64_tr_b16 v[{f}:{f+1}], v10 offset:{k*1024}")
    A(f"ds_read_b64_tr_b16 v[{f+2}:{f+3}], v10 offset:{k*1024+128}")
    A(f"ds_read_b128 v[{f+4}:{f+7}], v9 offset:{k*64}")
for k in range(4): kv_rd(k)
A(f"s_bitcmp1_b32 s{sG}, 0")
A("s_cbranch_scc1 L_kv_v")
def kv_chain(isv_):
    for k in range(16):
        f = 32 + 8*(k % 6)
        if k + 4 < 16: kv_rd(k + 4)
        issued = min(16, k + 5)
        A(f"s_waitcnt lgkmcnt({3*(issued - k - 1)})")
        c = "0" if k == 0 else "v[28:31]"
        a, b = (f"v[{f}:{f+3}]", f"v[{f+4}:{f+7}]") if not isv_ else (f"v[{f+4}:{f+7}]", f"v[{f}:{f+3}]")
        A(f"v_mfma_f32_16x16x32_bf16 v[28:31], {a}, {b}, {c}")
kv_chain(False)
if not OPT["q2w"]: cnt_add(vCNT, vONE)
else: A.nop(3)
A(f"s_mov_b32 s{sT0}, {f2u(0.25 * math.log2(math.e))}")
A(f"""
s_lshl_b32 s{sT7}, s{sT7}, 8
s_add_u32 s{sT6}, s{sT6}, s{sT7}
v_and_b32 v22, 1, v20
v_lshlrev_b32 v22, 9, v22
v_lshl_add_u32 v22, v21, 4, v22
v_lshrrev_b32 v23, 1, v20
v_lshl_add_u32 v22, v23, 3, v22
v_mul_f32 v28, s{sT0}, v28
v_mul_f32 v29, s{sT0}, v29
v_mul_f32 v30, s{sT0}, v30
v_mul_f32 v31, s{sT0}, v31
v_cvt_pk_bf16_f32 v24, v28, v29
v_cvt_pk_bf16_f32 v25, v30, v31
buffer_store_dwordx2 v[24:25], v22, {srd(R_WS)}, s{sT6} offen sc1
""")
if OPT["q2w"]: cnt_add(vCNT, vONE)
A(f"""
v_mul_f32 v16, v28, v28
v_fmac_f32 v16, v29, v29
v_fmac_f32 v16, v30, v30
v_fmac_f32 v16, v31, v31
v_mov_b32 v17, v16
s_nop 1
v_permlane16_swap_b32 v17, v16
v_add_f32 v16, v16, v17
v_mov_b32 v17, v16
s_nop 1
v_permlane32_swap_b32 v17, v16
v_add_f32 v17, v16, v17
""")
wave_max(17, 18)
A("s_branch L_kv_pub")
A.label("L_kv_v")
kv_chain(True)
if not OPT["q2w"]: cnt_add(vCNT, vONE)
A(f"""
s_mul_i32 s{sT7}, s{sT7}, 544
s_add_u32 s{sT6}, s{sT6}, s{sT7}
s_add_u32 s{sT6}, s{sT6}, 1024
v_lshrrev_b32 v22, 1, v20
v_mul_u32_u24 v22, 272, v22
v_and_b32 v23, 1, v20
v_lshl_add_u32 v22, v23, 3, v22
v_lshl_add_u32 v23, v21, 4, v22
v_cvt_pk_bf16_f32 v24, v28, v29
v_cvt_pk_bf16_f32 v25, v30, v31
buffer_store_dwordx2 v[24:25], v23, {srd(R_WS)}, s{sT6} offen sc1
v_mov_b32 v26, 0x3f803f80
v_mov_b32 v27, 0x3f803f80
s_mov_b32 exec_lo, 0x00010001
s_mov_b32 exec_hi, 0x00010001
buffer_store_dwordx2 v[26:27], v22, {srd(R_WS)}, s{sT6} offen offset:256 sc1
s_mov_b64 exec, -1
v_mov_b32 v17, 0
""")
if OPT["q2w"]: cnt_add(vCNT, vONE)
A.label("L_kv_pub")
A(f"""
s_lshl_b32 s{sT0}, s{sID}, 7
s_add_u32 s{sT0}, s{sT0}, {FL1}
v_mov_b32 v16, s{sTAG}
v_mov_b32 v9, 0
s_waitcnt vmcnt(0)
s_mov_b64 exec, 1
buffer_store_dwordx2 v[16:17], v9, {srd(R_WS)}, s{sT0} offen sc1
ds_add_u32 v{vCNT}, v{vONE}
s_mov_b64 exec, -1
""")
stamp(2)
A("s_branch L_S2")
def q_head():
    A(f"""
    v_mov_b32 v{vONE}, 1
    s_lshl_b32 s{sID}, s{sC}, 3
    s_add_u32 s{sID}, s{sID}, s{sG}
    s_waitcnt lgkmcnt(0)
    s_mul_i32 s{sTAG}, s{sEP}, 0x9E3779B1
    s_add_u32 s{sTAG}, s{sTAG}, 0x7F4A7C15
    s_waitcnt vmcnt(4)
    """)
    cnt_add(vCNT, vONE)
    prio(0)
def q_sig():
    A("s_waitcnt vmcnt(16)"); cnt_add(vCNT, vONE, 24)
    A("s_waitcnt vmcnt(0)"); cnt_add(vCNT, vONE, 28)
    prio(3)
    A("s_branch L_S2")
A.label("L_qx")
A(f"""
v_lshrrev_b32 v20, 4, v{vLANE}
v_and_b32 v21, 15, v{vLANE}
v_lshlrev_b32 v22, 4, v21
v_lshl_add_u32 v22, v20, 14, v22
""")
q_head()
for s_ in (2, 3):
    if s_ == 3 - OPT['q2w']: cnt_wait(vCNT, vTMP, 5)
    A(f"""
    s_add_u32 s{sT3}, s{sROT}, {s_}
    s_and_b32 s{sT3}, s{sT3}, 3
    s_lshl_b32 s{sT3}, s{sT3}, 8
    """)
    for i in range(16):
        A(f"s_mov_b32 m0, {XQ + s_*16640 + i*1040 - (i & 3)*1024}")
        A(f"s_add_u32 s{sT3}, s{sT3}, 4096" if (i & 3 == 0 and i) else "s_nop 0")
        A(f"buffer_load_dwordx4 v22, {srd(R_XB)}, s{sT3} offen offset:{(i & 3)*1024} lds")
q_sig()
A.label("L_qw")
srd_words([R_WQ])
wq_voffset(22, 23, 24, 25)
A(f"""
s_lshl_b32 s{sT0}, s{sG}, 7
s_add_u32 s{R_WQ}, s{R_WQ}, s{sT0}
s_addc_u32 s{R_WQ+1}, s{R_WQ+1}, 0
""")
q_head()
for s_ in (2, 3):
    if s_ == 3 - OPT['q2w']: cnt_wait(vCNT, vTMP, 5)
    A(f"""
    s_add_u32 s{sT3}, s{sROT}, {s_}
    s_and_b32 s{sT3}, s{sT3}, 3
    s_lshl_b32 s{sT3}, s{sT3}, 17
    """)
    for i in range(16):
        A(f"s_mov_b32 m0, {WQ + s_*16384 + i*1024}")
        A(f"s_add_u32 s{sT3}, s{sT3}, 8192" if i else "s_nop 0")
        A(f"buffer_load_dwordx4 v22, {srd(R_WQ)}, s{sT3} offen lds")
q_sig()
SSEC[0] = False
A.label("L_A1")
for i in range(4): A(f"v_mov_b32 v{vZ+i}, 0")
vXa, vWa, vFl, vQw, vQr, vAone = 8, 9, 10, 14, 15, vIDX
common_scalars()
for ct in range(8):
    A(f"v_mfma_f32_32x32x16_bf16 a[{16*ct}:{16*ct+15}], v[{vZ}:{vZ+3}], v[{vZ}:{vZ+3}], 0")
A(f"""
v_and_b32 v6, 15, v{vL31}
v_mul_u32_u24 v{vXa}, 1040, v6
v_lshl_add_u32 v{vXa}, v{vH}, 4, v{vXa}
v_lshrrev_b32 v6, 4, v{vL31}
v_lshl_add_u32 v{vXa}, v6, 8, v{vXa}
s_lshl_b32 s{sT0}, s{sTW}, 9
v_add_u32 v{vXa}, s{sT0}, v{vXa}
v_bfe_u32 v6, v{vLANE}, 2, 2
v_lshl_add_u32 v6, v{vH}, 3, v6
v_bfe_u32 v7, v{vLANE}, 4, 1
v_and_b32 v11, 3, v{vLANE}
v_lshlrev_b32 v11, 3, v11
v_lshl_add_u32 v11, v7, 5, v11
s_lshl_b32 s{sT0}, s{sCW}, 6
v_add_u32 v11, s{sT0}, v11
v_bfe_u32 v7, v{vLANE}, 3, 1
v_lshlrev_b32 v7, 6, v7
v_xor_b32 v11, v11, v7
v_lshl_add_u32 v{vWa}, v6, 7, v11
v_add_u32 v{vWa}, {WQ}, v{vWa}
s_lshl_b32 s{sT0}, s{sWAVE}, 13
s_add_u32 s{sT0}, s{sT0}, {FL1}
v_lshlrev_b32 v{vFl}, 7, v{vLANE}
v_add_u32 v{vFl}, s{sT0}, v{vFl}
s_lshl_b32 s{sT0}, s{sWAVE}, 16
s_add_u32 s{sT1}, s{sT0}, {KVT}
v_add_u32 v{vKt[0]}, s{sT1}, v{vL16x}
s_add_u32 s{sT1}, s{sT1}, 1024
v_lshlrev_b32 v13, 4, v{vL31}
v_mul_u32_u24 v14, 272, v{vH}
v_add3_u32 v13, v13, v14, s{sT1}
v_cmp_lt_u32 vcc, 16, v{vL31}
v_mov_b32 v14, 0x7ff00000
v_mov_b32 v{vIDX}, 0xdddddddd
v_cndmask_b32 v{vVt[0]}, v13, v14, vcc
s_lshl_b32 s{sKOFF}, s{sROT}, 14
s_lshl_b32 s{sT0}, s{sCW}, 2
s_add_u32 s{sT0}, s{sT0}, s{sTW}
s_lshl_b32 s{sT0}, s{sT0}, 10
s_add_u32 s{sT0}, s{sT0}, {QX}
v_add_u32 v{vQw}, s{sT0}, v{vL16x}
v_add_u32 v{vQr}, {QX}, v{vL16x}
s_waitcnt lgkmcnt(0)
""")
common_after_wait()
QP = OPT["qpre"]
sKVOK = sATG
vFG = 12
def ld_k(b, t, so=sKOFF):
    A(f"buffer_load_dwordx4 v[{KV[b]}:{KV[b]+3}], v{vKt[t]}, {srd(R_WS)}, s{so} offen sc1")
def ld_v(b, j, t, so=sKOFF):
    A(f"buffer_load_dwordx4 v[{KV[b]+4+4*j}:{KV[b]+7+4*j}], v{vVt[t]}, {srd(R_WS)}, s{so} offen offset:{544*j} sc1")
def kv_first():
    for b in range(OPT["kv0"]):
        A(f"s_add_u32 s{sT1}, s{sKOFF}, {b*KVS}")
        ld_k(b, 0, sT1); ld_v(b, 0, 0, sT1); ld_v(b, 1, 0, sT1)
    A(f"ds_max_f32 v{vCNT}, v{vFG+1} offset:{KM - CNT}")
    if OPT["kv0"] == 4 or OPT["g0"]: cnt_add(vCNT, vAone, 12)
def kv_try(tag):
    A(f"""
    v_cmp_ne_u32 vcc, s{sTAG}, v{vFG}
    s_cbranch_vccnz L_kvlate{tag}
    s_mov_b32 s{sKVOK}, 1
    """)
    kv_first()
    A(f"s_branch L_kvq{tag}")
    A.label(f"L_kvlate{tag}")
    flag_ld()
    A.label(f"L_kvq{tag}")
def flag_ld(): A(f"buffer_load_dwordx2 v[{vFG}:{vFG+1}], v{vFl}, {srd(R_WS)}, 0 offen sc1")
def q_rd(k):
    s_, kk = divmod(k, 8)
    f = 32 + 8*(k % 6)
    A(f"ds_read_b64_tr_b16 v[{f}:{f+1}], v{vWa} offset:{s_*16384 + kk*2048}")
    A(f"ds_read_b64_tr_b16 v[{f+2}:{f+3}], v{vWa} offset:{s_*16384 + kk*2048 + 512}")
    A(f"ds_read_b128 v[{f+4}:{f+7}], v{vXa} offset:{XQ + s_*16640 + kk*32}")
A(f"s_mov_b32 s{sKVOK}, 0")
A("s_waitcnt vmcnt(8)")
stamp(3, HST)
cnt_add(vCNT, vAone, 4)
cnt_wait(vCNT, 11, 4, 4)
for k in range(4): q_rd(k)
done = 0
for k in range(32):
    if k == OPT["q1a"]:
        A("s_waitcnt vmcnt(0)")
        cnt_add(vCNT, vAone, 4)
    if k == OPT["p1k"]: flag_ld()
    if k + 4 < 32:
        if (k + 4) % 8 == 0:
            s_ = (k + 4) // 8
            if s_ == 1: cnt_wait(vCNT, 11, 8, 4)
            else: cnt_wait(vCNT, 11, 2, 24 + 4*(s_ - 2))
            stamp(3 + s_, HST)
            done = k + 4
        q_rd(k + 4)
    if k >= done:
        A(f"s_waitcnt lgkmcnt({3*(min(32, k + 5) - k - 1)})")
    c = "0" if k == 0 else f"v[{S0}:{S0+15}]"
    f = 32 + 8*(k % 6)
    A(f"v_mfma_f32_32x32x16_bf16 v[{S0}:{S0+15}], v[{f}:{f+3}], v[{f+4}:{f+7}], {c}")
A(f"""
s_mul_i32 s{sT6}, s{sWAVE}, {3*CB_T}
s_add_u32 s{sT6}, s{sT6}, {CB}
v_add_u32 v11, s{sT6}, v{vL16x}
s_mov_b32 s{sLOOP}, 4
""")
A.nop(8)
for i in range(8):
    A(f"v_cvt_pk_bf16_f32 v{32+i}, v{S0+2*i}, v{S0+2*i+1}")
    if i == 3: A(f"ds_write_b128 v{vQw}, v[32:35]")
A(f"""
ds_write_b128 v{vQw}, v[36:39] offset:2048
s_waitcnt lgkmcnt(0)
""")
cnt_add(vCNT, vAone, 4)
A("s_waitcnt vmcnt(0)")
kv_try("b")
for hd in range(2):
    A(f"v_mul_f32 v{32+hd}, v{S0+8*hd}, v{S0+8*hd}")
    for i in range(1, 8):
        A(f"v_fmac_f32 v{32+hd}, v{S0+8*hd+i}, v{S0+8*hd+i}")
A(f"""
v_mov_b32 v34, v32
v_mov_b32 v35, v33
v_add_u32 v{vKt[1]}, {KVS}, v{vKt[0]}
v_add_u32 v{vKt[2]}, {2*KVS}, v{vKt[0]}
v_permlane32_swap_b32 v34, v32
v_permlane32_swap_b32 v35, v33
v_add_f32 v32, v32, v34
v_add_f32 v33, v33, v35
v_max_f32 v32, v32, v33
v_add_u32 v{vVt[2]}, {2*KVS}, v{vVt[0]}
ds_max_f32 v{vCNT}, v32 offset:{QM - CNT}
""")
for pr in range(4):
    A(f"s_add_u32 s{sT0}, s{sWAVE}, {pr + 1}")
    A(f"s_and_b32 s{sT0}, s{sT0}, 3")
    A(f"s_lshl_b32 s{sT0}, s{sT0}, 11")
    A(f"v_add_u32 v{36+pr}, s{sT0}, v{vQr}")
A(f"v_add_u32 v{vVt[3]}, {3*KVS}, v{vVt[0]}")
cnt_wait(vCNT, 35, 12, 4)
stamp(7 if HST else 2)
for pr in range(4):
    A(f"ds_read_b128 v[{QF+8*pr}:{QF+8*pr+3}], v{36+pr}")
    A(f"ds_read_b128 v[{QF+8*pr+4}:{QF+8*pr+7}], v{36+pr} offset:1024")
A(f"""
s_cmp_lg_u32 s{sKVOK}, 0
s_cbranch_scc1 L_kvgo
s_waitcnt vmcnt(0)
v_cmp_ne_u32 vcc, s{sTAG}, v{vFG}
s_cbranch_vccz L_kvok
""")
poll_flags(vFl, vFG, 2, sleep=0)
A.label("L_kvok")
kv_first()
A.label("L_kvgo")
if OPT["pad"] and OPT["padat"] == 1: padto()
stamp(3, not HST)
A(f"""
s_waitcnt vmcnt({3*OPT['kv0'] - 1}) lgkmcnt(7)
v_mfma_f32_32x32x16_bf16 v[{S0}:{S0+15}], v[{KV[0]}:{KV[0]+3}], v[{QF}:{QF+3}], 0
v_add_u32 v{vKt[3]}, {3*KVS}, v{vKt[0]}
s_waitcnt vmcnt({3*OPT['kv0'] - 3}) lgkmcnt(0)
v_add_u32 v{vVt[1]}, {KVS}, v{vVt[0]}
v_lshlrev_b32 v13, 2, v{vLANE}
v_add_u32 v13, s{sT6}, v13
""")
A.nop(7)
SB = [S0, S1]
LASTSYNC = 8
CBASE = 6
def part_write(ct):
    A(f"ds_write_b128 v11, a[{16*ct}:{16*ct+3}] offset:{cb_off(ct)}")
    A(f"ds_write_b128 v11, a[{16*ct+4}:{16*ct+7}] offset:{cb_off(ct) + 1024}")
    A(f"ds_write_b32 v13, a{16*ct+8} offset:{cb_off(ct) + 2048}")
def period(kb, ct, mode):
    cur = SB[ct & 1]; oth = SB[(ct + 1) & 1]
    pct = (ct - 1) % 8
    pkb = kb if ct > 0 else (kb - 1) % 4
    nct = (ct + 1) % 8
    nkb = kb if ct < 7 else (kb + 1) % 4
    ld = ct == 0 and mode == "loop" and not OPT["noKV"]
    early = mode == "last" and 1 <= ct <= 6
    extra = {}
    if mode == "first" and OPT["kv0"] < 4:
        lds_ = []
        for b in range(OPT["kv0"], 4):
            lds_ += [lambda b=b: ld_k(b, b), lambda b=b: ld_v(b, 0, b), lambda b=b: ld_v(b, 1, b)]
        for n, f_ in enumerate(lds_): extra[[1, 2, 3, 6, 7, 11, 12, 13, 14][n]] = f_
    def e(i):
        A(f"v_exp_f32 v{cur+i}, v{cur+i}")
        if i in extra: extra[i]()
        if i == 15 and extra and not OPT["g0"]: cnt_add(vCNT, vAone, 12)
    e(0); e(1)
    if mode != "first":
        A(f"v_smfmac_f32_32x32x32_bf16 a[{16*pct}:{16*pct+15}], v[{KV[pkb]+8}:{KV[pkb]+11}], v[{oth+8}:{oth+15}], v{vIDX}")
    e(2)
    if mode == "last" and ct in (0, 3): A(f"ds_read_b32 v12, v{vCNT} offset:{28 if ct == 0 else 8}")
    if (mode, ct) == ("last", 7):
        A("s_waitcnt lgkmcnt(0)")
        cnt_add(vCNT, vIDX, 4)
    e(3)
    if ct == 7 and mode == "loop": A(f"s_waitcnt vmcnt(6)")
    e(4)
    if (mode, ct) != ("last", 7):
        A(f"v_mfma_f32_32x32x16_bf16 v[{oth}:{oth+15}], v[{KV[nkb]}:{KV[nkb]+3}], v[{QF+4*nct}:{QF+4*nct+3}], 0")
    for i in range(5, 10): e(i)
    A(f"v_smfmac_f32_32x32x32_bf16 a[{16*ct}:{16*ct+15}], v[{KV[kb]+4}:{KV[kb]+7}], v[{cur}:{cur+7}], v{vIDX}")
    e(10); e(11)
    e(12)
    if ld: ld_k(pkb, pkb)
    if early: A(f"ds_write_b128 v11, a[{16*(ct-1)}:{16*(ct-1)+3}] offset:{cb_off(ct-1)}")
    e(13)
    if ld: ld_v(pkb, 0, pkb)
    if (kb, ct, mode) == (0, 1, "loop"): A(f"s_add_u32 s{sKOFF}, s{sKOFF}, {4*KVS}")
    if (kb, ct, mode) == (2, 7, "loop"): A(f"s_sub_u32 s{sLOOP}, s{sLOOP}, 1")
    if early: A(f"ds_write_b128 v11, a[{16*(ct-1)+4}:{16*(ct-1)+7}] offset:{cb_off(ct-1) + 1024}")
    e(14)
    if ld: ld_v(pkb, 1, pkb)
    if (kb, ct, mode) == (0, 1, "loop"): A(f"s_and_b32 s{sKOFF}, s{sKOFF}, 0xffff")
    if (kb, ct, mode) == (2, 7, "loop"): A(f"s_cmp_eq_u32 s{sLOOP}, 0")
    if early: A(f"ds_write_b32 v13, a{16*(ct-1)+8} offset:{cb_off(ct-1) + 2048}")
    e(15)
    if mode == "last" and ct == 8 - OPT["trig"] - 1: cnt_add(vCNT, vIDX, 12)
    if mode == "last" and ct in (0, 3):
        tgt = 6 if ct == 0 else 4
        A(f"""
        s_waitcnt lgkmcnt(0)
        v_readfirstlane_b32 s{sT0}, v12
        s_cmp_ge_u32 s{sT0}, {tgt if not (OPT["noS"] or OPT["nochk"]) else 0}
        s_cbranch_scc1 L_sfree{ct}
        """)
        cnt_wait(vCNT, 12, tgt, 28 if ct == 0 else 8, sleep=2)
        A.label(f"L_sfree{ct}")
if OPT["cyc"]: A(f"s_memtime s[{sST+10}:{sST+11}]")
period(0, 0, "first")
A("s_branch L_attn1")
A(".p2align 6")
A.label("L_attn")
loop_start = len(A.lines)
for kb in (3, 0, 1, 2):
    for ct in range(8):
        if (kb, ct) == (0, 1): A.label("L_attn1")
        period(kb, ct, "loop")
loop_end = len(A.lines)
A("s_cbranch_scc0 L_attn")
for ct in range(8):
    period(3, ct, "last")
A(f"""
s_nop 1
v_smfmac_f32_32x32x32_bf16 a[112:127], v[{KV[3]+8}:{KV[3]+11}], v[{S1+8}:{S1+15}], v{vIDX}
""")
stamp(4, not HST)
if OPT["cyc"]: A(f"s_memtime s[{sST+12}:{sST+13}]")
if OPT["pad"] and OPT["padat"] == 2: padto()
A(f"s_mov_b32 s{sATG}, 16")
A.label("L_comb")
if OPT["aprio"]: prio(OPT["aprio"])
for k in range(3):
    A(f"""
    s_add_u32 s{sT0}, s{sWAVE}, {k + 1}
    s_and_b32 s{sT0}, s{sT0}, 3
    s_mul_i32 s{sT0}, s{sT0}, {3*CB_T}
    s_add_u32 s{sT0}, s{sT0}, {CB}
    v_add_u32 v{8+k}, s{sT0}, v{vL16x}
    v_lshl_add_u32 v{[12, 14, 15][k]}, v{vL31}, 2, s{sT0}
    """)
A(f"""
s_lshl_b32 s{sT1}, s{sG}, 2
s_add_u32 s{sT1}, s{sT1}, s{sWAVE}
s_lshl_b32 s{sT1}, s{sT1}, 10
s_lshl_b32 s{sT2}, s{sC}, 16
s_add_u32 s{sT1}, s{sT1}, s{sT2}
s_add_u32 s{sT1}, s{sT1}, {OB}
s_add_u32 s{sT2}, s{sT1}, 32768
s_waitcnt vmcnt(0)
""")
cnt_wait(vCNT, 16, f"s{sATG}", 4)
def astamp(i):
    if OPT["cyc"] or HST or not (OPT["stamps"] or OPT["enc"]): return
    stamp(i)
astamp(5)
PD = [[16, 24, 32, 40], [80, 88, 96, 104]]
PL = [[112, 113, 114, 115], [116, 117, 118, 119]]
A(f"ds_read_b64 v[120:121], v0 offset:{QM - CNT}")
for u in range(2):
    for k in range(3):
        A(f"ds_read_b32 v{PL[u][k+1]}, v{[12, 14, 15][k]} offset:{cb_off(2*(2-k) + u) + 2048}")
    for k in range(3):
        A(f"ds_read_b128 v[{PD[u][k+1]}:{PD[u][k+1]+3}], v{8+k} offset:{cb_off(2*(2-k) + u)}")
        A(f"ds_read_b128 v[{PD[u][k+1]+4}:{PD[u][k+1]+7}], v{8+k} offset:{cb_off(2*(2-k) + u) + 1024}")
    if u == 0: A("s_waitcnt lgkmcnt(6)")
for u in range(2):
    A(f"v_accvgpr_read_b32 v{PL[u][0]}, a{16*(6+u)+8}")
    A(f"v_accvgpr_read_b32 v{122+u}, a{16*(6+u)+8}")
A(f"""
v_mul_f32 v120, v120, v121
v_add_f32 v113, v113, v114
v_permlane32_swap_b32 v112, v122
v_permlane32_swap_b32 v116, v123
v_cmp_nge_f32 vcc, {f2u(-1.0 if OPT['force_slow'] else 1000.0)}, v120
v_add_f32 v112, v112, v115
v_add_f32 v112, v112, v113
v_rcp_f32 v112, v112
s_cbranch_vccnz L_slow
L_fast:
""")
def comb(u, soff):
    d = PD[u]
    for i in range(8): A(f"v_accvgpr_read_b32 v{d[0]+i}, a{16*(6+u)+i}")
    if u == 0: A("s_waitcnt lgkmcnt(9)")
    else:
        A(f"""
        s_waitcnt lgkmcnt(2)
        v_add_f32 v117, v117, v118
        v_add_f32 v116, v116, v119
        v_add_f32 v116, v116, v117
        v_rcp_f32 v116, v116
        """)
    for i in range(0, 8, 2): A(f"v_pk_add_f32 {p2(d[1]+i)}, {p2(d[1]+i)}, {p2(d[2]+i)}")
    if u == 1:
        A("s_waitcnt lgkmcnt(0)")
        if OPT["oack"] == 2: cnt_add(vCNT, vIDX, 12)
    for i in range(0, 8, 2): A(f"v_pk_add_f32 {p2(d[0]+i)}, {p2(d[0]+i)}, {p2(d[3]+i)}")
    for i in range(0, 8, 2): A(f"v_pk_add_f32 {p2(d[0]+i)}, {p2(d[0]+i)}, {p2(d[1]+i)}")
    for i in range(0, 8, 2):
        A(f"v_pk_mul_f32 {p2(d[0]+i)}, {p2(d[0]+i)}, {p2(PL[u][0])} op_sel_hi:[1,0]")
    for i in range(0, 8, 2):
        A(f"v_cvt_pk_bf16_f32 v{d[1]+i//2}, v{d[0]+i}, v{d[0]+i+1}")
    A(f"buffer_store_dwordx4 v[{d[1]}:{d[1]+3}], v{vL16x}, {srd(R_WS)}, s{soff} offen sc1")
def p2(r): return f"v[{r}:{r+1}]"
comb(0, sT1); comb(1, sT2)
astamp(6)
if OPT["oack"]: A("s_waitcnt vmcnt(0)")
cnt_add(vCNT, vIDX, 24 if OPT["oack"] == 2 else 12)
A(f"""
s_or_b32 s{sT0}, s2, s{sWAVE}
s_cmp_lg_u32 s{sT0}, 0
s_cbranch_scc1 L_noep
s_add_u32 s{sT0}, s{sEP}, 1
v_mov_b32 v10, s{sT0}
v_mov_b32 v11, 0
s_mov_b64 exec, 1
buffer_store_dword v10, v11, {srd(R_WS)}, 0 offen
s_mov_b64 exec, -1
L_noep:
""")
A.label("L_fin")
if OPT["enc"] or OPT["encS"]:
    A("""
    s_waitcnt vmcnt(0) lgkmcnt(0)
    s_add_u32 s94, s94, 3000
    L_enc:
    s_memrealtime s[96:97]
    s_waitcnt lgkmcnt(0)
    s_sub_u32 s96, s96, s94
    s_cmp_lt_i32 s96, 0
    s_cbranch_scc1 L_enc
    """)
if OPT["pad"] and OPT["padat"] == 0:
    A("s_waitcnt vmcnt(0)"); padto()
if OPT["stamps"]:
    A(f"""
    s_waitcnt vmcnt(0)
    s_memrealtime s[100:101]
    s_waitcnt lgkmcnt(0)
    s_lshl_b32 s{sT0}, s2, 3
    s_add_u32 s{sT0}, s{sT0}, s{sWAVE}
    s_lshl_b32 s{sT0}, s{sT0}, 6
    s_add_u32 s{sT0}, s{sT0}, {DBG + 0x800000}
    v_mov_b32 v11, 0
    """)
    for i in range(9): A(f"v_mov_b32 v{16+i}, s{sST+2*i}")
    A(f"""
    s_mov_b64 exec, 1
    buffer_store_dwordx4 v[16:19], v11, {srd(R_WS)}, s{sT0} offen
    buffer_store_dwordx4 v[20:23], v11, {srd(R_WS)}, s{sT0} offen offset:16
    buffer_store_dword v24, v11, {srd(R_WS)}, s{sT0} offen offset:32
    """)
if OPT["hdbg"]:
    A(f"""
    s_load_dwordx2 s[{sT2}:{sT3}], s[0:1], 120
    s_not_b32 s{sT0}, s{sST}
    v_mov_b32 v30, s{sT0}
    v_mov_b32 v31, 0
    s_waitcnt lgkmcnt(0)
    global_atomic_umax v31, v30, s[{sT2}:{sT3}]
    s_cmp_ge_u32 s{sWAVE}, 4
    s_cbranch_scc1 L_hdS
    """)
    for k, i in enumerate((0, 2, 3, 4, 5, 6, 8)):
        A(f"global_atomic_umax v31, v{16+i}, s[{sT2}:{sT3}] offset:{4*(1+k)}")
    A("s_branch L_end")
    A.label("L_hdS")
    for k, i in enumerate((1, 2, 3, 4, 5, 6, 7, 8)):
        if i in (1, 2):
            A(f"s_cmp_lg_u32 s{sWAVE}, 4")
            A(f"s_cbranch_scc1 L_hd{i}")
        A(f"global_atomic_umax v31, v{16+i}, s[{sT2}:{sT3}] offset:{4*(8+k)}")
        if i in (1, 2): A.label(f"L_hd{i}")
A.label("L_end")
A("s_endpgm")

A.label("L_S2a")
A("s_waitcnt vmcnt(0)")
A.label("L_S2")
SSEC[0] = True
kload([(R_XA, 0), (R_BRE, 24), (R_BIM, 32), (R_CRE, 40), (R_CIM, 48), (R_WO, 104), (R_AGG, 128)])
if OPT["pfc"]:
    A(f"""
    s_cmp_lg_u32 s{sWAVE}, 7
    s_cbranch_scc1 L_nopfcode
    s_getpc_b64 s[{sT0}:{sT1}]
    L_pc:
    s_sub_u32 s{sT0}, s{sT0}, L_pc-{NAME}_kernel
    s_subb_u32 s{sT1}, s{sT1}, 0
    s_lshl_b32 s{sLOOP}, s{sROT}, 13
    v_lshlrev_b32 v16, 7, v{vLANE}
    v_add_u32 v16, s{sLOOP}, v16
    v_min_u32 v16, L_hot_end-{NAME}_kernel-4, v16
    global_load_dword v{vDUM}, v16, s[{sT0}:{sT1}]
    L_nopfcode:
    """)
common_scalars()
srd_words([R_XA, R_BRE, R_BIM, R_CRE, R_CIM, R_WO, R_AGG])
A(f"""
s_lshl_b32 s{sT3}, s{sG}, 7
s_lshl_b32 s{sT4}, s{sG}, 16
s_waitcnt lgkmcnt(0)
s_mov_b64 s[{P_LRE}:{P_LRE+1}], s[{R_BRE}:{R_BRE+1}]
s_mov_b64 s[{P_LIM}:{P_LIM+1}], s[{R_BIM}:{R_BIM+1}]
s_mov_b64 s[{P_LDT}:{P_LDT+1}], s[{R_CRE}:{R_CRE+1}]
s_mov_b64 s[{P_DSK}:{P_DSK+1}], s[{R_CIM}:{R_CIM+1}]
s_mov_b64 s[{P_WV}:{P_WV+1}], s[{R_WO}:{R_WO+1}]
""")
for r, t in ((R_XA, sT2), (R_BRE, sT4), (R_BIM, sT4), (R_CRE, sT4), (R_CIM, sT4), (R_WO, sT3)):
    A(f"s_add_u32 s{r}, s{r}, s{t}")
    A(f"s_addc_u32 s{r+1}, s{r+1}, 0")
A(f"""
s_add_u32 s{R_AGG}, s{R_AGG}, {AGG}
s_addc_u32 s{R_AGG+1}, s{R_AGG+1}, 0
""")
common_after_wait(False)
if OPT["tlb"]:
    A(f"""
    s_cmp_lg_u32 s{sSW}, 2
    s_cbranch_scc1 L_notlb
    v_mov_b32 v16, 0
    s_lshl_b32 s{sT0}, s{sC}, 17
    s_add_u32 s{sT0}, s{sT0}, {HB}
    s_mov_b32 s{sT1}, {KVT}
    s_mov_b64 exec, 1
    """)
    for R in (R_XA, R_BRE, R_BIM, R_WO, R_CRE, R_CIM, R_OUT):
        A(f"buffer_load_dword v{vDUM}, v16, {srd(R)}, 0 offen")
    A(f"""
    buffer_load_dword v{vDUM}, v16, {srd(R_WS)}, s{sOB} offen sc1
    buffer_load_dword v{vDUM}, v16, {srd(R_WS)}, s{sT0} offen offset:2048 sc1
    s_mov_b64 exec, -1
    L_notlb:
    """)
A(f"""
s_add_u32 s{sROT}, s{sC}, s{sG}
s_and_b32 s{sROT}, s{sROT}, 3
v_lshrrev_b32 v20, 4, v{vLANE}
v_and_b32 v21, 15, v{vLANE}
v_lshlrev_b32 v22, 4, v21
v_lshl_add_u32 v{vBo}, v20, 14, v22
v_lshrrev_b32 v23, 1, v20
v_and_b32 v24, 1, v20
v_lshlrev_b32 v23, 15, v23
v_lshl_add_u32 v23, v24, 12, v23
v_add_u32 v{vXo}, v23, v22
v_lshlrev_b32 v{vPF}, 7, v21
s_lshl_b32 s{sT0}, s2, 11
v_add_u32 v{vPF}, s{sT0}, v{vPF}
""")
def g1_soff(s):
    A(f"""
    s_add_u32 s{sT5}, s{sROT}, {s}
    s_and_b32 s{sT5}, s{sT5}, 3
    s_lshl_b32 s{sT5}, s{sT5}, 8
    s_lshl_b32 s{sT3}, s{sSW}, 12
    s_add_u32 s{sT3}, s{sT3}, s{sT5}
    s_lshl_b32 s{sT4}, s{sTW}, 14
    s_add_u32 s{sT4}, s{sT4}, s{sT5}
    s_lshl_b32 s{sT5}, s{sCW}, 11
    s_add_u32 s{sT4}, s{sT4}, s{sT5}
    s_add_u32 s{sT5}, s{sT4}, 8192
    """)
def capw(c=None):
    c = OPT["cap"] if c is None else c
    if c: A(f"s_waitcnt vmcnt({c})")
def dma_piece(n):
    dma_piece_(n)
    capw(OPT["cap0"] if n < OPT["npre"] else None)
def dma_piece_(n):
    st, r = divmod(n, 12); i, m = divmod(r, 3)
    slot = SLOT[st % 3]
    if r == 0: g1_soff(st)
    if m == 0:
        A(f"s_add_u32 m0, s{sT7}, {slot + XA_O + i*1040 - (i>>1)*1024}")
        A("s_nop 0")
        A(f"buffer_load_dwordx4 v{vXo}, {srd(R_XA)}, s{sT5 if i & 1 else sT4} offen offset:{(i>>1)*1024} lds")
    else:
        A(f"s_add_u32 m0, s{sT7}, {slot + [0, BRE_O, BIM_O][m] + i*16}")
        A("s_nop 0")
        A(f"buffer_load_dwordx4 v{vBo}, {srd([0, R_BRE, R_BIM][m])}, s{sT3} offen offset:{i*1024} lds")
LOG2E = math.log2(math.e)
a0, a1, a2, a3, a4, a5 = PRM, PRM+1, PRM+2, 96, 97, 98
vLR, vLI = vL1, vL1 + 1
A(f"""
s_mov_b32 s{sT0}, {f2u(LOG2E)}
v_lshlrev_b32 v{a0}, 16, v{a0}
v_lshlrev_b32 v{a1}, 16, v{a1}
v_lshlrev_b32 v{a2}, 16, v{a2}
v_mul_f32 v{a2}, s{sT0}, v{a2}
v_exp_f32 v{a2}, v{a2}
s_nop 0
v_cvt_pk_bf16_f32 v{a2}, v{a2}, v{a2}
v_and_b32 v{a2}, 0xffff0000, v{a2}
v_mul_f32 v{a3}, v{a2}, v{a0}
v_mul_f32 v{a4}, v{a2}, v{a1}
v_mul_f32 v{a3}, s{sT0}, v{a3}
v_exp_f32 v{a3}, v{a3}
v_mul_f32 v{a4}, 0.15915494, v{a4}
v_fract_f32 v{a4}, v{a4}
v_cos_f32 v{vLR}, v{a4}
v_sin_f32 v{vLI}, v{a4}
s_nop 0
v_mul_f32 v{vLR}, v{a3}, v{vLR}
v_mul_f32 v{vLI}, v{a3}, v{vLI}
v_mul_f32 v{a2}, v{a0}, v{a0}
v_fmac_f32 v{a2}, v{a1}, v{a1}
v_rcp_f32 v{a2}, v{a2}
v_add_f32 v{a3}, -1.0, v{vLR}
v_mul_f32 v{a4}, v{a3}, v{a0}
v_fmac_f32 v{a4}, v{vLI}, v{a1}
v_mul_f32 v{a5}, v{vLI}, v{a0}
v_fma_f32 v{a5}, -v{a3}, v{a1}, v{a5}
v_add_f32 v{a2}, v{a2}, v{a2}
v_mul_f32 v{vCF}, v{a4}, v{a2}
v_mul_f32 v{vCF+1}, v{a5}, v{a2}
""")
def csq(d, s_):
    A(f"v_mul_f32 v{a0}, v{s_+1}, v{s_+1}")
    A(f"v_mul_f32 v{a1}, v{s_}, v{s_+1}")
    A(f"v_fma_f32 v{d}, v{s_}, v{s_}, -v{a0}")
    A(f"v_add_f32 v{d+1}, v{a1}, v{a1}")
csq(vL8, vL1); csq(vL8, vL8); csq(vL8, vL8)
csq(vL16, vL8)
csq(vL64, vL16); csq(vL64, vL64)
csq(vL512, vL64); csq(vL512, vL512); csq(vL512, vL512)
vD = PRM + 3
A(f"""
v_and_b32 v20, 1, v{vL31}
v_lshlrev_b32 v20, 4, v20
v_lshlrev_b32 v{vD}, v20, v{vD}
v_bfe_u32 v20, v{vL31}, 3, 1
v_cmp_eq_u32 vcc, v20, v{vH}
v_bfe_u32 v21, v{vL31}, 1, 2
v_lshrrev_b32 v22, 4, v{vL31}
v_cndmask_b32 v{vD}, 0, v{vD}, vcc
v_lshl_add_u32 v21, v22, 2, v21
""")
for i in range(8):
    A(f"v_cmp_eq_u32 vcc, {i}, v21")
    A("s_nop 1")
    A(f"v_cndmask_b32 v{DG+i}, 0, v{vD}, vcc")
A(f"""
v_and_b32 v20, 15, v{vL31}
v_mul_u32_u24 v20, 1040, v20
v_lshl_add_u32 v20, v{vH}, 4, v20
v_lshrrev_b32 v21, 4, v{vL31}
v_lshl_add_u32 v20, v21, 8, v20
s_lshl_b32 s{sT0}, s{sTW}, 9
v_add_u32 v{vAa[0]}, s{sT0}, v20
v_add_u32 v{vAa[1]}, {SLOT[1]}, v{vAa[0]}
s_lshl_b32 s{sT0}, s{sCW}, 9
s_add_u32 s{sT0}, s{sT0}, {BRE_O}
v_add_u32 v{vBa[0]}, s{sT0}, v20
v_add_u32 v{vBa[1]}, {SLOT[1]}, v{vBa[0]}
v_bfe_u32 v20, v{vL31}, 2, 1
v_lshlrev_b32 v20, 3, v20
v_bfe_u32 v21, v{vL31}, 4, 1
v_lshl_add_u32 v20, v21, 2, v20
v_and_b32 v21, 3, v{vL31}
v_add_u32 v20, v20, v21
v_mul_u32_u24 v20, 1040, v20
v_bfe_u32 v21, v{vL31}, 3, 1
v_lshl_add_u32 v20, v21, 8, v20
v_lshl_add_u32 v20, v{vH}, 4, v20
s_lshl_b32 s{sT0}, s{sTW}, 9
s_and_b32 s{sT1}, s{sG}, 1
s_lshl_b32 s{sT1}, s{sT1}, 7
s_add_u32 s{sT0}, s{sT0}, s{sT1}
s_lshl_b32 s{sT1}, s{sCW}, 6
s_add_u32 s{sT0}, s{sT0}, s{sT1}
s_lshr_b32 s{sLOOP}, s{sG}, 1
s_sub_u32 s{sLOOP}, s{sLOOP}, s{sROT}
s_and_b32 s{sLOOP}, s{sLOOP}, 3
s_mul_i32 s{sT1}, s{sLOOP}, {SLOT[1]}
s_cmp_eq_u32 s{sLOOP}, 3
s_cselect_b32 s{sT1}, 0, s{sT1}
s_add_u32 s{sT0}, s{sT0}, s{sT1}
v_add_u32 v{vDa}, s{sT0}, v20
s_mul_i32 s{sT7}, s{sSW}, {4*1040}
v_add_u32 v{vAa[2]}, {SLOT[2]}, v{vAa[0]}
v_add_u32 v{vBa[2]}, {SLOT[2]}, v{vBa[0]}
""")
cnt_wait(vCNT, vTMP, 6, 0, sleep=1)
cnt_wait(vCNT, vTMP, 4, 12, sleep=1)
if OPT["stgl"] > 2: cnt_wait(vCNT, vTMP, 4*OPT["stgl"], 4, sleep=2)
def pfx(items):
    if OPT["pfb"] != 2: return
    nsh = 8 if OPT["map84"] else 4
    for R, sw, shift in items:
        lbl = A.newlabel("pfx")
        A(f"""
        s_cmp_lg_u32 s{sSW}, {sw}
        s_cbranch_scc1 {lbl}
        s_and_b32 s{sT0}, s{sC}, {nsh - 1}
        s_lshl_b32 s{sT0}, s{sT0}, {shift + 6 + (0 if nsh == 8 else 1)}
        v_lshlrev_b32 v{vPF}, {shift}, v{vLANE}
        buffer_load_dword v{vDUM}, v{vPF}, {srd(R)}, s{sT0} offen
        """)
        if nsh == 4:
            A(f"s_add_u32 s{sT0}, s{sT0}, {64 << shift}")
            A(f"buffer_load_dword v{vDUM}, v{vPF}, {srd(R)}, s{sT0} offen")
        A.label(lbl)
def pf16(pairs, lbl):
    if OPT["pfb"] != 1: return
    A(f"""
    s_cmp_lg_u32 s{sSW}, 1
    s_cbranch_scc1 {lbl}
    s_mov_b64 exec, 0xffff
    """)
    for p in pairs: A(f"global_load_dword v{vDUM}, v{vPF}, s[{p}:{p+1}]")
    A(f"s_mov_b64 exec, -1\n{lbl}:")
pf16([P_LRE, P_LIM, P_WV], "L_nopfb")
cnt_wait(vCNT, vTMP, 12, 4, sleep=0)
if OPT["noS"]: A("s_branch L_fin")
prio(OPT["gprio"])
sstamp(1, 1)
NPRE = OPT["npre"]
for n in range(NPRE): dma_piece(n)
ISS = [NPRE]
A(f"s_waitcnt vmcnt({NPRE - 12})")
sstamp(2, 1)
prio(OPT["vprio"])
sync_add(False); sync_wait(0)
sstamp(3, 1)
G1B = [FRS, FRS + 12, 64]
def g1_stage(s, extra=None, nwr=None, early_add=None):
    slot = s % 3
    prio(3 if (OPT["g1p"] >> s) & 1 else OPT["gprio"])
    sk = A.newlabel("nod")
    A(f"""
    s_cmp_lg_u32 s{sLOOP}, {s}
    s_cbranch_scc1 {sk}
    ds_read_b128 v[64:67], v{vDa}
    ds_read_b128 v[68:71], v{vDa} offset:32
    s_waitcnt lgkmcnt(0)
    v_mfma_f32_32x32x16_bf16 v[{Y0}:{Y0+15}], v[64:67], v[{DG}:{DG+3}], 0
    v_mfma_f32_32x32x16_bf16 v[{Y0}:{Y0+15}], v[68:71], v[{DG+4}:{DG+7}], v[{Y0}:{Y0+15}]
    {sk}:
    """)
    def rd(k):
        f = G1B[k % 3]
        A(f"ds_read_b128 v[{f}:{f+3}], v{vAa[slot]} offset:{k*32}")
        A(f"ds_read_b128 v[{f+4}:{f+7}], v{vBa[slot]} offset:{k*32}")
        A(f"ds_read_b128 v[{f+8}:{f+11}], v{vBa[slot]} offset:{k*32 + (BIM_O-BRE_O)}")
    rd(0); rd(1)
    for k in range(8):
        f = G1B[k % 3]
        if k + 2 < 8: rd(k + 2)
        nw = nwr(k - 1) if (nwr and k > 0) else 0
        A(f"s_waitcnt lgkmcnt({min(15, 3*(min(8, k + 3) - k - 1) + nw)})")
        if k == 7 and early_add is not None:
            if early_add: A(early_add)
            sync_add(False)
        cr = "0" if (s == 0 and k == 0) else f"v[{UR}:{UR+15}]"
        ci = "0" if (s == 0 and k == 0) else f"v[{UI}:{UI+15}]"
        A(f"v_mfma_f32_32x32x16_bf16 v[{UR}:{UR+15}], v[{f}:{f+3}], v[{f+4}:{f+7}], {cr}")
        if extra: extra(k)
        A(f"v_mfma_f32_32x32x16_bf16 v[{UI}:{UI+15}], v[{f}:{f+3}], v[{f+8}:{f+11}], {ci}")
def issue_upto(lim, k, last):
    cnt = -(-(lim - ISS[0]) // max(1, last - k)) if k < last else 0
    for n in range(ISS[0], min(lim, ISS[0] + cnt)): dma_piece(n)
    ISS[0] = min(lim, ISS[0] + cnt)
L0 = OPT["l0"]
g1_stage(0, lambda k: issue_upto(L0, k, 7), early_add=f"s_waitcnt vmcnt({L0 - 24})")
assert ISS[0] == L0
sstamp(4, 1)
prio(OPT["vprio"])
pfx([(R_WO, 1, 10)])
sync_wait(0)
g1_stage(1, lambda k: issue_upto(48, k, 7), early_add="s_waitcnt vmcnt(12)")
assert ISS[0] == 48
sstamp(5, 1)
prio(OPT["vprio"])
CLR = 64
A(f"""
v_mov_b32 v{CLR}, -1
v_mov_b32 v{CLR+1}, -1
v_mov_b32 v{CLR+2}, -1
v_mov_b32 v{CLR+3}, -1
s_lshl_b32 s{sT0}, s{sG}, 12
s_add_u32 s{sT0}, s{sT0}, s{sOB}
s_lshl_b32 s{sT1}, s{sCW}, 11
s_add_u32 s{sT0}, s{sT0}, s{sT1}
buffer_store_dwordx4 v[{CLR}:{CLR+3}], v{vL16x}, {srd(R_WS)}, s{sT0} offen sc1
buffer_store_dwordx4 v[{CLR}:{CLR+3}], v{vL16x}, {srd(R_WS)}, s{sT0} offen offset:1024 sc1
v_mov_b32 v{CLR+4}, 0
v_mov_b32 v{CLR+5}, s{sTAG}
v_mov_b32 v{CLR+6}, 0
v_mov_b32 v{CLR+7}, s{sTAG}
s_lshl_b32 s{sT1}, s{sID}, 7
s_add_u32 s{sT1}, s{sT1}, {AGG_DUMMY}
s_mov_b64 exec, 1
buffer_store_dwordx4 v[{CLR+4}:{CLR+7}], v{CLR+4}, {srd(R_AGG)}, s{sT1} offen sc1
s_mov_b64 exec, -1
""")
sync_wait(0)
g1_stage(2, early_add="s_waitcnt vmcnt(0)")
sstamp(6, 1)
prio(OPT["vprio"])
pf16([P_LDT, P_DSK], "L_nopfc")
pfx([(R_CRE, 2, 7), (R_CIM, 3, 7)])
wq_voffset(5, 6, 8, 15)
A(f"""
s_mul_i32 s{sT2}, s{sSW}, {16*1040}
s_lshl_b32 s{sT3}, s{sSW}, 14
s_lshl_b32 s{sT6}, s{sSW}, 17
""")
sync_wait(0)
def wo_piece(i):
    A(f"""
    s_add_u32 m0, s{sT3}, {WO + i*1024}
    s_add_u32 s{sT1}, s{sT6}, {i*8192}
    buffer_load_dwordx4 v5, {srd(R_WO)}, s{sT1} offen lds
    """)
    capw()
def c_piece(R, base, i):
    A(f"s_add_u32 m0, s{sT2}, {base + i*1040 - (i & 3)*1024}")
    if i & 3 == 0: A(f"s_add_u32 s{sT4}, s{sT3}, {i*1024}")
    else: A("s_nop 0")
    A(f"buffer_load_dwordx4 v{vL16x}, {srd(R)}, s{sT4} offen offset:{(i & 3)*1024} lds")
    capw()
def ex3(k):
    wo_piece(2*k); wo_piece(2*k + 1)
g1_stage(3, ex3)
sstamp(7, 1); sstamp(1, 2)
prio(OPT["vprio"])
stamp(3)
A(f"""
s_lshl_b32 s{sT0}, s{sTW}, 10
s_lshl_b32 s{sT1}, s{sCW}, 8
s_add_u32 s{sT1}, s{sT1}, {EB}
s_add_u32 s{sT0}, s{sT0}, s{sT1}
v_lshlrev_b32 v10, 3, v{vL31}
v_add_u32 v11, s{sT1}, v10
v_lshl_add_u32 v10, v{vH}, 9, v10
v_add_u32 v10, s{sT0}, v10
""")
A.nop(4)
if OPT["dbg"]:
    A(f"""
    s_lshl_b32 s{sT0}, s{sID}, 2
    s_add_u32 s{sT0}, s{sT0}, s{sSW}
    s_lshl_b32 s{sT0}, s{sT0}, 13
    s_add_u32 s{sT0}, s{sT0}, {DBG}
    v_lshlrev_b32 v12, 2, v{vLANE}
    """)
    for i in range(32):
        A(f"buffer_store_dword v{UR+i}, v12, {srd(R_WS)}, s{sT0} offen")
        A(f"s_add_u32 s{sT0}, s{sT0}, 256")
    A("s_waitcnt vmcnt(0)")
def cstep4(dr, di, pr, pi, l, ur, ui, tr, ti):
    A(f"v_fma_f32 v{tr}, v{l}, v{pr}, v{ur}")
    A(f"v_fma_f32 v{ti}, v{l}, v{pi}, v{ui}")
    A(f"v_fma_f32 v{dr}, -v{l+1}, v{pi}, v{tr}")
    A(f"v_fma_f32 v{di}, v{l+1}, v{pr}, v{ti}")
def p2(r): return f"v[{r}:{r+1}]"
def pkstep(dr, di, pr, pi, l, ur, ui, tr, ti):
    A(f"v_pk_fma_f32 {p2(tr)}, {p2(l)}, {p2(pr)}, {p2(ur)} op_sel_hi:[0,1,1]")
    A(f"v_pk_fma_f32 {p2(ti)}, {p2(l)}, {p2(pi)}, {p2(ui)} op_sel_hi:[0,1,1]")
    A(f"v_pk_fma_f32 {p2(dr)}, {p2(l)}, {p2(pi)}, {p2(tr)} op_sel:[1,0,0] neg_lo:[1,0,0] neg_hi:[1,0,0]")
    A(f"v_pk_fma_f32 {p2(di)}, {p2(l)}, {p2(pr)}, {p2(ti)} op_sel:[1,0,0]")
pa = [(FRS, FRS+2), (6, 8)]
p = (UR, UI)
for j in range(1, 8):
    d = pa[j & 1]
    pkstep(d[0], d[1], p[0], p[1], vL1, UR+2*j, UI+2*j, FRS+4, FRS+6)
    p = d
EA = (6, 8)
cstep4(FRS, FRS+1, 6, 8, vL8, 7, 9, FRS+4, FRS+5)
A(f"ds_write_b64 v10, v[{FRS}:{FRS+1}]")
A("s_waitcnt vmcnt(0)")
sync_add()
LB = 64
A(f"""
s_lshl_b32 s{sT0}, s{sTW}, 4
s_sub_u32 s{sT0}, s{sC}, s{sT0}
s_sub_u32 s{sT0}, s{sT0}, 1
s_lshl_b32 s{sT0}, s{sT0}, 13
v_lshlrev_b32 v5, 16, v{vH}
v_sub_u32 v5, s{sT0}, v5
v_lshl_add_u32 v5, v{vP2}, 3, v5
s_lshl_b32 s{sT1}, s{sID}, 7
s_add_u32 s{sT1}, s{sT1}, {AGG_DUMMY}
""")
for k in range(8):
    A(f"v_min_u32 v{96+k}, s{sT1}, v5")
    if k < 7: A(f"v_add_u32 v5, {(-8192) & 0xffffffff}, v5")
sync_wait(0)
sstamp(2, 2)
E = FRS
for s in range(4):
    A(f"ds_read_b64 v[{E+2*s}:{E+2*s+1}], v11 offset:{s*512}")
A("s_waitcnt lgkmcnt(0)")
A1, A2, G3 = (104, 105), (106, 107), 108
cstep4(A1[0], A1[1], E, E+1, vL16, E+2, E+3, FRS+8, FRS+9)
cstep4(A2[0], A2[1], A1[0], A1[1], vL16, E+4, E+5, FRS+8, FRS+9)
vPR, vPI, vW = 12, 13, 14
tw1 = A.newlabel("tw1"); twd = A.newlabel("twd")
A(f"""
v_cmp_eq_u32 vcc, 1, v{vH}
s_cmp_lg_u32 s{sTW}, 0
s_cbranch_scc1 {tw1}
""")
cstep4(G3, G3+2, A2[0], A2[1], vL16, E+6, E+7, FRS+8, FRS+9)
A(f"""
v_mov_b32 v{G3+1}, s{sTAG}
v_mov_b32 v{G3+3}, s{sTAG}
v_lshlrev_b32 v7, 3, v{vP2}
s_lshl_b32 s{sT0}, s{sC}, 13
s_mov_b32 exec_hi, 0
buffer_store_dwordx4 v[{G3}:{G3+3}], v7, {srd(R_AGG)}, s{sT0} offen sc1
s_mov_b32 exec_hi, -1
v_cndmask_b32 v{vPR}, 0, v{E}, vcc
v_cndmask_b32 v{vPI}, 0, v{E+1}, vcc
v_cndmask_b32 v{vW}, 1.0, v{vL16}, vcc
v_cndmask_b32 v{vW+1}, 0, v{vL16+1}, vcc
s_branch {twd}
{tw1}:
v_cndmask_b32 v{vPR}, v{A1[0]}, v{A2[0]}, vcc
v_cndmask_b32 v{vPI}, v{A1[1]}, v{A2[1]}, vcc
v_mul_f32 v{FRS+8}, v{vL16+1}, v{vL16+1}
v_mul_f32 v{FRS+9}, v{vL16}, v{vL16+1}
v_fma_f32 v{FRS+8}, v{vL16}, v{vL16}, -v{FRS+8}
v_add_f32 v{FRS+9}, v{FRS+9}, v{FRS+9}
v_mul_f32 v{FRS+10}, v{FRS+8}, v{vL16}
v_mul_f32 v{FRS+11}, v{FRS+8}, v{vL16+1}
v_fma_f32 v{FRS+10}, -v{FRS+9}, v{vL16+1}, v{FRS+10}
v_fma_f32 v{FRS+11}, v{FRS+9}, v{vL16}, v{FRS+11}
v_cndmask_b32 v{vW}, v{FRS+8}, v{FRS+10}, vcc
v_cndmask_b32 v{vW+1}, v{FRS+9}, v{FRS+11}, vcc
{twd}:
""")
A(f"s_mov_b32 s{sSPIN}, 0")
A(f"""
s_lshl_b32 s{sT0}, s{sSW}, 12
s_add_u32 s{sT0}, s{sT0}, {TB}
v_lshlrev_b32 v9, 6, v{vL31}
v_lshl_add_u32 v9, v{vH}, 5, v9
v_add_u32 v9, s{sT0}, v9
v_bfe_u32 v108, v{vLANE}, 2, 2
v_lshl_add_u32 v108, v{vH}, 3, v108
v_lshlrev_b32 v108, 6, v108
v_bfe_u32 v109, v{vLANE}, 4, 1
v_lshl_add_u32 v108, v109, 5, v108
v_and_b32 v109, 3, v{vLANE}
v_lshl_add_u32 v108, v109, 3, v108
v_add_u32 v108, s{sT0}, v108
""")
A(f"""
v_bfe_u32 v5, v{vLANE}, 2, 2
v_lshl_add_u32 v5, v{vH}, 2, v5
v_bfe_u32 v7, v{vLANE}, 4, 1
v_and_b32 v110, 3, v{vLANE}
v_lshlrev_b32 v110, 3, v110
v_lshl_add_u32 v110, v7, 5, v110
v_bfe_u32 v7, v{vLANE}, 3, 1
v_lshl_add_u32 v110, v7, 6, v110
v_lshl_add_u32 v110, v5, 7, v110
s_lshl_b32 s{sT0}, s{sCW}, 13
s_add_u32 s{sT0}, s{sT0}, {WO}
s_lshl_b32 s{sT1}, s{sCW}, 6
v_xor_b32 v110, s{sT1}, v110
v_xor_b32 v111, 64, v110
v_add_u32 v110, s{sT0}, v110
v_add_u32 v111, s{sT0}, v111
""")
for j in range(16):
    for nt in range(2):
        f = 8*j + 4*nt
        A(f"ds_read_b64_tr_b16 a[{f}:{f+1}], v{110 + nt} offset:{(j>>2)*16384 + (j&3)*2048}")
        A(f"ds_read_b64_tr_b16 a[{f+2}:{f+3}], v{110 + nt} offset:{(j>>2)*16384 + (j&3)*2048 + 1024}")
    if j % 3 == 2: A("s_waitcnt lgkmcnt(3)")
prio(OPT["gprio"])
for i in range(OPT["cim1"]): c_piece(R_CIM, CIM, i)
prio(OPT["vprio"])
sstamp(3, 2)
A.label("L_lb")
for k in range(8):
    A(f"buffer_load_dwordx4 v[{LB+4*k}:{LB+4*k+3}], v{96+k}, {srd(R_AGG)}, 0 offen sc1")
A(f"""
s_add_u32 s{sSPIN}, s{sSPIN}, 1
s_waitcnt vmcnt(0)
v_min_u32 v5, v{LB+1}, v{LB+3}
v_max3_u32 v7, s{sTAG}, v{LB+1}, v{LB+3}
""")
for k in range(1, 8):
    A(f"v_min3_u32 v5, v5, v{LB+4*k+1}, v{LB+4*k+3}")
    A(f"v_max3_u32 v7, v7, v{LB+4*k+1}, v{LB+4*k+3}")
A(f"""
v_min_u32 v5, s{sTAG}, v5
v_cmp_ne_u32 vcc, v5, v7
s_cbranch_vccz L_lbd
s_sleep 8
s_cmp_lt_u32 s{sSPIN}, {SPIN_MAX}
s_cbranch_scc1 L_lb
L_lbd:
""")
stamp(4); sstamp(4, 2)
p = (LB+28, LB+30)
pb = [(96, 97), (98, 99)]
for k in range(6, -1, -1):
    d = pb[k & 1]
    cstep4(d[0], d[1], p[0], p[1], vL64, LB+4*k, LB+4*k+2, 100, 101)
    p = d
A(f"ds_write_b64 v10, v[96:97] offset:{HP-EB}")
sync_add(); sync_wait(0)
sstamp(5, 2)
for s in range(4):
    A(f"ds_read_b64 v[{E+2*s}:{E+2*s+1}], v11 offset:{HP - EB + s*512}")
A("s_waitcnt lgkmcnt(0)")
p = (E+6, E+7)
for s in range(2, -1, -1):
    d = pb[s & 1]
    cstep4(d[0], d[1], p[0], p[1], vL512, E+2*s, E+2*s+1, 100, 101)
    p = d
CRp, CIp = 104, 106
cstep4(CRp, CIp, p[0], p[1], vW, vPR, vPI, 100, 101)
cstep4(CRp+1, CIp+1, CRp, CIp, vL8, EA[0], EA[1], 100, 101)
HR, HI = FRS, FRS+8
p = (CRp, CIp)
for j in range(8):
    pkstep(UR+2*j, UI+2*j, p[0], p[1], vL1, UR+2*j, UI+2*j, 100, 102)
    p = (UR+2*j, UI+2*j)
    if OPT['cpos'] == 0: c_piece(R_CRE, CRE, 2*j)
    A(f"v_pk_mul_f32 {p2(96)}, {p2(vCF)}, {p2(UI+2*j)} op_sel:[1,0]")
    A(f"v_pk_mul_f32 {p2(98)}, {p2(vCF)}, {p2(UR+2*j)} op_sel:[1,0]")
    A(f"v_pk_fma_f32 {p2(96)}, {p2(vCF)}, {p2(UR+2*j)}, {p2(96)} op_sel_hi:[0,1,1] neg_lo:[0,0,1] neg_hi:[0,0,1]")
    A(f"v_pk_fma_f32 {p2(98)}, {p2(vCF)}, {p2(UI+2*j)}, {p2(98)} op_sel_hi:[0,1,1] neg_lo:[1,0,1] neg_hi:[1,0,1]")
    if OPT['cpos'] == 0: c_piece(R_CRE, CRE, 2*j + 1)
    A(f"v_cvt_pk_bf16_f32 v{HR+j}, v96, v97")
    A(f"v_cvt_pk_bf16_f32 v{HI+j}, v98, v99")
    if j == 3:
        A(f"ds_write_b128 v9, v[{HR}:{HR+3}]")
        A(f"ds_write_b128 v9, v[{HI}:{HI+3}] offset:2048")
A(f"""
ds_write_b128 v9, v[{HR+4}:{HR+7}] offset:16
ds_write_b128 v9, v[{HI+4}:{HI+7}] offset:2064
s_lshl_b32 s{sKOFF}, s{sC}, 1
s_add_u32 s{sKOFF}, s{sKOFF}, s{sTW}
s_lshl_b32 s{sKOFF}, s{sKOFF}, 16
s_add_u32 s{sKOFF}, s{sKOFF}, {HB}
s_lshl_b32 s{sT1}, s{sG}, 12
s_lshl_b32 s{sT7}, s{sCW}, 11
s_add_u32 s{sT1}, s{sT1}, s{sT7}
s_add_u32 s{sT0}, s{sKOFF}, s{sT1}
s_add_u32 s{sT1}, s{sT0}, 32768
s_waitcnt lgkmcnt(0)
""")
for part in range(2):
    for hf in range(2):
        f = 64 + 8*part + 4*hf
        A(f"ds_read_b64_tr_b16 v[{f}:{f+1}], v108 offset:{part*2048 + hf*1024}")
        A(f"ds_read_b64_tr_b16 v[{f+2}:{f+3}], v108 offset:{part*2048 + hf*1024 + 256}")
for n in range(4):
    A(f"s_waitcnt lgkmcnt({6 - 2*n})")
    A(f"buffer_store_dwordx4 v[{64+4*n}:{67+4*n}], v{vL16x}, {srd(R_WS)}, s{sT0 if n < 2 else sT1} offen offset:{(n&1)*1024} sc1")
A(f"""
s_lshl_b32 s{sT7}, s{sC}, 12
s_add_u32 s{sT7}, s{sT7}, {FL3}
v_and_b32 v5, 15, v{vLANE}
v_lshlrev_b32 v5, 8, v5
s_lshl_b32 s{sT0}, s{sTW}, 7
s_add_u32 s{sT0}, s{sT0}, s{sT7}
v_add_u32 v5, s{sT0}, v5
v_mov_b32 v12, s{sTAG}
v_mov_b32 v13, 0
s_lshl_b32 s{sT1}, s{sG}, 2
s_add_u32 s{sT1}, s{sT1}, s{sSW}
s_lshl_b32 s{sT1}, s{sT1}, 7
s_add_u32 s{sT1}, s{sT1}, s{sT7}
""")
sstamp(6, 2)
A("s_waitcnt vmcnt(0)")
sstamp(7, 2); sstamp(1, 3)
A(f"""
s_mov_b64 exec, 1
buffer_store_dword v12, v13, {srd(R_WS)}, s{sT1} offen sc1
ds_add_u32 v{vCNT}, v{vONE} offset:28
s_mov_b64 exec, -1
""")
A(f"""
v_bfe_u32 v6, v{vLANE}, 4, 1
v_and_b32 v7, 15, v{vLANE}
v_lshlrev_b32 v7, 4, v7
v_lshl_add_u32 v7, v6, 9, v7
v_lshl_add_u32 v7, v{vH}, 15, v7
s_lshr_b32 s{sT5}, s{sT2}, 1
s_lshr_b32 s{sT6}, s{sT3}, 1
""")
prio(OPT["gprio"])
for half, base in ((0, CREA), (1, CREB)):
    for i in range(8):
        A(f"s_add_u32 m0, s{sT5}, {base + i*1040 - (i & 3)*1024}")
        if i & 3 == 0: A(f"s_add_u32 s{sT4}, s{sT6}, {i*1024 + half*256}")
        else: A("s_nop 0")
        A(f"buffer_load_dwordx4 v7, {srd(R_CRE)}, s{sT4} offen offset:{(i & 3)*1024} lds")
        capw()
prio(OPT["vprio"])
stamp(5, not HST)
A(f"""
v_mul_u32_u24 v10, 1040, v{vL31}
v_lshl_add_u32 v10, v{vH}, 4, v10
s_mul_i32 s{sT0}, s{sCW}, {512 + 32*1040}
s_mul_i32 s{sT1}, s{sCW}, {(512 - 32*1040) & 0xffffffff}
s_add_u32 s{sT1}, s{sT1}, {32*1040}
s_mul_i32 s{sT5}, s{sCW}, 768
s_mul_i32 s{sT6}, s{sCW}, {(-256) & 0xffffffff}
s_add_u32 s{sT5}, s{sT5}, {CREB}
s_add_u32 s{sT6}, s{sT6}, {CREB + 512}
v_add_u32 v14, s{sT5}, v10
v_add_u32 v15, s{sT6}, v10
v_add_u32 v11, s{sT1}, v10
v_add_u32 v10, s{sT0}, v10
s_lshl_b32 s{sT1}, s{sCW}, 14
s_add_u32 s{sKOFF}, s{sKOFF}, s{sT1}
s_lshl_b32 s{sT1}, s{sCW}, 12
s_add_u32 s{sOB}, s{sOB}, s{sT1}
s_xor_b32 s{sT0}, s{sSW}, 2
s_lshl_b32 s{sT0}, s{sT0}, 12
v_add_u32 v114, s{sT0}, v{vL16x}
s_lshl_b32 s{sT0}, s{sSW}, 12
v_add_u32 v115, s{sT0}, v{vL16x}
v_add_u32 v119, {TBY}, v114
v_add_u32 v120, {TBY}, v115
s_lshl_b32 s{sT0}, s{sTW}, 17
s_lshl_b32 s{sT1}, s{sG}, 8
s_add_u32 s{sT0}, s{sT0}, s{sT1}
s_lshl_b32 s{sT1}, s{sCW}, 7
s_add_u32 s{sT0}, s{sT0}, s{sT1}
v_lshlrev_b32 v113, 2, v{vL31}
v_add_u32 v113, s{sT0}, v113
v_lshl_add_u32 v118, v{vH}, 14, v113
v_add_u32 v118, 2048, v118
v_lshl_add_u32 v113, v{vH}, 13, v113
""")
sstamp(2, 3)
poll_flags(5, 12, 1, sleep=OPT['sl2'])
if OPT["cpos"] == 1: sync_add(False)
sstamp(3, 3)
LA = 7
HRING = 16
def hreg(j): return HRING + 4*(j % 8)
def h_ld(j):
    if j == 16: A(f"s_add_u32 s{sKOFF}, s{sKOFF}, {32768 - 3*4096}")
    elif j % 4 == 0 and j > 0: A(f"s_add_u32 s{sKOFF}, s{sKOFF}, 4096")
    A(f"buffer_load_dwordx4 v[{hreg(j)}:{hreg(j)+3}], v{vL16x}, {srd(R_WS)}, s{sKOFF} offen offset:{(j%4)*1024} sc1")
for j in range(LA): h_ld(j)
def g2_rd(j):
    f = FRS + 8*(j % 3)
    off = (CREA - CREB + j*32) if j < 8 else ((j - 8)*32 if j < 16 else (j - 16)*32)
    A(f"ds_read_b128 v[{f}:{f+3}], v{14 if j < 16 else 10} offset:{off}")
    A(f"ds_read_b128 v[{f+4}:{f+7}], v{15 if j < 16 else 11} offset:{off}")
def g2_mfma(j):
    f = FRS + 8*(j % 3)
    c = "0" if j == 0 else f"v[{Y1}:{Y1+15}]"
    A(f"v_mfma_f32_32x32x16_bf16 v[{Y1}:{Y1+15}], v[{hreg(j)}:{hreg(j)+3}], v[{f+4}:{f+7}], {c}")
    A(f"v_mfma_f32_32x32x16_bf16 v[{Y0}:{Y0+15}], v[{hreg(j)}:{hreg(j)+3}], v[{f}:{f+3}], v[{Y0}:{Y0+15}]")
sync_wait(0)
prio(3 if OPT["g2p"] & 1 else OPT["gprio"])
g2_rd(0); g2_rd(1)
VQ = list(range(LA))
P2 = 32 - OPT["p2n"]
assert 8 <= P2 <= 14
for j in range(32):
    if j == P2:
        prio(OPT["vprio"])
        A("s_waitcnt vmcnt(0)")
        sync_add(False); sync_wait()
        cnt_wait(vCNT, vTMP, 8, 12, sleep=OPT['sl1'])
        sstamp(6, 3); sstamp(1, 4)
        prio(3 if OPT["g2p"] & 2 else OPT["gprio"])
    if j + LA < 32:
        h_ld(j + LA); VQ.append(j + LA)
    if j < 8:
        for i in range(OPT["cim1"], 16)[2*j:2*j + 2]:
            if i == OPT["cim1"] and i & 3: A(f"s_add_u32 s{sT4}, s{sT3}, {(i & ~3)*1024}")
            c_piece(R_CIM, CIM, i); VQ.append(-1)
    if j + 2 < 32: g2_rd(j + 2)
    issued = min(32, j + 3)
    A(f"s_waitcnt vmcnt({len(VQ) - 1 - VQ.index(j)}) lgkmcnt({2*(issued - j - 1)})")
    if j == 0: sstamp(4, 3)
    if j == 7:
        cnt_add(vCNT, vONE, 8)
        stamp(6, not HST); sstamp(5, 3)
    g2_mfma(j)
prio(OPT["vprio"])
stamp(7); sstamp(7, 3); sstamp(2, 4)
cnt_wait(vCNT, vTMP, 12, 12)
sstamp(3, 4)
def oreg(j): return (16 + 4*j) if j < 8 else (80 + 4*(j - 8))
def o_loads(g4):
    A(f"s_add_u32 s{sT1}, s{sOB}, {g4*8192}")
    for j in range(4*g4, 4*g4 + 4):
        A(f"buffer_load_dwordx4 v[{oreg(j)}:{oreg(j)+3}], v{vL16x}, {srd(R_WS)}, s{sT1} offen offset:{(j%4)*1024} sc1")
if OPT["ofirst"]: o_loads(0)
else: A.nop(4)
for i in range(4):
    A(f"ds_write_b128 v119, v[{Y1+4*i}:{Y1+4*i+3}] offset:{i*1024}")
if OPT["ofirst"]:
    for g4 in range(1, 4): o_loads(g4)
sync_add(); sync_wait(0)
for i in range(4):
    A(f"ds_read_b128 v[{Y1+4*i}:{Y1+4*i+3}], v120 offset:{i*1024}")
for i in range(16):
    if i % 4 == 0: A(f"s_waitcnt lgkmcnt({3 - i//4})")
    A(f"v_add_f32 v{Y0+i}, v{Y0+i}, v{Y1+i}")
    A(f"s_mov_b32 s{sT1}, {(16*(i>>3) + 4*((i>>2)&1) + ((i>>1)&1) + 8*(i&1))*4096}")
    A(f"buffer_store_dword v{Y0+i}, v113, {srd(R_OUT)}, s{sT1} offen{OST}")
if not OPT["ofirst"]:
    for g4 in range(OPT["osplit"]): o_loads(g4)
    if OPT["oack"] == 2: cnt_wait(vCNT, vTMP, 6, 24)
    for g4 in range(OPT["osplit"], 4): o_loads(g4)
A(f"s_mov_b32 s{sSPIN}, 0")
NY0 = 16 - OPT["y1f"]
def y0_mfma(j):
    c0 = "0" if j == 0 else f"v[{Y0}:{Y0+15}]"
    A(f"v_mfma_f32_32x32x16_bf16 v[{Y0}:{Y0+15}], v[{oreg(j)}:{oreg(j)+3}], a[{8*j}:{8*j+3}], {c0}")
for g4 in range(4):
    lp = A.newlabel("op"); dn = A.newlabel("opd"); ck = A.newlabel("opc")
    j0 = 4*g4
    A(f"s_waitcnt vmcnt({(16 if OPT['ofirst'] else 0) + 4*(3 - g4)})")
    A.label(ck)
    A(f"v_max_u32 v13, v{oreg(j0)+1}, v{oreg(j0)+3}")
    for j in range(j0 + 1, j0 + 4):
        A(f"v_max3_u32 v13, v13, v{oreg(j)+1}, v{oreg(j)+3}")
    A(f"""
    v_cmp_eq_u32 vcc, -1, v13
    s_cbranch_vccz {dn}
    s_add_u32 s{sSPIN}, s{sSPIN}, 1
    s_cmp_gt_u32 s{sSPIN}, 20000
    s_cbranch_scc1 {dn}
    """)
    if OPT["osl"]: A(f"s_sleep {OPT['osl']}")
    o_loads(g4)
    A(f"""
    s_waitcnt vmcnt(0)
    s_branch {ck}
    {dn}:
    """)
    if g4 in (0, 3): sstamp(4 + g4 // 3, 4)
    for j in range(j0, j0 + 4):
        c0 = "0" if j == 0 else f"v[{Y0}:{Y0+15}]"
        c1 = "0" if j == 0 else f"v[{Y1}:{Y1+15}]"
        A(f"v_mfma_f32_32x32x16_bf16 v[{Y1}:{Y1+15}], v[{oreg(j)}:{oreg(j)+3}], a[{8*j+4}:{8*j+7}], {c1}")
        if j < NY0: y0_mfma(j)
if OPT["sst"] == 4: A(f"s_mov_b32 s{sST+14}, s{sSPIN}")
rest = list(range(NY0, 16))
n1 = min(len(rest), 3); n2 = min(len(rest) - n1, 4)
for j in rest[:n1]: y0_mfma(j)
A.nop(12 - n1 - (1 if NY0 == 16 else 0))
for i in range(4):
    A(f"ds_write_b128 v114, v[{Y1+4*i}:{Y1+4*i+3}] offset:{TB2 + i*1024}")
for j in rest[n1:n1 + n2]: y0_mfma(j)
A("s_waitcnt lgkmcnt(0)")
A("s_barrier")
sstamp(6, 4)
for i in range(4):
    A(f"ds_read_b128 v[{Y1+4*i}:{Y1+4*i+3}], v115 offset:{TB2 + i*1024}")
for j in rest[n1 + n2:]: y0_mfma(j)
if rest: A.nop(12 if rest[n1 + n2:] else 6)
for i in range(16):
    if i % 4 == 0: A(f"s_waitcnt lgkmcnt({3 - i//4})")
    A(f"v_add_f32 v{Y0+i}, v{Y0+i}, v{Y1+i}")
    A(f"s_mov_b32 s{sT1}, {(8*(i>>2) + (i&3))*4096}")
    A(f"buffer_store_dword v{Y0+i}, v118, {srd(R_OUT)}, s{sT1} offen{OSTB}")
A("s_branch L_fin")

A.label("L_hot_end")
A.label("L_slow")
A(f"""
s_cmp_lg_u32 s{sDONE}, 0
s_cbranch_scc1 L_fast
s_mov_b32 s{sDONE}, 1
s_waitcnt lgkmcnt(0)
""")
def a_sync():
    A(f"s_add_u32 s{sATG}, s{sATG}, 4")
    A("s_waitcnt lgkmcnt(0)")
    cnt_add(vCNT, vIDX, 4)
    cnt_wait(vCNT, 16, f"s{sATG}", 4, sleep=2)
for i in range(4): A(f"v_mov_b32 v{vZ+i}, 0")
for ct in range(8): A(f"v_mov_b32 v{vM+ct}, 0xff800000")
A("s_nop 1")
for ct in range(8):
    A(f"v_mfma_f32_32x32x16_bf16 a[{16*ct}:{16*ct+15}], v[{vZ}:{vZ+3}], v[{vZ}:{vZ+3}], 0")
A(f"s_mov_b32 s{sLOOP}, 16")
def adv():
    A(f"s_add_u32 s{sKOFF}, s{sKOFF}, {KVS}"); A(f"s_and_b32 s{sKOFF}, s{sKOFF}, 0xffff")
A.label("L_sl1")
ld_k(0, 0); adv()
A("s_waitcnt vmcnt(0)")
for ct in range(8):
    A(f"v_mfma_f32_32x32x16_bf16 v[{S0}:{S0+15}], v[{KV[0]}:{KV[0]+3}], v[{QF+4*ct}:{QF+4*ct+3}], 0")
    A.nop(12)
    for i in range(8):
        A(f"v_max3_f32 v{vM+ct}, v{S0+2*i}, v{S0+2*i+1}, v{vM+ct}")
A(f"""
s_sub_u32 s{sLOOP}, s{sLOOP}, 1
s_cmp_lg_u32 s{sLOOP}, 0
s_cbranch_scc1 L_sl1
s_lshl_b32 s{sT0}, s{sWAVE}, 11
s_add_u32 s{sT0}, s{sT0}, {CB}
v_lshlrev_b32 v8, 2, v{vLANE}
v_add_u32 v8, s{sT0}, v8
v_lshlrev_b32 v10, 2, v{vL31}
v_add_u32 v10, {CB}, v10
""")
a_sync()
def pair_off(pr):
    A(f"s_add_u32 s{sT0}, s{sWAVE}, {pr + 1}")
    A(f"s_and_b32 s{sT0}, s{sT0}, 3")
    A(f"s_lshl_b32 s{sT0}, s{sT0}, 9")
for pr in range(4):
    pair_off(pr)
    A(f"v_add_u32 v9, s{sT0}, v8")
    A(f"ds_write_b32 v9, v{vM+2*pr}")
    A(f"ds_write_b32 v9, v{vM+2*pr+1} offset:256")
a_sync()
for ct in range(8):
    if ct % 2 == 0:
        pair_off(ct // 2)
        A(f"v_add_u32 v9, s{sT0}, v10")
    for w in range(4):
        A(f"ds_read_b32 v{S0+2*w}, v9 offset:{w*2048 + (ct%2)*256}")
        A(f"ds_read_b32 v{S0+2*w+1}, v9 offset:{w*2048 + (ct%2)*256 + 128}")
    A("s_waitcnt lgkmcnt(0)")
    for w in range(4):
        A(f"v_max3_f32 v{vM+ct}, v{S0+2*w}, v{S0+2*w+1}, v{vM+ct}")
a_sync()
A(f"s_mov_b32 s{sLOOP}, 16")
A.label("L_sl2")
ld_k(0, 0); ld_v(0, 0, 0); ld_v(0, 1, 0); adv()
A("s_waitcnt vmcnt(0)")
for ct in range(8):
    A(f"v_mfma_f32_32x32x16_bf16 v[{S0}:{S0+15}], v[{KV[0]}:{KV[0]+3}], v[{QF+4*ct}:{QF+4*ct+3}], 0")
    A.nop(12)
    for i in range(16):
        A(f"v_sub_f32 v{S0+i}, v{S0+i}, v{vM+ct}")
    for i in range(16):
        A(f"v_exp_f32 v{S0+i}, v{S0+i}")
    A.nop(2)
    A(f"v_smfmac_f32_32x32x32_bf16 a[{16*ct}:{16*ct+15}], v[{KV[0]+4}:{KV[0]+7}], v[{S0}:{S0+7}], v{vIDX}")
    A(f"v_smfmac_f32_32x32x32_bf16 a[{16*ct}:{16*ct+15}], v[{KV[0]+8}:{KV[0]+11}], v[{S0+8}:{S0+15}], v{vIDX}")
A(f"""
s_sub_u32 s{sLOOP}, s{sLOOP}, 1
s_cmp_lg_u32 s{sLOOP}, 0
s_cbranch_scc1 L_sl2
s_nop 15
""")
for ct in range(6): part_write(ct)
A("s_waitcnt lgkmcnt(0)")
cnt_add(vCNT, vIDX, 4)
A(f"""
s_add_u32 s{sATG}, s{sATG}, 4
s_branch L_comb
""")

if OPT["xm"] or OPT["xv"] or OPT["xl"]:
    i0 = A.lines.index("L_S2:"); i1 = A.lines.index("L_hot_end:")
    seen = False
    for i in range(i0, i1):
        t = A.lines[i].strip()
        if t.startswith("ds_write_b128") : seen = True
        if not seen: continue
        if OPT["xm"] and t.startswith("v_mfma"): A.lines[i] = "    s_nop 7"
        if OPT["xv"] and (t.startswith(("v_pk_", "v_fma_f32", "v_cvt_pk", "v_mul_f32", "v_add_f32"))): A.lines[i] = "    s_nop 1"
        if OPT["xl"] and t.startswith(("ds_read_b128", "ds_write_b128")): A.lines[i] = "    s_nop 0"
hdr = open("cdna_kernels/" + NAME + ".s.ref").read().split("; Override launch")[0]
out = hdr + f"""; Fused single-launch kernel: 256 workgroups x 8 waves (4 attention waves + 4 SSM waves). Generated by gen/gen16.py.
; @launch grid=(256,1,1) block=(512,1,1) lds={LDS_BYTES}
.amdgcn_target "amdgcn-amd-amdhsa--gfx950"
.text
.globl {NAME}_kernel
.p2align 8
.type {NAME}_kernel,@function
{NAME}_kernel:
""" + A.text() + f""".section .rodata,"a"
.p2align 6
.amdhsa_kernel {NAME}_kernel
  .amdhsa_next_free_vgpr 256
  .amdhsa_next_free_sgpr 102
  .amdhsa_accum_offset 128
  .amdhsa_group_segment_fixed_size 0
  .amdhsa_kernarg_size 136
  .amdhsa_user_sgpr_count 2
  .amdhsa_user_sgpr_kernarg_segment_ptr 1
  .amdhsa_system_sgpr_workgroup_id_x 1
.end_amdhsa_kernel
"""
open(sys.argv[1], "w").write(out)
errs = check(A.lines) + check(A.lines[loop_end-60:loop_end] + A.lines[loop_start:loop_start+60])
for e in errs: print("HAZARD:", e)
print(f"{len(A.lines)} lines, {len(errs)} hazards")
```

```python
kern = []
specs = []
def kernel(name, bodies, iters, configs, nwaves, init="", nv=128, note=""):
    for (g, b, l) in configs:
        specs.append(f"; @mb {name} grid={g} block={b} lds={l} iters={iters} {note}")
    s = f"""
.globl {name}
.p2align 8
.type {name},@function
{name}:
    s_load_dwordx2 s[4:5], s[0:1], 0
    s_load_dwordx2 s[6:7], s[0:1], 8
    v_lshrrev_b32 v1, 6, v0
    s_nop 1
    v_readfirstlane_b32 s3, v1
    s_waitcnt lgkmcnt(0)
    s_mov_b32 s8, s4
    s_mov_b32 s9, s5
    s_mov_b32 s10, 0x400000
    s_mov_b32 s11, 0x00020000
    s_mov_b32 s28, s6
    s_mov_b32 s29, s7
    s_mov_b32 s30, 0x1000000
    s_mov_b32 s31, 0x00020000
"""
    for i in range(2, min(nv, 128) if nv == 256 else nv):
        s += f"    v_mov_b32 v{i}, 0x3d{(i*37)%256:02x}1234\n"
    s += init
    s += f"""
    s_mov_b32 s20, {iters}
    s_lshr_b32 s23, s3, 2
    s_barrier
    s_memtime s[12:13]
    s_memrealtime s[14:15]
    s_waitcnt lgkmcnt(0)
"""
    nb = len(bodies)
    if nb == 2:
        s += f"""    s_and_b32 s23, s23, 1
    s_cmp_eq_u32 s23, 1
    s_cbranch_scc1 {name}_loop1
"""
    for bi, body in enumerate(bodies):
        s += f"""
.p2align 6
{name}_loop{bi}:
{body}
    s_sub_u32 s20, s20, 1
    s_cmp_lg_u32 s20, 0
    s_cbranch_scc1 {name}_loop{bi}
    s_branch {name}_done
"""
    s += f"""
{name}_done:
    s_memtime s[16:17]
    s_memrealtime s[18:19]
    s_waitcnt lgkmcnt(0)
    s_sub_u32 s16, s16, s12
    s_sub_u32 s18, s18, s14
    s_nop 7
    s_nop 7
    s_nop 7
    v_mov_b32 v2, s16
    v_mov_b32 v3, s18
    s_mul_i32 s22, s2, {nwaves}
    s_add_u32 s22, s22, s3
    s_lshl_b32 s22, s22, 3
    v_mov_b32 v4, s22
    v_and_b32 v5, 63, v0
    v_cmp_eq_u32 vcc, 0, v5
    s_and_saveexec_b64 s[24:25], vcc
    buffer_store_dwordx2 v[2:3], v4, s[8:11], 0 offen
    s_waitcnt vmcnt(0)
    s_endpgm
"""
    kern.append((name, s, nv))

def emit(fn):
    out = "\n".join(specs) + "\n.amdgcn_target \"amdgcn-amd-amdhsa--gfx950\"\n.text\n"
    kd = ""
    for name, s, nv in kern:
        out += s
        kd += f"""
.p2align 6
.amdhsa_kernel {name}
  .amdhsa_next_free_vgpr {nv}
  .amdhsa_next_free_sgpr 102
  .amdhsa_accum_offset {min(nv,256)}
  .amdhsa_group_segment_fixed_size 0
  .amdhsa_kernarg_size 16
  .amdhsa_user_sgpr_count 2
  .amdhsa_user_sgpr_kernarg_segment_ptr 1
  .amdhsa_system_sgpr_workgroup_id_x 1
.end_amdhsa_kernel
"""
    out += '.section .rodata,"a"\n' + kd
    open(fn, "w").write(out)

def multi(name, body, iters, init="", waves=(1,2,4), nv=128, note="", lds=100000):
    for w in waves:
        n = f"{name}_w{w}"
        bodies = body if isinstance(body, list) else [body]
        kernel(n, bodies, iters, [(256, 256*w, lds)], 4*w, init, nv, note)
```

```python
import sys, re
src = open("gen12.py").read().split("import mblib\nmblib.kern.clear()")[0]
src = src.replace('emit(sys.argv[1])', '#').replace('s = open(sys.argv[1]).read()', '#').replace('open(sys.argv[1], "w").write(s)', '#')
src = re.sub(r'^m\(.*$', '', src, flags=re.M)
exec(src)
import mblib
b = body("cur")
m("agpr_acc", b)
n1 = len(mblib.kern)
def toarch(t):
    t = re.sub(r"a\[(\d+):(\d+)\]", lambda x: f"v[{128+int(x.group(1))}:{128+int(x.group(2))}]", t)
    t = re.sub(r"v_accvgpr_write_b32 a(\d+), 0", lambda x: f"v_mov_b32 v{128+int(x.group(1))}, 0", t)
    return t
multi("arch_acc", [toarch(b)], IT, waves=(1,), nv=256, note="24 tiles", init=toarch(init().replace("ZR", "0")))
m("agpr_acc2", b)
multi("arch_acc2", [toarch(b)], IT, waves=(1,), nv=256, note="24 tiles", init=toarch(init().replace("ZR", "0")))
emit(sys.argv[1])
s = open(sys.argv[1]).read()
parts = s.split(".amdhsa_kernel ")
for i in range(1, len(parts)):
    if parts[i].startswith("agpr"): parts[i] = parts[i].replace(".amdhsa_accum_offset 256", ".amdhsa_accum_offset 128")
open(sys.argv[1], "w").write(".amdhsa_kernel ".join(parts))
```

```python
import sys, math, struct
from asmlib import *

OPT = dict(dbg=0, force_slow=0, stamps=0, noS=0, cyc=0, ost=2, gprio=0, vprio=3, hst=0, stgwin=8, pfq=0, pfb=2, stgl=2, qpre=2,
           pfc=2, ssl=2, la=8, sst=0, win0=0, trig=6, odel=0, sgate=2, map84=1, g1p=0, g2p=0, noKV=0, nochk=0, wq1=12, cpos=1, hdbg=0, p2n=20, oack=2, cim1=0, npre0=0, mid=0, sl1=2, sl2=2, sl0=0, tlb=0, pad=0, padat=0, p1at=3, e0c=24, q1a=2, p1k=26, kv0=4, g0=0, ofirst=0, xm=0, xv=0, xl=0, npre=15, l0=30, ostb=2, cap=6, cap0=8, enc=0, encS=0, aprio=3, y1f=7, osl=0, q2w=1, osplit=0, ptop=1, jit=0, arch=0, orot=0, lbs=4)
for a in sys.argv[2:]:
    k, v = a.split("=")
    assert k in OPT, k
    OPT[k] = int(v)

NAME = "concat_heads__ssm_conv_s5__grouped_kv_mqa__prompt"
def f2u(x): return struct.unpack("<I", struct.pack("<f", x))[0]

XQ, WQ = 0, 66560
KVX, WKV = 3*16640, 66560 + 3*16384
SLOT = [0, 49920, 99840]
XA_O, BRE_O, BIM_O = 0, 16640, 33280
CIM, CRE = 0, 66560
CB_T = 2304
CB = 133120 - 12*CB_T
def cb_off(slot): return (12 + slot)*CB_T if slot < 3 else (slot - 3)*CB_T
TB = 133120
TBY = CB
CREA, CREB = 99840, 66560
WO = 66560
TB2 = 0
QX = 149760; EB = 157952; HP = 160000; CNT = 162048; QM = 162064; KM = 162068; CNT4 = 24
assert CB + 24*CB_T <= CNT
assert TB + 16384 <= EB
LDS_BYTES = 163840
FL1, FL3 = 0x1000, 0x9000
KVT = 0x80000; KVS = 4096
AGG = 0x30000; AGG_DUMMY = 32*8192; AGG_SIZE = AGG_DUMMY + 256*128
OB, HB = 0x100000, 0x400000
DBG = 0x1000000
WS_SIZE = 0x2000000
assert AGG + AGG_SIZE <= KVT
sWAVE, sC, sG, sTAG, sID = 3, 4, 5, 6, 7
R_XB, R_WQ, R_WKV, R_XA, R_BRE, R_BIM, R_CRE, R_CIM, R_WO, R_OUT, R_WS, R_AGG = 8, 12, 16, 20, 24, 28, 32, 36, 40, 44, 48, 52
P_LRE, P_LIM, P_LDT, P_DSK, P_WV = 56, 58, 60, 62, 64
sEP, sDONE = 66, 67
sT0, sT1, sT2, sT3, sT4, sT5 = 68, 69, 70, 71, 72, 73
sT6, sSPIN = 74, 75
sTW, sCW = 76, 77
sLOOP, sKOFF, sROT, sSW = 78, 79, 80, 81
sOB, sT7 = 82, 83
sATG = 65
sST = 84
def srd(r): return f"s[{r}:{r+3}]"

A = Asm()
OST = ["", " sc1", " nt", " sc0 sc1", " sc1 nt"][OPT["ost"]]
OSTB = OST if OPT["ostb"] < 0 else ["", " sc1", " nt", " sc0 sc1", " sc1 nt"][OPT["ostb"]]
SPIN_MAX = 200000
HST = OPT["hst"]

SSEC = [False]
def sstamp(i, mode):
    if OPT["stamps"] and OPT["sst"] == mode:
        A(f"s_memrealtime s[{sST+2*i}:{sST+2*i+1}]")
def stamp(i, cond=True):
    if (OPT["enc"] or OPT["encS"]) and cond and (i == 0 or (SSEC[0] and i == OPT["encS"]) or (not SSEC[0] and i == OPT["enc"])):
        A(f"s_memrealtime s[{98 if i == 0 else 94}:{99 if i == 0 else 95}]")
        if i == 0: A("s_waitcnt lgkmcnt(0)\ns_sub_u32 s94, s98, 3000")
        return
    if SSEC[0] and OPT["sst"] and i < 8: return
    if OPT["stamps"] and cond:
        A(f"s_memrealtime s[{sST+2*i}:{sST+2*i+1}]")

def padto():
    l = A.newlabel("pad")
    A(f"""
    {l}:
    s_memrealtime s[96:97]
    s_waitcnt lgkmcnt(0)
    s_sub_u32 s96, s96, s98
    s_cmp_lt_u32 s96, {OPT["pad"]*100}
    s_cbranch_scc1 {l}
    """)
def prio(p): A(f"s_setprio {p}")

JIT = [0]
def jitter():
    if not OPT["jit"]: return
    JIT[0] += 1
    l = A.newlabel("jit")
    k = (JIT[0] * 2654435761 + OPT["jit"] * 40503) & 0xffffffff
    A(f"""
    s_lshl_b32 s100, s2, 3
    s_add_u32 s100, s100, s{sWAVE}
    s_mul_i32 s100, s100, {k | 1}
    s_lshr_b32 s100, s100, 29
    s_cmp_lg_u32 s100, 3
    s_cbranch_scc1 {l}
    s_sleep {40 + 17 * (JIT[0] % 5)}
    {l}:
    """)
def cnt_add(vaddr, vone, off=0):
    jitter()
    cnt_add_(vaddr, vone, off)
    jitter()
def cnt_add_(vaddr, vone, off=0):
    A(f"""
    s_mov_b64 exec, 1
    {"ds_inc_u32" if vone == vIDX else "ds_add_u32"} v{vaddr}, v{vone} offset:{off}
    s_mov_b64 exec, -1
    """)
def cnt_wait(vaddr, vtmp, target, off=0, sleep=0):
    lp = A.newlabel("sy"); dn = A.newlabel("syd")
    A(f"""
    s_mov_b32 s{sSPIN}, 0
    {lp}:
    ds_read_b32 v{vtmp}, v{vaddr} offset:{off}
    s_add_u32 s{sSPIN}, s{sSPIN}, 1
    s_waitcnt lgkmcnt(0)
    v_readfirstlane_b32 s{sT0}, v{vtmp}
    s_cmp_ge_u32 s{sT0}, {target}
    s_cbranch_scc1 {dn}
    {("s_sleep " + str(sleep)) if sleep else ""}
    s_cmp_lt_u32 s{sSPIN}, {SPIN_MAX}
    s_cbranch_scc1 {lp}
    {dn}:
    """)
    jitter()
NSYNC = [0]
def grp_sync():
    NSYNC[0] += 1
    A("s_waitcnt lgkmcnt(0)")
    cnt_add(vCNT, vONE)
    cnt_wait(vCNT, vTMP, CBASE + 4*NSYNC[0], sleep=OPT['ssl'])

def sync_add(wait_lds=True):
    NSYNC[0] += 1
    if wait_lds: A("s_waitcnt lgkmcnt(0)")
    cnt_add(vCNT, vONE)
def sync_wait(sleep=None):
    cnt_wait(vCNT, vTMP, CBASE + 4*NSYNC[0], sleep=OPT['ssl'] if sleep is None else max(sleep, OPT['sl0']))

def poll_flags(vaddr, vdst, width, sleep=2):
    lp = A.newlabel("pl"); dn = A.newlabel("pld")
    ld = "buffer_load_dword" if width == 1 else f"buffer_load_dwordx{width}"
    A(f"s_mov_b32 s{sSPIN}, 0")
    A.label(lp)
    A(f"""
    {ld} {vr(vdst, width)}, v{vaddr}, {srd(R_WS)}, 0 offen sc1
    s_add_u32 s{sSPIN}, s{sSPIN}, 1
    s_waitcnt vmcnt(0)
    v_cmp_ne_u32 vcc, s{sTAG}, v{vdst}
    s_cbranch_vccz {dn}
    {("s_sleep " + str(sleep)) if sleep else ""}
    s_cmp_lt_u32 s{sSPIN}, {SPIN_MAX}
    s_cbranch_scc1 {lp}
    {dn}:
    """)

def wave_max(v, tmp):
    A("s_nop 1")
    for sh in (1, 2, 4, 8):
        A(f"v_max_f32_dpp v{v}, v{v}, v{v} row_ror:{sh} row_mask:0xf bank_mask:0xf")
        A("s_nop 1")
    A(f"v_mov_b32 v{tmp}, v{v}")
    A("s_nop 1")
    A(f"v_permlane16_swap_b32 v{tmp}, v{v}")
    A(f"v_max_f32 v{v}, v{v}, v{tmp}")
    A(f"v_mov_b32 v{tmp}, v{v}")
    A("s_nop 1")
    A(f"v_permlane32_swap_b32 v{tmp}, v{v}")
    A(f"v_max_f32 v{v}, v{v}, v{tmp}")

def wq_voffset(dst, t0, t1, t2):
    A(f"""
    v_lshrrev_b32 v{t0}, 3, v{vLANE}
    v_and_b32 v{t1}, 7, v{vLANE}
    v_bfe_u32 v{t2}, v{vLANE}, 4, 1
    v_lshlrev_b32 v{t2}, 2, v{t2}
    v_xor_b32 v{t1}, v{t1}, v{t2}
    v_lshlrev_b32 v{t1}, 4, v{t1}
    v_lshl_add_u32 v{dst}, v{t0}, 10, v{t1}
    """)

vLANE, vL31, vH, vL16x = 1, 2, 3, 4
UR, UI, Y0, Y1 = 16, 32, 48, 64
FRS = 80
DG = 104
vL1, vL8, vL16, vL64, vL512, vCF = 112, 114, 116, 118, 120, 122
vCNT, vONE, vTMP, vP2, vDUM = 0, 124, 125, 126, 127
vXo, vBo, vDa, vSt = 5, 6, 7, 8
vAa, vBa = [9, 10, 11], [12, 13, 14]
vPF = 15
STG = 64
PRM = 100
S0, S1 = 16, 32
QF = 48
KV = [80, 92, 104, 116]
vIDX = 7
vM = 104
vZ = 120
vKt, vVt = [5, 8, 9, 10], [6, 12, 14, 15]

A(f"""
s_cmp_ge_u32 s2, 256
s_cbranch_scc1 L_end
""")
stamp(0)
if OPT["pad"]: A("s_memrealtime s[98:99]")
sizes = {R_XB: 65536, R_WKV: 16384, R_WQ: 523392, R_WS: WS_SIZE, R_XA: 65536, R_BRE: 65536, R_BIM: 65536, R_CRE: 65536, R_CIM: 65536,
         R_WO: 523392, R_OUT: 262144, R_AGG: AGG_SIZE}
def kload(lst):
    for r, off in lst:
        A(f"s_load_dwordx2 s[{r}:{r+1}], s[0:1], {off}")
def srd_words(rs):
    for r in rs:
        A(f"s_mov_b32 s{r+2}, {sizes[r]}")
        A(f"s_mov_b32 s{r+3}, 0x20000")
kload([(R_XB, 72), (R_WKV, 88), (P_WV, 96), (R_WQ, 80), (R_WS, 128)])
if OPT["ptop"]:
    A(f"s_load_dwordx4 s[{P_LRE}:{P_LRE+3}], s[0:1], 8")
    A(f"s_load_dwordx4 s[{P_LDT}:{P_LDT+3}], s[0:1], 56")
A(f"""
v_lshrrev_b32 v5, 6, v0
v_and_b32 v{vLANE}, 63, v0
v_readfirstlane_b32 s{sWAVE}, v5
v_lshlrev_b32 v{vL16x}, 4, v{vLANE}
v_bfe_u32 v{vH}, v0, 5, 1
v_and_b32 v{vL31}, 31, v0
v_mov_b32 v0, {CNT}
""")
srd_words([R_XB])
A(f"""
""")
if OPT["map84"]:
    A(f"""
    s_bfe_u32 s{sC}, s2, 0x20001
    s_lshl_b32 s{sC}, s{sC}, 3
    s_bfe_u32 s{sT0}, s2, 0x30003
    s_add_u32 s{sC}, s{sC}, s{sT0}
    s_and_b32 s{sG}, s2, 1
    s_lshl_b32 s{sG}, s{sG}, 2
    s_lshr_b32 s{sT0}, s2, 6
    s_add_u32 s{sG}, s{sG}, s{sT0}
    s_add_u32 s{sROT}, s{sC}, s{sG}
    s_and_b32 s{sROT}, s{sROT}, 3
    """)
else:
    A(f"""
    s_and_b32 s{sC}, s2, 7
    s_lshl_b32 s{sC}, s{sC}, 2
    s_bfe_u32 s{sROT}, s2, 0x20003
    s_add_u32 s{sC}, s{sC}, s{sROT}
    s_lshr_b32 s{sG}, s2, 5
    """)
A(f"""
s_lshl_b32 s{sT2}, s{sC}, 16
s_sub_u32 s{sSW}, s{sWAVE}, 4
s_cbranch_scc1 L_A0
{"" if OPT["ptop"] else f"s_load_dwordx4 s[{P_LRE}:{P_LRE+3}], s[0:1], 8"}
{"" if OPT["ptop"] else f"s_load_dwordx4 s[{P_LDT}:{P_LDT+3}], s[0:1], 56"}
s_setprio 3
v_mov_b32 v20, 0
v_mov_b32 v21, 0
s_lshl_b32 s{sT0}, s{sG}, 6
s_lshl_b32 s{sT1}, s{sSW}, 4
s_and_b32 s{sT1}, s{sT1}, 32
s_add_u32 s{sT0}, s{sT0}, s{sT1}
v_add_lshl_u32 v{vP2}, s{sT0}, v{vL31}, 1
ds_write2_b64 v0, v[20:21], v[20:21] offset0:0 offset1:1
ds_write2_b64 v0, v[20:21], v[20:21] offset0:2 offset1:3
s_mov_b32 s{R_WKV+2}, {sizes[R_WKV]}
s_mov_b32 s{R_WKV+3}, 0x20000
s_lshl_b32 s{sT1}, s{sSW}, 12
s_lshl_b32 s{sT5}, s{sG}, 13
s_and_b32 s{sT5}, s{sT5}, 0xc000
s_add_u32 s{sT5}, s{sT5}, s{sT1}
s_mul_i32 s{sT0}, s{sSW}, 4160
s_add_u32 m0, s{sT1}, {WKV}
s_bitcmp1_b32 s{sG}, 0
s_waitcnt lgkmcnt(0)
s_cselect_b32 s{R_WKV}, s{P_WV}, s{R_WKV}
s_cselect_b32 s{R_WKV+1}, s{P_WV+1}, s{R_WKV+1}
s_add_u32 s{R_XB}, s{R_XB}, s{sT2}
s_addc_u32 s{R_XB+1}, s{R_XB+1}, 0
""")
for i in range(4):
    A(f"buffer_load_dwordx4 v{vL16x}, {srd(R_WKV)}, s{sT1} offen offset:{i*1024} lds")
for i in range(4):
    A(f"s_add_u32 m0, s{sT0}, {KVX + 16*i}")
    A(f"s_load_dword s{sEP}, s[{R_WS}:{R_WS+1}], 0" if i == 0 else "s_nop 0")
    A(f"buffer_load_dwordx4 v{vL16x}, {srd(R_XB)}, s{sT5} offen offset:{i*1024} lds")
A(f"""
s_barrier
global_load_ushort v{PRM}, v{vP2}, s[{P_LRE}:{P_LRE+1}]
global_load_ushort v{PRM+1}, v{vP2}, s[{P_LIM}:{P_LIM+1}]
global_load_ushort v{PRM+2}, v{vP2}, s[{P_LDT}:{P_LDT+1}]
global_load_ushort v{PRM+3}, v{vP2}, s[{P_DSK}:{P_DSK+1}]
s_cmp_eq_u32 s{sSW}, 1
s_cbranch_scc1 L_qx
s_cmp_eq_u32 s{sSW}, 2
s_cbranch_scc1 L_qw
s_branch L_S1
L_A0:
""")
def common_scalars():
    kload([(R_OUT, 112)])
    srd_words([R_WS, R_OUT])
    A(f"""
    s_and_b32 s{sTW}, s{sWAVE}, 1
    s_bfe_u32 s{sCW}, s{sWAVE}, 0x10001
    s_lshl_b32 s{sID}, s{sC}, 3
    s_add_u32 s{sID}, s{sID}, s{sG}
    s_mov_b32 s{sDONE}, 0
    s_lshl_b32 s{sOB}, s{sC}, 1
    s_add_u32 s{sOB}, s{sOB}, s{sTW}
    s_lshl_b32 s{sOB}, s{sOB}, 15
    s_add_u32 s{sOB}, s{sOB}, {OB}
    """)
def common_after_wait(tag=True):
    A(f"""
    s_lshl_b32 s{sT0}, s{sC}, 18
    s_add_u32 s{R_OUT}, s{R_OUT}, s{sT0}
    s_addc_u32 s{R_OUT+1}, s{R_OUT+1}, 0
    """)
    if tag: A(f"""
    s_mul_i32 s{sTAG}, s{sEP}, 0x9E3779B1
    s_add_u32 s{sTAG}, s{sTAG}, 0x7F4A7C15
    """)
vWQo, vXQo = 119, 117
A(f"""
v_lshrrev_b32 v6, 4, v{vLANE}
v_and_b32 v7, 15, v{vLANE}
v_lshlrev_b32 v7, 4, v7
v_lshl_add_u32 v{vXQo}, v6, 14, v7
s_mul_i32 s{sT6}, s{sWAVE}, 4160
s_lshl_b32 s{sT7}, s{sWAVE}, 12
""")
srd_words([R_WQ])
wq_voffset(vWQo, 6, 7, 10)
A(f"""
s_lshl_b32 s{sT0}, s{sG}, 7
s_waitcnt lgkmcnt(0)
s_add_u32 s{R_XB}, s{R_XB}, s{sT2}
s_addc_u32 s{R_XB+1}, s{R_XB+1}, 0
s_add_u32 s{R_WQ}, s{R_WQ}, s{sT0}
s_addc_u32 s{R_WQ+1}, s{R_WQ+1}, 0
s_load_dword s{sEP}, s[{R_WS}:{R_WS+1}], 0
s_barrier
""")
stamp(1, HST)
def x_dma(s):
    A(f"""
    s_add_u32 s{sT3}, s{sROT}, {s}
    s_and_b32 s{sT3}, s{sT3}, 3
    s_lshl_b32 s{sT4}, s{sT3}, 8
    s_add_u32 s{sT4}, s{sT4}, s{sT7}
    """)
    for i in range(4):
        A(f"""
        s_add_u32 m0, s{sT6}, {XQ + s*16640 + i*16}
        s_nop 0
        buffer_load_dwordx4 v{vXQo}, {srd(R_XB)}, s{sT4} offen offset:{i*1024} lds
        """)
def wq_dma(s):
    A(f"""
    s_lshl_b32 s{sT3}, s{sT3}, 4
    s_add_u32 s{sT3}, s{sT3}, s{sWAVE}
    s_lshl_b32 s{sT3}, s{sT3}, 13
    s_lshl_b32 s{sT2}, s{sWAVE}, 10
    """)
    for i in range(4):
        A(f"""
        s_add_u32 m0, s{sT2}, {WQ + s*16384 + i*4096}
        s_add_u32 s{sT1}, s{sT3}, {i*32768}
        buffer_load_dwordx4 v{vWQo}, {srd(R_WQ)}, s{sT1} offen lds
        """)
for s in range(OPT["qpre"]):
    x_dma(s); wq_dma(s)
stamp(2 if HST else 1)
A("s_branch L_A1")
A.label("L_S1")
SSEC[0] = True
if OPT["pfc"] == 2:
    A(f"""
    s_cmp_lg_u32 s{sWAVE}, 7
    s_cbranch_scc1 L_nopfcode
    s_getpc_b64 s[{sT0}:{sT1}]
    L_pc:
    s_sub_u32 s{sT0}, s{sT0}, L_pc-{NAME}_kernel
    s_subb_u32 s{sT1}, s{sT1}, 0
    s_lshl_b32 s{sLOOP}, s{sROT}, 13
    v_lshlrev_b32 v16, 7, v{vLANE}
    v_add_u32 v16, s{sLOOP}, v16
    v_min_u32 v16, L_hot_end-{NAME}_kernel-4, v16
    global_load_dword v{vDUM}, v16, s[{sT0}:{sT1}]
    L_nopfcode:
    """)
A(f"""
v_mov_b32 v{vONE}, 1
s_lshl_b32 s{sID}, s{sC}, 3
s_add_u32 s{sID}, s{sID}, s{sG}
s_mov_b32 s{R_WS+2}, {WS_SIZE}
s_mov_b32 s{R_WS+3}, 0x20000
v_lshrrev_b32 v20, 4, v{vLANE}
v_and_b32 v21, 15, v{vLANE}
v_mul_u32_u24 v9, 1040, v21
v_lshl_add_u32 v9, v20, 4, v9
v_add_u32 v9, {KVX}, v9
v_lshrrev_b32 v10, 2, v21
v_lshl_add_u32 v10, v20, 3, v10
v_lshlrev_b32 v10, 5, v10
v_and_b32 v11, 3, v21
v_lshl_add_u32 v10, v11, 3, v10
v_add_u32 v10, {WKV}, v10
s_lshl_b32 s{sT6}, s{sC}, 1
s_lshr_b32 s{sT1}, s{sG}, 2
s_add_u32 s{sT6}, s{sT6}, s{sT1}
s_lshl_b32 s{sT6}, s{sT6}, 12
s_add_u32 s{sT6}, s{sT6}, {KVT}
s_bfe_u32 s{sT7}, s{sG}, 0x10001
s_waitcnt lgkmcnt(0)
s_mul_i32 s{sTAG}, s{sEP}, 0x9E3779B1
s_add_u32 s{sTAG}, s{sTAG}, 0x7F4A7C15
s_waitcnt vmcnt(4)
""")
stamp(6, HST)
cnt_add(vCNT, vONE)
A(f"""
s_cmp_lg_u32 s{sSW}, 0
s_cbranch_scc1 L_S2a
""")
cnt_wait(vCNT, vTMP, 4)
stamp(1)
def kv_rd(k):
    f = 32 + 8*(k % 6)
    A(f"ds_read_b64_tr_b16 v[{f}:{f+1}], v10 offset:{k*1024}")
    A(f"ds_read_b64_tr_b16 v[{f+2}:{f+3}], v10 offset:{k*1024+128}")
    A(f"ds_read_b128 v[{f+4}:{f+7}], v9 offset:{k*64}")
for k in range(4): kv_rd(k)
A(f"s_bitcmp1_b32 s{sG}, 0")
A("s_cbranch_scc1 L_kv_v")
def kv_chain(isv_):
    for k in range(16):
        f = 32 + 8*(k % 6)
        if k + 4 < 16: kv_rd(k + 4)
        issued = min(16, k + 5)
        A(f"s_waitcnt lgkmcnt({3*(issued - k - 1)})")
        c = "0" if k == 0 else "v[28:31]"
        a, b = (f"v[{f}:{f+3}]", f"v[{f+4}:{f+7}]") if not isv_ else (f"v[{f+4}:{f+7}]", f"v[{f}:{f+3}]")
        A(f"v_mfma_f32_16x16x32_bf16 v[28:31], {a}, {b}, {c}")
kv_chain(False)
if not OPT["q2w"]: cnt_add(vCNT, vONE)
else: A.nop(3)
A(f"s_mov_b32 s{sT0}, {f2u(0.25 * math.log2(math.e))}")
A(f"""
s_lshl_b32 s{sT7}, s{sT7}, 8
s_add_u32 s{sT6}, s{sT6}, s{sT7}
v_and_b32 v22, 1, v20
v_lshlrev_b32 v22, 9, v22
v_lshl_add_u32 v22, v21, 4, v22
v_lshrrev_b32 v23, 1, v20
v_lshl_add_u32 v22, v23, 3, v22
v_mul_f32 v28, s{sT0}, v28
v_mul_f32 v29, s{sT0}, v29
v_mul_f32 v30, s{sT0}, v30
v_mul_f32 v31, s{sT0}, v31
v_cvt_pk_bf16_f32 v24, v28, v29
v_cvt_pk_bf16_f32 v25, v30, v31
buffer_store_dwordx2 v[24:25], v22, {srd(R_WS)}, s{sT6} offen sc1
""")
if OPT["q2w"]: cnt_add(vCNT, vONE)
A(f"""
v_mul_f32 v16, v28, v28
v_fmac_f32 v16, v29, v29
v_fmac_f32 v16, v30, v30
v_fmac_f32 v16, v31, v31
v_mov_b32 v17, v16
s_nop 1
v_permlane16_swap_b32 v17, v16
v_add_f32 v16, v16, v17
v_mov_b32 v17, v16
s_nop 1
v_permlane32_swap_b32 v17, v16
v_add_f32 v17, v16, v17
""")
wave_max(17, 18)
A("s_branch L_kv_pub")
A.label("L_kv_v")
kv_chain(True)
if not OPT["q2w"]: cnt_add(vCNT, vONE)
A(f"""
s_mul_i32 s{sT7}, s{sT7}, 544
s_add_u32 s{sT6}, s{sT6}, s{sT7}
s_add_u32 s{sT6}, s{sT6}, 1024
v_lshrrev_b32 v22, 1, v20
v_mul_u32_u24 v22, 272, v22
v_and_b32 v23, 1, v20
v_lshl_add_u32 v22, v23, 3, v22
v_lshl_add_u32 v23, v21, 4, v22
v_cvt_pk_bf16_f32 v24, v28, v29
v_cvt_pk_bf16_f32 v25, v30, v31
buffer_store_dwordx2 v[24:25], v23, {srd(R_WS)}, s{sT6} offen sc1
v_mov_b32 v26, 0x3f803f80
v_mov_b32 v27, 0x3f803f80
s_mov_b32 exec_lo, 0x00010001
s_mov_b32 exec_hi, 0x00010001
buffer_store_dwordx2 v[26:27], v22, {srd(R_WS)}, s{sT6} offen offset:256 sc1
s_mov_b64 exec, -1
v_mov_b32 v17, 0
""")
if OPT["q2w"]: cnt_add(vCNT, vONE)
A.label("L_kv_pub")
A(f"""
s_lshl_b32 s{sT0}, s{sID}, 7
s_add_u32 s{sT0}, s{sT0}, {FL1}
v_mov_b32 v16, s{sTAG}
v_mov_b32 v9, 0
s_waitcnt vmcnt(0)
s_mov_b64 exec, 1
buffer_store_dwordx2 v[16:17], v9, {srd(R_WS)}, s{sT0} offen sc1
ds_add_u32 v{vCNT}, v{vONE}
s_mov_b64 exec, -1
""")
stamp(2)
A("s_branch L_S2")
def q_head():
    A(f"""
    v_mov_b32 v{vONE}, 1
    s_lshl_b32 s{sID}, s{sC}, 3
    s_add_u32 s{sID}, s{sID}, s{sG}
    s_waitcnt lgkmcnt(0)
    s_mul_i32 s{sTAG}, s{sEP}, 0x9E3779B1
    s_add_u32 s{sTAG}, s{sTAG}, 0x7F4A7C15
    s_waitcnt vmcnt(4)
    """)
    cnt_add(vCNT, vONE)
    prio(0)
def q_sig():
    A("s_waitcnt vmcnt(16)"); cnt_add(vCNT, vONE, 24)
    A("s_waitcnt vmcnt(0)"); cnt_add(vCNT, vONE, 28)
    prio(3)
    A("s_branch L_S2")
A.label("L_qx")
A(f"""
v_lshrrev_b32 v20, 4, v{vLANE}
v_and_b32 v21, 15, v{vLANE}
v_lshlrev_b32 v22, 4, v21
v_lshl_add_u32 v22, v20, 14, v22
""")
q_head()
for s_ in (2, 3):
    if s_ == 3 - OPT['q2w']: cnt_wait(vCNT, vTMP, 5)
    A(f"""
    s_add_u32 s{sT3}, s{sROT}, {s_}
    s_and_b32 s{sT3}, s{sT3}, 3
    s_lshl_b32 s{sT3}, s{sT3}, 8
    """)
    for i in range(16):
        A(f"s_mov_b32 m0, {XQ + s_*16640 + i*1040 - (i & 3)*1024}")
        A(f"s_add_u32 s{sT3}, s{sT3}, 4096" if (i & 3 == 0 and i) else "s_nop 0")
        A(f"buffer_load_dwordx4 v22, {srd(R_XB)}, s{sT3} offen offset:{(i & 3)*1024} lds")
q_sig()
A.label("L_qw")
srd_words([R_WQ])
wq_voffset(22, 23, 24, 25)
A(f"""
s_lshl_b32 s{sT0}, s{sG}, 7
s_add_u32 s{R_WQ}, s{R_WQ}, s{sT0}
s_addc_u32 s{R_WQ+1}, s{R_WQ+1}, 0
""")
q_head()
for s_ in (2, 3):
    if s_ == 3 - OPT['q2w']: cnt_wait(vCNT, vTMP, 5)
    A(f"""
    s_add_u32 s{sT3}, s{sROT}, {s_}
    s_and_b32 s{sT3}, s{sT3}, 3
    s_lshl_b32 s{sT3}, s{sT3}, 17
    """)
    for i in range(16):
        A(f"s_mov_b32 m0, {WQ + s_*16384 + i*1024}")
        A(f"s_add_u32 s{sT3}, s{sT3}, 8192" if i else "s_nop 0")
        A(f"buffer_load_dwordx4 v22, {srd(R_WQ)}, s{sT3} offen lds")
q_sig()
SSEC[0] = False
A.label("L_A1")
for i in range(4): A(f"v_mov_b32 v{vZ+i}, 0")
vXa, vWa, vFl, vQw, vQr, vAone = 8, 9, 10, 14, 15, vIDX
common_scalars()
for ct in range(8):
    A(f"v_mfma_f32_32x32x16_bf16 a[{16*ct}:{16*ct+15}], v[{vZ}:{vZ+3}], v[{vZ}:{vZ+3}], 0")
A(f"""
v_and_b32 v6, 15, v{vL31}
v_mul_u32_u24 v{vXa}, 1040, v6
v_lshl_add_u32 v{vXa}, v{vH}, 4, v{vXa}
v_lshrrev_b32 v6, 4, v{vL31}
v_lshl_add_u32 v{vXa}, v6, 8, v{vXa}
s_lshl_b32 s{sT0}, s{sTW}, 9
v_add_u32 v{vXa}, s{sT0}, v{vXa}
v_bfe_u32 v6, v{vLANE}, 2, 2
v_lshl_add_u32 v6, v{vH}, 3, v6
v_bfe_u32 v7, v{vLANE}, 4, 1
v_and_b32 v11, 3, v{vLANE}
v_lshlrev_b32 v11, 3, v11
v_lshl_add_u32 v11, v7, 5, v11
s_lshl_b32 s{sT0}, s{sCW}, 6
v_add_u32 v11, s{sT0}, v11
v_bfe_u32 v7, v{vLANE}, 3, 1
v_lshlrev_b32 v7, 6, v7
v_xor_b32 v11, v11, v7
v_lshl_add_u32 v{vWa}, v6, 7, v11
v_add_u32 v{vWa}, {WQ}, v{vWa}
s_lshl_b32 s{sT0}, s{sWAVE}, 13
s_add_u32 s{sT0}, s{sT0}, {FL1}
v_lshlrev_b32 v{vFl}, 7, v{vLANE}
v_add_u32 v{vFl}, s{sT0}, v{vFl}
s_lshl_b32 s{sT0}, s{sWAVE}, 16
s_add_u32 s{sT1}, s{sT0}, {KVT}
v_add_u32 v{vKt[0]}, s{sT1}, v{vL16x}
s_add_u32 s{sT1}, s{sT1}, 1024
v_lshlrev_b32 v13, 4, v{vL31}
v_mul_u32_u24 v14, 272, v{vH}
v_add3_u32 v13, v13, v14, s{sT1}
v_cmp_lt_u32 vcc, 16, v{vL31}
v_mov_b32 v14, 0x7ff00000
v_mov_b32 v{vIDX}, 0xdddddddd
v_cndmask_b32 v{vVt[0]}, v13, v14, vcc
s_lshl_b32 s{sKOFF}, s{sROT}, 14
s_lshl_b32 s{sT0}, s{sCW}, 2
s_add_u32 s{sT0}, s{sT0}, s{sTW}
s_lshl_b32 s{sT0}, s{sT0}, 10
s_add_u32 s{sT0}, s{sT0}, {QX}
v_add_u32 v{vQw}, s{sT0}, v{vL16x}
v_add_u32 v{vQr}, {QX}, v{vL16x}
s_waitcnt lgkmcnt(0)
""")
common_after_wait()
QP = OPT["qpre"]
sKVOK = sATG
vFG = 12
def ld_k(b, t, so=sKOFF):
    A(f"buffer_load_dwordx4 v[{KV[b]}:{KV[b]+3}], v{vKt[t]}, {srd(R_WS)}, s{so} offen sc1")
def ld_v(b, j, t, so=sKOFF):
    A(f"buffer_load_dwordx4 v[{KV[b]+4+4*j}:{KV[b]+7+4*j}], v{vVt[t]}, {srd(R_WS)}, s{so} offen offset:{544*j} sc1")
def kv_first():
    for b in range(OPT["kv0"]):
        A(f"s_add_u32 s{sT1}, s{sKOFF}, {b*KVS}")
        ld_k(b, 0, sT1); ld_v(b, 0, 0, sT1); ld_v(b, 1, 0, sT1)
    A(f"ds_max_f32 v{vCNT}, v{vFG+1} offset:{KM - CNT}")
    if OPT["kv0"] == 4 or OPT["g0"]: cnt_add(vCNT, vAone, 12)
def kv_try(tag):
    A(f"""
    v_cmp_ne_u32 vcc, s{sTAG}, v{vFG}
    s_cbranch_vccnz L_kvlate{tag}
    s_mov_b32 s{sKVOK}, 1
    """)
    kv_first()
    A(f"s_branch L_kvq{tag}")
    A.label(f"L_kvlate{tag}")
    flag_ld()
    A.label(f"L_kvq{tag}")
def flag_ld(): A(f"buffer_load_dwordx2 v[{vFG}:{vFG+1}], v{vFl}, {srd(R_WS)}, 0 offen sc1")
def q_rd(k):
    s_, kk = divmod(k, 8)
    f = 32 + 8*(k % 6)
    A(f"ds_read_b64_tr_b16 v[{f}:{f+1}], v{vWa} offset:{s_*16384 + kk*2048}")
    A(f"ds_read_b64_tr_b16 v[{f+2}:{f+3}], v{vWa} offset:{s_*16384 + kk*2048 + 512}")
    A(f"ds_read_b128 v[{f+4}:{f+7}], v{vXa} offset:{XQ + s_*16640 + kk*32}")
A(f"s_mov_b32 s{sKVOK}, 0")
A("s_waitcnt vmcnt(8)")
stamp(3, HST)
cnt_add(vCNT, vAone, 4)
cnt_wait(vCNT, 11, 4, 4)
for k in range(4): q_rd(k)
done = 0
for k in range(32):
    if k == OPT["q1a"]:
        A("s_waitcnt vmcnt(0)")
        cnt_add(vCNT, vAone, 4)
    if k == OPT["p1k"]: flag_ld()
    if k + 4 < 32:
        if (k + 4) % 8 == 0:
            s_ = (k + 4) // 8
            if s_ == 1: cnt_wait(vCNT, 11, 8, 4)
            else: cnt_wait(vCNT, 11, 2, 24 + 4*(s_ - 2))
            stamp(3 + s_, HST)
            done = k + 4
        q_rd(k + 4)
    if k >= done:
        A(f"s_waitcnt lgkmcnt({3*(min(32, k + 5) - k - 1)})")
    c = "0" if k == 0 else f"v[{S0}:{S0+15}]"
    f = 32 + 8*(k % 6)
    A(f"v_mfma_f32_32x32x16_bf16 v[{S0}:{S0+15}], v[{f}:{f+3}], v[{f+4}:{f+7}], {c}")
A(f"""
s_mul_i32 s{sT6}, s{sWAVE}, {3*CB_T}
s_add_u32 s{sT6}, s{sT6}, {CB}
v_add_u32 v11, s{sT6}, v{vL16x}
s_mov_b32 s{sLOOP}, 4
""")
A.nop(8)
for i in range(8):
    A(f"v_cvt_pk_bf16_f32 v{32+i}, v{S0+2*i}, v{S0+2*i+1}")
    if i == 3: A(f"ds_write_b128 v{vQw}, v[32:35]")
A(f"""
ds_write_b128 v{vQw}, v[36:39] offset:2048
s_waitcnt lgkmcnt(0)
""")
cnt_add(vCNT, vAone, 4)
for hd in range(2):
    A(f"v_mul_f32 v{32+hd}, v{S0+8*hd}, v{S0+8*hd}")
    for i in range(1, 8):
        A(f"v_fmac_f32 v{32+hd}, v{S0+8*hd+i}, v{S0+8*hd+i}")
A(f"""
v_mov_b32 v34, v32
v_mov_b32 v35, v33
v_add_u32 v{vKt[1]}, {KVS}, v{vKt[0]}
v_add_u32 v{vKt[2]}, {2*KVS}, v{vKt[0]}
v_permlane32_swap_b32 v34, v32
v_permlane32_swap_b32 v35, v33
v_add_f32 v32, v32, v34
v_add_f32 v33, v33, v35
v_max_f32 v32, v32, v33
v_add_u32 v{vVt[2]}, {2*KVS}, v{vVt[0]}
ds_max_f32 v{vCNT}, v32 offset:{QM - CNT}
""")
for pr in range(4):
    A(f"s_add_u32 s{sT0}, s{sWAVE}, {pr + 1}")
    A(f"s_and_b32 s{sT0}, s{sT0}, 3")
    A(f"s_lshl_b32 s{sT0}, s{sT0}, 11")
    A(f"v_add_u32 v{36+pr}, s{sT0}, v{vQr}")
A(f"v_add_u32 v{vVt[3]}, {3*KVS}, v{vVt[0]}")
A("s_waitcnt vmcnt(0)")
kv_try("b")
cnt_wait(vCNT, 35, 12, 4)
stamp(7 if HST else 2)
for pr in range(4):
    A(f"ds_read_b128 v[{QF+8*pr}:{QF+8*pr+3}], v{36+pr}")
    A(f"ds_read_b128 v[{QF+8*pr+4}:{QF+8*pr+7}], v{36+pr} offset:1024")
A(f"""
s_cmp_lg_u32 s{sKVOK}, 0
s_cbranch_scc1 L_kvgo
s_waitcnt vmcnt(0)
v_cmp_ne_u32 vcc, s{sTAG}, v{vFG}
s_cbranch_vccz L_kvok
""")
poll_flags(vFl, vFG, 2, sleep=0)
A.label("L_kvok")
kv_first()
A.label("L_kvgo")
if OPT["pad"] and OPT["padat"] == 1: padto()
stamp(3, not HST)
A(f"""
s_waitcnt vmcnt({3*OPT['kv0'] - 1}) lgkmcnt(7)
v_mfma_f32_32x32x16_bf16 v[{S0}:{S0+15}], v[{KV[0]}:{KV[0]+3}], v[{QF}:{QF+3}], 0
v_add_u32 v{vKt[3]}, {3*KVS}, v{vKt[0]}
s_waitcnt vmcnt({3*OPT['kv0'] - 3}) lgkmcnt(0)
v_add_u32 v{vVt[1]}, {KVS}, v{vVt[0]}
v_lshlrev_b32 v13, 2, v{vLANE}
v_add_u32 v13, s{sT6}, v13
""")
A.nop(7)
SB = [S0, S1]
LASTSYNC = 8
CBASE = 6
def part_write(ct):
    A(f"ds_write_b128 v11, a[{16*ct}:{16*ct+3}] offset:{cb_off(ct)}")
    A(f"ds_write_b128 v11, a[{16*ct+4}:{16*ct+7}] offset:{cb_off(ct) + 1024}")
    A(f"ds_write_b32 v13, a{16*ct+8} offset:{cb_off(ct) + 2048}")
PD = [[32, 16, 24, 80], [40, 88, 96, 104]]
PL = [[120, 112, 113, 114], [122, 115, 116, 117]]
def comb_addr(k):
    if k < 3:
        A(f"""
        s_add_u32 s{sT0}, s{sWAVE}, {k + 1}
        s_and_b32 s{sT0}, s{sT0}, 3
        s_mul_i32 s{sT0}, s{sT0}, {3*CB_T}
        s_add_u32 s{sT0}, s{sT0}, {CB}
        v_add_u32 v{8+k}, s{sT0}, v{vL16x}
        v_lshl_add_u32 v{[12, 14, 15][k]}, v{vL31}, 2, s{sT0}
        """)
    else:
        A(f"""
        s_lshl_b32 s{sT1}, s{sG}, 2
        s_add_u32 s{sT1}, s{sT1}, s{sWAVE}
        s_lshl_b32 s{sT1}, s{sT1}, 10
        s_lshl_b32 s{sT2}, s{sC}, 16
        s_add_u32 s{sT1}, s{sT1}, s{sT2}
        s_add_u32 s{sT1}, s{sT1}, {OB}
        s_add_u32 s{sT2}, s{sT1}, 32768
        s_waitcnt vmcnt(0)
        """)
def comb_reads(u):
    if u == 0: A(f"ds_read_b64 v[118:119], v0 offset:{QM - CNT}")
    for k in range(3):
        A(f"ds_read_b32 v{PL[u][k+1]}, v{[12, 14, 15][k]} offset:{cb_off(2*(2-k) + u) + 2048}")
    for k in range(3):
        A(f"ds_read_b128 v[{PD[u][k+1]}:{PD[u][k+1]+3}], v{8+k} offset:{cb_off(2*(2-k) + u)}")
        A(f"ds_read_b128 v[{PD[u][k+1]+4}:{PD[u][k+1]+7}], v{8+k} offset:{cb_off(2*(2-k) + u) + 1024}")
    if u == 0: A("s_waitcnt lgkmcnt(6)")
def period(kb, ct, mode):
    cur = SB[ct & 1]; oth = SB[(ct + 1) & 1]
    pct = (ct - 1) % 8
    pkb = kb if ct > 0 else (kb - 1) % 4
    nct = (ct + 1) % 8
    nkb = kb if ct < 7 else (kb + 1) % 4
    ld = ct == 0 and mode == "loop" and not OPT["noKV"]
    early = mode == "last" and 1 <= ct <= 6
    extra = {}
    if mode == "first" and OPT["kv0"] < 4:
        lds_ = []
        for b in range(OPT["kv0"], 4):
            lds_ += [lambda b=b: ld_k(b, b), lambda b=b: ld_v(b, 0, b), lambda b=b: ld_v(b, 1, b)]
        for n, f_ in enumerate(lds_): extra[[1, 2, 3, 6, 7, 11, 12, 13, 14][n]] = f_
    def e(i):
        A(f"v_exp_f32 v{cur+i}, v{cur+i}")
        if i in extra: extra[i]()
        if i == 15 and extra and not OPT["g0"]: cnt_add(vCNT, vAone, 12)
    e(0); e(1)
    if mode != "first":
        A(f"v_smfmac_f32_32x32x32_bf16 a[{16*pct}:{16*pct+15}], v[{KV[pkb]+8}:{KV[pkb]+11}], v[{oth+8}:{oth+15}], v{vIDX}")
    e(2)
    if mode == "last" and ct in (0, 3): A(f"ds_read_b32 v12, v{vCNT} offset:{28 if ct == 0 else 8}")
    if (mode, ct) == ("last", 7):
        A("s_waitcnt lgkmcnt(0)")
        cnt_add(vCNT, vIDX, 4)
    e(3)
    if ct == 7 and mode == "loop": A(f"s_waitcnt vmcnt(6)")
    e(4)
    if (mode, ct) != ("last", 7):
        A(f"v_mfma_f32_32x32x16_bf16 v[{oth}:{oth+15}], v[{KV[nkb]}:{KV[nkb]+3}], v[{QF+4*nct}:{QF+4*nct+3}], 0")
    for i in range(5, 10): e(i)
    A(f"v_smfmac_f32_32x32x32_bf16 a[{16*ct}:{16*ct+15}], v[{KV[kb]+4}:{KV[kb]+7}], v[{cur}:{cur+7}], v{vIDX}")
    if mode == "last" and ct in (4, 5): comb_addr(2*(ct - 4)); comb_addr(2*(ct - 4) + 1)
    if (mode, ct) == ("last", 7):
        cnt_wait(vCNT, 16, 16, 4)
        comb_reads(0)
    e(10); e(11)
    if (mode, ct) == ("last", 7): comb_reads(1)
    e(12)
    if ld: ld_k(pkb, pkb)
    if early: A(f"ds_write_b128 v11, a[{16*(ct-1)}:{16*(ct-1)+3}] offset:{cb_off(ct-1)}")
    e(13)
    if ld: ld_v(pkb, 0, pkb)
    if (kb, ct, mode) == (0, 1, "loop"): A(f"s_add_u32 s{sKOFF}, s{sKOFF}, {4*KVS}")
    if (kb, ct, mode) == (2, 7, "loop"): A(f"s_sub_u32 s{sLOOP}, s{sLOOP}, 1")
    if early: A(f"ds_write_b128 v11, a[{16*(ct-1)+4}:{16*(ct-1)+7}] offset:{cb_off(ct-1) + 1024}")
    e(14)
    if ld: ld_v(pkb, 1, pkb)
    if (kb, ct, mode) == (0, 1, "loop"): A(f"s_and_b32 s{sKOFF}, s{sKOFF}, 0xffff")
    if (kb, ct, mode) == (2, 7, "loop"): A(f"s_cmp_eq_u32 s{sLOOP}, 0")
    if early: A(f"ds_write_b32 v13, a{16*(ct-1)+8} offset:{cb_off(ct-1) + 2048}")
    e(15)
    if mode == "last" and ct == 8 - OPT["trig"] - 1: cnt_add(vCNT, vIDX, 12)
    if mode == "last" and ct in (0, 3):
        tgt = 6 if ct == 0 else 4
        A(f"""
        s_waitcnt lgkmcnt(0)
        v_readfirstlane_b32 s{sT0}, v12
        s_cmp_ge_u32 s{sT0}, {tgt if not (OPT["noS"] or OPT["nochk"]) else 0}
        s_cbranch_scc1 L_sfree{ct}
        """)
        cnt_wait(vCNT, 12, tgt, 28 if ct == 0 else 8, sleep=2)
        A.label(f"L_sfree{ct}")
if OPT["cyc"]: A(f"s_memtime s[{sST+10}:{sST+11}]")
period(0, 0, "first")
A("s_branch L_attn1")
A(".p2align 6")
A.label("L_attn")
loop_start = len(A.lines)
for kb in (3, 0, 1, 2):
    for ct in range(8):
        if (kb, ct) == (0, 1): A.label("L_attn1")
        period(kb, ct, "loop")
loop_end = len(A.lines)
A("s_cbranch_scc0 L_attn")
for ct in range(8):
    period(3, ct, "last")
A(f"""
s_mov_b32 s{sATG}, 16
s_nop 0
v_smfmac_f32_32x32x32_bf16 a[112:127], v[{KV[3]+8}:{KV[3]+11}], v[{S1+8}:{S1+15}], v{vIDX}
""")
stamp(4, not HST)
if OPT["cyc"]: A(f"s_memtime s[{sST+12}:{sST+13}]")
if OPT["pad"] and OPT["padat"] == 2: padto()
A.label("L_comb2")
if OPT["aprio"]: prio(OPT["aprio"])
def astamp(i):
    if OPT["cyc"] or HST or not (OPT["stamps"] or OPT["enc"]): return
    stamp(i)
astamp(5)
A("s_waitcnt lgkmcnt(9)")
A(f"""
v_accvgpr_read_b32 v120, a{16*6+8}
v_accvgpr_read_b32 v121, a{16*6+8}
v_mul_f32 v118, v118, v119
v_add_f32 v112, v112, v113
v_permlane32_swap_b32 v120, v121
v_cmp_nge_f32 vcc, {f2u(-1.0 if OPT['force_slow'] else 1000.0)}, v118
v_add_f32 v120, v120, v114
v_add_f32 v120, v120, v112
v_rcp_f32 v120, v120
s_cbranch_vccnz L_slow
L_fast:
""")
def comb(u, soff):
    d = PD[u]
    if OPT["arch"]: d = [128 + 16*(6+u)] + d[1:]
    else:
        for i in range(8): A(f"v_accvgpr_read_b32 v{d[0]+i}, a{16*(6+u)+i}")
    if u == 1:
        A(f"""
        v_accvgpr_read_b32 v122, a{16*7+8}
        v_accvgpr_read_b32 v123, a{16*7+8}
        s_waitcnt lgkmcnt(2)
        v_add_f32 v115, v115, v116
        v_permlane32_swap_b32 v122, v123
        v_add_f32 v115, v115, v117
        v_add_f32 v122, v122, v115
        v_rcp_f32 v122, v122
        """)
    for i in range(0, 8, 2): A(f"v_pk_add_f32 {p2(d[1]+i)}, {p2(d[1]+i)}, {p2(d[2]+i)}")
    if u == 1:
        A("s_waitcnt lgkmcnt(0)")
        if OPT["oack"] == 2: cnt_add(vCNT, vIDX, 12)
    for i in range(0, 8, 2): A(f"v_pk_add_f32 {p2(d[0]+i)}, {p2(d[0]+i)}, {p2(d[3]+i)}")
    for i in range(0, 8, 2): A(f"v_pk_add_f32 {p2(d[0]+i)}, {p2(d[0]+i)}, {p2(d[1]+i)}")
    for i in range(0, 8, 2):
        A(f"v_pk_mul_f32 {p2(d[0]+i)}, {p2(d[0]+i)}, {p2(PL[u][0])} op_sel_hi:[1,0]")
    for i in range(0, 8, 2):
        A(f"v_cvt_pk_bf16_f32 v{d[1]+i//2}, v{d[0]+i}, v{d[0]+i+1}")
    A(f"buffer_store_dwordx4 v[{d[1]}:{d[1]+3}], v{vL16x}, {srd(R_WS)}, s{soff} offen sc1")
def p2(r): return f"v[{r}:{r+1}]"
comb(0, sT1); comb(1, sT2)
astamp(6)
if OPT["oack"]: A("s_waitcnt vmcnt(0)")
cnt_add(vCNT, vIDX, 24 if OPT["oack"] == 2 else 12)
A(f"""
s_or_b32 s{sT0}, s2, s{sWAVE}
s_cmp_lg_u32 s{sT0}, 0
s_cbranch_scc1 L_noep
s_add_u32 s{sT0}, s{sEP}, 1
v_mov_b32 v10, s{sT0}
v_mov_b32 v11, 0
s_mov_b64 exec, 1
buffer_store_dword v10, v11, {srd(R_WS)}, 0 offen
s_mov_b64 exec, -1
L_noep:
""")
A.label("L_fin")
if OPT["enc"] or OPT["encS"]:
    A("""
    s_waitcnt vmcnt(0) lgkmcnt(0)
    s_add_u32 s94, s94, 3000
    L_enc:
    s_memrealtime s[96:97]
    s_waitcnt lgkmcnt(0)
    s_sub_u32 s96, s96, s94
    s_cmp_lt_i32 s96, 0
    s_cbranch_scc1 L_enc
    """)
if OPT["pad"] and OPT["padat"] == 0:
    A("s_waitcnt vmcnt(0)"); padto()
if OPT["stamps"]:
    A(f"""
    s_waitcnt vmcnt(0)
    s_memrealtime s[100:101]
    s_waitcnt lgkmcnt(0)
    s_lshl_b32 s{sT0}, s2, 3
    s_add_u32 s{sT0}, s{sT0}, s{sWAVE}
    s_lshl_b32 s{sT0}, s{sT0}, 6
    s_add_u32 s{sT0}, s{sT0}, {DBG + 0x800000}
    v_mov_b32 v11, 0
    """)
    for i in range(9): A(f"v_mov_b32 v{16+i}, s{sST+2*i}")
    A(f"""
    s_mov_b64 exec, 1
    buffer_store_dwordx4 v[16:19], v11, {srd(R_WS)}, s{sT0} offen
    buffer_store_dwordx4 v[20:23], v11, {srd(R_WS)}, s{sT0} offen offset:16
    buffer_store_dword v24, v11, {srd(R_WS)}, s{sT0} offen offset:32
    """)
if OPT["hdbg"]:
    A(f"""
    s_load_dwordx2 s[{sT2}:{sT3}], s[0:1], 120
    s_not_b32 s{sT0}, s{sST}
    v_mov_b32 v30, s{sT0}
    v_mov_b32 v31, 0
    s_waitcnt lgkmcnt(0)
    global_atomic_umax v31, v30, s[{sT2}:{sT3}]
    s_cmp_ge_u32 s{sWAVE}, 4
    s_cbranch_scc1 L_hdS
    """)
    for k, i in enumerate((0, 2, 3, 4, 5, 6, 8)):
        A(f"global_atomic_umax v31, v{16+i}, s[{sT2}:{sT3}] offset:{4*(1+k)}")
    A("s_branch L_end")
    A.label("L_hdS")
    for k, i in enumerate((1, 2, 3, 4, 5, 6, 7, 8)):
        if i in (1, 2):
            A(f"s_cmp_lg_u32 s{sWAVE}, 4")
            A(f"s_cbranch_scc1 L_hd{i}")
        A(f"global_atomic_umax v31, v{16+i}, s[{sT2}:{sT3}] offset:{4*(8+k)}")
        if i in (1, 2): A.label(f"L_hd{i}")
A.label("L_end")
A("s_endpgm")

A.label("L_S2a")
A("s_waitcnt vmcnt(0)")
A.label("L_S2")
SSEC[0] = True
kload([(R_XA, 0), (R_BRE, 24), (R_BIM, 32), (R_CRE, 40), (R_CIM, 48), (R_WO, 104), (R_AGG, 128)])
if OPT["pfc"] == 1:
    A(f"""
    s_cmp_lg_u32 s{sWAVE}, 7
    s_cbranch_scc1 L_nopfcode
    s_getpc_b64 s[{sT0}:{sT1}]
    L_pc:
    s_sub_u32 s{sT0}, s{sT0}, L_pc-{NAME}_kernel
    s_subb_u32 s{sT1}, s{sT1}, 0
    s_lshl_b32 s{sLOOP}, s{sROT}, 13
    v_lshlrev_b32 v16, 7, v{vLANE}
    v_add_u32 v16, s{sLOOP}, v16
    v_min_u32 v16, L_hot_end-{NAME}_kernel-4, v16
    global_load_dword v{vDUM}, v16, s[{sT0}:{sT1}]
    L_nopfcode:
    """)
common_scalars()
srd_words([R_XA, R_BRE, R_BIM, R_CRE, R_CIM, R_WO, R_AGG])
A(f"""
s_lshl_b32 s{sT3}, s{sG}, 7
s_lshl_b32 s{sT4}, s{sG}, 16
s_waitcnt lgkmcnt(0)
s_mov_b64 s[{P_LRE}:{P_LRE+1}], s[{R_BRE}:{R_BRE+1}]
s_mov_b64 s[{P_LIM}:{P_LIM+1}], s[{R_BIM}:{R_BIM+1}]
s_mov_b64 s[{P_LDT}:{P_LDT+1}], s[{R_CRE}:{R_CRE+1}]
s_mov_b64 s[{P_DSK}:{P_DSK+1}], s[{R_CIM}:{R_CIM+1}]
s_mov_b64 s[{P_WV}:{P_WV+1}], s[{R_WO}:{R_WO+1}]
""")
for r, t in ((R_XA, sT2), (R_BRE, sT4), (R_BIM, sT4), (R_CRE, sT4), (R_CIM, sT4), (R_WO, sT3)):
    A(f"s_add_u32 s{r}, s{r}, s{t}")
    A(f"s_addc_u32 s{r+1}, s{r+1}, 0")
A(f"""
s_add_u32 s{R_AGG}, s{R_AGG}, {AGG}
s_addc_u32 s{R_AGG+1}, s{R_AGG+1}, 0
""")
common_after_wait(False)
if OPT["tlb"]:
    A(f"""
    s_cmp_lg_u32 s{sSW}, 2
    s_cbranch_scc1 L_notlb
    v_mov_b32 v16, 0
    s_lshl_b32 s{sT0}, s{sC}, 17
    s_add_u32 s{sT0}, s{sT0}, {HB}
    s_mov_b32 s{sT1}, {KVT}
    s_mov_b64 exec, 1
    """)
    for R in (R_XA, R_BRE, R_BIM, R_WO, R_CRE, R_CIM, R_OUT):
        A(f"buffer_load_dword v{vDUM}, v16, {srd(R)}, 0 offen")
    A(f"""
    buffer_load_dword v{vDUM}, v16, {srd(R_WS)}, s{sOB} offen sc1
    buffer_load_dword v{vDUM}, v16, {srd(R_WS)}, s{sT0} offen offset:2048 sc1
    s_mov_b64 exec, -1
    L_notlb:
    """)
A(f"""
s_add_u32 s{sROT}, s{sC}, s{sG}
s_and_b32 s{sROT}, s{sROT}, 3
v_lshrrev_b32 v20, 4, v{vLANE}
v_and_b32 v21, 15, v{vLANE}
v_lshlrev_b32 v22, 4, v21
v_lshl_add_u32 v{vBo}, v20, 14, v22
v_lshrrev_b32 v23, 1, v20
v_and_b32 v24, 1, v20
v_lshlrev_b32 v23, 15, v23
v_lshl_add_u32 v23, v24, 12, v23
v_add_u32 v{vXo}, v23, v22
v_lshlrev_b32 v{vPF}, 7, v21
s_lshl_b32 s{sT0}, s2, 11
v_add_u32 v{vPF}, s{sT0}, v{vPF}
""")
def g1_soff(s):
    A(f"""
    s_add_u32 s{sT5}, s{sROT}, {s}
    s_and_b32 s{sT5}, s{sT5}, 3
    s_lshl_b32 s{sT5}, s{sT5}, 8
    s_lshl_b32 s{sT3}, s{sSW}, 12
    s_add_u32 s{sT3}, s{sT3}, s{sT5}
    s_lshl_b32 s{sT4}, s{sTW}, 14
    s_add_u32 s{sT4}, s{sT4}, s{sT5}
    s_lshl_b32 s{sT5}, s{sCW}, 11
    s_add_u32 s{sT4}, s{sT4}, s{sT5}
    s_add_u32 s{sT5}, s{sT4}, 8192
    """)
def capw(c=None):
    c = OPT["cap"] if c is None else c
    if c: A(f"s_waitcnt vmcnt({c})")
def dma_piece(n):
    dma_piece_(n)
    capw(OPT["cap0"] if n < OPT["npre"] else None)
def dma_piece_(n):
    st, r = divmod(n, 12); i, m = divmod(r, 3)
    slot = SLOT[st % 3]
    if r == 0: g1_soff(st)
    if m == 0:
        A(f"s_add_u32 m0, s{sT7}, {slot + XA_O + i*1040 - (i>>1)*1024}")
        A("s_nop 0")
        A(f"buffer_load_dwordx4 v{vXo}, {srd(R_XA)}, s{sT5 if i & 1 else sT4} offen offset:{(i>>1)*1024} lds")
    else:
        A(f"s_add_u32 m0, s{sT7}, {slot + [0, BRE_O, BIM_O][m] + i*16}")
        A("s_nop 0")
        A(f"buffer_load_dwordx4 v{vBo}, {srd([0, R_BRE, R_BIM][m])}, s{sT3} offen offset:{i*1024} lds")
LOG2E = math.log2(math.e)
a0, a1, a2, a3, a4, a5 = PRM, PRM+1, PRM+2, 96, 97, 98
vLR, vLI = vL1, vL1 + 1
A(f"""
s_mov_b32 s{sT0}, {f2u(LOG2E)}
v_lshlrev_b32 v{a0}, 16, v{a0}
v_lshlrev_b32 v{a1}, 16, v{a1}
v_lshlrev_b32 v{a2}, 16, v{a2}
v_mul_f32 v{a2}, s{sT0}, v{a2}
v_exp_f32 v{a2}, v{a2}
s_nop 0
v_cvt_pk_bf16_f32 v{a2}, v{a2}, v{a2}
v_and_b32 v{a2}, 0xffff0000, v{a2}
v_mul_f32 v{a3}, v{a2}, v{a0}
v_mul_f32 v{a4}, v{a2}, v{a1}
v_mul_f32 v{a3}, s{sT0}, v{a3}
v_exp_f32 v{a3}, v{a3}
v_mul_f32 v{a4}, 0.15915494, v{a4}
v_fract_f32 v{a4}, v{a4}
v_cos_f32 v{vLR}, v{a4}
v_sin_f32 v{vLI}, v{a4}
s_nop 0
v_mul_f32 v{vLR}, v{a3}, v{vLR}
v_mul_f32 v{vLI}, v{a3}, v{vLI}
v_mul_f32 v{a2}, v{a0}, v{a0}
v_fmac_f32 v{a2}, v{a1}, v{a1}
v_rcp_f32 v{a2}, v{a2}
v_add_f32 v{a3}, -1.0, v{vLR}
v_mul_f32 v{a4}, v{a3}, v{a0}
v_fmac_f32 v{a4}, v{vLI}, v{a1}
v_mul_f32 v{a5}, v{vLI}, v{a0}
v_fma_f32 v{a5}, -v{a3}, v{a1}, v{a5}
v_add_f32 v{a2}, v{a2}, v{a2}
v_mul_f32 v{vCF}, v{a4}, v{a2}
v_mul_f32 v{vCF+1}, v{a5}, v{a2}
""")
def csq(d, s_):
    A(f"v_mul_f32 v{a0}, v{s_+1}, v{s_+1}")
    A(f"v_mul_f32 v{a1}, v{s_}, v{s_+1}")
    A(f"v_fma_f32 v{d}, v{s_}, v{s_}, -v{a0}")
    A(f"v_add_f32 v{d+1}, v{a1}, v{a1}")
csq(vL8, vL1); csq(vL8, vL8); csq(vL8, vL8)
csq(vL16, vL8)
csq(vL64, vL16); csq(vL64, vL64)
csq(vL512, vL64); csq(vL512, vL512); csq(vL512, vL512)
vD = PRM + 3
A(f"""
v_and_b32 v20, 1, v{vL31}
v_lshlrev_b32 v20, 4, v20
v_lshlrev_b32 v{vD}, v20, v{vD}
v_bfe_u32 v20, v{vL31}, 3, 1
v_cmp_eq_u32 vcc, v20, v{vH}
v_bfe_u32 v21, v{vL31}, 1, 2
v_lshrrev_b32 v22, 4, v{vL31}
v_cndmask_b32 v{vD}, 0, v{vD}, vcc
v_lshl_add_u32 v21, v22, 2, v21
""")
for i in range(8):
    A(f"v_cmp_eq_u32 vcc, {i}, v21")
    A("s_nop 1")
    A(f"v_cndmask_b32 v{DG+i}, 0, v{vD}, vcc")
A(f"""
v_and_b32 v20, 15, v{vL31}
v_mul_u32_u24 v20, 1040, v20
v_lshl_add_u32 v20, v{vH}, 4, v20
v_lshrrev_b32 v21, 4, v{vL31}
v_lshl_add_u32 v20, v21, 8, v20
s_lshl_b32 s{sT0}, s{sTW}, 9
v_add_u32 v{vAa[0]}, s{sT0}, v20
v_add_u32 v{vAa[1]}, {SLOT[1]}, v{vAa[0]}
s_lshl_b32 s{sT0}, s{sCW}, 9
s_add_u32 s{sT0}, s{sT0}, {BRE_O}
v_add_u32 v{vBa[0]}, s{sT0}, v20
v_add_u32 v{vBa[1]}, {SLOT[1]}, v{vBa[0]}
v_bfe_u32 v20, v{vL31}, 2, 1
v_lshlrev_b32 v20, 3, v20
v_bfe_u32 v21, v{vL31}, 4, 1
v_lshl_add_u32 v20, v21, 2, v20
v_and_b32 v21, 3, v{vL31}
v_add_u32 v20, v20, v21
v_mul_u32_u24 v20, 1040, v20
v_bfe_u32 v21, v{vL31}, 3, 1
v_lshl_add_u32 v20, v21, 8, v20
v_lshl_add_u32 v20, v{vH}, 4, v20
s_lshl_b32 s{sT0}, s{sTW}, 9
s_and_b32 s{sT1}, s{sG}, 1
s_lshl_b32 s{sT1}, s{sT1}, 7
s_add_u32 s{sT0}, s{sT0}, s{sT1}
s_lshl_b32 s{sT1}, s{sCW}, 6
s_add_u32 s{sT0}, s{sT0}, s{sT1}
s_lshr_b32 s{sLOOP}, s{sG}, 1
s_sub_u32 s{sLOOP}, s{sLOOP}, s{sROT}
s_and_b32 s{sLOOP}, s{sLOOP}, 3
s_mul_i32 s{sT1}, s{sLOOP}, {SLOT[1]}
s_cmp_eq_u32 s{sLOOP}, 3
s_cselect_b32 s{sT1}, 0, s{sT1}
s_add_u32 s{sT0}, s{sT0}, s{sT1}
v_add_u32 v{vDa}, s{sT0}, v20
s_mul_i32 s{sT7}, s{sSW}, {4*1040}
v_add_u32 v{vAa[2]}, {SLOT[2]}, v{vAa[0]}
v_add_u32 v{vBa[2]}, {SLOT[2]}, v{vBa[0]}
""")
cnt_wait(vCNT, vTMP, 6, 0, sleep=1)
cnt_wait(vCNT, vTMP, 4, 12, sleep=1)
if OPT["stgl"] > 2: cnt_wait(vCNT, vTMP, 4*OPT["stgl"], 4, sleep=2)
def pfx(items):
    if OPT["pfb"] != 2: return
    nsh = 8 if OPT["map84"] else 4
    for R, sw, shift in items:
        lbl = A.newlabel("pfx")
        A(f"""
        s_cmp_lg_u32 s{sSW}, {sw}
        s_cbranch_scc1 {lbl}
        s_and_b32 s{sT0}, s{sC}, {nsh - 1}
        s_lshl_b32 s{sT0}, s{sT0}, {shift + 6 + (0 if nsh == 8 else 1)}
        v_lshlrev_b32 v{vPF}, {shift}, v{vLANE}
        buffer_load_dword v{vDUM}, v{vPF}, {srd(R)}, s{sT0} offen
        """)
        if nsh == 4:
            A(f"s_add_u32 s{sT0}, s{sT0}, {64 << shift}")
            A(f"buffer_load_dword v{vDUM}, v{vPF}, {srd(R)}, s{sT0} offen")
        A.label(lbl)
def pf16(pairs, lbl):
    if OPT["pfb"] != 1: return
    A(f"""
    s_cmp_lg_u32 s{sSW}, 1
    s_cbranch_scc1 {lbl}
    s_mov_b64 exec, 0xffff
    """)
    for p in pairs: A(f"global_load_dword v{vDUM}, v{vPF}, s[{p}:{p+1}]")
    A(f"s_mov_b64 exec, -1\n{lbl}:")
pf16([P_LRE, P_LIM, P_WV], "L_nopfb")
cnt_wait(vCNT, vTMP, 12, 4, sleep=0)
if OPT["noS"]: A("s_branch L_fin")
prio(OPT["gprio"])
sstamp(1, 1)
NPRE = OPT["npre"]
for n in range(NPRE): dma_piece(n)
ISS = [NPRE]
A(f"s_waitcnt vmcnt({NPRE - 12})")
sstamp(2, 1)
prio(OPT["vprio"])
sync_add(False); sync_wait(0)
sstamp(3, 1)
G1B = [FRS, FRS + 12, 64]
def g1_stage(s, extra=None, nwr=None, early_add=None):
    slot = s % 3
    prio(3 if (OPT["g1p"] >> s) & 1 else OPT["gprio"])
    sk = A.newlabel("nod")
    A(f"""
    s_cmp_lg_u32 s{sLOOP}, {s}
    s_cbranch_scc1 {sk}
    ds_read_b128 v[64:67], v{vDa}
    ds_read_b128 v[68:71], v{vDa} offset:32
    s_waitcnt lgkmcnt(0)
    v_mfma_f32_32x32x16_bf16 v[{Y0}:{Y0+15}], v[64:67], v[{DG}:{DG+3}], 0
    v_mfma_f32_32x32x16_bf16 v[{Y0}:{Y0+15}], v[68:71], v[{DG+4}:{DG+7}], v[{Y0}:{Y0+15}]
    {sk}:
    """)
    def rd(k):
        f = G1B[k % 3]
        A(f"ds_read_b128 v[{f}:{f+3}], v{vAa[slot]} offset:{k*32}")
        A(f"ds_read_b128 v[{f+4}:{f+7}], v{vBa[slot]} offset:{k*32}")
        A(f"ds_read_b128 v[{f+8}:{f+11}], v{vBa[slot]} offset:{k*32 + (BIM_O-BRE_O)}")
    rd(0); rd(1)
    for k in range(8):
        f = G1B[k % 3]
        if k + 2 < 8: rd(k + 2)
        nw = nwr(k - 1) if (nwr and k > 0) else 0
        A(f"s_waitcnt lgkmcnt({min(15, 3*(min(8, k + 3) - k - 1) + nw)})")
        if k == 7 and early_add is not None:
            if early_add: A(early_add)
            sync_add(False)
        cr = "0" if (s == 0 and k == 0) else f"v[{UR}:{UR+15}]"
        ci = "0" if (s == 0 and k == 0) else f"v[{UI}:{UI+15}]"
        A(f"v_mfma_f32_32x32x16_bf16 v[{UR}:{UR+15}], v[{f}:{f+3}], v[{f+4}:{f+7}], {cr}")
        if extra: extra(k)
        A(f"v_mfma_f32_32x32x16_bf16 v[{UI}:{UI+15}], v[{f}:{f+3}], v[{f+8}:{f+11}], {ci}")
def issue_upto(lim, k, last):
    cnt = -(-(lim - ISS[0]) // max(1, last - k)) if k < last else 0
    for n in range(ISS[0], min(lim, ISS[0] + cnt)): dma_piece(n)
    ISS[0] = min(lim, ISS[0] + cnt)
L0 = OPT["l0"]
g1_stage(0, lambda k: issue_upto(L0, k, 7), early_add=f"s_waitcnt vmcnt({L0 - 24})")
assert ISS[0] == L0
sstamp(4, 1)
prio(OPT["vprio"])
pfx([(R_WO, 1, 10)])
sync_wait(0)
g1_stage(1, lambda k: issue_upto(48, k, 7), early_add="s_waitcnt vmcnt(12)")
assert ISS[0] == 48
sstamp(5, 1)
prio(OPT["vprio"])
CLR = 64
A(f"""
v_mov_b32 v{CLR}, -1
v_mov_b32 v{CLR+1}, -1
v_mov_b32 v{CLR+2}, -1
v_mov_b32 v{CLR+3}, -1
s_lshl_b32 s{sT0}, s{sG}, 12
s_add_u32 s{sT0}, s{sT0}, s{sOB}
s_lshl_b32 s{sT1}, s{sCW}, 11
s_add_u32 s{sT0}, s{sT0}, s{sT1}
buffer_store_dwordx4 v[{CLR}:{CLR+3}], v{vL16x}, {srd(R_WS)}, s{sT0} offen sc1
buffer_store_dwordx4 v[{CLR}:{CLR+3}], v{vL16x}, {srd(R_WS)}, s{sT0} offen offset:1024 sc1
v_mov_b32 v{CLR+4}, 0
v_mov_b32 v{CLR+5}, s{sTAG}
v_mov_b32 v{CLR+6}, 0
v_mov_b32 v{CLR+7}, s{sTAG}
s_lshl_b32 s{sT1}, s{sID}, 7
s_add_u32 s{sT1}, s{sT1}, {AGG_DUMMY}
s_mov_b64 exec, 1
buffer_store_dwordx4 v[{CLR+4}:{CLR+7}], v{CLR+4}, {srd(R_AGG)}, s{sT1} offen sc1
s_mov_b64 exec, -1
""")
sync_wait(0)
g1_stage(2, early_add="s_waitcnt vmcnt(0)")
sstamp(6, 1)
prio(OPT["vprio"])
pf16([P_LDT, P_DSK], "L_nopfc")
pfx([(R_CRE, 2, 7), (R_CIM, 3, 7)])
wq_voffset(5, 6, 8, 15)
A(f"""
s_mul_i32 s{sT2}, s{sSW}, {16*1040}
s_lshl_b32 s{sT3}, s{sSW}, 14
s_lshl_b32 s{sT6}, s{sSW}, 17
""")
sync_wait(0)
def wo_piece(i):
    A(f"""
    s_add_u32 m0, s{sT3}, {WO + i*1024}
    s_add_u32 s{sT1}, s{sT6}, {i*8192}
    buffer_load_dwordx4 v5, {srd(R_WO)}, s{sT1} offen lds
    """)
    capw()
def c_piece(R, base, i):
    A(f"s_add_u32 m0, s{sT2}, {base + i*1040 - (i & 3)*1024}")
    if i & 3 == 0: A(f"s_add_u32 s{sT4}, s{sT3}, {i*1024}")
    else: A("s_nop 0")
    A(f"buffer_load_dwordx4 v{vL16x}, {srd(R)}, s{sT4} offen offset:{(i & 3)*1024} lds")
    capw()
def ex3(k):
    wo_piece(2*k); wo_piece(2*k + 1)
g1_stage(3, ex3)
sstamp(7, 1); sstamp(1, 2)
prio(OPT["vprio"])
stamp(3)
A(f"""
s_lshl_b32 s{sT0}, s{sTW}, 10
s_lshl_b32 s{sT1}, s{sCW}, 8
s_add_u32 s{sT1}, s{sT1}, {EB}
s_add_u32 s{sT0}, s{sT0}, s{sT1}
v_lshlrev_b32 v10, 3, v{vL31}
v_add_u32 v11, s{sT1}, v10
v_lshl_add_u32 v10, v{vH}, 9, v10
v_add_u32 v10, s{sT0}, v10
""")
A.nop(4)
if OPT["dbg"]:
    A(f"""
    s_lshl_b32 s{sT0}, s{sID}, 2
    s_add_u32 s{sT0}, s{sT0}, s{sSW}
    s_lshl_b32 s{sT0}, s{sT0}, 13
    s_add_u32 s{sT0}, s{sT0}, {DBG}
    v_lshlrev_b32 v12, 2, v{vLANE}
    """)
    for i in range(32):
        A(f"buffer_store_dword v{UR+i}, v12, {srd(R_WS)}, s{sT0} offen")
        A(f"s_add_u32 s{sT0}, s{sT0}, 256")
    A("s_waitcnt vmcnt(0)")
def cstep4(dr, di, pr, pi, l, ur, ui, tr, ti):
    A(f"v_fma_f32 v{tr}, v{l}, v{pr}, v{ur}")
    A(f"v_fma_f32 v{ti}, v{l}, v{pi}, v{ui}")
    A(f"v_fma_f32 v{dr}, -v{l+1}, v{pi}, v{tr}")
    A(f"v_fma_f32 v{di}, v{l+1}, v{pr}, v{ti}")
def p2(r): return f"v[{r}:{r+1}]"
def pkstep(dr, di, pr, pi, l, ur, ui, tr, ti):
    A(f"v_pk_fma_f32 {p2(tr)}, {p2(l)}, {p2(pr)}, {p2(ur)} op_sel_hi:[0,1,1]")
    A(f"v_pk_fma_f32 {p2(ti)}, {p2(l)}, {p2(pi)}, {p2(ui)} op_sel_hi:[0,1,1]")
    A(f"v_pk_fma_f32 {p2(dr)}, {p2(l)}, {p2(pi)}, {p2(tr)} op_sel:[1,0,0] neg_lo:[1,0,0] neg_hi:[1,0,0]")
    A(f"v_pk_fma_f32 {p2(di)}, {p2(l)}, {p2(pr)}, {p2(ti)} op_sel:[1,0,0]")
pa = [(FRS, FRS+2), (6, 8)]
p = (UR, UI)
for j in range(1, 8):
    d = pa[j & 1]
    pkstep(d[0], d[1], p[0], p[1], vL1, UR+2*j, UI+2*j, FRS+4, FRS+6)
    p = d
EA = (6, 8)
cstep4(FRS, FRS+1, 6, 8, vL8, 7, 9, FRS+4, FRS+5)
A(f"ds_write_b64 v10, v[{FRS}:{FRS+1}]")
A("s_waitcnt vmcnt(0)")
sync_add()
LB = 64
A(f"""
s_lshl_b32 s{sT0}, s{sTW}, 4
s_sub_u32 s{sT0}, s{sC}, s{sT0}
s_sub_u32 s{sT0}, s{sT0}, 1
s_lshl_b32 s{sT0}, s{sT0}, 13
v_lshlrev_b32 v5, 16, v{vH}
v_sub_u32 v5, s{sT0}, v5
v_lshl_add_u32 v5, v{vP2}, 3, v5
s_lshl_b32 s{sT1}, s{sID}, 7
s_add_u32 s{sT1}, s{sT1}, {AGG_DUMMY}
""")
for k in range(8):
    A(f"v_min_u32 v{96+k}, s{sT1}, v5")
    if k < 7: A(f"v_add_u32 v5, {(-8192) & 0xffffffff}, v5")
sync_wait(0)
sstamp(2, 2)
E = FRS
for s in range(4):
    A(f"ds_read_b64 v[{E+2*s}:{E+2*s+1}], v11 offset:{s*512}")
A("s_waitcnt lgkmcnt(0)")
A1, A2, G3 = (104, 105), (106, 107), 108
cstep4(A1[0], A1[1], E, E+1, vL16, E+2, E+3, FRS+8, FRS+9)
cstep4(A2[0], A2[1], A1[0], A1[1], vL16, E+4, E+5, FRS+8, FRS+9)
vPR, vPI, vW = 12, 13, 14
tw1 = A.newlabel("tw1"); twd = A.newlabel("twd")
A(f"""
v_cmp_eq_u32 vcc, 1, v{vH}
s_cmp_lg_u32 s{sTW}, 0
s_cbranch_scc1 {tw1}
""")
cstep4(G3, G3+2, A2[0], A2[1], vL16, E+6, E+7, FRS+8, FRS+9)
A(f"""
v_mov_b32 v{G3+1}, s{sTAG}
v_mov_b32 v{G3+3}, s{sTAG}
v_lshlrev_b32 v7, 3, v{vP2}
s_lshl_b32 s{sT0}, s{sC}, 13
s_mov_b32 exec_hi, 0
buffer_store_dwordx4 v[{G3}:{G3+3}], v7, {srd(R_AGG)}, s{sT0} offen sc1
s_mov_b32 exec_hi, -1
v_cndmask_b32 v{vPR}, 0, v{E}, vcc
v_cndmask_b32 v{vPI}, 0, v{E+1}, vcc
v_cndmask_b32 v{vW}, 1.0, v{vL16}, vcc
v_cndmask_b32 v{vW+1}, 0, v{vL16+1}, vcc
s_branch {twd}
{tw1}:
v_cndmask_b32 v{vPR}, v{A1[0]}, v{A2[0]}, vcc
v_cndmask_b32 v{vPI}, v{A1[1]}, v{A2[1]}, vcc
v_mul_f32 v{FRS+8}, v{vL16+1}, v{vL16+1}
v_mul_f32 v{FRS+9}, v{vL16}, v{vL16+1}
v_fma_f32 v{FRS+8}, v{vL16}, v{vL16}, -v{FRS+8}
v_add_f32 v{FRS+9}, v{FRS+9}, v{FRS+9}
v_mul_f32 v{FRS+10}, v{FRS+8}, v{vL16}
v_mul_f32 v{FRS+11}, v{FRS+8}, v{vL16+1}
v_fma_f32 v{FRS+10}, -v{FRS+9}, v{vL16+1}, v{FRS+10}
v_fma_f32 v{FRS+11}, v{FRS+9}, v{vL16}, v{FRS+11}
v_cndmask_b32 v{vW}, v{FRS+8}, v{FRS+10}, vcc
v_cndmask_b32 v{vW+1}, v{FRS+9}, v{FRS+11}, vcc
{twd}:
""")
A(f"s_mov_b32 s{sSPIN}, 0")
A(f"""
s_lshl_b32 s{sT0}, s{sSW}, 12
s_add_u32 s{sT0}, s{sT0}, {TB}
v_lshlrev_b32 v9, 6, v{vL31}
v_lshl_add_u32 v9, v{vH}, 5, v9
v_add_u32 v9, s{sT0}, v9
v_bfe_u32 v108, v{vLANE}, 2, 2
v_lshl_add_u32 v108, v{vH}, 3, v108
v_lshlrev_b32 v108, 6, v108
v_bfe_u32 v109, v{vLANE}, 4, 1
v_lshl_add_u32 v108, v109, 5, v108
v_and_b32 v109, 3, v{vLANE}
v_lshl_add_u32 v108, v109, 3, v108
v_add_u32 v108, s{sT0}, v108
""")
A(f"""
v_bfe_u32 v5, v{vLANE}, 2, 2
v_lshl_add_u32 v5, v{vH}, 2, v5
v_bfe_u32 v7, v{vLANE}, 4, 1
v_and_b32 v110, 3, v{vLANE}
v_lshlrev_b32 v110, 3, v110
v_lshl_add_u32 v110, v7, 5, v110
v_bfe_u32 v7, v{vLANE}, 3, 1
v_lshl_add_u32 v110, v7, 6, v110
v_lshl_add_u32 v110, v5, 7, v110
s_lshl_b32 s{sT0}, s{sCW}, 13
s_add_u32 s{sT0}, s{sT0}, {WO}
s_lshl_b32 s{sT1}, s{sCW}, 6
v_xor_b32 v110, s{sT1}, v110
v_xor_b32 v111, 64, v110
v_add_u32 v110, s{sT0}, v110
v_add_u32 v111, s{sT0}, v111
""")
def prod_off(i, shift, dst):
    A(f"""
    s_lshr_b32 s{dst}, s{sG}, 1
    s_add_u32 s{dst}, s{dst}, {i + 1}
    s_and_b32 s{dst}, s{dst}, 3
    s_lshl_b32 s{dst}, s{dst}, {shift}
    """)
for j in range(16):
    if OPT["orot"] and j % 4 == 0:
        prod_off(j // 4, 14, sT0)
        A(f"v_add_u32 v5, s{sT0}, v110")
        A(f"v_add_u32 v7, s{sT0}, v111")
    for nt in range(2):
        f = 8*j + 4*nt
        ad = [5, 7][nt] if OPT["orot"] else 110 + nt
        off = (j & 3)*2048 + (0 if OPT["orot"] else (j >> 2)*16384)
        A(f"ds_read_b64_tr_b16 a[{f}:{f+1}], v{ad} offset:{off}")
        A(f"ds_read_b64_tr_b16 a[{f+2}:{f+3}], v{ad} offset:{off + 1024}")
    if j % 3 == 2: A("s_waitcnt lgkmcnt(3)")
prio(OPT["gprio"])
for i in range(OPT["cim1"]): c_piece(R_CIM, CIM, i)
prio(OPT["vprio"])
sstamp(3, 2)
A.label("L_lb")
for k in range(8):
    A(f"buffer_load_dwordx4 v[{LB+4*k}:{LB+4*k+3}], v{96+k}, {srd(R_AGG)}, 0 offen sc1")
A(f"""
s_add_u32 s{sSPIN}, s{sSPIN}, 1
s_waitcnt vmcnt(0)
v_min_u32 v5, v{LB+1}, v{LB+3}
v_max3_u32 v7, s{sTAG}, v{LB+1}, v{LB+3}
""")
for k in range(1, 8):
    A(f"v_min3_u32 v5, v5, v{LB+4*k+1}, v{LB+4*k+3}")
    A(f"v_max3_u32 v7, v7, v{LB+4*k+1}, v{LB+4*k+3}")
A(f"""
v_min_u32 v5, s{sTAG}, v5
v_cmp_ne_u32 vcc, v5, v7
s_cbranch_vccz L_lbd
s_sleep 8
s_cmp_lt_u32 s{sSPIN}, {SPIN_MAX}
s_cbranch_scc1 L_lb
L_lbd:
""")
stamp(4); sstamp(4, 2)
p = (LB+28, LB+30)
pb = [(96, 97), (98, 99)]
for k in range(6, -1, -1):
    d = pb[k & 1]
    cstep4(d[0], d[1], p[0], p[1], vL64, LB+4*k, LB+4*k+2, 100, 101)
    p = d
A(f"ds_write_b64 v10, v[96:97] offset:{HP-EB}")
sync_add(); sync_wait(0)
sstamp(5, 2)
for s in range(4):
    A(f"ds_read_b64 v[{E+2*s}:{E+2*s+1}], v11 offset:{HP - EB + s*512}")
A("s_waitcnt lgkmcnt(0)")
p = (E+6, E+7)
for s in range(2, -1, -1):
    d = pb[s & 1]
    cstep4(d[0], d[1], p[0], p[1], vL512, E+2*s, E+2*s+1, 100, 101)
    p = d
CRp, CIp = 104, 106
cstep4(CRp, CIp, p[0], p[1], vW, vPR, vPI, 100, 101)
cstep4(CRp+1, CIp+1, CRp, CIp, vL8, EA[0], EA[1], 100, 101)
HR, HI = FRS, FRS+8
p = (CRp, CIp)
for j in range(8):
    pkstep(UR+2*j, UI+2*j, p[0], p[1], vL1, UR+2*j, UI+2*j, 100, 102)
    p = (UR+2*j, UI+2*j)
    if OPT['cpos'] == 0: c_piece(R_CRE, CRE, 2*j)
    A(f"v_pk_mul_f32 {p2(96)}, {p2(vCF)}, {p2(UI+2*j)} op_sel:[1,0]")
    A(f"v_pk_mul_f32 {p2(98)}, {p2(vCF)}, {p2(UR+2*j)} op_sel:[1,0]")
    A(f"v_pk_fma_f32 {p2(96)}, {p2(vCF)}, {p2(UR+2*j)}, {p2(96)} op_sel_hi:[0,1,1] neg_lo:[0,0,1] neg_hi:[0,0,1]")
    A(f"v_pk_fma_f32 {p2(98)}, {p2(vCF)}, {p2(UI+2*j)}, {p2(98)} op_sel_hi:[0,1,1] neg_lo:[1,0,1] neg_hi:[1,0,1]")
    if OPT['cpos'] == 0: c_piece(R_CRE, CRE, 2*j + 1)
    A(f"v_cvt_pk_bf16_f32 v{HR+j}, v96, v97")
    A(f"v_cvt_pk_bf16_f32 v{HI+j}, v98, v99")
    if j == 3:
        A(f"ds_write_b128 v9, v[{HR}:{HR+3}]")
        A(f"ds_write_b128 v9, v[{HI}:{HI+3}] offset:2048")
A(f"""
ds_write_b128 v9, v[{HR+4}:{HR+7}] offset:16
ds_write_b128 v9, v[{HI+4}:{HI+7}] offset:2064
s_lshl_b32 s{sKOFF}, s{sC}, 1
s_add_u32 s{sKOFF}, s{sKOFF}, s{sTW}
s_lshl_b32 s{sKOFF}, s{sKOFF}, 16
s_add_u32 s{sKOFF}, s{sKOFF}, {HB}
s_lshl_b32 s{sT1}, s{sG}, 12
s_lshl_b32 s{sT7}, s{sCW}, 11
s_add_u32 s{sT1}, s{sT1}, s{sT7}
s_add_u32 s{sT0}, s{sKOFF}, s{sT1}
s_add_u32 s{sT1}, s{sT0}, 32768
s_waitcnt lgkmcnt(0)
""")
for part in range(2):
    for hf in range(2):
        f = 64 + 8*part + 4*hf
        A(f"ds_read_b64_tr_b16 v[{f}:{f+1}], v108 offset:{part*2048 + hf*1024}")
        A(f"ds_read_b64_tr_b16 v[{f+2}:{f+3}], v108 offset:{part*2048 + hf*1024 + 256}")
for n in range(4):
    A(f"s_waitcnt lgkmcnt({6 - 2*n})")
    A(f"buffer_store_dwordx4 v[{64+4*n}:{67+4*n}], v{vL16x}, {srd(R_WS)}, s{sT0 if n < 2 else sT1} offen offset:{(n&1)*1024} sc1")
A(f"""
s_lshl_b32 s{sT7}, s{sC}, 12
s_add_u32 s{sT7}, s{sT7}, {FL3}
v_and_b32 v5, 15, v{vLANE}
v_lshlrev_b32 v5, 8, v5
s_lshl_b32 s{sT0}, s{sTW}, 7
s_add_u32 s{sT0}, s{sT0}, s{sT7}
v_add_u32 v5, s{sT0}, v5
v_mov_b32 v12, s{sTAG}
v_mov_b32 v13, 0
s_lshl_b32 s{sT1}, s{sG}, 2
s_add_u32 s{sT1}, s{sT1}, s{sSW}
s_lshl_b32 s{sT1}, s{sT1}, 7
s_add_u32 s{sT1}, s{sT1}, s{sT7}
""")
sstamp(6, 2)
A("s_waitcnt vmcnt(0)")
sstamp(7, 2); sstamp(1, 3)
A(f"""
s_mov_b64 exec, 1
buffer_store_dword v12, v13, {srd(R_WS)}, s{sT1} offen sc1
ds_add_u32 v{vCNT}, v{vONE} offset:28
s_mov_b64 exec, -1
""")
A(f"""
v_bfe_u32 v6, v{vLANE}, 4, 1
v_and_b32 v7, 15, v{vLANE}
v_lshlrev_b32 v7, 4, v7
v_lshl_add_u32 v7, v6, 9, v7
v_lshl_add_u32 v7, v{vH}, 15, v7
s_lshr_b32 s{sT5}, s{sT2}, 1
s_lshr_b32 s{sT6}, s{sT3}, 1
""")
prio(OPT["gprio"])
for half, base in ((0, CREA), (1, CREB)):
    for i in range(8):
        A(f"s_add_u32 m0, s{sT5}, {base + i*1040 - (i & 3)*1024}")
        if i & 3 == 0: A(f"s_add_u32 s{sT4}, s{sT6}, {i*1024 + half*256}")
        else: A("s_nop 0")
        A(f"buffer_load_dwordx4 v7, {srd(R_CRE)}, s{sT4} offen offset:{(i & 3)*1024} lds")
        capw()
prio(OPT["vprio"])
stamp(5, not HST)
A(f"""
v_mul_u32_u24 v10, 1040, v{vL31}
v_lshl_add_u32 v10, v{vH}, 4, v10
s_mul_i32 s{sT0}, s{sCW}, {512 + 32*1040}
s_mul_i32 s{sT1}, s{sCW}, {(512 - 32*1040) & 0xffffffff}
s_add_u32 s{sT1}, s{sT1}, {32*1040}
s_mul_i32 s{sT5}, s{sCW}, 768
s_mul_i32 s{sT6}, s{sCW}, {(-256) & 0xffffffff}
s_add_u32 s{sT5}, s{sT5}, {CREB}
s_add_u32 s{sT6}, s{sT6}, {CREB + 512}
v_add_u32 v14, s{sT5}, v10
v_add_u32 v15, s{sT6}, v10
v_add_u32 v11, s{sT1}, v10
v_add_u32 v10, s{sT0}, v10
s_lshl_b32 s{sT1}, s{sCW}, 14
s_add_u32 s{sKOFF}, s{sKOFF}, s{sT1}
s_lshl_b32 s{sT1}, s{sCW}, 12
s_add_u32 s{sOB}, s{sOB}, s{sT1}
s_xor_b32 s{sT0}, s{sSW}, 2
s_lshl_b32 s{sT0}, s{sT0}, 12
v_add_u32 v114, s{sT0}, v{vL16x}
s_lshl_b32 s{sT0}, s{sSW}, 12
v_add_u32 v115, s{sT0}, v{vL16x}
v_add_u32 v119, {TBY}, v114
v_add_u32 v120, {TBY}, v115
s_lshl_b32 s{sT0}, s{sTW}, 17
s_lshl_b32 s{sT1}, s{sG}, 8
s_add_u32 s{sT0}, s{sT0}, s{sT1}
s_lshl_b32 s{sT1}, s{sCW}, 7
s_add_u32 s{sT0}, s{sT0}, s{sT1}
v_lshlrev_b32 v113, 2, v{vL31}
v_add_u32 v113, s{sT0}, v113
v_lshl_add_u32 v118, v{vH}, 14, v113
v_add_u32 v118, 2048, v118
v_lshl_add_u32 v113, v{vH}, 13, v113
""")
sstamp(2, 3)
poll_flags(5, 12, 1, sleep=OPT['sl2'])
if OPT["cpos"] == 1: sync_add(False)
sstamp(3, 3)
LA = 7
HRING = 16
def hreg(j): return HRING + 4*(j % 8)
def h_ld(j):
    if j == 16: A(f"s_add_u32 s{sKOFF}, s{sKOFF}, {32768 - 3*4096}")
    elif j % 4 == 0 and j > 0: A(f"s_add_u32 s{sKOFF}, s{sKOFF}, 4096")
    A(f"buffer_load_dwordx4 v[{hreg(j)}:{hreg(j)+3}], v{vL16x}, {srd(R_WS)}, s{sKOFF} offen offset:{(j%4)*1024} sc1")
for j in range(LA): h_ld(j)
def g2_rd(j):
    f = FRS + 8*(j % 3)
    off = (CREA - CREB + j*32) if j < 8 else ((j - 8)*32 if j < 16 else (j - 16)*32)
    A(f"ds_read_b128 v[{f}:{f+3}], v{14 if j < 16 else 10} offset:{off}")
    A(f"ds_read_b128 v[{f+4}:{f+7}], v{15 if j < 16 else 11} offset:{off}")
def g2_mfma(j):
    f = FRS + 8*(j % 3)
    c = "0" if j == 0 else f"v[{Y1}:{Y1+15}]"
    A(f"v_mfma_f32_32x32x16_bf16 v[{Y1}:{Y1+15}], v[{hreg(j)}:{hreg(j)+3}], v[{f+4}:{f+7}], {c}")
    A(f"v_mfma_f32_32x32x16_bf16 v[{Y0}:{Y0+15}], v[{hreg(j)}:{hreg(j)+3}], v[{f}:{f+3}], v[{Y0}:{Y0+15}]")
sync_wait(0)
prio(3 if OPT["g2p"] & 1 else OPT["gprio"])
g2_rd(0); g2_rd(1)
VQ = list(range(LA))
P2 = 32 - OPT["p2n"]
assert 8 <= P2 <= 14
for j in range(32):
    if j == P2:
        prio(OPT["vprio"])
        A("s_waitcnt vmcnt(0)")
        sync_add(False); sync_wait()
        cnt_wait(vCNT, vTMP, 8, 12, sleep=OPT['sl1'])
        sstamp(6, 3); sstamp(1, 4)
        prio(3 if OPT["g2p"] & 2 else OPT["gprio"])
    if j + LA < 32:
        h_ld(j + LA); VQ.append(j + LA)
    if j < 8:
        for i in range(OPT["cim1"], 16)[2*j:2*j + 2]:
            if i == OPT["cim1"] and i & 3: A(f"s_add_u32 s{sT4}, s{sT3}, {(i & ~3)*1024}")
            c_piece(R_CIM, CIM, i); VQ.append(-1)
    if j + 2 < 32: g2_rd(j + 2)
    issued = min(32, j + 3)
    A(f"s_waitcnt vmcnt({len(VQ) - 1 - VQ.index(j)}) lgkmcnt({2*(issued - j - 1)})")
    if j == 0: sstamp(4, 3)
    if j == 7:
        cnt_add(vCNT, vONE, 8)
        stamp(6, not HST); sstamp(5, 3)
    g2_mfma(j)
prio(OPT["vprio"])
stamp(7); sstamp(7, 3); sstamp(2, 4)
cnt_wait(vCNT, vTMP, 12, 12)
sstamp(3, 4)
def oreg(j): return (16 + 4*j) if j < 8 else (80 + 4*(j - 8))
def o_loads(g4):
    if OPT["orot"]:
        prod_off(g4, 13, sT1)
        A(f"s_add_u32 s{sT1}, s{sT1}, s{sOB}")
    else: A(f"s_add_u32 s{sT1}, s{sOB}, {g4*8192}")
    for j in range(4*g4, 4*g4 + 4):
        A(f"buffer_load_dwordx4 v[{oreg(j)}:{oreg(j)+3}], v{vL16x}, {srd(R_WS)}, s{sT1} offen offset:{(j%4)*1024} sc1")
if OPT["ofirst"]: o_loads(0)
else: A.nop(4)
for i in range(4):
    A(f"ds_write_b128 v119, v[{Y1+4*i}:{Y1+4*i+3}] offset:{i*1024}")
if OPT["ofirst"]:
    for g4 in range(1, 4): o_loads(g4)
sync_add(); sync_wait(0)
for i in range(4):
    A(f"ds_read_b128 v[{Y1+4*i}:{Y1+4*i+3}], v120 offset:{i*1024}")
for i in range(16):
    if i % 4 == 0: A(f"s_waitcnt lgkmcnt({3 - i//4})")
    A(f"v_add_f32 v{Y0+i}, v{Y0+i}, v{Y1+i}")
    A(f"s_mov_b32 s{sT1}, {(16*(i>>3) + 4*((i>>2)&1) + ((i>>1)&1) + 8*(i&1))*4096}")
    A(f"buffer_store_dword v{Y0+i}, v113, {srd(R_OUT)}, s{sT1} offen{OST}")
if not OPT["ofirst"]:
    for g4 in range(OPT["osplit"]): o_loads(g4)
    if OPT["oack"] == 2: cnt_wait(vCNT, vTMP, 6, 24)
    for g4 in range(OPT["osplit"], 4): o_loads(g4)
A(f"s_mov_b32 s{sSPIN}, 0")
NY0 = 16 - OPT["y1f"]
def y0_mfma(j):
    c0 = "0" if j == 0 else f"v[{Y0}:{Y0+15}]"
    A(f"v_mfma_f32_32x32x16_bf16 v[{Y0}:{Y0+15}], v[{oreg(j)}:{oreg(j)+3}], a[{8*j}:{8*j+3}], {c0}")
for g4 in range(4):
    lp = A.newlabel("op"); dn = A.newlabel("opd"); ck = A.newlabel("opc")
    j0 = 4*g4
    A(f"s_waitcnt vmcnt({(16 if OPT['ofirst'] else 0) + 4*(3 - g4)})")
    A.label(ck)
    A(f"v_max_u32 v13, v{oreg(j0)+1}, v{oreg(j0)+3}")
    for j in range(j0 + 1, j0 + 4):
        A(f"v_max3_u32 v13, v13, v{oreg(j)+1}, v{oreg(j)+3}")
    A(f"""
    v_cmp_eq_u32 vcc, -1, v13
    s_cbranch_vccz {dn}
    s_add_u32 s{sSPIN}, s{sSPIN}, 1
    s_cmp_gt_u32 s{sSPIN}, 20000
    s_cbranch_scc1 {dn}
    """)
    if OPT["osl"]: A(f"s_sleep {OPT['osl']}")
    o_loads(g4)
    A(f"""
    s_waitcnt vmcnt(0)
    s_branch {ck}
    {dn}:
    """)
    if g4 in (0, 3): sstamp(4 + g4 // 3, 4)
    for j in range(j0, j0 + 4):
        c0 = "0" if j == 0 else f"v[{Y0}:{Y0+15}]"
        c1 = "0" if j == 0 else f"v[{Y1}:{Y1+15}]"
        A(f"v_mfma_f32_32x32x16_bf16 v[{Y1}:{Y1+15}], v[{oreg(j)}:{oreg(j)+3}], a[{8*j+4}:{8*j+7}], {c1}")
        if j < NY0: y0_mfma(j)
if OPT["sst"] == 4: A(f"s_mov_b32 s{sST+14}, s{sSPIN}")
rest = list(range(NY0, 16))
n1 = min(len(rest), 3); n2 = min(len(rest) - n1, 4)
for j in rest[:n1]: y0_mfma(j)
A.nop(12 - n1 - (1 if NY0 == 16 else 0))
for i in range(4):
    A(f"ds_write_b128 v114, v[{Y1+4*i}:{Y1+4*i+3}] offset:{TB2 + i*1024}")
for j in rest[n1:n1 + n2]: y0_mfma(j)
A("s_waitcnt lgkmcnt(0)")
A("s_barrier")
sstamp(6, 4)
for i in range(4):
    A(f"ds_read_b128 v[{Y1+4*i}:{Y1+4*i+3}], v115 offset:{TB2 + i*1024}")
for j in rest[n1 + n2:]: y0_mfma(j)
if rest: A.nop(12 if rest[n1 + n2:] else 6)
for i in range(16):
    if i % 4 == 0: A(f"s_waitcnt lgkmcnt({3 - i//4})")
    A(f"v_add_f32 v{Y0+i}, v{Y0+i}, v{Y1+i}")
    A(f"s_mov_b32 s{sT1}, {(8*(i>>2) + (i&3))*4096}")
    A(f"buffer_store_dword v{Y0+i}, v118, {srd(R_OUT)}, s{sT1} offen{OSTB}")
A("s_branch L_fin")

A.label("L_hot_end")
A.label("L_slow")
A(f"""
s_cmp_lg_u32 s{sDONE}, 0
s_cbranch_scc1 L_fast
s_mov_b32 s{sDONE}, 1
s_waitcnt lgkmcnt(0)
""")
def a_sync():
    A(f"s_add_u32 s{sATG}, s{sATG}, 4")
    A("s_waitcnt lgkmcnt(0)")
    cnt_add(vCNT, vIDX, 4)
    cnt_wait(vCNT, 16, f"s{sATG}", 4, sleep=2)
for i in range(4): A(f"v_mov_b32 v{vZ+i}, 0")
for ct in range(8): A(f"v_mov_b32 v{vM+ct}, 0xff800000")
A("s_nop 1")
for ct in range(8):
    A(f"v_mfma_f32_32x32x16_bf16 a[{16*ct}:{16*ct+15}], v[{vZ}:{vZ+3}], v[{vZ}:{vZ+3}], 0")
A(f"s_mov_b32 s{sLOOP}, 16")
def adv():
    A(f"s_add_u32 s{sKOFF}, s{sKOFF}, {KVS}"); A(f"s_and_b32 s{sKOFF}, s{sKOFF}, 0xffff")
A.label("L_sl1")
ld_k(0, 0); adv()
A("s_waitcnt vmcnt(0)")
for ct in range(8):
    A(f"v_mfma_f32_32x32x16_bf16 v[{S0}:{S0+15}], v[{KV[0]}:{KV[0]+3}], v[{QF+4*ct}:{QF+4*ct+3}], 0")
    A.nop(12)
    for i in range(8):
        A(f"v_max3_f32 v{vM+ct}, v{S0+2*i}, v{S0+2*i+1}, v{vM+ct}")
A(f"""
s_sub_u32 s{sLOOP}, s{sLOOP}, 1
s_cmp_lg_u32 s{sLOOP}, 0
s_cbranch_scc1 L_sl1
s_lshl_b32 s{sT0}, s{sWAVE}, 11
s_add_u32 s{sT0}, s{sT0}, {CB}
v_lshlrev_b32 v8, 2, v{vLANE}
v_add_u32 v8, s{sT0}, v8
v_lshlrev_b32 v10, 2, v{vL31}
v_add_u32 v10, {CB}, v10
""")
a_sync()
def pair_off(pr):
    A(f"s_add_u32 s{sT0}, s{sWAVE}, {pr + 1}")
    A(f"s_and_b32 s{sT0}, s{sT0}, 3")
    A(f"s_lshl_b32 s{sT0}, s{sT0}, 9")
for pr in range(4):
    pair_off(pr)
    A(f"v_add_u32 v9, s{sT0}, v8")
    A(f"ds_write_b32 v9, v{vM+2*pr}")
    A(f"ds_write_b32 v9, v{vM+2*pr+1} offset:256")
a_sync()
for ct in range(8):
    if ct % 2 == 0:
        pair_off(ct // 2)
        A(f"v_add_u32 v9, s{sT0}, v10")
    for w in range(4):
        A(f"ds_read_b32 v{S0+2*w}, v9 offset:{w*2048 + (ct%2)*256}")
        A(f"ds_read_b32 v{S0+2*w+1}, v9 offset:{w*2048 + (ct%2)*256 + 128}")
    A("s_waitcnt lgkmcnt(0)")
    for w in range(4):
        A(f"v_max3_f32 v{vM+ct}, v{S0+2*w}, v{S0+2*w+1}, v{vM+ct}")
a_sync()
A(f"s_mov_b32 s{sLOOP}, 16")
A.label("L_sl2")
ld_k(0, 0); ld_v(0, 0, 0); ld_v(0, 1, 0); adv()
A("s_waitcnt vmcnt(0)")
for ct in range(8):
    A(f"v_mfma_f32_32x32x16_bf16 v[{S0}:{S0+15}], v[{KV[0]}:{KV[0]+3}], v[{QF+4*ct}:{QF+4*ct+3}], 0")
    A.nop(12)
    for i in range(16):
        A(f"v_sub_f32 v{S0+i}, v{S0+i}, v{vM+ct}")
    for i in range(16):
        A(f"v_exp_f32 v{S0+i}, v{S0+i}")
    A.nop(2)
    A(f"v_smfmac_f32_32x32x32_bf16 a[{16*ct}:{16*ct+15}], v[{KV[0]+4}:{KV[0]+7}], v[{S0}:{S0+7}], v{vIDX}")
    A(f"v_smfmac_f32_32x32x32_bf16 a[{16*ct}:{16*ct+15}], v[{KV[0]+8}:{KV[0]+11}], v[{S0+8}:{S0+15}], v{vIDX}")
A(f"""
s_sub_u32 s{sLOOP}, s{sLOOP}, 1
s_cmp_lg_u32 s{sLOOP}, 0
s_cbranch_scc1 L_sl2
s_nop 15
""")
for ct in range(6): part_write(ct)
A("s_waitcnt lgkmcnt(0)")
cnt_add(vCNT, vIDX, 4)
A(f"""
s_add_u32 s{sATG}, s{sATG}, 4
""")
comb_addr(0); comb_addr(1); comb_addr(2); comb_addr(3)
cnt_wait(vCNT, 16, f"s{sATG}", 4)
comb_reads(0); comb_reads(1)
A("s_branch L_comb2")

if OPT["xm"] or OPT["xv"] or OPT["xl"]:
    i0 = A.lines.index("L_S2:"); i1 = A.lines.index("L_hot_end:")
    seen = False
    for i in range(i0, i1):
        t = A.lines[i].strip()
        if t.startswith("ds_write_b128") : seen = True
        if not seen: continue
        if OPT["xm"] and t.startswith("v_mfma"): A.lines[i] = "    s_nop 7"
        if OPT["xv"] and (t.startswith(("v_pk_", "v_fma_f32", "v_cvt_pk", "v_mul_f32", "v_add_f32"))): A.lines[i] = "    s_nop 1"
        if OPT["xl"] and t.startswith(("ds_read_b128", "ds_write_b128")): A.lines[i] = "    s_nop 0"
if OPT["arch"]:
    import re
    def toarch(t):
        t = t.replace("v_accvgpr_read_b32", "v_mov_b32")
        t = re.sub(r"\ba\[(\d+):(\d+)\]", lambda x: f"v[{128+int(x.group(1))}:{128+int(x.group(2))}]", t)
        return re.sub(r"\ba(\d+)\b", lambda x: f"v{128+int(x.group(1))}", t)
    A.lines = [toarch(l) for l in A.lines]
hdr = open("cdna_kernels/" + NAME + ".s.ref").read().split("; Override launch")[0]
out = hdr + f"""; Fused single-launch kernel, written with the generator script gen/gen17.py (hand-scheduled instruction streams).
; 256 workgroups (one per CU) x 8 waves; workgroup (c, g) = 64 tokens x (4 heads | 64 SSM channels | 64 output columns).
;  waves 0-3 (attention): Q projection -> S^T = K Q^T (32x32x16 MFMA) -> v_exp -> O^T += [V^T;1] P^T with the sparse MFMA,
;     which picks the high (bf16) half of each fp32 exp result; every wave owns a quarter of the keys, partial sums meet in LDS.
;     No max subtraction while |q||k| proves |score*log2e| < 32 (checked at run time); otherwise the slow path redoes the
;     attention with the exact row maxima.
;  waves 4-7 (SSM + projections): K/V projection, x B^T, chunked complex scan (look-back over chunk aggregates),
;     h C^T + x D, and the output projection.
;  Hand-offs between workgroups go through d_ws with write-through stores and L1-bypassing loads; flags / granules carry a
;  tag derived from a launch counter kept in d_ws[0], the O fragments are recognised by a sentinel written in this launch.
; @launch grid=(256,1,1) block=(512,1,1) lds={LDS_BYTES}
.amdgcn_target "amdgcn-amd-amdhsa--gfx950"
.text
.globl {NAME}_kernel
.p2align 8
.type {NAME}_kernel,@function
{NAME}_kernel:
""" + A.text() + f""".section .rodata,"a"
.p2align 6
.amdhsa_kernel {NAME}_kernel
  .amdhsa_next_free_vgpr 256
  .amdhsa_next_free_sgpr 102
  .amdhsa_accum_offset {256 if OPT["arch"] else 128}
  .amdhsa_group_segment_fixed_size 0
  .amdhsa_kernarg_size 136
  .amdhsa_user_sgpr_count 2
  .amdhsa_user_sgpr_kernarg_segment_ptr 1
  .amdhsa_system_sgpr_workgroup_id_x 1
.end_amdhsa_kernel
"""
open(sys.argv[1], "w").write(out)
errs = check(A.lines) + check(A.lines[loop_end-60:loop_end] + A.lines[loop_start:loop_start+60])
for e in errs: print("HAZARD:", e)
print(f"{len(A.lines)} lines, {len(errs)} hazards")
```

```python
import sys, math, struct
from asmlib import *

OPT = dict(dbg=0, force_slow=0, stamps=0, noS=0, cyc=0, ost=2, gprio=0, vprio=3, hst=0, stgwin=8, pfq=0, pfb=2, stgl=2, qpre=2,
           pfc=2, ssl=2, la=8, sst=0, win0=0, trig=6, odel=0, sgate=2, map84=1, g1p=0, g2p=0, noKV=0, nochk=0, wq1=12, cpos=1, hdbg=0, p2n=20, oack=2, cim1=0, npre0=0, mid=0, sl1=2, sl2=2, sl0=0, tlb=0, pad=0, padat=0, p1at=3, e0c=24, q1a=2, p1k=20, kv0=4, g0=0, ofirst=0, xm=0, xv=0, xl=0, npre=15, l0=30, ostb=2, cap=6, cap0=8, enc=0, encS=0, aprio=3, y1f=7, osl=0, q2w=1, osplit=0, ptop=1, jit=0, arch=0, orot=0, p1c=99, fsl=0, lbs=4)
for a in sys.argv[2:]:
    k, v = a.split("=")
    assert k in OPT, k
    OPT[k] = int(v)

NAME = "concat_heads__ssm_conv_s5__grouped_kv_mqa__prompt"
def f2u(x): return struct.unpack("<I", struct.pack("<f", x))[0]

XQ, WQ = 0, 66560
KVX, WKV = 3*16640, 66560 + 3*16384
SLOT = [0, 49920, 99840]
XA_O, BRE_O, BIM_O = 0, 16640, 33280
CIM, CRE = 0, 66560
CB_T = 2304
CB = 133120 - 12*CB_T
def cb_off(slot): return (12 + slot)*CB_T if slot < 3 else (slot - 3)*CB_T
TB = 133120
TBY = CB
CREA, CREB = 99840, 66560
WO = 66560
TB2 = 0
QX = 149760; EB = 157952; HP = 160000; CNT = 162048; QM = 162064; KM = 162068; CNT4 = 24
assert CB + 24*CB_T <= CNT
assert TB + 16384 <= EB
LDS_BYTES = 163840
FL1, FL3 = 0x1000, 0x9000
KVT = 0x80000; KVS = 4096
AGG = 0x30000; AGG_DUMMY = 32*8192; AGG_SIZE = AGG_DUMMY + 256*128
OB, HB = 0x100000, 0x400000
DBG = 0x1000000
WS_SIZE = 0x2000000
assert AGG + AGG_SIZE <= KVT
sWAVE, sC, sG, sTAG, sID = 3, 4, 5, 6, 7
R_XB, R_WQ, R_WKV, R_XA, R_BRE, R_BIM, R_CRE, R_CIM, R_WO, R_OUT, R_WS, R_AGG = 8, 12, 16, 20, 24, 28, 32, 36, 40, 44, 48, 52
P_LRE, P_LIM, P_LDT, P_DSK, P_WV = 56, 58, 60, 62, 64
sEP, sDONE = 66, 67
sT0, sT1, sT2, sT3, sT4, sT5 = 68, 69, 70, 71, 72, 73
sT6, sSPIN = 74, 75
sTW, sCW = 76, 77
sLOOP, sKOFF, sROT, sSW = 78, 79, 80, 81
sOB, sT7 = 82, 83
sATG = 65
sST = 84
def srd(r): return f"s[{r}:{r+3}]"

A = Asm()
OST = ["", " sc1", " nt", " sc0 sc1", " sc1 nt"][OPT["ost"]]
OSTB = OST if OPT["ostb"] < 0 else ["", " sc1", " nt", " sc0 sc1", " sc1 nt"][OPT["ostb"]]
SPIN_MAX = 200000
HST = OPT["hst"]

SSEC = [False]
def sstamp(i, mode):
    if OPT["stamps"] and OPT["sst"] == mode:
        A(f"s_memrealtime s[{sST+2*i}:{sST+2*i+1}]")
def stamp(i, cond=True):
    if (OPT["enc"] or OPT["encS"]) and cond and (i == 0 or (SSEC[0] and i == OPT["encS"]) or (not SSEC[0] and i == OPT["enc"])):
        A(f"s_memrealtime s[{98 if i == 0 else 94}:{99 if i == 0 else 95}]")
        if i == 0: A("s_waitcnt lgkmcnt(0)\ns_sub_u32 s94, s98, 3000")
        return
    if SSEC[0] and OPT["sst"] and i < 8: return
    if OPT["stamps"] and cond:
        A(f"s_memrealtime s[{sST+2*i}:{sST+2*i+1}]")

def padto():
    l = A.newlabel("pad")
    A(f"""
    {l}:
    s_memrealtime s[96:97]
    s_waitcnt lgkmcnt(0)
    s_sub_u32 s96, s96, s98
    s_cmp_lt_u32 s96, {OPT["pad"]*100}
    s_cbranch_scc1 {l}
    """)
def prio(p): A(f"s_setprio {p}")

JIT = [0]
def jitter():
    if not OPT["jit"]: return
    JIT[0] += 1
    l = A.newlabel("jit")
    k = (JIT[0] * 2654435761 + OPT["jit"] * 40503) & 0xffffffff
    A(f"""
    s_lshl_b32 s100, s2, 3
    s_add_u32 s100, s100, s{sWAVE}
    s_mul_i32 s100, s100, {k | 1}
    s_lshr_b32 s100, s100, 29
    s_cmp_lg_u32 s100, 3
    s_cbranch_scc1 {l}
    s_sleep {40 + 17 * (JIT[0] % 5)}
    {l}:
    """)
def cnt_add(vaddr, vone, off=0):
    jitter()
    cnt_add_(vaddr, vone, off)
    jitter()
def cnt_add_(vaddr, vone, off=0):
    A(f"""
    s_mov_b64 exec, 1
    {"ds_inc_u32" if vone == vIDX else "ds_add_u32"} v{vaddr}, v{vone} offset:{off}
    s_mov_b64 exec, -1
    """)
def cnt_wait(vaddr, vtmp, target, off=0, sleep=0):
    lp = A.newlabel("sy"); dn = A.newlabel("syd")
    A(f"""
    s_mov_b32 s{sSPIN}, 0
    {lp}:
    ds_read_b32 v{vtmp}, v{vaddr} offset:{off}
    s_add_u32 s{sSPIN}, s{sSPIN}, 1
    s_waitcnt lgkmcnt(0)
    v_readfirstlane_b32 s{sT0}, v{vtmp}
    s_cmp_ge_u32 s{sT0}, {target}
    s_cbranch_scc1 {dn}
    {("s_sleep " + str(sleep)) if sleep else ""}
    s_cmp_lt_u32 s{sSPIN}, {SPIN_MAX}
    s_cbranch_scc1 {lp}
    {dn}:
    """)
    jitter()
NSYNC = [0]
def grp_sync():
    NSYNC[0] += 1
    A("s_waitcnt lgkmcnt(0)")
    cnt_add(vCNT, vONE)
    cnt_wait(vCNT, vTMP, CBASE + 4*NSYNC[0], sleep=OPT['ssl'])

def sync_add(wait_lds=True):
    NSYNC[0] += 1
    if wait_lds: A("s_waitcnt lgkmcnt(0)")
    cnt_add(vCNT, vONE)
def sync_wait(sleep=None):
    cnt_wait(vCNT, vTMP, CBASE + 4*NSYNC[0], sleep=OPT['ssl'] if sleep is None else max(sleep, OPT['sl0']))

def poll_flags(vaddr, vdst, width, sleep=2):
    lp = A.newlabel("pl"); dn = A.newlabel("pld")
    ld = "buffer_load_dword" if width == 1 else f"buffer_load_dwordx{width}"
    A(f"s_mov_b32 s{sSPIN}, 0")
    A.label(lp)
    A(f"""
    {ld} {vr(vdst, width)}, v{vaddr}, {srd(R_WS)}, 0 offen sc1
    s_add_u32 s{sSPIN}, s{sSPIN}, 1
    s_waitcnt vmcnt(0)
    v_cmp_ne_u32 vcc, s{sTAG}, v{vdst}
    s_cbranch_vccz {dn}
    {("s_sleep " + str(sleep)) if sleep else ""}
    s_cmp_lt_u32 s{sSPIN}, {SPIN_MAX}
    s_cbranch_scc1 {lp}
    {dn}:
    """)

def wave_max(v, tmp):
    A("s_nop 1")
    for sh in (1, 2, 4, 8):
        A(f"v_max_f32_dpp v{v}, v{v}, v{v} row_ror:{sh} row_mask:0xf bank_mask:0xf")
        A("s_nop 1")
    A(f"v_mov_b32 v{tmp}, v{v}")
    A("s_nop 1")
    A(f"v_permlane16_swap_b32 v{tmp}, v{v}")
    A(f"v_max_f32 v{v}, v{v}, v{tmp}")
    A(f"v_mov_b32 v{tmp}, v{v}")
    A("s_nop 1")
    A(f"v_permlane32_swap_b32 v{tmp}, v{v}")
    A(f"v_max_f32 v{v}, v{v}, v{tmp}")

def wq_voffset(dst, t0, t1, t2):
    A(f"""
    v_lshrrev_b32 v{t0}, 3, v{vLANE}
    v_and_b32 v{t1}, 7, v{vLANE}
    v_bfe_u32 v{t2}, v{vLANE}, 4, 1
    v_lshlrev_b32 v{t2}, 2, v{t2}
    v_xor_b32 v{t1}, v{t1}, v{t2}
    v_lshlrev_b32 v{t1}, 4, v{t1}
    v_lshl_add_u32 v{dst}, v{t0}, 10, v{t1}
    """)

vLANE, vL31, vH, vL16x = 1, 2, 3, 4
UR, UI, Y0, Y1 = 16, 32, 48, 64
FRS = 80
DG = 104
vL1, vL8, vL16, vL64, vL512, vCF = 112, 114, 116, 118, 120, 122
vCNT, vONE, vTMP, vP2, vDUM = 0, 124, 125, 126, 127
vXo, vBo, vDa, vSt = 5, 6, 7, 8
vAa, vBa = [9, 10, 11], [12, 13, 14]
vPF = 15
STG = 64
PRM = 100
S0, S1 = 16, 32
QF = 48
KV = [80, 92, 104, 116]
vIDX = 7
vM = 104
vZ = 120
vKt, vVt = [5, 8, 9, 10], [6, 12, 14, 15]

A(f"""
s_cmp_ge_u32 s2, 256
s_cbranch_scc1 L_end
""")
stamp(0)
if OPT["pad"]: A("s_memrealtime s[98:99]")
sizes = {R_XB: 65536, R_WKV: 16384, R_WQ: 523392, R_WS: WS_SIZE, R_XA: 65536, R_BRE: 65536, R_BIM: 65536, R_CRE: 65536, R_CIM: 65536,
         R_WO: 523392, R_OUT: 262144, R_AGG: AGG_SIZE}
def kload(lst):
    for r, off in lst:
        A(f"s_load_dwordx2 s[{r}:{r+1}], s[0:1], {off}")
def srd_words(rs):
    for r in rs:
        A(f"s_mov_b32 s{r+2}, {sizes[r]}")
        A(f"s_mov_b32 s{r+3}, 0x20000")
kload([(R_XB, 72), (R_WKV, 88), (P_WV, 96), (R_WQ, 80), (R_WS, 128)])
if OPT["ptop"]:
    A(f"s_load_dwordx4 s[{P_LRE}:{P_LRE+3}], s[0:1], 8")
    A(f"s_load_dwordx4 s[{P_LDT}:{P_LDT+3}], s[0:1], 56")
A(f"""
v_lshrrev_b32 v5, 6, v0
v_and_b32 v{vLANE}, 63, v0
v_readfirstlane_b32 s{sWAVE}, v5
v_lshlrev_b32 v{vL16x}, 4, v{vLANE}
v_bfe_u32 v{vH}, v0, 5, 1
v_and_b32 v{vL31}, 31, v0
v_mov_b32 v0, {CNT}
""")
srd_words([R_XB])
A(f"""
""")
if OPT["map84"]:
    A(f"""
    s_bfe_u32 s{sC}, s2, 0x20001
    s_lshl_b32 s{sC}, s{sC}, 3
    s_bfe_u32 s{sT0}, s2, 0x30003
    s_add_u32 s{sC}, s{sC}, s{sT0}
    s_and_b32 s{sG}, s2, 1
    s_lshl_b32 s{sG}, s{sG}, 2
    s_lshr_b32 s{sT0}, s2, 6
    s_add_u32 s{sG}, s{sG}, s{sT0}
    s_add_u32 s{sROT}, s{sC}, s{sG}
    s_and_b32 s{sROT}, s{sROT}, 3
    """)
else:
    A(f"""
    s_and_b32 s{sC}, s2, 7
    s_lshl_b32 s{sC}, s{sC}, 2
    s_bfe_u32 s{sROT}, s2, 0x20003
    s_add_u32 s{sC}, s{sC}, s{sROT}
    s_lshr_b32 s{sG}, s2, 5
    """)
A(f"""
s_lshl_b32 s{sT2}, s{sC}, 16
s_sub_u32 s{sSW}, s{sWAVE}, 4
s_cbranch_scc1 L_A0
{"" if OPT["ptop"] else f"s_load_dwordx4 s[{P_LRE}:{P_LRE+3}], s[0:1], 8"}
{"" if OPT["ptop"] else f"s_load_dwordx4 s[{P_LDT}:{P_LDT+3}], s[0:1], 56"}
s_setprio 3
v_mov_b32 v20, 0
v_mov_b32 v21, 0
s_lshl_b32 s{sT0}, s{sG}, 6
s_lshl_b32 s{sT1}, s{sSW}, 4
s_and_b32 s{sT1}, s{sT1}, 32
s_add_u32 s{sT0}, s{sT0}, s{sT1}
v_add_lshl_u32 v{vP2}, s{sT0}, v{vL31}, 1
ds_write2_b64 v0, v[20:21], v[20:21] offset0:0 offset1:1
ds_write2_b64 v0, v[20:21], v[20:21] offset0:2 offset1:3
s_mov_b32 s{R_WKV+2}, {sizes[R_WKV]}
s_mov_b32 s{R_WKV+3}, 0x20000
s_lshl_b32 s{sT1}, s{sSW}, 12
s_lshl_b32 s{sT5}, s{sG}, 13
s_and_b32 s{sT5}, s{sT5}, 0xc000
s_add_u32 s{sT5}, s{sT5}, s{sT1}
s_mul_i32 s{sT0}, s{sSW}, 4160
s_add_u32 m0, s{sT1}, {WKV}
s_bitcmp1_b32 s{sG}, 0
s_waitcnt lgkmcnt(0)
s_cselect_b32 s{R_WKV}, s{P_WV}, s{R_WKV}
s_cselect_b32 s{R_WKV+1}, s{P_WV+1}, s{R_WKV+1}
s_add_u32 s{R_XB}, s{R_XB}, s{sT2}
s_addc_u32 s{R_XB+1}, s{R_XB+1}, 0
""")
for i in range(4):
    A(f"buffer_load_dwordx4 v{vL16x}, {srd(R_WKV)}, s{sT1} offen offset:{i*1024} lds")
for i in range(4):
    A(f"s_add_u32 m0, s{sT0}, {KVX + 16*i}")
    A(f"s_load_dword s{sEP}, s[{R_WS}:{R_WS+1}], 0" if i == 0 else "s_nop 0")
    A(f"buffer_load_dwordx4 v{vL16x}, {srd(R_XB)}, s{sT5} offen offset:{i*1024} lds")
A(f"""
s_barrier
global_load_ushort v{PRM}, v{vP2}, s[{P_LRE}:{P_LRE+1}]
global_load_ushort v{PRM+1}, v{vP2}, s[{P_LIM}:{P_LIM+1}]
global_load_ushort v{PRM+2}, v{vP2}, s[{P_LDT}:{P_LDT+1}]
global_load_ushort v{PRM+3}, v{vP2}, s[{P_DSK}:{P_DSK+1}]
s_cmp_eq_u32 s{sSW}, 1
s_cbranch_scc1 L_qx
s_cmp_eq_u32 s{sSW}, 2
s_cbranch_scc1 L_qw
s_branch L_S1
L_A0:
""")
def common_scalars():
    kload([(R_OUT, 112)])
    srd_words([R_WS, R_OUT])
    A(f"""
    s_and_b32 s{sTW}, s{sWAVE}, 1
    s_bfe_u32 s{sCW}, s{sWAVE}, 0x10001
    s_lshl_b32 s{sID}, s{sC}, 3
    s_add_u32 s{sID}, s{sID}, s{sG}
    s_mov_b32 s{sDONE}, 0
    s_lshl_b32 s{sOB}, s{sC}, 1
    s_add_u32 s{sOB}, s{sOB}, s{sTW}
    s_lshl_b32 s{sOB}, s{sOB}, 15
    s_add_u32 s{sOB}, s{sOB}, {OB}
    """)
def common_after_wait(tag=True):
    A(f"""
    s_lshl_b32 s{sT0}, s{sC}, 18
    s_add_u32 s{R_OUT}, s{R_OUT}, s{sT0}
    s_addc_u32 s{R_OUT+1}, s{R_OUT+1}, 0
    """)
    if tag: A(f"""
    s_mul_i32 s{sTAG}, s{sEP}, 0x9E3779B1
    s_add_u32 s{sTAG}, s{sTAG}, 0x7F4A7C15
    """)
vWQo, vXQo = 119, 117
A(f"""
v_lshrrev_b32 v6, 4, v{vLANE}
v_and_b32 v7, 15, v{vLANE}
v_lshlrev_b32 v7, 4, v7
v_lshl_add_u32 v{vXQo}, v6, 14, v7
s_mul_i32 s{sT6}, s{sWAVE}, 4160
s_lshl_b32 s{sT7}, s{sWAVE}, 12
""")
srd_words([R_WQ])
wq_voffset(vWQo, 6, 7, 10)
A(f"""
s_lshl_b32 s{sT0}, s{sG}, 7
s_waitcnt lgkmcnt(0)
s_add_u32 s{R_XB}, s{R_XB}, s{sT2}
s_addc_u32 s{R_XB+1}, s{R_XB+1}, 0
s_add_u32 s{R_WQ}, s{R_WQ}, s{sT0}
s_addc_u32 s{R_WQ+1}, s{R_WQ+1}, 0
s_load_dword s{sEP}, s[{R_WS}:{R_WS+1}], 0
s_barrier
""")
stamp(1, HST)
def x_dma(s):
    A(f"""
    s_add_u32 s{sT3}, s{sROT}, {s}
    s_and_b32 s{sT3}, s{sT3}, 3
    s_lshl_b32 s{sT4}, s{sT3}, 8
    s_add_u32 s{sT4}, s{sT4}, s{sT7}
    """)
    for i in range(4):
        A(f"""
        s_add_u32 m0, s{sT6}, {XQ + s*16640 + i*16}
        s_nop 0
        buffer_load_dwordx4 v{vXQo}, {srd(R_XB)}, s{sT4} offen offset:{i*1024} lds
        """)
def wq_dma(s):
    A(f"""
    s_lshl_b32 s{sT3}, s{sT3}, 4
    s_add_u32 s{sT3}, s{sT3}, s{sWAVE}
    s_lshl_b32 s{sT3}, s{sT3}, 13
    s_lshl_b32 s{sT2}, s{sWAVE}, 10
    """)
    for i in range(4):
        A(f"""
        s_add_u32 m0, s{sT2}, {WQ + s*16384 + i*4096}
        s_add_u32 s{sT1}, s{sT3}, {i*32768}
        buffer_load_dwordx4 v{vWQo}, {srd(R_WQ)}, s{sT1} offen lds
        """)
for s in range(OPT["qpre"]):
    x_dma(s); wq_dma(s)
stamp(2 if HST else 1)
A("s_branch L_A1")
A.label("L_S1")
SSEC[0] = True
if OPT["pfc"] == 2:
    A(f"""
    s_cmp_lg_u32 s{sWAVE}, 7
    s_cbranch_scc1 L_nopfcode
    s_getpc_b64 s[{sT0}:{sT1}]
    L_pc:
    s_sub_u32 s{sT0}, s{sT0}, L_pc-{NAME}_kernel
    s_subb_u32 s{sT1}, s{sT1}, 0
    s_lshl_b32 s{sLOOP}, s{sROT}, 13
    v_lshlrev_b32 v16, 7, v{vLANE}
    v_add_u32 v16, s{sLOOP}, v16
    v_min_u32 v16, L_hot_end-{NAME}_kernel-4, v16
    global_load_dword v{vDUM}, v16, s[{sT0}:{sT1}]
    L_nopfcode:
    """)
A(f"""
v_mov_b32 v{vONE}, 1
s_lshl_b32 s{sID}, s{sC}, 3
s_add_u32 s{sID}, s{sID}, s{sG}
s_mov_b32 s{R_WS+2}, {WS_SIZE}
s_mov_b32 s{R_WS+3}, 0x20000
v_lshrrev_b32 v20, 4, v{vLANE}
v_and_b32 v21, 15, v{vLANE}
v_mul_u32_u24 v9, 1040, v21
v_lshl_add_u32 v9, v20, 4, v9
v_add_u32 v9, {KVX}, v9
v_lshrrev_b32 v10, 2, v21
v_lshl_add_u32 v10, v20, 3, v10
v_lshlrev_b32 v10, 5, v10
v_and_b32 v11, 3, v21
v_lshl_add_u32 v10, v11, 3, v10
v_add_u32 v10, {WKV}, v10
s_lshl_b32 s{sT6}, s{sC}, 1
s_lshr_b32 s{sT1}, s{sG}, 2
s_add_u32 s{sT6}, s{sT6}, s{sT1}
s_lshl_b32 s{sT6}, s{sT6}, 12
s_add_u32 s{sT6}, s{sT6}, {KVT}
s_bfe_u32 s{sT7}, s{sG}, 0x10001
s_waitcnt lgkmcnt(0)
s_mul_i32 s{sTAG}, s{sEP}, 0x9E3779B1
s_add_u32 s{sTAG}, s{sTAG}, 0x7F4A7C15
s_waitcnt vmcnt(4)
""")
stamp(6, HST)
cnt_add(vCNT, vONE)
A(f"""
s_cmp_lg_u32 s{sSW}, 0
s_cbranch_scc1 L_S2a
""")
cnt_wait(vCNT, vTMP, 4)
stamp(1)
def kv_rd(k):
    f = 32 + 8*(k % 6)
    A(f"ds_read_b64_tr_b16 v[{f}:{f+1}], v10 offset:{k*1024}")
    A(f"ds_read_b64_tr_b16 v[{f+2}:{f+3}], v10 offset:{k*1024+128}")
    A(f"ds_read_b128 v[{f+4}:{f+7}], v9 offset:{k*64}")
for k in range(4): kv_rd(k)
A(f"s_bitcmp1_b32 s{sG}, 0")
A("s_cbranch_scc1 L_kv_v")
def kv_chain(isv_):
    for k in range(16):
        f = 32 + 8*(k % 6)
        if k + 4 < 16: kv_rd(k + 4)
        issued = min(16, k + 5)
        A(f"s_waitcnt lgkmcnt({3*(issued - k - 1)})")
        c = "0" if k == 0 else "v[28:31]"
        a, b = (f"v[{f}:{f+3}]", f"v[{f+4}:{f+7}]") if not isv_ else (f"v[{f+4}:{f+7}]", f"v[{f}:{f+3}]")
        A(f"v_mfma_f32_16x16x32_bf16 v[28:31], {a}, {b}, {c}")
kv_chain(False)
if not OPT["q2w"]: cnt_add(vCNT, vONE)
else: A.nop(3)
A(f"s_mov_b32 s{sT0}, {f2u(0.25 * math.log2(math.e))}")
A(f"""
s_lshl_b32 s{sT7}, s{sT7}, 8
s_add_u32 s{sT6}, s{sT6}, s{sT7}
v_and_b32 v22, 1, v20
v_lshlrev_b32 v22, 9, v22
v_lshl_add_u32 v22, v21, 4, v22
v_lshrrev_b32 v23, 1, v20
v_lshl_add_u32 v22, v23, 3, v22
v_mul_f32 v28, s{sT0}, v28
v_mul_f32 v29, s{sT0}, v29
v_mul_f32 v30, s{sT0}, v30
v_mul_f32 v31, s{sT0}, v31
v_cvt_pk_bf16_f32 v24, v28, v29
v_cvt_pk_bf16_f32 v25, v30, v31
buffer_store_dwordx2 v[24:25], v22, {srd(R_WS)}, s{sT6} offen sc1
""")
if OPT["q2w"]: cnt_add(vCNT, vONE)
A(f"""
v_mul_f32 v16, v28, v28
v_fmac_f32 v16, v29, v29
v_fmac_f32 v16, v30, v30
v_fmac_f32 v16, v31, v31
v_mov_b32 v17, v16
s_nop 1
v_permlane16_swap_b32 v17, v16
v_add_f32 v16, v16, v17
v_mov_b32 v17, v16
s_nop 1
v_permlane32_swap_b32 v17, v16
v_add_f32 v17, v16, v17
""")
wave_max(17, 18)
A("s_branch L_kv_pub")
A.label("L_kv_v")
kv_chain(True)
if not OPT["q2w"]: cnt_add(vCNT, vONE)
A(f"""
s_mul_i32 s{sT7}, s{sT7}, 544
s_add_u32 s{sT6}, s{sT6}, s{sT7}
s_add_u32 s{sT6}, s{sT6}, 1024
v_lshrrev_b32 v22, 1, v20
v_mul_u32_u24 v22, 272, v22
v_and_b32 v23, 1, v20
v_lshl_add_u32 v22, v23, 3, v22
v_lshl_add_u32 v23, v21, 4, v22
v_cvt_pk_bf16_f32 v24, v28, v29
v_cvt_pk_bf16_f32 v25, v30, v31
buffer_store_dwordx2 v[24:25], v23, {srd(R_WS)}, s{sT6} offen sc1
v_mov_b32 v26, 0x3f803f80
v_mov_b32 v27, 0x3f803f80
s_mov_b32 exec_lo, 0x00010001
s_mov_b32 exec_hi, 0x00010001
buffer_store_dwordx2 v[26:27], v22, {srd(R_WS)}, s{sT6} offen offset:256 sc1
s_mov_b64 exec, -1
v_mov_b32 v17, 0
""")
if OPT["q2w"]: cnt_add(vCNT, vONE)
A.label("L_kv_pub")
A(f"""
s_lshl_b32 s{sT0}, s{sID}, 7
s_add_u32 s{sT0}, s{sT0}, {FL1}
v_mov_b32 v16, s{sTAG}
v_mov_b32 v9, 0
s_waitcnt vmcnt(0)
s_mov_b64 exec, 1
buffer_store_dwordx2 v[16:17], v9, {srd(R_WS)}, s{sT0} offen sc1
ds_add_u32 v{vCNT}, v{vONE}
s_mov_b64 exec, -1
""")
stamp(2)
A("s_branch L_S2")
def q_head():
    A(f"""
    v_mov_b32 v{vONE}, 1
    s_lshl_b32 s{sID}, s{sC}, 3
    s_add_u32 s{sID}, s{sID}, s{sG}
    s_waitcnt lgkmcnt(0)
    s_mul_i32 s{sTAG}, s{sEP}, 0x9E3779B1
    s_add_u32 s{sTAG}, s{sTAG}, 0x7F4A7C15
    s_waitcnt vmcnt(4)
    """)
    cnt_add(vCNT, vONE)
    prio(0)
def q_sig():
    A("s_waitcnt vmcnt(16)"); cnt_add(vCNT, vONE, 24)
    A("s_waitcnt vmcnt(0)"); cnt_add(vCNT, vONE, 28)
    prio(3)
    A("s_branch L_S2")
A.label("L_qx")
A(f"""
v_lshrrev_b32 v20, 4, v{vLANE}
v_and_b32 v21, 15, v{vLANE}
v_lshlrev_b32 v22, 4, v21
v_lshl_add_u32 v22, v20, 14, v22
""")
q_head()
for s_ in (2, 3):
    if s_ == 3 - OPT['q2w']: cnt_wait(vCNT, vTMP, 5)
    A(f"""
    s_add_u32 s{sT3}, s{sROT}, {s_}
    s_and_b32 s{sT3}, s{sT3}, 3
    s_lshl_b32 s{sT3}, s{sT3}, 8
    """)
    for i in range(16):
        A(f"s_mov_b32 m0, {XQ + s_*16640 + i*1040 - (i & 3)*1024}")
        A(f"s_add_u32 s{sT3}, s{sT3}, 4096" if (i & 3 == 0 and i) else "s_nop 0")
        A(f"buffer_load_dwordx4 v22, {srd(R_XB)}, s{sT3} offen offset:{(i & 3)*1024} lds")
q_sig()
A.label("L_qw")
srd_words([R_WQ])
wq_voffset(22, 23, 24, 25)
A(f"""
s_lshl_b32 s{sT0}, s{sG}, 7
s_add_u32 s{R_WQ}, s{R_WQ}, s{sT0}
s_addc_u32 s{R_WQ+1}, s{R_WQ+1}, 0
""")
q_head()
for s_ in (2, 3):
    if s_ == 3 - OPT['q2w']: cnt_wait(vCNT, vTMP, 5)
    A(f"""
    s_add_u32 s{sT3}, s{sROT}, {s_}
    s_and_b32 s{sT3}, s{sT3}, 3
    s_lshl_b32 s{sT3}, s{sT3}, 17
    """)
    for i in range(16):
        A(f"s_mov_b32 m0, {WQ + s_*16384 + i*1024}")
        A(f"s_add_u32 s{sT3}, s{sT3}, 8192" if i else "s_nop 0")
        A(f"buffer_load_dwordx4 v22, {srd(R_WQ)}, s{sT3} offen lds")
q_sig()
SSEC[0] = False
A.label("L_A1")
for i in range(4): A(f"v_mov_b32 v{vZ+i}, 0")
vXa, vWa, vFl, vQw, vQr, vAone = 8, 9, 10, 14, 15, vIDX
common_scalars()
for ct in range(8):
    A(f"v_mfma_f32_32x32x16_bf16 a[{16*ct}:{16*ct+15}], v[{vZ}:{vZ+3}], v[{vZ}:{vZ+3}], 0")
A(f"""
v_and_b32 v6, 15, v{vL31}
v_mul_u32_u24 v{vXa}, 1040, v6
v_lshl_add_u32 v{vXa}, v{vH}, 4, v{vXa}
v_lshrrev_b32 v6, 4, v{vL31}
v_lshl_add_u32 v{vXa}, v6, 8, v{vXa}
s_lshl_b32 s{sT0}, s{sTW}, 9
v_add_u32 v{vXa}, s{sT0}, v{vXa}
v_bfe_u32 v6, v{vLANE}, 2, 2
v_lshl_add_u32 v6, v{vH}, 3, v6
v_bfe_u32 v7, v{vLANE}, 4, 1
v_and_b32 v11, 3, v{vLANE}
v_lshlrev_b32 v11, 3, v11
v_lshl_add_u32 v11, v7, 5, v11
s_lshl_b32 s{sT0}, s{sCW}, 6
v_add_u32 v11, s{sT0}, v11
v_bfe_u32 v7, v{vLANE}, 3, 1
v_lshlrev_b32 v7, 6, v7
v_xor_b32 v11, v11, v7
v_lshl_add_u32 v{vWa}, v6, 7, v11
v_add_u32 v{vWa}, {WQ}, v{vWa}
s_lshl_b32 s{sT0}, s{sWAVE}, 13
s_add_u32 s{sT0}, s{sT0}, {FL1}
v_lshlrev_b32 v{vFl}, 7, v{vLANE}
v_add_u32 v{vFl}, s{sT0}, v{vFl}
s_lshl_b32 s{sT0}, s{sWAVE}, 16
s_add_u32 s{sT1}, s{sT0}, {KVT}
v_add_u32 v{vKt[0]}, s{sT1}, v{vL16x}
s_add_u32 s{sT1}, s{sT1}, 1024
v_lshlrev_b32 v13, 4, v{vL31}
v_mul_u32_u24 v14, 272, v{vH}
v_add3_u32 v13, v13, v14, s{sT1}
v_cmp_lt_u32 vcc, 16, v{vL31}
v_mov_b32 v14, 0x7ff00000
v_mov_b32 v{vIDX}, 0xdddddddd
v_cndmask_b32 v{vVt[0]}, v13, v14, vcc
s_lshl_b32 s{sKOFF}, s{sROT}, 14
s_lshl_b32 s{sT0}, s{sCW}, 2
s_add_u32 s{sT0}, s{sT0}, s{sTW}
s_lshl_b32 s{sT0}, s{sT0}, 10
s_add_u32 s{sT0}, s{sT0}, {QX}
v_add_u32 v{vQw}, s{sT0}, v{vL16x}
v_add_u32 v{vQr}, {QX}, v{vL16x}
s_waitcnt lgkmcnt(0)
""")
common_after_wait()
QP = OPT["qpre"]
sKVOK = sATG
vFG = 12
def ld_k(b, t, so=sKOFF):
    A(f"buffer_load_dwordx4 v[{KV[b]}:{KV[b]+3}], v{vKt[t]}, {srd(R_WS)}, s{so} offen sc1")
def ld_v(b, j, t, so=sKOFF):
    A(f"buffer_load_dwordx4 v[{KV[b]+4+4*j}:{KV[b]+7+4*j}], v{vVt[t]}, {srd(R_WS)}, s{so} offen offset:{544*j} sc1")
def kv_first():
    for b in range(OPT["kv0"]):
        A(f"s_add_u32 s{sT1}, s{sKOFF}, {b*KVS}")
        ld_k(b, 0, sT1); ld_v(b, 0, 0, sT1); ld_v(b, 1, 0, sT1)
    A(f"ds_max_f32 v{vCNT}, v{vFG+1} offset:{KM - CNT}")
    if OPT["kv0"] == 4 or OPT["g0"]: cnt_add(vCNT, vAone, 12)
def kv_try(tag):
    A(f"""
    v_cmp_ne_u32 vcc, s{sTAG}, v{vFG}
    s_cbranch_vccnz L_kvlate{tag}
    s_mov_b32 s{sKVOK}, 1
    """)
    kv_first()
    A(f"s_branch L_kvq{tag}")
    A.label(f"L_kvlate{tag}")
    flag_ld()
    A.label(f"L_kvq{tag}")
def flag_ld(): A(f"buffer_load_dwordx2 v[{vFG}:{vFG+1}], v{vFl}, {srd(R_WS)}, 0 offen sc1")
def q_rd(k):
    s_, kk = divmod(k, 8)
    f = 32 + 8*(k % 6)
    A(f"ds_read_b64_tr_b16 v[{f}:{f+1}], v{vWa} offset:{s_*16384 + kk*2048}")
    A(f"ds_read_b64_tr_b16 v[{f+2}:{f+3}], v{vWa} offset:{s_*16384 + kk*2048 + 512}")
    A(f"ds_read_b128 v[{f+4}:{f+7}], v{vXa} offset:{XQ + s_*16640 + kk*32}")
A(f"s_mov_b32 s{sKVOK}, 0")
A("s_waitcnt vmcnt(8)")
stamp(3, HST)
cnt_add(vCNT, vAone, 4)
cnt_wait(vCNT, 11, 4, 4)
for k in range(4): q_rd(k)
done = 0
for k in range(32):
    if k == OPT["q1a"]:
        A("s_waitcnt vmcnt(0)")
        cnt_add(vCNT, vAone, 4)
    if k == OPT["p1k"]: flag_ld()
    if k == OPT["p1c"]:
        A("s_waitcnt vmcnt(0)")
        kv_try("a")
    if k + 4 < 32:
        if (k + 4) % 8 == 0:
            s_ = (k + 4) // 8
            if s_ == 1: cnt_wait(vCNT, 11, 8, 4)
            else: cnt_wait(vCNT, 11, 2, 24 + 4*(s_ - 2))
            stamp(3 + s_, HST)
            done = k + 4
        q_rd(k + 4)
    if k >= done:
        A(f"s_waitcnt lgkmcnt({3*(min(32, k + 5) - k - 1)})")
    c = "0" if k == 0 else f"v[{S0}:{S0+15}]"
    f = 32 + 8*(k % 6)
    A(f"v_mfma_f32_32x32x16_bf16 v[{S0}:{S0+15}], v[{f}:{f+3}], v[{f+4}:{f+7}], {c}")
A(f"""
s_mul_i32 s{sT6}, s{sWAVE}, {3*CB_T}
s_add_u32 s{sT6}, s{sT6}, {CB}
v_add_u32 v11, s{sT6}, v{vL16x}
s_mov_b32 s{sLOOP}, 4
""")
A.nop(8)
for i in range(8):
    A(f"v_cvt_pk_bf16_f32 v{32+i}, v{S0+2*i}, v{S0+2*i+1}")
    if i == 3: A(f"ds_write_b128 v{vQw}, v[32:35]")
A(f"""
ds_write_b128 v{vQw}, v[36:39] offset:2048
s_waitcnt lgkmcnt(0)
""")
cnt_add(vCNT, vAone, 4)
for hd in range(2):
    A(f"v_mul_f32 v{32+hd}, v{S0+8*hd}, v{S0+8*hd}")
    for i in range(1, 8):
        A(f"v_fmac_f32 v{32+hd}, v{S0+8*hd+i}, v{S0+8*hd+i}")
A(f"""
v_mov_b32 v34, v32
v_mov_b32 v35, v33
v_add_u32 v{vKt[1]}, {KVS}, v{vKt[0]}
v_add_u32 v{vKt[2]}, {2*KVS}, v{vKt[0]}
v_permlane32_swap_b32 v34, v32
v_permlane32_swap_b32 v35, v33
v_add_f32 v32, v32, v34
v_add_f32 v33, v33, v35
v_max_f32 v32, v32, v33
v_add_u32 v{vVt[2]}, {2*KVS}, v{vVt[0]}
ds_max_f32 v{vCNT}, v32 offset:{QM - CNT}
""")
for pr in range(4):
    A(f"s_add_u32 s{sT0}, s{sWAVE}, {pr + 1}")
    A(f"s_and_b32 s{sT0}, s{sT0}, 3")
    A(f"s_lshl_b32 s{sT0}, s{sT0}, 11")
    A(f"v_add_u32 v{36+pr}, s{sT0}, v{vQr}")
A(f"v_add_u32 v{vVt[3]}, {3*KVS}, v{vVt[0]}")
if OPT["p1c"] < 32:
    A(f"s_cmp_lg_u32 s{sKVOK}, 0")
    A("s_cbranch_scc1 L_kvqb")
A("s_waitcnt vmcnt(0)")
kv_try("b")
cnt_wait(vCNT, 35, 12, 4)
stamp(7 if HST else 2)
for pr in range(4):
    A(f"ds_read_b128 v[{QF+8*pr}:{QF+8*pr+3}], v{36+pr}")
    A(f"ds_read_b128 v[{QF+8*pr+4}:{QF+8*pr+7}], v{36+pr} offset:1024")
A(f"""
s_cmp_lg_u32 s{sKVOK}, 0
s_cbranch_scc1 L_kvgo
s_waitcnt vmcnt(0)
v_cmp_ne_u32 vcc, s{sTAG}, v{vFG}
s_cbranch_vccz L_kvok
""")
poll_flags(vFl, vFG, 2, sleep=OPT['fsl'])
A.label("L_kvok")
kv_first()
A.label("L_kvgo")
if OPT["pad"] and OPT["padat"] == 1: padto()
stamp(3, not HST)
A(f"""
s_waitcnt vmcnt({3*OPT['kv0'] - 1}) lgkmcnt(7)
v_mfma_f32_32x32x16_bf16 v[{S0}:{S0+15}], v[{KV[0]}:{KV[0]+3}], v[{QF}:{QF+3}], 0
v_add_u32 v{vKt[3]}, {3*KVS}, v{vKt[0]}
s_waitcnt vmcnt({3*OPT['kv0'] - 3}) lgkmcnt(0)
v_add_u32 v{vVt[1]}, {KVS}, v{vVt[0]}
v_lshlrev_b32 v13, 2, v{vLANE}
v_add_u32 v13, s{sT6}, v13
""")
A.nop(7)
SB = [S0, S1]
LASTSYNC = 8
CBASE = 6
def part_write(ct):
    A(f"ds_write_b128 v11, a[{16*ct}:{16*ct+3}] offset:{cb_off(ct)}")
    A(f"ds_write_b128 v11, a[{16*ct+4}:{16*ct+7}] offset:{cb_off(ct) + 1024}")
    A(f"ds_write_b32 v13, a{16*ct+8} offset:{cb_off(ct) + 2048}")
PD = [[32, 16, 24, 80], [40, 88, 96, 104]]
PL = [[120, 112, 113, 114], [122, 115, 116, 117]]
def comb_addr(k):
    if k < 3:
        A(f"""
        s_add_u32 s{sT0}, s{sWAVE}, {k + 1}
        s_and_b32 s{sT0}, s{sT0}, 3
        s_mul_i32 s{sT0}, s{sT0}, {3*CB_T}
        s_add_u32 s{sT0}, s{sT0}, {CB}
        v_add_u32 v{8+k}, s{sT0}, v{vL16x}
        v_lshl_add_u32 v{[12, 14, 15][k]}, v{vL31}, 2, s{sT0}
        """)
    else:
        A(f"""
        s_lshl_b32 s{sT1}, s{sG}, 2
        s_add_u32 s{sT1}, s{sT1}, s{sWAVE}
        s_lshl_b32 s{sT1}, s{sT1}, 10
        s_lshl_b32 s{sT2}, s{sC}, 16
        s_add_u32 s{sT1}, s{sT1}, s{sT2}
        s_add_u32 s{sT1}, s{sT1}, {OB}
        s_add_u32 s{sT2}, s{sT1}, 32768
        s_waitcnt vmcnt(0)
        """)
def comb_reads(u):
    if u == 0: A(f"ds_read_b64 v[118:119], v0 offset:{QM - CNT}")
    for k in range(3):
        A(f"ds_read_b32 v{PL[u][k+1]}, v{[12, 14, 15][k]} offset:{cb_off(2*(2-k) + u) + 2048}")
    for k in range(3):
        A(f"ds_read_b128 v[{PD[u][k+1]}:{PD[u][k+1]+3}], v{8+k} offset:{cb_off(2*(2-k) + u)}")
        A(f"ds_read_b128 v[{PD[u][k+1]+4}:{PD[u][k+1]+7}], v{8+k} offset:{cb_off(2*(2-k) + u) + 1024}")
    if u == 0: A("s_waitcnt lgkmcnt(6)")
def period(kb, ct, mode):
    cur = SB[ct & 1]; oth = SB[(ct + 1) & 1]
    pct = (ct - 1) % 8
    pkb = kb if ct > 0 else (kb - 1) % 4
    nct = (ct + 1) % 8
    nkb = kb if ct < 7 else (kb + 1) % 4
    ld = ct == 0 and mode == "loop" and not OPT["noKV"]
    early = mode == "last" and 1 <= ct <= 6
    extra = {}
    if mode == "first" and OPT["kv0"] < 4:
        lds_ = []
        for b in range(OPT["kv0"], 4):
            lds_ += [lambda b=b: ld_k(b, b), lambda b=b: ld_v(b, 0, b), lambda b=b: ld_v(b, 1, b)]
        for n, f_ in enumerate(lds_): extra[[1, 2, 3, 6, 7, 11, 12, 13, 14][n]] = f_
    def e(i):
        A(f"v_exp_f32 v{cur+i}, v{cur+i}")
        if i in extra: extra[i]()
        if i == 15 and extra and not OPT["g0"]: cnt_add(vCNT, vAone, 12)
    e(0); e(1)
    if mode != "first":
        A(f"v_smfmac_f32_32x32x32_bf16 a[{16*pct}:{16*pct+15}], v[{KV[pkb]+8}:{KV[pkb]+11}], v[{oth+8}:{oth+15}], v{vIDX}")
    e(2)
    if mode == "last" and ct in (0, 3): A(f"ds_read_b32 v12, v{vCNT} offset:{28 if ct == 0 else 8}")
    if (mode, ct) == ("last", 7):
        A("s_waitcnt lgkmcnt(0)")
        cnt_add(vCNT, vIDX, 4)
    e(3)
    if ct == 7 and mode == "loop": A(f"s_waitcnt vmcnt(6)")
    e(4)
    if (mode, ct) != ("last", 7):
        A(f"v_mfma_f32_32x32x16_bf16 v[{oth}:{oth+15}], v[{KV[nkb]}:{KV[nkb]+3}], v[{QF+4*nct}:{QF+4*nct+3}], 0")
    for i in range(5, 10): e(i)
    A(f"v_smfmac_f32_32x32x32_bf16 a[{16*ct}:{16*ct+15}], v[{KV[kb]+4}:{KV[kb]+7}], v[{cur}:{cur+7}], v{vIDX}")
    if mode == "last" and ct in (4, 5): comb_addr(2*(ct - 4)); comb_addr(2*(ct - 4) + 1)
    if (mode, ct) == ("last", 7):
        cnt_wait(vCNT, 16, 16, 4)
        comb_reads(0)
    e(10); e(11)
    if (mode, ct) == ("last", 7): comb_reads(1)
    e(12)
    if ld: ld_k(pkb, pkb)
    if early: A(f"ds_write_b128 v11, a[{16*(ct-1)}:{16*(ct-1)+3}] offset:{cb_off(ct-1)}")
    e(13)
    if ld: ld_v(pkb, 0, pkb)
    if (kb, ct, mode) == (0, 1, "loop"): A(f"s_add_u32 s{sKOFF}, s{sKOFF}, {4*KVS}")
    if (kb, ct, mode) == (2, 7, "loop"): A(f"s_sub_u32 s{sLOOP}, s{sLOOP}, 1")
    if early: A(f"ds_write_b128 v11, a[{16*(ct-1)+4}:{16*(ct-1)+7}] offset:{cb_off(ct-1) + 1024}")
    e(14)
    if ld: ld_v(pkb, 1, pkb)
    if (kb, ct, mode) == (0, 1, "loop"): A(f"s_and_b32 s{sKOFF}, s{sKOFF}, 0xffff")
    if (kb, ct, mode) == (2, 7, "loop"): A(f"s_cmp_eq_u32 s{sLOOP}, 0")
    if early: A(f"ds_write_b32 v13, a{16*(ct-1)+8} offset:{cb_off(ct-1) + 2048}")
    e(15)
    if mode == "last" and ct == 8 - OPT["trig"] - 1: cnt_add(vCNT, vIDX, 12)
    if mode == "last" and ct in (0, 3):
        tgt = 6 if ct == 0 else 4
        A(f"""
        s_waitcnt lgkmcnt(0)
        v_readfirstlane_b32 s{sT0}, v12
        s_cmp_ge_u32 s{sT0}, {tgt if not (OPT["noS"] or OPT["nochk"]) else 0}
        s_cbranch_scc1 L_sfree{ct}
        """)
        cnt_wait(vCNT, 12, tgt, 28 if ct == 0 else 8, sleep=2)
        A.label(f"L_sfree{ct}")
if OPT["cyc"]: A(f"s_memtime s[{sST+10}:{sST+11}]")
period(0, 0, "first")
A("s_branch L_attn1")
A(".p2align 6")
A.label("L_attn")
loop_start = len(A.lines)
for kb in (3, 0, 1, 2):
    for ct in range(8):
        if (kb, ct) == (0, 1): A.label("L_attn1")
        period(kb, ct, "loop")
loop_end = len(A.lines)
A("s_cbranch_scc0 L_attn")
for ct in range(8):
    period(3, ct, "last")
A(f"""
s_mov_b32 s{sATG}, 16
s_nop 0
v_smfmac_f32_32x32x32_bf16 a[112:127], v[{KV[3]+8}:{KV[3]+11}], v[{S1+8}:{S1+15}], v{vIDX}
""")
stamp(4, not HST)
if OPT["cyc"]: A(f"s_memtime s[{sST+12}:{sST+13}]")
if OPT["pad"] and OPT["padat"] == 2: padto()
A.label("L_comb2")
if OPT["aprio"]: prio(OPT["aprio"])
def astamp(i):
    if OPT["cyc"] or HST or not (OPT["stamps"] or OPT["enc"]): return
    stamp(i)
astamp(5)
A("s_waitcnt lgkmcnt(9)")
A(f"""
v_accvgpr_read_b32 v120, a{16*6+8}
v_accvgpr_read_b32 v121, a{16*6+8}
v_mul_f32 v118, v118, v119
v_add_f32 v112, v112, v113
v_permlane32_swap_b32 v120, v121
v_cmp_nge_f32 vcc, {f2u(-1.0 if OPT['force_slow'] else 1000.0)}, v118
v_add_f32 v120, v120, v114
v_add_f32 v120, v120, v112
v_rcp_f32 v120, v120
s_cbranch_vccnz L_slow
L_fast:
""")
def comb(u, soff):
    d = PD[u]
    if OPT["arch"]: d = [128 + 16*(6+u)] + d[1:]
    else:
        for i in range(8): A(f"v_accvgpr_read_b32 v{d[0]+i}, a{16*(6+u)+i}")
    if u == 1:
        A(f"""
        v_accvgpr_read_b32 v122, a{16*7+8}
        v_accvgpr_read_b32 v123, a{16*7+8}
        s_waitcnt lgkmcnt(2)
        v_add_f32 v115, v115, v116
        v_permlane32_swap_b32 v122, v123
        v_add_f32 v115, v115, v117
        v_add_f32 v122, v122, v115
        v_rcp_f32 v122, v122
        """)
    for i in range(0, 8, 2): A(f"v_pk_add_f32 {p2(d[1]+i)}, {p2(d[1]+i)}, {p2(d[2]+i)}")
    if u == 1:
        A("s_waitcnt lgkmcnt(0)")
        if OPT["oack"] == 2: cnt_add(vCNT, vIDX, 12)
    for i in range(0, 8, 2): A(f"v_pk_add_f32 {p2(d[0]+i)}, {p2(d[0]+i)}, {p2(d[3]+i)}")
    for i in range(0, 8, 2): A(f"v_pk_add_f32 {p2(d[0]+i)}, {p2(d[0]+i)}, {p2(d[1]+i)}")
    for i in range(0, 8, 2):
        A(f"v_pk_mul_f32 {p2(d[0]+i)}, {p2(d[0]+i)}, {p2(PL[u][0])} op_sel_hi:[1,0]")
    for i in range(0, 8, 2):
        A(f"v_cvt_pk_bf16_f32 v{d[1]+i//2}, v{d[0]+i}, v{d[0]+i+1}")
    A(f"buffer_store_dwordx4 v[{d[1]}:{d[1]+3}], v{vL16x}, {srd(R_WS)}, s{soff} offen sc1")
def p2(r): return f"v[{r}:{r+1}]"
comb(0, sT1); comb(1, sT2)
astamp(6)
if OPT["oack"]: A("s_waitcnt vmcnt(0)")
cnt_add(vCNT, vIDX, 24 if OPT["oack"] == 2 else 12)
A(f"""
s_or_b32 s{sT0}, s2, s{sWAVE}
s_cmp_lg_u32 s{sT0}, 0
s_cbranch_scc1 L_noep
s_add_u32 s{sT0}, s{sEP}, 1
v_mov_b32 v10, s{sT0}
v_mov_b32 v11, 0
s_mov_b64 exec, 1
buffer_store_dword v10, v11, {srd(R_WS)}, 0 offen
s_mov_b64 exec, -1
L_noep:
""")
A.label("L_fin")
if OPT["enc"] or OPT["encS"]:
    A("""
    s_waitcnt vmcnt(0) lgkmcnt(0)
    s_add_u32 s94, s94, 3000
    L_enc:
    s_memrealtime s[96:97]
    s_waitcnt lgkmcnt(0)
    s_sub_u32 s96, s96, s94
    s_cmp_lt_i32 s96, 0
    s_cbranch_scc1 L_enc
    """)
if OPT["pad"] and OPT["padat"] == 0:
    A("s_waitcnt vmcnt(0)"); padto()
if OPT["stamps"]:
    A(f"""
    s_waitcnt vmcnt(0)
    s_memrealtime s[100:101]
    s_waitcnt lgkmcnt(0)
    s_lshl_b32 s{sT0}, s2, 3
    s_add_u32 s{sT0}, s{sT0}, s{sWAVE}
    s_lshl_b32 s{sT0}, s{sT0}, 6
    s_add_u32 s{sT0}, s{sT0}, {DBG + 0x800000}
    v_mov_b32 v11, 0
    """)
    for i in range(9): A(f"v_mov_b32 v{16+i}, s{sST+2*i}")
    A(f"""
    s_mov_b64 exec, 1
    buffer_store_dwordx4 v[16:19], v11, {srd(R_WS)}, s{sT0} offen
    buffer_store_dwordx4 v[20:23], v11, {srd(R_WS)}, s{sT0} offen offset:16
    buffer_store_dword v24, v11, {srd(R_WS)}, s{sT0} offen offset:32
    """)
if OPT["hdbg"]:
    A(f"""
    s_load_dwordx2 s[{sT2}:{sT3}], s[0:1], 120
    s_not_b32 s{sT0}, s{sST}
    v_mov_b32 v30, s{sT0}
    v_mov_b32 v31, 0
    s_waitcnt lgkmcnt(0)
    global_atomic_umax v31, v30, s[{sT2}:{sT3}]
    s_cmp_ge_u32 s{sWAVE}, 4
    s_cbranch_scc1 L_hdS
    """)
    for k, i in enumerate((0, 2, 3, 4, 5, 6, 8)):
        A(f"global_atomic_umax v31, v{16+i}, s[{sT2}:{sT3}] offset:{4*(1+k)}")
    A("s_branch L_end")
    A.label("L_hdS")
    for k, i in enumerate((1, 2, 3, 4, 5, 6, 7, 8)):
        if i in (1, 2):
            A(f"s_cmp_lg_u32 s{sWAVE}, 4")
            A(f"s_cbranch_scc1 L_hd{i}")
        A(f"global_atomic_umax v31, v{16+i}, s[{sT2}:{sT3}] offset:{4*(8+k)}")
        if i in (1, 2): A.label(f"L_hd{i}")
A.label("L_end")
A("s_endpgm")

A.label("L_S2a")
A("s_waitcnt vmcnt(0)")
A.label("L_S2")
SSEC[0] = True
kload([(R_XA, 0), (R_BRE, 24), (R_BIM, 32), (R_CRE, 40), (R_CIM, 48), (R_WO, 104), (R_AGG, 128)])
if OPT["pfc"] == 1:
    A(f"""
    s_cmp_lg_u32 s{sWAVE}, 7
    s_cbranch_scc1 L_nopfcode
    s_getpc_b64 s[{sT0}:{sT1}]
    L_pc:
    s_sub_u32 s{sT0}, s{sT0}, L_pc-{NAME}_kernel
    s_subb_u32 s{sT1}, s{sT1}, 0
    s_lshl_b32 s{sLOOP}, s{sROT}, 13
    v_lshlrev_b32 v16, 7, v{vLANE}
    v_add_u32 v16, s{sLOOP}, v16
    v_min_u32 v16, L_hot_end-{NAME}_kernel-4, v16
    global_load_dword v{vDUM}, v16, s[{sT0}:{sT1}]
    L_nopfcode:
    """)
common_scalars()
srd_words([R_XA, R_BRE, R_BIM, R_CRE, R_CIM, R_WO, R_AGG])
A(f"""
s_lshl_b32 s{sT3}, s{sG}, 7
s_lshl_b32 s{sT4}, s{sG}, 16
s_waitcnt lgkmcnt(0)
s_mov_b64 s[{P_LRE}:{P_LRE+1}], s[{R_BRE}:{R_BRE+1}]
s_mov_b64 s[{P_LIM}:{P_LIM+1}], s[{R_BIM}:{R_BIM+1}]
s_mov_b64 s[{P_LDT}:{P_LDT+1}], s[{R_CRE}:{R_CRE+1}]
s_mov_b64 s[{P_DSK}:{P_DSK+1}], s[{R_CIM}:{R_CIM+1}]
s_mov_b64 s[{P_WV}:{P_WV+1}], s[{R_WO}:{R_WO+1}]
""")
for r, t in ((R_XA, sT2), (R_BRE, sT4), (R_BIM, sT4), (R_CRE, sT4), (R_CIM, sT4), (R_WO, sT3)):
    A(f"s_add_u32 s{r}, s{r}, s{t}")
    A(f"s_addc_u32 s{r+1}, s{r+1}, 0")
A(f"""
s_add_u32 s{R_AGG}, s{R_AGG}, {AGG}
s_addc_u32 s{R_AGG+1}, s{R_AGG+1}, 0
""")
common_after_wait(False)
if OPT["tlb"]:
    A(f"""
    s_cmp_lg_u32 s{sSW}, 2
    s_cbranch_scc1 L_notlb
    v_mov_b32 v16, 0
    s_lshl_b32 s{sT0}, s{sC}, 17
    s_add_u32 s{sT0}, s{sT0}, {HB}
    s_mov_b32 s{sT1}, {KVT}
    s_mov_b64 exec, 1
    """)
    for R in (R_XA, R_BRE, R_BIM, R_WO, R_CRE, R_CIM, R_OUT):
        A(f"buffer_load_dword v{vDUM}, v16, {srd(R)}, 0 offen")
    A(f"""
    buffer_load_dword v{vDUM}, v16, {srd(R_WS)}, s{sOB} offen sc1
    buffer_load_dword v{vDUM}, v16, {srd(R_WS)}, s{sT0} offen offset:2048 sc1
    s_mov_b64 exec, -1
    L_notlb:
    """)
A(f"""
s_add_u32 s{sROT}, s{sC}, s{sG}
s_and_b32 s{sROT}, s{sROT}, 3
v_lshrrev_b32 v20, 4, v{vLANE}
v_and_b32 v21, 15, v{vLANE}
v_lshlrev_b32 v22, 4, v21
v_lshl_add_u32 v{vBo}, v20, 14, v22
v_lshrrev_b32 v23, 1, v20
v_and_b32 v24, 1, v20
v_lshlrev_b32 v23, 15, v23
v_lshl_add_u32 v23, v24, 12, v23
v_add_u32 v{vXo}, v23, v22
v_lshlrev_b32 v{vPF}, 7, v21
s_lshl_b32 s{sT0}, s2, 11
v_add_u32 v{vPF}, s{sT0}, v{vPF}
""")
def g1_soff(s):
    A(f"""
    s_add_u32 s{sT5}, s{sROT}, {s}
    s_and_b32 s{sT5}, s{sT5}, 3
    s_lshl_b32 s{sT5}, s{sT5}, 8
    s_lshl_b32 s{sT3}, s{sSW}, 12
    s_add_u32 s{sT3}, s{sT3}, s{sT5}
    s_lshl_b32 s{sT4}, s{sTW}, 14
    s_add_u32 s{sT4}, s{sT4}, s{sT5}
    s_lshl_b32 s{sT5}, s{sCW}, 11
    s_add_u32 s{sT4}, s{sT4}, s{sT5}
    s_add_u32 s{sT5}, s{sT4}, 8192
    """)
def capw(c=None):
    c = OPT["cap"] if c is None else c
    if c: A(f"s_waitcnt vmcnt({c})")
def dma_piece(n):
    dma_piece_(n)
    capw(OPT["cap0"] if n < OPT["npre"] else None)
def dma_piece_(n):
    st, r = divmod(n, 12); i, m = divmod(r, 3)
    slot = SLOT[st % 3]
    if r == 0: g1_soff(st)
    if m == 0:
        A(f"s_add_u32 m0, s{sT7}, {slot + XA_O + i*1040 - (i>>1)*1024}")
        A("s_nop 0")
        A(f"buffer_load_dwordx4 v{vXo}, {srd(R_XA)}, s{sT5 if i & 1 else sT4} offen offset:{(i>>1)*1024} lds")
    else:
        A(f"s_add_u32 m0, s{sT7}, {slot + [0, BRE_O, BIM_O][m] + i*16}")
        A("s_nop 0")
        A(f"buffer_load_dwordx4 v{vBo}, {srd([0, R_BRE, R_BIM][m])}, s{sT3} offen offset:{i*1024} lds")
LOG2E = math.log2(math.e)
a0, a1, a2, a3, a4, a5 = PRM, PRM+1, PRM+2, 96, 97, 98
vLR, vLI = vL1, vL1 + 1
A(f"""
s_mov_b32 s{sT0}, {f2u(LOG2E)}
v_lshlrev_b32 v{a0}, 16, v{a0}
v_lshlrev_b32 v{a1}, 16, v{a1}
v_lshlrev_b32 v{a2}, 16, v{a2}
v_mul_f32 v{a2}, s{sT0}, v{a2}
v_exp_f32 v{a2}, v{a2}
s_nop 0
v_cvt_pk_bf16_f32 v{a2}, v{a2}, v{a2}
v_and_b32 v{a2}, 0xffff0000, v{a2}
v_mul_f32 v{a3}, v{a2}, v{a0}
v_mul_f32 v{a4}, v{a2}, v{a1}
v_mul_f32 v{a3}, s{sT0}, v{a3}
v_exp_f32 v{a3}, v{a3}
v_mul_f32 v{a4}, 0.15915494, v{a4}
v_fract_f32 v{a4}, v{a4}
v_cos_f32 v{vLR}, v{a4}
v_sin_f32 v{vLI}, v{a4}
s_nop 0
v_mul_f32 v{vLR}, v{a3}, v{vLR}
v_mul_f32 v{vLI}, v{a3}, v{vLI}
v_mul_f32 v{a2}, v{a0}, v{a0}
v_fmac_f32 v{a2}, v{a1}, v{a1}
v_rcp_f32 v{a2}, v{a2}
v_add_f32 v{a3}, -1.0, v{vLR}
v_mul_f32 v{a4}, v{a3}, v{a0}
v_fmac_f32 v{a4}, v{vLI}, v{a1}
v_mul_f32 v{a5}, v{vLI}, v{a0}
v_fma_f32 v{a5}, -v{a3}, v{a1}, v{a5}
v_add_f32 v{a2}, v{a2}, v{a2}
v_mul_f32 v{vCF}, v{a4}, v{a2}
v_mul_f32 v{vCF+1}, v{a5}, v{a2}
""")
def csq(d, s_):
    A(f"v_mul_f32 v{a0}, v{s_+1}, v{s_+1}")
    A(f"v_mul_f32 v{a1}, v{s_}, v{s_+1}")
    A(f"v_fma_f32 v{d}, v{s_}, v{s_}, -v{a0}")
    A(f"v_add_f32 v{d+1}, v{a1}, v{a1}")
csq(vL8, vL1); csq(vL8, vL8); csq(vL8, vL8)
csq(vL16, vL8)
csq(vL64, vL16); csq(vL64, vL64)
csq(vL512, vL64); csq(vL512, vL512); csq(vL512, vL512)
vD = PRM + 3
A(f"""
v_and_b32 v20, 1, v{vL31}
v_lshlrev_b32 v20, 4, v20
v_lshlrev_b32 v{vD}, v20, v{vD}
v_bfe_u32 v20, v{vL31}, 3, 1
v_cmp_eq_u32 vcc, v20, v{vH}
v_bfe_u32 v21, v{vL31}, 1, 2
v_lshrrev_b32 v22, 4, v{vL31}
v_cndmask_b32 v{vD}, 0, v{vD}, vcc
v_lshl_add_u32 v21, v22, 2, v21
""")
for i in range(8):
    A(f"v_cmp_eq_u32 vcc, {i}, v21")
    A("s_nop 1")
    A(f"v_cndmask_b32 v{DG+i}, 0, v{vD}, vcc")
A(f"""
v_and_b32 v20, 15, v{vL31}
v_mul_u32_u24 v20, 1040, v20
v_lshl_add_u32 v20, v{vH}, 4, v20
v_lshrrev_b32 v21, 4, v{vL31}
v_lshl_add_u32 v20, v21, 8, v20
s_lshl_b32 s{sT0}, s{sTW}, 9
v_add_u32 v{vAa[0]}, s{sT0}, v20
v_add_u32 v{vAa[1]}, {SLOT[1]}, v{vAa[0]}
s_lshl_b32 s{sT0}, s{sCW}, 9
s_add_u32 s{sT0}, s{sT0}, {BRE_O}
v_add_u32 v{vBa[0]}, s{sT0}, v20
v_add_u32 v{vBa[1]}, {SLOT[1]}, v{vBa[0]}
v_bfe_u32 v20, v{vL31}, 2, 1
v_lshlrev_b32 v20, 3, v20
v_bfe_u32 v21, v{vL31}, 4, 1
v_lshl_add_u32 v20, v21, 2, v20
v_and_b32 v21, 3, v{vL31}
v_add_u32 v20, v20, v21
v_mul_u32_u24 v20, 1040, v20
v_bfe_u32 v21, v{vL31}, 3, 1
v_lshl_add_u32 v20, v21, 8, v20
v_lshl_add_u32 v20, v{vH}, 4, v20
s_lshl_b32 s{sT0}, s{sTW}, 9
s_and_b32 s{sT1}, s{sG}, 1
s_lshl_b32 s{sT1}, s{sT1}, 7
s_add_u32 s{sT0}, s{sT0}, s{sT1}
s_lshl_b32 s{sT1}, s{sCW}, 6
s_add_u32 s{sT0}, s{sT0}, s{sT1}
s_lshr_b32 s{sLOOP}, s{sG}, 1
s_sub_u32 s{sLOOP}, s{sLOOP}, s{sROT}
s_and_b32 s{sLOOP}, s{sLOOP}, 3
s_mul_i32 s{sT1}, s{sLOOP}, {SLOT[1]}
s_cmp_eq_u32 s{sLOOP}, 3
s_cselect_b32 s{sT1}, 0, s{sT1}
s_add_u32 s{sT0}, s{sT0}, s{sT1}
v_add_u32 v{vDa}, s{sT0}, v20
s_mul_i32 s{sT7}, s{sSW}, {4*1040}
v_add_u32 v{vAa[2]}, {SLOT[2]}, v{vAa[0]}
v_add_u32 v{vBa[2]}, {SLOT[2]}, v{vBa[0]}
""")
cnt_wait(vCNT, vTMP, 6, 0, sleep=1)
cnt_wait(vCNT, vTMP, 4, 12, sleep=1)
if OPT["stgl"] > 2: cnt_wait(vCNT, vTMP, 4*OPT["stgl"], 4, sleep=2)
def pfx(items):
    if OPT["pfb"] != 2: return
    nsh = 8 if OPT["map84"] else 4
    for R, sw, shift in items:
        lbl = A.newlabel("pfx")
        A(f"""
        s_cmp_lg_u32 s{sSW}, {sw}
        s_cbranch_scc1 {lbl}
        s_and_b32 s{sT0}, s{sC}, {nsh - 1}
        s_lshl_b32 s{sT0}, s{sT0}, {shift + 6 + (0 if nsh == 8 else 1)}
        v_lshlrev_b32 v{vPF}, {shift}, v{vLANE}
        buffer_load_dword v{vDUM}, v{vPF}, {srd(R)}, s{sT0} offen
        """)
        if nsh == 4:
            A(f"s_add_u32 s{sT0}, s{sT0}, {64 << shift}")
            A(f"buffer_load_dword v{vDUM}, v{vPF}, {srd(R)}, s{sT0} offen")
        A.label(lbl)
def pf16(pairs, lbl):
    if OPT["pfb"] != 1: return
    A(f"""
    s_cmp_lg_u32 s{sSW}, 1
    s_cbranch_scc1 {lbl}
    s_mov_b64 exec, 0xffff
    """)
    for p in pairs: A(f"global_load_dword v{vDUM}, v{vPF}, s[{p}:{p+1}]")
    A(f"s_mov_b64 exec, -1\n{lbl}:")
pf16([P_LRE, P_LIM, P_WV], "L_nopfb")
cnt_wait(vCNT, vTMP, 12, 4, sleep=0)
if OPT["noS"]: A("s_branch L_fin")
prio(OPT["gprio"])
sstamp(1, 1)
NPRE = OPT["npre"]
for n in range(NPRE): dma_piece(n)
ISS = [NPRE]
A(f"s_waitcnt vmcnt({NPRE - 12})")
sstamp(2, 1)
prio(OPT["vprio"])
sync_add(False); sync_wait(0)
sstamp(3, 1)
G1B = [FRS, FRS + 12, 64]
def g1_stage(s, extra=None, nwr=None, early_add=None):
    slot = s % 3
    prio(3 if (OPT["g1p"] >> s) & 1 else OPT["gprio"])
    sk = A.newlabel("nod")
    A(f"""
    s_cmp_lg_u32 s{sLOOP}, {s}
    s_cbranch_scc1 {sk}
    ds_read_b128 v[64:67], v{vDa}
    ds_read_b128 v[68:71], v{vDa} offset:32
    s_waitcnt lgkmcnt(0)
    v_mfma_f32_32x32x16_bf16 v[{Y0}:{Y0+15}], v[64:67], v[{DG}:{DG+3}], 0
    v_mfma_f32_32x32x16_bf16 v[{Y0}:{Y0+15}], v[68:71], v[{DG+4}:{DG+7}], v[{Y0}:{Y0+15}]
    {sk}:
    """)
    def rd(k):
        f = G1B[k % 3]
        A(f"ds_read_b128 v[{f}:{f+3}], v{vAa[slot]} offset:{k*32}")
        A(f"ds_read_b128 v[{f+4}:{f+7}], v{vBa[slot]} offset:{k*32}")
        A(f"ds_read_b128 v[{f+8}:{f+11}], v{vBa[slot]} offset:{k*32 + (BIM_O-BRE_O)}")
    rd(0); rd(1)
    for k in range(8):
        f = G1B[k % 3]
        if k + 2 < 8: rd(k + 2)
        nw = nwr(k - 1) if (nwr and k > 0) else 0
        A(f"s_waitcnt lgkmcnt({min(15, 3*(min(8, k + 3) - k - 1) + nw)})")
        if k == 7 and early_add is not None:
            if early_add: A(early_add)
            sync_add(False)
        cr = "0" if (s == 0 and k == 0) else f"v[{UR}:{UR+15}]"
        ci = "0" if (s == 0 and k == 0) else f"v[{UI}:{UI+15}]"
        A(f"v_mfma_f32_32x32x16_bf16 v[{UR}:{UR+15}], v[{f}:{f+3}], v[{f+4}:{f+7}], {cr}")
        if extra: extra(k)
        A(f"v_mfma_f32_32x32x16_bf16 v[{UI}:{UI+15}], v[{f}:{f+3}], v[{f+8}:{f+11}], {ci}")
def issue_upto(lim, k, last):
    cnt = -(-(lim - ISS[0]) // max(1, last - k)) if k < last else 0
    for n in range(ISS[0], min(lim, ISS[0] + cnt)): dma_piece(n)
    ISS[0] = min(lim, ISS[0] + cnt)
L0 = OPT["l0"]
g1_stage(0, lambda k: issue_upto(L0, k, 7), early_add=f"s_waitcnt vmcnt({L0 - 24})")
assert ISS[0] == L0
sstamp(4, 1)
prio(OPT["vprio"])
pfx([(R_WO, 1, 10)])
sync_wait(0)
g1_stage(1, lambda k: issue_upto(48, k, 7), early_add="s_waitcnt vmcnt(12)")
assert ISS[0] == 48
sstamp(5, 1)
prio(OPT["vprio"])
CLR = 64
A(f"""
v_mov_b32 v{CLR}, -1
v_mov_b32 v{CLR+1}, -1
v_mov_b32 v{CLR+2}, -1
v_mov_b32 v{CLR+3}, -1
s_lshl_b32 s{sT0}, s{sG}, 12
s_add_u32 s{sT0}, s{sT0}, s{sOB}
s_lshl_b32 s{sT1}, s{sCW}, 11
s_add_u32 s{sT0}, s{sT0}, s{sT1}
buffer_store_dwordx4 v[{CLR}:{CLR+3}], v{vL16x}, {srd(R_WS)}, s{sT0} offen sc1
buffer_store_dwordx4 v[{CLR}:{CLR+3}], v{vL16x}, {srd(R_WS)}, s{sT0} offen offset:1024 sc1
v_mov_b32 v{CLR+4}, 0
v_mov_b32 v{CLR+5}, s{sTAG}
v_mov_b32 v{CLR+6}, 0
v_mov_b32 v{CLR+7}, s{sTAG}
s_lshl_b32 s{sT1}, s{sID}, 7
s_add_u32 s{sT1}, s{sT1}, {AGG_DUMMY}
s_mov_b64 exec, 1
buffer_store_dwordx4 v[{CLR+4}:{CLR+7}], v{CLR+4}, {srd(R_AGG)}, s{sT1} offen sc1
s_mov_b64 exec, -1
""")
sync_wait(0)
g1_stage(2, early_add="s_waitcnt vmcnt(0)")
sstamp(6, 1)
prio(OPT["vprio"])
pf16([P_LDT, P_DSK], "L_nopfc")
pfx([(R_CRE, 2, 7), (R_CIM, 3, 7)])
wq_voffset(5, 6, 8, 15)
A(f"""
s_mul_i32 s{sT2}, s{sSW}, {16*1040}
s_lshl_b32 s{sT3}, s{sSW}, 14
s_lshl_b32 s{sT6}, s{sSW}, 17
""")
sync_wait(0)
def wo_piece(i):
    A(f"""
    s_add_u32 m0, s{sT3}, {WO + i*1024}
    s_add_u32 s{sT1}, s{sT6}, {i*8192}
    buffer_load_dwordx4 v5, {srd(R_WO)}, s{sT1} offen lds
    """)
    capw()
def c_piece(R, base, i):
    A(f"s_add_u32 m0, s{sT2}, {base + i*1040 - (i & 3)*1024}")
    if i & 3 == 0: A(f"s_add_u32 s{sT4}, s{sT3}, {i*1024}")
    else: A("s_nop 0")
    A(f"buffer_load_dwordx4 v{vL16x}, {srd(R)}, s{sT4} offen offset:{(i & 3)*1024} lds")
    capw()
def ex3(k):
    wo_piece(2*k); wo_piece(2*k + 1)
g1_stage(3, ex3)
sstamp(7, 1); sstamp(1, 2)
prio(OPT["vprio"])
stamp(3)
A(f"""
s_lshl_b32 s{sT0}, s{sTW}, 10
s_lshl_b32 s{sT1}, s{sCW}, 8
s_add_u32 s{sT1}, s{sT1}, {EB}
s_add_u32 s{sT0}, s{sT0}, s{sT1}
v_lshlrev_b32 v10, 3, v{vL31}
v_add_u32 v11, s{sT1}, v10
v_lshl_add_u32 v10, v{vH}, 9, v10
v_add_u32 v10, s{sT0}, v10
""")
A.nop(4)
if OPT["dbg"]:
    A(f"""
    s_lshl_b32 s{sT0}, s{sID}, 2
    s_add_u32 s{sT0}, s{sT0}, s{sSW}
    s_lshl_b32 s{sT0}, s{sT0}, 13
    s_add_u32 s{sT0}, s{sT0}, {DBG}
    v_lshlrev_b32 v12, 2, v{vLANE}
    """)
    for i in range(32):
        A(f"buffer_store_dword v{UR+i}, v12, {srd(R_WS)}, s{sT0} offen")
        A(f"s_add_u32 s{sT0}, s{sT0}, 256")
    A("s_waitcnt vmcnt(0)")
def cstep4(dr, di, pr, pi, l, ur, ui, tr, ti):
    A(f"v_fma_f32 v{tr}, v{l}, v{pr}, v{ur}")
    A(f"v_fma_f32 v{ti}, v{l}, v{pi}, v{ui}")
    A(f"v_fma_f32 v{dr}, -v{l+1}, v{pi}, v{tr}")
    A(f"v_fma_f32 v{di}, v{l+1}, v{pr}, v{ti}")
def p2(r): return f"v[{r}:{r+1}]"
def pkstep(dr, di, pr, pi, l, ur, ui, tr, ti):
    A(f"v_pk_fma_f32 {p2(tr)}, {p2(l)}, {p2(pr)}, {p2(ur)} op_sel_hi:[0,1,1]")
    A(f"v_pk_fma_f32 {p2(ti)}, {p2(l)}, {p2(pi)}, {p2(ui)} op_sel_hi:[0,1,1]")
    A(f"v_pk_fma_f32 {p2(dr)}, {p2(l)}, {p2(pi)}, {p2(tr)} op_sel:[1,0,0] neg_lo:[1,0,0] neg_hi:[1,0,0]")
    A(f"v_pk_fma_f32 {p2(di)}, {p2(l)}, {p2(pr)}, {p2(ti)} op_sel:[1,0,0]")
pa = [(FRS, FRS+2), (6, 8)]
p = (UR, UI)
for j in range(1, 8):
    d = pa[j & 1]
    pkstep(d[0], d[1], p[0], p[1], vL1, UR+2*j, UI+2*j, FRS+4, FRS+6)
    p = d
EA = (6, 8)
cstep4(FRS, FRS+1, 6, 8, vL8, 7, 9, FRS+4, FRS+5)
A(f"ds_write_b64 v10, v[{FRS}:{FRS+1}]")
A("s_waitcnt vmcnt(0)")
sync_add()
LB = 64
A(f"""
s_lshl_b32 s{sT0}, s{sTW}, 4
s_sub_u32 s{sT0}, s{sC}, s{sT0}
s_sub_u32 s{sT0}, s{sT0}, 1
s_lshl_b32 s{sT0}, s{sT0}, 13
v_lshlrev_b32 v5, 16, v{vH}
v_sub_u32 v5, s{sT0}, v5
v_lshl_add_u32 v5, v{vP2}, 3, v5
s_lshl_b32 s{sT1}, s{sID}, 7
s_add_u32 s{sT1}, s{sT1}, {AGG_DUMMY}
""")
for k in range(8):
    A(f"v_min_u32 v{96+k}, s{sT1}, v5")
    if k < 7: A(f"v_add_u32 v5, {(-8192) & 0xffffffff}, v5")
sync_wait(0)
sstamp(2, 2)
E = FRS
for s in range(4):
    A(f"ds_read_b64 v[{E+2*s}:{E+2*s+1}], v11 offset:{s*512}")
A("s_waitcnt lgkmcnt(0)")
A1, A2, G3 = (104, 105), (106, 107), 108
cstep4(A1[0], A1[1], E, E+1, vL16, E+2, E+3, FRS+8, FRS+9)
cstep4(A2[0], A2[1], A1[0], A1[1], vL16, E+4, E+5, FRS+8, FRS+9)
vPR, vPI, vW = 12, 13, 14
tw1 = A.newlabel("tw1"); twd = A.newlabel("twd")
A(f"""
v_cmp_eq_u32 vcc, 1, v{vH}
s_cmp_lg_u32 s{sTW}, 0
s_cbranch_scc1 {tw1}
""")
cstep4(G3, G3+2, A2[0], A2[1], vL16, E+6, E+7, FRS+8, FRS+9)
A(f"""
v_mov_b32 v{G3+1}, s{sTAG}
v_mov_b32 v{G3+3}, s{sTAG}
v_lshlrev_b32 v7, 3, v{vP2}
s_lshl_b32 s{sT0}, s{sC}, 13
s_mov_b32 exec_hi, 0
buffer_store_dwordx4 v[{G3}:{G3+3}], v7, {srd(R_AGG)}, s{sT0} offen sc1
s_mov_b32 exec_hi, -1
v_cndmask_b32 v{vPR}, 0, v{E}, vcc
v_cndmask_b32 v{vPI}, 0, v{E+1}, vcc
v_cndmask_b32 v{vW}, 1.0, v{vL16}, vcc
v_cndmask_b32 v{vW+1}, 0, v{vL16+1}, vcc
s_branch {twd}
{tw1}:
v_cndmask_b32 v{vPR}, v{A1[0]}, v{A2[0]}, vcc
v_cndmask_b32 v{vPI}, v{A1[1]}, v{A2[1]}, vcc
v_mul_f32 v{FRS+8}, v{vL16+1}, v{vL16+1}
v_mul_f32 v{FRS+9}, v{vL16}, v{vL16+1}
v_fma_f32 v{FRS+8}, v{vL16}, v{vL16}, -v{FRS+8}
v_add_f32 v{FRS+9}, v{FRS+9}, v{FRS+9}
v_mul_f32 v{FRS+10}, v{FRS+8}, v{vL16}
v_mul_f32 v{FRS+11}, v{FRS+8}, v{vL16+1}
v_fma_f32 v{FRS+10}, -v{FRS+9}, v{vL16+1}, v{FRS+10}
v_fma_f32 v{FRS+11}, v{FRS+9}, v{vL16}, v{FRS+11}
v_cndmask_b32 v{vW}, v{FRS+8}, v{FRS+10}, vcc
v_cndmask_b32 v{vW+1}, v{FRS+9}, v{FRS+11}, vcc
{twd}:
""")
A(f"s_mov_b32 s{sSPIN}, 0")
A(f"""
s_lshl_b32 s{sT0}, s{sSW}, 12
s_add_u32 s{sT0}, s{sT0}, {TB}
v_lshlrev_b32 v9, 6, v{vL31}
v_lshl_add_u32 v9, v{vH}, 5, v9
v_add_u32 v9, s{sT0}, v9
v_bfe_u32 v108, v{vLANE}, 2, 2
v_lshl_add_u32 v108, v{vH}, 3, v108
v_lshlrev_b32 v108, 6, v108
v_bfe_u32 v109, v{vLANE}, 4, 1
v_lshl_add_u32 v108, v109, 5, v108
v_and_b32 v109, 3, v{vLANE}
v_lshl_add_u32 v108, v109, 3, v108
v_add_u32 v108, s{sT0}, v108
""")
A(f"""
v_bfe_u32 v5, v{vLANE}, 2, 2
v_lshl_add_u32 v5, v{vH}, 2, v5
v_bfe_u32 v7, v{vLANE}, 4, 1
v_and_b32 v110, 3, v{vLANE}
v_lshlrev_b32 v110, 3, v110
v_lshl_add_u32 v110, v7, 5, v110
v_bfe_u32 v7, v{vLANE}, 3, 1
v_lshl_add_u32 v110, v7, 6, v110
v_lshl_add_u32 v110, v5, 7, v110
s_lshl_b32 s{sT0}, s{sCW}, 13
s_add_u32 s{sT0}, s{sT0}, {WO}
s_lshl_b32 s{sT1}, s{sCW}, 6
v_xor_b32 v110, s{sT1}, v110
v_xor_b32 v111, 64, v110
v_add_u32 v110, s{sT0}, v110
v_add_u32 v111, s{sT0}, v111
""")
def prod_off(i, shift, dst):
    A(f"""
    s_lshr_b32 s{dst}, s{sG}, 1
    s_add_u32 s{dst}, s{dst}, {i + 1}
    s_and_b32 s{dst}, s{dst}, 3
    s_lshl_b32 s{dst}, s{dst}, {shift}
    """)
for j in range(16):
    if OPT["orot"] and j % 4 == 0:
        prod_off(j // 4, 14, sT0)
        A(f"v_add_u32 v5, s{sT0}, v110")
        A(f"v_add_u32 v7, s{sT0}, v111")
    for nt in range(2):
        f = 8*j + 4*nt
        ad = [5, 7][nt] if OPT["orot"] else 110 + nt
        off = (j & 3)*2048 + (0 if OPT["orot"] else (j >> 2)*16384)
        A(f"ds_read_b64_tr_b16 a[{f}:{f+1}], v{ad} offset:{off}")
        A(f"ds_read_b64_tr_b16 a[{f+2}:{f+3}], v{ad} offset:{off + 1024}")
    if j % 3 == 2: A("s_waitcnt lgkmcnt(3)")
prio(OPT["gprio"])
for i in range(OPT["cim1"]): c_piece(R_CIM, CIM, i)
prio(OPT["vprio"])
sstamp(3, 2)
A.label("L_lb")
for k in range(8):
    A(f"buffer_load_dwordx4 v[{LB+4*k}:{LB+4*k+3}], v{96+k}, {srd(R_AGG)}, 0 offen sc1")
A(f"""
s_add_u32 s{sSPIN}, s{sSPIN}, 1
s_waitcnt vmcnt(0)
v_min_u32 v5, v{LB+1}, v{LB+3}
v_max3_u32 v7, s{sTAG}, v{LB+1}, v{LB+3}
""")
for k in range(1, 8):
    A(f"v_min3_u32 v5, v5, v{LB+4*k+1}, v{LB+4*k+3}")
    A(f"v_max3_u32 v7, v7, v{LB+4*k+1}, v{LB+4*k+3}")
A(f"""
v_min_u32 v5, s{sTAG}, v5
v_cmp_ne_u32 vcc, v5, v7
s_cbranch_vccz L_lbd
s_sleep 8
s_cmp_lt_u32 s{sSPIN}, {SPIN_MAX}
s_cbranch_scc1 L_lb
L_lbd:
""")
stamp(4); sstamp(4, 2)
p = (LB+28, LB+30)
pb = [(96, 97), (98, 99)]
for k in range(6, -1, -1):
    d = pb[k & 1]
    cstep4(d[0], d[1], p[0], p[1], vL64, LB+4*k, LB+4*k+2, 100, 101)
    p = d
A(f"ds_write_b64 v10, v[96:97] offset:{HP-EB}")
sync_add(); sync_wait(0)
sstamp(5, 2)
for s in range(4):
    A(f"ds_read_b64 v[{E+2*s}:{E+2*s+1}], v11 offset:{HP - EB + s*512}")
A("s_waitcnt lgkmcnt(0)")
p = (E+6, E+7)
for s in range(2, -1, -1):
    d = pb[s & 1]
    cstep4(d[0], d[1], p[0], p[1], vL512, E+2*s, E+2*s+1, 100, 101)
    p = d
CRp, CIp = 104, 106
cstep4(CRp, CIp, p[0], p[1], vW, vPR, vPI, 100, 101)
cstep4(CRp+1, CIp+1, CRp, CIp, vL8, EA[0], EA[1], 100, 101)
HR, HI = FRS, FRS+8
p = (CRp, CIp)
for j in range(8):
    pkstep(UR+2*j, UI+2*j, p[0], p[1], vL1, UR+2*j, UI+2*j, 100, 102)
    p = (UR+2*j, UI+2*j)
    if OPT['cpos'] == 0: c_piece(R_CRE, CRE, 2*j)
    A(f"v_pk_mul_f32 {p2(96)}, {p2(vCF)}, {p2(UI+2*j)} op_sel:[1,0]")
    A(f"v_pk_mul_f32 {p2(98)}, {p2(vCF)}, {p2(UR+2*j)} op_sel:[1,0]")
    A(f"v_pk_fma_f32 {p2(96)}, {p2(vCF)}, {p2(UR+2*j)}, {p2(96)} op_sel_hi:[0,1,1] neg_lo:[0,0,1] neg_hi:[0,0,1]")
    A(f"v_pk_fma_f32 {p2(98)}, {p2(vCF)}, {p2(UI+2*j)}, {p2(98)} op_sel_hi:[0,1,1] neg_lo:[1,0,1] neg_hi:[1,0,1]")
    if OPT['cpos'] == 0: c_piece(R_CRE, CRE, 2*j + 1)
    A(f"v_cvt_pk_bf16_f32 v{HR+j}, v96, v97")
    A(f"v_cvt_pk_bf16_f32 v{HI+j}, v98, v99")
    if j == 3:
        A(f"ds_write_b128 v9, v[{HR}:{HR+3}]")
        A(f"ds_write_b128 v9, v[{HI}:{HI+3}] offset:2048")
A(f"""
ds_write_b128 v9, v[{HR+4}:{HR+7}] offset:16
ds_write_b128 v9, v[{HI+4}:{HI+7}] offset:2064
s_lshl_b32 s{sKOFF}, s{sC}, 1
s_add_u32 s{sKOFF}, s{sKOFF}, s{sTW}
s_lshl_b32 s{sKOFF}, s{sKOFF}, 16
s_add_u32 s{sKOFF}, s{sKOFF}, {HB}
s_lshl_b32 s{sT1}, s{sG}, 12
s_lshl_b32 s{sT7}, s{sCW}, 11
s_add_u32 s{sT1}, s{sT1}, s{sT7}
s_add_u32 s{sT0}, s{sKOFF}, s{sT1}
s_add_u32 s{sT1}, s{sT0}, 32768
s_waitcnt lgkmcnt(0)
""")
for part in range(2):
    for hf in range(2):
        f = 64 + 8*part + 4*hf
        A(f"ds_read_b64_tr_b16 v[{f}:{f+1}], v108 offset:{part*2048 + hf*1024}")
        A(f"ds_read_b64_tr_b16 v[{f+2}:{f+3}], v108 offset:{part*2048 + hf*1024 + 256}")
for n in range(4):
    A(f"s_waitcnt lgkmcnt({6 - 2*n})")
    A(f"buffer_store_dwordx4 v[{64+4*n}:{67+4*n}], v{vL16x}, {srd(R_WS)}, s{sT0 if n < 2 else sT1} offen offset:{(n&1)*1024} sc1")
A(f"""
s_lshl_b32 s{sT7}, s{sC}, 12
s_add_u32 s{sT7}, s{sT7}, {FL3}
v_and_b32 v5, 15, v{vLANE}
v_lshlrev_b32 v5, 8, v5
s_lshl_b32 s{sT0}, s{sTW}, 7
s_add_u32 s{sT0}, s{sT0}, s{sT7}
v_add_u32 v5, s{sT0}, v5
v_mov_b32 v12, s{sTAG}
v_mov_b32 v13, 0
s_lshl_b32 s{sT1}, s{sG}, 2
s_add_u32 s{sT1}, s{sT1}, s{sSW}
s_lshl_b32 s{sT1}, s{sT1}, 7
s_add_u32 s{sT1}, s{sT1}, s{sT7}
""")
sstamp(6, 2)
A("s_waitcnt vmcnt(0)")
sstamp(7, 2); sstamp(1, 3)
A(f"""
s_mov_b64 exec, 1
buffer_store_dword v12, v13, {srd(R_WS)}, s{sT1} offen sc1
ds_add_u32 v{vCNT}, v{vONE} offset:28
s_mov_b64 exec, -1
""")
A(f"""
v_bfe_u32 v6, v{vLANE}, 4, 1
v_and_b32 v7, 15, v{vLANE}
v_lshlrev_b32 v7, 4, v7
v_lshl_add_u32 v7, v6, 9, v7
v_lshl_add_u32 v7, v{vH}, 15, v7
s_lshr_b32 s{sT5}, s{sT2}, 1
s_lshr_b32 s{sT6}, s{sT3}, 1
""")
prio(OPT["gprio"])
for half, base in ((0, CREA), (1, CREB)):
    for i in range(8):
        A(f"s_add_u32 m0, s{sT5}, {base + i*1040 - (i & 3)*1024}")
        if i & 3 == 0: A(f"s_add_u32 s{sT4}, s{sT6}, {i*1024 + half*256}")
        else: A("s_nop 0")
        A(f"buffer_load_dwordx4 v7, {srd(R_CRE)}, s{sT4} offen offset:{(i & 3)*1024} lds")
        capw()
prio(OPT["vprio"])
stamp(5, not HST)
A(f"""
v_mul_u32_u24 v10, 1040, v{vL31}
v_lshl_add_u32 v10, v{vH}, 4, v10
s_mul_i32 s{sT0}, s{sCW}, {512 + 32*1040}
s_mul_i32 s{sT1}, s{sCW}, {(512 - 32*1040) & 0xffffffff}
s_add_u32 s{sT1}, s{sT1}, {32*1040}
s_mul_i32 s{sT5}, s{sCW}, 768
s_mul_i32 s{sT6}, s{sCW}, {(-256) & 0xffffffff}
s_add_u32 s{sT5}, s{sT5}, {CREB}
s_add_u32 s{sT6}, s{sT6}, {CREB + 512}
v_add_u32 v14, s{sT5}, v10
v_add_u32 v15, s{sT6}, v10
v_add_u32 v11, s{sT1}, v10
v_add_u32 v10, s{sT0}, v10
s_lshl_b32 s{sT1}, s{sCW}, 14
s_add_u32 s{sKOFF}, s{sKOFF}, s{sT1}
s_lshl_b32 s{sT1}, s{sCW}, 12
s_add_u32 s{sOB}, s{sOB}, s{sT1}
s_xor_b32 s{sT0}, s{sSW}, 2
s_lshl_b32 s{sT0}, s{sT0}, 12
v_add_u32 v114, s{sT0}, v{vL16x}
s_lshl_b32 s{sT0}, s{sSW}, 12
v_add_u32 v115, s{sT0}, v{vL16x}
v_add_u32 v119, {TBY}, v114
v_add_u32 v120, {TBY}, v115
s_lshl_b32 s{sT0}, s{sTW}, 17
s_lshl_b32 s{sT1}, s{sG}, 8
s_add_u32 s{sT0}, s{sT0}, s{sT1}
s_lshl_b32 s{sT1}, s{sCW}, 7
s_add_u32 s{sT0}, s{sT0}, s{sT1}
v_lshlrev_b32 v113, 2, v{vL31}
v_add_u32 v113, s{sT0}, v113
v_lshl_add_u32 v118, v{vH}, 14, v113
v_add_u32 v118, 2048, v118
v_lshl_add_u32 v113, v{vH}, 13, v113
""")
sstamp(2, 3)
poll_flags(5, 12, 1, sleep=OPT['sl2'])
if OPT["cpos"] == 1: sync_add(False)
sstamp(3, 3)
LA = 7
HRING = 16
def hreg(j): return HRING + 4*(j % 8)
def h_ld(j):
    if j == 16: A(f"s_add_u32 s{sKOFF}, s{sKOFF}, {32768 - 3*4096}")
    elif j % 4 == 0 and j > 0: A(f"s_add_u32 s{sKOFF}, s{sKOFF}, 4096")
    A(f"buffer_load_dwordx4 v[{hreg(j)}:{hreg(j)+3}], v{vL16x}, {srd(R_WS)}, s{sKOFF} offen offset:{(j%4)*1024} sc1")
for j in range(LA): h_ld(j)
def g2_rd(j):
    f = FRS + 8*(j % 3)
    off = (CREA - CREB + j*32) if j < 8 else ((j - 8)*32 if j < 16 else (j - 16)*32)
    A(f"ds_read_b128 v[{f}:{f+3}], v{14 if j < 16 else 10} offset:{off}")
    A(f"ds_read_b128 v[{f+4}:{f+7}], v{15 if j < 16 else 11} offset:{off}")
def g2_mfma(j):
    f = FRS + 8*(j % 3)
    c = "0" if j == 0 else f"v[{Y1}:{Y1+15}]"
    A(f"v_mfma_f32_32x32x16_bf16 v[{Y1}:{Y1+15}], v[{hreg(j)}:{hreg(j)+3}], v[{f+4}:{f+7}], {c}")
    A(f"v_mfma_f32_32x32x16_bf16 v[{Y0}:{Y0+15}], v[{hreg(j)}:{hreg(j)+3}], v[{f}:{f+3}], v[{Y0}:{Y0+15}]")
sync_wait(0)
prio(3 if OPT["g2p"] & 1 else OPT["gprio"])
g2_rd(0); g2_rd(1)
VQ = list(range(LA))
P2 = 32 - OPT["p2n"]
assert 8 <= P2 <= 14
for j in range(32):
    if j == P2:
        prio(OPT["vprio"])
        A("s_waitcnt vmcnt(0)")
        sync_add(False); sync_wait()
        cnt_wait(vCNT, vTMP, 8, 12, sleep=OPT['sl1'])
        sstamp(6, 3); sstamp(1, 4)
        prio(3 if OPT["g2p"] & 2 else OPT["gprio"])
    if j + LA < 32:
        h_ld(j + LA); VQ.append(j + LA)
    if j < 8:
        for i in range(OPT["cim1"], 16)[2*j:2*j + 2]:
            if i == OPT["cim1"] and i & 3: A(f"s_add_u32 s{sT4}, s{sT3}, {(i & ~3)*1024}")
            c_piece(R_CIM, CIM, i); VQ.append(-1)
    if j + 2 < 32: g2_rd(j + 2)
    issued = min(32, j + 3)
    A(f"s_waitcnt vmcnt({len(VQ) - 1 - VQ.index(j)}) lgkmcnt({2*(issued - j - 1)})")
    if j == 0: sstamp(4, 3)
    if j == 7:
        cnt_add(vCNT, vONE, 8)
        stamp(6, not HST); sstamp(5, 3)
    g2_mfma(j)
prio(OPT["vprio"])
stamp(7); sstamp(7, 3); sstamp(2, 4)
cnt_wait(vCNT, vTMP, 12, 12)
sstamp(3, 4)
def oreg(j): return (16 + 4*j) if j < 8 else (80 + 4*(j - 8))
def o_loads(g4):
    if OPT["orot"]:
        prod_off(g4, 13, sT1)
        A(f"s_add_u32 s{sT1}, s{sT1}, s{sOB}")
    else: A(f"s_add_u32 s{sT1}, s{sOB}, {g4*8192}")
    for j in range(4*g4, 4*g4 + 4):
        A(f"buffer_load_dwordx4 v[{oreg(j)}:{oreg(j)+3}], v{vL16x}, {srd(R_WS)}, s{sT1} offen offset:{(j%4)*1024} sc1")
if OPT["ofirst"]: o_loads(0)
else: A.nop(4)
for i in range(4):
    A(f"ds_write_b128 v119, v[{Y1+4*i}:{Y1+4*i+3}] offset:{i*1024}")
if OPT["ofirst"]:
    for g4 in range(1, 4): o_loads(g4)
sync_add(); sync_wait(0)
for i in range(4):
    A(f"ds_read_b128 v[{Y1+4*i}:{Y1+4*i+3}], v120 offset:{i*1024}")
for i in range(16):
    if i % 4 == 0: A(f"s_waitcnt lgkmcnt({3 - i//4})")
    A(f"v_add_f32 v{Y0+i}, v{Y0+i}, v{Y1+i}")
    A(f"s_mov_b32 s{sT1}, {(16*(i>>3) + 4*((i>>2)&1) + ((i>>1)&1) + 8*(i&1))*4096}")
    A(f"buffer_store_dword v{Y0+i}, v113, {srd(R_OUT)}, s{sT1} offen{OST}")
if not OPT["ofirst"]:
    for g4 in range(OPT["osplit"]): o_loads(g4)
    if OPT["oack"] == 2: cnt_wait(vCNT, vTMP, 6, 24)
    for g4 in range(OPT["osplit"], 4): o_loads(g4)
A(f"s_mov_b32 s{sSPIN}, 0")
NY0 = 16 - OPT["y1f"]
def y0_mfma(j):
    c0 = "0" if j == 0 else f"v[{Y0}:{Y0+15}]"
    A(f"v_mfma_f32_32x32x16_bf16 v[{Y0}:{Y0+15}], v[{oreg(j)}:{oreg(j)+3}], a[{8*j}:{8*j+3}], {c0}")
for g4 in range(4):
    lp = A.newlabel("op"); dn = A.newlabel("opd"); ck = A.newlabel("opc")
    j0 = 4*g4
    A(f"s_waitcnt vmcnt({(16 if OPT['ofirst'] else 0) + 4*(3 - g4)})")
    A.label(ck)
    A(f"v_max_u32 v13, v{oreg(j0)+1}, v{oreg(j0)+3}")
    for j in range(j0 + 1, j0 + 4):
        A(f"v_max3_u32 v13, v13, v{oreg(j)+1}, v{oreg(j)+3}")
    A(f"""
    v_cmp_eq_u32 vcc, -1, v13
    s_cbranch_vccz {dn}
    s_add_u32 s{sSPIN}, s{sSPIN}, 1
    s_cmp_gt_u32 s{sSPIN}, 20000
    s_cbranch_scc1 {dn}
    """)
    if OPT["osl"]: A(f"s_sleep {OPT['osl']}")
    o_loads(g4)
    A(f"""
    s_waitcnt vmcnt(0)
    s_branch {ck}
    {dn}:
    """)
    if g4 in (0, 3): sstamp(4 + g4 // 3, 4)
    for j in range(j0, j0 + 4):
        c0 = "0" if j == 0 else f"v[{Y0}:{Y0+15}]"
        c1 = "0" if j == 0 else f"v[{Y1}:{Y1+15}]"
        A(f"v_mfma_f32_32x32x16_bf16 v[{Y1}:{Y1+15}], v[{oreg(j)}:{oreg(j)+3}], a[{8*j+4}:{8*j+7}], {c1}")
        if j < NY0: y0_mfma(j)
if OPT["sst"] == 4: A(f"s_mov_b32 s{sST+14}, s{sSPIN}")
rest = list(range(NY0, 16))
n1 = min(len(rest), 3); n2 = min(len(rest) - n1, 4)
for j in rest[:n1]: y0_mfma(j)
A.nop(12 - n1 - (1 if NY0 == 16 else 0))
for i in range(4):
    A(f"ds_write_b128 v114, v[{Y1+4*i}:{Y1+4*i+3}] offset:{TB2 + i*1024}")
for j in rest[n1:n1 + n2]: y0_mfma(j)
A("s_waitcnt lgkmcnt(0)")
A("s_barrier")
sstamp(6, 4)
for i in range(4):
    A(f"ds_read_b128 v[{Y1+4*i}:{Y1+4*i+3}], v115 offset:{TB2 + i*1024}")
for j in rest[n1 + n2:]: y0_mfma(j)
if rest: A.nop(12 if rest[n1 + n2:] else 6)
for i in range(16):
    if i % 4 == 0: A(f"s_waitcnt lgkmcnt({3 - i//4})")
    A(f"v_add_f32 v{Y0+i}, v{Y0+i}, v{Y1+i}")
    A(f"s_mov_b32 s{sT1}, {(8*(i>>2) + (i&3))*4096}")
    A(f"buffer_store_dword v{Y0+i}, v118, {srd(R_OUT)}, s{sT1} offen{OSTB}")
A("s_branch L_fin")

A.label("L_hot_end")
A.label("L_slow")
A(f"""
s_cmp_lg_u32 s{sDONE}, 0
s_cbranch_scc1 L_fast
s_mov_b32 s{sDONE}, 1
s_waitcnt lgkmcnt(0)
""")
def a_sync():
    A(f"s_add_u32 s{sATG}, s{sATG}, 4")
    A("s_waitcnt lgkmcnt(0)")
    cnt_add(vCNT, vIDX, 4)
    cnt_wait(vCNT, 16, f"s{sATG}", 4, sleep=2)
for i in range(4): A(f"v_mov_b32 v{vZ+i}, 0")
for ct in range(8): A(f"v_mov_b32 v{vM+ct}, 0xff800000")
A("s_nop 1")
for ct in range(8):
    A(f"v_mfma_f32_32x32x16_bf16 a[{16*ct}:{16*ct+15}], v[{vZ}:{vZ+3}], v[{vZ}:{vZ+3}], 0")
A(f"s_mov_b32 s{sLOOP}, 16")
def adv():
    A(f"s_add_u32 s{sKOFF}, s{sKOFF}, {KVS}"); A(f"s_and_b32 s{sKOFF}, s{sKOFF}, 0xffff")
A.label("L_sl1")
ld_k(0, 0); adv()
A("s_waitcnt vmcnt(0)")
for ct in range(8):
    A(f"v_mfma_f32_32x32x16_bf16 v[{S0}:{S0+15}], v[{KV[0]}:{KV[0]+3}], v[{QF+4*ct}:{QF+4*ct+3}], 0")
    A.nop(12)
    for i in range(8):
        A(f"v_max3_f32 v{vM+ct}, v{S0+2*i}, v{S0+2*i+1}, v{vM+ct}")
A(f"""
s_sub_u32 s{sLOOP}, s{sLOOP}, 1
s_cmp_lg_u32 s{sLOOP}, 0
s_cbranch_scc1 L_sl1
s_lshl_b32 s{sT0}, s{sWAVE}, 11
s_add_u32 s{sT0}, s{sT0}, {CB}
v_lshlrev_b32 v8, 2, v{vLANE}
v_add_u32 v8, s{sT0}, v8
v_lshlrev_b32 v10, 2, v{vL31}
v_add_u32 v10, {CB}, v10
""")
a_sync()
def pair_off(pr):
    A(f"s_add_u32 s{sT0}, s{sWAVE}, {pr + 1}")
    A(f"s_and_b32 s{sT0}, s{sT0}, 3")
    A(f"s_lshl_b32 s{sT0}, s{sT0}, 9")
for pr in range(4):
    pair_off(pr)
    A(f"v_add_u32 v9, s{sT0}, v8")
    A(f"ds_write_b32 v9, v{vM+2*pr}")
    A(f"ds_write_b32 v9, v{vM+2*pr+1} offset:256")
a_sync()
for ct in range(8):
    if ct % 2 == 0:
        pair_off(ct // 2)
        A(f"v_add_u32 v9, s{sT0}, v10")
    for w in range(4):
        A(f"ds_read_b32 v{S0+2*w}, v9 offset:{w*2048 + (ct%2)*256}")
        A(f"ds_read_b32 v{S0+2*w+1}, v9 offset:{w*2048 + (ct%2)*256 + 128}")
    A("s_waitcnt lgkmcnt(0)")
    for w in range(4):
        A(f"v_max3_f32 v{vM+ct}, v{S0+2*w}, v{S0+2*w+1}, v{vM+ct}")
a_sync()
A(f"s_mov_b32 s{sLOOP}, 16")
A.label("L_sl2")
ld_k(0, 0); ld_v(0, 0, 0); ld_v(0, 1, 0); adv()
A("s_waitcnt vmcnt(0)")
for ct in range(8):
    A(f"v_mfma_f32_32x32x16_bf16 v[{S0}:{S0+15}], v[{KV[0]}:{KV[0]+3}], v[{QF+4*ct}:{QF+4*ct+3}], 0")
    A.nop(12)
    for i in range(16):
        A(f"v_sub_f32 v{S0+i}, v{S0+i}, v{vM+ct}")
    for i in range(16):
        A(f"v_exp_f32 v{S0+i}, v{S0+i}")
    A.nop(2)
    A(f"v_smfmac_f32_32x32x32_bf16 a[{16*ct}:{16*ct+15}], v[{KV[0]+4}:{KV[0]+7}], v[{S0}:{S0+7}], v{vIDX}")
    A(f"v_smfmac_f32_32x32x32_bf16 a[{16*ct}:{16*ct+15}], v[{KV[0]+8}:{KV[0]+11}], v[{S0+8}:{S0+15}], v{vIDX}")
A(f"""
s_sub_u32 s{sLOOP}, s{sLOOP}, 1
s_cmp_lg_u32 s{sLOOP}, 0
s_cbranch_scc1 L_sl2
s_nop 15
""")
for ct in range(6): part_write(ct)
A("s_waitcnt lgkmcnt(0)")
cnt_add(vCNT, vIDX, 4)
A(f"""
s_add_u32 s{sATG}, s{sATG}, 4
""")
comb_addr(0); comb_addr(1); comb_addr(2); comb_addr(3)
cnt_wait(vCNT, 16, f"s{sATG}", 4)
comb_reads(0); comb_reads(1)
A("s_branch L_comb2")

if OPT["xm"] or OPT["xv"] or OPT["xl"]:
    i0 = A.lines.index("L_S2:"); i1 = A.lines.index("L_hot_end:")
    seen = False
    for i in range(i0, i1):
        t = A.lines[i].strip()
        if t.startswith("ds_write_b128") : seen = True
        if not seen: continue
        if OPT["xm"] and t.startswith("v_mfma"): A.lines[i] = "    s_nop 7"
        if OPT["xv"] and (t.startswith(("v_pk_", "v_fma_f32", "v_cvt_pk", "v_mul_f32", "v_add_f32"))): A.lines[i] = "    s_nop 1"
        if OPT["xl"] and t.startswith(("ds_read_b128", "ds_write_b128")): A.lines[i] = "    s_nop 0"
if OPT["arch"]:
    import re
    def toarch(t):
        t = t.replace("v_accvgpr_read_b32", "v_mov_b32")
        t = re.sub(r"\ba\[(\d+):(\d+)\]", lambda x: f"v[{128+int(x.group(1))}:{128+int(x.group(2))}]", t)
        return re.sub(r"\ba(\d+)\b", lambda x: f"v{128+int(x.group(1))}", t)
    A.lines = [toarch(l) for l in A.lines]
hdr = open("cdna_kernels/" + NAME + ".s.ref").read().split("; Override launch")[0]
out = hdr + f"""; Fused single-launch kernel, written with the generator script gen/gen17.py (hand-scheduled instruction streams).
; 256 workgroups (one per CU) x 8 waves; workgroup (c, g) = 64 tokens x (4 heads | 64 SSM channels | 64 output columns).
;  waves 0-3 (attention): Q projection -> S^T = K Q^T (32x32x16 MFMA) -> v_exp -> O^T += [V^T;1] P^T with the sparse MFMA,
;     which picks the high (bf16) half of each fp32 exp result; every wave owns a quarter of the keys, partial sums meet in LDS.
;     No max subtraction while |q||k| proves |score*log2e| < 32 (checked at run time); otherwise the slow path redoes the
;     attention with the exact row maxima.
;  waves 4-7 (SSM + projections): K/V projection, x B^T, chunked complex scan (look-back over chunk aggregates),
;     h C^T + x D, and the output projection.
;  Hand-offs between workgroups go through d_ws with write-through stores and L1-bypassing loads; flags / granules carry a
;  tag derived from a launch counter kept in d_ws[0], the O fragments are recognised by a sentinel written in this launch.
; @launch grid=(256,1,1) block=(512,1,1) lds={LDS_BYTES}
.amdgcn_target "amdgcn-amd-amdhsa--gfx950"
.text
.globl {NAME}_kernel
.p2align 8
.type {NAME}_kernel,@function
{NAME}_kernel:
""" + A.text() + f""".section .rodata,"a"
.p2align 6
.amdhsa_kernel {NAME}_kernel
  .amdhsa_next_free_vgpr 256
  .amdhsa_next_free_sgpr 102
  .amdhsa_accum_offset {256 if OPT["arch"] else 128}
  .amdhsa_group_segment_fixed_size 0
  .amdhsa_kernarg_size 136
  .amdhsa_user_sgpr_count 2
  .amdhsa_user_sgpr_kernarg_segment_ptr 1
  .amdhsa_system_sgpr_workgroup_id_x 1
.end_amdhsa_kernel
"""
open(sys.argv[1], "w").write(out)
errs = check(A.lines) + check(A.lines[loop_end-60:loop_end] + A.lines[loop_start:loop_start+60])
for e in errs: print("HAZARD:", e)
print(f"{len(A.lines)} lines, {len(errs)} hazards")
```

```python
import sys, math, struct
from asmlib import *

OPT = dict(dbg=0, force_slow=0, stamps=0, noS=0, cyc=0, ost=2, gprio=0, vprio=3, hst=0, stgwin=8, pfq=0, pfb=2, stgl=2, qpre=2,
           pfc=2, ssl=2, la=8, sst=0, win0=0, trig=6, odel=0, sgate=2, map84=1, g1p=0, g2p=0, noKV=0, nochk=0, wq1=12, cpos=1, hdbg=0, p2n=20, oack=2, cim1=0, npre0=0, mid=0, sl1=2, sl2=2, sl0=0, tlb=0, pad=0, padat=0, p1at=3, e0c=24, q1a=2, p1k=20, kv0=4, g0=0, ofirst=0, xm=0, xv=0, xl=0, npre=15, l0=30, ostb=2, cap=6, cap0=8, enc=0, encS=0, aprio=3, y1f=7, osl=0, q2w=1, osplit=0, ptop=1, jit=0, arch=0, orot=0, p1c=99, fsl=0, lbs=4)
for a in sys.argv[2:]:
    k, v = a.split("=")
    assert k in OPT, k
    OPT[k] = int(v)

NAME = "concat_heads__ssm_conv_s5__grouped_kv_mqa__prompt"
def f2u(x): return struct.unpack("<I", struct.pack("<f", x))[0]

XQ, WQ = 0, 66560
KVX, WKV = 3*16640, 66560 + 3*16384
SLOT = [0, 49920, 99840]
XA_O, BRE_O, BIM_O = 0, 16640, 33280
CIM, CRE = 0, 66560
CB_T = 2304
CB = 133120 - 12*CB_T
def cb_off(slot): return (12 + slot)*CB_T if slot < 3 else (slot - 3)*CB_T
TB = 133120
TBY = CB
CREA, CREB = 99840, 66560
WO = 66560
TB2 = 0
QX = 149760; EB = 157952; HP = 160000; CNT = 162048; QM = 162064; KM = 162068; CNT4 = 24
assert CB + 24*CB_T <= CNT
assert TB + 16384 <= EB
LDS_BYTES = 163840
FL1, FL3 = 0x1000, 0x9000
KVT = 0x80000; KVS = 4096
AGG = 0x30000; AGG_DUMMY = 32*8192; AGG_SIZE = AGG_DUMMY + 256*128
OB, HB = 0x100000, 0x400000
DBG = 0x1000000
WS_SIZE = 0x2000000
assert AGG + AGG_SIZE <= KVT
sWAVE, sC, sG, sTAG, sID = 3, 4, 5, 6, 7
R_XB, R_WQ, R_WKV, R_XA, R_BRE, R_BIM, R_CRE, R_CIM, R_WO, R_OUT, R_WS, R_AGG = 8, 12, 16, 20, 24, 28, 32, 36, 40, 44, 48, 52
P_LRE, P_LIM, P_LDT, P_DSK, P_WV = 56, 58, 60, 62, 64
sEP, sDONE = 66, 67
sT0, sT1, sT2, sT3, sT4, sT5 = 68, 69, 70, 71, 72, 73
sT6, sSPIN = 74, 75
sTW, sCW = 76, 77
sLOOP, sKOFF, sROT, sSW = 78, 79, 80, 81
sOB, sT7 = 82, 83
sATG = 65
sST = 84
def srd(r): return f"s[{r}:{r+3}]"

A = Asm()
OST = ["", " sc1", " nt", " sc0 sc1", " sc1 nt"][OPT["ost"]]
OSTB = OST if OPT["ostb"] < 0 else ["", " sc1", " nt", " sc0 sc1", " sc1 nt"][OPT["ostb"]]
SPIN_MAX = 200000
HST = OPT["hst"]

SSEC = [False]
def sstamp(i, mode):
    if OPT["stamps"] and OPT["sst"] == mode:
        A(f"s_memrealtime s[{sST+2*i}:{sST+2*i+1}]")
def stamp(i, cond=True):
    if (OPT["enc"] or OPT["encS"]) and cond and (i == 0 or (SSEC[0] and i == OPT["encS"]) or (not SSEC[0] and i == OPT["enc"])):
        A(f"s_memrealtime s[{98 if i == 0 else 94}:{99 if i == 0 else 95}]")
        if i == 0: A("s_waitcnt lgkmcnt(0)\ns_sub_u32 s94, s98, 3000")
        return
    if SSEC[0] and OPT["sst"] and i < 8: return
    if OPT["stamps"] and cond:
        A(f"s_memrealtime s[{sST+2*i}:{sST+2*i+1}]")

def padto():
    l = A.newlabel("pad")
    A(f"""
    {l}:
    s_memrealtime s[96:97]
    s_waitcnt lgkmcnt(0)
    s_sub_u32 s96, s96, s98
    s_cmp_lt_u32 s96, {OPT["pad"]*100}
    s_cbranch_scc1 {l}
    """)
def prio(p): A(f"s_setprio {p}")

JIT = [0]
def jitter():
    if not OPT["jit"]: return
    JIT[0] += 1
    l = A.newlabel("jit")
    k = (JIT[0] * 2654435761 + OPT["jit"] * 40503) & 0xffffffff
    A(f"""
    s_lshl_b32 s100, s2, 3
    s_add_u32 s100, s100, s{sWAVE}
    s_mul_i32 s100, s100, {k | 1}
    s_lshr_b32 s100, s100, 29
    s_cmp_lg_u32 s100, 3
    s_cbranch_scc1 {l}
    s_sleep {40 + 17 * (JIT[0] % 5)}
    {l}:
    """)
def cnt_add(vaddr, vone, off=0):
    jitter()
    cnt_add_(vaddr, vone, off)
    jitter()
def cnt_add_(vaddr, vone, off=0):
    A(f"""
    s_mov_b64 exec, 1
    {"ds_inc_u32" if vone == vIDX else "ds_add_u32"} v{vaddr}, v{vone} offset:{off}
    s_mov_b64 exec, -1
    """)
def cnt_wait(vaddr, vtmp, target, off=0, sleep=0):
    lp = A.newlabel("sy"); dn = A.newlabel("syd")
    A(f"""
    s_mov_b32 s{sSPIN}, 0
    {lp}:
    ds_read_b32 v{vtmp}, v{vaddr} offset:{off}
    s_add_u32 s{sSPIN}, s{sSPIN}, 1
    s_waitcnt lgkmcnt(0)
    v_readfirstlane_b32 s{sT0}, v{vtmp}
    s_cmp_ge_u32 s{sT0}, {target}
    s_cbranch_scc1 {dn}
    {("s_sleep " + str(sleep)) if sleep else ""}
    s_cmp_lt_u32 s{sSPIN}, {SPIN_MAX}
    s_cbranch_scc1 {lp}
    {dn}:
    """)
    jitter()
NSYNC = [0]
def grp_sync():
    NSYNC[0] += 1
    A("s_waitcnt lgkmcnt(0)")
    cnt_add(vCNT, vONE)
    cnt_wait(vCNT, vTMP, CBASE + 4*NSYNC[0], sleep=OPT['ssl'])

def sync_add(wait_lds=True):
    NSYNC[0] += 1
    if wait_lds: A("s_waitcnt lgkmcnt(0)")
    cnt_add(vCNT, vONE)
def sync_wait(sleep=None):
    cnt_wait(vCNT, vTMP, CBASE + 4*NSYNC[0], sleep=OPT['ssl'] if sleep is None else max(sleep, OPT['sl0']))

def poll_flags(vaddr, vdst, width, sleep=2):
    lp = A.newlabel("pl"); dn = A.newlabel("pld")
    ld = "buffer_load_dword" if width == 1 else f"buffer_load_dwordx{width}"
    A(f"s_mov_b32 s{sSPIN}, 0")
    A.label(lp)
    A(f"""
    {ld} {vr(vdst, width)}, v{vaddr}, {srd(R_WS)}, 0 offen sc1
    s_add_u32 s{sSPIN}, s{sSPIN}, 1
    s_waitcnt vmcnt(0)
    v_cmp_ne_u32 vcc, s{sTAG}, v{vdst}
    s_cbranch_vccz {dn}
    {("s_sleep " + str(sleep)) if sleep else ""}
    s_cmp_lt_u32 s{sSPIN}, {SPIN_MAX}
    s_cbranch_scc1 {lp}
    {dn}:
    """)

def wave_max(v, tmp):
    A("s_nop 1")
    for sh in (1, 2, 4, 8):
        A(f"v_max_f32_dpp v{v}, v{v}, v{v} row_ror:{sh} row_mask:0xf bank_mask:0xf")
        A("s_nop 1")
    A(f"v_mov_b32 v{tmp}, v{v}")
    A("s_nop 1")
    A(f"v_permlane16_swap_b32 v{tmp}, v{v}")
    A(f"v_max_f32 v{v}, v{v}, v{tmp}")
    A(f"v_mov_b32 v{tmp}, v{v}")
    A("s_nop 1")
    A(f"v_permlane32_swap_b32 v{tmp}, v{v}")
    A(f"v_max_f32 v{v}, v{v}, v{tmp}")

def wq_voffset(dst, t0, t1, t2):
    A(f"""
    v_lshrrev_b32 v{t0}, 3, v{vLANE}
    v_and_b32 v{t1}, 7, v{vLANE}
    v_bfe_u32 v{t2}, v{vLANE}, 4, 1
    v_lshlrev_b32 v{t2}, 2, v{t2}
    v_xor_b32 v{t1}, v{t1}, v{t2}
    v_lshlrev_b32 v{t1}, 4, v{t1}
    v_lshl_add_u32 v{dst}, v{t0}, 10, v{t1}
    """)

vLANE, vL31, vH, vL16x = 1, 2, 3, 4
UR, UI, Y0, Y1 = 16, 32, 48, 64
FRS = 80
DG = 104
vL1, vL8, vL16, vL64, vL512, vCF = 112, 114, 116, 118, 120, 122
vCNT, vONE, vTMP, vP2, vDUM = 0, 124, 125, 126, 127
vXo, vBo, vDa, vSt = 5, 6, 7, 8
vAa, vBa = [9, 10, 11], [12, 13, 14]
vPF = 15
STG = 64
PRM = 100
S0, S1 = 16, 32
QF = 48
KV = [80, 92, 104, 116]
vIDX = 7
vM = 104
vZ = 120
vKt, vVt = [5, 8, 9, 10], [6, 12, 14, 15]

A(f"""
s_cmp_ge_u32 s2, 256
s_cbranch_scc1 L_end
""")
stamp(0)
if OPT["pad"]: A("s_memrealtime s[98:99]")
sizes = {R_XB: 65536, R_WKV: 16384, R_WQ: 523392, R_WS: WS_SIZE, R_XA: 65536, R_BRE: 65536, R_BIM: 65536, R_CRE: 65536, R_CIM: 65536,
         R_WO: 523392, R_OUT: 262144, R_AGG: AGG_SIZE}
def kload(lst):
    for r, off in lst:
        A(f"s_load_dwordx2 s[{r}:{r+1}], s[0:1], {off}")
def srd_words(rs):
    for r in rs:
        A(f"s_mov_b32 s{r+2}, {sizes[r]}")
        A(f"s_mov_b32 s{r+3}, 0x20000")
kload([(R_XB, 72), (R_WKV, 88), (P_WV, 96), (R_WQ, 80), (R_WS, 128)])
if OPT["ptop"]:
    A(f"s_load_dwordx4 s[{P_LRE}:{P_LRE+3}], s[0:1], 8")
    A(f"s_load_dwordx4 s[{P_LDT}:{P_LDT+3}], s[0:1], 56")
A(f"""
v_lshrrev_b32 v5, 6, v0
v_and_b32 v{vLANE}, 63, v0
v_readfirstlane_b32 s{sWAVE}, v5
v_lshlrev_b32 v{vL16x}, 4, v{vLANE}
v_bfe_u32 v{vH}, v0, 5, 1
v_and_b32 v{vL31}, 31, v0
v_mov_b32 v0, {CNT}
""")
srd_words([R_XB])
A(f"""
""")
if OPT["map84"]:
    A(f"""
    s_bfe_u32 s{sC}, s2, 0x20001
    s_lshl_b32 s{sC}, s{sC}, 3
    s_bfe_u32 s{sT0}, s2, 0x30003
    s_add_u32 s{sC}, s{sC}, s{sT0}
    s_and_b32 s{sG}, s2, 1
    s_lshl_b32 s{sG}, s{sG}, 2
    s_lshr_b32 s{sT0}, s2, 6
    s_add_u32 s{sG}, s{sG}, s{sT0}
    s_add_u32 s{sROT}, s{sC}, s{sG}
    s_and_b32 s{sROT}, s{sROT}, 3
    """)
else:
    A(f"""
    s_and_b32 s{sC}, s2, 7
    s_lshl_b32 s{sC}, s{sC}, 2
    s_bfe_u32 s{sROT}, s2, 0x20003
    s_add_u32 s{sC}, s{sC}, s{sROT}
    s_lshr_b32 s{sG}, s2, 5
    """)
A(f"""
s_lshl_b32 s{sT2}, s{sC}, 16
s_sub_u32 s{sSW}, s{sWAVE}, 4
s_cbranch_scc1 L_A0
{"" if OPT["ptop"] else f"s_load_dwordx4 s[{P_LRE}:{P_LRE+3}], s[0:1], 8"}
{"" if OPT["ptop"] else f"s_load_dwordx4 s[{P_LDT}:{P_LDT+3}], s[0:1], 56"}
s_setprio 3
v_mov_b32 v20, 0
v_mov_b32 v21, 0
s_lshl_b32 s{sT0}, s{sG}, 6
s_lshl_b32 s{sT1}, s{sSW}, 4
s_and_b32 s{sT1}, s{sT1}, 32
s_add_u32 s{sT0}, s{sT0}, s{sT1}
v_add_lshl_u32 v{vP2}, s{sT0}, v{vL31}, 1
ds_write2_b64 v0, v[20:21], v[20:21] offset0:0 offset1:1
ds_write2_b64 v0, v[20:21], v[20:21] offset0:2 offset1:3
s_mov_b32 s{R_WKV+2}, {sizes[R_WKV]}
s_mov_b32 s{R_WKV+3}, 0x20000
s_lshl_b32 s{sT1}, s{sSW}, 12
s_lshl_b32 s{sT5}, s{sG}, 13
s_and_b32 s{sT5}, s{sT5}, 0xc000
s_add_u32 s{sT5}, s{sT5}, s{sT1}
s_mul_i32 s{sT0}, s{sSW}, 4160
s_add_u32 m0, s{sT1}, {WKV}
s_bitcmp1_b32 s{sG}, 0
s_waitcnt lgkmcnt(0)
s_cselect_b32 s{R_WKV}, s{P_WV}, s{R_WKV}
s_cselect_b32 s{R_WKV+1}, s{P_WV+1}, s{R_WKV+1}
s_add_u32 s{R_XB}, s{R_XB}, s{sT2}
s_addc_u32 s{R_XB+1}, s{R_XB+1}, 0
""")
for i in range(4):
    A(f"buffer_load_dwordx4 v{vL16x}, {srd(R_WKV)}, s{sT1} offen offset:{i*1024} lds")
for i in range(4):
    A(f"s_add_u32 m0, s{sT0}, {KVX + 16*i}")
    A(f"s_load_dword s{sEP}, s[{R_WS}:{R_WS+1}], 0" if i == 0 else "s_nop 0")
    A(f"buffer_load_dwordx4 v{vL16x}, {srd(R_XB)}, s{sT5} offen offset:{i*1024} lds")
A(f"""
s_barrier
global_load_ushort v{PRM}, v{vP2}, s[{P_LRE}:{P_LRE+1}]
global_load_ushort v{PRM+1}, v{vP2}, s[{P_LIM}:{P_LIM+1}]
global_load_ushort v{PRM+2}, v{vP2}, s[{P_LDT}:{P_LDT+1}]
global_load_ushort v{PRM+3}, v{vP2}, s[{P_DSK}:{P_DSK+1}]
s_cmp_eq_u32 s{sSW}, 1
s_cbranch_scc1 L_qx
s_cmp_eq_u32 s{sSW}, 2
s_cbranch_scc1 L_qw
s_branch L_S1
L_A0:
""")
def common_scalars():
    kload([(R_OUT, 112)])
    srd_words([R_WS, R_OUT])
    A(f"""
    s_and_b32 s{sTW}, s{sWAVE}, 1
    s_bfe_u32 s{sCW}, s{sWAVE}, 0x10001
    s_lshl_b32 s{sID}, s{sC}, 3
    s_add_u32 s{sID}, s{sID}, s{sG}
    s_mov_b32 s{sDONE}, 0
    s_lshl_b32 s{sOB}, s{sC}, 1
    s_add_u32 s{sOB}, s{sOB}, s{sTW}
    s_lshl_b32 s{sOB}, s{sOB}, 15
    s_add_u32 s{sOB}, s{sOB}, {OB}
    """)
def common_after_wait(tag=True):
    A(f"""
    s_lshl_b32 s{sT0}, s{sC}, 18
    s_add_u32 s{R_OUT}, s{R_OUT}, s{sT0}
    s_addc_u32 s{R_OUT+1}, s{R_OUT+1}, 0
    """)
    if tag: A(f"""
    s_mul_i32 s{sTAG}, s{sEP}, 0x9E3779B1
    s_add_u32 s{sTAG}, s{sTAG}, 0x7F4A7C15
    """)
vWQo, vXQo = 119, 117
A(f"""
v_lshrrev_b32 v6, 4, v{vLANE}
v_and_b32 v7, 15, v{vLANE}
v_lshlrev_b32 v7, 4, v7
v_lshl_add_u32 v{vXQo}, v6, 14, v7
s_mul_i32 s{sT6}, s{sWAVE}, 4160
s_lshl_b32 s{sT7}, s{sWAVE}, 12
""")
srd_words([R_WQ])
wq_voffset(vWQo, 6, 7, 10)
A(f"""
s_lshl_b32 s{sT0}, s{sG}, 7
s_waitcnt lgkmcnt(0)
s_add_u32 s{R_XB}, s{R_XB}, s{sT2}
s_addc_u32 s{R_XB+1}, s{R_XB+1}, 0
s_add_u32 s{R_WQ}, s{R_WQ}, s{sT0}
s_addc_u32 s{R_WQ+1}, s{R_WQ+1}, 0
s_load_dword s{sEP}, s[{R_WS}:{R_WS+1}], 0
s_barrier
""")
stamp(1, HST)
def x_dma(s):
    A(f"""
    s_add_u32 s{sT3}, s{sROT}, {s}
    s_and_b32 s{sT3}, s{sT3}, 3
    s_lshl_b32 s{sT4}, s{sT3}, 8
    s_add_u32 s{sT4}, s{sT4}, s{sT7}
    """)
    for i in range(4):
        A(f"""
        s_add_u32 m0, s{sT6}, {XQ + s*16640 + i*16}
        s_nop 0
        buffer_load_dwordx4 v{vXQo}, {srd(R_XB)}, s{sT4} offen offset:{i*1024} lds
        """)
def wq_dma(s):
    A(f"""
    s_lshl_b32 s{sT3}, s{sT3}, 4
    s_add_u32 s{sT3}, s{sT3}, s{sWAVE}
    s_lshl_b32 s{sT3}, s{sT3}, 13
    s_lshl_b32 s{sT2}, s{sWAVE}, 10
    """)
    for i in range(4):
        A(f"""
        s_add_u32 m0, s{sT2}, {WQ + s*16384 + i*4096}
        s_add_u32 s{sT1}, s{sT3}, {i*32768}
        buffer_load_dwordx4 v{vWQo}, {srd(R_WQ)}, s{sT1} offen lds
        """)
for s in range(OPT["qpre"]):
    x_dma(s); wq_dma(s)
stamp(2 if HST else 1)
A("s_branch L_A1")
A.label("L_S1")
SSEC[0] = True
if OPT["pfc"] == 2:
    A(f"""
    s_cmp_lg_u32 s{sWAVE}, 7
    s_cbranch_scc1 L_nopfcode
    s_getpc_b64 s[{sT0}:{sT1}]
    L_pc:
    s_sub_u32 s{sT0}, s{sT0}, L_pc-{NAME}_kernel
    s_subb_u32 s{sT1}, s{sT1}, 0
    s_lshl_b32 s{sLOOP}, s{sROT}, 13
    v_lshlrev_b32 v16, 7, v{vLANE}
    v_add_u32 v16, s{sLOOP}, v16
    v_min_u32 v16, L_hot_end-{NAME}_kernel-4, v16
    global_load_dword v{vDUM}, v16, s[{sT0}:{sT1}]
    L_nopfcode:
    """)
A(f"""
v_mov_b32 v{vONE}, 1
s_lshl_b32 s{sID}, s{sC}, 3
s_add_u32 s{sID}, s{sID}, s{sG}
s_mov_b32 s{R_WS+2}, {WS_SIZE}
s_mov_b32 s{R_WS+3}, 0x20000
v_lshrrev_b32 v20, 4, v{vLANE}
v_and_b32 v21, 15, v{vLANE}
v_mul_u32_u24 v9, 1040, v21
v_lshl_add_u32 v9, v20, 4, v9
v_add_u32 v9, {KVX}, v9
v_lshrrev_b32 v10, 2, v21
v_lshl_add_u32 v10, v20, 3, v10
v_lshlrev_b32 v10, 5, v10
v_and_b32 v11, 3, v21
v_lshl_add_u32 v10, v11, 3, v10
v_add_u32 v10, {WKV}, v10
s_lshl_b32 s{sT6}, s{sC}, 1
s_lshr_b32 s{sT1}, s{sG}, 2
s_add_u32 s{sT6}, s{sT6}, s{sT1}
s_lshl_b32 s{sT6}, s{sT6}, 12
s_add_u32 s{sT6}, s{sT6}, {KVT}
s_bfe_u32 s{sT7}, s{sG}, 0x10001
s_waitcnt lgkmcnt(0)
s_mul_i32 s{sTAG}, s{sEP}, 0x9E3779B1
s_add_u32 s{sTAG}, s{sTAG}, 0x7F4A7C15
s_waitcnt vmcnt(4)
""")
stamp(6, HST)
cnt_add(vCNT, vONE)
A(f"""
s_cmp_lg_u32 s{sSW}, 0
s_cbranch_scc1 L_S2a
""")
cnt_wait(vCNT, vTMP, 4)
stamp(1)
def kv_rd(k):
    f = 32 + 8*(k % 6)
    A(f"ds_read_b64_tr_b16 v[{f}:{f+1}], v10 offset:{k*1024}")
    A(f"ds_read_b64_tr_b16 v[{f+2}:{f+3}], v10 offset:{k*1024+128}")
    A(f"ds_read_b128 v[{f+4}:{f+7}], v9 offset:{k*64}")
for k in range(4): kv_rd(k)
A(f"s_bitcmp1_b32 s{sG}, 0")
A("s_cbranch_scc1 L_kv_v")
def kv_chain(isv_):
    for k in range(16):
        f = 32 + 8*(k % 6)
        if k + 4 < 16: kv_rd(k + 4)
        issued = min(16, k + 5)
        A(f"s_waitcnt lgkmcnt({3*(issued - k - 1)})")
        c = "0" if k == 0 else "v[28:31]"
        a, b = (f"v[{f}:{f+3}]", f"v[{f+4}:{f+7}]") if not isv_ else (f"v[{f+4}:{f+7}]", f"v[{f}:{f+3}]")
        A(f"v_mfma_f32_16x16x32_bf16 v[28:31], {a}, {b}, {c}")
kv_chain(False)
if not OPT["q2w"]: cnt_add(vCNT, vONE)
else: A.nop(3)
A(f"s_mov_b32 s{sT0}, {f2u(0.25 * math.log2(math.e))}")
A(f"""
s_lshl_b32 s{sT7}, s{sT7}, 8
s_add_u32 s{sT6}, s{sT6}, s{sT7}
v_and_b32 v22, 1, v20
v_lshlrev_b32 v22, 9, v22
v_lshl_add_u32 v22, v21, 4, v22
v_lshrrev_b32 v23, 1, v20
v_lshl_add_u32 v22, v23, 3, v22
v_cvt_pk_bf16_f32 v26, v28, v29
v_cvt_pk_bf16_f32 v27, v30, v31
v_mul_f32 v28, s{sT0}, v28
v_mul_f32 v29, s{sT0}, v29
v_mul_f32 v30, s{sT0}, v30
v_mul_f32 v31, s{sT0}, v31
v_cvt_pk_bf16_f32 v24, v28, v29
v_cvt_pk_bf16_f32 v25, v30, v31
buffer_store_dwordx2 v[24:25], v22, {srd(R_WS)}, s{sT6} offen sc1
buffer_store_dwordx2 v[26:27], v22, {srd(R_WS)}, s{sT6} offen offset:2560 sc1
""")
if OPT["q2w"]: cnt_add(vCNT, vONE)
A(f"""
v_mul_f32 v16, v28, v28
v_fmac_f32 v16, v29, v29
v_fmac_f32 v16, v30, v30
v_fmac_f32 v16, v31, v31
v_mov_b32 v17, v16
s_nop 1
v_permlane16_swap_b32 v17, v16
v_add_f32 v16, v16, v17
v_mov_b32 v17, v16
s_nop 1
v_permlane32_swap_b32 v17, v16
v_add_f32 v17, v16, v17
""")
wave_max(17, 18)
A("s_branch L_kv_pub")
A.label("L_kv_v")
kv_chain(True)
if not OPT["q2w"]: cnt_add(vCNT, vONE)
A(f"""
s_mul_i32 s{sT7}, s{sT7}, 544
s_add_u32 s{sT6}, s{sT6}, s{sT7}
s_add_u32 s{sT6}, s{sT6}, 1024
v_lshrrev_b32 v22, 1, v20
v_mul_u32_u24 v22, 272, v22
v_and_b32 v23, 1, v20
v_lshl_add_u32 v22, v23, 3, v22
v_lshl_add_u32 v23, v21, 4, v22
v_cvt_pk_bf16_f32 v24, v28, v29
v_cvt_pk_bf16_f32 v25, v30, v31
buffer_store_dwordx2 v[24:25], v23, {srd(R_WS)}, s{sT6} offen sc1
v_mov_b32 v26, 0x3f803f80
v_mov_b32 v27, 0x3f803f80
s_mov_b32 exec_lo, 0x00010001
s_mov_b32 exec_hi, 0x00010001
buffer_store_dwordx2 v[26:27], v22, {srd(R_WS)}, s{sT6} offen offset:256 sc1
s_mov_b64 exec, -1
v_mov_b32 v17, 0
""")
if OPT["q2w"]: cnt_add(vCNT, vONE)
A.label("L_kv_pub")
A(f"""
s_lshl_b32 s{sT0}, s{sID}, 7
s_add_u32 s{sT0}, s{sT0}, {FL1}
v_mov_b32 v16, s{sTAG}
v_mov_b32 v9, 0
s_waitcnt vmcnt(0)
s_mov_b64 exec, 1
buffer_store_dwordx2 v[16:17], v9, {srd(R_WS)}, s{sT0} offen sc1
ds_add_u32 v{vCNT}, v{vONE}
s_mov_b64 exec, -1
""")
stamp(2)
A("s_branch L_S2")
def q_head():
    A(f"""
    v_mov_b32 v{vONE}, 1
    s_lshl_b32 s{sID}, s{sC}, 3
    s_add_u32 s{sID}, s{sID}, s{sG}
    s_waitcnt lgkmcnt(0)
    s_mul_i32 s{sTAG}, s{sEP}, 0x9E3779B1
    s_add_u32 s{sTAG}, s{sTAG}, 0x7F4A7C15
    s_waitcnt vmcnt(4)
    """)
    cnt_add(vCNT, vONE)
    prio(0)
def q_sig():
    A("s_waitcnt vmcnt(16)"); cnt_add(vCNT, vONE, 24)
    A("s_waitcnt vmcnt(0)"); cnt_add(vCNT, vONE, 28)
    prio(3)
    A("s_branch L_S2")
A.label("L_qx")
A(f"""
v_lshrrev_b32 v20, 4, v{vLANE}
v_and_b32 v21, 15, v{vLANE}
v_lshlrev_b32 v22, 4, v21
v_lshl_add_u32 v22, v20, 14, v22
""")
q_head()
for s_ in (2, 3):
    if s_ == 3 - OPT['q2w']: cnt_wait(vCNT, vTMP, 5)
    A(f"""
    s_add_u32 s{sT3}, s{sROT}, {s_}
    s_and_b32 s{sT3}, s{sT3}, 3
    s_lshl_b32 s{sT3}, s{sT3}, 8
    """)
    for i in range(16):
        A(f"s_mov_b32 m0, {XQ + s_*16640 + i*1040 - (i & 3)*1024}")
        A(f"s_add_u32 s{sT3}, s{sT3}, 4096" if (i & 3 == 0 and i) else "s_nop 0")
        A(f"buffer_load_dwordx4 v22, {srd(R_XB)}, s{sT3} offen offset:{(i & 3)*1024} lds")
q_sig()
A.label("L_qw")
srd_words([R_WQ])
wq_voffset(22, 23, 24, 25)
A(f"""
s_lshl_b32 s{sT0}, s{sG}, 7
s_add_u32 s{R_WQ}, s{R_WQ}, s{sT0}
s_addc_u32 s{R_WQ+1}, s{R_WQ+1}, 0
""")
q_head()
for s_ in (2, 3):
    if s_ == 3 - OPT['q2w']: cnt_wait(vCNT, vTMP, 5)
    A(f"""
    s_add_u32 s{sT3}, s{sROT}, {s_}
    s_and_b32 s{sT3}, s{sT3}, 3
    s_lshl_b32 s{sT3}, s{sT3}, 17
    """)
    for i in range(16):
        A(f"s_mov_b32 m0, {WQ + s_*16384 + i*1024}")
        A(f"s_add_u32 s{sT3}, s{sT3}, 8192" if i else "s_nop 0")
        A(f"buffer_load_dwordx4 v22, {srd(R_WQ)}, s{sT3} offen lds")
q_sig()
SSEC[0] = False
A.label("L_A1")
for i in range(4): A(f"v_mov_b32 v{vZ+i}, 0")
vXa, vWa, vFl, vQw, vQr, vAone = 8, 9, 10, 14, 15, vIDX
common_scalars()
for ct in range(8):
    A(f"v_mfma_f32_32x32x16_bf16 a[{16*ct}:{16*ct+15}], v[{vZ}:{vZ+3}], v[{vZ}:{vZ+3}], 0")
A(f"""
v_and_b32 v6, 15, v{vL31}
v_mul_u32_u24 v{vXa}, 1040, v6
v_lshl_add_u32 v{vXa}, v{vH}, 4, v{vXa}
v_lshrrev_b32 v6, 4, v{vL31}
v_lshl_add_u32 v{vXa}, v6, 8, v{vXa}
s_lshl_b32 s{sT0}, s{sTW}, 9
v_add_u32 v{vXa}, s{sT0}, v{vXa}
v_bfe_u32 v6, v{vLANE}, 2, 2
v_lshl_add_u32 v6, v{vH}, 3, v6
v_bfe_u32 v7, v{vLANE}, 4, 1
v_and_b32 v11, 3, v{vLANE}
v_lshlrev_b32 v11, 3, v11
v_lshl_add_u32 v11, v7, 5, v11
s_lshl_b32 s{sT0}, s{sCW}, 6
v_add_u32 v11, s{sT0}, v11
v_bfe_u32 v7, v{vLANE}, 3, 1
v_lshlrev_b32 v7, 6, v7
v_xor_b32 v11, v11, v7
v_lshl_add_u32 v{vWa}, v6, 7, v11
v_add_u32 v{vWa}, {WQ}, v{vWa}
s_lshl_b32 s{sT0}, s{sWAVE}, 13
s_add_u32 s{sT0}, s{sT0}, {FL1}
v_lshlrev_b32 v{vFl}, 7, v{vLANE}
v_add_u32 v{vFl}, s{sT0}, v{vFl}
s_lshl_b32 s{sT0}, s{sWAVE}, 16
s_add_u32 s{sT1}, s{sT0}, {KVT}
v_add_u32 v{vKt[0]}, s{sT1}, v{vL16x}
s_add_u32 s{sT1}, s{sT1}, 1024
v_lshlrev_b32 v13, 4, v{vL31}
v_mul_u32_u24 v14, 272, v{vH}
v_add3_u32 v13, v13, v14, s{sT1}
v_cmp_lt_u32 vcc, 16, v{vL31}
v_mov_b32 v14, 0x7ff00000
v_mov_b32 v{vIDX}, 0xdddddddd
v_cndmask_b32 v{vVt[0]}, v13, v14, vcc
s_lshl_b32 s{sKOFF}, s{sROT}, 14
s_lshl_b32 s{sT0}, s{sCW}, 2
s_add_u32 s{sT0}, s{sT0}, s{sTW}
s_lshl_b32 s{sT0}, s{sT0}, 10
s_add_u32 s{sT0}, s{sT0}, {QX}
v_add_u32 v{vQw}, s{sT0}, v{vL16x}
v_add_u32 v{vQr}, {QX}, v{vL16x}
s_waitcnt lgkmcnt(0)
""")
common_after_wait()
QP = OPT["qpre"]
sKVOK = sATG
vFG = 12
def ld_k(b, t, so=sKOFF):
    A(f"buffer_load_dwordx4 v[{KV[b]}:{KV[b]+3}], v{vKt[t]}, {srd(R_WS)}, s{so} offen sc1")
def ld_v(b, j, t, so=sKOFF):
    A(f"buffer_load_dwordx4 v[{KV[b]+4+4*j}:{KV[b]+7+4*j}], v{vVt[t]}, {srd(R_WS)}, s{so} offen offset:{544*j} sc1")
def kv_first():
    for b in range(OPT["kv0"]):
        A(f"s_add_u32 s{sT1}, s{sKOFF}, {b*KVS}")
        ld_k(b, 0, sT1); ld_v(b, 0, 0, sT1); ld_v(b, 1, 0, sT1)
    A(f"ds_max_f32 v{vCNT}, v{vFG+1} offset:{KM - CNT}")
    if OPT["kv0"] == 4 or OPT["g0"]: cnt_add(vCNT, vAone, 12)
def kv_try(tag):
    A(f"""
    v_cmp_ne_u32 vcc, s{sTAG}, v{vFG}
    s_cbranch_vccnz L_kvlate{tag}
    s_mov_b32 s{sKVOK}, 1
    """)
    kv_first()
    A(f"s_branch L_kvq{tag}")
    A.label(f"L_kvlate{tag}")
    flag_ld()
    A.label(f"L_kvq{tag}")
def flag_ld(): A(f"buffer_load_dwordx2 v[{vFG}:{vFG+1}], v{vFl}, {srd(R_WS)}, 0 offen sc1")
def q_rd(k):
    s_, kk = divmod(k, 8)
    f = 32 + 8*(k % 6)
    A(f"ds_read_b64_tr_b16 v[{f}:{f+1}], v{vWa} offset:{s_*16384 + kk*2048}")
    A(f"ds_read_b64_tr_b16 v[{f+2}:{f+3}], v{vWa} offset:{s_*16384 + kk*2048 + 512}")
    A(f"ds_read_b128 v[{f+4}:{f+7}], v{vXa} offset:{XQ + s_*16640 + kk*32}")
A(f"s_mov_b32 s{sKVOK}, 0")
A("s_waitcnt vmcnt(8)")
stamp(3, HST)
cnt_add(vCNT, vAone, 4)
cnt_wait(vCNT, 11, 4, 4)
for k in range(4): q_rd(k)
done = 0
for k in range(32):
    if k == OPT["q1a"]:
        A("s_waitcnt vmcnt(0)")
        cnt_add(vCNT, vAone, 4)
    if k == OPT["p1k"]: flag_ld()
    if k == OPT["p1c"]:
        A("s_waitcnt vmcnt(0)")
        kv_try("a")
    if k + 4 < 32:
        if (k + 4) % 8 == 0:
            s_ = (k + 4) // 8
            if s_ == 1: cnt_wait(vCNT, 11, 8, 4)
            else: cnt_wait(vCNT, 11, 2, 24 + 4*(s_ - 2))
            stamp(3 + s_, HST)
            done = k + 4
        q_rd(k + 4)
    if k >= done:
        A(f"s_waitcnt lgkmcnt({3*(min(32, k + 5) - k - 1)})")
    c = "0" if k == 0 else f"v[{S0}:{S0+15}]"
    f = 32 + 8*(k % 6)
    A(f"v_mfma_f32_32x32x16_bf16 v[{S0}:{S0+15}], v[{f}:{f+3}], v[{f+4}:{f+7}], {c}")
A(f"""
s_mul_i32 s{sT6}, s{sWAVE}, {3*CB_T}
s_add_u32 s{sT6}, s{sT6}, {CB}
v_add_u32 v11, s{sT6}, v{vL16x}
s_mov_b32 s{sLOOP}, 4
""")
A.nop(8)
for i in range(8):
    A(f"v_cvt_pk_bf16_f32 v{32+i}, v{S0+2*i}, v{S0+2*i+1}")
    if i == 3: A(f"ds_write_b128 v{vQw}, v[32:35]")
A(f"""
ds_write_b128 v{vQw}, v[36:39] offset:2048
s_waitcnt lgkmcnt(0)
""")
cnt_add(vCNT, vAone, 4)
for hd in range(2):
    A(f"v_mul_f32 v{32+hd}, v{S0+8*hd}, v{S0+8*hd}")
    for i in range(1, 8):
        A(f"v_fmac_f32 v{32+hd}, v{S0+8*hd+i}, v{S0+8*hd+i}")
A(f"""
v_mov_b32 v34, v32
v_mov_b32 v35, v33
v_add_u32 v{vKt[1]}, {KVS}, v{vKt[0]}
v_add_u32 v{vKt[2]}, {2*KVS}, v{vKt[0]}
v_permlane32_swap_b32 v34, v32
v_permlane32_swap_b32 v35, v33
v_add_f32 v32, v32, v34
v_add_f32 v33, v33, v35
v_max_f32 v32, v32, v33
v_add_u32 v{vVt[2]}, {2*KVS}, v{vVt[0]}
ds_max_f32 v{vCNT}, v32 offset:{QM - CNT}
""")
for pr in range(4):
    A(f"s_add_u32 s{sT0}, s{sWAVE}, {pr + 1}")
    A(f"s_and_b32 s{sT0}, s{sT0}, 3")
    A(f"s_lshl_b32 s{sT0}, s{sT0}, 11")
    A(f"v_add_u32 v{36+pr}, s{sT0}, v{vQr}")
A(f"v_add_u32 v{vVt[3]}, {3*KVS}, v{vVt[0]}")
if OPT["p1c"] < 32:
    A(f"s_cmp_lg_u32 s{sKVOK}, 0")
    A("s_cbranch_scc1 L_kvqb")
A("s_waitcnt vmcnt(0)")
kv_try("b")
cnt_wait(vCNT, 35, 12, 4)
stamp(7 if HST else 2)
for pr in range(4):
    A(f"ds_read_b128 v[{QF+8*pr}:{QF+8*pr+3}], v{36+pr}")
    A(f"ds_read_b128 v[{QF+8*pr+4}:{QF+8*pr+7}], v{36+pr} offset:1024")
A(f"""
s_cmp_lg_u32 s{sKVOK}, 0
s_cbranch_scc1 L_kvgo
s_waitcnt vmcnt(0)
v_cmp_ne_u32 vcc, s{sTAG}, v{vFG}
s_cbranch_vccz L_kvok
""")
poll_flags(vFl, vFG, 2, sleep=OPT['fsl'])
A.label("L_kvok")
kv_first()
A.label("L_kvgo")
if OPT["pad"] and OPT["padat"] == 1: padto()
stamp(3, not HST)
A(f"""
s_waitcnt vmcnt({3*OPT['kv0'] - 1}) lgkmcnt(7)
v_mfma_f32_32x32x16_bf16 v[{S0}:{S0+15}], v[{KV[0]}:{KV[0]+3}], v[{QF}:{QF+3}], 0
v_add_u32 v{vKt[3]}, {3*KVS}, v{vKt[0]}
s_waitcnt vmcnt({3*OPT['kv0'] - 3}) lgkmcnt(0)
v_add_u32 v{vVt[1]}, {KVS}, v{vVt[0]}
v_lshlrev_b32 v13, 2, v{vLANE}
v_add_u32 v13, s{sT6}, v13
""")
A.nop(7)
SB = [S0, S1]
LASTSYNC = 8
CBASE = 6
def part_write(ct):
    A(f"ds_write_b128 v11, a[{16*ct}:{16*ct+3}] offset:{cb_off(ct)}")
    A(f"ds_write_b128 v11, a[{16*ct+4}:{16*ct+7}] offset:{cb_off(ct) + 1024}")
    A(f"ds_write_b32 v13, a{16*ct+8} offset:{cb_off(ct) + 2048}")
PD = [[32, 16, 24, 80], [40, 88, 96, 104]]
PL = [[120, 112, 113, 114], [122, 115, 116, 117]]
def comb_addr(k):
    if k < 3:
        A(f"""
        s_add_u32 s{sT0}, s{sWAVE}, {k + 1}
        s_and_b32 s{sT0}, s{sT0}, 3
        s_mul_i32 s{sT0}, s{sT0}, {3*CB_T}
        s_add_u32 s{sT0}, s{sT0}, {CB}
        v_add_u32 v{8+k}, s{sT0}, v{vL16x}
        v_lshl_add_u32 v{[12, 14, 15][k]}, v{vL31}, 2, s{sT0}
        """)
    else:
        A(f"""
        s_lshl_b32 s{sT1}, s{sG}, 2
        s_add_u32 s{sT1}, s{sT1}, s{sWAVE}
        s_lshl_b32 s{sT1}, s{sT1}, 10
        s_lshl_b32 s{sT2}, s{sC}, 16
        s_add_u32 s{sT1}, s{sT1}, s{sT2}
        s_add_u32 s{sT1}, s{sT1}, {OB}
        s_add_u32 s{sT2}, s{sT1}, 32768
        s_waitcnt vmcnt(0)
        """)
def comb_reads(u):
    if u == 0: A(f"ds_read_b64 v[118:119], v0 offset:{QM - CNT}")
    for k in range(3):
        A(f"ds_read_b32 v{PL[u][k+1]}, v{[12, 14, 15][k]} offset:{cb_off(2*(2-k) + u) + 2048}")
    for k in range(3):
        A(f"ds_read_b128 v[{PD[u][k+1]}:{PD[u][k+1]+3}], v{8+k} offset:{cb_off(2*(2-k) + u)}")
        A(f"ds_read_b128 v[{PD[u][k+1]+4}:{PD[u][k+1]+7}], v{8+k} offset:{cb_off(2*(2-k) + u) + 1024}")
    if u == 0: A("s_waitcnt lgkmcnt(6)")
def period(kb, ct, mode):
    cur = SB[ct & 1]; oth = SB[(ct + 1) & 1]
    pct = (ct - 1) % 8
    pkb = kb if ct > 0 else (kb - 1) % 4
    nct = (ct + 1) % 8
    nkb = kb if ct < 7 else (kb + 1) % 4
    ld = ct == 0 and mode == "loop" and not OPT["noKV"]
    early = mode == "last" and 1 <= ct <= 6
    extra = {}
    if mode == "first" and OPT["kv0"] < 4:
        lds_ = []
        for b in range(OPT["kv0"], 4):
            lds_ += [lambda b=b: ld_k(b, b), lambda b=b: ld_v(b, 0, b), lambda b=b: ld_v(b, 1, b)]
        for n, f_ in enumerate(lds_): extra[[1, 2, 3, 6, 7, 11, 12, 13, 14][n]] = f_
    def e(i):
        A(f"v_exp_f32 v{cur+i}, v{cur+i}")
        if i in extra: extra[i]()
        if i == 15 and extra and not OPT["g0"]: cnt_add(vCNT, vAone, 12)
    e(0); e(1)
    if mode != "first":
        A(f"v_smfmac_f32_32x32x32_bf16 a[{16*pct}:{16*pct+15}], v[{KV[pkb]+8}:{KV[pkb]+11}], v[{oth+8}:{oth+15}], v{vIDX}")
    e(2)
    if mode == "last" and ct in (0, 3): A(f"ds_read_b32 v12, v{vCNT} offset:{28 if ct == 0 else 8}")
    if (mode, ct) == ("last", 7):
        A("s_waitcnt lgkmcnt(0)")
        cnt_add(vCNT, vIDX, 4)
    e(3)
    if ct == 7 and mode == "loop": A(f"s_waitcnt vmcnt(6)")
    e(4)
    if (mode, ct) != ("last", 7):
        A(f"v_mfma_f32_32x32x16_bf16 v[{oth}:{oth+15}], v[{KV[nkb]}:{KV[nkb]+3}], v[{QF+4*nct}:{QF+4*nct+3}], 0")
    for i in range(5, 10): e(i)
    A(f"v_smfmac_f32_32x32x32_bf16 a[{16*ct}:{16*ct+15}], v[{KV[kb]+4}:{KV[kb]+7}], v[{cur}:{cur+7}], v{vIDX}")
    if mode == "last" and ct in (4, 5): comb_addr(2*(ct - 4)); comb_addr(2*(ct - 4) + 1)
    if (mode, ct) == ("last", 7):
        cnt_wait(vCNT, 16, 16, 4)
        comb_reads(0)
    e(10); e(11)
    if (mode, ct) == ("last", 7): comb_reads(1)
    e(12)
    if ld: ld_k(pkb, pkb)
    if early: A(f"ds_write_b128 v11, a[{16*(ct-1)}:{16*(ct-1)+3}] offset:{cb_off(ct-1)}")
    e(13)
    if ld: ld_v(pkb, 0, pkb)
    if (kb, ct, mode) == (0, 1, "loop"): A(f"s_add_u32 s{sKOFF}, s{sKOFF}, {4*KVS}")
    if (kb, ct, mode) == (2, 7, "loop"): A(f"s_sub_u32 s{sLOOP}, s{sLOOP}, 1")
    if early: A(f"ds_write_b128 v11, a[{16*(ct-1)+4}:{16*(ct-1)+7}] offset:{cb_off(ct-1) + 1024}")
    e(14)
    if ld: ld_v(pkb, 1, pkb)
    if (kb, ct, mode) == (0, 1, "loop"): A(f"s_and_b32 s{sKOFF}, s{sKOFF}, 0xffff")
    if (kb, ct, mode) == (2, 7, "loop"): A(f"s_cmp_eq_u32 s{sLOOP}, 0")
    if early: A(f"ds_write_b32 v13, a{16*(ct-1)+8} offset:{cb_off(ct-1) + 2048}")
    e(15)
    if mode == "last" and ct == 8 - OPT["trig"] - 1: cnt_add(vCNT, vIDX, 12)
    if mode == "last" and ct in (0, 3):
        tgt = 6 if ct == 0 else 4
        A(f"""
        s_waitcnt lgkmcnt(0)
        v_readfirstlane_b32 s{sT0}, v12
        s_cmp_ge_u32 s{sT0}, {tgt if not (OPT["noS"] or OPT["nochk"]) else 0}
        s_cbranch_scc1 L_sfree{ct}
        """)
        cnt_wait(vCNT, 12, tgt, 28 if ct == 0 else 8, sleep=2)
        A.label(f"L_sfree{ct}")
if OPT["cyc"]: A(f"s_memtime s[{sST+10}:{sST+11}]")
period(0, 0, "first")
A("s_branch L_attn1")
A(".p2align 6")
A.label("L_attn")
loop_start = len(A.lines)
for kb in (3, 0, 1, 2):
    for ct in range(8):
        if (kb, ct) == (0, 1): A.label("L_attn1")
        period(kb, ct, "loop")
loop_end = len(A.lines)
A("s_cbranch_scc0 L_attn")
for ct in range(8):
    period(3, ct, "last")
A(f"""
s_mov_b32 s{sATG}, 16
s_nop 0
v_smfmac_f32_32x32x32_bf16 a[112:127], v[{KV[3]+8}:{KV[3]+11}], v[{S1+8}:{S1+15}], v{vIDX}
""")
stamp(4, not HST)
if OPT["cyc"]: A(f"s_memtime s[{sST+12}:{sST+13}]")
if OPT["pad"] and OPT["padat"] == 2: padto()
A.label("L_comb2")
if OPT["aprio"]: prio(OPT["aprio"])
def astamp(i):
    if OPT["cyc"] or HST or not (OPT["stamps"] or OPT["enc"]): return
    stamp(i)
astamp(5)
A("s_waitcnt lgkmcnt(9)")
A(f"""
v_accvgpr_read_b32 v120, a{16*6+8}
v_accvgpr_read_b32 v121, a{16*6+8}
v_mul_f32 v118, v118, v119
v_add_f32 v112, v112, v113
v_permlane32_swap_b32 v120, v121
v_cmp_nge_f32 vcc, {f2u(-1.0 if OPT['force_slow'] else 1000.0)}, v118
v_add_f32 v120, v120, v114
v_add_f32 v120, v120, v112
v_rcp_f32 v120, v120
s_cbranch_vccnz L_slow
L_fast:
""")
def comb(u, soff):
    d = PD[u]
    if OPT["arch"]: d = [128 + 16*(6+u)] + d[1:]
    else:
        for i in range(8): A(f"v_accvgpr_read_b32 v{d[0]+i}, a{16*(6+u)+i}")
    if u == 1:
        A(f"""
        v_accvgpr_read_b32 v122, a{16*7+8}
        v_accvgpr_read_b32 v123, a{16*7+8}
        s_waitcnt lgkmcnt(2)
        v_add_f32 v115, v115, v116
        v_permlane32_swap_b32 v122, v123
        v_add_f32 v115, v115, v117
        v_add_f32 v122, v122, v115
        v_rcp_f32 v122, v122
        """)
    for i in range(0, 8, 2): A(f"v_pk_add_f32 {p2(d[1]+i)}, {p2(d[1]+i)}, {p2(d[2]+i)}")
    if u == 1:
        A("s_waitcnt lgkmcnt(0)")
        if OPT["oack"] == 2: cnt_add(vCNT, vIDX, 12)
    for i in range(0, 8, 2): A(f"v_pk_add_f32 {p2(d[0]+i)}, {p2(d[0]+i)}, {p2(d[3]+i)}")
    for i in range(0, 8, 2): A(f"v_pk_add_f32 {p2(d[0]+i)}, {p2(d[0]+i)}, {p2(d[1]+i)}")
    for i in range(0, 8, 2):
        A(f"v_pk_mul_f32 {p2(d[0]+i)}, {p2(d[0]+i)}, {p2(PL[u][0])} op_sel_hi:[1,0]")
    for i in range(0, 8, 2):
        A(f"v_cvt_pk_bf16_f32 v{d[1]+i//2}, v{d[0]+i}, v{d[0]+i+1}")
    A(f"buffer_store_dwordx4 v[{d[1]}:{d[1]+3}], v{vL16x}, {srd(R_WS)}, s{soff} offen sc1")
def p2(r): return f"v[{r}:{r+1}]"
comb(0, sT1); comb(1, sT2)
astamp(6)
if OPT["oack"]: A("s_waitcnt vmcnt(0)")
cnt_add(vCNT, vIDX, 24 if OPT["oack"] == 2 else 12)
A(f"""
s_or_b32 s{sT0}, s2, s{sWAVE}
s_cmp_lg_u32 s{sT0}, 0
s_cbranch_scc1 L_noep
s_add_u32 s{sT0}, s{sEP}, 1
v_mov_b32 v10, s{sT0}
v_mov_b32 v11, 0
s_mov_b64 exec, 1
buffer_store_dword v10, v11, {srd(R_WS)}, 0 offen
s_mov_b64 exec, -1
L_noep:
""")
A.label("L_fin")
if OPT["enc"] or OPT["encS"]:
    A("""
    s_waitcnt vmcnt(0) lgkmcnt(0)
    s_add_u32 s94, s94, 3000
    L_enc:
    s_memrealtime s[96:97]
    s_waitcnt lgkmcnt(0)
    s_sub_u32 s96, s96, s94
    s_cmp_lt_i32 s96, 0
    s_cbranch_scc1 L_enc
    """)
if OPT["pad"] and OPT["padat"] == 0:
    A("s_waitcnt vmcnt(0)"); padto()
if OPT["stamps"]:
    A(f"""
    s_waitcnt vmcnt(0)
    s_memrealtime s[100:101]
    s_waitcnt lgkmcnt(0)
    s_lshl_b32 s{sT0}, s2, 3
    s_add_u32 s{sT0}, s{sT0}, s{sWAVE}
    s_lshl_b32 s{sT0}, s{sT0}, 6
    s_add_u32 s{sT0}, s{sT0}, {DBG + 0x800000}
    v_mov_b32 v11, 0
    """)
    for i in range(9): A(f"v_mov_b32 v{16+i}, s{sST+2*i}")
    A(f"""
    s_mov_b64 exec, 1
    buffer_store_dwordx4 v[16:19], v11, {srd(R_WS)}, s{sT0} offen
    buffer_store_dwordx4 v[20:23], v11, {srd(R_WS)}, s{sT0} offen offset:16
    buffer_store_dword v24, v11, {srd(R_WS)}, s{sT0} offen offset:32
    """)
if OPT["hdbg"]:
    A(f"""
    s_load_dwordx2 s[{sT2}:{sT3}], s[0:1], 120
    s_not_b32 s{sT0}, s{sST}
    v_mov_b32 v30, s{sT0}
    v_mov_b32 v31, 0
    s_waitcnt lgkmcnt(0)
    global_atomic_umax v31, v30, s[{sT2}:{sT3}]
    s_cmp_ge_u32 s{sWAVE}, 4
    s_cbranch_scc1 L_hdS
    """)
    for k, i in enumerate((0, 2, 3, 4, 5, 6, 8)):
        A(f"global_atomic_umax v31, v{16+i}, s[{sT2}:{sT3}] offset:{4*(1+k)}")
    A("s_branch L_end")
    A.label("L_hdS")
    for k, i in enumerate((1, 2, 3, 4, 5, 6, 7, 8)):
        if i in (1, 2):
            A(f"s_cmp_lg_u32 s{sWAVE}, 4")
            A(f"s_cbranch_scc1 L_hd{i}")
        A(f"global_atomic_umax v31, v{16+i}, s[{sT2}:{sT3}] offset:{4*(8+k)}")
        if i in (1, 2): A.label(f"L_hd{i}")
A.label("L_end")
A("s_endpgm")

A.label("L_S2a")
A("s_waitcnt vmcnt(0)")
A.label("L_S2")
SSEC[0] = True
kload([(R_XA, 0), (R_BRE, 24), (R_BIM, 32), (R_CRE, 40), (R_CIM, 48), (R_WO, 104), (R_AGG, 128)])
if OPT["pfc"] == 1:
    A(f"""
    s_cmp_lg_u32 s{sWAVE}, 7
    s_cbranch_scc1 L_nopfcode
    s_getpc_b64 s[{sT0}:{sT1}]
    L_pc:
    s_sub_u32 s{sT0}, s{sT0}, L_pc-{NAME}_kernel
    s_subb_u32 s{sT1}, s{sT1}, 0
    s_lshl_b32 s{sLOOP}, s{sROT}, 13
    v_lshlrev_b32 v16, 7, v{vLANE}
    v_add_u32 v16, s{sLOOP}, v16
    v_min_u32 v16, L_hot_end-{NAME}_kernel-4, v16
    global_load_dword v{vDUM}, v16, s[{sT0}:{sT1}]
    L_nopfcode:
    """)
common_scalars()
srd_words([R_XA, R_BRE, R_BIM, R_CRE, R_CIM, R_WO, R_AGG])
A(f"""
s_lshl_b32 s{sT3}, s{sG}, 7
s_lshl_b32 s{sT4}, s{sG}, 16
s_waitcnt lgkmcnt(0)
s_mov_b64 s[{P_LRE}:{P_LRE+1}], s[{R_BRE}:{R_BRE+1}]
s_mov_b64 s[{P_LIM}:{P_LIM+1}], s[{R_BIM}:{R_BIM+1}]
s_mov_b64 s[{P_LDT}:{P_LDT+1}], s[{R_CRE}:{R_CRE+1}]
s_mov_b64 s[{P_DSK}:{P_DSK+1}], s[{R_CIM}:{R_CIM+1}]
s_mov_b64 s[{P_WV}:{P_WV+1}], s[{R_WO}:{R_WO+1}]
""")
for r, t in ((R_XA, sT2), (R_BRE, sT4), (R_BIM, sT4), (R_CRE, sT4), (R_CIM, sT4), (R_WO, sT3)):
    A(f"s_add_u32 s{r}, s{r}, s{t}")
    A(f"s_addc_u32 s{r+1}, s{r+1}, 0")
A(f"""
s_add_u32 s{R_AGG}, s{R_AGG}, {AGG}
s_addc_u32 s{R_AGG+1}, s{R_AGG+1}, 0
""")
common_after_wait(False)
if OPT["tlb"]:
    A(f"""
    s_cmp_lg_u32 s{sSW}, 2
    s_cbranch_scc1 L_notlb
    v_mov_b32 v16, 0
    s_lshl_b32 s{sT0}, s{sC}, 17
    s_add_u32 s{sT0}, s{sT0}, {HB}
    s_mov_b32 s{sT1}, {KVT}
    s_mov_b64 exec, 1
    """)
    for R in (R_XA, R_BRE, R_BIM, R_WO, R_CRE, R_CIM, R_OUT):
        A(f"buffer_load_dword v{vDUM}, v16, {srd(R)}, 0 offen")
    A(f"""
    buffer_load_dword v{vDUM}, v16, {srd(R_WS)}, s{sOB} offen sc1
    buffer_load_dword v{vDUM}, v16, {srd(R_WS)}, s{sT0} offen offset:2048 sc1
    s_mov_b64 exec, -1
    L_notlb:
    """)
A(f"""
s_add_u32 s{sROT}, s{sC}, s{sG}
s_and_b32 s{sROT}, s{sROT}, 3
v_lshrrev_b32 v20, 4, v{vLANE}
v_and_b32 v21, 15, v{vLANE}
v_lshlrev_b32 v22, 4, v21
v_lshl_add_u32 v{vBo}, v20, 14, v22
v_lshrrev_b32 v23, 1, v20
v_and_b32 v24, 1, v20
v_lshlrev_b32 v23, 15, v23
v_lshl_add_u32 v23, v24, 12, v23
v_add_u32 v{vXo}, v23, v22
v_lshlrev_b32 v{vPF}, 7, v21
s_lshl_b32 s{sT0}, s2, 11
v_add_u32 v{vPF}, s{sT0}, v{vPF}
""")
def g1_soff(s):
    A(f"""
    s_add_u32 s{sT5}, s{sROT}, {s}
    s_and_b32 s{sT5}, s{sT5}, 3
    s_lshl_b32 s{sT5}, s{sT5}, 8
    s_lshl_b32 s{sT3}, s{sSW}, 12
    s_add_u32 s{sT3}, s{sT3}, s{sT5}
    s_lshl_b32 s{sT4}, s{sTW}, 14
    s_add_u32 s{sT4}, s{sT4}, s{sT5}
    s_lshl_b32 s{sT5}, s{sCW}, 11
    s_add_u32 s{sT4}, s{sT4}, s{sT5}
    s_add_u32 s{sT5}, s{sT4}, 8192
    """)
def capw(c=None):
    c = OPT["cap"] if c is None else c
    if c: A(f"s_waitcnt vmcnt({c})")
def dma_piece(n):
    dma_piece_(n)
    capw(OPT["cap0"] if n < OPT["npre"] else None)
def dma_piece_(n):
    st, r = divmod(n, 12); i, m = divmod(r, 3)
    slot = SLOT[st % 3]
    if r == 0: g1_soff(st)
    if m == 0:
        A(f"s_add_u32 m0, s{sT7}, {slot + XA_O + i*1040 - (i>>1)*1024}")
        A("s_nop 0")
        A(f"buffer_load_dwordx4 v{vXo}, {srd(R_XA)}, s{sT5 if i & 1 else sT4} offen offset:{(i>>1)*1024} lds")
    else:
        A(f"s_add_u32 m0, s{sT7}, {slot + [0, BRE_O, BIM_O][m] + i*16}")
        A("s_nop 0")
        A(f"buffer_load_dwordx4 v{vBo}, {srd([0, R_BRE, R_BIM][m])}, s{sT3} offen offset:{i*1024} lds")
LOG2E = math.log2(math.e)
a0, a1, a2, a3, a4, a5 = PRM, PRM+1, PRM+2, 96, 97, 98
vLR, vLI = vL1, vL1 + 1
A(f"""
s_mov_b32 s{sT0}, {f2u(LOG2E)}
v_lshlrev_b32 v{a0}, 16, v{a0}
v_lshlrev_b32 v{a1}, 16, v{a1}
v_lshlrev_b32 v{a2}, 16, v{a2}
v_mul_f32 v{a2}, s{sT0}, v{a2}
v_exp_f32 v{a2}, v{a2}
s_nop 0
v_cvt_pk_bf16_f32 v{a2}, v{a2}, v{a2}
v_and_b32 v{a2}, 0xffff0000, v{a2}
v_mul_f32 v{a3}, v{a2}, v{a0}
v_mul_f32 v{a4}, v{a2}, v{a1}
v_mul_f32 v{a3}, s{sT0}, v{a3}
v_exp_f32 v{a3}, v{a3}
v_mul_f32 v{a4}, 0.15915494, v{a4}
v_fract_f32 v{a4}, v{a4}
v_cos_f32 v{vLR}, v{a4}
v_sin_f32 v{vLI}, v{a4}
s_nop 0
v_mul_f32 v{vLR}, v{a3}, v{vLR}
v_mul_f32 v{vLI}, v{a3}, v{vLI}
v_mul_f32 v{a2}, v{a0}, v{a0}
v_fmac_f32 v{a2}, v{a1}, v{a1}
v_rcp_f32 v{a2}, v{a2}
v_add_f32 v{a3}, -1.0, v{vLR}
v_mul_f32 v{a4}, v{a3}, v{a0}
v_fmac_f32 v{a4}, v{vLI}, v{a1}
v_mul_f32 v{a5}, v{vLI}, v{a0}
v_fma_f32 v{a5}, -v{a3}, v{a1}, v{a5}
v_add_f32 v{a2}, v{a2}, v{a2}
v_mul_f32 v{vCF}, v{a4}, v{a2}
v_mul_f32 v{vCF+1}, v{a5}, v{a2}
""")
def csq(d, s_):
    A(f"v_mul_f32 v{a0}, v{s_+1}, v{s_+1}")
    A(f"v_mul_f32 v{a1}, v{s_}, v{s_+1}")
    A(f"v_fma_f32 v{d}, v{s_}, v{s_}, -v{a0}")
    A(f"v_add_f32 v{d+1}, v{a1}, v{a1}")
csq(vL8, vL1); csq(vL8, vL8); csq(vL8, vL8)
csq(vL16, vL8)
csq(vL64, vL16); csq(vL64, vL64)
csq(vL512, vL64); csq(vL512, vL512); csq(vL512, vL512)
vD = PRM + 3
A(f"""
v_and_b32 v20, 1, v{vL31}
v_lshlrev_b32 v20, 4, v20
v_lshlrev_b32 v{vD}, v20, v{vD}
v_bfe_u32 v20, v{vL31}, 3, 1
v_cmp_eq_u32 vcc, v20, v{vH}
v_bfe_u32 v21, v{vL31}, 1, 2
v_lshrrev_b32 v22, 4, v{vL31}
v_cndmask_b32 v{vD}, 0, v{vD}, vcc
v_lshl_add_u32 v21, v22, 2, v21
""")
for i in range(8):
    A(f"v_cmp_eq_u32 vcc, {i}, v21")
    A("s_nop 1")
    A(f"v_cndmask_b32 v{DG+i}, 0, v{vD}, vcc")
A(f"""
v_and_b32 v20, 15, v{vL31}
v_mul_u32_u24 v20, 1040, v20
v_lshl_add_u32 v20, v{vH}, 4, v20
v_lshrrev_b32 v21, 4, v{vL31}
v_lshl_add_u32 v20, v21, 8, v20
s_lshl_b32 s{sT0}, s{sTW}, 9
v_add_u32 v{vAa[0]}, s{sT0}, v20
v_add_u32 v{vAa[1]}, {SLOT[1]}, v{vAa[0]}
s_lshl_b32 s{sT0}, s{sCW}, 9
s_add_u32 s{sT0}, s{sT0}, {BRE_O}
v_add_u32 v{vBa[0]}, s{sT0}, v20
v_add_u32 v{vBa[1]}, {SLOT[1]}, v{vBa[0]}
v_bfe_u32 v20, v{vL31}, 2, 1
v_lshlrev_b32 v20, 3, v20
v_bfe_u32 v21, v{vL31}, 4, 1
v_lshl_add_u32 v20, v21, 2, v20
v_and_b32 v21, 3, v{vL31}
v_add_u32 v20, v20, v21
v_mul_u32_u24 v20, 1040, v20
v_bfe_u32 v21, v{vL31}, 3, 1
v_lshl_add_u32 v20, v21, 8, v20
v_lshl_add_u32 v20, v{vH}, 4, v20
s_lshl_b32 s{sT0}, s{sTW}, 9
s_and_b32 s{sT1}, s{sG}, 1
s_lshl_b32 s{sT1}, s{sT1}, 7
s_add_u32 s{sT0}, s{sT0}, s{sT1}
s_lshl_b32 s{sT1}, s{sCW}, 6
s_add_u32 s{sT0}, s{sT0}, s{sT1}
s_lshr_b32 s{sLOOP}, s{sG}, 1
s_sub_u32 s{sLOOP}, s{sLOOP}, s{sROT}
s_and_b32 s{sLOOP}, s{sLOOP}, 3
s_mul_i32 s{sT1}, s{sLOOP}, {SLOT[1]}
s_cmp_eq_u32 s{sLOOP}, 3
s_cselect_b32 s{sT1}, 0, s{sT1}
s_add_u32 s{sT0}, s{sT0}, s{sT1}
v_add_u32 v{vDa}, s{sT0}, v20
s_mul_i32 s{sT7}, s{sSW}, {4*1040}
v_add_u32 v{vAa[2]}, {SLOT[2]}, v{vAa[0]}
v_add_u32 v{vBa[2]}, {SLOT[2]}, v{vBa[0]}
""")
cnt_wait(vCNT, vTMP, 6, 0, sleep=1)
cnt_wait(vCNT, vTMP, 4, 12, sleep=1)
if OPT["stgl"] > 2: cnt_wait(vCNT, vTMP, 4*OPT["stgl"], 4, sleep=2)
def pfx(items):
    if OPT["pfb"] != 2: return
    nsh = 8 if OPT["map84"] else 4
    for R, sw, shift in items:
        lbl = A.newlabel("pfx")
        A(f"""
        s_cmp_lg_u32 s{sSW}, {sw}
        s_cbranch_scc1 {lbl}
        s_and_b32 s{sT0}, s{sC}, {nsh - 1}
        s_lshl_b32 s{sT0}, s{sT0}, {shift + 6 + (0 if nsh == 8 else 1)}
        v_lshlrev_b32 v{vPF}, {shift}, v{vLANE}
        buffer_load_dword v{vDUM}, v{vPF}, {srd(R)}, s{sT0} offen
        """)
        if nsh == 4:
            A(f"s_add_u32 s{sT0}, s{sT0}, {64 << shift}")
            A(f"buffer_load_dword v{vDUM}, v{vPF}, {srd(R)}, s{sT0} offen")
        A.label(lbl)
def pf16(pairs, lbl):
    if OPT["pfb"] != 1: return
    A(f"""
    s_cmp_lg_u32 s{sSW}, 1
    s_cbranch_scc1 {lbl}
    s_mov_b64 exec, 0xffff
    """)
    for p in pairs: A(f"global_load_dword v{vDUM}, v{vPF}, s[{p}:{p+1}]")
    A(f"s_mov_b64 exec, -1\n{lbl}:")
pf16([P_LRE, P_LIM, P_WV], "L_nopfb")
cnt_wait(vCNT, vTMP, 12, 4, sleep=0)
if OPT["noS"]: A("s_branch L_fin")
prio(OPT["gprio"])
sstamp(1, 1)
NPRE = OPT["npre"]
for n in range(NPRE): dma_piece(n)
ISS = [NPRE]
A(f"s_waitcnt vmcnt({NPRE - 12})")
sstamp(2, 1)
prio(OPT["vprio"])
sync_add(False); sync_wait(0)
sstamp(3, 1)
G1B = [FRS, FRS + 12, 64]
def g1_stage(s, extra=None, nwr=None, early_add=None):
    slot = s % 3
    prio(3 if (OPT["g1p"] >> s) & 1 else OPT["gprio"])
    sk = A.newlabel("nod")
    A(f"""
    s_cmp_lg_u32 s{sLOOP}, {s}
    s_cbranch_scc1 {sk}
    ds_read_b128 v[64:67], v{vDa}
    ds_read_b128 v[68:71], v{vDa} offset:32
    s_waitcnt lgkmcnt(0)
    v_mfma_f32_32x32x16_bf16 v[{Y0}:{Y0+15}], v[64:67], v[{DG}:{DG+3}], 0
    v_mfma_f32_32x32x16_bf16 v[{Y0}:{Y0+15}], v[68:71], v[{DG+4}:{DG+7}], v[{Y0}:{Y0+15}]
    {sk}:
    """)
    def rd(k):
        f = G1B[k % 3]
        A(f"ds_read_b128 v[{f}:{f+3}], v{vAa[slot]} offset:{k*32}")
        A(f"ds_read_b128 v[{f+4}:{f+7}], v{vBa[slot]} offset:{k*32}")
        A(f"ds_read_b128 v[{f+8}:{f+11}], v{vBa[slot]} offset:{k*32 + (BIM_O-BRE_O)}")
    rd(0); rd(1)
    for k in range(8):
        f = G1B[k % 3]
        if k + 2 < 8: rd(k + 2)
        nw = nwr(k - 1) if (nwr and k > 0) else 0
        A(f"s_waitcnt lgkmcnt({min(15, 3*(min(8, k + 3) - k - 1) + nw)})")
        if k == 7 and early_add is not None:
            if early_add: A(early_add)
            sync_add(False)
        cr = "0" if (s == 0 and k == 0) else f"v[{UR}:{UR+15}]"
        ci = "0" if (s == 0 and k == 0) else f"v[{UI}:{UI+15}]"
        A(f"v_mfma_f32_32x32x16_bf16 v[{UR}:{UR+15}], v[{f}:{f+3}], v[{f+4}:{f+7}], {cr}")
        if extra: extra(k)
        A(f"v_mfma_f32_32x32x16_bf16 v[{UI}:{UI+15}], v[{f}:{f+3}], v[{f+8}:{f+11}], {ci}")
def issue_upto(lim, k, last):
    cnt = -(-(lim - ISS[0]) // max(1, last - k)) if k < last else 0
    for n in range(ISS[0], min(lim, ISS[0] + cnt)): dma_piece(n)
    ISS[0] = min(lim, ISS[0] + cnt)
L0 = OPT["l0"]
g1_stage(0, lambda k: issue_upto(L0, k, 7), early_add=f"s_waitcnt vmcnt({L0 - 24})")
assert ISS[0] == L0
sstamp(4, 1)
prio(OPT["vprio"])
pfx([(R_WO, 1, 10)])
sync_wait(0)
g1_stage(1, lambda k: issue_upto(48, k, 7), early_add="s_waitcnt vmcnt(12)")
assert ISS[0] == 48
sstamp(5, 1)
prio(OPT["vprio"])
CLR = 64
A(f"""
v_mov_b32 v{CLR}, -1
v_mov_b32 v{CLR+1}, -1
v_mov_b32 v{CLR+2}, -1
v_mov_b32 v{CLR+3}, -1
s_lshl_b32 s{sT0}, s{sG}, 12
s_add_u32 s{sT0}, s{sT0}, s{sOB}
s_lshl_b32 s{sT1}, s{sCW}, 11
s_add_u32 s{sT0}, s{sT0}, s{sT1}
buffer_store_dwordx4 v[{CLR}:{CLR+3}], v{vL16x}, {srd(R_WS)}, s{sT0} offen sc1
buffer_store_dwordx4 v[{CLR}:{CLR+3}], v{vL16x}, {srd(R_WS)}, s{sT0} offen offset:1024 sc1
v_mov_b32 v{CLR+4}, 0
v_mov_b32 v{CLR+5}, s{sTAG}
v_mov_b32 v{CLR+6}, 0
v_mov_b32 v{CLR+7}, s{sTAG}
s_lshl_b32 s{sT1}, s{sID}, 7
s_add_u32 s{sT1}, s{sT1}, {AGG_DUMMY}
s_mov_b64 exec, 1
buffer_store_dwordx4 v[{CLR+4}:{CLR+7}], v{CLR+4}, {srd(R_AGG)}, s{sT1} offen sc1
s_mov_b64 exec, -1
""")
sync_wait(0)
g1_stage(2, early_add="s_waitcnt vmcnt(0)")
sstamp(6, 1)
prio(OPT["vprio"])
pf16([P_LDT, P_DSK], "L_nopfc")
pfx([(R_CRE, 2, 7), (R_CIM, 3, 7)])
wq_voffset(5, 6, 8, 15)
A(f"""
s_mul_i32 s{sT2}, s{sSW}, {16*1040}
s_lshl_b32 s{sT3}, s{sSW}, 14
s_lshl_b32 s{sT6}, s{sSW}, 17
""")
sync_wait(0)
def wo_piece(i):
    A(f"""
    s_add_u32 m0, s{sT3}, {WO + i*1024}
    s_add_u32 s{sT1}, s{sT6}, {i*8192}
    buffer_load_dwordx4 v5, {srd(R_WO)}, s{sT1} offen lds
    """)
    capw()
def c_piece(R, base, i):
    A(f"s_add_u32 m0, s{sT2}, {base + i*1040 - (i & 3)*1024}")
    if i & 3 == 0: A(f"s_add_u32 s{sT4}, s{sT3}, {i*1024}")
    else: A("s_nop 0")
    A(f"buffer_load_dwordx4 v{vL16x}, {srd(R)}, s{sT4} offen offset:{(i & 3)*1024} lds")
    capw()
def ex3(k):
    wo_piece(2*k); wo_piece(2*k + 1)
g1_stage(3, ex3)
sstamp(7, 1); sstamp(1, 2)
prio(OPT["vprio"])
stamp(3)
A(f"""
s_lshl_b32 s{sT0}, s{sTW}, 10
s_lshl_b32 s{sT1}, s{sCW}, 8
s_add_u32 s{sT1}, s{sT1}, {EB}
s_add_u32 s{sT0}, s{sT0}, s{sT1}
v_lshlrev_b32 v10, 3, v{vL31}
v_add_u32 v11, s{sT1}, v10
v_lshl_add_u32 v10, v{vH}, 9, v10
v_add_u32 v10, s{sT0}, v10
""")
A.nop(4)
if OPT["dbg"]:
    A(f"""
    s_lshl_b32 s{sT0}, s{sID}, 2
    s_add_u32 s{sT0}, s{sT0}, s{sSW}
    s_lshl_b32 s{sT0}, s{sT0}, 13
    s_add_u32 s{sT0}, s{sT0}, {DBG}
    v_lshlrev_b32 v12, 2, v{vLANE}
    """)
    for i in range(32):
        A(f"buffer_store_dword v{UR+i}, v12, {srd(R_WS)}, s{sT0} offen")
        A(f"s_add_u32 s{sT0}, s{sT0}, 256")
    A("s_waitcnt vmcnt(0)")
def cstep4(dr, di, pr, pi, l, ur, ui, tr, ti):
    A(f"v_fma_f32 v{tr}, v{l}, v{pr}, v{ur}")
    A(f"v_fma_f32 v{ti}, v{l}, v{pi}, v{ui}")
    A(f"v_fma_f32 v{dr}, -v{l+1}, v{pi}, v{tr}")
    A(f"v_fma_f32 v{di}, v{l+1}, v{pr}, v{ti}")
def p2(r): return f"v[{r}:{r+1}]"
def pkstep(dr, di, pr, pi, l, ur, ui, tr, ti):
    A(f"v_pk_fma_f32 {p2(tr)}, {p2(l)}, {p2(pr)}, {p2(ur)} op_sel_hi:[0,1,1]")
    A(f"v_pk_fma_f32 {p2(ti)}, {p2(l)}, {p2(pi)}, {p2(ui)} op_sel_hi:[0,1,1]")
    A(f"v_pk_fma_f32 {p2(dr)}, {p2(l)}, {p2(pi)}, {p2(tr)} op_sel:[1,0,0] neg_lo:[1,0,0] neg_hi:[1,0,0]")
    A(f"v_pk_fma_f32 {p2(di)}, {p2(l)}, {p2(pr)}, {p2(ti)} op_sel:[1,0,0]")
pa = [(FRS, FRS+2), (6, 8)]
p = (UR, UI)
for j in range(1, 8):
    d = pa[j & 1]
    pkstep(d[0], d[1], p[0], p[1], vL1, UR+2*j, UI+2*j, FRS+4, FRS+6)
    p = d
EA = (6, 8)
cstep4(FRS, FRS+1, 6, 8, vL8, 7, 9, FRS+4, FRS+5)
A(f"ds_write_b64 v10, v[{FRS}:{FRS+1}]")
A("s_waitcnt vmcnt(0)")
sync_add()
LB = 64
A(f"""
s_lshl_b32 s{sT0}, s{sTW}, 4
s_sub_u32 s{sT0}, s{sC}, s{sT0}
s_sub_u32 s{sT0}, s{sT0}, 1
s_lshl_b32 s{sT0}, s{sT0}, 13
v_lshlrev_b32 v5, 16, v{vH}
v_sub_u32 v5, s{sT0}, v5
v_lshl_add_u32 v5, v{vP2}, 3, v5
s_lshl_b32 s{sT1}, s{sID}, 7
s_add_u32 s{sT1}, s{sT1}, {AGG_DUMMY}
""")
for k in range(8):
    A(f"v_min_u32 v{96+k}, s{sT1}, v5")
    if k < 7: A(f"v_add_u32 v5, {(-8192) & 0xffffffff}, v5")
sync_wait(0)
sstamp(2, 2)
E = FRS
for s in range(4):
    A(f"ds_read_b64 v[{E+2*s}:{E+2*s+1}], v11 offset:{s*512}")
A("s_waitcnt lgkmcnt(0)")
A1, A2, G3 = (104, 105), (106, 107), 108
cstep4(A1[0], A1[1], E, E+1, vL16, E+2, E+3, FRS+8, FRS+9)
cstep4(A2[0], A2[1], A1[0], A1[1], vL16, E+4, E+5, FRS+8, FRS+9)
vPR, vPI, vW = 12, 13, 14
tw1 = A.newlabel("tw1"); twd = A.newlabel("twd")
A(f"""
v_cmp_eq_u32 vcc, 1, v{vH}
s_cmp_lg_u32 s{sTW}, 0
s_cbranch_scc1 {tw1}
""")
cstep4(G3, G3+2, A2[0], A2[1], vL16, E+6, E+7, FRS+8, FRS+9)
A(f"""
v_mov_b32 v{G3+1}, s{sTAG}
v_mov_b32 v{G3+3}, s{sTAG}
v_lshlrev_b32 v7, 3, v{vP2}
s_lshl_b32 s{sT0}, s{sC}, 13
s_mov_b32 exec_hi, 0
buffer_store_dwordx4 v[{G3}:{G3+3}], v7, {srd(R_AGG)}, s{sT0} offen sc1
s_mov_b32 exec_hi, -1
v_cndmask_b32 v{vPR}, 0, v{E}, vcc
v_cndmask_b32 v{vPI}, 0, v{E+1}, vcc
v_cndmask_b32 v{vW}, 1.0, v{vL16}, vcc
v_cndmask_b32 v{vW+1}, 0, v{vL16+1}, vcc
s_branch {twd}
{tw1}:
v_cndmask_b32 v{vPR}, v{A1[0]}, v{A2[0]}, vcc
v_cndmask_b32 v{vPI}, v{A1[1]}, v{A2[1]}, vcc
v_mul_f32 v{FRS+8}, v{vL16+1}, v{vL16+1}
v_mul_f32 v{FRS+9}, v{vL16}, v{vL16+1}
v_fma_f32 v{FRS+8}, v{vL16}, v{vL16}, -v{FRS+8}
v_add_f32 v{FRS+9}, v{FRS+9}, v{FRS+9}
v_mul_f32 v{FRS+10}, v{FRS+8}, v{vL16}
v_mul_f32 v{FRS+11}, v{FRS+8}, v{vL16+1}
v_fma_f32 v{FRS+10}, -v{FRS+9}, v{vL16+1}, v{FRS+10}
v_fma_f32 v{FRS+11}, v{FRS+9}, v{vL16}, v{FRS+11}
v_cndmask_b32 v{vW}, v{FRS+8}, v{FRS+10}, vcc
v_cndmask_b32 v{vW+1}, v{FRS+9}, v{FRS+11}, vcc
{twd}:
""")
A(f"s_mov_b32 s{sSPIN}, 0")
A(f"""
s_lshl_b32 s{sT0}, s{sSW}, 12
s_add_u32 s{sT0}, s{sT0}, {TB}
v_lshlrev_b32 v9, 6, v{vL31}
v_lshl_add_u32 v9, v{vH}, 5, v9
v_add_u32 v9, s{sT0}, v9
v_bfe_u32 v108, v{vLANE}, 2, 2
v_lshl_add_u32 v108, v{vH}, 3, v108
v_lshlrev_b32 v108, 6, v108
v_bfe_u32 v109, v{vLANE}, 4, 1
v_lshl_add_u32 v108, v109, 5, v108
v_and_b32 v109, 3, v{vLANE}
v_lshl_add_u32 v108, v109, 3, v108
v_add_u32 v108, s{sT0}, v108
""")
A(f"""
v_bfe_u32 v5, v{vLANE}, 2, 2
v_lshl_add_u32 v5, v{vH}, 2, v5
v_bfe_u32 v7, v{vLANE}, 4, 1
v_and_b32 v110, 3, v{vLANE}
v_lshlrev_b32 v110, 3, v110
v_lshl_add_u32 v110, v7, 5, v110
v_bfe_u32 v7, v{vLANE}, 3, 1
v_lshl_add_u32 v110, v7, 6, v110
v_lshl_add_u32 v110, v5, 7, v110
s_lshl_b32 s{sT0}, s{sCW}, 13
s_add_u32 s{sT0}, s{sT0}, {WO}
s_lshl_b32 s{sT1}, s{sCW}, 6
v_xor_b32 v110, s{sT1}, v110
v_xor_b32 v111, 64, v110
v_add_u32 v110, s{sT0}, v110
v_add_u32 v111, s{sT0}, v111
""")
def prod_off(i, shift, dst):
    A(f"""
    s_lshr_b32 s{dst}, s{sG}, 1
    s_add_u32 s{dst}, s{dst}, {i + 1}
    s_and_b32 s{dst}, s{dst}, 3
    s_lshl_b32 s{dst}, s{dst}, {shift}
    """)
for j in range(16):
    if OPT["orot"] and j % 4 == 0:
        prod_off(j // 4, 14, sT0)
        A(f"v_add_u32 v5, s{sT0}, v110")
        A(f"v_add_u32 v7, s{sT0}, v111")
    for nt in range(2):
        f = 8*j + 4*nt
        ad = [5, 7][nt] if OPT["orot"] else 110 + nt
        off = (j & 3)*2048 + (0 if OPT["orot"] else (j >> 2)*16384)
        A(f"ds_read_b64_tr_b16 a[{f}:{f+1}], v{ad} offset:{off}")
        A(f"ds_read_b64_tr_b16 a[{f+2}:{f+3}], v{ad} offset:{off + 1024}")
    if j % 3 == 2: A("s_waitcnt lgkmcnt(3)")
prio(OPT["gprio"])
for i in range(OPT["cim1"]): c_piece(R_CIM, CIM, i)
prio(OPT["vprio"])
sstamp(3, 2)
A.label("L_lb")
for k in range(8):
    A(f"buffer_load_dwordx4 v[{LB+4*k}:{LB+4*k+3}], v{96+k}, {srd(R_AGG)}, 0 offen sc1")
A(f"""
s_add_u32 s{sSPIN}, s{sSPIN}, 1
s_waitcnt vmcnt(0)
v_min_u32 v5, v{LB+1}, v{LB+3}
v_max3_u32 v7, s{sTAG}, v{LB+1}, v{LB+3}
""")
for k in range(1, 8):
    A(f"v_min3_u32 v5, v5, v{LB+4*k+1}, v{LB+4*k+3}")
    A(f"v_max3_u32 v7, v7, v{LB+4*k+1}, v{LB+4*k+3}")
A(f"""
v_min_u32 v5, s{sTAG}, v5
v_cmp_ne_u32 vcc, v5, v7
s_cbranch_vccz L_lbd
s_sleep 8
s_cmp_lt_u32 s{sSPIN}, {SPIN_MAX}
s_cbranch_scc1 L_lb
L_lbd:
""")
stamp(4); sstamp(4, 2)
p = (LB+28, LB+30)
pb = [(96, 97), (98, 99)]
for k in range(6, -1, -1):
    d = pb[k & 1]
    cstep4(d[0], d[1], p[0], p[1], vL64, LB+4*k, LB+4*k+2, 100, 101)
    p = d
A(f"ds_write_b64 v10, v[96:97] offset:{HP-EB}")
sync_add(); sync_wait(0)
sstamp(5, 2)
for s in range(4):
    A(f"ds_read_b64 v[{E+2*s}:{E+2*s+1}], v11 offset:{HP - EB + s*512}")
A("s_waitcnt lgkmcnt(0)")
p = (E+6, E+7)
for s in range(2, -1, -1):
    d = pb[s & 1]
    cstep4(d[0], d[1], p[0], p[1], vL512, E+2*s, E+2*s+1, 100, 101)
    p = d
CRp, CIp = 104, 106
cstep4(CRp, CIp, p[0], p[1], vW, vPR, vPI, 100, 101)
cstep4(CRp+1, CIp+1, CRp, CIp, vL8, EA[0], EA[1], 100, 101)
HR, HI = FRS, FRS+8
p = (CRp, CIp)
for j in range(8):
    pkstep(UR+2*j, UI+2*j, p[0], p[1], vL1, UR+2*j, UI+2*j, 100, 102)
    p = (UR+2*j, UI+2*j)
    if OPT['cpos'] == 0: c_piece(R_CRE, CRE, 2*j)
    A(f"v_pk_mul_f32 {p2(96)}, {p2(vCF)}, {p2(UI+2*j)} op_sel:[1,0]")
    A(f"v_pk_mul_f32 {p2(98)}, {p2(vCF)}, {p2(UR+2*j)} op_sel:[1,0]")
    A(f"v_pk_fma_f32 {p2(96)}, {p2(vCF)}, {p2(UR+2*j)}, {p2(96)} op_sel_hi:[0,1,1] neg_lo:[0,0,1] neg_hi:[0,0,1]")
    A(f"v_pk_fma_f32 {p2(98)}, {p2(vCF)}, {p2(UI+2*j)}, {p2(98)} op_sel_hi:[0,1,1] neg_lo:[1,0,1] neg_hi:[1,0,1]")
    if OPT['cpos'] == 0: c_piece(R_CRE, CRE, 2*j + 1)
    A(f"v_cvt_pk_bf16_f32 v{HR+j}, v96, v97")
    A(f"v_cvt_pk_bf16_f32 v{HI+j}, v98, v99")
    if j == 3:
        A(f"ds_write_b128 v9, v[{HR}:{HR+3}]")
        A(f"ds_write_b128 v9, v[{HI}:{HI+3}] offset:2048")
A(f"""
ds_write_b128 v9, v[{HR+4}:{HR+7}] offset:16
ds_write_b128 v9, v[{HI+4}:{HI+7}] offset:2064
s_lshl_b32 s{sKOFF}, s{sC}, 1
s_add_u32 s{sKOFF}, s{sKOFF}, s{sTW}
s_lshl_b32 s{sKOFF}, s{sKOFF}, 16
s_add_u32 s{sKOFF}, s{sKOFF}, {HB}
s_lshl_b32 s{sT1}, s{sG}, 12
s_lshl_b32 s{sT7}, s{sCW}, 11
s_add_u32 s{sT1}, s{sT1}, s{sT7}
s_add_u32 s{sT0}, s{sKOFF}, s{sT1}
s_add_u32 s{sT1}, s{sT0}, 32768
s_waitcnt lgkmcnt(0)
""")
for part in range(2):
    for hf in range(2):
        f = 64 + 8*part + 4*hf
        A(f"ds_read_b64_tr_b16 v[{f}:{f+1}], v108 offset:{part*2048 + hf*1024}")
        A(f"ds_read_b64_tr_b16 v[{f+2}:{f+3}], v108 offset:{part*2048 + hf*1024 + 256}")
for n in range(4):
    A(f"s_waitcnt lgkmcnt({6 - 2*n})")
    A(f"buffer_store_dwordx4 v[{64+4*n}:{67+4*n}], v{vL16x}, {srd(R_WS)}, s{sT0 if n < 2 else sT1} offen offset:{(n&1)*1024} sc1")
A(f"""
s_lshl_b32 s{sT7}, s{sC}, 12
s_add_u32 s{sT7}, s{sT7}, {FL3}
v_and_b32 v5, 15, v{vLANE}
v_lshlrev_b32 v5, 8, v5
s_lshl_b32 s{sT0}, s{sTW}, 7
s_add_u32 s{sT0}, s{sT0}, s{sT7}
v_add_u32 v5, s{sT0}, v5
v_mov_b32 v12, s{sTAG}
v_mov_b32 v13, 0
s_lshl_b32 s{sT1}, s{sG}, 2
s_add_u32 s{sT1}, s{sT1}, s{sSW}
s_lshl_b32 s{sT1}, s{sT1}, 7
s_add_u32 s{sT1}, s{sT1}, s{sT7}
""")
sstamp(6, 2)
A("s_waitcnt vmcnt(0)")
sstamp(7, 2); sstamp(1, 3)
A(f"""
s_mov_b64 exec, 1
buffer_store_dword v12, v13, {srd(R_WS)}, s{sT1} offen sc1
ds_add_u32 v{vCNT}, v{vONE} offset:28
s_mov_b64 exec, -1
""")
A(f"""
v_bfe_u32 v6, v{vLANE}, 4, 1
v_and_b32 v7, 15, v{vLANE}
v_lshlrev_b32 v7, 4, v7
v_lshl_add_u32 v7, v6, 9, v7
v_lshl_add_u32 v7, v{vH}, 15, v7
s_lshr_b32 s{sT5}, s{sT2}, 1
s_lshr_b32 s{sT6}, s{sT3}, 1
""")
prio(OPT["gprio"])
for half, base in ((0, CREA), (1, CREB)):
    for i in range(8):
        A(f"s_add_u32 m0, s{sT5}, {base + i*1040 - (i & 3)*1024}")
        if i & 3 == 0: A(f"s_add_u32 s{sT4}, s{sT6}, {i*1024 + half*256}")
        else: A("s_nop 0")
        A(f"buffer_load_dwordx4 v7, {srd(R_CRE)}, s{sT4} offen offset:{(i & 3)*1024} lds")
        capw()
prio(OPT["vprio"])
stamp(5, not HST)
A(f"""
v_mul_u32_u24 v10, 1040, v{vL31}
v_lshl_add_u32 v10, v{vH}, 4, v10
s_mul_i32 s{sT0}, s{sCW}, {512 + 32*1040}
s_mul_i32 s{sT1}, s{sCW}, {(512 - 32*1040) & 0xffffffff}
s_add_u32 s{sT1}, s{sT1}, {32*1040}
s_mul_i32 s{sT5}, s{sCW}, 768
s_mul_i32 s{sT6}, s{sCW}, {(-256) & 0xffffffff}
s_add_u32 s{sT5}, s{sT5}, {CREB}
s_add_u32 s{sT6}, s{sT6}, {CREB + 512}
v_add_u32 v14, s{sT5}, v10
v_add_u32 v15, s{sT6}, v10
v_add_u32 v11, s{sT1}, v10
v_add_u32 v10, s{sT0}, v10
s_lshl_b32 s{sT1}, s{sCW}, 14
s_add_u32 s{sKOFF}, s{sKOFF}, s{sT1}
s_lshl_b32 s{sT1}, s{sCW}, 12
s_add_u32 s{sOB}, s{sOB}, s{sT1}
s_xor_b32 s{sT0}, s{sSW}, 2
s_lshl_b32 s{sT0}, s{sT0}, 12
v_add_u32 v114, s{sT0}, v{vL16x}
s_lshl_b32 s{sT0}, s{sSW}, 12
v_add_u32 v115, s{sT0}, v{vL16x}
v_add_u32 v119, {TBY}, v114
v_add_u32 v120, {TBY}, v115
s_lshl_b32 s{sT0}, s{sTW}, 17
s_lshl_b32 s{sT1}, s{sG}, 8
s_add_u32 s{sT0}, s{sT0}, s{sT1}
s_lshl_b32 s{sT1}, s{sCW}, 7
s_add_u32 s{sT0}, s{sT0}, s{sT1}
v_lshlrev_b32 v113, 2, v{vL31}
v_add_u32 v113, s{sT0}, v113
v_lshl_add_u32 v118, v{vH}, 14, v113
v_add_u32 v118, 2048, v118
v_lshl_add_u32 v113, v{vH}, 13, v113
""")
sstamp(2, 3)
poll_flags(5, 12, 1, sleep=OPT['sl2'])
if OPT["cpos"] == 1: sync_add(False)
sstamp(3, 3)
LA = 7
HRING = 16
def hreg(j): return HRING + 4*(j % 8)
def h_ld(j):
    if j == 16: A(f"s_add_u32 s{sKOFF}, s{sKOFF}, {32768 - 3*4096}")
    elif j % 4 == 0 and j > 0: A(f"s_add_u32 s{sKOFF}, s{sKOFF}, 4096")
    A(f"buffer_load_dwordx4 v[{hreg(j)}:{hreg(j)+3}], v{vL16x}, {srd(R_WS)}, s{sKOFF} offen offset:{(j%4)*1024} sc1")
for j in range(LA): h_ld(j)
def g2_rd(j):
    f = FRS + 8*(j % 3)
    off = (CREA - CREB + j*32) if j < 8 else ((j - 8)*32 if j < 16 else (j - 16)*32)
    A(f"ds_read_b128 v[{f}:{f+3}], v{14 if j < 16 else 10} offset:{off}")
    A(f"ds_read_b128 v[{f+4}:{f+7}], v{15 if j < 16 else 11} offset:{off}")
def g2_mfma(j):
    f = FRS + 8*(j % 3)
    c = "0" if j == 0 else f"v[{Y1}:{Y1+15}]"
    A(f"v_mfma_f32_32x32x16_bf16 v[{Y1}:{Y1+15}], v[{hreg(j)}:{hreg(j)+3}], v[{f+4}:{f+7}], {c}")
    A(f"v_mfma_f32_32x32x16_bf16 v[{Y0}:{Y0+15}], v[{hreg(j)}:{hreg(j)+3}], v[{f}:{f+3}], v[{Y0}:{Y0+15}]")
sync_wait(0)
prio(3 if OPT["g2p"] & 1 else OPT["gprio"])
g2_rd(0); g2_rd(1)
VQ = list(range(LA))
P2 = 32 - OPT["p2n"]
assert 8 <= P2 <= 14
for j in range(32):
    if j == P2:
        prio(OPT["vprio"])
        A("s_waitcnt vmcnt(0)")
        sync_add(False); sync_wait()
        cnt_wait(vCNT, vTMP, 8, 12, sleep=OPT['sl1'])
        sstamp(6, 3); sstamp(1, 4)
        prio(3 if OPT["g2p"] & 2 else OPT["gprio"])
    if j + LA < 32:
        h_ld(j + LA); VQ.append(j + LA)
    if j < 8:
        for i in range(OPT["cim1"], 16)[2*j:2*j + 2]:
            if i == OPT["cim1"] and i & 3: A(f"s_add_u32 s{sT4}, s{sT3}, {(i & ~3)*1024}")
            c_piece(R_CIM, CIM, i); VQ.append(-1)
    if j + 2 < 32: g2_rd(j + 2)
    issued = min(32, j + 3)
    A(f"s_waitcnt vmcnt({len(VQ) - 1 - VQ.index(j)}) lgkmcnt({2*(issued - j - 1)})")
    if j == 0: sstamp(4, 3)
    if j == 7:
        cnt_add(vCNT, vONE, 8)
        stamp(6, not HST); sstamp(5, 3)
    g2_mfma(j)
prio(OPT["vprio"])
stamp(7); sstamp(7, 3); sstamp(2, 4)
cnt_wait(vCNT, vTMP, 12, 12)
sstamp(3, 4)
def oreg(j): return (16 + 4*j) if j < 8 else (80 + 4*(j - 8))
def o_loads(g4):
    if OPT["orot"]:
        prod_off(g4, 13, sT1)
        A(f"s_add_u32 s{sT1}, s{sT1}, s{sOB}")
    else: A(f"s_add_u32 s{sT1}, s{sOB}, {g4*8192}")
    for j in range(4*g4, 4*g4 + 4):
        A(f"buffer_load_dwordx4 v[{oreg(j)}:{oreg(j)+3}], v{vL16x}, {srd(R_WS)}, s{sT1} offen offset:{(j%4)*1024} sc1")
if OPT["ofirst"]: o_loads(0)
else: A.nop(4)
for i in range(4):
    A(f"ds_write_b128 v119, v[{Y1+4*i}:{Y1+4*i+3}] offset:{i*1024}")
if OPT["ofirst"]:
    for g4 in range(1, 4): o_loads(g4)
sync_add(); sync_wait(0)
for i in range(4):
    A(f"ds_read_b128 v[{Y1+4*i}:{Y1+4*i+3}], v120 offset:{i*1024}")
for i in range(16):
    if i % 4 == 0: A(f"s_waitcnt lgkmcnt({3 - i//4})")
    A(f"v_add_f32 v{Y0+i}, v{Y0+i}, v{Y1+i}")
    A(f"s_mov_b32 s{sT1}, {(16*(i>>3) + 4*((i>>2)&1) + ((i>>1)&1) + 8*(i&1))*4096}")
    A(f"buffer_store_dword v{Y0+i}, v113, {srd(R_OUT)}, s{sT1} offen{OST}")
if not OPT["ofirst"]:
    for g4 in range(OPT["osplit"]): o_loads(g4)
    if OPT["oack"] == 2: cnt_wait(vCNT, vTMP, 6, 24)
    for g4 in range(OPT["osplit"], 4): o_loads(g4)
A(f"s_mov_b32 s{sSPIN}, 0")
NY0 = 16 - OPT["y1f"]
def y0_mfma(j):
    c0 = "0" if j == 0 else f"v[{Y0}:{Y0+15}]"
    A(f"v_mfma_f32_32x32x16_bf16 v[{Y0}:{Y0+15}], v[{oreg(j)}:{oreg(j)+3}], a[{8*j}:{8*j+3}], {c0}")
for g4 in range(4):
    lp = A.newlabel("op"); dn = A.newlabel("opd"); ck = A.newlabel("opc")
    j0 = 4*g4
    A(f"s_waitcnt vmcnt({(16 if OPT['ofirst'] else 0) + 4*(3 - g4)})")
    A.label(ck)
    A(f"v_max_u32 v13, v{oreg(j0)+1}, v{oreg(j0)+3}")
    for j in range(j0 + 1, j0 + 4):
        A(f"v_max3_u32 v13, v13, v{oreg(j)+1}, v{oreg(j)+3}")
    A(f"""
    v_cmp_eq_u32 vcc, -1, v13
    s_cbranch_vccz {dn}
    s_add_u32 s{sSPIN}, s{sSPIN}, 1
    s_cmp_gt_u32 s{sSPIN}, 20000
    s_cbranch_scc1 {dn}
    """)
    if OPT["osl"]: A(f"s_sleep {OPT['osl']}")
    o_loads(g4)
    A(f"""
    s_waitcnt vmcnt(0)
    s_branch {ck}
    {dn}:
    """)
    if g4 in (0, 3): sstamp(4 + g4 // 3, 4)
    for j in range(j0, j0 + 4):
        c0 = "0" if j == 0 else f"v[{Y0}:{Y0+15}]"
        c1 = "0" if j == 0 else f"v[{Y1}:{Y1+15}]"
        A(f"v_mfma_f32_32x32x16_bf16 v[{Y1}:{Y1+15}], v[{oreg(j)}:{oreg(j)+3}], a[{8*j+4}:{8*j+7}], {c1}")
        if j < NY0: y0_mfma(j)
if OPT["sst"] == 4: A(f"s_mov_b32 s{sST+14}, s{sSPIN}")
rest = list(range(NY0, 16))
n1 = min(len(rest), 3); n2 = min(len(rest) - n1, 4)
for j in rest[:n1]: y0_mfma(j)
A.nop(12 - n1 - (1 if NY0 == 16 else 0))
for i in range(4):
    A(f"ds_write_b128 v114, v[{Y1+4*i}:{Y1+4*i+3}] offset:{TB2 + i*1024}")
for j in rest[n1:n1 + n2]: y0_mfma(j)
A("s_waitcnt lgkmcnt(0)")
A("s_barrier")
sstamp(6, 4)
for i in range(4):
    A(f"ds_read_b128 v[{Y1+4*i}:{Y1+4*i+3}], v115 offset:{TB2 + i*1024}")
for j in rest[n1 + n2:]: y0_mfma(j)
if rest: A.nop(12 if rest[n1 + n2:] else 6)
for i in range(16):
    if i % 4 == 0: A(f"s_waitcnt lgkmcnt({3 - i//4})")
    A(f"v_add_f32 v{Y0+i}, v{Y0+i}, v{Y1+i}")
    A(f"s_mov_b32 s{sT1}, {(8*(i>>2) + (i&3))*4096}")
    A(f"buffer_store_dword v{Y0+i}, v118, {srd(R_OUT)}, s{sT1} offen{OSTB}")
A("s_branch L_fin")

A.label("L_hot_end")
A.label("L_slow")
A(f"""
s_cmp_lg_u32 s{sDONE}, 0
s_cbranch_scc1 L_fast
s_mov_b32 s{sDONE}, 1
s_waitcnt lgkmcnt(0)
""")
def a_sync():
    A(f"s_add_u32 s{sATG}, s{sATG}, 4")
    A("s_waitcnt lgkmcnt(0)")
    cnt_add(vCNT, vIDX, 4)
    cnt_wait(vCNT, 16, f"s{sATG}", 4, sleep=2)
for i in range(4): A(f"v_mov_b32 v{vZ+i}, 0")
for ct in range(8): A(f"v_mov_b32 v{vM+ct}, 0xff800000")
A("s_nop 1")
for ct in range(8):
    A(f"v_mfma_f32_32x32x16_bf16 a[{16*ct}:{16*ct+15}], v[{vZ}:{vZ+3}], v[{vZ}:{vZ+3}], 0")
A(f"s_mov_b32 s{sLOOP}, 16")
def adv():
    A(f"s_add_u32 s{sKOFF}, s{sKOFF}, {KVS}"); A(f"s_and_b32 s{sKOFF}, s{sKOFF}, 0xffff")
def ld_kraw():
    A(f"buffer_load_dwordx4 v[{KV[0]}:{KV[0]+3}], v{vKt[0]}, {srd(R_WS)}, s{sKOFF} offen offset:2560 sc1")
def round_scores():
    for i in range(0, 16, 2):
        A(f"v_cvt_pk_bf16_f32 v{S0+i+1}, v{S0+i}, v{S0+i+1}")
        A(f"v_lshlrev_b32 v{S0+i}, 16, v{S0+i+1}")
        A(f"v_and_b32 v{S0+i+1}, 0xffff0000, v{S0+i+1}")
A(f"s_mov_b32 s{sT4}, {f2u(0.25 * math.log2(math.e))}")
A.label("L_sl1")
ld_kraw(); adv()
A("s_waitcnt vmcnt(0)")
for ct in range(8):
    A(f"v_mfma_f32_32x32x16_bf16 v[{S0}:{S0+15}], v[{KV[0]}:{KV[0]+3}], v[{QF+4*ct}:{QF+4*ct+3}], 0")
    A.nop(12)
    round_scores()
    for i in range(8):
        A(f"v_max3_f32 v{vM+ct}, v{S0+2*i}, v{S0+2*i+1}, v{vM+ct}")
A(f"""
s_sub_u32 s{sLOOP}, s{sLOOP}, 1
s_cmp_lg_u32 s{sLOOP}, 0
s_cbranch_scc1 L_sl1
s_lshl_b32 s{sT0}, s{sWAVE}, 11
s_add_u32 s{sT0}, s{sT0}, {CB}
v_lshlrev_b32 v8, 2, v{vLANE}
v_add_u32 v8, s{sT0}, v8
v_lshlrev_b32 v10, 2, v{vL31}
v_add_u32 v10, {CB}, v10
""")
a_sync()
def pair_off(pr):
    A(f"s_add_u32 s{sT0}, s{sWAVE}, {pr + 1}")
    A(f"s_and_b32 s{sT0}, s{sT0}, 3")
    A(f"s_lshl_b32 s{sT0}, s{sT0}, 9")
for pr in range(4):
    pair_off(pr)
    A(f"v_add_u32 v9, s{sT0}, v8")
    A(f"ds_write_b32 v9, v{vM+2*pr}")
    A(f"ds_write_b32 v9, v{vM+2*pr+1} offset:256")
a_sync()
for ct in range(8):
    if ct % 2 == 0:
        pair_off(ct // 2)
        A(f"v_add_u32 v9, s{sT0}, v10")
    for w in range(4):
        A(f"ds_read_b32 v{S0+2*w}, v9 offset:{w*2048 + (ct%2)*256}")
        A(f"ds_read_b32 v{S0+2*w+1}, v9 offset:{w*2048 + (ct%2)*256 + 128}")
    A("s_waitcnt lgkmcnt(0)")
    for w in range(4):
        A(f"v_max3_f32 v{vM+ct}, v{S0+2*w}, v{S0+2*w+1}, v{vM+ct}")
a_sync()
A(f"s_mov_b32 s{sLOOP}, 16")
A.label("L_sl2")
ld_kraw(); ld_v(0, 0, 0); ld_v(0, 1, 0); adv()
A("s_waitcnt vmcnt(0)")
for ct in range(8):
    A(f"v_mfma_f32_32x32x16_bf16 v[{S0}:{S0+15}], v[{KV[0]}:{KV[0]+3}], v[{QF+4*ct}:{QF+4*ct+3}], 0")
    A.nop(12)
    round_scores()
    for i in range(16):
        A(f"v_sub_f32 v{S0+i}, v{S0+i}, v{vM+ct}")
    for i in range(16):
        A(f"v_mul_f32 v{S0+i}, s{sT4}, v{S0+i}")
    for i in range(16):
        A(f"v_exp_f32 v{S0+i}, v{S0+i}")
    A.nop(2)
    A(f"v_smfmac_f32_32x32x32_bf16 a[{16*ct}:{16*ct+15}], v[{KV[0]+4}:{KV[0]+7}], v[{S0}:{S0+7}], v{vIDX}")
    A(f"v_smfmac_f32_32x32x32_bf16 a[{16*ct}:{16*ct+15}], v[{KV[0]+8}:{KV[0]+11}], v[{S0+8}:{S0+15}], v{vIDX}")
A(f"""
s_sub_u32 s{sLOOP}, s{sLOOP}, 1
s_cmp_lg_u32 s{sLOOP}, 0
s_cbranch_scc1 L_sl2
s_nop 15
""")
for ct in range(6): part_write(ct)
A("s_waitcnt lgkmcnt(0)")
cnt_add(vCNT, vIDX, 4)
A(f"""
s_add_u32 s{sATG}, s{sATG}, 4
""")
comb_addr(0); comb_addr(1); comb_addr(2); comb_addr(3)
cnt_wait(vCNT, 16, f"s{sATG}", 4)
comb_reads(0); comb_reads(1)
A("s_branch L_comb2")

if OPT["xm"] or OPT["xv"] or OPT["xl"]:
    i0 = A.lines.index("L_S2:"); i1 = A.lines.index("L_hot_end:")
    seen = False
    for i in range(i0, i1):
        t = A.lines[i].strip()
        if t.startswith("ds_write_b128") : seen = True
        if not seen: continue
        if OPT["xm"] and t.startswith("v_mfma"): A.lines[i] = "    s_nop 7"
        if OPT["xv"] and (t.startswith(("v_pk_", "v_fma_f32", "v_cvt_pk", "v_mul_f32", "v_add_f32"))): A.lines[i] = "    s_nop 1"
        if OPT["xl"] and t.startswith(("ds_read_b128", "ds_write_b128")): A.lines[i] = "    s_nop 0"
if OPT["arch"]:
    import re
    def toarch(t):
        t = t.replace("v_accvgpr_read_b32", "v_mov_b32")
        t = re.sub(r"\ba\[(\d+):(\d+)\]", lambda x: f"v[{128+int(x.group(1))}:{128+int(x.group(2))}]", t)
        return re.sub(r"\ba(\d+)\b", lambda x: f"v{128+int(x.group(1))}", t)
    A.lines = [toarch(l) for l in A.lines]
hdr = open("cdna_kernels/" + NAME + ".s.ref").read().split("; Override launch")[0]
out = hdr + f"""; Fused single-launch kernel, written with the generator script gen/gen18.py (hand-scheduled instruction streams).
; 256 workgroups (one per CU) x 8 waves; workgroup (c, g) = 64 tokens x (4 heads | 64 SSM channels | 64 output columns).
;  waves 0-3 (attention): Q projection -> S^T = K Q^T (32x32x16 MFMA) -> v_exp -> O^T += [V^T;1] P^T with the sparse MFMA,
;     which picks the high (bf16) half of each fp32 exp result; every wave owns a quarter of the keys, partial sums meet in LDS.
;     No max subtraction while |q||k| proves |score*log2e| < 32 (checked at run time); otherwise the slow path redoes the
;     attention with the exact row maxima (and scores rounded to bf16 like the reference).
;  waves 4-7 (SSM + projections): K/V projection, x B^T, chunked complex scan (look-back over chunk aggregates),
;     h C^T + x D, and the output projection.
;  Hand-offs between workgroups go through d_ws with write-through stores and L1-bypassing loads; flags / granules carry a
;  tag derived from a launch counter kept in d_ws[0], the O fragments are recognised by a sentinel written in this launch.
; @launch grid=(256,1,1) block=(512,1,1) lds={LDS_BYTES}
.amdgcn_target "amdgcn-amd-amdhsa--gfx950"
.text
.globl {NAME}_kernel
.p2align 8
.type {NAME}_kernel,@function
{NAME}_kernel:
""" + A.text() + f""".section .rodata,"a"
.p2align 6
.amdhsa_kernel {NAME}_kernel
  .amdhsa_next_free_vgpr 256
  .amdhsa_next_free_sgpr 102
  .amdhsa_accum_offset {256 if OPT["arch"] else 128}
  .amdhsa_group_segment_fixed_size 0
  .amdhsa_kernarg_size 136
  .amdhsa_user_sgpr_count 2
  .amdhsa_user_sgpr_kernarg_segment_ptr 1
  .amdhsa_system_sgpr_workgroup_id_x 1
.end_amdhsa_kernel
"""
open(sys.argv[1], "w").write(out)
errs = check(A.lines) + check(A.lines[loop_end-60:loop_end] + A.lines[loop_start:loop_start+60])
for e in errs: print("HAZARD:", e)
print(f"{len(A.lines)} lines, {len(errs)} hazards")
```

```python
import sys, math, struct
from asmlib import *

OPT = dict(dbg=0, force_slow=0, stamps=0, noS=0, cyc=0, ost=2, gprio=0, vprio=3, hst=0, stgwin=8, pfq=0, pfb=2, stgl=2, qpre=2,
           pfc=2, ssl=2, la=8, sst=0, win0=0, trig=6, odel=0, sgate=2, map84=1, g1p=0, g2p=0, noKV=0, nochk=0, wq1=12, cpos=1, hdbg=0, p2n=20, oack=2, cim1=0, npre0=0, mid=0, sl1=2, sl2=2, sl0=0, tlb=0, pad=0, padat=0, p1at=3, e0c=24, q1a=2, p1k=20, kv0=4, g0=0, ofirst=0, xm=0, xv=0, xl=0, npre=15, l0=30, ostb=2, cap=6, cap0=8, enc=0, encS=0, aprio=3, y1f=7, osl=0, q2w=1, osplit=0, ptop=1, jit=0, arch=0, orot=0, p1c=99, fsl=0, kvs=0, lbs=4)
for a in sys.argv[2:]:
    k, v = a.split("=")
    assert k in OPT, k
    OPT[k] = int(v)

NAME = "concat_heads__ssm_conv_s5__grouped_kv_mqa__prompt"
def f2u(x): return struct.unpack("<I", struct.pack("<f", x))[0]

XQ, WQ = 0, 66560
KVX, WKV = 3*16640, 66560 + 3*16384
SLOT = [0, 49920, 99840]
XA_O, BRE_O, BIM_O = 0, 16640, 33280
CIM, CRE = 0, 66560
CB_T = 2304
CB = 133120 - 12*CB_T
def cb_off(slot): return (12 + slot)*CB_T if slot < 3 else (slot - 3)*CB_T
TB = 133120
TBY = CB
CREA, CREB = 99840, 66560
WO = 66560
TB2 = 0
QX = 149760; EB = 157952; HP = 160000; CNT = 162048; QM = 162064; KM = 162068; CNT4 = 24
assert CB + 24*CB_T <= CNT
assert TB + 16384 <= EB
LDS_BYTES = 163840
FL1, FL3 = 0x1000, 0x9000
KVT = 0x80000; KVS = 4096
AGG = 0x30000; AGG_DUMMY = 32*8192; AGG_SIZE = AGG_DUMMY + 256*128
OB, HB = 0x100000, 0x400000
DBG = 0x1000000
WS_SIZE = 0x2000000
assert AGG + AGG_SIZE <= KVT
sWAVE, sC, sG, sTAG, sID = 3, 4, 5, 6, 7
R_XB, R_WQ, R_WKV, R_XA, R_BRE, R_BIM, R_CRE, R_CIM, R_WO, R_OUT, R_WS, R_AGG = 8, 12, 16, 20, 24, 28, 32, 36, 40, 44, 48, 52
P_LRE, P_LIM, P_LDT, P_DSK, P_WV = 56, 58, 60, 62, 64
sEP, sDONE = 66, 67
sT0, sT1, sT2, sT3, sT4, sT5 = 68, 69, 70, 71, 72, 73
sT6, sSPIN = 74, 75
sTW, sCW = 76, 77
sLOOP, sKOFF, sROT, sSW = 78, 79, 80, 81
sOB, sT7 = 82, 83
sATG = 65
sST = 84
def srd(r): return f"s[{r}:{r+3}]"

A = Asm()
OST = ["", " sc1", " nt", " sc0 sc1", " sc1 nt"][OPT["ost"]]
OSTB = OST if OPT["ostb"] < 0 else ["", " sc1", " nt", " sc0 sc1", " sc1 nt"][OPT["ostb"]]
SPIN_MAX = 200000
HST = OPT["hst"]

SSEC = [False]
def sstamp(i, mode):
    if OPT["stamps"] and OPT["sst"] == mode:
        A(f"s_memrealtime s[{sST+2*i}:{sST+2*i+1}]")
def stamp(i, cond=True):
    if (OPT["enc"] or OPT["encS"]) and cond and (i == 0 or (SSEC[0] and i == OPT["encS"]) or (not SSEC[0] and i == OPT["enc"])):
        A(f"s_memrealtime s[{98 if i == 0 else 94}:{99 if i == 0 else 95}]")
        if i == 0: A("s_waitcnt lgkmcnt(0)\ns_sub_u32 s94, s98, 3000")
        return
    if SSEC[0] and OPT["sst"] and i < 8: return
    if OPT["stamps"] and cond:
        A(f"s_memrealtime s[{sST+2*i}:{sST+2*i+1}]")

def padto():
    l = A.newlabel("pad")
    A(f"""
    {l}:
    s_memrealtime s[96:97]
    s_waitcnt lgkmcnt(0)
    s_sub_u32 s96, s96, s98
    s_cmp_lt_u32 s96, {OPT["pad"]*100}
    s_cbranch_scc1 {l}
    """)
def prio(p): A(f"s_setprio {p}")

JIT = [0]
def jitter():
    if not OPT["jit"]: return
    JIT[0] += 1
    l = A.newlabel("jit")
    k = (JIT[0] * 2654435761 + OPT["jit"] * 40503) & 0xffffffff
    A(f"""
    s_lshl_b32 s100, s2, 3
    s_add_u32 s100, s100, s{sWAVE}
    s_mul_i32 s100, s100, {k | 1}
    s_lshr_b32 s100, s100, 29
    s_cmp_lg_u32 s100, 3
    s_cbranch_scc1 {l}
    s_sleep {40 + 17 * (JIT[0] % 5)}
    {l}:
    """)
def cnt_add(vaddr, vone, off=0):
    jitter()
    cnt_add_(vaddr, vone, off)
    jitter()
def cnt_add_(vaddr, vone, off=0):
    A(f"""
    s_mov_b64 exec, 1
    {"ds_inc_u32" if vone == vIDX else "ds_add_u32"} v{vaddr}, v{vone} offset:{off}
    s_mov_b64 exec, -1
    """)
def cnt_wait(vaddr, vtmp, target, off=0, sleep=0):
    lp = A.newlabel("sy"); dn = A.newlabel("syd")
    A(f"""
    s_mov_b32 s{sSPIN}, 0
    {lp}:
    ds_read_b32 v{vtmp}, v{vaddr} offset:{off}
    s_add_u32 s{sSPIN}, s{sSPIN}, 1
    s_waitcnt lgkmcnt(0)
    v_readfirstlane_b32 s{sT0}, v{vtmp}
    s_cmp_ge_u32 s{sT0}, {target}
    s_cbranch_scc1 {dn}
    {("s_sleep " + str(sleep)) if sleep else ""}
    s_cmp_lt_u32 s{sSPIN}, {SPIN_MAX}
    s_cbranch_scc1 {lp}
    {dn}:
    """)
    jitter()
NSYNC = [0]
def grp_sync():
    NSYNC[0] += 1
    A("s_waitcnt lgkmcnt(0)")
    cnt_add(vCNT, vONE)
    cnt_wait(vCNT, vTMP, CBASE + 4*NSYNC[0], sleep=OPT['ssl'])

def sync_add(wait_lds=True):
    NSYNC[0] += 1
    if wait_lds: A("s_waitcnt lgkmcnt(0)")
    cnt_add(vCNT, vONE)
def sync_wait(sleep=None):
    cnt_wait(vCNT, vTMP, CBASE + 4*NSYNC[0], sleep=OPT['ssl'] if sleep is None else max(sleep, OPT['sl0']))

def poll_flags(vaddr, vdst, width, sleep=2):
    lp = A.newlabel("pl"); dn = A.newlabel("pld")
    ld = "buffer_load_dword" if width == 1 else f"buffer_load_dwordx{width}"
    A(f"s_mov_b32 s{sSPIN}, 0")
    A.label(lp)
    A(f"""
    {ld} {vr(vdst, width)}, v{vaddr}, {srd(R_WS)}, 0 offen sc1
    s_add_u32 s{sSPIN}, s{sSPIN}, 1
    s_waitcnt vmcnt(0)
    v_cmp_ne_u32 vcc, s{sTAG}, v{vdst}
    s_cbranch_vccz {dn}
    {("s_sleep " + str(sleep)) if sleep else ""}
    s_cmp_lt_u32 s{sSPIN}, {SPIN_MAX}
    s_cbranch_scc1 {lp}
    {dn}:
    """)

def wave_max(v, tmp):
    A("s_nop 1")
    for sh in (1, 2, 4, 8):
        A(f"v_max_f32_dpp v{v}, v{v}, v{v} row_ror:{sh} row_mask:0xf bank_mask:0xf")
        A("s_nop 1")
    A(f"v_mov_b32 v{tmp}, v{v}")
    A("s_nop 1")
    A(f"v_permlane16_swap_b32 v{tmp}, v{v}")
    A(f"v_max_f32 v{v}, v{v}, v{tmp}")
    A(f"v_mov_b32 v{tmp}, v{v}")
    A("s_nop 1")
    A(f"v_permlane32_swap_b32 v{tmp}, v{v}")
    A(f"v_max_f32 v{v}, v{v}, v{tmp}")

def wq_voffset(dst, t0, t1, t2):
    A(f"""
    v_lshrrev_b32 v{t0}, 3, v{vLANE}
    v_and_b32 v{t1}, 7, v{vLANE}
    v_bfe_u32 v{t2}, v{vLANE}, 4, 1
    v_lshlrev_b32 v{t2}, 2, v{t2}
    v_xor_b32 v{t1}, v{t1}, v{t2}
    v_lshlrev_b32 v{t1}, 4, v{t1}
    v_lshl_add_u32 v{dst}, v{t0}, 10, v{t1}
    """)

vLANE, vL31, vH, vL16x = 1, 2, 3, 4
UR, UI, Y0, Y1 = 16, 32, 48, 64
FRS = 80
DG = 104
vL1, vL8, vL16, vL64, vL512, vCF = 112, 114, 116, 118, 120, 122
vCNT, vONE, vTMP, vP2, vDUM = 0, 124, 125, 126, 127
vXo, vBo, vDa, vSt = 5, 6, 7, 8
vAa, vBa = [9, 10, 11], [12, 13, 14]
vPF = 15
STG = 64
PRM = 100
S0, S1 = 16, 32
QF = 48
KV = [80, 92, 104, 116]
vIDX = 7
vM = 104
vZ = 120
vKt, vVt = [5, 8, 9, 10], [6, 12, 14, 15]

A(f"""
s_cmp_ge_u32 s2, 256
s_cbranch_scc1 L_end
""")
stamp(0)
if OPT["pad"]: A("s_memrealtime s[98:99]")
sizes = {R_XB: 65536, R_WKV: 16384, R_WQ: 523392, R_WS: WS_SIZE, R_XA: 65536, R_BRE: 65536, R_BIM: 65536, R_CRE: 65536, R_CIM: 65536,
         R_WO: 523392, R_OUT: 262144, R_AGG: AGG_SIZE}
def kload(lst):
    for r, off in lst:
        A(f"s_load_dwordx2 s[{r}:{r+1}], s[0:1], {off}")
def srd_words(rs):
    for r in rs:
        A(f"s_mov_b32 s{r+2}, {sizes[r]}")
        A(f"s_mov_b32 s{r+3}, 0x20000")
kload([(R_XB, 72), (R_WKV, 88), (P_WV, 96), (R_WQ, 80), (R_WS, 128)])
if OPT["ptop"]:
    A(f"s_load_dwordx4 s[{P_LRE}:{P_LRE+3}], s[0:1], 8")
    A(f"s_load_dwordx4 s[{P_LDT}:{P_LDT+3}], s[0:1], 56")
A(f"""
v_lshrrev_b32 v5, 6, v0
v_and_b32 v{vLANE}, 63, v0
v_readfirstlane_b32 s{sWAVE}, v5
v_lshlrev_b32 v{vL16x}, 4, v{vLANE}
v_bfe_u32 v{vH}, v0, 5, 1
v_and_b32 v{vL31}, 31, v0
v_mov_b32 v0, {CNT}
""")
srd_words([R_XB])
A(f"""
""")
if OPT["map84"]:
    A(f"""
    s_bfe_u32 s{sC}, s2, 0x20001
    s_lshl_b32 s{sC}, s{sC}, 3
    s_bfe_u32 s{sT0}, s2, 0x30003
    s_add_u32 s{sC}, s{sC}, s{sT0}
    s_and_b32 s{sG}, s2, 1
    s_lshl_b32 s{sG}, s{sG}, 2
    s_lshr_b32 s{sT0}, s2, 6
    s_add_u32 s{sG}, s{sG}, s{sT0}
    s_add_u32 s{sROT}, s{sC}, s{sG}
    s_and_b32 s{sROT}, s{sROT}, 3
    """)
else:
    A(f"""
    s_and_b32 s{sC}, s2, 7
    s_lshl_b32 s{sC}, s{sC}, 2
    s_bfe_u32 s{sROT}, s2, 0x20003
    s_add_u32 s{sC}, s{sC}, s{sROT}
    s_lshr_b32 s{sG}, s2, 5
    """)
A(f"""
s_lshl_b32 s{sT2}, s{sC}, 16
s_sub_u32 s{sSW}, s{sWAVE}, 4
s_cbranch_scc1 L_A0
{"" if OPT["ptop"] else f"s_load_dwordx4 s[{P_LRE}:{P_LRE+3}], s[0:1], 8"}
{"" if OPT["ptop"] else f"s_load_dwordx4 s[{P_LDT}:{P_LDT+3}], s[0:1], 56"}
s_setprio 3
v_mov_b32 v20, 0
v_mov_b32 v21, 0
s_lshl_b32 s{sT0}, s{sG}, 6
s_lshl_b32 s{sT1}, s{sSW}, 4
s_and_b32 s{sT1}, s{sT1}, 32
s_add_u32 s{sT0}, s{sT0}, s{sT1}
v_add_lshl_u32 v{vP2}, s{sT0}, v{vL31}, 1
ds_write2_b64 v0, v[20:21], v[20:21] offset0:0 offset1:1
ds_write2_b64 v0, v[20:21], v[20:21] offset0:2 offset1:3
s_mov_b32 s{R_WKV+2}, {sizes[R_WKV]}
s_mov_b32 s{R_WKV+3}, 0x20000
s_lshl_b32 s{sT1}, s{sSW}, 12
s_lshl_b32 s{sT5}, s{sG}, 13
s_and_b32 s{sT5}, s{sT5}, 0xc000
s_add_u32 s{sT5}, s{sT5}, s{sT1}
s_mul_i32 s{sT0}, s{sSW}, 4160
s_add_u32 m0, s{sT1}, {WKV}
s_bitcmp1_b32 s{sG}, 0
s_waitcnt lgkmcnt(0)
s_cselect_b32 s{R_WKV}, s{P_WV}, s{R_WKV}
s_cselect_b32 s{R_WKV+1}, s{P_WV+1}, s{R_WKV+1}
s_add_u32 s{R_XB}, s{R_XB}, s{sT2}
s_addc_u32 s{R_XB+1}, s{R_XB+1}, 0
""")
for i in range(4):
    A(f"buffer_load_dwordx4 v{vL16x}, {srd(R_WKV)}, s{sT1} offen offset:{i*1024} lds")
for i in range(4):
    A(f"s_add_u32 m0, s{sT0}, {KVX + 16*i}")
    A(f"s_load_dword s{sEP}, s[{R_WS}:{R_WS+1}], 0" if i == 0 else "s_nop 0")
    A(f"buffer_load_dwordx4 v{vL16x}, {srd(R_XB)}, s{sT5} offen offset:{i*1024} lds")
A(f"""
s_barrier
global_load_ushort v{PRM}, v{vP2}, s[{P_LRE}:{P_LRE+1}]
global_load_ushort v{PRM+1}, v{vP2}, s[{P_LIM}:{P_LIM+1}]
global_load_ushort v{PRM+2}, v{vP2}, s[{P_LDT}:{P_LDT+1}]
global_load_ushort v{PRM+3}, v{vP2}, s[{P_DSK}:{P_DSK+1}]
s_cmp_eq_u32 s{sSW}, 1
s_cbranch_scc1 L_qx
s_cmp_eq_u32 s{sSW}, 2
s_cbranch_scc1 L_qw
s_branch L_S1
L_A0:
""")
def common_scalars():
    kload([(R_OUT, 112)])
    srd_words([R_WS, R_OUT])
    A(f"""
    s_and_b32 s{sTW}, s{sWAVE}, 1
    s_bfe_u32 s{sCW}, s{sWAVE}, 0x10001
    s_lshl_b32 s{sID}, s{sC}, 3
    s_add_u32 s{sID}, s{sID}, s{sG}
    s_mov_b32 s{sDONE}, 0
    s_lshl_b32 s{sOB}, s{sC}, 1
    s_add_u32 s{sOB}, s{sOB}, s{sTW}
    s_lshl_b32 s{sOB}, s{sOB}, 15
    s_add_u32 s{sOB}, s{sOB}, {OB}
    """)
def common_after_wait(tag=True):
    A(f"""
    s_lshl_b32 s{sT0}, s{sC}, 18
    s_add_u32 s{R_OUT}, s{R_OUT}, s{sT0}
    s_addc_u32 s{R_OUT+1}, s{R_OUT+1}, 0
    """)
    if tag: A(f"""
    s_mul_i32 s{sTAG}, s{sEP}, 0x9E3779B1
    s_add_u32 s{sTAG}, s{sTAG}, 0x7F4A7C15
    """)
vWQo, vXQo = 119, 117
A(f"""
v_lshrrev_b32 v6, 4, v{vLANE}
v_and_b32 v7, 15, v{vLANE}
v_lshlrev_b32 v7, 4, v7
v_lshl_add_u32 v{vXQo}, v6, 14, v7
s_mul_i32 s{sT6}, s{sWAVE}, 4160
s_lshl_b32 s{sT7}, s{sWAVE}, 12
""")
srd_words([R_WQ])
wq_voffset(vWQo, 6, 7, 10)
A(f"""
s_lshl_b32 s{sT0}, s{sG}, 7
s_waitcnt lgkmcnt(0)
s_add_u32 s{R_XB}, s{R_XB}, s{sT2}
s_addc_u32 s{R_XB+1}, s{R_XB+1}, 0
s_add_u32 s{R_WQ}, s{R_WQ}, s{sT0}
s_addc_u32 s{R_WQ+1}, s{R_WQ+1}, 0
s_load_dword s{sEP}, s[{R_WS}:{R_WS+1}], 0
s_barrier
""")
stamp(1, HST)
def x_dma(s):
    A(f"""
    s_add_u32 s{sT3}, s{sROT}, {s}
    s_and_b32 s{sT3}, s{sT3}, 3
    s_lshl_b32 s{sT4}, s{sT3}, 8
    s_add_u32 s{sT4}, s{sT4}, s{sT7}
    """)
    for i in range(4):
        A(f"""
        s_add_u32 m0, s{sT6}, {XQ + s*16640 + i*16}
        s_nop 0
        buffer_load_dwordx4 v{vXQo}, {srd(R_XB)}, s{sT4} offen offset:{i*1024} lds
        """)
def wq_dma(s):
    A(f"""
    s_lshl_b32 s{sT3}, s{sT3}, 4
    s_add_u32 s{sT3}, s{sT3}, s{sWAVE}
    s_lshl_b32 s{sT3}, s{sT3}, 13
    s_lshl_b32 s{sT2}, s{sWAVE}, 10
    """)
    for i in range(4):
        A(f"""
        s_add_u32 m0, s{sT2}, {WQ + s*16384 + i*4096}
        s_add_u32 s{sT1}, s{sT3}, {i*32768}
        buffer_load_dwordx4 v{vWQo}, {srd(R_WQ)}, s{sT1} offen lds
        """)
for s in range(OPT["qpre"]):
    x_dma(s); wq_dma(s)
stamp(2 if HST else 1)
A("s_branch L_A1")
A.label("L_S1")
SSEC[0] = True
if OPT["pfc"] == 2:
    A(f"""
    s_cmp_lg_u32 s{sWAVE}, 7
    s_cbranch_scc1 L_nopfcode
    s_getpc_b64 s[{sT0}:{sT1}]
    L_pc:
    s_sub_u32 s{sT0}, s{sT0}, L_pc-{NAME}_kernel
    s_subb_u32 s{sT1}, s{sT1}, 0
    s_lshl_b32 s{sLOOP}, s{sROT}, 13
    v_lshlrev_b32 v16, 7, v{vLANE}
    v_add_u32 v16, s{sLOOP}, v16
    v_min_u32 v16, L_hot_end-{NAME}_kernel-4, v16
    global_load_dword v{vDUM}, v16, s[{sT0}:{sT1}]
    L_nopfcode:
    """)
A(f"""
v_mov_b32 v{vONE}, 1
s_lshl_b32 s{sID}, s{sC}, 3
s_add_u32 s{sID}, s{sID}, s{sG}
s_mov_b32 s{R_WS+2}, {WS_SIZE}
s_mov_b32 s{R_WS+3}, 0x20000
v_lshrrev_b32 v20, 4, v{vLANE}
v_and_b32 v21, 15, v{vLANE}
v_mul_u32_u24 v9, 1040, v21
v_lshl_add_u32 v9, v20, 4, v9
v_add_u32 v9, {KVX}, v9
v_lshrrev_b32 v10, 2, v21
v_lshl_add_u32 v10, v20, 3, v10
v_lshlrev_b32 v10, 5, v10
v_and_b32 v11, 3, v21
v_lshl_add_u32 v10, v11, 3, v10
v_add_u32 v10, {WKV}, v10
s_lshl_b32 s{sT6}, s{sC}, 1
s_lshr_b32 s{sT1}, s{sG}, 2
s_add_u32 s{sT6}, s{sT6}, s{sT1}
s_lshl_b32 s{sT6}, s{sT6}, 12
s_add_u32 s{sT6}, s{sT6}, {KVT}
s_bfe_u32 s{sT7}, s{sG}, 0x10001
s_waitcnt lgkmcnt(0)
s_mul_i32 s{sTAG}, s{sEP}, 0x9E3779B1
s_add_u32 s{sTAG}, s{sTAG}, 0x7F4A7C15
s_waitcnt vmcnt(4)
""")
stamp(6, HST)
cnt_add(vCNT, vONE)
A(f"""
s_cmp_lg_u32 s{sSW}, 0
s_cbranch_scc1 L_S2a
""")
cnt_wait(vCNT, vTMP, 4)
stamp(1)
def kv_rd(k):
    f = 32 + 8*(k % 6)
    A(f"ds_read_b64_tr_b16 v[{f}:{f+1}], v10 offset:{k*1024}")
    A(f"ds_read_b64_tr_b16 v[{f+2}:{f+3}], v10 offset:{k*1024+128}")
    A(f"ds_read_b128 v[{f+4}:{f+7}], v9 offset:{k*64}")
for k in range(4): kv_rd(k)
A(f"s_bitcmp1_b32 s{sG}, 0")
A("s_cbranch_scc1 L_kv_v")
def kv_chain(isv_):
    for k in range(16):
        f = 32 + 8*(k % 6)
        if k + 4 < 16: kv_rd(k + 4)
        issued = min(16, k + 5)
        A(f"s_waitcnt lgkmcnt({3*(issued - k - 1)})")
        c = "0" if k == 0 else "v[28:31]"
        a, b = (f"v[{f}:{f+3}]", f"v[{f+4}:{f+7}]") if not isv_ else (f"v[{f+4}:{f+7}]", f"v[{f}:{f+3}]")
        A(f"v_mfma_f32_16x16x32_bf16 v[28:31], {a}, {b}, {c}")
kv_chain(False)
if not OPT["q2w"]: cnt_add(vCNT, vONE)
else: A.nop(3)
A(f"s_mov_b32 s{sT0}, {f2u(0.25 * math.log2(math.e))}")
A(f"""
s_lshl_b32 s{sT7}, s{sT7}, 8
s_add_u32 s{sT6}, s{sT6}, s{sT7}
v_and_b32 v22, 1, v20
v_lshlrev_b32 v22, 9, v22
v_lshl_add_u32 v22, v21, 4, v22
v_lshrrev_b32 v23, 1, v20
v_lshl_add_u32 v22, v23, 3, v22
v_cvt_pk_bf16_f32 v26, v28, v29
v_cvt_pk_bf16_f32 v27, v30, v31
v_mul_f32 v28, s{sT0}, v28
v_mul_f32 v29, s{sT0}, v29
v_mul_f32 v30, s{sT0}, v30
v_mul_f32 v31, s{sT0}, v31
v_cvt_pk_bf16_f32 v24, v28, v29
v_cvt_pk_bf16_f32 v25, v30, v31
buffer_store_dwordx2 v[24:25], v22, {srd(R_WS)}, s{sT6} offen sc1
buffer_store_dwordx2 v[26:27], v22, {srd(R_WS)}, s{sT6} offen offset:2560 sc1
""")
if OPT["q2w"]: cnt_add(vCNT, vONE)
A(f"""
v_mul_f32 v16, v28, v28
v_fmac_f32 v16, v29, v29
v_fmac_f32 v16, v30, v30
v_fmac_f32 v16, v31, v31
v_mov_b32 v17, v16
s_nop 1
v_permlane16_swap_b32 v17, v16
v_add_f32 v16, v16, v17
v_mov_b32 v17, v16
s_nop 1
v_permlane32_swap_b32 v17, v16
v_add_f32 v17, v16, v17
""")
wave_max(17, 18)
A("s_branch L_kv_pub")
A.label("L_kv_v")
kv_chain(True)
if not OPT["q2w"]: cnt_add(vCNT, vONE)
A(f"""
s_mul_i32 s{sT7}, s{sT7}, 544
s_add_u32 s{sT6}, s{sT6}, s{sT7}
s_add_u32 s{sT6}, s{sT6}, 1024
v_lshrrev_b32 v22, 1, v20
v_mul_u32_u24 v22, 272, v22
v_and_b32 v23, 1, v20
v_lshl_add_u32 v22, v23, 3, v22
v_lshl_add_u32 v23, v21, 4, v22
v_cvt_pk_bf16_f32 v24, v28, v29
v_cvt_pk_bf16_f32 v25, v30, v31
buffer_store_dwordx2 v[24:25], v23, {srd(R_WS)}, s{sT6} offen sc1
v_mov_b32 v26, 0x3f803f80
v_mov_b32 v27, 0x3f803f80
s_mov_b32 exec_lo, 0x00010001
s_mov_b32 exec_hi, 0x00010001
buffer_store_dwordx2 v[26:27], v22, {srd(R_WS)}, s{sT6} offen offset:256 sc1
s_mov_b64 exec, -1
v_mov_b32 v17, 0
""")
if OPT["q2w"]: cnt_add(vCNT, vONE)
A.label("L_kv_pub")
A(f"""
s_lshl_b32 s{sT0}, s{sID}, 7
s_add_u32 s{sT0}, s{sT0}, {FL1}
v_mov_b32 v16, s{sTAG}
v_mov_b32 v9, 0
s_waitcnt vmcnt(0)
s_mov_b64 exec, 1
buffer_store_dwordx2 v[16:17], v9, {srd(R_WS)}, s{sT0} offen sc1
ds_add_u32 v{vCNT}, v{vONE}
s_mov_b64 exec, -1
""")
stamp(2)
A("s_branch L_S2")
def q_head():
    A(f"""
    v_mov_b32 v{vONE}, 1
    s_lshl_b32 s{sID}, s{sC}, 3
    s_add_u32 s{sID}, s{sID}, s{sG}
    s_waitcnt lgkmcnt(0)
    s_mul_i32 s{sTAG}, s{sEP}, 0x9E3779B1
    s_add_u32 s{sTAG}, s{sTAG}, 0x7F4A7C15
    s_waitcnt vmcnt(4)
    """)
    cnt_add(vCNT, vONE)
    prio(0)
def q_sig():
    A("s_waitcnt vmcnt(16)"); cnt_add(vCNT, vONE, 24)
    A("s_waitcnt vmcnt(0)"); cnt_add(vCNT, vONE, 28)
    prio(3)
    A("s_branch L_S2")
A.label("L_qx")
A(f"""
v_lshrrev_b32 v20, 4, v{vLANE}
v_and_b32 v21, 15, v{vLANE}
v_lshlrev_b32 v22, 4, v21
v_lshl_add_u32 v22, v20, 14, v22
""")
q_head()
for s_ in (2, 3):
    if s_ == 3 - OPT['q2w']: cnt_wait(vCNT, vTMP, 5)
    A(f"""
    s_add_u32 s{sT3}, s{sROT}, {s_}
    s_and_b32 s{sT3}, s{sT3}, 3
    s_lshl_b32 s{sT3}, s{sT3}, 8
    """)
    for i in range(16):
        A(f"s_mov_b32 m0, {XQ + s_*16640 + i*1040 - (i & 3)*1024}")
        A(f"s_add_u32 s{sT3}, s{sT3}, 4096" if (i & 3 == 0 and i) else "s_nop 0")
        A(f"buffer_load_dwordx4 v22, {srd(R_XB)}, s{sT3} offen offset:{(i & 3)*1024} lds")
q_sig()
A.label("L_qw")
srd_words([R_WQ])
wq_voffset(22, 23, 24, 25)
A(f"""
s_lshl_b32 s{sT0}, s{sG}, 7
s_add_u32 s{R_WQ}, s{R_WQ}, s{sT0}
s_addc_u32 s{R_WQ+1}, s{R_WQ+1}, 0
""")
q_head()
for s_ in (2, 3):
    if s_ == 3 - OPT['q2w']: cnt_wait(vCNT, vTMP, 5)
    A(f"""
    s_add_u32 s{sT3}, s{sROT}, {s_}
    s_and_b32 s{sT3}, s{sT3}, 3
    s_lshl_b32 s{sT3}, s{sT3}, 17
    """)
    for i in range(16):
        A(f"s_mov_b32 m0, {WQ + s_*16384 + i*1024}")
        A(f"s_add_u32 s{sT3}, s{sT3}, 8192" if i else "s_nop 0")
        A(f"buffer_load_dwordx4 v22, {srd(R_WQ)}, s{sT3} offen lds")
q_sig()
SSEC[0] = False
A.label("L_A1")
for i in range(4): A(f"v_mov_b32 v{vZ+i}, 0")
vXa, vWa, vFl, vQw, vQr, vAone = 8, 9, 10, 14, 15, vIDX
common_scalars()
for ct in range(8):
    A(f"v_mfma_f32_32x32x16_bf16 a[{16*ct}:{16*ct+15}], v[{vZ}:{vZ+3}], v[{vZ}:{vZ+3}], 0")
A(f"""
v_and_b32 v6, 15, v{vL31}
v_mul_u32_u24 v{vXa}, 1040, v6
v_lshl_add_u32 v{vXa}, v{vH}, 4, v{vXa}
v_lshrrev_b32 v6, 4, v{vL31}
v_lshl_add_u32 v{vXa}, v6, 8, v{vXa}
s_lshl_b32 s{sT0}, s{sTW}, 9
v_add_u32 v{vXa}, s{sT0}, v{vXa}
v_bfe_u32 v6, v{vLANE}, 2, 2
v_lshl_add_u32 v6, v{vH}, 3, v6
v_bfe_u32 v7, v{vLANE}, 4, 1
v_and_b32 v11, 3, v{vLANE}
v_lshlrev_b32 v11, 3, v11
v_lshl_add_u32 v11, v7, 5, v11
s_lshl_b32 s{sT0}, s{sCW}, 6
v_add_u32 v11, s{sT0}, v11
v_bfe_u32 v7, v{vLANE}, 3, 1
v_lshlrev_b32 v7, 6, v7
v_xor_b32 v11, v11, v7
v_lshl_add_u32 v{vWa}, v6, 7, v11
v_add_u32 v{vWa}, {WQ}, v{vWa}
s_lshl_b32 s{sT0}, s{sWAVE}, 13
s_add_u32 s{sT0}, s{sT0}, {FL1}
v_lshlrev_b32 v{vFl}, 7, v{vLANE}
v_add_u32 v{vFl}, s{sT0}, v{vFl}
s_lshl_b32 s{sT0}, s{sWAVE}, 16
s_add_u32 s{sT1}, s{sT0}, {KVT}
v_add_u32 v{vKt[0]}, s{sT1}, v{vL16x}
s_add_u32 s{sT1}, s{sT1}, 1024
v_lshlrev_b32 v13, 4, v{vL31}
v_mul_u32_u24 v14, 272, v{vH}
v_add3_u32 v13, v13, v14, s{sT1}
v_cmp_lt_u32 vcc, 16, v{vL31}
v_mov_b32 v14, 0x7ff00000
v_mov_b32 v{vIDX}, 0xdddddddd
v_cndmask_b32 v{vVt[0]}, v13, v14, vcc
s_lshl_b32 s{sKOFF}, s{sROT}, 14
s_lshl_b32 s{sT0}, s{sCW}, 2
s_add_u32 s{sT0}, s{sT0}, s{sTW}
s_lshl_b32 s{sT0}, s{sT0}, 10
s_add_u32 s{sT0}, s{sT0}, {QX}
v_add_u32 v{vQw}, s{sT0}, v{vL16x}
v_add_u32 v{vQr}, {QX}, v{vL16x}
s_waitcnt lgkmcnt(0)
""")
common_after_wait()
QP = OPT["qpre"]
sKVOK = sATG
vFG = 12
def ld_k(b, t, so=sKOFF):
    A(f"buffer_load_dwordx4 v[{KV[b]}:{KV[b]+3}], v{vKt[t]}, {srd(R_WS)}, s{so} offen sc1")
def ld_v(b, j, t, so=sKOFF):
    A(f"buffer_load_dwordx4 v[{KV[b]+4+4*j}:{KV[b]+7+4*j}], v{vVt[t]}, {srd(R_WS)}, s{so} offen offset:{544*j} sc1")
def kv_first(b0=0):
    for b in range(b0, OPT["kv0"]):
        A(f"s_add_u32 s{sT1}, s{sKOFF}, {b*KVS}")
        ld_k(b, 0, sT1); ld_v(b, 0, 0, sT1); ld_v(b, 1, 0, sT1)
    A(f"ds_max_f32 v{vCNT}, v{vFG+1} offset:{KM - CNT}")
    if OPT["kv0"] == 4 or OPT["g0"]: cnt_add(vCNT, vAone, 12)
def kv_try(tag):
    A(f"""
    v_cmp_ne_u32 vcc, s{sTAG}, v{vFG}
    s_cbranch_vccnz L_kvlate{tag}
    s_mov_b32 s{sKVOK}, 1
    """)
    kv_first()
    A(f"s_branch L_kvq{tag}")
    A.label(f"L_kvlate{tag}")
    flag_ld()
    A.label(f"L_kvq{tag}")
def flag_ld(): A(f"buffer_load_dwordx2 v[{vFG}:{vFG+1}], v{vFl}, {srd(R_WS)}, 0 offen sc1")
def q_rd(k):
    s_, kk = divmod(k, 8)
    f = 32 + 8*(k % 6)
    A(f"ds_read_b64_tr_b16 v[{f}:{f+1}], v{vWa} offset:{s_*16384 + kk*2048}")
    A(f"ds_read_b64_tr_b16 v[{f+2}:{f+3}], v{vWa} offset:{s_*16384 + kk*2048 + 512}")
    A(f"ds_read_b128 v[{f+4}:{f+7}], v{vXa} offset:{XQ + s_*16640 + kk*32}")
A(f"s_mov_b32 s{sKVOK}, 0")
A("s_waitcnt vmcnt(8)")
stamp(3, HST)
cnt_add(vCNT, vAone, 4)
cnt_wait(vCNT, 11, 4, 4)
for k in range(4): q_rd(k)
done = 0
for k in range(32):
    if k == OPT["q1a"]:
        A("s_waitcnt vmcnt(0)")
        cnt_add(vCNT, vAone, 4)
    if k == OPT["p1k"]: flag_ld()
    if k == OPT["p1c"]:
        A("s_waitcnt vmcnt(0)")
        kv_try("a")
    if k + 4 < 32:
        if (k + 4) % 8 == 0:
            s_ = (k + 4) // 8
            if s_ == 1: cnt_wait(vCNT, 11, 8, 4)
            else: cnt_wait(vCNT, 11, 2, 24 + 4*(s_ - 2))
            stamp(3 + s_, HST)
            done = k + 4
        q_rd(k + 4)
    if k >= done:
        A(f"s_waitcnt lgkmcnt({3*(min(32, k + 5) - k - 1)})")
    c = "0" if k == 0 else f"v[{S0}:{S0+15}]"
    f = 32 + 8*(k % 6)
    A(f"v_mfma_f32_32x32x16_bf16 v[{S0}:{S0+15}], v[{f}:{f+3}], v[{f+4}:{f+7}], {c}")
if OPT["kvs"]:
    A(f"""
    s_waitcnt vmcnt(0)
    v_cmp_ne_u32 vcc, s{sTAG}, v{vFG}
    s_cbranch_vccnz L_kvla
    s_mov_b32 s{sKVOK}, 1
    """)
    for b in range(OPT["kvs"]):
        A(f"s_add_u32 s{sT1}, s{sKOFF}, {b*KVS}")
        ld_k(b, 0, sT1); ld_v(b, 0, 0, sT1); ld_v(b, 1, 0, sT1)
    A("s_branch L_kvqa")
    A.label("L_kvla")
    flag_ld()
    A.label("L_kvqa")
A(f"""
s_mul_i32 s{sT6}, s{sWAVE}, {3*CB_T}
s_add_u32 s{sT6}, s{sT6}, {CB}
v_add_u32 v11, s{sT6}, v{vL16x}
s_mov_b32 s{sLOOP}, 4
""")
A.nop(8)
for i in range(8):
    A(f"v_cvt_pk_bf16_f32 v{32+i}, v{S0+2*i}, v{S0+2*i+1}")
    if i == 3: A(f"ds_write_b128 v{vQw}, v[32:35]")
A(f"""
ds_write_b128 v{vQw}, v[36:39] offset:2048
s_waitcnt lgkmcnt(0)
""")
cnt_add(vCNT, vAone, 4)
for hd in range(2):
    A(f"v_mul_f32 v{32+hd}, v{S0+8*hd}, v{S0+8*hd}")
    for i in range(1, 8):
        A(f"v_fmac_f32 v{32+hd}, v{S0+8*hd+i}, v{S0+8*hd+i}")
A(f"""
v_mov_b32 v34, v32
v_mov_b32 v35, v33
v_add_u32 v{vKt[1]}, {KVS}, v{vKt[0]}
v_add_u32 v{vKt[2]}, {2*KVS}, v{vKt[0]}
v_permlane32_swap_b32 v34, v32
v_permlane32_swap_b32 v35, v33
v_add_f32 v32, v32, v34
v_add_f32 v33, v33, v35
v_max_f32 v32, v32, v33
v_add_u32 v{vVt[2]}, {2*KVS}, v{vVt[0]}
ds_max_f32 v{vCNT}, v32 offset:{QM - CNT}
""")
for pr in range(4):
    A(f"s_add_u32 s{sT0}, s{sWAVE}, {pr + 1}")
    A(f"s_and_b32 s{sT0}, s{sT0}, 3")
    A(f"s_lshl_b32 s{sT0}, s{sT0}, 11")
    A(f"v_add_u32 v{36+pr}, s{sT0}, v{vQr}")
A(f"v_add_u32 v{vVt[3]}, {3*KVS}, v{vVt[0]}")
if OPT["p1c"] < 32:
    A(f"s_cmp_lg_u32 s{sKVOK}, 0")
    A("s_cbranch_scc1 L_kvqb")
if OPT["kvs"]:
    A(f"s_cmp_eq_u32 s{sKVOK}, 0")
    A("s_cbranch_scc1 L_kvb0")
    kv_first(OPT["kvs"])
    A("s_branch L_kvqb")
    A.label("L_kvb0")
A("s_waitcnt vmcnt(0)")
kv_try("b")
cnt_wait(vCNT, 35, 12, 4)
stamp(7 if HST else 2)
for pr in range(4):
    A(f"ds_read_b128 v[{QF+8*pr}:{QF+8*pr+3}], v{36+pr}")
    A(f"ds_read_b128 v[{QF+8*pr+4}:{QF+8*pr+7}], v{36+pr} offset:1024")
A(f"""
s_cmp_lg_u32 s{sKVOK}, 0
s_cbranch_scc1 L_kvgo
s_waitcnt vmcnt(0)
v_cmp_ne_u32 vcc, s{sTAG}, v{vFG}
s_cbranch_vccz L_kvok
""")
poll_flags(vFl, vFG, 2, sleep=OPT['fsl'])
A.label("L_kvok")
kv_first()
A.label("L_kvgo")
if OPT["pad"] and OPT["padat"] == 1: padto()
stamp(3, not HST)
A(f"""
s_waitcnt vmcnt({3*OPT['kv0'] - 1}) lgkmcnt(7)
v_mfma_f32_32x32x16_bf16 v[{S0}:{S0+15}], v[{KV[0]}:{KV[0]+3}], v[{QF}:{QF+3}], 0
v_add_u32 v{vKt[3]}, {3*KVS}, v{vKt[0]}
s_waitcnt vmcnt({3*OPT['kv0'] - 3}) lgkmcnt(0)
v_add_u32 v{vVt[1]}, {KVS}, v{vVt[0]}
v_lshlrev_b32 v13, 2, v{vLANE}
v_add_u32 v13, s{sT6}, v13
""")
A.nop(7)
SB = [S0, S1]
LASTSYNC = 8
CBASE = 6
def part_write(ct):
    A(f"ds_write_b128 v11, a[{16*ct}:{16*ct+3}] offset:{cb_off(ct)}")
    A(f"ds_write_b128 v11, a[{16*ct+4}:{16*ct+7}] offset:{cb_off(ct) + 1024}")
    A(f"ds_write_b32 v13, a{16*ct+8} offset:{cb_off(ct) + 2048}")
PD = [[32, 16, 24, 80], [40, 88, 96, 104]]
PL = [[120, 112, 113, 114], [122, 115, 116, 117]]
def comb_addr(k):
    if k < 3:
        A(f"""
        s_add_u32 s{sT0}, s{sWAVE}, {k + 1}
        s_and_b32 s{sT0}, s{sT0}, 3
        s_mul_i32 s{sT0}, s{sT0}, {3*CB_T}
        s_add_u32 s{sT0}, s{sT0}, {CB}
        v_add_u32 v{8+k}, s{sT0}, v{vL16x}
        v_lshl_add_u32 v{[12, 14, 15][k]}, v{vL31}, 2, s{sT0}
        """)
    else:
        A(f"""
        s_lshl_b32 s{sT1}, s{sG}, 2
        s_add_u32 s{sT1}, s{sT1}, s{sWAVE}
        s_lshl_b32 s{sT1}, s{sT1}, 10
        s_lshl_b32 s{sT2}, s{sC}, 16
        s_add_u32 s{sT1}, s{sT1}, s{sT2}
        s_add_u32 s{sT1}, s{sT1}, {OB}
        s_add_u32 s{sT2}, s{sT1}, 32768
        s_waitcnt vmcnt(0)
        """)
def comb_reads(u):
    if u == 0: A(f"ds_read_b64 v[118:119], v0 offset:{QM - CNT}")
    for k in range(3):
        A(f"ds_read_b32 v{PL[u][k+1]}, v{[12, 14, 15][k]} offset:{cb_off(2*(2-k) + u) + 2048}")
    for k in range(3):
        A(f"ds_read_b128 v[{PD[u][k+1]}:{PD[u][k+1]+3}], v{8+k} offset:{cb_off(2*(2-k) + u)}")
        A(f"ds_read_b128 v[{PD[u][k+1]+4}:{PD[u][k+1]+7}], v{8+k} offset:{cb_off(2*(2-k) + u) + 1024}")
    if u == 0: A("s_waitcnt lgkmcnt(6)")
def period(kb, ct, mode):
    cur = SB[ct & 1]; oth = SB[(ct + 1) & 1]
    pct = (ct - 1) % 8
    pkb = kb if ct > 0 else (kb - 1) % 4
    nct = (ct + 1) % 8
    nkb = kb if ct < 7 else (kb + 1) % 4
    ld = ct == 0 and mode == "loop" and not OPT["noKV"]
    early = mode == "last" and 1 <= ct <= 6
    extra = {}
    if mode == "first" and OPT["kv0"] < 4:
        lds_ = []
        for b in range(OPT["kv0"], 4):
            lds_ += [lambda b=b: ld_k(b, b), lambda b=b: ld_v(b, 0, b), lambda b=b: ld_v(b, 1, b)]
        for n, f_ in enumerate(lds_): extra[[1, 2, 3, 6, 7, 11, 12, 13, 14][n]] = f_
    def e(i):
        A(f"v_exp_f32 v{cur+i}, v{cur+i}")
        if i in extra: extra[i]()
        if i == 15 and extra and not OPT["g0"]: cnt_add(vCNT, vAone, 12)
    e(0); e(1)
    if mode != "first":
        A(f"v_smfmac_f32_32x32x32_bf16 a[{16*pct}:{16*pct+15}], v[{KV[pkb]+8}:{KV[pkb]+11}], v[{oth+8}:{oth+15}], v{vIDX}")
    e(2)
    if mode == "last" and ct in (0, 3): A(f"ds_read_b32 v12, v{vCNT} offset:{28 if ct == 0 else 8}")
    if (mode, ct) == ("last", 7):
        A("s_waitcnt lgkmcnt(0)")
        cnt_add(vCNT, vIDX, 4)
    e(3)
    if ct == 7 and mode == "loop": A(f"s_waitcnt vmcnt(6)")
    e(4)
    if (mode, ct) != ("last", 7):
        A(f"v_mfma_f32_32x32x16_bf16 v[{oth}:{oth+15}], v[{KV[nkb]}:{KV[nkb]+3}], v[{QF+4*nct}:{QF+4*nct+3}], 0")
    for i in range(5, 10): e(i)
    A(f"v_smfmac_f32_32x32x32_bf16 a[{16*ct}:{16*ct+15}], v[{KV[kb]+4}:{KV[kb]+7}], v[{cur}:{cur+7}], v{vIDX}")
    if mode == "last" and ct in (4, 5): comb_addr(2*(ct - 4)); comb_addr(2*(ct - 4) + 1)
    if (mode, ct) == ("last", 7):
        cnt_wait(vCNT, 16, 16, 4)
        comb_reads(0)
    e(10); e(11)
    if (mode, ct) == ("last", 7): comb_reads(1)
    e(12)
    if ld: ld_k(pkb, pkb)
    if early: A(f"ds_write_b128 v11, a[{16*(ct-1)}:{16*(ct-1)+3}] offset:{cb_off(ct-1)}")
    e(13)
    if ld: ld_v(pkb, 0, pkb)
    if (kb, ct, mode) == (0, 1, "loop"): A(f"s_add_u32 s{sKOFF}, s{sKOFF}, {4*KVS}")
    if (kb, ct, mode) == (2, 7, "loop"): A(f"s_sub_u32 s{sLOOP}, s{sLOOP}, 1")
    if early: A(f"ds_write_b128 v11, a[{16*(ct-1)+4}:{16*(ct-1)+7}] offset:{cb_off(ct-1) + 1024}")
    e(14)
    if ld: ld_v(pkb, 1, pkb)
    if (kb, ct, mode) == (0, 1, "loop"): A(f"s_and_b32 s{sKOFF}, s{sKOFF}, 0xffff")
    if (kb, ct, mode) == (2, 7, "loop"): A(f"s_cmp_eq_u32 s{sLOOP}, 0")
    if early: A(f"ds_write_b32 v13, a{16*(ct-1)+8} offset:{cb_off(ct-1) + 2048}")
    e(15)
    if mode == "last" and ct == 8 - OPT["trig"] - 1: cnt_add(vCNT, vIDX, 12)
    if mode == "last" and ct in (0, 3):
        tgt = 6 if ct == 0 else 4
        A(f"""
        s_waitcnt lgkmcnt(0)
        v_readfirstlane_b32 s{sT0}, v12
        s_cmp_ge_u32 s{sT0}, {tgt if not (OPT["noS"] or OPT["nochk"]) else 0}
        s_cbranch_scc1 L_sfree{ct}
        """)
        cnt_wait(vCNT, 12, tgt, 28 if ct == 0 else 8, sleep=2)
        A.label(f"L_sfree{ct}")
if OPT["cyc"]: A(f"s_memtime s[{sST+10}:{sST+11}]")
period(0, 0, "first")
A("s_branch L_attn1")
A(".p2align 6")
A.label("L_attn")
loop_start = len(A.lines)
for kb in (3, 0, 1, 2):
    for ct in range(8):
        if (kb, ct) == (0, 1): A.label("L_attn1")
        period(kb, ct, "loop")
loop_end = len(A.lines)
A("s_cbranch_scc0 L_attn")
for ct in range(8):
    period(3, ct, "last")
A(f"""
s_mov_b32 s{sATG}, 16
s_nop 0
v_smfmac_f32_32x32x32_bf16 a[112:127], v[{KV[3]+8}:{KV[3]+11}], v[{S1+8}:{S1+15}], v{vIDX}
""")
stamp(4, not HST)
if OPT["cyc"]: A(f"s_memtime s[{sST+12}:{sST+13}]")
if OPT["pad"] and OPT["padat"] == 2: padto()
A.label("L_comb2")
if OPT["aprio"]: prio(OPT["aprio"])
def astamp(i):
    if OPT["cyc"] or HST or not (OPT["stamps"] or OPT["enc"]): return
    stamp(i)
astamp(5)
A("s_waitcnt lgkmcnt(9)")
A(f"""
v_accvgpr_read_b32 v120, a{16*6+8}
v_accvgpr_read_b32 v121, a{16*6+8}
v_mul_f32 v118, v118, v119
v_add_f32 v112, v112, v113
v_permlane32_swap_b32 v120, v121
v_cmp_nge_f32 vcc, {f2u(-1.0 if OPT['force_slow'] else 1000.0)}, v118
v_add_f32 v120, v120, v114
v_add_f32 v120, v120, v112
v_rcp_f32 v120, v120
s_cbranch_vccnz L_slow
L_fast:
""")
def comb(u, soff):
    d = PD[u]
    if OPT["arch"]: d = [128 + 16*(6+u)] + d[1:]
    else:
        for i in range(8): A(f"v_accvgpr_read_b32 v{d[0]+i}, a{16*(6+u)+i}")
    if u == 1:
        A(f"""
        v_accvgpr_read_b32 v122, a{16*7+8}
        v_accvgpr_read_b32 v123, a{16*7+8}
        s_waitcnt lgkmcnt(2)
        v_add_f32 v115, v115, v116
        v_permlane32_swap_b32 v122, v123
        v_add_f32 v115, v115, v117
        v_add_f32 v122, v122, v115
        v_rcp_f32 v122, v122
        """)
    for i in range(0, 8, 2): A(f"v_pk_add_f32 {p2(d[1]+i)}, {p2(d[1]+i)}, {p2(d[2]+i)}")
    if u == 1:
        A("s_waitcnt lgkmcnt(0)")
        if OPT["oack"] == 2: cnt_add(vCNT, vIDX, 12)
    for i in range(0, 8, 2): A(f"v_pk_add_f32 {p2(d[0]+i)}, {p2(d[0]+i)}, {p2(d[3]+i)}")
    for i in range(0, 8, 2): A(f"v_pk_add_f32 {p2(d[0]+i)}, {p2(d[0]+i)}, {p2(d[1]+i)}")
    for i in range(0, 8, 2):
        A(f"v_pk_mul_f32 {p2(d[0]+i)}, {p2(d[0]+i)}, {p2(PL[u][0])} op_sel_hi:[1,0]")
    for i in range(0, 8, 2):
        A(f"v_cvt_pk_bf16_f32 v{d[1]+i//2}, v{d[0]+i}, v{d[0]+i+1}")
    A(f"buffer_store_dwordx4 v[{d[1]}:{d[1]+3}], v{vL16x}, {srd(R_WS)}, s{soff} offen sc1")
def p2(r): return f"v[{r}:{r+1}]"
comb(0, sT1); comb(1, sT2)
astamp(6)
if OPT["oack"]: A("s_waitcnt vmcnt(0)")
cnt_add(vCNT, vIDX, 24 if OPT["oack"] == 2 else 12)
A(f"""
s_or_b32 s{sT0}, s2, s{sWAVE}
s_cmp_lg_u32 s{sT0}, 0
s_cbranch_scc1 L_noep
s_add_u32 s{sT0}, s{sEP}, 1
v_mov_b32 v10, s{sT0}
v_mov_b32 v11, 0
s_mov_b64 exec, 1
buffer_store_dword v10, v11, {srd(R_WS)}, 0 offen
s_mov_b64 exec, -1
L_noep:
""")
A.label("L_fin")
if OPT["enc"] or OPT["encS"]:
    A("""
    s_waitcnt vmcnt(0) lgkmcnt(0)
    s_add_u32 s94, s94, 3000
    L_enc:
    s_memrealtime s[96:97]
    s_waitcnt lgkmcnt(0)
    s_sub_u32 s96, s96, s94
    s_cmp_lt_i32 s96, 0
    s_cbranch_scc1 L_enc
    """)
if OPT["pad"] and OPT["padat"] == 0:
    A("s_waitcnt vmcnt(0)"); padto()
if OPT["stamps"]:
    A(f"""
    s_waitcnt vmcnt(0)
    s_memrealtime s[100:101]
    s_waitcnt lgkmcnt(0)
    s_lshl_b32 s{sT0}, s2, 3
    s_add_u32 s{sT0}, s{sT0}, s{sWAVE}
    s_lshl_b32 s{sT0}, s{sT0}, 6
    s_add_u32 s{sT0}, s{sT0}, {DBG + 0x800000}
    v_mov_b32 v11, 0
    """)
    for i in range(9): A(f"v_mov_b32 v{16+i}, s{sST+2*i}")
    A(f"""
    s_mov_b64 exec, 1
    buffer_store_dwordx4 v[16:19], v11, {srd(R_WS)}, s{sT0} offen
    buffer_store_dwordx4 v[20:23], v11, {srd(R_WS)}, s{sT0} offen offset:16
    buffer_store_dword v24, v11, {srd(R_WS)}, s{sT0} offen offset:32
    """)
if OPT["hdbg"]:
    A(f"""
    s_load_dwordx2 s[{sT2}:{sT3}], s[0:1], 120
    s_not_b32 s{sT0}, s{sST}
    v_mov_b32 v30, s{sT0}
    v_mov_b32 v31, 0
    s_waitcnt lgkmcnt(0)
    global_atomic_umax v31, v30, s[{sT2}:{sT3}]
    s_cmp_ge_u32 s{sWAVE}, 4
    s_cbranch_scc1 L_hdS
    """)
    for k, i in enumerate((0, 2, 3, 4, 5, 6, 8)):
        A(f"global_atomic_umax v31, v{16+i}, s[{sT2}:{sT3}] offset:{4*(1+k)}")
    A("s_branch L_end")
    A.label("L_hdS")
    for k, i in enumerate((1, 2, 3, 4, 5, 6, 7, 8)):
        if i in (1, 2):
            A(f"s_cmp_lg_u32 s{sWAVE}, 4")
            A(f"s_cbranch_scc1 L_hd{i}")
        A(f"global_atomic_umax v31, v{16+i}, s[{sT2}:{sT3}] offset:{4*(8+k)}")
        if i in (1, 2): A.label(f"L_hd{i}")
A.label("L_end")
A("s_endpgm")

A.label("L_S2a")
A("s_waitcnt vmcnt(0)")
A.label("L_S2")
SSEC[0] = True
kload([(R_XA, 0), (R_BRE, 24), (R_BIM, 32), (R_CRE, 40), (R_CIM, 48), (R_WO, 104), (R_AGG, 128)])
if OPT["pfc"] == 1:
    A(f"""
    s_cmp_lg_u32 s{sWAVE}, 7
    s_cbranch_scc1 L_nopfcode
    s_getpc_b64 s[{sT0}:{sT1}]
    L_pc:
    s_sub_u32 s{sT0}, s{sT0}, L_pc-{NAME}_kernel
    s_subb_u32 s{sT1}, s{sT1}, 0
    s_lshl_b32 s{sLOOP}, s{sROT}, 13
    v_lshlrev_b32 v16, 7, v{vLANE}
    v_add_u32 v16, s{sLOOP}, v16
    v_min_u32 v16, L_hot_end-{NAME}_kernel-4, v16
    global_load_dword v{vDUM}, v16, s[{sT0}:{sT1}]
    L_nopfcode:
    """)
common_scalars()
srd_words([R_XA, R_BRE, R_BIM, R_CRE, R_CIM, R_WO, R_AGG])
A(f"""
s_lshl_b32 s{sT3}, s{sG}, 7
s_lshl_b32 s{sT4}, s{sG}, 16
s_waitcnt lgkmcnt(0)
s_mov_b64 s[{P_LRE}:{P_LRE+1}], s[{R_BRE}:{R_BRE+1}]
s_mov_b64 s[{P_LIM}:{P_LIM+1}], s[{R_BIM}:{R_BIM+1}]
s_mov_b64 s[{P_LDT}:{P_LDT+1}], s[{R_CRE}:{R_CRE+1}]
s_mov_b64 s[{P_DSK}:{P_DSK+1}], s[{R_CIM}:{R_CIM+1}]
s_mov_b64 s[{P_WV}:{P_WV+1}], s[{R_WO}:{R_WO+1}]
""")
for r, t in ((R_XA, sT2), (R_BRE, sT4), (R_BIM, sT4), (R_CRE, sT4), (R_CIM, sT4), (R_WO, sT3)):
    A(f"s_add_u32 s{r}, s{r}, s{t}")
    A(f"s_addc_u32 s{r+1}, s{r+1}, 0")
A(f"""
s_add_u32 s{R_AGG}, s{R_AGG}, {AGG}
s_addc_u32 s{R_AGG+1}, s{R_AGG+1}, 0
""")
common_after_wait(False)
if OPT["tlb"]:
    A(f"""
    s_cmp_lg_u32 s{sSW}, 2
    s_cbranch_scc1 L_notlb
    v_mov_b32 v16, 0
    s_lshl_b32 s{sT0}, s{sC}, 17
    s_add_u32 s{sT0}, s{sT0}, {HB}
    s_mov_b32 s{sT1}, {KVT}
    s_mov_b64 exec, 1
    """)
    for R in (R_XA, R_BRE, R_BIM, R_WO, R_CRE, R_CIM, R_OUT):
        A(f"buffer_load_dword v{vDUM}, v16, {srd(R)}, 0 offen")
    A(f"""
    buffer_load_dword v{vDUM}, v16, {srd(R_WS)}, s{sOB} offen sc1
    buffer_load_dword v{vDUM}, v16, {srd(R_WS)}, s{sT0} offen offset:2048 sc1
    s_mov_b64 exec, -1
    L_notlb:
    """)
A(f"""
s_add_u32 s{sROT}, s{sC}, s{sG}
s_and_b32 s{sROT}, s{sROT}, 3
v_lshrrev_b32 v20, 4, v{vLANE}
v_and_b32 v21, 15, v{vLANE}
v_lshlrev_b32 v22, 4, v21
v_lshl_add_u32 v{vBo}, v20, 14, v22
v_lshrrev_b32 v23, 1, v20
v_and_b32 v24, 1, v20
v_lshlrev_b32 v23, 15, v23
v_lshl_add_u32 v23, v24, 12, v23
v_add_u32 v{vXo}, v23, v22
v_lshlrev_b32 v{vPF}, 7, v21
s_lshl_b32 s{sT0}, s2, 11
v_add_u32 v{vPF}, s{sT0}, v{vPF}
""")
def g1_soff(s):
    A(f"""
    s_add_u32 s{sT5}, s{sROT}, {s}
    s_and_b32 s{sT5}, s{sT5}, 3
    s_lshl_b32 s{sT5}, s{sT5}, 8
    s_lshl_b32 s{sT3}, s{sSW}, 12
    s_add_u32 s{sT3}, s{sT3}, s{sT5}
    s_lshl_b32 s{sT4}, s{sTW}, 14
    s_add_u32 s{sT4}, s{sT4}, s{sT5}
    s_lshl_b32 s{sT5}, s{sCW}, 11
    s_add_u32 s{sT4}, s{sT4}, s{sT5}
    s_add_u32 s{sT5}, s{sT4}, 8192
    """)
def capw(c=None):
    c = OPT["cap"] if c is None else c
    if c: A(f"s_waitcnt vmcnt({c})")
def dma_piece(n):
    dma_piece_(n)
    capw(OPT["cap0"] if n < OPT["npre"] else None)
def dma_piece_(n):
    st, r = divmod(n, 12); i, m = divmod(r, 3)
    slot = SLOT[st % 3]
    if r == 0: g1_soff(st)
    if m == 0:
        A(f"s_add_u32 m0, s{sT7}, {slot + XA_O + i*1040 - (i>>1)*1024}")
        A("s_nop 0")
        A(f"buffer_load_dwordx4 v{vXo}, {srd(R_XA)}, s{sT5 if i & 1 else sT4} offen offset:{(i>>1)*1024} lds")
    else:
        A(f"s_add_u32 m0, s{sT7}, {slot + [0, BRE_O, BIM_O][m] + i*16}")
        A("s_nop 0")
        A(f"buffer_load_dwordx4 v{vBo}, {srd([0, R_BRE, R_BIM][m])}, s{sT3} offen offset:{i*1024} lds")
LOG2E = math.log2(math.e)
a0, a1, a2, a3, a4, a5 = PRM, PRM+1, PRM+2, 96, 97, 98
vLR, vLI = vL1, vL1 + 1
A(f"""
s_mov_b32 s{sT0}, {f2u(LOG2E)}
v_lshlrev_b32 v{a0}, 16, v{a0}
v_lshlrev_b32 v{a1}, 16, v{a1}
v_lshlrev_b32 v{a2}, 16, v{a2}
v_mul_f32 v{a2}, s{sT0}, v{a2}
v_exp_f32 v{a2}, v{a2}
s_nop 0
v_cvt_pk_bf16_f32 v{a2}, v{a2}, v{a2}
v_and_b32 v{a2}, 0xffff0000, v{a2}
v_mul_f32 v{a3}, v{a2}, v{a0}
v_mul_f32 v{a4}, v{a2}, v{a1}
v_mul_f32 v{a3}, s{sT0}, v{a3}
v_exp_f32 v{a3}, v{a3}
v_mul_f32 v{a4}, 0.15915494, v{a4}
v_fract_f32 v{a4}, v{a4}
v_cos_f32 v{vLR}, v{a4}
v_sin_f32 v{vLI}, v{a4}
s_nop 0
v_mul_f32 v{vLR}, v{a3}, v{vLR}
v_mul_f32 v{vLI}, v{a3}, v{vLI}
v_mul_f32 v{a2}, v{a0}, v{a0}
v_fmac_f32 v{a2}, v{a1}, v{a1}
v_rcp_f32 v{a2}, v{a2}
v_add_f32 v{a3}, -1.0, v{vLR}
v_mul_f32 v{a4}, v{a3}, v{a0}
v_fmac_f32 v{a4}, v{vLI}, v{a1}
v_mul_f32 v{a5}, v{vLI}, v{a0}
v_fma_f32 v{a5}, -v{a3}, v{a1}, v{a5}
v_add_f32 v{a2}, v{a2}, v{a2}
v_mul_f32 v{vCF}, v{a4}, v{a2}
v_mul_f32 v{vCF+1}, v{a5}, v{a2}
""")
def csq(d, s_):
    A(f"v_mul_f32 v{a0}, v{s_+1}, v{s_+1}")
    A(f"v_mul_f32 v{a1}, v{s_}, v{s_+1}")
    A(f"v_fma_f32 v{d}, v{s_}, v{s_}, -v{a0}")
    A(f"v_add_f32 v{d+1}, v{a1}, v{a1}")
csq(vL8, vL1); csq(vL8, vL8); csq(vL8, vL8)
csq(vL16, vL8)
csq(vL64, vL16); csq(vL64, vL64)
csq(vL512, vL64); csq(vL512, vL512); csq(vL512, vL512)
vD = PRM + 3
A(f"""
v_and_b32 v20, 1, v{vL31}
v_lshlrev_b32 v20, 4, v20
v_lshlrev_b32 v{vD}, v20, v{vD}
v_bfe_u32 v20, v{vL31}, 3, 1
v_cmp_eq_u32 vcc, v20, v{vH}
v_bfe_u32 v21, v{vL31}, 1, 2
v_lshrrev_b32 v22, 4, v{vL31}
v_cndmask_b32 v{vD}, 0, v{vD}, vcc
v_lshl_add_u32 v21, v22, 2, v21
""")
for i in range(8):
    A(f"v_cmp_eq_u32 vcc, {i}, v21")
    A("s_nop 1")
    A(f"v_cndmask_b32 v{DG+i}, 0, v{vD}, vcc")
A(f"""
v_and_b32 v20, 15, v{vL31}
v_mul_u32_u24 v20, 1040, v20
v_lshl_add_u32 v20, v{vH}, 4, v20
v_lshrrev_b32 v21, 4, v{vL31}
v_lshl_add_u32 v20, v21, 8, v20
s_lshl_b32 s{sT0}, s{sTW}, 9
v_add_u32 v{vAa[0]}, s{sT0}, v20
v_add_u32 v{vAa[1]}, {SLOT[1]}, v{vAa[0]}
s_lshl_b32 s{sT0}, s{sCW}, 9
s_add_u32 s{sT0}, s{sT0}, {BRE_O}
v_add_u32 v{vBa[0]}, s{sT0}, v20
v_add_u32 v{vBa[1]}, {SLOT[1]}, v{vBa[0]}
v_bfe_u32 v20, v{vL31}, 2, 1
v_lshlrev_b32 v20, 3, v20
v_bfe_u32 v21, v{vL31}, 4, 1
v_lshl_add_u32 v20, v21, 2, v20
v_and_b32 v21, 3, v{vL31}
v_add_u32 v20, v20, v21
v_mul_u32_u24 v20, 1040, v20
v_bfe_u32 v21, v{vL31}, 3, 1
v_lshl_add_u32 v20, v21, 8, v20
v_lshl_add_u32 v20, v{vH}, 4, v20
s_lshl_b32 s{sT0}, s{sTW}, 9
s_and_b32 s{sT1}, s{sG}, 1
s_lshl_b32 s{sT1}, s{sT1}, 7
s_add_u32 s{sT0}, s{sT0}, s{sT1}
s_lshl_b32 s{sT1}, s{sCW}, 6
s_add_u32 s{sT0}, s{sT0}, s{sT1}
s_lshr_b32 s{sLOOP}, s{sG}, 1
s_sub_u32 s{sLOOP}, s{sLOOP}, s{sROT}
s_and_b32 s{sLOOP}, s{sLOOP}, 3
s_mul_i32 s{sT1}, s{sLOOP}, {SLOT[1]}
s_cmp_eq_u32 s{sLOOP}, 3
s_cselect_b32 s{sT1}, 0, s{sT1}
s_add_u32 s{sT0}, s{sT0}, s{sT1}
v_add_u32 v{vDa}, s{sT0}, v20
s_mul_i32 s{sT7}, s{sSW}, {4*1040}
v_add_u32 v{vAa[2]}, {SLOT[2]}, v{vAa[0]}
v_add_u32 v{vBa[2]}, {SLOT[2]}, v{vBa[0]}
""")
cnt_wait(vCNT, vTMP, 6, 0, sleep=1)
cnt_wait(vCNT, vTMP, 4, 12, sleep=1)
if OPT["stgl"] > 2: cnt_wait(vCNT, vTMP, 4*OPT["stgl"], 4, sleep=2)
def pfx(items):
    if OPT["pfb"] != 2: return
    nsh = 8 if OPT["map84"] else 4
    for R, sw, shift in items:
        lbl = A.newlabel("pfx")
        A(f"""
        s_cmp_lg_u32 s{sSW}, {sw}
        s_cbranch_scc1 {lbl}
        s_and_b32 s{sT0}, s{sC}, {nsh - 1}
        s_lshl_b32 s{sT0}, s{sT0}, {shift + 6 + (0 if nsh == 8 else 1)}
        v_lshlrev_b32 v{vPF}, {shift}, v{vLANE}
        buffer_load_dword v{vDUM}, v{vPF}, {srd(R)}, s{sT0} offen
        """)
        if nsh == 4:
            A(f"s_add_u32 s{sT0}, s{sT0}, {64 << shift}")
            A(f"buffer_load_dword v{vDUM}, v{vPF}, {srd(R)}, s{sT0} offen")
        A.label(lbl)
def pf16(pairs, lbl):
    if OPT["pfb"] != 1: return
    A(f"""
    s_cmp_lg_u32 s{sSW}, 1
    s_cbranch_scc1 {lbl}
    s_mov_b64 exec, 0xffff
    """)
    for p in pairs: A(f"global_load_dword v{vDUM}, v{vPF}, s[{p}:{p+1}]")
    A(f"s_mov_b64 exec, -1\n{lbl}:")
pf16([P_LRE, P_LIM, P_WV], "L_nopfb")
cnt_wait(vCNT, vTMP, 12, 4, sleep=0)
if OPT["noS"]: A("s_branch L_fin")
prio(OPT["gprio"])
sstamp(1, 1)
NPRE = OPT["npre"]
for n in range(NPRE): dma_piece(n)
ISS = [NPRE]
A(f"s_waitcnt vmcnt({NPRE - 12})")
sstamp(2, 1)
prio(OPT["vprio"])
sync_add(False); sync_wait(0)
sstamp(3, 1)
G1B = [FRS, FRS + 12, 64]
def g1_stage(s, extra=None, nwr=None, early_add=None):
    slot = s % 3
    prio(3 if (OPT["g1p"] >> s) & 1 else OPT["gprio"])
    sk = A.newlabel("nod")
    A(f"""
    s_cmp_lg_u32 s{sLOOP}, {s}
    s_cbranch_scc1 {sk}
    ds_read_b128 v[64:67], v{vDa}
    ds_read_b128 v[68:71], v{vDa} offset:32
    s_waitcnt lgkmcnt(0)
    v_mfma_f32_32x32x16_bf16 v[{Y0}:{Y0+15}], v[64:67], v[{DG}:{DG+3}], 0
    v_mfma_f32_32x32x16_bf16 v[{Y0}:{Y0+15}], v[68:71], v[{DG+4}:{DG+7}], v[{Y0}:{Y0+15}]
    {sk}:
    """)
    def rd(k):
        f = G1B[k % 3]
        A(f"ds_read_b128 v[{f}:{f+3}], v{vAa[slot]} offset:{k*32}")
        A(f"ds_read_b128 v[{f+4}:{f+7}], v{vBa[slot]} offset:{k*32}")
        A(f"ds_read_b128 v[{f+8}:{f+11}], v{vBa[slot]} offset:{k*32 + (BIM_O-BRE_O)}")
    rd(0); rd(1)
    for k in range(8):
        f = G1B[k % 3]
        if k + 2 < 8: rd(k + 2)
        nw = nwr(k - 1) if (nwr and k > 0) else 0
        A(f"s_waitcnt lgkmcnt({min(15, 3*(min(8, k + 3) - k - 1) + nw)})")
        if k == 7 and early_add is not None:
            if early_add: A(early_add)
            sync_add(False)
        cr = "0" if (s == 0 and k == 0) else f"v[{UR}:{UR+15}]"
        ci = "0" if (s == 0 and k == 0) else f"v[{UI}:{UI+15}]"
        A(f"v_mfma_f32_32x32x16_bf16 v[{UR}:{UR+15}], v[{f}:{f+3}], v[{f+4}:{f+7}], {cr}")
        if extra: extra(k)
        A(f"v_mfma_f32_32x32x16_bf16 v[{UI}:{UI+15}], v[{f}:{f+3}], v[{f+8}:{f+11}], {ci}")
def issue_upto(lim, k, last):
    cnt = -(-(lim - ISS[0]) // max(1, last - k)) if k < last else 0
    for n in range(ISS[0], min(lim, ISS[0] + cnt)): dma_piece(n)
    ISS[0] = min(lim, ISS[0] + cnt)
L0 = OPT["l0"]
g1_stage(0, lambda k: issue_upto(L0, k, 7), early_add=f"s_waitcnt vmcnt({L0 - 24})")
assert ISS[0] == L0
sstamp(4, 1)
prio(OPT["vprio"])
pfx([(R_WO, 1, 10)])
sync_wait(0)
g1_stage(1, lambda k: issue_upto(48, k, 7), early_add="s_waitcnt vmcnt(12)")
assert ISS[0] == 48
sstamp(5, 1)
prio(OPT["vprio"])
CLR = 64
A(f"""
v_mov_b32 v{CLR}, -1
v_mov_b32 v{CLR+1}, -1
v_mov_b32 v{CLR+2}, -1
v_mov_b32 v{CLR+3}, -1
s_lshl_b32 s{sT0}, s{sG}, 12
s_add_u32 s{sT0}, s{sT0}, s{sOB}
s_lshl_b32 s{sT1}, s{sCW}, 11
s_add_u32 s{sT0}, s{sT0}, s{sT1}
buffer_store_dwordx4 v[{CLR}:{CLR+3}], v{vL16x}, {srd(R_WS)}, s{sT0} offen sc1
buffer_store_dwordx4 v[{CLR}:{CLR+3}], v{vL16x}, {srd(R_WS)}, s{sT0} offen offset:1024 sc1
v_mov_b32 v{CLR+4}, 0
v_mov_b32 v{CLR+5}, s{sTAG}
v_mov_b32 v{CLR+6}, 0
v_mov_b32 v{CLR+7}, s{sTAG}
s_lshl_b32 s{sT1}, s{sID}, 7
s_add_u32 s{sT1}, s{sT1}, {AGG_DUMMY}
s_mov_b64 exec, 1
buffer_store_dwordx4 v[{CLR+4}:{CLR+7}], v{CLR+4}, {srd(R_AGG)}, s{sT1} offen sc1
s_mov_b64 exec, -1
""")
sync_wait(0)
g1_stage(2, early_add="s_waitcnt vmcnt(0)")
sstamp(6, 1)
prio(OPT["vprio"])
pf16([P_LDT, P_DSK], "L_nopfc")
pfx([(R_CRE, 2, 7), (R_CIM, 3, 7)])
wq_voffset(5, 6, 8, 15)
A(f"""
s_mul_i32 s{sT2}, s{sSW}, {16*1040}
s_lshl_b32 s{sT3}, s{sSW}, 14
s_lshl_b32 s{sT6}, s{sSW}, 17
""")
sync_wait(0)
def wo_piece(i):
    A(f"""
    s_add_u32 m0, s{sT3}, {WO + i*1024}
    s_add_u32 s{sT1}, s{sT6}, {i*8192}
    buffer_load_dwordx4 v5, {srd(R_WO)}, s{sT1} offen lds
    """)
    capw()
def c_piece(R, base, i):
    A(f"s_add_u32 m0, s{sT2}, {base + i*1040 - (i & 3)*1024}")
    if i & 3 == 0: A(f"s_add_u32 s{sT4}, s{sT3}, {i*1024}")
    else: A("s_nop 0")
    A(f"buffer_load_dwordx4 v{vL16x}, {srd(R)}, s{sT4} offen offset:{(i & 3)*1024} lds")
    capw()
def ex3(k):
    wo_piece(2*k); wo_piece(2*k + 1)
g1_stage(3, ex3)
sstamp(7, 1); sstamp(1, 2)
prio(OPT["vprio"])
stamp(3)
A(f"""
s_lshl_b32 s{sT0}, s{sTW}, 10
s_lshl_b32 s{sT1}, s{sCW}, 8
s_add_u32 s{sT1}, s{sT1}, {EB}
s_add_u32 s{sT0}, s{sT0}, s{sT1}
v_lshlrev_b32 v10, 3, v{vL31}
v_add_u32 v11, s{sT1}, v10
v_lshl_add_u32 v10, v{vH}, 9, v10
v_add_u32 v10, s{sT0}, v10
""")
A.nop(4)
if OPT["dbg"]:
    A(f"""
    s_lshl_b32 s{sT0}, s{sID}, 2
    s_add_u32 s{sT0}, s{sT0}, s{sSW}
    s_lshl_b32 s{sT0}, s{sT0}, 13
    s_add_u32 s{sT0}, s{sT0}, {DBG}
    v_lshlrev_b32 v12, 2, v{vLANE}
    """)
    for i in range(32):
        A(f"buffer_store_dword v{UR+i}, v12, {srd(R_WS)}, s{sT0} offen")
        A(f"s_add_u32 s{sT0}, s{sT0}, 256")
    A("s_waitcnt vmcnt(0)")
def cstep4(dr, di, pr, pi, l, ur, ui, tr, ti):
    A(f"v_fma_f32 v{tr}, v{l}, v{pr}, v{ur}")
    A(f"v_fma_f32 v{ti}, v{l}, v{pi}, v{ui}")
    A(f"v_fma_f32 v{dr}, -v{l+1}, v{pi}, v{tr}")
    A(f"v_fma_f32 v{di}, v{l+1}, v{pr}, v{ti}")
def p2(r): return f"v[{r}:{r+1}]"
def pkstep(dr, di, pr, pi, l, ur, ui, tr, ti):
    A(f"v_pk_fma_f32 {p2(tr)}, {p2(l)}, {p2(pr)}, {p2(ur)} op_sel_hi:[0,1,1]")
    A(f"v_pk_fma_f32 {p2(ti)}, {p2(l)}, {p2(pi)}, {p2(ui)} op_sel_hi:[0,1,1]")
    A(f"v_pk_fma_f32 {p2(dr)}, {p2(l)}, {p2(pi)}, {p2(tr)} op_sel:[1,0,0] neg_lo:[1,0,0] neg_hi:[1,0,0]")
    A(f"v_pk_fma_f32 {p2(di)}, {p2(l)}, {p2(pr)}, {p2(ti)} op_sel:[1,0,0]")
pa = [(FRS, FRS+2), (6, 8)]
p = (UR, UI)
for j in range(1, 8):
    d = pa[j & 1]
    pkstep(d[0], d[1], p[0], p[1], vL1, UR+2*j, UI+2*j, FRS+4, FRS+6)
    p = d
EA = (6, 8)
cstep4(FRS, FRS+1, 6, 8, vL8, 7, 9, FRS+4, FRS+5)
A(f"ds_write_b64 v10, v[{FRS}:{FRS+1}]")
A("s_waitcnt vmcnt(0)")
sync_add()
LB = 64
A(f"""
s_lshl_b32 s{sT0}, s{sTW}, 4
s_sub_u32 s{sT0}, s{sC}, s{sT0}
s_sub_u32 s{sT0}, s{sT0}, 1
s_lshl_b32 s{sT0}, s{sT0}, 13
v_lshlrev_b32 v5, 16, v{vH}
v_sub_u32 v5, s{sT0}, v5
v_lshl_add_u32 v5, v{vP2}, 3, v5
s_lshl_b32 s{sT1}, s{sID}, 7
s_add_u32 s{sT1}, s{sT1}, {AGG_DUMMY}
""")
for k in range(8):
    A(f"v_min_u32 v{96+k}, s{sT1}, v5")
    if k < 7: A(f"v_add_u32 v5, {(-8192) & 0xffffffff}, v5")
sync_wait(0)
sstamp(2, 2)
E = FRS
for s in range(4):
    A(f"ds_read_b64 v[{E+2*s}:{E+2*s+1}], v11 offset:{s*512}")
A("s_waitcnt lgkmcnt(0)")
A1, A2, G3 = (104, 105), (106, 107), 108
cstep4(A1[0], A1[1], E, E+1, vL16, E+2, E+3, FRS+8, FRS+9)
cstep4(A2[0], A2[1], A1[0], A1[1], vL16, E+4, E+5, FRS+8, FRS+9)
vPR, vPI, vW = 12, 13, 14
tw1 = A.newlabel("tw1"); twd = A.newlabel("twd")
A(f"""
v_cmp_eq_u32 vcc, 1, v{vH}
s_cmp_lg_u32 s{sTW}, 0
s_cbranch_scc1 {tw1}
""")
cstep4(G3, G3+2, A2[0], A2[1], vL16, E+6, E+7, FRS+8, FRS+9)
A(f"""
v_mov_b32 v{G3+1}, s{sTAG}
v_mov_b32 v{G3+3}, s{sTAG}
v_lshlrev_b32 v7, 3, v{vP2}
s_lshl_b32 s{sT0}, s{sC}, 13
s_mov_b32 exec_hi, 0
buffer_store_dwordx4 v[{G3}:{G3+3}], v7, {srd(R_AGG)}, s{sT0} offen sc1
s_mov_b32 exec_hi, -1
v_cndmask_b32 v{vPR}, 0, v{E}, vcc
v_cndmask_b32 v{vPI}, 0, v{E+1}, vcc
v_cndmask_b32 v{vW}, 1.0, v{vL16}, vcc
v_cndmask_b32 v{vW+1}, 0, v{vL16+1}, vcc
s_branch {twd}
{tw1}:
v_cndmask_b32 v{vPR}, v{A1[0]}, v{A2[0]}, vcc
v_cndmask_b32 v{vPI}, v{A1[1]}, v{A2[1]}, vcc
v_mul_f32 v{FRS+8}, v{vL16+1}, v{vL16+1}
v_mul_f32 v{FRS+9}, v{vL16}, v{vL16+1}
v_fma_f32 v{FRS+8}, v{vL16}, v{vL16}, -v{FRS+8}
v_add_f32 v{FRS+9}, v{FRS+9}, v{FRS+9}
v_mul_f32 v{FRS+10}, v{FRS+8}, v{vL16}
v_mul_f32 v{FRS+11}, v{FRS+8}, v{vL16+1}
v_fma_f32 v{FRS+10}, -v{FRS+9}, v{vL16+1}, v{FRS+10}
v_fma_f32 v{FRS+11}, v{FRS+9}, v{vL16}, v{FRS+11}
v_cndmask_b32 v{vW}, v{FRS+8}, v{FRS+10}, vcc
v_cndmask_b32 v{vW+1}, v{FRS+9}, v{FRS+11}, vcc
{twd}:
""")
A(f"s_mov_b32 s{sSPIN}, 0")
A(f"""
s_lshl_b32 s{sT0}, s{sSW}, 12
s_add_u32 s{sT0}, s{sT0}, {TB}
v_lshlrev_b32 v9, 6, v{vL31}
v_lshl_add_u32 v9, v{vH}, 5, v9
v_add_u32 v9, s{sT0}, v9
v_bfe_u32 v108, v{vLANE}, 2, 2
v_lshl_add_u32 v108, v{vH}, 3, v108
v_lshlrev_b32 v108, 6, v108
v_bfe_u32 v109, v{vLANE}, 4, 1
v_lshl_add_u32 v108, v109, 5, v108
v_and_b32 v109, 3, v{vLANE}
v_lshl_add_u32 v108, v109, 3, v108
v_add_u32 v108, s{sT0}, v108
""")
A(f"""
v_bfe_u32 v5, v{vLANE}, 2, 2
v_lshl_add_u32 v5, v{vH}, 2, v5
v_bfe_u32 v7, v{vLANE}, 4, 1
v_and_b32 v110, 3, v{vLANE}
v_lshlrev_b32 v110, 3, v110
v_lshl_add_u32 v110, v7, 5, v110
v_bfe_u32 v7, v{vLANE}, 3, 1
v_lshl_add_u32 v110, v7, 6, v110
v_lshl_add_u32 v110, v5, 7, v110
s_lshl_b32 s{sT0}, s{sCW}, 13
s_add_u32 s{sT0}, s{sT0}, {WO}
s_lshl_b32 s{sT1}, s{sCW}, 6
v_xor_b32 v110, s{sT1}, v110
v_xor_b32 v111, 64, v110
v_add_u32 v110, s{sT0}, v110
v_add_u32 v111, s{sT0}, v111
""")
def prod_off(i, shift, dst):
    A(f"""
    s_lshr_b32 s{dst}, s{sG}, 1
    s_add_u32 s{dst}, s{dst}, {i + 1}
    s_and_b32 s{dst}, s{dst}, 3
    s_lshl_b32 s{dst}, s{dst}, {shift}
    """)
for j in range(16):
    if OPT["orot"] and j % 4 == 0:
        prod_off(j // 4, 14, sT0)
        A(f"v_add_u32 v5, s{sT0}, v110")
        A(f"v_add_u32 v7, s{sT0}, v111")
    for nt in range(2):
        f = 8*j + 4*nt
        ad = [5, 7][nt] if OPT["orot"] else 110 + nt
        off = (j & 3)*2048 + (0 if OPT["orot"] else (j >> 2)*16384)
        A(f"ds_read_b64_tr_b16 a[{f}:{f+1}], v{ad} offset:{off}")
        A(f"ds_read_b64_tr_b16 a[{f+2}:{f+3}], v{ad} offset:{off + 1024}")
    if j % 3 == 2: A("s_waitcnt lgkmcnt(3)")
prio(OPT["gprio"])
for i in range(OPT["cim1"]): c_piece(R_CIM, CIM, i)
prio(OPT["vprio"])
sstamp(3, 2)
A.label("L_lb")
for k in range(8):
    A(f"buffer_load_dwordx4 v[{LB+4*k}:{LB+4*k+3}], v{96+k}, {srd(R_AGG)}, 0 offen sc1")
A(f"""
s_add_u32 s{sSPIN}, s{sSPIN}, 1
s_waitcnt vmcnt(0)
v_min_u32 v5, v{LB+1}, v{LB+3}
v_max3_u32 v7, s{sTAG}, v{LB+1}, v{LB+3}
""")
for k in range(1, 8):
    A(f"v_min3_u32 v5, v5, v{LB+4*k+1}, v{LB+4*k+3}")
    A(f"v_max3_u32 v7, v7, v{LB+4*k+1}, v{LB+4*k+3}")
A(f"""
v_min_u32 v5, s{sTAG}, v5
v_cmp_ne_u32 vcc, v5, v7
s_cbranch_vccz L_lbd
s_sleep 8
s_cmp_lt_u32 s{sSPIN}, {SPIN_MAX}
s_cbranch_scc1 L_lb
L_lbd:
""")
stamp(4); sstamp(4, 2)
p = (LB+28, LB+30)
pb = [(96, 97), (98, 99)]
for k in range(6, -1, -1):
    d = pb[k & 1]
    cstep4(d[0], d[1], p[0], p[1], vL64, LB+4*k, LB+4*k+2, 100, 101)
    p = d
A(f"ds_write_b64 v10, v[96:97] offset:{HP-EB}")
sync_add(); sync_wait(0)
sstamp(5, 2)
for s in range(4):
    A(f"ds_read_b64 v[{E+2*s}:{E+2*s+1}], v11 offset:{HP - EB + s*512}")
A("s_waitcnt lgkmcnt(0)")
p = (E+6, E+7)
for s in range(2, -1, -1):
    d = pb[s & 1]
    cstep4(d[0], d[1], p[0], p[1], vL512, E+2*s, E+2*s+1, 100, 101)
    p = d
CRp, CIp = 104, 106
cstep4(CRp, CIp, p[0], p[1], vW, vPR, vPI, 100, 101)
cstep4(CRp+1, CIp+1, CRp, CIp, vL8, EA[0], EA[1], 100, 101)
HR, HI = FRS, FRS+8
p = (CRp, CIp)
for j in range(8):
    pkstep(UR+2*j, UI+2*j, p[0], p[1], vL1, UR+2*j, UI+2*j, 100, 102)
    p = (UR+2*j, UI+2*j)
    if OPT['cpos'] == 0: c_piece(R_CRE, CRE, 2*j)
    A(f"v_pk_mul_f32 {p2(96)}, {p2(vCF)}, {p2(UI+2*j)} op_sel:[1,0]")
    A(f"v_pk_mul_f32 {p2(98)}, {p2(vCF)}, {p2(UR+2*j)} op_sel:[1,0]")
    A(f"v_pk_fma_f32 {p2(96)}, {p2(vCF)}, {p2(UR+2*j)}, {p2(96)} op_sel_hi:[0,1,1] neg_lo:[0,0,1] neg_hi:[0,0,1]")
    A(f"v_pk_fma_f32 {p2(98)}, {p2(vCF)}, {p2(UI+2*j)}, {p2(98)} op_sel_hi:[0,1,1] neg_lo:[1,0,1] neg_hi:[1,0,1]")
    if OPT['cpos'] == 0: c_piece(R_CRE, CRE, 2*j + 1)
    A(f"v_cvt_pk_bf16_f32 v{HR+j}, v96, v97")
    A(f"v_cvt_pk_bf16_f32 v{HI+j}, v98, v99")
    if j == 3:
        A(f"ds_write_b128 v9, v[{HR}:{HR+3}]")
        A(f"ds_write_b128 v9, v[{HI}:{HI+3}] offset:2048")
A(f"""
ds_write_b128 v9, v[{HR+4}:{HR+7}] offset:16
ds_write_b128 v9, v[{HI+4}:{HI+7}] offset:2064
s_lshl_b32 s{sKOFF}, s{sC}, 1
s_add_u32 s{sKOFF}, s{sKOFF}, s{sTW}
s_lshl_b32 s{sKOFF}, s{sKOFF}, 16
s_add_u32 s{sKOFF}, s{sKOFF}, {HB}
s_lshl_b32 s{sT1}, s{sG}, 12
s_lshl_b32 s{sT7}, s{sCW}, 11
s_add_u32 s{sT1}, s{sT1}, s{sT7}
s_add_u32 s{sT0}, s{sKOFF}, s{sT1}
s_add_u32 s{sT1}, s{sT0}, 32768
s_waitcnt lgkmcnt(0)
""")
for part in range(2):
    for hf in range(2):
        f = 64 + 8*part + 4*hf
        A(f"ds_read_b64_tr_b16 v[{f}:{f+1}], v108 offset:{part*2048 + hf*1024}")
        A(f"ds_read_b64_tr_b16 v[{f+2}:{f+3}], v108 offset:{part*2048 + hf*1024 + 256}")
for n in range(4):
    A(f"s_waitcnt lgkmcnt({6 - 2*n})")
    A(f"buffer_store_dwordx4 v[{64+4*n}:{67+4*n}], v{vL16x}, {srd(R_WS)}, s{sT0 if n < 2 else sT1} offen offset:{(n&1)*1024} sc1")
A(f"""
s_lshl_b32 s{sT7}, s{sC}, 12
s_add_u32 s{sT7}, s{sT7}, {FL3}
v_and_b32 v5, 15, v{vLANE}
v_lshlrev_b32 v5, 8, v5
s_lshl_b32 s{sT0}, s{sTW}, 7
s_add_u32 s{sT0}, s{sT0}, s{sT7}
v_add_u32 v5, s{sT0}, v5
v_mov_b32 v12, s{sTAG}
v_mov_b32 v13, 0
s_lshl_b32 s{sT1}, s{sG}, 2
s_add_u32 s{sT1}, s{sT1}, s{sSW}
s_lshl_b32 s{sT1}, s{sT1}, 7
s_add_u32 s{sT1}, s{sT1}, s{sT7}
""")
sstamp(6, 2)
A("s_waitcnt vmcnt(0)")
sstamp(7, 2); sstamp(1, 3)
A(f"""
s_mov_b64 exec, 1
buffer_store_dword v12, v13, {srd(R_WS)}, s{sT1} offen sc1
ds_add_u32 v{vCNT}, v{vONE} offset:28
s_mov_b64 exec, -1
""")
A(f"""
v_bfe_u32 v6, v{vLANE}, 4, 1
v_and_b32 v7, 15, v{vLANE}
v_lshlrev_b32 v7, 4, v7
v_lshl_add_u32 v7, v6, 9, v7
v_lshl_add_u32 v7, v{vH}, 15, v7
s_lshr_b32 s{sT5}, s{sT2}, 1
s_lshr_b32 s{sT6}, s{sT3}, 1
""")
prio(OPT["gprio"])
for half, base in ((0, CREA), (1, CREB)):
    for i in range(8):
        A(f"s_add_u32 m0, s{sT5}, {base + i*1040 - (i & 3)*1024}")
        if i & 3 == 0: A(f"s_add_u32 s{sT4}, s{sT6}, {i*1024 + half*256}")
        else: A("s_nop 0")
        A(f"buffer_load_dwordx4 v7, {srd(R_CRE)}, s{sT4} offen offset:{(i & 3)*1024} lds")
        capw()
prio(OPT["vprio"])
stamp(5, not HST)
A(f"""
v_mul_u32_u24 v10, 1040, v{vL31}
v_lshl_add_u32 v10, v{vH}, 4, v10
s_mul_i32 s{sT0}, s{sCW}, {512 + 32*1040}
s_mul_i32 s{sT1}, s{sCW}, {(512 - 32*1040) & 0xffffffff}
s_add_u32 s{sT1}, s{sT1}, {32*1040}
s_mul_i32 s{sT5}, s{sCW}, 768
s_mul_i32 s{sT6}, s{sCW}, {(-256) & 0xffffffff}
s_add_u32 s{sT5}, s{sT5}, {CREB}
s_add_u32 s{sT6}, s{sT6}, {CREB + 512}
v_add_u32 v14, s{sT5}, v10
v_add_u32 v15, s{sT6}, v10
v_add_u32 v11, s{sT1}, v10
v_add_u32 v10, s{sT0}, v10
s_lshl_b32 s{sT1}, s{sCW}, 14
s_add_u32 s{sKOFF}, s{sKOFF}, s{sT1}
s_lshl_b32 s{sT1}, s{sCW}, 12
s_add_u32 s{sOB}, s{sOB}, s{sT1}
s_xor_b32 s{sT0}, s{sSW}, 2
s_lshl_b32 s{sT0}, s{sT0}, 12
v_add_u32 v114, s{sT0}, v{vL16x}
s_lshl_b32 s{sT0}, s{sSW}, 12
v_add_u32 v115, s{sT0}, v{vL16x}
v_add_u32 v119, {TBY}, v114
v_add_u32 v120, {TBY}, v115
s_lshl_b32 s{sT0}, s{sTW}, 17
s_lshl_b32 s{sT1}, s{sG}, 8
s_add_u32 s{sT0}, s{sT0}, s{sT1}
s_lshl_b32 s{sT1}, s{sCW}, 7
s_add_u32 s{sT0}, s{sT0}, s{sT1}
v_lshlrev_b32 v113, 2, v{vL31}
v_add_u32 v113, s{sT0}, v113
v_lshl_add_u32 v118, v{vH}, 14, v113
v_add_u32 v118, 2048, v118
v_lshl_add_u32 v113, v{vH}, 13, v113
""")
sstamp(2, 3)
poll_flags(5, 12, 1, sleep=OPT['sl2'])
if OPT["cpos"] == 1: sync_add(False)
sstamp(3, 3)
LA = 7
HRING = 16
def hreg(j): return HRING + 4*(j % 8)
def h_ld(j):
    if j == 16: A(f"s_add_u32 s{sKOFF}, s{sKOFF}, {32768 - 3*4096}")
    elif j % 4 == 0 and j > 0: A(f"s_add_u32 s{sKOFF}, s{sKOFF}, 4096")
    A(f"buffer_load_dwordx4 v[{hreg(j)}:{hreg(j)+3}], v{vL16x}, {srd(R_WS)}, s{sKOFF} offen offset:{(j%4)*1024} sc1")
for j in range(LA): h_ld(j)
def g2_rd(j):
    f = FRS + 8*(j % 3)
    off = (CREA - CREB + j*32) if j < 8 else ((j - 8)*32 if j < 16 else (j - 16)*32)
    A(f"ds_read_b128 v[{f}:{f+3}], v{14 if j < 16 else 10} offset:{off}")
    A(f"ds_read_b128 v[{f+4}:{f+7}], v{15 if j < 16 else 11} offset:{off}")
def g2_mfma(j):
    f = FRS + 8*(j % 3)
    c = "0" if j == 0 else f"v[{Y1}:{Y1+15}]"
    A(f"v_mfma_f32_32x32x16_bf16 v[{Y1}:{Y1+15}], v[{hreg(j)}:{hreg(j)+3}], v[{f+4}:{f+7}], {c}")
    A(f"v_mfma_f32_32x32x16_bf16 v[{Y0}:{Y0+15}], v[{hreg(j)}:{hreg(j)+3}], v[{f}:{f+3}], v[{Y0}:{Y0+15}]")
sync_wait(0)
prio(3 if OPT["g2p"] & 1 else OPT["gprio"])
g2_rd(0); g2_rd(1)
VQ = list(range(LA))
P2 = 32 - OPT["p2n"]
assert 8 <= P2 <= 14
for j in range(32):
    if j == P2:
        prio(OPT["vprio"])
        A("s_waitcnt vmcnt(0)")
        sync_add(False); sync_wait()
        cnt_wait(vCNT, vTMP, 8, 12, sleep=OPT['sl1'])
        sstamp(6, 3); sstamp(1, 4)
        prio(3 if OPT["g2p"] & 2 else OPT["gprio"])
    if j + LA < 32:
        h_ld(j + LA); VQ.append(j + LA)
    if j < 8:
        for i in range(OPT["cim1"], 16)[2*j:2*j + 2]:
            if i == OPT["cim1"] and i & 3: A(f"s_add_u32 s{sT4}, s{sT3}, {(i & ~3)*1024}")
            c_piece(R_CIM, CIM, i); VQ.append(-1)
    if j + 2 < 32: g2_rd(j + 2)
    issued = min(32, j + 3)
    A(f"s_waitcnt vmcnt({len(VQ) - 1 - VQ.index(j)}) lgkmcnt({2*(issued - j - 1)})")
    if j == 0: sstamp(4, 3)
    if j == 7:
        cnt_add(vCNT, vONE, 8)
        stamp(6, not HST); sstamp(5, 3)
    g2_mfma(j)
prio(OPT["vprio"])
stamp(7); sstamp(7, 3); sstamp(2, 4)
cnt_wait(vCNT, vTMP, 12, 12)
sstamp(3, 4)
def oreg(j): return (16 + 4*j) if j < 8 else (80 + 4*(j - 8))
def o_loads(g4):
    if OPT["orot"]:
        prod_off(g4, 13, sT1)
        A(f"s_add_u32 s{sT1}, s{sT1}, s{sOB}")
    else: A(f"s_add_u32 s{sT1}, s{sOB}, {g4*8192}")
    for j in range(4*g4, 4*g4 + 4):
        A(f"buffer_load_dwordx4 v[{oreg(j)}:{oreg(j)+3}], v{vL16x}, {srd(R_WS)}, s{sT1} offen offset:{(j%4)*1024} sc1")
if OPT["ofirst"]: o_loads(0)
else: A.nop(4)
for i in range(4):
    A(f"ds_write_b128 v119, v[{Y1+4*i}:{Y1+4*i+3}] offset:{i*1024}")
if OPT["ofirst"]:
    for g4 in range(1, 4): o_loads(g4)
sync_add(); sync_wait(0)
for i in range(4):
    A(f"ds_read_b128 v[{Y1+4*i}:{Y1+4*i+3}], v120 offset:{i*1024}")
for i in range(16):
    if i % 4 == 0: A(f"s_waitcnt lgkmcnt({3 - i//4})")
    A(f"v_add_f32 v{Y0+i}, v{Y0+i}, v{Y1+i}")
    A(f"s_mov_b32 s{sT1}, {(16*(i>>3) + 4*((i>>2)&1) + ((i>>1)&1) + 8*(i&1))*4096}")
    A(f"buffer_store_dword v{Y0+i}, v113, {srd(R_OUT)}, s{sT1} offen{OST}")
if not OPT["ofirst"]:
    for g4 in range(OPT["osplit"]): o_loads(g4)
    if OPT["oack"] == 2: cnt_wait(vCNT, vTMP, 6, 24)
    for g4 in range(OPT["osplit"], 4): o_loads(g4)
A(f"s_mov_b32 s{sSPIN}, 0")
NY0 = 16 - OPT["y1f"]
def y0_mfma(j):
    c0 = "0" if j == 0 else f"v[{Y0}:{Y0+15}]"
    A(f"v_mfma_f32_32x32x16_bf16 v[{Y0}:{Y0+15}], v[{oreg(j)}:{oreg(j)+3}], a[{8*j}:{8*j+3}], {c0}")
for g4 in range(4):
    lp = A.newlabel("op"); dn = A.newlabel("opd"); ck = A.newlabel("opc")
    j0 = 4*g4
    A(f"s_waitcnt vmcnt({(16 if OPT['ofirst'] else 0) + 4*(3 - g4)})")
    A.label(ck)
    A(f"v_max_u32 v13, v{oreg(j0)+1}, v{oreg(j0)+3}")
    for j in range(j0 + 1, j0 + 4):
        A(f"v_max3_u32 v13, v13, v{oreg(j)+1}, v{oreg(j)+3}")
    A(f"""
    v_cmp_eq_u32 vcc, -1, v13
    s_cbranch_vccz {dn}
    s_add_u32 s{sSPIN}, s{sSPIN}, 1
    s_cmp_gt_u32 s{sSPIN}, 20000
    s_cbranch_scc1 {dn}
    """)
    if OPT["osl"]: A(f"s_sleep {OPT['osl']}")
    o_loads(g4)
    A(f"""
    s_waitcnt vmcnt(0)
    s_branch {ck}
    {dn}:
    """)
    if g4 in (0, 3): sstamp(4 + g4 // 3, 4)
    for j in range(j0, j0 + 4):
        c0 = "0" if j == 0 else f"v[{Y0}:{Y0+15}]"
        c1 = "0" if j == 0 else f"v[{Y1}:{Y1+15}]"
        A(f"v_mfma_f32_32x32x16_bf16 v[{Y1}:{Y1+15}], v[{oreg(j)}:{oreg(j)+3}], a[{8*j+4}:{8*j+7}], {c1}")
        if j < NY0: y0_mfma(j)
if OPT["sst"] == 4: A(f"s_mov_b32 s{sST+14}, s{sSPIN}")
rest = list(range(NY0, 16))
n1 = min(len(rest), 3); n2 = min(len(rest) - n1, 4)
for j in rest[:n1]: y0_mfma(j)
A.nop(12 - n1 - (1 if NY0 == 16 else 0))
for i in range(4):
    A(f"ds_write_b128 v114, v[{Y1+4*i}:{Y1+4*i+3}] offset:{TB2 + i*1024}")
for j in rest[n1:n1 + n2]: y0_mfma(j)
A("s_waitcnt lgkmcnt(0)")
A("s_barrier")
sstamp(6, 4)
for i in range(4):
    A(f"ds_read_b128 v[{Y1+4*i}:{Y1+4*i+3}], v115 offset:{TB2 + i*1024}")
for j in rest[n1 + n2:]: y0_mfma(j)
if rest: A.nop(12 if rest[n1 + n2:] else 6)
for i in range(16):
    if i % 4 == 0: A(f"s_waitcnt lgkmcnt({3 - i//4})")
    A(f"v_add_f32 v{Y0+i}, v{Y0+i}, v{Y1+i}")
    A(f"s_mov_b32 s{sT1}, {(8*(i>>2) + (i&3))*4096}")
    A(f"buffer_store_dword v{Y0+i}, v118, {srd(R_OUT)}, s{sT1} offen{OSTB}")
A("s_branch L_fin")

A.label("L_hot_end")
A.label("L_slow")
A(f"""
s_cmp_lg_u32 s{sDONE}, 0
s_cbranch_scc1 L_fast
s_mov_b32 s{sDONE}, 1
s_waitcnt lgkmcnt(0)
""")
def a_sync():
    A(f"s_add_u32 s{sATG}, s{sATG}, 4")
    A("s_waitcnt lgkmcnt(0)")
    cnt_add(vCNT, vIDX, 4)
    cnt_wait(vCNT, 16, f"s{sATG}", 4, sleep=2)
for i in range(4): A(f"v_mov_b32 v{vZ+i}, 0")
for ct in range(8): A(f"v_mov_b32 v{vM+ct}, 0xff800000")
A("s_nop 1")
for ct in range(8):
    A(f"v_mfma_f32_32x32x16_bf16 a[{16*ct}:{16*ct+15}], v[{vZ}:{vZ+3}], v[{vZ}:{vZ+3}], 0")
A(f"s_mov_b32 s{sLOOP}, 16")
def adv():
    A(f"s_add_u32 s{sKOFF}, s{sKOFF}, {KVS}"); A(f"s_and_b32 s{sKOFF}, s{sKOFF}, 0xffff")
def ld_kraw():
    A(f"buffer_load_dwordx4 v[{KV[0]}:{KV[0]+3}], v{vKt[0]}, {srd(R_WS)}, s{sKOFF} offen offset:2560 sc1")
def round_scores():
    for i in range(0, 16, 2):
        A(f"v_cvt_pk_bf16_f32 v{S0+i+1}, v{S0+i}, v{S0+i+1}")
        A(f"v_lshlrev_b32 v{S0+i}, 16, v{S0+i+1}")
        A(f"v_and_b32 v{S0+i+1}, 0xffff0000, v{S0+i+1}")
A(f"s_mov_b32 s{sT4}, {f2u(0.25 * math.log2(math.e))}")
A.label("L_sl1")
ld_kraw(); adv()
A("s_waitcnt vmcnt(0)")
for ct in range(8):
    A(f"v_mfma_f32_32x32x16_bf16 v[{S0}:{S0+15}], v[{KV[0]}:{KV[0]+3}], v[{QF+4*ct}:{QF+4*ct+3}], 0")
    A.nop(12)
    round_scores()
    for i in range(8):
        A(f"v_max3_f32 v{vM+ct}, v{S0+2*i}, v{S0+2*i+1}, v{vM+ct}")
A(f"""
s_sub_u32 s{sLOOP}, s{sLOOP}, 1
s_cmp_lg_u32 s{sLOOP}, 0
s_cbranch_scc1 L_sl1
s_lshl_b32 s{sT0}, s{sWAVE}, 11
s_add_u32 s{sT0}, s{sT0}, {CB}
v_lshlrev_b32 v8, 2, v{vLANE}
v_add_u32 v8, s{sT0}, v8
v_lshlrev_b32 v10, 2, v{vL31}
v_add_u32 v10, {CB}, v10
""")
a_sync()
def pair_off(pr):
    A(f"s_add_u32 s{sT0}, s{sWAVE}, {pr + 1}")
    A(f"s_and_b32 s{sT0}, s{sT0}, 3")
    A(f"s_lshl_b32 s{sT0}, s{sT0}, 9")
for pr in range(4):
    pair_off(pr)
    A(f"v_add_u32 v9, s{sT0}, v8")
    A(f"ds_write_b32 v9, v{vM+2*pr}")
    A(f"ds_write_b32 v9, v{vM+2*pr+1} offset:256")
a_sync()
for ct in range(8):
    if ct % 2 == 0:
        pair_off(ct // 2)
        A(f"v_add_u32 v9, s{sT0}, v10")
    for w in range(4):
        A(f"ds_read_b32 v{S0+2*w}, v9 offset:{w*2048 + (ct%2)*256}")
        A(f"ds_read_b32 v{S0+2*w+1}, v9 offset:{w*2048 + (ct%2)*256 + 128}")
    A("s_waitcnt lgkmcnt(0)")
    for w in range(4):
        A(f"v_max3_f32 v{vM+ct}, v{S0+2*w}, v{S0+2*w+1}, v{vM+ct}")
a_sync()
A(f"s_mov_b32 s{sLOOP}, 16")
A.label("L_sl2")
ld_kraw(); ld_v(0, 0, 0); ld_v(0, 1, 0); adv()
A("s_waitcnt vmcnt(0)")
for ct in range(8):
    A(f"v_mfma_f32_32x32x16_bf16 v[{S0}:{S0+15}], v[{KV[0]}:{KV[0]+3}], v[{QF+4*ct}:{QF+4*ct+3}], 0")
    A.nop(12)
    round_scores()
    for i in range(16):
        A(f"v_sub_f32 v{S0+i}, v{S0+i}, v{vM+ct}")
    for i in range(16):
        A(f"v_mul_f32 v{S0+i}, s{sT4}, v{S0+i}")
    for i in range(16):
        A(f"v_exp_f32 v{S0+i}, v{S0+i}")
    A.nop(2)
    A(f"v_smfmac_f32_32x32x32_bf16 a[{16*ct}:{16*ct+15}], v[{KV[0]+4}:{KV[0]+7}], v[{S0}:{S0+7}], v{vIDX}")
    A(f"v_smfmac_f32_32x32x32_bf16 a[{16*ct}:{16*ct+15}], v[{KV[0]+8}:{KV[0]+11}], v[{S0+8}:{S0+15}], v{vIDX}")
A(f"""
s_sub_u32 s{sLOOP}, s{sLOOP}, 1
s_cmp_lg_u32 s{sLOOP}, 0
s_cbranch_scc1 L_sl2
s_nop 15
""")
for ct in range(6): part_write(ct)
A("s_waitcnt lgkmcnt(0)")
cnt_add(vCNT, vIDX, 4)
A(f"""
s_add_u32 s{sATG}, s{sATG}, 4
""")
comb_addr(0); comb_addr(1); comb_addr(2); comb_addr(3)
cnt_wait(vCNT, 16, f"s{sATG}", 4)
comb_reads(0); comb_reads(1)
A("s_branch L_comb2")

if OPT["xm"] or OPT["xv"] or OPT["xl"]:
    i0 = A.lines.index("L_S2:"); i1 = A.lines.index("L_hot_end:")
    seen = False
    for i in range(i0, i1):
        t = A.lines[i].strip()
        if t.startswith("ds_write_b128") : seen = True
        if not seen: continue
        if OPT["xm"] and t.startswith("v_mfma"): A.lines[i] = "    s_nop 7"
        if OPT["xv"] and (t.startswith(("v_pk_", "v_fma_f32", "v_cvt_pk", "v_mul_f32", "v_add_f32"))): A.lines[i] = "    s_nop 1"
        if OPT["xl"] and t.startswith(("ds_read_b128", "ds_write_b128")): A.lines[i] = "    s_nop 0"
if OPT["arch"]:
    import re
    def toarch(t):
        t = t.replace("v_accvgpr_read_b32", "v_mov_b32")
        t = re.sub(r"\ba\[(\d+):(\d+)\]", lambda x: f"v[{128+int(x.group(1))}:{128+int(x.group(2))}]", t)
        return re.sub(r"\ba(\d+)\b", lambda x: f"v{128+int(x.group(1))}", t)
    A.lines = [toarch(l) for l in A.lines]
hdr = open("cdna_kernels/" + NAME + ".s.ref").read().split("; Override launch")[0]
out = hdr + f"""; Fused single-launch kernel, written with the generator script gen/gen18.py (hand-scheduled instruction streams).
; 256 workgroups (one per CU) x 8 waves; workgroup (c, g) = 64 tokens x (4 heads | 64 SSM channels | 64 output columns).
;  waves 0-3 (attention): Q projection -> S^T = K Q^T (32x32x16 MFMA) -> v_exp -> O^T += [V^T;1] P^T with the sparse MFMA,
;     which picks the high (bf16) half of each fp32 exp result; every wave owns a quarter of the keys, partial sums meet in LDS.
;     No max subtraction while |q||k| proves |score*log2e| < 32 (checked at run time); otherwise the slow path redoes the
;     attention with the exact row maxima (and scores rounded to bf16 like the reference).
;  waves 4-7 (SSM + projections): K/V projection, x B^T, chunked complex scan (look-back over chunk aggregates),
;     h C^T + x D, and the output projection.
;  Hand-offs between workgroups go through d_ws with write-through stores and L1-bypassing loads; flags / granules carry a
;  tag derived from a launch counter kept in d_ws[0], the O fragments are recognised by a sentinel written in this launch.
; @launch grid=(256,1,1) block=(512,1,1) lds={LDS_BYTES}
.amdgcn_target "amdgcn-amd-amdhsa--gfx950"
.text
.globl {NAME}_kernel
.p2align 8
.type {NAME}_kernel,@function
{NAME}_kernel:
""" + A.text() + f""".section .rodata,"a"
.p2align 6
.amdhsa_kernel {NAME}_kernel
  .amdhsa_next_free_vgpr 256
  .amdhsa_next_free_sgpr 102
  .amdhsa_accum_offset {256 if OPT["arch"] else 128}
  .amdhsa_group_segment_fixed_size 0
  .amdhsa_kernarg_size 136
  .amdhsa_user_sgpr_count 2
  .amdhsa_user_sgpr_kernarg_segment_ptr 1
  .amdhsa_system_sgpr_workgroup_id_x 1
.end_amdhsa_kernel
"""
open(sys.argv[1], "w").write(out)
errs = check(A.lines) + check(A.lines[loop_end-60:loop_end] + A.lines[loop_start:loop_start+60])
for e in errs: print("HAZARD:", e)
print(f"{len(A.lines)} lines, {len(errs)} hazards")
```
